```python
import torch

def _softmax(x, axis=-1):
    return torch.softmax(x, dim=axis)
def _gelu(x):
    return torch.nn.functional.gelu(x, approximate="tanh")
def _silu(x):
    return torch.nn.functional.silu(x)
def _sigmoid(x):
    return torch.sigmoid(x)
def _layernorm(x, axis=-1, eps=1e-5):
    m = x.mean(dim=axis, keepdim=True)
    v = x.var(dim=axis, keepdim=True, unbiased=False)
    return (x - m) / torch.sqrt(v + eps)
def _scatter_add(tgt, idx, src, axis=0):
    return tgt.clone().index_add_(axis, idx, src)
def _segment_sum(src, seg, n):
    out = torch.zeros((n,) + src.shape[1:], dtype=src.dtype)
    return out.index_add_(0, seg, src)
def _pad(x, pw):
    flat = tuple(v for pair in reversed(pw) for v in pair)
    return torch.nn.functional.pad(x, flat)

kernel_name = 'sequential_preLN__sliding_block__mixer_s_mlp__prompt'

def setup_inputs():

    _w = (lambda a: (lambda t: t.to(torch.bfloat16) if t.is_floating_point() else t)(torch.as_tensor(a)))
    def _A_setup():
        B, S, D = 1, 2048, 576
        return {
            "x": _w((lambda *s: torch.randn(*s, dtype=torch.bfloat16) * 0.05)(B, S, D)),
            "wqkv": _w((lambda *s: torch.randn(*s, dtype=torch.bfloat16) * 0.05)(D, 3 * D)),
            "wo": _w((lambda *s: torch.randn(*s, dtype=torch.bfloat16) * 0.05)(D, D)),
        }
    _A_in = _A_setup()

    def _B_setup():
        B, S, D, F = 1, 2048, 576, 4608
        return {
            "x":  _w((lambda *s: torch.randn(*s, dtype=torch.bfloat16) * 0.05)(B, S, D)),
            "w1": _w((lambda *s: torch.randn(*s, dtype=torch.bfloat16) * 3.2)(D, D) * (D ** -0.5)),
            "w2": _w((lambda *s: torch.randn(*s, dtype=torch.bfloat16) * 3.2)(D, D) * (D ** -0.5)),
            "w3": _w((lambda *s: torch.randn(*s, dtype=torch.bfloat16) * 3.2)(D, F) * (D ** -0.5)),
            "w4": _w((lambda *s: torch.randn(*s, dtype=torch.bfloat16) * 3.2)(F, D) * (F ** -0.5)),
        }
    _B_in = _B_setup()

    return {
        "A_x": _A_in["x"],
        "A_wqkv": _A_in["wqkv"],
        "A_wo": _A_in["wo"],
        "B_x": _B_in["x"],
        "B_w1": _B_in["w1"],
        "B_w2": _B_in["w2"],
        "B_w3": _B_in["w3"],
        "B_w4": _B_in["w4"],
    }

def reference(A_x, A_wqkv, A_wo, B_x, B_w1, B_w2, B_w3, B_w4):
    def _A_ref(x, wqkv, wo):
        B, S, D = x.shape
        H = 32; Dh = D // H; W = 256
        qkv = (lambda x, *d: x.permute(*d))((x @ wqkv).reshape(B, S, 3, H, Dh), 2, 0, 3, 1, 4)
        q, k, v = qkv[0], qkv[1], qkv[2]
        scores = torch.einsum("bhqd,bhkd->bhqk", q, k) * (Dh ** -0.5)
        idx = torch.arange(S)
        mask = (idx[:, None] - idx[None, :] >= 0) & (idx[:, None] - idx[None, :] < W)
        scores = torch.where(mask[None, None], scores, -1e9)
        p = _softmax(scores, axis=-1)
        o = torch.einsum("bhqk,bhkd->bhqd", p, v)
        return (lambda x, *d: x.permute(*d))(o, 0, 2, 1, 3).reshape(B, S, D) @ wo

    def _B_ref(x, w1, w2, w3, w4):
        B, S, D = x.shape
        h = _gelu(_layernorm(x, axis=-1) @ w1)
        c = D // 4
        g0 = _pad(h[:, :, 0*c:1*c], ((0, 0), (1, 0), (0, 0)))[:, :S, :]
        g1 = _pad(h[:, :, 1*c:2*c], ((0, 0), (0, 1), (0, 0)))[:, 1:, :]
        g2 = _pad(h[:, :, 2*c:3*c], ((0, 0), (2, 0), (0, 0)))[:, :S, :]
        g3 = _pad(h[:, :, 3*c:   ], ((0, 0), (0, 2), (0, 0)))[:, 2:, :]
        hs = torch.concatenate([g0, g1, g2, g3], axis=-1) @ w2
        x1 = x + hs
        h2 = _gelu(_layernorm(x1, axis=-1) @ w3) @ w4
        return x1 + h2

    x = A_x
    h = x + _A_ref(_layernorm(x, axis=-1), A_wqkv, A_wo)
    h2 = h + _B_ref(_layernorm(h, axis=-1), B_w1, B_w2, B_w3, B_w4)
    return h2
```

```python
import re

TRANS = ("v_exp_f32","v_log_f32","v_rcp_f32","v_rsq_f32","v_sqrt_f32","v_sin_f32","v_cos_f32","v_rcp_iflag_f32")

def regs_of(tok):
    t = tok.strip()
    t = t.lstrip("-")
    m = re.match(r"^abs\((.*)\)$", t)
    if m: t = m.group(1)
    t = t.strip("|")
    m = re.match(r"^([vas])\[(\d+):(\d+)\]$", t)
    if m: return ["%s%d" % (m.group(1), i) for i in range(int(m.group(2)), int(m.group(3))+1)]
    m = re.match(r"^([vas])(\d+)$", t)
    if m: return [t]
    if t == "vcc": return ["vcc_lo","vcc_hi"]
    if t == "exec": return ["exec_lo","exec_hi"]
    if t in ("vcc_lo","vcc_hi","exec_lo","exec_hi","m0"): return [t]
    return []

class Ins:
    __slots__=("text","op","kind","w","r","rC","passes","extra","target","nstates")
    def __init__(s, text):
        s.text=text; s.kind=None; s.w=[]; s.r=[]; s.rC=[]; s.passes=0; s.extra={}; s.target=None; s.nstates=1
        body = text.split(";")[0].strip()
        if not body or body.startswith(".") and not body.endswith(":"):
            s.op=None; s.kind="dir"; s.nstates=0; return
        if body.endswith(":"):
            s.op=None; s.kind="label"; s.target=body[:-1]; s.nstates=0; return
        parts = body.split(None,1)
        op = parts[0]; s.op=op
        rest = parts[1] if len(parts)>1 else ""
        ops=[]; depth=0; cur=""
        for ch in rest:
            if ch in "[(": depth+=1
            if ch in "])": depth-=1
            if ch=="," and depth==0: ops.append(cur.strip()); cur=""
            else: cur+=ch
        if cur.strip(): ops.append(cur.strip())
        mods=""
        if ops:
            last=ops[-1].split()
            if len(last)>1:
                ops[-1]=last[0]; mods=" ".join(last[1:])
        s.extra["mods"]=mods; s.extra["ops"]=ops
        R=lambda i: regs_of(ops[i]) if i<len(ops) else []
        base=re.sub(r"_(e32|e64|dpp|sdwa)$","",op)
        if op.startswith("v_mfma"):
            s.kind="mfma"; s.w=R(0); s.r=R(1)+R(2); s.rC=R(3)
            s.passes = 8 if "32x32" in op else 4
        elif op.startswith("v_"):
            s.kind="valu"
            if base.startswith("v_cmp"):
                s.w=R(0); s.r=R(1)+R(2)
                assert not base.startswith("v_cmpx"), "no cmpx"
            elif base in ("v_readfirstlane_b32","v_readlane_b32"):
                s.w=R(0); s.r=R(1)+R(2); s.extra["rdlane"]=1
            elif base.startswith("v_permlane"):
                s.w=R(0)+R(1); s.r=R(0)+R(1); s.extra["perml"]=1
            elif base in ("v_add_co_u32","v_sub_co_u32","v_addc_co_u32","v_subb_co_u32","v_mad_u64_u32"):
                s.w=R(0)+R(1); s.r=sum((R(i) for i in range(2,len(ops))),[])
            elif base=="v_nop":
                pass
            else:
                s.w=R(0); s.r=sum((R(i) for i in range(1,len(ops))),[])
                if base.startswith("v_fmac") or base.startswith("v_dot2c") or base.startswith("v_pk_fmac") or base=="v_writelane_b32": s.r+=R(0)
                if base=="v_cndmask_b32" and len(ops)==3: s.r+=["vcc_lo","vcc_hi"]
            if base in TRANS: s.extra["trans"]=1
            if base.startswith("v_dot"): s.extra["dot"]=base
            if "dpp" in op or "row_" in mods or "quad_perm" in mods: s.extra["dpp"]=1
        elif op.startswith("ds_"):
            s.kind="ds"
            if op.startswith("ds_read") or op.startswith("ds_bpermute") or op.startswith("ds_permute") or op.startswith("ds_swizzle"):
                s.w=R(0); s.r=sum((R(i) for i in range(1,len(ops))),[])
            else:
                s.r=sum((R(i) for i in range(len(ops))),[])
        elif op.startswith("buffer_") :
            s.kind="vmem"
            lds = " lds" in (" "+mods)
            if lds:
                s.r=sum((R(i) for i in range(len(ops))),[])+["m0"]; s.extra["lds"]=1
            elif op.startswith("buffer_wbl2"):
                pass
            elif op.startswith("buffer_load"):
                s.w=R(0); s.r=sum((R(i) for i in range(1,len(ops))),[])
            elif op.startswith("buffer_store"):
                s.r=sum((R(i) for i in range(len(ops))),[])
                if "x3" in op or "x4" in op: s.extra["wstore"]=R(0)
                s.extra["sdata"]=R(0)
            else:
                raise ValueError(text)
        elif op.startswith("global_"):
            s.kind="vmem"
            if op.startswith("global_load"):
                s.w=R(0); s.r=sum((R(i) for i in range(1,len(ops))),[])
            elif op.startswith("global_store"):
                s.r=sum((R(i) for i in range(len(ops))),[])
                if "x3" in op or "x4" in op: s.extra["wstore"]=R(1)
            else:
                raise ValueError(text)
        elif op.startswith("s_load") or op in ("s_memtime","s_memrealtime"):
            s.kind="smem"; s.w=R(0); s.r=sum((R(i) for i in range(1,len(ops))),[])
        elif op=="s_nop":
            s.kind="nop"; s.nstates=int(ops[0],0)+1
        elif op=="s_waitcnt":
            s.kind="wait"
            t=rest
            m=re.search(r"vmcnt\((\d+)\)",t); s.extra["vm"]=int(m.group(1)) if m else None
            m=re.search(r"lgkmcnt\((\d+)\)",t); s.extra["lg"]=int(m.group(1)) if m else None
        elif op.startswith("s_cbranch") or op=="s_branch":
            s.kind="branch"; s.target=ops[0]
        elif op in ("s_endpgm","s_barrier","s_sleep","s_setprio"):
            s.kind="misc"
        elif op.startswith("s_"):
            s.kind="salu"
            if op.startswith("s_cmp") or op.startswith("s_bitcmp"):
                s.r=R(0)+R(1)
            elif op in("s_setpc_b64",):
                s.r=R(0); s.kind="jump"
            else:
                s.w=R(0); s.r=sum((R(i) for i in range(1,len(ops))),[])
                if "saveexec" in op: s.w+=["exec_lo","exec_hi"]
        else:
            raise ValueError("unparsed: "+text)

def need(prod, cons):
    n=0
    pw=set(prod.w); cr=set(cons.r); cw=set(cons.w); cC=set(cons.rC)
    isv=lambda r: r[0] in "va" and r[1:].isdigit()
    if prod.kind=="valu":
        vw={r for r in pw if isv(r)}; sw=pw-vw
        if cons.kind=="mfma" and vw&(cr|cC): n=max(n,2)
        if cons.kind=="vmem" and sw&cr: n=max(n,5)
        if cons.kind=="valu" and sw&cr: n=max(n, 4 if cons.extra.get("rdlane") else 2)
        if cons.kind=="valu" and vw&cr:
            if cons.extra.get("rdlane"): n=max(n,1)
            if cons.extra.get("perml") or cons.extra.get("dpp"): n=max(n,2)
            if prod.extra.get("trans") and not cons.extra.get("trans"): n=max(n,1)
            if prod.extra.get("trans") and cons.extra.get("trans"): n=max(n,1)
        if prod.extra.get("dot") and cons.kind in("valu","mfma","vmem","ds") and vw&(cr|cw|cC):
            same = cons.extra.get("dot")==prod.extra.get("dot")
            if same:
                ops=cons.extra["ops"]
                ab=set(regs_of(ops[1])+regs_of(ops[2]))
                if vw&ab: n=max(n,3)
            else: n=max(n,3)
    if prod.kind=="mfma":
        big = 12 if prod.passes==8 else 8
        if cons.kind=="mfma":
            if pw&cr: n=max(n,big)
            if pw&cC:
                if not (prod.w==cons.rC and prod.passes==cons.passes): n=max(n,big-2)
            if pw&cw and not (pw&cC): n=max(n,big-2)
        elif cons.kind in("valu","vmem","ds") and pw&(cr|cw): n=max(n,big)
        if cons.kind=="valu" and set(prod.rC)&cw: n=max(n, 7 if prod.passes==8 else 3)
    if prod.kind=="salu" and "m0" in pw and cons.extra.get("lds"): n=max(n,1)
    if prod.extra.get("wstore") and set(prod.extra["wstore"])&cw:
        n=max(n, 2 if cons.kind in("valu","mfma") else 1)
    return n

WIN=14
def _check_from(ins, hist, start, labels):
    miss=0; d=0; i=start
    while i<len(ins) and d<WIN:
        c=ins[i]
        if c.op is not None:
            for p,dist in hist:
                k=need(p,c)-(dist+d)
                if k>miss: miss=k
            d+=c.nstates
            if c.op=="s_branch": i=labels[c.target]; continue
            if c.op=="s_endpgm" or c.kind=="jump": break
        i+=1
    return miss

def fix_hazards(lines):
    ins=[Ins(l) for l in lines]
    added=0
    while True:
        labels={x.target:i for i,x in enumerate(ins) if x.kind=="label"}
        out=[]; hist=[]; changed=False
        for i,c in enumerate(ins):
            if c.op is None:
                out.append(c); continue
            miss=0
            for p,dist in hist:
                k=need(p,c)-dist
                if k>miss: miss=k
            if c.kind=="branch" and c.target in labels:
                h2=[(p,dist+1) for p,dist in hist]
                miss=max(miss,_check_from(ins,h2,labels[c.target],labels))
            if miss>0:
                out.append(Ins("s_nop %d" % (miss-1))); added+=miss; changed=True
                hist=[(p,d+miss) for p,d in hist]
            out.append(c)
            hist=[(p,d+c.nstates) for p,d in hist if d+c.nstates<WIN]
            if c.kind in("valu","mfma","salu","vmem"): hist.append((c,0))
            if c.op=="s_branch" or c.op=="s_endpgm": hist=[]
        ins=out
        if not changed: break
    return [x.text for x in ins], added

def check_waits(lines, takes=None, maxsteps=400000):
    ins=[Ins(l) for l in lines]
    labels={x.target:i for i,x in enumerate(ins) if x.kind=="label"}
    takes=dict(takes or {}); seen={}
    vm=[]; lg=[]; errs=[]; i=0; steps=0
    while i<len(ins) and steps<maxsteps:
        c=ins[i]; steps+=1
        if c.op is None: i+=1; continue
        use=set(c.r)|set(c.w)|set(c.rC)
        for q,nm in((vm,"vm"),(lg,"lg")):
            for o in q:
                if set(o.w)&use and not (nm=="vm" and c.kind=="vmem" and not(set(o.w)&set(c.r))) and not (nm=="lg" and c.kind=="ds" and o.kind=="ds" and not(set(o.w)&set(c.r))):
                    errs.append("line %d: %s  uses pending %s result of: %s"%(i,c.text.strip(),nm,o.text.strip()))
        if c.kind=="vmem": vm.append(c)
        if c.kind in("ds","smem"): lg.append(c)
        if len(vm)>63: errs.append("line %d: more than 63 vmem outstanding"%i); vm=vm[-63:]
        if c.kind=="wait":
            if c.extra["vm"] is not None:
                n=c.extra["vm"]; vm=vm[len(vm)-n:] if n<len(vm) else vm
                if n==0: vm=[]
            if c.extra["lg"] is not None:
                n=c.extra["lg"]
                if any(o.kind=="smem" for o in lg) and n!=0: errs.append("line %d: counted lgkm with smem pending"%i)
                lg=lg[len(lg)-n:] if 0<n<len(lg) else ([] if n==0 else lg)
        if c.op=="s_endpgm": break
        if c.kind=="branch":
            t=labels[c.target]
            if c.op=="s_branch": i=t; continue
            k=seen.get(i,0); seen[i]=k+1
            if c.target in takes:
                k=seen.get(c.target,0); seen[c.target]=k+1
                d=takes[c.target]
                go = d[min(k,len(d)-1)] if isinstance(d,(list,tuple)) else d
            else:
                go = (t<i and k<1)
            if go: i=t; continue
        i+=1
    return errs
```

```python
from gen import *

NEG = 0xF149F2CA

def phase2(a):
    KL_, VL_ = 0, 27648
    a("s_lshr_b32 s50, s%d, 1" % S_SLOT); a("s_and_b32 s51, s%d, 1" % S_SLOT); a("s_lshl_b32 s46, s%d, 1" % S_XCD); a("s_add_u32 s51, s51, s46")
    a("s_mul_i32 s52, s51, %d" % HPSZ)
    a("s_add_u32 s46, s52, %d" % K_OFF); a.srd_s(R_A, S_WS, HPSZ, 46)
    a("s_add_u32 s46, s52, %d" % V_OFF); a.srd_s(R_B, S_WS, HPSZ, 46)
    a("s_mul_i32 s46, s50, 9216"); a("s_sub_u32 s46, s46, 18432"); a("s_lshl_b32 s47, s%d, 10" % S_WAVE); a("s_add_u32 s46, s46, s47")
    a("v_add_u32 v10, s46, v%d" % V_L16)
    for i in range(1, 7): a("v_add_u32 v%d, %d, v10" % (10+i, 4096*i))
    a("s_lshl_b32 s46, s50, 3"); a("s_lshl_b32 s53, s%d, 1" % S_WAVE); a("s_add_u32 s53, s53, s46")
    a("s_mul_i32 s54, s53, 1152"); a("s_add_u32 s54, s54, s52"); a("s_add_u32 s54, s54, %d" % Q_OFF)
    a("v_lshlrev_b32 v17, 3, v%d" % V_LANE); a("v_lshlrev_b32 v18, 3, v%d" % V_R)
    a("s_mul_i32 s46, s%d, 2304" % S_WAVE)
    a("v_add_u32 v20, s46, v17")
    a("s_add_u32 s47, s46, 1024"); a("v_add_u32 v21, s47, v18")
    a("s_add_u32 s47, s46, %d" % VL_); a("v_add_u32 v22, s47, v%d" % V_L16)
    a("v_lshl_add_u32 v23, v%d, 2, v%d" % (V_R, V_G)); a("s_add_u32 s47, s47, 2048"); a("v_lshl_add_u32 v23, v23, 4, s47")
    for i in range(4):
        a("v_lshl_add_u32 v24, v%d, 2, %d" % (V_G, i)); a("v_cmp_gt_u32 s[%d:%d], v24, v%d" % (60+2*i, 61+2*i, V_R))
    a("v_cmp_eq_u32 s[68:69], 0, v%d" % V_G)
    a("v_mov_b32 v25, 0x%x" % NEG)
    VLA = 72
    for r in range(36): a("v_accvgpr_write_b32 a%d, s%d" % (VLA+r, S_ONES))
    L = a.newlabel("Lp2w")
    a("s_cmp_lg_u32 s%d, 0" % S_WAVE); a("s_cbranch_scc1 %s" % L)
    a("v_lshrrev_b32 v30, 2, v%d" % V_LANE); a("v_min_u32 v30, 2, v30"); a("v_add_u32 v30, s50, v30"); a("v_subrev_u32 v30, 2, v30"); a("v_max_i32 v30, 0, v30")
    a("v_bfe_u32 v31, v%d, 1, 1" % V_LANE); a("v_add_u32 v31, 1, v31"); a("v_cmp_gt_u32 vcc, 12, v%d" % V_LANE); a("v_cndmask_b32 v31, 0, v31, vcc")
    a("v_mul_u32_u24 v31, 576, v31"); a("v_and_b32 v32, 1, v%d" % V_LANE); a("v_mul_u32_u24 v32, 35, v32")
    a("s_mul_i32 s46, s51, 36"); a("v_add3_u32 v31, v31, v32, s46"); a("v_lshrrev_b32 v31, 7, v31")
    a("v_lshl_add_u32 v30, v30, 4, v31"); a("v_add_u32 v30, %d, v30" % F1)
    a.poll(30, 31)
    a("v_min_u32 v30, 53, v%d" % V_LANE); a("v_add_u32 v30, %d, v30" % FS)
    a.poll(30, 31, sleep0=0)
    a.label(L)
    a("s_barrier")
    a.stamp(4)
    QR = 32
    for qt in range(2):
        a("buffer_load_dwordx2 v[%d:%d], v17, s[%d:%d], s54 offen offset:%d sc1" % (QR+6*qt, QR+6*qt+1, R_WS, R_WS+3, 1152*qt))
        a("buffer_load_dwordx2 v[%d:%d], v18, s[%d:%d], s54 offen offset:%d sc1" % (QR+6*qt+2, QR+6*qt+3, R_WS, R_WS+3, 1152*qt+1024))
        a("buffer_load_dwordx2 v[%d:%d], v17, s[%d:%d], s54 offen offset:%d sc1" % (QR+6*qt+4, QR+6*qt+5, R_WS, R_WS+3, 1152*qt+512))
    a("s_lshl_b32 s46, s%d, 10" % S_WAVE)
    for R, base in ((R_A, KL_), (R_B, VL_)):
        for i in range(7):
            Ls = a.newlabel("Lp2d")
            if i == 6: a("s_cmp_eq_u32 s%d, 3" % S_WAVE); a("s_cbranch_scc1 %s" % Ls)
            a("s_add_u32 m0, s46, %d" % (base + 4096*i))
            a("buffer_load_dwordx4 v%d, s[%d:%d], 0 offen sc1 lds" % (10+i, R, R+3))
            if i == 6: a.label(Ls)
    QF, QB = 44, 52
    a("s_waitcnt vmcnt(12)")
    for qt in range(2):
        q = QR+6*qt
        a("v_mov_b32 v%d, v%d" % (QF+4*qt, q)); a("v_mov_b32 v%d, v%d" % (QF+4*qt+1, q+1))
        a("v_cndmask_b32 v%d, 0, v%d, s[68:69]" % (QF+4*qt+2, q+2)); a("v_mov_b32 v%d, 0" % (QF+4*qt+3))
        a("v_mov_b32 v%d, v%d" % (QB+4*qt, q+4)); a("v_mov_b32 v%d, v%d" % (QB+4*qt+1, q+5))
        a("v_mov_b32 v%d, 0" % (QB+4*qt+2)); a("v_cndmask_b32 v%d, 0, v%d, s[68:69]" % (QB+4*qt+3, q+3))
    a("s_lshl_b32 s55, s50, 3"); a("s_lshl_b32 s46, s%d, 1" % S_WAVE); a("s_add_u32 s55, s55, s46"); a("s_sub_u32 s55, 16, s55")
    a("s_mov_b32 s56, 0")
    a("s_waitcnt vmcnt(0)"); a("s_barrier")
    a.stamp(5)
    a("s_cmp_lt_u32 s50, 2"); a("s_cbranch_scc1 L_p2_edge")
    M, NM, CZ = 60, 64, 72
    S1 = 80
    S2, P, VM = 112, 144, 160
    OM, OL, R_, OUT = 168, 176, 184, 192
    for edge in (0, 1):
        Lh = "L_p2_edge" if edge else "L_p2_head"
        a.label(Lh)
        def kread(t):
            return ["ds_read_b64 a[%d:%d], v20 offset:%d" % (4*t, 4*t+1, 1152*t), "ds_read_b64 a[%d:%d], v21 offset:%d" % (4*t+2, 4*t+3, 1152*t)]
        def has(qt, t): return (t <= 16) if qt == 0 else (t >= 1)
        def mask(reg, qt, t):
            o = []
            for i in range(4):
                if t == qt: o.append("v_cndmask_b32 v%d, v25, v%d, s[%d:%d]" % (reg+i, reg+i, 60+2*i, 61+2*i))
                if t == 16+qt: o.append("v_cndmask_b32 v%d, v%d, v25, s[%d:%d]" % (reg+i, reg+i, 60+2*i, 61+2*i))
            return o
        def switch(t, moves):
            Ls = a.newlabel("Lsw")
            a("s_cmp_eq_u32 s55, %d" % t); a("s_cbranch_scc0 %s" % Ls)
            for x in moves: a(x)
            a.label(Ls)
        AHEAD = 4
        for t in range(AHEAD):
            for x in kread(t): a(x)
        a("s_mov_b32 exec_lo, 0x00030003"); a("s_mov_b32 exec_hi, 0x00030003")
        for m in range(5): a("ds_read_b128 a[%d:%d], v23 offset:%d" % (VLA+4*m, VLA+4*m+3, 2304*m))
        a("s_mov_b64 exec, -1")
        a("v_mov_b32 v%d, v25" % M); a("v_mov_b32 v%d, v25" % (M+1))
        if edge:
            for i in range(4): a("v_mov_b32 v%d, v25" % (CZ+i))
        def maxes(t):
            o = []
            for qt in range(2):
                if not has(qt, t): continue
                s = S1 + 8*(t % 3) + 4*qt
                o += mask(s, qt, t)
                o.append("v_max3_f32 v%d, v%d, v%d, v%d" % (M+qt, s, s+1, M+qt))
            for qt in range(2):
                if not has(qt, t): continue
                s = S1 + 8*(t % 3) + 4*qt
                o.append("v_max3_f32 v%d, v%d, v%d, v%d" % (M+qt, s+2, s+3, M+qt))
            return o
        for t in range(18):
            if edge and t % 2 == 0: switch(t, ["v_mov_b32 v%d, 0" % (CZ+i) for i in range(4)])
            n = 2*min(AHEAD-1, 17-t) + (5 if t < AHEAD else 0)
            a("s_waitcnt lgkmcnt(%d)" % n)
            ms = [mfma(S1+8*(t % 3)+4*qt, 4*t, QF+4*qt, CZ if edge else None, ta="a") for qt in range(2) if has(qt, t)]
            fill = (kread(t+AHEAD) if t+AHEAD < 18 else []) + (maxes(t-2) if t >= 2 else [])
            interleave(a, ms, fill)
        a("s_mov_b32 exec_lo, 0x00030003"); a("s_mov_b32 exec_hi, 0x00030003")
        for m in range(5, 9): a("ds_read_b128 a[%d:%d], v23 offset:%d" % (VLA+4*m, VLA+4*m+3, 2304*m))
        a("s_mov_b64 exec, -1")
        a("ds_read_b128 v[%d:%d], v22" % (VM, VM+3))
        for x in maxes(16) + maxes(17): a(x)
        for sw in ("v_permlane32_swap_b32", "v_permlane16_swap_b32"):
            for qt in range(2): a("v_mov_b32 v%d, v%d" % (62+qt, M+qt))
            for qt in range(2): a("%s v%d, v%d" % (sw, M+qt, 62+qt))
            for qt in range(2): a("v_max_f32 v%d, v%d, v%d" % (M+qt, M+qt, 62+qt))
        negs = ["v_sub_f32 v%d, 0, v%d" % (NM+4*qt+i, M+qt) for qt in range(2) for i in range(4)]
        if edge:
            for i in range(8): a("v_mov_b32 v%d, v25" % (NM+i))
        else:
            for x in negs: a(x)
        def qk(m):
            return [mfma(S2+16*(m & 1)+8*qt+4*b, 4*(2*m+b), QF+4*qt, NM+4*qt, ta="a") for qt in range(2) for b in range(2) if has(qt, 2*m+b)]
        def pv(m):
            o = []
            for qt in range(2):
                p = P+8*(m & 1)+4*qt
                o.append(mfma(OM+4*qt, VM+4*(m & 1), p, None if m == 0 else OM+4*qt))
                o.append(mfma(OL+4*qt, VLA+4*m, p, None if m == 0 else OL+4*qt, ta="a"))
            return o
        if edge: switch(0, negs)
        for x in qk(0): a(x)
        for m in range(9):
            if edge and m < 8: switch(2*m+2, negs)
            mf = (qk(m+1) if m < 8 else []) + (pv(m-1) if m else [])
            va = []
            for qt in range(2):
                p = P+8*(m & 1)+4*qt
                for b in range(2):
                    s = S2+16*(m & 1)+8*qt+4*b
                    if has(qt, 2*m+b):
                        va += mask(s, qt, 2*m+b)
                        va += ["v_exp_f32 v%d, v%d" % (s+i, s+i) for i in range(4)]
                for b in range(2):
                    s = S2+16*(m & 1)+8*qt+4*b
                    if has(qt, 2*m+b):
                        va += ["v_cvt_pk_bf16_f32 v%d, v%d, v%d" % (p+2*b+h, s+2*h, s+2*h+1) for h in range(2)]
                    else:
                        va += ["v_mov_b32 v%d, 0" % (p+2*b+h) for h in range(2)]
            if m: a("s_waitcnt lgkmcnt(1)")
            interleave(a, mf, va)
            if m < 8: a("ds_read_b128 v[%d:%d], v22 offset:%d" % (VM+4*((m+1) & 1), VM+4*((m+1) & 1)+3, 2304*(m+1)))
        a("s_waitcnt lgkmcnt(0)")
        for x in pv(8): a(x)
        a("v_add_u32 v20, 512, v20"); a("v_add_u32 v22, 1024, v22"); a("v_add_u32 v23, 128, v23")
        for i in range(8): a("v_mov_b32 v%d, v%d" % (QF+i, QB+i))
        for qt in range(2): a("v_rcp_f32 v%d, v%d" % (62+qt, OL+4*qt+3))
        for qt in range(2):
            for i in range(4): a("v_mul_f32 v%d, v%d, v%d" % (OM+4*qt+i, OM+4*qt+i, 62+qt))
            for i in range(2): a("v_mul_f32 v%d, v%d, v%d" % (OL+4*qt+i, OL+4*qt+i, 62+qt))
        a("s_cmp_lg_u32 s56, 0"); a("s_cbranch_scc1 %s_b" % Lh)
        for qt in range(2):
            for h in range(2): a("v_cvt_pk_bf16_f32 v%d, v%d, v%d" % (OUT+4*qt+h, OM+4*qt+2*h, OM+4*qt+2*h+1))
            a("v_cvt_pk_bf16_f32 v%d, v%d, v%d" % (R_+2*qt, OL+4*qt, OL+4*qt+1))
        a("s_mov_b32 s56, 1")
        a("s_branch %s" % Lh)
        a.label(Lh + "_b")
        if not edge: a("s_branch L_p2_out")
    a.label("L_p2_out")
    for qt in range(2):
        for h in range(2): a("v_cvt_pk_bf16_f32 v%d, v%d, v%d" % (OUT+4*qt+2+h, OM+4*qt+2*h, OM+4*qt+2*h+1))
        a("v_cvt_pk_bf16_f32 v%d, v%d, v%d" % (R_+2*qt+1, OL+4*qt, OL+4*qt+1))
    a("s_mul_i32 s54, s53, 18432"); a("s_add_u32 s54, s54, %d" % O_OFF)
    a("s_lshl_b32 s46, s51, 10"); a("s_add_u32 s46, s46, s54"); a("s_add_u32 s47, s46, 18432")
    a("buffer_store_dwordx4 v[%d:%d], v%d, s[%d:%d], s46 offen sc1" % (OUT, OUT+3, V_L16, R_WS, R_WS+3))
    a("buffer_store_dwordx4 v[%d:%d], v%d, s[%d:%d], s47 offen sc1" % (OUT+4, OUT+7, V_L16, R_WS, R_WS+3))
    a("s_lshr_b32 s46, s51, 3"); a("s_add_u32 s46, s46, 16"); a("s_lshl_b32 s46, s46, 10"); a("s_add_u32 s54, s54, s46")
    a("s_and_b32 s46, s51, 7"); a("s_lshr_b32 s46, s46, 1"); a("s_lshl_b32 s46, s46, 8"); a("s_add_u32 s54, s54, s46")
    a("s_and_b32 s46, s51, 1"); a("s_lshl_b32 s46, s46, 3"); a("s_add_u32 s54, s54, s46"); a("s_add_u32 s47, s54, 18432")
    a("s_mov_b64 exec, 0xffff")
    a("buffer_store_dwordx2 v[%d:%d], v%d, s[%d:%d], s54 offen sc1" % (R_, R_+1, V_L16, R_WS, R_WS+3))
    a("buffer_store_dwordx2 v[%d:%d], v%d, s[%d:%d], s47 offen sc1" % (R_+2, R_+3, V_L16, R_WS, R_WS+3))
    a("s_mov_b64 exec, -1")
    a.stamp(6)
    a("s_lshl_b32 s57, s50, 4"); a("s_add_u32 s57, s57, s51"); a("s_add_u32 s57, s57, %d" % F2)
    if a.stop == 2:
        a("s_waitcnt vmcnt(0)")


C0 = -2.0*math.log2(math.e)*math.sqrt(2/math.pi)
C1 = C0*0.044715

def gelu_pk(a, regs, t, sc):
    for k, r in enumerate(regs): a("v_pk_mul_f32 v[%d:%d], v[%d:%d], v[%d:%d]" % (t+2*k, t+2*k+1, r, r+1, r, r+1))
    for k, r in enumerate(regs): a("v_pk_fma_f32 v[%d:%d], v[%d:%d], s[%d:%d], s[%d:%d] op_sel:[0,0,1] op_sel_hi:[1,0,1]" % (t+2*k, t+2*k+1, t+2*k, t+2*k+1, sc, sc+1, sc, sc+1))
    for k, r in enumerate(regs): a("v_pk_mul_f32 v[%d:%d], v[%d:%d], v[%d:%d]" % (t+2*k, t+2*k+1, t+2*k, t+2*k+1, r, r+1))
    for k in range(2*len(regs)): a("v_exp_f32 v%d, v%d" % (t+k, t+k))
    for k, r in enumerate(regs): a("v_pk_add_f32 v[%d:%d], v[%d:%d], 1.0 op_sel_hi:[1,0]" % (t+2*k, t+2*k+1, t+2*k, t+2*k+1))
    for k in range(2*len(regs)): a("v_rcp_f32 v%d, v%d" % (t+k, t+k))
    for k, r in enumerate(regs): a("v_pk_mul_f32 v[%d:%d], v[%d:%d], v[%d:%d]" % (r, r+1, r, r+1, t+2*k, t+2*k+1))

def stats_loads(a, off, stile, vt):
    a("v_lshlrev_b32 v%d, 3, v%d" % (vt+4, V_LANE))
    a("v_add_u32 v%d, 512, v%d" % (vt+5, vt+4)); a("v_cmp_gt_u32 vcc, 32, v%d" % V_LANE); a("v_mov_b32 v%d, 0x7fffffff" % vt)
    a("v_cndmask_b32 v%d, v%d, v%d, vcc" % (vt+5, vt, vt+5))
    a("s_mul_i32 s46, s%d, 768" % stile); a("s_add_u32 s46, s46, %d" % off)
    return ["buffer_load_dwordx2 v[%d:%d], v%d, s[%d:%d], s46 offen sc1" % (vt+2*k, vt+2*k+1, vt+4+k, R_WS, R_WS+3) for k in range(2)]

def stats_finish(a, vt, vmean, vrstd):
    a("v_add_f32 v%d, v%d, v%d" % (vt, vt, vt+2)); a("v_add_f32 v%d, v%d, v%d" % (vt+1, vt+1, vt+3))
    for sw in ("v_permlane32_swap_b32", "v_permlane16_swap_b32"):
        for k in range(2): a("v_mov_b32 v%d, v%d" % (vt+2+k, vt+k))
        for k in range(2): a("%s v%d, v%d" % (sw, vt+k, vt+2+k))
        for k in range(2): a("v_add_f32 v%d, v%d, v%d" % (vt+k, vt+k, vt+2+k))
    a("s_mov_b32 s47, %d" % f32(1.0/576))
    a("v_mul_f32 v%d, s47, v%d" % (vmean, vt)); a("v_mul_f32 v%d, v%d, v%d" % (vt, vmean, vmean))
    a("v_fma_f32 v%d, v%d, s47, -v%d" % (vt+1, vt+1, vt)); a("v_max_f32 v%d, 0, v%d" % (vt+1, vt+1))
    a("v_add_f32 v%d, %d, v%d" % (vt, f32(1e-5), vt+1)); a("v_rsq_f32 v%d, v%d" % (vrstd, vt))

def norm_ops(x, vs, vb, t):
    o = []
    for r in range(4):
        o.append("v_lshlrev_b32 v%d, 16, v%d" % (t+2*r, x+r)); o.append("v_and_b32 v%d, 0xffff0000, v%d" % (t+2*r+1, x+r))
    for r in range(8): o.append("v_fma_f32 v%d, v%d, v%d, v%d" % (t+r, t+r, vs, vb))
    for r in range(4): o.append("v_cvt_pk_bf16_f32 v%d, v%d, v%d" % (x+r, t+2*r, t+2*r+1))
    return o

def out_stats(a, pk, n, vt, off):
    a("v_mov_b32 v%d, 0" % vt); a("v_mov_b32 v%d, 0" % (vt+1))
    for r in range(n):
        a("v_dot2c_f32_bf16 v%d, s%d, v%d" % (vt, S_ONES, pk+r)); a("v_dot2c_f32_bf16 v%d, v%d, v%d" % (vt+1, pk+r, pk+r))
    for sw in ("v_permlane32_swap_b32", "v_permlane16_swap_b32"):
        for k in range(2): a("v_mov_b32 v%d, v%d" % (vt+2+k, vt+k))
        for k in range(2): a("%s v%d, v%d" % (sw, vt+k, vt+2+k))
        for k in range(2): a("v_add_f32 v%d, v%d, v%d" % (vt+k, vt+k, vt+2+k))
    a("s_mul_i32 s46, s53, 6"); a("s_add_u32 s46, s46, s51"); a("s_lshl_b32 s46, s46, 7"); a("s_add_u32 s46, s46, %d" % off)
    a("v_lshlrev_b32 v%d, 3, v%d" % (vt+2, V_LANE))
    a("s_mov_b64 exec, 0xffff")
    a("buffer_store_dwordx2 v[%d:%d], v%d, s[%d:%d], s46 offen sc1" % (vt, vt+1, vt+2, R_WS, R_WS+3))
    a("s_mov_b64 exec, -1")

AF, ACC, WB, HK, VMEAN, VRSTD, XT = 64, 136, 160, 208, 220, 221, 224

def wdma(a, first, n, sblk):
    for i in range(n):
        if i % 4 == 0:
            a("s_add_u32 s46, s%d, %d" % (sblk, 1024*(first+i))); a("s_mov_b32 m0, s46"); a("s_add_u32 s47, s46, s58")
        a("buffer_load_dwordx4 v%d, s[%d:%d], s47 offen offset:%d sc1 lds" % (V_L16, R_WS, R_WS+3, 1024*(i % 4)))

def handoff(a, woff, extra, deps, stamp):
    a("s_barrier")
    a("s_mul_i32 s58, s51, 110592"); a("s_add_u32 s58, s58, %d" % woff)
    a("s_mul_i32 s59, s%d, 12288" % S_WAVE)
    wdma(a, 0, 12, 59)
    for x in extra: a(x)
    a("s_waitcnt vmcnt(%d)" % (12 + len(extra))); a("s_barrier")
    L = a.newlabel("Lho")
    a("s_cmp_lg_u32 s%d, 0" % S_WAVE); a("s_cbranch_scc1 %s_d" % L)
    a.set_flag(57, 30)
    deps()
    a.poll(30, 31)
    a("s_branch %s" % L)
    a.label(L + "_d")
    a("s_mul_i32 s59, s%d, 20480" % S_WAVE)
    wdma(a, 28, 20, 59)
    a.label(L)
    a("s_waitcnt vmcnt(0)"); a("s_barrier")
    a.stamp(stamp)

def gemm96(a, loads, pre=0, norm=None, each=None):
    UP = 8
    def wr(j): return ["ds_read_b128 v[%d:%d], v%d offset:%d" % (WB+24*(j & 1)+4*t, WB+24*(j & 1)+4*t+3, 5+(t//3), (t % 3)*18432 + 1024*j) for t in range(6)]
    for j in range(UP): a(loads[j])
    for x in wr(0): a(x)
    if each: each(UP)
    if norm:
        a("s_waitcnt vmcnt(%d)" % (UP-1))
        for x in norm(0): a(x)
    for j in range(18):
        issued = min(18, UP+j)
        need = j+1 if (norm and j < 17) else j
        a("s_waitcnt vmcnt(%d) lgkmcnt(0)" % (issued-1-need))
        ms = [mfma(ACC+4*t, WB+24*(j & 1)+4*t, AF+4*j, None if j == 0 else ACC+4*t) for t in range(6)]
        fill = (wr(j+1) if j < 17 else []) + ([loads[UP+j]] if UP+j < 18 else []) + (norm(j+1) if norm and j < 17 else [])
        interleave(a, ms, fill)

def phase345(a):
    a("s_lshr_b32 s46, s%d, 3" % S_SLOT); a("s_lshl_b32 s50, s%d, 2" % S_XCD); a("s_add_u32 s50, s50, s46"); a("s_and_b32 s51, s%d, 7" % S_SLOT)
    a("s_cmp_ge_u32 s51, 6"); a("s_cbranch_scc1 L_p3_helper")
    a("s_lshl_b32 s53, s50, 2"); a("s_add_u32 s53, s53, s%d" % S_WAVE)
    a("v_mov_b32 v5, v%d" % V_L16); a("v_add_u32 v6, %d, v%d" % (3*18432, V_L16))
    a("s_mul_i32 s54, s53, 18432")
    a("s_mul_i32 s55, s51, 3072"); a("s_add_u32 s55, s55, s54")
    def aloads(off):
        for q in range(5): a("s_add_u32 s%d, s54, %d" % (70+q, off + 4096*q))
        return ["buffer_load_dwordx4 v[%d:%d], v%d, s[%d:%d], s%d offen offset:%d sc1" % (AF+4*j, AF+4*j+3, V_L16, R_WS, R_WS+3, 70+(j >> 2), 1024*(j & 3)) for j in range(18)]
    def ostores(src, off):
        a("s_add_u32 s46, s55, %d" % off)
        for jj in range(3): a("buffer_store_dwordx4 v[%d:%d], v%d, s[%d:%d], s46 offen offset:%d sc1" % (src+4*jj, src+4*jj+3, V_L16, R_WS, R_WS+3, 1024*jj))
    def team(F):
        def f(): a("v_min_u32 v30, 5, v%d" % V_LANE); a("s_lshl_b32 s46, s50, 3"); a("s_add_u32 s46, s46, %d" % F); a("v_add_u32 v30, s46, v30")
        return f
    def myflag(F): a("s_lshl_b32 s57, s50, 3"); a("s_add_u32 s57, s57, s51"); a("s_add_u32 s57, s57, %d" % F)
    a.srd(R_A, S_X, ACT)
    a("v_mul_u32_u24 v7, 1152, v%d" % V_R); a("v_lshl_add_u32 v7, v%d, 4, v7" % V_G)
    a("s_mul_i32 s56, s51, 192"); a("s_add_u32 s56, s56, s54")
    xl = ["buffer_load_dwordx4 v[%d:%d], v7, s[%d:%d], s56 offen offset:%d" % (XT+4*jj, XT+4*jj+3, R_A, R_A+3, 64*jj) for jj in range(3)]
    def dep3(): a("s_lshr_b32 s46, s50, 1"); a("s_lshl_b32 s46, s46, 4"); a("s_add_u32 s46, s46, %d" % F2); a("v_add_u32 v30, s46, v%d" % V_R)
    handoff(a, WO_S, xl, dep3, 7)
    gemm96(a, aloads(O_OFF))
    a("s_mov_b32 s46, 0x00003f80"); a("s_mov_b32 s47, 0x3f800000")
    for t in range(6):
        for i in range(4): a("v_dot2c_f32_bf16 v%d, s%d, v%d" % (ACC+4*t+i, 46+(i & 1), XT+4*(t >> 1)+2*(t & 1)+(i >> 1)))
    for k in range(12): a("v_cvt_pk_bf16_f32 v%d, v%d, v%d" % (HK+k, ACC+2*k, ACC+2*k+1))
    ostores(HK, H_OFF)
    out_stats(a, HK, 12, 10, SH_OFF)
    myflag(F3)
    if a.stop == 3: a("s_waitcnt vmcnt(0)"); a("s_branch L_fin")
    handoff(a, W1_S, [], team(F3), 8)
    for x in stats_loads(a, SH_OFF, 53, 10): a(x)
    def fin4(younger):
        a("s_waitcnt vmcnt(%d)" % younger)
        stats_finish(a, 10, VMEAN, VRSTD)
        a("v_mul_f32 v12, v%d, v%d" % (VRSTD, VRSTD)); a("v_mul_f32 v12, v12, v11"); a("v_add_f32 v12, %d, v12" % f32(1e-5))
        a("v_rsq_f32 v12, v12"); a("v_mul_f32 v16, v12, v%d" % VRSTD); a("v_mul_f32 v17, v16, -v%d" % VMEAN)
    gemm96(a, aloads(H_OFF), norm=lambda j: norm_ops(AF+4*j, 16, 17, 20), each=fin4)
    a("s_mov_b32 s48, %d" % f32(C1)); a("s_mov_b32 s49, %d" % f32(C0))
    gelu_pk(a, [ACC+2*k for k in range(12)], 20, 48)
    for k in range(12): a("v_cvt_pk_bf16_f32 v%d, v%d, v%d" % (XT+k, ACC+2*k, ACC+2*k+1))
    ostores(XT, T_OFF)
    myflag(F4)
    if a.stop == 4: a("s_waitcnt vmcnt(0)"); a("s_branch L_fin")
    a.srd(R_A, S_WS, ACT, T_OFF)
    a("s_lshl_b32 s46, s53, 4"); a("v_add_u32 v20, s46, v%d" % V_R); a("s_mov_b32 s47, 18432")
    for k, sh in enumerate((1, -1, 2, -2)):
        a("v_subrev_u32 v21, %d, v20" % sh); a("v_ashrrev_i32 v22, 4, v21"); a("v_mul_lo_u32 v22, v22, s47")
        a("v_and_b32 v21, 15, v21"); a("v_lshl_add_u32 v21, v%d, 4, v21" % V_G); a("v_lshl_add_u32 v%d, v21, 4, v22" % (10+k))
    a("v_cmp_gt_u32 vcc, 32, v%d" % V_LANE); a("v_cndmask_b32 v14, v11, v10, vcc"); a("v_cndmask_b32 v15, v13, v12, vcc")
    for q in range(5): a("s_mov_b32 s%d, %d" % (70+q, 4096*q))
    def vsel(j): return 10 if j < 4 else 14 if j == 4 else 11 if j < 9 else 12 if j < 13 else 15 if j == 13 else 13
    tl = ["buffer_load_dwordx4 v[%d:%d], v%d, s[%d:%d], s%d offen offset:%d sc1" % (AF+4*j, AF+4*j+3, vsel(j), R_A, R_A+3, 70+(j >> 2), 1024*(j & 3)) for j in range(18)]
    def dep5():
        a("v_lshrrev_b32 v31, 3, v%d" % V_LANE); a("v_min_u32 v31, 2, v31"); a("v_add_u32 v31, s50, v31"); a("v_subrev_u32 v31, 1, v31")
        a("v_med3_i32 v31, v31, 0, 31"); a("v_and_b32 v30, 7, v%d" % V_LANE); a("v_min_u32 v30, 5, v30")
        a("v_lshl_add_u32 v30, v31, 3, v30"); a("v_add_u32 v30, %d, v30" % F4)
    handoff(a, W2_S, [], dep5, 9)
    gemm96(a, tl)
    a("v_mul_f32 v17, v%d, -v%d" % (VRSTD, VMEAN))
    for k in range(12):
        a("v_lshlrev_b32 v20, 16, v%d" % (HK+k)); a("v_and_b32 v21, 0xffff0000, v%d" % (HK+k))
        a("v_fma_f32 v20, v20, v%d, v17" % VRSTD); a("v_fma_f32 v21, v21, v%d, v17" % VRSTD)
        a("v_pk_add_f32 v[%d:%d], v[%d:%d], v[20:21]" % (ACC+2*k, ACC+2*k+1, ACC+2*k, ACC+2*k+1))
    for k in range(12): a("v_cvt_pk_bf16_f32 v%d, v%d, v%d" % (XT+k, ACC+2*k, ACC+2*k+1))
    ostores(XT, X1_OFF)
    out_stats(a, XT, 12, 10, SX_OFF)
    myflag(F5)
    a("s_waitcnt vmcnt(0)"); a("s_barrier")
    a("s_cmp_lg_u32 s%d, 0" % S_WAVE); a("s_cbranch_scc1 L_p5_done")
    a.set_flag(57, 30)
    a("s_branch L_p5_done")
    a.label("L_p3_helper")
    a("s_waitcnt vmcnt(0)"); a("s_barrier")
    L = a.newlabel("Lh")
    a("s_cmp_lg_u32 s%d, 0" % S_WAVE); a("s_cbranch_scc1 %s" % L)
    a.set_flag(57, 30)
    a.label(L)
    swizzle_setup(a)
    a("s_lshl_b32 s48, s50, 1"); a("s_add_u32 s48, s48, s51"); a("s_add_u32 s48, s48, 48")
    a.label("L_p3_round")
    Lf = swizzle_units(a, 48, "64", 3, "342")
    swizzle_flags(a, 3, Lf)
    a("s_add_u32 s48, s48, 192"); a("s_cmp_lt_u32 s48, 342"); a("s_cbranch_scc1 L_p3_round")
    a.label("L_p5_done")
    a.stamp(10)

def phase6(a):
    RING, AC, GT, PK, XR = 64, 136, 168, 184, 136
    HB = 73728
    def xf(T, j):
        f = 4*j + T
        return ("a", 4*f) if f < 64 else ("v", 224 + 4*(f-64))
    a("s_lshr_b32 s46, s%d, 1" % S_XCD); a("s_lshl_b32 s50, s46, 3"); a("s_lshr_b32 s46, s%d, 2" % S_SLOT); a("s_add_u32 s50, s50, s46")
    a("s_and_b32 s46, s%d, 1" % S_XCD); a("s_lshl_b32 s51, s46, 2"); a("s_and_b32 s46, s%d, 3" % S_SLOT); a("s_add_u32 s51, s51, s46")
    a("s_lshl_b32 s53, s50, 2"); a("s_add_u32 s53, s53, s%d" % S_WAVE)
    a("s_lshl_b32 s46, s51, 2"); a("s_add_u32 s46, s46, s%d" % S_WAVE); a("s_mul_i32 s54, s46, %d" % (9*18432))
    a("s_add_u32 s55, s54, %d" % W4_S); a("s_add_u32 s54, s54, %d" % W3_S)
    a("s_mul_i32 s56, s50, 72"); a("s_add_u32 s56, s56, s51"); a("s_lshl_b32 s56, s56, 2"); a("s_add_u32 s56, s56, s%d" % S_WAVE)
    a("s_lshl_b32 s56, s56, 11"); a("s_add_u32 s56, s56, %d" % PART)
    a("s_mul_i32 s46, s53, 18432")
    for q in range(5): a("s_add_u32 s%d, s46, %d" % (70+q, X1_OFF + 4096*q))
    a("s_mul_i32 s46, s%d, 18432" % S_WAVE); a("v_add_u32 v5, s46, v%d" % V_L16)
    a("v_add_u32 v6, 36864, v%d" % V_L16); a("v_add_u32 v7, %d, v%d" % (HB, V_L16)); a("v_add_u32 v8, %d, v%d" % (HB+36864, V_L16))
    a("s_lshr_b32 s46, s%d, 1" % S_WAVE); a("s_lshl_b32 s46, s46, 10"); a("s_and_b32 s47, s%d, 1" % S_WAVE); a("s_lshl_b32 s47, s47, 3")
    a("s_add_u32 s46, s46, s47"); a("v_add_u32 v9, s46, v7")
    a("s_mov_b32 s48, %d" % f32(C1)); a("s_mov_b32 s49, %d" % f32(C0)); a("v_mov_b32 v18, s49")
    sl = stats_loads(a, SX_OFF, 53, 10)
    a("s_mov_b32 s60, s46")
    sl = [x.replace("s46", "s60") for x in sl]
    L = a.newlabel("Lp6w")
    a("s_cmp_lg_u32 s%d, 0" % S_WAVE); a("s_cbranch_scc1 %s" % L)
    a("s_mul_i32 s46, s51, 18"); a("s_add_u32 s46, s46, %d" % (FS + 54 - 6))
    a("v_min_u32 v31, 41, v%d" % V_LANE); a("v_add_u32 v30, s46, v31"); a("v_add_u32 v32, 126, v30")
    a("v_cmp_lt_u32 vcc, 23, v31"); a("v_cndmask_b32 v30, v30, v32, vcc")
    a("s_lshl_b32 s46, s50, 3"); a("s_add_u32 s46, s46, %d" % F5); a("v_add_u32 v32, s46, v31")
    a("v_cmp_gt_u32 vcc, 6, v31"); a("v_cndmask_b32 v30, v30, v32, vcc")
    a.poll(30, 31)
    a.label(L)
    a("s_barrier")
    a.stamp(11)
    def wload(j):
        o = ["s_add_u32 s58, s58, 4096"] if (j and j % 4 == 0) else []
        return o + ["buffer_load_dwordx4 v[%d:%d], v%d, s[%d:%d], s58 offen offset:%d sc1" % (RING+4*j, RING+4*j+3, V_L16, R_WS, R_WS+3, 1024*(j & 3))]
    for x in sl: a(x)
    for j in range(18):
        a("buffer_load_dwordx4 v[%d:%d], v%d, s[%d:%d], s%d offen offset:%d sc1" % (XR+4*j, XR+4*j+3, V_L16, R_WS, R_WS+3, 70+(j >> 2), 1024*(j & 3)))
    a("s_mov_b32 s58, s54")
    a("s_waitcnt vmcnt(18)")
    stats_finish(a, 10, 16, 17)
    a("v_mul_f32 v16, v17, -v16")
    for j in range(18):
        a("s_waitcnt vmcnt(17)")
        for x in wload(j): a(x)
        for x in norm_ops(XR+4*j, 17, 16, 20): a(x)
        a("ds_write_b128 v5, v[%d:%d] offset:%d" % (XR+4*j, XR+4*j+3, 1024*j))
    a("s_waitcnt lgkmcnt(0)"); a("s_barrier")
    a.stamp(12)
    def fread(j, va):
        o = []
        for T in range(4):
            t, r = xf(T, j)
            o.append("ds_read_b128 %s[%d:%d], v%d offset:%d" % (t, r, r+3, va[T >> 1], (T & 1)*18432 + 1024*j))
        return o
    def gelu(ac):
        o = []
        for T in range(4):
            x = ac + 4*T; t = GT + 4*T
            o += ["v_mul_f32 v%d, v%d, v%d" % (t+i, x+i, x+i) for i in range(4)]
            o += ["v_fma_f32 v%d, v%d, s48, v18" % (t+i, t+i) for i in range(4)]
            o += ["v_mul_f32 v%d, v%d, v%d" % (t+i, t+i, x+i) for i in range(4)]
            o += ["v_exp_f32 v%d, v%d" % (t+i, t+i) for i in range(4)]
            o += ["v_add_f32 v%d, 1.0, v%d" % (t+i, t+i) for i in range(4)]
            o += ["v_rcp_f32 v%d, v%d" % (t+i, t+i) for i in range(4)]
            o += ["v_mul_f32 v%d, v%d, v%d" % (t+i, t+i, x+i) for i in range(4)]
            o += ["v_cvt_pk_bf16_f32 v%d, v%d, v%d" % (PK+2*T+h, t+2*h, t+2*h+1) for h in range(2)]
            o.append("ds_write_b64 v9, v[%d:%d] offset:%d" % (PK+2*T, PK+2*T+1, 18432*T))
        o.append("v_add_u32 v9, 2048, v9")
        return o
    def wt(op): return 2 if op.startswith(("v_exp", "v_rcp")) else 1
    def subpass(ac, fill, first=None, early=False):
        tot = sum(wt(x) for x in fill); k = 0; done = 0
        if first:
            for j in range(2):
                for x in fread(j, first): a(x)
        for j in range(18):
            if first: a("s_waitcnt vmcnt(17) lgkmcnt(%d)" % (4 if j < 17 else 0))
            else: a("s_waitcnt vmcnt(17)")
            rd = fread(j+2, first) if (first and j < 16) else []
            for T in range(4):
                t, r = xf(T, j)
                a(mfma(ac+4*T, RING+4*j, r, None if j == 0 else ac+4*T, tb=t))
                if rd: a(rd[T])
                if T == 3:
                    for x in wload(j): a(x)
                m = 4*j + T
                if m >= 3 and T != 3:
                    span = 12 if early else 51
                    slot = m - 3 - (m+1)//4 + 1
                    want = min(tot, (tot*(slot+1) + span - 1)//span)
                    while k < len(fill) and done < want: a(fill[k]); done += wt(fill[k]); k += 1
        assert k == len(fill)
    a("s_add_u32 s54, s54, 18432"); a("s_mov_b32 s58, s54")
    subpass(AC, [], first=(V_L16, 6))
    a("s_mov_b32 s59, 0")
    a.label("L_p6_a")
    for half in (1, 0):
        a("s_add_u32 s54, s54, 18432"); a("s_mov_b32 s58, s54")
        if half == 0:
            a("s_add_u32 s46, s55, %d" % (8*18432)); a("s_cmp_eq_u32 s59, 3"); a("s_cselect_b32 s58, s46, s58")
        subpass(AC+16*half, gelu(AC+16*(1-half)))
    a("s_add_u32 s59, s59, 1"); a("s_cmp_lt_u32 s59, 4"); a("s_cbranch_scc1 L_p6_a")
    gelu_pk(a, [AC+2*k for k in range(8)], GT, 48)
    for T in range(4):
        for h in range(2): a("v_cvt_pk_bf16_f32 v%d, v%d, v%d" % (PK+2*T+h, AC+4*T+2*h, AC+4*T+2*h+1))
        a("ds_write_b64 v9, v[%d:%d] offset:%d" % (PK+2*T, PK+2*T+1, 18432*T))
    a("s_waitcnt lgkmcnt(0)"); a("s_barrier")
    a.stamp(13)
    def nextslice():
        a("s_add_u32 s61, s61, 1"); a("s_and_b32 s61, s61, 7"); a("s_mul_i32 s58, s61, 18432"); a("s_add_u32 s58, s58, s55")
    def pstore(ac):
        o = ["v_cvt_pk_bf16_f32 v%d, v%d, v%d" % (PK+k, ac+2*k, ac+2*k+1) for k in range(8)]
        o += ["buffer_store_dwordx4 v[%d:%d], v%d, s[%d:%d], s62 offen offset:%d sc1" % (PK+4*p, PK+4*p+3, V_L16, R_WS, R_WS+3, 1024*p) for p in range(2)]
        return o
    a("s_mov_b32 s61, s51"); nextslice()
    subpass(AC, [], first=(7, 8))
    a("s_add_u32 s63, s56, %d" % (8*65536)); a("s_mov_b32 s59, 0")
    a.label("L_p6_b")
    for half in (1, 0):
        a("s_mov_b32 s62, s63"); a("s_lshl_b32 s63, s61, 16"); a("s_add_u32 s63, s63, s56")
        nextslice()
        subpass(AC+16*half, pstore(AC+16*(1-half)), early=True)
    a("s_add_u32 s59, s59, 1"); a("s_cmp_lt_u32 s59, 4"); a("s_cbranch_scc1 L_p6_b")
    a.stamp(14)
    a("s_lshl_b32 s46, s51, 1"); a("s_lshr_b32 s47, s%d, 1" % S_WAVE); a("s_add_u32 s46, s46, s47"); a("s_lshl_b32 s46, s46, 10")
    a("s_mul_i32 s60, s50, 73728"); a("s_add_u32 s46, s46, s60")
    for k, off in enumerate((H_OFF, X1_OFF)):
        for T in range(4):
            a("s_add_u32 s47, s46, %d" % (off + 18432*T))
            a("buffer_load_dwordx4 a[%d:%d], v%d, s[%d:%d], s47 offen sc1" % (56+16*k+4*T, 59+16*k+4*T, V_L16, R_WS, R_WS+3))
    a("v_lshrrev_b32 v10, 2, v%d" % V_R); a("v_cmp_eq_u32 s[64:65], v10, v%d" % V_G)
    a("v_and_b32 v10, 1, v%d" % V_R); a("v_lshlrev_b32 v10, 4, v10"); a("v_mov_b32 v11, 0x3f80"); a("v_lshlrev_b32 v11, v10, v11")
    a("v_cndmask_b32 v11, 0, v11, s[64:65]"); a("v_and_b32 v10, 2, v%d" % V_R); a("v_cmp_eq_u32 vcc, 0, v10")
    a("v_cndmask_b32 v22, 0, v11, vcc"); a("v_cndmask_b32 v23, v11, 0, vcc")
    for r in (20, 21, 24, 25): a("v_mov_b32 v%d, 0" % r)
    def selpar(d, s, bit):
        a("s_bitcmp1_b32 s%d, %d" % (s, bit)); a("s_cselect_b64 vcc, -1, 0")
        for h in range(2):
            a("v_cndmask_b32 v%d, v%d, 0, vcc" % (d+h, 22+h)); a("v_cndmask_b32 v%d, 0, v%d, vcc" % (d+2+h, 22+h))
    selpar(26, S_WAVE, 0); selpar(32, 51, 1)
    a("s_waitcnt vmcnt(8)"); a("s_barrier")
    L = a.newlabel("Lp7w")
    a("s_cmp_lg_u32 s%d, 0" % S_WAVE); a("s_cbranch_scc1 %s" % L)
    a("s_lshl_b32 s47, s50, 3"); a("s_add_u32 s47, s47, %d" % F6); a("v_and_b32 v30, 7, v%d" % V_LANE); a("v_add_u32 v30, s47, v30")
    a("s_add_u32 s57, s47, s51")
    a.set_flag(57, 36)
    a.poll(30, 31)
    a.label(L)
    a("s_barrier")
    a.stamp(15)
    a("s_mul_i32 s46, s50, 9"); a("s_add_u32 s46, s46, s51"); a("s_lshl_b32 s46, s46, 16"); a("s_lshl_b32 s47, s%d, 11" % S_WAVE)
    a("s_add_u32 s46, s46, s47"); a("s_add_u32 s62, s46, %d" % PART)
    for k in range(7):
        a("s_add_u32 s46, s51, %d" % (k+1)); a("s_and_b32 s46, s46, 7"); a("s_lshl_b32 s46, s46, 13"); a("s_add_u32 s46, s46, s62")
        for p in range(2):
            a("buffer_load_dwordx4 a[%d:%d], v%d, s[%d:%d], s46 offen offset:%d sc1" % (8*k+4*p, 8*k+4*p+3, V_L16, R_WS, R_WS+3, 1024*p))
    a("s_cmp_lg_u32 s%d, 3" % S_WAVE); a("s_cbranch_scc1 L_p7_main")
    EA = 152
    a("s_mul_i32 s46, s50, 9"); a("s_add_u32 s46, s46, 8"); a("s_lshl_b32 s46, s46, 16"); a("s_lshl_b32 s47, s51, 10")
    a("s_add_u32 s46, s46, s47"); a("s_add_u32 s46, s46, %d" % PART)
    for k in range(8):
        a("buffer_load_dwordx4 a[%d:%d], v%d, s[%d:%d], s46 offen sc1" % (96+4*k, 99+4*k, V_L16, R_WS, R_WS+3))
        a("s_add_u32 s46, s46, 8192")
    a("s_and_b32 s46, s51, 1"); a("s_mul_i32 s63, s46, 36864"); a("s_add_u32 s63, s63, s60")
    a("s_lshr_b32 s47, s51, 2"); a("s_add_u32 s47, s47, 16"); a("s_lshl_b32 s46, s47, 10"); a("s_add_u32 s46, s46, s63")
    for k, off in enumerate((H_OFF, X1_OFF)):
        for T in range(2):
            a("s_add_u32 s64, s46, %d" % (off + 18432*T))
            a("buffer_load_dwordx4 a[%d:%d], v%d, s[%d:%d], s64 offen sc1" % (128+8*k+4*T, 131+8*k+4*T, V_L16, R_WS, R_WS+3))
    a("s_lshl_b32 s47, s47, 6"); a("s_add_u32 s63, s63, s47"); a("s_and_b32 s46, s51, 2"); a("s_lshl_b32 s46, s46, 2"); a("s_add_u32 s63, s63, s46")
    a("v_mul_u32_u24 v10, 1152, v%d" % V_R); a("v_lshl_add_u32 v10, v%d, 4, v10" % V_G)
    a.srd(R_A, S_OUT, ACT)
    for k in range(8):
        a("s_waitcnt vmcnt(%d)" % (11-k))
        a(mfma(EA, 22, 96+4*k, None if k == 0 else EA, tb="a")); a(mfma(EA+4, 20, 96+4*k, None if k == 0 else EA+4, tb="a"))
    a("s_waitcnt vmcnt(0)")
    for k in range(2):
        for T in range(2): a(mfma(EA+4*T, 32, 128+8*k+4*T, EA+4*T, tb="a"))
    for T in range(2):
        for h in range(2): a("v_cvt_pk_bf16_f32 v%d, v%d, v%d" % (PK+2*T+h, EA+4*T+2*h, EA+4*T+2*h+1))
        a("buffer_store_dwordx2 v[%d:%d], v10, s[%d:%d], s63 offen" % (PK+2*T, PK+2*T+1, R_A, R_A+3))
        a("s_add_u32 s63, s63, 18432")
    a("s_waitcnt vmcnt(0)")
    a.label("L_p7_main")
    a("s_waitcnt vmcnt(14)")
    for k in range(2):
        for T in range(4): a(mfma(AC+4*T, 26, 56+16*k+4*T, AC+4*T, tb="a"))
    for k in range(7):
        a("s_waitcnt vmcnt(%d)" % (12-2*k))
        for T in range(4): a(mfma(AC+4*T, 20 if T & 1 else 22, 8*k+4*(T >> 1), AC+4*T, tb="a"))
    a("v_mul_u32_u24 v10, 144, v%d" % V_R); a("v_lshl_add_u32 v10, v%d, 4, v10" % V_G)
    a("s_lshr_b32 s46, s%d, 1" % S_WAVE); a("s_lshl_b32 s46, s46, 6"); a("s_and_b32 s47, s%d, 1" % S_WAVE); a("s_lshl_b32 s47, s47, 3")
    a("s_add_u32 s46, s46, s47"); a("v_add_u32 v10, s46, v10")
    a("v_lshrrev_b32 v11, 3, v0"); a("v_and_b32 v12, 7, v0"); a("v_lshlrev_b32 v12, 4, v12")
    a("v_mul_u32_u24 v13, 144, v11"); a("v_add_u32 v13, v13, v12")
    a("v_mul_u32_u24 v14, 1152, v11"); a("v_add_u32 v14, v14, v12")
    a.srd(R_A, S_OUT, ACT)
    a("s_lshl_b32 s46, s51, 7"); a("s_add_u32 s46, s46, s60"); a("s_add_u32 s47, s46, 36864")
    for T in range(4):
        for h in range(2): a("v_cvt_pk_bf16_f32 v%d, v%d, v%d" % (GT+2*T+h, AC+4*T+2*h, AC+4*T+2*h+1))
        a("ds_write_b64 v10, v[%d:%d] offset:%d" % (GT+2*T, GT+2*T+1, 2304*T))
    a("s_waitcnt lgkmcnt(0)"); a("s_barrier")
    for p in range(2): a("ds_read_b128 v[%d:%d], v13 offset:%d" % (GT+8+4*p, GT+11+4*p, 4608*p))
    for p in range(2):
        a("s_waitcnt lgkmcnt(%d)" % (1-p))
        a("buffer_store_dwordx4 v[%d:%d], v14, s[%d:%d], s%d offen" % (GT+8+4*p, GT+11+4*p, R_A, R_A+3, 46+p))
```

```python
import sys, os, struct, math
sys.path.insert(0, "dev")
from asmlib import Asm, build
from hazard import fix_hazards, check_waits

NAME = "sequential_preLN__sliding_block__mixer_s_mlp__prompt"
KN = NAME + "_kernel"

ACT = 2048*576*2
SW  = 576*576*2
BW  = 576*4608*2
FLAG0 = 128
F1, FS, F2, F3, F4, F5, F6 = 0, 256, 640, 896, 1152, 1408, 1664
TS_OFF = 0x40000
Q_OFF  = 0x50000
K_OFF  = Q_OFF + ACT
V_OFF  = K_OFF + ACT
O_OFF  = V_OFF + ACT
H_OFF  = O_OFF + ACT
T_OFF  = H_OFF + ACT
X1_OFF = T_OFF + ACT
SH_OFF = X1_OFF + ACT
SX_OFF = SH_OFF + 98304
WO_S   = SX_OFF + 98304
W1_S   = WO_S + SW
W2_S   = W1_S + SW
W3_S   = W2_S + SW
W4_S   = W3_S + BW
PART   = W4_S + BW
WS_END = PART + 32*9*8*8192
HPSZ   = 147456

def f32(x): return struct.unpack("<I", struct.pack("<f", x))[0]
def magic(d): return (1 << 32)//d + 1

S_X, S_WQKV, S_WO = 4, 6, 8
S_W1, S_W2, S_W3, S_W4 = 12, 14, 16, 18
S_OUT, S_DBG, S_WS = 20, 22, 24
R_WS, R_A, R_B = 28, 32, 36
S_WAVE, S_XCD, S_SLOT, S_NONCE = 40, 41, 42, 43
S_ONES = 44
V_LANE, V_R, V_G, V_L16 = 1, 2, 3, 4

class G(Asm):
    def __init__(s, stop=99, stamps=False):
        super().__init__()
        s.stop = stop; s.stamps = stamps; s.nstamp = 0
    def srd(a, d, p, size, add=0):
        if add >= 0:
            a("s_add_u32 s%d, s%d, %s" % (d, p, add)); a("s_addc_u32 s%d, s%d, 0" % (d+1, p+1))
        else:
            a("s_sub_u32 s%d, s%d, %d" % (d, p, -add)); a("s_subb_u32 s%d, s%d, 0" % (d+1, p+1))
        a("s_mov_b32 s%d, %d" % (d+2, size)); a("s_mov_b32 s%d, 0x20000" % (d+3))
    def srd_s(a, d, p, size, sreg):
        a("s_add_u32 s%d, s%d, s%d" % (d, p, sreg)); a("s_addc_u32 s%d, s%d, 0" % (d+1, p+1))
        a("s_mov_b32 s%d, %d" % (d+2, size)); a("s_mov_b32 s%d, 0x20000" % (d+3))
    def sdiv(a, q, r, x, d):
        a("s_mul_hi_u32 s%d, s%d, %d" % (q, x, magic(d)))
        if r is not None:
            a("s_mul_i32 s%d, s%d, %d" % (r, q, d)); a("s_sub_u32 s%d, s%d, s%d" % (r, x, r))
    def stamp(a, k=None):
        if not a.stamps: return
        if k is None: k = a.nstamp
        a.nstamp = k + 1
        assert k < 16
        a("s_memtime s[98:99]"); a("s_waitcnt lgkmcnt(0)"); a("s_mov_b32 s%d, s98" % (80+k))
    def stamp_out(a):
        if not a.stamps: return
        a("s_lshl_b32 s98, s2, 2"); a("s_add_u32 s98, s98, s%d" % S_WAVE); a("s_lshl_b32 s98, s98, 6"); a("s_add_u32 s98, s98, %d" % TS_OFF)
        a("v_mov_b32 v255, 0")
        for k in range(16):
            a("v_mov_b32 v254, s%d" % (80+k))
            a("buffer_store_dword v254, v255, s[%d:%d], s98 offen offset:%d" % (R_WS, R_WS+3, 4*k))
            a("s_nop 1")
    def xg_reduce(a, v, t, op="v_add_f32"):
        for sw in ("v_permlane32_swap_b32", "v_permlane16_swap_b32"):
            a("v_mov_b32 v%d, v%d" % (t, v)); a("%s v%d, v%d" % (sw, v, t)); a("%s v%d, v%d, v%d" % (op, v, v, t))
    def get_nonce(a, vt):
        L = a.newlabel("Lnon")
        a("s_mov_b32 s46, 200000"); a("v_mov_b32 v%d, 0" % (vt+2))
        a.label(L)
        a("global_load_dwordx2 v[%d:%d], v%d, s[%d:%d] sc1" % (vt, vt+1, vt+2, S_DBG, S_DBG+1))
        a("s_waitcnt vmcnt(0)")
        a("v_readfirstlane_b32 s47, v%d" % (vt+1)); a("v_readfirstlane_b32 s%d, v%d" % (S_NONCE, vt))
        a("s_sub_u32 s46, s46, 1"); a("s_cbranch_scc1 %s_x" % L)
        a("s_cmp_eq_u32 s47, 0"); a("s_cbranch_scc1 %s" % L)
        a.label(L + "_x")
    def set_flag(a, sidx, vt):
        a("s_lshl_b32 s%d, s%d, 7" % (sidx, sidx)); a("s_add_u32 s%d, s%d, %d" % (sidx, sidx, FLAG0))
        a("v_mov_b32 v%d, s%d" % (vt, S_NONCE)); a("v_mov_b32 v%d, 0" % (vt+1))
        a("s_mov_b64 exec, 1")
        a("buffer_store_dword v%d, v%d, s[%d:%d], s%d offen sc1" % (vt, vt+1, R_WS, R_WS+3, sidx))
        a("s_mov_b64 exec, -1")
    def poll(a, vidx, vt, sleep0=6, sleep=2):
        L = a.newlabel("Lpoll")
        a("v_lshlrev_b32 v%d, 7, v%d" % (vidx, vidx))
        a("s_mov_b32 s46, 100000")
        if sleep0: a("s_sleep %d" % sleep0)
        a.label(L)
        a("buffer_load_dword v%d, v%d, s[%d:%d], 0 offen offset:%d sc1" % (vt, vidx, R_WS, R_WS+3, FLAG0))
        a("s_waitcnt vmcnt(0)")
        a("v_cmp_ne_u32 vcc, s%d, v%d" % (S_NONCE, vt))
        a("s_cbranch_vccz %s_x" % L)
        a("s_sleep %d" % sleep)
        a("s_sub_u32 s46, s46, 1"); a("s_cbranch_scc0 %s" % L)
        a.label(L + "_x")

def mfma(d, A, B, C=None, ta="v", tb="v", td="v"):
    c = "0" if C is None else "%s[%d:%d]" % (td, C, C+3)
    return "v_mfma_f32_16x16x32_bf16 %s[%d:%d], %s[%d:%d], %s[%d:%d], %s" % (td, d, d+3, ta, A, A+3, tb, B, B+3, c)

def interleave(a, main, fill, start=0):
    n = len(main) - start; k = 0
    for i, m in enumerate(main):
        a(m)
        if i >= start:
            upto = (len(fill)*(i-start+1) + n - 1)//n
            while k < upto: a(fill[k]); k += 1

def prologue(a):
    a("s_cmp_ge_u32 s2, 256"); a("s_cbranch_scc1 L_end")
    a("s_load_dwordx4 s[4:7], s[0:1], 0")
    a("s_load_dwordx2 s[24:25], s[0:1], 80")
    a("s_load_dwordx2 s[8:9], s[0:1], 16")
    a("s_load_dwordx8 s[12:19], s[0:1], 32")
    a("s_load_dwordx4 s[20:23], s[0:1], 64")
    a("v_and_b32 v%d, 63, v0" % V_LANE)
    a("v_lshrrev_b32 v5, 6, v0")
    a("v_and_b32 v%d, 15, v0" % V_R)
    a("v_readfirstlane_b32 s%d, v5" % S_WAVE)
    a("v_lshrrev_b32 v%d, 4, v%d" % (V_G, V_LANE))
    a("v_lshlrev_b32 v%d, 4, v%d" % (V_L16, V_LANE))
    a("s_and_b32 s%d, s2, 7" % S_XCD); a("s_lshr_b32 s%d, s2, 3" % S_SLOT)
    a("s_mov_b32 s%d, 0x3f803f80" % S_ONES)
    if a.stamps:
        for k in range(16): a("s_mov_b32 s%d, 0" % (80+k))
        a.stamp(0)

def publish_nonce(a):
    L = a.newlabel("Lpn")
    a("s_xor_b32 s46, s2, 224"); a("s_or_b32 s46, s46, s%d" % S_WAVE); a("s_cmp_lg_u32 s46, 0"); a("s_cbranch_scc1 %s" % L)
    a("v_mov_b32 v252, 0")
    a("buffer_load_dword v250, v252, s[%d:%d], 0 offen sc1" % (R_WS, R_WS+3))
    a("s_mov_b32 s46, 0x9E3779B1")
    a("s_waitcnt vmcnt(0)")
    a("v_mul_lo_u32 v250, v250, s46"); a("v_add_u32 v250, 0x7F4A7C15, v250"); a("v_mov_b32 v251, 1")
    a("s_mov_b64 exec, 1")
    a("buffer_store_dword v250, v252, s[%d:%d], 0 offen sc1" % (R_WS, R_WS+3))
    a("global_store_dwordx2 v252, v[250:251], s[%d:%d] sc1" % (S_DBG, S_DBG+1))
    a("s_mov_b64 exec, -1")
    a.label(L)

def swizzle_setup(a):
    for i in range(9):
        a("v_add_u32 v40, %d, v%d" % (64*i, V_LANE))
        a("v_mul_u32_u24 v%d, 911, v40" % (10+i)); a("v_lshrrev_b32 v%d, 16, v%d" % (10+i, 10+i))
        a("v_mul_u32_u24 v41, 72, v%d" % (10+i)); a("v_sub_u32 v41, v40, v41"); a("v_lshlrev_b32 v%d, 4, v41" % (20+i))
    a("v_lshrrev_b32 v40, 2, v%d" % V_R); a("v_lshl_add_u32 v40, v%d, 3, v40" % V_G); a("v_mul_u32_u24 v40, 1152, v40")
    a("v_and_b32 v41, 3, v%d" % V_R); a("v_lshl_add_u32 v30, v41, 4, v40")
    a("s_lshr_b32 s46, s%d, 1" % S_WAVE); a("s_lshl_b32 s46, s46, 6"); a("s_and_b32 s47, s%d, 1" % S_WAVE); a("s_lshl_b32 s47, s47, 3")
    a("s_add_u32 s46, s46, s47"); a("v_add_u32 v30, s46, v30")

def swizzle_units(a, s_first, s_step, nb, s_end):
    Ld = a.newlabel("Lswd")
    a("s_mov_b32 s50, s%d" % s_first)
    a("s_mov_b32 s58, 0")
    for i in range(nb):
        Ln = a.newlabel("Lsw")
        a("s_cmp_ge_u32 s50, %s" % s_end); a("s_cbranch_scc1 %s_go" % Ld)
        a("s_cmp_ge_u32 s50, 54"); a("s_cbranch_scc1 %s_big" % Ln)
        a.sdiv(51, 52, 50, 18)
        a("s_cmp_eq_u32 s51, 1"); a("s_cselect_b32 s54, s%d, s%d" % (S_W1, S_W2)); a("s_cselect_b32 s55, s%d, s%d" % (S_W1+1, S_W2+1))
        a("s_cmp_eq_u32 s51, 0"); a("s_cselect_b32 s54, s%d, s54" % S_WO); a("s_cselect_b32 s55, s%d, s55" % (S_WO+1))
        a("s_mul_i32 s%d, s51, %d" % (60+3*i, SW)); a("s_add_u32 s%d, s%d, %d" % (60+3*i, 60+3*i, WO_S))
        a("s_mul_i32 s53, s%d, 18432" % S_WAVE); a("s_add_u32 s%d, s%d, s53" % (60+3*i, 60+3*i))
        a("s_mov_b32 s%d, 73728" % (61+3*i))
        a("s_lshl_b32 s56, s52, 5"); a("s_lshl_b32 s53, s%d, 3" % S_WAVE); a("s_add_u32 s56, s56, s53")
        a("s_mov_b32 s57, 0"); a("s_mov_b32 s59, 1152")
        a("s_cmp_lg_u32 s51, 0"); a("s_cbranch_scc1 %s_j" % Ln)
        a("s_mul_i32 s56, s52, 36"); a("s_lshl_b32 s53, s%d, 2" % S_WAVE); a("s_add_u32 s56, s56, s53"); a("s_mov_b32 s57, 16")
        a("s_cmp_lt_u32 s52, 16"); a("s_cbranch_scc1 %s_j" % Ln)
        a("s_sub_u32 s56, s52, 16"); a("s_lshl_b32 s56, s56, 2"); a("s_add_u32 s56, s56, s%d" % S_WAVE)
        a("s_mul_i32 s56, s56, 72"); a("s_add_u32 s56, s56, 16"); a("s_mov_b32 s57, 32")
        a("s_branch %s_j" % Ln)
        a.label(Ln + "_big")
        a("s_sub_u32 s53, s50, 54"); a.sdiv(51, 52, 53, 18)
        a("s_mul_i32 s%d, s51, %d" % (60+3*i, 4*9*18432)); a("s_add_u32 s%d, s%d, %d" % (60+3*i, 60+3*i, W3_S))
        a("s_mul_i32 s53, s%d, %d" % (S_WAVE, 9*18432)); a("s_add_u32 s%d, s%d, s53" % (60+3*i, 60+3*i))
        a("s_mov_b32 s%d, 18432" % (61+3*i))
        a("s_lshl_b32 s56, s52, 5"); a("s_lshl_b32 s53, s%d, 3" % S_WAVE); a("s_add_u32 s56, s56, s53"); a("s_mov_b32 s57, 0")
        a("s_cmp_ge_u32 s51, 8"); a("s_cbranch_scc1 %s_w4" % Ln)
        a("s_mul_i32 s53, s51, 1152"); a("s_add_u32 s54, s%d, s53" % S_W3); a("s_addc_u32 s55, s%d, 0" % (S_W3+1)); a("s_mov_b32 s59, 9216")
        a("s_branch %s_j" % Ln)
        a.label(Ln + "_w4")
        a("s_sub_u32 s53, s51, 8"); a("s_mul_i32 s53, s53, %d" % SW); a("s_add_u32 s54, s%d, s53" % S_W4); a("s_addc_u32 s55, s%d, 0" % (S_W4+1)); a("s_mov_b32 s59, 1152")
        a.label(Ln + "_j")
        a("s_lshl_b32 s53, s52, 10"); a("s_add_u32 s%d, s%d, s53" % (60+3*i, 60+3*i))
        a("s_add_u32 s%d, s50, %d" % (62+3*i, FS))
        a("s_mov_b32 s%d, s54" % R_A); a("s_mov_b32 s%d, s55" % (R_A+1))
        a("s_mul_i32 s%d, s59, 575" % (R_A+2)); a("s_add_u32 s%d, s%d, 1152" % (R_A+2, R_A+2)); a("s_mov_b32 s%d, 0x20000" % (R_A+3))
        a("s_mul_i32 s53, s%d, 9216" % S_WAVE); a("s_add_u32 m0, s53, %d" % (i*36864))
        for k in range(9):
            a("v_lshrrev_b32 v40, 2, v%d" % (10+k)); a("v_mul_lo_u32 v40, v40, s57"); a("v_add3_u32 v40, v40, v%d, s56" % (10+k))
            a("v_mul_lo_u32 v40, v40, s59"); a("v_add_u32 v40, v40, v%d" % (20+k))
            a("buffer_load_dwordx4 v40, s[%d:%d], 0 offen lds" % (R_A, R_A+3))
            a("s_add_u32 m0, m0, 1024")
        a("s_add_u32 s58, s58, 1")
        a("s_add_u32 s50, s50, %s" % s_step)
    a.label(Ld + "_go")
    a("s_waitcnt vmcnt(0)"); a("s_barrier")
    for i in range(nb):
        a("s_cmp_le_u32 s58, %d" % i); a("s_cbranch_scc1 %s" % Ld)
        a("v_add_u32 v31, %d, v30" % (i*36864))
        for p in range(9):
            for hh in range(2):
                a("ds_read_b64_tr_b16 v[%d:%d], v31 offset:%d" % (44+4*p+2*hh, 45+4*p+2*hh, hh*4608 + 128*p))
            if p >= 3: pass
        a("s_mov_b32 s53, s%d" % (60+3*i))
        for p in range(9):
            a("s_waitcnt lgkmcnt(%d)" % min(15, 16-2*p))
            a("buffer_store_dwordx4 v[%d:%d], v%d, s[%d:%d], s53 offen sc1" % (44+4*p, 47+4*p, V_L16, R_WS, R_WS+3))
            a("s_add_u32 s53, s53, s%d" % (61+3*i))
    a.label(Ld)
    a("s_waitcnt vmcnt(0)"); a("s_barrier")
    Lf = a.newlabel("Lswf")
    a("s_cmp_lg_u32 s%d, 0" % S_WAVE); a("s_cbranch_scc1 %s" % Lf)
    return Lf

def swizzle_flags(a, nb, Lf):
    for i in range(nb):
        a("s_cmp_le_u32 s58, %d" % i); a("s_cbranch_scc1 %s" % Lf)
        a.set_flag(62+3*i, 40)
    a.label(Lf)

def phase1(a):
    QS = 18**-0.5 * math.log2(math.e)
    a("s_cmp_ge_u32 s%d, 28" % S_SLOT); a("s_cbranch_scc1 L_p1_helper")
    a.sdiv(46, 47, S_SLOT, 7)
    a("s_lshr_b32 s48, s%d, 1" % S_XCD); a("s_lshl_b32 s48, s48, 2"); a("s_add_u32 s50, s48, s46")
    a("s_and_b32 s48, s%d, 1" % S_XCD); a("s_mul_i32 s48, s48, 7"); a("s_add_u32 s51, s48, s47")
    a("s_lshr_b32 s52, s%d, 1" % S_WAVE); a("s_and_b32 s53, s%d, 1" % S_WAVE)
    a("v_lshrrev_b32 v20, 3, v%d" % V_LANE); a("v_and_b32 v21, 7, v%d" % V_LANE)
    a("v_xor_b32 v22, v21, v%d" % V_G); a("v_mul_u32_u24 v20, 1152, v20")
    a("v_lshl_add_u32 v10, v22, 4, v20"); a("v_xor_b32 v22, 4, v22"); a("v_lshl_add_u32 v11, v22, 4, v20")
    a("v_add_u32 v12, %d, v10" % (16*1152 - 2048 + 4096)); a("v_add_u32 v13, %d, v11" % (24*1152 - 3072 + 4096))
    a("v_add_u32 v11, %d, v11" % (8*1152 - 1024 + 4096)); a("v_add_u32 v10, 4096, v10")
    a("v_lshrrev_b32 v20, 1, v%d" % V_R); a("v_xor_b32 v20, v20, v%d" % V_G); a("v_and_b32 v21, 1, v%d" % V_LANE)
    a("v_lshl_add_u32 v21, v20, 1, v21"); a("v_mul_u32_u24 v22, 3456, v%d" % V_G)
    a("v_lshl_add_u32 v14, v21, 4, v22"); a("v_xor_b32 v21, 8, v21"); a("v_lshl_add_u32 v16, v21, 4, v22")
    a("v_add_u32 v15, %d, v14" % (4*3456 - 1024 + 4096)); a("v_add_u32 v17, %d, v16" % (12*3456 - 3072 + 4096))
    a("v_add_u32 v16, %d, v16" % (8*3456 - 2048 + 4096)); a("v_add_u32 v14, 4096, v14")
    a("s_lshl_b32 s54, s50, 2"); a("s_add_u32 s54, s54, s%d" % S_WAVE); a("s_mul_i32 s54, s54, %d" % (32*1152))
    a("s_mul_i32 s55, s%d, %d" % (S_WAVE, 16*3456)); a("s_lshl_b32 s46, s51, 8"); a("s_add_u32 s55, s55, s46")
    a("s_lshl_b32 s56, s%d, 12" % S_WAVE)
    a("s_waitcnt lgkmcnt(0)")
    a.srd(R_A, S_X, ACT + 4096, -4096); a.srd(R_B, S_WQKV, 576*3456 + 4096, -4096)
    def dma(sbuf):
        o = ["s_mov_b32 m0, s%d" % sbuf]
        for j in range(4): o.append("buffer_load_dwordx4 v%d, s[%d:%d], s54 offen offset:%d lds" % (10+j, R_A, R_A+3, 1024*j))
        o.append("s_add_u32 m0, s%d, 16384" % sbuf)
        o.append("s_add_u32 s54, s54, 128")
        for j in range(4): o.append("buffer_load_dwordx4 v%d, s[%d:%d], s55 offen offset:%d lds" % (14+j, R_B, R_B+3, 1024*j))
        o.append("s_add_u32 s55, s55, %d" % (64*3456))
        return o
    for s in range(5):
        d = dma(56)
        a(d[0]); a("s_nop 0")
        for x in d[1:]: a(x)
        a("s_add_u32 s56, s56, 32768")
    a.srd(R_WS, S_WS, WS_END)
    a("v_lshrrev_b32 v30, 2, v%d" % V_R); a("v_and_b32 v31, 3, v%d" % V_R)
    a("v_lshl_add_u32 v32, v%d, 3, v30" % V_G); a("v_lshlrev_b32 v32, 8, v32"); a("v_lshl_add_u32 v32, v31, 3, v32")
    a("v_add_u32 v32, 16384, v32")
    a("v_and_b32 v33, 1, v%d" % V_G); a("v_lshl_add_u32 v33, v33, 2, v30")
    a("s_lshl_b32 s46, s53, 2"); a("s_lshl_b32 s47, s52, 1"); a("s_or_b32 s57, s46, s47")
    for t in range(4):
        a("s_xor_b32 s46, s57, %d" % t); a("v_xor_b32 v34, s46, v33"); a("v_lshl_add_u32 v%d, v34, 5, v32" % (20+t))
    a("v_lshrrev_b32 v30, 1, v%d" % V_R); a("v_xor_b32 v30, v30, v%d" % V_G); a("v_lshlrev_b32 v31, 7, v%d" % V_R)
    a("s_lshl_b32 s46, s52, 13"); a("s_lshl_b32 s47, s53, 12"); a("s_add_u32 s46, s46, s47"); a("s_xor_b32 s47, s46, 4096")
    a("v_lshl_add_u32 v32, v30, 4, v31"); a("v_xor_b32 v33, 64, v32")
    a("v_add_u32 v24, s46, v32"); a("v_add_u32 v25, s47, v32"); a("v_add_u32 v26, s46, v33"); a("v_add_u32 v27, s47, v33")
    ACC, CS, ST, ONE = 48, 112, 120, 140
    XB = (144, 160); WB = (176, 192)
    WA, XA = 28, 32
    for r in range(ACC, ONE): a("v_mov_b32 v%d, 0" % r)
    for r in range(4): a("v_mov_b32 v%d, s%d" % (ONE+r, S_ONES))
    def addr(sbase):
        return ["v_add_u32 v%d, %s, v%d" % (WA+i, sbase, 20+i) for i in range(8)]
    def reads(jj):
        o = []
        for T in range(4):
            o.append("ds_read_b128 v[%d:%d], v%d offset:%d" % (XB[jj]+4*T, XB[jj]+4*T+3, XA+2*jj+(T>>1), 2048*(T&1)))
            for hh in range(2):
                o.append("ds_read_b64_tr_b16 v[%d:%d], v%d offset:%d" % (WB[jj]+4*T+2*hh, WB[jj]+4*T+2*hh+1, WA+T, jj*8192+hh*1024))
        return o
    def mm(jj, swap):
        o = []
        for t in range(4):
            for T in range(4):
                d = ACC+16*t+4*T
                o.append(mfma(d, XB[jj]+4*T, WB[jj]+4*t, d) if swap else mfma(d, WB[jj]+4*t, XB[jj]+4*T, d))
            if t < 2:
                d = CS+4*t
                o.append(mfma(d, ONE, WB[jj]+4*t, d) if swap else mfma(d, WB[jj]+4*t, ONE, d))
            x = XB[jj]+4*(t>>1); d = ST+4*t
            o.append(mfma(d, x if t & 1 else ONE, x, d))
        return o
    for x in addr("0"): a(x)
    a("s_mov_b32 s58, 0"); a("s_mov_b32 s59, 0")
    a("s_waitcnt vmcnt(32)"); a("s_barrier")
    a.stamp(1)
    for x in reads(0): a(x)
    a("s_cmp_ge_u32 s51, 9"); a("s_cbranch_scc1 L_p1_v")
    for swap in (0, 1):
        L = "L_p1_v" if swap else "L_p1_qk"
        a.label(L)
        a("s_waitcnt lgkmcnt(0)")
        interleave(a, mm(0, swap)[:16], reads(1))
        for x in mm(0, swap)[16:]: a(x)
        a("s_add_u32 s58, s58, 1")
        a("s_cmp_ge_u32 s58, 6"); a("s_cbranch_scc1 %s_w" % L)
        a("s_waitcnt vmcnt(24) lgkmcnt(0)")
        a.label(L + "_b")
        a("s_barrier")
        a("s_lshl_b32 s46, s%d, 12" % S_WAVE); a("s_add_u32 s56, s59, s46")
        a("s_add_u32 s59, s59, 32768"); a("s_cmp_eq_u32 s59, 163840"); a("s_cselect_b32 s59, 0, s59")
        m = mm(1, swap)
        ad = addr("s59")
        a(m[0])
        for x in ad[4:6] + ad[0:4]: a(x)
        a("s_cmp_ge_u32 s58, 5"); a("s_cbranch_scc1 %s_n" % L)
        d = dma(56)
        interleave(a, m[1:5], d)
        a("s_branch %s_m" % L)
        a.label(L + "_n")
        for x in m[1:5]: a(x)
        a.label(L + "_m")
        interleave(a, m[5:19], reads(0) + ad[6:8])
        for x in m[19:]: a(x)
        a("s_cmp_lt_u32 s58, 9"); a("s_cbranch_scc1 %s" % L)
        a("s_branch %s_e" % L)
        a.label(L + "_w")
        a("s_cmp_eq_u32 s58, 6"); a("s_cbranch_scc0 %s_w1" % L); a("s_waitcnt vmcnt(16) lgkmcnt(0)"); a("s_branch %s_b" % L)
        a.label(L + "_w1")
        a("s_cmp_eq_u32 s58, 7"); a("s_cbranch_scc0 %s_w2" % L); a("s_waitcnt vmcnt(8) lgkmcnt(0)"); a("s_branch %s_b" % L)
        a.label(L + "_w2")
        a("s_waitcnt vmcnt(0) lgkmcnt(0)"); a("s_branch %s_b" % L)
        a.label(L + "_e")
        a.stamp(2)
        a("s_waitcnt lgkmcnt(0)")
        a("v_and_b32 v40, 1, v%d" % V_R); a("v_cmp_eq_u32 s[60:61], 1, v40")
        a("v_and_b32 v40, 2, v%d" % V_R); a("v_cmp_eq_u32 s[62:63], 2, v40")
        a("v_lshrrev_b32 v40, 2, v%d" % V_R); a("v_cmp_eq_u32 s[64:65], v40, v%d" % V_G)
        a("s_mov_b32 s46, %d" % f32(1.0/576)); a("s_mov_b32 s47, %d" % f32(1e-5))
        for T in range(2):
            s_, q_ = ST+8*T, ST+8*T+4
            a("v_cndmask_b32 v%d, v%d, v%d, s[60:61]" % (q_, q_, q_+1)); a("v_cndmask_b32 v%d, v%d, v%d, s[60:61]" % (q_+2, q_+2, q_+3))
            a("v_mul_f32 v%d, s46, v%d" % (s_, s_))
            a("v_cndmask_b32 v%d, v%d, v%d, s[62:63]" % (q_, q_, q_+2))
            a("v_mul_f32 v42, v%d, v%d" % (s_, s_))
            a("v_fma_f32 v%d, v%d, s46, -v42" % (q_, q_)); a("v_max_f32 v%d, 0, v%d" % (q_, q_)); a("v_add_f32 v%d, s47, v%d" % (q_, q_))
            a("v_rsq_f32 v%d, v%d" % (36+2*T, q_)); a("v_mul_f32 v%d, v%d, -v%d" % (37+2*T, 36+2*T, s_))
        a("s_lshl_b32 s46, s52, 9"); a("s_lshl_b32 s47, s53, 8"); a("s_add_u32 s46, s46, s47")
        a("v_lshl_add_u32 v40, v%d, 3, s46" % V_R)
        a("s_mov_b64 exec, s[64:65]")
        a("ds_write_b64 v40, v[36:37]"); a("ds_write_b64 v40, v[38:39] offset:128")
        a("s_mov_b64 exec, -1")
        a("s_lshl_b32 s47, s57, 6")
        if not swap:
            a("v_lshl_add_u32 v41, v%d, 4, s47" % V_G)
            a("ds_write_b128 v41, v[%d:%d] offset:1024" % (CS, CS+3)); a("ds_write_b128 v41, v[%d:%d] offset:1088" % (CS+4, CS+7))
        else:
            a("v_lshl_add_u32 v41, v%d, 2, s47" % V_R)
            a("ds_write_b32 v41, v%d offset:1024" % CS); a("ds_write_b32 v41, v%d offset:1088" % (CS+4))
        a("s_waitcnt lgkmcnt(0)"); a("s_barrier")
        Ls = L + "_s"
        a("s_lshl_b32 s60, s51, 1"); a("s_add_u32 s60, s60, s53")
        a("s_cmp_ge_u32 s60, 27"); a("s_cbranch_scc1 %s" % Ls)
        a("v_xor_b32 v42, 256, v40"); a("v_xor_b32 v43, 128, v41")
        if not swap:
            RS, CC = 144, 160
            a("ds_read_b64 v[%d:%d], v40" % (RS, RS+1)); a("ds_read_b64 v[%d:%d], v40 offset:128" % (RS+2, RS+3))
            a("ds_read_b64 v[%d:%d], v42" % (RS+4, RS+5)); a("ds_read_b64 v[%d:%d], v42 offset:128" % (RS+6, RS+7))
            for t in range(4):
                a("ds_read_b128 v[%d:%d], v%d offset:%d" % (CC+4*t, CC+4*t+3, 41 if t < 2 else 43, 1024+64*(t&1)))
            a("s_mov_b32 s62, %d" % Q_OFF); a("s_cmp_ge_u32 s60, 9"); a("s_cselect_b32 s61, 144, 0"); a("s_cselect_b32 s62, %d, s62" % K_OFF)
            a("s_cselect_b32 s63, 1.0, %d" % f32(QS))
            a("s_lshl_b32 s60, s60, 4"); a("s_sub_u32 s60, s60, s61"); a("s_mov_b32 s64, %d" % HPSZ)
            for t in range(4):
                a("s_lshl_b32 s46, s52, 1"); a("s_xor_b32 s46, s46, %d" % t); a("s_lshl_b32 s46, s46, 2"); a("s_add_u32 s46, s46, s60")
                a("v_add_u32 v212, s46, v%d" % V_G)
                a("v_mul_u32_u24 v213, 7282, v212"); a("v_lshrrev_b32 v213, 16, v213")
                a("v_mul_u32_u24 v214, 9, v213"); a("v_sub_u32 v212, v212, v214")
                a("v_cmp_lt_u32 vcc, 4, v212"); a("v_subb_co_u32 v214, vcc, v212, 0, vcc")
                a("v_cmp_eq_u32 vcc, 4, v212"); a("v_cndmask_b32 v214, v214, 8, vcc")
                a("v_mul_lo_u32 v213, v213, s64"); a("v_lshl_add_u32 v213, v214, 7, v213"); a("v_lshl_add_u32 v%d, v%d, 3, v213" % (208+t, V_R))
            a("s_lshl_b32 s46, s50, 1"); a("s_add_u32 s46, s46, s52"); a("s_lshl_b32 s46, s46, 1"); a("s_add_u32 s47, s46, s53")
            a("s_xor_b32 s46, s47, 1"); a("s_mul_i32 s47, s47, 2304"); a("s_mul_i32 s46, s46, 2304")
            a("s_add_u32 s65, s47, s62"); a("s_add_u32 s66, s46, s62")
            a("s_waitcnt lgkmcnt(0)")
            for T in range(4): a("v_pk_mul_f32 v[%d:%d], v[%d:%d], s[62:63] op_sel:[0,1] op_sel_hi:[1,1]" % (RS+2*T, RS+2*T+1, RS+2*T, RS+2*T+1))
            for t in range(4):
                for T in range(4):
                    d = ACC+16*t+4*T
                    for h in range(2):
                        a("v_pk_mul_f32 v[216:217], v[%d:%d], v[%d:%d] op_sel:[0,1] op_sel_hi:[1,1]" % (CC+4*t+2*h, CC+4*t+2*h+1, RS+2*T, RS+2*T+1))
                        a("v_pk_fma_f32 v[%d:%d], v[%d:%d], v[%d:%d], v[216:217] op_sel_hi:[1,0,1]" % (d+2*h, d+2*h+1, d+2*h, d+2*h+1, RS+2*T, RS+2*T+1))
                    a("v_cvt_pk_bf16_f32 v%d, v%d, v%d" % (d, d, d+1)); a("v_cvt_pk_bf16_f32 v%d, v%d, v%d" % (d+1, d+2, d+3))
                    a("buffer_store_dwordx2 v[%d:%d], v%d, s[%d:%d], s%d offen offset:%d sc1" % (d, d+1, 208+t, R_WS, R_WS+3, 65+(T>>1), 1152*(T&1)))
        else:
            RS, CC = 144, 176
            a("v_lshl_add_u32 v40, v%d, 5, s46" % V_G); a("v_xor_b32 v42, 256, v40")
            for T in range(4):
                for h in range(2):
                    a("ds_read_b128 v[%d:%d], v%d offset:%d" % (RS+8*T+4*h, RS+8*T+4*h+3, 40 if T < 2 else 42, 128*(T&1)+16*h))
            for t in range(4):
                a("ds_read_b32 v%d, v%d offset:%d" % (CC+t, 41 if t < 2 else 43, 1024+64*(t&1)))
            a("s_sub_u32 s60, s60, 18"); a("s_lshl_b32 s60, s60, 6"); a("s_mov_b32 s64, %d" % HPSZ)
            for t in range(4):
                a("s_lshl_b32 s46, s52, 1"); a("s_xor_b32 s46, s46, %d" % t); a("s_lshl_b32 s46, s46, 4"); a("s_add_u32 s46, s46, s60")
                a("v_add_u32 v212, s46, v%d" % V_R)
                a("v_mul_u32_u24 v213, 1821, v212"); a("v_lshrrev_b32 v213, 16, v213")
                a("v_mul_u32_u24 v214, 36, v213"); a("v_sub_u32 v212, v212, v214")
                a("v_lshl_add_u32 v214, v%d, 4, v212" % V_G)
                a("v_add_u32 v215, 44, v214")
                a("v_cmp_lt_u32 vcc, 19, v212"); a("v_cndmask_b32 v214, v214, v215, vcc")
                a("v_lshl_add_u32 v215, v212, 2, v%d" % V_G); a("v_add_u32 v215, 64, v215")
                a("v_lshrrev_b32 v212, 2, v212"); a("v_cmp_eq_u32 vcc, 4, v212"); a("v_cndmask_b32 v214, v214, v215, vcc")
                a("v_mul_lo_u32 v213, v213, s64"); a("v_lshl_add_u32 v%d, v214, 4, v213" % (208+t))
            a("s_lshl_b32 s46, s50, 1"); a("s_add_u32 s46, s46, s52"); a("s_lshl_b32 s46, s46, 1"); a("s_add_u32 s47, s46, s53")
            a("s_xor_b32 s46, s47, 1"); a("s_mul_i32 s47, s47, 2304"); a("s_mul_i32 s46, s46, 2304")
            a("s_add_u32 s65, s47, %d" % V_OFF); a("s_add_u32 s66, s46, %d" % V_OFF)
            a("s_waitcnt lgkmcnt(0)")
            for t in range(4):
                for T in range(4):
                    d = ACC+16*t+4*T
                    for i in range(4):
                        a("v_mul_f32 v%d, v%d, v%d" % (216+i, RS+8*T+2*i+1, CC+t))
                    for i in range(4):
                        a("v_fma_f32 v%d, v%d, v%d, v%d" % (d+i, d+i, RS+8*T+2*i, 216+i))
                    e = ACC+16*t+8*(T>>1)+2*(T&1)
                    a("v_cvt_pk_bf16_f32 v%d, v%d, v%d" % (e, d, d+1)); a("v_cvt_pk_bf16_f32 v%d, v%d, v%d" % (e+1, d+2, d+3))
                    if T & 1:
                        a("buffer_store_dwordx4 v[%d:%d], v%d, s[%d:%d], s%d offen sc1" % (e-2, e+1, 208+t, R_WS, R_WS+3, 65+(T>>1)))
        a.label(Ls)
        if not swap: a("s_branch L_p1_pub")
    a.label("L_p1_pub")
    L = a.newlabel("Lp1f")
    a("s_cmp_lg_u32 s%d, 0" % S_WAVE); a("s_cbranch_scc1 %s_a" % L)
    a.get_nonce(36)
    a.label(L + "_a")
    a("s_waitcnt vmcnt(0)"); a("s_barrier")
    a("s_cmp_lg_u32 s%d, 0" % S_WAVE); a("s_cbranch_scc1 L_p1_done")
    a("s_lshl_b32 s46, s50, 4"); a("s_add_u32 s46, s46, s51"); a("s_add_u32 s46, s46, %d" % F1)
    a.set_flag(46, 36)
    a("s_branch L_p1_done")
    a.label("L_p1_helper")
    swizzle_setup(a)
    a("s_lshl_b32 s48, s%d, 2" % S_XCD); a("s_add_u32 s48, s48, s%d" % S_SLOT); a("s_sub_u32 s48, s48, 28")
    a("s_waitcnt lgkmcnt(0)")
    a.srd(R_WS, S_WS, WS_END)
    publish_nonce(a)
    Lf = swizzle_units(a, 48, "32", 2, "54")
    a.get_nonce(36)
    swizzle_flags(a, 2, Lf)
    a.label("L_p1_done")
    a.stamp(3)

def generate(stop=99, stamps=False):
    a = G(stop, stamps)
    prologue(a)
    phase1(a)
    from phases import phase2, phase345, phase6
    if stop >= 2: phase2(a)
    if stop >= 3: phase345(a)
    if stop >= 6: phase6(a)
    a.label("L_fin")
    a.stamp_out()
    a.label("L_end")
    a("s_endpgm")
    body, nops = fix_hazards(a.lines)
    return body, nops

HEADER = """; Fused transformer block (LN, QKV, sliding-window attention, Wo, shift-MLP, channel MLP) as one persistent kernel.
; 256 workgroups of 4 waves, one per CU; phases hand data over through d_ws with write-through stores and flags.
; @launch grid=(256,1,1) block=(256,1,1) lds=163840
.amdgcn_target "amdgcn-amd-amdhsa--gfx950"
.text
.globl %s
.p2align 8
.type %s,@function
%s:
""" % (KN, KN, KN)
FOOTER = """.section .rodata,"a"
.p2align 6
.amdhsa_kernel %s
  .amdhsa_next_free_vgpr 512
  .amdhsa_next_free_sgpr 102
  .amdhsa_accum_offset 256
  .amdhsa_group_segment_fixed_size 0
  .amdhsa_kernarg_size 88
  .amdhsa_user_sgpr_count 2
  .amdhsa_user_sgpr_kernarg_segment_ptr 1
  .amdhsa_system_sgpr_workgroup_id_x 1
.end_amdhsa_kernel
""" % KN

def main():
    import argparse
    p = argparse.ArgumentParser()
    p.add_argument("--stop", type=int, default=99); p.add_argument("--stamps", action="store_true")
    p.add_argument("-o", default="k.s")
    o = p.parse_args()
    body, nops = generate(o.stop, o.stamps)
    text = HEADER + "\n".join(("" if l.endswith(":") else "  ") + l for l in body) + "\n" + FOOTER
    open(o.o, "w").write(text)
    build(o.o, o.o[:-2] + ".co", KN)
    n = sum(1 for l in body if l and not l.endswith(":"))
    print("instructions", n, "nop states added", nops)
    for nm, takes in TRACES.items():
        errs = check_waits(body, takes)
        for e in errs[:10]: print("WAIT[%s]" % nm, e)

TRACES = {"w012": {"L_p7_main": True}, "h3": {"L_p3_helper": True}, "edge": {"L_p2_edge": True}, "qk": {}, "v": {"L_p1_v": [True, True, False]}, "helper": {"L_p1_helper": True}}

if __name__ == "__main__":
    sys.modules["gen"] = sys.modules["__main__"]
    main()
```

```python
import sys, os, struct, math
sys.path.insert(0, "dev")
from asmlib import Asm, build
from hazard import fix_hazards, check_waits

NAME = "sequential_preLN__sliding_block__mixer_s_mlp__prompt"
KN = NAME + "_kernel"

ACT = 2048*576*2
SW  = 576*576*2
BW  = 576*4608*2
FLAG0 = 128
F1, FS, F2, F3, F4, F5, F6 = 0, 256, 640, 896, 1152, 1408, 1664
TS_OFF = 0x40000
Q_OFF  = 0x50000
K_OFF  = Q_OFF + ACT
V_OFF  = K_OFF + ACT
O_OFF  = V_OFF + ACT
H_OFF  = O_OFF + ACT
T_OFF  = H_OFF + ACT
X1_OFF = T_OFF + ACT
SH_OFF = X1_OFF + ACT
SX_OFF = SH_OFF + 98304
WO_S   = SX_OFF + 98304
W1_S   = WO_S + SW
W2_S   = W1_S + SW
W3_S   = W2_S + SW
W4_S   = W3_S + BW
PART   = W4_S + BW
WS_END = PART + 32*9*8*8192
HPSZ   = 147456

WSOFF = 0
def f32(x): return struct.unpack("<I", struct.pack("<f", x))[0]
def magic(d): return (1 << 32)//d + 1

S_X, S_WQKV, S_WO = 4, 6, 8
S_W1, S_W2, S_W3, S_W4 = 12, 14, 16, 18
S_OUT, S_DBG, S_WS = 20, 22, 24
R_WS, R_A, R_B = 28, 32, 36
S_WAVE, S_XCD, S_SLOT, S_NONCE = 40, 41, 42, 43
S_ONES = 44
V_LANE, V_R, V_G, V_L16 = 1, 2, 3, 4

class G(Asm):
    def __init__(s, stop=99, stamps=False):
        super().__init__()
        s.stop = stop; s.stamps = stamps; s.nstamp = 0
    def srd(a, d, p, size, add=0):
        if add >= 0:
            a("s_add_u32 s%d, s%d, %s" % (d, p, add)); a("s_addc_u32 s%d, s%d, 0" % (d+1, p+1))
        else:
            a("s_sub_u32 s%d, s%d, %d" % (d, p, -add)); a("s_subb_u32 s%d, s%d, 0" % (d+1, p+1))
        a("s_mov_b32 s%d, %d" % (d+2, size)); a("s_mov_b32 s%d, 0x20000" % (d+3))
    def srd_s(a, d, p, size, sreg):
        a("s_add_u32 s%d, s%d, s%d" % (d, p, sreg)); a("s_addc_u32 s%d, s%d, 0" % (d+1, p+1))
        a("s_mov_b32 s%d, %d" % (d+2, size)); a("s_mov_b32 s%d, 0x20000" % (d+3))
    def sdiv(a, q, r, x, d):
        a("s_mul_hi_u32 s%d, s%d, %d" % (q, x, magic(d)))
        if r is not None:
            a("s_mul_i32 s%d, s%d, %d" % (r, q, d)); a("s_sub_u32 s%d, s%d, s%d" % (r, x, r))
    def stamp(a, k=None):
        if not a.stamps: return
        if k is None: k = a.nstamp
        a.nstamp = k + 1
        assert k < 16
        a("s_memtime s[98:99]"); a("s_waitcnt lgkmcnt(0)"); a("s_mov_b32 s%d, s98" % (80+k))
    def stamp_out(a):
        if not a.stamps: return
        if a.stamps == "dbg":
            L = a.newlabel("Lso")
            a("s_memtime s[98:99]"); a("s_memrealtime s[76:77]"); a("s_waitcnt lgkmcnt(0)")
            a("s_sub_u32 s76, s76, s78"); a("s_add_u32 s81, s76, s80")
            a("s_xor_b32 s46, s2, 77"); a("s_or_b32 s46, s46, s%d" % S_WAVE); a("s_cmp_lg_u32 s46, 0"); a("s_cbranch_scc1 %s" % L)
            a("v_mov_b32 v255, 0")
            for n, k in enumerate((1,2,3,4,5,6,7,8,9,10,12,13,14,18)):
                a("s_sub_u32 s46, s%d, s80" % (80+k)); a("v_mov_b32 v254, s46")
                a("global_store_dword v255, v254, s[%d:%d] offset:%d" % (S_DBG, S_DBG+1, 8+4*n))
                a("s_nop 1")
            a.label(L)
            return
        a("s_lshl_b32 s98, s2, 2"); a("s_add_u32 s98, s98, s%d" % S_WAVE); a("s_lshl_b32 s98, s98, 6"); a("s_add_u32 s98, s98, %d" % TS_OFF)
        a("v_mov_b32 v255, 0")
        for k in range(16):
            a("v_mov_b32 v254, s%d" % (80+k))
            a("buffer_store_dword v254, v255, s[%d:%d], s98 offen offset:%d" % (R_WS, R_WS+3, 4*k))
            a("s_nop 1")
    def xg_reduce(a, v, t, op="v_add_f32"):
        for sw in ("v_permlane32_swap_b32", "v_permlane16_swap_b32"):
            a("v_mov_b32 v%d, v%d" % (t, v)); a("%s v%d, v%d" % (sw, v, t)); a("%s v%d, v%d, v%d" % (op, v, v, t))
    def get_nonce(a, vt):
        L = a.newlabel("Lnon")
        a("s_mov_b32 s46, 200000"); a("v_mov_b32 v%d, 0" % (vt+2))
        a.label(L)
        a("global_load_dwordx2 v[%d:%d], v%d, s[%d:%d] sc1" % (vt, vt+1, vt+2, S_DBG, S_DBG+1))
        a("s_waitcnt vmcnt(0)")
        a("v_readfirstlane_b32 s47, v%d" % (vt+1)); a("v_readfirstlane_b32 s%d, v%d" % (S_NONCE, vt))
        a("s_sub_u32 s46, s46, 1"); a("s_cbranch_scc1 %s_x" % L)
        a("s_cmp_eq_u32 s47, 0"); a("s_cbranch_scc1 %s" % L)
        a.label(L + "_x")
    def set_flag(a, sidx, vt):
        a("s_lshl_b32 s%d, s%d, 7" % (sidx, sidx)); a("s_add_u32 s%d, s%d, %d" % (sidx, sidx, FLAG0))
        a("v_mov_b32 v%d, s%d" % (vt, S_NONCE)); a("v_mov_b32 v%d, 0" % (vt+1))
        a("s_mov_b64 exec, 1")
        a("buffer_store_dword v%d, v%d, s[%d:%d], s%d offen sc1" % (vt, vt+1, R_WS, R_WS+3, sidx))
        a("s_mov_b64 exec, -1")
    def poll(a, vidx, vt, sleep0=6, sleep=2):
        L = a.newlabel("Lpoll")
        a("v_lshlrev_b32 v%d, 7, v%d" % (vidx, vidx))
        a("s_mov_b32 s46, 100000")
        if sleep0: a("s_sleep %d" % sleep0)
        a.label(L)
        a("buffer_load_dword v%d, v%d, s[%d:%d], 0 offen offset:%d sc1" % (vt, vidx, R_WS, R_WS+3, FLAG0))
        a("s_waitcnt vmcnt(0)")
        a("v_cmp_ne_u32 vcc, s%d, v%d" % (S_NONCE, vt))
        a("s_cbranch_vccz %s_x" % L)
        a("s_sleep %d" % sleep)
        a("s_sub_u32 s46, s46, 1"); a("s_cbranch_scc0 %s" % L)
        a.label(L + "_x")

def mfma(d, A, B, C=None, ta="v", tb="v", td="v"):
    c = "0" if C is None else "%s[%d:%d]" % (td, C, C+3)
    return "v_mfma_f32_16x16x32_bf16 %s[%d:%d], %s[%d:%d], %s[%d:%d], %s" % (td, d, d+3, ta, A, A+3, tb, B, B+3, c)

def interleave(a, main, fill, start=0):
    n = len(main) - start; k = 0
    for i, m in enumerate(main):
        a(m)
        if i >= start:
            upto = (len(fill)*(i-start+1) + n - 1)//n
            while k < upto: a(fill[k]); k += 1

def prologue(a):
    a("s_cmp_ge_u32 s2, 256"); a("s_cbranch_scc1 L_end")
    a("s_load_dwordx4 s[4:7], s[0:1], 0")
    a("s_load_dwordx2 s[24:25], s[0:1], 80")
    a("s_load_dwordx2 s[8:9], s[0:1], 16")
    a("s_load_dwordx8 s[12:19], s[0:1], 32")
    a("s_load_dwordx4 s[20:23], s[0:1], 64")
    a("v_and_b32 v%d, 63, v0" % V_LANE)
    a("v_lshrrev_b32 v5, 6, v0")
    a("v_and_b32 v%d, 15, v0" % V_R)
    a("v_readfirstlane_b32 s%d, v5" % S_WAVE)
    a("v_lshrrev_b32 v%d, 4, v%d" % (V_G, V_LANE))
    a("v_lshlrev_b32 v%d, 4, v%d" % (V_L16, V_LANE))
    a("s_and_b32 s%d, s2, 7" % S_XCD); a("s_lshr_b32 s%d, s2, 3" % S_SLOT)
    a("s_mov_b32 s%d, 0x3f803f80" % S_ONES)
    if a.stamps:
        for k in range(16): a("s_mov_b32 s%d, 0" % (80+k))
        a("s_memrealtime s[78:79]")
        a.stamp(0)

def publish_nonce(a):
    L = a.newlabel("Lpn")
    a("s_xor_b32 s46, s2, 224"); a("s_or_b32 s46, s46, s%d" % S_WAVE); a("s_cmp_lg_u32 s46, 0"); a("s_cbranch_scc1 %s" % L)
    a("v_mov_b32 v252, 0")
    a("buffer_load_dword v250, v252, s[%d:%d], 0 offen sc1" % (R_WS, R_WS+3))
    a("s_mov_b32 s46, 0x9E3779B1")
    a("s_waitcnt vmcnt(0)")
    a("v_mul_lo_u32 v250, v250, s46"); a("v_add_u32 v250, 0x7F4A7C15, v250"); a("v_mov_b32 v251, 1")
    a("s_mov_b64 exec, 1")
    a("buffer_store_dword v250, v252, s[%d:%d], 0 offen sc1" % (R_WS, R_WS+3))
    a("global_store_dwordx2 v252, v[250:251], s[%d:%d] sc1" % (S_DBG, S_DBG+1))
    a("s_mov_b64 exec, -1")
    a.label(L)

def swizzle_setup(a):
    for i in range(9):
        a("v_add_u32 v40, %d, v%d" % (64*i, V_LANE))
        a("v_mul_u32_u24 v%d, 911, v40" % (10+i)); a("v_lshrrev_b32 v%d, 16, v%d" % (10+i, 10+i))
        a("v_mul_u32_u24 v41, 72, v%d" % (10+i)); a("v_sub_u32 v41, v40, v41"); a("v_lshlrev_b32 v%d, 4, v41" % (20+i))
    a("v_lshrrev_b32 v40, 2, v%d" % V_R); a("v_lshl_add_u32 v40, v%d, 3, v40" % V_G); a("v_mul_u32_u24 v40, 1152, v40")
    a("v_and_b32 v41, 3, v%d" % V_R); a("v_lshl_add_u32 v30, v41, 4, v40")
    a("s_lshr_b32 s46, s%d, 1" % S_WAVE); a("s_lshl_b32 s46, s46, 6"); a("s_and_b32 s47, s%d, 1" % S_WAVE); a("s_lshl_b32 s47, s47, 3")
    a("s_add_u32 s46, s46, s47"); a("v_add_u32 v30, s46, v30")

def swizzle_units(a, s_first, s_step, nb, s_end):
    Ld = a.newlabel("Lswd")
    a("s_mov_b32 s50, s%d" % s_first)
    a("s_mov_b32 s58, 0")
    for i in range(nb):
        Ln = a.newlabel("Lsw")
        a("s_cmp_ge_u32 s50, %s" % s_end); a("s_cbranch_scc1 %s_go" % Ld)
        a("s_cmp_ge_u32 s50, 54"); a("s_cbranch_scc1 %s_big" % Ln)
        a.sdiv(51, 52, 50, 18)
        a("s_cmp_eq_u32 s51, 1"); a("s_cselect_b32 s54, s%d, s%d" % (S_W1, S_W2)); a("s_cselect_b32 s55, s%d, s%d" % (S_W1+1, S_W2+1))
        a("s_cmp_eq_u32 s51, 0"); a("s_cselect_b32 s54, s%d, s54" % S_WO); a("s_cselect_b32 s55, s%d, s55" % (S_WO+1))
        a("s_mul_i32 s%d, s51, %d" % (60+3*i, SW)); a("s_add_u32 s%d, s%d, %d" % (60+3*i, 60+3*i, WO_S))
        a("s_mul_i32 s53, s%d, 18432" % S_WAVE); a("s_add_u32 s%d, s%d, s53" % (60+3*i, 60+3*i))
        a("s_mov_b32 s%d, 73728" % (61+3*i))
        a("s_lshl_b32 s56, s52, 5"); a("s_lshl_b32 s53, s%d, 3" % S_WAVE); a("s_add_u32 s56, s56, s53")
        a("s_mov_b32 s57, 0"); a("s_mov_b32 s59, 1152")
        a("s_cmp_lg_u32 s51, 0"); a("s_cbranch_scc1 %s_j" % Ln)
        a("s_mul_i32 s56, s52, 36"); a("s_lshl_b32 s53, s%d, 2" % S_WAVE); a("s_add_u32 s56, s56, s53"); a("s_mov_b32 s57, 16")
        a("s_cmp_lt_u32 s52, 16"); a("s_cbranch_scc1 %s_j" % Ln)
        a("s_sub_u32 s56, s52, 16"); a("s_lshl_b32 s56, s56, 2"); a("s_add_u32 s56, s56, s%d" % S_WAVE)
        a("s_mul_i32 s56, s56, 72"); a("s_add_u32 s56, s56, 16"); a("s_mov_b32 s57, 32")
        a("s_branch %s_j" % Ln)
        a.label(Ln + "_big")
        a("s_sub_u32 s53, s50, 54"); a.sdiv(51, 52, 53, 18)
        a("s_mul_i32 s%d, s51, %d" % (60+3*i, 4*9*18432)); a("s_add_u32 s%d, s%d, %d" % (60+3*i, 60+3*i, W3_S))
        a("s_mul_i32 s53, s%d, %d" % (S_WAVE, 9*18432)); a("s_add_u32 s%d, s%d, s53" % (60+3*i, 60+3*i))
        a("s_mov_b32 s%d, 18432" % (61+3*i))
        a("s_lshl_b32 s56, s52, 5"); a("s_lshl_b32 s53, s%d, 3" % S_WAVE); a("s_add_u32 s56, s56, s53"); a("s_mov_b32 s57, 0")
        a("s_cmp_ge_u32 s51, 8"); a("s_cbranch_scc1 %s_w4" % Ln)
        a("s_mul_i32 s53, s51, 1152"); a("s_add_u32 s54, s%d, s53" % S_W3); a("s_addc_u32 s55, s%d, 0" % (S_W3+1)); a("s_mov_b32 s59, 9216")
        a("s_branch %s_j" % Ln)
        a.label(Ln + "_w4")
        a("s_sub_u32 s53, s51, 8"); a("s_mul_i32 s53, s53, %d" % SW); a("s_add_u32 s54, s%d, s53" % S_W4); a("s_addc_u32 s55, s%d, 0" % (S_W4+1)); a("s_mov_b32 s59, 1152")
        a.label(Ln + "_j")
        a("s_lshl_b32 s53, s52, 10"); a("s_add_u32 s%d, s%d, s53" % (60+3*i, 60+3*i))
        a("s_add_u32 s%d, s50, %d" % (62+3*i, FS))
        a("s_mov_b32 s%d, s54" % R_A); a("s_mov_b32 s%d, s55" % (R_A+1))
        a("s_mul_i32 s%d, s59, 575" % (R_A+2)); a("s_add_u32 s%d, s%d, 1152" % (R_A+2, R_A+2)); a("s_mov_b32 s%d, 0x20000" % (R_A+3))
        a("s_mul_i32 s53, s%d, 9216" % S_WAVE); a("s_add_u32 m0, s53, %d" % (i*36864))
        for k in range(9):
            a("v_lshrrev_b32 v40, 2, v%d" % (10+k)); a("v_mul_lo_u32 v40, v40, s57"); a("v_add3_u32 v40, v40, v%d, s56" % (10+k))
            a("v_mul_lo_u32 v40, v40, s59"); a("v_add_u32 v40, v40, v%d" % (20+k))
            a("buffer_load_dwordx4 v40, s[%d:%d], 0 offen lds" % (R_A, R_A+3))
            a("s_add_u32 m0, m0, 1024")
        a("s_add_u32 s58, s58, 1")
        a("s_add_u32 s50, s50, %s" % s_step)
    a.label(Ld + "_go")
    a("s_waitcnt vmcnt(0)"); a("s_barrier")
    for i in range(nb):
        a("s_cmp_le_u32 s58, %d" % i); a("s_cbranch_scc1 %s" % Ld)
        a("v_add_u32 v31, %d, v30" % (i*36864))
        for p in range(9):
            for hh in range(2):
                a("ds_read_b64_tr_b16 v[%d:%d], v31 offset:%d" % (44+4*p+2*hh, 45+4*p+2*hh, hh*4608 + 128*p))
            if p >= 3: pass
        a("s_mov_b32 s53, s%d" % (60+3*i))
        for p in range(9):
            a("s_waitcnt lgkmcnt(%d)" % min(15, 16-2*p))
            a("buffer_store_dwordx4 v[%d:%d], v%d, s[%d:%d], s53 offen sc1" % (44+4*p, 47+4*p, V_L16, R_WS, R_WS+3))
            a("s_add_u32 s53, s53, s%d" % (61+3*i))
    a.label(Ld)
    a("s_waitcnt vmcnt(0)"); a("s_barrier")
    Lf = a.newlabel("Lswf")
    a("s_cmp_lg_u32 s%d, 0" % S_WAVE); a("s_cbranch_scc1 %s" % Lf)
    return Lf

def swizzle_flags(a, nb, Lf):
    for i in range(nb):
        a("s_cmp_le_u32 s58, %d" % i); a("s_cbranch_scc1 %s" % Lf)
        a.set_flag(62+3*i, 40)
    a.label(Lf)

def phase1(a):
    QS = 18**-0.5 * math.log2(math.e)
    a("s_cmp_ge_u32 s%d, 28" % S_SLOT); a("s_cbranch_scc1 L_p1_helper")
    a.sdiv(46, 47, S_SLOT, 7)
    a("s_lshr_b32 s48, s%d, 1" % S_XCD); a("s_lshl_b32 s48, s48, 2"); a("s_add_u32 s50, s48, s46")
    a("s_and_b32 s48, s%d, 1" % S_XCD); a("s_mul_i32 s48, s48, 7"); a("s_add_u32 s51, s48, s47")
    a("s_lshr_b32 s52, s%d, 1" % S_WAVE); a("s_and_b32 s53, s%d, 1" % S_WAVE)
    a("v_lshrrev_b32 v20, 3, v%d" % V_LANE); a("v_and_b32 v21, 7, v%d" % V_LANE)
    a("v_xor_b32 v22, v21, v%d" % V_G); a("v_mul_u32_u24 v20, 1152, v20")
    a("v_lshl_add_u32 v10, v22, 4, v20"); a("v_xor_b32 v22, 4, v22"); a("v_lshl_add_u32 v11, v22, 4, v20")
    a("v_add_u32 v12, %d, v10" % (16*1152 - 2048 + 4096)); a("v_add_u32 v13, %d, v11" % (24*1152 - 3072 + 4096))
    a("v_add_u32 v11, %d, v11" % (8*1152 - 1024 + 4096)); a("v_add_u32 v10, 4096, v10")
    a("v_lshrrev_b32 v20, 1, v%d" % V_R); a("v_xor_b32 v20, v20, v%d" % V_G); a("v_and_b32 v21, 1, v%d" % V_LANE)
    a("v_lshl_add_u32 v21, v20, 1, v21"); a("v_mul_u32_u24 v22, 3456, v%d" % V_G)
    a("v_lshl_add_u32 v14, v21, 4, v22"); a("v_xor_b32 v21, 8, v21"); a("v_lshl_add_u32 v16, v21, 4, v22")
    a("v_add_u32 v15, %d, v14" % (4*3456 - 1024 + 4096)); a("v_add_u32 v17, %d, v16" % (12*3456 - 3072 + 4096))
    a("v_add_u32 v16, %d, v16" % (8*3456 - 2048 + 4096)); a("v_add_u32 v14, 4096, v14")
    a("s_lshl_b32 s54, s50, 2"); a("s_add_u32 s54, s54, s%d" % S_WAVE); a("s_mul_i32 s54, s54, %d" % (32*1152))
    a("s_mul_i32 s55, s%d, %d" % (S_WAVE, 16*3456)); a("s_lshl_b32 s46, s51, 8"); a("s_add_u32 s55, s55, s46")
    a("s_lshl_b32 s56, s%d, 12" % S_WAVE)
    a("s_waitcnt lgkmcnt(0)")
    if WSOFF: a("s_add_u32 s24, s24, %d" % WSOFF); a("s_addc_u32 s25, s25, 0")
    a.srd(R_A, S_X, ACT + 4096, -4096); a.srd(R_B, S_WQKV, 576*3456 + 4096, -4096)
    def dma(sbuf):
        o = ["s_mov_b32 m0, s%d" % sbuf]
        for j in range(4): o.append("buffer_load_dwordx4 v%d, s[%d:%d], s54 offen offset:%d lds" % (10+j, R_A, R_A+3, 1024*j))
        o.append("s_add_u32 m0, s%d, 16384" % sbuf)
        o.append("s_add_u32 s54, s54, 128")
        for j in range(4): o.append("buffer_load_dwordx4 v%d, s[%d:%d], s55 offen offset:%d lds" % (14+j, R_B, R_B+3, 1024*j))
        o.append("s_add_u32 s55, s55, %d" % (64*3456))
        return o
    for s in range(5):
        d = dma(56)
        a(d[0]); a("s_nop 0")
        for x in d[1:]: a(x)
        a("s_add_u32 s56, s56, 32768")
    a.srd(R_WS, S_WS, WS_END)
    a("v_lshrrev_b32 v30, 2, v%d" % V_R); a("v_and_b32 v31, 3, v%d" % V_R)
    a("v_lshl_add_u32 v32, v%d, 3, v30" % V_G); a("v_lshlrev_b32 v32, 8, v32"); a("v_lshl_add_u32 v32, v31, 3, v32")
    a("v_add_u32 v32, 16384, v32")
    a("v_and_b32 v33, 1, v%d" % V_G); a("v_lshl_add_u32 v33, v33, 2, v30")
    a("s_lshl_b32 s46, s53, 2"); a("s_lshl_b32 s47, s52, 1"); a("s_or_b32 s57, s46, s47")
    for t in range(4):
        a("s_xor_b32 s46, s57, %d" % t); a("v_xor_b32 v34, s46, v33"); a("v_lshl_add_u32 v%d, v34, 5, v32" % (20+t))
    a("v_lshrrev_b32 v30, 1, v%d" % V_R); a("v_xor_b32 v30, v30, v%d" % V_G); a("v_lshlrev_b32 v31, 7, v%d" % V_R)
    a("s_lshl_b32 s46, s52, 13"); a("s_lshl_b32 s47, s53, 12"); a("s_add_u32 s46, s46, s47"); a("s_xor_b32 s47, s46, 4096")
    a("v_lshl_add_u32 v32, v30, 4, v31"); a("v_xor_b32 v33, 64, v32")
    a("v_add_u32 v24, s46, v32"); a("v_add_u32 v25, s47, v32"); a("v_add_u32 v26, s46, v33"); a("v_add_u32 v27, s47, v33")
    ACC, CS, ST, ONE = 48, 112, 120, 140
    XB = (144, 160); WB = (176, 192)
    WA, XA = 28, 32
    for r in range(ACC, ONE): a("v_mov_b32 v%d, 0" % r)
    for r in range(4): a("v_mov_b32 v%d, s%d" % (ONE+r, S_ONES))
    def addr(sbase):
        return ["v_add_u32 v%d, %s, v%d" % (WA+i, sbase, 20+i) for i in range(8)]
    def reads(jj):
        o = []
        for T in range(4):
            o.append("ds_read_b128 v[%d:%d], v%d offset:%d" % (XB[jj]+4*T, XB[jj]+4*T+3, XA+2*jj+(T>>1), 2048*(T&1)))
            for hh in range(2):
                o.append("ds_read_b64_tr_b16 v[%d:%d], v%d offset:%d" % (WB[jj]+4*T+2*hh, WB[jj]+4*T+2*hh+1, WA+T, jj*8192+hh*1024))
        return o
    def mm(jj, swap):
        o = []
        for t in range(4):
            for T in range(4):
                d = ACC+16*t+4*T
                o.append(mfma(d, XB[jj]+4*T, WB[jj]+4*t, d) if swap else mfma(d, WB[jj]+4*t, XB[jj]+4*T, d))
            if t < 2:
                d = CS+4*t
                o.append(mfma(d, ONE, WB[jj]+4*t, d) if swap else mfma(d, WB[jj]+4*t, ONE, d))
            x = XB[jj]+4*(t>>1); d = ST+4*t
            o.append(mfma(d, x if t & 1 else ONE, x, d))
        return o
    for x in addr("0"): a(x)
    a("s_mov_b32 s58, 0"); a("s_mov_b32 s59, 0")
    a("s_waitcnt vmcnt(32)"); a("s_barrier")
    a.stamp(1)
    for x in reads(0): a(x)
    a("s_cmp_ge_u32 s51, 9"); a("s_cbranch_scc1 L_p1_v")
    for swap in (0, 1):
        L = "L_p1_v" if swap else "L_p1_qk"
        a.label(L)
        a("s_waitcnt lgkmcnt(0)")
        interleave(a, mm(0, swap)[:16], reads(1))
        for x in mm(0, swap)[16:]: a(x)
        a("s_add_u32 s58, s58, 1")
        a("s_cmp_ge_u32 s58, 6"); a("s_cbranch_scc1 %s_w" % L)
        a("s_waitcnt vmcnt(24) lgkmcnt(0)")
        a.label(L + "_b")
        a("s_barrier")
        a("s_lshl_b32 s46, s%d, 12" % S_WAVE); a("s_add_u32 s56, s59, s46")
        a("s_add_u32 s59, s59, 32768"); a("s_cmp_eq_u32 s59, 163840"); a("s_cselect_b32 s59, 0, s59")
        m = mm(1, swap)
        ad = addr("s59")
        a(m[0])
        for x in ad[4:6] + ad[0:4]: a(x)
        a("s_cmp_ge_u32 s58, 5"); a("s_cbranch_scc1 %s_n" % L)
        d = dma(56)
        interleave(a, m[1:5], d)
        a("s_branch %s_m" % L)
        a.label(L + "_n")
        for x in m[1:5]: a(x)
        a.label(L + "_m")
        interleave(a, m[5:19], reads(0) + ad[6:8])
        for x in m[19:]: a(x)
        a("s_cmp_lt_u32 s58, 9"); a("s_cbranch_scc1 %s" % L)
        a("s_branch %s_e" % L)
        a.label(L + "_w")
        a("s_cmp_eq_u32 s58, 6"); a("s_cbranch_scc0 %s_w1" % L); a("s_waitcnt vmcnt(16) lgkmcnt(0)"); a("s_branch %s_b" % L)
        a.label(L + "_w1")
        a("s_cmp_eq_u32 s58, 7"); a("s_cbranch_scc0 %s_w2" % L); a("s_waitcnt vmcnt(8) lgkmcnt(0)"); a("s_branch %s_b" % L)
        a.label(L + "_w2")
        a("s_waitcnt vmcnt(0) lgkmcnt(0)"); a("s_branch %s_b" % L)
        a.label(L + "_e")
        a.stamp(2)
        a("s_waitcnt lgkmcnt(0)")
        a("v_and_b32 v40, 1, v%d" % V_R); a("v_cmp_eq_u32 s[60:61], 1, v40")
        a("v_and_b32 v40, 2, v%d" % V_R); a("v_cmp_eq_u32 s[62:63], 2, v40")
        a("v_lshrrev_b32 v40, 2, v%d" % V_R); a("v_cmp_eq_u32 s[64:65], v40, v%d" % V_G)
        a("s_mov_b32 s46, %d" % f32(1.0/576)); a("s_mov_b32 s47, %d" % f32(1e-5))
        for T in range(2):
            s_, q_ = ST+8*T, ST+8*T+4
            a("v_cndmask_b32 v%d, v%d, v%d, s[60:61]" % (q_, q_, q_+1)); a("v_cndmask_b32 v%d, v%d, v%d, s[60:61]" % (q_+2, q_+2, q_+3))
            a("v_mul_f32 v%d, s46, v%d" % (s_, s_))
            a("v_cndmask_b32 v%d, v%d, v%d, s[62:63]" % (q_, q_, q_+2))
            a("v_mul_f32 v42, v%d, v%d" % (s_, s_))
            a("v_fma_f32 v%d, v%d, s46, -v42" % (q_, q_)); a("v_max_f32 v%d, 0, v%d" % (q_, q_)); a("v_add_f32 v%d, s47, v%d" % (q_, q_))
            a("v_rsq_f32 v%d, v%d" % (36+2*T, q_)); a("v_mul_f32 v%d, v%d, -v%d" % (37+2*T, 36+2*T, s_))
        a("s_lshl_b32 s46, s52, 9"); a("s_lshl_b32 s47, s53, 8"); a("s_add_u32 s46, s46, s47")
        a("v_lshl_add_u32 v40, v%d, 3, s46" % V_R)
        a("s_mov_b64 exec, s[64:65]")
        a("ds_write_b64 v40, v[36:37]"); a("ds_write_b64 v40, v[38:39] offset:128")
        a("s_mov_b64 exec, -1")
        a("s_lshl_b32 s47, s57, 6")
        if not swap:
            a("v_lshl_add_u32 v41, v%d, 4, s47" % V_G)
            a("ds_write_b128 v41, v[%d:%d] offset:1024" % (CS, CS+3)); a("ds_write_b128 v41, v[%d:%d] offset:1088" % (CS+4, CS+7))
        else:
            a("v_lshl_add_u32 v41, v%d, 2, s47" % V_R)
            a("ds_write_b32 v41, v%d offset:1024" % CS); a("ds_write_b32 v41, v%d offset:1088" % (CS+4))
        a("s_waitcnt lgkmcnt(0)"); a("s_barrier")
        Ls = L + "_s"
        a("s_lshl_b32 s60, s51, 1"); a("s_add_u32 s60, s60, s53")
        a("s_cmp_ge_u32 s60, 27"); a("s_cbranch_scc1 %s" % Ls)
        a("v_xor_b32 v42, 256, v40"); a("v_xor_b32 v43, 128, v41")
        if not swap:
            RS, CC = 144, 160
            a("ds_read_b64 v[%d:%d], v40" % (RS, RS+1)); a("ds_read_b64 v[%d:%d], v40 offset:128" % (RS+2, RS+3))
            a("ds_read_b64 v[%d:%d], v42" % (RS+4, RS+5)); a("ds_read_b64 v[%d:%d], v42 offset:128" % (RS+6, RS+7))
            for t in range(4):
                a("ds_read_b128 v[%d:%d], v%d offset:%d" % (CC+4*t, CC+4*t+3, 41 if t < 2 else 43, 1024+64*(t&1)))
            a("s_mov_b32 s62, %d" % Q_OFF); a("s_cmp_ge_u32 s60, 9"); a("s_cselect_b32 s61, 144, 0"); a("s_cselect_b32 s62, %d, s62" % K_OFF)
            a("s_cselect_b32 s63, 1.0, %d" % f32(QS))
            a("s_lshl_b32 s60, s60, 4"); a("s_sub_u32 s60, s60, s61"); a("s_mov_b32 s64, %d" % HPSZ)
            for t in range(4):
                a("s_lshl_b32 s46, s52, 1"); a("s_xor_b32 s46, s46, %d" % t); a("s_lshl_b32 s46, s46, 2"); a("s_add_u32 s46, s46, s60")
                a("v_add_u32 v212, s46, v%d" % V_G)
                a("v_mul_u32_u24 v213, 7282, v212"); a("v_lshrrev_b32 v213, 16, v213")
                a("v_mul_u32_u24 v214, 9, v213"); a("v_sub_u32 v212, v212, v214")
                a("v_cmp_lt_u32 vcc, 4, v212"); a("v_subb_co_u32 v214, vcc, v212, 0, vcc")
                a("v_cmp_eq_u32 vcc, 4, v212"); a("v_cndmask_b32 v214, v214, 8, vcc")
                a("v_mul_lo_u32 v213, v213, s64"); a("v_lshl_add_u32 v213, v214, 7, v213"); a("v_lshl_add_u32 v%d, v%d, 3, v213" % (208+t, V_R))
            a("s_lshl_b32 s46, s50, 1"); a("s_add_u32 s46, s46, s52"); a("s_lshl_b32 s46, s46, 1"); a("s_add_u32 s47, s46, s53")
            a("s_xor_b32 s46, s47, 1"); a("s_mul_i32 s47, s47, 2304"); a("s_mul_i32 s46, s46, 2304")
            a("s_add_u32 s65, s47, s62"); a("s_add_u32 s66, s46, s62")
            a("s_waitcnt lgkmcnt(0)")
            for T in range(4): a("v_pk_mul_f32 v[%d:%d], v[%d:%d], s[62:63] op_sel:[0,1] op_sel_hi:[1,1]" % (RS+2*T, RS+2*T+1, RS+2*T, RS+2*T+1))
            for t in range(4):
                for T in range(4):
                    d = ACC+16*t+4*T
                    for h in range(2):
                        a("v_pk_mul_f32 v[216:217], v[%d:%d], v[%d:%d] op_sel:[0,1] op_sel_hi:[1,1]" % (CC+4*t+2*h, CC+4*t+2*h+1, RS+2*T, RS+2*T+1))
                        a("v_pk_fma_f32 v[%d:%d], v[%d:%d], v[%d:%d], v[216:217] op_sel_hi:[1,0,1]" % (d+2*h, d+2*h+1, d+2*h, d+2*h+1, RS+2*T, RS+2*T+1))
                    a("v_cvt_pk_bf16_f32 v%d, v%d, v%d" % (d, d, d+1)); a("v_cvt_pk_bf16_f32 v%d, v%d, v%d" % (d+1, d+2, d+3))
                    a("buffer_store_dwordx2 v[%d:%d], v%d, s[%d:%d], s%d offen offset:%d sc1" % (d, d+1, 208+t, R_WS, R_WS+3, 65+(T>>1), 1152*(T&1)))
        else:
            RS, CC = 144, 176
            a("v_lshl_add_u32 v40, v%d, 5, s46" % V_G); a("v_xor_b32 v42, 256, v40")
            for T in range(4):
                for h in range(2):
                    a("ds_read_b128 v[%d:%d], v%d offset:%d" % (RS+8*T+4*h, RS+8*T+4*h+3, 40 if T < 2 else 42, 128*(T&1)+16*h))
            for t in range(4):
                a("ds_read_b32 v%d, v%d offset:%d" % (CC+t, 41 if t < 2 else 43, 1024+64*(t&1)))
            a("s_sub_u32 s60, s60, 18"); a("s_lshl_b32 s60, s60, 6"); a("s_mov_b32 s64, %d" % HPSZ)
            for t in range(4):
                a("s_lshl_b32 s46, s52, 1"); a("s_xor_b32 s46, s46, %d" % t); a("s_lshl_b32 s46, s46, 4"); a("s_add_u32 s46, s46, s60")
                a("v_add_u32 v212, s46, v%d" % V_R)
                a("v_mul_u32_u24 v213, 1821, v212"); a("v_lshrrev_b32 v213, 16, v213")
                a("v_mul_u32_u24 v214, 36, v213"); a("v_sub_u32 v212, v212, v214")
                a("v_lshl_add_u32 v214, v%d, 4, v212" % V_G)
                a("v_add_u32 v215, 44, v214")
                a("v_cmp_lt_u32 vcc, 19, v212"); a("v_cndmask_b32 v214, v214, v215, vcc")
                a("v_lshl_add_u32 v215, v212, 2, v%d" % V_G); a("v_add_u32 v215, 64, v215")
                a("v_lshrrev_b32 v212, 2, v212"); a("v_cmp_eq_u32 vcc, 4, v212"); a("v_cndmask_b32 v214, v214, v215, vcc")
                a("v_mul_lo_u32 v213, v213, s64"); a("v_lshl_add_u32 v%d, v214, 4, v213" % (208+t))
            a("s_lshl_b32 s46, s50, 1"); a("s_add_u32 s46, s46, s52"); a("s_lshl_b32 s46, s46, 1"); a("s_add_u32 s47, s46, s53")
            a("s_xor_b32 s46, s47, 1"); a("s_mul_i32 s47, s47, 2304"); a("s_mul_i32 s46, s46, 2304")
            a("s_add_u32 s65, s47, %d" % V_OFF); a("s_add_u32 s66, s46, %d" % V_OFF)
            a("s_waitcnt lgkmcnt(0)")
            for t in range(4):
                for T in range(4):
                    d = ACC+16*t+4*T
                    for i in range(4):
                        a("v_mul_f32 v%d, v%d, v%d" % (216+i, RS+8*T+2*i+1, CC+t))
                    for i in range(4):
                        a("v_fma_f32 v%d, v%d, v%d, v%d" % (d+i, d+i, RS+8*T+2*i, 216+i))
                    e = ACC+16*t+8*(T>>1)+2*(T&1)
                    a("v_cvt_pk_bf16_f32 v%d, v%d, v%d" % (e, d, d+1)); a("v_cvt_pk_bf16_f32 v%d, v%d, v%d" % (e+1, d+2, d+3))
                    if T & 1:
                        a("buffer_store_dwordx4 v[%d:%d], v%d, s[%d:%d], s%d offen sc1" % (e-2, e+1, 208+t, R_WS, R_WS+3, 65+(T>>1)))
        a.label(Ls)
        if not swap: a("s_branch L_p1_pub")
    a.label("L_p1_pub")
    L = a.newlabel("Lp1f")
    a("s_cmp_lg_u32 s%d, 0" % S_WAVE); a("s_cbranch_scc1 %s_a" % L)
    a.get_nonce(36)
    a.label(L + "_a")
    a("s_waitcnt vmcnt(0)"); a("s_barrier")
    a("s_cmp_lg_u32 s%d, 0" % S_WAVE); a("s_cbranch_scc1 L_p1_done")
    a("s_lshl_b32 s46, s50, 4"); a("s_add_u32 s46, s46, s51"); a("s_add_u32 s46, s46, %d" % F1)
    a.set_flag(46, 36)
    a("s_branch L_p1_done")
    a.label("L_p1_helper")
    swizzle_setup(a)
    a("s_lshl_b32 s48, s%d, 2" % S_XCD); a("s_add_u32 s48, s48, s%d" % S_SLOT); a("s_sub_u32 s48, s48, 28")
    a("s_waitcnt lgkmcnt(0)")
    if WSOFF: a("s_add_u32 s24, s24, %d" % WSOFF); a("s_addc_u32 s25, s25, 0")
    a.srd(R_WS, S_WS, WS_END)
    publish_nonce(a)
    Lf = swizzle_units(a, 48, "32", 2, "54")
    a.get_nonce(36)
    swizzle_flags(a, 2, Lf)
    a.label("L_p1_done")
    a.stamp(3)

def generate(stop=99, stamps=False):
    a = G(stop, stamps)
    prologue(a)
    phase1(a)
    from phases import phase2, phase345, phase6
    if stop >= 2: phase2(a)
    if stop >= 3: phase345(a)
    if stop >= 6: phase6(a)
    a.label("L_fin")
    a.stamp_out()
    a.label("L_end")
    a("s_endpgm")
    body, nops = fix_hazards(a.lines)
    return body, nops

HEADER = """; Fused transformer block (LN, QKV, sliding-window attention, Wo, shift-MLP, channel MLP) as one persistent kernel.
; 256 workgroups of 4 waves, one per CU; phases hand data over through d_ws with write-through stores and flags.
; @launch grid=(256,1,1) block=(256,1,1) lds=163840
.amdgcn_target "amdgcn-amd-amdhsa--gfx950"
.text
.globl %s
.p2align 8
.type %s,@function
%s:
""" % (KN, KN, KN)
FOOTER = """.section .rodata,"a"
.p2align 6
.amdhsa_kernel %s
  .amdhsa_next_free_vgpr 512
  .amdhsa_next_free_sgpr 102
  .amdhsa_accum_offset 256
  .amdhsa_group_segment_fixed_size 0
  .amdhsa_kernarg_size 88
  .amdhsa_user_sgpr_count 2
  .amdhsa_user_sgpr_kernarg_segment_ptr 1
  .amdhsa_system_sgpr_workgroup_id_x 1
.end_amdhsa_kernel
""" % KN

def main():
    import argparse
    p = argparse.ArgumentParser()
    p.add_argument("--stop", type=int, default=99); p.add_argument("--stamps", nargs="?", const="ws", default=False); p.add_argument("--wsoff", type=int, default=0)
    p.add_argument("-o", default="k.s")
    o = p.parse_args()
    global WSOFF
    WSOFF = o.wsoff << 20
    body, nops = generate(o.stop, o.stamps)
    text = HEADER + "\n".join(("" if l.endswith(":") else "  ") + l for l in body) + "\n" + FOOTER
    open(o.o, "w").write(text)
    build(o.o, o.o[:-2] + ".co", KN)
    n = sum(1 for l in body if l and not l.endswith(":"))
    print("instructions", n, "nop states added", nops)
    for nm, takes in TRACES.items():
        errs = check_waits(body, takes)
        for e in errs[:10]: print("WAIT[%s]" % nm, e)

TRACES = {"w012": {"L_p7_main": True}, "h3": {"L_p3_helper": True}, "edge": {"L_p2_edge": True}, "qk": {}, "v": {"L_p1_v": [True, True, False]}, "helper": {"L_p1_helper": True}}

if __name__ == "__main__":
    sys.modules["gen"] = sys.modules["__main__"]
    main()
```

```python
from gen import *

NEG = 0xF149F2CA
SLEEP0 = dict(p2=6, p3=6, p4=6, p5=6, p6=0, p7=6)
for _kv in os.environ.get('SLEEP', '').split(','):
    if _kv: SLEEP0[_kv.split('=')[0]] = int(_kv.split('=')[1])

W_LDS = 53248
AW1, AW2 = 40, 148
XT = 240

def roles345(a):
    a("s_lshr_b32 s46, s%d, 3" % S_SLOT); a("s_lshl_b32 s74, s%d, 2" % S_XCD); a("s_add_u32 s74, s74, s46"); a("s_and_b32 s75, s%d, 7" % S_SLOT)
    a("s_lshl_b32 s76, s74, 2"); a("s_add_u32 s76, s76, s%d" % S_WAVE)

def phase2(a):
    KL_, VL_ = 0, 27648
    a("s_lshr_b32 s50, s%d, 1" % S_SLOT); a("s_and_b32 s51, s%d, 1" % S_SLOT); a("s_lshl_b32 s46, s%d, 1" % S_XCD); a("s_add_u32 s51, s51, s46")
    a("s_mul_i32 s52, s51, %d" % HPSZ)
    a("s_add_u32 s46, s52, %d" % K_OFF); a.srd_s(R_A, S_WS, HPSZ, 46)
    a("s_add_u32 s46, s52, %d" % V_OFF); a.srd_s(R_B, S_WS, HPSZ, 46)
    a("s_mul_i32 s46, s50, 9216"); a("s_sub_u32 s46, s46, 18432"); a("s_lshl_b32 s47, s%d, 10" % S_WAVE); a("s_add_u32 s46, s46, s47")
    a("v_add_u32 v10, s46, v%d" % V_L16)
    for i in range(1, 7): a("v_add_u32 v%d, %d, v10" % (10+i, 4096*i))
    a("s_lshl_b32 s46, s50, 3"); a("s_lshl_b32 s53, s%d, 1" % S_WAVE); a("s_add_u32 s53, s53, s46")
    a("s_mul_i32 s54, s53, 1152"); a("s_add_u32 s54, s54, s52"); a("s_add_u32 s54, s54, %d" % Q_OFF)
    a("v_lshlrev_b32 v17, 3, v%d" % V_LANE); a("v_lshlrev_b32 v18, 3, v%d" % V_R)
    a("s_mul_i32 s46, s%d, 2304" % S_WAVE)
    a("v_add_u32 v20, s46, v17")
    a("s_add_u32 s47, s46, 1024"); a("v_add_u32 v21, s47, v18")
    a("s_add_u32 s47, s46, %d" % VL_); a("v_add_u32 v22, s47, v%d" % V_L16)
    a("v_lshl_add_u32 v23, v%d, 2, v%d" % (V_R, V_G)); a("s_add_u32 s47, s47, 2048"); a("v_lshl_add_u32 v23, v23, 4, s47")
    for i in range(4):
        a("v_lshl_add_u32 v24, v%d, 2, %d" % (V_G, i)); a("v_cmp_gt_u32 s[%d:%d], v24, v%d" % (60+2*i, 61+2*i, V_R))
    a("v_cmp_eq_u32 s[68:69], 0, v%d" % V_G)
    a("v_mov_b32 v25, 0x%x" % NEG)
    VLA = 0
    for r in range(36): a("v_accvgpr_write_b32 a%d, s%d" % (VLA+r, S_ONES))
    roles345(a)
    a("s_mul_i32 s46, s75, 110592"); a("s_mul_i32 s47, s%d, 27648" % S_WAVE); a("s_add_u32 s70, s46, s47")
    a("s_add_u32 s70, s70, %d" % WO_S); a("s_add_u32 s73, s47, %d" % W_LDS)
    a("s_cmp_ge_u32 s75, 6"); a("s_cselect_b32 s70, 0x70000000, s70"); a("s_add_u32 s71, s70, %d" % SW); a("s_add_u32 s72, s71, %d" % SW)
    a("v_mul_u32_u24 v7, 1152, v%d" % V_R); a("v_lshl_add_u32 v7, v%d, 4, v7" % V_G)
    a("s_mul_i32 s46, s76, 18432"); a("s_mul_i32 s47, s75, 192"); a("s_add_u32 s77, s46, s47")
    a("s_cmp_ge_u32 s75, 6"); a("s_cselect_b32 s77, 0x70000000, s77")
    L = a.newlabel("Lp2w")
    a("s_cmp_lg_u32 s%d, 0" % S_WAVE); a("s_cbranch_scc1 %s" % L)
    a("v_lshrrev_b32 v30, 2, v%d" % V_LANE); a("v_min_u32 v30, 2, v30"); a("v_add_u32 v30, s50, v30"); a("v_subrev_u32 v30, 2, v30"); a("v_max_i32 v30, 0, v30")
    a("v_bfe_u32 v31, v%d, 1, 1" % V_LANE); a("v_add_u32 v31, 1, v31"); a("v_cmp_gt_u32 vcc, 12, v%d" % V_LANE); a("v_cndmask_b32 v31, 0, v31, vcc")
    a("v_mul_u32_u24 v31, 576, v31"); a("v_and_b32 v32, 1, v%d" % V_LANE); a("v_mul_u32_u24 v32, 35, v32")
    a("s_mul_i32 s46, s51, 36"); a("v_add3_u32 v31, v31, v32, s46"); a("v_lshrrev_b32 v31, 7, v31")
    a("v_lshl_add_u32 v30, v30, 4, v31"); a("v_add_u32 v30, %d, v30" % F1)
    a("v_min_u32 v33, 53, v%d" % V_LANE); a("v_add_u32 v33, %d, v33" % FS)
    a.poll(33, 31, sleep0=0)
    a.poll(30, 31, sleep0=SLEEP0["p2"])
    a.label(L)
    a("s_barrier")
    a.stamp("p2_ready")
    QR = 26
    for qt in range(2):
        a("buffer_load_dwordx2 v[%d:%d], v17, s[%d:%d], s54 offen offset:%d sc1" % (QR+6*qt, QR+6*qt+1, R_WS, R_WS+3, 1152*qt))
        a("buffer_load_dwordx2 v[%d:%d], v18, s[%d:%d], s54 offen offset:%d sc1" % (QR+6*qt+2, QR+6*qt+3, R_WS, R_WS+3, 1152*qt+1024))
        a("buffer_load_dwordx2 v[%d:%d], v17, s[%d:%d], s54 offen offset:%d sc1" % (QR+6*qt+4, QR+6*qt+5, R_WS, R_WS+3, 1152*qt+512))
    a("s_lshl_b32 s46, s%d, 10" % S_WAVE)
    for R, base in ((R_A, KL_), (R_B, VL_)):
        for i in range(7):
            Ls = a.newlabel("Lp2d")
            if i == 6: a("s_cmp_eq_u32 s%d, 3" % S_WAVE); a("s_cbranch_scc1 %s" % Ls)
            a("s_add_u32 m0, s46, %d" % (base + 4096*i))
            a("buffer_load_dwordx4 v%d, s[%d:%d], 0 offen sc1 lds" % (10+i, R, R+3))
            if i == 6: a.label(Ls)
    a.srd(R_A, S_X, ACT)
    QF = 40
    a("s_waitcnt vmcnt(12)")
    for qt in range(2):
        q = QR+6*qt
        a("v_mov_b32 v%d, v%d" % (QF+4*qt, q)); a("v_mov_b32 v%d, v%d" % (QF+4*qt+1, q+1))
        a("v_cndmask_b32 v%d, 0, v%d, s[68:69]" % (QF+4*qt+2, q+2)); a("v_mov_b32 v%d, 0" % (QF+4*qt+3))
        a("v_mov_b32 v%d, v%d" % (QF+8+4*qt, q+4)); a("v_mov_b32 v%d, v%d" % (QF+8+4*qt+1, q+5))
        a("v_mov_b32 v%d, 0" % (QF+8+4*qt+2)); a("v_cndmask_b32 v%d, 0, v%d, s[68:69]" % (QF+8+4*qt+3, q+3))
    a("s_lshl_b32 s55, s50, 3"); a("s_lshl_b32 s46, s%d, 1" % S_WAVE); a("s_add_u32 s55, s55, s46"); a("s_sub_u32 s55, 16, s55")
    a("s_waitcnt vmcnt(0)"); a("s_barrier")
    a.stamp("p2_loaded")
    a("s_cmp_lt_u32 s50, 2"); a("s_cbranch_scc1 L_p2_edge")
    M, NM, CZ = 8, 56, 26
    KF = 64
    S2, P, VM = 136, 168, 184
    S1 = S2
    OM, OL, R_, OUT = 192, 200, 32, 208
    def prefetch():
        o = []
        for i in range(2, 27):
            pre = ""
            if i == 2 or i % 4 == 0:
                q = i & ~3
                pre = "s_add_u32 m0, s73, %d\ns_add_u32 s58, s70, %d\n" % (1024*q, 1024*q)
            o.append(pre + "buffer_load_dwordx4 v%d, s[%d:%d], s58 offen offset:%d sc1 lds" % (V_L16, R_WS, R_WS+3, 1024*(i & 3)))
        for jj in range(3): o.append("buffer_load_dwordx4 v[%d:%d], v7, s[%d:%d], s77 offen offset:%d" % (XT+4*jj, XT+4*jj+3, R_A, R_A+3, 64*jj))
        for sb, ab in ((71, AW1),):
            for i in range(27):
                pre = "s_add_u32 s59, s%d, %d\n" % (sb, 1024*i) if i % 4 == 0 else ""
                o.append(pre + "buffer_load_dwordx4 a[%d:%d], v%d, s[%d:%d], s59 offen offset:%d sc1" % (ab+4*i, ab+4*i+3, V_L16, R_WS, R_WS+3, 1024*(i & 3)))
        return o
    for edge in (0, 1):
      if edge: a.label("L_p2_edge")
      pf = prefetch()
      def take(n):
          o = pf[:n]; del pf[:n]; return o
      for head in range(2):
        Q = QF + 8*head
        def kread(t):
            return ["ds_read_b64 v[%d:%d], v20 offset:%d" % (KF+4*t, KF+4*t+1, 1152*t + 512*head), "ds_read_b64 v[%d:%d], v21 offset:%d" % (KF+4*t+2, KF+4*t+3, 1152*t)]
        def vleft(m): return "ds_read_b128 a[%d:%d], v23 offset:%d" % (VLA+4*m, VLA+4*m+3, 2304*m + 128*head)
        def vmain(m): return "ds_read_b128 v[%d:%d], v22 offset:%d" % (VM+4*(m & 1), VM+4*(m & 1)+3, 2304*m + 1024*head)
        def has(qt, t): return (t <= 16) if qt == 0 else (t >= 1)
        def mask(reg, qt, t):
            o = []
            for i in range(4):
                if t == qt: o.append("v_cndmask_b32 v%d, v25, v%d, s[%d:%d]" % (reg+i, reg+i, 60+2*i, 61+2*i))
                if t == 16+qt: o.append("v_cndmask_b32 v%d, v%d, v25, s[%d:%d]" % (reg+i, reg+i, 60+2*i, 61+2*i))
            return o
        def switch(t, moves):
            Ls = a.newlabel("Lsw")
            a("s_cmp_eq_u32 s55, %d" % t); a("s_cbranch_scc0 %s" % Ls)
            for x in moves: a(x)
            a.label(Ls)
        AHEAD = 4
        if head: a("s_waitcnt vmcnt(20)")
        for t in range(AHEAD):
            for x in kread(t): a(x)
        a("s_mov_b32 exec_lo, 0x00030003"); a("s_mov_b32 exec_hi, 0x00030003")
        for m in range(5): a(vleft(m))
        a("s_mov_b64 exec, -1")
        a("v_mov_b32 v%d, v25" % M); a("v_mov_b32 v%d, v25" % (M+1))
        if edge:
            for i in range(4): a("v_mov_b32 v%d, v25" % (CZ+i))
        def maxes(t):
            o = []
            for qt in range(2):
                if not has(qt, t): continue
                s = S1 + 8*(t % 3) + 4*qt
                o += mask(s, qt, t)
                o.append("v_max3_f32 v%d, v%d, v%d, v%d" % (M+qt, s, s+1, M+qt))
            for qt in range(2):
                if not has(qt, t): continue
                s = S1 + 8*(t % 3) + 4*qt
                o.append("v_max3_f32 v%d, v%d, v%d, v%d" % (M+qt, s+2, s+3, M+qt))
            return o
        for t in range(18):
            if edge and t % 2 == 0: switch(t, ["v_mov_b32 v%d, 0" % (CZ+i) for i in range(4)])
            n = 2*min(AHEAD-1, 17-t) + (5 if t < AHEAD else 0)
            a("s_waitcnt lgkmcnt(%d)" % n)
            ms = [mfma(S1+8*(t % 3)+4*qt, KF+4*t, Q+4*qt, CZ if edge else None) for qt in range(2) if has(qt, t)]
            fill = (kread(t+AHEAD) if t+AHEAD < 18 else []) + (maxes(t-2) if t >= 2 else []) + (take(1) if t % 3 == 1 else [])
            interleave(a, ms, fill)
        a("s_mov_b32 exec_lo, 0x00030003"); a("s_mov_b32 exec_hi, 0x00030003")
        for m in range(5, 9): a(vleft(m))
        a("s_mov_b64 exec, -1")
        a(vmain(0))
        for x in maxes(16) + maxes(17): a(x)
        for sw in ("v_permlane32_swap_b32", "v_permlane16_swap_b32"):
            for qt in range(2): a("v_mov_b32 v%d, v%d" % (30+qt, M+qt))
            for qt in range(2): a("%s v%d, v%d" % (sw, M+qt, 30+qt))
            for qt in range(2): a("v_max_f32 v%d, v%d, v%d" % (M+qt, M+qt, 30+qt))
        negs = ["v_sub_f32 v%d, 0, v%d" % (NM+4*qt+i, M+qt) for qt in range(2) for i in range(4)]
        if edge:
            for i in range(8): a("v_mov_b32 v%d, v25" % (NM+i))
        else:
            for x in negs: a(x)
        def qk(m):
            return [mfma(S2+16*(m & 1)+8*qt+4*b, KF+4*(2*m+b), Q+4*qt, NM+4*qt) for qt in range(2) for b in range(2) if has(qt, 2*m+b)]
        def pv(m):
            o = []
            for qt in range(2):
                p = P+8*(m & 1)+4*qt
                o.append(mfma(OM+4*qt, VM+4*(m & 1), p, None if m == 0 else OM+4*qt))
                o.append(mfma(OL+4*qt, VLA+4*m, p, None if m == 0 else OL+4*qt, ta="a"))
            return o
        for x in qk(0): a(x)
        for m in range(9):
            if edge and m < 8: switch(2*m+2, negs)
            mf = (qk(m+1) if m < 8 else []) + (pv(m-1) if m else [])
            va = []
            ld = take(3 if m % 2 == 0 else 2)
            for qt in range(2):
                p = P+8*(m & 1)+4*qt
                for b in range(2):
                    s = S2+16*(m & 1)+8*qt+4*b
                    if has(qt, 2*m+b):
                        va += mask(s, qt, 2*m+b)
                        va += ["v_exp_f32 v%d, v%d" % (s+i, s+i) for i in range(4)]
                    if ld and (b == 0 or qt == 0): va.append(ld.pop(0))
                for b in range(2):
                    s = S2+16*(m & 1)+8*qt+4*b
                    if has(qt, 2*m+b):
                        va += ["v_cvt_pk_bf16_f32 v%d, v%d, v%d" % (p+2*b+h, s+2*h, s+2*h+1) for h in range(2)]
                    else:
                        va += ["v_mov_b32 v%d, 0" % (p+2*b+h) for h in range(2)]
            if m: a("s_waitcnt lgkmcnt(1)")
            interleave(a, mf, va)
            if m < 8: a(vmain(m+1))
        a("s_waitcnt lgkmcnt(0)")
        for x in pv(8): a(x)
        if head == 1:
            assert not pf
            a("s_mul_i32 s54, s53, 18432"); a("s_add_u32 s54, s54, %d" % O_OFF)
            a("s_lshl_b32 s46, s51, 10"); a("s_add_u32 s58, s46, s54"); a("s_add_u32 s59, s58, 18432")
            a("s_lshr_b32 s46, s51, 3"); a("s_add_u32 s46, s46, 16"); a("s_lshl_b32 s46, s46, 10"); a("s_add_u32 s54, s54, s46")
            a("s_and_b32 s46, s51, 7"); a("s_lshr_b32 s46, s46, 1"); a("s_lshl_b32 s46, s46, 8"); a("s_add_u32 s54, s54, s46")
            a("s_and_b32 s46, s51, 1"); a("s_lshl_b32 s46, s46, 3"); a("s_add_u32 s54, s54, s46"); a("s_add_u32 s47, s54, 18432")
        for qt in range(2): a("v_rcp_f32 v%d, v%d" % (30+qt, OL+4*qt+3))
        for qt in range(2):
            for i in range(4): a("v_mul_f32 v%d, v%d, v%d" % (OM+4*qt+i, OM+4*qt+i, 30+qt))
            for i in range(2): a("v_mul_f32 v%d, v%d, v%d" % (OL+4*qt+i, OL+4*qt+i, 30+qt))
        for qt in range(2):
            for h in range(2): a("v_cvt_pk_bf16_f32 v%d, v%d, v%d" % (OUT+4*qt+2*head+h, OM+4*qt+2*h, OM+4*qt+2*h+1))
            a("v_cvt_pk_bf16_f32 v%d, v%d, v%d" % (R_+2*qt+head, OL+4*qt, OL+4*qt+1))
      if not edge: a("s_branch L_p2_out")
    a.label("L_p2_out")
    a("buffer_store_dwordx4 v[%d:%d], v%d, s[%d:%d], s58 offen sc1" % (OUT, OUT+3, V_L16, R_WS, R_WS+3))
    a("buffer_store_dwordx4 v[%d:%d], v%d, s[%d:%d], s59 offen sc1" % (OUT+4, OUT+7, V_L16, R_WS, R_WS+3))
    a("s_mov_b64 exec, 0xffff")
    a("buffer_store_dwordx2 v[%d:%d], v%d, s[%d:%d], s54 offen sc1" % (R_, R_+1, V_L16, R_WS, R_WS+3))
    a("buffer_store_dwordx2 v[%d:%d], v%d, s[%d:%d], s47 offen sc1" % (R_+2, R_+3, V_L16, R_WS, R_WS+3))
    a("s_mov_b64 exec, -1")
    a.stamp("p2_done")
    a("s_lshl_b32 s57, s50, 4"); a("s_add_u32 s57, s57, s51"); a("s_add_u32 s57, s57, %d" % F2)
    if a.stop == 2:
        a("s_waitcnt vmcnt(0)")

C0 = -2.0*math.log2(math.e)*math.sqrt(2/math.pi)
C1 = C0*0.044715

def gelu_pk(a, regs, t, sc):
    for k, r in enumerate(regs): a("v_pk_mul_f32 v[%d:%d], v[%d:%d], v[%d:%d]" % (t+2*k, t+2*k+1, r, r+1, r, r+1))
    for k, r in enumerate(regs): a("v_pk_fma_f32 v[%d:%d], v[%d:%d], s[%d:%d], s[%d:%d] op_sel:[0,0,1] op_sel_hi:[1,0,1]" % (t+2*k, t+2*k+1, t+2*k, t+2*k+1, sc, sc+1, sc, sc+1))
    for k, r in enumerate(regs): a("v_pk_mul_f32 v[%d:%d], v[%d:%d], v[%d:%d]" % (t+2*k, t+2*k+1, t+2*k, t+2*k+1, r, r+1))
    for k in range(2*len(regs)): a("v_exp_f32 v%d, v%d" % (t+k, t+k))
    for k, r in enumerate(regs): a("v_pk_add_f32 v[%d:%d], v[%d:%d], 1.0 op_sel_hi:[1,0]" % (t+2*k, t+2*k+1, t+2*k, t+2*k+1))
    for k in range(2*len(regs)): a("v_rcp_f32 v%d, v%d" % (t+k, t+k))
    for k, r in enumerate(regs): a("v_pk_mul_f32 v[%d:%d], v[%d:%d], v[%d:%d]" % (r, r+1, r, r+1, t+2*k, t+2*k+1))

def stats_loads(a, off, stile, vt):
    a("v_lshlrev_b32 v%d, 3, v%d" % (vt+4, V_LANE))
    a("v_add_u32 v%d, 512, v%d" % (vt+5, vt+4)); a("v_cmp_gt_u32 vcc, 32, v%d" % V_LANE); a("v_mov_b32 v%d, 0x7fffffff" % vt)
    a("v_cndmask_b32 v%d, v%d, v%d, vcc" % (vt+5, vt, vt+5))
    a("s_mul_i32 s46, s%d, 768" % stile); a("s_add_u32 s46, s46, %d" % off)
    return ["buffer_load_dwordx2 v[%d:%d], v%d, s[%d:%d], s46 offen sc1" % (vt+2*k, vt+2*k+1, vt+4+k, R_WS, R_WS+3) for k in range(2)]

def stats_finish(a, vt, vmean, vrstd):
    a("v_add_f32 v%d, v%d, v%d" % (vt, vt, vt+2)); a("v_add_f32 v%d, v%d, v%d" % (vt+1, vt+1, vt+3))
    for sw in ("v_permlane32_swap_b32", "v_permlane16_swap_b32"):
        for k in range(2): a("v_mov_b32 v%d, v%d" % (vt+2+k, vt+k))
        for k in range(2): a("%s v%d, v%d" % (sw, vt+k, vt+2+k))
        for k in range(2): a("v_add_f32 v%d, v%d, v%d" % (vt+k, vt+k, vt+2+k))
    a("s_mov_b32 s47, %d" % f32(1.0/576))
    a("v_mul_f32 v%d, s47, v%d" % (vmean, vt)); a("v_mul_f32 v%d, v%d, v%d" % (vt, vmean, vmean))
    a("v_fma_f32 v%d, v%d, s47, -v%d" % (vt+1, vt+1, vt)); a("v_max_f32 v%d, 0, v%d" % (vt+1, vt+1))
    a("v_add_f32 v%d, %d, v%d" % (vt, f32(1e-5), vt+1)); a("v_rsq_f32 v%d, v%d" % (vrstd, vt))

def norm_ops(x, vs, vb, t):
    o = []
    for r in range(4):
        o.append("v_lshlrev_b32 v%d, 16, v%d" % (t+2*r, x+r)); o.append("v_and_b32 v%d, 0xffff0000, v%d" % (t+2*r+1, x+r))
    for r in range(8): o.append("v_fma_f32 v%d, v%d, v%d, v%d" % (t+r, t+r, vs, vb))
    for r in range(4): o.append("v_cvt_pk_bf16_f32 v%d, v%d, v%d" % (x+r, t+2*r, t+2*r+1))
    return o

def out_stats(a, pk, n, vt, off):
    a("v_mov_b32 v%d, 0" % vt); a("v_mov_b32 v%d, 0" % (vt+1))
    for r in range(n):
        a("v_dot2c_f32_bf16 v%d, s%d, v%d" % (vt, S_ONES, pk+r)); a("v_dot2c_f32_bf16 v%d, v%d, v%d" % (vt+1, pk+r, pk+r))
    for sw in ("v_permlane32_swap_b32", "v_permlane16_swap_b32"):
        for k in range(2): a("v_mov_b32 v%d, v%d" % (vt+2+k, vt+k))
        for k in range(2): a("%s v%d, v%d" % (sw, vt+k, vt+2+k))
        for k in range(2): a("v_add_f32 v%d, v%d, v%d" % (vt+k, vt+k, vt+2+k))
    a("s_mul_i32 s46, s53, 6"); a("s_add_u32 s46, s46, s51"); a("s_lshl_b32 s46, s46, 7"); a("s_add_u32 s46, s46, %d" % off)
    a("v_lshlrev_b32 v%d, 3, v%d" % (vt+2, V_LANE))
    a("s_mov_b64 exec, 0xffff")
    a("buffer_store_dwordx2 v[%d:%d], v%d, s[%d:%d], s46 offen sc1" % (vt, vt+1, vt+2, R_WS, R_WS+3))
    a("s_mov_b64 exec, -1")

AF, ACC, WB, HK, VMEAN, VRSTD = 64, 136, 160, 40, 52, 53
OS = WB

def handoff(a, stage, deps, stamp):
    a("s_barrier")
    nv = sum("buffer_load" in x for x in stage)
    n1 = len(stage) if nv else 2*len(stage)//3
    for x in stage[:n1]: a(x)
    a.stamp(stamp + "_dma")
    a("s_waitcnt vmcnt(%d)" % nv); a("s_barrier")
    a.stamp(stamp + "_drain")
    L = a.newlabel("Lho")
    a("s_cmp_lg_u32 s%d, 0" % S_WAVE); a("s_cbranch_scc1 %s_d" % L)
    a.set_flag(57, 30)
    a.label(L + "_d")
    for x in stage[n1:]: a(x)
    a("s_cmp_lg_u32 s%d, 0" % S_WAVE); a("s_cbranch_scc1 %s" % L)
    deps()
    a.poll(30, 31, sleep0=SLEEP0[stamp])
    a.label(L)
    a("s_waitcnt vmcnt(0) lgkmcnt(0)"); a("s_barrier")
    a.stamp(stamp + "_ready")

def touch(a, off):
    if "touch" not in ABL: return 0
    a("s_add_u32 s46, s78, %d" % off)
    a("s_mov_b64 exec, 0xffffff")
    a("buffer_load_dword v253, v9, s[%d:%d], s46 offen sc1" % (R_WS, R_WS+3))
    a("s_mov_b64 exec, -1")

def gemm96(a, loads, norm=None, each=None, stamp=None, extra=()):
    UP = 8
    def wr(j): return ["ds_read_b128 v[%d:%d], v%d offset:%d" % (WB+24*(j % 3)+4*t, WB+24*(j % 3)+4*t+3, 5+(t//3), (t % 3)*18432 + 1024*j) for t in range(6)]
    for j in range(UP): a(loads[j])
    for x in wr(0) + wr(1): a(x)
    if each: each(UP)
    if norm:
        a("s_waitcnt vmcnt(%d)" % (UP-1))
        for x in norm(0): a(x)
    for j in range(18):
        ex = lambda q: min(len(extra), max(0, (q-9)*len(extra)//8))
        issued = min(18, UP+j) + ex(j)
        need = j+1 if (norm and j < 17) else j
        a("s_waitcnt vmcnt(%d) lgkmcnt(%d)" % (issued-1-need, 6 if j < 17 else 0))
        if j in (0, 9) and stamp: a.stamp(stamp + "_k%d" % j)
        ms = [mfma(ACC+4*t, WB+24*(j % 3)+4*t, AF+4*j, None if j == 0 else ACC+4*t) for t in range(6)]
        fill = ([loads[UP+j]] if UP+j < 18 else []) + (wr(j+2) if j < 16 else []) + (norm(j+1) if norm and j < 17 else [])
        xs = extra[ex(j):ex(j+1)]
        for n, x in enumerate(xs): fill.insert(len(fill) - 8*(len(xs)-1-n) if norm else len(fill), x)
        interleave(a, ms, fill)

def phase345(a):
    a("s_mov_b32 s50, s74"); a("s_mov_b32 s51, s75"); a("s_mov_b32 s53, s76")
    a("s_cmp_ge_u32 s51, 6"); a("s_cbranch_scc1 L_p3_helper")
    a("v_add_u32 v5, %d, v%d" % (W_LDS, V_L16)); a("v_add_u32 v6, %d, v%d" % (W_LDS + 3*18432, V_L16))
    a("v_add_u32 v8, s73, v%d" % V_L16)
    a("s_mul_i32 s54, s53, 18432")
    a("s_mul_i32 s55, s51, 3072"); a("s_add_u32 s55, s55, s54")
    a("v_lshlrev_b32 v9, 7, v%d" % V_LANE)
    a("s_lshl_b32 s46, s51, 2"); a("s_add_u32 s46, s46, s%d" % S_WAVE); a("s_mul_i32 s46, s46, 3072"); a("s_mul_i32 s78, s50, 73728"); a("s_add_u32 s78, s78, s46")
    def w2(i0, i1):
        return [("s_add_u32 s59, s72, %d\n" % (1024*(i & ~3)) if (i % 4 == 0 or i == i0) else "") +
                "buffer_load_dwordx4 a[%d:%d], v%d, s[%d:%d], s59 offen offset:%d sc1" % (AW2+4*i, AW2+4*i+3, V_L16, R_WS, R_WS+3, 1024*(i & 3)) for i in range(i0, i1)]
    def park(ab): return ["ds_write_b128 v8, a[%d:%d] offset:%d" % (ab+4*i, ab+4*i+3, 1024*i) for i in range(27)]
    def aloads(off):
        for q in range(5): a("s_add_u32 s%d, s54, %d" % (60+q, off + 4096*q))
        return ["buffer_load_dwordx4 v[%d:%d], v%d, s[%d:%d], s%d offen offset:%d sc1" % (AF+4*j, AF+4*j+3, V_L16, R_WS, R_WS+3, 60+(j >> 2), 1024*(j & 3)) for j in range(18)]
    def ostores(src, off):
        a("s_add_u32 s46, s55, %d" % off)
        for jj in range(3): a("buffer_store_dwordx4 v[%d:%d], v%d, s[%d:%d], s46 offen offset:%d sc1" % (src+4*jj, src+4*jj+3, V_L16, R_WS, R_WS+3, 1024*jj))
    def team(F):
        def f(): a("v_min_u32 v30, 5, v%d" % V_LANE); a("s_lshl_b32 s46, s50, 3"); a("s_add_u32 s46, s46, %d" % F); a("v_add_u32 v30, s46, v30")
        return f
    def myflag(F): a("s_lshl_b32 s57, s50, 3"); a("s_add_u32 s57, s57, s51"); a("s_add_u32 s57, s57, %d" % F)
    def dep3(): a("s_lshr_b32 s46, s50, 1"); a("s_lshl_b32 s46, s46, 4"); a("s_add_u32 s46, s46, %d" % F2); a("v_add_u32 v30, s46, v%d" % V_R)
    last2 = ["s_mov_b32 m0, s73\ns_nop 0\nbuffer_load_dwordx4 v%d, s[%d:%d], s70 offen sc1 lds" % (V_L16, R_WS, R_WS+3),
             "buffer_load_dwordx4 v%d, s[%d:%d], s70 offen offset:1024 sc1 lds" % (V_L16, R_WS, R_WS+3)]
    handoff(a, last2, dep3, "p3")
    touch(a, O_OFF)
    gemm96(a, aloads(O_OFF), stamp="p3", extra=w2(0, 9))
    a.stamp("p3_gemm")
    a("s_mov_b32 s46, 0x00003f80"); a("s_mov_b32 s47, 0x3f800000")
    for t in range(6):
        for i in range(4): a("v_dot2c_f32_bf16 v%d, s%d, v%d" % (ACC+4*t+i, 46+(i & 1), XT+4*(t >> 1)+2*(t & 1)+(i >> 1)))
    for k in range(12): a("v_cvt_pk_bf16_f32 v%d, v%d, v%d" % (HK+k, ACC+2*k, ACC+2*k+1))
    ostores(HK, H_OFF)
    out_stats(a, HK, 12, 10, SH_OFF)
    myflag(F3)
    a.stamp("p3_epi")
    if a.stop == 3: a("s_waitcnt vmcnt(0)"); a("s_branch L_fin")
    handoff(a, park(AW1), team(F3), "p4")
    touch(a, H_OFF)
    for x in stats_loads(a, SH_OFF, 53, 10): a(x)
    def fin4(younger):
        a("s_waitcnt vmcnt(%d)" % younger)
        stats_finish(a, 10, VMEAN, VRSTD)
        a("v_mul_f32 v12, v%d, v%d" % (VRSTD, VRSTD)); a("v_mul_f32 v12, v12, v11"); a("v_add_f32 v12, %d, v12" % f32(1e-5))
        a("v_rsq_f32 v12, v12"); a("v_mul_f32 v16, v12, v%d" % VRSTD); a("v_mul_f32 v17, v16, -v%d" % VMEAN)
    gemm96(a, aloads(H_OFF), norm=lambda j: norm_ops(AF+4*j, 16, 17, 20), each=fin4, stamp="p4", extra=w2(9, 27))
    a.stamp("p4_gemm")
    a("s_mov_b32 s48, %d" % f32(C1)); a("s_mov_b32 s49, %d" % f32(C0))
    gelu_pk(a, [ACC+2*k for k in range(12)], AF, 48)
    for k in range(12): a("v_cvt_pk_bf16_f32 v%d, v%d, v%d" % (OS+k, ACC+2*k, ACC+2*k+1))
    ostores(OS, T_OFF)
    myflag(F4)
    a.stamp("p4_epi")
    if a.stop == 4: a("s_waitcnt vmcnt(0)"); a("s_branch L_fin")
    a.srd(R_A, S_WS, ACT, T_OFF)
    a("s_lshl_b32 s46, s53, 4"); a("v_add_u32 v20, s46, v%d" % V_R); a("s_mov_b32 s47, 18432")
    for k, sh in enumerate((1, -1, 2, -2)):
        a("v_subrev_u32 v21, %d, v20" % sh); a("v_ashrrev_i32 v22, 4, v21"); a("v_mul_lo_u32 v22, v22, s47")
        a("v_and_b32 v21, 15, v21"); a("v_lshl_add_u32 v21, v%d, 4, v21" % V_G); a("v_lshl_add_u32 v%d, v21, 4, v22" % (10+k))
    a("v_cmp_gt_u32 vcc, 32, v%d" % V_LANE); a("v_cndmask_b32 v14, v11, v10, vcc"); a("v_cndmask_b32 v15, v13, v12, vcc")
    for q in range(5): a("s_mov_b32 s%d, %d" % (70+q, 4096*q))
    def vsel(j): return 10 if j < 4 else 14 if j == 4 else 11 if j < 9 else 12 if j < 13 else 15 if j == 13 else 13
    tl = ["buffer_load_dwordx4 v[%d:%d], v%d, s[%d:%d], s%d offen offset:%d sc1" % (AF+4*j, AF+4*j+3, vsel(j), R_A, R_A+3, 70+(j >> 2), 1024*(j & 3)) for j in range(18)]
    def dep5():
        a("v_lshrrev_b32 v31, 3, v%d" % V_LANE); a("v_min_u32 v31, 2, v31"); a("v_add_u32 v31, s50, v31"); a("v_subrev_u32 v31, 1, v31")
        a("v_med3_i32 v31, v31, 0, 31"); a("v_and_b32 v30, 7, v%d" % V_LANE); a("v_min_u32 v30, 5, v30")
        a("v_lshl_add_u32 v30, v31, 3, v30"); a("v_add_u32 v30, %d, v30" % F4)
        a("s_mul_i32 s46, s65, 18"); a("s_add_u32 s46, s46, %d" % (FS + 54 - 32))
        a("v_min_u32 v31, 49, v%d" % V_LANE); a("v_add_u32 v31, s46, v31"); a("v_cmp_lt_u32 vcc, 31, v%d" % V_LANE); a("v_cndmask_b32 v30, v30, v31, vcc")
    roles6(a)
    a("s_waitcnt vmcnt(3)")
    handoff(a, park(AW2), dep5, "p5")
    touch(a, T_OFF)
    gemm96(a, tl, stamp="p5")
    a.stamp("p5_gemm")
    a("v_mul_f32 v17, v%d, -v%d" % (VRSTD, VMEAN))
    for k in range(12):
        a("v_lshlrev_b32 v20, 16, v%d" % (HK+k)); a("v_and_b32 v21, 0xffff0000, v%d" % (HK+k))
        a("v_fma_f32 v20, v20, v%d, v17" % VRSTD); a("v_fma_f32 v21, v21, v%d, v17" % VRSTD)
        a("v_pk_add_f32 v[%d:%d], v[%d:%d], v[20:21]" % (ACC+2*k, ACC+2*k+1, ACC+2*k, ACC+2*k+1))
    for k in range(12): a("v_cvt_pk_bf16_f32 v%d, v%d, v%d" % (OS+k, ACC+2*k, ACC+2*k+1))
    ostores(OS, X1_OFF)
    out_stats(a, OS, 12, 10, SX_OFF)
    myflag(F5)
    a.stamp("p5_epi")
    a("s_waitcnt vmcnt(0)"); a("s_barrier")
    a("s_cmp_lg_u32 s%d, 0" % S_WAVE); a("s_cbranch_scc1 L_p5_pre")
    a.set_flag(57, 30)
    a("s_branch L_p5_pre")
    a.label("L_p3_helper")
    a("s_waitcnt vmcnt(0)"); a("s_barrier")
    L = a.newlabel("Lh")
    a("s_cmp_lg_u32 s%d, 0" % S_WAVE); a("s_cbranch_scc1 %s" % L)
    a.set_flag(57, 30)
    a.label(L)
    swizzle_setup(a)
    a("s_lshl_b32 s48, s50, 1"); a("s_add_u32 s48, s48, s51"); a("s_add_u32 s48, s48, 48")
    a.label("L_p3_round")
    Lf = swizzle_units(a, 48, "64", 3, "342")
    swizzle_flags(a, 3, Lf)
    a("s_add_u32 s48, s48, 192"); a("s_cmp_lt_u32 s48, 342"); a("s_cbranch_scc1 L_p3_round")
    roles6(a)
    L = a.newlabel("Lh")
    a("s_cmp_lg_u32 s%d, 0" % S_WAVE); a("s_cbranch_scc1 %s" % L)
    a("s_mul_i32 s46, s65, 18"); a("s_add_u32 s46, s46, %d" % (FS + 54)); a("v_min_u32 v30, 17, v%d" % V_LANE); a("v_add_u32 v30, s46, v30")
    a.poll(30, 31, sleep0=0)
    a.label(L)
    a("s_barrier")
    a.label("L_p5_pre")
    for x in ring_prefill(a, 59): a(x)
    a.label("L_p5_done")
    a.stamp("p5_done")

RING = 184

def roles6(a):
    a("s_lshr_b32 s46, s%d, 1" % S_XCD); a("s_lshl_b32 s64, s46, 3"); a("s_lshr_b32 s67, s%d, 2" % S_SLOT); a("s_add_u32 s64, s64, s67")
    if "rot" not in ABL: a("s_mov_b32 s67, 0")
    a("s_and_b32 s46, s%d, 1" % S_XCD); a("s_lshl_b32 s65, s46, 2"); a("s_and_b32 s46, s%d, 3" % S_SLOT); a("s_add_u32 s65, s65, s46")
    a("s_lshl_b32 s46, s65, 2"); a("s_add_u32 s46, s46, s%d" % S_WAVE); a("s_mul_i32 s66, s46, %d" % (9*18432)); a("s_add_u32 s66, s66, %d" % W3_S)

def wload(j, s=58, ring=("a", RING)):
    o = "s_add_u32 s%d, s%d, 4096\n" % (s, s) if (j and j % 4 == 0) else ""
    return o + "buffer_load_dwordx4 %s[%d:%d], v%d, s[%d:%d], s%d offen offset:%d sc1" % (ring[0], ring[1]+4*j, ring[1]+4*j+3, V_L16, R_WS, R_WS+3, s, 1024*(j & 3))

def ring_prefill(a, s):
    a("s_mul_i32 s%d, s67, 18432" % s); a("s_add_u32 s%d, s%d, s66" % (s, s))
    return [wload(j, s) for j in range(18)]

def norm_pk(x, vs, t):
    o = []
    for r in range(4):
        o.append("v_lshlrev_b32 v%d, 16, v%d" % (t+2*r, x+r)); o.append("v_and_b32 v%d, 0xffff0000, v%d" % (t+2*r+1, x+r))
    for r in range(4): o.append("v_pk_fma_f32 v[%d:%d], v[%d:%d], v[%d:%d], v[%d:%d] op_sel:[0,0,1] op_sel_hi:[1,0,1]" % (t+2*r, t+2*r+1, t+2*r, t+2*r+1, vs, vs+1, vs, vs+1))
    for r in range(4): o.append("v_cvt_pk_bf16_f32 v%d, v%d, v%d" % (x+r, t+2*r, t+2*r+1))
    return o

def phase6(a):
    AC, PK, RB, GT, XR = 40, 72, 80, 136, 64
    HB = 73728
    def xf(T, j):
        f = 4*j + T
        return ("a", 4*f) if f < 46 else ("v", 152 + 4*(f-46))
    a("s_mov_b32 s50, s64"); a("s_mov_b32 s51, s65"); a("s_mov_b32 s54, s66"); a("s_mov_b32 s52, s67")
    a("s_lshl_b32 s53, s50, 2"); a("s_add_u32 s53, s53, s%d" % S_WAVE)
    a("s_add_u32 s55, s54, %d" % BW)
    a("s_mul_i32 s56, s50, 72"); a("s_add_u32 s56, s56, s51"); a("s_lshl_b32 s56, s56, 2"); a("s_add_u32 s56, s56, s%d" % S_WAVE)
    a("s_lshl_b32 s56, s56, 11"); a("s_add_u32 s56, s56, %d" % PART)
    a("s_mul_i32 s46, s53, 18432")
    for q in range(5): a("s_add_u32 s%d, s46, %d" % (70+q, X1_OFF + 4096*q))
    a("s_mul_i32 s46, s%d, 18432" % S_WAVE); a("v_add_u32 v5, s46, v%d" % V_L16)
    a("v_add_u32 v6, 36864, v%d" % V_L16); a("v_add_u32 v7, %d, v%d" % (HB, V_L16)); a("v_add_u32 v8, %d, v%d" % (HB+36864, V_L16))
    a("s_lshr_b32 s46, s%d, 1" % S_WAVE); a("s_lshl_b32 s46, s46, 10"); a("s_and_b32 s47, s%d, 1" % S_WAVE); a("s_lshl_b32 s47, s47, 3")
    a("s_add_u32 s46, s46, s47"); a("v_add_u32 v19, s46, v7")
    a("s_mov_b32 s48, %d" % f32(C1)); a("s_mov_b32 s49, %d" % f32(C0)); a("v_mov_b32 v18, s49")
    sl = stats_loads(a, SX_OFF, 53, 10)
    a("s_mov_b32 s60, s46")
    sl = [x.replace("s46", "s60") for x in sl]
    a("v_mov_b32 v28, 0")
    a("global_load_dword v29, v28, s[%d:%d] sc1" % (S_DBG, S_DBG+1))
    L = a.newlabel("Lp6w")
    a("s_cmp_lg_u32 s%d, 0" % S_WAVE); a("s_cbranch_scc1 %s" % L)
    a("s_mul_i32 s46, s51, 18"); a("s_add_u32 s46, s46, %d" % (FS + 54 + 144 - 6))
    a("v_min_u32 v31, 23, v%d" % V_LANE); a("v_add_u32 v30, s46, v31")
    a("s_lshl_b32 s46, s50, 3"); a("s_add_u32 s46, s46, %d" % F5); a("v_add_u32 v32, s46, v31")
    a("v_cmp_gt_u32 vcc, 6, v31"); a("v_cndmask_b32 v30, v30, v32, vcc")
    a.poll(30, 31, sleep0=SLEEP0["p6"])
    a.label(L)
    a("s_barrier")
    a.stamp("p6_ready")
    for x in sl: a(x)
    def xload(j): return "buffer_load_dwordx4 v[%d:%d], v%d, s[%d:%d], s%d offen offset:%d sc1" % (XR+4*j, XR+4*j+3, V_L16, R_WS, R_WS+3, 70+(j >> 2), 1024*(j & 3))
    UP = 8
    for j in range(UP): a(xload(j))
    a("s_waitcnt vmcnt(%d)" % UP)
    a("v_readfirstlane_b32 s%d, v29" % S_NONCE)
    stats_finish(a, 10, 17, 16)
    a("v_mul_f32 v17, v16, -v17")
    for j in range(18):
        a("s_waitcnt vmcnt(%d)" % (min(18, UP+j) - 1 - j))
        if UP+j < 18: a(xload(UP+j))
        for x in norm_pk(XR+4*j, 16, 20): a(x)
        a("ds_write_b128 v5, v[%d:%d] offset:%d" % (XR+4*j, XR+4*j+3, 1024*j))
    a("s_waitcnt lgkmcnt(0)"); a("s_barrier")
    a.stamp("p6_x")
    def fread(j, va):
        o = []
        for T in range(4):
            t, r = xf(T, j)
            o.append("ds_read_b128 %s[%d:%d], v%d offset:%d" % (t, r, r+3, va[T >> 1], (T & 1)*18432 + 1024*j))
        return o
    def gelu(ac):
        b = ["v_pk_mul_f32 v[%d:%d], v[%d:%d], v[%d:%d]" % (GT+2*k, GT+2*k+1, ac+2*k, ac+2*k+1, ac+2*k, ac+2*k+1) for k in range(8)]
        b += ["v_pk_fma_f32 v[%d:%d], v[%d:%d], s[48:49], s[48:49] op_sel:[0,0,1] op_sel_hi:[1,0,1]" % (GT+2*k, GT+2*k+1, GT+2*k, GT+2*k+1) for k in range(8)]
        b += ["v_pk_mul_f32 v[%d:%d], v[%d:%d], v[%d:%d]" % (GT+2*k, GT+2*k+1, GT+2*k, GT+2*k+1, ac+2*k, ac+2*k+1) for k in range(8)]
        o = []
        for T in range(4):
            x = ac + 4*T; t = GT + 4*T
            if "nopk" in ABL:
                o += ["v_mul_f32 v%d, v%d, v%d" % (t+i, x+i, x+i) for i in range(4)]
                o += ["v_fma_f32 v%d, v%d, s48, v18" % (t+i, t+i) for i in range(4)]
                o += ["v_mul_f32 v%d, v%d, v%d" % (t+i, t+i, x+i) for i in range(4)]
            o += ["v_exp_f32 v%d, v%d" % (t+i, t+i) for i in range(4)]
            o += ["v_add_f32 v%d, 1.0, v%d" % (t+i, t+i) for i in range(4)]
            o += ["v_rcp_f32 v%d, v%d" % (t+i, t+i) for i in range(4)]
            o += ["v_mul_f32 v%d, v%d, v%d" % (t+i, t+i, x+i) for i in range(4)]
            o += ["v_cvt_pk_bf16_f32 v%d, v%d, v%d" % (PK+2*T+h, t+2*h, t+2*h+1) for h in range(2)]
            o.append("ds_write_b64 v9, v[%d:%d] offset:%d" % (PK+2*T, PK+2*T+1, 18432*T))
        return ([] if "nopk" in ABL else b), o
    def wt(op): return 2 if op.startswith(("v_exp", "v_rcp")) else 1
    RA = ("a", RING); RBB = ("v", RB)
    def subpass(ac, fill, first=None, early=False, loads=None, at=None, ring=RA, depth=18, batch=(), head=()):
        if "p6nogelu" in ABL and len(fill) > 20: fill = []; batch = ()
        if "p6nost" in ABL: fill = [x for x in fill if "buffer_store" not in x]
        fill = list(fill); head = list(head)
        if first:
            for j in range(2):
                for x in fread(j, first): a(x)
        def wait(j):
            w = []
            if j % 2 == 0: w.append("vmcnt(%d)" % (depth - 2))
            if first: w.append("lgkmcnt(%d)" % (4 if j < 17 else 0))
            return "s_waitcnt " + " ".join(w) if w else None
        for j in range(18):
            if wait(j): a(wait(j))
            if at and j in at: at[j]()
            rd = fread(j+2, first) if (first and j < 16) else []
            for T in range(4):
                t, r = xf(T, j)
                a(mfma(ac+4*T, ring[1]+4*j, r, None if j == 0 else ac+4*T, ta=ring[0], tb=t))
                room = 2
                if rd: a(rd[T]); room -= 1
                if j == 0:
                    n = (len(head) + 2 - T)//(3 - T) if T < 3 else 0
                    for x in head[:n]: a(x)
                    del head[:n]
                if T == 3:
                    ld = "" if ("p6nold" in ABL and loads is None) else (loads(j) if loads else wload(j, 58, ring))
                    if ld: a(ld); room -= len(ld.split("\n"))
                    if j < 17 and wait(j+1): room -= 1
                    if j == 0:
                        for x in batch: a(x)
                if j == 0: continue
                left = 4*(17-j) + 3 - T
                while fill and (wt(fill[0]) <= room or sum(wt(x) for x in fill) > 2*left - (left+3)//4*2 + 1):
                    room -= wt(fill[0]); a(fill.pop(0))
        assert not fill
    def nexttile(last=False):
        o = ["s_mov_b32 s62, s61", "s_mov_b32 s61, s63", "s_add_u32 s63, s63, 1"]
        if "rot" in ABL: o += ["s_cmp_eq_u32 s63, 9", "s_cselect_b32 s63, 0, s63"]
        o += ["s_mul_i32 s58, s63, 18432", "s_add_u32 s58, s58, s54"]
        if last: o += ["s_cmp_eq_u32 s59, 3", "s_cselect_b32 s58, s65, s58"]
        return o + ["s_lshl_b32 s46, s62, 11", "v_add_u32 v9, s46, v19"]
    def slice_of(d, c):
        a("s_add_u32 s%d, s%d, s51" % (d, c)); a("s_and_b32 s%d, s%d, 7" % (d, d)); a("s_cmp_eq_u32 s%d, 0" % c); a("s_cselect_b32 s%d, 8, s%d" % (d, d))
    a("s_mov_b32 s63, s52"); a("s_mov_b32 s61, s52")
    for x in nexttile(): a(x)
    slice_of(64, 52); a("s_mul_i32 s65, s64, 18432"); a("s_add_u32 s65, s65, s55")
    subpass(AC, [], first=(V_L16, 6))
    a("s_mov_b32 s59, 0")
    a.label("L_p6_a")
    for half in (1, 0):
        b, o = gelu(AC+16*(1-half))
        subpass(AC+16*half, o, batch=b, head=nexttile(half == 0))
    a("s_add_u32 s59, s59, 1"); a("s_cmp_lt_u32 s59, 4"); a("s_cbranch_scc1 L_p6_a")
    def nextslice(own=None):
        a("s_lshl_b32 s62, s66, 16"); a("s_add_u32 s62, s62, s56"); a("s_mov_b32 s66, s65"); a("s_mov_b32 s65, s64")
        a("s_add_u32 s61, s61, 1"); a("s_and_b32 s61, s61, 7")
        slice_of(64, 61)
        if own is not None: a("s_cmp_eq_u32 s59, %d" % own); a("s_cselect_b32 s64, s51, s64")
        a("s_mul_i32 s58, s64, 18432"); a("s_add_u32 s58, s58, s55")
    a("s_lshl_b32 s46, s61, 11"); a("v_add_u32 v9, s46, v19")
    a("s_mov_b32 s61, s52")
    nextslice()
    g = G(); gelu_pk(g, [AC+2*k for k in range(8)], GT, 48)
    interleave(a, g.lines, [wload(j, 58, RBB) for j in range(14)])
    for T in range(4):
        for h in range(2): a("v_cvt_pk_bf16_f32 v%d, v%d, v%d" % (PK+2*T+h, AC+4*T+2*h, AC+4*T+2*h+1))
        a("ds_write_b64 v9, v[%d:%d] offset:%d" % (PK+2*T, PK+2*T+1, 18432*T))
        a(wload(14+T, 58, RBB))
    a("s_waitcnt lgkmcnt(0)"); a("s_barrier")
    a.stamp("p6_a")
    def pstore(ac):
        o = ["v_cvt_pk_bf16_f32 v%d, v%d, v%d" % (PK+k, ac+2*k, ac+2*k+1) for k in range(8)]
        o += ["buffer_store_dwordx4 v[%d:%d], v%d, s[%d:%d], s62 offen offset:%d sc1" % (PK+4*p, PK+4*p+3, V_L16, R_WS, R_WS+3, 1024*p) for p in range(2)]
        return o
    a("s_lshl_b32 s46, s50, 5"); a("s_add_u32 s46, s46, s%d" % S_WAVE); a("s_lshl_b32 s47, s51, 2"); a("s_add_u32 s47, s47, s46")
    a("s_lshl_b32 s68, s47, 7"); a("s_add_u32 s68, s68, %d" % (FLAG0 + 128*FA))
    a("v_and_b32 v30, 7, v%d" % V_LANE); a("v_lshl_add_u32 v30, v30, 2, s46"); a("v_lshlrev_b32 v30, 7, v30")
    a("v_mov_b32 v29, s%d" % S_NONCE)
    def putflag(off):
        a("s_add_u32 s46, s68, %d" % off); a("s_mov_b64 exec, 1")
        a("buffer_store_dword v29, v28, s[%d:%d], s46 offen sc1" % (R_WS, R_WS+3))
        a("s_mov_b64 exec, -1")
    def getflags(F): a("s_mov_b32 s46, %d" % (FLAG0 + 128*F)); a("buffer_load_dword v31, v30, s[%d:%d], s46 offen sc1" % (R_WS, R_WS+3))
    def waitflags(F, sleep):
        L = a.newlabel("Lwf")
        a("s_mov_b32 s47, 100000")
        a.label(L)
        a("v_cmp_ne_u32 vcc, s%d, v31" % S_NONCE); a("s_cbranch_vccz %s_x" % L)
        a("s_sleep %d" % sleep); getflags(F); a("s_waitcnt vmcnt(0)")
        a("s_sub_u32 s47, s47, 1"); a("s_cbranch_scc0 %s" % L)
        a.label(L + "_x")
    a("s_mov_b32 s59, 0")
    nextslice()
    subpass(AC, [], first=(7, 8), depth=36)
    a.label("L_p6_b")
    def flagA():
        L = a.newlabel("Lfa"); a("s_cmp_eq_u32 s59, 2"); a("s_cbranch_scc0 %s" % L); a("s_waitcnt vmcnt(22)"); putflag(0); a.label(L)
    nextslice()
    subpass(AC+16, pstore(AC), early=True, ring=RBB, depth=36)
    nextslice(own=2)
    subpass(AC, pstore(AC+16), early=True, depth=36, at={8: flagA})
    a("s_add_u32 s59, s59, 1"); a("s_cmp_lt_u32 s59, 3"); a("s_cbranch_scc1 L_p6_b")
    a("s_mul_i32 s60, s50, 73728")
    a("s_lshl_b32 s46, s51, 1"); a("s_lshr_b32 s47, s%d, 1" % S_WAVE); a("s_add_u32 s46, s46, s47"); a("s_lshl_b32 s46, s46, 10"); a("s_add_u32 s63, s46, s60")
    a("s_mul_i32 s46, s50, 9"); a("s_add_u32 s46, s46, s51"); a("s_lshl_b32 s46, s46, 16"); a("s_lshl_b32 s47, s%d, 11" % S_WAVE)
    a("s_add_u32 s46, s46, s47"); a("s_add_u32 s69, s46, %d" % PART)
    def contrib(k, d):
        return "\n".join(["s_add_u32 s47, s52, %d" % k, "s_and_b32 s47, s47, 7", "s_sub_u32 s%d, s51, s47" % d, "s_and_b32 s%d, s%d, 7" % (d, d),
                          "s_lshl_b32 s%d, s%d, 13" % (d, d), "s_add_u32 s%d, s%d, s69" % (d, d), "s_cmp_eq_u32 s47, 0", "s_cselect_b32 s%d, 0x70000000, s%d" % (d, d)]) + "\n"
    def bload(reg, s, off=0, t="a"): return "buffer_load_dwordx4 %s[%d:%d], v%d, s[%d:%d], s%d offen offset:%d sc1" % (t, reg, reg+3, V_L16, R_WS, R_WS+3, s, off)
    def load7(j):
        if j < 8: return "s_add_u32 s58, s63, %d\n" % ((H_OFF, X1_OFF)[j >> 2] + 18432*(j & 3)) + bload(RB+4*j, 58, t="v")
        if j == 10: return "s_mov_b32 s46, %d\nbuffer_load_dword v31, v30, s[%d:%d], s46 offen sc1" % (FLAG0 + 128*FA, R_WS, R_WS+3)
        return ""
    def load8(j):
        if j < 6 or j >= 16: return ""
        k, p = (j-6) >> 1, j & 1
        return (contrib(k, 58) if p == 0 else "") + bload(RB+32+4*(j-6), 58, 1024*p, t="v")
    def exact(n): return lambda: a("s_waitcnt vmcnt(%d)" % n)
    a("s_lshl_b32 s62, s66, 16"); a("s_add_u32 s62, s62, s56"); a("s_mov_b32 s66, s65")
    subpass(AC+16, pstore(AC), early=True, ring=RBB, depth=22, loads=load7)
    a("s_lshl_b32 s62, s66, 16"); a("s_add_u32 s62, s62, s56")
    a("s_waitcnt vmcnt(11)")
    def checkA(): a("s_waitcnt vmcnt(2)"); waitflags(FA, 1)
    subpass(AC, pstore(AC+16), early=True, depth=63, loads=load8, at={6: checkA})
    a.stamp("p6_b")
    a("s_waitcnt vmcnt(10)")
    putflag(128*(FB-FA))
    a("s_lshr_b32 s46, s51, 1"); a("s_sub_u32 s46, s46, 3"); a("s_lshl_b32 s46, s46, 7"); a("s_cmp_eq_u32 s%d, 3" % S_WAVE); a("s_cselect_b32 s46, s46, 0")
    a("v_add_u32 v32, s46, v30"); a("v_cmp_gt_u32 vcc, 8, v%d" % V_LANE); a("v_cndmask_b32 v30, v32, v30, vcc")
    a("v_lshrrev_b32 v10, 2, v%d" % V_R); a("v_cmp_eq_u32 s[64:65], v10, v%d" % V_G)
    a("v_and_b32 v10, 1, v%d" % V_R); a("v_lshlrev_b32 v10, 4, v10"); a("v_mov_b32 v11, 0x3f80"); a("v_lshlrev_b32 v11, v10, v11")
    a("v_cndmask_b32 v11, 0, v11, s[64:65]"); a("v_and_b32 v10, 2, v%d" % V_R); a("v_cmp_eq_u32 vcc, 0, v10")
    a("v_cndmask_b32 v22, 0, v11, vcc"); a("v_cndmask_b32 v23, v11, 0, vcc")
    for r in (20, 21, 24, 25): a("v_mov_b32 v%d, 0" % r)
    def selpar(d, s, bit):
        a("s_bitcmp1_b32 s%d, %d" % (s, bit)); a("s_cselect_b64 vcc, -1, 0")
        for h in range(2):
            a("v_cndmask_b32 v%d, v%d, 0, vcc" % (d+h, 22+h)); a("v_cndmask_b32 v%d, 0, v%d, vcc" % (d+2+h, 22+h))
    selpar(32, S_WAVE, 0); selpar(36, 51, 1)
    a("v_mul_u32_u24 v10, 144, v%d" % V_R); a("v_lshl_add_u32 v10, v%d, 4, v10" % V_G)
    a("s_lshr_b32 s46, s%d, 1" % S_WAVE); a("s_lshl_b32 s46, s46, 6"); a("s_and_b32 s47, s%d, 1" % S_WAVE); a("s_lshl_b32 s47, s47, 3")
    a("s_add_u32 s46, s46, s47"); a("v_add_u32 v10, s46, v10")
    a("v_lshrrev_b32 v11, 3, v0"); a("v_and_b32 v12, 7, v0"); a("v_lshlrev_b32 v12, 4, v12")
    a("v_mul_u32_u24 v13, 144, v11"); a("v_add_u32 v13, v13, v12")
    a("v_mul_u32_u24 v14, 1152, v11"); a("v_add_u32 v14, v14, v12")
    a("v_mul_u32_u24 v15, 1152, v%d" % V_R); a("v_lshl_add_u32 v15, v%d, 4, v15" % V_G)
    a.srd(R_A, S_OUT, ACT)
    for k in range(2):
        for T in range(4): a(mfma(AC+4*T, 32, RB+16*k+4*T, AC+4*T))
    for k in range(5):
        a("s_waitcnt vmcnt(%d)" % (9-2*k))
        for T in range(4): a(mfma(AC+4*T, 20 if T & 1 else 22, RB+32+8*k+4*(T >> 1), AC+4*T))
    if SLEEP0["p7"]: a("s_sleep %d" % SLEEP0["p7"])
    getflags(FB); a("s_waitcnt vmcnt(0)")
    waitflags(FB, 1)
    a.stamp("p7_ready")
    for k in range(3):
        a(contrib(5+k, 58) + bload(8*k, 58)); a(bload(8*k+4, 58, 1024))
    a("s_cmp_lg_u32 s%d, 3" % S_WAVE); a("s_cbranch_scc1 L_p7_main")
    EA = AC + 16
    a("s_mul_i32 s46, s50, 9"); a("s_add_u32 s46, s46, 8"); a("s_lshl_b32 s46, s46, 16"); a("s_lshl_b32 s47, s51, 10")
    a("s_add_u32 s46, s46, s47"); a("s_add_u32 s46, s46, %d" % PART)
    for k in range(8):
        a(bload(32+4*k, 46)); a("s_add_u32 s46, s46, 8192")
    a("s_and_b32 s46, s51, 1"); a("s_mul_i32 s63, s46, 36864"); a("s_add_u32 s63, s63, s60")
    a("s_lshr_b32 s47, s51, 2"); a("s_add_u32 s47, s47, 16"); a("s_lshl_b32 s46, s47, 10"); a("s_add_u32 s46, s46, s63")
    for k, off in enumerate((H_OFF, X1_OFF)):
        for T in range(2):
            a("s_add_u32 s64, s46, %d" % (off + 18432*T)); a(bload(64+8*k+4*T, 64))
    a("s_lshl_b32 s47, s47, 6"); a("s_add_u32 s63, s63, s47"); a("s_and_b32 s46, s51, 2"); a("s_lshl_b32 s46, s46, 2"); a("s_add_u32 s63, s63, s46")
    for k in range(8):
        a("s_waitcnt vmcnt(%d)" % (11-k))
        a(mfma(EA, 22, 32+4*k, None if k == 0 else EA, tb="a")); a(mfma(EA+4, 20, 32+4*k, None if k == 0 else EA+4, tb="a"))
    a("s_waitcnt vmcnt(0)")
    for k in range(2):
        for T in range(2): a(mfma(EA+4*T, 36, 64+8*k+4*T, EA+4*T, tb="a"))
    for T in range(2):
        for h in range(2): a("v_cvt_pk_bf16_f32 v%d, v%d, v%d" % (PK+2*T+h, EA+4*T+2*h, EA+4*T+2*h+1))
        a("buffer_store_dwordx2 v[%d:%d], v15, s[%d:%d], s63 offen" % (PK+2*T, PK+2*T+1, R_A, R_A+3))
        a("s_add_u32 s63, s63, 18432")
    a("s_branch L_p7_acc")
    a.label("L_p7_main")
    a("s_waitcnt vmcnt(0)")
    a.label("L_p7_acc")
    for k in range(3):
        for T in range(4): a(mfma(AC+4*T, 20 if T & 1 else 22, 8*k+4*(T >> 1), AC+4*T, tb="a"))
    a("s_lshl_b32 s46, s51, 7"); a("s_add_u32 s46, s46, s60"); a("s_add_u32 s47, s46, 36864")
    for T in range(4):
        for h in range(2): a("v_cvt_pk_bf16_f32 v%d, v%d, v%d" % (GT+2*T+h, AC+4*T+2*h, AC+4*T+2*h+1))
        a("ds_write_b64 v10, v[%d:%d] offset:%d" % (GT+2*T, GT+2*T+1, 2304*T))
    a("s_waitcnt lgkmcnt(0)"); a("s_barrier")
    for p in range(2): a("ds_read_b128 v[%d:%d], v13 offset:%d" % (GT+8+4*p, GT+11+4*p, 4608*p))
    for p in range(2):
        a("s_waitcnt lgkmcnt(%d)" % (1-p))
        a("buffer_store_dwordx4 v[%d:%d], v14, s[%d:%d], s%d offen" % (GT+8+4*p, GT+11+4*p, R_A, R_A+3, 46+p))
```

```python
import sys, os, struct, math
sys.path.insert(0, "dev")
from asmlib import Asm, build
from hazard import fix_hazards, check_waits

NAME = "sequential_preLN__sliding_block__mixer_s_mlp__prompt"
KN = NAME + "_kernel"

ACT = 2048*576*2
SW  = 576*576*2
BW  = 576*4608*2
FLAG0 = 128
F1, FS, F2, F3, F4, F5, FA, FB = 0, 256, 640, 896, 1152, 1408, 1664, 2688
TS_OFF = 0x80000
Q_OFF  = 0x90000
K_OFF  = Q_OFF + ACT
V_OFF  = K_OFF + ACT
O_OFF  = V_OFF + ACT
H_OFF  = O_OFF + ACT
T_OFF  = H_OFF + ACT
X1_OFF = T_OFF + ACT
SH_OFF = X1_OFF + ACT
SX_OFF = SH_OFF + 98304
WO_S   = SX_OFF + 98304
W1_S   = WO_S + SW
W2_S   = W1_S + SW
W3_S   = W2_S + SW
W4_S   = W3_S + BW
PART   = W4_S + BW
WS_END = PART + 32*9*8*8192
HPSZ   = 147456

WSOFF = 0
ABL = os.environ.get('ABL', '').split(',')
CLK = 's_memtime'
def f32(x): return struct.unpack("<I", struct.pack("<f", x))[0]
def magic(d): return (1 << 32)//d + 1

S_X, S_WQKV, S_WO = 4, 6, 8
S_W1, S_W2, S_W3, S_W4 = 12, 14, 16, 18
S_OUT, S_DBG, S_WS = 20, 22, 24
R_WS, R_A, R_B = 28, 32, 36
S_WAVE, S_XCD, S_SLOT, S_NONCE = 40, 41, 42, 43
S_ONES = 44
V_LANE, V_R, V_G, V_L16 = 1, 2, 3, 4

class G(Asm):
    def __init__(s, stop=99, stamps=False):
        super().__init__()
        s.stop = stop; s.stamps = stamps; s.nstamp = 0
    def srd(a, d, p, size, add=0):
        if add >= 0:
            a("s_add_u32 s%d, s%d, %s" % (d, p, add)); a("s_addc_u32 s%d, s%d, 0" % (d+1, p+1))
        else:
            a("s_sub_u32 s%d, s%d, %d" % (d, p, -add)); a("s_subb_u32 s%d, s%d, 0" % (d+1, p+1))
        a("s_mov_b32 s%d, %d" % (d+2, size)); a("s_mov_b32 s%d, 0x20000" % (d+3))
    def srd_s(a, d, p, size, sreg):
        a("s_add_u32 s%d, s%d, s%d" % (d, p, sreg)); a("s_addc_u32 s%d, s%d, 0" % (d+1, p+1))
        a("s_mov_b32 s%d, %d" % (d+2, size)); a("s_mov_b32 s%d, 0x20000" % (d+3))
    def sdiv(a, q, r, x, d):
        a("s_mul_hi_u32 s%d, s%d, %d" % (q, x, magic(d)))
        if r is not None:
            a("s_mul_i32 s%d, s%d, %d" % (r, q, d)); a("s_sub_u32 s%d, s%d, s%d" % (r, x, r))
    def stamp(a, name):
        if not a.stamps or name not in a.stamps: return
        k = a.stamps.index(name)
        a("%s s[98:99]" % CLK); a("s_waitcnt lgkmcnt(0)"); a("s_mov_b32 s%d, s98" % (80+k))
    def stamp_out(a):
        if not a.stamps: return
        a.stamp("end")
        a("s_lshl_b32 s98, s2, 2"); a("s_add_u32 s98, s98, s%d" % S_WAVE); a("s_lshl_b32 s98, s98, 6"); a("s_add_u32 s98, s98, %d" % TS_OFF)
        a("v_mov_b32 v255, 0")
        for k in range(16):
            a("v_mov_b32 v254, s%d" % (80+k))
            a("buffer_store_dword v254, v255, s[%d:%d], s98 offen offset:%d" % (R_WS, R_WS+3, 4*k))
            a("s_nop 1")
    def xg_reduce(a, v, t, op="v_add_f32"):
        for sw in ("v_permlane32_swap_b32", "v_permlane16_swap_b32"):
            a("v_mov_b32 v%d, v%d" % (t, v)); a("%s v%d, v%d" % (sw, v, t)); a("%s v%d, v%d, v%d" % (op, v, v, t))
    def get_nonce(a, vt):
        L = a.newlabel("Lnon")
        a("s_mov_b32 s46, 200000"); a("v_mov_b32 v%d, 0" % (vt+2))
        a.label(L)
        a("global_load_dwordx2 v[%d:%d], v%d, s[%d:%d] sc1" % (vt, vt+1, vt+2, S_DBG, S_DBG+1))
        a("s_waitcnt vmcnt(0)")
        a("v_readfirstlane_b32 s47, v%d" % (vt+1)); a("v_readfirstlane_b32 s%d, v%d" % (S_NONCE, vt))
        a("s_sub_u32 s46, s46, 1"); a("s_cbranch_scc1 %s_x" % L)
        a("s_cmp_eq_u32 s47, 0"); a("s_cbranch_scc1 %s" % L)
        a.label(L + "_x")
    def set_flag(a, sidx, vt):
        a("s_lshl_b32 s%d, s%d, 7" % (sidx, sidx)); a("s_add_u32 s%d, s%d, %d" % (sidx, sidx, FLAG0))
        a("v_mov_b32 v%d, s%d" % (vt, S_NONCE)); a("v_mov_b32 v%d, 0" % (vt+1))
        a("s_mov_b64 exec, 1")
        a("buffer_store_dword v%d, v%d, s[%d:%d], s%d offen sc1" % (vt, vt+1, R_WS, R_WS+3, sidx))
        a("s_mov_b64 exec, -1")
    def poll(a, vidx, vt, sleep0=6, sleep=2):
        L = a.newlabel("Lpoll")
        a("v_lshlrev_b32 v%d, 7, v%d" % (vidx, vidx))
        a("s_mov_b32 s46, 100000")
        if sleep0: a("s_sleep %d" % sleep0)
        a.label(L)
        a("buffer_load_dword v%d, v%d, s[%d:%d], 0 offen offset:%d sc1" % (vt, vidx, R_WS, R_WS+3, FLAG0))
        a("s_waitcnt vmcnt(0)")
        a("v_cmp_ne_u32 vcc, s%d, v%d" % (S_NONCE, vt))
        a("s_cbranch_vccz %s_x" % L)
        a("s_sleep %d" % sleep)
        a("s_sub_u32 s46, s46, 1"); a("s_cbranch_scc0 %s" % L)
        a.label(L + "_x")

def mfma(d, A, B, C=None, ta="v", tb="v", td="v"):
    c = "0" if C is None else "%s[%d:%d]" % (td, C, C+3)
    return "v_mfma_f32_16x16x32_bf16 %s[%d:%d], %s[%d:%d], %s[%d:%d], %s" % (td, d, d+3, ta, A, A+3, tb, B, B+3, c)

def interleave(a, main, fill, start=0):
    n = len(main) - start; k = 0
    for i, m in enumerate(main):
        a(m)
        if i >= start:
            upto = (len(fill)*(i-start+1) + n - 1)//n
            while k < upto: a(fill[k]); k += 1

def prologue(a):
    a("s_cmp_ge_u32 s2, 256"); a("s_cbranch_scc1 L_end")
    a("s_load_dwordx4 s[4:7], s[0:1], 0")
    a("s_load_dwordx2 s[24:25], s[0:1], 80")
    a("s_load_dwordx2 s[8:9], s[0:1], 16")
    a("s_load_dwordx8 s[12:19], s[0:1], 32")
    a("s_load_dwordx4 s[20:23], s[0:1], 64")
    a("v_and_b32 v%d, 63, v0" % V_LANE)
    a("v_lshrrev_b32 v5, 6, v0")
    a("v_and_b32 v%d, 15, v0" % V_R)
    a("v_readfirstlane_b32 s%d, v5" % S_WAVE)
    a("v_lshrrev_b32 v%d, 4, v%d" % (V_G, V_LANE))
    a("v_lshlrev_b32 v%d, 4, v%d" % (V_L16, V_LANE))
    a("s_and_b32 s%d, s2, 7" % S_XCD); a("s_lshr_b32 s%d, s2, 3" % S_SLOT)
    a("s_mov_b32 s%d, 0x3f803f80" % S_ONES)
    if "nopf" not in ABL:
        a("s_getpc_b64 s[46:47]")
        a.label("L_pc")
        a("s_lshl_b32 s48, s%d, 11" % S_SLOT); a("v_lshl_add_u32 v5, v0, 7, s48")
        a("v_cmp_gt_u32 vcc, 16, v0"); a("s_mov_b32 s48, L_end-L_pc"); a("v_cmp_gt_u32 s[48:49], s48, v5"); a("s_and_b64 vcc, vcc, s[48:49]")
        a("s_and_saveexec_b64 s[48:49], vcc"); a("s_cbranch_execz L_pcd")
        a("global_load_dword v253, v5, s[46:47]")
        a.label("L_pcd")
        a("s_mov_b64 exec, -1")
    if a.stamps:
        for k in range(16): a("s_mov_b32 s%d, 0" % (80+k))
        a.stamp("start")

def publish_nonce(a):
    L = a.newlabel("Lpn")
    a("s_xor_b32 s46, s2, 224"); a("s_or_b32 s46, s46, s%d" % S_WAVE); a("s_cmp_lg_u32 s46, 0"); a("s_cbranch_scc1 %s" % L)
    a("v_mov_b32 v252, 0")
    a("buffer_load_dword v250, v252, s[%d:%d], 0 offen sc1" % (R_WS, R_WS+3))
    a("s_mov_b32 s46, 0x9E3779B1")
    a("s_waitcnt vmcnt(0)")
    a("v_mul_lo_u32 v250, v250, s46"); a("v_add_u32 v250, 0x7F4A7C15, v250"); a("v_mov_b32 v251, 1")
    a("s_mov_b64 exec, 1")
    a("buffer_store_dword v250, v252, s[%d:%d], 0 offen sc1" % (R_WS, R_WS+3))
    a("global_store_dwordx2 v252, v[250:251], s[%d:%d] sc1" % (S_DBG, S_DBG+1))
    a("s_mov_b64 exec, -1")
    a.label(L)

def swizzle_setup(a):
    for i in range(9):
        a("v_add_u32 v40, %d, v%d" % (64*i, V_LANE))
        a("v_mul_u32_u24 v%d, 911, v40" % (10+i)); a("v_lshrrev_b32 v%d, 16, v%d" % (10+i, 10+i))
        a("v_mul_u32_u24 v41, 72, v%d" % (10+i)); a("v_sub_u32 v41, v40, v41"); a("v_lshlrev_b32 v%d, 4, v41" % (20+i))
    a("v_lshrrev_b32 v40, 2, v%d" % V_R); a("v_lshl_add_u32 v40, v%d, 3, v40" % V_G); a("v_mul_u32_u24 v40, 1152, v40")
    a("v_and_b32 v41, 3, v%d" % V_R); a("v_lshl_add_u32 v30, v41, 4, v40")
    a("s_lshr_b32 s46, s%d, 1" % S_WAVE); a("s_lshl_b32 s46, s46, 6"); a("s_and_b32 s47, s%d, 1" % S_WAVE); a("s_lshl_b32 s47, s47, 3")
    a("s_add_u32 s46, s46, s47"); a("v_add_u32 v30, s46, v30")

def swizzle_units(a, s_first, s_step, nb, s_end):
    Ld = a.newlabel("Lswd")
    a("s_mov_b32 s50, s%d" % s_first)
    a("s_mov_b32 s58, 0")
    for i in range(nb):
        Ln = a.newlabel("Lsw")
        a("s_cmp_ge_u32 s50, %s" % s_end); a("s_cbranch_scc1 %s_go" % Ld)
        a("s_cmp_ge_u32 s50, 54"); a("s_cbranch_scc1 %s_big" % Ln)
        a.sdiv(51, 52, 50, 18)
        a("s_cmp_eq_u32 s51, 1"); a("s_cselect_b32 s54, s%d, s%d" % (S_W1, S_W2)); a("s_cselect_b32 s55, s%d, s%d" % (S_W1+1, S_W2+1))
        a("s_cmp_eq_u32 s51, 0"); a("s_cselect_b32 s54, s%d, s54" % S_WO); a("s_cselect_b32 s55, s%d, s55" % (S_WO+1))
        a("s_mul_i32 s%d, s51, %d" % (60+3*i, SW)); a("s_add_u32 s%d, s%d, %d" % (60+3*i, 60+3*i, WO_S))
        a("s_mul_i32 s53, s%d, 18432" % S_WAVE); a("s_add_u32 s%d, s%d, s53" % (60+3*i, 60+3*i))
        a("s_mov_b32 s%d, 73728" % (61+3*i))
        a("s_lshl_b32 s56, s52, 5"); a("s_lshl_b32 s53, s%d, 3" % S_WAVE); a("s_add_u32 s56, s56, s53")
        a("s_mov_b32 s57, 0"); a("s_mov_b32 s59, 1152")
        a("s_cmp_lg_u32 s51, 0"); a("s_cbranch_scc1 %s_j" % Ln)
        a("s_mul_i32 s56, s52, 36"); a("s_lshl_b32 s53, s%d, 2" % S_WAVE); a("s_add_u32 s56, s56, s53"); a("s_mov_b32 s57, 16")
        a("s_cmp_lt_u32 s52, 16"); a("s_cbranch_scc1 %s_j" % Ln)
        a("s_sub_u32 s56, s52, 16"); a("s_lshl_b32 s56, s56, 2"); a("s_add_u32 s56, s56, s%d" % S_WAVE)
        a("s_mul_i32 s56, s56, 72"); a("s_add_u32 s56, s56, 16"); a("s_mov_b32 s57, 32")
        a("s_branch %s_j" % Ln)
        a.label(Ln + "_big")
        a("s_sub_u32 s53, s50, 54"); a.sdiv(51, 52, 53, 18)
        a("s_mul_i32 s%d, s51, %d" % (60+3*i, 4*9*18432)); a("s_add_u32 s%d, s%d, %d" % (60+3*i, 60+3*i, W3_S))
        a("s_mul_i32 s53, s%d, %d" % (S_WAVE, 9*18432)); a("s_add_u32 s%d, s%d, s53" % (60+3*i, 60+3*i))
        a("s_mov_b32 s%d, 18432" % (61+3*i))
        a("s_lshl_b32 s56, s52, 5"); a("s_lshl_b32 s53, s%d, 3" % S_WAVE); a("s_add_u32 s56, s56, s53"); a("s_mov_b32 s57, 0")
        a("s_cmp_ge_u32 s51, 8"); a("s_cbranch_scc1 %s_w4" % Ln)
        a("s_mul_i32 s53, s51, 1152"); a("s_add_u32 s54, s%d, s53" % S_W3); a("s_addc_u32 s55, s%d, 0" % (S_W3+1)); a("s_mov_b32 s59, 9216")
        a("s_branch %s_j" % Ln)
        a.label(Ln + "_w4")
        a("s_sub_u32 s53, s51, 8"); a("s_mul_i32 s53, s53, %d" % SW); a("s_add_u32 s54, s%d, s53" % S_W4); a("s_addc_u32 s55, s%d, 0" % (S_W4+1)); a("s_mov_b32 s59, 1152")
        a.label(Ln + "_j")
        a("s_lshl_b32 s53, s52, 10"); a("s_add_u32 s%d, s%d, s53" % (60+3*i, 60+3*i))
        a("s_add_u32 s%d, s50, %d" % (62+3*i, FS))
        a("s_mov_b32 s%d, s54" % R_A); a("s_mov_b32 s%d, s55" % (R_A+1))
        a("s_mul_i32 s%d, s59, 575" % (R_A+2)); a("s_add_u32 s%d, s%d, 1152" % (R_A+2, R_A+2)); a("s_mov_b32 s%d, 0x20000" % (R_A+3))
        a("s_mul_i32 s53, s%d, 9216" % S_WAVE); a("s_add_u32 m0, s53, %d" % (i*36864))
        for k in range(9):
            a("v_lshrrev_b32 v40, 2, v%d" % (10+k)); a("v_mul_lo_u32 v40, v40, s57"); a("v_add3_u32 v40, v40, v%d, s56" % (10+k))
            a("v_mul_lo_u32 v40, v40, s59"); a("v_add_u32 v40, v40, v%d" % (20+k))
            if not ("nohelp" in ABL and nb == 3): a("buffer_load_dwordx4 v40, s[%d:%d], 0 offen lds" % (R_A, R_A+3))
            a("s_add_u32 m0, m0, 1024")
        a("s_add_u32 s58, s58, 1")
        a("s_add_u32 s50, s50, %s" % s_step)
    a.label(Ld + "_go")
    a("s_waitcnt vmcnt(0)"); a("s_barrier")
    for i in range(nb):
        a("s_cmp_le_u32 s58, %d" % i); a("s_cbranch_scc1 %s" % Ld)
        a("v_add_u32 v31, %d, v30" % (i*36864))
        for p in range(9):
            for hh in range(2):
                a("ds_read_b64_tr_b16 v[%d:%d], v31 offset:%d" % (44+4*p+2*hh, 45+4*p+2*hh, hh*4608 + 128*p))
            if p >= 3: pass
        a("s_mov_b32 s53, s%d" % (60+3*i))
        for p in range(9):
            a("s_waitcnt lgkmcnt(%d)" % min(15, 16-2*p))
            if not ("nohelp" in ABL and nb == 3): a("buffer_store_dwordx4 v[%d:%d], v%d, s[%d:%d], s53 offen sc1" % (44+4*p, 47+4*p, V_L16, R_WS, R_WS+3))
            a("s_add_u32 s53, s53, s%d" % (61+3*i))
    a.label(Ld)
    a("s_waitcnt vmcnt(0)"); a("s_barrier")
    Lf = a.newlabel("Lswf")
    a("s_cmp_lg_u32 s%d, 0" % S_WAVE); a("s_cbranch_scc1 %s" % Lf)
    return Lf

def swizzle_flags(a, nb, Lf):
    for i in range(nb):
        a("s_cmp_le_u32 s58, %d" % i); a("s_cbranch_scc1 %s" % Lf)
        a.set_flag(62+3*i, 40)
    a.label(Lf)

def phase1(a):
    QS = 18**-0.5 * math.log2(math.e)
    a("s_cmp_ge_u32 s%d, 28" % S_SLOT); a("s_cbranch_scc1 L_p1_helper")
    a.sdiv(46, 47, S_SLOT, 7)
    a("s_lshr_b32 s48, s%d, 1" % S_XCD); a("s_lshl_b32 s48, s48, 2"); a("s_add_u32 s50, s48, s46")
    a("s_and_b32 s48, s%d, 1" % S_XCD); a("s_mul_i32 s48, s48, 7"); a("s_add_u32 s51, s48, s47")
    a("s_lshr_b32 s52, s%d, 1" % S_WAVE); a("s_and_b32 s53, s%d, 1" % S_WAVE)
    a("v_lshrrev_b32 v20, 3, v%d" % V_LANE); a("v_and_b32 v21, 7, v%d" % V_LANE)
    a("v_xor_b32 v22, v21, v%d" % V_G); a("v_mul_u32_u24 v20, 1152, v20")
    a("v_lshl_add_u32 v10, v22, 4, v20"); a("v_xor_b32 v22, 4, v22"); a("v_lshl_add_u32 v11, v22, 4, v20")
    a("v_add_u32 v12, %d, v10" % (16*1152 - 2048 + 4096)); a("v_add_u32 v13, %d, v11" % (24*1152 - 3072 + 4096))
    a("v_add_u32 v11, %d, v11" % (8*1152 - 1024 + 4096)); a("v_add_u32 v10, 4096, v10")
    a("v_lshrrev_b32 v20, 1, v%d" % V_R); a("v_xor_b32 v20, v20, v%d" % V_G); a("v_and_b32 v21, 1, v%d" % V_LANE)
    a("v_lshl_add_u32 v21, v20, 1, v21"); a("v_mul_u32_u24 v22, 3456, v%d" % V_G)
    a("v_lshl_add_u32 v14, v21, 4, v22"); a("v_xor_b32 v21, 8, v21"); a("v_lshl_add_u32 v16, v21, 4, v22")
    a("v_add_u32 v15, %d, v14" % (4*3456 - 1024 + 4096)); a("v_add_u32 v17, %d, v16" % (12*3456 - 3072 + 4096))
    a("v_add_u32 v16, %d, v16" % (8*3456 - 2048 + 4096)); a("v_add_u32 v14, 4096, v14")
    a("s_lshl_b32 s54, s50, 2"); a("s_add_u32 s54, s54, s%d" % S_WAVE); a("s_mul_i32 s54, s54, %d" % (32*1152))
    a("s_mul_i32 s55, s%d, %d" % (S_WAVE, 16*3456)); a("s_lshl_b32 s46, s51, 8"); a("s_add_u32 s55, s55, s46")
    a("s_lshl_b32 s56, s%d, 12" % S_WAVE)
    a("s_waitcnt lgkmcnt(0)")
    if WSOFF: a("s_add_u32 s24, s24, %d" % WSOFF); a("s_addc_u32 s25, s25, 0")
    a.srd(R_A, S_X, ACT + 4096, -4096); a.srd(R_B, S_WQKV, 576*3456 + 4096, -4096)
    a.sdiv(46, 47, S_SLOT, 7)
    a("s_and_b32 s48, s%d, 1" % S_XCD); a("s_add_u32 s46, s46, s48"); a("s_lshl_b32 s46, s46, 1"); a("s_add_u32 s46, s46, s47")
    a("s_bfe_u32 s47, s%d, 0x10001" % S_XCD); a("s_add_u32 s46, s46, s47"); a("s_and_b32 s47, s%d, 4" % S_XCD); a("s_lshl_b32 s47, s47, 1"); a("s_add_u32 s46, s46, s47")
    a.sdiv(47, 67, 46, 9)
    def dma(sbuf):
        X = ["buffer_load_dwordx4 v%d, s[%d:%d], s68 offen offset:%d lds" % (10+j, R_A, R_A+3, 1024*j) for j in range(4)]
        W = ["buffer_load_dwordx4 v%d, s[%d:%d], s69 offen offset:%d lds" % (14+j, R_B, R_B+3, 1024*j) for j in range(4)]
        X[0] = "s_mov_b32 m0, s%d\ns_lshl_b32 s68, s67, 7\ns_add_u32 s68, s68, s54\n" % sbuf + X[0]
        X[1] = "s_mul_i32 s69, s67, %d\ns_add_u32 s69, s69, s55\n" % (64*3456) + X[1]
        X[2] = "s_add_u32 s67, s67, 1\ns_cmp_eq_u32 s67, 9\ns_cselect_b32 s67, 0, s67\n" + X[2]
        W[0] = "s_add_u32 m0, s%d, 16384\ns_nop 0\n" % sbuf + W[0]
        return X + W
    for x in dma(56): a(x)
    a("s_add_u32 s56, s56, 32768")
    a.stamp("p1_issue")
    a.srd(R_WS, S_WS, WS_END)
    a("v_lshrrev_b32 v30, 2, v%d" % V_R); a("v_and_b32 v31, 3, v%d" % V_R)
    a("v_lshl_add_u32 v32, v%d, 3, v30" % V_G); a("v_lshlrev_b32 v32, 8, v32"); a("v_lshl_add_u32 v32, v31, 3, v32")
    a("v_add_u32 v32, 16384, v32")
    a("v_and_b32 v33, 1, v%d" % V_G); a("v_lshl_add_u32 v33, v33, 2, v30")
    a("s_lshl_b32 s46, s53, 2"); a("s_lshl_b32 s47, s52, 1"); a("s_or_b32 s57, s46, s47")
    for t in range(4):
        a("s_xor_b32 s46, s57, %d" % t); a("v_xor_b32 v34, s46, v33"); a("v_lshl_add_u32 v%d, v34, 5, v32" % (20+t))
    a("v_lshrrev_b32 v30, 1, v%d" % V_R); a("v_xor_b32 v30, v30, v%d" % V_G); a("v_lshlrev_b32 v31, 7, v%d" % V_R)
    a("s_lshl_b32 s46, s52, 13"); a("s_lshl_b32 s47, s53, 12"); a("s_add_u32 s46, s46, s47"); a("s_xor_b32 s47, s46, 4096")
    a("v_lshl_add_u32 v32, v30, 4, v31"); a("v_xor_b32 v33, 64, v32")
    a("v_add_u32 v24, s46, v32"); a("v_add_u32 v25, s47, v32"); a("v_add_u32 v26, s46, v33"); a("v_add_u32 v27, s47, v33")
    ACC, CS, ST, ONE = 48, 112, 120, 140
    XB = (144, 160); WB = (176, 192)
    WA, XA = 28, 32
    for r in range(ACC, ONE): a("v_mov_b32 v%d, 0" % r)
    for r in range(4): a("v_mov_b32 v%d, s%d" % (ONE+r, S_ONES))
    def addr(sbase):
        return ["v_add_u32 v%d, %s, v%d" % (WA+i, sbase, 20+i) for i in range(8)]
    def reads(jj):
        o = []
        for T in range(4):
            o.append("ds_read_b128 v[%d:%d], v%d offset:%d" % (XB[jj]+4*T, XB[jj]+4*T+3, XA+2*jj+(T>>1), 2048*(T&1)))
            for hh in range(2):
                o.append("ds_read_b64_tr_b16 v[%d:%d], v%d offset:%d" % (WB[jj]+4*T+2*hh, WB[jj]+4*T+2*hh+1, WA+T, jj*8192+hh*1024))
        return o
    def mm(jj, swap):
        o = []
        for t in range(4):
            for T in range(4):
                d = ACC+16*t+4*T
                o.append(mfma(d, XB[jj]+4*T, WB[jj]+4*t, d) if swap else mfma(d, WB[jj]+4*t, XB[jj]+4*T, d))
            if t < 2:
                d = CS+4*t
                o.append(mfma(d, ONE, WB[jj]+4*t, d) if swap else mfma(d, WB[jj]+4*t, ONE, d))
            x = XB[jj]+4*(t>>1); d = ST+4*t
            o.append(mfma(d, x if t & 1 else ONE, x, d))
        return o
    for x in addr("0"): a(x)
    a("s_lshl_b32 s60, s51, 1"); a("s_add_u32 s60, s60, s53")
    a("s_lshl_b32 s46, s50, 1"); a("s_add_u32 s46, s46, s52"); a("s_lshl_b32 s46, s46, 1"); a("s_add_u32 s47, s46, s53")
    a("s_xor_b32 s46, s47, 1"); a("s_mul_i32 s65, s47, 2304"); a("s_mul_i32 s66, s46, 2304"); a("s_mov_b32 s64, %d" % HPSZ)
    a("s_mov_b32 s58, 0"); a("s_mov_b32 s59, 0")
    a("s_cmp_ge_u32 s51, 9"); a("s_cbranch_scc1 L_p1_v0")
    for swap in (0, 1):
        L = "L_p1_v" if swap else "L_p1_qk"
        a.label(L + "0")
        if not swap:
            a("s_mov_b32 s62, %d" % Q_OFF); a("s_cmp_ge_u32 s60, 9"); a("s_cselect_b32 s61, 144, 0"); a("s_cselect_b32 s62, %d, s62" % K_OFF)
            a("s_cselect_b32 s73, 1.0, %d" % f32(QS))
            a("s_lshl_b32 s63, s60, 4"); a("s_sub_u32 s63, s63, s61")
            for t in range(4):
                a("s_lshl_b32 s46, s52, 1"); a("s_xor_b32 s46, s46, %d" % t); a("s_lshl_b32 s46, s46, 2"); a("s_add_u32 s46, s46, s63")
                a("v_add_u32 v212, s46, v%d" % V_G)
                a("v_mul_u32_u24 v213, 7282, v212"); a("v_lshrrev_b32 v213, 16, v213")
                a("v_mul_u32_u24 v214, 9, v213"); a("v_sub_u32 v212, v212, v214")
                a("v_cmp_lt_u32 vcc, 4, v212"); a("v_subb_co_u32 v214, vcc, v212, 0, vcc")
                a("v_cmp_eq_u32 vcc, 4, v212"); a("v_cndmask_b32 v214, v214, 8, vcc")
                a("v_mul_lo_u32 v213, v213, s64"); a("v_lshl_add_u32 v213, v214, 7, v213"); a("v_lshl_add_u32 v%d, v%d, 3, v213" % (208+t, V_R))
        else:
            a("s_mov_b32 s62, %d" % V_OFF); a("s_sub_u32 s63, s60, 18"); a("s_lshl_b32 s63, s63, 6")
            for t in range(4):
                a("s_lshl_b32 s46, s52, 1"); a("s_xor_b32 s46, s46, %d" % t); a("s_lshl_b32 s46, s46, 4"); a("s_add_u32 s46, s46, s63")
                a("v_add_u32 v212, s46, v%d" % V_R)
                a("v_mul_u32_u24 v213, 1821, v212"); a("v_lshrrev_b32 v213, 16, v213")
                a("v_mul_u32_u24 v214, 36, v213"); a("v_sub_u32 v212, v212, v214")
                a("v_lshl_add_u32 v214, v%d, 4, v212" % V_G)
                a("v_add_u32 v215, 44, v214")
                a("v_cmp_lt_u32 vcc, 19, v212"); a("v_cndmask_b32 v214, v214, v215, vcc")
                a("v_lshl_add_u32 v215, v212, 2, v%d" % V_G); a("v_add_u32 v215, 64, v215")
                a("v_lshrrev_b32 v212, 2, v212"); a("v_cmp_eq_u32 vcc, 4, v212"); a("v_cndmask_b32 v214, v214, v215, vcc")
                a("v_mul_lo_u32 v213, v213, s64"); a("v_lshl_add_u32 v%d, v214, 4, v213" % (208+t))
        a("s_add_u32 s65, s65, s62"); a("s_add_u32 s66, s66, s62")
        for x in dma(56): a(x)
        a("s_add_u32 s56, s56, 32768")
        a("s_waitcnt vmcnt(8)"); a("s_barrier")
        a.stamp("p1_first")
        for x in reads(0): a(x)
        a.label(L)
        a("s_cmp_ge_u32 s58, 7"); a("s_cbranch_scc1 %s_n" % L)
        for dm in (1, 0):
            d = dma(56) if (dm and "p1nodma" not in ABL) else []
            m = mm(0, swap)
            a("s_waitcnt lgkmcnt(0)")
            interleave(a, m[:14], reads(1))
            interleave(a, m[14:], d[:4])
            a("s_add_u32 s58, s58, 1")
            a("s_add_u32 s59, s59, 32768"); a("s_cmp_eq_u32 s59, 163840"); a("s_cselect_b32 s59, 0, s59")
            a("s_waitcnt vmcnt(%d) lgkmcnt(0)" % (4 if dm else 0))
            a("s_barrier")
            m = mm(1, swap); ad = addr("s59")
            interleave(a, m[:3], ad[4:6] + ad[0:4])
            interleave(a, m[3:15], reads(0) + ad[6:8])
            interleave(a, m[15:], d[4:])
            if dm:
                a("s_add_u32 s56, s56, 32768"); a("s_cmp_ge_u32 s56, 163840"); a("s_cselect_b32 s46, 163840, 0"); a("s_sub_u32 s56, s56, s46")
                a("s_branch %s" % L)
                a.label(L + "_n")
            else:
                a("s_cmp_lt_u32 s58, 9"); a("s_cbranch_scc1 %s_n" % L)
        a.stamp("p1_loop")
        a("s_waitcnt lgkmcnt(0)")
        a("v_and_b32 v40, 1, v%d" % V_R); a("v_cmp_eq_u32 s[74:75], 1, v40")
        a("v_and_b32 v40, 2, v%d" % V_R); a("v_cmp_eq_u32 s[76:77], 2, v40")
        a("v_lshrrev_b32 v40, 2, v%d" % V_R); a("v_cmp_eq_u32 s[78:79], v40, v%d" % V_G)
        a("s_mov_b32 s46, %d" % f32(1.0/576)); a("s_mov_b32 s47, %d" % f32(1e-5))
        for T in range(2):
            s_, q_ = ST+8*T, ST+8*T+4
            a("v_cndmask_b32 v%d, v%d, v%d, s[74:75]" % (q_, q_, q_+1)); a("v_cndmask_b32 v%d, v%d, v%d, s[74:75]" % (q_+2, q_+2, q_+3))
            a("v_mul_f32 v%d, s46, v%d" % (s_, s_))
            a("v_cndmask_b32 v%d, v%d, v%d, s[76:77]" % (q_, q_, q_+2))
            a("v_mul_f32 v42, v%d, v%d" % (s_, s_))
            a("v_fma_f32 v%d, v%d, s46, -v42" % (q_, q_)); a("v_max_f32 v%d, 0, v%d" % (q_, q_)); a("v_add_f32 v%d, s47, v%d" % (q_, q_))
            a("v_rsq_f32 v%d, v%d" % (36+2*T, q_)); a("v_mul_f32 v%d, v%d, -v%d" % (37+2*T, 36+2*T, s_))
        a("s_lshl_b32 s46, s52, 9"); a("s_lshl_b32 s47, s53, 8"); a("s_add_u32 s46, s46, s47")
        a("v_lshl_add_u32 v40, v%d, 3, s46" % V_R)
        a("s_mov_b64 exec, s[78:79]")
        a("ds_write_b64 v40, v[36:37]"); a("ds_write_b64 v40, v[38:39] offset:128")
        a("s_mov_b64 exec, -1")
        a("s_lshl_b32 s47, s57, 6")
        if not swap:
            a("v_lshl_add_u32 v41, v%d, 4, s47" % V_G)
            a("ds_write_b128 v41, v[%d:%d] offset:1024" % (CS, CS+3)); a("ds_write_b128 v41, v[%d:%d] offset:1088" % (CS+4, CS+7))
        else:
            a("v_lshl_add_u32 v41, v%d, 2, s47" % V_R)
            a("ds_write_b32 v41, v%d offset:1024" % CS); a("ds_write_b32 v41, v%d offset:1088" % (CS+4))
        a("s_waitcnt lgkmcnt(0)"); a("s_barrier")
        Ls = L + "_s"
        a("s_cmp_ge_u32 s60, 27"); a("s_cbranch_scc1 %s" % Ls)
        a("v_xor_b32 v42, 256, v40"); a("v_xor_b32 v43, 128, v41")
        if not swap:
            RS, CC = 144, 160
            a("ds_read_b64 v[%d:%d], v40" % (RS, RS+1)); a("ds_read_b64 v[%d:%d], v40 offset:128" % (RS+2, RS+3))
            a("ds_read_b64 v[%d:%d], v42" % (RS+4, RS+5)); a("ds_read_b64 v[%d:%d], v42 offset:128" % (RS+6, RS+7))
            for t in range(4):
                a("ds_read_b128 v[%d:%d], v%d offset:%d" % (CC+4*t, CC+4*t+3, 41 if t < 2 else 43, 1024+64*(t&1)))
            a("s_waitcnt lgkmcnt(0)")
            for T in range(4): a("v_pk_mul_f32 v[%d:%d], v[%d:%d], s[72:73] op_sel:[0,1] op_sel_hi:[1,1]" % (RS+2*T, RS+2*T+1, RS+2*T, RS+2*T+1))
            for t in range(4):
                for T in range(4):
                    d = ACC+16*t+4*T
                    for h in range(2):
                        a("v_pk_mul_f32 v[216:217], v[%d:%d], v[%d:%d] op_sel:[0,1] op_sel_hi:[1,1]" % (CC+4*t+2*h, CC+4*t+2*h+1, RS+2*T, RS+2*T+1))
                        a("v_pk_fma_f32 v[%d:%d], v[%d:%d], v[%d:%d], v[216:217] op_sel_hi:[1,0,1]" % (d+2*h, d+2*h+1, d+2*h, d+2*h+1, RS+2*T, RS+2*T+1))
                    a("v_cvt_pk_bf16_f32 v%d, v%d, v%d" % (d, d, d+1)); a("v_cvt_pk_bf16_f32 v%d, v%d, v%d" % (d+1, d+2, d+3))
                    a("buffer_store_dwordx2 v[%d:%d], v%d, s[%d:%d], s%d offen offset:%d sc1" % (d, d+1, 208+t, R_WS, R_WS+3, 65+(T>>1), 1152*(T&1)))
        else:
            RS, CC = 144, 176
            a("v_lshl_add_u32 v40, v%d, 5, s46" % V_G); a("v_xor_b32 v42, 256, v40")
            for T in range(4):
                for h in range(2):
                    a("ds_read_b128 v[%d:%d], v%d offset:%d" % (RS+8*T+4*h, RS+8*T+4*h+3, 40 if T < 2 else 42, 128*(T&1)+16*h))
            for t in range(4):
                a("ds_read_b32 v%d, v%d offset:%d" % (CC+t, 41 if t < 2 else 43, 1024+64*(t&1)))
            a("s_waitcnt lgkmcnt(0)")
            for t in range(4):
                for T in range(4):
                    d = ACC+16*t+4*T
                    for i in range(4):
                        a("v_mul_f32 v%d, v%d, v%d" % (216+i, RS+8*T+2*i+1, CC+t))
                    for i in range(4):
                        a("v_fma_f32 v%d, v%d, v%d, v%d" % (d+i, d+i, RS+8*T+2*i, 216+i))
                    e = ACC+16*t+8*(T>>1)+2*(T&1)
                    a("v_cvt_pk_bf16_f32 v%d, v%d, v%d" % (e, d, d+1)); a("v_cvt_pk_bf16_f32 v%d, v%d, v%d" % (e+1, d+2, d+3))
                    if T & 1:
                        a("buffer_store_dwordx4 v[%d:%d], v%d, s[%d:%d], s%d offen sc1" % (e-2, e+1, 208+t, R_WS, R_WS+3, 65+(T>>1)))
        a.label(Ls)
        if not swap: a("s_branch L_p1_pub")
    a.label("L_p1_pub")
    a.stamp("p1_stores")
    L = a.newlabel("Lp1f")
    a("s_cmp_lg_u32 s%d, 0" % S_WAVE); a("s_cbranch_scc1 %s_a" % L)
    a.get_nonce(36)
    a.label(L + "_a")
    a("s_waitcnt vmcnt(0)"); a("s_barrier")
    a("s_cmp_lg_u32 s%d, 0" % S_WAVE); a("s_cbranch_scc1 L_p1_done")
    a("s_lshl_b32 s46, s50, 4"); a("s_add_u32 s46, s46, s51"); a("s_add_u32 s46, s46, %d" % F1)
    a.set_flag(46, 36)
    a("s_branch L_p1_done")
    a.label("L_p1_helper")
    swizzle_setup(a)
    a("s_lshl_b32 s48, s%d, 2" % S_XCD); a("s_add_u32 s48, s48, s%d" % S_SLOT); a("s_sub_u32 s48, s48, 28")
    a("s_waitcnt lgkmcnt(0)")
    if WSOFF: a("s_add_u32 s24, s24, %d" % WSOFF); a("s_addc_u32 s25, s25, 0")
    a.srd(R_WS, S_WS, WS_END)
    publish_nonce(a)
    Lf = swizzle_units(a, 48, "32", 2, "54")
    a.get_nonce(36)
    swizzle_flags(a, 2, Lf)
    a.label("L_p1_done")
    a.stamp("p1_done")

def generate(stop=99, stamps=False):
    a = G(stop, stamps)
    prologue(a)
    phase1(a)
    from phases import phase2, phase345, phase6
    if stop >= 2: phase2(a)
    if stop >= 3: phase345(a)
    if stop >= 6: phase6(a)
    a.label("L_fin")
    a.stamp_out()
    a.label("L_end")
    a("s_endpgm")
    body, nops = fix_hazards(a.lines)
    return body, nops

HEADER = """; Fused transformer block (LN, QKV, sliding-window attention, Wo, shift-MLP, channel MLP) as one persistent kernel.
; 256 workgroups of 4 waves, one per CU; phases hand data over through d_ws with write-through stores and flags.
; @launch grid=(256,1,1) block=(256,1,1) lds=163840
.amdgcn_target "amdgcn-amd-amdhsa--gfx950"
.text
.globl %s
.p2align 8
.type %s,@function
%s:
""" % (KN, KN, KN)
FOOTER = """.section .rodata,"a"
.p2align 6
.amdhsa_kernel %s
  .amdhsa_next_free_vgpr 512
  .amdhsa_next_free_sgpr 102
  .amdhsa_accum_offset 256
  .amdhsa_group_segment_fixed_size 0
  .amdhsa_kernarg_size 88
  .amdhsa_user_sgpr_count 2
  .amdhsa_user_sgpr_kernarg_segment_ptr 1
  .amdhsa_system_sgpr_workgroup_id_x 1
.end_amdhsa_kernel
""" % KN

def main():
    import argparse
    p = argparse.ArgumentParser()
    p.add_argument("--stop", type=int, default=99); p.add_argument("--stamps", default=""); p.add_argument("--wsoff", type=int, default=0); p.add_argument("--rt", action="store_true")
    p.add_argument("-o", default="k.s")
    o = p.parse_args()
    global WSOFF, CLK
    if o.rt: CLK = 's_memrealtime'
    WSOFF = o.wsoff << 20
    st = STAMPSETS.get(o.stamps, o.stamps.split(',')) if o.stamps else None
    if st:
        st = ['start'] + list(st) + ['end']; assert len(st) <= 16
        open(o.o[:-2] + '.stamps', 'w').write(','.join(st))
    body, nops = generate(o.stop, st)
    text = HEADER + "\n".join(("" if l.endswith(":") else "  ") + l for l in body) + "\n" + FOOTER
    open(o.o, "w").write(text)
    build(o.o, o.o[:-2] + ".co", KN)
    n = sum(1 for l in body if l and not l.endswith(":"))
    print("instructions", n, "nop states added", nops)
    for nm, takes in TRACES.items():
        errs = check_waits(body, takes)
        for e in errs[:10]: print("WAIT[%s]" % nm, e)

STAMPSETS = {
 "all": "p1_first p1_loop p1_done p2_ready p2_loaded p2_done p3_ready p4_ready p5_ready p5_done p6_ready p6_x p6_a p6_b".split(),
 "p1": "p1_issue p1_first p1_loop p1_stores p1_done p2_ready p2_loaded p2_done p3_ready p4_ready p5_ready p5_done p6_ready p6_x".split(),
 "p3k": "p2_done p3_ready p3_k0 p3_k9 p3_gemm p4_ready p4_k0 p4_k9 p4_gemm p5_ready p5_k0 p5_k9 p5_gemm".split(),
 "hop": "p1_stores p2_ready p2_loaded p2_done p3_ready p3_epi p4_ready p4_epi p5_ready p5_epi p6_ready p6_x p6_b p7_ready".split(),
 "p6": "p5_epi p6_ready p6_x p6_a p6_b p7_ready".split(),
 "p3": "p2_done p3_dma p3_drain p3_ready p3_gemm p3_epi p4_dma p4_drain p4_ready p4_gemm p4_epi p5_drain p5_ready p5_gemm".split(),
}
TRACES = {"w012": {"L_p7_main": True, "L_p1_qk_n": [False,True,False]}, "h3": {"L_p3_helper": True, "L_p1_qk_n": [False,True,False]}, "edge": {"L_p2_edge": True, "L_p1_qk_n": [False,True,False]}, "qk": {"L_p1_qk_n": [False,False,True,True,False]}, "v": {"L_p1_v0": True, "L_p1_v_n": [False,False,True,True,False]}, "helper": {"L_p1_helper": True}}

if __name__ == "__main__":
    sys.modules["gen"] = sys.modules["__main__"]
    main()
```

```python
from gen import *

NEG = 0xF149F2CA
SLEEP0 = dict(p2=6, p3=6, p4=6, p5=6, p6=0, p7=6)
for _kv in os.environ.get('SLEEP', '').split(','):
    if _kv: SLEEP0[_kv.split('=')[0]] = int(_kv.split('=')[1])

W_LDS = 53248
AW1, AW2 = 40, 148
XT = 240
PA, PS, R_C = 216, (3, 27, 45), R_B

def pf_lds(i):
    gq, k = divmod(i, 9)
    pre = ("s_mul_i32 s58, s79, %d\ns_add_u32 s58, s58, s73\ns_add_u32 m0, s58, %d\ns_nop 0\n" % (gq, 1024*k)) if k == 0 or i == 2 else "s_add_u32 m0, m0, 1024\ns_nop 0\n"
    return pre + "buffer_load_dwordx4 v%d, s[%d:%d], s%d offen sc1 lds" % (PA+k, R_C, R_C+3, PS[gq])

def roles345(a):
    a("s_lshr_b32 s46, s%d, 3" % S_SLOT); a("s_lshl_b32 s74, s%d, 2" % S_XCD); a("s_add_u32 s74, s74, s46"); a("s_and_b32 s75, s%d, 7" % S_SLOT)
    a("s_lshl_b32 s76, s74, 2"); a("s_add_u32 s76, s76, s%d" % S_WAVE)

def phase2(a):
    KL_, VL_ = 0, 27648
    a("s_lshr_b32 s50, s%d, 1" % S_SLOT); a("s_and_b32 s51, s%d, 1" % S_SLOT); a("s_lshl_b32 s46, s%d, 1" % S_XCD); a("s_add_u32 s51, s51, s46")
    a("s_mul_i32 s52, s51, %d" % HPSZ)
    a("s_add_u32 s46, s52, %d" % K_OFF); a.srd_s(R_A, S_WS, HPSZ, 46)
    a("s_add_u32 s46, s52, %d" % V_OFF); a.srd_s(R_B, S_WS, HPSZ, 46)
    a("s_mul_i32 s46, s50, 9216"); a("s_sub_u32 s46, s46, 18432"); a("s_lshl_b32 s47, s%d, 10" % S_WAVE); a("s_add_u32 s46, s46, s47")
    a("v_add_u32 v10, s46, v%d" % V_L16)
    for i in range(1, 7): a("v_add_u32 v%d, %d, v10" % (10+i, 4096*i))
    a("s_lshl_b32 s46, s50, 3"); a("s_lshl_b32 s53, s%d, 1" % S_WAVE); a("s_add_u32 s53, s53, s46")
    a("s_mul_i32 s54, s53, 1152"); a("s_add_u32 s54, s54, s52"); a("s_add_u32 s54, s54, %d" % Q_OFF)
    a("v_lshlrev_b32 v17, 3, v%d" % V_LANE); a("v_lshlrev_b32 v18, 3, v%d" % V_R)
    a("s_mul_i32 s46, s%d, 2304" % S_WAVE)
    a("v_add_u32 v20, s46, v17")
    a("s_add_u32 s47, s46, 1024"); a("v_add_u32 v21, s47, v18")
    a("s_add_u32 s47, s46, %d" % VL_); a("v_add_u32 v22, s47, v%d" % V_L16)
    a("v_lshl_add_u32 v23, v%d, 2, v%d" % (V_R, V_G)); a("s_add_u32 s47, s47, 2048"); a("v_lshl_add_u32 v23, v23, 4, s47")
    for i in range(4):
        a("v_lshl_add_u32 v24, v%d, 2, %d" % (V_G, i)); a("v_cmp_gt_u32 s[%d:%d], v24, v%d" % (60+2*i, 61+2*i, V_R))
    a("v_cmp_eq_u32 s[68:69], 0, v%d" % V_G)
    a("v_mov_b32 v25, 0x%x" % NEG)
    VLA = 0
    for r in range(36): a("v_accvgpr_write_b32 a%d, s%d" % (VLA+r, S_ONES))
    roles345(a)
    a("s_mul_i32 s46, s75, 110592"); a("s_mul_i32 s47, s%d, 27648" % S_WAVE); a("s_add_u32 s70, s46, s47"); a("s_add_u32 s70, s70, %d" % WO_S)
    a("s_add_u32 s71, s70, %d" % SW); a("s_add_u32 s72, s71, %d" % SW)
    a("s_cmp_ge_u32 s75, 6"); a("s_cbranch_scc1 L_p2_hs")
    a("s_add_u32 s73, s47, %d" % W_LDS); a("s_mov_b32 s79, 9216")
    for gq in range(3): a("s_add_u32 s%d, s70, %d" % (PS[gq], 9216*gq))
    for i in range(9): a("v_add_u32 v%d, %d, v%d" % (PA+i, 1024*i, V_L16))
    a("s_mov_b32 s10, s%d" % S_WS); a("s_mov_b32 s11, s%d" % (S_WS+1)); a("s_mov_b32 s26, %d" % WS_END)
    a("s_branch L_p2_hd")
    a.label("L_p2_hs")
    a("s_mov_b32 s71, 0x70000000")
    a("s_mul_i32 s47, s%d, 9216" % S_WAVE); a("s_add_u32 s73, s47, %d" % W_LDS); a("s_mov_b32 s79, 36864")
    a("s_lshl_b32 s48, s74, 1"); a("s_add_u32 s48, s48, s75"); a("s_sub_u32 s48, s48, 6"); a("s_mul_i32 s48, s48, 3"); a("s_add_u32 s48, s48, 96")
    a("s_cmp_lt_u32 s48, 144"); a("s_cselect_b32 s10, s%d, s%d" % (S_W3, S_W4)); a("s_cselect_b32 s11, s%d, s%d" % (S_W3+1, S_W4+1))
    a("s_cselect_b32 s49, 1152, 0"); a("s_cselect_b32 s59, 0, 144"); a("s_mov_b32 s46, 1152"); a("s_cselect_b32 s78, 9216, s46")
    a("s_mov_b32 s26, %d" % BW)
    for gq in range(3):
        a("s_add_u32 s46, s48, %d" % gq); a("s_sub_u32 s46, s46, s59")
        a.sdiv(47, 56, 46, 18)
        a("s_cmp_eq_u32 s59, 0"); a("s_cselect_b32 s56, s56, s46")
        a("s_lshl_b32 s56, s56, 2"); a("s_add_u32 s56, s56, s%d" % S_WAVE); a("s_lshl_b32 s56, s56, 3"); a("s_mul_i32 s56, s56, s78")
        a("s_mul_i32 s47, s47, s49"); a("s_add_u32 s%d, s56, s47" % (PS[gq]))
    for i in range(9):
        a("v_add_u32 v24, %d, v%d" % (64*i, V_LANE)); a("v_mul_u32_u24 v26, 911, v24"); a("v_lshrrev_b32 v26, 16, v26")
        a("v_mul_u32_u24 v27, 72, v26"); a("v_sub_u32 v27, v24, v27"); a("v_mul_lo_u32 v26, v26, s78"); a("v_lshl_add_u32 v%d, v27, 4, v26" % (PA+i))
    a.label("L_p2_hd")
    a("v_mul_u32_u24 v7, 1152, v%d" % V_R); a("v_lshl_add_u32 v7, v%d, 4, v7" % V_G)
    a("s_mul_i32 s46, s76, 18432"); a("s_mul_i32 s47, s75, 192"); a("s_add_u32 s77, s46, s47")
    a("s_cmp_ge_u32 s75, 6"); a("s_cselect_b32 s77, 0x70000000, s77")
    L = a.newlabel("Lp2w")
    a("s_cmp_lg_u32 s%d, 0" % S_WAVE); a("s_cbranch_scc1 %s" % L)
    a("v_lshrrev_b32 v30, 2, v%d" % V_LANE); a("v_min_u32 v30, 2, v30"); a("v_add_u32 v30, s50, v30"); a("v_subrev_u32 v30, 2, v30"); a("v_max_i32 v30, 0, v30")
    a("v_bfe_u32 v31, v%d, 1, 1" % V_LANE); a("v_add_u32 v31, 1, v31"); a("v_cmp_gt_u32 vcc, 12, v%d" % V_LANE); a("v_cndmask_b32 v31, 0, v31, vcc")
    a("v_mul_u32_u24 v31, 576, v31"); a("v_and_b32 v32, 1, v%d" % V_LANE); a("v_mul_u32_u24 v32, 35, v32")
    a("s_mul_i32 s46, s51, 36"); a("v_add3_u32 v31, v31, v32, s46"); a("v_lshrrev_b32 v31, 7, v31")
    a("v_lshl_add_u32 v30, v30, 4, v31"); a("v_add_u32 v30, %d, v30" % F1)
    a("v_min_u32 v33, 53, v%d" % V_LANE); a("v_add_u32 v33, %d, v33" % FS)
    a.poll(33, 31, sleep0=0)
    a.poll(30, 31, sleep0=SLEEP0["p2"])
    a.label(L)
    a("s_barrier")
    a.stamp("p2_ready")
    QR = 26
    for qt in range(2):
        a("buffer_load_dwordx2 v[%d:%d], v17, s[%d:%d], s54 offen offset:%d sc1" % (QR+6*qt, QR+6*qt+1, R_WS, R_WS+3, 1152*qt))
        a("buffer_load_dwordx2 v[%d:%d], v18, s[%d:%d], s54 offen offset:%d sc1" % (QR+6*qt+2, QR+6*qt+3, R_WS, R_WS+3, 1152*qt+1024))
        a("buffer_load_dwordx2 v[%d:%d], v17, s[%d:%d], s54 offen offset:%d sc1" % (QR+6*qt+4, QR+6*qt+5, R_WS, R_WS+3, 1152*qt+512))
    a("s_lshl_b32 s46, s%d, 10" % S_WAVE)
    for R, base in ((R_A, KL_), (R_B, VL_)):
        for i in range(7):
            Ls = a.newlabel("Lp2d")
            if i == 6: a("s_cmp_eq_u32 s%d, 3" % S_WAVE); a("s_cbranch_scc1 %s" % Ls)
            a("s_add_u32 m0, s46, %d" % (base + 4096*i))
            a("buffer_load_dwordx4 v%d, s[%d:%d], 0 offen sc1 lds" % (10+i, R, R+3))
            if i == 6: a.label(Ls)
    a.srd(R_A, S_X, ACT)
    a("s_mov_b32 s%d, s10" % R_C); a("s_mov_b32 s%d, s11" % (R_C+1)); a("s_mov_b32 s%d, s26" % (R_C+2)); a("s_mov_b32 s%d, 0x20000" % (R_C+3))
    QF = 40
    a("s_waitcnt vmcnt(12)")
    for qt in range(2):
        q = QR+6*qt
        a("v_mov_b32 v%d, v%d" % (QF+4*qt, q)); a("v_mov_b32 v%d, v%d" % (QF+4*qt+1, q+1))
        a("v_cndmask_b32 v%d, 0, v%d, s[68:69]" % (QF+4*qt+2, q+2)); a("v_mov_b32 v%d, 0" % (QF+4*qt+3))
        a("v_mov_b32 v%d, v%d" % (QF+8+4*qt, q+4)); a("v_mov_b32 v%d, v%d" % (QF+8+4*qt+1, q+5))
        a("v_mov_b32 v%d, 0" % (QF+8+4*qt+2)); a("v_cndmask_b32 v%d, 0, v%d, s[68:69]" % (QF+8+4*qt+3, q+3))
    a("s_lshl_b32 s55, s50, 3"); a("s_lshl_b32 s46, s%d, 1" % S_WAVE); a("s_add_u32 s55, s55, s46"); a("s_sub_u32 s55, 16, s55")
    a("s_waitcnt vmcnt(6)"); a("s_barrier")
    a.stamp("p2_loaded")
    a("s_cmp_lt_u32 s50, 2"); a("s_cbranch_scc1 L_p2_edge")
    M, NM, CZ = 8, 56, 26
    KF = 64
    S2, P, VM = 136, 168, 184
    S1 = S2
    OM, OL, R_, OUT = 192, 200, 32, 208
    def prefetch():
        o = []
        for i in range(2, 27): o.append(pf_lds(i))
        for jj in range(3): o.append("buffer_load_dwordx4 v[%d:%d], v7, s[%d:%d], s77 offen offset:%d" % (XT+4*jj, XT+4*jj+3, R_A, R_A+3, 64*jj))
        for sb, ab in ((71, AW1),):
            for i in range(27):
                pre = "s_add_u32 s59, s%d, %d\n" % (sb, 1024*i) if i % 4 == 0 else ""
                o.append(pre + "buffer_load_dwordx4 a[%d:%d], v%d, s[%d:%d], s59 offen offset:%d sc1" % (ab+4*i, ab+4*i+3, V_L16, R_WS, R_WS+3, 1024*(i & 3)))
        return o
    for edge in (0, 1):
      if edge: a.label("L_p2_edge")
      pf = prefetch()
      def take(n):
          o = pf[:n]; del pf[:n]; return o
      for head in range(2):
        Q = QF + 8*head
        def kread(t):
            return ["ds_read_b64 v[%d:%d], v20 offset:%d" % (KF+4*t, KF+4*t+1, 1152*t + 512*head), "ds_read_b64 v[%d:%d], v21 offset:%d" % (KF+4*t+2, KF+4*t+3, 1152*t)]
        def vleft(m): return "ds_read_b128 a[%d:%d], v23 offset:%d" % (VLA+4*m, VLA+4*m+3, 2304*m + 128*head)
        def vmain(m): return "ds_read_b128 v[%d:%d], v22 offset:%d" % (VM+4*(m & 1), VM+4*(m & 1)+3, 2304*m + 1024*head)
        def has(qt, t): return (t <= 16) if qt == 0 else (t >= 1)
        def mask(reg, qt, t):
            o = []
            for i in range(4):
                if t == qt: o.append("v_cndmask_b32 v%d, v25, v%d, s[%d:%d]" % (reg+i, reg+i, 60+2*i, 61+2*i))
                if t == 16+qt: o.append("v_cndmask_b32 v%d, v%d, v25, s[%d:%d]" % (reg+i, reg+i, 60+2*i, 61+2*i))
            return o
        def switch(t, moves):
            Ls = a.newlabel("Lsw")
            a("s_cmp_eq_u32 s55, %d" % t); a("s_cbranch_scc0 %s" % Ls)
            for x in moves: a(x)
            a.label(Ls)
        AHEAD = 4
        if head: a("s_waitcnt vmcnt(20)")
        for t in range(AHEAD):
            for x in kread(t): a(x)
        a("v_mov_b32 v%d, v25" % M); a("v_mov_b32 v%d, v25" % (M+1))
        if edge:
            for i in range(4): a("v_mov_b32 v%d, v25" % (CZ+i))
        def maxes(t):
            o = []
            for qt in range(2):
                if not has(qt, t): continue
                s = S1 + 8*(t % 3) + 4*qt
                o += mask(s, qt, t)
                o.append("v_max3_f32 v%d, v%d, v%d, v%d" % (M+qt, s, s+1, M+qt))
            for qt in range(2):
                if not has(qt, t): continue
                s = S1 + 8*(t % 3) + 4*qt
                o.append("v_max3_f32 v%d, v%d, v%d, v%d" % (M+qt, s+2, s+3, M+qt))
            return o
        for t in range(18):
            if edge and t % 2 == 0: switch(t, ["v_mov_b32 v%d, 0" % (CZ+i) for i in range(4)])
            n = 2*min(AHEAD-1, 17-t)
            a("s_waitcnt lgkmcnt(%d)" % n)
            ms = [mfma(S1+8*(t % 3)+4*qt, KF+4*t, Q+4*qt, CZ if edge else None) for qt in range(2) if has(qt, t)]
            fill = (kread(t+AHEAD) if t+AHEAD < 18 else []) + (maxes(t-2) if t >= 2 else []) + (take(1) if t % 3 == 1 else [])
            interleave(a, ms, fill)
        if head == 0: a("s_waitcnt vmcnt(%d)" % (55 - len(pf))); a("s_barrier")
        a("s_mov_b32 exec_lo, 0x00030003"); a("s_mov_b32 exec_hi, 0x00030003")
        for m in range(9): a(vleft(m))
        a("s_mov_b64 exec, -1")
        a(vmain(0))
        for x in maxes(16) + maxes(17): a(x)
        for sw in ("v_permlane32_swap_b32", "v_permlane16_swap_b32"):
            for qt in range(2): a("v_mov_b32 v%d, v%d" % (30+qt, M+qt))
            for qt in range(2): a("%s v%d, v%d" % (sw, M+qt, 30+qt))
            for qt in range(2): a("v_max_f32 v%d, v%d, v%d" % (M+qt, M+qt, 30+qt))
        negs = ["v_sub_f32 v%d, 0, v%d" % (NM+4*qt+i, M+qt) for qt in range(2) for i in range(4)]
        if edge:
            for i in range(8): a("v_mov_b32 v%d, v25" % (NM+i))
        else:
            for x in negs: a(x)
        def qk(m):
            return [mfma(S2+16*(m & 1)+8*qt+4*b, KF+4*(2*m+b), Q+4*qt, NM+4*qt) for qt in range(2) for b in range(2) if has(qt, 2*m+b)]
        def pv(m):
            o = []
            for qt in range(2):
                p = P+8*(m & 1)+4*qt
                o.append(mfma(OM+4*qt, VM+4*(m & 1), p, None if m == 0 else OM+4*qt))
                o.append(mfma(OL+4*qt, VLA+4*m, p, None if m == 0 else OL+4*qt, ta="a"))
            return o
        for x in qk(0): a(x)
        for m in range(9):
            if edge and m < 8: switch(2*m+2, negs)
            mf = (qk(m+1) if m < 8 else []) + (pv(m-1) if m else [])
            va = []
            ld = take(3 if m % 2 == 0 else 2)
            for qt in range(2):
                p = P+8*(m & 1)+4*qt
                for b in range(2):
                    s = S2+16*(m & 1)+8*qt+4*b
                    if has(qt, 2*m+b):
                        va += mask(s, qt, 2*m+b)
                        va += ["v_exp_f32 v%d, v%d" % (s+i, s+i) for i in range(4)]
                    if ld and (b == 0 or qt == 0): va.append(ld.pop(0))
                for b in range(2):
                    s = S2+16*(m & 1)+8*qt+4*b
                    if has(qt, 2*m+b):
                        va += ["v_cvt_pk_bf16_f32 v%d, v%d, v%d" % (p+2*b+h, s+2*h, s+2*h+1) for h in range(2)]
                    else:
                        va += ["v_mov_b32 v%d, 0" % (p+2*b+h) for h in range(2)]
            if m: a("s_waitcnt lgkmcnt(1)")
            interleave(a, mf, va)
            if m < 8: a(vmain(m+1))
        a("s_waitcnt lgkmcnt(0)")
        for x in pv(8): a(x)
        if head == 1:
            assert not pf
            a("s_mul_i32 s54, s53, 18432"); a("s_add_u32 s54, s54, %d" % O_OFF)
            a("s_lshl_b32 s46, s51, 10"); a("s_add_u32 s58, s46, s54"); a("s_add_u32 s59, s58, 18432")
            a("s_lshr_b32 s46, s51, 3"); a("s_add_u32 s46, s46, 16"); a("s_lshl_b32 s46, s46, 10"); a("s_add_u32 s54, s54, s46")
            a("s_and_b32 s46, s51, 7"); a("s_lshr_b32 s46, s46, 1"); a("s_lshl_b32 s46, s46, 8"); a("s_add_u32 s54, s54, s46")
            a("s_and_b32 s46, s51, 1"); a("s_lshl_b32 s46, s46, 3"); a("s_add_u32 s54, s54, s46"); a("s_add_u32 s47, s54, 18432")
        for qt in range(2): a("v_rcp_f32 v%d, v%d" % (30+qt, OL+4*qt+3))
        for qt in range(2):
            for i in range(4): a("v_mul_f32 v%d, v%d, v%d" % (OM+4*qt+i, OM+4*qt+i, 30+qt))
            for i in range(2): a("v_mul_f32 v%d, v%d, v%d" % (OL+4*qt+i, OL+4*qt+i, 30+qt))
        for qt in range(2):
            for h in range(2): a("v_cvt_pk_bf16_f32 v%d, v%d, v%d" % (OUT+4*qt+2*head+h, OM+4*qt+2*h, OM+4*qt+2*h+1))
            a("v_cvt_pk_bf16_f32 v%d, v%d, v%d" % (R_+2*qt+head, OL+4*qt, OL+4*qt+1))
      if not edge: a("s_branch L_p2_out")
    a.label("L_p2_out")
    a("buffer_store_dwordx4 v[%d:%d], v%d, s[%d:%d], s58 offen sc1" % (OUT, OUT+3, V_L16, R_WS, R_WS+3))
    a("buffer_store_dwordx4 v[%d:%d], v%d, s[%d:%d], s59 offen sc1" % (OUT+4, OUT+7, V_L16, R_WS, R_WS+3))
    a("s_mov_b64 exec, 0xffff")
    a("buffer_store_dwordx2 v[%d:%d], v%d, s[%d:%d], s54 offen sc1" % (R_, R_+1, V_L16, R_WS, R_WS+3))
    a("buffer_store_dwordx2 v[%d:%d], v%d, s[%d:%d], s47 offen sc1" % (R_+2, R_+3, V_L16, R_WS, R_WS+3))
    a("s_mov_b64 exec, -1")
    a.stamp("p2_done")
    a("s_lshl_b32 s57, s50, 4"); a("s_add_u32 s57, s57, s51"); a("s_add_u32 s57, s57, %d" % F2)
    if a.stop == 2:
        a("s_waitcnt vmcnt(0)")

C0 = -2.0*math.log2(math.e)*math.sqrt(2/math.pi)
C1 = C0*0.044715

def gelu_pk(a, regs, t, sc):
    for k, r in enumerate(regs): a("v_pk_mul_f32 v[%d:%d], v[%d:%d], v[%d:%d]" % (t+2*k, t+2*k+1, r, r+1, r, r+1))
    for k, r in enumerate(regs): a("v_pk_fma_f32 v[%d:%d], v[%d:%d], s[%d:%d], s[%d:%d] op_sel:[0,0,1] op_sel_hi:[1,0,1]" % (t+2*k, t+2*k+1, t+2*k, t+2*k+1, sc, sc+1, sc, sc+1))
    for k, r in enumerate(regs): a("v_pk_mul_f32 v[%d:%d], v[%d:%d], v[%d:%d]" % (t+2*k, t+2*k+1, t+2*k, t+2*k+1, r, r+1))
    for k in range(2*len(regs)): a("v_exp_f32 v%d, v%d" % (t+k, t+k))
    for k, r in enumerate(regs): a("v_pk_add_f32 v[%d:%d], v[%d:%d], 1.0 op_sel_hi:[1,0]" % (t+2*k, t+2*k+1, t+2*k, t+2*k+1))
    for k in range(2*len(regs)): a("v_rcp_f32 v%d, v%d" % (t+k, t+k))
    for k, r in enumerate(regs): a("v_pk_mul_f32 v[%d:%d], v[%d:%d], v[%d:%d]" % (r, r+1, r, r+1, t+2*k, t+2*k+1))

def stats_loads(a, off, stile, vt):
    a("v_lshlrev_b32 v%d, 3, v%d" % (vt+4, V_LANE))
    a("v_add_u32 v%d, 512, v%d" % (vt+5, vt+4)); a("v_cmp_gt_u32 vcc, 32, v%d" % V_LANE); a("v_mov_b32 v%d, 0x7fffffff" % vt)
    a("v_cndmask_b32 v%d, v%d, v%d, vcc" % (vt+5, vt, vt+5))
    a("s_mul_i32 s46, s%d, 768" % stile); a("s_add_u32 s46, s46, %d" % off)
    return ["buffer_load_dwordx2 v[%d:%d], v%d, s[%d:%d], s46 offen sc1" % (vt+2*k, vt+2*k+1, vt+4+k, R_WS, R_WS+3) for k in range(2)]

def stats_finish(a, vt, vmean, vrstd):
    a("v_add_f32 v%d, v%d, v%d" % (vt, vt, vt+2)); a("v_add_f32 v%d, v%d, v%d" % (vt+1, vt+1, vt+3))
    for sw in ("v_permlane32_swap_b32", "v_permlane16_swap_b32"):
        for k in range(2): a("v_mov_b32 v%d, v%d" % (vt+2+k, vt+k))
        for k in range(2): a("%s v%d, v%d" % (sw, vt+k, vt+2+k))
        for k in range(2): a("v_add_f32 v%d, v%d, v%d" % (vt+k, vt+k, vt+2+k))
    a("s_mov_b32 s47, %d" % f32(1.0/576))
    a("v_mul_f32 v%d, s47, v%d" % (vmean, vt)); a("v_mul_f32 v%d, v%d, v%d" % (vt, vmean, vmean))
    a("v_fma_f32 v%d, v%d, s47, -v%d" % (vt+1, vt+1, vt)); a("v_max_f32 v%d, 0, v%d" % (vt+1, vt+1))
    a("v_add_f32 v%d, %d, v%d" % (vt, f32(1e-5), vt+1)); a("v_rsq_f32 v%d, v%d" % (vrstd, vt))

def norm_ops(x, vs, vb, t):
    o = []
    for r in range(4):
        o.append("v_lshlrev_b32 v%d, 16, v%d" % (t+2*r, x+r)); o.append("v_and_b32 v%d, 0xffff0000, v%d" % (t+2*r+1, x+r))
    for r in range(8): o.append("v_fma_f32 v%d, v%d, v%d, v%d" % (t+r, t+r, vs, vb))
    for r in range(4): o.append("v_cvt_pk_bf16_f32 v%d, v%d, v%d" % (x+r, t+2*r, t+2*r+1))
    return o

def out_stats(a, pk, n, vt, off):
    a("v_mov_b32 v%d, 0" % vt); a("v_mov_b32 v%d, 0" % (vt+1))
    for r in range(n):
        a("v_dot2c_f32_bf16 v%d, s%d, v%d" % (vt, S_ONES, pk+r)); a("v_dot2c_f32_bf16 v%d, v%d, v%d" % (vt+1, pk+r, pk+r))
    for sw in ("v_permlane32_swap_b32", "v_permlane16_swap_b32"):
        for k in range(2): a("v_mov_b32 v%d, v%d" % (vt+2+k, vt+k))
        for k in range(2): a("%s v%d, v%d" % (sw, vt+k, vt+2+k))
        for k in range(2): a("v_add_f32 v%d, v%d, v%d" % (vt+k, vt+k, vt+2+k))
    a("s_mul_i32 s46, s53, 6"); a("s_add_u32 s46, s46, s51"); a("s_lshl_b32 s46, s46, 7"); a("s_add_u32 s46, s46, %d" % off)
    a("v_lshlrev_b32 v%d, 3, v%d" % (vt+2, V_LANE))
    a("s_mov_b64 exec, 0xffff")
    a("buffer_store_dwordx2 v[%d:%d], v%d, s[%d:%d], s46 offen sc1" % (vt, vt+1, vt+2, R_WS, R_WS+3))
    a("s_mov_b64 exec, -1")

AF, ACC, WB, HK, VMEAN, VRSTD = 64, 136, 160, 40, 52, 53
OS = WB

def handoff(a, stage, deps, stamp):
    a("s_barrier")
    nv = sum("buffer_load" in x for x in stage)
    n1 = len(stage) if nv else 2*len(stage)//3
    for x in stage[:n1]: a(x)
    a.stamp(stamp + "_dma")
    a("s_waitcnt vmcnt(%d)" % nv); a("s_barrier")
    a.stamp(stamp + "_drain")
    L = a.newlabel("Lho")
    a("s_cmp_lg_u32 s%d, 0" % S_WAVE); a("s_cbranch_scc1 %s_d" % L)
    a.set_flag(57, 30)
    a.label(L + "_d")
    for x in stage[n1:]: a(x)
    a("s_cmp_lg_u32 s%d, 0" % S_WAVE); a("s_cbranch_scc1 %s" % L)
    deps()
    a.poll(30, 31, sleep0=SLEEP0[stamp])
    a.label(L)
    a("s_waitcnt vmcnt(0) lgkmcnt(0)"); a("s_barrier")
    a.stamp(stamp + "_ready")

def touch(a, off):
    if "touch" not in ABL: return 0
    a("s_add_u32 s46, s78, %d" % off)
    a("s_mov_b64 exec, 0xffffff")
    a("buffer_load_dword v253, v9, s[%d:%d], s46 offen sc1" % (R_WS, R_WS+3))
    a("s_mov_b64 exec, -1")

def gemm96(a, loads, norm=None, each=None, stamp=None, extra=()):
    UP = 8
    def wr(j): return ["ds_read_b128 v[%d:%d], v%d offset:%d" % (WB+24*(j % 3)+4*t, WB+24*(j % 3)+4*t+3, 5+(t//3), (t % 3)*18432 + 1024*j) for t in range(6)]
    for j in range(UP): a(loads[j])
    for x in wr(0) + wr(1): a(x)
    if each: each(UP)
    if norm:
        a("s_waitcnt vmcnt(%d)" % (UP-1))
        for x in norm(0): a(x)
    for j in range(18):
        ex = lambda q: min(len(extra), max(0, (q-9)*len(extra)//8))
        issued = min(18, UP+j) + ex(j)
        need = j+1 if (norm and j < 17) else j
        a("s_waitcnt vmcnt(%d) lgkmcnt(%d)" % (issued-1-need, 6 if j < 17 else 0))
        if j in (0, 9) and stamp: a.stamp(stamp + "_k%d" % j)
        ms = [mfma(ACC+4*t, WB+24*(j % 3)+4*t, AF+4*j, None if j == 0 else ACC+4*t) for t in range(6)]
        fill = ([loads[UP+j]] if UP+j < 18 else []) + (wr(j+2) if j < 16 else []) + (norm(j+1) if norm and j < 17 else [])
        xs = extra[ex(j):ex(j+1)]
        for n, x in enumerate(xs): fill.insert(len(fill) - 8*(len(xs)-1-n) if norm else len(fill), x)
        interleave(a, ms, fill)

def phase345(a):
    a("s_mov_b32 s50, s74"); a("s_mov_b32 s51, s75"); a("s_mov_b32 s53, s76")
    a("s_cmp_ge_u32 s51, 6"); a("s_cbranch_scc1 L_p3_helper")
    a("v_add_u32 v5, %d, v%d" % (W_LDS, V_L16)); a("v_add_u32 v6, %d, v%d" % (W_LDS + 3*18432, V_L16))
    a("v_add_u32 v8, s73, v%d" % V_L16)
    a("s_mul_i32 s54, s53, 18432")
    a("s_mul_i32 s55, s51, 3072"); a("s_add_u32 s55, s55, s54")
    a("v_lshlrev_b32 v9, 7, v%d" % V_LANE)
    a("s_lshl_b32 s46, s51, 2"); a("s_add_u32 s46, s46, s%d" % S_WAVE); a("s_mul_i32 s46, s46, 3072"); a("s_mul_i32 s78, s50, 73728"); a("s_add_u32 s78, s78, s46")
    def w2(i0, i1):
        return [("s_add_u32 s59, s72, %d\n" % (1024*(i & ~3)) if (i % 4 == 0 or i == i0) else "") +
                "buffer_load_dwordx4 a[%d:%d], v%d, s[%d:%d], s59 offen offset:%d sc1" % (AW2+4*i, AW2+4*i+3, V_L16, R_WS, R_WS+3, 1024*(i & 3)) for i in range(i0, i1)]
    def park(ab): return ["ds_write_b128 v8, a[%d:%d] offset:%d" % (ab+4*i, ab+4*i+3, 1024*i) for i in range(27)]
    def aloads(off):
        for q in range(5): a("s_add_u32 s%d, s54, %d" % (60+q, off + 4096*q))
        return ["buffer_load_dwordx4 v[%d:%d], v%d, s[%d:%d], s%d offen offset:%d sc1" % (AF+4*j, AF+4*j+3, V_L16, R_WS, R_WS+3, 60+(j >> 2), 1024*(j & 3)) for j in range(18)]
    def ostores(src, off):
        a("s_add_u32 s46, s55, %d" % off)
        for jj in range(3): a("buffer_store_dwordx4 v[%d:%d], v%d, s[%d:%d], s46 offen offset:%d sc1" % (src+4*jj, src+4*jj+3, V_L16, R_WS, R_WS+3, 1024*jj))
    def team(F):
        def f(): a("v_min_u32 v30, 5, v%d" % V_LANE); a("s_lshl_b32 s46, s50, 3"); a("s_add_u32 s46, s46, %d" % F); a("v_add_u32 v30, s46, v30")
        return f
    def myflag(F): a("s_lshl_b32 s57, s50, 3"); a("s_add_u32 s57, s57, s51"); a("s_add_u32 s57, s57, %d" % F)
    def dep3(): a("s_lshr_b32 s46, s50, 1"); a("s_lshl_b32 s46, s46, 4"); a("s_add_u32 s46, s46, %d" % F2); a("v_add_u32 v30, s46, v%d" % V_R)
    last2 = [pf_lds(0), pf_lds(1)]
    handoff(a, last2, dep3, "p3")
    touch(a, O_OFF)
    gemm96(a, aloads(O_OFF), stamp="p3", extra=w2(0, 9))
    a.stamp("p3_gemm")
    a("s_mov_b32 s46, 0x00003f80"); a("s_mov_b32 s47, 0x3f800000")
    for t in range(6):
        for i in range(4): a("v_dot2c_f32_bf16 v%d, s%d, v%d" % (ACC+4*t+i, 46+(i & 1), XT+4*(t >> 1)+2*(t & 1)+(i >> 1)))
    for k in range(12): a("v_cvt_pk_bf16_f32 v%d, v%d, v%d" % (HK+k, ACC+2*k, ACC+2*k+1))
    ostores(HK, H_OFF)
    out_stats(a, HK, 12, 10, SH_OFF)
    myflag(F3)
    a.stamp("p3_epi")
    if a.stop == 3: a("s_waitcnt vmcnt(0)"); a("s_branch L_fin")
    for r in range(4): a("v_mov_b32 v%d, s%d" % (20+r, S_ONES))
    cs = [mfma(AF+4*(i//9), AW1+4*i, 20, None if i % 9 == 0 else AF+4*(i//9), ta="a") for i in range(27)]
    a("s_mul_i32 s46, s%d, 192" % S_WAVE); a("v_lshl_add_u32 v24, v%d, 4, s46" % V_G)
    st4 = []
    for x, y in zip(park(AW1), [cs[(i % 3)*9 + i//3] for i in range(27)]): st4 += [x, y]
    st4 += ["s_nop 7"] + ["ds_write_b128 v24, v[%d:%d] offset:%d" % (AF+4*k, AF+4*k+3, 64*k) for k in range(3)]
    handoff(a, st4, team(F3), "p4")
    CS = 232
    a("v_lshlrev_b32 v24, 4, v%d" % V_G)
    for k in range(12): a("ds_read_b128 v[%d:%d], v24 offset:%d" % ((CS if k % 2 == 0 else ACC)+4*(k//2), (CS if k % 2 == 0 else ACC)+4*(k//2)+3, 64*k))
    touch(a, H_OFF)
    for x in stats_loads(a, SH_OFF, 53, 10): a(x)
    def fin4(younger):
        a("s_waitcnt vmcnt(%d)" % younger)
        stats_finish(a, 10, VMEAN, VRSTD)
        a("v_mul_f32 v12, v%d, v%d" % (VRSTD, VRSTD)); a("v_mul_f32 v12, v12, v11"); a("v_add_f32 v12, %d, v12" % f32(1e-5))
        a("v_rsq_f32 v12, v12"); a("v_mul_f32 v16, v12, v%d" % VRSTD); a("v_mul_f32 v17, v16, -v%d" % VMEAN)
        a("s_waitcnt lgkmcnt(12)")
        for k in range(12): a("v_pk_add_f32 v[%d:%d], v[%d:%d], v[%d:%d]" % (CS+2*k, CS+2*k+1, CS+2*k, CS+2*k+1, ACC+2*k, ACC+2*k+1))
        for k in range(12): a("v_pk_mul_f32 v[%d:%d], v[%d:%d], v[16:17] op_sel:[0,1] op_sel_hi:[1,1]" % (CS+2*k, CS+2*k+1, CS+2*k, CS+2*k+1))
    gemm96(a, aloads(H_OFF), each=fin4, stamp="p4", extra=w2(9, 27))
    a.stamp("p4_gemm")
    a("s_mov_b32 s48, %d" % f32(C1)); a("s_mov_b32 s49, %d" % f32(C0))
    for k in range(12): a("v_pk_fma_f32 v[%d:%d], v[%d:%d], v[16:17], v[%d:%d] op_sel_hi:[1,0,1]" % (ACC+2*k, ACC+2*k+1, ACC+2*k, ACC+2*k+1, CS+2*k, CS+2*k+1))
    gelu_pk(a, [ACC+2*k for k in range(12)], AF, 48)
    for k in range(12): a("v_cvt_pk_bf16_f32 v%d, v%d, v%d" % (OS+k, ACC+2*k, ACC+2*k+1))
    ostores(OS, T_OFF)
    myflag(F4)
    a.stamp("p4_epi")
    if a.stop == 4: a("s_waitcnt vmcnt(0)"); a("s_branch L_fin")
    a.srd(R_A, S_WS, ACT, T_OFF)
    a("s_lshl_b32 s46, s53, 4"); a("v_add_u32 v20, s46, v%d" % V_R); a("s_mov_b32 s47, 18432")
    for k, sh in enumerate((1, -1, 2, -2)):
        a("v_subrev_u32 v21, %d, v20" % sh); a("v_ashrrev_i32 v22, 4, v21"); a("v_mul_lo_u32 v22, v22, s47")
        a("v_and_b32 v21, 15, v21"); a("v_lshl_add_u32 v21, v%d, 4, v21" % V_G); a("v_lshl_add_u32 v%d, v21, 4, v22" % (10+k))
    a("v_cmp_gt_u32 vcc, 32, v%d" % V_LANE); a("v_cndmask_b32 v14, v11, v10, vcc"); a("v_cndmask_b32 v15, v13, v12, vcc")
    for q in range(5): a("s_mov_b32 s%d, %d" % (70+q, 4096*q))
    def vsel(j): return 10 if j < 4 else 14 if j == 4 else 11 if j < 9 else 12 if j < 13 else 15 if j == 13 else 13
    tl = ["buffer_load_dwordx4 v[%d:%d], v%d, s[%d:%d], s%d offen offset:%d sc1" % (AF+4*j, AF+4*j+3, vsel(j), R_A, R_A+3, 70+(j >> 2), 1024*(j & 3)) for j in range(18)]
    def dep5():
        a("v_lshrrev_b32 v31, 3, v%d" % V_LANE); a("v_min_u32 v31, 2, v31"); a("v_add_u32 v31, s50, v31"); a("v_subrev_u32 v31, 1, v31")
        a("v_med3_i32 v31, v31, 0, 31"); a("v_and_b32 v30, 7, v%d" % V_LANE); a("v_min_u32 v30, 5, v30")
        a("v_lshl_add_u32 v30, v31, 3, v30"); a("v_add_u32 v30, %d, v30" % F4)
        a("s_mul_i32 s46, s65, 18"); a("s_add_u32 s46, s46, %d" % (FS + 54 - 32))
        a("v_min_u32 v31, 49, v%d" % V_LANE); a("v_add_u32 v31, s46, v31"); a("v_cmp_lt_u32 vcc, 31, v%d" % V_LANE); a("v_cndmask_b32 v30, v30, v31, vcc")
    roles6(a)
    a("s_waitcnt vmcnt(3)")
    handoff(a, park(AW2), dep5, "p5")
    touch(a, T_OFF)
    gemm96(a, tl, stamp="p5")
    a.stamp("p5_gemm")
    a("v_mul_f32 v17, v%d, -v%d" % (VRSTD, VMEAN))
    for k in range(12):
        a("v_lshlrev_b32 v20, 16, v%d" % (HK+k)); a("v_and_b32 v21, 0xffff0000, v%d" % (HK+k))
        a("v_fma_f32 v20, v20, v%d, v17" % VRSTD); a("v_fma_f32 v21, v21, v%d, v17" % VRSTD)
        a("v_pk_add_f32 v[%d:%d], v[%d:%d], v[20:21]" % (ACC+2*k, ACC+2*k+1, ACC+2*k, ACC+2*k+1))
    for k in range(12): a("v_cvt_pk_bf16_f32 v%d, v%d, v%d" % (OS+k, ACC+2*k, ACC+2*k+1))
    ostores(OS, X1_OFF)
    out_stats(a, OS, 12, 10, SX_OFF)
    myflag(F5)
    a.stamp("p5_epi")
    a("s_waitcnt vmcnt(0)"); a("s_barrier")
    a("s_cmp_lg_u32 s%d, 0" % S_WAVE); a("s_cbranch_scc1 L_p5_pre")
    a.set_flag(57, 30)
    a("s_branch L_p5_pre")
    a.label("L_p3_helper")
    a("s_barrier")
    a(pf_lds(0)); a(pf_lds(1))
    a("s_waitcnt vmcnt(2)"); a("s_barrier")
    L = a.newlabel("Lh")
    a("s_cmp_lg_u32 s%d, 0" % S_WAVE); a("s_cbranch_scc1 %s" % L)
    a.set_flag(57, 30)
    a.label(L)
    swizzle_setup(a)
    a("s_add_u32 s48, s48, 54")
    for p in range(3):
        sw_big(a, 48, 60+3*p)
        a("s_lshl_b32 s53, s52, 10"); a("s_add_u32 s%d, s%d, s53" % (60+3*p, 60+3*p)); a("s_add_u32 s%d, s48, %d" % (62+3*p, FS))
        a("s_add_u32 s48, s48, 1")
    a("s_lshl_b32 s48, s74, 1"); a("s_add_u32 s48, s48, s75"); a("s_add_u32 s48, s48, %d" % (54 + 32 - 6))
    sw_issue(a, 48, 3, 0)
    a("s_waitcnt vmcnt(9)"); a("s_barrier")
    for p in range(3): sw_process(a, p, W_LDS + 36864*p)
    a("s_waitcnt vmcnt(27)"); a("s_barrier")
    if NW3 == 0:
        a("s_sub_u32 s48, s48, 32"); a("s_cmp_lt_u32 s48, %d" % (54+32)); a("s_cselect_b32 s48, s48, 54"); sw_issue(a, 48, 4, W_LDS)
    sw_process(a, 3, 0)
    if NW3 == 0:
        a("s_waitcnt vmcnt(9)"); a("s_barrier")
        sw_process(a, 4, W_LDS)
    a("s_waitcnt vmcnt(0)"); a("s_barrier")
    sw_flags(a, range(4 if NW3 else 5))
    roles6(a)
    L = a.newlabel("Lh")
    a("s_cmp_lg_u32 s%d, 0" % S_WAVE); a("s_cbranch_scc1 %s" % L)
    a("s_mul_i32 s46, s65, 18"); a("s_add_u32 s46, s46, %d" % (FS + 54)); a("v_min_u32 v30, 17, v%d" % V_LANE); a("v_add_u32 v30, s46, v30")
    a.poll(30, 31, sleep0=0)
    a.label(L)
    a("s_barrier")
    a.label("L_p5_pre")
    for x in ring_prefill(a, 59): a(x)
    a.label("L_p5_done")
    a.stamp("p5_done")

WFL = os.environ.get("WFL", " sc1")
LCH = int(os.environ.get('LCH', 1))
RING = 184

def roles6(a):
    L = LCH
    a("s_lshr_b32 s46, s%d, %d" % (S_XCD, 3-L)); a("s_lshl_b32 s64, s46, %d" % (5-L)); a("s_lshr_b32 s67, s%d, %d" % (S_SLOT, L)); a("s_add_u32 s64, s64, s67")
    a("s_and_b32 s67, s67, 7")
    a("s_mov_b32 s67, 0")
    a("s_and_b32 s46, s%d, %d" % (S_XCD, (8 >> L) - 1)); a("s_lshl_b32 s65, s46, %d" % L); a("s_and_b32 s46, s%d, %d" % (S_SLOT, (1 << L) - 1)); a("s_add_u32 s65, s65, s46")
    a("s_lshl_b32 s46, s65, 2"); a("s_add_u32 s46, s46, s%d" % S_WAVE); a("s_mul_i32 s66, s46, %d" % (9*18432)); a("s_add_u32 s66, s66, %d" % W3_S)

def wload(j, s=58, ring=("a", RING)):
    o = "s_add_u32 s%d, s%d, 4096\n" % (s, s) if (j and j % 4 == 0) else ""
    return o + ("buffer_load_dwordx4 %s[%d:%d], v%d, s[%d:%d], s%d offen offset:%d" + WFL) % (ring[0], ring[1]+4*j, ring[1]+4*j+3, V_L16, R_WS, R_WS+3, s, 1024*(j & 3))

def ring_prefill(a, s):
    a("s_mul_i32 s%d, s67, 18432" % s); a("s_add_u32 s%d, s%d, s66" % (s, s))
    return [wload(j, s) for j in range(18)]

def norm_pk(x, vs, t):
    o = []
    for r in range(4):
        o.append("v_lshlrev_b32 v%d, 16, v%d" % (t+2*r, x+r)); o.append("v_and_b32 v%d, 0xffff0000, v%d" % (t+2*r+1, x+r))
    for r in range(4): o.append("v_pk_fma_f32 v[%d:%d], v[%d:%d], v[%d:%d], v[%d:%d] op_sel:[0,0,1] op_sel_hi:[1,0,1]" % (t+2*r, t+2*r+1, t+2*r, t+2*r+1, vs, vs+1, vs, vs+1))
    for r in range(4): o.append("v_cvt_pk_bf16_f32 v%d, v%d, v%d" % (x+r, t+2*r, t+2*r+1))
    return o

def phase6(a):
    AC, PK, RB, GT, XR = 40, 72, 80, 136, 64
    HB = 73728
    def xf(T, j):
        f = 4*j + T
        return ("a", 4*f) if f < 46 else ("v", 152 + 4*(f-46))
    a("s_mov_b32 s50, s64"); a("s_mov_b32 s51, s65"); a("s_mov_b32 s54, s66"); a("s_mov_b32 s52, s67")
    a("s_lshl_b32 s53, s50, 2"); a("s_add_u32 s53, s53, s%d" % S_WAVE)
    a("s_add_u32 s55, s54, %d" % BW)
    a("s_mul_i32 s56, s50, 72"); a("s_add_u32 s56, s56, s51"); a("s_lshl_b32 s56, s56, 2"); a("s_add_u32 s56, s56, s%d" % S_WAVE)
    a("s_lshl_b32 s56, s56, 11"); a("s_add_u32 s56, s56, %d" % PART)
    a("s_mul_i32 s46, s53, 18432")
    for q in range(5): a("s_add_u32 s%d, s46, %d" % (70+q, X1_OFF + 4096*q))
    a("s_mul_i32 s46, s%d, 18432" % S_WAVE); a("v_add_u32 v5, s46, v%d" % V_L16)
    a("v_add_u32 v6, 36864, v%d" % V_L16); a("v_add_u32 v7, %d, v%d" % (HB, V_L16)); a("v_add_u32 v8, %d, v%d" % (HB+36864, V_L16))
    a("s_lshr_b32 s46, s%d, 1" % S_WAVE); a("s_lshl_b32 s46, s46, 10"); a("s_and_b32 s47, s%d, 1" % S_WAVE); a("s_lshl_b32 s47, s47, 3")
    a("s_add_u32 s46, s46, s47"); a("v_add_u32 v35, s46, v7")
    a("s_mov_b32 s48, %d" % f32(C1)); a("s_mov_b32 s49, %d" % f32(C0))
    sl = stats_loads(a, SX_OFF, 53, 10)
    a("s_mov_b32 s60, s46")
    sl = [x.replace("s46", "s60") for x in sl]
    a("v_mov_b32 v28, 0")
    a("global_load_dword v29, v28, s[%d:%d] sc1" % (S_DBG, S_DBG+1))
    L = a.newlabel("Lp6w")
    a("s_cmp_lg_u32 s%d, 0" % S_WAVE); a("s_cbranch_scc1 %s" % L)
    a("s_mul_i32 s46, s51, 18"); a("s_add_u32 s46, s46, %d" % (FS + 54 + 144 - 6))
    a("v_min_u32 v31, 23, v%d" % V_LANE); a("v_add_u32 v30, s46, v31")
    a("s_lshl_b32 s46, s50, 3"); a("s_add_u32 s46, s46, %d" % F5); a("v_add_u32 v32, s46, v31")
    a("v_cmp_gt_u32 vcc, 6, v31"); a("v_cndmask_b32 v30, v30, v32, vcc")
    a.poll(30, 31, sleep0=SLEEP0["p6"])
    a.label(L)
    a("s_barrier")
    a.stamp("p6_ready")
    for x in sl: a(x)
    def xload(j): return "buffer_load_dwordx4 v[%d:%d], v%d, s[%d:%d], s%d offen offset:%d sc1" % (XR+4*j, XR+4*j+3, V_L16, R_WS, R_WS+3, 70+(j >> 2), 1024*(j & 3))
    UP = 8
    for j in range(UP): a(xload(j))
    a("s_waitcnt vmcnt(%d)" % UP)
    a("v_readfirstlane_b32 s%d, v29" % S_NONCE)
    stats_finish(a, 10, 17, 16)
    a("v_mul_f32 v17, v16, -v17")
    def bload(reg, s, off=0, t="a"): return "buffer_load_dwordx4 %s[%d:%d], v%d, s[%d:%d], s%d offen offset:%d sc1" % (t, reg, reg+3, V_L16, R_WS, R_WS+3, s, off)
    R3, ST, SEL, RS = 12, 32, 6, 152
    a("s_mul_i32 s60, s50, 73728")
    a("s_lshl_b32 s46, s51, 1"); a("s_lshr_b32 s47, s%d, 1" % S_WAVE); a("s_add_u32 s46, s46, s47"); a("s_lshl_b32 s46, s46, 10"); a("s_add_u32 s63, s46, s60")
    res = ["s_add_u32 s58, s63, %d\n" % ((X1_OFF, H_OFF)[j >> 2] + 18432*(j & 3)) + bload(RS+4*j, 58, t="v") for j in range(8)]
    for j in range(18):
        a("s_waitcnt vmcnt(%d)" % (UP - 1))
        a(xload(UP+j) if UP+j < 18 else res[UP+j-18])
        for x in norm_pk(XR+4*j, 16, 20): a(x)
        a("ds_write_b128 v5, v[%d:%d] offset:%d" % (XR+4*j, XR+4*j+3, 1024*j))
    def select(d, sr, bit):
        o = ["s_bitcmp1_b32 s%d, %d\ns_cselect_b64 s[64:65], -1, 0" % (sr, bit)]
        for h in range(2):
            o += ["v_cndmask_b32 v%d, v%d, 0, s[64:65]" % (d+h, SEL+2+h), "v_cndmask_b32 v%d, 0, v%d, s[64:65]" % (d+2+h, SEL+2+h)]
        return o
    a("v_mov_b32 v32, v6"); a("v_mov_b32 v33, v7"); a("v_mov_b32 v34, v8")
    a("v_lshrrev_b32 v26, 2, v%d" % V_R); a("v_cmp_eq_u32 s[64:65], v26, v%d" % V_G)
    a("v_and_b32 v26, 1, v%d" % V_R); a("v_lshlrev_b32 v26, 4, v26"); a("v_mov_b32 v27, 0x3f80"); a("v_lshlrev_b32 v27, v26, v27")
    a("v_cndmask_b32 v27, 0, v27, s[64:65]"); a("v_and_b32 v26, 2, v%d" % V_R); a("v_cmp_eq_u32 vcc, 0, v26")
    a("v_cndmask_b32 v%d, 0, v27, vcc" % (SEL+2)); a("v_cndmask_b32 v%d, v27, 0, vcc" % (SEL+3))
    for r in (0, 1, 4, 5): a("v_mov_b32 v%d, 0" % (SEL+r))
    for x in select(36, S_WAVE, 0): a(x)
    a("s_waitcnt vmcnt(0)")
    for k in range(2):
        for T in range(4): a(mfma(R3+4*T, 36, RS+16*k+4*T, None if k == 0 else R3+4*T))
    a("s_waitcnt lgkmcnt(0)"); a("s_barrier")
    a.stamp("p6_x")
    def fread(j, va):
        o = []
        for T in range(4):
            t, r = xf(T, j)
            o.append("ds_read_b128 %s[%d:%d], v%d offset:%d" % (t, r, r+3, va[T >> 1], (T & 1)*18432 + 1024*j))
        return o
    def gelu(ac):
        b = ["v_pk_mul_f32 v[%d:%d], v[%d:%d], v[%d:%d]" % (GT+2*k, GT+2*k+1, ac+2*k, ac+2*k+1, ac+2*k, ac+2*k+1) for k in range(8)]
        b += ["v_pk_fma_f32 v[%d:%d], v[%d:%d], s[48:49], s[48:49] op_sel:[0,0,1] op_sel_hi:[1,0,1]" % (GT+2*k, GT+2*k+1, GT+2*k, GT+2*k+1) for k in range(8)]
        b += ["v_pk_mul_f32 v[%d:%d], v[%d:%d], v[%d:%d]" % (GT+2*k, GT+2*k+1, GT+2*k, GT+2*k+1, ac+2*k, ac+2*k+1) for k in range(8)]
        o = []
        for T in range(4):
            x = ac + 4*T; t = GT + 4*T
            if "nopk" in ABL:
                o += ["v_mul_f32 v%d, v%d, v%d" % (t+i, x+i, x+i) for i in range(4)]
                o += ["v_fma_f32 v%d, v%d, s48, v18" % (t+i, t+i) for i in range(4)]
                o += ["v_mul_f32 v%d, v%d, v%d" % (t+i, t+i, x+i) for i in range(4)]
            o += ["v_exp_f32 v%d, v%d" % (t+i, t+i) for i in range(4)]
            o += ["v_add_f32 v%d, 1.0, v%d" % (t+i, t+i) for i in range(4)]
            o += ["v_rcp_f32 v%d, v%d" % (t+i, t+i) for i in range(4)]
            o += ["v_mul_f32 v%d, v%d, v%d" % (t+i, t+i, x+i) for i in range(4)]
            o += ["v_cvt_pk_bf16_f32 v%d, v%d, v%d" % (PK+2*T+h, t+2*h, t+2*h+1) for h in range(2)]
            o.append("ds_write_b64 v5, v[%d:%d] offset:%d" % (PK+2*T, PK+2*T+1, 18432*T))
        return ([] if "nopk" in ABL else b), o
    def wt(op): return 2 if op.startswith(("v_exp", "v_rcp")) else min(2, len(op.split("\n")))
    RA = ("a", RING); RBB = ("v", RB)
    def subpass(ac, fill, first=None, loads=None, at=None, ring=RA, depth=18, batch=(), head=(), c0=None):
        if "p6nogelu" in ABL and len(fill) > 20: fill = []; batch = ()
        if "p6nost" in ABL: fill = [x for x in fill if "buffer_store" not in x]
        fill = list(fill); head = list(head)
        if first:
            for j in range(2):
                for x in fread(j, first): a(x)
        def wait(j):
            w = []
            if j % 2 == 0: w.append("vmcnt(%d)" % (depth - 2))
            if first: w.append("lgkmcnt(%d)" % (4 if j < 17 else 0))
            return "s_waitcnt " + " ".join(w) if w else None
        for j in range(18):
            if wait(j): a(wait(j))
            if at and j in at: at[j]()
            rd = fread(j+2, first) if (first and j < 16) else []
            for T in range(4):
                t, r = xf(T, j)
                a(mfma(ac+4*T, ring[1]+4*j, r, (None if c0 is None else c0+4*T) if j == 0 else ac+4*T, ta=ring[0], tb=t))
                room = 2
                if rd: a(rd[T]); room -= 1
                if j == 0:
                    n = (len(head) + 2 - T)//(3 - T) if T < 3 else 0
                    for x in head[:n]: a(x)
                    del head[:n]
                if T == 3:
                    ld = "" if ("p6nold" in ABL and loads is None) else (loads(j) if loads else wload(j, 58, ring))
                    if ld: a(ld); room -= len(ld.split("\n"))
                    if j < 17 and wait(j+1): room -= 1
                    if j == 0:
                        for x in batch: a(x)
                if j == 0: continue
                left = 4*(17-j) + 3 - T
                while fill and (wt(fill[0]) <= room or sum(wt(x) for x in fill) > 2*left - (left+3)//4*2 + 1):
                    room -= wt(fill[0]); a(fill.pop(0))
        assert not fill
    def nexttile(last=False):
        o = ["s_mov_b32 s62, s61", "s_mov_b32 s61, s63", "s_add_u32 s63, s63, 1"]
        if "rot" in ABL: o += ["s_cmp_eq_u32 s63, 9", "s_cselect_b32 s63, 0, s63"]
        o += ["s_mul_i32 s58, s63, 18432", "s_add_u32 s58, s58, s54"]
        if last: o += ["s_cmp_eq_u32 s59, 3", "s_cselect_b32 s58, s65, s58"]
        return o + ["s_lshl_b32 s46, s62, 11", "v_add_u32 v5, s46, v35"]
    def slice_of(d, c):
        a("s_add_u32 s%d, s%d, s51" % (d, c)); a("s_and_b32 s%d, s%d, 7" % (d, d)); a("s_cmp_eq_u32 s%d, 0" % c); a("s_cselect_b32 s%d, 8, s%d" % (d, d))
    a("s_mov_b32 s63, s52"); a("s_mov_b32 s61, s52")
    for x in nexttile(): a(x)
    slice_of(64, 52); a("s_mul_i32 s65, s64, 18432"); a("s_add_u32 s65, s65, s55")
    for r in range(4): a("v_mov_b32 v%d, -1" % (PK+r))
    pois = []
    for k in (6, 7):
        pois.append("s_add_u32 s46, s51, %d\ns_and_b32 s46, s46, 7\ns_lshl_b32 s46, s46, 16\ns_add_u32 s62, s46, s56\n" % k +
                    "buffer_store_dwordx4 v[%d:%d], v%d, s[%d:%d], s62 offen sc1" % (PK, PK+3, V_L16, R_WS, R_WS+3))
        pois.append("buffer_store_dwordx4 v[%d:%d], v%d, s[%d:%d], s62 offen offset:1024 sc1" % (PK, PK+3, V_L16, R_WS, R_WS+3))
    subpass(AC, [], first=(V_L16, 32), at={4*k+2: (lambda k=k: a(pois[k])) for k in range(4)})
    a.stamp("p6_p0")
    a("s_mov_b32 s59, 0")
    a.label("L_p6_a")
    for half in (1, 0):
        b, o = gelu(AC+16*(1-half))
        subpass(AC+16*half, o, batch=b, head=nexttile(half == 0))
    a("s_add_u32 s59, s59, 1"); a("s_cmp_lt_u32 s59, 4"); a("s_cbranch_scc1 L_p6_a")
    def nextslice(own=None):
        a("s_lshl_b32 s62, s66, 16"); a("s_add_u32 s62, s62, s56"); a("s_mov_b32 s66, s65"); a("s_mov_b32 s65, s64")
        a("s_add_u32 s61, s61, 1"); a("s_and_b32 s61, s61, 7")
        slice_of(64, 61)
        if own is not None: a("s_cmp_eq_u32 s59, %d" % own); a("s_cselect_b32 s64, s51, s64")
        a("s_mul_i32 s58, s64, 18432"); a("s_add_u32 s58, s58, s55")
    a("s_lshl_b32 s46, s61, 11"); a("v_add_u32 v5, s46, v35")
    a("s_mov_b32 s61, s52")
    nextslice()
    g = G(); gelu_pk(g, [AC+2*k for k in range(8)], GT, 48)
    interleave(a, g.lines, [wload(j, 58, RBB) for j in range(14)])
    for T in range(4):
        for h in range(2): a("v_cvt_pk_bf16_f32 v%d, v%d, v%d" % (PK+2*T+h, AC+4*T+2*h, AC+4*T+2*h+1))
        a("ds_write_b64 v5, v[%d:%d] offset:%d" % (PK+2*T, PK+2*T+1, 18432*T))
        a(wload(14+T, 58, RBB))
    a("s_waitcnt lgkmcnt(0)"); a("s_barrier")
    a.stamp("p6_a")
    def pstore(ac):
        o = ["v_cvt_pk_bf16_f32 v%d, v%d, v%d" % (PK+k, ac+2*k, ac+2*k+1) for k in range(8)]
        o += ["buffer_store_dwordx4 v[%d:%d], v%d, s[%d:%d], s62 offen offset:%d sc1" % (PK+4*p, PK+4*p+3, V_L16, R_WS, R_WS+3, 1024*p) for p in range(2)]
        return o
    a("s_lshl_b32 s46, s50, 5"); a("s_add_u32 s46, s46, s%d" % S_WAVE); a("s_lshl_b32 s70, s46, 7"); a("s_add_u32 s70, s70, %d" % (FLAG0 + 128*FA))
    a("s_lshl_b32 s46, s51, 9"); a("s_add_u32 s68, s70, s46")
    a("s_mul_i32 s46, s50, 9"); a("s_add_u32 s46, s46, s51"); a("s_lshl_b32 s46, s46, 16"); a("s_lshl_b32 s47, s%d, 11" % S_WAVE)
    a("s_add_u32 s46, s46, s47"); a("s_add_u32 s69, s46, %d" % PART)
    a("s_mov_b32 s71, 0")
    a("v_and_b32 v5, 7, v%d" % V_LANE); a("v_lshlrev_b32 v5, 9, v5")
    def cond(first, body):
        def f():
            L = a.newlabel("Lc")
            if first is not None: a("s_cmp_lt_u32 s71, %d" % first); a("s_cbranch_scc1 %s" % L)
            body()
            a.label(L)
        return f
    def SC(k): return (54, 55, 57, 58, 72, 75, 76)[k-1]
    def publish():
        a("s_add_u32 s46, s71, s%d" % S_NONCE); a("s_sub_u32 s46, s46, 2"); a("v_mov_b32 v29, s46")
        a("s_waitcnt vmcnt(20)"); a("s_mov_b64 exec, 1")
        a("buffer_store_dword v29, v28, s[%d:%d], s68 offen sc1" % (R_WS, R_WS+3))
        a("s_mov_b64 exec, -1")
    def confirm(vflag, vaddr, saddr, sneed, n):
        L = a.newlabel("Lcf")
        a("s_mov_b32 s47, 100000"); a("s_waitcnt vmcnt(%d)" % n)
        a.label(L)
        a("v_subrev_u32 v30, s%d, v%d" % (sneed, vflag)); a("v_cmp_lt_u32 vcc, 7, v30"); a("s_cbranch_vccz %s_x" % L)
        a("s_sleep 1"); a("buffer_load_dword v%d, v%d, s[%d:%d], s%d offen sc1" % (vflag, vaddr, R_WS, R_WS+3, saddr)); a("s_waitcnt vmcnt(0)")
        a("s_sub_u32 s47, s47, 1"); a("s_cbranch_scc0 %s" % L)
        a.label(L + "_x")
    nxt = ["s_add_u32 s71, s71, 1"]
    a("s_mov_b32 s59, 0")
    nextslice()
    subpass(AC, [], first=(33, 34), depth=36)
    a.stamp("p6_s0")
    a.label("L_p6_b")
    def ask_all(): a("buffer_load_dword v31, v5, s[%d:%d], s70 offen sc1" % (R_WS, R_WS+3))
    ev = {3: cond(6, publish), 14: cond(6, ask_all)}
    nextslice()
    subpass(AC+16, pstore(AC), ring=RBB, depth=36, head=nxt)
    nextslice(own=2)
    subpass(AC, pstore(AC+16), depth=36, at=ev, head=nxt)
    a("s_add_u32 s59, s59, 1"); a("s_cmp_lt_u32 s59, 3"); a("s_cbranch_scc1 L_p6_b")
    a.stamp("p6_s6")
    a("s_lshr_b32 s46, s51, 1"); a("s_sub_u32 s46, s46, 3"); a("s_lshl_b32 s46, s46, 7"); a("s_add_u32 s74, s46, s70")
    a("s_mul_i32 s46, s50, 9"); a("s_add_u32 s46, s46, 8"); a("s_lshl_b32 s46, s46, 16"); a("s_lshl_b32 s47, s51, 10")
    a("s_add_u32 s46, s46, s47"); a("s_add_u32 s78, s46, %d" % PART)
    a("s_and_b32 s46, s51, 1"); a("s_mul_i32 s61, s46, 36864"); a("s_add_u32 s61, s61, s60")
    a("s_lshr_b32 s47, s51, 2"); a("s_add_u32 s47, s47, 16"); a("s_lshl_b32 s46, s47, 10"); a("s_add_u32 s79, s46, s61")
    a("s_lshl_b32 s47, s47, 6"); a("s_add_u32 s61, s61, s47"); a("s_and_b32 s46, s51, 2"); a("s_lshl_b32 s46, s46, 2"); a("s_add_u32 s61, s61, s46")
    def w3(body):
        def f():
            L = a.newlabel("Lex"); a("s_cmp_lg_u32 s%d, 3" % S_WAVE); a("s_cbranch_scc1 %s" % L); body(); a.label(L)
        return f
    def extra_ask(): a("buffer_load_dword v29, v5, s[%d:%d], s74 offen sc1" % (R_WS, R_WS+3))
    def extra_get():
        confirm(29, 5, 74, S_NONCE, 2)
        for k in range(8):
            a(bload(RB+4*k, 78, t="v")); a("s_add_u32 s78, s78, 8192")
        for k, off in enumerate((H_OFF, X1_OFF)):
            for T in range(2):
                a("s_add_u32 s46, s79, %d" % (off + 18432*T)); a(bload(RB+32+8*k+4*T, 46, t="v"))
    a("s_lshl_b32 s62, s66, 16"); a("s_add_u32 s62, s62, s56"); a("s_mov_b32 s66, s65")
    for k in range(1, 8):
        r = SC(k); a("s_sub_u32 s%d, s51, %d" % (r, k)); a("s_and_b32 s%d, s%d, 7" % (r, r)); a("s_lshl_b32 s%d, s%d, 13" % (r, r)); a("s_add_u32 s%d, s%d, s69" % (r, r))
    CB = {1: ("v", ST), 2: ("v", AC), 3: ("v", AC+8), 4: ("v", RB+48), 5: ("a", RING), 6: ("v", RB+56), 7: ("v", RB+64)}
    def cload(k): return "\n".join(bload(CB[k][1]+4*p, SC(k), 1024*p, t=CB[k][0]) for p in range(2))
    def need(c, n):
        def f(): a("s_add_u32 s73, s%d, %d" % (S_NONCE, c)); confirm(31, 5, 70, 73, n)
        return f
    def add(acc, k, n):
        def f():
            a("s_waitcnt vmcnt(%d)" % n)
            for T in range(4): a(mfma(acc+4*T, SEL if T & 1 else SEL+2, CB[k][1]+4*(T >> 1), acc+4*T, tb=CB[k][0]))
        return f
    def load7(j): return {4: cload(1), 6: cload(2), 8: cload(3), 14: cload(4)}.get(j, "")
    def seq(*fs):
        def f():
            for x in fs: x()
        return f
    subpass(AC+16, pstore(AC), ring=RBB, depth=20, loads=load7, head=nxt,
            at={3: publish, 4: seq(need(4, 3), w3(extra_ask)), 12: ask_all, 14: add(R3, 1, 5), 16: seq(add(R3, 2, 3), add(R3, 3, 3))})
    a.stamp("p6_s7")
    a("s_lshl_b32 s62, s66, 16"); a("s_add_u32 s62, s62, s56")
    SEv, EA = AC+16, AC+24
    g = G()
    g.lines += select(SEv, 51, 1)
    g("v_mul_u32_u24 v%d, 144, v%d" % (AC+20, V_R)); g("v_lshl_add_u32 v%d, v%d, 4, v%d" % (AC+20, V_G, AC+20))
    g.lines.append("s_lshr_b32 s66, s%d, 1\ns_lshl_b32 s66, s66, 6\ns_and_b32 s67, s%d, 1\ns_lshl_b32 s67, s67, 3\ns_add_u32 s66, s66, s67" % (S_WAVE, S_WAVE))
    g("v_add_u32 v%d, s66, v%d" % (AC+20, AC+20))
    g("v_lshrrev_b32 v%d, 3, v0" % EA); g("v_and_b32 v%d, 7, v0" % (EA+1)); g("v_lshlrev_b32 v%d, 4, v%d" % (EA+1, EA+1))
    g("v_mul_u32_u24 v%d, 144, v%d" % (AC+21, EA)); g("v_add_u32 v%d, v%d, v%d" % (AC+21, AC+21, EA+1))
    g("v_mul_u32_u24 v%d, 1152, v%d" % (AC+22, EA)); g("v_add_u32 v%d, v%d, v%d" % (AC+22, AC+22, EA+1))
    g("v_mul_u32_u24 v%d, 1152, v%d" % (AC+23, V_R)); g("v_lshl_add_u32 v%d, v%d, 4, v%d" % (AC+23, V_G, AC+23))
    def load8(j): return {6: cload(5), 12: cload(6), 17: cload(7)}.get(j, "")
    subpass(AC, pstore(AC+16) + g.lines, depth=63, loads=load8, head=nxt, c0=R3, at={6: seq(need(5, 2), add(AC, 4, 2)), 7: w3(extra_get)})
    a.stamp("p6_b")
    a.srd(R_A, S_OUT, ACT)
    a("s_cmp_lg_u32 s%d, 3" % S_WAVE); a("s_cbranch_scc1 L_p7_main")
    a("s_waitcnt vmcnt(4)")
    for k in range(8):
        a(mfma(EA, SEL+2, RB+4*k, None if k == 0 else EA)); a(mfma(EA+4, SEL, RB+4*k, None if k == 0 else EA+4))
    for k in range(2):
        for T in range(2): a(mfma(EA+4*T, SEv, RB+32+8*k+4*T, EA+4*T))
    for T in range(2):
        for h in range(2): a("v_cvt_pk_bf16_f32 v%d, v%d, v%d" % (PK+2*T+h, EA+4*T+2*h, EA+4*T+2*h+1))
    a.label("L_p7_main")
    add(AC, 5, 2)()
    for k in (6, 7):
        base = CB[k][1]
        L = a.newlabel("Ltag")
        a("s_mov_b32 s47, 100000")
        if k == 7: a("s_waitcnt vmcnt(0)")
        a.label(L)
        a("v_max3_u32 v30, v%d, v%d, v%d" % (base, base+1, base+2)); a("v_max3_u32 v31, v%d, v%d, v%d" % (base+3, base+4, base+5))
        a("v_max3_u32 v30, v30, v%d, v%d" % (base+6, base+7)); a("v_max_u32 v30, v30, v31")
        a("v_cmp_eq_u32 vcc, -1, v30"); a("s_cbranch_vccz %s_x" % L)
        a(cload(k))
        a("s_waitcnt vmcnt(0)")
        a("s_sub_u32 s47, s47, 1"); a("s_cbranch_scc0 %s" % L)
        a.label(L + "_x")
        add(AC, k, 63)()
    a.stamp("p7_ready")
    a("s_cmp_lg_u32 s%d, 3" % S_WAVE); a("s_cbranch_scc1 L_p7_acc")
    for T in range(2):
        a("buffer_store_dwordx2 v[%d:%d], v%d, s[%d:%d], s61 offen" % (PK+2*T, PK+2*T+1, AC+23, R_A, R_A+3))
        a("s_add_u32 s61, s61, 18432")
    a.label("L_p7_acc")
    a("s_lshl_b32 s46, s51, 7"); a("s_add_u32 s46, s46, s60"); a("s_add_u32 s47, s46, 36864")
    for T in range(4):
        for h in range(2): a("v_cvt_pk_bf16_f32 v%d, v%d, v%d" % (R3+2*T+h, AC+4*T+2*h, AC+4*T+2*h+1))
        a("ds_write_b64 v%d, v[%d:%d] offset:%d" % (AC+20, R3+2*T, R3+2*T+1, 2304*T))
    a("s_waitcnt lgkmcnt(0)"); a("s_barrier")
    for p in range(2): a("ds_read_b128 v[%d:%d], v%d offset:%d" % (R3+8+4*p, R3+11+4*p, AC+21, 4608*p))
    for p in range(2):
        a("s_waitcnt lgkmcnt(%d)" % (1-p))
        a("buffer_store_dwordx4 v[%d:%d], v%d, s[%d:%d], s%d offen" % (R3+8+4*p, R3+11+4*p, AC+22, R_A, R_A+3, 46+p))
```

```python
import sys, os, struct, math
sys.path.insert(0, "dev")
from asmlib import Asm, build
from hazard import fix_hazards, check_waits

NAME = "sequential_preLN__sliding_block__mixer_s_mlp__prompt"
KN = NAME + "_kernel"

ACT = 2048*576*2
SW  = 576*576*2
BW  = 576*4608*2
FLAG0 = 128
F1, FS, F2, F3, F4, F5, FA, FB = 0, 256, 640, 896, 1152, 1408, 1664, 2688
TS_OFF = 0x80000
Q_OFF  = 0x90000
K_OFF  = Q_OFF + ACT
V_OFF  = K_OFF + ACT
O_OFF  = V_OFF + ACT
H_OFF  = O_OFF + ACT
T_OFF  = H_OFF + ACT
X1_OFF = T_OFF + ACT
SH_OFF = X1_OFF + ACT
SX_OFF = SH_OFF + 98304
WO_S   = SX_OFF + 98304
W1_S   = WO_S + SW
W2_S   = W1_S + SW
W3_S   = W2_S + SW
W4_S   = W3_S + BW
PART   = W4_S + BW
WS_END = PART + 32*9*8*8192
FP_OFF = 0x7F000
MARK_N = WO_S - O_OFF
MARK_W = 75776
HPSZ   = 147456

WSOFF = 0
MK1 = int(os.environ.get('MK1', 12))
THR = int(os.environ.get('THR', 0))
NW3 = int(os.environ.get('NW3', 0))
ABL = os.environ.get('ABL', '').split(',')
CLK = 's_memtime'
def f32(x): return struct.unpack("<I", struct.pack("<f", x))[0]
def magic(d): return (1 << 32)//d + 1

S_X, S_WQKV, S_WO = 4, 6, 8
S_W1, S_W2, S_W3, S_W4 = 12, 14, 16, 18
S_OUT, S_DBG, S_WS = 20, 22, 24
R_WS, R_A, R_B = 28, 32, 36
S_WAVE, S_XCD, S_SLOT, S_NONCE = 40, 41, 42, 43
S_ONES = 44
V_LANE, V_R, V_G, V_L16 = 1, 2, 3, 4

class G(Asm):
    def __init__(s, stop=99, stamps=False):
        super().__init__()
        s.stop = stop; s.stamps = stamps; s.stubs = []
    def srd(a, d, p, size, add=0):
        if add >= 0:
            a("s_add_u32 s%d, s%d, %s" % (d, p, add)); a("s_addc_u32 s%d, s%d, 0" % (d+1, p+1))
        else:
            a("s_sub_u32 s%d, s%d, %d" % (d, p, -add)); a("s_subb_u32 s%d, s%d, 0" % (d+1, p+1))
        a("s_mov_b32 s%d, %d" % (d+2, size)); a("s_mov_b32 s%d, 0x20000" % (d+3))
    def srd_s(a, d, p, size, sreg):
        a("s_add_u32 s%d, s%d, s%d" % (d, p, sreg)); a("s_addc_u32 s%d, s%d, 0" % (d+1, p+1))
        a("s_mov_b32 s%d, %d" % (d+2, size)); a("s_mov_b32 s%d, 0x20000" % (d+3))
    def sdiv(a, q, r, x, d):
        a("s_mul_hi_u32 s%d, s%d, %d" % (q, x, magic(d)))
        if r is not None:
            a("s_mul_i32 s%d, s%d, %d" % (r, q, d)); a("s_sub_u32 s%d, s%d, s%d" % (r, x, r))
    def stamp(a, name):
        if not a.stamps or name not in a.stamps: return
        k = a.stamps.index(name)
        a("%s s[98:99]" % CLK); a("s_waitcnt lgkmcnt(0)"); a("s_mov_b32 s%d, s98" % (80+k))
    def stamp_out(a):
        if not a.stamps: return
        a.stamp("end")
        a("s_lshl_b32 s98, s2, 2"); a("s_add_u32 s98, s98, s%d" % S_WAVE); a("s_lshl_b32 s98, s98, 6"); a("s_add_u32 s98, s98, %d" % TS_OFF)
        a("v_mov_b32 v255, 0")
        for k in range(16):
            a("v_mov_b32 v254, s%d" % (80+k))
            a("buffer_store_dword v254, v255, s[%d:%d], s98 offen offset:%d" % (R_WS, R_WS+3, 4*k))
            a("s_nop 1")
    def xg_reduce(a, v, t, op="v_add_f32"):
        for sw in ("v_permlane32_swap_b32", "v_permlane16_swap_b32"):
            a("v_mov_b32 v%d, v%d" % (t, v)); a("%s v%d, v%d" % (sw, v, t)); a("%s v%d, v%d, v%d" % (op, v, v, t))
    def get_nonce(a, vt):
        L = a.newlabel("Lnon")
        a("s_mov_b32 s46, 200000"); a("v_mov_b32 v%d, 0" % (vt+2))
        a.label(L)
        a("global_load_dwordx2 v[%d:%d], v%d, s[%d:%d] sc1" % (vt, vt+1, vt+2, S_DBG, S_DBG+1))
        a("s_waitcnt vmcnt(0)")
        a("v_readfirstlane_b32 s47, v%d" % (vt+1)); a("v_readfirstlane_b32 s%d, v%d" % (S_NONCE, vt))
        a("s_sub_u32 s46, s46, 1"); a("s_cbranch_scc1 %s_x" % L)
        a("s_cmp_eq_u32 s47, 0"); a("s_cbranch_scc1 %s" % L)
        a.label(L + "_x")
    def set_flag(a, sidx, vt):
        a("s_lshl_b32 s%d, s%d, 7" % (sidx, sidx)); a("s_add_u32 s%d, s%d, %d" % (sidx, sidx, FLAG0))
        a("v_mov_b32 v%d, s%d" % (vt, S_NONCE)); a("v_mov_b32 v%d, 0" % (vt+1))
        a("s_mov_b64 exec, 1")
        a("buffer_store_dword v%d, v%d, s[%d:%d], s%d offen sc1" % (vt, vt+1, R_WS, R_WS+3, sidx))
        a("s_mov_b64 exec, -1")
    def set_mark(a, vt):
        a("s_lshl_b32 s46, s2, 2"); a("s_add_u32 s46, s46, %d" % (FP_OFF - 4*224))
        a("v_mov_b32 v%d, s%d" % (vt, S_NONCE)); a("v_mov_b32 v%d, 0" % (vt+1))
        a("s_mov_b64 exec, 1")
        a("buffer_store_dword v%d, v%d, s[%d:%d], s46 offen sc1" % (vt, vt+1, R_WS, R_WS+3))
        a("s_mov_b64 exec, -1")
    def poll(a, vidx, vt, sleep0=6, sleep=2):
        L = a.newlabel("Lpoll")
        a("v_lshlrev_b32 v%d, 7, v%d" % (vidx, vidx))
        a("s_mov_b32 s46, 100000")
        if sleep0: a("s_sleep %d" % sleep0)
        a.label(L)
        a("buffer_load_dword v%d, v%d, s[%d:%d], 0 offen offset:%d sc1" % (vt, vidx, R_WS, R_WS+3, FLAG0))
        a("s_waitcnt vmcnt(0)")
        a("v_cmp_ne_u32 vcc, s%d, v%d" % (S_NONCE, vt))
        a("s_cbranch_vccz %s_x" % L)
        a("s_sleep %d" % sleep)
        a("s_sub_u32 s46, s46, 1"); a("s_cbranch_scc0 %s" % L)
        a.label(L + "_x")

def mfma(d, A, B, C=None, ta="v", tb="v", td="v"):
    c = "0" if C is None else "%s[%d:%d]" % (td, C, C+3)
    return "v_mfma_f32_16x16x32_bf16 %s[%d:%d], %s[%d:%d], %s[%d:%d], %s" % (td, d, d+3, ta, A, A+3, tb, B, B+3, c)

def interleave(a, main, fill, start=0):
    n = len(main) - start; k = 0
    for i, m in enumerate(main):
        a(m)
        if i >= start:
            upto = (len(fill)*(i-start+1) + n - 1)//n
            while k < upto: a(fill[k]); k += 1

def prologue(a):
    a("s_cmp_ge_u32 s2, 256"); a("s_cbranch_scc1 L_end")
    a("s_load_dwordx4 s[4:7], s[0:1], 0")
    a("s_load_dwordx2 s[24:25], s[0:1], 80")
    a("s_load_dwordx2 s[8:9], s[0:1], 16")
    a("s_load_dwordx8 s[12:19], s[0:1], 32")
    a("s_load_dwordx4 s[20:23], s[0:1], 64")
    a("v_and_b32 v%d, 63, v0" % V_LANE)
    a("v_lshrrev_b32 v5, 6, v0")
    a("v_and_b32 v%d, 15, v0" % V_R)
    a("v_readfirstlane_b32 s%d, v5" % S_WAVE)
    a("v_lshrrev_b32 v%d, 4, v%d" % (V_G, V_LANE))
    a("v_lshlrev_b32 v%d, 4, v%d" % (V_L16, V_LANE))
    a("s_and_b32 s%d, s2, 7" % S_XCD); a("s_lshr_b32 s%d, s2, 3" % S_SLOT)
    a("s_mov_b32 s%d, 0x3f803f80" % S_ONES)
    if "nopf" not in ABL:
        a("s_getpc_b64 s[46:47]")
        a.label("L_pc")
        a("s_mul_i32 s48, s%d, %d" % (S_SLOT, 20*128)); a("v_lshl_add_u32 v5, v0, 7, s48")
        a("v_cmp_gt_u32 vcc, 20, v0"); a("s_mov_b32 s48, L_last-L_pc"); a("v_cmp_gt_u32 s[48:49], s48, v5"); a("s_and_b64 vcc, vcc, s[48:49]")
        a("s_and_saveexec_b64 s[48:49], vcc"); a("s_cbranch_execz L_pcd")
        a("global_load_dword v253, v5, s[46:47]")
        a.label("L_pcd")
        a("s_mov_b64 exec, -1")
    if a.stamps:
        for k in range(16): a("s_mov_b32 s%d, 0" % (80+k))
        a.stamp("start")

def publish_nonce(a):
    L = a.newlabel("Lpn")
    a("s_xor_b32 s46, s2, 224"); a("s_or_b32 s46, s46, s%d" % S_WAVE); a("s_cmp_lg_u32 s46, 0"); a("s_cbranch_scc1 %s" % L)
    a("v_mov_b32 v252, 0")
    a("buffer_load_dword v250, v252, s[%d:%d], 0 offen sc1" % (R_WS, R_WS+3))
    a("s_mov_b32 s46, 0x9E3779B1")
    a("s_waitcnt vmcnt(0)")
    a("v_mul_lo_u32 v250, v250, s46"); a("v_add_u32 v250, 0x7F4A7C15, v250"); a("v_mov_b32 v251, 1")
    a("s_mov_b64 exec, 1")
    a("buffer_store_dword v250, v252, s[%d:%d], 0 offen sc1" % (R_WS, R_WS+3))
    a("global_store_dwordx2 v252, v[250:251], s[%d:%d] sc1" % (S_DBG, S_DBG+1))
    a("s_mov_b64 exec, -1")
    a.label(L)

def swizzle_setup(a):
    for i in range(9):
        a("v_add_u32 v40, %d, v%d" % (64*i, V_LANE))
        a("v_mul_u32_u24 v%d, 911, v40" % (10+i)); a("v_lshrrev_b32 v%d, 16, v%d" % (10+i, 10+i))
        a("v_mul_u32_u24 v41, 72, v%d" % (10+i)); a("v_sub_u32 v41, v40, v41"); a("v_lshlrev_b32 v%d, 4, v41" % (20+i))
    a("v_lshrrev_b32 v40, 2, v%d" % V_R); a("v_lshl_add_u32 v40, v%d, 3, v40" % V_G); a("v_mul_u32_u24 v40, 1152, v40")
    a("v_and_b32 v41, 3, v%d" % V_R); a("v_lshl_add_u32 v30, v41, 4, v40")
    a("s_lshr_b32 s46, s%d, 1" % S_WAVE); a("s_lshl_b32 s46, s46, 6"); a("s_and_b32 s47, s%d, 1" % S_WAVE); a("s_lshl_b32 s47, s47, 3")
    a("s_add_u32 s46, s46, s47"); a("v_add_u32 v30, s46, v30")

def sw_decode(a, su, p):
    Ln = a.newlabel("Lsw")
    D = 60+3*p
    a("s_cmp_ge_u32 s%d, 54" % su); a("s_cbranch_scc1 %s_big" % Ln)
    a.sdiv(51, 52, su, 18)
    a("s_cmp_eq_u32 s51, 1"); a("s_cselect_b32 s54, s%d, s%d" % (S_W1, S_W2)); a("s_cselect_b32 s55, s%d, s%d" % (S_W1+1, S_W2+1))
    a("s_cmp_eq_u32 s51, 0"); a("s_cselect_b32 s54, s%d, s54" % S_WO); a("s_cselect_b32 s55, s%d, s55" % (S_WO+1))
    a("s_mul_i32 s%d, s51, %d" % (D, SW)); a("s_add_u32 s%d, s%d, %d" % (D, D, WO_S))
    a("s_mul_i32 s53, s%d, 18432" % S_WAVE); a("s_add_u32 s%d, s%d, s53" % (D, D))
    a("s_mov_b32 s%d, 73728" % (D+1))
    a("s_lshl_b32 s56, s52, 5"); a("s_lshl_b32 s53, s%d, 3" % S_WAVE); a("s_add_u32 s56, s56, s53")
    a("s_mov_b32 s57, 0"); a("s_mov_b32 s59, 1152")
    a("s_cmp_lg_u32 s51, 0"); a("s_cbranch_scc1 %s_j" % Ln)
    a("s_mul_i32 s56, s52, 36"); a("s_lshl_b32 s53, s%d, 2" % S_WAVE); a("s_add_u32 s56, s56, s53"); a("s_mov_b32 s57, 16")
    a("s_cmp_lt_u32 s52, 16"); a("s_cbranch_scc1 %s_j" % Ln)
    a("s_sub_u32 s56, s52, 16"); a("s_lshl_b32 s56, s56, 2"); a("s_add_u32 s56, s56, s%d" % S_WAVE)
    a("s_mul_i32 s56, s56, 72"); a("s_add_u32 s56, s56, 16"); a("s_mov_b32 s57, 32")
    a("s_branch %s_j" % Ln)
    a.label(Ln + "_big")
    sw_big(a, su, D)
    a("s_lshl_b32 s56, s52, 5"); a("s_lshl_b32 s53, s%d, 3" % S_WAVE); a("s_add_u32 s56, s56, s53"); a("s_mov_b32 s57, 0")
    a("s_cmp_ge_u32 s51, 8"); a("s_cbranch_scc1 %s_w4" % Ln)
    a("s_mul_i32 s53, s51, 1152"); a("s_add_u32 s54, s%d, s53" % S_W3); a("s_addc_u32 s55, s%d, 0" % (S_W3+1)); a("s_mov_b32 s59, 9216")
    a("s_branch %s_j" % Ln)
    a.label(Ln + "_w4")
    a("s_sub_u32 s53, s51, 8"); a("s_mul_i32 s53, s53, %d" % SW); a("s_add_u32 s54, s%d, s53" % S_W4); a("s_addc_u32 s55, s%d, 0" % (S_W4+1)); a("s_mov_b32 s59, 1152")
    a.label(Ln + "_j")
    a("s_lshl_b32 s53, s52, 10"); a("s_add_u32 s%d, s%d, s53" % (D, D))
    a("s_add_u32 s%d, s%d, %d" % (D+2, su, FS))

def sw_big(a, su, D):
    a("s_sub_u32 s53, s%d, 54" % su); a.sdiv(51, 52, 53, 18)
    a("s_mul_i32 s%d, s51, %d" % (D, 4*9*18432)); a("s_add_u32 s%d, s%d, %d" % (D, D, W3_S))
    a("s_mul_i32 s53, s%d, %d" % (S_WAVE, 9*18432)); a("s_add_u32 s%d, s%d, s53" % (D, D))
    a("s_mov_b32 s%d, 18432" % (D+1))

def sw_issue(a, su, p, lds):
    sw_decode(a, su, p)
    a("s_mov_b32 s%d, s54" % R_A); a("s_mov_b32 s%d, s55" % (R_A+1))
    a("s_mul_i32 s%d, s59, 575" % (R_A+2)); a("s_add_u32 s%d, s%d, 1152" % (R_A+2, R_A+2)); a("s_mov_b32 s%d, 0x20000" % (R_A+3))
    a("s_mul_i32 s53, s%d, 9216" % S_WAVE); a("s_add_u32 m0, s53, %d" % lds)
    for k in range(9):
        a("v_lshrrev_b32 v40, 2, v%d" % (10+k)); a("v_mul_lo_u32 v40, v40, s57"); a("v_add3_u32 v40, v40, v%d, s56" % (10+k))
        a("v_mul_lo_u32 v40, v40, s59"); a("v_add_u32 v40, v40, v%d" % (20+k))
        a("buffer_load_dwordx4 v40, s[%d:%d], 0 offen lds" % (R_A, R_A+3))
        a("s_add_u32 m0, m0, 1024")

def sw_process(a, p, lds):
    a("v_add_u32 v31, %d, v30" % lds)
    for q in range(9):
        for hh in range(2):
            a("ds_read_b64_tr_b16 v[%d:%d], v31 offset:%d" % (44+4*q+2*hh, 45+4*q+2*hh, hh*4608 + 128*q))
    a("s_mov_b32 s53, s%d" % (60+3*p))
    for q in range(9):
        a("s_waitcnt lgkmcnt(%d)" % min(15, 16-2*q))
        a("buffer_store_dwordx4 v[%d:%d], v%d, s[%d:%d], s53 offen sc1" % (44+4*q, 47+4*q, V_L16, R_WS, R_WS+3))
        a("s_add_u32 s53, s53, s%d" % (61+3*p))

def sw_flags(a, ps, mark=False):
    L = a.newlabel("Lswf")
    a("s_cmp_lg_u32 s%d, 0" % S_WAVE); a("s_cbranch_scc1 %s" % L)
    for p in ps: a.set_flag(62+3*p, 40)
    if mark: a.set_mark(40)
    a.label(L)

MK, R_M = 220, 76

def mark_setup(a):
    a.srd(R_M, S_WS, MARK_N, O_OFF)
    for r in range(4): a("v_mov_b32 v%d, -1" % (MK+r))
    a("s_sub_u32 s74, s2, 224"); a("s_lshl_b32 s74, s74, 2"); a("s_add_u32 s74, s74, s%d" % S_WAVE); a("s_mul_i32 s74, s74, %d" % MARK_W)

def mark_fill(a, n):
    L = a.newlabel("Lmk")
    a("s_mov_b32 s75, %d" % n)
    a.label(L)
    a(mark_store(74, 0)); a(mark_store(74, 1024)); a("s_add_u32 s74, s74, 2048"); a("s_waitcnt vmcnt(40)")
    a("s_sub_u32 s75, s75, 1"); a("s_cmp_lg_u32 s75, 0"); a("s_cbranch_scc1 %s" % L)

def mark_store(s, off): return "buffer_store_dwordx4 v[%d:%d], v%d, s[%d:%d], s%d offen offset:%d sc1" % (MK, MK+3, V_L16, R_M, R_M+3, s, off)

def touch_inputs(a, nwg):
    nx, nw = -(-18432//(2*nwg)), -(-15552//(2*nwg))
    a("s_mul_i32 s46, s50, 14"); a("s_add_u32 s46, s46, s51"); a("s_lshl_b32 s46, s46, 1"); a("s_add_u32 s46, s46, s53")
    a("v_lshlrev_b32 v252, 7, v%d" % V_LANE)
    L = a.newlabel("Lti")
    a("s_cmp_lg_u32 s52, 0"); a("s_cbranch_scc1 %s_w" % L)
    a("s_mul_i32 s46, s46, %d" % (128*nx)); a("s_add_u32 s46, s46, 4096"); a("s_mov_b64 exec, 0x%x" % ((1 << nx) - 1) if nx <= 32 else "s_bfm_b64 exec, %d, 0" % nx)
    a("buffer_load_dword v253, v252, s[%d:%d], s46 offen" % (R_A, R_A+3))
    a("s_branch %s" % L)
    a.label(L + "_w")
    a("s_mul_i32 s46, s46, %d" % (128*nw)); a("s_add_u32 s46, s46, 4096"); a("s_bfm_b64 exec, %d, 0" % nw)
    a("buffer_load_dword v253, v252, s[%d:%d], s46 offen" % (R_B, R_B+3))
    a.label(L)
    a("s_mov_b64 exec, -1")

def phase1(a):
    QS = 18**-0.5 * math.log2(math.e)
    a("s_cmp_ge_u32 s%d, 28" % S_SLOT); a("s_cbranch_scc1 L_p1_helper")
    a.sdiv(46, 47, S_SLOT, 7)
    a("s_lshr_b32 s48, s%d, 1" % S_XCD); a("s_lshl_b32 s48, s48, 2"); a("s_add_u32 s50, s48, s46")
    a("s_and_b32 s48, s%d, 1" % S_XCD); a("s_mul_i32 s48, s48, 7"); a("s_add_u32 s51, s48, s47")
    a("s_lshr_b32 s52, s%d, 1" % S_WAVE); a("s_and_b32 s53, s%d, 1" % S_WAVE)
    a("v_lshrrev_b32 v20, 3, v%d" % V_LANE); a("v_and_b32 v21, 7, v%d" % V_LANE)
    a("v_xor_b32 v22, v21, v%d" % V_G); a("v_mul_u32_u24 v20, 1152, v20")
    a("v_lshl_add_u32 v10, v22, 4, v20"); a("v_xor_b32 v22, 4, v22"); a("v_lshl_add_u32 v11, v22, 4, v20")
    a("v_add_u32 v12, %d, v10" % (16*1152 - 2048 + 4096)); a("v_add_u32 v13, %d, v11" % (24*1152 - 3072 + 4096))
    a("v_add_u32 v11, %d, v11" % (8*1152 - 1024 + 4096)); a("v_add_u32 v10, 4096, v10")
    a("v_lshrrev_b32 v20, 1, v%d" % V_R); a("v_xor_b32 v20, v20, v%d" % V_G); a("v_and_b32 v21, 1, v%d" % V_LANE)
    a("v_lshl_add_u32 v21, v20, 1, v21"); a("v_mul_u32_u24 v22, 3456, v%d" % V_G)
    a("v_lshl_add_u32 v14, v21, 4, v22"); a("v_xor_b32 v21, 8, v21"); a("v_lshl_add_u32 v16, v21, 4, v22")
    a("v_add_u32 v15, %d, v14" % (4*3456 - 1024 + 4096)); a("v_add_u32 v17, %d, v16" % (12*3456 - 3072 + 4096))
    a("v_add_u32 v16, %d, v16" % (8*3456 - 2048 + 4096)); a("v_add_u32 v14, 4096, v14")
    a("s_lshl_b32 s54, s50, 2"); a("s_add_u32 s54, s54, s%d" % S_WAVE); a("s_mul_i32 s54, s54, %d" % (32*1152))
    a("s_mul_i32 s55, s%d, %d" % (S_WAVE, 16*3456)); a("s_lshl_b32 s46, s51, 8"); a("s_add_u32 s55, s55, s46")
    a("s_lshl_b32 s56, s%d, 12" % S_WAVE)
    a("s_waitcnt lgkmcnt(0)")
    if WSOFF: a("s_add_u32 s24, s24, %d" % WSOFF); a("s_addc_u32 s25, s25, 0")
    a.srd(R_A, S_X, ACT + 4096, -4096); a.srd(R_B, S_WQKV, 576*3456 + 4096, -4096)
    a.sdiv(46, 47, S_SLOT, 7)
    a("s_and_b32 s48, s%d, 1" % S_XCD); a("s_add_u32 s46, s46, s48"); a("s_lshl_b32 s46, s46, 1"); a("s_add_u32 s46, s46, s47")
    a("s_bfe_u32 s47, s%d, 0x10001" % S_XCD); a("s_add_u32 s46, s46, s47"); a("s_and_b32 s47, s%d, 4" % S_XCD); a("s_lshl_b32 s47, s47, 1"); a("s_add_u32 s46, s46, s47")
    a.sdiv(47, 67, 46, 9)
    if "p1norot" in ABL: a("s_mov_b32 s67, 0")
    def dma(sbuf):
        X = ["buffer_load_dwordx4 v%d, s[%d:%d], s68 offen offset:%d lds" % (10+j, R_A, R_A+3, 1024*j) for j in range(4)]
        W = ["buffer_load_dwordx4 v%d, s[%d:%d], s69 offen offset:%d lds" % (14+j, R_B, R_B+3, 1024*j) for j in range(4)]
        X[0] = "s_mov_b32 m0, s%d\ns_lshl_b32 s68, s67, 7\ns_add_u32 s68, s68, s54\n" % sbuf + X[0]
        X[1] = "s_mul_i32 s69, s67, %d\ns_add_u32 s69, s69, s55\n" % (64*3456) + X[1]
        X[2] = "s_add_u32 s67, s67, 1\ns_cmp_eq_u32 s67, 9\ns_cselect_b32 s67, 0, s67\n" + X[2]
        W[0] = "s_add_u32 m0, s%d, 16384\ns_nop 0\n" % sbuf + W[0]
        return X + W
    for x in dma(56): a(x)
    a("s_add_u32 s56, s56, 32768")
    if "p1touch" in ABL: touch_inputs(a, 224)
    a.stamp("p1_issue")
    a.srd(R_WS, S_WS, WS_END)
    a("v_lshrrev_b32 v30, 2, v%d" % V_R); a("v_and_b32 v31, 3, v%d" % V_R)
    a("v_lshl_add_u32 v32, v%d, 3, v30" % V_G); a("v_lshlrev_b32 v32, 8, v32"); a("v_lshl_add_u32 v32, v31, 3, v32")
    a("v_add_u32 v32, 16384, v32")
    a("v_and_b32 v33, 1, v%d" % V_G); a("v_lshl_add_u32 v33, v33, 2, v30")
    a("s_lshl_b32 s46, s53, 2"); a("s_lshl_b32 s47, s52, 1"); a("s_or_b32 s57, s46, s47")
    for t in range(4):
        a("s_xor_b32 s46, s57, %d" % t); a("v_xor_b32 v34, s46, v33"); a("v_lshl_add_u32 v%d, v34, 5, v32" % (20+t))
    a("v_lshrrev_b32 v30, 1, v%d" % V_R); a("v_xor_b32 v30, v30, v%d" % V_G); a("v_lshlrev_b32 v31, 7, v%d" % V_R)
    a("s_lshl_b32 s46, s52, 13"); a("s_lshl_b32 s47, s53, 12"); a("s_add_u32 s46, s46, s47"); a("s_xor_b32 s47, s46, 4096")
    a("v_lshl_add_u32 v32, v30, 4, v31"); a("v_xor_b32 v33, 64, v32")
    a("v_add_u32 v24, s46, v32"); a("v_add_u32 v25, s47, v32"); a("v_add_u32 v26, s46, v33"); a("v_add_u32 v27, s47, v33")
    ACC, CS, ST, ONE = 48, 112, 120, 140
    XB = (144, 160); WB = (176, 192)
    WA, XA = 28, 32
    for r in range(ACC, ONE): a("v_mov_b32 v%d, 0" % r)
    for r in range(4): a("v_mov_b32 v%d, s%d" % (ONE+r, S_ONES))
    def addr(sbase):
        return ["v_add_u32 v%d, %s, v%d" % (WA+i, sbase, 20+i) for i in range(8)]
    def reads(jj):
        o = []
        for T in range(4):
            o.append("ds_read_b128 v[%d:%d], v%d offset:%d" % (XB[jj]+4*T, XB[jj]+4*T+3, XA+2*jj+(T>>1), 2048*(T&1)))
            for hh in range(2):
                o.append("ds_read_b64_tr_b16 v[%d:%d], v%d offset:%d" % (WB[jj]+4*T+2*hh, WB[jj]+4*T+2*hh+1, WA+T, jj*8192+hh*1024))
        return o
    def mm(jj, swap):
        o = []
        for t in range(4):
            for T in range(4):
                d = ACC+16*t+4*T
                o.append(mfma(d, XB[jj]+4*T, WB[jj]+4*t, d) if swap else mfma(d, WB[jj]+4*t, XB[jj]+4*T, d))
            if t < 2:
                d = CS+4*t
                o.append(mfma(d, ONE, WB[jj]+4*t, d) if swap else mfma(d, WB[jj]+4*t, ONE, d))
            x = XB[jj]+4*(t>>1); d = ST+4*t
            o.append(mfma(d, x if t & 1 else ONE, x, d))
        return o
    for x in addr("0"): a(x)
    a("s_lshl_b32 s60, s51, 1"); a("s_add_u32 s60, s60, s53")
    a("s_lshl_b32 s46, s50, 1"); a("s_add_u32 s46, s46, s52"); a("s_lshl_b32 s46, s46, 1"); a("s_add_u32 s47, s46, s53")
    a("s_xor_b32 s46, s47, 1"); a("s_mul_i32 s65, s47, 2304"); a("s_mul_i32 s66, s46, 2304"); a("s_mov_b32 s64, %d" % HPSZ)
    a("s_mov_b32 s58, 0"); a("s_mov_b32 s59, 0")
    a("s_cmp_ge_u32 s51, 9"); a("s_cbranch_scc1 L_p1_v0")
    for swap in (0, 1):
        L = "L_p1_v" if swap else "L_p1_qk"
        a.label(L + "0")
        if not swap:
            a("s_mov_b32 s62, %d" % Q_OFF); a("s_cmp_ge_u32 s60, 9"); a("s_cselect_b32 s61, 144, 0"); a("s_cselect_b32 s62, %d, s62" % K_OFF)
            a("s_cselect_b32 s73, 1.0, %d" % f32(QS))
            a("s_lshl_b32 s63, s60, 4"); a("s_sub_u32 s63, s63, s61")
            for t in range(4):
                a("s_lshl_b32 s46, s52, 1"); a("s_xor_b32 s46, s46, %d" % t); a("s_lshl_b32 s46, s46, 2"); a("s_add_u32 s46, s46, s63")
                a("v_add_u32 v212, s46, v%d" % V_G)
                a("v_mul_u32_u24 v213, 7282, v212"); a("v_lshrrev_b32 v213, 16, v213")
                a("v_mul_u32_u24 v214, 9, v213"); a("v_sub_u32 v212, v212, v214")
                a("v_cmp_lt_u32 vcc, 4, v212"); a("v_subb_co_u32 v214, vcc, v212, 0, vcc")
                a("v_cmp_eq_u32 vcc, 4, v212"); a("v_cndmask_b32 v214, v214, 8, vcc")
                a("v_mul_lo_u32 v213, v213, s64"); a("v_lshl_add_u32 v213, v214, 7, v213"); a("v_lshl_add_u32 v%d, v%d, 3, v213" % (208+t, V_R))
        else:
            a("s_mov_b32 s62, %d" % V_OFF); a("s_sub_u32 s63, s60, 18"); a("s_lshl_b32 s63, s63, 6")
            for t in range(4):
                a("s_lshl_b32 s46, s52, 1"); a("s_xor_b32 s46, s46, %d" % t); a("s_lshl_b32 s46, s46, 4"); a("s_add_u32 s46, s46, s63")
                a("v_add_u32 v212, s46, v%d" % V_R)
                a("v_mul_u32_u24 v213, 1821, v212"); a("v_lshrrev_b32 v213, 16, v213")
                a("v_mul_u32_u24 v214, 36, v213"); a("v_sub_u32 v212, v212, v214")
                a("v_lshl_add_u32 v214, v%d, 4, v212" % V_G)
                a("v_add_u32 v215, 44, v214")
                a("v_cmp_lt_u32 vcc, 19, v212"); a("v_cndmask_b32 v214, v214, v215, vcc")
                a("v_lshl_add_u32 v215, v212, 2, v%d" % V_G); a("v_add_u32 v215, 64, v215")
                a("v_lshrrev_b32 v212, 2, v212"); a("v_cmp_eq_u32 vcc, 4, v212"); a("v_cndmask_b32 v214, v214, v215, vcc")
                a("v_mul_lo_u32 v213, v213, s64"); a("v_lshl_add_u32 v%d, v214, 4, v213" % (208+t))
        a("s_add_u32 s65, s65, s62"); a("s_add_u32 s66, s66, s62")
        for x in dma(56): a(x)
        a("s_add_u32 s56, s56, 32768")
        a("s_waitcnt vmcnt(8)"); a("s_barrier")
        a.stamp("p1_first")
        for x in reads(0): a(x)
        a.label(L)
        a("s_cmp_ge_u32 s58, 7"); a("s_cbranch_scc1 %s_n" % L)
        for dm in (1, 0):
            d = dma(56) if (dm and "p1nodma" not in ABL) else []
            m = mm(0, swap)
            a("s_waitcnt lgkmcnt(0)")
            interleave(a, m[:14], reads(1))
            interleave(a, m[14:], d[:4])
            a("s_add_u32 s58, s58, 1")
            a("s_add_u32 s59, s59, 32768"); a("s_cmp_eq_u32 s59, 163840"); a("s_cselect_b32 s59, 0, s59")
            a("s_waitcnt vmcnt(%d) lgkmcnt(0)" % (4 if dm else 0))
            a("s_barrier")
            m = mm(1, swap); ad = addr("s59")
            interleave(a, m[:3], ad[4:6] + ad[0:4])
            interleave(a, m[3:15], reads(0) + ad[6:8])
            interleave(a, m[15:], d[4:])
            if dm:
                a("s_add_u32 s56, s56, 32768"); a("s_cmp_ge_u32 s56, 163840"); a("s_cselect_b32 s46, 163840, 0"); a("s_sub_u32 s56, s56, s46")
                a("s_branch %s" % L)
                a.label(L + "_n")
            else:
                a("s_cmp_lt_u32 s58, 9"); a("s_cbranch_scc1 %s_n" % L)
        a.stamp("p1_loop")
        a("s_waitcnt lgkmcnt(0)")
        a("v_and_b32 v40, 1, v%d" % V_R); a("v_cmp_eq_u32 s[74:75], 1, v40")
        a("v_and_b32 v40, 2, v%d" % V_R); a("v_cmp_eq_u32 s[76:77], 2, v40")
        a("v_lshrrev_b32 v40, 2, v%d" % V_R); a("v_cmp_eq_u32 s[78:79], v40, v%d" % V_G)
        a("s_mov_b32 s46, %d" % f32(1.0/576)); a("s_mov_b32 s47, %d" % f32(1e-5))
        for T in range(2):
            s_, q_ = ST+8*T, ST+8*T+4
            a("v_cndmask_b32 v%d, v%d, v%d, s[74:75]" % (q_, q_, q_+1)); a("v_cndmask_b32 v%d, v%d, v%d, s[74:75]" % (q_+2, q_+2, q_+3))
            a("v_mul_f32 v%d, s46, v%d" % (s_, s_))
            a("v_cndmask_b32 v%d, v%d, v%d, s[76:77]" % (q_, q_, q_+2))
            a("v_mul_f32 v42, v%d, v%d" % (s_, s_))
            a("v_fma_f32 v%d, v%d, s46, -v42" % (q_, q_)); a("v_max_f32 v%d, 0, v%d" % (q_, q_)); a("v_add_f32 v%d, s47, v%d" % (q_, q_))
            a("v_rsq_f32 v%d, v%d" % (36+2*T, q_)); a("v_mul_f32 v%d, v%d, -v%d" % (37+2*T, 36+2*T, s_))
        a("s_lshl_b32 s46, s52, 9"); a("s_lshl_b32 s47, s53, 8"); a("s_add_u32 s46, s46, s47")
        a("v_lshl_add_u32 v40, v%d, 3, s46" % V_R)
        a("s_mov_b64 exec, s[78:79]")
        a("ds_write_b64 v40, v[36:37]"); a("ds_write_b64 v40, v[38:39] offset:128")
        a("s_mov_b64 exec, -1")
        a("s_lshl_b32 s47, s57, 6")
        if not swap:
            a("v_lshl_add_u32 v41, v%d, 4, s47" % V_G)
            a("ds_write_b128 v41, v[%d:%d] offset:1024" % (CS, CS+3)); a("ds_write_b128 v41, v[%d:%d] offset:1088" % (CS+4, CS+7))
        else:
            a("v_lshl_add_u32 v41, v%d, 2, s47" % V_R)
            a("ds_write_b32 v41, v%d offset:1024" % CS); a("ds_write_b32 v41, v%d offset:1088" % (CS+4))
        a("s_waitcnt lgkmcnt(0)"); a("s_barrier")
        Ls = L + "_s"
        a("s_cmp_ge_u32 s60, 27"); a("s_cbranch_scc1 %s" % Ls)
        a("v_xor_b32 v42, 256, v40"); a("v_xor_b32 v43, 128, v41")
        if not swap:
            RS, CC = 144, 160
            a("ds_read_b64 v[%d:%d], v40" % (RS, RS+1)); a("ds_read_b64 v[%d:%d], v40 offset:128" % (RS+2, RS+3))
            a("ds_read_b64 v[%d:%d], v42" % (RS+4, RS+5)); a("ds_read_b64 v[%d:%d], v42 offset:128" % (RS+6, RS+7))
            for t in range(4):
                a("ds_read_b128 v[%d:%d], v%d offset:%d" % (CC+4*t, CC+4*t+3, 41 if t < 2 else 43, 1024+64*(t&1)))
            a("s_waitcnt lgkmcnt(0)")
            for T in range(4): a("v_pk_mul_f32 v[%d:%d], v[%d:%d], s[72:73] op_sel:[0,1] op_sel_hi:[1,1]" % (RS+2*T, RS+2*T+1, RS+2*T, RS+2*T+1))
            for t in range(4):
                for T in range(4):
                    d = ACC+16*t+4*T
                    for h in range(2):
                        a("v_pk_mul_f32 v[216:217], v[%d:%d], v[%d:%d] op_sel:[0,1] op_sel_hi:[1,1]" % (CC+4*t+2*h, CC+4*t+2*h+1, RS+2*T, RS+2*T+1))
                        a("v_pk_fma_f32 v[%d:%d], v[%d:%d], v[%d:%d], v[216:217] op_sel_hi:[1,0,1]" % (d+2*h, d+2*h+1, d+2*h, d+2*h+1, RS+2*T, RS+2*T+1))
                    a("v_cvt_pk_bf16_f32 v%d, v%d, v%d" % (d, d, d+1)); a("v_cvt_pk_bf16_f32 v%d, v%d, v%d" % (d+1, d+2, d+3))
                    a("buffer_store_dwordx2 v[%d:%d], v%d, s[%d:%d], s%d offen offset:%d sc1" % (d, d+1, 208+t, R_WS, R_WS+3, 65+(T>>1), 1152*(T&1)))
        else:
            RS, CC = 144, 176
            a("v_lshl_add_u32 v40, v%d, 5, s46" % V_G); a("v_xor_b32 v42, 256, v40")
            for T in range(4):
                for h in range(2):
                    a("ds_read_b128 v[%d:%d], v%d offset:%d" % (RS+8*T+4*h, RS+8*T+4*h+3, 40 if T < 2 else 42, 128*(T&1)+16*h))
            for t in range(4):
                a("ds_read_b32 v%d, v%d offset:%d" % (CC+t, 41 if t < 2 else 43, 1024+64*(t&1)))
            a("s_waitcnt lgkmcnt(0)")
            for t in range(4):
                for T in range(4):
                    d = ACC+16*t+4*T
                    for i in range(4):
                        a("v_mul_f32 v%d, v%d, v%d" % (216+i, RS+8*T+2*i+1, CC+t))
                    for i in range(4):
                        a("v_fma_f32 v%d, v%d, v%d, v%d" % (d+i, d+i, RS+8*T+2*i, 216+i))
                    e = ACC+16*t+8*(T>>1)+2*(T&1)
                    a("v_cvt_pk_bf16_f32 v%d, v%d, v%d" % (e, d, d+1)); a("v_cvt_pk_bf16_f32 v%d, v%d, v%d" % (e+1, d+2, d+3))
                    if T & 1:
                        a("buffer_store_dwordx4 v[%d:%d], v%d, s[%d:%d], s%d offen sc1" % (e-2, e+1, 208+t, R_WS, R_WS+3, 65+(T>>1)))
        a.label(Ls)
        if not swap: a("s_branch L_p1_pub")
    a.label("L_p1_pub")
    a.stamp("p1_stores")
    L = a.newlabel("Lp1f")
    a("s_cmp_lg_u32 s%d, 0" % S_WAVE); a("s_cbranch_scc1 %s_a" % L)
    a.get_nonce(36)
    a.label(L + "_a")
    a("s_waitcnt vmcnt(0)"); a("s_barrier")
    a("s_cmp_lg_u32 s%d, 0" % S_WAVE); a("s_cbranch_scc1 L_p1_done")
    a("s_lshl_b32 s46, s50, 4"); a("s_add_u32 s46, s46, s51"); a("s_add_u32 s46, s46, %d" % F1)
    a.set_flag(46, 36)
    a("s_branch L_p1_done")
    a.label("L_p1_helper")
    swizzle_setup(a)
    a("s_lshl_b32 s48, s%d, 2" % S_XCD); a("s_add_u32 s48, s48, s%d" % S_SLOT); a("s_sub_u32 s48, s48, 28")
    a("s_waitcnt lgkmcnt(0)")
    if WSOFF: a("s_add_u32 s24, s24, %d" % WSOFF); a("s_addc_u32 s25, s25, 0")
    a.srd(R_WS, S_WS, WS_END)
    publish_nonce(a)
    a("s_add_u32 s49, s48, 32"); a("s_cmp_lt_u32 s49, 54"); a("s_cselect_b32 s49, s49, s48")
    B = 36864
    L = a.newlabel("Lhn"); a("s_cmp_lg_u32 s%d, 0" % S_WAVE); a("s_cbranch_scc1 %s" % L); a.get_nonce(36); a.label(L)
    sw_issue(a, 48, 0, 0); sw_issue(a, 49, 1, B)
    mark_setup(a)
    if MK1: mark_fill(a, MK1)
    a("s_waitcnt vmcnt(0)"); a("s_barrier")
    sw_process(a, 0, 0); sw_process(a, 1, B)
    a("s_waitcnt vmcnt(0)"); a("s_barrier")
    sw_flags(a, (0, 1))
    if MK1 < 37: mark_fill(a, 37 - MK1)
    a("s_waitcnt vmcnt(0)"); a("s_barrier")
    sw_flags(a, (), mark=True)
    a.label("L_p1_done")
    a.stamp("p1_done")

def generate(stop=99, stamps=False):
    a = G(stop, stamps)
    prologue(a)
    phase1(a)
    from phases import phase2, phase345, phase6
    if stop >= 2: phase2(a)
    if stop >= 3: phase345(a)
    if stop >= 6: phase6(a)
    a.label("L_fin")
    a.stamp_out()
    a.label("L_end")
    a("s_endpgm")
    for x in a.stubs: a(x)
    a.label("L_last")
    body, nops = fix_hazards(a.lines)
    return body, nops

HEADER = """; Fused transformer block (LN, QKV, sliding-window attention, Wo, shift-MLP, channel MLP) as one persistent kernel.
; 256 workgroups of 4 waves, one per CU; phases hand data over through d_ws with write-through stores and flags.
; @launch grid=(256,1,1) block=(256,1,1) lds=163840
.amdgcn_target "amdgcn-amd-amdhsa--gfx950"
.text
.globl %s
.p2align 8
.type %s,@function
%s:
""" % (KN, KN, KN)
FOOTER = """.section .rodata,"a"
.p2align 6
.amdhsa_kernel %s
  .amdhsa_next_free_vgpr 512
  .amdhsa_next_free_sgpr 102
  .amdhsa_accum_offset 256
  .amdhsa_group_segment_fixed_size 0
  .amdhsa_kernarg_size 88
  .amdhsa_user_sgpr_count 2
  .amdhsa_user_sgpr_kernarg_segment_ptr 1
  .amdhsa_system_sgpr_workgroup_id_x 1
.end_amdhsa_kernel
""" % KN

def main():
    import argparse
    p = argparse.ArgumentParser()
    p.add_argument("--stop", type=int, default=99); p.add_argument("--stamps", default=""); p.add_argument("--wsoff", type=int, default=0); p.add_argument("--rt", action="store_true")
    p.add_argument("-o", default="k.s")
    o = p.parse_args()
    global WSOFF, CLK
    if o.rt: CLK = 's_memrealtime'
    WSOFF = o.wsoff << 20
    st = STAMPSETS.get(o.stamps, o.stamps.split(',')) if o.stamps else None
    if st:
        st = ['start'] + list(st) + ['end']; assert len(st) <= 16
        open(o.o[:-2] + '.stamps', 'w').write(','.join(st))
    body, nops = generate(o.stop, st)
    text = HEADER + "\n".join(("" if l.endswith(":") else "  ") + l for l in body) + "\n" + FOOTER
    open(o.o, "w").write(text)
    build(o.o, o.o[:-2] + ".co", KN)
    n = sum(1 for l in body if l and not l.endswith(":"))
    print("instructions", n, "nop states added", nops)
    for nm, takes in TRACES.items():
        errs = check_waits(body, takes)
        for e in errs[:10]: print("WAIT[%s]" % nm, e)

STAMPSETS = {
 "all": "p1_first p1_loop p1_done p2_ready p2_loaded p2_done p3_ready p4_ready p5_ready p5_done p6_ready p6_x p6_a p6_b".split(),
 "p1": "p1_issue p1_first p1_loop p1_stores p1_done p2_ready p2_loaded p2_done p3_ready p4_ready p5_ready p5_done p6_ready p6_x".split(),
 "p3k": "p2_done p3_ready p3_k0 p3_k9 p3_gemm p4_ready p4_k0 p4_k9 p4_gemm p5_ready p5_k0 p5_k9 p5_gemm".split(),
 "hop": "p1_stores p1_done p2_ready p2_loaded p2_done p3_ready p3_epi p4_ready p4_epi p5_ready p5_epi p6_ready p6_x p6_b".split(),
 "p6": "p5_epi p6_ready p6_x p6_p0 p6_a p6_s0 p6_s6 p6_s7 p6_b p7_ready".split(),
 "p3": "p2_done p3_dma p3_drain p3_ready p3_gemm p3_epi p4_dma p4_drain p4_ready p4_gemm p4_epi p5_drain p5_ready p5_gemm".split(),
}
TRACES = {"w012": {"L_p7_main": True, "L_p1_qk_n": [False,True,False]}, "h3": {"L_p3_helper": True, "L_p1_qk_n": [False,True,False]}, "edge": {"L_p2_edge": True, "L_p1_qk_n": [False,True,False]}, "qk": {"L_p1_qk_n": [False,False,True,True,False]}, "v": {"L_p1_v0": True, "L_p1_v_n": [False,False,True,True,False]}, "helper": {"L_p1_helper": True}}

if __name__ == "__main__":
    sys.modules["gen"] = sys.modules["__main__"]
    main()
```

```python
from gen import *

NEG = 0xF149F2CA
SLEEP0 = dict(p2=6, p3=8, p4=0, p5=0, p6=8)
for _kv in os.environ.get('SLEEP', '').split(','):
    if _kv: SLEEP0[_kv.split('=')[0]] = int(_kv.split('=')[1])

W_LDS = 53248
AW1, AW2 = 40, 148
XT = 240
PA, PS, R_C = 216, (3, 27, 45), R_B

def pf_lds(i):
    gq, k = divmod(i, 9)
    pre = ("s_mul_i32 s58, s79, %d\ns_add_u32 s58, s58, s73\ns_add_u32 m0, s58, %d\ns_nop 0\n" % (gq, 1024*k)) if k == 0 or i == 2 else "s_add_u32 m0, m0, 1024\ns_nop 0\n"
    return pre + "buffer_load_dwordx4 v%d, s[%d:%d], s%d offen sc1 lds" % (PA+k, R_C, R_C+3, PS[gq])

def roles345(a):
    a("s_lshr_b32 s46, s%d, 3" % S_SLOT); a("s_lshl_b32 s74, s%d, 2" % S_XCD); a("s_add_u32 s74, s74, s46"); a("s_and_b32 s75, s%d, 7" % S_SLOT)
    a("s_lshl_b32 s76, s74, 2"); a("s_add_u32 s76, s76, s%d" % S_WAVE)

def phase2(a):
    KL_, VL_ = 0, 27648
    a("s_lshr_b32 s50, s%d, 1" % S_SLOT); a("s_and_b32 s51, s%d, 1" % S_SLOT); a("s_lshl_b32 s46, s%d, 1" % S_XCD); a("s_add_u32 s51, s51, s46")
    a("s_mul_i32 s52, s51, %d" % HPSZ)
    a("s_add_u32 s46, s52, %d" % K_OFF); a.srd_s(R_A, S_WS, HPSZ, 46)
    a("s_add_u32 s46, s52, %d" % V_OFF); a.srd_s(R_B, S_WS, HPSZ, 46)
    a("s_mul_i32 s46, s50, 9216"); a("s_sub_u32 s46, s46, 18432"); a("s_lshl_b32 s47, s%d, 10" % S_WAVE); a("s_add_u32 s46, s46, s47")
    a("v_add_u32 v10, s46, v%d" % V_L16)
    for i in range(1, 7): a("v_add_u32 v%d, %d, v10" % (10+i, 4096*i))
    a("s_lshl_b32 s46, s50, 3"); a("s_lshl_b32 s53, s%d, 1" % S_WAVE); a("s_add_u32 s53, s53, s46")
    a("s_mul_i32 s54, s53, 1152"); a("s_add_u32 s54, s54, s52"); a("s_add_u32 s54, s54, %d" % Q_OFF)
    a("v_lshlrev_b32 v17, 3, v%d" % V_LANE); a("v_lshlrev_b32 v18, 3, v%d" % V_R)
    a("s_mul_i32 s46, s%d, 2304" % S_WAVE)
    a("v_add_u32 v20, s46, v17")
    a("s_add_u32 s47, s46, 1024"); a("v_add_u32 v21, s47, v18")
    a("s_add_u32 s47, s46, %d" % VL_); a("v_add_u32 v22, s47, v%d" % V_L16)
    a("v_lshl_add_u32 v23, v%d, 2, v%d" % (V_R, V_G)); a("s_add_u32 s47, s47, 2048"); a("v_lshl_add_u32 v23, v23, 4, s47")
    for i in range(4):
        a("v_lshl_add_u32 v24, v%d, 2, %d" % (V_G, i)); a("v_cmp_gt_u32 s[%d:%d], v24, v%d" % (60+2*i, 61+2*i, V_R))
    a("v_cmp_eq_u32 s[68:69], 0, v%d" % V_G)
    a("v_mov_b32 v25, 0x%x" % NEG)
    a("v_and_b32 v229, 31, v%d" % V_LANE); a("v_lshlrev_b32 v229, 2, v229")
    VLA = 0
    for r in range(36): a("v_accvgpr_write_b32 a%d, s%d" % (VLA+r, S_ONES))
    roles345(a)
    a("s_mul_i32 s46, s75, 110592"); a("s_mul_i32 s47, s%d, 27648" % S_WAVE); a("s_add_u32 s70, s46, s47"); a("s_add_u32 s70, s70, %d" % WO_S)
    a("s_add_u32 s71, s70, %d" % SW); a("s_add_u32 s72, s71, %d" % SW)
    a("s_cmp_ge_u32 s75, 6"); a("s_cbranch_scc1 L_p2_hs")
    a("s_add_u32 s73, s47, %d" % W_LDS); a("s_mov_b32 s79, 9216")
    for gq in range(3): a("s_add_u32 s%d, s70, %d" % (PS[gq], 9216*gq))
    for i in range(9): a("v_add_u32 v%d, %d, v%d" % (PA+i, 1024*i, V_L16))
    a("s_mov_b32 s10, s%d" % S_WS); a("s_mov_b32 s11, s%d" % (S_WS+1)); a("s_mov_b32 s26, %d" % WS_END)
    a("s_branch L_p2_hd")
    a.label("L_p2_hs")
    a("s_mov_b32 s71, 0x70000000")
    a("s_mul_i32 s47, s%d, 9216" % S_WAVE); a("s_add_u32 s73, s47, %d" % W_LDS); a("s_mov_b32 s79, 36864")
    a("s_lshl_b32 s48, s74, 1"); a("s_add_u32 s48, s48, s75"); a("s_sub_u32 s48, s48, 6"); a("s_mul_i32 s48, s48, 3"); a("s_add_u32 s48, s48, 96")
    a("s_cmp_lt_u32 s48, 144"); a("s_cselect_b32 s10, s%d, s%d" % (S_W3, S_W4)); a("s_cselect_b32 s11, s%d, s%d" % (S_W3+1, S_W4+1))
    a("s_cselect_b32 s49, 1152, 0"); a("s_cselect_b32 s59, 0, 144"); a("s_mov_b32 s46, 1152"); a("s_cselect_b32 s78, 9216, s46")
    a("s_mov_b32 s26, %d" % BW)
    for gq in range(3):
        a("s_add_u32 s46, s48, %d" % gq); a("s_sub_u32 s46, s46, s59")
        a.sdiv(47, 56, 46, 18)
        a("s_cmp_eq_u32 s59, 0"); a("s_cselect_b32 s56, s56, s46")
        a("s_lshl_b32 s56, s56, 2"); a("s_add_u32 s56, s56, s%d" % S_WAVE); a("s_lshl_b32 s56, s56, 3"); a("s_mul_i32 s56, s56, s78")
        a("s_mul_i32 s47, s47, s49"); a("s_add_u32 s%d, s56, s47" % (PS[gq]))
    for i in range(9):
        a("v_add_u32 v24, %d, v%d" % (64*i, V_LANE)); a("v_mul_u32_u24 v26, 911, v24"); a("v_lshrrev_b32 v26, 16, v26")
        a("v_mul_u32_u24 v27, 72, v26"); a("v_sub_u32 v27, v24, v27"); a("v_mul_lo_u32 v26, v26, s78"); a("v_lshl_add_u32 v%d, v27, 4, v26" % (PA+i))
    a.label("L_p2_hd")
    a("v_mul_u32_u24 v7, 1152, v%d" % V_R); a("v_lshl_add_u32 v7, v%d, 4, v7" % V_G)
    a("s_mul_i32 s46, s76, 18432"); a("s_mul_i32 s47, s75, 192"); a("s_add_u32 s77, s46, s47")
    a("s_cmp_ge_u32 s75, 6"); a("s_cselect_b32 s77, 0x70000000, s77")
    L = a.newlabel("Lp2w")
    a("s_cmp_lg_u32 s%d, 0" % S_WAVE); a("s_cbranch_scc1 %s" % L)
    a("v_lshrrev_b32 v30, 2, v%d" % V_LANE); a("v_min_u32 v30, 2, v30"); a("v_add_u32 v30, s50, v30"); a("v_subrev_u32 v30, 2, v30"); a("v_max_i32 v30, 0, v30")
    a("v_bfe_u32 v31, v%d, 1, 1" % V_LANE); a("v_add_u32 v31, 1, v31"); a("v_cmp_gt_u32 vcc, 12, v%d" % V_LANE); a("v_cndmask_b32 v31, 0, v31, vcc")
    a("v_mul_u32_u24 v31, 576, v31"); a("v_and_b32 v32, 1, v%d" % V_LANE); a("v_mul_u32_u24 v32, 35, v32")
    a("s_mul_i32 s46, s51, 36"); a("v_add3_u32 v31, v31, v32, s46"); a("v_lshrrev_b32 v31, 7, v31")
    a("v_lshl_add_u32 v30, v30, 4, v31"); a("v_add_u32 v30, %d, v30" % F1)
    a("v_min_u32 v33, 53, v%d" % V_LANE); a("v_add_u32 v33, %d, v33" % FS)
    a.poll(33, 31, sleep0=0)
    a.poll(30, 31, sleep0=SLEEP0["p2"])
    a.label(L)
    a("s_barrier")
    a.stamp("p2_ready")
    QR = 26
    for qt in range(2):
        a("buffer_load_dwordx2 v[%d:%d], v17, s[%d:%d], s54 offen offset:%d sc1" % (QR+6*qt, QR+6*qt+1, R_WS, R_WS+3, 1152*qt))
        a("buffer_load_dwordx2 v[%d:%d], v18, s[%d:%d], s54 offen offset:%d sc1" % (QR+6*qt+2, QR+6*qt+3, R_WS, R_WS+3, 1152*qt+1024))
        a("buffer_load_dwordx2 v[%d:%d], v17, s[%d:%d], s54 offen offset:%d sc1" % (QR+6*qt+4, QR+6*qt+5, R_WS, R_WS+3, 1152*qt+512))
    a("s_lshl_b32 s46, s%d, 10" % S_WAVE)
    for R, base in ((R_A, KL_), (R_B, VL_)):
        for i in range(7):
            Ls = a.newlabel("Lp2d")
            if i == 6: a("s_cmp_eq_u32 s%d, 3" % S_WAVE); a("s_cbranch_scc1 %s" % Ls)
            a("s_add_u32 m0, s46, %d" % (base + 4096*i))
            a("buffer_load_dwordx4 v%d, s[%d:%d], 0 offen sc1 lds" % (10+i, R, R+3))
            if i == 6: a.label(Ls)
    a.srd(R_A, S_X, ACT)
    a("s_mov_b32 s%d, s10" % R_C); a("s_mov_b32 s%d, s11" % (R_C+1)); a("s_mov_b32 s%d, s26" % (R_C+2)); a("s_mov_b32 s%d, 0x20000" % (R_C+3))
    QF = 40
    a("s_waitcnt vmcnt(12)")
    for qt in range(2):
        q = QR+6*qt
        a("v_mov_b32 v%d, v%d" % (QF+4*qt, q)); a("v_mov_b32 v%d, v%d" % (QF+4*qt+1, q+1))
        a("v_cndmask_b32 v%d, 0, v%d, s[68:69]" % (QF+4*qt+2, q+2)); a("v_mov_b32 v%d, 0" % (QF+4*qt+3))
        a("v_mov_b32 v%d, v%d" % (QF+8+4*qt, q+4)); a("v_mov_b32 v%d, v%d" % (QF+8+4*qt+1, q+5))
        a("v_mov_b32 v%d, 0" % (QF+8+4*qt+2)); a("v_cndmask_b32 v%d, 0, v%d, s[68:69]" % (QF+8+4*qt+3, q+3))
    a("s_lshl_b32 s55, s50, 3"); a("s_lshl_b32 s46, s%d, 1" % S_WAVE); a("s_add_u32 s55, s55, s46"); a("s_sub_u32 s55, 16, s55")
    a("s_waitcnt vmcnt(6)"); a("s_barrier")
    a.stamp("p2_loaded")
    a("s_cmp_lt_u32 s50, 2"); a("s_cbranch_scc1 L_p2_edge")
    M, NM, CZ = 8, 56, 26
    KF = 64
    S2, P, VM = 136, 168, 184
    S1 = S2
    OM, OL, R_, OUT = 192, 200, 32, 208
    marks = "s_mov_b32 s46, %d\nbuffer_load_dword v228, v229, s[%d:%d], s46 offen sc1" % (FP_OFF, R_WS, R_WS+3)
    def prefetch():
        o = []
        for i in range(2, 27): o.append(pf_lds(i))
        for jj in range(3): o.append("buffer_load_dwordx4 v[%d:%d], v7, s[%d:%d], s77 offen offset:%d" % (XT+4*jj, XT+4*jj+3, R_A, R_A+3, 64*jj))
        for sb, ab in ((71, AW1),):
            for i in range(27):
                pre = "s_add_u32 s59, s%d, %d\n" % (sb, 1024*i) if i % 4 == 0 else ""
                o.append(pre + "buffer_load_dwordx4 a[%d:%d], v%d, s[%d:%d], s59 offen offset:%d sc1" % (ab+4*i, ab+4*i+3, V_L16, R_WS, R_WS+3, 1024*(i & 3)))
        return o
    for edge in (0, 1):
      if edge: a.label("L_p2_edge")
      pf = prefetch()
      def take(n):
          o = pf[:n]; del pf[:n]; return o
      for head in range(2):
        Q = QF + 8*head
        def kread(t):
            return ["ds_read_b64 v[%d:%d], v20 offset:%d" % (KF+4*t, KF+4*t+1, 1152*t + 512*head), "ds_read_b64 v[%d:%d], v21 offset:%d" % (KF+4*t+2, KF+4*t+3, 1152*t)]
        def vleft(m): return "ds_read_b128 a[%d:%d], v23 offset:%d" % (VLA+4*m, VLA+4*m+3, 2304*m + 128*head)
        def vmain(m): return "ds_read_b128 v[%d:%d], v22 offset:%d" % (VM+4*(m & 1), VM+4*(m & 1)+3, 2304*m + 1024*head)
        def has(qt, t): return (t <= 16) if qt == 0 else (t >= 1)
        def mask(reg, qt, t):
            o = []
            for i in range(4):
                if t == qt: o.append("v_cndmask_b32 v%d, v25, v%d, s[%d:%d]" % (reg+i, reg+i, 60+2*i, 61+2*i))
                if t == 16+qt: o.append("v_cndmask_b32 v%d, v%d, v25, s[%d:%d]" % (reg+i, reg+i, 60+2*i, 61+2*i))
            return o
        def switch(t, moves):
            Ls = a.newlabel("Lsw")
            a("s_cmp_eq_u32 s55, %d" % t); a("s_cbranch_scc0 %s" % Ls)
            for x in moves: a(x)
            a.label(Ls)
        AHEAD = 4
        if head:
            L = a.newlabel("Lmk")
            a("s_cmp_lg_u32 s%d, 0" % S_WAVE); a("s_cbranch_scc1 %s_x" % L)
            a("s_mov_b32 s47, 100000"); a("s_waitcnt vmcnt(%d)" % (npf0 - len(pf)))
            a.label(L)
            a("v_cmp_ne_u32 vcc, s%d, v228" % S_NONCE); a("s_cbranch_vccz %s_x" % L)
            a("s_sleep 2"); a(marks); a("s_waitcnt vmcnt(0)")
            a("s_sub_u32 s47, s47, 1"); a("s_cbranch_scc0 %s" % L)
            a.label(L + "_x")
            a("s_waitcnt vmcnt(20)"); a("s_barrier")
        for t in range(AHEAD):
            for x in kread(t): a(x)
        a("v_mov_b32 v%d, v25" % M); a("v_mov_b32 v%d, v25" % (M+1))
        if edge:
            for i in range(4): a("v_mov_b32 v%d, v25" % (CZ+i))
        def maxes(t):
            o = []
            for qt in range(2):
                if not has(qt, t): continue
                s = S1 + 8*(t % 3) + 4*qt
                o += mask(s, qt, t)
                o.append("v_max3_f32 v%d, v%d, v%d, v%d" % (M+qt, s, s+1, M+qt))
            for qt in range(2):
                if not has(qt, t): continue
                s = S1 + 8*(t % 3) + 4*qt
                o.append("v_max3_f32 v%d, v%d, v%d, v%d" % (M+qt, s+2, s+3, M+qt))
            return o
        for t in range(18):
            if edge and t % 2 == 0: switch(t, ["v_mov_b32 v%d, 0" % (CZ+i) for i in range(4)])
            n = 2*min(AHEAD-1, 17-t)
            a("s_waitcnt lgkmcnt(%d)" % n)
            ms = [mfma(S1+8*(t % 3)+4*qt, KF+4*t, Q+4*qt, CZ if edge else None) for qt in range(2) if has(qt, t)]
            fill = (kread(t+AHEAD) if t+AHEAD < 18 else []) + (maxes(t-2) if t >= 2 else []) + (take(1) if t % 3 == 1 else [])
            interleave(a, ms, fill)
        if head == 0:
            a("s_waitcnt vmcnt(%d)" % (55 - len(pf))); a("s_barrier")
            npf0 = len(pf); a(marks)
        a("s_mov_b32 exec_lo, 0x00030003"); a("s_mov_b32 exec_hi, 0x00030003")
        for m in range(9): a(vleft(m))
        a("s_mov_b64 exec, -1")
        a(vmain(0))
        for x in maxes(16) + maxes(17): a(x)
        for sw in ("v_permlane32_swap_b32", "v_permlane16_swap_b32"):
            for qt in range(2): a("v_mov_b32 v%d, v%d" % (30+qt, M+qt))
            for qt in range(2): a("%s v%d, v%d" % (sw, M+qt, 30+qt))
            for qt in range(2): a("v_max_f32 v%d, v%d, v%d" % (M+qt, M+qt, 30+qt))
        negs = ["v_sub_f32 v%d, 0, v%d" % (NM+4*qt+i, M+qt) for qt in range(2) for i in range(4)]
        if edge:
            for i in range(8): a("v_mov_b32 v%d, v25" % (NM+i))
        else:
            for x in negs: a(x)
        def qk(m):
            return [mfma(S2+16*(m & 1)+8*qt+4*b, KF+4*(2*m+b), Q+4*qt, NM+4*qt) for qt in range(2) for b in range(2) if has(qt, 2*m+b)]
        def pv(m):
            o = []
            for qt in range(2):
                p = P+8*(m & 1)+4*qt
                o.append(mfma(OM+4*qt, VM+4*(m & 1), p, None if m == 0 else OM+4*qt))
                o.append(mfma(OL+4*qt, VLA+4*m, p, None if m == 0 else OL+4*qt, ta="a"))
            return o
        for x in qk(0): a(x)
        for m in range(9):
            if edge and m < 8: switch(2*m+2, negs)
            mf = (qk(m+1) if m < 8 else []) + (pv(m-1) if m else [])
            va = []
            ld = take(3 if m % 2 == 0 else 2)
            for qt in range(2):
                p = P+8*(m & 1)+4*qt
                for b in range(2):
                    s = S2+16*(m & 1)+8*qt+4*b
                    if has(qt, 2*m+b):
                        va += mask(s, qt, 2*m+b)
                        va += ["v_exp_f32 v%d, v%d" % (s+i, s+i) for i in range(4)]
                    if ld and (b == 0 or qt == 0): va.append(ld.pop(0))
                for b in range(2):
                    s = S2+16*(m & 1)+8*qt+4*b
                    if has(qt, 2*m+b):
                        va += ["v_cvt_pk_bf16_f32 v%d, v%d, v%d" % (p+2*b+h, s+2*h, s+2*h+1) for h in range(2)]
                    else:
                        va += ["v_mov_b32 v%d, 0" % (p+2*b+h) for h in range(2)]
            if m: a("s_waitcnt lgkmcnt(1)")
            interleave(a, mf, va)
            if m < 8: a(vmain(m+1))
        a("s_waitcnt lgkmcnt(0)")
        for x in pv(8): a(x)
        if head == 1:
            assert not pf
            a("s_mul_i32 s54, s53, 18432"); a("s_add_u32 s54, s54, %d" % O_OFF)
            a("s_lshl_b32 s46, s51, 10"); a("s_add_u32 s58, s46, s54"); a("s_add_u32 s59, s58, 18432")
            a("s_lshr_b32 s46, s51, 3"); a("s_add_u32 s46, s46, 16"); a("s_lshl_b32 s46, s46, 10"); a("s_add_u32 s54, s54, s46")
            a("s_and_b32 s46, s51, 7"); a("s_lshr_b32 s46, s46, 1"); a("s_lshl_b32 s46, s46, 8"); a("s_add_u32 s54, s54, s46")
            a("s_and_b32 s46, s51, 1"); a("s_lshl_b32 s46, s46, 3"); a("s_add_u32 s54, s54, s46"); a("s_add_u32 s47, s54, 18432")
        for qt in range(2): a("v_rcp_f32 v%d, v%d" % (30+qt, OL+4*qt+3))
        for qt in range(2):
            for i in range(4): a("v_mul_f32 v%d, v%d, v%d" % (OM+4*qt+i, OM+4*qt+i, 30+qt))
            for i in range(2): a("v_mul_f32 v%d, v%d, v%d" % (OL+4*qt+i, OL+4*qt+i, 30+qt))
        for qt in range(2):
            for h in range(2): a("v_cvt_pk_bf16_f32 v%d, v%d, v%d" % (OUT+4*qt+2*head+h, OM+4*qt+2*h, OM+4*qt+2*h+1))
            a("v_cvt_pk_bf16_f32 v%d, v%d, v%d" % (R_+2*qt+head, OL+4*qt, OL+4*qt+1))
      if not edge: a("s_branch L_p2_out")
    a.label("L_p2_out")
    a("buffer_store_dwordx4 v[%d:%d], v%d, s[%d:%d], s58 offen sc1" % (OUT, OUT+3, V_L16, R_WS, R_WS+3))
    a("buffer_store_dwordx4 v[%d:%d], v%d, s[%d:%d], s59 offen sc1" % (OUT+4, OUT+7, V_L16, R_WS, R_WS+3))
    a("s_mov_b64 exec, 0xffff")
    a("buffer_store_dwordx2 v[%d:%d], v%d, s[%d:%d], s54 offen sc1" % (R_, R_+1, V_L16, R_WS, R_WS+3))
    a("buffer_store_dwordx2 v[%d:%d], v%d, s[%d:%d], s47 offen sc1" % (R_+2, R_+3, V_L16, R_WS, R_WS+3))
    a("s_mov_b64 exec, -1")
    a.stamp("p2_done")
    if a.stop == 2:
        a("s_waitcnt vmcnt(0)")

C0 = -2.0*math.log2(math.e)*math.sqrt(2/math.pi)
C1 = C0*0.044715

def gelu_pk(a, regs, t, sc):
    for k, r in enumerate(regs): a("v_pk_mul_f32 v[%d:%d], v[%d:%d], v[%d:%d]" % (t+2*k, t+2*k+1, r, r+1, r, r+1))
    for k, r in enumerate(regs): a("v_pk_fma_f32 v[%d:%d], v[%d:%d], s[%d:%d], s[%d:%d] op_sel:[0,0,1] op_sel_hi:[1,0,1]" % (t+2*k, t+2*k+1, t+2*k, t+2*k+1, sc, sc+1, sc, sc+1))
    for k, r in enumerate(regs): a("v_pk_mul_f32 v[%d:%d], v[%d:%d], v[%d:%d]" % (t+2*k, t+2*k+1, t+2*k, t+2*k+1, r, r+1))
    for k in range(2*len(regs)): a("v_exp_f32 v%d, v%d" % (t+k, t+k))
    for k, r in enumerate(regs): a("v_pk_add_f32 v[%d:%d], v[%d:%d], 1.0 op_sel_hi:[1,0]" % (t+2*k, t+2*k+1, t+2*k, t+2*k+1))
    for k in range(2*len(regs)): a("v_rcp_f32 v%d, v%d" % (t+k, t+k))
    for k, r in enumerate(regs): a("v_pk_mul_f32 v[%d:%d], v[%d:%d], v[%d:%d]" % (r, r+1, r, r+1, t+2*k, t+2*k+1))

def stats_loads(a, off, stile, vt):
    a("v_lshlrev_b32 v%d, 3, v%d" % (vt+4, V_LANE))
    a("v_add_u32 v%d, 512, v%d" % (vt+5, vt+4)); a("v_cmp_gt_u32 vcc, 32, v%d" % V_LANE); a("v_mov_b32 v%d, 0x7fffffff" % vt)
    a("v_cndmask_b32 v%d, v%d, v%d, vcc" % (vt+5, vt, vt+5))
    a("s_mul_i32 s46, s%d, 768" % stile); a("s_add_u32 s46, s46, %d" % off)
    return ["buffer_load_dwordx2 v[%d:%d], v%d, s[%d:%d], s46 offen sc1" % (vt+2*k, vt+2*k+1, vt+4+k, R_WS, R_WS+3) for k in range(2)]

def stats_finish(a, vt, vmean, vrstd):
    a("v_add_f32 v%d, v%d, v%d" % (vt, vt, vt+2)); a("v_add_f32 v%d, v%d, v%d" % (vt+1, vt+1, vt+3))
    for sw in ("v_permlane32_swap_b32", "v_permlane16_swap_b32"):
        for k in range(2): a("v_mov_b32 v%d, v%d" % (vt+2+k, vt+k))
        for k in range(2): a("%s v%d, v%d" % (sw, vt+k, vt+2+k))
        for k in range(2): a("v_add_f32 v%d, v%d, v%d" % (vt+k, vt+k, vt+2+k))
    a("s_mov_b32 s47, %d" % f32(1.0/576))
    a("v_mul_f32 v%d, s47, v%d" % (vmean, vt)); a("v_mul_f32 v%d, v%d, v%d" % (vt, vmean, vmean))
    a("v_fma_f32 v%d, v%d, s47, -v%d" % (vt+1, vt+1, vt)); a("v_max_f32 v%d, 0, v%d" % (vt+1, vt+1))
    a("v_add_f32 v%d, %d, v%d" % (vt, f32(1e-5), vt+1)); a("v_rsq_f32 v%d, v%d" % (vrstd, vt))

def norm_ops(x, vs, vb, t):
    o = []
    for r in range(4):
        o.append("v_lshlrev_b32 v%d, 16, v%d" % (t+2*r, x+r)); o.append("v_and_b32 v%d, 0xffff0000, v%d" % (t+2*r+1, x+r))
    for r in range(8): o.append("v_fma_f32 v%d, v%d, v%d, v%d" % (t+r, t+r, vs, vb))
    for r in range(4): o.append("v_cvt_pk_bf16_f32 v%d, v%d, v%d" % (x+r, t+2*r, t+2*r+1))
    return o

def out_stats(a, pk, n, vt, off):
    a("v_mov_b32 v%d, 0" % vt); a("v_mov_b32 v%d, 0" % (vt+1))
    for r in range(n):
        a("v_dot2c_f32_bf16 v%d, s%d, v%d" % (vt, S_ONES, pk+r)); a("v_dot2c_f32_bf16 v%d, v%d, v%d" % (vt+1, pk+r, pk+r))
    for sw in ("v_permlane32_swap_b32", "v_permlane16_swap_b32"):
        for k in range(2): a("v_mov_b32 v%d, v%d" % (vt+2+k, vt+k))
        for k in range(2): a("%s v%d, v%d" % (sw, vt+k, vt+2+k))
        for k in range(2): a("v_add_f32 v%d, v%d, v%d" % (vt+k, vt+k, vt+2+k))
    a("s_mul_i32 s46, s53, 6"); a("s_add_u32 s46, s46, s51"); a("s_lshl_b32 s46, s46, 7"); a("s_add_u32 s46, s46, %d" % off)
    a("v_lshlrev_b32 v%d, 3, v%d" % (vt+2, V_LANE))
    a("s_mov_b64 exec, 0xffff")
    a("buffer_store_dwordx2 v[%d:%d], v%d, s[%d:%d], s46 offen sc1" % (vt, vt+1, vt+2, R_WS, R_WS+3))
    a("s_mov_b64 exec, -1")

AF, ACC, WB, HK, VMEAN, VRSTD = 64, 136, 160, 40, 52, 53
OS = WB

def tag_ops(regs, t):
    o = []; regs = list(regs)
    o.append("v_max3_u32 v%d, v%d, v%d, v%d" % (t, regs[0], regs[1], regs[2])); regs = regs[3:]
    while len(regs) >= 2: o.append("v_max3_u32 v%d, v%d, v%d, v%d" % (t, t, regs[0], regs[1])); regs = regs[2:]
    if regs: o.append("v_max_u32 v%d, v%d, v%d" % (t, t, regs[0]))
    return o + ["v_cmp_eq_u32 vcc, -1, v%d" % t]

def tag_branch(a, loads, regs, t, again=(), drain=False):
    L = a.newlabel("Ltg")
    a("s_cbranch_vccnz %s" % L)
    a.label(L + "_b")
    st = [L + ":"] + "\n".join(loads).split("\n") + ["s_waitcnt vmcnt(0)"] + tag_ops(regs, t)
    st += ["s_sub_u32 s79, s79, 1", "s_cbranch_scc1 %s_b" % L, "s_cbranch_vccnz %s" % L]
    st += list(again) + (["s_waitcnt vmcnt(0)"] if drain and again else []) + ["s_branch %s_b" % L]
    a.stubs += st

UP = 8
def gemm96(a, loads, stage, delay, pre=(), each=None, stamp=None, extra=()):
    a("s_barrier")
    nv = sum("buffer_load" in x for x in stage)
    n1 = len(stage) if nv else len(stage)//2
    for x in stage[:n1]: a(x)
    if delay: a("s_sleep %d" % delay)
    a("s_mov_b32 s79, 50000")
    a.stamp(stamp + "_ready")
    for x in pre: a(x)
    interleave(a, loads[:UP], stage[n1:])
    a("s_waitcnt vmcnt(%d) lgkmcnt(0)" % (UP + len(pre))); a("s_barrier")
    def wr(j): return ["ds_read_b128 v[%d:%d], v%d offset:%d" % (WB+24*(j % 3)+4*t, WB+24*(j % 3)+4*t+3, 5+(t//3), (t % 3)*18432 + 1024*j) for t in range(6)]
    if each: each(lambda: [a(x) for x in wr(0) + wr(1)])
    else:
        for x in wr(0) + wr(1): a(x)
    a("s_waitcnt vmcnt(%d)" % (UP-1))
    fr = lambda j: range(AF+4*j, AF+4*j+4)
    for x in tag_ops(fr(0), 30): a(x)
    tag_branch(a, [loads[0]], fr(0), 30, loads[1:UP])
    for j in range(18):
        ex = lambda q: min(len(extra), max(0, (q-9)*len(extra)//8))
        issued = min(18, UP+j) + ex(j)
        a("s_waitcnt vmcnt(%d) lgkmcnt(%d)" % (issued - 1 - min(j+1, 17), 6 if j < 17 else 0))
        if j in (0, 9): a.stamp(stamp + "_k%d" % j)
        ms = [mfma(ACC+4*t, WB+24*(j % 3)+4*t, AF+4*j, None if j == 0 else ACC+4*t) for t in range(6)]
        fill = ([loads[UP+j]] if UP+j < 18 else []) + (tag_ops(fr(j+1), 30) if j < 17 else []) + (wr(j+2) if j < 16 else []) + list(extra[ex(j):ex(j+1)])
        interleave(a, ms, fill)
        if j < 17: tag_branch(a, [loads[j+1]], fr(j+1), 30, loads[j+2:UP+j+1], drain=ex(j+1) > 0)

def wflags(a):
    a("s_mul_i32 s46, s65, 18"); a("s_add_u32 s46, s46, %d" % (FS + 54))
    a("v_min_u32 v54, 35, v%d" % V_LANE); a("v_add_u32 v55, 126, v54"); a("v_cmp_lt_u32 vcc, 17, v54"); a("v_cndmask_b32 v54, v54, v55, vcc")
    a("v_add_u32 v54, s46, v54"); a("v_lshlrev_b32 v54, 7, v54")
    a("buffer_load_dword v55, v54, s[%d:%d], 0 offen offset:%d sc1" % (R_WS, R_WS+3, FLAG0))

def phase345(a):
    a("s_mov_b32 s50, s74"); a("s_mov_b32 s51, s75"); a("s_mov_b32 s53, s76")
    a("s_cmp_ge_u32 s51, 6"); a("s_cbranch_scc1 L_p3_helper")
    a("v_add_u32 v5, %d, v%d" % (W_LDS, V_L16)); a("v_add_u32 v6, %d, v%d" % (W_LDS + 3*18432, V_L16))
    a("v_add_u32 v8, s73, v%d" % V_L16)
    a("s_mul_i32 s54, s53, 18432")
    a("s_mul_i32 s55, s51, 3072"); a("s_add_u32 s55, s55, s54")
    a("v_lshlrev_b32 v9, 7, v%d" % V_LANE)
    a("s_lshl_b32 s46, s51, 2"); a("s_add_u32 s46, s46, s%d" % S_WAVE); a("s_mul_i32 s46, s46, 3072"); a("s_mul_i32 s78, s50, 73728"); a("s_add_u32 s78, s78, s46")
    def w2(i0, i1):
        return [("s_add_u32 s59, s72, %d\n" % (1024*(i & ~3)) if (i % 4 == 0 or i == i0) else "") +
                "buffer_load_dwordx4 a[%d:%d], v%d, s[%d:%d], s59 offen offset:%d sc1" % (AW2+4*i, AW2+4*i+3, V_L16, R_WS, R_WS+3, 1024*(i & 3)) for i in range(i0, i1)]
    def park(ab): return ["ds_write_b128 v8, a[%d:%d] offset:%d" % (ab+4*i, ab+4*i+3, 1024*i) for i in range(27)]
    def aloads(off):
        for q in range(5): a("s_add_u32 s%d, s54, %d" % (60+q, off + 4096*q))
        return ["buffer_load_dwordx4 v[%d:%d], v%d, s[%d:%d], s%d offen offset:%d sc1" % (AF+4*j, AF+4*j+3, V_L16, R_WS, R_WS+3, 60+(j >> 2), 1024*(j & 3)) for j in range(18)]
    def ostores(src, off):
        a("s_add_u32 s46, s55, %d" % off)
        for jj in range(3): a("buffer_store_dwordx4 v[%d:%d], v%d, s[%d:%d], s46 offen offset:%d sc1" % (src+4*jj, src+4*jj+3, V_L16, R_WS, R_WS+3, 1024*jj))
    gemm96(a, aloads(O_OFF), [pf_lds(0), pf_lds(1)], SLEEP0["p3"], stamp="p3", extra=w2(0, 9))
    a.stamp("p3_gemm")
    a("s_mov_b32 s46, 0x00003f80"); a("s_mov_b32 s47, 0x3f800000")
    for t in range(6):
        for i in range(4): a("v_dot2c_f32_bf16 v%d, s%d, v%d" % (ACC+4*t+i, 46+(i & 1), XT+4*(t >> 1)+2*(t & 1)+(i >> 1)))
    for k in range(12): a("v_cvt_pk_bf16_f32 v%d, v%d, v%d" % (HK+k, ACC+2*k, ACC+2*k+1))
    ostores(HK, H_OFF)
    out_stats(a, HK, 12, 10, SH_OFF)
    a.stamp("p3_epi")
    if a.stop == 3: a("s_waitcnt vmcnt(0)"); a("s_branch L_fin")
    for r in range(4): a("v_mov_b32 v%d, s%d" % (20+r, S_ONES))
    cs = [mfma(WB+4*(i//9), AW1+4*i, 20, None if i % 9 == 0 else WB+4*(i//9), ta="a") for i in range(27)]
    a("s_mul_i32 s46, s%d, 192" % S_WAVE); a("v_lshl_add_u32 v24, v%d, 4, s46" % V_G)
    st4 = []
    for x, y in zip(park(AW1), [cs[(i % 3)*9 + i//3] for i in range(27)]): st4 += [x, y]
    st4 += ["s_nop 7"] + ["ds_write_b128 v24, v[%d:%d] offset:%d" % (WB+4*k, WB+4*k+3, 64*k) for k in range(3)]
    CS = 232
    sl = stats_loads(a, SH_OFF, 53, 10); a("s_mov_b32 s65, s46"); sl = [x.replace("s46", "s65") for x in sl]
    def fin4(wreads):
        a("v_lshlrev_b32 v24, 4, v%d" % V_G)
        for k in range(12): a("ds_read_b128 v[%d:%d], v24 offset:%d" % ((CS if k % 2 == 0 else ACC)+4*(k//2), (CS if k % 2 == 0 else ACC)+4*(k//2)+3, 64*k))
        wreads()
        a("s_waitcnt vmcnt(%d)" % UP)
        for x in tag_ops(range(10, 14), 30): a(x)
        tag_branch(a, sl, range(10, 14), 30, al4[:UP])
        stats_finish(a, 10, VMEAN, VRSTD)
        a("v_mul_f32 v12, v%d, v%d" % (VRSTD, VRSTD)); a("v_mul_f32 v12, v12, v11"); a("v_add_f32 v12, %d, v12" % f32(1e-5))
        a("v_rsq_f32 v12, v12"); a("v_mul_f32 v16, v12, v%d" % VRSTD); a("v_mul_f32 v17, v16, -v%d" % VMEAN)
        a("s_waitcnt lgkmcnt(12)")
        for k in range(12): a("v_pk_add_f32 v[%d:%d], v[%d:%d], v[%d:%d]" % (CS+2*k, CS+2*k+1, CS+2*k, CS+2*k+1, ACC+2*k, ACC+2*k+1))
        for k in range(12): a("v_pk_mul_f32 v[%d:%d], v[%d:%d], v[16:17] op_sel:[0,1] op_sel_hi:[1,1]" % (CS+2*k, CS+2*k+1, CS+2*k, CS+2*k+1))
    al4 = aloads(H_OFF)
    gemm96(a, al4, st4, SLEEP0["p4"], pre=sl, each=fin4, stamp="p4", extra=w2(9, 27))
    a.stamp("p4_gemm")
    a("s_mov_b32 s48, %d" % f32(C1)); a("s_mov_b32 s49, %d" % f32(C0))
    for k in range(12): a("v_pk_fma_f32 v[%d:%d], v[%d:%d], v[16:17], v[%d:%d] op_sel_hi:[1,0,1]" % (ACC+2*k, ACC+2*k+1, ACC+2*k, ACC+2*k+1, CS+2*k, CS+2*k+1))
    gelu_pk(a, [ACC+2*k for k in range(12)], AF, 48)
    for k in range(12): a("v_cvt_pk_bf16_f32 v%d, v%d, v%d" % (OS+k, ACC+2*k, ACC+2*k+1))
    ostores(OS, T_OFF)
    a.stamp("p4_epi")
    if a.stop == 4: a("s_waitcnt vmcnt(0)"); a("s_branch L_fin")
    a.srd(R_A, S_WS, ACT, T_OFF)
    a("s_lshl_b32 s46, s53, 4"); a("v_add_u32 v20, s46, v%d" % V_R); a("s_mov_b32 s47, 18432")
    for k, sh in enumerate((1, -1, 2, -2)):
        a("v_subrev_u32 v21, %d, v20" % sh); a("v_ashrrev_i32 v22, 4, v21"); a("v_mul_lo_u32 v22, v22, s47")
        a("v_and_b32 v21, 15, v21"); a("v_lshl_add_u32 v21, v%d, 4, v21" % V_G); a("v_lshl_add_u32 v%d, v21, 4, v22" % (10+k))
    a("v_cmp_gt_u32 vcc, 32, v%d" % V_LANE); a("v_cndmask_b32 v14, v11, v10, vcc"); a("v_cndmask_b32 v15, v13, v12, vcc")
    for q in range(5): a("s_mov_b32 s%d, %d" % (70+q, 4096*q))
    def vsel(j): return 10 if j < 4 else 14 if j == 4 else 11 if j < 9 else 12 if j < 13 else 15 if j == 13 else 13
    tl = ["buffer_load_dwordx4 v[%d:%d], v%d, s[%d:%d], s%d offen offset:%d sc1" % (AF+4*j, AF+4*j+3, vsel(j), R_A, R_A+3, 70+(j >> 2), 1024*(j & 3)) for j in range(18)]
    roles6(a)
    wflags(a)
    a("s_waitcnt vmcnt(4)")
    gemm96(a, tl, park(AW2), SLEEP0["p5"], stamp="p5")
    a.stamp("p5_gemm")
    a("v_mul_f32 v17, v%d, -v%d" % (VRSTD, VMEAN))
    for k in range(12):
        a("v_lshlrev_b32 v20, 16, v%d" % (HK+k)); a("v_and_b32 v21, 0xffff0000, v%d" % (HK+k))
        a("v_fma_f32 v20, v20, v%d, v17" % VRSTD); a("v_fma_f32 v21, v21, v%d, v17" % VRSTD)
        a("v_pk_add_f32 v[%d:%d], v[%d:%d], v[20:21]" % (ACC+2*k, ACC+2*k+1, ACC+2*k, ACC+2*k+1))
    for k in range(12): a("v_cvt_pk_bf16_f32 v%d, v%d, v%d" % (OS+k, ACC+2*k, ACC+2*k+1))
    ostores(OS, X1_OFF)
    out_stats(a, OS, 12, 10, SX_OFF)
    a.stamp("p5_epi")
    a("s_branch L_p5_pre")
    a.label("L_p3_helper")
    a("s_barrier")
    a(pf_lds(0)); a(pf_lds(1))
    swizzle_setup(a)
    a("s_add_u32 s48, s48, 54")
    for p in range(3):
        sw_big(a, 48, 60+3*p)
        a("s_lshl_b32 s53, s52, 10"); a("s_add_u32 s%d, s%d, s53" % (60+3*p, 60+3*p)); a("s_add_u32 s%d, s48, %d" % (62+3*p, FS))
        a("s_add_u32 s48, s48, 1")
    a("s_lshl_b32 s48, s74, 1"); a("s_add_u32 s48, s48, s75"); a("s_add_u32 s48, s48, %d" % (54 + 32 - 6))
    sw_issue(a, 48, 3, 0)
    a("s_waitcnt vmcnt(9)"); a("s_barrier")
    for p in range(3): sw_process(a, p, W_LDS + 36864*p)
    a("s_waitcnt vmcnt(27)"); a("s_barrier")
    if NW3 == 0:
        a("s_sub_u32 s48, s48, 32"); a("s_cmp_lt_u32 s48, %d" % (54+32)); a("s_cselect_b32 s48, s48, 54"); sw_issue(a, 48, 4, W_LDS)
    sw_process(a, 3, 0)
    if NW3 == 0:
        a("s_waitcnt vmcnt(9)"); a("s_barrier")
        sw_process(a, 4, W_LDS)
    a("s_waitcnt vmcnt(0)"); a("s_barrier")
    sw_flags(a, range(4 if NW3 else 5))
    roles6(a)
    wflags(a)
    a("s_waitcnt vmcnt(0)")
    a.label("L_p5_pre")
    L = a.newlabel("Lh")
    a("s_cmp_lg_u32 s%d, 0" % S_WAVE); a("s_cbranch_scc1 %s" % L)
    a("v_cmp_ne_u32 vcc, s%d, v55" % S_NONCE); a("s_cbranch_vccz %s" % L)
    a("v_lshrrev_b32 v54, 7, v54")
    a.poll(54, 55, sleep0=0)
    a.label(L)
    a("s_barrier")
    a.label("L_p5_done")
    a.stamp("p5_done")

WFL = os.environ.get("WFL", " sc1")
LCH = int(os.environ.get('LCH', 1))
RING = 184

def roles6(a):
    L = LCH
    a("s_lshr_b32 s46, s%d, %d" % (S_XCD, 3-L)); a("s_lshl_b32 s64, s46, %d" % (5-L)); a("s_lshr_b32 s67, s%d, %d" % (S_SLOT, L)); a("s_add_u32 s64, s64, s67")
    a("s_and_b32 s67, s67, 7")
    a("s_mov_b32 s67, 0")
    a("s_and_b32 s46, s%d, %d" % (S_XCD, (8 >> L) - 1)); a("s_lshl_b32 s65, s46, %d" % L); a("s_and_b32 s46, s%d, %d" % (S_SLOT, (1 << L) - 1)); a("s_add_u32 s65, s65, s46")
    a("s_lshl_b32 s46, s65, 2"); a("s_add_u32 s46, s46, s%d" % S_WAVE); a("s_mul_i32 s66, s46, %d" % (9*18432)); a("s_add_u32 s66, s66, %d" % W3_S)

def wload(j, s=58, ring=("a", RING)):
    o = "s_add_u32 s%d, s%d, 4096\n" % (s, s) if (j and j % 4 == 0) else ""
    return o + ("buffer_load_dwordx4 %s[%d:%d], v%d, s[%d:%d], s%d offen offset:%d" + WFL) % (ring[0], ring[1]+4*j, ring[1]+4*j+3, V_L16, R_WS, R_WS+3, s, 1024*(j & 3))

def ring_prefill(a, s):
    a("s_mul_i32 s%d, s67, 18432" % s); a("s_add_u32 s%d, s%d, s66" % (s, s))
    return [wload(j, s) for j in range(18)]

def norm_pk(x, vs, t):
    o = []
    for r in range(4):
        o.append("v_lshlrev_b32 v%d, 16, v%d" % (t+2*r, x+r)); o.append("v_and_b32 v%d, 0xffff0000, v%d" % (t+2*r+1, x+r))
    for r in range(4): o.append("v_pk_fma_f32 v[%d:%d], v[%d:%d], v[%d:%d], v[%d:%d] op_sel:[0,0,1] op_sel_hi:[1,0,1]" % (t+2*r, t+2*r+1, t+2*r, t+2*r+1, vs, vs+1, vs, vs+1))
    for r in range(4): o.append("v_cvt_pk_bf16_f32 v%d, v%d, v%d" % (x+r, t+2*r, t+2*r+1))
    return o

def phase6(a):
    AC, PK, RB, GT, XR = 40, 72, 80, 136, 64
    HB = 73728
    def xf(T, j):
        f = 4*j + T
        return ("a", 4*f) if f < 46 else ("v", 152 + 4*(f-46))
    a("s_mov_b32 s50, s64"); a("s_mov_b32 s51, s65"); a("s_mov_b32 s54, s66"); a("s_mov_b32 s52, s67")
    a("s_lshl_b32 s53, s50, 2"); a("s_add_u32 s53, s53, s%d" % S_WAVE)
    a("s_add_u32 s55, s54, %d" % BW)
    a("s_mul_i32 s56, s50, 72"); a("s_add_u32 s56, s56, s51"); a("s_lshl_b32 s56, s56, 2"); a("s_add_u32 s56, s56, s%d" % S_WAVE)
    a("s_lshl_b32 s56, s56, 11"); a("s_add_u32 s56, s56, %d" % PART)
    a("s_mul_i32 s46, s53, 18432")
    for q in range(5): a("s_add_u32 s%d, s46, %d" % (70+q, X1_OFF + 4096*q))
    a("s_mul_i32 s46, s%d, 18432" % S_WAVE); a("v_add_u32 v5, s46, v%d" % V_L16)
    a("v_add_u32 v6, 36864, v%d" % V_L16); a("v_add_u32 v7, %d, v%d" % (HB, V_L16)); a("v_add_u32 v8, %d, v%d" % (HB+36864, V_L16))
    a("s_lshr_b32 s46, s%d, 1" % S_WAVE); a("s_lshl_b32 s46, s46, 10"); a("s_and_b32 s47, s%d, 1" % S_WAVE); a("s_lshl_b32 s47, s47, 3")
    a("s_add_u32 s46, s46, s47"); a("v_add_u32 v35, s46, v7")
    a("s_mov_b32 s48, %d" % f32(C1)); a("s_mov_b32 s49, %d" % f32(C0))
    sl = stats_loads(a, SX_OFF, 53, 10)
    a("s_mov_b32 s60, s46")
    sl = [x.replace("s46", "s60") for x in sl]
    a("v_mov_b32 v28, 0")
    a("global_load_dword v29, v28, s[%d:%d] sc1" % (S_DBG, S_DBG+1))
    pre = ring_prefill(a, 59)
    NP = SLEEP0["p6"]
    for x in pre[:NP]: a(x)
    a.stamp("p6_ready")
    a("s_mov_b32 s79, 50000")
    for x in sl: a(x)
    def xload(j): return "buffer_load_dwordx4 v[%d:%d], v%d, s[%d:%d], s%d offen offset:%d sc1" % (XR+4*j, XR+4*j+3, V_L16, R_WS, R_WS+3, 70+(j >> 2), 1024*(j & 3))
    for j in range(UP): a(xload(j))
    a("s_waitcnt vmcnt(%d)" % UP)
    a("v_readfirstlane_b32 s%d, v29" % S_NONCE)
    for x in tag_ops(range(10, 14), 30): a(x)
    tag_branch(a, sl, range(10, 14), 30, [xload(j) for j in range(UP)])
    stats_finish(a, 10, 17, 16)
    a("v_mul_f32 v17, v16, -v17")
    def bload(reg, s, off=0, t="a"): return "buffer_load_dwordx4 %s[%d:%d], v%d, s[%d:%d], s%d offen offset:%d sc1" % (t, reg, reg+3, V_L16, R_WS, R_WS+3, s, off)
    R3, ST, SEL, RS = 12, 32, 6, 152
    a("s_mul_i32 s60, s50, 73728")
    a("s_lshl_b32 s46, s51, 1"); a("s_lshr_b32 s47, s%d, 1" % S_WAVE); a("s_add_u32 s46, s46, s47"); a("s_lshl_b32 s46, s46, 10"); a("s_add_u32 s63, s46, s60")
    res = ["s_add_u32 s58, s63, %d\n" % ((X1_OFF, H_OFF)[j >> 2] + 18432*(j & 3)) + bload(RS+4*j, 58, t="v") for j in range(8)]
    rest = [xload(j) for j in range(UP, 18)] + res + pre[NP:]
    cnt = UP
    for j in range(18):
        a("s_waitcnt vmcnt(%d)" % (cnt - 1 - j))
        for x in tag_ops(range(XR+4*j, XR+4*j+4), 30): a(x)
        n = 1 if j < 10 else -(-len(rest)//(18-j))
        for x in rest[:n]: a(x)
        cnt += len(rest[:n]); del rest[:n]
        tag_branch(a, [xload(j)], range(XR+4*j, XR+4*j+4), 30, [xload(q) for q in range(j+1, min(18, j+UP+1))], drain=j >= 10)
        for x in norm_pk(XR+4*j, 16, 20): a(x)
        a("ds_write_b128 v5, v[%d:%d] offset:%d" % (XR+4*j, XR+4*j+3, 1024*j))
    def select(d, sr, bit):
        o = ["s_bitcmp1_b32 s%d, %d\ns_cselect_b64 s[64:65], -1, 0" % (sr, bit)]
        for h in range(2):
            o += ["v_cndmask_b32 v%d, v%d, 0, s[64:65]" % (d+h, SEL+2+h), "v_cndmask_b32 v%d, 0, v%d, s[64:65]" % (d+2+h, SEL+2+h)]
        return o
    a("v_mov_b32 v32, v6"); a("v_mov_b32 v33, v7"); a("v_mov_b32 v34, v8")
    a("v_lshrrev_b32 v26, 2, v%d" % V_R); a("v_cmp_eq_u32 s[64:65], v26, v%d" % V_G)
    a("v_and_b32 v26, 1, v%d" % V_R); a("v_lshlrev_b32 v26, 4, v26"); a("v_mov_b32 v27, 0x3f80"); a("v_lshlrev_b32 v27, v26, v27")
    a("v_cndmask_b32 v27, 0, v27, s[64:65]"); a("v_and_b32 v26, 2, v%d" % V_R); a("v_cmp_eq_u32 vcc, 0, v26")
    a("v_cndmask_b32 v%d, 0, v27, vcc" % (SEL+2)); a("v_cndmask_b32 v%d, v27, 0, vcc" % (SEL+3))
    for r in (0, 1, 4, 5): a("v_mov_b32 v%d, 0" % (SEL+r))
    for x in select(36, S_WAVE, 0): a(x)
    a("s_waitcnt vmcnt(%d)" % (18 - NP))
    for x in tag_ops(range(RS, RS+32), 30): a(x)
    tag_branch(a, res, range(RS, RS+32), 30)
    for k in range(2):
        for T in range(4): a(mfma(R3+4*T, 36, RS+16*k+4*T, None if k == 0 else R3+4*T))
    a("s_waitcnt lgkmcnt(0)"); a("s_barrier")
    a.stamp("p6_x")
    def fread(j, va):
        o = []
        for T in range(4):
            t, r = xf(T, j)
            o.append("ds_read_b128 %s[%d:%d], v%d offset:%d" % (t, r, r+3, va[T >> 1], (T & 1)*18432 + 1024*j))
        return o
    def gelu(ac):
        b = ["v_pk_mul_f32 v[%d:%d], v[%d:%d], v[%d:%d]" % (GT+2*k, GT+2*k+1, ac+2*k, ac+2*k+1, ac+2*k, ac+2*k+1) for k in range(8)]
        b += ["v_pk_fma_f32 v[%d:%d], v[%d:%d], s[48:49], s[48:49] op_sel:[0,0,1] op_sel_hi:[1,0,1]" % (GT+2*k, GT+2*k+1, GT+2*k, GT+2*k+1) for k in range(8)]
        b += ["v_pk_mul_f32 v[%d:%d], v[%d:%d], v[%d:%d]" % (GT+2*k, GT+2*k+1, GT+2*k, GT+2*k+1, ac+2*k, ac+2*k+1) for k in range(8)]
        o = []
        for T in range(4):
            x = ac + 4*T; t = GT + 4*T
            if "nopk" in ABL:
                o += ["v_mul_f32 v%d, v%d, v%d" % (t+i, x+i, x+i) for i in range(4)]
                o += ["v_fma_f32 v%d, v%d, s48, v18" % (t+i, t+i) for i in range(4)]
                o += ["v_mul_f32 v%d, v%d, v%d" % (t+i, t+i, x+i) for i in range(4)]
            o += ["v_exp_f32 v%d, v%d" % (t+i, t+i) for i in range(4)]
            o += ["v_add_f32 v%d, 1.0, v%d" % (t+i, t+i) for i in range(4)]
            o += ["v_rcp_f32 v%d, v%d" % (t+i, t+i) for i in range(4)]
            o += ["v_mul_f32 v%d, v%d, v%d" % (t+i, t+i, x+i) for i in range(4)]
            o += ["v_cvt_pk_bf16_f32 v%d, v%d, v%d" % (PK+2*T+h, t+2*h, t+2*h+1) for h in range(2)]
            o.append("ds_write_b64 v5, v[%d:%d] offset:%d" % (PK+2*T, PK+2*T+1, 18432*T))
        return ([] if "nopk" in ABL else b), o
    def wt(op): return 2 if op.startswith(("v_exp", "v_rcp")) else min(2, len(op.split("\n")))
    RA = ("a", RING); RBB = ("v", RB)
    def subpass(ac, fill, first=None, loads=None, at=None, ring=RA, depth=18, batch=(), head=(), c0=None):
        if "p6nogelu" in ABL and len(fill) > 20: fill = []; batch = ()
        if "p6nost" in ABL: fill = [x for x in fill if "buffer_store" not in x]
        fill = list(fill); head = list(head)
        if first:
            for j in range(2):
                for x in fread(j, first): a(x)
        def wait(j):
            w = []
            if j % 2 == 0: w.append("vmcnt(%d)" % (depth - 2))
            if first: w.append("lgkmcnt(%d)" % (4 if j < 17 else 0))
            return "s_waitcnt " + " ".join(w) if w else None
        for j in range(18):
            if wait(j): a(wait(j))
            if at and j in at: at[j]()
            rd = fread(j+2, first) if (first and j < 16) else []
            for T in range(4):
                t, r = xf(T, j)
                a(mfma(ac+4*T, ring[1]+4*j, r, (None if c0 is None else c0+4*T) if j == 0 else ac+4*T, ta=ring[0], tb=t))
                room = 2
                if rd: a(rd[T]); room -= 1
                if j == 0:
                    n = (len(head) + 2 - T)//(3 - T) if T < 3 else 0
                    for x in head[:n]: a(x)
                    del head[:n]
                if T == 3:
                    ld = "" if ("p6nold" in ABL and loads is None) else (loads(j) if loads else wload(j, 58, ring))
                    if ld: a(ld); room -= len(ld.split("\n"))
                    if j < 17 and wait(j+1): room -= 1
                    if j == 0:
                        for x in batch: a(x)
                if j == 0: continue
                left = 4*(17-j) + 3 - T
                while fill and (wt(fill[0]) <= room or sum(wt(x) for x in fill) > 2*left - (left+3)//4*2 + 1):
                    room -= wt(fill[0]); a(fill.pop(0))
        assert not fill
    def nexttile(last=False):
        o = ["s_mov_b32 s62, s61", "s_mov_b32 s61, s63", "s_add_u32 s63, s63, 1"]
        if "rot" in ABL: o += ["s_cmp_eq_u32 s63, 9", "s_cselect_b32 s63, 0, s63"]
        o += ["s_mul_i32 s58, s63, 18432", "s_add_u32 s58, s58, s54"]
        if last: o += ["s_cmp_eq_u32 s59, 3", "s_cselect_b32 s58, s65, s58"]
        return o + ["s_lshl_b32 s46, s62, 11", "v_add_u32 v5, s46, v35"]
    def slice_of(d, c):
        a("s_add_u32 s%d, s%d, s51" % (d, c)); a("s_and_b32 s%d, s%d, 7" % (d, d)); a("s_cmp_eq_u32 s%d, 0" % c); a("s_cselect_b32 s%d, 8, s%d" % (d, d))
    a("s_mov_b32 s63, s52"); a("s_mov_b32 s61, s52")
    for x in nexttile(): a(x)
    slice_of(64, 52); a("s_mul_i32 s65, s64, 18432"); a("s_add_u32 s65, s65, s55")
    for r in range(4): a("v_mov_b32 v%d, -1" % (PK+r))
    pois = []
    for k in (6, 7):
        pois.append("s_add_u32 s46, s51, %d\ns_and_b32 s46, s46, 7\ns_lshl_b32 s46, s46, 16\ns_add_u32 s62, s46, s56\n" % k +
                    "buffer_store_dwordx4 v[%d:%d], v%d, s[%d:%d], s62 offen sc1" % (PK, PK+3, V_L16, R_WS, R_WS+3))
        pois.append("buffer_store_dwordx4 v[%d:%d], v%d, s[%d:%d], s62 offen offset:1024 sc1" % (PK, PK+3, V_L16, R_WS, R_WS+3))
    subpass(AC, [], first=(V_L16, 32), at={4*k+2: (lambda k=k: a(pois[k])) for k in range(4)})
    a.stamp("p6_p0")
    a("s_mov_b32 s59, 0")
    a.label("L_p6_a")
    for half in (1, 0):
        b, o = gelu(AC+16*(1-half))
        subpass(AC+16*half, o, batch=b, head=nexttile(half == 0))
    a("s_add_u32 s59, s59, 1"); a("s_cmp_lt_u32 s59, 4"); a("s_cbranch_scc1 L_p6_a")
    def nextslice(own=None):
        a("s_lshl_b32 s62, s66, 16"); a("s_add_u32 s62, s62, s56"); a("s_mov_b32 s66, s65"); a("s_mov_b32 s65, s64")
        a("s_add_u32 s61, s61, 1"); a("s_and_b32 s61, s61, 7")
        slice_of(64, 61)
        if own is not None: a("s_cmp_eq_u32 s59, %d" % own); a("s_cselect_b32 s64, s51, s64")
        a("s_mul_i32 s58, s64, 18432"); a("s_add_u32 s58, s58, s55")
    a("s_lshl_b32 s46, s61, 11"); a("v_add_u32 v5, s46, v35")
    a("s_mov_b32 s61, s52")
    nextslice()
    g = G(); gelu_pk(g, [AC+2*k for k in range(8)], GT, 48)
    interleave(a, g.lines, [wload(j, 58, RBB) for j in range(14)])
    for T in range(4):
        for h in range(2): a("v_cvt_pk_bf16_f32 v%d, v%d, v%d" % (PK+2*T+h, AC+4*T+2*h, AC+4*T+2*h+1))
        a("ds_write_b64 v5, v[%d:%d] offset:%d" % (PK+2*T, PK+2*T+1, 18432*T))
        a(wload(14+T, 58, RBB))
    a("s_waitcnt lgkmcnt(0)"); a("s_barrier")
    a.stamp("p6_a")
    def pstore(ac):
        o = ["v_cvt_pk_bf16_f32 v%d, v%d, v%d" % (PK+k, ac+2*k, ac+2*k+1) for k in range(8)]
        o += ["buffer_store_dwordx4 v[%d:%d], v%d, s[%d:%d], s62 offen offset:%d sc1" % (PK+4*p, PK+4*p+3, V_L16, R_WS, R_WS+3, 1024*p) for p in range(2)]
        return o
    a("s_lshl_b32 s46, s50, 5"); a("s_add_u32 s46, s46, s%d" % S_WAVE); a("s_lshl_b32 s70, s46, 7"); a("s_add_u32 s70, s70, %d" % (FLAG0 + 128*FA))
    a("s_lshl_b32 s46, s51, 9"); a("s_add_u32 s68, s70, s46")
    a("s_mul_i32 s46, s50, 9"); a("s_add_u32 s46, s46, s51"); a("s_lshl_b32 s46, s46, 16"); a("s_lshl_b32 s47, s%d, 11" % S_WAVE)
    a("s_add_u32 s46, s46, s47"); a("s_add_u32 s69, s46, %d" % PART)
    a("s_mov_b32 s71, 0")
    a("v_and_b32 v5, 7, v%d" % V_LANE); a("v_lshlrev_b32 v5, 9, v5")
    def cond(first, body):
        def f():
            L = a.newlabel("Lc")
            if first is not None: a("s_cmp_lt_u32 s71, %d" % first); a("s_cbranch_scc1 %s" % L)
            body()
            a.label(L)
        return f
    def SC(k): return (54, 55, 57, 58, 72, 75, 76)[k-1]
    def publish():
        a("s_add_u32 s46, s71, s%d" % S_NONCE); a("s_sub_u32 s46, s46, 2"); a("v_mov_b32 v29, s46")
        a("s_waitcnt vmcnt(20)"); a("s_mov_b64 exec, 1")
        a("buffer_store_dword v29, v28, s[%d:%d], s68 offen sc1" % (R_WS, R_WS+3))
        a("s_mov_b64 exec, -1")
    def confirm(vflag, vaddr, saddr, sneed, n):
        L = a.newlabel("Lcf")
        a("s_mov_b32 s47, 100000"); a("s_waitcnt vmcnt(%d)" % n)
        a.label(L)
        a("v_subrev_u32 v30, s%d, v%d" % (sneed, vflag)); a("v_cmp_lt_u32 vcc, 7, v30"); a("s_cbranch_vccz %s_x" % L)
        a("s_sleep 1"); a("buffer_load_dword v%d, v%d, s[%d:%d], s%d offen sc1" % (vflag, vaddr, R_WS, R_WS+3, saddr)); a("s_waitcnt vmcnt(0)")
        a("s_sub_u32 s47, s47, 1"); a("s_cbranch_scc0 %s" % L)
        a.label(L + "_x")
    nxt = ["s_add_u32 s71, s71, 1"]
    a("s_mov_b32 s59, 0")
    nextslice()
    subpass(AC, [], first=(33, 34), depth=36)
    a.stamp("p6_s0")
    a.label("L_p6_b")
    def ask_all(): a("buffer_load_dword v31, v5, s[%d:%d], s70 offen sc1" % (R_WS, R_WS+3))
    ev = {3: cond(6, publish), 14: cond(6, ask_all)}
    nextslice()
    subpass(AC+16, pstore(AC), ring=RBB, depth=36, head=nxt)
    nextslice(own=2)
    subpass(AC, pstore(AC+16), depth=36, at=ev, head=nxt)
    a("s_add_u32 s59, s59, 1"); a("s_cmp_lt_u32 s59, 3"); a("s_cbranch_scc1 L_p6_b")
    a.stamp("p6_s6")
    a("s_lshr_b32 s46, s51, 1"); a("s_sub_u32 s46, s46, 3"); a("s_lshl_b32 s46, s46, 7"); a("s_add_u32 s74, s46, s70")
    a("s_mul_i32 s46, s50, 9"); a("s_add_u32 s46, s46, 8"); a("s_lshl_b32 s46, s46, 16"); a("s_lshl_b32 s47, s51, 10")
    a("s_add_u32 s46, s46, s47"); a("s_add_u32 s78, s46, %d" % PART)
    a("s_and_b32 s46, s51, 1"); a("s_mul_i32 s61, s46, 36864"); a("s_add_u32 s61, s61, s60")
    a("s_lshr_b32 s47, s51, 2"); a("s_add_u32 s47, s47, 16"); a("s_lshl_b32 s46, s47, 10"); a("s_add_u32 s79, s46, s61")
    a("s_lshl_b32 s47, s47, 6"); a("s_add_u32 s61, s61, s47"); a("s_and_b32 s46, s51, 2"); a("s_lshl_b32 s46, s46, 2"); a("s_add_u32 s61, s61, s46")
    def w3(body):
        def f():
            L = a.newlabel("Lex"); a("s_cmp_lg_u32 s%d, 3" % S_WAVE); a("s_cbranch_scc1 %s" % L); body(); a.label(L)
        return f
    def extra_ask(): a("buffer_load_dword v29, v5, s[%d:%d], s74 offen sc1" % (R_WS, R_WS+3))
    def extra_get():
        confirm(29, 5, 74, S_NONCE, 2)
        for k in range(8):
            a(bload(RB+4*k, 78, t="v")); a("s_add_u32 s78, s78, 8192")
        for k, off in enumerate((H_OFF, X1_OFF)):
            for T in range(2):
                a("s_add_u32 s46, s79, %d" % (off + 18432*T)); a(bload(RB+32+8*k+4*T, 46, t="v"))
    a("s_lshl_b32 s62, s66, 16"); a("s_add_u32 s62, s62, s56"); a("s_mov_b32 s66, s65")
    for k in range(1, 8):
        r = SC(k); a("s_sub_u32 s%d, s51, %d" % (r, k)); a("s_and_b32 s%d, s%d, 7" % (r, r)); a("s_lshl_b32 s%d, s%d, 13" % (r, r)); a("s_add_u32 s%d, s%d, s69" % (r, r))
    CB = {1: ("v", ST), 2: ("v", AC), 3: ("v", AC+8), 4: ("v", RB+48), 5: ("a", RING), 6: ("v", RB+56), 7: ("v", RB+64)}
    def cload(k): return "\n".join(bload(CB[k][1]+4*p, SC(k), 1024*p, t=CB[k][0]) for p in range(2))
    def need(c, n):
        def f(): a("s_add_u32 s73, s%d, %d" % (S_NONCE, c)); confirm(31, 5, 70, 73, n)
        return f
    def add(acc, k, n):
        def f():
            a("s_waitcnt vmcnt(%d)" % n)
            for T in range(4): a(mfma(acc+4*T, SEL if T & 1 else SEL+2, CB[k][1]+4*(T >> 1), acc+4*T, tb=CB[k][0]))
        return f
    def load7(j): return {4: cload(1), 6: cload(2), 8: cload(3), 14: cload(4)}.get(j, "")
    def seq(*fs):
        def f():
            for x in fs: x()
        return f
    subpass(AC+16, pstore(AC), ring=RBB, depth=20, loads=load7, head=nxt,
            at={3: publish, 4: seq(need(4, 3), w3(extra_ask)), 12: ask_all, 14: add(R3, 1, 5), 16: seq(add(R3, 2, 3), add(R3, 3, 3))})
    a.stamp("p6_s7")
    a("s_lshl_b32 s62, s66, 16"); a("s_add_u32 s62, s62, s56")
    SEv, EA = AC+16, AC+24
    g = G()
    g.lines += select(SEv, 51, 1)
    g("v_mul_u32_u24 v%d, 144, v%d" % (AC+20, V_R)); g("v_lshl_add_u32 v%d, v%d, 4, v%d" % (AC+20, V_G, AC+20))
    g.lines.append("s_lshr_b32 s66, s%d, 1\ns_lshl_b32 s66, s66, 6\ns_and_b32 s67, s%d, 1\ns_lshl_b32 s67, s67, 3\ns_add_u32 s66, s66, s67" % (S_WAVE, S_WAVE))
    g("v_add_u32 v%d, s66, v%d" % (AC+20, AC+20))
    g("v_lshrrev_b32 v%d, 3, v0" % EA); g("v_and_b32 v%d, 7, v0" % (EA+1)); g("v_lshlrev_b32 v%d, 4, v%d" % (EA+1, EA+1))
    g("v_mul_u32_u24 v%d, 144, v%d" % (AC+21, EA)); g("v_add_u32 v%d, v%d, v%d" % (AC+21, AC+21, EA+1))
    g("v_mul_u32_u24 v%d, 1152, v%d" % (AC+22, EA)); g("v_add_u32 v%d, v%d, v%d" % (AC+22, AC+22, EA+1))
    g("v_mul_u32_u24 v%d, 1152, v%d" % (AC+23, V_R)); g("v_lshl_add_u32 v%d, v%d, 4, v%d" % (AC+23, V_G, AC+23))
    def load8(j): return {6: cload(5), 12: cload(6), 17: cload(7)}.get(j, "")
    subpass(AC, pstore(AC+16) + g.lines, depth=63, loads=load8, head=nxt, c0=R3, at={6: seq(need(5, 2), add(AC, 4, 2)), 7: w3(extra_get)})
    a.stamp("p6_b")
    a.srd(R_A, S_OUT, ACT)
    a("s_cmp_lg_u32 s%d, 3" % S_WAVE); a("s_cbranch_scc1 L_p7_main")
    a("s_waitcnt vmcnt(4)")
    for k in range(8):
        a(mfma(EA, SEL+2, RB+4*k, None if k == 0 else EA)); a(mfma(EA+4, SEL, RB+4*k, None if k == 0 else EA+4))
    for k in range(2):
        for T in range(2): a(mfma(EA+4*T, SEv, RB+32+8*k+4*T, EA+4*T))
    for T in range(2):
        for h in range(2): a("v_cvt_pk_bf16_f32 v%d, v%d, v%d" % (PK+2*T+h, EA+4*T+2*h, EA+4*T+2*h+1))
    a.label("L_p7_main")
    add(AC, 5, 2)()
    for k in (6, 7):
        base = CB[k][1]
        L = a.newlabel("Ltag")
        a("s_mov_b32 s47, 100000")
        if k == 7: a("s_waitcnt vmcnt(0)")
        a.label(L)
        a("v_max3_u32 v30, v%d, v%d, v%d" % (base, base+1, base+2)); a("v_max3_u32 v31, v%d, v%d, v%d" % (base+3, base+4, base+5))
        a("v_max3_u32 v30, v30, v%d, v%d" % (base+6, base+7)); a("v_max_u32 v30, v30, v31")
        a("v_cmp_eq_u32 vcc, -1, v30"); a("s_cbranch_vccz %s_x" % L)
        a(cload(k))
        a("s_waitcnt vmcnt(0)")
        a("s_sub_u32 s47, s47, 1"); a("s_cbranch_scc0 %s" % L)
        a.label(L + "_x")
        add(AC, k, 63)()
    a.stamp("p7_ready")
    a("s_cmp_lg_u32 s%d, 3" % S_WAVE); a("s_cbranch_scc1 L_p7_acc")
    for T in range(2):
        a("buffer_store_dwordx2 v[%d:%d], v%d, s[%d:%d], s61 offen" % (PK+2*T, PK+2*T+1, AC+23, R_A, R_A+3))
        a("s_add_u32 s61, s61, 18432")
    a.label("L_p7_acc")
    a("s_lshl_b32 s46, s51, 7"); a("s_add_u32 s46, s46, s60"); a("s_add_u32 s47, s46, 36864")
    for T in range(4):
        for h in range(2): a("v_cvt_pk_bf16_f32 v%d, v%d, v%d" % (R3+2*T+h, AC+4*T+2*h, AC+4*T+2*h+1))
        a("ds_write_b64 v%d, v[%d:%d] offset:%d" % (AC+20, R3+2*T, R3+2*T+1, 2304*T))
    a("s_waitcnt lgkmcnt(0)"); a("s_barrier")
    for p in range(2): a("ds_read_b128 v[%d:%d], v%d offset:%d" % (R3+8+4*p, R3+11+4*p, AC+21, 4608*p))
    for p in range(2):
        a("s_waitcnt lgkmcnt(%d)" % (1-p))
        a("buffer_store_dwordx4 v[%d:%d], v%d, s[%d:%d], s%d offen" % (R3+8+4*p, R3+11+4*p, AC+22, R_A, R_A+3, 46+p))
```

```python
import sys, os, struct, math
sys.path.insert(0, "dev"); sys.path.insert(0, "bak")
from asmlib import Asm, build
from hazard import fix_hazards, check_waits

NAME = "sequential_preLN__sliding_block__mixer_s_mlp__prompt"
KN = NAME + "_kernel"

ACT = 2048*576*2
SW  = 576*576*2
BW  = 576*4608*2
FLAG0 = 128
F1, FS, F2, F3, F4, F5, FA, FB = 0, 256, 640, 896, 1152, 1408, 1664, 2688
TS_OFF = 0x80000
Q_OFF  = 0x90000
K_OFF  = Q_OFF + ACT
V_OFF  = K_OFF + ACT
O_OFF  = V_OFF + ACT
H_OFF  = O_OFF + ACT
T_OFF  = H_OFF + ACT
X1_OFF = T_OFF + ACT
SH_OFF = X1_OFF + ACT
SX_OFF = SH_OFF + 98304
WO_S   = SX_OFF + 98304
W1_S   = WO_S + SW
W2_S   = W1_S + SW
W3_S   = W2_S + SW
W4_S   = W3_S + BW
PART   = W4_S + BW
WS_END = PART + 32*9*8*8192
HPSZ   = 147456

WSOFF = 0
THR = int(os.environ.get('THR', 0))
NW3 = int(os.environ.get('NW3', 1))
ABL = os.environ.get('ABL', '').split(',')
CLK = 's_memtime'
def f32(x): return struct.unpack("<I", struct.pack("<f", x))[0]
def magic(d): return (1 << 32)//d + 1

S_X, S_WQKV, S_WO = 4, 6, 8
S_W1, S_W2, S_W3, S_W4 = 12, 14, 16, 18
S_OUT, S_DBG, S_WS = 20, 22, 24
R_WS, R_A, R_B = 28, 32, 36
S_WAVE, S_XCD, S_SLOT, S_NONCE = 40, 41, 42, 43
S_ONES = 44
V_LANE, V_R, V_G, V_L16 = 1, 2, 3, 4

class G(Asm):
    def __init__(s, stop=99, stamps=False):
        super().__init__()
        s.stop = stop; s.stamps = stamps; s.nstamp = 0
    def srd(a, d, p, size, add=0):
        if add >= 0:
            a("s_add_u32 s%d, s%d, %s" % (d, p, add)); a("s_addc_u32 s%d, s%d, 0" % (d+1, p+1))
        else:
            a("s_sub_u32 s%d, s%d, %d" % (d, p, -add)); a("s_subb_u32 s%d, s%d, 0" % (d+1, p+1))
        a("s_mov_b32 s%d, %d" % (d+2, size)); a("s_mov_b32 s%d, 0x20000" % (d+3))
    def srd_s(a, d, p, size, sreg):
        a("s_add_u32 s%d, s%d, s%d" % (d, p, sreg)); a("s_addc_u32 s%d, s%d, 0" % (d+1, p+1))
        a("s_mov_b32 s%d, %d" % (d+2, size)); a("s_mov_b32 s%d, 0x20000" % (d+3))
    def sdiv(a, q, r, x, d):
        a("s_mul_hi_u32 s%d, s%d, %d" % (q, x, magic(d)))
        if r is not None:
            a("s_mul_i32 s%d, s%d, %d" % (r, q, d)); a("s_sub_u32 s%d, s%d, s%d" % (r, x, r))
    def stamp(a, name):
        if not a.stamps or name not in a.stamps: return
        k = a.stamps.index(name)
        a("%s s[98:99]" % CLK); a("s_waitcnt lgkmcnt(0)"); a("s_mov_b32 s%d, s98" % (80+k))
    def stamp_out(a):
        if not a.stamps: return
        a.stamp("end")
        a("s_lshl_b32 s98, s2, 2"); a("s_add_u32 s98, s98, s%d" % S_WAVE); a("s_lshl_b32 s98, s98, 6"); a("s_add_u32 s98, s98, %d" % TS_OFF)
        a("v_mov_b32 v255, 0")
        for k in range(16):
            a("v_mov_b32 v254, s%d" % (80+k))
            a("buffer_store_dword v254, v255, s[%d:%d], s98 offen offset:%d" % (R_WS, R_WS+3, 4*k))
            a("s_nop 1")
    def xg_reduce(a, v, t, op="v_add_f32"):
        for sw in ("v_permlane32_swap_b32", "v_permlane16_swap_b32"):
            a("v_mov_b32 v%d, v%d" % (t, v)); a("%s v%d, v%d" % (sw, v, t)); a("%s v%d, v%d, v%d" % (op, v, v, t))
    def get_nonce(a, vt):
        L = a.newlabel("Lnon")
        a("s_mov_b32 s46, 200000"); a("v_mov_b32 v%d, 0" % (vt+2))
        a.label(L)
        a("global_load_dwordx2 v[%d:%d], v%d, s[%d:%d] sc1" % (vt, vt+1, vt+2, S_DBG, S_DBG+1))
        a("s_waitcnt vmcnt(0)")
        a("v_readfirstlane_b32 s47, v%d" % (vt+1)); a("v_readfirstlane_b32 s%d, v%d" % (S_NONCE, vt))
        a("s_sub_u32 s46, s46, 1"); a("s_cbranch_scc1 %s_x" % L)
        a("s_cmp_eq_u32 s47, 0"); a("s_cbranch_scc1 %s" % L)
        a.label(L + "_x")
    def set_flag(a, sidx, vt):
        a("s_lshl_b32 s%d, s%d, 7" % (sidx, sidx)); a("s_add_u32 s%d, s%d, %d" % (sidx, sidx, FLAG0))
        a("v_mov_b32 v%d, s%d" % (vt, S_NONCE)); a("v_mov_b32 v%d, 0" % (vt+1))
        a("s_mov_b64 exec, 1")
        a("buffer_store_dword v%d, v%d, s[%d:%d], s%d offen sc1" % (vt, vt+1, R_WS, R_WS+3, sidx))
        a("s_mov_b64 exec, -1")
    def poll(a, vidx, vt, sleep0=6, sleep=2):
        L = a.newlabel("Lpoll")
        a("v_lshlrev_b32 v%d, 7, v%d" % (vidx, vidx))
        a("s_mov_b32 s46, 100000")
        if sleep0: a("s_sleep %d" % sleep0)
        a.label(L)
        a("buffer_load_dword v%d, v%d, s[%d:%d], 0 offen offset:%d sc1" % (vt, vidx, R_WS, R_WS+3, FLAG0))
        a("s_waitcnt vmcnt(0)")
        a("v_cmp_ne_u32 vcc, s%d, v%d" % (S_NONCE, vt))
        a("s_cbranch_vccz %s_x" % L)
        a("s_sleep %d" % sleep)
        a("s_sub_u32 s46, s46, 1"); a("s_cbranch_scc0 %s" % L)
        a.label(L + "_x")

def mfma(d, A, B, C=None, ta="v", tb="v", td="v"):
    c = "0" if C is None else "%s[%d:%d]" % (td, C, C+3)
    return "v_mfma_f32_16x16x32_bf16 %s[%d:%d], %s[%d:%d], %s[%d:%d], %s" % (td, d, d+3, ta, A, A+3, tb, B, B+3, c)

def interleave(a, main, fill, start=0):
    n = len(main) - start; k = 0
    for i, m in enumerate(main):
        a(m)
        if i >= start:
            upto = (len(fill)*(i-start+1) + n - 1)//n
            while k < upto: a(fill[k]); k += 1

def prologue(a):
    a("s_cmp_ge_u32 s2, 256"); a("s_cbranch_scc1 L_end")
    a("s_load_dwordx4 s[4:7], s[0:1], 0")
    a("s_load_dwordx2 s[24:25], s[0:1], 80")
    a("s_load_dwordx2 s[8:9], s[0:1], 16")
    a("s_load_dwordx8 s[12:19], s[0:1], 32")
    a("s_load_dwordx4 s[20:23], s[0:1], 64")
    a("v_and_b32 v%d, 63, v0" % V_LANE)
    a("v_lshrrev_b32 v5, 6, v0")
    a("v_and_b32 v%d, 15, v0" % V_R)
    a("v_readfirstlane_b32 s%d, v5" % S_WAVE)
    a("v_lshrrev_b32 v%d, 4, v%d" % (V_G, V_LANE))
    a("v_lshlrev_b32 v%d, 4, v%d" % (V_L16, V_LANE))
    a("s_and_b32 s%d, s2, 7" % S_XCD); a("s_lshr_b32 s%d, s2, 3" % S_SLOT)
    a("s_mov_b32 s%d, 0x3f803f80" % S_ONES)
    if "nopf" not in ABL:
        a("s_getpc_b64 s[46:47]")
        a.label("L_pc")
        a("s_lshl_b32 s48, s%d, 11" % S_SLOT); a("v_lshl_add_u32 v5, v0, 7, s48")
        a("v_cmp_gt_u32 vcc, 16, v0"); a("s_mov_b32 s48, L_end-L_pc"); a("v_cmp_gt_u32 s[48:49], s48, v5"); a("s_and_b64 vcc, vcc, s[48:49]")
        a("s_and_saveexec_b64 s[48:49], vcc"); a("s_cbranch_execz L_pcd")
        a("global_load_dword v253, v5, s[46:47]")
        a.label("L_pcd")
        a("s_mov_b64 exec, -1")
    if a.stamps:
        for k in range(16): a("s_mov_b32 s%d, 0" % (80+k))
        a.stamp("start")

def publish_nonce(a):
    L = a.newlabel("Lpn")
    a("s_xor_b32 s46, s2, 224"); a("s_or_b32 s46, s46, s%d" % S_WAVE); a("s_cmp_lg_u32 s46, 0"); a("s_cbranch_scc1 %s" % L)
    a("v_mov_b32 v252, 0")
    a("buffer_load_dword v250, v252, s[%d:%d], 0 offen sc1" % (R_WS, R_WS+3))
    a("s_mov_b32 s46, 0x9E3779B1")
    a("s_waitcnt vmcnt(0)")
    a("v_mul_lo_u32 v250, v250, s46"); a("v_add_u32 v250, 0x7F4A7C15, v250"); a("v_mov_b32 v251, 1")
    a("s_mov_b64 exec, 1")
    a("buffer_store_dword v250, v252, s[%d:%d], 0 offen sc1" % (R_WS, R_WS+3))
    a("global_store_dwordx2 v252, v[250:251], s[%d:%d] sc1" % (S_DBG, S_DBG+1))
    a("s_mov_b64 exec, -1")
    a.label(L)

def swizzle_setup(a):
    for i in range(9):
        a("v_add_u32 v40, %d, v%d" % (64*i, V_LANE))
        a("v_mul_u32_u24 v%d, 911, v40" % (10+i)); a("v_lshrrev_b32 v%d, 16, v%d" % (10+i, 10+i))
        a("v_mul_u32_u24 v41, 72, v%d" % (10+i)); a("v_sub_u32 v41, v40, v41"); a("v_lshlrev_b32 v%d, 4, v41" % (20+i))
    a("v_lshrrev_b32 v40, 2, v%d" % V_R); a("v_lshl_add_u32 v40, v%d, 3, v40" % V_G); a("v_mul_u32_u24 v40, 1152, v40")
    a("v_and_b32 v41, 3, v%d" % V_R); a("v_lshl_add_u32 v30, v41, 4, v40")
    a("s_lshr_b32 s46, s%d, 1" % S_WAVE); a("s_lshl_b32 s46, s46, 6"); a("s_and_b32 s47, s%d, 1" % S_WAVE); a("s_lshl_b32 s47, s47, 3")
    a("s_add_u32 s46, s46, s47"); a("v_add_u32 v30, s46, v30")

def sw_decode(a, su, p):
    Ln = a.newlabel("Lsw")
    D = 60+3*p
    a("s_cmp_ge_u32 s%d, 54" % su); a("s_cbranch_scc1 %s_big" % Ln)
    a.sdiv(51, 52, su, 18)
    a("s_cmp_eq_u32 s51, 1"); a("s_cselect_b32 s54, s%d, s%d" % (S_W1, S_W2)); a("s_cselect_b32 s55, s%d, s%d" % (S_W1+1, S_W2+1))
    a("s_cmp_eq_u32 s51, 0"); a("s_cselect_b32 s54, s%d, s54" % S_WO); a("s_cselect_b32 s55, s%d, s55" % (S_WO+1))
    a("s_mul_i32 s%d, s51, %d" % (D, SW)); a("s_add_u32 s%d, s%d, %d" % (D, D, WO_S))
    a("s_mul_i32 s53, s%d, 18432" % S_WAVE); a("s_add_u32 s%d, s%d, s53" % (D, D))
    a("s_mov_b32 s%d, 73728" % (D+1))
    a("s_lshl_b32 s56, s52, 5"); a("s_lshl_b32 s53, s%d, 3" % S_WAVE); a("s_add_u32 s56, s56, s53")
    a("s_mov_b32 s57, 0"); a("s_mov_b32 s59, 1152")
    a("s_cmp_lg_u32 s51, 0"); a("s_cbranch_scc1 %s_j" % Ln)
    a("s_mul_i32 s56, s52, 36"); a("s_lshl_b32 s53, s%d, 2" % S_WAVE); a("s_add_u32 s56, s56, s53"); a("s_mov_b32 s57, 16")
    a("s_cmp_lt_u32 s52, 16"); a("s_cbranch_scc1 %s_j" % Ln)
    a("s_sub_u32 s56, s52, 16"); a("s_lshl_b32 s56, s56, 2"); a("s_add_u32 s56, s56, s%d" % S_WAVE)
    a("s_mul_i32 s56, s56, 72"); a("s_add_u32 s56, s56, 16"); a("s_mov_b32 s57, 32")
    a("s_branch %s_j" % Ln)
    a.label(Ln + "_big")
    sw_big(a, su, D)
    a("s_lshl_b32 s56, s52, 5"); a("s_lshl_b32 s53, s%d, 3" % S_WAVE); a("s_add_u32 s56, s56, s53"); a("s_mov_b32 s57, 0")
    a("s_cmp_ge_u32 s51, 8"); a("s_cbranch_scc1 %s_w4" % Ln)
    a("s_mul_i32 s53, s51, 1152"); a("s_add_u32 s54, s%d, s53" % S_W3); a("s_addc_u32 s55, s%d, 0" % (S_W3+1)); a("s_mov_b32 s59, 9216")
    a("s_branch %s_j" % Ln)
    a.label(Ln + "_w4")
    a("s_sub_u32 s53, s51, 8"); a("s_mul_i32 s53, s53, %d" % SW); a("s_add_u32 s54, s%d, s53" % S_W4); a("s_addc_u32 s55, s%d, 0" % (S_W4+1)); a("s_mov_b32 s59, 1152")
    a.label(Ln + "_j")
    a("s_lshl_b32 s53, s52, 10"); a("s_add_u32 s%d, s%d, s53" % (D, D))
    a("s_add_u32 s%d, s%d, %d" % (D+2, su, FS))

def sw_big(a, su, D):
    a("s_sub_u32 s53, s%d, 54" % su); a.sdiv(51, 52, 53, 18)
    a("s_mul_i32 s%d, s51, %d" % (D, 4*9*18432)); a("s_add_u32 s%d, s%d, %d" % (D, D, W3_S))
    a("s_mul_i32 s53, s%d, %d" % (S_WAVE, 9*18432)); a("s_add_u32 s%d, s%d, s53" % (D, D))
    a("s_mov_b32 s%d, 18432" % (D+1))

def sw_issue(a, su, p, lds):
    sw_decode(a, su, p)
    a("s_mov_b32 s%d, s54" % R_A); a("s_mov_b32 s%d, s55" % (R_A+1))
    a("s_mul_i32 s%d, s59, 575" % (R_A+2)); a("s_add_u32 s%d, s%d, 1152" % (R_A+2, R_A+2)); a("s_mov_b32 s%d, 0x20000" % (R_A+3))
    a("s_mul_i32 s53, s%d, 9216" % S_WAVE); a("s_add_u32 m0, s53, %d" % lds)
    for k in range(9):
        a("v_lshrrev_b32 v40, 2, v%d" % (10+k)); a("v_mul_lo_u32 v40, v40, s57"); a("v_add3_u32 v40, v40, v%d, s56" % (10+k))
        a("v_mul_lo_u32 v40, v40, s59"); a("v_add_u32 v40, v40, v%d" % (20+k))
        a("buffer_load_dwordx4 v40, s[%d:%d], 0 offen lds" % (R_A, R_A+3))
        a("s_add_u32 m0, m0, 1024")

def sw_process(a, p, lds):
    a("v_add_u32 v31, %d, v30" % lds)
    for q in range(9):
        for hh in range(2):
            a("ds_read_b64_tr_b16 v[%d:%d], v31 offset:%d" % (44+4*q+2*hh, 45+4*q+2*hh, hh*4608 + 128*q))
    a("s_mov_b32 s53, s%d" % (60+3*p))
    for q in range(9):
        a("s_waitcnt lgkmcnt(%d)" % min(15, 16-2*q))
        a("buffer_store_dwordx4 v[%d:%d], v%d, s[%d:%d], s53 offen sc1" % (44+4*q, 47+4*q, V_L16, R_WS, R_WS+3))
        a("s_add_u32 s53, s53, s%d" % (61+3*p))

def sw_flags(a, ps, nonce=False):
    L = a.newlabel("Lswf")
    a("s_cmp_lg_u32 s%d, 0" % S_WAVE); a("s_cbranch_scc1 %s" % L)
    if nonce: a.get_nonce(36)
    for p in ps: a.set_flag(62+3*p, 40)
    a.label(L)

def touch_inputs(a, nwg):
    nx, nw = -(-18432//(2*nwg)), -(-15552//(2*nwg))
    a("s_mul_i32 s46, s50, 14"); a("s_add_u32 s46, s46, s51"); a("s_lshl_b32 s46, s46, 1"); a("s_add_u32 s46, s46, s53")
    a("v_lshlrev_b32 v252, 7, v%d" % V_LANE)
    L = a.newlabel("Lti")
    a("s_cmp_lg_u32 s52, 0"); a("s_cbranch_scc1 %s_w" % L)
    a("s_mul_i32 s46, s46, %d" % (128*nx)); a("s_add_u32 s46, s46, 4096"); a("s_mov_b64 exec, 0x%x" % ((1 << nx) - 1) if nx <= 32 else "s_bfm_b64 exec, %d, 0" % nx)
    a("buffer_load_dword v253, v252, s[%d:%d], s46 offen" % (R_A, R_A+3))
    a("s_branch %s" % L)
    a.label(L + "_w")
    a("s_mul_i32 s46, s46, %d" % (128*nw)); a("s_add_u32 s46, s46, 4096"); a("s_bfm_b64 exec, %d, 0" % nw)
    a("buffer_load_dword v253, v252, s[%d:%d], s46 offen" % (R_B, R_B+3))
    a.label(L)
    a("s_mov_b64 exec, -1")

def phase1(a):
    QS = 18**-0.5 * math.log2(math.e)
    a("s_cmp_ge_u32 s%d, 28" % S_SLOT); a("s_cbranch_scc1 L_p1_helper")
    a.sdiv(46, 47, S_SLOT, 7)
    a("s_lshr_b32 s48, s%d, 1" % S_XCD); a("s_lshl_b32 s48, s48, 2"); a("s_add_u32 s50, s48, s46")
    a("s_and_b32 s48, s%d, 1" % S_XCD); a("s_mul_i32 s48, s48, 7"); a("s_add_u32 s51, s48, s47")
    a("s_lshr_b32 s52, s%d, 1" % S_WAVE); a("s_and_b32 s53, s%d, 1" % S_WAVE)
    a("v_lshrrev_b32 v20, 3, v%d" % V_LANE); a("v_and_b32 v21, 7, v%d" % V_LANE)
    a("v_xor_b32 v22, v21, v%d" % V_G); a("v_mul_u32_u24 v20, 1152, v20")
    a("v_lshl_add_u32 v10, v22, 4, v20"); a("v_xor_b32 v22, 4, v22"); a("v_lshl_add_u32 v11, v22, 4, v20")
    a("v_add_u32 v12, %d, v10" % (16*1152 - 2048 + 4096)); a("v_add_u32 v13, %d, v11" % (24*1152 - 3072 + 4096))
    a("v_add_u32 v11, %d, v11" % (8*1152 - 1024 + 4096)); a("v_add_u32 v10, 4096, v10")
    a("v_lshrrev_b32 v20, 1, v%d" % V_R); a("v_xor_b32 v20, v20, v%d" % V_G); a("v_and_b32 v21, 1, v%d" % V_LANE)
    a("v_lshl_add_u32 v21, v20, 1, v21"); a("v_mul_u32_u24 v22, 3456, v%d" % V_G)
    a("v_lshl_add_u32 v14, v21, 4, v22"); a("v_xor_b32 v21, 8, v21"); a("v_lshl_add_u32 v16, v21, 4, v22")
    a("v_add_u32 v15, %d, v14" % (4*3456 - 1024 + 4096)); a("v_add_u32 v17, %d, v16" % (12*3456 - 3072 + 4096))
    a("v_add_u32 v16, %d, v16" % (8*3456 - 2048 + 4096)); a("v_add_u32 v14, 4096, v14")
    a("s_lshl_b32 s54, s50, 2"); a("s_add_u32 s54, s54, s%d" % S_WAVE); a("s_mul_i32 s54, s54, %d" % (32*1152))
    a("s_mul_i32 s55, s%d, %d" % (S_WAVE, 16*3456)); a("s_lshl_b32 s46, s51, 8"); a("s_add_u32 s55, s55, s46")
    a("s_lshl_b32 s56, s%d, 12" % S_WAVE)
    a("s_waitcnt lgkmcnt(0)")
    if WSOFF: a("s_add_u32 s24, s24, %d" % WSOFF); a("s_addc_u32 s25, s25, 0")
    a.srd(R_A, S_X, ACT + 4096, -4096); a.srd(R_B, S_WQKV, 576*3456 + 4096, -4096)
    a.sdiv(46, 47, S_SLOT, 7)
    a("s_and_b32 s48, s%d, 1" % S_XCD); a("s_add_u32 s46, s46, s48"); a("s_lshl_b32 s46, s46, 1"); a("s_add_u32 s46, s46, s47")
    a("s_bfe_u32 s47, s%d, 0x10001" % S_XCD); a("s_add_u32 s46, s46, s47"); a("s_and_b32 s47, s%d, 4" % S_XCD); a("s_lshl_b32 s47, s47, 1"); a("s_add_u32 s46, s46, s47")
    a.sdiv(47, 67, 46, 9)
    if "p1norot" in ABL: a("s_mov_b32 s67, 0")
    def dma(sbuf):
        X = ["buffer_load_dwordx4 v%d, s[%d:%d], s68 offen offset:%d lds" % (10+j, R_A, R_A+3, 1024*j) for j in range(4)]
        W = ["buffer_load_dwordx4 v%d, s[%d:%d], s69 offen offset:%d lds" % (14+j, R_B, R_B+3, 1024*j) for j in range(4)]
        X[0] = "s_mov_b32 m0, s%d\ns_lshl_b32 s68, s67, 7\ns_add_u32 s68, s68, s54\n" % sbuf + X[0]
        X[1] = "s_mul_i32 s69, s67, %d\ns_add_u32 s69, s69, s55\n" % (64*3456) + X[1]
        X[2] = "s_add_u32 s67, s67, 1\ns_cmp_eq_u32 s67, 9\ns_cselect_b32 s67, 0, s67\n" + X[2]
        W[0] = "s_add_u32 m0, s%d, 16384\ns_nop 0\n" % sbuf + W[0]
        return X + W
    for x in dma(56): a(x)
    a("s_add_u32 s56, s56, 32768")
    if "p1touch" in ABL: touch_inputs(a, 224)
    a.stamp("p1_issue")
    a.srd(R_WS, S_WS, WS_END)
    a("v_lshrrev_b32 v30, 2, v%d" % V_R); a("v_and_b32 v31, 3, v%d" % V_R)
    a("v_lshl_add_u32 v32, v%d, 3, v30" % V_G); a("v_lshlrev_b32 v32, 8, v32"); a("v_lshl_add_u32 v32, v31, 3, v32")
    a("v_add_u32 v32, 16384, v32")
    a("v_and_b32 v33, 1, v%d" % V_G); a("v_lshl_add_u32 v33, v33, 2, v30")
    a("s_lshl_b32 s46, s53, 2"); a("s_lshl_b32 s47, s52, 1"); a("s_or_b32 s57, s46, s47")
    for t in range(4):
        a("s_xor_b32 s46, s57, %d" % t); a("v_xor_b32 v34, s46, v33"); a("v_lshl_add_u32 v%d, v34, 5, v32" % (20+t))
    a("v_lshrrev_b32 v30, 1, v%d" % V_R); a("v_xor_b32 v30, v30, v%d" % V_G); a("v_lshlrev_b32 v31, 7, v%d" % V_R)
    a("s_lshl_b32 s46, s52, 13"); a("s_lshl_b32 s47, s53, 12"); a("s_add_u32 s46, s46, s47"); a("s_xor_b32 s47, s46, 4096")
    a("v_lshl_add_u32 v32, v30, 4, v31"); a("v_xor_b32 v33, 64, v32")
    a("v_add_u32 v24, s46, v32"); a("v_add_u32 v25, s47, v32"); a("v_add_u32 v26, s46, v33"); a("v_add_u32 v27, s47, v33")
    ACC, CS, ST, ONE = 48, 112, 120, 140
    XB = (144, 160); WB = (176, 192)
    WA, XA = 28, 32
    for r in range(ACC, ONE): a("v_mov_b32 v%d, 0" % r)
    for r in range(4): a("v_mov_b32 v%d, s%d" % (ONE+r, S_ONES))
    def addr(sbase):
        return ["v_add_u32 v%d, %s, v%d" % (WA+i, sbase, 20+i) for i in range(8)]
    def reads(jj):
        o = []
        for T in range(4):
            o.append("ds_read_b128 v[%d:%d], v%d offset:%d" % (XB[jj]+4*T, XB[jj]+4*T+3, XA+2*jj+(T>>1), 2048*(T&1)))
            for hh in range(2):
                o.append("ds_read_b64_tr_b16 v[%d:%d], v%d offset:%d" % (WB[jj]+4*T+2*hh, WB[jj]+4*T+2*hh+1, WA+T, jj*8192+hh*1024))
        return o
    def mm(jj, swap):
        o = []
        for t in range(4):
            for T in range(4):
                d = ACC+16*t+4*T
                o.append(mfma(d, XB[jj]+4*T, WB[jj]+4*t, d) if swap else mfma(d, WB[jj]+4*t, XB[jj]+4*T, d))
            if t < 2:
                d = CS+4*t
                o.append(mfma(d, ONE, WB[jj]+4*t, d) if swap else mfma(d, WB[jj]+4*t, ONE, d))
            x = XB[jj]+4*(t>>1); d = ST+4*t
            o.append(mfma(d, x if t & 1 else ONE, x, d))
        return o
    for x in addr("0"): a(x)
    a("s_lshl_b32 s60, s51, 1"); a("s_add_u32 s60, s60, s53")
    a("s_lshl_b32 s46, s50, 1"); a("s_add_u32 s46, s46, s52"); a("s_lshl_b32 s46, s46, 1"); a("s_add_u32 s47, s46, s53")
    a("s_xor_b32 s46, s47, 1"); a("s_mul_i32 s65, s47, 2304"); a("s_mul_i32 s66, s46, 2304"); a("s_mov_b32 s64, %d" % HPSZ)
    a("s_mov_b32 s58, 0"); a("s_mov_b32 s59, 0")
    a("s_cmp_ge_u32 s51, 9"); a("s_cbranch_scc1 L_p1_v0")
    for swap in (0, 1):
        L = "L_p1_v" if swap else "L_p1_qk"
        a.label(L + "0")
        if not swap:
            a("s_mov_b32 s62, %d" % Q_OFF); a("s_cmp_ge_u32 s60, 9"); a("s_cselect_b32 s61, 144, 0"); a("s_cselect_b32 s62, %d, s62" % K_OFF)
            a("s_cselect_b32 s73, 1.0, %d" % f32(QS))
            a("s_lshl_b32 s63, s60, 4"); a("s_sub_u32 s63, s63, s61")
            for t in range(4):
                a("s_lshl_b32 s46, s52, 1"); a("s_xor_b32 s46, s46, %d" % t); a("s_lshl_b32 s46, s46, 2"); a("s_add_u32 s46, s46, s63")
                a("v_add_u32 v212, s46, v%d" % V_G)
                a("v_mul_u32_u24 v213, 7282, v212"); a("v_lshrrev_b32 v213, 16, v213")
                a("v_mul_u32_u24 v214, 9, v213"); a("v_sub_u32 v212, v212, v214")
                a("v_cmp_lt_u32 vcc, 4, v212"); a("v_subb_co_u32 v214, vcc, v212, 0, vcc")
                a("v_cmp_eq_u32 vcc, 4, v212"); a("v_cndmask_b32 v214, v214, 8, vcc")
                a("v_mul_lo_u32 v213, v213, s64"); a("v_lshl_add_u32 v213, v214, 7, v213"); a("v_lshl_add_u32 v%d, v%d, 3, v213" % (208+t, V_R))
        else:
            a("s_mov_b32 s62, %d" % V_OFF); a("s_sub_u32 s63, s60, 18"); a("s_lshl_b32 s63, s63, 6")
            for t in range(4):
                a("s_lshl_b32 s46, s52, 1"); a("s_xor_b32 s46, s46, %d" % t); a("s_lshl_b32 s46, s46, 4"); a("s_add_u32 s46, s46, s63")
                a("v_add_u32 v212, s46, v%d" % V_R)
                a("v_mul_u32_u24 v213, 1821, v212"); a("v_lshrrev_b32 v213, 16, v213")
                a("v_mul_u32_u24 v214, 36, v213"); a("v_sub_u32 v212, v212, v214")
                a("v_lshl_add_u32 v214, v%d, 4, v212" % V_G)
                a("v_add_u32 v215, 44, v214")
                a("v_cmp_lt_u32 vcc, 19, v212"); a("v_cndmask_b32 v214, v214, v215, vcc")
                a("v_lshl_add_u32 v215, v212, 2, v%d" % V_G); a("v_add_u32 v215, 64, v215")
                a("v_lshrrev_b32 v212, 2, v212"); a("v_cmp_eq_u32 vcc, 4, v212"); a("v_cndmask_b32 v214, v214, v215, vcc")
                a("v_mul_lo_u32 v213, v213, s64"); a("v_lshl_add_u32 v%d, v214, 4, v213" % (208+t))
        a("s_add_u32 s65, s65, s62"); a("s_add_u32 s66, s66, s62")
        for x in dma(56): a(x)
        a("s_add_u32 s56, s56, 32768")
        a("s_waitcnt vmcnt(%d)" % (9 if "p1touch" in ABL else 8)); a("s_barrier")
        a.stamp("p1_first")
        for x in reads(0): a(x)
        a.label(L)
        a("s_cmp_ge_u32 s58, 7"); a("s_cbranch_scc1 %s_n" % L)
        for dm in (1, 0):
            d = dma(56) if (dm and "p1nodma" not in ABL) else []
            m = mm(0, swap)
            a("s_waitcnt lgkmcnt(0)")
            interleave(a, m[:14], reads(1))
            interleave(a, m[14:], d[:4])
            a("s_add_u32 s58, s58, 1")
            a("s_add_u32 s59, s59, 32768"); a("s_cmp_eq_u32 s59, 163840"); a("s_cselect_b32 s59, 0, s59")
            a("s_waitcnt vmcnt(%d) lgkmcnt(0)" % (4 if dm else 0))
            a("s_barrier")
            m = mm(1, swap); ad = addr("s59")
            interleave(a, m[:3], ad[4:6] + ad[0:4])
            interleave(a, m[3:15], reads(0) + ad[6:8])
            interleave(a, m[15:], d[4:])
            if dm:
                a("s_add_u32 s56, s56, 32768"); a("s_cmp_ge_u32 s56, 163840"); a("s_cselect_b32 s46, 163840, 0"); a("s_sub_u32 s56, s56, s46")
                a("s_branch %s" % L)
                a.label(L + "_n")
            else:
                a("s_cmp_lt_u32 s58, 9"); a("s_cbranch_scc1 %s_n" % L)
        a.stamp("p1_loop")
        a("s_waitcnt lgkmcnt(0)")
        a("v_and_b32 v40, 1, v%d" % V_R); a("v_cmp_eq_u32 s[74:75], 1, v40")
        a("v_and_b32 v40, 2, v%d" % V_R); a("v_cmp_eq_u32 s[76:77], 2, v40")
        a("v_lshrrev_b32 v40, 2, v%d" % V_R); a("v_cmp_eq_u32 s[78:79], v40, v%d" % V_G)
        a("s_mov_b32 s46, %d" % f32(1.0/576)); a("s_mov_b32 s47, %d" % f32(1e-5))
        for T in range(2):
            s_, q_ = ST+8*T, ST+8*T+4
            a("v_cndmask_b32 v%d, v%d, v%d, s[74:75]" % (q_, q_, q_+1)); a("v_cndmask_b32 v%d, v%d, v%d, s[74:75]" % (q_+2, q_+2, q_+3))
            a("v_mul_f32 v%d, s46, v%d" % (s_, s_))
            a("v_cndmask_b32 v%d, v%d, v%d, s[76:77]" % (q_, q_, q_+2))
            a("v_mul_f32 v42, v%d, v%d" % (s_, s_))
            a("v_fma_f32 v%d, v%d, s46, -v42" % (q_, q_)); a("v_max_f32 v%d, 0, v%d" % (q_, q_)); a("v_add_f32 v%d, s47, v%d" % (q_, q_))
            a("v_rsq_f32 v%d, v%d" % (36+2*T, q_)); a("v_mul_f32 v%d, v%d, -v%d" % (37+2*T, 36+2*T, s_))
        a("s_lshl_b32 s46, s52, 9"); a("s_lshl_b32 s47, s53, 8"); a("s_add_u32 s46, s46, s47")
        a("v_lshl_add_u32 v40, v%d, 3, s46" % V_R)
        a("s_mov_b64 exec, s[78:79]")
        a("ds_write_b64 v40, v[36:37]"); a("ds_write_b64 v40, v[38:39] offset:128")
        a("s_mov_b64 exec, -1")
        a("s_lshl_b32 s47, s57, 6")
        if not swap:
            a("v_lshl_add_u32 v41, v%d, 4, s47" % V_G)
            a("ds_write_b128 v41, v[%d:%d] offset:1024" % (CS, CS+3)); a("ds_write_b128 v41, v[%d:%d] offset:1088" % (CS+4, CS+7))
        else:
            a("v_lshl_add_u32 v41, v%d, 2, s47" % V_R)
            a("ds_write_b32 v41, v%d offset:1024" % CS); a("ds_write_b32 v41, v%d offset:1088" % (CS+4))
        a("s_waitcnt lgkmcnt(0)"); a("s_barrier")
        Ls = L + "_s"
        a("s_cmp_ge_u32 s60, 27"); a("s_cbranch_scc1 %s" % Ls)
        a("v_xor_b32 v42, 256, v40"); a("v_xor_b32 v43, 128, v41")
        if not swap:
            RS, CC = 144, 160
            a("ds_read_b64 v[%d:%d], v40" % (RS, RS+1)); a("ds_read_b64 v[%d:%d], v40 offset:128" % (RS+2, RS+3))
            a("ds_read_b64 v[%d:%d], v42" % (RS+4, RS+5)); a("ds_read_b64 v[%d:%d], v42 offset:128" % (RS+6, RS+7))
            for t in range(4):
                a("ds_read_b128 v[%d:%d], v%d offset:%d" % (CC+4*t, CC+4*t+3, 41 if t < 2 else 43, 1024+64*(t&1)))
            a("s_waitcnt lgkmcnt(0)")
            for T in range(4): a("v_pk_mul_f32 v[%d:%d], v[%d:%d], s[72:73] op_sel:[0,1] op_sel_hi:[1,1]" % (RS+2*T, RS+2*T+1, RS+2*T, RS+2*T+1))
            for t in range(4):
                for T in range(4):
                    d = ACC+16*t+4*T
                    for h in range(2):
                        a("v_pk_mul_f32 v[216:217], v[%d:%d], v[%d:%d] op_sel:[0,1] op_sel_hi:[1,1]" % (CC+4*t+2*h, CC+4*t+2*h+1, RS+2*T, RS+2*T+1))
                        a("v_pk_fma_f32 v[%d:%d], v[%d:%d], v[%d:%d], v[216:217] op_sel_hi:[1,0,1]" % (d+2*h, d+2*h+1, d+2*h, d+2*h+1, RS+2*T, RS+2*T+1))
                    a("v_cvt_pk_bf16_f32 v%d, v%d, v%d" % (d, d, d+1)); a("v_cvt_pk_bf16_f32 v%d, v%d, v%d" % (d+1, d+2, d+3))
                    a("buffer_store_dwordx2 v[%d:%d], v%d, s[%d:%d], s%d offen offset:%d sc1" % (d, d+1, 208+t, R_WS, R_WS+3, 65+(T>>1), 1152*(T&1)))
        else:
            RS, CC = 144, 176
            a("v_lshl_add_u32 v40, v%d, 5, s46" % V_G); a("v_xor_b32 v42, 256, v40")
            for T in range(4):
                for h in range(2):
                    a("ds_read_b128 v[%d:%d], v%d offset:%d" % (RS+8*T+4*h, RS+8*T+4*h+3, 40 if T < 2 else 42, 128*(T&1)+16*h))
            for t in range(4):
                a("ds_read_b32 v%d, v%d offset:%d" % (CC+t, 41 if t < 2 else 43, 1024+64*(t&1)))
            a("s_waitcnt lgkmcnt(0)")
            for t in range(4):
                for T in range(4):
                    d = ACC+16*t+4*T
                    for i in range(4):
                        a("v_mul_f32 v%d, v%d, v%d" % (216+i, RS+8*T+2*i+1, CC+t))
                    for i in range(4):
                        a("v_fma_f32 v%d, v%d, v%d, v%d" % (d+i, d+i, RS+8*T+2*i, 216+i))
                    e = ACC+16*t+8*(T>>1)+2*(T&1)
                    a("v_cvt_pk_bf16_f32 v%d, v%d, v%d" % (e, d, d+1)); a("v_cvt_pk_bf16_f32 v%d, v%d, v%d" % (e+1, d+2, d+3))
                    if T & 1:
                        a("buffer_store_dwordx4 v[%d:%d], v%d, s[%d:%d], s%d offen sc1" % (e-2, e+1, 208+t, R_WS, R_WS+3, 65+(T>>1)))
        a.label(Ls)
        if not swap: a("s_branch L_p1_pub")
    a.label("L_p1_pub")
    a.stamp("p1_stores")
    L = a.newlabel("Lp1f")
    a("s_cmp_lg_u32 s%d, 0" % S_WAVE); a("s_cbranch_scc1 %s_a" % L)
    a.get_nonce(36)
    a.label(L + "_a")
    a("s_waitcnt vmcnt(0)"); a("s_barrier")
    a("s_cmp_lg_u32 s%d, 0" % S_WAVE); a("s_cbranch_scc1 L_p1_done")
    a("s_lshl_b32 s46, s50, 4"); a("s_add_u32 s46, s46, s51"); a("s_add_u32 s46, s46, %d" % F1)
    a.set_flag(46, 36)
    a("s_branch L_p1_done")
    a.label("L_p1_helper")
    swizzle_setup(a)
    a("s_lshl_b32 s48, s%d, 2" % S_XCD); a("s_add_u32 s48, s48, s%d" % S_SLOT); a("s_sub_u32 s48, s48, 28")
    a("s_waitcnt lgkmcnt(0)")
    if WSOFF: a("s_add_u32 s24, s24, %d" % WSOFF); a("s_addc_u32 s25, s25, 0")
    a.srd(R_WS, S_WS, WS_END)
    publish_nonce(a)
    a("s_add_u32 s49, s48, 32"); a("s_cmp_lt_u32 s49, 54"); a("s_cselect_b32 s49, s49, s48")
    B = 36864
    L = a.newlabel("Lhn"); a("s_cmp_lg_u32 s%d, 0" % S_WAVE); a("s_cbranch_scc1 %s" % L); a.get_nonce(36); a.label(L)
    sw_issue(a, 48, 0, 0); sw_issue(a, 49, 1, B)
    a("s_waitcnt vmcnt(0)"); a("s_barrier")
    sw_process(a, 0, 0); sw_process(a, 1, B)
    if NW3: a("s_add_u32 s48, s48, 54"); sw_issue(a, 48, 2, 2*B)
    a("s_waitcnt vmcnt(%d)" % (9*NW3)); a("s_barrier")
    sw_flags(a, (0, 1), nonce=False)
    if NW3:
        a("s_waitcnt vmcnt(0)"); a("s_barrier")
        sw_process(a, 2, 2*B)
        a("s_waitcnt vmcnt(0)"); a("s_barrier")
        sw_flags(a, (2,))
    a.label("L_p1_done")
    a.stamp("p1_done")

def generate(stop=99, stamps=False):
    a = G(stop, stamps)
    prologue(a)
    phase1(a)
    from phases import phase2, phase345, phase6
    if stop >= 2: phase2(a)
    if stop >= 3: phase345(a)
    if stop >= 6: phase6(a)
    a.label("L_fin")
    a.stamp_out()
    a.label("L_end")
    a("s_endpgm")
    body, nops = fix_hazards(a.lines)
    return body, nops

HEADER = """; Fused transformer block (LN, QKV, sliding-window attention, Wo, shift-MLP, channel MLP) as one persistent kernel.
; 256 workgroups of 4 waves, one per CU; phases hand data over through d_ws with write-through stores and flags.
; @launch grid=(256,1,1) block=(256,1,1) lds=163840
.amdgcn_target "amdgcn-amd-amdhsa--gfx950"
.text
.globl %s
.p2align 8
.type %s,@function
%s:
""" % (KN, KN, KN)
FOOTER = """.section .rodata,"a"
.p2align 6
.amdhsa_kernel %s
  .amdhsa_next_free_vgpr 512
  .amdhsa_next_free_sgpr 102
  .amdhsa_accum_offset 256
  .amdhsa_group_segment_fixed_size 0
  .amdhsa_kernarg_size 88
  .amdhsa_user_sgpr_count 2
  .amdhsa_user_sgpr_kernarg_segment_ptr 1
  .amdhsa_system_sgpr_workgroup_id_x 1
.end_amdhsa_kernel
""" % KN

def main():
    import argparse
    p = argparse.ArgumentParser()
    p.add_argument("--stop", type=int, default=99); p.add_argument("--stamps", default=""); p.add_argument("--wsoff", type=int, default=0); p.add_argument("--rt", action="store_true")
    p.add_argument("-o", default="k.s")
    o = p.parse_args()
    global WSOFF, CLK
    if o.rt: CLK = 's_memrealtime'
    WSOFF = o.wsoff << 20
    st = STAMPSETS.get(o.stamps, o.stamps.split(',')) if o.stamps else None
    if st:
        st = ['start'] + list(st) + ['end']; assert len(st) <= 16
        open(o.o[:-2] + '.stamps', 'w').write(','.join(st))
    body, nops = generate(o.stop, st)
    text = HEADER + "\n".join(("" if l.endswith(":") else "  ") + l for l in body) + "\n" + FOOTER
    open(o.o, "w").write(text)
    build(o.o, o.o[:-2] + ".co", KN)
    n = sum(1 for l in body if l and not l.endswith(":"))
    print("instructions", n, "nop states added", nops)
    for nm, takes in TRACES.items():
        errs = check_waits(body, takes)
        for e in errs[:10]: print("WAIT[%s]" % nm, e)

STAMPSETS = {
 "all": "p1_first p1_loop p1_done p2_ready p2_loaded p2_done p3_ready p4_ready p5_ready p5_done p6_ready p6_x p6_a p6_b".split(),
 "p1": "p1_issue p1_first p1_loop p1_stores p1_done p2_ready p2_loaded p2_done p3_ready p4_ready p5_ready p5_done p6_ready p6_x".split(),
 "p3k": "p2_done p3_ready p3_k0 p3_k9 p3_gemm p4_ready p4_k0 p4_k9 p4_gemm p5_ready p5_k0 p5_k9 p5_gemm".split(),
 "hop": "p1_stores p1_done p2_ready p2_loaded p2_done p3_ready p3_epi p4_ready p4_epi p5_ready p5_epi p6_ready p6_x p6_b".split(),
 "p6": "p5_epi p6_ready p6_x p6_p0 p6_a p6_s0 p6_s6 p6_s7 p6_b p7_ready".split(),
 "p3": "p2_done p3_dma p3_drain p3_ready p3_gemm p3_epi p4_dma p4_drain p4_ready p4_gemm p4_epi p5_drain p5_ready p5_gemm".split(),
}
TRACES = {"w012": {"L_p7_main": True, "L_p1_qk_n": [False,True,False]}, "h3": {"L_p3_helper": True, "L_p1_qk_n": [False,True,False]}, "edge": {"L_p2_edge": True, "L_p1_qk_n": [False,True,False]}, "qk": {"L_p1_qk_n": [False,False,True,True,False]}, "v": {"L_p1_v0": True, "L_p1_v_n": [False,False,True,True,False]}, "helper": {"L_p1_helper": True}}

if __name__ == "__main__":
    sys.modules["gen"] = sys.modules["__main__"]
    main()
```

```python
from gen import *

NEG = 0xF149F2CA
SLEEP0 = dict(p2=0, p3=8, p4=0, p5=0, p6=8)
for _kv in os.environ.get('SLEEP', '').split(','):
    if _kv: SLEEP0[_kv.split('=')[0]] = int(_kv.split('=')[1])

W_LDS = 53248
AW1, AW2 = 40, 148
XT = 240
PA, PS, R_C = 216, (3, 27, 45), R_B

def pf_lds(i):
    gq, k = divmod(i, 9)
    pre = ("s_mul_i32 s58, s79, %d\ns_add_u32 s58, s58, s73\ns_add_u32 m0, s58, %d\ns_nop 0\n" % (gq, 1024*k)) if k == 0 or i == 2 else "s_add_u32 m0, m0, 1024\ns_nop 0\n"
    return pre + "buffer_load_dwordx4 v%d, s[%d:%d], s%d offen sc1 lds" % (PA+k, R_C, R_C+3, PS[gq])

def roles345(a):
    a("s_lshr_b32 s46, s%d, 3" % S_SLOT); a("s_lshl_b32 s74, s%d, 2" % S_XCD); a("s_add_u32 s74, s74, s46"); a("s_add_u32 s75, s%d, 6" % S_SLOT); a("s_and_b32 s75, s75, 7")
    a("s_lshl_b32 s76, s74, 2"); a("s_add_u32 s76, s76, s%d" % S_WAVE)

def phase2(a):
    KL_, VL_ = 0, 27648
    a("s_lshr_b32 s50, s%d, 1" % S_SLOT); a("s_and_b32 s51, s%d, 1" % S_SLOT); a("s_lshl_b32 s46, s%d, 1" % S_XCD); a("s_add_u32 s51, s51, s46")
    a("s_mul_i32 s52, s51, %d" % HPSZ)
    a("s_add_u32 s46, s52, %d" % K_OFF); a.srd_s(R_A, S_WS, HPSZ, 46)
    a("s_add_u32 s46, s52, %d" % V_OFF); a.srd_s(R_B, S_WS, HPSZ, 46)
    a("s_mul_i32 s46, s50, 9216"); a("s_sub_u32 s46, s46, 18432"); a("s_lshl_b32 s47, s%d, 10" % S_WAVE); a("s_add_u32 s46, s46, s47")
    a("v_add_u32 v10, s46, v%d" % V_L16)
    for i in range(1, 7): a("v_add_u32 v%d, %d, v10" % (10+i, 4096*i))
    a("s_lshl_b32 s46, s50, 3"); a("s_lshl_b32 s53, s%d, 1" % S_WAVE); a("s_add_u32 s53, s53, s46")
    a("s_mul_i32 s54, s53, 1152"); a("s_add_u32 s54, s54, s52"); a("s_add_u32 s54, s54, %d" % Q_OFF)
    a("v_lshlrev_b32 v17, 3, v%d" % V_LANE); a("v_lshlrev_b32 v18, 3, v%d" % V_R)
    a("s_mul_i32 s46, s%d, 2304" % S_WAVE)
    a("v_add_u32 v20, s46, v17")
    a("s_add_u32 s47, s46, 1024"); a("v_add_u32 v21, s47, v18")
    a("s_add_u32 s47, s46, %d" % VL_); a("v_add_u32 v22, s47, v%d" % V_L16)
    a("v_lshl_add_u32 v23, v%d, 2, v%d" % (V_R, V_G)); a("s_add_u32 s47, s47, 2048"); a("v_lshl_add_u32 v23, v23, 4, s47")
    for i in range(4):
        a("v_lshl_add_u32 v24, v%d, 2, %d" % (V_G, i)); a("v_cmp_gt_u32 s[%d:%d], v24, v%d" % (60+2*i, 61+2*i, V_R))
    a("v_cmp_eq_u32 s[68:69], 0, v%d" % V_G)
    a("v_mov_b32 v25, 0x%x" % NEG)
    for r in range(4): a("v_mov_b32 v%d, -1" % (232+r))
    a("v_and_b32 v229, 31, v%d" % V_LANE); a("v_lshlrev_b32 v229, 2, v229")
    VLA = 0
    for r in range(36): a("v_accvgpr_write_b32 a%d, s%d" % (VLA+r, S_ONES))
    roles345(a)
    a("s_mul_i32 s46, s75, 110592"); a("s_mul_i32 s47, s%d, 27648" % S_WAVE); a("s_add_u32 s70, s46, s47"); a("s_add_u32 s70, s70, %d" % WO_S)
    a("s_add_u32 s71, s70, %d" % SW); a("s_add_u32 s72, s71, %d" % SW)
    a("s_cmp_ge_u32 s75, 6"); a("s_cbranch_scc1 L_p2_hs")
    a("s_add_u32 s73, s47, %d" % W_LDS); a("s_mov_b32 s79, 9216")
    for gq in range(3): a("s_add_u32 s%d, s70, %d" % (PS[gq], 9216*gq))
    for i in range(9): a("v_add_u32 v%d, %d, v%d" % (PA+i, 1024*i, V_L16))
    a("s_mov_b32 s10, s%d" % S_WS); a("s_mov_b32 s11, s%d" % (S_WS+1)); a("s_mov_b32 s26, %d" % WS_END)
    a("s_branch L_p2_hd")
    a.label("L_p2_hs")
    a("s_mov_b32 s71, 0x70000000")
    a("s_mul_i32 s47, s%d, 9216" % S_WAVE); a("s_add_u32 s73, s47, %d" % W_LDS); a("s_mov_b32 s79, 36864")
    a("s_lshl_b32 s48, s74, 1"); a("s_add_u32 s48, s48, s75"); a("s_sub_u32 s48, s48, 6"); a("s_mul_i32 s48, s48, 3")
    a("s_cmp_lt_u32 s48, 144"); a("s_cselect_b32 s10, s%d, s%d" % (S_W3, S_W4)); a("s_cselect_b32 s11, s%d, s%d" % (S_W3+1, S_W4+1))
    a("s_cselect_b32 s49, 1152, 0"); a("s_cselect_b32 s59, 0, 144"); a("s_mov_b32 s46, 1152"); a("s_cselect_b32 s78, 9216, s46")
    a("s_mov_b32 s26, %d" % BW)
    for gq in range(3):
        a("s_add_u32 s46, s48, %d" % gq); a("s_sub_u32 s46, s46, s59")
        a.sdiv(47, 56, 46, 18)
        a("s_cmp_eq_u32 s59, 0"); a("s_cselect_b32 s56, s56, s46")
        a("s_lshl_b32 s56, s56, 2"); a("s_add_u32 s56, s56, s%d" % S_WAVE); a("s_lshl_b32 s56, s56, 3"); a("s_mul_i32 s56, s56, s78")
        a("s_mul_i32 s47, s47, s49"); a("s_add_u32 s%d, s56, s47" % (PS[gq]))
    for i in range(9):
        a("v_add_u32 v24, %d, v%d" % (64*i, V_LANE)); a("v_mul_u32_u24 v26, 911, v24"); a("v_lshrrev_b32 v26, 16, v26")
        a("v_mul_u32_u24 v27, 72, v26"); a("v_sub_u32 v27, v24, v27"); a("v_mul_lo_u32 v26, v26, s78"); a("v_lshl_add_u32 v%d, v27, 4, v26" % (PA+i))
    a.label("L_p2_hd")
    a("v_mul_u32_u24 v7, 1152, v%d" % V_R); a("v_lshl_add_u32 v7, v%d, 4, v7" % V_G)
    a("s_mul_i32 s46, s76, 18432"); a("s_mul_i32 s47, s75, 192"); a("s_add_u32 s77, s46, s47")
    a("s_cmp_ge_u32 s75, 6"); a("s_cselect_b32 s77, 0x70000000, s77")
    L = a.newlabel("Lp2w")
    a("s_cmp_lg_u32 s%d, 0" % S_WAVE); a("s_cbranch_scc1 %s" % L)
    a("v_lshrrev_b32 v30, 2, v%d" % V_LANE); a("v_min_u32 v30, 2, v30"); a("v_add_u32 v30, s50, v30"); a("v_subrev_u32 v30, 2, v30"); a("v_max_i32 v30, 0, v30")
    a("v_bfe_u32 v31, v%d, 1, 1" % V_LANE); a("v_add_u32 v31, 1, v31"); a("v_cmp_gt_u32 vcc, 12, v%d" % V_LANE); a("v_cndmask_b32 v31, 0, v31, vcc")
    a("v_mul_u32_u24 v31, 576, v31"); a("v_and_b32 v32, 1, v%d" % V_LANE); a("v_mul_u32_u24 v32, 35, v32")
    a("s_mul_i32 s46, s51, 36"); a("v_add3_u32 v31, v31, v32, s46"); a("v_lshrrev_b32 v31, 7, v31")
    a("v_lshl_add_u32 v30, v30, 4, v31"); a("v_add_u32 v30, %d, v30" % F1)
    a.stamp("p2_setup")
    a.poll(30, 31, sleep0=SLEEP0["p2"])
    a.label(L)
    a("s_barrier")
    a("v_min_u32 v38, 53, v%d" % V_LANE); a("v_add_u32 v38, %d, v38" % FS); a("v_lshlrev_b32 v38, 7, v38")
    a("buffer_load_dword v39, v38, s[%d:%d], 0 offen offset:%d sc1" % (R_WS, R_WS+3, FLAG0))
    a.stamp("p2_ready")
    QR = 26
    for qt in range(2):
        a("buffer_load_dwordx2 v[%d:%d], v17, s[%d:%d], s54 offen offset:%d sc1" % (QR+6*qt, QR+6*qt+1, R_WS, R_WS+3, 1152*qt))
        a("buffer_load_dwordx2 v[%d:%d], v18, s[%d:%d], s54 offen offset:%d sc1" % (QR+6*qt+2, QR+6*qt+3, R_WS, R_WS+3, 1152*qt+1024))
        a("buffer_load_dwordx2 v[%d:%d], v17, s[%d:%d], s54 offen offset:%d sc1" % (QR+6*qt+4, QR+6*qt+5, R_WS, R_WS+3, 1152*qt+512))
    a("s_lshl_b32 s46, s%d, 10" % S_WAVE)
    for R, base in ((R_A, KL_), (R_B, VL_)):
        for i in range(7):
            Ls = a.newlabel("Lp2d")
            if i == 6: a("s_cmp_eq_u32 s%d, 3" % S_WAVE); a("s_cbranch_scc1 %s" % Ls)
            a("s_add_u32 m0, s46, %d" % (base + 4096*i))
            a("buffer_load_dwordx4 v%d, s[%d:%d], 0 offen sc1 lds" % (10+i, R, R+3))
            if i == 6: a.label(Ls)
    a.srd(R_A, S_X, ACT)
    a("s_mov_b32 s%d, s10" % R_C); a("s_mov_b32 s%d, s11" % (R_C+1)); a("s_mov_b32 s%d, s26" % (R_C+2)); a("s_mov_b32 s%d, 0x20000" % (R_C+3))
    QF = 40
    a("s_waitcnt vmcnt(12)")
    for qt in range(2):
        q = QR+6*qt
        a("v_mov_b32 v%d, v%d" % (QF+4*qt, q)); a("v_mov_b32 v%d, v%d" % (QF+4*qt+1, q+1))
        a("v_cndmask_b32 v%d, 0, v%d, s[68:69]" % (QF+4*qt+2, q+2)); a("v_mov_b32 v%d, 0" % (QF+4*qt+3))
        a("v_mov_b32 v%d, v%d" % (QF+8+4*qt, q+4)); a("v_mov_b32 v%d, v%d" % (QF+8+4*qt+1, q+5))
        a("v_mov_b32 v%d, 0" % (QF+8+4*qt+2)); a("v_cndmask_b32 v%d, 0, v%d, s[68:69]" % (QF+8+4*qt+3, q+3))
    a("s_lshl_b32 s55, s50, 3"); a("s_lshl_b32 s46, s%d, 1" % S_WAVE); a("s_add_u32 s55, s55, s46"); a("s_sub_u32 s55, 16, s55")
    a("s_lshl_b32 s56, s2, 2"); a("s_add_u32 s56, s56, s%d" % S_WAVE); a("s_mul_i32 s56, s56, 5120"); a("s_min_u32 s56, s56, %d" % (WO_S - T_OFF - 5120)); a("s_add_u32 s56, s56, %d" % T_OFF)
    L = a.newlabel("Lfs")
    a("s_cmp_lg_u32 s%d, 0" % S_WAVE); a("s_cbranch_scc1 %s" % L)
    a("v_cmp_ne_u32 vcc, s%d, v39" % S_NONCE); a("s_cbranch_vccz %s" % L)
    a("v_lshrrev_b32 v38, 7, v38")
    a.poll(38, 39, sleep0=0)
    a.label(L)
    a("s_waitcnt vmcnt(6)"); a("s_barrier")
    a.stamp("p2_loaded")
    a("s_cmp_lt_u32 s50, 2"); a("s_cbranch_scc1 L_p2_edge")
    M, NM, CZ = 8, 56, 26
    KF = 64
    S2, P, VM = 136, 168, 184
    S1 = S2
    OM, OL, R_, OUT = 192, 200, 32, 208
    marks = "s_mov_b32 s46, %d\nbuffer_load_dword v228, v229, s[%d:%d], s46 offen sc1" % (FP_OFF, R_WS, R_WS+3)
    def prefetch():
        o = [pf_lds(i) for i in range(2, 27)]
        for q in range(5): o.insert(2*q + 1, ("s_add_u32 s56, s56, 4096\n" if q == 4 else "") + "buffer_store_dwordx4 v[232:235], v%d, s[%d:%d], s56 offen offset:%d sc1" % (V_L16, R_WS, R_WS+3, 1024*(q & 3)))
        for jj in range(3): o.append("buffer_load_dwordx4 v[%d:%d], v7, s[%d:%d], s77 offen offset:%d" % (XT+4*jj, XT+4*jj+3, R_A, R_A+3, 64*jj))
        for sb, ab in ((71, AW1),):
            for i in range(27):
                pre = "s_add_u32 s59, s%d, %d\n" % (sb, 1024*i) if i % 4 == 0 else ""
                o.append(pre + "buffer_load_dwordx4 a[%d:%d], v%d, s[%d:%d], s59 offen offset:%d sc1" % (ab+4*i, ab+4*i+3, V_L16, R_WS, R_WS+3, 1024*(i & 3)))
        return o
    for edge in (0, 1):
      if edge: a.label("L_p2_edge")
      pf = prefetch()
      def take(n):
          o = pf[:n]; del pf[:n]; return o
      for head in range(2):
        Q = QF + 8*head
        def kread(t):
            return ["ds_read_b64 v[%d:%d], v20 offset:%d" % (KF+4*t, KF+4*t+1, 1152*t + 512*head), "ds_read_b64 v[%d:%d], v21 offset:%d" % (KF+4*t+2, KF+4*t+3, 1152*t)]
        def vleft(m): return "ds_read_b128 a[%d:%d], v23 offset:%d" % (VLA+4*m, VLA+4*m+3, 2304*m + 128*head)
        def vmain(m): return "ds_read_b128 v[%d:%d], v22 offset:%d" % (VM+4*(m & 1), VM+4*(m & 1)+3, 2304*m + 1024*head)
        def has(qt, t): return (t <= 16) if qt == 0 else (t >= 1)
        def mask(reg, qt, t):
            o = []
            for i in range(4):
                if t == qt: o.append("v_cndmask_b32 v%d, v25, v%d, s[%d:%d]" % (reg+i, reg+i, 60+2*i, 61+2*i))
                if t == 16+qt: o.append("v_cndmask_b32 v%d, v%d, v25, s[%d:%d]" % (reg+i, reg+i, 60+2*i, 61+2*i))
            return o
        def switch(t, moves):
            Ls = a.newlabel("Lsw")
            a("s_cmp_eq_u32 s55, %d" % t); a("s_cbranch_scc0 %s" % Ls)
            for x in moves: a(x)
            a.label(Ls)
        AHEAD = 4
        if head:
            L = a.newlabel("Lmk")
            a("s_cmp_lg_u32 s%d, 0" % S_WAVE); a("s_cbranch_scc1 %s_x" % L)
            a("s_mov_b32 s47, 100000"); a("s_waitcnt vmcnt(%d)" % (npf0 - len(pf)))
            a.label(L)
            a("v_cmp_ne_u32 vcc, s%d, v228" % S_NONCE)
            a("s_cbranch_vccz %s_x" % L)
            a("s_sleep 2"); a(marks); a("s_waitcnt vmcnt(0)")
            a("s_sub_u32 s47, s47, 1"); a("s_cbranch_scc0 %s" % L)
            a.label(L + "_x")
            a("s_waitcnt vmcnt(20)"); a("s_barrier")
            publish2(a, 228)
        for t in range(AHEAD):
            for x in kread(t): a(x)
        a("v_mov_b32 v%d, v25" % M); a("v_mov_b32 v%d, v25" % (M+1))
        if edge:
            for i in range(4): a("v_mov_b32 v%d, v25" % (CZ+i))
        def maxes(t):
            o = []
            for qt in range(2):
                if not has(qt, t): continue
                s = S1 + 8*(t % 3) + 4*qt
                o += mask(s, qt, t)
                o.append("v_max3_f32 v%d, v%d, v%d, v%d" % (M+qt, s, s+1, M+qt))
            for qt in range(2):
                if not has(qt, t): continue
                s = S1 + 8*(t % 3) + 4*qt
                o.append("v_max3_f32 v%d, v%d, v%d, v%d" % (M+qt, s+2, s+3, M+qt))
            return o
        for t in range(18):
            if edge and t % 2 == 0: switch(t, ["v_mov_b32 v%d, 0" % (CZ+i) for i in range(4)])
            n = 2*min(AHEAD-1, 17-t)
            a("s_waitcnt lgkmcnt(%d)" % n)
            ms = [mfma(S1+8*(t % 3)+4*qt, KF+4*t, Q+4*qt, CZ if edge else None) for qt in range(2) if has(qt, t)]
            fill = (kread(t+AHEAD) if t+AHEAD < 18 else []) + (maxes(t-2) if t >= 2 else []) + (take(1) if t % 3 == 1 else [])
            interleave(a, ms, fill)
        if head == 0:
            a("s_waitcnt vmcnt(%d)" % (60 - len(pf))); a("s_barrier")
            npf0 = len(pf); a(marks)
        a("s_mov_b32 exec_lo, 0x00030003"); a("s_mov_b32 exec_hi, 0x00030003")
        for m in range(9): a(vleft(m))
        a("s_mov_b64 exec, -1")
        a(vmain(0))
        for x in maxes(16) + maxes(17): a(x)
        for sw in ("v_permlane32_swap_b32", "v_permlane16_swap_b32"):
            for qt in range(2): a("v_mov_b32 v%d, v%d" % (30+qt, M+qt))
            for qt in range(2): a("%s v%d, v%d" % (sw, M+qt, 30+qt))
            for qt in range(2): a("v_max_f32 v%d, v%d, v%d" % (M+qt, M+qt, 30+qt))
        negs = ["v_sub_f32 v%d, 0, v%d" % (NM+4*qt+i, M+qt) for qt in range(2) for i in range(4)]
        if edge:
            for i in range(8): a("v_mov_b32 v%d, v25" % (NM+i))
        else:
            for x in negs: a(x)
        def qk(m):
            return [mfma(S2+16*(m & 1)+8*qt+4*b, KF+4*(2*m+b), Q+4*qt, NM+4*qt) for qt in range(2) for b in range(2) if has(qt, 2*m+b)]
        def pv(m):
            o = []
            for qt in range(2):
                p = P+8*(m & 1)+4*qt
                o.append(mfma(OM+4*qt, VM+4*(m & 1), p, None if m == 0 else OM+4*qt))
                o.append(mfma(OL+4*qt, VLA+4*m, p, None if m == 0 else OL+4*qt, ta="a"))
            return o
        for x in qk(0): a(x)
        for m in range(9):
            if edge and m < 8: switch(2*m+2, negs)
            mf = (qk(m+1) if m < 8 else []) + (pv(m-1) if m else [])
            va = []
            ld = take(3 if (m % 2 == 0 or head == 0) else 2)
            for qt in range(2):
                p = P+8*(m & 1)+4*qt
                for b in range(2):
                    s = S2+16*(m & 1)+8*qt+4*b
                    if has(qt, 2*m+b):
                        va += mask(s, qt, 2*m+b)
                        va += ["v_exp_f32 v%d, v%d" % (s+i, s+i) for i in range(4)]
                    if ld and (b == 0 or qt == 0): va.append(ld.pop(0))
                for b in range(2):
                    s = S2+16*(m & 1)+8*qt+4*b
                    if has(qt, 2*m+b):
                        va += ["v_cvt_pk_bf16_f32 v%d, v%d, v%d" % (p+2*b+h, s+2*h, s+2*h+1) for h in range(2)]
                    else:
                        va += ["v_mov_b32 v%d, 0" % (p+2*b+h) for h in range(2)]
            if m: a("s_waitcnt lgkmcnt(1)")
            interleave(a, mf, va)
            if m < 8: a(vmain(m+1))
        a("s_waitcnt lgkmcnt(0)")
        for x in pv(8): a(x)
        if head == 1:
            assert not pf
            a("s_mul_i32 s54, s53, 18432"); a("s_add_u32 s54, s54, %d" % O_OFF)
            a("s_lshl_b32 s46, s51, 10"); a("s_add_u32 s58, s46, s54"); a("s_add_u32 s59, s58, 18432")
            a("s_lshr_b32 s46, s51, 3"); a("s_add_u32 s46, s46, 16"); a("s_lshl_b32 s46, s46, 10"); a("s_add_u32 s54, s54, s46")
            a("s_and_b32 s46, s51, 7"); a("s_lshr_b32 s46, s46, 1"); a("s_lshl_b32 s46, s46, 8"); a("s_add_u32 s54, s54, s46")
            a("s_and_b32 s46, s51, 1"); a("s_lshl_b32 s46, s46, 3"); a("s_add_u32 s54, s54, s46"); a("s_add_u32 s47, s54, 18432")
        for qt in range(2): a("v_rcp_f32 v%d, v%d" % (30+qt, OL+4*qt+3))
        for qt in range(2):
            for i in range(4): a("v_mul_f32 v%d, v%d, v%d" % (OM+4*qt+i, OM+4*qt+i, 30+qt))
            for i in range(2): a("v_mul_f32 v%d, v%d, v%d" % (OL+4*qt+i, OL+4*qt+i, 30+qt))
        for qt in range(2):
            for h in range(2): a("v_cvt_pk_bf16_f32 v%d, v%d, v%d" % (OUT+4*qt+2*head+h, OM+4*qt+2*h, OM+4*qt+2*h+1))
            a("v_cvt_pk_bf16_f32 v%d, v%d, v%d" % (R_+2*qt+head, OL+4*qt, OL+4*qt+1))
      if not edge: a("s_branch L_p2_out")
    a.label("L_p2_out")
    a("buffer_store_dwordx4 v[%d:%d], v%d, s[%d:%d], s58 offen sc1" % (OUT, OUT+3, V_L16, R_WS, R_WS+3))
    a("buffer_store_dwordx4 v[%d:%d], v%d, s[%d:%d], s59 offen sc1" % (OUT+4, OUT+7, V_L16, R_WS, R_WS+3))
    a("s_mov_b64 exec, 0xffff")
    a("buffer_store_dwordx2 v[%d:%d], v%d, s[%d:%d], s54 offen sc1" % (R_, R_+1, V_L16, R_WS, R_WS+3))
    a("buffer_store_dwordx2 v[%d:%d], v%d, s[%d:%d], s47 offen sc1" % (R_+2, R_+3, V_L16, R_WS, R_WS+3))
    a("s_mov_b64 exec, -1")
    a.stamp("p2_done")
    if a.stop == 2:
        a("s_waitcnt vmcnt(0)")

C0 = -2.0*math.log2(math.e)*math.sqrt(2/math.pi)
C1 = C0*0.044715

def gelu_pk(a, regs, t, sc):
    for k, r in enumerate(regs): a("v_pk_mul_f32 v[%d:%d], v[%d:%d], v[%d:%d]" % (t+2*k, t+2*k+1, r, r+1, r, r+1))
    for k, r in enumerate(regs): a("v_pk_fma_f32 v[%d:%d], v[%d:%d], s[%d:%d], s[%d:%d] op_sel:[0,0,1] op_sel_hi:[1,0,1]" % (t+2*k, t+2*k+1, t+2*k, t+2*k+1, sc, sc+1, sc, sc+1))
    for k, r in enumerate(regs): a("v_pk_mul_f32 v[%d:%d], v[%d:%d], v[%d:%d]" % (t+2*k, t+2*k+1, t+2*k, t+2*k+1, r, r+1))
    for k in range(2*len(regs)): a("v_exp_f32 v%d, v%d" % (t+k, t+k))
    for k, r in enumerate(regs): a("v_pk_add_f32 v[%d:%d], v[%d:%d], 1.0 op_sel_hi:[1,0]" % (t+2*k, t+2*k+1, t+2*k, t+2*k+1))
    for k in range(2*len(regs)): a("v_rcp_f32 v%d, v%d" % (t+k, t+k))
    for k, r in enumerate(regs): a("v_pk_mul_f32 v[%d:%d], v[%d:%d], v[%d:%d]" % (r, r+1, r, r+1, t+2*k, t+2*k+1))

def stats_loads(a, off, stile, vt):
    a("v_lshlrev_b32 v%d, 3, v%d" % (vt+4, V_LANE))
    a("v_add_u32 v%d, 512, v%d" % (vt+5, vt+4)); a("v_cmp_gt_u32 vcc, 32, v%d" % V_LANE); a("v_mov_b32 v%d, 0x7fffffff" % vt)
    a("v_cndmask_b32 v%d, v%d, v%d, vcc" % (vt+5, vt, vt+5))
    a("s_mul_i32 s46, s%d, 768" % stile); a("s_add_u32 s46, s46, %d" % off)
    return ["buffer_load_dwordx2 v[%d:%d], v%d, s[%d:%d], s46 offen sc1" % (vt+2*k, vt+2*k+1, vt+4+k, R_WS, R_WS+3) for k in range(2)]

def stats_finish(a, vt, vmean, vrstd):
    a("v_add_f32 v%d, v%d, v%d" % (vt, vt, vt+2)); a("v_add_f32 v%d, v%d, v%d" % (vt+1, vt+1, vt+3))
    for sw in ("v_permlane32_swap_b32", "v_permlane16_swap_b32"):
        for k in range(2): a("v_mov_b32 v%d, v%d" % (vt+2+k, vt+k))
        for k in range(2): a("%s v%d, v%d" % (sw, vt+k, vt+2+k))
        for k in range(2): a("v_add_f32 v%d, v%d, v%d" % (vt+k, vt+k, vt+2+k))
    a("s_mov_b32 s47, %d" % f32(1.0/576))
    a("v_mul_f32 v%d, s47, v%d" % (vmean, vt)); a("v_mul_f32 v%d, v%d, v%d" % (vt, vmean, vmean))
    a("v_fma_f32 v%d, v%d, s47, -v%d" % (vt+1, vt+1, vt)); a("v_max_f32 v%d, 0, v%d" % (vt+1, vt+1))
    a("v_add_f32 v%d, %d, v%d" % (vt, f32(1e-5), vt+1)); a("v_rsq_f32 v%d, v%d" % (vrstd, vt))

def norm_ops(x, vs, vb, t):
    o = []
    for r in range(4):
        o.append("v_lshlrev_b32 v%d, 16, v%d" % (t+2*r, x+r)); o.append("v_and_b32 v%d, 0xffff0000, v%d" % (t+2*r+1, x+r))
    for r in range(8): o.append("v_fma_f32 v%d, v%d, v%d, v%d" % (t+r, t+r, vs, vb))
    for r in range(4): o.append("v_cvt_pk_bf16_f32 v%d, v%d, v%d" % (x+r, t+2*r, t+2*r+1))
    return o

def out_stats(a, pk, n, vt, off):
    a("v_mov_b32 v%d, 0" % vt); a("v_mov_b32 v%d, 0" % (vt+1))
    for r in range(n):
        a("v_dot2c_f32_bf16 v%d, s%d, v%d" % (vt, S_ONES, pk+r)); a("v_dot2c_f32_bf16 v%d, v%d, v%d" % (vt+1, pk+r, pk+r))
    for sw in ("v_permlane32_swap_b32", "v_permlane16_swap_b32"):
        for k in range(2): a("v_mov_b32 v%d, v%d" % (vt+2+k, vt+k))
        for k in range(2): a("%s v%d, v%d" % (sw, vt+k, vt+2+k))
        for k in range(2): a("v_add_f32 v%d, v%d, v%d" % (vt+k, vt+k, vt+2+k))
    a("s_mul_i32 s46, s53, 6"); a("s_add_u32 s46, s46, s51"); a("s_lshl_b32 s46, s46, 7"); a("s_add_u32 s46, s46, %d" % off)
    a("v_lshlrev_b32 v%d, 3, v%d" % (vt+2, V_LANE))
    a("s_mov_b64 exec, 0xffff")
    a("buffer_store_dwordx2 v[%d:%d], v%d, s[%d:%d], s46 offen sc1" % (vt, vt+1, vt+2, R_WS, R_WS+3))
    a("s_mov_b64 exec, -1")

AF, ACC, WB, HK, VMEAN, VRSTD = 64, 136, 160, 40, 52, 53
OS = WB

def tag_ops(regs, t):
    o = []; regs = list(regs)
    o.append("v_max3_u32 v%d, v%d, v%d, v%d" % (t, regs[0], regs[1], regs[2])); regs = regs[3:]
    while len(regs) >= 2: o.append("v_max3_u32 v%d, v%d, v%d, v%d" % (t, t, regs[0], regs[1])); regs = regs[2:]
    if regs: o.append("v_max_u32 v%d, v%d, v%d" % (t, t, regs[0]))
    return o + ["v_cmp_eq_u32 vcc, -1, v%d" % t]

def tag_branch(a, loads, regs, t, again=(), drain=False):
    L = a.newlabel("Ltg")
    a("s_cbranch_vccnz %s" % L)
    a.label(L + "_b")
    st = [L + ":"] + "\n".join(loads).split("\n") + ["s_waitcnt vmcnt(0)"] + tag_ops(regs, t)
    st += ["s_sub_u32 s79, s79, 1", "s_cbranch_scc1 %s_b" % L, "s_cbranch_vccnz %s" % L]
    st += list(again) + (["s_waitcnt vmcnt(0)"] if drain and again else []) + ["s_branch %s_b" % L]
    a.stubs += st

UP = 8
NE = 12
def wpos(layout, b):
    if layout is None: return W_LDS//1024 + b
    w, i = divmod(b, 27)
    return layout[0] + NE*w + i if i < NE else layout[1] + (27-NE)*w + i - NE

def gemm96(a, loads, stage, delay, pre=(), each=None, stamp=None, extra=(), layout=None, early=(), before=None, after=None):
    a("s_barrier")
    nv = sum("buffer_load" in x for x in stage)
    n1 = len(stage) if nv else len(stage)//3
    for x in stage[:n1]: a(x)
    if delay: a("s_sleep %d" % delay)
    a("s_mov_b32 s79, 50000")
    a.stamp(stamp + "_ready")
    for x in pre: a(x)
    interleave(a, loads[:UP], stage[n1:])
    a("s_waitcnt vmcnt(%d) lgkmcnt(0)" % (UP + len(pre)))
    if before: before(a)
    a("s_barrier")
    def wr(j):
        o = []
        for t in range(6):
            q, r = divmod(wpos(layout, 18*t + j), 64)
            o.append("ds_read_b128 v[%d:%d], v%d offset:%d" % (WB+24*(j % 3)+4*t, WB+24*(j % 3)+4*t+3, (V_L16, 5, 6)[q], 1024*r))
        return o
    for x in early: a(x)
    if each: each(lambda: [a(x) for x in wr(0) + wr(1)])
    else:
        for x in wr(0) + wr(1): a(x)
    a("s_waitcnt vmcnt(%d)" % (UP-1))
    fr = lambda j: range(AF+4*j, AF+4*j+4)
    for x in tag_ops(fr(0), 30): a(x)
    tag_branch(a, [loads[0]], fr(0), 30, loads[1:UP])
    if after: after(a)
    for j in range(18):
        ex = lambda q: min(len(extra), max(0, (q-9)*len(extra)//8))
        issued = min(18, UP+j) + ex(j)
        a("s_waitcnt vmcnt(%d) lgkmcnt(%d)" % (issued - 1 - min(j+1, 17), 6 if j < 17 else 0))
        if j in (0, 9): a.stamp(stamp + "_k%d" % j)
        ms = [mfma(ACC+4*t, WB+24*(j % 3)+4*t, AF+4*j, None if j == 0 else ACC+4*t) for t in range(6)]
        fill = ([loads[UP+j]] if UP+j < 18 else []) + (tag_ops(fr(j+1), 30) if j < 17 else []) + (wr(j+2) if j < 16 else []) + list(extra[ex(j):ex(j+1)])
        interleave(a, ms, fill)
        if j < 17: tag_branch(a, [loads[j+1]], fr(j+1), 30, loads[j+2:UP+j+1], drain=ex(j+1) > 0)

FP2Q = "s_mov_b32 s46, %d\nbuffer_load_dwordx4 v[16:19], v%d, s[%d:%d], s46 offen sc1" % (FP2_OFF, V_L16, R_WS, R_WS+3)

def marks2(a):
    L = a.newlabel("Lm2")
    a("s_cmp_lg_u32 s%d, 0" % S_WAVE); a("s_cbranch_scc1 %s_x" % L)
    a("s_mov_b32 s47, 100000")
    a.label(L)
    for r in range(4): a("v_xor_b32 v%d, s%d, v%d" % (16+r, S_NONCE, 16+r))
    a("v_or3_b32 v16, v16, v17, v18"); a("v_or_b32 v16, v16, v19"); a("v_cmp_ne_u32 vcc, 0, v16"); a("s_cbranch_vccz %s_x" % L)
    a(FP2Q); a("s_waitcnt vmcnt(0)")
    a("s_sub_u32 s47, s47, 1"); a("s_cbranch_scc0 %s" % L)
    a.label(L + "_x")

def publish2(a, vt):
    L = a.newlabel("Lmp"); a("s_cmp_lg_u32 s%d, 0" % S_WAVE); a("s_cbranch_scc1 %s" % L); a.set_mark(vt, FP2_OFF); a.label(L)

def wflags(a, first, va, vd):
    a("s_mul_i32 s46, s65, 18"); a("s_add_u32 s46, s46, %d" % (FS + first))
    a("v_min_u32 v%d, 17, v%d" % (va, V_LANE)); a("v_add_u32 v%d, s46, v%d" % (va, va)); a("v_lshlrev_b32 v%d, 7, v%d" % (va, va))
    a("buffer_load_dword v%d, v%d, s[%d:%d], 0 offen offset:%d sc1" % (vd, va, R_WS, R_WS+3, FLAG0))

def phase345(a):
    a("s_mov_b32 s50, s74"); a("s_mov_b32 s51, s75"); a("s_mov_b32 s53, s76")
    a("s_cmp_ge_u32 s51, 6"); a("s_cbranch_scc1 L_p3_helper")
    a("v_add_u32 v5, 65536, v%d" % V_L16); a("v_add_u32 v6, 131072, v%d" % V_L16)
    a("s_mul_i32 s46, s%d, %d" % (S_WAVE, 1024*NE)); a("v_add_u32 v7, s46, v%d" % V_L16)
    a("s_mul_i32 s46, s%d, %d" % (S_WAVE, 1024*(27-NE))); a("v_add_u32 v8, s46, v%d" % V_L16)
    a("v_add_u32 v62, %d, v7" % (112*1024)); a("v_add_u32 v63, %d, v8" % (52*1024))
    LAY4, LAY5 = (0, 52), (112, 0)
    a("s_mul_i32 s54, s53, 18432")
    a("s_mul_i32 s55, s51, 3072"); a("s_add_u32 s55, s55, s54")
    a("v_lshlrev_b32 v9, 7, v%d" % V_LANE)
    a("s_lshl_b32 s46, s51, 2"); a("s_add_u32 s46, s46, s%d" % S_WAVE); a("s_mul_i32 s46, s46, 3072"); a("s_mul_i32 s78, s50, 73728"); a("s_add_u32 s78, s78, s46")
    def w2(i0, i1):
        return [("s_add_u32 s59, s72, %d\n" % (1024*(i & ~3)) if (i % 4 == 0 or i == i0) else "") +
                "buffer_load_dwordx4 a[%d:%d], v%d, s[%d:%d], s59 offen offset:%d sc1" % (AW2+4*i, AW2+4*i+3, V_L16, R_WS, R_WS+3, 1024*(i & 3)) for i in range(i0, i1)]
    def park(ab, lay, late):
        if late: return ["ds_write_b128 v%d, a[%d:%d] offset:%d" % (63 if lay[1] else 8, ab+4*i, ab+4*i+3, 1024*(i - NE)) for i in range(NE, 27)]
        return ["ds_write_b128 v%d, a[%d:%d] offset:%d" % (62 if lay[0] else 7, ab+4*i, ab+4*i+3, 1024*i) for i in range(NE)]
    def aloads(off):
        for q in range(5): a("s_add_u32 s%d, s54, %d" % (60+q, off + 4096*q))
        return ["buffer_load_dwordx4 v[%d:%d], v%d, s[%d:%d], s%d offen offset:%d sc1" % (AF+4*j, AF+4*j+3, V_L16, R_WS, R_WS+3, 60+(j >> 2), 1024*(j & 3)) for j in range(18)]
    def ostores(src, off):
        a("s_add_u32 s46, s55, %d" % off)
        for jj in range(3): a("buffer_store_dwordx4 v[%d:%d], v%d, s[%d:%d], s46 offen offset:%d sc1" % (src+4*jj, src+4*jj+3, V_L16, R_WS, R_WS+3, 1024*jj))
    a("s_lshl_b32 s46, s53, 4"); a("v_add_u32 v20, s46, v%d" % V_R); a("s_mov_b32 s47, 18432")
    for k, sh in enumerate((1, -1, 2, -2)):
        a("v_subrev_u32 v21, %d, v20" % sh); a("v_ashrrev_i32 v22, 4, v21"); a("v_mul_lo_u32 v22, v22, s47")
        a("v_and_b32 v21, 15, v21"); a("v_lshl_add_u32 v21, v%d, 4, v21" % V_G); a("v_lshl_add_u32 v%d, v21, 4, v22" % (56+k))
    a("v_cmp_gt_u32 vcc, 32, v%d" % V_LANE); a("v_cndmask_b32 v60, v57, v56, vcc"); a("v_cndmask_b32 v61, v59, v58, vcc")
    gemm96(a, aloads(O_OFF), [pf_lds(0), pf_lds(1)], SLEEP0["p3"], stamp="p3", extra=w2(0, NE), early=park(AW1, LAY4, False))
    a.stamp("p3_gemm")
    a(FP2Q)
    a("s_mov_b32 s46, 0x00003f80"); a("s_mov_b32 s47, 0x3f800000")
    for t in range(6):
        for i in range(4): a("v_dot2c_f32_bf16 v%d, s%d, v%d" % (ACC+4*t+i, 46+(i & 1), XT+4*(t >> 1)+2*(t & 1)+(i >> 1)))
    for k in range(12): a("v_cvt_pk_bf16_f32 v%d, v%d, v%d" % (HK+k, ACC+2*k, ACC+2*k+1))
    ostores(HK, H_OFF)
    out_stats(a, HK, 12, 10, SH_OFF)
    a.stamp("p3_epi")
    if a.stop == 3: a("s_waitcnt vmcnt(0)"); a("s_branch L_fin")
    for r in range(4): a("v_mov_b32 v%d, s%d" % (20+r, S_ONES))
    cs = [mfma(WB+4*(i//9), AW1+4*i, 20, None if i % 9 == 0 else WB+4*(i//9), ta="a") for i in range(27)]
    a("s_mul_i32 s46, s%d, 192" % S_WAVE); a("s_add_u32 s46, s46, %d" % (48*1024)); a("v_lshl_add_u32 v24, v%d, 4, s46" % V_G)
    g = G(); interleave(g, [cs[(i % 3)*9 + i//3] for i in range(27)], park(AW1, LAY4, True))
    st4 = g.lines
    st4 += ["s_nop 7"] + ["ds_write_b128 v24, v[%d:%d] offset:%d" % (WB+4*k, WB+4*k+3, 64*k) for k in range(3)]
    CS = 232
    sl = stats_loads(a, SH_OFF, 53, 10); a("s_mov_b32 s65, s46"); sl = [x.replace("s46", "s65") for x in sl]
    def fin4(wreads):
        a("v_lshlrev_b32 v24, 4, v%d" % V_G)
        for k in range(12): a("ds_read_b128 v[%d:%d], v24 offset:%d" % ((CS if k % 2 == 0 else ACC)+4*(k//2), (CS if k % 2 == 0 else ACC)+4*(k//2)+3, 48*1024 + 64*k))
        wreads()
        a("s_waitcnt vmcnt(%d)" % UP)
        for x in tag_ops(range(10, 14), 30): a(x)
        tag_branch(a, sl, range(10, 14), 30, al4[:UP])
        stats_finish(a, 10, VMEAN, VRSTD)
        a("v_mul_f32 v12, v%d, v%d" % (VRSTD, VRSTD)); a("v_mul_f32 v12, v12, v11"); a("v_add_f32 v12, %d, v12" % f32(1e-5))
        a("v_rsq_f32 v12, v12"); a("v_mul_f32 v16, v12, v%d" % VRSTD); a("v_mul_f32 v17, v16, -v%d" % VMEAN)
        a("s_waitcnt lgkmcnt(12)")
        for k in range(12): a("v_pk_add_f32 v[%d:%d], v[%d:%d], v[%d:%d]" % (CS+2*k, CS+2*k+1, CS+2*k, CS+2*k+1, ACC+2*k, ACC+2*k+1))
        for k in range(12): a("v_pk_mul_f32 v[%d:%d], v[%d:%d], v[16:17] op_sel:[0,1] op_sel_hi:[1,1]" % (CS+2*k, CS+2*k+1, CS+2*k, CS+2*k+1))
    al4 = aloads(H_OFF)
    gemm96(a, al4, st4, SLEEP0["p4"], pre=sl, each=fin4, stamp="p4", extra=w2(NE, 27), layout=LAY4, before=marks2)
    a.stamp("p4_gemm")
    a("s_mov_b32 s48, %d" % f32(C1)); a("s_mov_b32 s49, %d" % f32(C0))
    for k in range(12): a("v_pk_fma_f32 v[%d:%d], v[%d:%d], v[16:17], v[%d:%d] op_sel_hi:[1,0,1]" % (ACC+2*k, ACC+2*k+1, ACC+2*k, ACC+2*k+1, CS+2*k, CS+2*k+1))
    g = G(); gelu_pk(g, [ACC+2*k for k in range(12)], AF, 48)
    interleave(a, g.lines, park(AW2, LAY5, False))
    for k in range(12): a("v_cvt_pk_bf16_f32 v%d, v%d, v%d" % (OS+k, ACC+2*k, ACC+2*k+1))
    ostores(OS, T_OFF)
    a.stamp("p4_epi")
    if a.stop == 4: a("s_waitcnt vmcnt(0)"); a("s_branch L_fin")
    a.srd(R_A, S_WS, ACT, T_OFF)
    for q in range(5): a("s_mov_b32 s%d, %d" % (70+q, 4096*q))
    def vsel(j): return 56 if j < 4 else 60 if j == 4 else 57 if j < 9 else 58 if j < 13 else 61 if j == 13 else 59
    tl = ["buffer_load_dwordx4 v[%d:%d], v%d, s[%d:%d], s%d offen offset:%d sc1" % (AF+4*j, AF+4*j+3, vsel(j), R_A, R_A+3, 70+(j >> 2), 1024*(j & 3)) for j in range(18)]
    roles6(a)
    wflags(a, 54, 54, 55)
    a("s_waitcnt vmcnt(4)")
    gemm96(a, tl, park(AW2, LAY5, True), SLEEP0["p5"], stamp="p5", layout=LAY5)
    a.stamp("p5_gemm")
    a("v_mul_f32 v17, v%d, -v%d" % (VRSTD, VMEAN))
    for k in range(12):
        a("v_lshlrev_b32 v20, 16, v%d" % (HK+k)); a("v_and_b32 v21, 0xffff0000, v%d" % (HK+k))
        a("v_fma_f32 v20, v20, v%d, v17" % VRSTD); a("v_fma_f32 v21, v21, v%d, v17" % VRSTD)
        a("v_pk_add_f32 v[%d:%d], v[%d:%d], v[20:21]" % (ACC+2*k, ACC+2*k+1, ACC+2*k, ACC+2*k+1))
    for k in range(12): a("v_cvt_pk_bf16_f32 v%d, v%d, v%d" % (OS+k, ACC+2*k, ACC+2*k+1))
    ostores(OS, X1_OFF)
    out_stats(a, OS, 12, 10, SX_OFF)
    a.stamp("p5_epi")
    a("s_branch L_p5_pre")
    a.label("L_p3_helper")
    a("s_barrier")
    a(pf_lds(0)); a(pf_lds(1))
    swizzle_setup(a)
    a("s_add_u32 s48, s48, 54")
    for p in range(3):
        sw_big(a, 48, 60+3*p)
        a("s_lshl_b32 s53, s52, 10"); a("s_add_u32 s%d, s%d, s53" % (60+3*p, 60+3*p)); a("s_add_u32 s%d, s48, %d" % (62+3*p, FS))
        a("s_add_u32 s48, s48, 1")
    a("s_lshl_b32 s48, s74, 1"); a("s_add_u32 s48, s48, s75"); a("s_add_u32 s48, s48, %d" % (54 + 192 - 6))
    sw_issue(a, 48, 3, 0)
    a("s_waitcnt vmcnt(9)"); a("s_barrier")
    for p in range(3): sw_process(a, p, W_LDS + 36864*p)
    a("s_barrier")
    a("s_add_u32 s49, s48, 64"); a("s_cmp_lt_u32 s49, 342"); a("s_cselect_b32 s48, s49, s48"); sw_issue(a, 48, 4, W_LDS)
    a("s_waitcnt vmcnt(9)"); a("s_barrier")
    sw_flags(a, range(3))
    a.stamp("h_w3")
    sw_process(a, 3, 0)
    a("s_waitcnt vmcnt(9)"); a("s_barrier")
    sw_process(a, 4, W_LDS)
    a("s_waitcnt vmcnt(0)"); a("s_barrier")
    sw_flags(a, (3, 4))
    a.stamp("h_w4")
    roles6(a)
    wflags(a, 54, 54, 55)
    a(FP2Q)
    a("s_waitcnt vmcnt(0)")
    marks2(a)
    a.label("L_p5_pre")
    L = a.newlabel("Lh")
    a("s_cmp_lg_u32 s%d, 0" % S_WAVE); a("s_cbranch_scc1 %s" % L)
    a("v_cmp_ne_u32 vcc, s%d, v55" % S_NONCE); a("s_cbranch_vccz %s" % L)
    a("v_lshrrev_b32 v54, 7, v54")
    a.poll(54, 55, sleep0=0)
    a.label(L)
    a("s_barrier")
    a.label("L_p5_done")
    a.stamp("p5_done")

WFL = os.environ.get("WFL", " sc1")
LCH = int(os.environ.get('LCH', 1))
RING = 184

def roles6(a):
    L = LCH
    a("s_lshr_b32 s46, s%d, %d" % (S_XCD, 3-L)); a("s_lshl_b32 s64, s46, %d" % (5-L)); a("s_lshr_b32 s67, s%d, %d" % (S_SLOT, L)); a("s_add_u32 s64, s64, s67")
    a("s_and_b32 s67, s67, 7")
    a("s_mov_b32 s67, 0")
    a("s_and_b32 s46, s%d, %d" % (S_XCD, (8 >> L) - 1)); a("s_lshl_b32 s65, s46, %d" % L); a("s_and_b32 s46, s%d, %d" % (S_SLOT, (1 << L) - 1)); a("s_add_u32 s65, s65, s46")
    a("s_lshl_b32 s46, s65, 2"); a("s_add_u32 s46, s46, s%d" % S_WAVE); a("s_mul_i32 s66, s46, %d" % (9*18432)); a("s_add_u32 s66, s66, %d" % W3_S)

def wload(j, s=58, ring=("a", RING)):
    o = "s_add_u32 s%d, s%d, 4096\n" % (s, s) if (j and j % 4 == 0) else ""
    return o + ("buffer_load_dwordx4 %s[%d:%d], v%d, s[%d:%d], s%d offen offset:%d" + WFL) % (ring[0], ring[1]+4*j, ring[1]+4*j+3, V_L16, R_WS, R_WS+3, s, 1024*(j & 3))

def ring_prefill(a, s):
    a("s_mul_i32 s%d, s67, 18432" % s); a("s_add_u32 s%d, s%d, s66" % (s, s))
    return [wload(j, s) for j in range(18)]

def norm_pk(x, vs, t):
    o = []
    for r in range(4):
        o.append("v_lshlrev_b32 v%d, 16, v%d" % (t+2*r, x+r)); o.append("v_and_b32 v%d, 0xffff0000, v%d" % (t+2*r+1, x+r))
    for r in range(4): o.append("v_pk_fma_f32 v[%d:%d], v[%d:%d], v[%d:%d], v[%d:%d] op_sel:[0,0,1] op_sel_hi:[1,0,1]" % (t+2*r, t+2*r+1, t+2*r, t+2*r+1, vs, vs+1, vs, vs+1))
    for r in range(4): o.append("v_cvt_pk_bf16_f32 v%d, v%d, v%d" % (x+r, t+2*r, t+2*r+1))
    return o

def phase6(a):
    AC, PK, RB, GT, XR = 40, 72, 80, 136, 64
    HB = 73728
    def xf(T, j):
        f = 4*j + T
        return ("a", 4*f) if f < 46 else ("v", 152 + 4*(f-46))
    a("s_mov_b32 s50, s64"); a("s_mov_b32 s51, s65"); a("s_mov_b32 s54, s66"); a("s_mov_b32 s52, s67")
    a("s_lshl_b32 s53, s50, 2"); a("s_add_u32 s53, s53, s%d" % S_WAVE)
    a("s_add_u32 s55, s54, %d" % BW)
    a("s_mul_i32 s56, s50, 72"); a("s_add_u32 s56, s56, s51"); a("s_lshl_b32 s56, s56, 2"); a("s_add_u32 s56, s56, s%d" % S_WAVE)
    a("s_lshl_b32 s56, s56, 11"); a("s_add_u32 s56, s56, %d" % PART)
    a("s_mul_i32 s46, s53, 18432")
    for q in range(5): a("s_add_u32 s%d, s46, %d" % (70+q, X1_OFF + 4096*q))
    a("s_mul_i32 s46, s%d, 18432" % S_WAVE); a("v_add_u32 v5, s46, v%d" % V_L16)
    a("v_add_u32 v6, 36864, v%d" % V_L16); a("v_add_u32 v7, %d, v%d" % (HB, V_L16)); a("v_add_u32 v8, %d, v%d" % (HB+36864, V_L16))
    a("s_lshr_b32 s46, s%d, 1" % S_WAVE); a("s_lshl_b32 s46, s46, 10"); a("s_and_b32 s47, s%d, 1" % S_WAVE); a("s_lshl_b32 s47, s47, 3")
    a("s_add_u32 s46, s46, s47"); a("v_add_u32 v35, s46, v7")
    a("s_mov_b32 s48, %d" % f32(C1)); a("s_mov_b32 s49, %d" % f32(C0))
    sl = stats_loads(a, SX_OFF, 53, 10)
    a("s_mov_b32 s60, s46")
    sl = [x.replace("s46", "s60") for x in sl]
    a("v_mov_b32 v28, 0")
    a("global_load_dword v29, v28, s[%d:%d] sc1" % (S_DBG, S_DBG+1))
    pre = ring_prefill(a, 59)
    NP = SLEEP0["p6"]
    for x in pre[:NP]: a(x)
    a.stamp("p6_ready")
    a("s_mov_b32 s79, 50000")
    for x in sl: a(x)
    def xload(j): return "buffer_load_dwordx4 v[%d:%d], v%d, s[%d:%d], s%d offen offset:%d sc1" % (XR+4*j, XR+4*j+3, V_L16, R_WS, R_WS+3, 70+(j >> 2), 1024*(j & 3))
    for j in range(UP): a(xload(j))
    a("s_waitcnt vmcnt(%d)" % UP)
    a("v_readfirstlane_b32 s%d, v29" % S_NONCE)
    for x in tag_ops(range(10, 14), 30): a(x)
    tag_branch(a, sl, range(10, 14), 30, [xload(j) for j in range(UP)])
    a.stamp("p6_st")
    stats_finish(a, 10, 17, 16)
    a("v_mul_f32 v17, v16, -v17")
    def bload(reg, s, off=0, t="a"): return "buffer_load_dwordx4 %s[%d:%d], v%d, s[%d:%d], s%d offen offset:%d sc1" % (t, reg, reg+3, V_L16, R_WS, R_WS+3, s, off)
    R3, ST, SEL, RS = 12, 32, 6, 152
    a("s_mul_i32 s60, s50, 73728")
    a("s_lshl_b32 s46, s51, 1"); a("s_lshr_b32 s47, s%d, 1" % S_WAVE); a("s_add_u32 s46, s46, s47"); a("s_lshl_b32 s46, s46, 10"); a("s_add_u32 s63, s46, s60")
    res = ["s_add_u32 s58, s63, %d\n" % ((X1_OFF, H_OFF)[j >> 2] + 18432*(j & 3)) + bload(RS+4*j, 58, t="v") for j in range(8)]
    rest = [xload(j) for j in range(UP, 18)] + res + pre[NP:]
    cnt = UP
    for j in range(18):
        a("s_waitcnt vmcnt(%d)" % (cnt - 1 - j))
        for x in tag_ops(range(XR+4*j, XR+4*j+4), 30): a(x)
        n = 1 if j < 10 else -(-len(rest)//(18-j))
        for x in rest[:n]: a(x)
        cnt += len(rest[:n]); del rest[:n]
        tag_branch(a, [xload(j)], range(XR+4*j, XR+4*j+4), 30, [xload(q) for q in range(j+1, min(18, j+UP+1))], drain=j >= 10)
        if j in (9, 17): a.stamp("p6_x%d" % j)
        for x in norm_pk(XR+4*j, 16, 20): a(x)
        a("ds_write_b128 v5, v[%d:%d] offset:%d" % (XR+4*j, XR+4*j+3, 1024*j))
    def select(d, sr, bit):
        o = ["s_bitcmp1_b32 s%d, %d\ns_cselect_b64 s[64:65], -1, 0" % (sr, bit)]
        for h in range(2):
            o += ["v_cndmask_b32 v%d, v%d, 0, s[64:65]" % (d+h, SEL+2+h), "v_cndmask_b32 v%d, 0, v%d, s[64:65]" % (d+2+h, SEL+2+h)]
        return o
    a("v_mov_b32 v32, v6"); a("v_mov_b32 v33, v7"); a("v_mov_b32 v34, v8")
    a("v_lshrrev_b32 v26, 2, v%d" % V_R); a("v_cmp_eq_u32 s[64:65], v26, v%d" % V_G)
    a("v_and_b32 v26, 1, v%d" % V_R); a("v_lshlrev_b32 v26, 4, v26"); a("v_mov_b32 v27, 0x3f80"); a("v_lshlrev_b32 v27, v26, v27")
    a("v_cndmask_b32 v27, 0, v27, s[64:65]"); a("v_and_b32 v26, 2, v%d" % V_R); a("v_cmp_eq_u32 vcc, 0, v26")
    a("v_cndmask_b32 v%d, 0, v27, vcc" % (SEL+2)); a("v_cndmask_b32 v%d, v27, 0, vcc" % (SEL+3))
    for r in (0, 1, 4, 5): a("v_mov_b32 v%d, 0" % (SEL+r))
    for x in select(36, S_WAVE, 0): a(x)
    a("s_waitcnt vmcnt(%d)" % (18 - NP))
    for x in tag_ops(range(RS, RS+32), 30): a(x)
    tag_branch(a, res, range(RS, RS+32), 30)
    for k in range(2):
        for T in range(4): a(mfma(R3+4*T, 36, RS+16*k+4*T, None if k == 0 else R3+4*T))
    a("s_waitcnt lgkmcnt(0)"); a("s_barrier")
    a.stamp("p6_x")
    def fread(j, va):
        o = []
        for T in range(4):
            t, r = xf(T, j)
            o.append("ds_read_b128 %s[%d:%d], v%d offset:%d" % (t, r, r+3, va[T >> 1], (T & 1)*18432 + 1024*j))
        return o
    def gelu(ac):
        b = ["v_pk_mul_f32 v[%d:%d], v[%d:%d], v[%d:%d]" % (GT+2*k, GT+2*k+1, ac+2*k, ac+2*k+1, ac+2*k, ac+2*k+1) for k in range(8)]
        b += ["v_pk_fma_f32 v[%d:%d], v[%d:%d], s[48:49], s[48:49] op_sel:[0,0,1] op_sel_hi:[1,0,1]" % (GT+2*k, GT+2*k+1, GT+2*k, GT+2*k+1) for k in range(8)]
        b += ["v_pk_mul_f32 v[%d:%d], v[%d:%d], v[%d:%d]" % (GT+2*k, GT+2*k+1, GT+2*k, GT+2*k+1, ac+2*k, ac+2*k+1) for k in range(8)]
        o = []
        for T in range(4):
            x = ac + 4*T; t = GT + 4*T
            if "nopk" in ABL:
                o += ["v_mul_f32 v%d, v%d, v%d" % (t+i, x+i, x+i) for i in range(4)]
                o += ["v_fma_f32 v%d, v%d, s48, v18" % (t+i, t+i) for i in range(4)]
                o += ["v_mul_f32 v%d, v%d, v%d" % (t+i, t+i, x+i) for i in range(4)]
            o += ["v_exp_f32 v%d, v%d" % (t+i, t+i) for i in range(4)]
            o += ["v_add_f32 v%d, 1.0, v%d" % (t+i, t+i) for i in range(4)]
            o += ["v_rcp_f32 v%d, v%d" % (t+i, t+i) for i in range(4)]
            o += ["v_mul_f32 v%d, v%d, v%d" % (t+i, t+i, x+i) for i in range(4)]
            o += ["v_cvt_pk_bf16_f32 v%d, v%d, v%d" % (PK+2*T+h, t+2*h, t+2*h+1) for h in range(2)]
            o.append("ds_write_b64 v5, v[%d:%d] offset:%d" % (PK+2*T, PK+2*T+1, 18432*T))
        return ([] if "nopk" in ABL else b), o
    def wt(op): return 2 if op.startswith(("v_exp", "v_rcp")) else min(2, len(op.split("\n")))
    RA = ("a", RING); RBB = ("v", RB)
    def subpass(ac, fill, first=None, loads=None, at=None, ring=RA, depth=18, batch=(), head=(), c0=None):
        if "p6nogelu" in ABL and len(fill) > 20: fill = []; batch = ()
        if "p6nost" in ABL: fill = [x for x in fill if "buffer_store" not in x]
        fill = list(fill); head = list(head)
        if first:
            for j in range(2):
                for x in fread(j, first): a(x)
        def wait(j):
            w = []
            if j % 2 == 0: w.append("vmcnt(%d)" % (depth - 2))
            if first: w.append("lgkmcnt(%d)" % (4 if j < 17 else 0))
            return "s_waitcnt " + " ".join(w) if w else None
        for j in range(18):
            if wait(j): a(wait(j))
            if at and j in at: at[j]()
            rd = fread(j+2, first) if (first and j < 16) else []
            for T in range(4):
                t, r = xf(T, j)
                a(mfma(ac+4*T, ring[1]+4*j, r, (None if c0 is None else c0+4*T) if j == 0 else ac+4*T, ta=ring[0], tb=t))
                room = 2
                if rd: a(rd[T]); room -= 1
                if j == 0:
                    n = (len(head) + 2 - T)//(3 - T) if T < 3 else 0
                    for x in head[:n]: a(x)
                    del head[:n]
                if T == 3:
                    ld = "" if ("p6nold" in ABL and loads is None) else (loads(j) if loads else wload(j, 58, ring))
                    if ld: a(ld); room -= len(ld.split("\n"))
                    if j < 17 and wait(j+1): room -= 1
                    if j == 0:
                        for x in batch: a(x)
                if j == 0: continue
                left = 4*(17-j) + 3 - T
                while fill and (wt(fill[0]) <= room or sum(wt(x) for x in fill) > 2*left - (left+3)//4*2 + 1):
                    room -= wt(fill[0]); a(fill.pop(0))
        assert not fill
    def nexttile(last=False):
        o = ["s_mov_b32 s62, s61", "s_mov_b32 s61, s63", "s_add_u32 s63, s63, 1"]
        if "rot" in ABL: o += ["s_cmp_eq_u32 s63, 9", "s_cselect_b32 s63, 0, s63"]
        o += ["s_mul_i32 s58, s63, 18432", "s_add_u32 s58, s58, s54"]
        if last: o += ["s_cmp_eq_u32 s59, 3", "s_cselect_b32 s58, s65, s58"]
        return o + ["s_lshl_b32 s46, s62, 11", "v_add_u32 v5, s46, v35"]
    def slice_of(d, c):
        a("s_add_u32 s%d, s%d, s51" % (d, c)); a("s_and_b32 s%d, s%d, 7" % (d, d)); a("s_cmp_eq_u32 s%d, 0" % c); a("s_cselect_b32 s%d, 8, s%d" % (d, d))
    a("s_mov_b32 s63, s52"); a("s_mov_b32 s61, s52")
    for x in nexttile(): a(x)
    slice_of(64, 52); a("s_mul_i32 s65, s64, 18432"); a("s_add_u32 s65, s65, s55")
    for r in range(4): a("v_mov_b32 v%d, -1" % (PK+r))
    pois = []
    for k in (6, 7):
        pois.append("s_add_u32 s46, s51, %d\ns_and_b32 s46, s46, 7\ns_lshl_b32 s46, s46, 16\ns_add_u32 s62, s46, s56\n" % k +
                    "buffer_store_dwordx4 v[%d:%d], v%d, s[%d:%d], s62 offen sc1" % (PK, PK+3, V_L16, R_WS, R_WS+3))
        pois.append("buffer_store_dwordx4 v[%d:%d], v%d, s[%d:%d], s62 offen offset:1024 sc1" % (PK, PK+3, V_L16, R_WS, R_WS+3))
    subpass(AC, [], first=(V_L16, 32), at={4*k+2: (lambda k=k: a(pois[k])) for k in range(4)})
    a.stamp("p6_p0")
    a("s_mov_b32 s59, 0")
    def w4ask():
        L = a.newlabel("Lw4"); a("s_cmp_eq_u32 s59, 3"); a("s_cbranch_scc0 %s" % L)
        a("buffer_load_dword v31, v30, s[%d:%d], 0 offen offset:%d sc1" % (R_WS, R_WS+3, FLAG0)); a.label(L)
    def w4check():
        L = a.newlabel("Lw4"); a("s_cmp_eq_u32 s59, 3"); a("s_cbranch_scc0 %s" % L)
        a("s_waitcnt vmcnt(14)"); a("v_cmp_ne_u32 vcc, s%d, v31" % S_NONCE); a("s_cbranch_vccz %s" % L)
        a("v_lshrrev_b32 v30, 7, v30"); a.poll(30, 31, sleep0=0); a.label(L)
    a("s_mul_i32 s46, s51, 18"); a("s_add_u32 s46, s46, %d" % (FS + 198))
    a("v_min_u32 v30, 17, v%d" % V_LANE); a("v_add_u32 v30, s46, v30"); a("v_lshlrev_b32 v30, 7, v30")
    a.label("L_p6_a")
    for half in (1, 0):
        b, o = gelu(AC+16*(1-half))
        subpass(AC+16*half, o, batch=b, head=nexttile(half == 0), at={0: w4check} if half == 0 else {4: w4ask})
    a("s_add_u32 s59, s59, 1"); a("s_cmp_lt_u32 s59, 4"); a("s_cbranch_scc1 L_p6_a")
    def nextslice(own=None):
        a("s_lshl_b32 s62, s66, 16"); a("s_add_u32 s62, s62, s56"); a("s_mov_b32 s66, s65"); a("s_mov_b32 s65, s64")
        a("s_add_u32 s61, s61, 1"); a("s_and_b32 s61, s61, 7")
        slice_of(64, 61)
        if own is not None: a("s_cmp_eq_u32 s59, %d" % own); a("s_cselect_b32 s64, s51, s64")
        a("s_mul_i32 s58, s64, 18432"); a("s_add_u32 s58, s58, s55")
    a("s_lshl_b32 s46, s61, 11"); a("v_add_u32 v5, s46, v35")
    a("s_mov_b32 s61, s52")
    nextslice()
    g = G(); gelu_pk(g, [AC+2*k for k in range(8)], GT, 48)
    interleave(a, g.lines, [wload(j, 58, RBB) for j in range(14)])
    for T in range(4):
        for h in range(2): a("v_cvt_pk_bf16_f32 v%d, v%d, v%d" % (PK+2*T+h, AC+4*T+2*h, AC+4*T+2*h+1))
        a("ds_write_b64 v5, v[%d:%d] offset:%d" % (PK+2*T, PK+2*T+1, 18432*T))
        a(wload(14+T, 58, RBB))
    a("s_waitcnt lgkmcnt(0)"); a("s_barrier")
    a.stamp("p6_a")
    def pstore(ac):
        o = ["v_cvt_pk_bf16_f32 v%d, v%d, v%d" % (PK+k, ac+2*k, ac+2*k+1) for k in range(8)]
        o += ["buffer_store_dwordx4 v[%d:%d], v%d, s[%d:%d], s62 offen offset:%d sc1" % (PK+4*p, PK+4*p+3, V_L16, R_WS, R_WS+3, 1024*p) for p in range(2)]
        return o
    a("s_lshl_b32 s46, s50, 5"); a("s_add_u32 s46, s46, s%d" % S_WAVE); a("s_lshl_b32 s70, s46, 7"); a("s_add_u32 s70, s70, %d" % (FLAG0 + 128*FA))
    a("s_lshl_b32 s46, s51, 9"); a("s_add_u32 s68, s70, s46")
    a("s_mul_i32 s46, s50, 9"); a("s_add_u32 s46, s46, s51"); a("s_lshl_b32 s46, s46, 16"); a("s_lshl_b32 s47, s%d, 11" % S_WAVE)
    a("s_add_u32 s46, s46, s47"); a("s_add_u32 s69, s46, %d" % PART)
    a("s_mov_b32 s71, 0")
    a("v_and_b32 v5, 7, v%d" % V_LANE); a("v_lshlrev_b32 v5, 9, v5")
    def cond(first, body):
        def f():
            L = a.newlabel("Lc")
            if first is not None: a("s_cmp_lt_u32 s71, %d" % first); a("s_cbranch_scc1 %s" % L)
            body()
            a.label(L)
        return f
    def SC(k): return (54, 55, 57, 58, 72, 75, 76)[k-1]
    def publish():
        a("s_add_u32 s46, s71, s%d" % S_NONCE); a("s_sub_u32 s46, s46, 2"); a("v_mov_b32 v29, s46")
        a("s_waitcnt vmcnt(20)"); a("s_mov_b64 exec, 1")
        a("buffer_store_dword v29, v28, s[%d:%d], s68 offen sc1" % (R_WS, R_WS+3))
        a("s_mov_b64 exec, -1")
    def confirm(vflag, vaddr, saddr, sneed, n):
        L = a.newlabel("Lcf")
        a("s_mov_b32 s47, 100000"); a("s_waitcnt vmcnt(%d)" % n)
        a.label(L)
        a("v_subrev_u32 v30, s%d, v%d" % (sneed, vflag)); a("v_cmp_lt_u32 vcc, 7, v30"); a("s_cbranch_vccz %s_x" % L)
        a("s_sleep 1"); a("buffer_load_dword v%d, v%d, s[%d:%d], s%d offen sc1" % (vflag, vaddr, R_WS, R_WS+3, saddr)); a("s_waitcnt vmcnt(0)")
        a("s_sub_u32 s47, s47, 1"); a("s_cbranch_scc0 %s" % L)
        a.label(L + "_x")
    nxt = ["s_add_u32 s71, s71, 1"]
    a("s_mov_b32 s59, 0")
    nextslice()
    subpass(AC, [], first=(33, 34), depth=36)
    a.stamp("p6_s0")
    a.label("L_p6_b")
    def ask_all(): a("buffer_load_dword v31, v5, s[%d:%d], s70 offen sc1" % (R_WS, R_WS+3))
    ev = {3: cond(6, publish), 14: cond(6, ask_all)}
    nextslice()
    subpass(AC+16, pstore(AC), ring=RBB, depth=36, head=nxt)
    nextslice(own=2)
    subpass(AC, pstore(AC+16), depth=36, at=ev, head=nxt)
    a("s_add_u32 s59, s59, 1"); a("s_cmp_lt_u32 s59, 3"); a("s_cbranch_scc1 L_p6_b")
    a.stamp("p6_s6")
    a("s_lshr_b32 s46, s51, 1"); a("s_sub_u32 s46, s46, 3"); a("s_lshl_b32 s46, s46, 7"); a("s_add_u32 s74, s46, s70")
    a("s_mul_i32 s46, s50, 9"); a("s_add_u32 s46, s46, 8"); a("s_lshl_b32 s46, s46, 16"); a("s_lshl_b32 s47, s51, 10")
    a("s_add_u32 s46, s46, s47"); a("s_add_u32 s78, s46, %d" % PART)
    a("s_and_b32 s46, s51, 1"); a("s_mul_i32 s61, s46, 36864"); a("s_add_u32 s61, s61, s60")
    a("s_lshr_b32 s47, s51, 2"); a("s_add_u32 s47, s47, 16"); a("s_lshl_b32 s46, s47, 10"); a("s_add_u32 s79, s46, s61")
    a("s_lshl_b32 s47, s47, 6"); a("s_add_u32 s61, s61, s47"); a("s_and_b32 s46, s51, 2"); a("s_lshl_b32 s46, s46, 2"); a("s_add_u32 s61, s61, s46")
    def w3(body):
        def f():
            L = a.newlabel("Lex"); a("s_cmp_lg_u32 s%d, 3" % S_WAVE); a("s_cbranch_scc1 %s" % L); body(); a.label(L)
        return f
    def extra_ask(): a("buffer_load_dword v29, v5, s[%d:%d], s74 offen sc1" % (R_WS, R_WS+3))
    def extra_get():
        confirm(29, 5, 74, S_NONCE, 2)
        for k in range(8):
            a(bload(RB+4*k, 78, t="v")); a("s_add_u32 s78, s78, 8192")
        for k, off in enumerate((H_OFF, X1_OFF)):
            for T in range(2):
                a("s_add_u32 s46, s79, %d" % (off + 18432*T)); a(bload(RB+32+8*k+4*T, 46, t="v"))
    a("s_lshl_b32 s62, s66, 16"); a("s_add_u32 s62, s62, s56"); a("s_mov_b32 s66, s65")
    for k in range(1, 8):
        r = SC(k); a("s_sub_u32 s%d, s51, %d" % (r, k)); a("s_and_b32 s%d, s%d, 7" % (r, r)); a("s_lshl_b32 s%d, s%d, 13" % (r, r)); a("s_add_u32 s%d, s%d, s69" % (r, r))
    CB = {1: ("v", ST), 2: ("v", AC), 3: ("v", AC+8), 4: ("v", RB+48), 5: ("a", RING), 6: ("v", RB+56), 7: ("v", RB+64)}
    def cload(k): return "\n".join(bload(CB[k][1]+4*p, SC(k), 1024*p, t=CB[k][0]) for p in range(2))
    def need(c, n):
        def f(): a("s_add_u32 s73, s%d, %d" % (S_NONCE, c)); confirm(31, 5, 70, 73, n)
        return f
    def add(acc, k, n):
        def f():
            a("s_waitcnt vmcnt(%d)" % n)
            for T in range(4): a(mfma(acc+4*T, SEL if T & 1 else SEL+2, CB[k][1]+4*(T >> 1), acc+4*T, tb=CB[k][0]))
        return f
    def load7(j): return {4: cload(1), 6: cload(2), 8: cload(3), 14: cload(4)}.get(j, "")
    def seq(*fs):
        def f():
            for x in fs: x()
        return f
    subpass(AC+16, pstore(AC), ring=RBB, depth=20, loads=load7, head=nxt,
            at={3: publish, 4: seq(need(4, 3), w3(extra_ask)), 12: ask_all, 14: add(R3, 1, 5), 16: seq(add(R3, 2, 3), add(R3, 3, 3))})
    a.stamp("p6_s7")
    a("s_lshl_b32 s62, s66, 16"); a("s_add_u32 s62, s62, s56")
    SEv, EA = AC+16, AC+24
    g = G()
    g.lines += select(SEv, 51, 1)
    g("v_mul_u32_u24 v%d, 144, v%d" % (AC+20, V_R)); g("v_lshl_add_u32 v%d, v%d, 4, v%d" % (AC+20, V_G, AC+20))
    g.lines.append("s_lshr_b32 s66, s%d, 1\ns_lshl_b32 s66, s66, 6\ns_and_b32 s67, s%d, 1\ns_lshl_b32 s67, s67, 3\ns_add_u32 s66, s66, s67" % (S_WAVE, S_WAVE))
    g("v_add_u32 v%d, s66, v%d" % (AC+20, AC+20))
    g("v_lshrrev_b32 v%d, 3, v0" % EA); g("v_and_b32 v%d, 7, v0" % (EA+1)); g("v_lshlrev_b32 v%d, 4, v%d" % (EA+1, EA+1))
    g("v_mul_u32_u24 v%d, 144, v%d" % (AC+21, EA)); g("v_add_u32 v%d, v%d, v%d" % (AC+21, AC+21, EA+1))
    g("v_mul_u32_u24 v%d, 1152, v%d" % (AC+22, EA)); g("v_add_u32 v%d, v%d, v%d" % (AC+22, AC+22, EA+1))
    g("v_mul_u32_u24 v%d, 1152, v%d" % (AC+23, V_R)); g("v_lshl_add_u32 v%d, v%d, 4, v%d" % (AC+23, V_G, AC+23))
    def load8(j): return {6: cload(5), 12: cload(6), 17: cload(7)}.get(j, "")
    subpass(AC, pstore(AC+16) + g.lines, depth=63, loads=load8, head=nxt, c0=R3, at={6: seq(need(5, 2), add(AC, 4, 2)), 7: w3(extra_get)})
    a.stamp("p6_b")
    a.srd(R_A, S_OUT, ACT)
    a("s_cmp_lg_u32 s%d, 3" % S_WAVE); a("s_cbranch_scc1 L_p7_main")
    a("s_waitcnt vmcnt(4)")
    for k in range(8):
        a(mfma(EA, SEL+2, RB+4*k, None if k == 0 else EA)); a(mfma(EA+4, SEL, RB+4*k, None if k == 0 else EA+4))
    for k in range(2):
        for T in range(2): a(mfma(EA+4*T, SEv, RB+32+8*k+4*T, EA+4*T))
    for T in range(2):
        for h in range(2): a("v_cvt_pk_bf16_f32 v%d, v%d, v%d" % (PK+2*T+h, EA+4*T+2*h, EA+4*T+2*h+1))
    a.label("L_p7_main")
    add(AC, 5, 2)()
    for k in (6, 7):
        base = CB[k][1]
        L = a.newlabel("Ltag")
        a("s_mov_b32 s47, 100000")
        if k == 7: a("s_waitcnt vmcnt(0)")
        a.label(L)
        a("v_max3_u32 v30, v%d, v%d, v%d" % (base, base+1, base+2)); a("v_max3_u32 v31, v%d, v%d, v%d" % (base+3, base+4, base+5))
        a("v_max3_u32 v30, v30, v%d, v%d" % (base+6, base+7)); a("v_max_u32 v30, v30, v31")
        a("v_cmp_eq_u32 vcc, -1, v30"); a("s_cbranch_vccz %s_x" % L)
        a(cload(k))
        a("s_waitcnt vmcnt(0)")
        a("s_sub_u32 s47, s47, 1"); a("s_cbranch_scc0 %s" % L)
        a.label(L + "_x")
        add(AC, k, 63)()
    a.stamp("p7_ready")
    a("s_cmp_lg_u32 s%d, 3" % S_WAVE); a("s_cbranch_scc1 L_p7_acc")
    for T in range(2):
        a("buffer_store_dwordx2 v[%d:%d], v%d, s[%d:%d], s61 offen" % (PK+2*T, PK+2*T+1, AC+23, R_A, R_A+3))
        a("s_add_u32 s61, s61, 18432")
    a.label("L_p7_acc")
    a("s_lshl_b32 s46, s51, 7"); a("s_add_u32 s46, s46, s60"); a("s_add_u32 s47, s46, 36864")
    for T in range(4):
        for h in range(2): a("v_cvt_pk_bf16_f32 v%d, v%d, v%d" % (R3+2*T+h, AC+4*T+2*h, AC+4*T+2*h+1))
        a("ds_write_b64 v%d, v[%d:%d] offset:%d" % (AC+20, R3+2*T, R3+2*T+1, 2304*T))
    a("s_waitcnt lgkmcnt(0)"); a("s_barrier")
    for p in range(2): a("ds_read_b128 v[%d:%d], v%d offset:%d" % (R3+8+4*p, R3+11+4*p, AC+21, 4608*p))
    for p in range(2):
        a("s_waitcnt lgkmcnt(%d)" % (1-p))
        a("buffer_store_dwordx4 v[%d:%d], v%d, s[%d:%d], s%d offen" % (R3+8+4*p, R3+11+4*p, AC+22, R_A, R_A+3, 46+p))
```

```python
import sys, os, struct, math
sys.path.insert(0, "dev")
from asmlib import Asm, build
from hazard import fix_hazards, check_waits

NAME = "sequential_preLN__sliding_block__mixer_s_mlp__prompt"
KN = NAME + "_kernel"

ACT = 2048*576*2
SW  = 576*576*2
BW  = 576*4608*2
FLAG0 = 128
F1, FS, F2, F3, F4, F5, FA, FB = 0, 256, 640, 896, 1152, 1408, 1664, 2688
TS_OFF = 0x80000
Q_OFF  = 0x90000
K_OFF  = Q_OFF + ACT
V_OFF  = K_OFF + ACT
O_OFF  = V_OFF + ACT
H_OFF  = O_OFF + ACT
SH_OFF = H_OFF + ACT
T_OFF  = SH_OFF + 98304
X1_OFF = T_OFF + ACT
SX_OFF = X1_OFF + ACT
WO_S   = SX_OFF + 98304
W1_S   = WO_S + SW
W2_S   = W1_S + SW
W3_S   = W2_S + SW
W4_S   = W3_S + BW
PART   = W4_S + BW
WS_END = PART + 32*9*8*8192
FP_OFF = 0x7F000
FP2_OFF = FP_OFF + 1024
MARK_N = T_OFF - O_OFF
MKG = 19
MARK_W = 2048*MKG
assert 128*MARK_W >= MARK_N and 1024*5120 >= WO_S - T_OFF
HPSZ   = 147456

WSOFF = 0
MK1 = int(os.environ.get('MK1', 0))
THR = int(os.environ.get('THR', 0))
NW3 = int(os.environ.get('NW3', 0))
ABL = os.environ.get('ABL', '').split(',')
CLK = 's_memtime'
def f32(x): return struct.unpack("<I", struct.pack("<f", x))[0]
def magic(d): return (1 << 32)//d + 1

S_X, S_WQKV, S_WO = 4, 6, 8
S_W1, S_W2, S_W3, S_W4 = 12, 14, 16, 18
S_OUT, S_DBG, S_WS = 20, 22, 24
R_WS, R_A, R_B = 28, 32, 36
S_WAVE, S_XCD, S_SLOT, S_NONCE = 40, 41, 42, 43
S_ONES = 44
V_LANE, V_R, V_G, V_L16 = 1, 2, 3, 4

class G(Asm):
    def __init__(s, stop=99, stamps=False):
        super().__init__()
        s.stop = stop; s.stamps = stamps; s.stubs = []
    def srd(a, d, p, size, add=0):
        if add >= 0:
            a("s_add_u32 s%d, s%d, %s" % (d, p, add)); a("s_addc_u32 s%d, s%d, 0" % (d+1, p+1))
        else:
            a("s_sub_u32 s%d, s%d, %d" % (d, p, -add)); a("s_subb_u32 s%d, s%d, 0" % (d+1, p+1))
        a("s_mov_b32 s%d, %d" % (d+2, size)); a("s_mov_b32 s%d, 0x20000" % (d+3))
    def srd_s(a, d, p, size, sreg):
        a("s_add_u32 s%d, s%d, s%d" % (d, p, sreg)); a("s_addc_u32 s%d, s%d, 0" % (d+1, p+1))
        a("s_mov_b32 s%d, %d" % (d+2, size)); a("s_mov_b32 s%d, 0x20000" % (d+3))
    def sdiv(a, q, r, x, d):
        a("s_mul_hi_u32 s%d, s%d, %d" % (q, x, magic(d)))
        if r is not None:
            a("s_mul_i32 s%d, s%d, %d" % (r, q, d)); a("s_sub_u32 s%d, s%d, s%d" % (r, x, r))
    def stamp(a, name):
        if not a.stamps or name not in a.stamps: return
        k = a.stamps.index(name)
        a("%s s[98:99]" % CLK); a("s_waitcnt lgkmcnt(0)"); a("s_mov_b32 s%d, s98" % (80+k))
    def stamp_out(a):
        if not a.stamps: return
        a.stamp("end")
        a("s_lshl_b32 s98, s2, 2"); a("s_add_u32 s98, s98, s%d" % S_WAVE); a("s_lshl_b32 s98, s98, 6"); a("s_add_u32 s98, s98, %d" % TS_OFF)
        a("v_mov_b32 v255, 0")
        for k in range(16):
            a("v_mov_b32 v254, s%d" % (80+k))
            a("buffer_store_dword v254, v255, s[%d:%d], s98 offen offset:%d" % (R_WS, R_WS+3, 4*k))
            a("s_nop 1")
    def xg_reduce(a, v, t, op="v_add_f32"):
        for sw in ("v_permlane32_swap_b32", "v_permlane16_swap_b32"):
            a("v_mov_b32 v%d, v%d" % (t, v)); a("%s v%d, v%d" % (sw, v, t)); a("%s v%d, v%d, v%d" % (op, v, v, t))
    def get_nonce(a, vt):
        L = a.newlabel("Lnon")
        a("s_mov_b32 s46, 200000"); a("v_mov_b32 v%d, 0" % (vt+2))
        a.label(L)
        a("global_load_dwordx2 v[%d:%d], v%d, s[%d:%d] sc1" % (vt, vt+1, vt+2, S_DBG, S_DBG+1))
        a("s_waitcnt vmcnt(0)")
        a("v_readfirstlane_b32 s47, v%d" % (vt+1)); a("v_readfirstlane_b32 s%d, v%d" % (S_NONCE, vt))
        a("s_sub_u32 s46, s46, 1"); a("s_cbranch_scc1 %s_x" % L)
        a("s_cmp_eq_u32 s47, 0"); a("s_cbranch_scc1 %s" % L)
        a.label(L + "_x")
    def set_flag(a, sidx, vt):
        a("s_lshl_b32 s%d, s%d, 7" % (sidx, sidx)); a("s_add_u32 s%d, s%d, %d" % (sidx, sidx, FLAG0))
        a("v_mov_b32 v%d, s%d" % (vt, S_NONCE)); a("v_mov_b32 v%d, 0" % (vt+1))
        a("s_mov_b64 exec, 1")
        a("buffer_store_dword v%d, v%d, s[%d:%d], s%d offen sc1" % (vt, vt+1, R_WS, R_WS+3, sidx))
        a("s_mov_b64 exec, -1")
    def set_mark(a, vt, off):
        a("s_lshl_b32 s46, s2, 2"); a("s_add_u32 s46, s46, %d" % off)
        a("v_mov_b32 v%d, s%d" % (vt, S_NONCE)); a("v_mov_b32 v%d, 0" % (vt+1))
        a("s_mov_b64 exec, 1")
        a("buffer_store_dword v%d, v%d, s[%d:%d], s46 offen sc1" % (vt, vt+1, R_WS, R_WS+3))
        a("s_mov_b64 exec, -1")
    def poll(a, vidx, vt, sleep0=6, sleep=2):
        L = a.newlabel("Lpoll")
        a("v_lshlrev_b32 v%d, 7, v%d" % (vidx, vidx))
        a("s_mov_b32 s46, 100000")
        if sleep0: a("s_sleep %d" % sleep0)
        a.label(L)
        a("buffer_load_dword v%d, v%d, s[%d:%d], 0 offen offset:%d sc1" % (vt, vidx, R_WS, R_WS+3, FLAG0))
        a("s_waitcnt vmcnt(0)")
        a("v_cmp_ne_u32 vcc, s%d, v%d" % (S_NONCE, vt))
        a("s_cbranch_vccz %s_x" % L)
        a("s_sleep %d" % sleep)
        a("s_sub_u32 s46, s46, 1"); a("s_cbranch_scc0 %s" % L)
        a.label(L + "_x")

def mfma(d, A, B, C=None, ta="v", tb="v", td="v"):
    c = "0" if C is None else "%s[%d:%d]" % (td, C, C+3)
    return "v_mfma_f32_16x16x32_bf16 %s[%d:%d], %s[%d:%d], %s[%d:%d], %s" % (td, d, d+3, ta, A, A+3, tb, B, B+3, c)

def interleave(a, main, fill, start=0):
    n = len(main) - start; k = 0
    for i, m in enumerate(main):
        a(m)
        if i >= start:
            upto = (len(fill)*(i-start+1) + n - 1)//n
            while k < upto: a(fill[k]); k += 1

def prologue(a):
    a("s_cmp_ge_u32 s2, 256"); a("s_cbranch_scc1 L_end")
    a("s_load_dwordx4 s[4:7], s[0:1], 0")
    a("s_load_dwordx2 s[24:25], s[0:1], 80")
    a("s_load_dwordx2 s[8:9], s[0:1], 16")
    a("s_load_dwordx8 s[12:19], s[0:1], 32")
    a("s_load_dwordx4 s[20:23], s[0:1], 64")
    a("v_and_b32 v%d, 63, v0" % V_LANE)
    a("v_lshrrev_b32 v5, 6, v0")
    a("v_and_b32 v%d, 15, v0" % V_R)
    a("v_readfirstlane_b32 s%d, v5" % S_WAVE)
    a("v_lshrrev_b32 v%d, 4, v%d" % (V_G, V_LANE))
    a("v_lshlrev_b32 v%d, 4, v%d" % (V_L16, V_LANE))
    a("s_and_b32 s%d, s2, 7" % S_XCD); a("s_lshr_b32 s%d, s2, 3" % S_SLOT)
    a("s_mov_b32 s%d, 0x3f803f80" % S_ONES)
    if "nopf" not in ABL:
        a("s_getpc_b64 s[46:47]")
        a.label("L_pc")
        a("s_mul_i32 s48, s%d, %d" % (S_SLOT, 20*128)); a("v_lshl_add_u32 v5, v0, 7, s48")
        a("v_cmp_gt_u32 vcc, 20, v0"); a("s_mov_b32 s48, L_last-L_pc"); a("v_cmp_gt_u32 s[48:49], s48, v5"); a("s_and_b64 vcc, vcc, s[48:49]")
        a("s_and_saveexec_b64 s[48:49], vcc"); a("s_cbranch_execz L_pcd")
        a("global_load_dword v253, v5, s[46:47]")
        a.label("L_pcd")
        a("s_mov_b64 exec, -1")
    if a.stamps:
        for k in range(16): a("s_mov_b32 s%d, 0" % (80+k))
        a.stamp("start")

def publish_nonce(a):
    L = a.newlabel("Lpn")
    a("s_xor_b32 s46, s2, 224"); a("s_or_b32 s46, s46, s%d" % S_WAVE); a("s_cmp_lg_u32 s46, 0"); a("s_cbranch_scc1 %s" % L)
    a("v_mov_b32 v252, 0")
    a("buffer_load_dword v250, v252, s[%d:%d], 0 offen sc1" % (R_WS, R_WS+3))
    a("s_mov_b32 s46, 0x9E3779B1")
    a("s_waitcnt vmcnt(0)")
    a("v_mul_lo_u32 v250, v250, s46"); a("v_add_u32 v250, 0x7F4A7C15, v250"); a("v_mov_b32 v251, 1")
    a("s_mov_b64 exec, 1")
    a("buffer_store_dword v250, v252, s[%d:%d], 0 offen sc1" % (R_WS, R_WS+3))
    a("global_store_dwordx2 v252, v[250:251], s[%d:%d] sc1" % (S_DBG, S_DBG+1))
    a("s_mov_b64 exec, -1")
    a.label(L)

def swizzle_setup(a):
    for i in range(9):
        a("v_add_u32 v40, %d, v%d" % (64*i, V_LANE))
        a("v_mul_u32_u24 v%d, 911, v40" % (10+i)); a("v_lshrrev_b32 v%d, 16, v%d" % (10+i, 10+i))
        a("v_mul_u32_u24 v41, 72, v%d" % (10+i)); a("v_sub_u32 v41, v40, v41"); a("v_lshlrev_b32 v%d, 4, v41" % (20+i))
    a("v_lshrrev_b32 v40, 2, v%d" % V_R); a("v_lshl_add_u32 v40, v%d, 3, v40" % V_G); a("v_mul_u32_u24 v40, 1152, v40")
    a("v_and_b32 v41, 3, v%d" % V_R); a("v_lshl_add_u32 v30, v41, 4, v40")
    a("s_lshr_b32 s46, s%d, 1" % S_WAVE); a("s_lshl_b32 s46, s46, 6"); a("s_and_b32 s47, s%d, 1" % S_WAVE); a("s_lshl_b32 s47, s47, 3")
    a("s_add_u32 s46, s46, s47"); a("v_add_u32 v30, s46, v30")

def sw_decode(a, su, p):
    Ln = a.newlabel("Lsw")
    D = 60+3*p
    a("s_cmp_ge_u32 s%d, 54" % su); a("s_cbranch_scc1 %s_big" % Ln)
    a.sdiv(51, 52, su, 18)
    a("s_cmp_eq_u32 s51, 1"); a("s_cselect_b32 s54, s%d, s%d" % (S_W1, S_W2)); a("s_cselect_b32 s55, s%d, s%d" % (S_W1+1, S_W2+1))
    a("s_cmp_eq_u32 s51, 0"); a("s_cselect_b32 s54, s%d, s54" % S_WO); a("s_cselect_b32 s55, s%d, s55" % (S_WO+1))
    a("s_mul_i32 s%d, s51, %d" % (D, SW)); a("s_add_u32 s%d, s%d, %d" % (D, D, WO_S))
    a("s_mul_i32 s53, s%d, 18432" % S_WAVE); a("s_add_u32 s%d, s%d, s53" % (D, D))
    a("s_mov_b32 s%d, 73728" % (D+1))
    a("s_lshl_b32 s56, s52, 5"); a("s_lshl_b32 s53, s%d, 3" % S_WAVE); a("s_add_u32 s56, s56, s53")
    a("s_mov_b32 s57, 0"); a("s_mov_b32 s59, 1152")
    a("s_cmp_lg_u32 s51, 0"); a("s_cbranch_scc1 %s_j" % Ln)
    a("s_mul_i32 s56, s52, 36"); a("s_lshl_b32 s53, s%d, 2" % S_WAVE); a("s_add_u32 s56, s56, s53"); a("s_mov_b32 s57, 16")
    a("s_cmp_lt_u32 s52, 16"); a("s_cbranch_scc1 %s_j" % Ln)
    a("s_sub_u32 s56, s52, 16"); a("s_lshl_b32 s56, s56, 2"); a("s_add_u32 s56, s56, s%d" % S_WAVE)
    a("s_mul_i32 s56, s56, 72"); a("s_add_u32 s56, s56, 16"); a("s_mov_b32 s57, 32")
    a("s_branch %s_j" % Ln)
    a.label(Ln + "_big")
    sw_big(a, su, D)
    a("s_lshl_b32 s56, s52, 5"); a("s_lshl_b32 s53, s%d, 3" % S_WAVE); a("s_add_u32 s56, s56, s53"); a("s_mov_b32 s57, 0")
    a("s_cmp_ge_u32 s51, 8"); a("s_cbranch_scc1 %s_w4" % Ln)
    a("s_mul_i32 s53, s51, 1152"); a("s_add_u32 s54, s%d, s53" % S_W3); a("s_addc_u32 s55, s%d, 0" % (S_W3+1)); a("s_mov_b32 s59, 9216")
    a("s_branch %s_j" % Ln)
    a.label(Ln + "_w4")
    a("s_sub_u32 s53, s51, 8"); a("s_mul_i32 s53, s53, %d" % SW); a("s_add_u32 s54, s%d, s53" % S_W4); a("s_addc_u32 s55, s%d, 0" % (S_W4+1)); a("s_mov_b32 s59, 1152")
    a.label(Ln + "_j")
    a("s_lshl_b32 s53, s52, 10"); a("s_add_u32 s%d, s%d, s53" % (D, D))
    a("s_add_u32 s%d, s%d, %d" % (D+2, su, FS))

def sw_big(a, su, D):
    a("s_sub_u32 s53, s%d, 54" % su); a.sdiv(51, 52, 53, 18)
    a("s_mul_i32 s%d, s51, %d" % (D, 4*9*18432)); a("s_add_u32 s%d, s%d, %d" % (D, D, W3_S))
    a("s_mul_i32 s53, s%d, %d" % (S_WAVE, 9*18432)); a("s_add_u32 s%d, s%d, s53" % (D, D))
    a("s_mov_b32 s%d, 18432" % (D+1))

def sw_issue(a, su, p, lds):
    sw_decode(a, su, p)
    a("s_mov_b32 s%d, s54" % R_A); a("s_mov_b32 s%d, s55" % (R_A+1))
    a("s_mul_i32 s%d, s59, 575" % (R_A+2)); a("s_add_u32 s%d, s%d, 1152" % (R_A+2, R_A+2)); a("s_mov_b32 s%d, 0x20000" % (R_A+3))
    a("s_mul_i32 s53, s%d, 9216" % S_WAVE); a("s_add_u32 m0, s53, %d" % lds)
    for k in range(9):
        a("v_lshrrev_b32 v40, 2, v%d" % (10+k)); a("v_mul_lo_u32 v40, v40, s57"); a("v_add3_u32 v40, v40, v%d, s56" % (10+k))
        a("v_mul_lo_u32 v40, v40, s59"); a("v_add_u32 v40, v40, v%d" % (20+k))
        a("buffer_load_dwordx4 v40, s[%d:%d], 0 offen lds" % (R_A, R_A+3))
        a("s_add_u32 m0, m0, 1024")

def sw_process(a, p, lds):
    a("v_add_u32 v31, %d, v30" % lds)
    for q in range(9):
        for hh in range(2):
            a("ds_read_b64_tr_b16 v[%d:%d], v31 offset:%d" % (44+4*q+2*hh, 45+4*q+2*hh, hh*4608 + 128*q))
    a("s_mov_b32 s53, s%d" % (60+3*p))
    for q in range(9):
        a("s_waitcnt lgkmcnt(%d)" % min(15, 16-2*q))
        a("buffer_store_dwordx4 v[%d:%d], v%d, s[%d:%d], s53 offen sc1" % (44+4*q, 47+4*q, V_L16, R_WS, R_WS+3))
        a("s_add_u32 s53, s53, s%d" % (61+3*p))

def sw_flags(a, ps, mark=False):
    L = a.newlabel("Lswf")
    a("s_cmp_lg_u32 s%d, 0" % S_WAVE); a("s_cbranch_scc1 %s" % L)
    for p in ps: a.set_flag(62+3*p, 40)
    if mark: a.set_mark(40, FP_OFF - 4*224)
    a.label(L)

MK, R_M = 220, 76

def mark_setup(a):
    a.srd(R_M, S_WS, MARK_N, O_OFF)
    for r in range(4): a("v_mov_b32 v%d, -1" % (MK+r))
    a("s_sub_u32 s74, s2, %d" % 224); a("s_lshl_b32 s74, s74, 2"); a("s_add_u32 s74, s74, s%d" % S_WAVE); a("s_mul_i32 s74, s74, %d" % MARK_W)

def mark_fill(a, n):
    L = a.newlabel("Lmk")
    a("s_mov_b32 s75, %d" % n)
    a.label(L)
    a(mark_store(74, 0)); a(mark_store(74, 1024)); a("s_add_u32 s74, s74, 2048"); a("s_waitcnt vmcnt(40)")
    a("s_sub_u32 s75, s75, 1"); a("s_cmp_lg_u32 s75, 0"); a("s_cbranch_scc1 %s" % L)

def mark_store(s, off): return "buffer_store_dwordx4 v[%d:%d], v%d, s[%d:%d], s%d offen offset:%d sc1" % (MK, MK+3, V_L16, R_M, R_M+3, s, off)

def touch_inputs(a, nwg):
    nx, nw = -(-18432//(2*nwg)), -(-15552//(2*nwg))
    a("s_mul_i32 s46, s50, 14"); a("s_add_u32 s46, s46, s51"); a("s_lshl_b32 s46, s46, 1"); a("s_add_u32 s46, s46, s53")
    a("v_lshlrev_b32 v252, 7, v%d" % V_LANE)
    L = a.newlabel("Lti")
    a("s_cmp_lg_u32 s52, 0"); a("s_cbranch_scc1 %s_w" % L)
    a("s_mul_i32 s46, s46, %d" % (128*nx)); a("s_add_u32 s46, s46, 4096"); a("s_mov_b64 exec, 0x%x" % ((1 << nx) - 1) if nx <= 32 else "s_bfm_b64 exec, %d, 0" % nx)
    a("buffer_load_dword v253, v252, s[%d:%d], s46 offen" % (R_A, R_A+3))
    a("s_branch %s" % L)
    a.label(L + "_w")
    a("s_mul_i32 s46, s46, %d" % (128*nw)); a("s_add_u32 s46, s46, 4096"); a("s_bfm_b64 exec, %d, 0" % nw)
    a("buffer_load_dword v253, v252, s[%d:%d], s46 offen" % (R_B, R_B+3))
    a.label(L)
    a("s_mov_b64 exec, -1")

def phase1(a):
    QS = 18**-0.5 * math.log2(math.e)
    a("s_cmp_ge_u32 s%d, 28" % S_SLOT); a("s_cbranch_scc1 L_p1_helper")
    a.sdiv(46, 47, S_SLOT, 7)
    a("s_lshr_b32 s48, s%d, 1" % S_XCD); a("s_lshl_b32 s48, s48, 2"); a("s_add_u32 s50, s48, s46")
    a("s_and_b32 s48, s%d, 1" % S_XCD); a("s_mul_i32 s48, s48, 7"); a("s_add_u32 s51, s48, s47")
    a("s_lshr_b32 s52, s%d, 1" % S_WAVE); a("s_and_b32 s53, s%d, 1" % S_WAVE)
    a("v_lshrrev_b32 v20, 3, v%d" % V_LANE); a("v_and_b32 v21, 7, v%d" % V_LANE)
    a("v_xor_b32 v22, v21, v%d" % V_G); a("v_mul_u32_u24 v20, 1152, v20")
    a("v_lshl_add_u32 v10, v22, 4, v20"); a("v_xor_b32 v22, 4, v22"); a("v_lshl_add_u32 v11, v22, 4, v20")
    a("v_add_u32 v12, %d, v10" % (16*1152 - 2048 + 4096)); a("v_add_u32 v13, %d, v11" % (24*1152 - 3072 + 4096))
    a("v_add_u32 v11, %d, v11" % (8*1152 - 1024 + 4096)); a("v_add_u32 v10, 4096, v10")
    a("v_lshrrev_b32 v20, 1, v%d" % V_R); a("v_xor_b32 v20, v20, v%d" % V_G); a("v_and_b32 v21, 1, v%d" % V_LANE)
    a("v_lshl_add_u32 v21, v20, 1, v21"); a("v_mul_u32_u24 v22, 3456, v%d" % V_G)
    a("v_lshl_add_u32 v14, v21, 4, v22"); a("v_xor_b32 v21, 8, v21"); a("v_lshl_add_u32 v16, v21, 4, v22")
    a("v_add_u32 v15, %d, v14" % (4*3456 - 1024 + 4096)); a("v_add_u32 v17, %d, v16" % (12*3456 - 3072 + 4096))
    a("v_add_u32 v16, %d, v16" % (8*3456 - 2048 + 4096)); a("v_add_u32 v14, 4096, v14")
    a("s_lshl_b32 s54, s50, 2"); a("s_add_u32 s54, s54, s%d" % S_WAVE); a("s_mul_i32 s54, s54, %d" % (32*1152))
    a("s_mul_i32 s55, s%d, %d" % (S_WAVE, 16*3456)); a("s_lshl_b32 s46, s51, 8"); a("s_add_u32 s55, s55, s46")
    a("s_lshl_b32 s56, s%d, 12" % S_WAVE)
    a("s_waitcnt lgkmcnt(0)")
    if WSOFF: a("s_add_u32 s24, s24, %d" % WSOFF); a("s_addc_u32 s25, s25, 0")
    a.srd(R_A, S_X, ACT + 4096, -4096); a.srd(R_B, S_WQKV, 576*3456 + 4096, -4096)
    a.sdiv(46, 47, S_SLOT, 7)
    a("s_and_b32 s48, s%d, 1" % S_XCD); a("s_add_u32 s46, s46, s48"); a("s_lshl_b32 s46, s46, 1"); a("s_add_u32 s46, s46, s47")
    a("s_bfe_u32 s47, s%d, 0x10001" % S_XCD); a("s_add_u32 s46, s46, s47"); a("s_and_b32 s47, s%d, 4" % S_XCD); a("s_lshl_b32 s47, s47, 1"); a("s_add_u32 s46, s46, s47")
    a.sdiv(47, 67, 46, 9)
    if "p1norot" in ABL: a("s_mov_b32 s67, 0")
    def dma(sbuf):
        X = ["buffer_load_dwordx4 v%d, s[%d:%d], s68 offen offset:%d lds" % (10+j, R_A, R_A+3, 1024*j) for j in range(4)]
        W = ["buffer_load_dwordx4 v%d, s[%d:%d], s69 offen offset:%d lds" % (14+j, R_B, R_B+3, 1024*j) for j in range(4)]
        X[0] = "s_mov_b32 m0, s%d\ns_lshl_b32 s68, s67, 7\ns_add_u32 s68, s68, s54\n" % sbuf + X[0]
        X[1] = "s_mul_i32 s69, s67, %d\ns_add_u32 s69, s69, s55\n" % (64*3456) + X[1]
        X[2] = "s_add_u32 s67, s67, 1\ns_cmp_eq_u32 s67, 9\ns_cselect_b32 s67, 0, s67\n" + X[2]
        W[0] = "s_add_u32 m0, s%d, 16384\ns_nop 0\n" % sbuf + W[0]
        return X + W
    for x in dma(56): a(x)
    a("s_add_u32 s56, s56, 32768")
    if "p1touch" in ABL: touch_inputs(a, 224)
    a.stamp("p1_issue")
    a.srd(R_WS, S_WS, WS_END)
    a("v_lshrrev_b32 v30, 2, v%d" % V_R); a("v_and_b32 v31, 3, v%d" % V_R)
    a("v_lshl_add_u32 v32, v%d, 3, v30" % V_G); a("v_lshlrev_b32 v32, 8, v32"); a("v_lshl_add_u32 v32, v31, 3, v32")
    a("v_add_u32 v32, 16384, v32")
    a("v_and_b32 v33, 1, v%d" % V_G); a("v_lshl_add_u32 v33, v33, 2, v30")
    a("s_lshl_b32 s46, s53, 2"); a("s_lshl_b32 s47, s52, 1"); a("s_or_b32 s57, s46, s47")
    for t in range(4):
        a("s_xor_b32 s46, s57, %d" % t); a("v_xor_b32 v34, s46, v33"); a("v_lshl_add_u32 v%d, v34, 5, v32" % (20+t))
    a("v_lshrrev_b32 v30, 1, v%d" % V_R); a("v_xor_b32 v30, v30, v%d" % V_G); a("v_lshlrev_b32 v31, 7, v%d" % V_R)
    a("s_lshl_b32 s46, s52, 13"); a("s_lshl_b32 s47, s53, 12"); a("s_add_u32 s46, s46, s47"); a("s_xor_b32 s47, s46, 4096")
    a("v_lshl_add_u32 v32, v30, 4, v31"); a("v_xor_b32 v33, 64, v32")
    a("v_add_u32 v24, s46, v32"); a("v_add_u32 v25, s47, v32"); a("v_add_u32 v26, s46, v33"); a("v_add_u32 v27, s47, v33")
    ACC, CS, ST, ONE = 48, 112, 120, 140
    XB = (144, 160); WB = (176, 192)
    WA, XA = 28, 32
    for r in range(ACC, ONE): a("v_mov_b32 v%d, 0" % r)
    for r in range(4): a("v_mov_b32 v%d, s%d" % (ONE+r, S_ONES))
    def addr(sbase):
        return ["v_add_u32 v%d, %s, v%d" % (WA+i, sbase, 20+i) for i in range(8)]
    def reads(jj):
        o = []
        for T in range(4):
            o.append("ds_read_b128 v[%d:%d], v%d offset:%d" % (XB[jj]+4*T, XB[jj]+4*T+3, XA+2*jj+(T>>1), 2048*(T&1)))
            for hh in range(2):
                o.append("ds_read_b64_tr_b16 v[%d:%d], v%d offset:%d" % (WB[jj]+4*T+2*hh, WB[jj]+4*T+2*hh+1, WA+T, jj*8192+hh*1024))
        return o
    def mm(jj, swap):
        o = []
        for t in range(4):
            for T in range(4):
                d = ACC+16*t+4*T
                o.append(mfma(d, XB[jj]+4*T, WB[jj]+4*t, d) if swap else mfma(d, WB[jj]+4*t, XB[jj]+4*T, d))
            if t < 2:
                d = CS+4*t
                o.append(mfma(d, ONE, WB[jj]+4*t, d) if swap else mfma(d, WB[jj]+4*t, ONE, d))
            x = XB[jj]+4*(t>>1); d = ST+4*t
            o.append(mfma(d, x if t & 1 else ONE, x, d))
        return o
    for x in addr("0"): a(x)
    a("s_lshl_b32 s60, s51, 1"); a("s_add_u32 s60, s60, s53")
    a("s_lshl_b32 s46, s50, 1"); a("s_add_u32 s46, s46, s52"); a("s_lshl_b32 s46, s46, 1"); a("s_add_u32 s47, s46, s53")
    a("s_xor_b32 s46, s47, 1"); a("s_mul_i32 s65, s47, 2304"); a("s_mul_i32 s66, s46, 2304"); a("s_mov_b32 s64, %d" % HPSZ)
    a("s_mov_b32 s58, 0"); a("s_mov_b32 s59, 0")
    a("s_cmp_ge_u32 s51, 9"); a("s_cbranch_scc1 L_p1_v0")
    for swap in (0, 1):
        L = "L_p1_v" if swap else "L_p1_qk"
        a.label(L + "0")
        if not swap:
            a("s_mov_b32 s62, %d" % Q_OFF); a("s_cmp_ge_u32 s60, 9"); a("s_cselect_b32 s61, 144, 0"); a("s_cselect_b32 s62, %d, s62" % K_OFF)
            a("s_cselect_b32 s73, 1.0, %d" % f32(QS))
            a("s_lshl_b32 s63, s60, 4"); a("s_sub_u32 s63, s63, s61")
            for t in range(4):
                a("s_lshl_b32 s46, s52, 1"); a("s_xor_b32 s46, s46, %d" % t); a("s_lshl_b32 s46, s46, 2"); a("s_add_u32 s46, s46, s63")
                a("v_add_u32 v212, s46, v%d" % V_G)
                a("v_mul_u32_u24 v213, 7282, v212"); a("v_lshrrev_b32 v213, 16, v213")
                a("v_mul_u32_u24 v214, 9, v213"); a("v_sub_u32 v212, v212, v214")
                a("v_cmp_lt_u32 vcc, 4, v212"); a("v_subb_co_u32 v214, vcc, v212, 0, vcc")
                a("v_cmp_eq_u32 vcc, 4, v212"); a("v_cndmask_b32 v214, v214, 8, vcc")
                a("v_mul_lo_u32 v213, v213, s64"); a("v_lshl_add_u32 v213, v214, 7, v213"); a("v_lshl_add_u32 v%d, v%d, 3, v213" % (208+t, V_R))
        else:
            a("s_mov_b32 s62, %d" % V_OFF); a("s_sub_u32 s63, s60, 18"); a("s_lshl_b32 s63, s63, 6")
            for t in range(4):
                a("s_lshl_b32 s46, s52, 1"); a("s_xor_b32 s46, s46, %d" % t); a("s_lshl_b32 s46, s46, 4"); a("s_add_u32 s46, s46, s63")
                a("v_add_u32 v212, s46, v%d" % V_R)
                a("v_mul_u32_u24 v213, 1821, v212"); a("v_lshrrev_b32 v213, 16, v213")
                a("v_mul_u32_u24 v214, 36, v213"); a("v_sub_u32 v212, v212, v214")
                a("v_lshl_add_u32 v214, v%d, 4, v212" % V_G)
                a("v_add_u32 v215, 44, v214")
                a("v_cmp_lt_u32 vcc, 19, v212"); a("v_cndmask_b32 v214, v214, v215, vcc")
                a("v_lshl_add_u32 v215, v212, 2, v%d" % V_G); a("v_add_u32 v215, 64, v215")
                a("v_lshrrev_b32 v212, 2, v212"); a("v_cmp_eq_u32 vcc, 4, v212"); a("v_cndmask_b32 v214, v214, v215, vcc")
                a("v_mul_lo_u32 v213, v213, s64"); a("v_lshl_add_u32 v%d, v214, 4, v213" % (208+t))
        a("s_add_u32 s65, s65, s62"); a("s_add_u32 s66, s66, s62")
        for x in dma(56): a(x)
        a("s_add_u32 s56, s56, 32768")
        a("s_waitcnt vmcnt(8)"); a("s_barrier")
        a.stamp("p1_first")
        for x in reads(0): a(x)
        a.label(L)
        a("s_cmp_ge_u32 s58, 7"); a("s_cbranch_scc1 %s_n" % L)
        for dm in (1, 0):
            d = dma(56) if (dm and "p1nodma" not in ABL) else []
            m = mm(0, swap)
            a("s_waitcnt lgkmcnt(0)")
            interleave(a, m[:14], reads(1))
            interleave(a, m[14:], d[:4])
            a("s_add_u32 s58, s58, 1")
            a("s_add_u32 s59, s59, 32768"); a("s_cmp_eq_u32 s59, 163840"); a("s_cselect_b32 s59, 0, s59")
            a("s_waitcnt vmcnt(%d) lgkmcnt(0)" % (4 if dm else 0))
            a("s_barrier")
            m = mm(1, swap); ad = addr("s59")
            interleave(a, m[:3], ad[4:6] + ad[0:4])
            interleave(a, m[3:15], reads(0) + ad[6:8])
            interleave(a, m[15:], d[4:])
            if dm:
                a("s_add_u32 s56, s56, 32768"); a("s_cmp_ge_u32 s56, 163840"); a("s_cselect_b32 s46, 163840, 0"); a("s_sub_u32 s56, s56, s46")
                a("s_branch %s" % L)
                a.label(L + "_n")
            else:
                a("s_cmp_lt_u32 s58, 9"); a("s_cbranch_scc1 %s_n" % L)
        a.stamp("p1_loop")
        a("s_waitcnt lgkmcnt(0)")
        a("v_and_b32 v40, 1, v%d" % V_R); a("v_cmp_eq_u32 s[74:75], 1, v40")
        a("v_and_b32 v40, 2, v%d" % V_R); a("v_cmp_eq_u32 s[76:77], 2, v40")
        a("v_lshrrev_b32 v40, 2, v%d" % V_R); a("v_cmp_eq_u32 s[78:79], v40, v%d" % V_G)
        a("s_mov_b32 s46, %d" % f32(1.0/576)); a("s_mov_b32 s47, %d" % f32(1e-5))
        for T in range(2):
            s_, q_ = ST+8*T, ST+8*T+4
            a("v_cndmask_b32 v%d, v%d, v%d, s[74:75]" % (q_, q_, q_+1)); a("v_cndmask_b32 v%d, v%d, v%d, s[74:75]" % (q_+2, q_+2, q_+3))
            a("v_mul_f32 v%d, s46, v%d" % (s_, s_))
            a("v_cndmask_b32 v%d, v%d, v%d, s[76:77]" % (q_, q_, q_+2))
            a("v_mul_f32 v42, v%d, v%d" % (s_, s_))
            a("v_fma_f32 v%d, v%d, s46, -v42" % (q_, q_)); a("v_max_f32 v%d, 0, v%d" % (q_, q_)); a("v_add_f32 v%d, s47, v%d" % (q_, q_))
            a("v_rsq_f32 v%d, v%d" % (36+2*T, q_)); a("v_mul_f32 v%d, v%d, -v%d" % (37+2*T, 36+2*T, s_))
        a("s_lshl_b32 s46, s52, 9"); a("s_lshl_b32 s47, s53, 8"); a("s_add_u32 s46, s46, s47")
        a("v_lshl_add_u32 v40, v%d, 3, s46" % V_R)
        a("s_mov_b64 exec, s[78:79]")
        a("ds_write_b64 v40, v[36:37]"); a("ds_write_b64 v40, v[38:39] offset:128")
        a("s_mov_b64 exec, -1")
        a("s_lshl_b32 s47, s57, 6")
        if not swap:
            a("v_lshl_add_u32 v41, v%d, 4, s47" % V_G)
            a("ds_write_b128 v41, v[%d:%d] offset:1024" % (CS, CS+3)); a("ds_write_b128 v41, v[%d:%d] offset:1088" % (CS+4, CS+7))
        else:
            a("v_lshl_add_u32 v41, v%d, 2, s47" % V_R)
            a("ds_write_b32 v41, v%d offset:1024" % CS); a("ds_write_b32 v41, v%d offset:1088" % (CS+4))
        a("s_waitcnt lgkmcnt(0)"); a("s_barrier")
        Ls = L + "_s"
        a("s_cmp_ge_u32 s60, 27"); a("s_cbranch_scc1 %s" % Ls)
        a("v_xor_b32 v42, 256, v40"); a("v_xor_b32 v43, 128, v41")
        if not swap:
            RS, CC = 144, 160
            a("ds_read_b64 v[%d:%d], v40" % (RS, RS+1)); a("ds_read_b64 v[%d:%d], v40 offset:128" % (RS+2, RS+3))
            a("ds_read_b64 v[%d:%d], v42" % (RS+4, RS+5)); a("ds_read_b64 v[%d:%d], v42 offset:128" % (RS+6, RS+7))
            for t in range(4):
                a("ds_read_b128 v[%d:%d], v%d offset:%d" % (CC+4*t, CC+4*t+3, 41 if t < 2 else 43, 1024+64*(t&1)))
            a("s_waitcnt lgkmcnt(0)")
            for T in range(4): a("v_pk_mul_f32 v[%d:%d], v[%d:%d], s[72:73] op_sel:[0,1] op_sel_hi:[1,1]" % (RS+2*T, RS+2*T+1, RS+2*T, RS+2*T+1))
            for t in range(4):
                for T in range(4):
                    d = ACC+16*t+4*T
                    for h in range(2):
                        a("v_pk_mul_f32 v[216:217], v[%d:%d], v[%d:%d] op_sel:[0,1] op_sel_hi:[1,1]" % (CC+4*t+2*h, CC+4*t+2*h+1, RS+2*T, RS+2*T+1))
                        a("v_pk_fma_f32 v[%d:%d], v[%d:%d], v[%d:%d], v[216:217] op_sel_hi:[1,0,1]" % (d+2*h, d+2*h+1, d+2*h, d+2*h+1, RS+2*T, RS+2*T+1))
                    a("v_cvt_pk_bf16_f32 v%d, v%d, v%d" % (d, d, d+1)); a("v_cvt_pk_bf16_f32 v%d, v%d, v%d" % (d+1, d+2, d+3))
                    a("buffer_store_dwordx2 v[%d:%d], v%d, s[%d:%d], s%d offen offset:%d sc1" % (d, d+1, 208+t, R_WS, R_WS+3, 65+(T>>1), 1152*(T&1)))
        else:
            RS, CC = 144, 176
            a("v_lshl_add_u32 v40, v%d, 5, s46" % V_G); a("v_xor_b32 v42, 256, v40")
            for T in range(4):
                for h in range(2):
                    a("ds_read_b128 v[%d:%d], v%d offset:%d" % (RS+8*T+4*h, RS+8*T+4*h+3, 40 if T < 2 else 42, 128*(T&1)+16*h))
            for t in range(4):
                a("ds_read_b32 v%d, v%d offset:%d" % (CC+t, 41 if t < 2 else 43, 1024+64*(t&1)))
            a("s_waitcnt lgkmcnt(0)")
            for t in range(4):
                for T in range(4):
                    d = ACC+16*t+4*T
                    for i in range(4):
                        a("v_mul_f32 v%d, v%d, v%d" % (216+i, RS+8*T+2*i+1, CC+t))
                    for i in range(4):
                        a("v_fma_f32 v%d, v%d, v%d, v%d" % (d+i, d+i, RS+8*T+2*i, 216+i))
                    e = ACC+16*t+8*(T>>1)+2*(T&1)
                    a("v_cvt_pk_bf16_f32 v%d, v%d, v%d" % (e, d, d+1)); a("v_cvt_pk_bf16_f32 v%d, v%d, v%d" % (e+1, d+2, d+3))
                    if T & 1:
                        a("buffer_store_dwordx4 v[%d:%d], v%d, s[%d:%d], s%d offen sc1" % (e-2, e+1, 208+t, R_WS, R_WS+3, 65+(T>>1)))
        a.label(Ls)
        if not swap: a("s_branch L_p1_pub")
    a.label("L_p1_pub")
    a.stamp("p1_stores")
    L = a.newlabel("Lp1f")
    a("s_cmp_lg_u32 s%d, 0" % S_WAVE); a("s_cbranch_scc1 %s_a" % L)
    a.get_nonce(36)
    a.label(L + "_a")
    a("s_waitcnt vmcnt(0)"); a("s_barrier")
    a("s_cmp_lg_u32 s%d, 0" % S_WAVE); a("s_cbranch_scc1 L_p1_done")
    a("s_lshl_b32 s46, s50, 4"); a("s_add_u32 s46, s46, s51"); a("s_add_u32 s46, s46, %d" % F1)
    a.set_flag(46, 36)
    a("s_branch L_p1_done")
    a.label("L_p1_helper")
    swizzle_setup(a)
    a("s_lshl_b32 s48, s%d, 2" % S_XCD); a("s_add_u32 s48, s48, s%d" % S_SLOT); a("s_sub_u32 s48, s48, 28")
    a("s_waitcnt lgkmcnt(0)")
    if WSOFF: a("s_add_u32 s24, s24, %d" % WSOFF); a("s_addc_u32 s25, s25, 0")
    a.srd(R_WS, S_WS, WS_END)
    publish_nonce(a)
    a("s_add_u32 s49, s48, 32"); a("s_cmp_lt_u32 s49, 54"); a("s_cselect_b32 s49, s49, s48")
    B = 36864
    sw_issue(a, 48, 0, 0); sw_issue(a, 49, 1, B)
    mark_setup(a)
    if MK1: mark_fill(a, MK1)
    a("s_waitcnt vmcnt(0)"); a("s_barrier")
    sw_process(a, 0, 0); sw_process(a, 1, B)
    L = a.newlabel("Lhn"); a("s_cmp_lg_u32 s%d, 0" % S_WAVE); a("s_cbranch_scc1 %s" % L); a.get_nonce(36); a.label(L)
    a("s_waitcnt vmcnt(0)"); a("s_barrier")
    sw_flags(a, (0, 1))
    a.stamp("h_small")
    if MK1 < MKG: mark_fill(a, MKG - MK1)
    a("s_waitcnt vmcnt(0)"); a("s_barrier")
    sw_flags(a, (), mark=True)
    a.label("L_p1_done")
    a.stamp("p1_done")

def generate(stop=99, stamps=False):
    a = G(stop, stamps)
    prologue(a)
    phase1(a)
    from phases import phase2, phase345, phase6
    if stop >= 2: phase2(a)
    if stop >= 3: phase345(a)
    if stop >= 6: phase6(a)
    a.label("L_fin")
    a.stamp_out()
    a.label("L_end")
    a("s_endpgm")
    for x in a.stubs: a(x)
    a.label("L_last")
    body, nops = fix_hazards(a.lines)
    return body, nops

HEADER = """; Fused transformer block (LN, QKV, sliding-window attention, Wo, shift-MLP, channel MLP) as one persistent kernel.
; 256 workgroups of 4 waves, one per CU; phases hand data over through d_ws with write-through stores and flags.
; @launch grid=(256,1,1) block=(256,1,1) lds=163840
.amdgcn_target "amdgcn-amd-amdhsa--gfx950"
.text
.globl %s
.p2align 8
.type %s,@function
%s:
""" % (KN, KN, KN)
FOOTER = """.section .rodata,"a"
.p2align 6
.amdhsa_kernel %s
  .amdhsa_next_free_vgpr 512
  .amdhsa_next_free_sgpr 102
  .amdhsa_accum_offset 256
  .amdhsa_group_segment_fixed_size 0
  .amdhsa_kernarg_size 88
  .amdhsa_user_sgpr_count 2
  .amdhsa_user_sgpr_kernarg_segment_ptr 1
  .amdhsa_system_sgpr_workgroup_id_x 1
.end_amdhsa_kernel
""" % KN

def main():
    import argparse
    p = argparse.ArgumentParser()
    p.add_argument("--stop", type=int, default=99); p.add_argument("--stamps", default=""); p.add_argument("--wsoff", type=int, default=0); p.add_argument("--rt", action="store_true")
    p.add_argument("-o", default="k.s")
    o = p.parse_args()
    global WSOFF, CLK
    if o.rt: CLK = 's_memrealtime'
    WSOFF = o.wsoff << 20
    st = STAMPSETS.get(o.stamps, o.stamps.split(',')) if o.stamps else None
    if st:
        st = ['start'] + list(st) + ['end']; assert len(st) <= 16
        open(o.o[:-2] + '.stamps', 'w').write(','.join(st))
    body, nops = generate(o.stop, st)
    text = HEADER + "\n".join(("" if l.endswith(":") else "  ") + l for l in body) + "\n" + FOOTER
    open(o.o, "w").write(text)
    build(o.o, o.o[:-2] + ".co", KN)
    n = sum(1 for l in body if l and not l.endswith(":"))
    print("instructions", n, "nop states added", nops)
    for nm, takes in TRACES.items():
        errs = check_waits(body, takes)
        for e in errs[:10]: print("WAIT[%s]" % nm, e)

STAMPSETS = {
 "all": "p1_first p1_loop p1_done p2_ready p2_loaded p2_done p3_ready p4_ready p5_ready p5_done p6_ready p6_x p6_a p6_b".split(),
 "p1": "p1_issue p1_first p1_loop p1_stores p1_done p2_ready p2_loaded p2_done p3_ready p4_ready p5_ready p5_done p6_ready p6_x".split(),
 "p3k": "p2_done p3_ready p3_k0 p3_k9 p3_gemm p4_ready p4_k0 p4_k9 p4_gemm p5_ready p5_k0 p5_k9 p5_gemm".split(),
 "hop": "p1_stores p1_done p2_ready p2_loaded p2_done p3_ready p3_epi p4_ready p4_epi p5_ready p5_epi p6_ready p6_x p6_b".split(),
 "p6": "p5_epi p6_ready p6_x p6_p0 p6_a p6_s0 p6_s6 p6_s7 p6_b p7_ready".split(),
 "h": "h_small p1_stores p1_done p2_setup p2_fs p2_ready p2_loaded p2_done".split(),
 "p4k": "p3_k0 p3_k9 p3_gemm p3_epi p4_ready p4_k0 p4_k9 p4_gemm p4_epi p5_ready p5_k0 p5_k9 p5_gemm p5_epi".split(),
 "p6x": "p2_done h_w3 h_w4 p5_gemm p5_epi p5_done p6_ready p6_st p6_x9 p6_x17 p6_x p6_p0".split(),
 "p3": "p2_done p3_dma p3_drain p3_ready p3_gemm p3_epi p4_dma p4_drain p4_ready p4_gemm p4_epi p5_drain p5_ready p5_gemm".split(),
}
TRACES = {"w012": {"L_p7_main": True, "L_p1_qk_n": [False,True,False]}, "h3": {"L_p3_helper": True, "L_p1_qk_n": [False,True,False]}, "edge": {"L_p2_edge": True, "L_p1_qk_n": [False,True,False]}, "qk": {"L_p1_qk_n": [False,False,True,True,False]}, "v": {"L_p1_v0": True, "L_p1_v_n": [False,False,True,True,False]}, "helper": {"L_p1_helper": True}}

if __name__ == "__main__":
    sys.modules["gen"] = sys.modules["__main__"]
    main()
```

```python
import sys, os, struct, math
sys.path.insert(0, "dev")
from asmlib import Asm, build
from hazard import fix_hazards, check_waits

NAME = "sequential_preLN__sliding_block__mixer_s_mlp__prompt"
KN = NAME + "_kernel"

ACT = 2048*576*2
SW  = 576*576*2
BW  = 576*4608*2
FLAG0 = 128
F1, FS, F2, F3, F4, F5, FA, FB = 0, 256, 640, 896, 1152, 1408, 1664, 2688
TS_OFF = 0x80000
Q_OFF  = 0x90000
K_OFF  = Q_OFF + ACT
V_OFF  = K_OFF + ACT
O_OFF  = V_OFF + ACT
H_OFF  = O_OFF + ACT
SH_OFF = H_OFF + ACT
T_OFF  = SH_OFF + 98304
X1_OFF = T_OFF + ACT
SX_OFF = X1_OFF + ACT
WO_S   = SX_OFF + 98304
W1_S   = WO_S + SW
W2_S   = W1_S + SW
W3_S   = W2_S + SW
W4_S   = W3_S + BW
PART   = W4_S + BW
WS_END = PART + 32*9*8*8192
FP_OFF = 0x7F000
FP2_OFF = FP_OFF + 1024
MARK_N = T_OFF - O_OFF
MKG = 19
MARK_W = 2048*MKG
assert 128*MARK_W >= MARK_N and 1024*5120 >= WO_S - T_OFF
HPSZ   = 147456

WSOFF = 0
MK1 = int(os.environ.get('MK1', 0))
THR = int(os.environ.get('THR', 0))
NW3 = int(os.environ.get('NW3', 0))
ABL = os.environ.get('ABL', '').split(',')
CLK = 's_memtime'
def f32(x): return struct.unpack("<I", struct.pack("<f", x))[0]
def magic(d): return (1 << 32)//d + 1

S_X, S_WQKV, S_WO = 4, 6, 8
S_W1, S_W2, S_W3, S_W4 = 12, 14, 16, 18
S_OUT, S_DBG, S_WS = 20, 22, 24
R_WS, R_A, R_B = 28, 32, 36
S_WAVE, S_XCD, S_SLOT, S_NONCE = 40, 41, 42, 43
S_ONES = 44
V_LANE, V_R, V_G, V_L16 = 1, 2, 3, 4

class G(Asm):
    def __init__(s, stop=99, stamps=False):
        super().__init__()
        s.stop = stop; s.stamps = stamps; s.stubs = []
    def srd(a, d, p, size, add=0):
        if add >= 0:
            a("s_add_u32 s%d, s%d, %s" % (d, p, add)); a("s_addc_u32 s%d, s%d, 0" % (d+1, p+1))
        else:
            a("s_sub_u32 s%d, s%d, %d" % (d, p, -add)); a("s_subb_u32 s%d, s%d, 0" % (d+1, p+1))
        a("s_mov_b32 s%d, %d" % (d+2, size)); a("s_mov_b32 s%d, 0x20000" % (d+3))
    def srd_s(a, d, p, size, sreg):
        a("s_add_u32 s%d, s%d, s%d" % (d, p, sreg)); a("s_addc_u32 s%d, s%d, 0" % (d+1, p+1))
        a("s_mov_b32 s%d, %d" % (d+2, size)); a("s_mov_b32 s%d, 0x20000" % (d+3))
    def sdiv(a, q, r, x, d):
        a("s_mul_hi_u32 s%d, s%d, %d" % (q, x, magic(d)))
        if r is not None:
            a("s_mul_i32 s%d, s%d, %d" % (r, q, d)); a("s_sub_u32 s%d, s%d, s%d" % (r, x, r))
    def stamp(a, name):
        if not a.stamps or name not in a.stamps: return
        k = a.stamps.index(name)
        a("%s s[98:99]" % CLK); a("s_waitcnt lgkmcnt(0)"); a("s_mov_b32 s%d, s98" % (80+k))
    def stamp_out(a):
        if not a.stamps: return
        a.stamp("end")
        a("s_lshl_b32 s98, s2, 2"); a("s_add_u32 s98, s98, s%d" % S_WAVE); a("s_lshl_b32 s98, s98, 6"); a("s_add_u32 s98, s98, %d" % TS_OFF)
        a("v_mov_b32 v255, 0")
        for k in range(16):
            a("v_mov_b32 v254, s%d" % (80+k))
            a("buffer_store_dword v254, v255, s[%d:%d], s98 offen offset:%d" % (R_WS, R_WS+3, 4*k))
            a("s_nop 1")
    def xg_reduce(a, v, t, op="v_add_f32"):
        for sw in ("v_permlane32_swap_b32", "v_permlane16_swap_b32"):
            a("v_mov_b32 v%d, v%d" % (t, v)); a("%s v%d, v%d" % (sw, v, t)); a("%s v%d, v%d, v%d" % (op, v, v, t))
    def get_nonce(a, vt):
        L = a.newlabel("Lnon")
        a("s_mov_b32 s46, 200000"); a("v_mov_b32 v%d, 0" % (vt+2))
        a.label(L)
        a("global_load_dwordx2 v[%d:%d], v%d, s[%d:%d] sc1" % (vt, vt+1, vt+2, S_DBG, S_DBG+1))
        a("s_waitcnt vmcnt(0)")
        a("v_readfirstlane_b32 s47, v%d" % (vt+1)); a("v_readfirstlane_b32 s%d, v%d" % (S_NONCE, vt))
        a("s_sub_u32 s46, s46, 1"); a("s_cbranch_scc1 %s_x" % L)
        a("s_cmp_eq_u32 s47, 0"); a("s_cbranch_scc1 %s" % L)
        a.label(L + "_x")
    def set_flag(a, sidx, vt):
        a("s_lshl_b32 s%d, s%d, 7" % (sidx, sidx)); a("s_add_u32 s%d, s%d, %d" % (sidx, sidx, FLAG0))
        a("v_mov_b32 v%d, s%d" % (vt, S_NONCE)); a("v_mov_b32 v%d, 0" % (vt+1))
        a("s_mov_b64 exec, 1")
        a("buffer_store_dword v%d, v%d, s[%d:%d], s%d offen sc1" % (vt, vt+1, R_WS, R_WS+3, sidx))
        a("s_mov_b64 exec, -1")
    def set_mark(a, vt, off):
        a("s_lshl_b32 s46, s2, 2"); a("s_add_u32 s46, s46, %d" % off)
        a("v_mov_b32 v%d, s%d" % (vt, S_NONCE)); a("v_mov_b32 v%d, 0" % (vt+1))
        a("s_mov_b64 exec, 1")
        a("buffer_store_dword v%d, v%d, s[%d:%d], s46 offen sc1" % (vt, vt+1, R_WS, R_WS+3))
        a("s_mov_b64 exec, -1")
    def poll(a, vidx, vt, sleep0=6, sleep=2):
        L = a.newlabel("Lpoll")
        a("v_lshlrev_b32 v%d, 7, v%d" % (vidx, vidx))
        a("s_mov_b32 s46, 100000")
        if sleep0: a("s_sleep %d" % sleep0)
        a.label(L)
        a("buffer_load_dword v%d, v%d, s[%d:%d], 0 offen offset:%d sc1" % (vt, vidx, R_WS, R_WS+3, FLAG0))
        a("s_waitcnt vmcnt(0)")
        a("v_cmp_ne_u32 vcc, s%d, v%d" % (S_NONCE, vt))
        a("s_cbranch_vccz %s_x" % L)
        a("s_sleep %d" % sleep)
        a("s_sub_u32 s46, s46, 1"); a("s_cbranch_scc0 %s" % L)
        a.label(L + "_x")

def mfma(d, A, B, C=None, ta="v", tb="v", td="v"):
    c = "0" if C is None else "%s[%d:%d]" % (td, C, C+3)
    return "v_mfma_f32_16x16x32_bf16 %s[%d:%d], %s[%d:%d], %s[%d:%d], %s" % (td, d, d+3, ta, A, A+3, tb, B, B+3, c)

def interleave(a, main, fill, start=0):
    n = len(main) - start; k = 0
    for i, m in enumerate(main):
        a(m)
        if i >= start:
            upto = (len(fill)*(i-start+1) + n - 1)//n
            while k < upto: a(fill[k]); k += 1

def prologue(a):
    a("s_cmp_ge_u32 s2, 256"); a("s_cbranch_scc1 L_end")
    a("s_load_dwordx4 s[4:7], s[0:1], 0")
    a("s_load_dwordx2 s[24:25], s[0:1], 80")
    a("s_load_dwordx2 s[8:9], s[0:1], 16")
    a("s_load_dwordx8 s[12:19], s[0:1], 32")
    a("s_load_dwordx4 s[20:23], s[0:1], 64")
    a("v_and_b32 v%d, 63, v0" % V_LANE)
    a("v_lshrrev_b32 v5, 6, v0")
    a("v_and_b32 v%d, 15, v0" % V_R)
    a("v_readfirstlane_b32 s%d, v5" % S_WAVE)
    a("v_lshrrev_b32 v%d, 4, v%d" % (V_G, V_LANE))
    a("v_lshlrev_b32 v%d, 4, v%d" % (V_L16, V_LANE))
    if "antiloc" in ABL:
        a("s_lshr_b32 s46, s2, 5"); a("s_and_b32 s47, s2, 31"); a("s_lshl_b32 s47, s47, 3"); a("s_or_b32 s2, s46, s47")
    a("s_and_b32 s%d, s2, 7" % S_XCD); a("s_lshr_b32 s%d, s2, 3" % S_SLOT)
    a("s_mov_b32 s%d, 0x3f803f80" % S_ONES)
    if "nopf" not in ABL:
        a("s_getpc_b64 s[46:47]")
        a.label("L_pc")
        a("s_mul_i32 s48, s%d, %d" % (S_SLOT, 20*128)); a("v_lshl_add_u32 v5, v0, 7, s48")
        a("v_cmp_gt_u32 vcc, 20, v0"); a("s_mov_b32 s48, L_last-L_pc"); a("v_cmp_gt_u32 s[48:49], s48, v5"); a("s_and_b64 vcc, vcc, s[48:49]")
        a("s_and_saveexec_b64 s[48:49], vcc"); a("s_cbranch_execz L_pcd")
        a("global_load_dword v253, v5, s[46:47]")
        a.label("L_pcd")
        a("s_mov_b64 exec, -1")
    if a.stamps:
        for k in range(16): a("s_mov_b32 s%d, 0" % (80+k))
        a.stamp("start")

def publish_nonce(a):
    L = a.newlabel("Lpn")
    a("s_xor_b32 s46, s2, 224"); a("s_or_b32 s46, s46, s%d" % S_WAVE); a("s_cmp_lg_u32 s46, 0"); a("s_cbranch_scc1 %s" % L)
    a("v_mov_b32 v252, 0")
    a("buffer_load_dword v250, v252, s[%d:%d], 0 offen sc1" % (R_WS, R_WS+3))
    a("s_mov_b32 s46, 0x9E3779B1")
    a("s_waitcnt vmcnt(0)")
    a("v_mul_lo_u32 v250, v250, s46"); a("v_add_u32 v250, 0x7F4A7C15, v250"); a("v_mov_b32 v251, 1")
    a("s_mov_b64 exec, 1")
    a("buffer_store_dword v250, v252, s[%d:%d], 0 offen sc1" % (R_WS, R_WS+3))
    a("global_store_dwordx2 v252, v[250:251], s[%d:%d] sc1" % (S_DBG, S_DBG+1))
    a("s_mov_b64 exec, -1")
    a.label(L)

def swizzle_setup(a):
    for i in range(9):
        a("v_add_u32 v40, %d, v%d" % (64*i, V_LANE))
        a("v_mul_u32_u24 v%d, 911, v40" % (10+i)); a("v_lshrrev_b32 v%d, 16, v%d" % (10+i, 10+i))
        a("v_mul_u32_u24 v41, 72, v%d" % (10+i)); a("v_sub_u32 v41, v40, v41"); a("v_lshlrev_b32 v%d, 4, v41" % (20+i))
    a("v_lshrrev_b32 v40, 2, v%d" % V_R); a("v_lshl_add_u32 v40, v%d, 3, v40" % V_G); a("v_mul_u32_u24 v40, 1152, v40")
    a("v_and_b32 v41, 3, v%d" % V_R); a("v_lshl_add_u32 v30, v41, 4, v40")
    a("s_lshr_b32 s46, s%d, 1" % S_WAVE); a("s_lshl_b32 s46, s46, 6"); a("s_and_b32 s47, s%d, 1" % S_WAVE); a("s_lshl_b32 s47, s47, 3")
    a("s_add_u32 s46, s46, s47"); a("v_add_u32 v30, s46, v30")

def sw_decode(a, su, p):
    Ln = a.newlabel("Lsw")
    D = 60+3*p
    a("s_cmp_ge_u32 s%d, 54" % su); a("s_cbranch_scc1 %s_big" % Ln)
    a.sdiv(51, 52, su, 18)
    a("s_cmp_eq_u32 s51, 1"); a("s_cselect_b32 s54, s%d, s%d" % (S_W1, S_W2)); a("s_cselect_b32 s55, s%d, s%d" % (S_W1+1, S_W2+1))
    a("s_cmp_eq_u32 s51, 0"); a("s_cselect_b32 s54, s%d, s54" % S_WO); a("s_cselect_b32 s55, s%d, s55" % (S_WO+1))
    a("s_mul_i32 s%d, s51, %d" % (D, SW)); a("s_add_u32 s%d, s%d, %d" % (D, D, WO_S))
    a("s_mul_i32 s53, s%d, 18432" % S_WAVE); a("s_add_u32 s%d, s%d, s53" % (D, D))
    a("s_mov_b32 s%d, 73728" % (D+1))
    a("s_lshl_b32 s56, s52, 5"); a("s_lshl_b32 s53, s%d, 3" % S_WAVE); a("s_add_u32 s56, s56, s53")
    a("s_mov_b32 s57, 0"); a("s_mov_b32 s59, 1152")
    a("s_cmp_lg_u32 s51, 0"); a("s_cbranch_scc1 %s_j" % Ln)
    a("s_mul_i32 s56, s52, 36"); a("s_lshl_b32 s53, s%d, 2" % S_WAVE); a("s_add_u32 s56, s56, s53"); a("s_mov_b32 s57, 16")
    a("s_cmp_lt_u32 s52, 16"); a("s_cbranch_scc1 %s_j" % Ln)
    a("s_sub_u32 s56, s52, 16"); a("s_lshl_b32 s56, s56, 2"); a("s_add_u32 s56, s56, s%d" % S_WAVE)
    a("s_mul_i32 s56, s56, 72"); a("s_add_u32 s56, s56, 16"); a("s_mov_b32 s57, 32")
    a("s_branch %s_j" % Ln)
    a.label(Ln + "_big")
    sw_big(a, su, D)
    a("s_lshl_b32 s56, s52, 5"); a("s_lshl_b32 s53, s%d, 3" % S_WAVE); a("s_add_u32 s56, s56, s53"); a("s_mov_b32 s57, 0")
    a("s_cmp_ge_u32 s51, 8"); a("s_cbranch_scc1 %s_w4" % Ln)
    a("s_mul_i32 s53, s51, 1152"); a("s_add_u32 s54, s%d, s53" % S_W3); a("s_addc_u32 s55, s%d, 0" % (S_W3+1)); a("s_mov_b32 s59, 9216")
    a("s_branch %s_j" % Ln)
    a.label(Ln + "_w4")
    a("s_sub_u32 s53, s51, 8"); a("s_mul_i32 s53, s53, %d" % SW); a("s_add_u32 s54, s%d, s53" % S_W4); a("s_addc_u32 s55, s%d, 0" % (S_W4+1)); a("s_mov_b32 s59, 1152")
    a.label(Ln + "_j")
    a("s_lshl_b32 s53, s52, 10"); a("s_add_u32 s%d, s%d, s53" % (D, D))
    a("s_add_u32 s%d, s%d, %d" % (D+2, su, FS))

def sw_big(a, su, D):
    a("s_sub_u32 s53, s%d, 54" % su); a.sdiv(51, 52, 53, 18)
    a("s_mul_i32 s%d, s51, %d" % (D, 4*9*18432)); a("s_add_u32 s%d, s%d, %d" % (D, D, W3_S))
    a("s_mul_i32 s53, s%d, %d" % (S_WAVE, 9*18432)); a("s_add_u32 s%d, s%d, s53" % (D, D))
    a("s_mov_b32 s%d, 18432" % (D+1))

def sw_issue(a, su, p, lds):
    sw_decode(a, su, p)
    a("s_mov_b32 s%d, s54" % R_A); a("s_mov_b32 s%d, s55" % (R_A+1))
    a("s_mul_i32 s%d, s59, 575" % (R_A+2)); a("s_add_u32 s%d, s%d, 1152" % (R_A+2, R_A+2)); a("s_mov_b32 s%d, 0x20000" % (R_A+3))
    a("s_mul_i32 s53, s%d, 9216" % S_WAVE); a("s_add_u32 m0, s53, %d" % lds)
    for k in range(9):
        a("v_lshrrev_b32 v40, 2, v%d" % (10+k)); a("v_mul_lo_u32 v40, v40, s57"); a("v_add3_u32 v40, v40, v%d, s56" % (10+k))
        a("v_mul_lo_u32 v40, v40, s59"); a("v_add_u32 v40, v40, v%d" % (20+k))
        a("buffer_load_dwordx4 v40, s[%d:%d], 0 offen lds" % (R_A, R_A+3))
        a("s_add_u32 m0, m0, 1024")

def sw_process(a, p, lds):
    a("v_add_u32 v31, %d, v30" % lds)
    for q in range(9):
        for hh in range(2):
            a("ds_read_b64_tr_b16 v[%d:%d], v31 offset:%d" % (44+4*q+2*hh, 45+4*q+2*hh, hh*4608 + 128*q))
    a("s_mov_b32 s53, s%d" % (60+3*p))
    for q in range(9):
        a("s_waitcnt lgkmcnt(%d)" % min(15, 16-2*q))
        a("buffer_store_dwordx4 v[%d:%d], v%d, s[%d:%d], s53 offen sc1" % (44+4*q, 47+4*q, V_L16, R_WS, R_WS+3))
        a("s_add_u32 s53, s53, s%d" % (61+3*p))

def sw_flags(a, ps, mark=False):
    L = a.newlabel("Lswf")
    a("s_cmp_lg_u32 s%d, 0" % S_WAVE); a("s_cbranch_scc1 %s" % L)
    for p in ps: a.set_flag(62+3*p, 40)
    if mark: a.set_mark(40, FP_OFF - 4*224)
    a.label(L)

MK, R_M = 220, 76

def mark_setup(a):
    a.srd(R_M, S_WS, MARK_N, O_OFF)
    for r in range(4): a("v_mov_b32 v%d, -1" % (MK+r))
    a("s_sub_u32 s74, s2, %d" % 224); a("s_lshl_b32 s74, s74, 2"); a("s_add_u32 s74, s74, s%d" % S_WAVE); a("s_mul_i32 s74, s74, %d" % MARK_W)

def mark_fill(a, n):
    L = a.newlabel("Lmk")
    a("s_mov_b32 s75, %d" % n)
    a.label(L)
    a(mark_store(74, 0)); a(mark_store(74, 1024)); a("s_add_u32 s74, s74, 2048"); a("s_waitcnt vmcnt(40)")
    a("s_sub_u32 s75, s75, 1"); a("s_cmp_lg_u32 s75, 0"); a("s_cbranch_scc1 %s" % L)

def mark_store(s, off): return "buffer_store_dwordx4 v[%d:%d], v%d, s[%d:%d], s%d offen offset:%d sc1" % (MK, MK+3, V_L16, R_M, R_M+3, s, off)

def touch_pages(a):
    if "tlb" not in ABL: return
    L = a.newlabel("Ltp")
    a("s_cmp_lg_u32 s%d, 1" % S_WAVE); a("s_cbranch_scc1 %s" % L)
    a("v_lshlrev_b32 v252, 21, v%d" % V_LANE)
    a("buffer_load_dword v253, v252, s[%d:%d], 0 offen offset:64" % (R_WS, R_WS+3))
    for p, size in ((S_W3, BW), (S_W4, BW), (S_OUT, ACT), (S_WO, SW), (S_W1, SW), (S_W2, SW)):
        n = (size - 1 >> 21) + 1
        a("s_mov_b64 exec, %d" % ((1 << n) - 1))
        a("global_load_dword v253, v252, s[%d:%d]" % (p, p+1))
    a("s_mov_b64 exec, -1")
    a.label(L)

def touch_inputs(a, nwg):
    nx, nw = -(-18432//(2*nwg)), -(-15552//(2*nwg))
    a("s_mul_i32 s46, s50, 14"); a("s_add_u32 s46, s46, s51"); a("s_lshl_b32 s46, s46, 1"); a("s_add_u32 s46, s46, s53")
    a("v_lshlrev_b32 v252, 7, v%d" % V_LANE)
    L = a.newlabel("Lti")
    a("s_cmp_lg_u32 s52, 0"); a("s_cbranch_scc1 %s_w" % L)
    a("s_mul_i32 s46, s46, %d" % (128*nx)); a("s_add_u32 s46, s46, 4096"); a("s_mov_b64 exec, 0x%x" % ((1 << nx) - 1) if nx <= 32 else "s_bfm_b64 exec, %d, 0" % nx)
    a("buffer_load_dword v253, v252, s[%d:%d], s46 offen" % (R_A, R_A+3))
    a("s_branch %s" % L)
    a.label(L + "_w")
    a("s_mul_i32 s46, s46, %d" % (128*nw)); a("s_add_u32 s46, s46, 4096"); a("s_bfm_b64 exec, %d, 0" % nw)
    a("buffer_load_dword v253, v252, s[%d:%d], s46 offen" % (R_B, R_B+3))
    a.label(L)
    a("s_mov_b64 exec, -1")

def phase1(a):
    QS = 18**-0.5 * math.log2(math.e)
    a("s_cmp_ge_u32 s%d, 28" % S_SLOT); a("s_cbranch_scc1 L_p1_helper")
    a.sdiv(46, 47, S_SLOT, 7)
    a("s_lshr_b32 s48, s%d, 1" % S_XCD); a("s_lshl_b32 s48, s48, 2"); a("s_add_u32 s50, s48, s46")
    a("s_and_b32 s48, s%d, 1" % S_XCD); a("s_mul_i32 s48, s48, 7"); a("s_add_u32 s51, s48, s47")
    a("s_lshr_b32 s52, s%d, 1" % S_WAVE); a("s_and_b32 s53, s%d, 1" % S_WAVE)
    a("v_lshrrev_b32 v20, 3, v%d" % V_LANE); a("v_and_b32 v21, 7, v%d" % V_LANE)
    a("v_xor_b32 v22, v21, v%d" % V_G); a("v_mul_u32_u24 v20, 1152, v20")
    a("v_lshl_add_u32 v10, v22, 4, v20"); a("v_xor_b32 v22, 4, v22"); a("v_lshl_add_u32 v11, v22, 4, v20")
    a("v_add_u32 v12, %d, v10" % (16*1152 - 2048 + 4096)); a("v_add_u32 v13, %d, v11" % (24*1152 - 3072 + 4096))
    a("v_add_u32 v11, %d, v11" % (8*1152 - 1024 + 4096)); a("v_add_u32 v10, 4096, v10")
    a("v_lshrrev_b32 v20, 1, v%d" % V_R); a("v_xor_b32 v20, v20, v%d" % V_G); a("v_and_b32 v21, 1, v%d" % V_LANE)
    a("v_lshl_add_u32 v21, v20, 1, v21"); a("v_mul_u32_u24 v22, 3456, v%d" % V_G)
    a("v_lshl_add_u32 v14, v21, 4, v22"); a("v_xor_b32 v21, 8, v21"); a("v_lshl_add_u32 v16, v21, 4, v22")
    a("v_add_u32 v15, %d, v14" % (4*3456 - 1024 + 4096)); a("v_add_u32 v17, %d, v16" % (12*3456 - 3072 + 4096))
    a("v_add_u32 v16, %d, v16" % (8*3456 - 2048 + 4096)); a("v_add_u32 v14, 4096, v14")
    a("s_lshl_b32 s54, s50, 2"); a("s_add_u32 s54, s54, s%d" % S_WAVE); a("s_mul_i32 s54, s54, %d" % (32*1152))
    a("s_mul_i32 s55, s%d, %d" % (S_WAVE, 16*3456)); a("s_lshl_b32 s46, s51, 8"); a("s_add_u32 s55, s55, s46")
    a("s_lshl_b32 s56, s%d, 12" % S_WAVE)
    a("s_waitcnt lgkmcnt(0)")
    if WSOFF: a("s_add_u32 s24, s24, %d" % WSOFF); a("s_addc_u32 s25, s25, 0")
    a.srd(R_A, S_X, ACT + 4096, -4096); a.srd(R_B, S_WQKV, 576*3456 + 4096, -4096)
    a.sdiv(46, 47, S_SLOT, 7)
    a("s_and_b32 s48, s%d, 1" % S_XCD); a("s_add_u32 s46, s46, s48"); a("s_lshl_b32 s46, s46, 1"); a("s_add_u32 s46, s46, s47")
    a("s_bfe_u32 s47, s%d, 0x10001" % S_XCD); a("s_add_u32 s46, s46, s47"); a("s_and_b32 s47, s%d, 4" % S_XCD); a("s_lshl_b32 s47, s47, 1"); a("s_add_u32 s46, s46, s47")
    a.sdiv(47, 67, 46, 9)
    if "p1norot" in ABL: a("s_mov_b32 s67, 0")
    def dma(sbuf):
        X = ["buffer_load_dwordx4 v%d, s[%d:%d], s68 offen offset:%d lds" % (10+j, R_A, R_A+3, 1024*j) for j in range(4)]
        W = ["buffer_load_dwordx4 v%d, s[%d:%d], s69 offen offset:%d lds" % (14+j, R_B, R_B+3, 1024*j) for j in range(4)]
        X[0] = "s_mov_b32 m0, s%d\ns_lshl_b32 s68, s67, 7\ns_add_u32 s68, s68, s54\n" % sbuf + X[0]
        X[1] = "s_mul_i32 s69, s67, %d\ns_add_u32 s69, s69, s55\n" % (64*3456) + X[1]
        X[2] = "s_add_u32 s67, s67, 1\ns_cmp_eq_u32 s67, 9\ns_cselect_b32 s67, 0, s67\n" + X[2]
        W[0] = "s_add_u32 m0, s%d, 16384\ns_nop 0\n" % sbuf + W[0]
        return X + W
    for x in dma(56): a(x)
    a("s_add_u32 s56, s56, 32768")
    if "p1touch" in ABL: touch_inputs(a, 224)
    a.stamp("p1_issue")
    a.srd(R_WS, S_WS, WS_END)
    touch_pages(a)
    a("v_lshrrev_b32 v30, 2, v%d" % V_R); a("v_and_b32 v31, 3, v%d" % V_R)
    a("v_lshl_add_u32 v32, v%d, 3, v30" % V_G); a("v_lshlrev_b32 v32, 8, v32"); a("v_lshl_add_u32 v32, v31, 3, v32")
    a("v_add_u32 v32, 16384, v32")
    a("v_and_b32 v33, 1, v%d" % V_G); a("v_lshl_add_u32 v33, v33, 2, v30")
    a("s_lshl_b32 s46, s53, 2"); a("s_lshl_b32 s47, s52, 1"); a("s_or_b32 s57, s46, s47")
    for t in range(4):
        a("s_xor_b32 s46, s57, %d" % t); a("v_xor_b32 v34, s46, v33"); a("v_lshl_add_u32 v%d, v34, 5, v32" % (20+t))
    a("v_lshrrev_b32 v30, 1, v%d" % V_R); a("v_xor_b32 v30, v30, v%d" % V_G); a("v_lshlrev_b32 v31, 7, v%d" % V_R)
    a("s_lshl_b32 s46, s52, 13"); a("s_lshl_b32 s47, s53, 12"); a("s_add_u32 s46, s46, s47"); a("s_xor_b32 s47, s46, 4096")
    a("v_lshl_add_u32 v32, v30, 4, v31"); a("v_xor_b32 v33, 64, v32")
    a("v_add_u32 v24, s46, v32"); a("v_add_u32 v25, s47, v32"); a("v_add_u32 v26, s46, v33"); a("v_add_u32 v27, s47, v33")
    ACC, CS, ST, ONE = 48, 112, 120, 140
    XB = (144, 160); WB = (176, 192)
    WA, XA = 28, 32
    for r in range(ACC, ONE): a("v_mov_b32 v%d, 0" % r)
    for r in range(4): a("v_mov_b32 v%d, s%d" % (ONE+r, S_ONES))
    def addr(sbase):
        return ["v_add_u32 v%d, %s, v%d" % (WA+i, sbase, 20+i) for i in range(8)]
    def reads(jj):
        o = []
        for T in range(4):
            o.append("ds_read_b128 v[%d:%d], v%d offset:%d" % (XB[jj]+4*T, XB[jj]+4*T+3, XA+2*jj+(T>>1), 2048*(T&1)))
            for hh in range(2):
                o.append("ds_read_b64_tr_b16 v[%d:%d], v%d offset:%d" % (WB[jj]+4*T+2*hh, WB[jj]+4*T+2*hh+1, WA+T, jj*8192+hh*1024))
        return o
    def mm(jj, swap):
        o = []
        for t in range(4):
            for T in range(4):
                d = ACC+16*t+4*T
                o.append(mfma(d, XB[jj]+4*T, WB[jj]+4*t, d) if swap else mfma(d, WB[jj]+4*t, XB[jj]+4*T, d))
            if t < 2:
                d = CS+4*t
                o.append(mfma(d, ONE, WB[jj]+4*t, d) if swap else mfma(d, WB[jj]+4*t, ONE, d))
            x = XB[jj]+4*(t>>1); d = ST+4*t
            o.append(mfma(d, x if t & 1 else ONE, x, d))
        return o
    for x in addr("0"): a(x)
    a("s_lshl_b32 s60, s51, 1"); a("s_add_u32 s60, s60, s53")
    a("s_lshl_b32 s46, s50, 1"); a("s_add_u32 s46, s46, s52"); a("s_lshl_b32 s46, s46, 1"); a("s_add_u32 s47, s46, s53")
    a("s_xor_b32 s46, s47, 1"); a("s_mul_i32 s65, s47, 2304"); a("s_mul_i32 s66, s46, 2304"); a("s_mov_b32 s64, %d" % HPSZ)
    a("s_mov_b32 s58, 0"); a("s_mov_b32 s59, 0")
    a("s_cmp_ge_u32 s51, 9"); a("s_cbranch_scc1 L_p1_v0")
    for swap in (0, 1):
        L = "L_p1_v" if swap else "L_p1_qk"
        a.label(L + "0")
        if not swap:
            a("s_mov_b32 s62, %d" % Q_OFF); a("s_cmp_ge_u32 s60, 9"); a("s_cselect_b32 s61, 144, 0"); a("s_cselect_b32 s62, %d, s62" % K_OFF)
            a("s_cselect_b32 s73, 1.0, %d" % f32(QS))
            a("s_lshl_b32 s63, s60, 4"); a("s_sub_u32 s63, s63, s61")
            for t in range(4):
                a("s_lshl_b32 s46, s52, 1"); a("s_xor_b32 s46, s46, %d" % t); a("s_lshl_b32 s46, s46, 2"); a("s_add_u32 s46, s46, s63")
                a("v_add_u32 v212, s46, v%d" % V_G)
                a("v_mul_u32_u24 v213, 7282, v212"); a("v_lshrrev_b32 v213, 16, v213")
                a("v_mul_u32_u24 v214, 9, v213"); a("v_sub_u32 v212, v212, v214")
                a("v_cmp_lt_u32 vcc, 4, v212"); a("v_subb_co_u32 v214, vcc, v212, 0, vcc")
                a("v_cmp_eq_u32 vcc, 4, v212"); a("v_cndmask_b32 v214, v214, 8, vcc")
                a("v_mul_lo_u32 v213, v213, s64"); a("v_lshl_add_u32 v213, v214, 7, v213"); a("v_lshl_add_u32 v%d, v%d, 3, v213" % (208+t, V_R))
        else:
            a("s_mov_b32 s62, %d" % V_OFF); a("s_sub_u32 s63, s60, 18"); a("s_lshl_b32 s63, s63, 6")
            for t in range(4):
                a("s_lshl_b32 s46, s52, 1"); a("s_xor_b32 s46, s46, %d" % t); a("s_lshl_b32 s46, s46, 4"); a("s_add_u32 s46, s46, s63")
                a("v_add_u32 v212, s46, v%d" % V_R)
                a("v_mul_u32_u24 v213, 1821, v212"); a("v_lshrrev_b32 v213, 16, v213")
                a("v_mul_u32_u24 v214, 36, v213"); a("v_sub_u32 v212, v212, v214")
                a("v_lshl_add_u32 v214, v%d, 4, v212" % V_G)
                a("v_add_u32 v215, 44, v214")
                a("v_cmp_lt_u32 vcc, 19, v212"); a("v_cndmask_b32 v214, v214, v215, vcc")
                a("v_lshl_add_u32 v215, v212, 2, v%d" % V_G); a("v_add_u32 v215, 64, v215")
                a("v_lshrrev_b32 v212, 2, v212"); a("v_cmp_eq_u32 vcc, 4, v212"); a("v_cndmask_b32 v214, v214, v215, vcc")
                a("v_mul_lo_u32 v213, v213, s64"); a("v_lshl_add_u32 v%d, v214, 4, v213" % (208+t))
        a("s_add_u32 s65, s65, s62"); a("s_add_u32 s66, s66, s62")
        for x in dma(56): a(x)
        a("s_add_u32 s56, s56, 32768")
        a("s_waitcnt vmcnt(8)"); a("s_barrier")
        a.stamp("p1_first")
        for x in reads(0): a(x)
        a.label(L)
        a("s_cmp_ge_u32 s58, 7"); a("s_cbranch_scc1 %s_n" % L)
        for dm in (1, 0):
            d = dma(56) if (dm and "p1nodma" not in ABL) else []
            m = mm(0, swap)
            a("s_waitcnt lgkmcnt(0)")
            interleave(a, m[:14], reads(1))
            interleave(a, m[14:], d[:4])
            a("s_add_u32 s58, s58, 1")
            a("s_add_u32 s59, s59, 32768"); a("s_cmp_eq_u32 s59, 163840"); a("s_cselect_b32 s59, 0, s59")
            a("s_waitcnt vmcnt(%d) lgkmcnt(0)" % (4 if dm else 0))
            a("s_barrier")
            m = mm(1, swap); ad = addr("s59")
            interleave(a, m[:3], ad[4:6] + ad[0:4])
            interleave(a, m[3:15], reads(0) + ad[6:8])
            interleave(a, m[15:], d[4:])
            if dm:
                a("s_add_u32 s56, s56, 32768"); a("s_cmp_ge_u32 s56, 163840"); a("s_cselect_b32 s46, 163840, 0"); a("s_sub_u32 s56, s56, s46")
                a("s_branch %s" % L)
                a.label(L + "_n")
            else:
                a("s_cmp_lt_u32 s58, 9"); a("s_cbranch_scc1 %s_n" % L)
        a.stamp("p1_loop")
        a("s_waitcnt lgkmcnt(0)")
        a("v_and_b32 v40, 1, v%d" % V_R); a("v_cmp_eq_u32 s[74:75], 1, v40")
        a("v_and_b32 v40, 2, v%d" % V_R); a("v_cmp_eq_u32 s[76:77], 2, v40")
        a("v_lshrrev_b32 v40, 2, v%d" % V_R); a("v_cmp_eq_u32 s[78:79], v40, v%d" % V_G)
        a("s_mov_b32 s46, %d" % f32(1.0/576)); a("s_mov_b32 s47, %d" % f32(1e-5))
        for T in range(2):
            s_, q_ = ST+8*T, ST+8*T+4
            a("v_cndmask_b32 v%d, v%d, v%d, s[74:75]" % (q_, q_, q_+1)); a("v_cndmask_b32 v%d, v%d, v%d, s[74:75]" % (q_+2, q_+2, q_+3))
            a("v_mul_f32 v%d, s46, v%d" % (s_, s_))
            a("v_cndmask_b32 v%d, v%d, v%d, s[76:77]" % (q_, q_, q_+2))
            a("v_mul_f32 v42, v%d, v%d" % (s_, s_))
            a("v_fma_f32 v%d, v%d, s46, -v42" % (q_, q_)); a("v_max_f32 v%d, 0, v%d" % (q_, q_)); a("v_add_f32 v%d, s47, v%d" % (q_, q_))
            a("v_rsq_f32 v%d, v%d" % (36+2*T, q_)); a("v_mul_f32 v%d, v%d, -v%d" % (37+2*T, 36+2*T, s_))
        a("s_lshl_b32 s46, s52, 9"); a("s_lshl_b32 s47, s53, 8"); a("s_add_u32 s46, s46, s47")
        a("v_lshl_add_u32 v40, v%d, 3, s46" % V_R)
        a("s_mov_b64 exec, s[78:79]")
        a("ds_write_b64 v40, v[36:37]"); a("ds_write_b64 v40, v[38:39] offset:128")
        a("s_mov_b64 exec, -1")
        a("s_lshl_b32 s47, s57, 6")
        if not swap:
            a("v_lshl_add_u32 v41, v%d, 4, s47" % V_G)
            a("ds_write_b128 v41, v[%d:%d] offset:1024" % (CS, CS+3)); a("ds_write_b128 v41, v[%d:%d] offset:1088" % (CS+4, CS+7))
        else:
            a("v_lshl_add_u32 v41, v%d, 2, s47" % V_R)
            a("ds_write_b32 v41, v%d offset:1024" % CS); a("ds_write_b32 v41, v%d offset:1088" % (CS+4))
        a("s_waitcnt lgkmcnt(0)"); a("s_barrier")
        Ls = L + "_s"
        a("s_cmp_ge_u32 s60, 27"); a("s_cbranch_scc1 %s" % Ls)
        a("v_xor_b32 v42, 256, v40"); a("v_xor_b32 v43, 128, v41")
        if not swap:
            RS, CC = 144, 160
            a("ds_read_b64 v[%d:%d], v40" % (RS, RS+1)); a("ds_read_b64 v[%d:%d], v40 offset:128" % (RS+2, RS+3))
            a("ds_read_b64 v[%d:%d], v42" % (RS+4, RS+5)); a("ds_read_b64 v[%d:%d], v42 offset:128" % (RS+6, RS+7))
            for t in range(4):
                a("ds_read_b128 v[%d:%d], v%d offset:%d" % (CC+4*t, CC+4*t+3, 41 if t < 2 else 43, 1024+64*(t&1)))
            a("s_waitcnt lgkmcnt(0)")
            for T in range(4): a("v_pk_mul_f32 v[%d:%d], v[%d:%d], s[72:73] op_sel:[0,1] op_sel_hi:[1,1]" % (RS+2*T, RS+2*T+1, RS+2*T, RS+2*T+1))
            for t in range(4):
                for T in range(4):
                    d = ACC+16*t+4*T
                    for h in range(2):
                        a("v_pk_mul_f32 v[216:217], v[%d:%d], v[%d:%d] op_sel:[0,1] op_sel_hi:[1,1]" % (CC+4*t+2*h, CC+4*t+2*h+1, RS+2*T, RS+2*T+1))
                        a("v_pk_fma_f32 v[%d:%d], v[%d:%d], v[%d:%d], v[216:217] op_sel_hi:[1,0,1]" % (d+2*h, d+2*h+1, d+2*h, d+2*h+1, RS+2*T, RS+2*T+1))
                    a("v_cvt_pk_bf16_f32 v%d, v%d, v%d" % (d, d, d+1)); a("v_cvt_pk_bf16_f32 v%d, v%d, v%d" % (d+1, d+2, d+3))
                    a("buffer_store_dwordx2 v[%d:%d], v%d, s[%d:%d], s%d offen offset:%d sc1" % (d, d+1, 208+t, R_WS, R_WS+3, 65+(T>>1), 1152*(T&1)))
        else:
            RS, CC = 144, 176
            a("v_lshl_add_u32 v40, v%d, 5, s46" % V_G); a("v_xor_b32 v42, 256, v40")
            for T in range(4):
                for h in range(2):
                    a("ds_read_b128 v[%d:%d], v%d offset:%d" % (RS+8*T+4*h, RS+8*T+4*h+3, 40 if T < 2 else 42, 128*(T&1)+16*h))
            for t in range(4):
                a("ds_read_b32 v%d, v%d offset:%d" % (CC+t, 41 if t < 2 else 43, 1024+64*(t&1)))
            a("s_waitcnt lgkmcnt(0)")
            for t in range(4):
                for T in range(4):
                    d = ACC+16*t+4*T
                    for i in range(4):
                        a("v_mul_f32 v%d, v%d, v%d" % (216+i, RS+8*T+2*i+1, CC+t))
                    for i in range(4):
                        a("v_fma_f32 v%d, v%d, v%d, v%d" % (d+i, d+i, RS+8*T+2*i, 216+i))
                    e = ACC+16*t+8*(T>>1)+2*(T&1)
                    a("v_cvt_pk_bf16_f32 v%d, v%d, v%d" % (e, d, d+1)); a("v_cvt_pk_bf16_f32 v%d, v%d, v%d" % (e+1, d+2, d+3))
                    if T & 1:
                        a("buffer_store_dwordx4 v[%d:%d], v%d, s[%d:%d], s%d offen sc1" % (e-2, e+1, 208+t, R_WS, R_WS+3, 65+(T>>1)))
        a.label(Ls)
        if not swap: a("s_branch L_p1_pub")
    a.label("L_p1_pub")
    a.stamp("p1_stores")
    L = a.newlabel("Lp1f")
    a("s_cmp_lg_u32 s%d, 0" % S_WAVE); a("s_cbranch_scc1 %s_a" % L)
    a.get_nonce(36)
    a.label(L + "_a")
    a("s_waitcnt vmcnt(0)"); a("s_barrier")
    a("s_cmp_lg_u32 s%d, 0" % S_WAVE); a("s_cbranch_scc1 L_p1_done")
    a("s_lshl_b32 s46, s50, 4"); a("s_add_u32 s46, s46, s51"); a("s_add_u32 s46, s46, %d" % F1)
    a.set_flag(46, 36)
    a("s_branch L_p1_done")
    a.label("L_p1_helper")
    swizzle_setup(a)
    a("s_lshl_b32 s48, s%d, 2" % S_XCD); a("s_add_u32 s48, s48, s%d" % S_SLOT); a("s_sub_u32 s48, s48, 28")
    a("s_waitcnt lgkmcnt(0)")
    if WSOFF: a("s_add_u32 s24, s24, %d" % WSOFF); a("s_addc_u32 s25, s25, 0")
    a.srd(R_WS, S_WS, WS_END)
    publish_nonce(a)
    a("s_add_u32 s49, s48, 32"); a("s_cmp_lt_u32 s49, 54"); a("s_cselect_b32 s49, s49, s48")
    B = 36864
    sw_issue(a, 48, 0, 0); sw_issue(a, 49, 1, B)
    mark_setup(a)
    if MK1: mark_fill(a, MK1)
    a("s_waitcnt vmcnt(0)"); a("s_barrier")
    sw_process(a, 0, 0); sw_process(a, 1, B)
    L = a.newlabel("Lhn"); a("s_cmp_lg_u32 s%d, 0" % S_WAVE); a("s_cbranch_scc1 %s" % L); a.get_nonce(36); a.label(L)
    a("s_waitcnt vmcnt(0)"); a("s_barrier")
    sw_flags(a, (0, 1))
    a.stamp("h_small")
    if MK1 < MKG: mark_fill(a, MKG - MK1)
    a("s_waitcnt vmcnt(0)"); a("s_barrier")
    sw_flags(a, (), mark=True)
    a.label("L_p1_done")
    a.stamp("p1_done")

def generate(stop=99, stamps=False):
    a = G(stop, stamps)
    prologue(a)
    phase1(a)
    from phases import phase2, phase345, phase6
    if stop >= 2: phase2(a)
    if stop >= 3: phase345(a)
    if stop >= 6: phase6(a)
    a.label("L_fin")
    a.stamp_out()
    a.label("L_end")
    a("s_endpgm")
    for x in a.stubs: a(x)
    a.label("L_last")
    body, nops = fix_hazards(a.lines)
    return body, nops

HEADER = """; Fused transformer block (LN, QKV, sliding-window attention, Wo, shift-MLP, channel MLP) as one persistent kernel.
; 256 workgroups of 4 waves, one per CU; phases hand data over through d_ws with write-through stores and flags.
; @launch grid=(256,1,1) block=(256,1,1) lds=163840
.amdgcn_target "amdgcn-amd-amdhsa--gfx950"
.text
.globl %s
.p2align 8
.type %s,@function
%s:
""" % (KN, KN, KN)
FOOTER = """.section .rodata,"a"
.p2align 6
.amdhsa_kernel %s
  .amdhsa_next_free_vgpr 512
  .amdhsa_next_free_sgpr 102
  .amdhsa_accum_offset 256
  .amdhsa_group_segment_fixed_size 0
  .amdhsa_kernarg_size 88
  .amdhsa_user_sgpr_count 2
  .amdhsa_user_sgpr_kernarg_segment_ptr 1
  .amdhsa_system_sgpr_workgroup_id_x 1
.end_amdhsa_kernel
""" % KN

def main():
    import argparse
    p = argparse.ArgumentParser()
    p.add_argument("--stop", type=int, default=99); p.add_argument("--stamps", default=""); p.add_argument("--wsoff", type=int, default=0); p.add_argument("--rt", action="store_true")
    p.add_argument("-o", default="k.s")
    o = p.parse_args()
    global WSOFF, CLK
    if o.rt: CLK = 's_memrealtime'
    WSOFF = o.wsoff << 20
    st = STAMPSETS.get(o.stamps, o.stamps.split(',')) if o.stamps else None
    if st:
        st = ['start'] + list(st) + ['end']; assert len(st) <= 16
        open(o.o[:-2] + '.stamps', 'w').write(','.join(st))
    body, nops = generate(o.stop, st)
    text = HEADER + "\n".join(("" if l.endswith(":") else "  ") + l for l in body) + "\n" + FOOTER
    open(o.o, "w").write(text)
    build(o.o, o.o[:-2] + ".co", KN)
    n = sum(1 for l in body if l and not l.endswith(":"))
    print("instructions", n, "nop states added", nops)
    for nm, takes in TRACES.items():
        errs = check_waits(body, takes)
        for e in errs[:10]: print("WAIT[%s]" % nm, e)

STAMPSETS = {
 "all": "p1_first p1_loop p1_done p2_ready p2_loaded p2_done p3_ready p4_ready p5_ready p5_done p6_ready p6_x p6_a p6_b".split(),
 "p1": "p1_issue p1_first p1_loop p1_stores p1_done p2_ready p2_loaded p2_done p3_ready p4_ready p5_ready p5_done p6_ready p6_x".split(),
 "p3k": "p2_done p3_ready p3_k0 p3_k9 p3_gemm p4_ready p4_k0 p4_k9 p4_gemm p5_ready p5_k0 p5_k9 p5_gemm".split(),
 "hop": "p1_stores p1_done p2_ready p2_loaded p2_done p3_ready p3_epi p4_ready p4_epi p5_ready p5_epi p6_ready p6_x p6_b".split(),
 "p6": "p5_epi p6_ready p6_x p6_p0 p6_a p6_s0 p6_s6 p6_s7 p6_b p7_ready".split(),
 "h": "h_small p1_stores p1_done p2_setup p2_ready p2_loaded p2_done".split(),
 "p4k": "p3_k0 p3_k9 p3_gemm p3_epi p4_ready p4_k0 p4_k9 p4_gemm p4_epi p5_ready p5_k0 p5_k9 p5_gemm p5_epi".split(),
 "p6x": "p2_done h_w3 h_w4 p5_gemm p5_epi p5_done p6_ready p6_st p6_x9 p6_x17 p6_x p6_p0".split(),
 "p3": "p2_done p3_dma p3_drain p3_ready p3_gemm p3_epi p4_dma p4_drain p4_ready p4_gemm p4_epi p5_drain p5_ready p5_gemm".split(),
}
TRACES = {"w012": {"L_p7_main": True, "L_p1_qk_n": [False,True,False]}, "h3": {"L_p3_helper": True, "L_p1_qk_n": [False,True,False]}, "edge": {"L_p2_edge": True, "L_p1_qk_n": [False,True,False]}, "qk": {"L_p1_qk_n": [False,False,True,True,False]}, "v": {"L_p1_v0": True, "L_p1_v_n": [False,False,True,True,False]}, "helper": {"L_p1_helper": True}}

if __name__ == "__main__":
    sys.modules["gen"] = sys.modules["__main__"]
    main()
```

```python
import sys, os, struct, math
sys.path.insert(0, "dev"); sys.path.insert(0, "bak2")
from asmlib import Asm, build
from hazard import fix_hazards, check_waits

NAME = "sequential_preLN__sliding_block__mixer_s_mlp__prompt"
KN = NAME + "_kernel"

ACT = 2048*576*2
SW  = 576*576*2
BW  = 576*4608*2
FLAG0 = 128
F1, FS, F2, F3, F4, F5, FA, FB = 0, 256, 640, 896, 1152, 1408, 1664, 2688
TS_OFF = 0x80000
Q_OFF  = 0x90000
K_OFF  = Q_OFF + ACT
V_OFF  = K_OFF + ACT
O_OFF  = V_OFF + ACT
H_OFF  = O_OFF + ACT
SH_OFF = H_OFF + ACT
T_OFF  = SH_OFF + 98304
X1_OFF = T_OFF + ACT
SX_OFF = X1_OFF + ACT
WO_S   = SX_OFF + 98304
W1_S   = WO_S + SW
W2_S   = W1_S + SW
W3_S   = W2_S + SW
W4_S   = W3_S + BW
PART   = W4_S + BW
WS_END = PART + 32*9*8*8192
FP_OFF = 0x7F000
FP2_OFF = FP_OFF + 1024
MARK_N = T_OFF - O_OFF
MKG = 19
MARK_W = 2048*MKG
assert 128*MARK_W >= MARK_N and 1024*5120 >= WO_S - T_OFF
HPSZ   = 147456

WSOFF = 0
MK1 = int(os.environ.get('MK1', 0))
THR = int(os.environ.get('THR', 0))
NW3 = int(os.environ.get('NW3', 0))
ABL = os.environ.get('ABL', '').split(',')
CLK = 's_memtime'
def f32(x): return struct.unpack("<I", struct.pack("<f", x))[0]
def magic(d): return (1 << 32)//d + 1

S_X, S_WQKV, S_WO = 4, 6, 8
S_W1, S_W2, S_W3, S_W4 = 12, 14, 16, 18
S_OUT, S_DBG, S_WS = 20, 22, 24
R_WS, R_A, R_B = 28, 32, 36
S_WAVE, S_XCD, S_SLOT, S_NONCE = 40, 41, 42, 43
S_ONES = 44
V_LANE, V_R, V_G, V_L16 = 1, 2, 3, 4

class G(Asm):
    def __init__(s, stop=99, stamps=False):
        super().__init__()
        s.stop = stop; s.stamps = stamps; s.stubs = []
    def srd(a, d, p, size, add=0):
        if add >= 0:
            a("s_add_u32 s%d, s%d, %s" % (d, p, add)); a("s_addc_u32 s%d, s%d, 0" % (d+1, p+1))
        else:
            a("s_sub_u32 s%d, s%d, %d" % (d, p, -add)); a("s_subb_u32 s%d, s%d, 0" % (d+1, p+1))
        a("s_mov_b32 s%d, %d" % (d+2, size)); a("s_mov_b32 s%d, 0x20000" % (d+3))
    def srd_s(a, d, p, size, sreg):
        a("s_add_u32 s%d, s%d, s%d" % (d, p, sreg)); a("s_addc_u32 s%d, s%d, 0" % (d+1, p+1))
        a("s_mov_b32 s%d, %d" % (d+2, size)); a("s_mov_b32 s%d, 0x20000" % (d+3))
    def sdiv(a, q, r, x, d):
        a("s_mul_hi_u32 s%d, s%d, %d" % (q, x, magic(d)))
        if r is not None:
            a("s_mul_i32 s%d, s%d, %d" % (r, q, d)); a("s_sub_u32 s%d, s%d, s%d" % (r, x, r))
    def stamp(a, name):
        if not a.stamps or name not in a.stamps: return
        k = a.stamps.index(name)
        a("%s s[98:99]" % CLK); a("s_waitcnt lgkmcnt(0)"); a("s_mov_b32 s%d, s98" % (80+k))
    def stamp_out(a):
        if not a.stamps: return
        a.stamp("end")
        a("s_lshl_b32 s98, s2, 2"); a("s_add_u32 s98, s98, s%d" % S_WAVE); a("s_lshl_b32 s98, s98, 6"); a("s_add_u32 s98, s98, %d" % TS_OFF)
        a("v_mov_b32 v255, 0")
        for k in range(16):
            a("v_mov_b32 v254, s%d" % (80+k))
            a("buffer_store_dword v254, v255, s[%d:%d], s98 offen offset:%d" % (R_WS, R_WS+3, 4*k))
            a("s_nop 1")
    def xg_reduce(a, v, t, op="v_add_f32"):
        for sw in ("v_permlane32_swap_b32", "v_permlane16_swap_b32"):
            a("v_mov_b32 v%d, v%d" % (t, v)); a("%s v%d, v%d" % (sw, v, t)); a("%s v%d, v%d, v%d" % (op, v, v, t))
    def get_nonce(a, vt):
        L = a.newlabel("Lnon")
        a("s_mov_b32 s46, 200000"); a("v_mov_b32 v%d, 0" % (vt+2))
        a.label(L)
        a("global_load_dwordx2 v[%d:%d], v%d, s[%d:%d] sc1" % (vt, vt+1, vt+2, S_DBG, S_DBG+1))
        a("s_waitcnt vmcnt(0)")
        a("v_readfirstlane_b32 s47, v%d" % (vt+1)); a("v_readfirstlane_b32 s%d, v%d" % (S_NONCE, vt))
        a("s_sub_u32 s46, s46, 1"); a("s_cbranch_scc1 %s_x" % L)
        a("s_cmp_eq_u32 s47, 0"); a("s_cbranch_scc1 %s" % L)
        a.label(L + "_x")
    def set_flag(a, sidx, vt):
        a("s_lshl_b32 s%d, s%d, 7" % (sidx, sidx)); a("s_add_u32 s%d, s%d, %d" % (sidx, sidx, FLAG0))
        a("v_mov_b32 v%d, s%d" % (vt, S_NONCE)); a("v_mov_b32 v%d, 0" % (vt+1))
        a("s_mov_b64 exec, 1")
        a("buffer_store_dword v%d, v%d, s[%d:%d], s%d offen sc1" % (vt, vt+1, R_WS, R_WS+3, sidx))
        a("s_mov_b64 exec, -1")
    def set_mark(a, vt, off):
        a("s_lshl_b32 s46, s2, 2"); a("s_add_u32 s46, s46, %d" % off)
        a("v_mov_b32 v%d, s%d" % (vt, S_NONCE)); a("v_mov_b32 v%d, 0" % (vt+1))
        a("s_mov_b64 exec, 1")
        a("buffer_store_dword v%d, v%d, s[%d:%d], s46 offen sc1" % (vt, vt+1, R_WS, R_WS+3))
        a("s_mov_b64 exec, -1")
    def poll(a, vidx, vt, sleep0=6, sleep=2):
        L = a.newlabel("Lpoll")
        a("v_lshlrev_b32 v%d, 7, v%d" % (vidx, vidx))
        a("s_mov_b32 s46, 100000")
        if sleep0: a("s_sleep %d" % sleep0)
        a.label(L)
        a("buffer_load_dword v%d, v%d, s[%d:%d], 0 offen offset:%d sc1" % (vt, vidx, R_WS, R_WS+3, FLAG0))
        a("s_waitcnt vmcnt(0)")
        a("v_cmp_ne_u32 vcc, s%d, v%d" % (S_NONCE, vt))
        a("s_cbranch_vccz %s_x" % L)
        a("s_sleep %d" % sleep)
        a("s_sub_u32 s46, s46, 1"); a("s_cbranch_scc0 %s" % L)
        a.label(L + "_x")

def mfma(d, A, B, C=None, ta="v", tb="v", td="v"):
    c = "0" if C is None else "%s[%d:%d]" % (td, C, C+3)
    return "v_mfma_f32_16x16x32_bf16 %s[%d:%d], %s[%d:%d], %s[%d:%d], %s" % (td, d, d+3, ta, A, A+3, tb, B, B+3, c)

def interleave(a, main, fill, start=0):
    n = len(main) - start; k = 0
    for i, m in enumerate(main):
        a(m)
        if i >= start:
            upto = (len(fill)*(i-start+1) + n - 1)//n
            while k < upto: a(fill[k]); k += 1

def prologue(a):
    a("s_cmp_ge_u32 s2, 256"); a("s_cbranch_scc1 L_end")
    a("s_load_dwordx4 s[4:7], s[0:1], 0")
    a("s_load_dwordx2 s[24:25], s[0:1], 80")
    a("s_load_dwordx2 s[8:9], s[0:1], 16")
    a("s_load_dwordx8 s[12:19], s[0:1], 32")
    a("s_load_dwordx4 s[20:23], s[0:1], 64")
    a("v_and_b32 v%d, 63, v0" % V_LANE)
    a("v_lshrrev_b32 v5, 6, v0")
    a("v_and_b32 v%d, 15, v0" % V_R)
    a("v_readfirstlane_b32 s%d, v5" % S_WAVE)
    a("v_lshrrev_b32 v%d, 4, v%d" % (V_G, V_LANE))
    a("v_lshlrev_b32 v%d, 4, v%d" % (V_L16, V_LANE))
    a("s_and_b32 s%d, s2, 7" % S_XCD); a("s_lshr_b32 s%d, s2, 3" % S_SLOT)
    a("s_mov_b32 s%d, 0x3f803f80" % S_ONES)
    if "nopf" not in ABL:
        a("s_getpc_b64 s[46:47]")
        a.label("L_pc")
        a("s_mul_i32 s48, s%d, %d" % (S_SLOT, 20*128)); a("v_lshl_add_u32 v5, v0, 7, s48")
        a("v_cmp_gt_u32 vcc, 20, v0"); a("s_mov_b32 s48, L_last-L_pc"); a("v_cmp_gt_u32 s[48:49], s48, v5"); a("s_and_b64 vcc, vcc, s[48:49]")
        a("s_and_saveexec_b64 s[48:49], vcc"); a("s_cbranch_execz L_pcd")
        a("global_load_dword v253, v5, s[46:47]")
        a.label("L_pcd")
        a("s_mov_b64 exec, -1")
    if a.stamps:
        for k in range(16): a("s_mov_b32 s%d, 0" % (80+k))
        a.stamp("start")

def publish_nonce(a):
    L = a.newlabel("Lpn")
    a("s_xor_b32 s46, s2, 224"); a("s_or_b32 s46, s46, s%d" % S_WAVE); a("s_cmp_lg_u32 s46, 0"); a("s_cbranch_scc1 %s" % L)
    a("v_mov_b32 v252, 0")
    a("buffer_load_dword v250, v252, s[%d:%d], 0 offen sc1" % (R_WS, R_WS+3))
    a("s_mov_b32 s46, 0x9E3779B1")
    a("s_waitcnt vmcnt(0)")
    a("v_mul_lo_u32 v250, v250, s46"); a("v_add_u32 v250, 0x7F4A7C15, v250"); a("v_mov_b32 v251, 1")
    a("s_mov_b64 exec, 1")
    a("buffer_store_dword v250, v252, s[%d:%d], 0 offen sc1" % (R_WS, R_WS+3))
    a("global_store_dwordx2 v252, v[250:251], s[%d:%d] sc1" % (S_DBG, S_DBG+1))
    a("s_mov_b64 exec, -1")
    a.label(L)

def swizzle_setup(a):
    for i in range(9):
        a("v_add_u32 v40, %d, v%d" % (64*i, V_LANE))
        a("v_mul_u32_u24 v%d, 911, v40" % (10+i)); a("v_lshrrev_b32 v%d, 16, v%d" % (10+i, 10+i))
        a("v_mul_u32_u24 v41, 72, v%d" % (10+i)); a("v_sub_u32 v41, v40, v41"); a("v_lshlrev_b32 v%d, 4, v41" % (20+i))
    a("v_lshrrev_b32 v40, 2, v%d" % V_R); a("v_lshl_add_u32 v40, v%d, 3, v40" % V_G); a("v_mul_u32_u24 v40, 1152, v40")
    a("v_and_b32 v41, 3, v%d" % V_R); a("v_lshl_add_u32 v30, v41, 4, v40")
    a("s_lshr_b32 s46, s%d, 1" % S_WAVE); a("s_lshl_b32 s46, s46, 6"); a("s_and_b32 s47, s%d, 1" % S_WAVE); a("s_lshl_b32 s47, s47, 3")
    a("s_add_u32 s46, s46, s47"); a("v_add_u32 v30, s46, v30")

def sw_decode(a, su, p):
    Ln = a.newlabel("Lsw")
    D = 60+3*p
    a("s_cmp_ge_u32 s%d, 54" % su); a("s_cbranch_scc1 %s_big" % Ln)
    a.sdiv(51, 52, su, 18)
    a("s_cmp_eq_u32 s51, 1"); a("s_cselect_b32 s54, s%d, s%d" % (S_W1, S_W2)); a("s_cselect_b32 s55, s%d, s%d" % (S_W1+1, S_W2+1))
    a("s_cmp_eq_u32 s51, 0"); a("s_cselect_b32 s54, s%d, s54" % S_WO); a("s_cselect_b32 s55, s%d, s55" % (S_WO+1))
    a("s_mul_i32 s%d, s51, %d" % (D, SW)); a("s_add_u32 s%d, s%d, %d" % (D, D, WO_S))
    a("s_mul_i32 s53, s%d, 18432" % S_WAVE); a("s_add_u32 s%d, s%d, s53" % (D, D))
    a("s_mov_b32 s%d, 73728" % (D+1))
    a("s_lshl_b32 s56, s52, 5"); a("s_lshl_b32 s53, s%d, 3" % S_WAVE); a("s_add_u32 s56, s56, s53")
    a("s_mov_b32 s57, 0"); a("s_mov_b32 s59, 1152")
    a("s_cmp_lg_u32 s51, 0"); a("s_cbranch_scc1 %s_j" % Ln)
    a("s_mul_i32 s56, s52, 36"); a("s_lshl_b32 s53, s%d, 2" % S_WAVE); a("s_add_u32 s56, s56, s53"); a("s_mov_b32 s57, 16")
    a("s_cmp_lt_u32 s52, 16"); a("s_cbranch_scc1 %s_j" % Ln)
    a("s_sub_u32 s56, s52, 16"); a("s_lshl_b32 s56, s56, 2"); a("s_add_u32 s56, s56, s%d" % S_WAVE)
    a("s_mul_i32 s56, s56, 72"); a("s_add_u32 s56, s56, 16"); a("s_mov_b32 s57, 32")
    a("s_branch %s_j" % Ln)
    a.label(Ln + "_big")
    sw_big(a, su, D)
    a("s_lshl_b32 s56, s52, 5"); a("s_lshl_b32 s53, s%d, 3" % S_WAVE); a("s_add_u32 s56, s56, s53"); a("s_mov_b32 s57, 0")
    a("s_cmp_ge_u32 s51, 8"); a("s_cbranch_scc1 %s_w4" % Ln)
    a("s_mul_i32 s53, s51, 1152"); a("s_add_u32 s54, s%d, s53" % S_W3); a("s_addc_u32 s55, s%d, 0" % (S_W3+1)); a("s_mov_b32 s59, 9216")
    a("s_branch %s_j" % Ln)
    a.label(Ln + "_w4")
    a("s_sub_u32 s53, s51, 8"); a("s_mul_i32 s53, s53, %d" % SW); a("s_add_u32 s54, s%d, s53" % S_W4); a("s_addc_u32 s55, s%d, 0" % (S_W4+1)); a("s_mov_b32 s59, 1152")
    a.label(Ln + "_j")
    a("s_lshl_b32 s53, s52, 10"); a("s_add_u32 s%d, s%d, s53" % (D, D))
    a("s_add_u32 s%d, s%d, %d" % (D+2, su, FS))

def sw_big(a, su, D):
    a("s_sub_u32 s53, s%d, 54" % su); a.sdiv(51, 52, 53, 18)
    a("s_mul_i32 s%d, s51, %d" % (D, 4*9*18432)); a("s_add_u32 s%d, s%d, %d" % (D, D, W3_S))
    a("s_mul_i32 s53, s%d, %d" % (S_WAVE, 9*18432)); a("s_add_u32 s%d, s%d, s53" % (D, D))
    a("s_mov_b32 s%d, 18432" % (D+1))

def sw_issue(a, su, p, lds):
    sw_decode(a, su, p)
    a("s_mov_b32 s%d, s54" % R_A); a("s_mov_b32 s%d, s55" % (R_A+1))
    a("s_mul_i32 s%d, s59, 575" % (R_A+2)); a("s_add_u32 s%d, s%d, 1152" % (R_A+2, R_A+2)); a("s_mov_b32 s%d, 0x20000" % (R_A+3))
    a("s_mul_i32 s53, s%d, 9216" % S_WAVE); a("s_add_u32 m0, s53, %d" % lds)
    for k in range(9):
        a("v_lshrrev_b32 v40, 2, v%d" % (10+k)); a("v_mul_lo_u32 v40, v40, s57"); a("v_add3_u32 v40, v40, v%d, s56" % (10+k))
        a("v_mul_lo_u32 v40, v40, s59"); a("v_add_u32 v40, v40, v%d" % (20+k))
        a("buffer_load_dwordx4 v40, s[%d:%d], 0 offen lds" % (R_A, R_A+3))
        a("s_add_u32 m0, m0, 1024")

def sw_process(a, p, lds):
    a("v_add_u32 v31, %d, v30" % lds)
    for q in range(9):
        for hh in range(2):
            a("ds_read_b64_tr_b16 v[%d:%d], v31 offset:%d" % (44+4*q+2*hh, 45+4*q+2*hh, hh*4608 + 128*q))
    a("s_mov_b32 s53, s%d" % (60+3*p))
    for q in range(9):
        a("s_waitcnt lgkmcnt(%d)" % min(15, 16-2*q))
        a("buffer_store_dwordx4 v[%d:%d], v%d, s[%d:%d], s53 offen sc1" % (44+4*q, 47+4*q, V_L16, R_WS, R_WS+3))
        a("s_add_u32 s53, s53, s%d" % (61+3*p))

def sw_flags(a, ps, mark=False):
    L = a.newlabel("Lswf")
    a("s_cmp_lg_u32 s%d, 0" % S_WAVE); a("s_cbranch_scc1 %s" % L)
    for p in ps: a.set_flag(62+3*p, 40)
    if mark: a.set_mark(40, FP_OFF - 4*224)
    a.label(L)

MK, R_M = 220, 76

def mark_setup(a):
    a.srd(R_M, S_WS, MARK_N, O_OFF)
    for r in range(4): a("v_mov_b32 v%d, -1" % (MK+r))
    a("s_sub_u32 s74, s2, %d" % 224); a("s_lshl_b32 s74, s74, 2"); a("s_add_u32 s74, s74, s%d" % S_WAVE); a("s_mul_i32 s74, s74, %d" % MARK_W)

def mark_fill(a, n):
    L = a.newlabel("Lmk")
    a("s_mov_b32 s75, %d" % n)
    a.label(L)
    a(mark_store(74, 0)); a(mark_store(74, 1024)); a("s_add_u32 s74, s74, 2048"); a("s_waitcnt vmcnt(40)")
    a("s_sub_u32 s75, s75, 1"); a("s_cmp_lg_u32 s75, 0"); a("s_cbranch_scc1 %s" % L)

def mark_store(s, off): return "buffer_store_dwordx4 v[%d:%d], v%d, s[%d:%d], s%d offen offset:%d sc1" % (MK, MK+3, V_L16, R_M, R_M+3, s, off)

def touch_inputs(a, nwg):
    nx, nw = -(-18432//(2*nwg)), -(-15552//(2*nwg))
    a("s_mul_i32 s46, s50, 14"); a("s_add_u32 s46, s46, s51"); a("s_lshl_b32 s46, s46, 1"); a("s_add_u32 s46, s46, s53")
    a("v_lshlrev_b32 v252, 7, v%d" % V_LANE)
    L = a.newlabel("Lti")
    a("s_cmp_lg_u32 s52, 0"); a("s_cbranch_scc1 %s_w" % L)
    a("s_mul_i32 s46, s46, %d" % (128*nx)); a("s_add_u32 s46, s46, 4096"); a("s_mov_b64 exec, 0x%x" % ((1 << nx) - 1) if nx <= 32 else "s_bfm_b64 exec, %d, 0" % nx)
    a("buffer_load_dword v253, v252, s[%d:%d], s46 offen" % (R_A, R_A+3))
    a("s_branch %s" % L)
    a.label(L + "_w")
    a("s_mul_i32 s46, s46, %d" % (128*nw)); a("s_add_u32 s46, s46, 4096"); a("s_bfm_b64 exec, %d, 0" % nw)
    a("buffer_load_dword v253, v252, s[%d:%d], s46 offen" % (R_B, R_B+3))
    a.label(L)
    a("s_mov_b64 exec, -1")

def phase1(a):
    QS = 18**-0.5 * math.log2(math.e)
    a("s_cmp_ge_u32 s%d, 28" % S_SLOT); a("s_cbranch_scc1 L_p1_helper")
    a.sdiv(46, 47, S_SLOT, 7)
    a("s_lshr_b32 s48, s%d, 1" % S_XCD); a("s_lshl_b32 s48, s48, 2"); a("s_add_u32 s50, s48, s46")
    a("s_and_b32 s48, s%d, 1" % S_XCD); a("s_mul_i32 s48, s48, 7"); a("s_add_u32 s51, s48, s47")
    a("s_lshr_b32 s52, s%d, 1" % S_WAVE); a("s_and_b32 s53, s%d, 1" % S_WAVE)
    a("v_lshrrev_b32 v20, 3, v%d" % V_LANE); a("v_and_b32 v21, 7, v%d" % V_LANE)
    a("v_xor_b32 v22, v21, v%d" % V_G); a("v_mul_u32_u24 v20, 1152, v20")
    a("v_lshl_add_u32 v10, v22, 4, v20"); a("v_xor_b32 v22, 4, v22"); a("v_lshl_add_u32 v11, v22, 4, v20")
    a("v_add_u32 v12, %d, v10" % (16*1152 - 2048 + 4096)); a("v_add_u32 v13, %d, v11" % (24*1152 - 3072 + 4096))
    a("v_add_u32 v11, %d, v11" % (8*1152 - 1024 + 4096)); a("v_add_u32 v10, 4096, v10")
    a("v_lshrrev_b32 v20, 1, v%d" % V_R); a("v_xor_b32 v20, v20, v%d" % V_G); a("v_and_b32 v21, 1, v%d" % V_LANE)
    a("v_lshl_add_u32 v21, v20, 1, v21"); a("v_mul_u32_u24 v22, 3456, v%d" % V_G)
    a("v_lshl_add_u32 v14, v21, 4, v22"); a("v_xor_b32 v21, 8, v21"); a("v_lshl_add_u32 v16, v21, 4, v22")
    a("v_add_u32 v15, %d, v14" % (4*3456 - 1024 + 4096)); a("v_add_u32 v17, %d, v16" % (12*3456 - 3072 + 4096))
    a("v_add_u32 v16, %d, v16" % (8*3456 - 2048 + 4096)); a("v_add_u32 v14, 4096, v14")
    a("s_lshl_b32 s54, s50, 2"); a("s_add_u32 s54, s54, s%d" % S_WAVE); a("s_mul_i32 s54, s54, %d" % (32*1152))
    a("s_mul_i32 s55, s%d, %d" % (S_WAVE, 16*3456)); a("s_lshl_b32 s46, s51, 8"); a("s_add_u32 s55, s55, s46")
    a("s_lshl_b32 s56, s%d, 12" % S_WAVE)
    a("s_waitcnt lgkmcnt(0)")
    if WSOFF: a("s_add_u32 s24, s24, %d" % WSOFF); a("s_addc_u32 s25, s25, 0")
    a.srd(R_A, S_X, ACT + 4096, -4096); a.srd(R_B, S_WQKV, 576*3456 + 4096, -4096)
    a.sdiv(46, 47, S_SLOT, 7)
    a("s_and_b32 s48, s%d, 1" % S_XCD); a("s_add_u32 s46, s46, s48"); a("s_lshl_b32 s46, s46, 1"); a("s_add_u32 s46, s46, s47")
    a("s_bfe_u32 s47, s%d, 0x10001" % S_XCD); a("s_add_u32 s46, s46, s47"); a("s_and_b32 s47, s%d, 4" % S_XCD); a("s_lshl_b32 s47, s47, 1"); a("s_add_u32 s46, s46, s47")
    a.sdiv(47, 67, 46, 9)
    if "p1norot" in ABL: a("s_mov_b32 s67, 0")
    def dma(sbuf):
        X = ["buffer_load_dwordx4 v%d, s[%d:%d], s68 offen offset:%d lds" % (10+j, R_A, R_A+3, 1024*j) for j in range(4)]
        W = ["buffer_load_dwordx4 v%d, s[%d:%d], s69 offen offset:%d lds" % (14+j, R_B, R_B+3, 1024*j) for j in range(4)]
        X[0] = "s_mov_b32 m0, s%d\ns_lshl_b32 s68, s67, 7\ns_add_u32 s68, s68, s54\n" % sbuf + X[0]
        X[1] = "s_mul_i32 s69, s67, %d\ns_add_u32 s69, s69, s55\n" % (64*3456) + X[1]
        X[2] = "s_add_u32 s67, s67, 1\ns_cmp_eq_u32 s67, 9\ns_cselect_b32 s67, 0, s67\n" + X[2]
        W[0] = "s_add_u32 m0, s%d, 16384\ns_nop 0\n" % sbuf + W[0]
        return X + W
    for x in dma(56): a(x)
    a("s_add_u32 s56, s56, 32768")
    if "p1touch" in ABL: touch_inputs(a, 224)
    a.stamp("p1_issue")
    a.srd(R_WS, S_WS, WS_END)
    a("v_lshrrev_b32 v30, 2, v%d" % V_R); a("v_and_b32 v31, 3, v%d" % V_R)
    a("v_lshl_add_u32 v32, v%d, 3, v30" % V_G); a("v_lshlrev_b32 v32, 8, v32"); a("v_lshl_add_u32 v32, v31, 3, v32")
    a("v_add_u32 v32, 16384, v32")
    a("v_and_b32 v33, 1, v%d" % V_G); a("v_lshl_add_u32 v33, v33, 2, v30")
    a("s_lshl_b32 s46, s53, 2"); a("s_lshl_b32 s47, s52, 1"); a("s_or_b32 s57, s46, s47")
    for t in range(4):
        a("s_xor_b32 s46, s57, %d" % t); a("v_xor_b32 v34, s46, v33"); a("v_lshl_add_u32 v%d, v34, 5, v32" % (20+t))
    a("v_lshrrev_b32 v30, 1, v%d" % V_R); a("v_xor_b32 v30, v30, v%d" % V_G); a("v_lshlrev_b32 v31, 7, v%d" % V_R)
    a("s_lshl_b32 s46, s52, 13"); a("s_lshl_b32 s47, s53, 12"); a("s_add_u32 s46, s46, s47"); a("s_xor_b32 s47, s46, 4096")
    a("v_lshl_add_u32 v32, v30, 4, v31"); a("v_xor_b32 v33, 64, v32")
    a("v_add_u32 v24, s46, v32"); a("v_add_u32 v25, s47, v32"); a("v_add_u32 v26, s46, v33"); a("v_add_u32 v27, s47, v33")
    ACC, CS, ST, ONE = 48, 112, 120, 140
    XB = (144, 160); WB = (176, 192)
    WA, XA = 28, 32
    for r in range(ACC, ONE): a("v_mov_b32 v%d, 0" % r)
    for r in range(4): a("v_mov_b32 v%d, s%d" % (ONE+r, S_ONES))
    def addr(sbase):
        return ["v_add_u32 v%d, %s, v%d" % (WA+i, sbase, 20+i) for i in range(8)]
    def reads(jj):
        o = []
        for T in range(4):
            o.append("ds_read_b128 v[%d:%d], v%d offset:%d" % (XB[jj]+4*T, XB[jj]+4*T+3, XA+2*jj+(T>>1), 2048*(T&1)))
            for hh in range(2):
                o.append("ds_read_b64_tr_b16 v[%d:%d], v%d offset:%d" % (WB[jj]+4*T+2*hh, WB[jj]+4*T+2*hh+1, WA+T, jj*8192+hh*1024))
        return o
    def mm(jj, swap):
        o = []
        for t in range(4):
            for T in range(4):
                d = ACC+16*t+4*T
                o.append(mfma(d, XB[jj]+4*T, WB[jj]+4*t, d) if swap else mfma(d, WB[jj]+4*t, XB[jj]+4*T, d))
            if t < 2:
                d = CS+4*t
                o.append(mfma(d, ONE, WB[jj]+4*t, d) if swap else mfma(d, WB[jj]+4*t, ONE, d))
            x = XB[jj]+4*(t>>1); d = ST+4*t
            o.append(mfma(d, x if t & 1 else ONE, x, d))
        return o
    for x in addr("0"): a(x)
    a("s_lshl_b32 s60, s51, 1"); a("s_add_u32 s60, s60, s53")
    a("s_lshl_b32 s46, s50, 1"); a("s_add_u32 s46, s46, s52"); a("s_lshl_b32 s46, s46, 1"); a("s_add_u32 s47, s46, s53")
    a("s_xor_b32 s46, s47, 1"); a("s_mul_i32 s65, s47, 2304"); a("s_mul_i32 s66, s46, 2304"); a("s_mov_b32 s64, %d" % HPSZ)
    a("s_mov_b32 s58, 0"); a("s_mov_b32 s59, 0")
    a("s_cmp_ge_u32 s51, 9"); a("s_cbranch_scc1 L_p1_v0")
    for swap in (0, 1):
        L = "L_p1_v" if swap else "L_p1_qk"
        a.label(L + "0")
        if not swap:
            a("s_mov_b32 s62, %d" % Q_OFF); a("s_cmp_ge_u32 s60, 9"); a("s_cselect_b32 s61, 144, 0"); a("s_cselect_b32 s62, %d, s62" % K_OFF)
            a("s_cselect_b32 s73, 1.0, %d" % f32(QS))
            a("s_lshl_b32 s63, s60, 4"); a("s_sub_u32 s63, s63, s61")
            for t in range(4):
                a("s_lshl_b32 s46, s52, 1"); a("s_xor_b32 s46, s46, %d" % t); a("s_lshl_b32 s46, s46, 2"); a("s_add_u32 s46, s46, s63")
                a("v_add_u32 v212, s46, v%d" % V_G)
                a("v_mul_u32_u24 v213, 7282, v212"); a("v_lshrrev_b32 v213, 16, v213")
                a("v_mul_u32_u24 v214, 9, v213"); a("v_sub_u32 v212, v212, v214")
                a("v_cmp_lt_u32 vcc, 4, v212"); a("v_subb_co_u32 v214, vcc, v212, 0, vcc")
                a("v_cmp_eq_u32 vcc, 4, v212"); a("v_cndmask_b32 v214, v214, 8, vcc")
                a("v_mul_lo_u32 v213, v213, s64"); a("v_lshl_add_u32 v213, v214, 7, v213"); a("v_lshl_add_u32 v%d, v%d, 3, v213" % (208+t, V_R))
        else:
            a("s_mov_b32 s62, %d" % V_OFF); a("s_sub_u32 s63, s60, 18"); a("s_lshl_b32 s63, s63, 6")
            for t in range(4):
                a("s_lshl_b32 s46, s52, 1"); a("s_xor_b32 s46, s46, %d" % t); a("s_lshl_b32 s46, s46, 4"); a("s_add_u32 s46, s46, s63")
                a("v_add_u32 v212, s46, v%d" % V_R)
                a("v_mul_u32_u24 v213, 1821, v212"); a("v_lshrrev_b32 v213, 16, v213")
                a("v_mul_u32_u24 v214, 36, v213"); a("v_sub_u32 v212, v212, v214")
                a("v_lshl_add_u32 v214, v%d, 4, v212" % V_G)
                a("v_add_u32 v215, 44, v214")
                a("v_cmp_lt_u32 vcc, 19, v212"); a("v_cndmask_b32 v214, v214, v215, vcc")
                a("v_lshl_add_u32 v215, v212, 2, v%d" % V_G); a("v_add_u32 v215, 64, v215")
                a("v_lshrrev_b32 v212, 2, v212"); a("v_cmp_eq_u32 vcc, 4, v212"); a("v_cndmask_b32 v214, v214, v215, vcc")
                a("v_mul_lo_u32 v213, v213, s64"); a("v_lshl_add_u32 v%d, v214, 4, v213" % (208+t))
        a("s_add_u32 s65, s65, s62"); a("s_add_u32 s66, s66, s62")
        for x in dma(56): a(x)
        a("s_add_u32 s56, s56, 32768")
        a("s_waitcnt vmcnt(8)"); a("s_barrier")
        a.stamp("p1_first")
        for x in reads(0): a(x)
        a.label(L)
        a("s_cmp_ge_u32 s58, 7"); a("s_cbranch_scc1 %s_n" % L)
        for dm in (1, 0):
            d = dma(56) if (dm and "p1nodma" not in ABL) else []
            m = mm(0, swap)
            a("s_waitcnt lgkmcnt(0)")
            interleave(a, m[:14], reads(1))
            interleave(a, m[14:], d[:4])
            a("s_add_u32 s58, s58, 1")
            a("s_add_u32 s59, s59, 32768"); a("s_cmp_eq_u32 s59, 163840"); a("s_cselect_b32 s59, 0, s59")
            a("s_waitcnt vmcnt(%d) lgkmcnt(0)" % (4 if dm else 0))
            a("s_barrier")
            m = mm(1, swap); ad = addr("s59")
            interleave(a, m[:3], ad[4:6] + ad[0:4])
            interleave(a, m[3:15], reads(0) + ad[6:8])
            interleave(a, m[15:], d[4:])
            if dm:
                a("s_add_u32 s56, s56, 32768"); a("s_cmp_ge_u32 s56, 163840"); a("s_cselect_b32 s46, 163840, 0"); a("s_sub_u32 s56, s56, s46")
                a("s_branch %s" % L)
                a.label(L + "_n")
            else:
                a("s_cmp_lt_u32 s58, 9"); a("s_cbranch_scc1 %s_n" % L)
        a.stamp("p1_loop")
        a("s_waitcnt lgkmcnt(0)")
        a("v_and_b32 v40, 1, v%d" % V_R); a("v_cmp_eq_u32 s[74:75], 1, v40")
        a("v_and_b32 v40, 2, v%d" % V_R); a("v_cmp_eq_u32 s[76:77], 2, v40")
        a("v_lshrrev_b32 v40, 2, v%d" % V_R); a("v_cmp_eq_u32 s[78:79], v40, v%d" % V_G)
        a("s_mov_b32 s46, %d" % f32(1.0/576)); a("s_mov_b32 s47, %d" % f32(1e-5))
        for T in range(2):
            s_, q_ = ST+8*T, ST+8*T+4
            a("v_cndmask_b32 v%d, v%d, v%d, s[74:75]" % (q_, q_, q_+1)); a("v_cndmask_b32 v%d, v%d, v%d, s[74:75]" % (q_+2, q_+2, q_+3))
            a("v_mul_f32 v%d, s46, v%d" % (s_, s_))
            a("v_cndmask_b32 v%d, v%d, v%d, s[76:77]" % (q_, q_, q_+2))
            a("v_mul_f32 v42, v%d, v%d" % (s_, s_))
            a("v_fma_f32 v%d, v%d, s46, -v42" % (q_, q_)); a("v_max_f32 v%d, 0, v%d" % (q_, q_)); a("v_add_f32 v%d, s47, v%d" % (q_, q_))
            a("v_rsq_f32 v%d, v%d" % (36+2*T, q_)); a("v_mul_f32 v%d, v%d, -v%d" % (37+2*T, 36+2*T, s_))
        a("s_lshl_b32 s46, s52, 9"); a("s_lshl_b32 s47, s53, 8"); a("s_add_u32 s46, s46, s47")
        a("v_lshl_add_u32 v40, v%d, 3, s46" % V_R)
        a("s_mov_b64 exec, s[78:79]")
        a("ds_write_b64 v40, v[36:37]"); a("ds_write_b64 v40, v[38:39] offset:128")
        a("s_mov_b64 exec, -1")
        a("s_lshl_b32 s47, s57, 6")
        if not swap:
            a("v_lshl_add_u32 v41, v%d, 4, s47" % V_G)
            a("ds_write_b128 v41, v[%d:%d] offset:1024" % (CS, CS+3)); a("ds_write_b128 v41, v[%d:%d] offset:1088" % (CS+4, CS+7))
        else:
            a("v_lshl_add_u32 v41, v%d, 2, s47" % V_R)
            a("ds_write_b32 v41, v%d offset:1024" % CS); a("ds_write_b32 v41, v%d offset:1088" % (CS+4))
        a("s_waitcnt lgkmcnt(0)"); a("s_barrier")
        Ls = L + "_s"
        a("s_cmp_ge_u32 s60, 27"); a("s_cbranch_scc1 %s" % Ls)
        a("v_xor_b32 v42, 256, v40"); a("v_xor_b32 v43, 128, v41")
        if not swap:
            RS, CC = 144, 160
            a("ds_read_b64 v[%d:%d], v40" % (RS, RS+1)); a("ds_read_b64 v[%d:%d], v40 offset:128" % (RS+2, RS+3))
            a("ds_read_b64 v[%d:%d], v42" % (RS+4, RS+5)); a("ds_read_b64 v[%d:%d], v42 offset:128" % (RS+6, RS+7))
            for t in range(4):
                a("ds_read_b128 v[%d:%d], v%d offset:%d" % (CC+4*t, CC+4*t+3, 41 if t < 2 else 43, 1024+64*(t&1)))
            a("s_waitcnt lgkmcnt(0)")
            for T in range(4): a("v_pk_mul_f32 v[%d:%d], v[%d:%d], s[72:73] op_sel:[0,1] op_sel_hi:[1,1]" % (RS+2*T, RS+2*T+1, RS+2*T, RS+2*T+1))
            for t in range(4):
                for T in range(4):
                    d = ACC+16*t+4*T
                    for h in range(2):
                        a("v_pk_mul_f32 v[216:217], v[%d:%d], v[%d:%d] op_sel:[0,1] op_sel_hi:[1,1]" % (CC+4*t+2*h, CC+4*t+2*h+1, RS+2*T, RS+2*T+1))
                        a("v_pk_fma_f32 v[%d:%d], v[%d:%d], v[%d:%d], v[216:217] op_sel_hi:[1,0,1]" % (d+2*h, d+2*h+1, d+2*h, d+2*h+1, RS+2*T, RS+2*T+1))
                    a("v_cvt_pk_bf16_f32 v%d, v%d, v%d" % (d, d, d+1)); a("v_cvt_pk_bf16_f32 v%d, v%d, v%d" % (d+1, d+2, d+3))
                    a("buffer_store_dwordx2 v[%d:%d], v%d, s[%d:%d], s%d offen offset:%d sc1" % (d, d+1, 208+t, R_WS, R_WS+3, 65+(T>>1), 1152*(T&1)))
        else:
            RS, CC = 144, 176
            a("v_lshl_add_u32 v40, v%d, 5, s46" % V_G); a("v_xor_b32 v42, 256, v40")
            for T in range(4):
                for h in range(2):
                    a("ds_read_b128 v[%d:%d], v%d offset:%d" % (RS+8*T+4*h, RS+8*T+4*h+3, 40 if T < 2 else 42, 128*(T&1)+16*h))
            for t in range(4):
                a("ds_read_b32 v%d, v%d offset:%d" % (CC+t, 41 if t < 2 else 43, 1024+64*(t&1)))
            a("s_waitcnt lgkmcnt(0)")
            for t in range(4):
                for T in range(4):
                    d = ACC+16*t+4*T
                    for i in range(4):
                        a("v_mul_f32 v%d, v%d, v%d" % (216+i, RS+8*T+2*i+1, CC+t))
                    for i in range(4):
                        a("v_fma_f32 v%d, v%d, v%d, v%d" % (d+i, d+i, RS+8*T+2*i, 216+i))
                    e = ACC+16*t+8*(T>>1)+2*(T&1)
                    a("v_cvt_pk_bf16_f32 v%d, v%d, v%d" % (e, d, d+1)); a("v_cvt_pk_bf16_f32 v%d, v%d, v%d" % (e+1, d+2, d+3))
                    if T & 1:
                        a("buffer_store_dwordx4 v[%d:%d], v%d, s[%d:%d], s%d offen sc1" % (e-2, e+1, 208+t, R_WS, R_WS+3, 65+(T>>1)))
        a.label(Ls)
        if not swap: a("s_branch L_p1_pub")
    a.label("L_p1_pub")
    a.stamp("p1_stores")
    L = a.newlabel("Lp1f")
    a("s_cmp_lg_u32 s%d, 0" % S_WAVE); a("s_cbranch_scc1 %s_a" % L)
    a.get_nonce(36)
    a.label(L + "_a")
    a("s_waitcnt vmcnt(0)"); a("s_barrier")
    a("s_cmp_lg_u32 s%d, 0" % S_WAVE); a("s_cbranch_scc1 L_p1_done")
    a("s_lshl_b32 s46, s50, 4"); a("s_add_u32 s46, s46, s51"); a("s_add_u32 s46, s46, %d" % F1)
    a.set_flag(46, 36)
    a("s_branch L_p1_done")
    a.label("L_p1_helper")
    swizzle_setup(a)
    a("s_lshl_b32 s48, s%d, 2" % S_XCD); a("s_add_u32 s48, s48, s%d" % S_SLOT); a("s_sub_u32 s48, s48, 28")
    a("s_waitcnt lgkmcnt(0)")
    if WSOFF: a("s_add_u32 s24, s24, %d" % WSOFF); a("s_addc_u32 s25, s25, 0")
    a.srd(R_WS, S_WS, WS_END)
    publish_nonce(a)
    a("s_add_u32 s49, s48, 32"); a("s_cmp_lt_u32 s49, 54"); a("s_cselect_b32 s49, s49, s48")
    B = 36864
    sw_issue(a, 48, 0, 0); sw_issue(a, 49, 1, B)
    mark_setup(a)
    if MK1: mark_fill(a, MK1)
    a("s_waitcnt vmcnt(0)"); a("s_barrier")
    sw_process(a, 0, 0); sw_process(a, 1, B)
    L = a.newlabel("Lhn"); a("s_cmp_lg_u32 s%d, 0" % S_WAVE); a("s_cbranch_scc1 %s" % L); a.get_nonce(36); a.label(L)
    a("s_waitcnt vmcnt(0)"); a("s_barrier")
    sw_flags(a, (0, 1))
    a.stamp("h_small")
    if MK1 < MKG: mark_fill(a, MKG - MK1)
    a("s_waitcnt vmcnt(0)"); a("s_barrier")
    sw_flags(a, (), mark=True)
    a.label("L_p1_done")
    a.stamp("p1_done")

def generate(stop=99, stamps=False):
    a = G(stop, stamps)
    prologue(a)
    phase1(a)
    from phases import phase2, phase345, phase6
    if stop >= 2: phase2(a)
    if stop >= 3: phase345(a)
    if stop >= 6: phase6(a)
    a.label("L_fin")
    a.stamp_out()
    a.label("L_end")
    a("s_endpgm")
    for x in a.stubs: a(x)
    a.label("L_last")
    body, nops = fix_hazards(a.lines)
    return body, nops

HEADER = """; Fused transformer block (LN, QKV, sliding-window attention, Wo, shift-MLP, channel MLP) as one persistent kernel.
; 256 workgroups of 4 waves, one per CU; phases hand data over through d_ws with write-through stores and flags.
; @launch grid=(256,1,1) block=(256,1,1) lds=163840
.amdgcn_target "amdgcn-amd-amdhsa--gfx950"
.text
.globl %s
.p2align 8
.type %s,@function
%s:
""" % (KN, KN, KN)
FOOTER = """.section .rodata,"a"
.p2align 6
.amdhsa_kernel %s
  .amdhsa_next_free_vgpr 512
  .amdhsa_next_free_sgpr 102
  .amdhsa_accum_offset 256
  .amdhsa_group_segment_fixed_size 0
  .amdhsa_kernarg_size 88
  .amdhsa_user_sgpr_count 2
  .amdhsa_user_sgpr_kernarg_segment_ptr 1
  .amdhsa_system_sgpr_workgroup_id_x 1
.end_amdhsa_kernel
""" % KN

def main():
    import argparse
    p = argparse.ArgumentParser()
    p.add_argument("--stop", type=int, default=99); p.add_argument("--stamps", default=""); p.add_argument("--wsoff", type=int, default=0); p.add_argument("--rt", action="store_true")
    p.add_argument("-o", default="k.s")
    o = p.parse_args()
    global WSOFF, CLK
    if o.rt: CLK = 's_memrealtime'
    WSOFF = o.wsoff << 20
    st = STAMPSETS.get(o.stamps, o.stamps.split(',')) if o.stamps else None
    if st:
        st = ['start'] + list(st) + ['end']; assert len(st) <= 16
        open(o.o[:-2] + '.stamps', 'w').write(','.join(st))
    body, nops = generate(o.stop, st)
    text = HEADER + "\n".join(("" if l.endswith(":") else "  ") + l for l in body) + "\n" + FOOTER
    open(o.o, "w").write(text)
    build(o.o, o.o[:-2] + ".co", KN)
    n = sum(1 for l in body if l and not l.endswith(":"))
    print("instructions", n, "nop states added", nops)
    for nm, takes in TRACES.items():
        errs = check_waits(body, takes)
        for e in errs[:10]: print("WAIT[%s]" % nm, e)

STAMPSETS = {
 "all": "p1_first p1_loop p1_done p2_ready p2_loaded p2_done p3_ready p4_ready p5_ready p5_done p6_ready p6_x p6_a p6_b".split(),
 "p1": "p1_issue p1_first p1_loop p1_stores p1_done p2_ready p2_loaded p2_done p3_ready p4_ready p5_ready p5_done p6_ready p6_x".split(),
 "p3k": "p2_done p3_ready p3_k0 p3_k9 p3_gemm p4_ready p4_k0 p4_k9 p4_gemm p5_ready p5_k0 p5_k9 p5_gemm".split(),
 "hop": "p1_stores p1_done p2_ready p2_loaded p2_done p3_ready p3_epi p4_ready p4_epi p5_ready p5_epi p6_ready p6_x p6_b".split(),
 "p6": "p5_epi p6_ready p6_x p6_p0 p6_a p6_s0 p6_s6 p6_s7 p6_b p7_ready".split(),
 "h": "h_small p1_stores p1_done p2_setup p2_fs p2_ready p2_loaded p2_done".split(),
 "p4k": "p3_k0 p3_k9 p3_gemm p3_epi p4_ready p4_k0 p4_k9 p4_gemm p4_epi p5_ready p5_k0 p5_k9 p5_gemm p5_epi".split(),
 "p6x": "p2_done h_w3 h_w4 p5_gemm p5_epi p5_done p6_ready p6_st p6_x9 p6_x17 p6_x p6_p0".split(),
 "p3": "p2_done p3_dma p3_drain p3_ready p3_gemm p3_epi p4_dma p4_drain p4_ready p4_gemm p4_epi p5_drain p5_ready p5_gemm".split(),
}
TRACES = {"w012": {"L_p7_main": True, "L_p1_qk_n": [False,True,False]}, "h3": {"L_p3_helper": True, "L_p1_qk_n": [False,True,False]}, "edge": {"L_p2_edge": True, "L_p1_qk_n": [False,True,False]}, "qk": {"L_p1_qk_n": [False,False,True,True,False]}, "v": {"L_p1_v0": True, "L_p1_v_n": [False,False,True,True,False]}, "helper": {"L_p1_helper": True}}

if __name__ == "__main__":
    sys.modules["gen"] = sys.modules["__main__"]
    main()
```

```python
from gen import *

NEG = 0xF149F2CA
SLEEP0 = dict(p2=0, p3=8, p4=0, p5=0, p6=18)
for _kv in os.environ.get('SLEEP', '').split(','):
    if _kv: SLEEP0[_kv.split('=')[0]] = int(_kv.split('=')[1])

W_LDS = 53248
AW1, AW2 = 40, 148
XT = 240
PA, PS, R_C = 216, (3, 27, 45), R_B

def pf_lds(i):
    gq, k = divmod(i, 9)
    pre = ("s_mul_i32 s58, s79, %d\ns_add_u32 s58, s58, s73\ns_add_u32 m0, s58, %d\n" % (gq, 1024*k)) if k == 0 or i == 2 else ""
    post = "\ns_add_u32 m0, m0, 1024" if k < 8 and i != 1 else ""
    return pre + "buffer_load_dwordx4 v%d, s[%d:%d], s%d offen sc1 lds" % (PA+k, R_C, R_C+3, PS[gq]) + post

def roles345(a):
    a("s_lshr_b32 s46, s%d, 3" % S_SLOT); a("s_lshl_b32 s74, s%d, 2" % S_XCD); a("s_add_u32 s74, s74, s46"); a("s_add_u32 s75, s%d, 6" % S_SLOT); a("s_and_b32 s75, s75, 7")
    a("s_lshl_b32 s76, s74, 2"); a("s_add_u32 s76, s76, s%d" % S_WAVE)

def phase2(a):
    KL_, VL_ = 0, 27648
    a("s_lshr_b32 s50, s%d, 1" % S_SLOT); a("s_and_b32 s51, s%d, 1" % S_SLOT); a("s_lshl_b32 s46, s%d, 1" % S_XCD); a("s_add_u32 s51, s51, s46")
    a("s_mul_i32 s52, s51, %d" % HPSZ)
    a("s_add_u32 s46, s52, %d" % K_OFF); a.srd_s(R_A, S_WS, HPSZ, 46)
    a("s_add_u32 s46, s52, %d" % V_OFF); a.srd_s(R_B, S_WS, HPSZ, 46)
    a("s_mul_i32 s46, s50, 9216"); a("s_sub_u32 s46, s46, 18432"); a("s_lshl_b32 s47, s%d, 10" % S_WAVE); a("s_add_u32 s46, s46, s47")
    a("v_add_u32 v10, s46, v%d" % V_L16)
    for i in range(1, 7): a("v_add_u32 v%d, %d, v10" % (10+i, 4096*i))
    a("s_lshl_b32 s46, s50, 3"); a("s_lshl_b32 s53, s%d, 1" % S_WAVE); a("s_add_u32 s53, s53, s46")
    a("s_mul_i32 s54, s53, 1152"); a("s_add_u32 s54, s54, s52"); a("s_add_u32 s54, s54, %d" % Q_OFF)
    a("v_lshlrev_b32 v17, 3, v%d" % V_LANE); a("v_lshlrev_b32 v18, 3, v%d" % V_R)
    a("s_mul_i32 s46, s%d, 2304" % S_WAVE)
    a("v_add_u32 v20, s46, v17")
    a("s_add_u32 s47, s46, 1024"); a("v_add_u32 v21, s47, v18")
    a("s_add_u32 s47, s46, %d" % VL_); a("v_add_u32 v22, s47, v%d" % V_L16)
    a("v_lshl_add_u32 v23, v%d, 2, v%d" % (V_R, V_G)); a("s_add_u32 s47, s47, 2048"); a("v_lshl_add_u32 v23, v23, 4, s47")
    for i in range(4):
        a("v_lshl_add_u32 v24, v%d, 2, %d" % (V_G, i)); a("v_cmp_gt_u32 s[%d:%d], v24, v%d" % (60+2*i, 61+2*i, V_R))
    a("v_cmp_eq_u32 s[68:69], 0, v%d" % V_G)
    a("v_mov_b32 v25, 0x%x" % NEG)
    for r in range(4): a("v_mov_b32 v%d, -1" % (232+r))
    a("v_and_b32 v229, 31, v%d" % V_LANE); a("v_lshlrev_b32 v229, 2, v229")
    VLA = 0
    for r in range(36): a("v_accvgpr_write_b32 a%d, s%d" % (VLA+r, S_ONES))
    roles345(a)
    a("s_mul_i32 s46, s75, 110592"); a("s_mul_i32 s47, s%d, 27648" % S_WAVE); a("s_add_u32 s70, s46, s47"); a("s_add_u32 s70, s70, %d" % WO_S)
    a("s_add_u32 s71, s70, %d" % SW); a("s_add_u32 s72, s71, %d" % SW)
    a("s_cmp_ge_u32 s75, 6"); a("s_cbranch_scc1 L_p2_hs")
    a("s_add_u32 s73, s47, %d" % W_LDS); a("s_mov_b32 s79, 9216")
    for gq in range(3): a("s_add_u32 s%d, s70, %d" % (PS[gq], 9216*gq))
    for i in range(9): a("v_add_u32 v%d, %d, v%d" % (PA+i, 1024*i, V_L16))
    a("s_mov_b32 s10, s%d" % S_WS); a("s_mov_b32 s11, s%d" % (S_WS+1)); a("s_mov_b32 s26, %d" % WS_END)
    a("s_branch L_p2_hd")
    a.label("L_p2_hs")
    a("s_mov_b32 s71, 0x70000000")
    a("s_mul_i32 s47, s%d, 9216" % S_WAVE); a("s_add_u32 s73, s47, %d" % W_LDS); a("s_mov_b32 s79, 36864")
    a("s_lshl_b32 s48, s74, 1"); a("s_add_u32 s48, s48, s75"); a("s_sub_u32 s48, s48, 6"); a("s_mul_i32 s48, s48, 3")
    a("s_cmp_lt_u32 s48, 144"); a("s_cselect_b32 s10, s%d, s%d" % (S_W3, S_W4)); a("s_cselect_b32 s11, s%d, s%d" % (S_W3+1, S_W4+1))
    a("s_cselect_b32 s49, 1152, 0"); a("s_cselect_b32 s59, 0, 144"); a("s_mov_b32 s46, 1152"); a("s_cselect_b32 s78, 9216, s46")
    a("s_mov_b32 s26, %d" % BW)
    for gq in range(3):
        a("s_add_u32 s46, s48, %d" % gq); a("s_sub_u32 s46, s46, s59")
        a.sdiv(47, 56, 46, 18)
        a("s_cmp_eq_u32 s59, 0"); a("s_cselect_b32 s56, s56, s46")
        a("s_lshl_b32 s56, s56, 2"); a("s_add_u32 s56, s56, s%d" % S_WAVE); a("s_lshl_b32 s56, s56, 3"); a("s_mul_i32 s56, s56, s78")
        a("s_mul_i32 s47, s47, s49"); a("s_add_u32 s%d, s56, s47" % (PS[gq]))
    for i in range(9):
        a("v_add_u32 v24, %d, v%d" % (64*i, V_LANE)); a("v_mul_u32_u24 v26, 911, v24"); a("v_lshrrev_b32 v26, 16, v26")
        a("v_mul_u32_u24 v27, 72, v26"); a("v_sub_u32 v27, v24, v27"); a("v_mul_lo_u32 v26, v26, s78"); a("v_lshl_add_u32 v%d, v27, 4, v26" % (PA+i))
    a.label("L_p2_hd")
    a("v_mul_u32_u24 v7, 1152, v%d" % V_R); a("v_lshl_add_u32 v7, v%d, 4, v7" % V_G)
    a("s_mul_i32 s46, s76, 18432"); a("s_mul_i32 s47, s75, 192"); a("s_add_u32 s77, s46, s47")
    a("s_cmp_ge_u32 s75, 6"); a("s_cselect_b32 s77, 0x70000000, s77")
    L = a.newlabel("Lp2w")
    a("s_cmp_lg_u32 s%d, 0" % S_WAVE); a("s_cbranch_scc1 %s" % L)
    a("v_lshrrev_b32 v30, 2, v%d" % V_LANE); a("v_min_u32 v30, 2, v30"); a("v_add_u32 v30, s50, v30"); a("v_subrev_u32 v30, 2, v30"); a("v_max_i32 v30, 0, v30")
    a("v_bfe_u32 v31, v%d, 1, 1" % V_LANE); a("v_add_u32 v31, 1, v31"); a("v_cmp_gt_u32 vcc, 12, v%d" % V_LANE); a("v_cndmask_b32 v31, 0, v31, vcc")
    a("v_mul_u32_u24 v31, 576, v31"); a("v_and_b32 v32, 1, v%d" % V_LANE); a("v_mul_u32_u24 v32, 35, v32")
    a("s_mul_i32 s46, s51, 36"); a("v_add3_u32 v31, v31, v32, s46"); a("v_lshrrev_b32 v31, 7, v31")
    a("v_lshl_add_u32 v30, v30, 4, v31"); a("v_add_u32 v30, %d, v30" % F1)
    a.stamp("p2_setup")
    a.poll(30, 31, sleep0=SLEEP0["p2"])
    a.label(L)
    a("s_barrier")
    a("v_min_u32 v38, 53, v%d" % V_LANE); a("v_add_u32 v38, %d, v38" % FS); a("v_lshlrev_b32 v38, 7, v38")
    fsq = "buffer_load_dword v39, v38, s[%d:%d], 0 offen offset:%d sc1" % (R_WS, R_WS+3, FLAG0)
    a.stamp("p2_ready")
    QR = 26
    a("s_lshl_b32 s46, s%d, 10" % S_WAVE)
    for R, base in ((R_A, KL_), (R_B, VL_)):
        for i in range(7):
            Ls = a.newlabel("Lp2d")
            if i == 6: a("s_cmp_eq_u32 s%d, 3" % S_WAVE); a("s_cbranch_scc1 %s" % Ls)
            a("s_add_u32 m0, s46, %d" % (base + 4096*i))
            a("buffer_load_dwordx4 v%d, s[%d:%d], 0 offen sc1 lds" % (10+i, R, R+3))
            if i == 6: a.label(Ls)
        if R == R_A:
            for qt in range(2):
                a("buffer_load_dwordx2 v[%d:%d], v17, s[%d:%d], s54 offen offset:%d sc1" % (QR+6*qt, QR+6*qt+1, R_WS, R_WS+3, 1152*qt))
                a("buffer_load_dwordx2 v[%d:%d], v18, s[%d:%d], s54 offen offset:%d sc1" % (QR+6*qt+2, QR+6*qt+3, R_WS, R_WS+3, 1152*qt+1024))
                a("buffer_load_dwordx2 v[%d:%d], v17, s[%d:%d], s54 offen offset:%d sc1" % (QR+6*qt+4, QR+6*qt+5, R_WS, R_WS+3, 1152*qt+512))
            a(fsq)
    a.srd(R_A, S_X, ACT)
    a("s_mov_b32 s%d, s10" % R_C); a("s_mov_b32 s%d, s11" % (R_C+1)); a("s_mov_b32 s%d, s26" % (R_C+2)); a("s_mov_b32 s%d, 0x20000" % (R_C+3))
    QF = 40
    a("s_waitcnt vmcnt(6)")
    for qt in range(2):
        q = QR+6*qt
        a("v_mov_b32 v%d, v%d" % (QF+4*qt, q)); a("v_mov_b32 v%d, v%d" % (QF+4*qt+1, q+1))
        a("v_cndmask_b32 v%d, 0, v%d, s[68:69]" % (QF+4*qt+2, q+2)); a("v_mov_b32 v%d, 0" % (QF+4*qt+3))
        a("v_mov_b32 v%d, v%d" % (QF+8+4*qt, q+4)); a("v_mov_b32 v%d, v%d" % (QF+8+4*qt+1, q+5))
        a("v_mov_b32 v%d, 0" % (QF+8+4*qt+2)); a("v_cndmask_b32 v%d, 0, v%d, s[68:69]" % (QF+8+4*qt+3, q+3))
    a("s_lshl_b32 s55, s50, 3"); a("s_lshl_b32 s46, s%d, 1" % S_WAVE); a("s_add_u32 s55, s55, s46"); a("s_sub_u32 s55, 16, s55")
    a("s_lshl_b32 s56, s2, 2"); a("s_add_u32 s56, s56, s%d" % S_WAVE); a("s_mul_i32 s56, s56, 5120"); a("s_min_u32 s56, s56, %d" % (WO_S - T_OFF - 5120)); a("s_add_u32 s56, s56, %d" % T_OFF)
    L = a.newlabel("Lfs")
    a("s_cmp_lg_u32 s%d, 0" % S_WAVE); a("s_cbranch_scc1 %s" % L)
    a("v_cmp_ne_u32 vcc, s%d, v39" % S_NONCE); a("s_cbranch_vccz %s" % L)
    a("v_lshrrev_b32 v38, 7, v38")
    a.poll(38, 39, sleep0=0)
    a.label(L)
    a("s_waitcnt vmcnt(6)"); a("s_barrier")
    a.stamp("p2_loaded")
    a("s_cmp_lt_u32 s50, 2"); a("s_cbranch_scc1 L_p2_edge")
    M, NM, CZ = 8, 56, 26
    KF = 64
    S2, P, VM = 136, 168, 184
    S1 = S2
    OM, OL, R_, OUT = 192, 200, 32, 208
    marks = "s_mov_b32 s46, %d\nbuffer_load_dword v228, v229, s[%d:%d], s46 offen sc1" % (FP_OFF, R_WS, R_WS+3)
    def prefetch():
        o = [pf_lds(i) for i in range(2, 27)]
        for jj in range(3): o.append("buffer_load_dwordx4 v[%d:%d], v7, s[%d:%d], s77 offen offset:%d" % (XT+4*jj, XT+4*jj+3, R_A, R_A+3, 64*jj))
        for sb, ab in ((71, AW1),):
            for i in range(27):
                pre = "s_add_u32 s59, s%d, %d\n" % (sb, 1024*i) if i % 4 == 0 else ""
                o.append(pre + "buffer_load_dwordx4 a[%d:%d], v%d, s[%d:%d], s59 offen offset:%d sc1" % (ab+4*i, ab+4*i+3, V_L16, R_WS, R_WS+3, 1024*(i & 3)))
        return o
    for edge in (0, 1):
      if edge: a.label("L_p2_edge")
      pf = prefetch()
      if "x_nopf" in ABL: pf = ["s_nop 0"]*55
      if "x_nomk" in ABL: pf = ["s_nop 0" if "store" in x else x for x in pf]
      if "x_now1" in ABL: pf = ["s_nop 0" if " a[" in x else x for x in pf]
      def take(n):
          o = pf[:n]; del pf[:n]; return o
      for head in range(2):
        Q = QF + 8*head
        def kread(t):
            return ["ds_read_b64 v[%d:%d], v20 offset:%d" % (KF+4*t, KF+4*t+1, 1152*t + 512*head), "ds_read_b64 v[%d:%d], v21 offset:%d" % (KF+4*t+2, KF+4*t+3, 1152*t)]
        def vleft(m): return "ds_read_b128 a[%d:%d], v23 offset:%d" % (VLA+4*m, VLA+4*m+3, 2304*m + 128*head)
        def vmain(m): return "ds_read_b128 v[%d:%d], v22 offset:%d" % (VM+4*(m & 1), VM+4*(m & 1)+3, 2304*m + 1024*head)
        def has(qt, t): return (t <= 16) if qt == 0 else (t >= 1)
        def mask(reg, qt, t):
            o = []
            for i in range(4):
                if t == qt: o.append("v_cndmask_b32 v%d, v25, v%d, s[%d:%d]" % (reg+i, reg+i, 60+2*i, 61+2*i))
                if t == 16+qt: o.append("v_cndmask_b32 v%d, v%d, v25, s[%d:%d]" % (reg+i, reg+i, 60+2*i, 61+2*i))
            return o
        def switch(t, moves):
            Ls = a.newlabel("Lsw")
            a("s_cmp_eq_u32 s55, %d" % t); a("s_cbranch_scc0 %s" % Ls)
            for x in moves: a(x)
            a.label(Ls)
        AHEAD = 4
        if head:
            L = a.newlabel("Lmk")
            a("s_cmp_lg_u32 s%d, 0" % S_WAVE); a("s_cbranch_scc1 %s_x" % L)
            a("s_mov_b32 s47, 100000"); a("s_waitcnt vmcnt(%d)" % (npf0 - len(pf)))
            a.label(L)
            a("v_cmp_ne_u32 vcc, s%d, v228" % S_NONCE)
            a("s_cbranch_vccz %s_x" % L)
            a("s_sleep 2"); a(marks); a("s_waitcnt vmcnt(0)")
            a("s_sub_u32 s47, s47, 1"); a("s_cbranch_scc0 %s" % L)
            a.label(L + "_x")
            a("s_waitcnt vmcnt(20)"); a("s_barrier")
            publish2(a, 228)
        for t in range(AHEAD):
            for x in kread(t): a(x)
        a("v_mov_b32 v%d, v25" % M); a("v_mov_b32 v%d, v25" % (M+1))
        if edge:
            for i in range(4): a("v_mov_b32 v%d, v25" % (CZ+i))
        def maxes(t):
            o = []
            for qt in range(2):
                if not has(qt, t): continue
                s = S1 + 8*(t % 3) + 4*qt
                o += mask(s, qt, t)
                o.append("v_max3_f32 v%d, v%d, v%d, v%d" % (M+qt, s, s+1, M+qt))
            for qt in range(2):
                if not has(qt, t): continue
                s = S1 + 8*(t % 3) + 4*qt
                o.append("v_max3_f32 v%d, v%d, v%d, v%d" % (M+qt, s+2, s+3, M+qt))
            return o
        for t in range(18):
            if edge and t % 2 == 0: switch(t, ["v_mov_b32 v%d, 0" % (CZ+i) for i in range(4)])
            n = 2*min(AHEAD-1, 17-t)
            a("s_waitcnt lgkmcnt(%d)" % n)
            ms = [mfma(S1+8*(t % 3)+4*qt, KF+4*t, Q+4*qt, CZ if edge else None) for qt in range(2) if has(qt, t)]
            fill = (kread(t+AHEAD) if t+AHEAD < 18 else []) + (maxes(t-2) if t >= 2 else []) + (take(1) if t % 3 == 1 and head else [])
            interleave(a, ms, fill)
        if head == 0:
            a("s_waitcnt vmcnt(%d)" % (55 - len(pf))); a("s_barrier")
            for q in range(5):
                if q == 4: a("s_add_u32 s56, s56, 4096")
                if "x_nomk" not in ABL: a("buffer_store_dwordx4 v[232:235], v%d, s[%d:%d], s56 offen offset:%d sc1" % (V_L16, R_WS, R_WS+3, 1024*(q & 3)))
            npf0 = len(pf); a(marks)
        a("s_mov_b32 exec_lo, 0x00030003"); a("s_mov_b32 exec_hi, 0x00030003")
        for m in range(9): a(vleft(m))
        a("s_mov_b64 exec, -1")
        a(vmain(0))
        for x in maxes(16) + maxes(17): a(x)
        for sw in ("v_permlane32_swap_b32", "v_permlane16_swap_b32"):
            for qt in range(2): a("v_mov_b32 v%d, v%d" % (30+qt, M+qt))
            for qt in range(2): a("%s v%d, v%d" % (sw, M+qt, 30+qt))
            for qt in range(2): a("v_max_f32 v%d, v%d, v%d" % (M+qt, M+qt, 30+qt))
        negs = ["v_sub_f32 v%d, 0, v%d" % (NM+4*qt+i, M+qt) for qt in range(2) for i in range(4)]
        if edge:
            for i in range(8): a("v_mov_b32 v%d, v25" % (NM+i))
        else:
            for x in negs: a(x)
        def qk(m):
            return [mfma(S2+16*(m & 1)+8*qt+4*b, KF+4*(2*m+b), Q+4*qt, NM+4*qt) for qt in range(2) for b in range(2) if has(qt, 2*m+b)]
        def pv(m):
            o = []
            for qt in range(2):
                p = P+8*(m & 1)+4*qt
                o.append(mfma(OM+4*qt, VM+4*(m & 1), p, None if m == 0 else OM+4*qt))
                o.append(mfma(OL+4*qt, VLA+4*m, p, None if m == 0 else OL+4*qt, ta="a"))
            return o
        for x in qk(0): a(x)
        for m in range(9):
            if edge and m < 8: switch(2*m+2, negs)
            mf = (qk(m+1) if m < 8 else []) + (pv(m-1) if m else [])
            va = []
            ld = take(3 if (m % 3 or head == 0) else 2)
            for qt in range(2):
                p = P+8*(m & 1)+4*qt
                for b in range(2):
                    s = S2+16*(m & 1)+8*qt+4*b
                    if has(qt, 2*m+b):
                        va += mask(s, qt, 2*m+b)
                        va += ["v_exp_f32 v%d, v%d" % (s+i, s+i) for i in range(4)]
                    if ld and (b == 0 or qt == 0): va.append(ld.pop(0))
                for b in range(2):
                    s = S2+16*(m & 1)+8*qt+4*b
                    if has(qt, 2*m+b):
                        va += ["v_cvt_pk_bf16_f32 v%d, v%d, v%d" % (p+2*b+h, s+2*h, s+2*h+1) for h in range(2)]
                    else:
                        va += ["v_mov_b32 v%d, 0" % (p+2*b+h) for h in range(2)]
            if m: a("s_waitcnt lgkmcnt(1)")
            interleave(a, mf, va)
            if m < 8: a(vmain(m+1))
        a("s_waitcnt lgkmcnt(0)")
        for x in pv(8): a(x)
        if head == 1:
            assert not pf
            a("s_mul_i32 s54, s53, 18432"); a("s_add_u32 s54, s54, %d" % O_OFF)
            a("s_lshl_b32 s46, s51, 10"); a("s_add_u32 s58, s46, s54"); a("s_add_u32 s59, s58, 18432")
            a("s_lshr_b32 s46, s51, 3"); a("s_add_u32 s46, s46, 16"); a("s_lshl_b32 s46, s46, 10"); a("s_add_u32 s54, s54, s46")
            a("s_and_b32 s46, s51, 7"); a("s_lshr_b32 s46, s46, 1"); a("s_lshl_b32 s46, s46, 8"); a("s_add_u32 s54, s54, s46")
            a("s_and_b32 s46, s51, 1"); a("s_lshl_b32 s46, s46, 3"); a("s_add_u32 s54, s54, s46"); a("s_add_u32 s47, s54, 18432")
        for qt in range(2): a("v_rcp_f32 v%d, v%d" % (30+qt, OL+4*qt+3))
        for qt in range(2):
            for i in range(4): a("v_mul_f32 v%d, v%d, v%d" % (OM+4*qt+i, OM+4*qt+i, 30+qt))
            for i in range(2): a("v_mul_f32 v%d, v%d, v%d" % (OL+4*qt+i, OL+4*qt+i, 30+qt))
        for qt in range(2):
            for h in range(2): a("v_cvt_pk_bf16_f32 v%d, v%d, v%d" % (OUT+4*qt+2*head+h, OM+4*qt+2*h, OM+4*qt+2*h+1))
            a("v_cvt_pk_bf16_f32 v%d, v%d, v%d" % (R_+2*qt+head, OL+4*qt, OL+4*qt+1))
      if not edge: a("s_branch L_p2_out")
    a.label("L_p2_out")
    a("buffer_store_dwordx4 v[%d:%d], v%d, s[%d:%d], s58 offen sc1" % (OUT, OUT+3, V_L16, R_WS, R_WS+3))
    a("buffer_store_dwordx4 v[%d:%d], v%d, s[%d:%d], s59 offen sc1" % (OUT+4, OUT+7, V_L16, R_WS, R_WS+3))
    a("s_mov_b64 exec, 0xffff")
    a("buffer_store_dwordx2 v[%d:%d], v%d, s[%d:%d], s54 offen sc1" % (R_, R_+1, V_L16, R_WS, R_WS+3))
    a("buffer_store_dwordx2 v[%d:%d], v%d, s[%d:%d], s47 offen sc1" % (R_+2, R_+3, V_L16, R_WS, R_WS+3))
    a("s_mov_b64 exec, -1")
    a.stamp("p2_done")
    if a.stop == 2:
        a("s_waitcnt vmcnt(0)")

C0 = -2.0*math.log2(math.e)*math.sqrt(2/math.pi)
C1 = C0*0.044715

def gelu_pk(a, regs, t, sc):
    for k, r in enumerate(regs): a("v_pk_mul_f32 v[%d:%d], v[%d:%d], v[%d:%d]" % (t+2*k, t+2*k+1, r, r+1, r, r+1))
    for k, r in enumerate(regs): a("v_pk_fma_f32 v[%d:%d], v[%d:%d], s[%d:%d], s[%d:%d] op_sel:[0,0,1] op_sel_hi:[1,0,1]" % (t+2*k, t+2*k+1, t+2*k, t+2*k+1, sc, sc+1, sc, sc+1))
    for k, r in enumerate(regs): a("v_pk_mul_f32 v[%d:%d], v[%d:%d], v[%d:%d]" % (t+2*k, t+2*k+1, t+2*k, t+2*k+1, r, r+1))
    for k in range(2*len(regs)): a("v_exp_f32 v%d, v%d" % (t+k, t+k))
    for k, r in enumerate(regs): a("v_pk_add_f32 v[%d:%d], v[%d:%d], 1.0 op_sel_hi:[1,0]" % (t+2*k, t+2*k+1, t+2*k, t+2*k+1))
    for k in range(2*len(regs)): a("v_rcp_f32 v%d, v%d" % (t+k, t+k))
    for k, r in enumerate(regs): a("v_pk_mul_f32 v[%d:%d], v[%d:%d], v[%d:%d]" % (r, r+1, r, r+1, t+2*k, t+2*k+1))

def stats_loads(a, off, stile, vt):
    a("v_lshlrev_b32 v%d, 3, v%d" % (vt+4, V_LANE))
    a("v_add_u32 v%d, 512, v%d" % (vt+5, vt+4)); a("v_cmp_gt_u32 vcc, 32, v%d" % V_LANE); a("v_mov_b32 v%d, 0x7fffffff" % vt)
    a("v_cndmask_b32 v%d, v%d, v%d, vcc" % (vt+5, vt, vt+5))
    a("s_mul_i32 s46, s%d, 768" % stile); a("s_add_u32 s46, s46, %d" % off)
    return ["buffer_load_dwordx2 v[%d:%d], v%d, s[%d:%d], s46 offen sc1" % (vt+2*k, vt+2*k+1, vt+4+k, R_WS, R_WS+3) for k in range(2)]

def stats_finish(a, vt, vmean, vrstd):
    a("v_add_f32 v%d, v%d, v%d" % (vt, vt, vt+2)); a("v_add_f32 v%d, v%d, v%d" % (vt+1, vt+1, vt+3))
    for sw in ("v_permlane32_swap_b32", "v_permlane16_swap_b32"):
        for k in range(2): a("v_mov_b32 v%d, v%d" % (vt+2+k, vt+k))
        for k in range(2): a("%s v%d, v%d" % (sw, vt+k, vt+2+k))
        for k in range(2): a("v_add_f32 v%d, v%d, v%d" % (vt+k, vt+k, vt+2+k))
    a("s_mov_b32 s47, %d" % f32(1.0/576))
    a("v_mul_f32 v%d, s47, v%d" % (vmean, vt)); a("v_mul_f32 v%d, v%d, v%d" % (vt, vmean, vmean))
    a("v_fma_f32 v%d, v%d, s47, -v%d" % (vt+1, vt+1, vt)); a("v_max_f32 v%d, 0, v%d" % (vt+1, vt+1))
    a("v_add_f32 v%d, %d, v%d" % (vt, f32(1e-5), vt+1)); a("v_rsq_f32 v%d, v%d" % (vrstd, vt))

def norm_ops(x, vs, vb, t):
    o = []
    for r in range(4):
        o.append("v_lshlrev_b32 v%d, 16, v%d" % (t+2*r, x+r)); o.append("v_and_b32 v%d, 0xffff0000, v%d" % (t+2*r+1, x+r))
    for r in range(8): o.append("v_fma_f32 v%d, v%d, v%d, v%d" % (t+r, t+r, vs, vb))
    for r in range(4): o.append("v_cvt_pk_bf16_f32 v%d, v%d, v%d" % (x+r, t+2*r, t+2*r+1))
    return o

def out_stats(a, pk, n, vt, off):
    a("v_mov_b32 v%d, 0" % vt); a("v_mov_b32 v%d, 0" % (vt+1))
    for r in range(n):
        a("v_dot2c_f32_bf16 v%d, s%d, v%d" % (vt, S_ONES, pk+r)); a("v_dot2c_f32_bf16 v%d, v%d, v%d" % (vt+1, pk+r, pk+r))
    for sw in ("v_permlane32_swap_b32", "v_permlane16_swap_b32"):
        for k in range(2): a("v_mov_b32 v%d, v%d" % (vt+2+k, vt+k))
        for k in range(2): a("%s v%d, v%d" % (sw, vt+k, vt+2+k))
        for k in range(2): a("v_add_f32 v%d, v%d, v%d" % (vt+k, vt+k, vt+2+k))
    a("s_mul_i32 s46, s53, 6"); a("s_add_u32 s46, s46, s51"); a("s_lshl_b32 s46, s46, 7"); a("s_add_u32 s46, s46, %d" % off)
    a("v_lshlrev_b32 v%d, 3, v%d" % (vt+2, V_LANE))
    a("s_mov_b64 exec, 0xffff")
    a("buffer_store_dwordx2 v[%d:%d], v%d, s[%d:%d], s46 offen sc1" % (vt, vt+1, vt+2, R_WS, R_WS+3))
    a("s_mov_b64 exec, -1")

AF, ACC, WB, HK, VMEAN, VRSTD = 64, 136, 160, 40, 52, 53
OS = WB

def tag_ops(regs, t):
    o = []; regs = list(regs)
    o.append("v_max3_u32 v%d, v%d, v%d, v%d" % (t, regs[0], regs[1], regs[2])); regs = regs[3:]
    while len(regs) >= 2: o.append("v_max3_u32 v%d, v%d, v%d, v%d" % (t, t, regs[0], regs[1])); regs = regs[2:]
    if regs: o.append("v_max_u32 v%d, v%d, v%d" % (t, t, regs[0]))
    return o + ["v_cmp_eq_u32 vcc, -1, v%d" % t]

def tag_branch(a, loads, regs, t, again=(), drain=False):
    L = a.newlabel("Ltg")
    a("s_cbranch_vccnz %s" % L)
    a.label(L + "_b")
    st = [L + ":"] + "\n".join(loads).split("\n") + ["s_waitcnt vmcnt(0)"] + tag_ops(regs, t)
    st += ["s_sub_u32 s79, s79, 1", "s_cbranch_scc1 %s_b" % L, "s_cbranch_vccnz %s" % L]
    st += list(again) + (["s_waitcnt vmcnt(0)"] if drain and again else []) + ["s_branch %s_b" % L]
    a.stubs += st

UP = 8
NE = 12
def wpos(layout, b):
    if layout is None: return W_LDS//1024 + b
    w, i = divmod(b, 27)
    return layout[0] + NE*w + i if i < NE else layout[1] + (27-NE)*w + i - NE

def gemm96(a, loads, stage, delay, pre=(), each=None, stamp=None, extra=(), layout=None, early=(), before=None, after=None):
    a("s_waitcnt vmcnt(20)")
    a("s_barrier")
    nv = sum("buffer_load" in x for x in stage)
    n1 = len(stage) if nv else len(stage)//3
    for x in stage[:n1]: a(x)
    if delay: a("s_sleep %d" % delay)
    a("s_mov_b32 s79, 50000")
    a.stamp(stamp + "_ready")
    for x in pre: a(x)
    interleave(a, loads[:UP], stage[n1:])
    a("s_waitcnt vmcnt(%d) lgkmcnt(0)" % (UP + len(pre)))
    if before: before(a)
    a("s_barrier")
    def wr(j):
        o = []
        for t in range(6):
            q, r = divmod(wpos(layout, 18*t + j), 64)
            o.append("ds_read_b128 v[%d:%d], v%d offset:%d" % (WB+24*(j % 3)+4*t, WB+24*(j % 3)+4*t+3, (V_L16, 5, 6)[q], 1024*r))
        return o
    for x in early: a(x)
    if each: each(lambda: [a(x) for x in wr(0) + wr(1)])
    else:
        for x in wr(0) + wr(1): a(x)
    a("s_waitcnt vmcnt(%d)" % (UP-1))
    fr = lambda j: range(AF+4*j, AF+4*j+4)
    for x in tag_ops(fr(0), 30): a(x)
    tag_branch(a, [loads[0]], fr(0), 30, loads[1:UP])
    if after: after(a)
    for j in range(18):
        ex = lambda q: min(len(extra), max(0, (q-9)*len(extra)//8))
        issued = min(18, UP+j) + ex(j)
        a("s_waitcnt vmcnt(%d) lgkmcnt(%d)" % (issued - 1 - min(j+1, 17), 6 if j < 17 else 0))
        if j in (0, 9): a.stamp(stamp + "_k%d" % j)
        ms = [mfma(ACC+4*t, WB+24*(j % 3)+4*t, AF+4*j, None if j == 0 else ACC+4*t) for t in range(6)]
        fill = ([loads[UP+j]] if UP+j < 18 else []) + (tag_ops(fr(j+1), 30) if j < 17 else []) + (wr(j+2) if j < 16 else []) + list(extra[ex(j):ex(j+1)])
        interleave(a, ms, fill)
        if j < 17: tag_branch(a, [loads[j+1]], fr(j+1), 30, loads[j+2:UP+j+1], drain=ex(j+1) > 0)

FP2Q = "s_mov_b32 s46, %d\nbuffer_load_dwordx4 v[16:19], v%d, s[%d:%d], s46 offen sc1" % (FP2_OFF, V_L16, R_WS, R_WS+3)

def marks2(a):
    L = a.newlabel("Lm2")
    a("s_cmp_lg_u32 s%d, 0" % S_WAVE); a("s_cbranch_scc1 %s_x" % L)
    a("s_mov_b32 s47, 100000")
    a.label(L)
    for r in range(4): a("v_xor_b32 v%d, s%d, v%d" % (16+r, S_NONCE, 16+r))
    a("v_or3_b32 v16, v16, v17, v18"); a("v_or_b32 v16, v16, v19"); a("v_cmp_ne_u32 vcc, 0, v16"); a("s_cbranch_vccz %s_x" % L)
    a(FP2Q); a("s_waitcnt vmcnt(0)")
    a("s_sub_u32 s47, s47, 1"); a("s_cbranch_scc0 %s" % L)
    a.label(L + "_x")

def publish2(a, vt):
    L = a.newlabel("Lmp"); a("s_cmp_lg_u32 s%d, 0" % S_WAVE); a("s_cbranch_scc1 %s" % L); a.set_mark(vt, FP2_OFF); a.label(L)

def wflags(a, first, va, vd):
    a("s_mul_i32 s46, s65, 18"); a("s_add_u32 s46, s46, %d" % (FS + first))
    a("v_min_u32 v%d, 17, v%d" % (va, V_LANE)); a("v_add_u32 v%d, s46, v%d" % (va, va)); a("v_lshlrev_b32 v%d, 7, v%d" % (va, va))
    a("buffer_load_dword v%d, v%d, s[%d:%d], 0 offen offset:%d sc1" % (vd, va, R_WS, R_WS+3, FLAG0))

def phase345(a):
    a("s_mov_b32 s50, s74"); a("s_mov_b32 s51, s75"); a("s_mov_b32 s53, s76")
    a("s_cmp_ge_u32 s51, 6"); a("s_cbranch_scc1 L_p3_helper")
    a("v_add_u32 v5, 65536, v%d" % V_L16); a("v_add_u32 v6, 131072, v%d" % V_L16)
    a("s_mul_i32 s46, s%d, %d" % (S_WAVE, 1024*NE)); a("v_add_u32 v7, s46, v%d" % V_L16)
    a("s_mul_i32 s46, s%d, %d" % (S_WAVE, 1024*(27-NE))); a("v_add_u32 v8, s46, v%d" % V_L16)
    a("v_add_u32 v62, %d, v7" % (112*1024)); a("v_add_u32 v63, %d, v8" % (52*1024))
    LAY4, LAY5 = (0, 52), (112, 0)
    a("s_mul_i32 s54, s53, 18432")
    a("s_mul_i32 s55, s51, 3072"); a("s_add_u32 s55, s55, s54")
    a("v_lshlrev_b32 v9, 7, v%d" % V_LANE)
    a("s_lshl_b32 s46, s51, 2"); a("s_add_u32 s46, s46, s%d" % S_WAVE); a("s_mul_i32 s46, s46, 3072"); a("s_mul_i32 s78, s50, 73728"); a("s_add_u32 s78, s78, s46")
    def w2(i0, i1):
        return [("s_add_u32 s59, s72, %d\n" % (1024*(i & ~3)) if (i % 4 == 0 or i == i0) else "") +
                "buffer_load_dwordx4 a[%d:%d], v%d, s[%d:%d], s59 offen offset:%d sc1" % (AW2+4*i, AW2+4*i+3, V_L16, R_WS, R_WS+3, 1024*(i & 3)) for i in range(i0, i1)]
    def park(ab, lay, late):
        if late: return ["ds_write_b128 v%d, a[%d:%d] offset:%d" % (63 if lay[1] else 8, ab+4*i, ab+4*i+3, 1024*(i - NE)) for i in range(NE, 27)]
        return ["ds_write_b128 v%d, a[%d:%d] offset:%d" % (62 if lay[0] else 7, ab+4*i, ab+4*i+3, 1024*i) for i in range(NE)]
    def aloads(off):
        for q in range(5): a("s_add_u32 s%d, s54, %d" % (60+q, off + 4096*q))
        return ["buffer_load_dwordx4 v[%d:%d], v%d, s[%d:%d], s%d offen offset:%d sc1" % (AF+4*j, AF+4*j+3, V_L16, R_WS, R_WS+3, 60+(j >> 2), 1024*(j & 3)) for j in range(18)]
    def ostores(src, off):
        a("s_add_u32 s46, s55, %d" % off)
        for jj in range(3): a("buffer_store_dwordx4 v[%d:%d], v%d, s[%d:%d], s46 offen offset:%d sc1" % (src+4*jj, src+4*jj+3, V_L16, R_WS, R_WS+3, 1024*jj))
    a("s_lshl_b32 s46, s53, 4"); a("v_add_u32 v20, s46, v%d" % V_R); a("s_mov_b32 s47, 18432")
    for k, sh in enumerate((1, -1, 2, -2)):
        a("v_subrev_u32 v21, %d, v20" % sh); a("v_ashrrev_i32 v22, 4, v21"); a("v_mul_lo_u32 v22, v22, s47")
        a("v_and_b32 v21, 15, v21"); a("v_lshl_add_u32 v21, v%d, 4, v21" % V_G); a("v_lshl_add_u32 v%d, v21, 4, v22" % (56+k))
    a("v_cmp_gt_u32 vcc, 32, v%d" % V_LANE); a("v_cndmask_b32 v60, v57, v56, vcc"); a("v_cndmask_b32 v61, v59, v58, vcc")
    N2 = int(os.environ.get("N2", 27))
    n3 = max(N2, NE)
    gemm96(a, aloads(O_OFF), [pf_lds(0), pf_lds(1)] + w2(0, N2), SLEEP0["p3"] if N2 < 8 else 0, stamp="p3", extra=w2(N2, n3), early=park(AW1, LAY4, False))
    a.stamp("p3_gemm")
    a(FP2Q)
    a("s_mov_b32 s46, 0x00003f80"); a("s_mov_b32 s47, 0x3f800000")
    for t in range(6):
        for i in range(4): a("v_dot2c_f32_bf16 v%d, s%d, v%d" % (ACC+4*t+i, 46+(i & 1), XT+4*(t >> 1)+2*(t & 1)+(i >> 1)))
    for k in range(12): a("v_cvt_pk_bf16_f32 v%d, v%d, v%d" % (HK+k, ACC+2*k, ACC+2*k+1))
    ostores(HK, H_OFF)
    out_stats(a, HK, 12, 10, SH_OFF)
    a.stamp("p3_epi")
    if a.stop == 3: a("s_waitcnt vmcnt(0)"); a("s_branch L_fin")
    for r in range(4): a("v_mov_b32 v%d, s%d" % (20+r, S_ONES))
    cs = [mfma(WB+4*(i//9), AW1+4*i, 20, None if i % 9 == 0 else WB+4*(i//9), ta="a") for i in range(27)]
    a("s_mul_i32 s46, s%d, 192" % S_WAVE); a("s_add_u32 s46, s46, %d" % (48*1024)); a("v_lshl_add_u32 v24, v%d, 4, s46" % V_G)
    g = G(); interleave(g, [cs[(i % 3)*9 + i//3] for i in range(27)], park(AW1, LAY4, True))
    st4 = g.lines
    st4 += ["s_nop 7"] + ["ds_write_b128 v24, v[%d:%d] offset:%d" % (WB+4*k, WB+4*k+3, 64*k) for k in range(3)]
    CS = 232
    sl = stats_loads(a, SH_OFF, 53, 10); a("s_mov_b32 s65, s46"); sl = [x.replace("s46", "s65") for x in sl]
    def fin4(wreads):
        a("v_lshlrev_b32 v24, 4, v%d" % V_G)
        for k in range(12): a("ds_read_b128 v[%d:%d], v24 offset:%d" % ((CS if k % 2 == 0 else ACC)+4*(k//2), (CS if k % 2 == 0 else ACC)+4*(k//2)+3, 48*1024 + 64*k))
        wreads()
        a("s_waitcnt vmcnt(%d)" % UP)
        for x in tag_ops(range(10, 14), 30): a(x)
        tag_branch(a, sl, range(10, 14), 30, al4[:UP])
        stats_finish(a, 10, VMEAN, VRSTD)
        a("v_mul_f32 v12, v%d, v%d" % (VRSTD, VRSTD)); a("v_mul_f32 v12, v12, v11"); a("v_add_f32 v12, %d, v12" % f32(1e-5))
        a("v_rsq_f32 v12, v12"); a("v_mul_f32 v16, v12, v%d" % VRSTD); a("v_mul_f32 v17, v16, -v%d" % VMEAN)
        a("s_waitcnt lgkmcnt(12)")
        for k in range(12): a("v_pk_add_f32 v[%d:%d], v[%d:%d], v[%d:%d]" % (CS+2*k, CS+2*k+1, CS+2*k, CS+2*k+1, ACC+2*k, ACC+2*k+1))
        for k in range(12): a("v_pk_mul_f32 v[%d:%d], v[%d:%d], v[16:17] op_sel:[0,1] op_sel_hi:[1,1]" % (CS+2*k, CS+2*k+1, CS+2*k, CS+2*k+1))
    al4 = aloads(H_OFF)
    gemm96(a, al4, st4, SLEEP0["p4"], pre=sl, each=fin4, stamp="p4", extra=w2(n3, 27), layout=LAY4, before=marks2)
    a.stamp("p4_gemm")
    a("s_mov_b32 s48, %d" % f32(C1)); a("s_mov_b32 s49, %d" % f32(C0))
    for k in range(12): a("v_pk_fma_f32 v[%d:%d], v[%d:%d], v[16:17], v[%d:%d] op_sel_hi:[1,0,1]" % (ACC+2*k, ACC+2*k+1, ACC+2*k, ACC+2*k+1, CS+2*k, CS+2*k+1))
    g = G(); gelu_pk(g, [ACC+2*k for k in range(12)], AF, 48)
    interleave(a, g.lines, park(AW2, LAY5, False))
    for k in range(12): a("v_cvt_pk_bf16_f32 v%d, v%d, v%d" % (OS+k, ACC+2*k, ACC+2*k+1))
    ostores(OS, T_OFF)
    a.stamp("p4_epi")
    if a.stop == 4: a("s_waitcnt vmcnt(0)"); a("s_branch L_fin")
    a.srd(R_A, S_WS, ACT, T_OFF)
    for q in range(5): a("s_mov_b32 s%d, %d" % (70+q, 4096*q))
    def vsel(j): return 56 if j < 4 else 60 if j == 4 else 57 if j < 9 else 58 if j < 13 else 61 if j == 13 else 59
    tl = ["buffer_load_dwordx4 v[%d:%d], v%d, s[%d:%d], s%d offen offset:%d sc1" % (AF+4*j, AF+4*j+3, vsel(j), R_A, R_A+3, 70+(j >> 2), 1024*(j & 3)) for j in range(18)]
    roles6(a)
    wflags(a, 54, 54, 55)
    a("s_waitcnt vmcnt(4)")
    gemm96(a, tl, park(AW2, LAY5, True), SLEEP0["p5"], stamp="p5", layout=LAY5)
    a.stamp("p5_gemm")
    a("v_mul_f32 v17, v%d, -v%d" % (VRSTD, VMEAN))
    for k in range(12):
        a("v_lshlrev_b32 v20, 16, v%d" % (HK+k)); a("v_and_b32 v21, 0xffff0000, v%d" % (HK+k))
        a("v_fma_f32 v20, v20, v%d, v17" % VRSTD); a("v_fma_f32 v21, v21, v%d, v17" % VRSTD)
        a("v_pk_add_f32 v[%d:%d], v[%d:%d], v[20:21]" % (ACC+2*k, ACC+2*k+1, ACC+2*k, ACC+2*k+1))
    for k in range(12): a("v_cvt_pk_bf16_f32 v%d, v%d, v%d" % (OS+k, ACC+2*k, ACC+2*k+1))
    ostores(OS, X1_OFF)
    out_stats(a, OS, 12, 10, SX_OFF)
    a.stamp("p5_epi")
    a("s_branch L_p5_pre")
    a.label("L_p3_helper")
    a("s_barrier")
    a(pf_lds(0)); a(pf_lds(1))
    swizzle_setup(a)
    a("s_add_u32 s48, s48, 54")
    for p in range(3):
        sw_big(a, 48, 60+3*p)
        a("s_lshl_b32 s53, s52, 10"); a("s_add_u32 s%d, s%d, s53" % (60+3*p, 60+3*p)); a("s_add_u32 s%d, s48, %d" % (62+3*p, FS))
        a("s_add_u32 s48, s48, 1")
    a("s_lshl_b32 s48, s74, 1"); a("s_add_u32 s48, s48, s75"); a("s_add_u32 s48, s48, %d" % (54 + 192 - 6))
    sw_issue(a, 48, 3, 0)
    a("s_waitcnt vmcnt(9)"); a("s_barrier")
    for p in range(3): sw_process(a, p, W_LDS + 36864*p)
    a("s_barrier")
    a("s_add_u32 s49, s48, 64"); a("s_cmp_lt_u32 s49, 342"); a("s_cselect_b32 s48, s49, s48"); sw_issue(a, 48, 4, W_LDS)
    a("s_waitcnt vmcnt(9)"); a("s_barrier")
    sw_flags(a, range(3))
    a.stamp("h_w3")
    sw_process(a, 3, 0)
    a("s_waitcnt vmcnt(9)"); a("s_barrier")
    sw_process(a, 4, W_LDS)
    a("s_waitcnt vmcnt(0)"); a("s_barrier")
    sw_flags(a, (3, 4))
    a.stamp("h_w4")
    roles6(a)
    wflags(a, 54, 54, 55)
    a(FP2Q)
    a("s_waitcnt vmcnt(0)")
    marks2(a)
    a.label("L_p5_pre")
    a.label("L_p5_done")
    a.stamp("p5_done")

WFL = os.environ.get("WFL", " sc1")
LCH = int(os.environ.get('LCH', 1))
RING = 184

def roles6(a):
    L = LCH
    a("s_lshr_b32 s46, s%d, %d" % (S_XCD, 3-L)); a("s_lshl_b32 s64, s46, %d" % (5-L)); a("s_lshr_b32 s67, s%d, %d" % (S_SLOT, L)); a("s_add_u32 s64, s64, s67")
    a("s_and_b32 s67, s67, 7")
    a("s_mov_b32 s67, 0")
    a("s_and_b32 s46, s%d, %d" % (S_XCD, (8 >> L) - 1)); a("s_lshl_b32 s65, s46, %d" % L); a("s_and_b32 s46, s%d, %d" % (S_SLOT, (1 << L) - 1)); a("s_add_u32 s65, s65, s46")
    a("s_lshl_b32 s46, s65, 2"); a("s_add_u32 s46, s46, s%d" % S_WAVE); a("s_mul_i32 s66, s46, %d" % (9*18432)); a("s_add_u32 s66, s66, %d" % W3_S)

def wload(j, s=58, ring=("a", RING)):
    o = "s_add_u32 s%d, s%d, 4096\n" % (s, s) if (j and j % 4 == 0) else ""
    return o + ("buffer_load_dwordx4 %s[%d:%d], v%d, s[%d:%d], s%d offen offset:%d" + WFL) % (ring[0], ring[1]+4*j, ring[1]+4*j+3, V_L16, R_WS, R_WS+3, s, 1024*(j & 3))

def ring_prefill(a, s):
    a("s_mul_i32 s%d, s67, 18432" % s); a("s_add_u32 s%d, s%d, s66" % (s, s))
    return [wload(j, s) for j in range(18)]

def norm_pk(x, vs, t):
    o = []
    for r in range(4):
        o.append("v_lshlrev_b32 v%d, 16, v%d" % (t+2*r, x+r)); o.append("v_and_b32 v%d, 0xffff0000, v%d" % (t+2*r+1, x+r))
    for r in range(4): o.append("v_pk_fma_f32 v[%d:%d], v[%d:%d], v[%d:%d], v[%d:%d] op_sel:[0,0,1] op_sel_hi:[1,0,1]" % (t+2*r, t+2*r+1, t+2*r, t+2*r+1, vs, vs+1, vs, vs+1))
    for r in range(4): o.append("v_cvt_pk_bf16_f32 v%d, v%d, v%d" % (x+r, t+2*r, t+2*r+1))
    return o

def phase6(a):
    AC, PK, RB, GT, XR = 40, 72, 80, 136, 64
    HB = 73728
    def xf(T, j):
        f = 4*j + T
        return ("a", 4*f) if f < 46 else ("v", 152 + 4*(f-46))
    a("s_mov_b32 s50, s64"); a("s_mov_b32 s51, s65"); a("s_mov_b32 s54, s66"); a("s_mov_b32 s52, s67")
    a("s_lshl_b32 s53, s50, 2"); a("s_add_u32 s53, s53, s%d" % S_WAVE)
    a("s_add_u32 s55, s54, %d" % BW)
    a("s_mul_i32 s56, s50, 72"); a("s_add_u32 s56, s56, s51"); a("s_lshl_b32 s56, s56, 2"); a("s_add_u32 s56, s56, s%d" % S_WAVE)
    a("s_lshl_b32 s56, s56, 11"); a("s_add_u32 s56, s56, %d" % PART)
    a("s_mul_i32 s46, s53, 18432")
    for q in range(5): a("s_add_u32 s%d, s46, %d" % (70+q, X1_OFF + 4096*q))
    a("s_mul_i32 s46, s%d, 18432" % S_WAVE); a("v_add_u32 v5, s46, v%d" % V_L16)
    sl = stats_loads(a, SX_OFF, 53, 10)
    a("s_mov_b32 s60, s46")
    sl = [x.replace("s46", "s60") for x in sl]
    a("v_mov_b32 v28, 0")
    a("global_load_dword v29, v28, s[%d:%d] sc1" % (S_DBG, S_DBG+1))
    L = a.newlabel("Lh")
    a("s_cmp_lg_u32 s%d, 0" % S_WAVE); a("s_cbranch_scc1 %s" % L)
    a("v_cmp_ne_u32 vcc, s%d, v55" % S_NONCE); a("s_cbranch_vccz %s" % L)
    a("v_lshrrev_b32 v54, 7, v54")
    a.poll(54, 55, sleep0=0)
    a.label(L)
    a("s_barrier")
    pre = ring_prefill(a, 59)
    NP = SLEEP0["p6"]
    for x in pre[:NP]: a(x)
    a.stamp("p6_ready")
    a("s_mov_b32 s79, 50000")
    for x in sl: a(x)
    def xload(j): return "buffer_load_dwordx4 v[%d:%d], v%d, s[%d:%d], s%d offen offset:%d sc1" % (XR+4*j, XR+4*j+3, V_L16, R_WS, R_WS+3, 70+(j >> 2), 1024*(j & 3))
    for j in range(UP): a(xload(j))
    a("v_add_u32 v32, 36864, v%d" % V_L16); a("v_add_u32 v33, %d, v%d" % (HB, V_L16)); a("v_add_u32 v34, %d, v%d" % (HB+36864, V_L16))
    a("s_lshr_b32 s46, s%d, 1" % S_WAVE); a("s_lshl_b32 s46, s46, 10"); a("s_and_b32 s47, s%d, 1" % S_WAVE); a("s_lshl_b32 s47, s47, 3")
    a("s_add_u32 s46, s46, s47"); a("v_add_u32 v35, s46, v33")
    a("s_mov_b32 s48, %d" % f32(C1)); a("s_mov_b32 s49, %d" % f32(C0))
    R3, ST, SEL, RS = 12, 32, 6, RB
    def select(d, sr, bit):
        o = ["s_bitcmp1_b32 s%d, %d\ns_cselect_b64 s[64:65], -1, 0" % (sr, bit)]
        for h in range(2):
            o += ["v_cndmask_b32 v%d, v%d, 0, s[64:65]" % (d+h, SEL+2+h), "v_cndmask_b32 v%d, 0, v%d, s[64:65]" % (d+2+h, SEL+2+h)]
        return o
    a("v_lshrrev_b32 v26, 2, v%d" % V_R); a("v_cmp_eq_u32 s[64:65], v26, v%d" % V_G)
    a("v_and_b32 v26, 1, v%d" % V_R); a("v_lshlrev_b32 v26, 4, v26"); a("v_mov_b32 v27, 0x3f80"); a("v_lshlrev_b32 v27, v26, v27")
    a("v_cndmask_b32 v27, 0, v27, s[64:65]"); a("v_and_b32 v26, 2, v%d" % V_R); a("v_cmp_eq_u32 vcc, 0, v26")
    a("v_cndmask_b32 v%d, 0, v27, vcc" % (SEL+2)); a("v_cndmask_b32 v%d, v27, 0, vcc" % (SEL+3))
    for r in (0, 1): a("v_mov_b32 v%d, 0" % (SEL+r))
    for x in select(36, S_WAVE, 0): a(x)
    def bload(reg, s, off=0, t="a"): return "buffer_load_dwordx4 %s[%d:%d], v%d, s[%d:%d], s%d offen offset:%d sc1" % (t, reg, reg+3, V_L16, R_WS, R_WS+3, s, off)
    a("s_waitcnt vmcnt(%d)" % UP)
    for x in tag_ops(range(10, 14), 30): a(x)
    tag_branch(a, sl, range(10, 14), 30, [xload(j) for j in range(UP)])
    a.stamp("p6_st")
    stats_finish(a, 10, 17, 16)
    a("v_mul_f32 v17, v16, -v17")
    a("s_mul_i32 s60, s50, 73728")
    a("s_lshl_b32 s46, s51, 1"); a("s_lshr_b32 s47, s%d, 1" % S_WAVE); a("s_add_u32 s46, s46, s47"); a("s_lshl_b32 s46, s46, 10"); a("s_add_u32 s78, s46, s60")
    order = [("x", j) for j in range(UP)]
    todo = [("x", j) for j in range(UP, 18)] + [("w", j) for j in range(NP, 18)]
    for j in range(18):
        a("s_waitcnt vmcnt(%d)" % (len(order) - 1 - order.index(("x", j))))
        for x in tag_ops(range(XR+4*j, XR+4*j+4), 30): a(x)
        n = 1 if j < 10 else -(-len(todo)//(18-j))
        for k, q in todo[:n]:
            a(xload(q) if k == "x" else pre[q]); order.append((k, q))
        del todo[:n]
        later = [q for k, q in order if k == "x" and q > j]
        tag_branch(a, [xload(j)], range(XR+4*j, XR+4*j+4), 30, [xload(q) for q in later], drain=order[-1][0] == "w")
        if j in (9, 17): a.stamp("p6_x%d" % j)
        for x in norm_pk(XR+4*j, 16, 20): a(x)
        a("ds_write_b128 v5, v[%d:%d] offset:%d" % (XR+4*j, XR+4*j+3, 1024*j))
    assert not todo
    a("v_readfirstlane_b32 s%d, v29" % S_NONCE)
    for r in (4, 5): a("v_mov_b32 v%d, 0" % (SEL+r))
    a("s_waitcnt lgkmcnt(0)"); a("s_barrier")
    a.stamp("p6_x")
    def fread(j, va):
        o = []
        for T in range(4):
            t, r = xf(T, j)
            o.append("ds_read_b128 %s[%d:%d], v%d offset:%d" % (t, r, r+3, va[T >> 1], (T & 1)*18432 + 1024*j))
        return o
    def gelu(ac):
        b = ["v_pk_mul_f32 v[%d:%d], v[%d:%d], v[%d:%d]" % (GT+2*k, GT+2*k+1, ac+2*k, ac+2*k+1, ac+2*k, ac+2*k+1) for k in range(8)]
        b += ["v_pk_fma_f32 v[%d:%d], v[%d:%d], s[48:49], s[48:49] op_sel:[0,0,1] op_sel_hi:[1,0,1]" % (GT+2*k, GT+2*k+1, GT+2*k, GT+2*k+1) for k in range(8)]
        b += ["v_pk_mul_f32 v[%d:%d], v[%d:%d], v[%d:%d]" % (GT+2*k, GT+2*k+1, GT+2*k, GT+2*k+1, ac+2*k, ac+2*k+1) for k in range(8)]
        o = []
        for T in range(4):
            x = ac + 4*T; t = GT + 4*T
            if "nopk" in ABL:
                o += ["v_mul_f32 v%d, v%d, v%d" % (t+i, x+i, x+i) for i in range(4)]
                o += ["v_fma_f32 v%d, v%d, s48, v18" % (t+i, t+i) for i in range(4)]
                o += ["v_mul_f32 v%d, v%d, v%d" % (t+i, t+i, x+i) for i in range(4)]
            o += ["v_exp_f32 v%d, v%d" % (t+i, t+i) for i in range(4)]
            o += ["v_add_f32 v%d, 1.0, v%d" % (t+i, t+i) for i in range(4)]
            o += ["v_rcp_f32 v%d, v%d" % (t+i, t+i) for i in range(4)]
            o += ["v_mul_f32 v%d, v%d, v%d" % (t+i, t+i, x+i) for i in range(4)]
            o += ["v_cvt_pk_bf16_f32 v%d, v%d, v%d" % (PK+2*T+h, t+2*h, t+2*h+1) for h in range(2)]
            o.append("ds_write_b64 v5, v[%d:%d] offset:%d" % (PK+2*T, PK+2*T+1, 18432*T))
        return ([] if "nopk" in ABL else b), o
    def wt(op): return 2 if op.startswith(("v_exp", "v_rcp")) else min(2, len(op.split("\n")))
    RA = ("a", RING); RBB = ("v", RB)
    def subpass(ac, fill, first=None, loads=None, at=None, ring=RA, depth=18, batch=(), head=(), c0=None, more=None):
        if "p6nogelu" in ABL and len(fill) > 20: fill = []; batch = ()
        if "p6nost" in ABL: fill = [x for x in fill if "buffer_store" not in x]
        fill = list(fill); head = list(head)
        if first:
            for j in range(2):
                for x in fread(j, first): a(x)
        def wait(j):
            w = []
            if j % 2 == 0: w.append("vmcnt(%d)" % (depth - 2 + (more(j-1) if more and j else 0)))
            if first: w.append("lgkmcnt(%d)" % (4 if j < 17 else 0))
            return "s_waitcnt " + " ".join(w) if w else None
        for j in range(18):
            if wait(j): a(wait(j))
            if at and j in at: at[j]()
            rd = fread(j+2, first) if (first and j < 16) else []
            for T in range(4):
                t, r = xf(T, j)
                a(mfma(ac+4*T, ring[1]+4*j, r, (None if c0 is None else c0+4*T) if j == 0 else ac+4*T, ta=ring[0], tb=t))
                room = 2
                if rd: a(rd[T]); room -= 1
                if j == 0:
                    n = (len(head) + 2 - T)//(3 - T) if T < 3 else 0
                    for x in head[:n]: a(x)
                    del head[:n]
                if T == 3:
                    ld = "" if ("p6nold" in ABL and loads is None) else (loads(j) if loads else wload(j, 58, ring))
                    if ld: a(ld); room -= len(ld.split("\n"))
                    if j < 17 and wait(j+1): room -= 1
                    if j == 0:
                        for x in batch: a(x)
                if j == 0: continue
                left = 4*(17-j) + 3 - T
                while fill and (wt(fill[0]) <= room or sum(wt(x) for x in fill) > 2*left - (left+3)//4*2 + 1):
                    room -= wt(fill[0]); a(fill.pop(0))
        assert not fill
    def nexttile(last=False):
        o = ["s_mov_b32 s62, s61", "s_mov_b32 s61, s63", "s_add_u32 s63, s63, 1"]
        if "rot" in ABL: o += ["s_cmp_eq_u32 s63, 9", "s_cselect_b32 s63, 0, s63"]
        o += ["s_mul_i32 s58, s63, 18432", "s_add_u32 s58, s58, s54"]
        if last: o += ["s_cmp_eq_u32 s59, 3", "s_cselect_b32 s58, s65, s58"]
        return o + ["s_lshl_b32 s46, s62, 11", "v_add_u32 v5, s46, v35"]
    def slice_of(d, c):
        a("s_add_u32 s%d, s%d, s51" % (d, c)); a("s_and_b32 s%d, s%d, 7" % (d, d)); a("s_cmp_eq_u32 s%d, 0" % c); a("s_cselect_b32 s%d, 8, s%d" % (d, d))
    a("s_mov_b32 s63, s52"); a("s_mov_b32 s61, s52")
    for x in nexttile(): a(x)
    slice_of(64, 52); a("s_mul_i32 s65, s64, 18432"); a("s_add_u32 s65, s65, s55")
    for r in range(4): a("v_mov_b32 v%d, -1" % (PK+r))
    pois = []
    for k in (6, 7):
        pois.append("s_add_u32 s46, s51, %d\ns_and_b32 s46, s46, 7\ns_lshl_b32 s46, s46, 16\ns_add_u32 s62, s46, s56\n" % k +
                    "buffer_store_dwordx4 v[%d:%d], v%d, s[%d:%d], s62 offen sc1" % (PK, PK+3, V_L16, R_WS, R_WS+3))
        pois.append("buffer_store_dwordx4 v[%d:%d], v%d, s[%d:%d], s62 offen offset:1024 sc1" % (PK, PK+3, V_L16, R_WS, R_WS+3))
    res = ["s_add_u32 s62, s78, %d\n" % ((X1_OFF, H_OFF)[j >> 2] + 18432*(j & 3)) + bload(RS+4*j, 62, t="v") for j in range(8)]
    def resadd():
        a("s_waitcnt vmcnt(9)")
        for k in range(2):
            for T in range(4): a(mfma(R3+4*T, 36, RS+16*k+4*T, None if k == 0 else R3+4*T))
    ev0 = {j: (lambda j=j: a(res[j])) for j in range(8)}
    ev0[16] = resadd
    ev0[17] = lambda: [a(x) for x in pois]
    subpass(AC, [], first=(V_L16, 32), at=ev0, more=lambda j: min(j+1, 8))
    a.stamp("p6_p0")
    a("s_mov_b32 s59, 0")
    def w4ask():
        L = a.newlabel("Lw4"); a("s_cmp_eq_u32 s59, 3"); a("s_cbranch_scc0 %s" % L)
        a("buffer_load_dword v31, v30, s[%d:%d], 0 offen offset:%d sc1" % (R_WS, R_WS+3, FLAG0)); a.label(L)
    def w4check():
        L = a.newlabel("Lw4"); a("s_cmp_eq_u32 s59, 3"); a("s_cbranch_scc0 %s" % L)
        a("s_waitcnt vmcnt(14)"); a("v_cmp_ne_u32 vcc, s%d, v31" % S_NONCE); a("s_cbranch_vccz %s" % L)
        a("v_lshrrev_b32 v30, 7, v30"); a.poll(30, 31, sleep0=0); a.label(L)
    a("s_mul_i32 s46, s51, 18"); a("s_add_u32 s46, s46, %d" % (FS + 198))
    a("v_min_u32 v30, 17, v%d" % V_LANE); a("v_add_u32 v30, s46, v30"); a("v_lshlrev_b32 v30, 7, v30")
    a.label("L_p6_a")
    for half in (1, 0):
        b, o = gelu(AC+16*(1-half))
        subpass(AC+16*half, o, batch=b, head=nexttile(half == 0), at={0: w4check} if half == 0 else {4: w4ask})
    a("s_add_u32 s59, s59, 1"); a("s_cmp_lt_u32 s59, 4"); a("s_cbranch_scc1 L_p6_a")
    def nextslice(own=None):
        a("s_lshl_b32 s62, s66, 16"); a("s_add_u32 s62, s62, s56"); a("s_mov_b32 s66, s65"); a("s_mov_b32 s65, s64")
        a("s_add_u32 s61, s61, 1"); a("s_and_b32 s61, s61, 7")
        slice_of(64, 61)
        if own is not None: a("s_cmp_eq_u32 s59, %d" % own); a("s_cselect_b32 s64, s51, s64")
        a("s_mul_i32 s58, s64, 18432"); a("s_add_u32 s58, s58, s55")
    a("s_lshl_b32 s46, s61, 11"); a("v_add_u32 v5, s46, v35")
    a("s_mov_b32 s61, s52")
    nextslice()
    g = G(); gelu_pk(g, [AC+2*k for k in range(8)], GT, 48)
    interleave(a, g.lines, [wload(j, 58, RBB) for j in range(14)])
    for T in range(4):
        for h in range(2): a("v_cvt_pk_bf16_f32 v%d, v%d, v%d" % (PK+2*T+h, AC+4*T+2*h, AC+4*T+2*h+1))
        a("ds_write_b64 v5, v[%d:%d] offset:%d" % (PK+2*T, PK+2*T+1, 18432*T))
        a(wload(14+T, 58, RBB))
    a("s_waitcnt lgkmcnt(0)"); a("s_barrier")
    a.stamp("p6_a")
    def pstore(ac):
        o = ["v_cvt_pk_bf16_f32 v%d, v%d, v%d" % (PK+k, ac+2*k, ac+2*k+1) for k in range(8)]
        o += ["buffer_store_dwordx4 v[%d:%d], v%d, s[%d:%d], s62 offen offset:%d sc1" % (PK+4*p, PK+4*p+3, V_L16, R_WS, R_WS+3, 1024*p) for p in range(2)]
        return o
    a("s_lshl_b32 s46, s50, 5"); a("s_add_u32 s46, s46, s%d" % S_WAVE); a("s_lshl_b32 s70, s46, 7"); a("s_add_u32 s70, s70, %d" % (FLAG0 + 128*FA))
    a("s_lshl_b32 s46, s51, 9"); a("s_add_u32 s68, s70, s46")
    a("s_mul_i32 s46, s50, 9"); a("s_add_u32 s46, s46, s51"); a("s_lshl_b32 s46, s46, 16"); a("s_lshl_b32 s47, s%d, 11" % S_WAVE)
    a("s_add_u32 s46, s46, s47"); a("s_add_u32 s69, s46, %d" % PART)
    a("s_mov_b32 s71, 0")
    a("v_and_b32 v5, 7, v%d" % V_LANE); a("v_cmp_eq_u32 vcc, s51, v5"); a("v_xor_b32 v30, 1, v5")
    a("v_cndmask_b32 v5, v5, v30, vcc"); a("v_lshlrev_b32 v5, 9, v5")
    def cond(first, body):
        def f():
            L = a.newlabel("Lc")
            if first is not None: a("s_cmp_lt_u32 s71, %d" % first); a("s_cbranch_scc1 %s" % L)
            body()
            a.label(L)
        return f
    def SC(k): return (54, 55, 57, 58, 72, 75, 76)[k-1]
    def publish():
        a("s_add_u32 s46, s71, s%d" % S_NONCE); a("s_sub_u32 s46, s46, 2"); a("v_mov_b32 v29, s46")
        a("s_waitcnt vmcnt(20)"); a("s_mov_b64 exec, 1")
        a("buffer_store_dword v29, v28, s[%d:%d], s68 offen sc1" % (R_WS, R_WS+3))
        a("s_mov_b64 exec, -1")
    def confirm(vflag, vaddr, saddr, sneed, n):
        L = a.newlabel("Lcf")
        a("s_mov_b32 s47, 100000"); a("s_waitcnt vmcnt(%d)" % n)
        a.label(L)
        a("v_subrev_u32 v30, s%d, v%d" % (sneed, vflag)); a("v_cmp_lt_u32 vcc, 7, v30"); a("s_cbranch_vccz %s_x" % L)
        a("s_sleep 1"); a("buffer_load_dword v%d, v%d, s[%d:%d], s%d offen sc1" % (vflag, vaddr, R_WS, R_WS+3, saddr)); a("s_waitcnt vmcnt(0)")
        a("s_sub_u32 s47, s47, 1"); a("s_cbranch_scc0 %s" % L)
        a.label(L + "_x")
    nxt = ["s_add_u32 s71, s71, 1"]
    a("s_mov_b32 s59, 0")
    nextslice()
    subpass(AC, [], first=(33, 34), depth=36)
    a.stamp("p6_s0")
    a.label("L_p6_b")
    def ask_all(): a("buffer_load_dword v31, v5, s[%d:%d], s70 offen sc1" % (R_WS, R_WS+3))
    ev = {3: cond(6, publish), 14: cond(6, ask_all)}
    nextslice()
    subpass(AC+16, pstore(AC), ring=RBB, depth=36, head=nxt)
    nextslice(own=2)
    subpass(AC, pstore(AC+16), depth=36, at=ev, head=nxt)
    a("s_add_u32 s59, s59, 1"); a("s_cmp_lt_u32 s59, 3"); a("s_cbranch_scc1 L_p6_b")
    a.stamp("p6_s6")
    a("s_lshr_b32 s46, s51, 1"); a("s_sub_u32 s46, s46, 3"); a("s_lshl_b32 s46, s46, 7"); a("s_add_u32 s74, s46, s70")
    a("s_mul_i32 s46, s50, 9"); a("s_add_u32 s46, s46, 8"); a("s_lshl_b32 s46, s46, 16"); a("s_lshl_b32 s47, s51, 10")
    a("s_add_u32 s46, s46, s47"); a("s_add_u32 s78, s46, %d" % PART)
    a("s_and_b32 s46, s51, 1"); a("s_mul_i32 s61, s46, 36864"); a("s_add_u32 s61, s61, s60")
    a("s_lshr_b32 s47, s51, 2"); a("s_add_u32 s47, s47, 16"); a("s_lshl_b32 s46, s47, 10"); a("s_add_u32 s79, s46, s61")
    a("s_lshl_b32 s47, s47, 6"); a("s_add_u32 s61, s61, s47"); a("s_and_b32 s46, s51, 2"); a("s_lshl_b32 s46, s46, 2"); a("s_add_u32 s61, s61, s46")
    def w3(body):
        def f():
            L = a.newlabel("Lex"); a("s_cmp_lg_u32 s%d, 3" % S_WAVE); a("s_cbranch_scc1 %s" % L); body(); a.label(L)
        return f
    def extra_ask():
        a("v_and_b32 v%d, 7, v%d" % (RB, V_LANE)); a("v_lshlrev_b32 v%d, 9, v%d" % (RB, RB))
        a("buffer_load_dword v29, v%d, s[%d:%d], s74 offen sc1" % (RB, R_WS, R_WS+3))
    def extra_get():
        confirm(29, RB, 74, S_NONCE, 4)
        for k in range(8):
            a(bload(RING+4*k, 78)); a("s_add_u32 s78, s78, 8192")
        for k, off in enumerate((H_OFF, X1_OFF)):
            for T in range(2):
                a("s_add_u32 s46, s79, %d" % (off + 18432*T)); a(bload(RING+32+8*k+4*T, 46))
    a("s_lshl_b32 s62, s66, 16"); a("s_add_u32 s62, s62, s56"); a("s_mov_b32 s66, s65")
    for k in range(1, 8):
        r = SC(k); a("s_sub_u32 s%d, s51, %d" % (r, k)); a("s_and_b32 s%d, s%d, 7" % (r, r)); a("s_lshl_b32 s%d, s%d, 13" % (r, r)); a("s_add_u32 s%d, s%d, s69" % (r, r))
    CB = {1: ("v", ST), 2: ("v", RB+8), 3: ("v", RB+16), 4: ("v", RB+24), 5: ("v", RB+32), 6: ("v", RB+56), 7: ("v", RB+64)}
    def cload(k): return "\n".join(bload(CB[k][1]+4*p, SC(k), 1024*p, t=CB[k][0]) for p in range(2))
    def need(c, n):
        def f(): a("s_add_u32 s73, s%d, %d" % (S_NONCE, c)); confirm(31, 5, 70, 73, n)
        return f
    def add(acc, k, n):
        def f():
            if n < 63: a("s_waitcnt vmcnt(%d)" % n)
            for T in range(4): a(mfma(acc+4*T, SEL if T & 1 else SEL+2, CB[k][1]+4*(T >> 1), acc+4*T, tb=CB[k][0]))
        return f
    def load7(j): return {4: cload(1), 7: cload(2), 10: cload(3), 13: cload(4)}.get(j, "")
    def seq(*fs):
        def f():
            for x in fs: x()
        return f
    subpass(AC+16, pstore(AC), ring=RBB, depth=20, loads=load7, head=nxt,
            at={3: publish, 4: seq(need(4, 3), w3(extra_ask)), 17: ask_all})
    a.stamp("p6_s7")
    a("s_lshl_b32 s62, s66, 16"); a("s_add_u32 s62, s62, s56")
    SEv, EA = AC+16, AC+24
    g = G()
    g.lines += select(SEv, 51, 1)
    g("v_mul_u32_u24 v%d, 144, v%d" % (AC+20, V_R)); g("v_lshl_add_u32 v%d, v%d, 4, v%d" % (AC+20, V_G, AC+20))
    g.lines.append("s_lshr_b32 s66, s%d, 1\ns_lshl_b32 s66, s66, 6\ns_and_b32 s67, s%d, 1\ns_lshl_b32 s67, s67, 3\ns_add_u32 s66, s66, s67" % (S_WAVE, S_WAVE))
    g("v_add_u32 v%d, s66, v%d" % (AC+20, AC+20))
    g("v_lshrrev_b32 v%d, 3, v0" % EA); g("v_and_b32 v%d, 7, v0" % (EA+1)); g("v_lshlrev_b32 v%d, 4, v%d" % (EA+1, EA+1))
    g("v_mul_u32_u24 v%d, 144, v%d" % (AC+21, EA)); g("v_add_u32 v%d, v%d, v%d" % (AC+21, AC+21, EA+1))
    g("v_mul_u32_u24 v%d, 1152, v%d" % (AC+22, EA)); g("v_add_u32 v%d, v%d, v%d" % (AC+22, AC+22, EA+1))
    g("v_mul_u32_u24 v%d, 1152, v%d" % (AC+23, V_R)); g("v_lshl_add_u32 v%d, v%d, 4, v%d" % (AC+23, V_G, AC+23))
    def load8(j): return {9: cload(5), 12: cload(6), 17: cload(7)}.get(j, "")
    subpass(AC, pstore(AC+16) + g.lines, depth=63, loads=load8, head=nxt, c0=R3, at={9: need(5, 2), 10: add(AC, 1, 63), 12: add(AC, 2, 63), 14: seq(w3(extra_get), add(AC, 3, 63)), 16: add(AC, 4, 63)})
    a.stamp("p6_b")
    a.srd(R_A, S_OUT, ACT)
    a("s_cmp_lg_u32 s%d, 3" % S_WAVE); a("s_cbranch_scc1 L_p7_main")
    a("s_waitcnt vmcnt(2)")
    for k in range(8):
        a(mfma(EA, SEL+2, RING+4*k, None if k == 0 else EA, tb="a")); a(mfma(EA+4, SEL, RING+4*k, None if k == 0 else EA+4, tb="a"))
    for k in range(2):
        for T in range(2): a(mfma(EA+4*T, SEv, RING+32+8*k+4*T, EA+4*T, tb="a"))
    for T in range(2):
        for h in range(2): a("v_cvt_pk_bf16_f32 v%d, v%d, v%d" % (PK+2*T+h, EA+4*T+2*h, EA+4*T+2*h+1))
    a.label("L_p7_main")
    add(AC, 5, 2)()
    for k in (6, 7):
        base = CB[k][1]
        L = a.newlabel("Ltag")
        a("s_mov_b32 s47, 100000")
        if k == 7: a("s_waitcnt vmcnt(0)")
        a.label(L)
        a("v_max3_u32 v30, v%d, v%d, v%d" % (base, base+1, base+2)); a("v_max3_u32 v31, v%d, v%d, v%d" % (base+3, base+4, base+5))
        a("v_max3_u32 v30, v30, v%d, v%d" % (base+6, base+7)); a("v_max_u32 v30, v30, v31")
        a("v_cmp_eq_u32 vcc, -1, v30"); a("s_cbranch_vccz %s_x" % L)
        a(cload(k))
        a("s_waitcnt vmcnt(0)")
        a("s_sub_u32 s47, s47, 1"); a("s_cbranch_scc0 %s" % L)
        a.label(L + "_x")
        add(AC, k, 63)()
    a.stamp("p7_ready")
    a("s_cmp_lg_u32 s%d, 3" % S_WAVE); a("s_cbranch_scc1 L_p7_acc")
    for T in range(2):
        a("buffer_store_dwordx2 v[%d:%d], v%d, s[%d:%d], s61 offen" % (PK+2*T, PK+2*T+1, AC+23, R_A, R_A+3))
        a("s_add_u32 s61, s61, 18432")
    a.label("L_p7_acc")
    a("s_lshl_b32 s46, s51, 7"); a("s_add_u32 s46, s46, s60"); a("s_add_u32 s47, s46, 36864")
    for T in range(4):
        for h in range(2): a("v_cvt_pk_bf16_f32 v%d, v%d, v%d" % (R3+2*T+h, AC+4*T+2*h, AC+4*T+2*h+1))
        a("ds_write_b64 v%d, v[%d:%d] offset:%d" % (AC+20, R3+2*T, R3+2*T+1, 2304*T))
    a("s_waitcnt lgkmcnt(0)"); a("s_barrier")
    for p in range(2): a("ds_read_b128 v[%d:%d], v%d offset:%d" % (R3+8+4*p, R3+11+4*p, AC+21, 4608*p))
    for p in range(2):
        a("s_waitcnt lgkmcnt(%d)" % (1-p))
        a("buffer_store_dwordx4 v[%d:%d], v%d, s[%d:%d], s%d offen" % (R3+8+4*p, R3+11+4*p, AC+22, R_A, R_A+3, 46+p))
```

```python
from gen import *

NEG = 0xF149F2CA
SLEEP0 = dict(p2=0, p3=8, p4=0, p5=0, p6=18)
for _kv in os.environ.get('SLEEP', '').split(','):
    if _kv: SLEEP0[_kv.split('=')[0]] = int(_kv.split('=')[1])

W_LDS = 53248
AW1, AW2 = 40, 148
XT = 232
PA, PS, R_C = 244, (3, 27, 45), R_B

def pf_lds(i):
    gq, k = divmod(i, 9)
    pre = ("s_mul_i32 s58, s79, %d\ns_add_u32 s58, s58, s73\ns_add_u32 m0, s58, %d\n" % (gq, 1024*k)) if k == 0 or i == 2 else ""
    post = "\ns_add_u32 m0, m0, 1024" if k < 8 and i != 1 else ""
    return pre + "buffer_load_dwordx4 v%d, s[%d:%d], s%d offen sc1 lds" % (PA+k, R_C, R_C+3, PS[gq]) + post

def roles345(a):
    a("s_lshr_b32 s46, s%d, 3" % S_SLOT); a("s_lshl_b32 s74, s%d, 2" % S_XCD); a("s_add_u32 s74, s74, s46"); a("s_add_u32 s75, s%d, 6" % S_SLOT); a("s_and_b32 s75, s75, 7")
    a("s_lshl_b32 s76, s74, 2"); a("s_add_u32 s76, s76, s%d" % S_WAVE)

def phase2(a):
    KL_, VL_ = 0, 27648
    a("s_lshr_b32 s50, s%d, 1" % S_SLOT); a("s_and_b32 s51, s%d, 1" % S_SLOT); a("s_lshl_b32 s46, s%d, 1" % S_XCD); a("s_add_u32 s51, s51, s46")
    a("s_mul_i32 s52, s51, %d" % HPSZ)
    a("s_add_u32 s46, s52, %d" % K_OFF); a.srd_s(R_A, S_WS, HPSZ, 46)
    a("s_add_u32 s46, s52, %d" % V_OFF); a.srd_s(R_B, S_WS, HPSZ, 46)
    a("s_mul_i32 s46, s50, 9216"); a("s_sub_u32 s46, s46, 18432"); a("s_lshl_b32 s47, s%d, 10" % S_WAVE); a("s_add_u32 s46, s46, s47")
    a("v_add_u32 v10, s46, v%d" % V_L16)
    for i in range(1, 7): a("v_add_u32 v%d, %d, v10" % (10+i, 4096*i))
    a("s_lshl_b32 s46, s50, 3"); a("s_lshl_b32 s53, s%d, 1" % S_WAVE); a("s_add_u32 s53, s53, s46")
    a("s_mul_i32 s54, s53, 1152"); a("s_add_u32 s54, s54, s52"); a("s_add_u32 s54, s54, %d" % Q_OFF)
    a("v_lshlrev_b32 v18, 4, v%d" % V_R)
    a("s_mul_i32 s46, s%d, 2304" % S_WAVE)
    a("v_add_u32 v20, s46, v%d" % V_L16)
    a("s_add_u32 s47, s46, 2048"); a("v_add_u32 v21, s47, v18")
    a("s_add_u32 s47, s46, %d" % VL_); a("v_add_u32 v22, s47, v%d" % V_L16)
    a("v_lshl_add_u32 v23, v%d, 2, v%d" % (V_R, V_G)); a("s_add_u32 s47, s47, 2048"); a("v_lshl_add_u32 v23, v23, 4, s47")
    for i in range(4):
        a("v_lshl_add_u32 v24, v%d, 2, %d" % (V_G, i)); a("v_cmp_gt_u32 s[%d:%d], v24, v%d" % (60+2*i, 61+2*i, V_R))
    a("v_cmp_eq_u32 s[68:69], 0, v%d" % V_G)
    a("v_mov_b32 v25, 0x%x" % NEG)
    for r in range(4): a("v_mov_b32 v%d, -1" % (228+r))
    a("v_and_b32 v225, 31, v%d" % V_LANE); a("v_lshlrev_b32 v225, 2, v225")
    VLA = 0
    for r in range(36): a("v_accvgpr_write_b32 a%d, s%d" % (VLA+r, S_ONES))
    roles345(a)
    a("s_mul_i32 s46, s75, 110592"); a("s_mul_i32 s47, s%d, 27648" % S_WAVE); a("s_add_u32 s70, s46, s47"); a("s_add_u32 s70, s70, %d" % WO_S)
    a("s_add_u32 s71, s70, %d" % SW); a("s_add_u32 s72, s71, %d" % SW)
    a("s_cmp_ge_u32 s75, 6"); a("s_cbranch_scc1 L_p2_hs")
    a("s_add_u32 s73, s47, %d" % W_LDS); a("s_mov_b32 s79, 9216")
    for gq in range(3): a("s_add_u32 s%d, s70, %d" % (PS[gq], 9216*gq))
    for i in range(9): a("v_add_u32 v%d, %d, v%d" % (PA+i, 1024*i, V_L16))
    a("s_mov_b32 s10, s%d" % S_WS); a("s_mov_b32 s11, s%d" % (S_WS+1)); a("s_mov_b32 s26, %d" % WS_END)
    a("s_branch L_p2_hd")
    a.label("L_p2_hs")
    a("s_mov_b32 s71, 0x70000000")
    a("s_mul_i32 s47, s%d, 9216" % S_WAVE); a("s_add_u32 s73, s47, %d" % W_LDS); a("s_mov_b32 s79, 36864")
    a("s_lshl_b32 s48, s74, 1"); a("s_add_u32 s48, s48, s75"); a("s_sub_u32 s48, s48, 6"); a("s_mul_i32 s48, s48, 3")
    a("s_cmp_lt_u32 s48, 144"); a("s_cselect_b32 s10, s%d, s%d" % (S_W3, S_W4)); a("s_cselect_b32 s11, s%d, s%d" % (S_W3+1, S_W4+1))
    a("s_cselect_b32 s49, 1152, 0"); a("s_cselect_b32 s59, 0, 144"); a("s_mov_b32 s46, 1152"); a("s_cselect_b32 s78, 9216, s46")
    a("s_mov_b32 s26, %d" % BW)
    for gq in range(3):
        a("s_add_u32 s46, s48, %d" % gq); a("s_sub_u32 s46, s46, s59")
        a.sdiv(47, 56, 46, 18)
        a("s_cmp_eq_u32 s59, 0"); a("s_cselect_b32 s56, s56, s46")
        a("s_lshl_b32 s56, s56, 2"); a("s_add_u32 s56, s56, s%d" % S_WAVE); a("s_lshl_b32 s56, s56, 3"); a("s_mul_i32 s56, s56, s78")
        a("s_mul_i32 s47, s47, s49"); a("s_add_u32 s%d, s56, s47" % (PS[gq]))
    for i in range(9):
        a("v_add_u32 v24, %d, v%d" % (64*i, V_LANE)); a("v_mul_u32_u24 v26, 911, v24"); a("v_lshrrev_b32 v26, 16, v26")
        a("v_mul_u32_u24 v27, 72, v26"); a("v_sub_u32 v27, v24, v27"); a("v_mul_lo_u32 v26, v26, s78"); a("v_lshl_add_u32 v%d, v27, 4, v26" % (PA+i))
    a.label("L_p2_hd")
    a("v_mul_u32_u24 v7, 1152, v%d" % V_R); a("v_lshl_add_u32 v7, v%d, 4, v7" % V_G)
    a("s_mul_i32 s46, s76, 18432"); a("s_mul_i32 s47, s75, 192"); a("s_add_u32 s77, s46, s47")
    a("s_cmp_ge_u32 s75, 6"); a("s_cselect_b32 s77, 0x70000000, s77")
    L = a.newlabel("Lp2w")
    a("s_cmp_lg_u32 s%d, 0" % S_WAVE); a("s_cbranch_scc1 %s" % L)
    a("v_lshrrev_b32 v30, 2, v%d" % V_LANE); a("v_min_u32 v30, 2, v30"); a("v_add_u32 v30, s50, v30"); a("v_subrev_u32 v30, 2, v30"); a("v_max_i32 v30, 0, v30")
    a("v_bfe_u32 v31, v%d, 1, 1" % V_LANE); a("v_add_u32 v31, 1, v31"); a("v_cmp_gt_u32 vcc, 12, v%d" % V_LANE); a("v_cndmask_b32 v31, 0, v31, vcc")
    a("v_mul_u32_u24 v31, 576, v31"); a("v_and_b32 v32, 1, v%d" % V_LANE); a("v_mul_u32_u24 v32, 35, v32")
    a("s_mul_i32 s46, s51, 36"); a("v_add3_u32 v31, v31, v32, s46"); a("v_lshrrev_b32 v31, 7, v31")
    a("v_lshl_add_u32 v30, v30, 4, v31"); a("v_add_u32 v30, %d, v30" % F1)
    a.stamp("p2_setup")
    a.poll(30, 31, sleep0=SLEEP0["p2"])
    a.label(L)
    a("s_barrier")
    a("v_min_u32 v38, 53, v%d" % V_LANE); a("v_add_u32 v38, %d, v38" % FS); a("v_lshlrev_b32 v38, 7, v38")
    fsq = "buffer_load_dword v39, v38, s[%d:%d], 0 offen offset:%d sc1" % (R_WS, R_WS+3, FLAG0)
    a.stamp("p2_ready")
    QR = 26
    a("s_lshl_b32 s46, s%d, 10" % S_WAVE)
    for R, base in ((R_A, KL_), (R_B, VL_)):
        for i in range(7):
            Ls = a.newlabel("Lp2d")
            if i == 6: a("s_cmp_eq_u32 s%d, 3" % S_WAVE); a("s_cbranch_scc1 %s" % Ls)
            a("s_add_u32 m0, s46, %d" % (base + 4096*i))
            a("buffer_load_dwordx4 v%d, s[%d:%d], 0 offen sc1 lds" % (10+i, R, R+3))
            if i == 6: a.label(Ls)
        if R == R_A:
            a("buffer_load_dwordx4 v[%d:%d], v%d, s[%d:%d], s54 offen sc1" % (QR, QR+3, V_L16, R_WS, R_WS+3))
            a("buffer_load_dwordx4 v[%d:%d], v18, s[%d:%d], s54 offen offset:2048 sc1" % (QR+4, QR+7, R_WS, R_WS+3))
            a("buffer_load_dwordx4 v[%d:%d], v%d, s[%d:%d], s54 offen offset:1024 sc1" % (QR+8, QR+11, V_L16, R_WS, R_WS+3))
            a(fsq)
    a.srd(R_A, S_X, ACT)
    a("s_mov_b32 s%d, s10" % R_C); a("s_mov_b32 s%d, s11" % (R_C+1)); a("s_mov_b32 s%d, s26" % (R_C+2)); a("s_mov_b32 s%d, 0x20000" % (R_C+3))
    QF = 40
    a("s_waitcnt vmcnt(6)")
    for hd in range(2):
        for qt in range(2):
            q = QF + 12*hd + 6*qt
            for h in range(2): a("v_mov_b32 v%d, v%d" % (q+2+h, QR+8*hd+2*qt+h))
            a("v_cndmask_b32 v%d, 0, v%d, s[68:69]" % (q+hd, QR+4+2*qt+hd)); a("v_mov_b32 v%d, 0" % (q+1-hd))
            for h in range(2): a("v_mov_b32 v%d, v%d" % (q+4+h, q+h))
    MF, ML = 8, 12
    for i in range(4):
        a("v_cndmask_b32 v%d, v25, 0, s[%d:%d]" % (MF+i, 60+2*i, 61+2*i)); a("v_cndmask_b32 v%d, 0, v25, s[%d:%d]" % (ML+i, 60+2*i, 61+2*i))
    a("s_lshl_b32 s55, s50, 3"); a("s_lshl_b32 s46, s%d, 1" % S_WAVE); a("s_add_u32 s55, s55, s46"); a("s_sub_u32 s55, 16, s55")
    a("s_lshl_b32 s56, s2, 2"); a("s_add_u32 s56, s56, s%d" % S_WAVE); a("s_mul_i32 s56, s56, 5120"); a("s_min_u32 s56, s56, %d" % (WO_S - T_OFF - 5120)); a("s_add_u32 s56, s56, %d" % T_OFF)
    L = a.newlabel("Lfs")
    a("s_cmp_lg_u32 s%d, 0" % S_WAVE); a("s_cbranch_scc1 %s" % L)
    a("v_cmp_ne_u32 vcc, s%d, v39" % S_NONCE); a("s_cbranch_vccz %s" % L)
    a("v_lshrrev_b32 v38, 7, v38")
    a.poll(38, 39, sleep0=0)
    a.label(L)
    a("s_waitcnt vmcnt(6)"); a("s_barrier")
    a.stamp("p2_loaded")
    a("s_cmp_lt_u32 s50, 2"); a("s_cbranch_scc1 L_p2_edge")
    M, NM, CZ = 16, 216, 26
    KF = 64
    S2, P, VM = 136, 168, 184
    S1 = S2
    OM, OL, R_, OUT = 192, 200, 32, 208
    marks = "s_mov_b32 s46, %d\nbuffer_load_dword v224, v225, s[%d:%d], s46 offen sc1" % (FP_OFF, R_WS, R_WS+3)
    def prefetch():
        o = [pf_lds(i) for i in range(2, 27)]
        for jj in range(3): o.append("buffer_load_dwordx4 v[%d:%d], v7, s[%d:%d], s77 offen offset:%d" % (XT+4*jj, XT+4*jj+3, R_A, R_A+3, 64*jj))
        for sb, ab in ((71, AW1),):
            for i in range(27):
                pre = "s_add_u32 s59, s%d, %d\n" % (sb, 1024*i) if i % 4 == 0 else ""
                o.append(pre + "buffer_load_dwordx4 a[%d:%d], v%d, s[%d:%d], s59 offen offset:%d sc1" % (ab+4*i, ab+4*i+3, V_L16, R_WS, R_WS+3, 1024*(i & 3)))
        return o
    for edge in (0, 1):
      if edge: a.label("L_p2_edge")
      pf = prefetch()
      if "x_nopf" in ABL: pf = ["s_nop 0"]*55
      if "x_nomk" in ABL: pf = ["s_nop 0" if "store" in x else x for x in pf]
      if "x_now1" in ABL: pf = ["s_nop 0" if " a[" in x else x for x in pf]
      def take(n):
          o = pf[:n]; del pf[:n]; return o
      for head in range(2):
        def Q(qt, t): return QF + 12*head + 6*qt + 2*(t & 1)
        def K(t): return KF + 4*t
        def kread(m):
            o = ["ds_read_b128 v[%d:%d], v20 offset:%d" % (KF+8*m+2, KF+8*m+5, 2304*m + 1024*head)]
            if head == 0: o += ["ds_read_b64 v[%d:%d], v21 offset:%d" % (KF+8*m+6*b, KF+8*m+6*b+1, 2304*m + 8*b) for b in range(2)]
            return o
        def vleft(m): return "ds_read_b128 a[%d:%d], v23 offset:%d" % (VLA+4*m, VLA+4*m+3, 2304*m + 128*head)
        def vmain(m): return "ds_read_b128 v[%d:%d], v22 offset:%d" % (VM+4*(m & 1), VM+4*(m & 1)+3, 2304*m + 1024*head)
        def has(qt, t): return (t <= 16) if qt == 0 else (t >= 1)
        def mask(reg, qt, t):
            o = []
            for i in range(4):
                if t == qt: o.append("v_cndmask_b32 v%d, v25, v%d, s[%d:%d]" % (reg+i, reg+i, 60+2*i, 61+2*i))
                if t == 16+qt: o.append("v_cndmask_b32 v%d, v%d, v25, s[%d:%d]" % (reg+i, reg+i, 60+2*i, 61+2*i))
            return o
        def switch(t, moves):
            Ls = a.newlabel("Lsw")
            a("s_cmp_eq_u32 s55, %d" % t); a("s_cbranch_scc0 %s" % Ls)
            for x in moves: a(x)
            a.label(Ls)
        if head:
            L = a.newlabel("Lmk")
            a("s_cmp_lg_u32 s%d, 0" % S_WAVE); a("s_cbranch_scc1 %s_x" % L)
            a("s_mov_b32 s47, 100000"); a("s_waitcnt vmcnt(%d)" % (npf0 - len(pf)))
            a.label(L)
            a("v_cmp_ne_u32 vcc, s%d, v224" % S_NONCE)
            a("s_cbranch_vccz %s_x" % L)
            a("s_sleep 2"); a(marks); a("s_waitcnt vmcnt(0)")
            a("s_sub_u32 s47, s47, 1"); a("s_cbranch_scc0 %s" % L)
            a.label(L + "_x")
            a("s_waitcnt vmcnt(20)"); a("s_barrier")
            publish2(a, 224)
        AH = 3
        for m in range(AH):
            for x in kread(m): a(x)
        a("v_mov_b32 v%d, v25" % M); a("v_mov_b32 v%d, v25" % (M+1))
        if edge:
            for i in range(4): a("v_mov_b32 v%d, v25" % (CZ+i))
        def c1(qt, t): return CZ if edge else MF if t == qt else ML if t == 16+qt else None
        def maxes(t):
            o = []
            for qt in range(2):
                if not has(qt, t): continue
                s = S1 + 8*(t % 3) + 4*qt
                if edge: o += mask(s, qt, t)
                o.append("v_max3_f32 v%d, v%d, v%d, v%d" % (M+qt, s, s+1, M+qt))
            for qt in range(2):
                if not has(qt, t): continue
                s = S1 + 8*(t % 3) + 4*qt
                o.append("v_max3_f32 v%d, v%d, v%d, v%d" % (M+qt, s+2, s+3, M+qt))
            return o
        for t in range(18):
            if t % 2 == 0:
                if edge: switch(t, ["v_mov_b32 v%d, 0" % (CZ+i) for i in range(4)])
                a("s_waitcnt lgkmcnt(%d)" % (len(kread(0))*min(AH-1, 8 - t//2)))
            ms = [mfma(S1+8*(t % 3)+4*qt, K(t), Q(qt, t), c1(qt, t)) for qt in range(2) if has(qt, t)]
            fill = (kread(t//2+AH) if t % 2 == 0 and t//2+AH < 9 else []) + (maxes(t-2) if t >= 2 else []) + (take(1) if t % 3 == 1 and head else [])
            interleave(a, ms, fill)
        if head == 0:
            a("s_waitcnt vmcnt(%d)" % (55 - len(pf))); a("s_barrier")
            for q in range(5):
                if q == 4: a("s_add_u32 s56, s56, 4096")
                if "x_nomk" not in ABL: a("buffer_store_dwordx4 v[228:231], v%d, s[%d:%d], s56 offen offset:%d sc1" % (V_L16, R_WS, R_WS+3, 1024*(q & 3)))
            npf0 = len(pf); a(marks)
        a("s_mov_b32 exec_lo, 0x00030003"); a("s_mov_b32 exec_hi, 0x00030003")
        for m in range(9): a(vleft(m))
        a("s_mov_b64 exec, -1")
        a(vmain(0))
        for x in maxes(16) + maxes(17): a(x)
        for sw in ("v_permlane32_swap_b32", "v_permlane16_swap_b32"):
            for qt in range(2): a("v_mov_b32 v%d, v%d" % (30+qt, M+qt))
            for qt in range(2): a("%s v%d, v%d" % (sw, M+qt, 30+qt))
            for qt in range(2): a("v_max_f32 v%d, v%d, v%d" % (M+qt, M+qt, 30+qt))
        negs = ["v_sub_f32 v%d, 0, v%d" % (NM+4*qt+i, M+qt) for qt in range(2) for i in range(4)]
        if edge:
            for i in range(8): a("v_mov_b32 v%d, v25" % (NM+i))
        else:
            for x in negs: a(x)
        def qk(m):
            return [mfma(S2+16*(m & 1)+8*qt+4*b, K(2*m+b), Q(qt, b), NM+4*qt) for qt in range(2) for b in range(2) if has(qt, 2*m+b)]
        def pv(m):
            o = []
            for qt in range(2):
                p = P+8*(m & 1)+4*qt
                o.append(mfma(OM+4*qt, VM+4*(m & 1), p, None if m == 0 else OM+4*qt))
                o.append(mfma(OL+4*qt, VLA+4*m, p, None if m == 0 else OL+4*qt, ta="a"))
            return o
        for x in qk(0): a(x)
        for m in range(9):
            if edge and m < 8: switch(2*m+2, negs)
            mf = (qk(m+1) if m < 8 else []) + (pv(m-1) if m else [])
            va = []
            ld = take(3 if (m % 3 or head == 0) else 2)
            for qt in range(2):
                p = P+8*(m & 1)+4*qt
                for b in range(2):
                    s = S2+16*(m & 1)+8*qt+4*b
                    if has(qt, 2*m+b):
                        va += mask(s, qt, 2*m+b)
                        va += ["v_exp_f32 v%d, v%d" % (s+i, s+i) for i in range(4)]
                    if ld and (b == 0 or qt == 0): va.append(ld.pop(0))
                for b in range(2):
                    s = S2+16*(m & 1)+8*qt+4*b
                    if has(qt, 2*m+b):
                        va += ["v_cvt_pk_bf16_f32 v%d, v%d, v%d" % (p+2*b+h, s+2*h, s+2*h+1) for h in range(2)]
                    else:
                        va += ["v_mov_b32 v%d, 0" % (p+2*b+h) for h in range(2)]
            if m: a("s_waitcnt lgkmcnt(1)")
            interleave(a, mf, va)
            if m < 8: a(vmain(m+1))
        a("s_waitcnt lgkmcnt(0)")
        for x in pv(8): a(x)
        if head == 1:
            assert not pf
            a("s_mul_i32 s54, s53, 18432"); a("s_add_u32 s54, s54, %d" % O_OFF)
            a("s_lshl_b32 s46, s51, 10"); a("s_add_u32 s58, s46, s54"); a("s_add_u32 s59, s58, 18432")
            a("s_lshr_b32 s46, s51, 3"); a("s_add_u32 s46, s46, 16"); a("s_lshl_b32 s46, s46, 10"); a("s_add_u32 s54, s54, s46")
            a("s_and_b32 s46, s51, 7"); a("s_lshr_b32 s46, s46, 1"); a("s_lshl_b32 s46, s46, 8"); a("s_add_u32 s54, s54, s46")
            a("s_and_b32 s46, s51, 1"); a("s_lshl_b32 s46, s46, 3"); a("s_add_u32 s54, s54, s46"); a("s_add_u32 s47, s54, 18432")
        for qt in range(2): a("v_rcp_f32 v%d, v%d" % (30+qt, OL+4*qt+3))
        for qt in range(2):
            for i in range(4): a("v_mul_f32 v%d, v%d, v%d" % (OM+4*qt+i, OM+4*qt+i, 30+qt))
            for i in range(2): a("v_mul_f32 v%d, v%d, v%d" % (OL+4*qt+i, OL+4*qt+i, 30+qt))
        for qt in range(2):
            for h in range(2): a("v_cvt_pk_bf16_f32 v%d, v%d, v%d" % (OUT+4*qt+2*head+h, OM+4*qt+2*h, OM+4*qt+2*h+1))
            a("v_cvt_pk_bf16_f32 v%d, v%d, v%d" % (R_+2*qt+head, OL+4*qt, OL+4*qt+1))
      if not edge: a("s_branch L_p2_out")
    a.label("L_p2_out")
    a("buffer_store_dwordx4 v[%d:%d], v%d, s[%d:%d], s58 offen sc1" % (OUT, OUT+3, V_L16, R_WS, R_WS+3))
    a("buffer_store_dwordx4 v[%d:%d], v%d, s[%d:%d], s59 offen sc1" % (OUT+4, OUT+7, V_L16, R_WS, R_WS+3))
    a("s_mov_b64 exec, 0xffff")
    a("buffer_store_dwordx2 v[%d:%d], v%d, s[%d:%d], s54 offen sc1" % (R_, R_+1, V_L16, R_WS, R_WS+3))
    a("buffer_store_dwordx2 v[%d:%d], v%d, s[%d:%d], s47 offen sc1" % (R_+2, R_+3, V_L16, R_WS, R_WS+3))
    a("s_mov_b64 exec, -1")
    a.stamp("p2_done")
    if a.stop == 2:
        a("s_waitcnt vmcnt(0)")

C0 = -2.0*math.log2(math.e)*math.sqrt(2/math.pi)
C1 = C0*0.044715

def gelu_pk(a, regs, t, sc):
    for k, r in enumerate(regs): a("v_pk_mul_f32 v[%d:%d], v[%d:%d], v[%d:%d]" % (t+2*k, t+2*k+1, r, r+1, r, r+1))
    for k, r in enumerate(regs): a("v_pk_fma_f32 v[%d:%d], v[%d:%d], s[%d:%d], s[%d:%d] op_sel:[0,0,1] op_sel_hi:[1,0,1]" % (t+2*k, t+2*k+1, t+2*k, t+2*k+1, sc, sc+1, sc, sc+1))
    for k, r in enumerate(regs): a("v_pk_mul_f32 v[%d:%d], v[%d:%d], v[%d:%d]" % (t+2*k, t+2*k+1, t+2*k, t+2*k+1, r, r+1))
    for k in range(2*len(regs)): a("v_exp_f32 v%d, v%d" % (t+k, t+k))
    for k, r in enumerate(regs): a("v_pk_add_f32 v[%d:%d], v[%d:%d], 1.0 op_sel_hi:[1,0]" % (t+2*k, t+2*k+1, t+2*k, t+2*k+1))
    for k in range(2*len(regs)): a("v_rcp_f32 v%d, v%d" % (t+k, t+k))
    for k, r in enumerate(regs): a("v_pk_mul_f32 v[%d:%d], v[%d:%d], v[%d:%d]" % (r, r+1, r, r+1, t+2*k, t+2*k+1))

def stats_loads(a, off, stile, vt):
    a("v_lshlrev_b32 v%d, 3, v%d" % (vt+4, V_LANE))
    a("v_add_u32 v%d, 512, v%d" % (vt+5, vt+4)); a("v_cmp_gt_u32 vcc, 32, v%d" % V_LANE); a("v_mov_b32 v%d, 0x7fffffff" % vt)
    a("v_cndmask_b32 v%d, v%d, v%d, vcc" % (vt+5, vt, vt+5))
    a("s_mul_i32 s46, s%d, 768" % stile); a("s_add_u32 s46, s46, %d" % off)
    return ["buffer_load_dwordx2 v[%d:%d], v%d, s[%d:%d], s46 offen sc1" % (vt+2*k, vt+2*k+1, vt+4+k, R_WS, R_WS+3) for k in range(2)]

def stats_finish(a, vt, vmean, vrstd):
    a("v_add_f32 v%d, v%d, v%d" % (vt, vt, vt+2)); a("v_add_f32 v%d, v%d, v%d" % (vt+1, vt+1, vt+3))
    for sw in ("v_permlane32_swap_b32", "v_permlane16_swap_b32"):
        for k in range(2): a("v_mov_b32 v%d, v%d" % (vt+2+k, vt+k))
        for k in range(2): a("%s v%d, v%d" % (sw, vt+k, vt+2+k))
        for k in range(2): a("v_add_f32 v%d, v%d, v%d" % (vt+k, vt+k, vt+2+k))
    a("s_mov_b32 s47, %d" % f32(1.0/576))
    a("v_mul_f32 v%d, s47, v%d" % (vmean, vt)); a("v_mul_f32 v%d, v%d, v%d" % (vt, vmean, vmean))
    a("v_fma_f32 v%d, v%d, s47, -v%d" % (vt+1, vt+1, vt)); a("v_max_f32 v%d, 0, v%d" % (vt+1, vt+1))
    a("v_add_f32 v%d, %d, v%d" % (vt, f32(1e-5), vt+1)); a("v_rsq_f32 v%d, v%d" % (vrstd, vt))

def norm_ops(x, vs, vb, t):
    o = []
    for r in range(4):
        o.append("v_lshlrev_b32 v%d, 16, v%d" % (t+2*r, x+r)); o.append("v_and_b32 v%d, 0xffff0000, v%d" % (t+2*r+1, x+r))
    for r in range(8): o.append("v_fma_f32 v%d, v%d, v%d, v%d" % (t+r, t+r, vs, vb))
    for r in range(4): o.append("v_cvt_pk_bf16_f32 v%d, v%d, v%d" % (x+r, t+2*r, t+2*r+1))
    return o

def out_stats(a, pk, n, vt, off):
    a("v_mov_b32 v%d, 0" % vt); a("v_mov_b32 v%d, 0" % (vt+1))
    for r in range(n):
        a("v_dot2c_f32_bf16 v%d, s%d, v%d" % (vt, S_ONES, pk+r)); a("v_dot2c_f32_bf16 v%d, v%d, v%d" % (vt+1, pk+r, pk+r))
    for sw in ("v_permlane32_swap_b32", "v_permlane16_swap_b32"):
        for k in range(2): a("v_mov_b32 v%d, v%d" % (vt+2+k, vt+k))
        for k in range(2): a("%s v%d, v%d" % (sw, vt+k, vt+2+k))
        for k in range(2): a("v_add_f32 v%d, v%d, v%d" % (vt+k, vt+k, vt+2+k))
    a("s_mul_i32 s46, s53, 6"); a("s_add_u32 s46, s46, s51"); a("s_lshl_b32 s46, s46, 7"); a("s_add_u32 s46, s46, %d" % off)
    a("v_lshlrev_b32 v%d, 3, v%d" % (vt+2, V_LANE))
    a("s_mov_b64 exec, 0xffff")
    a("buffer_store_dwordx2 v[%d:%d], v%d, s[%d:%d], s46 offen sc1" % (vt, vt+1, vt+2, R_WS, R_WS+3))
    a("s_mov_b64 exec, -1")

AF, ACC, WB, HK, VMEAN, VRSTD = 64, 136, 160, 40, 52, 53
OS = WB

def tag_ops(regs, t):
    o = []; regs = list(regs)
    o.append("v_max3_u32 v%d, v%d, v%d, v%d" % (t, regs[0], regs[1], regs[2])); regs = regs[3:]
    while len(regs) >= 2: o.append("v_max3_u32 v%d, v%d, v%d, v%d" % (t, t, regs[0], regs[1])); regs = regs[2:]
    if regs: o.append("v_max_u32 v%d, v%d, v%d" % (t, t, regs[0]))
    return o + ["v_cmp_eq_u32 vcc, -1, v%d" % t]

def tag_branch(a, loads, regs, t, again=(), drain=False):
    L = a.newlabel("Ltg")
    a("s_cbranch_vccnz %s" % L)
    a.label(L + "_b")
    st = [L + ":"] + "\n".join(loads).split("\n") + ["s_waitcnt vmcnt(0)"] + tag_ops(regs, t)
    st += ["s_sub_u32 s79, s79, 1", "s_cbranch_scc1 %s_b" % L, "s_cbranch_vccnz %s" % L]
    st += list(again) + (["s_waitcnt vmcnt(0)"] if drain and again else []) + ["s_branch %s_b" % L]
    a.stubs += st

UP = 8
NE = 12
def wpos(layout, b):
    if layout is None: return W_LDS//1024 + b
    w, i = divmod(b, 27)
    return layout[0] + NE*w + i if i < NE else layout[1] + (27-NE)*w + i - NE

def gemm96(a, loads, stage, delay, pre=(), each=None, stamp=None, extra=(), layout=None, early=(), before=None, after=None):
    a("s_waitcnt vmcnt(20)")
    a("s_barrier")
    nv = sum("buffer_load" in x for x in stage)
    n1 = len(stage) if nv else len(stage)//3
    for x in stage[:n1]: a(x)
    if delay: a("s_sleep %d" % delay)
    a("s_mov_b32 s79, 50000")
    a.stamp(stamp + "_ready")
    for x in pre: a(x)
    interleave(a, loads[:UP], stage[n1:])
    a("s_waitcnt vmcnt(%d) lgkmcnt(0)" % (UP + len(pre)))
    if before: before(a)
    a("s_barrier")
    def wr(j):
        o = []
        for t in range(6):
            q, r = divmod(wpos(layout, 18*t + j), 64)
            o.append("ds_read_b128 v[%d:%d], v%d offset:%d" % (WB+24*(j % 3)+4*t, WB+24*(j % 3)+4*t+3, (V_L16, 5, 6)[q], 1024*r))
        return o
    for x in early: a(x)
    if each: each(lambda: [a(x) for x in wr(0) + wr(1)])
    else:
        for x in wr(0) + wr(1): a(x)
    a("s_waitcnt vmcnt(%d)" % (UP-1))
    fr = lambda j: range(AF+4*j, AF+4*j+4)
    for x in tag_ops(fr(0), 30): a(x)
    tag_branch(a, [loads[0]], fr(0), 30, loads[1:UP])
    if after: after(a)
    for j in range(18):
        ex = lambda q: min(len(extra), max(0, (q-9)*len(extra)//8))
        issued = min(18, UP+j) + ex(j)
        a("s_waitcnt vmcnt(%d) lgkmcnt(%d)" % (issued - 1 - min(j+1, 17), 6 if j < 17 else 0))
        if j in (0, 9): a.stamp(stamp + "_k%d" % j)
        ms = [mfma(ACC+4*t, WB+24*(j % 3)+4*t, AF+4*j, None if j == 0 else ACC+4*t) for t in range(6)]
        fill = ([loads[UP+j]] if UP+j < 18 else []) + (tag_ops(fr(j+1), 30) if j < 17 else []) + (wr(j+2) if j < 16 else []) + list(extra[ex(j):ex(j+1)])
        interleave(a, ms, fill)
        if j < 17: tag_branch(a, [loads[j+1]], fr(j+1), 30, loads[j+2:UP+j+1], drain=ex(j+1) > 0)

FP2Q = "s_mov_b32 s46, %d\nbuffer_load_dwordx4 v[16:19], v%d, s[%d:%d], s46 offen sc1" % (FP2_OFF, V_L16, R_WS, R_WS+3)

def marks2(a):
    L = a.newlabel("Lm2")
    a("s_cmp_lg_u32 s%d, 0" % S_WAVE); a("s_cbranch_scc1 %s_x" % L)
    a("s_mov_b32 s47, 100000")
    a.label(L)
    for r in range(4): a("v_xor_b32 v%d, s%d, v%d" % (16+r, S_NONCE, 16+r))
    a("v_or3_b32 v16, v16, v17, v18"); a("v_or_b32 v16, v16, v19"); a("v_cmp_ne_u32 vcc, 0, v16"); a("s_cbranch_vccz %s_x" % L)
    a(FP2Q); a("s_waitcnt vmcnt(0)")
    a("s_sub_u32 s47, s47, 1"); a("s_cbranch_scc0 %s" % L)
    a.label(L + "_x")

def publish2(a, vt):
    L = a.newlabel("Lmp"); a("s_cmp_lg_u32 s%d, 0" % S_WAVE); a("s_cbranch_scc1 %s" % L); a.set_mark(vt, FP2_OFF); a.label(L)

def wflags(a, first, va, vd):
    a("s_mul_i32 s46, s65, 18"); a("s_add_u32 s46, s46, %d" % (FS + first))
    a("v_min_u32 v%d, 17, v%d" % (va, V_LANE)); a("v_add_u32 v%d, s46, v%d" % (va, va)); a("v_lshlrev_b32 v%d, 7, v%d" % (va, va))
    a("buffer_load_dword v%d, v%d, s[%d:%d], 0 offen offset:%d sc1" % (vd, va, R_WS, R_WS+3, FLAG0))

def phase345(a):
    a("s_mov_b32 s50, s74"); a("s_mov_b32 s51, s75"); a("s_mov_b32 s53, s76")
    a("s_cmp_ge_u32 s51, 6"); a("s_cbranch_scc1 L_p3_helper")
    a("v_add_u32 v5, 65536, v%d" % V_L16); a("v_add_u32 v6, 131072, v%d" % V_L16)
    a("s_mul_i32 s46, s%d, %d" % (S_WAVE, 1024*NE)); a("v_add_u32 v7, s46, v%d" % V_L16)
    a("s_mul_i32 s46, s%d, %d" % (S_WAVE, 1024*(27-NE))); a("v_add_u32 v8, s46, v%d" % V_L16)
    a("v_add_u32 v62, %d, v7" % (112*1024)); a("v_add_u32 v63, %d, v8" % (52*1024))
    LAY4, LAY5 = (0, 52), (112, 0)
    a("s_mul_i32 s54, s53, 18432")
    a("s_mul_i32 s55, s51, 3072"); a("s_add_u32 s55, s55, s54")
    a("v_lshlrev_b32 v9, 7, v%d" % V_LANE)
    a("s_lshl_b32 s46, s51, 2"); a("s_add_u32 s46, s46, s%d" % S_WAVE); a("s_mul_i32 s46, s46, 3072"); a("s_mul_i32 s78, s50, 73728"); a("s_add_u32 s78, s78, s46")
    def w2(i0, i1):
        return [("s_add_u32 s59, s72, %d\n" % (1024*(i & ~3)) if (i % 4 == 0 or i == i0) else "") +
                "buffer_load_dwordx4 a[%d:%d], v%d, s[%d:%d], s59 offen offset:%d sc1" % (AW2+4*i, AW2+4*i+3, V_L16, R_WS, R_WS+3, 1024*(i & 3)) for i in range(i0, i1)]
    def park(ab, lay, late):
        if late: return ["ds_write_b128 v%d, a[%d:%d] offset:%d" % (63 if lay[1] else 8, ab+4*i, ab+4*i+3, 1024*(i - NE)) for i in range(NE, 27)]
        return ["ds_write_b128 v%d, a[%d:%d] offset:%d" % (62 if lay[0] else 7, ab+4*i, ab+4*i+3, 1024*i) for i in range(NE)]
    def aloads(off):
        for q in range(5): a("s_add_u32 s%d, s54, %d" % (60+q, off + 4096*q))
        return ["buffer_load_dwordx4 v[%d:%d], v%d, s[%d:%d], s%d offen offset:%d sc1" % (AF+4*j, AF+4*j+3, V_L16, R_WS, R_WS+3, 60+(j >> 2), 1024*(j & 3)) for j in range(18)]
    def ostores(src, off):
        a("s_add_u32 s46, s55, %d" % off)
        for jj in range(3): a("buffer_store_dwordx4 v[%d:%d], v%d, s[%d:%d], s46 offen offset:%d sc1" % (src+4*jj, src+4*jj+3, V_L16, R_WS, R_WS+3, 1024*jj))
    a("s_lshl_b32 s46, s53, 4"); a("v_add_u32 v20, s46, v%d" % V_R); a("s_mov_b32 s47, 18432")
    for k, sh in enumerate((1, -1, 2, -2)):
        a("v_subrev_u32 v21, %d, v20" % sh); a("v_ashrrev_i32 v22, 4, v21"); a("v_mul_lo_u32 v22, v22, s47")
        a("v_and_b32 v21, 15, v21"); a("v_lshl_add_u32 v21, v%d, 4, v21" % V_G); a("v_lshl_add_u32 v%d, v21, 4, v22" % (56+k))
    a("v_cmp_gt_u32 vcc, 32, v%d" % V_LANE); a("v_cndmask_b32 v60, v57, v56, vcc"); a("v_cndmask_b32 v61, v59, v58, vcc")
    N2 = int(os.environ.get("N2", 0))
    n3 = max(N2, NE)
    gemm96(a, aloads(O_OFF), [pf_lds(0), pf_lds(1)] + w2(0, N2), SLEEP0["p3"] if N2 < 8 else 0, stamp="p3", extra=w2(N2, n3), early=park(AW1, LAY4, False))
    a.stamp("p3_gemm")
    a(FP2Q)
    a("s_mov_b32 s46, 0x00003f80"); a("s_mov_b32 s47, 0x3f800000")
    for t in range(6):
        for i in range(4): a("v_dot2c_f32_bf16 v%d, s%d, v%d" % (ACC+4*t+i, 46+(i & 1), XT+4*(t >> 1)+2*(t & 1)+(i >> 1)))
    for k in range(12): a("v_cvt_pk_bf16_f32 v%d, v%d, v%d" % (HK+k, ACC+2*k, ACC+2*k+1))
    ostores(HK, H_OFF)
    out_stats(a, HK, 12, 10, SH_OFF)
    a.stamp("p3_epi")
    if a.stop == 3: a("s_waitcnt vmcnt(0)"); a("s_branch L_fin")
    for r in range(4): a("v_mov_b32 v%d, s%d" % (20+r, S_ONES))
    cs = [mfma(WB+4*(i//9), AW1+4*i, 20, None if i % 9 == 0 else WB+4*(i//9), ta="a") for i in range(27)]
    a("s_mul_i32 s46, s%d, 192" % S_WAVE); a("s_add_u32 s46, s46, %d" % (48*1024)); a("v_lshl_add_u32 v24, v%d, 4, s46" % V_G)
    g = G(); interleave(g, [cs[(i % 3)*9 + i//3] for i in range(27)], park(AW1, LAY4, True))
    st4 = g.lines
    st4 += ["s_nop 7"] + ["ds_write_b128 v24, v[%d:%d] offset:%d" % (WB+4*k, WB+4*k+3, 64*k) for k in range(3)]
    CS = 232
    sl = stats_loads(a, SH_OFF, 53, 10); a("s_mov_b32 s65, s46"); sl = [x.replace("s46", "s65") for x in sl]
    def fin4(wreads):
        a("v_lshlrev_b32 v24, 4, v%d" % V_G)
        for k in range(12): a("ds_read_b128 v[%d:%d], v24 offset:%d" % ((CS if k % 2 == 0 else ACC)+4*(k//2), (CS if k % 2 == 0 else ACC)+4*(k//2)+3, 48*1024 + 64*k))
        wreads()
        a("s_waitcnt vmcnt(%d)" % UP)
        for x in tag_ops(range(10, 14), 30): a(x)
        tag_branch(a, sl, range(10, 14), 30, al4[:UP])
        stats_finish(a, 10, VMEAN, VRSTD)
        a("v_mul_f32 v12, v%d, v%d" % (VRSTD, VRSTD)); a("v_mul_f32 v12, v12, v11"); a("v_add_f32 v12, %d, v12" % f32(1e-5))
        a("v_rsq_f32 v12, v12"); a("v_mul_f32 v16, v12, v%d" % VRSTD); a("v_mul_f32 v17, v16, -v%d" % VMEAN)
        a("s_waitcnt lgkmcnt(12)")
        for k in range(12): a("v_pk_add_f32 v[%d:%d], v[%d:%d], v[%d:%d]" % (CS+2*k, CS+2*k+1, CS+2*k, CS+2*k+1, ACC+2*k, ACC+2*k+1))
        for k in range(12): a("v_pk_mul_f32 v[%d:%d], v[%d:%d], v[16:17] op_sel:[0,1] op_sel_hi:[1,1]" % (CS+2*k, CS+2*k+1, CS+2*k, CS+2*k+1))
    if "d_mid" in ABL: a("s_sleep 64")
    al4 = aloads(H_OFF)
    gemm96(a, al4, st4, SLEEP0["p4"], pre=sl, each=fin4, stamp="p4", extra=w2(n3, 27), layout=LAY4, before=marks2)
    a.stamp("p4_gemm")
    a("s_mov_b32 s48, %d" % f32(C1)); a("s_mov_b32 s49, %d" % f32(C0))
    for k in range(12): a("v_pk_fma_f32 v[%d:%d], v[%d:%d], v[16:17], v[%d:%d] op_sel_hi:[1,0,1]" % (ACC+2*k, ACC+2*k+1, ACC+2*k, ACC+2*k+1, CS+2*k, CS+2*k+1))
    g = G(); gelu_pk(g, [ACC+2*k for k in range(12)], AF, 48)
    interleave(a, g.lines, park(AW2, LAY5, False))
    for k in range(12): a("v_cvt_pk_bf16_f32 v%d, v%d, v%d" % (OS+k, ACC+2*k, ACC+2*k+1))
    ostores(OS, T_OFF)
    a.stamp("p4_epi")
    if a.stop == 4: a("s_waitcnt vmcnt(0)"); a("s_branch L_fin")
    a.srd(R_A, S_WS, ACT, T_OFF)
    for q in range(5): a("s_mov_b32 s%d, %d" % (70+q, 4096*q))
    def vsel(j): return 56 if j < 4 else 60 if j == 4 else 57 if j < 9 else 58 if j < 13 else 61 if j == 13 else 59
    tl = ["buffer_load_dwordx4 v[%d:%d], v%d, s[%d:%d], s%d offen offset:%d sc1" % (AF+4*j, AF+4*j+3, vsel(j), R_A, R_A+3, 70+(j >> 2), 1024*(j & 3)) for j in range(18)]
    roles6(a)
    wflags(a, 54, 54, 55)
    a("s_waitcnt vmcnt(4)")
    gemm96(a, tl, park(AW2, LAY5, True), SLEEP0["p5"], stamp="p5", layout=LAY5)
    a.stamp("p5_gemm")
    a("v_mul_f32 v17, v%d, -v%d" % (VRSTD, VMEAN))
    for k in range(12):
        a("v_lshlrev_b32 v20, 16, v%d" % (HK+k)); a("v_and_b32 v21, 0xffff0000, v%d" % (HK+k))
        a("v_fma_f32 v20, v20, v%d, v17" % VRSTD); a("v_fma_f32 v21, v21, v%d, v17" % VRSTD)
        a("v_pk_add_f32 v[%d:%d], v[%d:%d], v[20:21]" % (ACC+2*k, ACC+2*k+1, ACC+2*k, ACC+2*k+1))
    for k in range(12): a("v_cvt_pk_bf16_f32 v%d, v%d, v%d" % (OS+k, ACC+2*k, ACC+2*k+1))
    ostores(OS, X1_OFF)
    out_stats(a, OS, 12, 10, SX_OFF)
    a.stamp("p5_epi")
    a("s_branch L_p5_pre")
    a.label("L_p3_helper")
    if "d_h3" in ABL: a("s_sleep 64")
    a("s_barrier")
    a(pf_lds(0)); a(pf_lds(1))
    swizzle_setup(a)
    a("s_add_u32 s48, s48, 54")
    for p in range(3):
        sw_big(a, 48, 60+3*p)
        a("s_lshl_b32 s53, s52, 10"); a("s_add_u32 s%d, s%d, s53" % (60+3*p, 60+3*p)); a("s_add_u32 s%d, s48, %d" % (62+3*p, FS))
        a("s_add_u32 s48, s48, 1")
    a("s_lshl_b32 s48, s74, 1"); a("s_add_u32 s48, s48, s75"); a("s_add_u32 s48, s48, %d" % (54 + 192 - 6))
    sw_issue(a, 48, 3, 0)
    a("s_waitcnt vmcnt(9)"); a("s_barrier")
    for p in range(3): sw_process(a, p, W_LDS + 36864*p)
    a("s_barrier")
    a("s_add_u32 s49, s48, 64"); a("s_cmp_lt_u32 s49, 342"); a("s_cselect_b32 s48, s49, s48"); sw_issue(a, 48, 4, W_LDS)
    a("s_waitcnt vmcnt(9)"); a("s_barrier")
    sw_flags(a, range(3))
    a.stamp("h_w3")
    sw_process(a, 3, 0)
    a("s_waitcnt vmcnt(9)"); a("s_barrier")
    sw_process(a, 4, W_LDS)
    a("s_waitcnt vmcnt(0)"); a("s_barrier")
    sw_flags(a, (3, 4))
    a.stamp("h_w4")
    roles6(a)
    wflags(a, 54, 54, 55)
    a(FP2Q)
    a("s_waitcnt vmcnt(0)")
    marks2(a)
    a.label("L_p5_pre")
    a.label("L_p5_done")
    a.stamp("p5_done")

WFL = os.environ.get("WFL", " sc1")
OFL = os.environ.get("OFL", "")
LCH = int(os.environ.get('LCH', 1))
RING = 184

def roles6(a):
    L = LCH
    a("s_lshr_b32 s46, s%d, %d" % (S_XCD, 3-L)); a("s_lshl_b32 s64, s46, %d" % (5-L)); a("s_lshr_b32 s67, s%d, %d" % (S_SLOT, L)); a("s_add_u32 s64, s64, s67")
    a("s_and_b32 s67, s67, 7")
    a("s_mov_b32 s67, 0")
    a("s_and_b32 s46, s%d, %d" % (S_XCD, (8 >> L) - 1)); a("s_lshl_b32 s65, s46, %d" % L); a("s_and_b32 s46, s%d, %d" % (S_SLOT, (1 << L) - 1)); a("s_add_u32 s65, s65, s46")
    a("s_lshl_b32 s46, s65, 2"); a("s_add_u32 s46, s46, s%d" % S_WAVE); a("s_mul_i32 s66, s46, %d" % (9*18432)); a("s_add_u32 s66, s66, %d" % W3_S)

def wload(j, s=58, ring=("a", RING)):
    o = "s_add_u32 s%d, s%d, 4096\n" % (s, s) if (j and j % 4 == 0) else ""
    return o + ("buffer_load_dwordx4 %s[%d:%d], v%d, s[%d:%d], s%d offen offset:%d" + WFL) % (ring[0], ring[1]+4*j, ring[1]+4*j+3, V_L16, R_WS, R_WS+3, s, 1024*(j & 3))

def ring_prefill(a, s):
    a("s_mul_i32 s%d, s67, 18432" % s); a("s_add_u32 s%d, s%d, s66" % (s, s))
    return [wload(j, s) for j in range(18)]

def norm_pk(x, vs, t):
    o = []
    for r in range(4):
        o.append("v_lshlrev_b32 v%d, 16, v%d" % (t+2*r, x+r)); o.append("v_and_b32 v%d, 0xffff0000, v%d" % (t+2*r+1, x+r))
    for r in range(4): o.append("v_pk_fma_f32 v[%d:%d], v[%d:%d], v[%d:%d], v[%d:%d] op_sel:[0,0,1] op_sel_hi:[1,0,1]" % (t+2*r, t+2*r+1, t+2*r, t+2*r+1, vs, vs+1, vs, vs+1))
    for r in range(4): o.append("v_cvt_pk_bf16_f32 v%d, v%d, v%d" % (x+r, t+2*r, t+2*r+1))
    return o

def phase6(a):
    AC, PK, RB, GT, XR = 40, 72, 80, 136, 64
    HB = 73728
    def xf(T, j):
        f = 4*j + T
        return ("a", 4*f) if f < 46 else ("v", 152 + 4*(f-46))
    a("s_mov_b32 s50, s64"); a("s_mov_b32 s51, s65"); a("s_mov_b32 s54, s66"); a("s_mov_b32 s52, s67")
    a("s_lshl_b32 s53, s50, 2"); a("s_add_u32 s53, s53, s%d" % S_WAVE)
    a("s_add_u32 s55, s54, %d" % BW)
    a("s_mul_i32 s56, s50, 72"); a("s_add_u32 s56, s56, s51"); a("s_lshl_b32 s56, s56, 2"); a("s_add_u32 s56, s56, s%d" % S_WAVE)
    a("s_lshl_b32 s56, s56, 11"); a("s_add_u32 s56, s56, %d" % PART)
    a("s_mul_i32 s46, s53, 18432")
    for q in range(5): a("s_add_u32 s%d, s46, %d" % (70+q, X1_OFF + 4096*q))
    a("s_mul_i32 s46, s%d, 18432" % S_WAVE); a("v_add_u32 v5, s46, v%d" % V_L16)
    sl = stats_loads(a, SX_OFF, 53, 10)
    a("s_mov_b32 s60, s46")
    sl = [x.replace("s46", "s60") for x in sl]
    a("v_mov_b32 v28, 0")
    a("global_load_dword v29, v28, s[%d:%d] sc1" % (S_DBG, S_DBG+1))
    L = a.newlabel("Lh")
    a("s_cmp_lg_u32 s%d, 0" % S_WAVE); a("s_cbranch_scc1 %s" % L)
    a("v_cmp_ne_u32 vcc, s%d, v55" % S_NONCE); a("s_cbranch_vccz %s" % L)
    a("v_lshrrev_b32 v54, 7, v54")
    a.poll(54, 55, sleep0=0)
    a.label(L)
    a("s_barrier")
    pre = ring_prefill(a, 59)
    NP = SLEEP0["p6"]
    for x in pre[:NP]: a(x)
    a.stamp("p6_ready")
    a("s_mov_b32 s79, 50000")
    for x in sl: a(x)
    def xload(j): return "buffer_load_dwordx4 v[%d:%d], v%d, s[%d:%d], s%d offen offset:%d sc1" % (XR+4*j, XR+4*j+3, V_L16, R_WS, R_WS+3, 70+(j >> 2), 1024*(j & 3))
    for j in range(UP): a(xload(j))
    a("v_add_u32 v32, 36864, v%d" % V_L16); a("v_add_u32 v33, %d, v%d" % (HB, V_L16)); a("v_add_u32 v34, %d, v%d" % (HB+36864, V_L16))
    a("s_lshr_b32 s46, s%d, 1" % S_WAVE); a("s_lshl_b32 s46, s46, 10"); a("s_and_b32 s47, s%d, 1" % S_WAVE); a("s_lshl_b32 s47, s47, 3")
    a("s_add_u32 s46, s46, s47"); a("v_add_u32 v35, s46, v33")
    a("s_mov_b32 s48, %d" % f32(C1)); a("s_mov_b32 s49, %d" % f32(C0))
    R3, ST, SEL, RS = 12, 32, 6, RB
    def select(d, sr, bit):
        o = ["s_bitcmp1_b32 s%d, %d\ns_cselect_b64 s[64:65], -1, 0" % (sr, bit)]
        for h in range(2):
            o += ["v_cndmask_b32 v%d, v%d, 0, s[64:65]" % (d+h, SEL+2+h), "v_cndmask_b32 v%d, 0, v%d, s[64:65]" % (d+2+h, SEL+2+h)]
        return o
    a("v_lshrrev_b32 v26, 2, v%d" % V_R); a("v_cmp_eq_u32 s[64:65], v26, v%d" % V_G)
    a("v_and_b32 v26, 1, v%d" % V_R); a("v_lshlrev_b32 v26, 4, v26"); a("v_mov_b32 v27, 0x3f80"); a("v_lshlrev_b32 v27, v26, v27")
    a("v_cndmask_b32 v27, 0, v27, s[64:65]"); a("v_and_b32 v26, 2, v%d" % V_R); a("v_cmp_eq_u32 vcc, 0, v26")
    a("v_cndmask_b32 v%d, 0, v27, vcc" % (SEL+2)); a("v_cndmask_b32 v%d, v27, 0, vcc" % (SEL+3))
    for r in (0, 1): a("v_mov_b32 v%d, 0" % (SEL+r))
    for x in select(36, S_WAVE, 0): a(x)
    def bload(reg, s, off=0, t="a"): return "buffer_load_dwordx4 %s[%d:%d], v%d, s[%d:%d], s%d offen offset:%d sc1" % (t, reg, reg+3, V_L16, R_WS, R_WS+3, s, off)
    a("s_waitcnt vmcnt(%d)" % UP)
    for x in tag_ops(range(10, 14), 30): a(x)
    tag_branch(a, sl, range(10, 14), 30, [xload(j) for j in range(UP)])
    a.stamp("p6_st")
    stats_finish(a, 10, 17, 16)
    a("v_mul_f32 v17, v16, -v17")
    a("s_mul_i32 s60, s50, 73728")
    a("s_lshl_b32 s46, s51, 1"); a("s_lshr_b32 s47, s%d, 1" % S_WAVE); a("s_add_u32 s46, s46, s47"); a("s_lshl_b32 s46, s46, 10"); a("s_add_u32 s78, s46, s60")
    order = [("x", j) for j in range(UP)]
    todo = [("x", j) for j in range(UP, 18)] + [("w", j) for j in range(NP, 18)]
    for j in range(18):
        a("s_waitcnt vmcnt(%d)" % (len(order) - 1 - order.index(("x", j))))
        for x in tag_ops(range(XR+4*j, XR+4*j+4), 30): a(x)
        n = 1 if j < 10 else -(-len(todo)//(18-j))
        for k, q in todo[:n]:
            a(xload(q) if k == "x" else pre[q]); order.append((k, q))
        del todo[:n]
        later = [q for k, q in order if k == "x" and q > j]
        tag_branch(a, [xload(j)], range(XR+4*j, XR+4*j+4), 30, [xload(q) for q in later], drain=order[-1][0] == "w")
        if j in (9, 17): a.stamp("p6_x%d" % j)
        for x in norm_pk(XR+4*j, 16, 20): a(x)
        a("ds_write_b128 v5, v[%d:%d] offset:%d" % (XR+4*j, XR+4*j+3, 1024*j))
    assert not todo
    a("v_readfirstlane_b32 s%d, v29" % S_NONCE)
    for r in (4, 5): a("v_mov_b32 v%d, 0" % (SEL+r))
    a("s_waitcnt lgkmcnt(0)"); a("s_barrier")
    a.stamp("p6_x")
    def fread(j, va):
        o = []
        for T in range(4):
            t, r = xf(T, j)
            o.append("ds_read_b128 %s[%d:%d], v%d offset:%d" % (t, r, r+3, va[T >> 1], (T & 1)*18432 + 1024*j))
        return o
    def gelu(ac):
        b = ["v_pk_mul_f32 v[%d:%d], v[%d:%d], v[%d:%d]" % (GT+2*k, GT+2*k+1, ac+2*k, ac+2*k+1, ac+2*k, ac+2*k+1) for k in range(8)]
        b += ["v_pk_fma_f32 v[%d:%d], v[%d:%d], s[48:49], s[48:49] op_sel:[0,0,1] op_sel_hi:[1,0,1]" % (GT+2*k, GT+2*k+1, GT+2*k, GT+2*k+1) for k in range(8)]
        b += ["v_pk_mul_f32 v[%d:%d], v[%d:%d], v[%d:%d]" % (GT+2*k, GT+2*k+1, GT+2*k, GT+2*k+1, ac+2*k, ac+2*k+1) for k in range(8)]
        o = []
        for T in range(4):
            x = ac + 4*T; t = GT + 4*T
            if "nopk" in ABL:
                o += ["v_mul_f32 v%d, v%d, v%d" % (t+i, x+i, x+i) for i in range(4)]
                o += ["v_fma_f32 v%d, v%d, s48, v18" % (t+i, t+i) for i in range(4)]
                o += ["v_mul_f32 v%d, v%d, v%d" % (t+i, t+i, x+i) for i in range(4)]
            o += ["v_exp_f32 v%d, v%d" % (t+i, t+i) for i in range(4)]
            o += ["v_add_f32 v%d, 1.0, v%d" % (t+i, t+i) for i in range(4)]
            o += ["v_rcp_f32 v%d, v%d" % (t+i, t+i) for i in range(4)]
            o += ["v_mul_f32 v%d, v%d, v%d" % (t+i, t+i, x+i) for i in range(4)]
            o += ["v_cvt_pk_bf16_f32 v%d, v%d, v%d" % (PK+2*T+h, t+2*h, t+2*h+1) for h in range(2)]
            o.append("ds_write_b64 v5, v[%d:%d] offset:%d" % (PK+2*T, PK+2*T+1, 18432*T))
        return ([] if "nopk" in ABL else b), o
    def wt(op): return 2 if op.startswith(("v_exp", "v_rcp")) else min(2, len(op.split("\n")))
    RA = ("a", RING); RBB = ("v", RB)
    def subpass(ac, fill, first=None, loads=None, at=None, ring=RA, depth=18, batch=(), head=(), c0=None, more=None):
        if "p6nogelu" in ABL and len(fill) > 20: fill = []; batch = ()
        if "p6nost" in ABL: fill = [x for x in fill if "buffer_store" not in x]
        fill = list(fill); head = list(head)
        if first:
            for j in range(2):
                for x in fread(j, first): a(x)
        def wait(j):
            w = []
            if j % 2 == 0: w.append("vmcnt(%d)" % (depth - 2 + (more(j-1) if more and j else 0)))
            if first: w.append("lgkmcnt(%d)" % (4 if j < 17 else 0))
            return "s_waitcnt " + " ".join(w) if w else None
        for j in range(18):
            if wait(j): a(wait(j))
            if at and j in at: at[j]()
            rd = fread(j+2, first) if (first and j < 16) else []
            for T in range(4):
                t, r = xf(T, j)
                a(mfma(ac+4*T, ring[1]+4*j, r, (None if c0 is None else c0+4*T) if j == 0 else ac+4*T, ta=ring[0], tb=t))
                room = 2
                if rd: a(rd[T]); room -= 1
                if j == 0:
                    n = (len(head) + 2 - T)//(3 - T) if T < 3 else 0
                    for x in head[:n]: a(x)
                    del head[:n]
                if T == 3:
                    ld = "" if ("p6nold" in ABL and loads is None) else (loads(j) if loads else wload(j, 58, ring))
                    if ld: a(ld); room -= len(ld.split("\n"))
                    if j < 17 and wait(j+1): room -= 1
                    if j == 0:
                        for x in batch: a(x)
                if j == 0: continue
                left = 4*(17-j) + 3 - T
                while fill and (wt(fill[0]) <= room or sum(wt(x) for x in fill) > 2*left - (left+3)//4*2 + 1):
                    room -= wt(fill[0]); a(fill.pop(0))
        assert not fill
    def nexttile(last=False):
        o = ["s_mov_b32 s62, s61", "s_mov_b32 s61, s63", "s_add_u32 s63, s63, 1"]
        if "rot" in ABL: o += ["s_cmp_eq_u32 s63, 9", "s_cselect_b32 s63, 0, s63"]
        o += ["s_mul_i32 s58, s63, 18432", "s_add_u32 s58, s58, s54"]
        if last: o += ["s_cmp_eq_u32 s59, 3", "s_cselect_b32 s58, s65, s58"]
        return o + ["s_lshl_b32 s46, s62, 11", "v_add_u32 v5, s46, v35"]
    def slice_of(d, c):
        a("s_add_u32 s%d, s%d, s51" % (d, c)); a("s_and_b32 s%d, s%d, 7" % (d, d)); a("s_cmp_eq_u32 s%d, 0" % c); a("s_cselect_b32 s%d, 8, s%d" % (d, d))
    a("s_mov_b32 s63, s52"); a("s_mov_b32 s61, s52")
    for x in nexttile(): a(x)
    slice_of(64, 52); a("s_mul_i32 s65, s64, 18432"); a("s_add_u32 s65, s65, s55")
    for r in range(4): a("v_mov_b32 v%d, -1" % (PK+r))
    pois = []
    for k in (6, 7):
        pois.append("s_add_u32 s46, s51, %d\ns_and_b32 s46, s46, 7\ns_lshl_b32 s46, s46, 16\ns_add_u32 s62, s46, s56\n" % k +
                    "buffer_store_dwordx4 v[%d:%d], v%d, s[%d:%d], s62 offen sc1" % (PK, PK+3, V_L16, R_WS, R_WS+3))
        pois.append("buffer_store_dwordx4 v[%d:%d], v%d, s[%d:%d], s62 offen offset:1024 sc1" % (PK, PK+3, V_L16, R_WS, R_WS+3))
    res = ["s_add_u32 s62, s78, %d\n" % ((X1_OFF, H_OFF)[j >> 2] + 18432*(j & 3)) + bload(RS+4*j, 62, t="v") for j in range(8)]
    def resadd():
        a("s_waitcnt vmcnt(9)")
        for k in range(2):
            for T in range(4): a(mfma(R3+4*T, 36, RS+16*k+4*T, None if k == 0 else R3+4*T))
    ev0 = {j: (lambda j=j: a(res[j])) for j in range(8)}
    ev0[16] = resadd
    ev0[17] = lambda: [a(x) for x in pois]
    subpass(AC, [], first=(V_L16, 32), at=ev0, more=lambda j: min(j+1, 8))
    if "d_p6" in ABL: a("s_sleep 64")
    a.stamp("p6_p0")
    a("s_mov_b32 s59, 0")
    def w4ask():
        L = a.newlabel("Lw4"); a("s_cmp_eq_u32 s59, 3"); a("s_cbranch_scc0 %s" % L)
        a("buffer_load_dword v31, v30, s[%d:%d], 0 offen offset:%d sc1" % (R_WS, R_WS+3, FLAG0)); a.label(L)
    def w4check():
        L = a.newlabel("Lw4"); a("s_cmp_eq_u32 s59, 3"); a("s_cbranch_scc0 %s" % L)
        a("s_waitcnt vmcnt(14)"); a("v_cmp_ne_u32 vcc, s%d, v31" % S_NONCE); a("s_cbranch_vccz %s" % L)
        a("v_lshrrev_b32 v30, 7, v30"); a.poll(30, 31, sleep0=0); a.label(L)
    a("s_mul_i32 s46, s51, 18"); a("s_add_u32 s46, s46, %d" % (FS + 198))
    a("v_min_u32 v30, 17, v%d" % V_LANE); a("v_add_u32 v30, s46, v30"); a("v_lshlrev_b32 v30, 7, v30")
    a.label("L_p6_a")
    for half in (1, 0):
        b, o = gelu(AC+16*(1-half))
        subpass(AC+16*half, o, batch=b, head=nexttile(half == 0), at={0: w4check} if half == 0 else {4: w4ask})
    a("s_add_u32 s59, s59, 1"); a("s_cmp_lt_u32 s59, 4"); a("s_cbranch_scc1 L_p6_a")
    def nextslice(own=None):
        a("s_lshl_b32 s62, s66, 16"); a("s_add_u32 s62, s62, s56"); a("s_mov_b32 s66, s65"); a("s_mov_b32 s65, s64")
        a("s_add_u32 s61, s61, 1"); a("s_and_b32 s61, s61, 7")
        slice_of(64, 61)
        if own is not None: a("s_cmp_eq_u32 s59, %d" % own); a("s_cselect_b32 s64, s51, s64")
        a("s_mul_i32 s58, s64, 18432"); a("s_add_u32 s58, s58, s55")
    a("s_lshl_b32 s46, s61, 11"); a("v_add_u32 v5, s46, v35")
    a("s_mov_b32 s61, s52")
    nextslice()
    g = G(); gelu_pk(g, [AC+2*k for k in range(8)], GT, 48)
    interleave(a, g.lines, [wload(j, 58, RBB) for j in range(14)])
    for T in range(4):
        for h in range(2): a("v_cvt_pk_bf16_f32 v%d, v%d, v%d" % (PK+2*T+h, AC+4*T+2*h, AC+4*T+2*h+1))
        a("ds_write_b64 v5, v[%d:%d] offset:%d" % (PK+2*T, PK+2*T+1, 18432*T))
        a(wload(14+T, 58, RBB))
    a("s_waitcnt lgkmcnt(0)"); a("s_barrier")
    a.stamp("p6_a")
    def pstore(ac):
        o = ["v_cvt_pk_bf16_f32 v%d, v%d, v%d" % (PK+k, ac+2*k, ac+2*k+1) for k in range(8)]
        o += ["buffer_store_dwordx4 v[%d:%d], v%d, s[%d:%d], s62 offen offset:%d sc1" % (PK+4*p, PK+4*p+3, V_L16, R_WS, R_WS+3, 1024*p) for p in range(2)]
        return o
    a("s_lshl_b32 s46, s50, 5"); a("s_add_u32 s46, s46, s%d" % S_WAVE); a("s_lshl_b32 s70, s46, 7"); a("s_add_u32 s70, s70, %d" % (FLAG0 + 128*FA))
    a("s_lshl_b32 s46, s51, 9"); a("s_add_u32 s68, s70, s46")
    a("s_mul_i32 s46, s50, 9"); a("s_add_u32 s46, s46, s51"); a("s_lshl_b32 s46, s46, 16"); a("s_lshl_b32 s47, s%d, 11" % S_WAVE)
    a("s_add_u32 s46, s46, s47"); a("s_add_u32 s69, s46, %d" % PART)
    a("s_mov_b32 s71, 0")
    a("v_and_b32 v5, 7, v%d" % V_LANE); a("v_cmp_eq_u32 vcc, s51, v5"); a("v_xor_b32 v30, 1, v5")
    a("v_cndmask_b32 v5, v5, v30, vcc"); a("v_lshlrev_b32 v5, 9, v5")
    def cond(first, body):
        def f():
            L = a.newlabel("Lc")
            if first is not None: a("s_cmp_lt_u32 s71, %d" % first); a("s_cbranch_scc1 %s" % L)
            body()
            a.label(L)
        return f
    def SC(k): return (54, 55, 57, 58, 72, 75, 76)[k-1]
    def publish():
        a("s_add_u32 s46, s71, s%d" % S_NONCE); a("s_sub_u32 s46, s46, 2"); a("v_mov_b32 v29, s46")
        a("s_waitcnt vmcnt(20)"); a("s_mov_b64 exec, 1")
        a("buffer_store_dword v29, v28, s[%d:%d], s68 offen sc1" % (R_WS, R_WS+3))
        a("s_mov_b64 exec, -1")
    def confirm(vflag, vaddr, saddr, sneed, n):
        L = a.newlabel("Lcf")
        a("s_mov_b32 s47, 100000"); a("s_waitcnt vmcnt(%d)" % n)
        a.label(L)
        a("v_subrev_u32 v30, s%d, v%d" % (sneed, vflag)); a("v_cmp_lt_u32 vcc, 7, v30"); a("s_cbranch_vccz %s_x" % L)
        a("s_sleep 1"); a("buffer_load_dword v%d, v%d, s[%d:%d], s%d offen sc1" % (vflag, vaddr, R_WS, R_WS+3, saddr)); a("s_waitcnt vmcnt(0)")
        a("s_sub_u32 s47, s47, 1"); a("s_cbranch_scc0 %s" % L)
        a.label(L + "_x")
    nxt = ["s_add_u32 s71, s71, 1"]
    a("s_mov_b32 s59, 0")
    nextslice()
    subpass(AC, [], first=(33, 34), depth=36)
    a.stamp("p6_s0")
    a.label("L_p6_b")
    def ask_all(): a("buffer_load_dword v31, v5, s[%d:%d], s70 offen sc1" % (R_WS, R_WS+3))
    ev = {3: cond(6, publish), 14: cond(6, ask_all)}
    nextslice()
    subpass(AC+16, pstore(AC), ring=RBB, depth=36, head=nxt)
    nextslice(own=2)
    subpass(AC, pstore(AC+16), depth=36, at=ev, head=nxt)
    a("s_add_u32 s59, s59, 1"); a("s_cmp_lt_u32 s59, 3"); a("s_cbranch_scc1 L_p6_b")
    a.stamp("p6_s6")
    a("s_lshr_b32 s46, s51, 1"); a("s_sub_u32 s46, s46, 3"); a("s_lshl_b32 s46, s46, 7"); a("s_add_u32 s74, s46, s70")
    a("s_mul_i32 s46, s50, 9"); a("s_add_u32 s46, s46, 8"); a("s_lshl_b32 s46, s46, 16"); a("s_lshl_b32 s47, s51, 10")
    a("s_add_u32 s46, s46, s47"); a("s_add_u32 s78, s46, %d" % PART)
    a("s_and_b32 s46, s51, 1"); a("s_mul_i32 s61, s46, 36864"); a("s_add_u32 s61, s61, s60")
    a("s_lshr_b32 s47, s51, 2"); a("s_add_u32 s47, s47, 16"); a("s_lshl_b32 s46, s47, 10"); a("s_add_u32 s79, s46, s61")
    a("s_lshl_b32 s47, s47, 6"); a("s_add_u32 s61, s61, s47"); a("s_and_b32 s46, s51, 2"); a("s_lshl_b32 s46, s46, 2"); a("s_add_u32 s61, s61, s46")
    def w3(body):
        def f():
            L = a.newlabel("Lex"); a("s_cmp_lg_u32 s%d, 3" % S_WAVE); a("s_cbranch_scc1 %s" % L); body(); a.label(L)
        return f
    def extra_ask():
        a("v_and_b32 v%d, 7, v%d" % (RB, V_LANE)); a("v_lshlrev_b32 v%d, 9, v%d" % (RB, RB))
        a("buffer_load_dword v29, v%d, s[%d:%d], s74 offen sc1" % (RB, R_WS, R_WS+3))
    def extra_get():
        confirm(29, RB, 74, S_NONCE, 4)
        for k in range(8):
            a(bload(RING+4*k, 78)); a("s_add_u32 s78, s78, 8192")
        for k, off in enumerate((H_OFF, X1_OFF)):
            for T in range(2):
                a("s_add_u32 s46, s79, %d" % (off + 18432*T)); a(bload(RING+32+8*k+4*T, 46))
    a("s_lshl_b32 s62, s66, 16"); a("s_add_u32 s62, s62, s56"); a("s_mov_b32 s66, s65")
    for k in range(1, 8):
        r = SC(k); a("s_sub_u32 s%d, s51, %d" % (r, k)); a("s_and_b32 s%d, s%d, 7" % (r, r)); a("s_lshl_b32 s%d, s%d, 13" % (r, r)); a("s_add_u32 s%d, s%d, s69" % (r, r))
    CB = {1: ("v", ST), 2: ("v", RB+8), 3: ("v", RB+16), 4: ("v", RB+24), 5: ("v", RB+32), 6: ("v", RB+56), 7: ("v", RB+64)}
    def cload(k): return "\n".join(bload(CB[k][1]+4*p, SC(k), 1024*p, t=CB[k][0]) for p in range(2))
    def need(c, n):
        def f(): a("s_add_u32 s73, s%d, %d" % (S_NONCE, c)); confirm(31, 5, 70, 73, n)
        return f
    def add(acc, k, n):
        def f():
            if n < 63: a("s_waitcnt vmcnt(%d)" % n)
            for T in range(4): a(mfma(acc+4*T, SEL if T & 1 else SEL+2, CB[k][1]+4*(T >> 1), acc+4*T, tb=CB[k][0]))
        return f
    def load7(j): return {4: cload(1), 7: cload(2), 10: cload(3), 13: cload(4)}.get(j, "")
    def seq(*fs):
        def f():
            for x in fs: x()
        return f
    subpass(AC+16, pstore(AC), ring=RBB, depth=20, loads=load7, head=nxt,
            at={3: publish, 4: seq(need(4, 3), w3(extra_ask)), 17: ask_all})
    a.stamp("p6_s7")
    a("s_lshl_b32 s62, s66, 16"); a("s_add_u32 s62, s62, s56")
    SEv, EA = AC+16, AC+24
    g = G()
    g.lines += select(SEv, 51, 1)
    g("v_mul_u32_u24 v%d, 144, v%d" % (AC+20, V_R)); g("v_lshl_add_u32 v%d, v%d, 4, v%d" % (AC+20, V_G, AC+20))
    g.lines.append("s_lshr_b32 s66, s%d, 1\ns_lshl_b32 s66, s66, 6\ns_and_b32 s67, s%d, 1\ns_lshl_b32 s67, s67, 3\ns_add_u32 s66, s66, s67" % (S_WAVE, S_WAVE))
    g("v_add_u32 v%d, s66, v%d" % (AC+20, AC+20))
    g("v_lshrrev_b32 v%d, 3, v0" % EA); g("v_and_b32 v%d, 7, v0" % (EA+1)); g("v_lshlrev_b32 v%d, 4, v%d" % (EA+1, EA+1))
    g("v_mul_u32_u24 v%d, 144, v%d" % (AC+21, EA)); g("v_add_u32 v%d, v%d, v%d" % (AC+21, AC+21, EA+1))
    g("v_mul_u32_u24 v%d, 1152, v%d" % (AC+22, EA)); g("v_add_u32 v%d, v%d, v%d" % (AC+22, AC+22, EA+1))
    g("v_mul_u32_u24 v%d, 1152, v%d" % (AC+23, V_R)); g("v_lshl_add_u32 v%d, v%d, 4, v%d" % (AC+23, V_G, AC+23))
    def load8(j): return {9: cload(5), 12: cload(6), 17: cload(7)}.get(j, "")
    subpass(AC, pstore(AC+16) + g.lines, depth=63, loads=load8, head=nxt, c0=R3, at={9: need(5, 2), 10: add(AC, 1, 63), 12: add(AC, 2, 63), 14: seq(w3(extra_get), add(AC, 3, 63)), 16: add(AC, 4, 63)})
    a.stamp("p6_b")
    a.srd(R_A, S_OUT, ACT)
    a("s_cmp_lg_u32 s%d, 3" % S_WAVE); a("s_cbranch_scc1 L_p7_main")
    a("s_waitcnt vmcnt(2)")
    for k in range(8):
        a(mfma(EA, SEL+2, RING+4*k, None if k == 0 else EA, tb="a")); a(mfma(EA+4, SEL, RING+4*k, None if k == 0 else EA+4, tb="a"))
    for k in range(2):
        for T in range(2): a(mfma(EA+4*T, SEv, RING+32+8*k+4*T, EA+4*T, tb="a"))
    for T in range(2):
        for h in range(2): a("v_cvt_pk_bf16_f32 v%d, v%d, v%d" % (PK+2*T+h, EA+4*T+2*h, EA+4*T+2*h+1))
    a.label("L_p7_main")
    add(AC, 5, 2)()
    for k in (6, 7):
        base = CB[k][1]
        L = a.newlabel("Ltag")
        a("s_mov_b32 s47, 100000")
        if k == 7: a("s_waitcnt vmcnt(0)")
        a.label(L)
        a("v_max3_u32 v30, v%d, v%d, v%d" % (base, base+1, base+2)); a("v_max3_u32 v31, v%d, v%d, v%d" % (base+3, base+4, base+5))
        a("v_max3_u32 v30, v30, v%d, v%d" % (base+6, base+7)); a("v_max_u32 v30, v30, v31")
        a("v_cmp_eq_u32 vcc, -1, v30"); a("s_cbranch_vccz %s_x" % L)
        a(cload(k))
        a("s_waitcnt vmcnt(0)")
        a("s_sub_u32 s47, s47, 1"); a("s_cbranch_scc0 %s" % L)
        a.label(L + "_x")
        add(AC, k, 63)()
    a.stamp("p7_ready")
    a("s_cmp_lg_u32 s%d, 3" % S_WAVE); a("s_cbranch_scc1 L_p7_acc")
    for T in range(2):
        a("buffer_store_dwordx2 v[%d:%d], v%d, s[%d:%d], s61 offen%s" % (PK+2*T, PK+2*T+1, AC+23, R_A, R_A+3, OFL))
        a("s_add_u32 s61, s61, 18432")
    a.label("L_p7_acc")
    a("s_lshl_b32 s46, s51, 7"); a("s_add_u32 s46, s46, s60"); a("s_add_u32 s47, s46, 36864")
    for T in range(4):
        for h in range(2): a("v_cvt_pk_bf16_f32 v%d, v%d, v%d" % (R3+2*T+h, AC+4*T+2*h, AC+4*T+2*h+1))
        a("ds_write_b64 v%d, v[%d:%d] offset:%d" % (AC+20, R3+2*T, R3+2*T+1, 2304*T))
    a("s_waitcnt lgkmcnt(0)"); a("s_barrier")
    for p in range(2): a("ds_read_b128 v[%d:%d], v%d offset:%d" % (R3+8+4*p, R3+11+4*p, AC+21, 4608*p))
    for p in range(2):
        a("s_waitcnt lgkmcnt(%d)" % (1-p))
        a("buffer_store_dwordx4 v[%d:%d], v%d, s[%d:%d], s%d offen%s" % (R3+8+4*p, R3+11+4*p, AC+22, R_A, R_A+3, 46+p, OFL))
```

```python
import sys, os, struct, math
sys.path.insert(0, "dev")
from asmlib import Asm, build
from hazard import fix_hazards, check_waits

NAME = "sequential_preLN__sliding_block__mixer_s_mlp__prompt"
KN = NAME + "_kernel"

ACT = 2048*576*2
SW  = 576*576*2
BW  = 576*4608*2
FLAG0 = 128
F1, FS, F2, F3, F4, F5, FA, FB = 0, 256, 640, 896, 1152, 1408, 1664, 2688
TS_OFF = 0x80000
Q_OFF  = 0x90000
K_OFF  = Q_OFF + ACT
V_OFF  = K_OFF + ACT
O_OFF  = V_OFF + ACT
H_OFF  = O_OFF + ACT
SH_OFF = H_OFF + ACT
T_OFF  = SH_OFF + 98304
X1_OFF = T_OFF + ACT
SX_OFF = X1_OFF + ACT
WO_S   = SX_OFF + 98304
W1_S   = WO_S + SW
W2_S   = W1_S + SW
W3_S   = W2_S + SW
W4_S   = W3_S + BW
PART   = W4_S + BW
WS_END = PART + 32*9*8*8192
FP_OFF = 0x7F000
FP2_OFF = FP_OFF + 1024
MARK_N = T_OFF - O_OFF
MKG = 19
MARK_W = 2048*MKG
assert 128*MARK_W >= MARK_N and 1024*5120 >= WO_S - T_OFF
HPSZ   = 147456

WSOFF = 0
MK1 = int(os.environ.get('MK1', 0))
THR = int(os.environ.get('THR', 0))
NW3 = int(os.environ.get('NW3', 0))
ABL = os.environ.get('ABL', '').split(',')
CLK = 's_memtime'
def f32(x): return struct.unpack("<I", struct.pack("<f", x))[0]
def magic(d): return (1 << 32)//d + 1

S_X, S_WQKV, S_WO = 4, 6, 8
S_W1, S_W2, S_W3, S_W4 = 12, 14, 16, 18
S_OUT, S_DBG, S_WS = 20, 22, 24
R_WS, R_A, R_B = 28, 32, 36
S_WAVE, S_XCD, S_SLOT, S_NONCE = 40, 41, 42, 43
S_ONES = 44
V_LANE, V_R, V_G, V_L16 = 1, 2, 3, 4

class G(Asm):
    def __init__(s, stop=99, stamps=False):
        super().__init__()
        s.stop = stop; s.stamps = stamps; s.stubs = []
    def srd(a, d, p, size, add=0):
        if add >= 0:
            a("s_add_u32 s%d, s%d, %s" % (d, p, add)); a("s_addc_u32 s%d, s%d, 0" % (d+1, p+1))
        else:
            a("s_sub_u32 s%d, s%d, %d" % (d, p, -add)); a("s_subb_u32 s%d, s%d, 0" % (d+1, p+1))
        a("s_mov_b32 s%d, %d" % (d+2, size)); a("s_mov_b32 s%d, 0x20000" % (d+3))
    def srd_s(a, d, p, size, sreg):
        a("s_add_u32 s%d, s%d, s%d" % (d, p, sreg)); a("s_addc_u32 s%d, s%d, 0" % (d+1, p+1))
        a("s_mov_b32 s%d, %d" % (d+2, size)); a("s_mov_b32 s%d, 0x20000" % (d+3))
    def sdiv(a, q, r, x, d):
        a("s_mul_hi_u32 s%d, s%d, %d" % (q, x, magic(d)))
        if r is not None:
            a("s_mul_i32 s%d, s%d, %d" % (r, q, d)); a("s_sub_u32 s%d, s%d, s%d" % (r, x, r))
    def stamp(a, name):
        if not a.stamps or name not in a.stamps: return
        k = a.stamps.index(name)
        a("%s s[98:99]" % CLK); a("s_waitcnt lgkmcnt(0)"); a("s_mov_b32 s%d, s98" % (80+k))
    def stamp_out(a):
        if not a.stamps: return
        a.stamp("end")
        a("s_lshl_b32 s98, s2, 2"); a("s_add_u32 s98, s98, s%d" % S_WAVE); a("s_lshl_b32 s98, s98, 6"); a("s_add_u32 s98, s98, %d" % TS_OFF)
        a("v_mov_b32 v255, 0")
        for k in range(16):
            a("v_mov_b32 v254, s%d" % (80+k))
            a("buffer_store_dword v254, v255, s[%d:%d], s98 offen offset:%d" % (R_WS, R_WS+3, 4*k))
            a("s_nop 1")
    def xg_reduce(a, v, t, op="v_add_f32"):
        for sw in ("v_permlane32_swap_b32", "v_permlane16_swap_b32"):
            a("v_mov_b32 v%d, v%d" % (t, v)); a("%s v%d, v%d" % (sw, v, t)); a("%s v%d, v%d, v%d" % (op, v, v, t))
    def get_nonce(a, vt):
        L = a.newlabel("Lnon")
        a("s_mov_b32 s46, 200000"); a("v_mov_b32 v%d, 0" % (vt+2))
        a.label(L)
        a("global_load_dwordx2 v[%d:%d], v%d, s[%d:%d] sc1" % (vt, vt+1, vt+2, S_DBG, S_DBG+1))
        a("s_waitcnt vmcnt(0)")
        a("v_readfirstlane_b32 s47, v%d" % (vt+1)); a("v_readfirstlane_b32 s%d, v%d" % (S_NONCE, vt))
        a("s_sub_u32 s46, s46, 1"); a("s_cbranch_scc1 %s_x" % L)
        a("s_cmp_eq_u32 s47, 0"); a("s_cbranch_scc1 %s" % L)
        a.label(L + "_x")
    def set_flag(a, sidx, vt):
        a("s_lshl_b32 s%d, s%d, 7" % (sidx, sidx)); a("s_add_u32 s%d, s%d, %d" % (sidx, sidx, FLAG0))
        a("v_mov_b32 v%d, s%d" % (vt, S_NONCE)); a("v_mov_b32 v%d, 0" % (vt+1))
        a("s_mov_b64 exec, 1")
        a("buffer_store_dword v%d, v%d, s[%d:%d], s%d offen sc1" % (vt, vt+1, R_WS, R_WS+3, sidx))
        a("s_mov_b64 exec, -1")
    def set_mark(a, vt, off):
        a("s_lshl_b32 s46, s2, 2"); a("s_add_u32 s46, s46, %d" % off)
        a("v_mov_b32 v%d, s%d" % (vt, S_NONCE)); a("v_mov_b32 v%d, 0" % (vt+1))
        a("s_mov_b64 exec, 1")
        a("buffer_store_dword v%d, v%d, s[%d:%d], s46 offen sc1" % (vt, vt+1, R_WS, R_WS+3))
        a("s_mov_b64 exec, -1")
    def poll(a, vidx, vt, sleep0=6, sleep=2):
        L = a.newlabel("Lpoll")
        a("v_lshlrev_b32 v%d, 7, v%d" % (vidx, vidx))
        a("s_mov_b32 s46, 100000")
        if sleep0: a("s_sleep %d" % sleep0)
        a.label(L)
        a("buffer_load_dword v%d, v%d, s[%d:%d], 0 offen offset:%d sc1" % (vt, vidx, R_WS, R_WS+3, FLAG0))
        a("s_waitcnt vmcnt(0)")
        a("v_cmp_ne_u32 vcc, s%d, v%d" % (S_NONCE, vt))
        a("s_cbranch_vccz %s_x" % L)
        a("s_sleep %d" % sleep)
        a("s_sub_u32 s46, s46, 1"); a("s_cbranch_scc0 %s" % L)
        a.label(L + "_x")

def mfma(d, A, B, C=None, ta="v", tb="v", td="v"):
    c = "0" if C is None else "%s[%d:%d]" % (td, C, C+3)
    return "v_mfma_f32_16x16x32_bf16 %s[%d:%d], %s[%d:%d], %s[%d:%d], %s" % (td, d, d+3, ta, A, A+3, tb, B, B+3, c)

def interleave(a, main, fill, start=0):
    n = len(main) - start; k = 0
    for i, m in enumerate(main):
        a(m)
        if i >= start:
            upto = (len(fill)*(i-start+1) + n - 1)//n
            while k < upto: a(fill[k]); k += 1

def prologue(a):
    a("s_cmp_ge_u32 s2, 256"); a("s_cbranch_scc1 L_end")
    a("s_load_dwordx4 s[4:7], s[0:1], 0")
    a("s_load_dwordx2 s[24:25], s[0:1], 80")
    a("s_load_dwordx2 s[8:9], s[0:1], 16")
    a("s_load_dwordx8 s[12:19], s[0:1], 32")
    a("s_load_dwordx4 s[20:23], s[0:1], 64")
    a("v_and_b32 v%d, 63, v0" % V_LANE)
    a("v_lshrrev_b32 v5, 6, v0")
    a("v_and_b32 v%d, 15, v0" % V_R)
    a("v_readfirstlane_b32 s%d, v5" % S_WAVE)
    a("v_lshrrev_b32 v%d, 4, v%d" % (V_G, V_LANE))
    a("v_lshlrev_b32 v%d, 4, v%d" % (V_L16, V_LANE))
    if "antiloc" in ABL:
        a("s_lshr_b32 s46, s2, 5"); a("s_and_b32 s47, s2, 31"); a("s_lshl_b32 s47, s47, 3"); a("s_or_b32 s2, s46, s47")
    a("s_and_b32 s%d, s2, 7" % S_XCD); a("s_lshr_b32 s%d, s2, 3" % S_SLOT)
    a("s_mov_b32 s%d, 0x3f803f80" % S_ONES)
    if "nopf" not in ABL:
        a("s_getpc_b64 s[46:47]")
        a.label("L_pc")
        a("s_mul_i32 s48, s%d, %d" % (S_SLOT, 20*128)); a("v_lshl_add_u32 v5, v0, 7, s48")
        a("v_cmp_gt_u32 vcc, 20, v0"); a("s_mov_b32 s48, L_last-L_pc"); a("v_cmp_gt_u32 s[48:49], s48, v5"); a("s_and_b64 vcc, vcc, s[48:49]")
        a("s_and_saveexec_b64 s[48:49], vcc"); a("s_cbranch_execz L_pcd")
        a("global_load_dword v253, v5, s[46:47]")
        a.label("L_pcd")
        a("s_mov_b64 exec, -1")
    if a.stamps:
        for k in range(16): a("s_mov_b32 s%d, 0" % (80+k))
        a.stamp("start")

def publish_nonce(a):
    L = a.newlabel("Lpn")
    a("s_xor_b32 s46, s2, 224"); a("s_or_b32 s46, s46, s%d" % S_WAVE); a("s_cmp_lg_u32 s46, 0"); a("s_cbranch_scc1 %s" % L)
    a("v_mov_b32 v252, 0")
    a("buffer_load_dword v250, v252, s[%d:%d], 0 offen sc1" % (R_WS, R_WS+3))
    a("s_mov_b32 s46, 0x9E3779B1")
    a("s_waitcnt vmcnt(0)")
    a("v_mul_lo_u32 v250, v250, s46"); a("v_add_u32 v250, 0x7F4A7C15, v250"); a("v_mov_b32 v251, 1")
    a("s_mov_b64 exec, 1")
    a("buffer_store_dword v250, v252, s[%d:%d], 0 offen sc1" % (R_WS, R_WS+3))
    a("global_store_dwordx2 v252, v[250:251], s[%d:%d] sc1" % (S_DBG, S_DBG+1))
    a("s_mov_b64 exec, -1")
    a.label(L)

def swizzle_setup(a):
    for i in range(9):
        a("v_add_u32 v40, %d, v%d" % (64*i, V_LANE))
        a("v_mul_u32_u24 v%d, 911, v40" % (10+i)); a("v_lshrrev_b32 v%d, 16, v%d" % (10+i, 10+i))
        a("v_mul_u32_u24 v41, 72, v%d" % (10+i)); a("v_sub_u32 v41, v40, v41"); a("v_lshlrev_b32 v%d, 4, v41" % (20+i))
    a("v_lshrrev_b32 v40, 2, v%d" % V_R); a("v_lshl_add_u32 v40, v%d, 3, v40" % V_G); a("v_mul_u32_u24 v40, 1152, v40")
    a("v_and_b32 v41, 3, v%d" % V_R); a("v_lshl_add_u32 v30, v41, 4, v40")
    a("s_lshr_b32 s46, s%d, 1" % S_WAVE); a("s_lshl_b32 s46, s46, 6"); a("s_and_b32 s47, s%d, 1" % S_WAVE); a("s_lshl_b32 s47, s47, 3")
    a("s_add_u32 s46, s46, s47"); a("v_add_u32 v30, s46, v30")

def sw_decode(a, su, p):
    Ln = a.newlabel("Lsw")
    D = 60+3*p
    a("s_cmp_ge_u32 s%d, 54" % su); a("s_cbranch_scc1 %s_big" % Ln)
    a.sdiv(51, 52, su, 18)
    a("s_cmp_eq_u32 s51, 1"); a("s_cselect_b32 s54, s%d, s%d" % (S_W1, S_W2)); a("s_cselect_b32 s55, s%d, s%d" % (S_W1+1, S_W2+1))
    a("s_cmp_eq_u32 s51, 0"); a("s_cselect_b32 s54, s%d, s54" % S_WO); a("s_cselect_b32 s55, s%d, s55" % (S_WO+1))
    a("s_mul_i32 s%d, s51, %d" % (D, SW)); a("s_add_u32 s%d, s%d, %d" % (D, D, WO_S))
    a("s_mul_i32 s53, s%d, 18432" % S_WAVE); a("s_add_u32 s%d, s%d, s53" % (D, D))
    a("s_mov_b32 s%d, 73728" % (D+1))
    a("s_lshl_b32 s56, s52, 5"); a("s_lshl_b32 s53, s%d, 3" % S_WAVE); a("s_add_u32 s56, s56, s53")
    a("s_mov_b32 s57, 0"); a("s_mov_b32 s59, 1152")
    a("s_cmp_lg_u32 s51, 0"); a("s_cbranch_scc1 %s_j" % Ln)
    a("s_mul_i32 s56, s52, 36"); a("s_lshl_b32 s53, s%d, 2" % S_WAVE); a("s_add_u32 s56, s56, s53"); a("s_mov_b32 s57, 16")
    a("s_cmp_lt_u32 s52, 16"); a("s_cbranch_scc1 %s_j" % Ln)
    a("s_sub_u32 s56, s52, 16"); a("s_lshl_b32 s56, s56, 2"); a("s_add_u32 s56, s56, s%d" % S_WAVE)
    a("s_mul_i32 s56, s56, 72"); a("s_add_u32 s56, s56, 16"); a("s_mov_b32 s57, 32")
    a("s_branch %s_j" % Ln)
    a.label(Ln + "_big")
    sw_big(a, su, D)
    a("s_lshl_b32 s56, s52, 5"); a("s_lshl_b32 s53, s%d, 3" % S_WAVE); a("s_add_u32 s56, s56, s53"); a("s_mov_b32 s57, 0")
    a("s_cmp_ge_u32 s51, 8"); a("s_cbranch_scc1 %s_w4" % Ln)
    a("s_mul_i32 s53, s51, 1152"); a("s_add_u32 s54, s%d, s53" % S_W3); a("s_addc_u32 s55, s%d, 0" % (S_W3+1)); a("s_mov_b32 s59, 9216")
    a("s_branch %s_j" % Ln)
    a.label(Ln + "_w4")
    a("s_sub_u32 s53, s51, 8"); a("s_mul_i32 s53, s53, %d" % SW); a("s_add_u32 s54, s%d, s53" % S_W4); a("s_addc_u32 s55, s%d, 0" % (S_W4+1)); a("s_mov_b32 s59, 1152")
    a.label(Ln + "_j")
    a("s_lshl_b32 s53, s52, 10"); a("s_add_u32 s%d, s%d, s53" % (D, D))
    a("s_add_u32 s%d, s%d, %d" % (D+2, su, FS))

def sw_big(a, su, D):
    a("s_sub_u32 s53, s%d, 54" % su); a.sdiv(51, 52, 53, 18)
    a("s_mul_i32 s%d, s51, %d" % (D, 4*9*18432)); a("s_add_u32 s%d, s%d, %d" % (D, D, W3_S))
    a("s_mul_i32 s53, s%d, %d" % (S_WAVE, 9*18432)); a("s_add_u32 s%d, s%d, s53" % (D, D))
    a("s_mov_b32 s%d, 18432" % (D+1))

def sw_issue(a, su, p, lds):
    sw_decode(a, su, p)
    a("s_mov_b32 s%d, s54" % R_A); a("s_mov_b32 s%d, s55" % (R_A+1))
    a("s_mul_i32 s%d, s59, 575" % (R_A+2)); a("s_add_u32 s%d, s%d, 1152" % (R_A+2, R_A+2)); a("s_mov_b32 s%d, 0x20000" % (R_A+3))
    a("s_mul_i32 s53, s%d, 9216" % S_WAVE); a("s_add_u32 m0, s53, %d" % lds)
    for k in range(9):
        a("v_lshrrev_b32 v40, 2, v%d" % (10+k)); a("v_mul_lo_u32 v40, v40, s57"); a("v_add3_u32 v40, v40, v%d, s56" % (10+k))
        a("v_mul_lo_u32 v40, v40, s59"); a("v_add_u32 v40, v40, v%d" % (20+k))
        a("buffer_load_dwordx4 v40, s[%d:%d], 0 offen lds" % (R_A, R_A+3))
        a("s_add_u32 m0, m0, 1024")

def sw_process(a, p, lds):
    a("v_add_u32 v31, %d, v30" % lds)
    for q in range(9):
        for hh in range(2):
            a("ds_read_b64_tr_b16 v[%d:%d], v31 offset:%d" % (44+4*q+2*hh, 45+4*q+2*hh, hh*4608 + 128*q))
    a("s_mov_b32 s53, s%d" % (60+3*p))
    for q in range(9):
        a("s_waitcnt lgkmcnt(%d)" % min(15, 16-2*q))
        a("buffer_store_dwordx4 v[%d:%d], v%d, s[%d:%d], s53 offen sc1" % (44+4*q, 47+4*q, V_L16, R_WS, R_WS+3))
        a("s_add_u32 s53, s53, s%d" % (61+3*p))

def sw_flags(a, ps, mark=False):
    L = a.newlabel("Lswf")
    a("s_cmp_lg_u32 s%d, 0" % S_WAVE); a("s_cbranch_scc1 %s" % L)
    for p in ps: a.set_flag(62+3*p, 40)
    if mark: a.set_mark(40, FP_OFF - 4*224)
    a.label(L)

MK, R_M = 220, 76

def mark_setup(a):
    a.srd(R_M, S_WS, MARK_N, O_OFF)
    for r in range(4): a("v_mov_b32 v%d, -1" % (MK+r))
    a("s_sub_u32 s74, s2, %d" % 224); a("s_lshl_b32 s74, s74, 2"); a("s_add_u32 s74, s74, s%d" % S_WAVE); a("s_mul_i32 s74, s74, %d" % MARK_W)

def mark_fill(a, n):
    L = a.newlabel("Lmk")
    a("s_mov_b32 s75, %d" % n)
    a.label(L)
    a(mark_store(74, 0)); a(mark_store(74, 1024)); a("s_add_u32 s74, s74, 2048"); a("s_waitcnt vmcnt(40)")
    a("s_sub_u32 s75, s75, 1"); a("s_cmp_lg_u32 s75, 0"); a("s_cbranch_scc1 %s" % L)

def mark_store(s, off): return "buffer_store_dwordx4 v[%d:%d], v%d, s[%d:%d], s%d offen offset:%d sc1" % (MK, MK+3, V_L16, R_M, R_M+3, s, off)

def touch_pages(a):
    if "tlb" not in ABL: return
    L = a.newlabel("Ltp")
    a("s_cmp_lg_u32 s%d, 1" % S_WAVE); a("s_cbranch_scc1 %s" % L)
    a("v_lshlrev_b32 v252, 21, v%d" % V_LANE)
    a("buffer_load_dword v253, v252, s[%d:%d], 0 offen offset:64" % (R_WS, R_WS+3))
    for p, size in ((S_W3, BW), (S_W4, BW), (S_OUT, ACT), (S_WO, SW), (S_W1, SW), (S_W2, SW)):
        n = (size - 1 >> 21) + 1
        a("s_mov_b64 exec, %d" % ((1 << n) - 1))
        a("global_load_dword v253, v252, s[%d:%d]" % (p, p+1))
    a("s_mov_b64 exec, -1")
    a.label(L)

def touch_inputs(a, nwg):
    nx, nw = -(-18432//(2*nwg)), -(-15552//(2*nwg))
    a("s_mul_i32 s46, s50, 14"); a("s_add_u32 s46, s46, s51"); a("s_lshl_b32 s46, s46, 1"); a("s_add_u32 s46, s46, s53")
    a("v_lshlrev_b32 v252, 7, v%d" % V_LANE)
    L = a.newlabel("Lti")
    a("s_cmp_lg_u32 s52, 0"); a("s_cbranch_scc1 %s_w" % L)
    a("s_mul_i32 s46, s46, %d" % (128*nx)); a("s_add_u32 s46, s46, 4096"); a("s_mov_b64 exec, 0x%x" % ((1 << nx) - 1) if nx <= 32 else "s_bfm_b64 exec, %d, 0" % nx)
    a("buffer_load_dword v253, v252, s[%d:%d], s46 offen" % (R_A, R_A+3))
    a("s_branch %s" % L)
    a.label(L + "_w")
    a("s_mul_i32 s46, s46, %d" % (128*nw)); a("s_add_u32 s46, s46, 4096"); a("s_bfm_b64 exec, %d, 0" % nw)
    a("buffer_load_dword v253, v252, s[%d:%d], s46 offen" % (R_B, R_B+3))
    a.label(L)
    a("s_mov_b64 exec, -1")

def phase1(a):
    QS = 18**-0.5 * math.log2(math.e)
    a("s_cmp_ge_u32 s%d, 28" % S_SLOT); a("s_cbranch_scc1 L_p1_helper")
    a.sdiv(46, 47, S_SLOT, 7)
    a("s_lshr_b32 s48, s%d, 1" % S_XCD); a("s_lshl_b32 s48, s48, 2"); a("s_add_u32 s50, s48, s46")
    a("s_and_b32 s48, s%d, 1" % S_XCD); a("s_mul_i32 s48, s48, 7"); a("s_add_u32 s51, s48, s47")
    a("s_lshr_b32 s52, s%d, 1" % S_WAVE); a("s_and_b32 s53, s%d, 1" % S_WAVE)
    a("v_lshrrev_b32 v20, 3, v%d" % V_LANE); a("v_and_b32 v21, 7, v%d" % V_LANE)
    a("v_xor_b32 v22, v21, v%d" % V_G); a("v_mul_u32_u24 v20, 1152, v20")
    a("v_lshl_add_u32 v10, v22, 4, v20"); a("v_xor_b32 v22, 4, v22"); a("v_lshl_add_u32 v11, v22, 4, v20")
    a("v_add_u32 v12, %d, v10" % (16*1152 - 2048 + 4096)); a("v_add_u32 v13, %d, v11" % (24*1152 - 3072 + 4096))
    a("v_add_u32 v11, %d, v11" % (8*1152 - 1024 + 4096)); a("v_add_u32 v10, 4096, v10")
    a("v_lshrrev_b32 v20, 1, v%d" % V_R); a("v_xor_b32 v20, v20, v%d" % V_G); a("v_and_b32 v21, 1, v%d" % V_LANE)
    a("v_lshl_add_u32 v21, v20, 1, v21"); a("v_mul_u32_u24 v22, 3456, v%d" % V_G)
    a("v_lshl_add_u32 v14, v21, 4, v22"); a("v_xor_b32 v21, 8, v21"); a("v_lshl_add_u32 v16, v21, 4, v22")
    a("v_add_u32 v15, %d, v14" % (4*3456 - 1024 + 4096)); a("v_add_u32 v17, %d, v16" % (12*3456 - 3072 + 4096))
    a("v_add_u32 v16, %d, v16" % (8*3456 - 2048 + 4096)); a("v_add_u32 v14, 4096, v14")
    a("s_lshl_b32 s54, s50, 2"); a("s_add_u32 s54, s54, s%d" % S_WAVE); a("s_mul_i32 s54, s54, %d" % (32*1152))
    a("s_mul_i32 s55, s%d, %d" % (S_WAVE, 16*3456)); a("s_lshl_b32 s46, s51, 8"); a("s_add_u32 s55, s55, s46")
    a("s_lshl_b32 s56, s%d, 12" % S_WAVE)
    a("s_waitcnt lgkmcnt(0)")
    if WSOFF: a("s_add_u32 s24, s24, %d" % WSOFF); a("s_addc_u32 s25, s25, 0")
    a.srd(R_A, S_X, ACT + 4096, -4096); a.srd(R_B, S_WQKV, 576*3456 + 4096, -4096)
    a.sdiv(46, 47, S_SLOT, 7)
    a("s_and_b32 s48, s%d, 1" % S_XCD); a("s_add_u32 s46, s46, s48"); a("s_lshl_b32 s46, s46, 1"); a("s_add_u32 s46, s46, s47")
    a("s_bfe_u32 s47, s%d, 0x10001" % S_XCD); a("s_add_u32 s46, s46, s47"); a("s_and_b32 s47, s%d, 4" % S_XCD); a("s_lshl_b32 s47, s47, 1"); a("s_add_u32 s46, s46, s47")
    a.sdiv(47, 67, 46, 9)
    if "p1norot" in ABL: a("s_mov_b32 s67, 0")
    def dma(sbuf):
        X = ["buffer_load_dwordx4 v%d, s[%d:%d], s68 offen offset:%d lds" % (10+j, R_A, R_A+3, 1024*j) for j in range(4)]
        W = ["buffer_load_dwordx4 v%d, s[%d:%d], s69 offen offset:%d lds" % (14+j, R_B, R_B+3, 1024*j) for j in range(4)]
        X[0] = "s_mov_b32 m0, s%d\ns_lshl_b32 s68, s67, 7\ns_add_u32 s68, s68, s54\n" % sbuf + X[0]
        X[1] = "s_mul_i32 s69, s67, %d\ns_add_u32 s69, s69, s55\n" % (64*3456) + X[1]
        X[2] = "s_add_u32 s67, s67, 1\ns_cmp_eq_u32 s67, 9\ns_cselect_b32 s67, 0, s67\n" + X[2]
        W[0] = "s_add_u32 m0, s%d, 16384\ns_nop 0\n" % sbuf + W[0]
        return X + W
    for x in dma(56): a(x)
    a("s_add_u32 s56, s56, 32768")
    if "p1touch" in ABL: touch_inputs(a, 224)
    a.stamp("p1_issue")
    a.srd(R_WS, S_WS, WS_END)
    touch_pages(a)
    a("v_lshrrev_b32 v30, 2, v%d" % V_R); a("v_and_b32 v31, 3, v%d" % V_R)
    a("v_lshl_add_u32 v32, v%d, 3, v30" % V_G); a("v_lshlrev_b32 v32, 8, v32"); a("v_lshl_add_u32 v32, v31, 3, v32")
    a("v_add_u32 v32, 16384, v32")
    a("v_and_b32 v33, 1, v%d" % V_G); a("v_lshl_add_u32 v33, v33, 2, v30")
    a("s_lshl_b32 s46, s53, 2"); a("s_lshl_b32 s47, s52, 1"); a("s_or_b32 s57, s46, s47")
    for t in range(4):
        a("s_xor_b32 s46, s57, %d" % t); a("v_xor_b32 v34, s46, v33"); a("v_lshl_add_u32 v%d, v34, 5, v32" % (20+t))
    a("v_lshrrev_b32 v30, 1, v%d" % V_R); a("v_xor_b32 v30, v30, v%d" % V_G); a("v_lshlrev_b32 v31, 7, v%d" % V_R)
    a("s_lshl_b32 s46, s52, 13"); a("s_lshl_b32 s47, s53, 12"); a("s_add_u32 s46, s46, s47"); a("s_xor_b32 s47, s46, 4096")
    a("v_lshl_add_u32 v32, v30, 4, v31"); a("v_xor_b32 v33, 64, v32")
    a("v_add_u32 v24, s46, v32"); a("v_add_u32 v25, s47, v32"); a("v_add_u32 v26, s46, v33"); a("v_add_u32 v27, s47, v33")
    ACC, CS, ST, ONE = 48, 112, 120, 140
    XB = (144, 160); WB = (176, 192)
    WA, XA = 28, 32
    for r in range(ACC, ONE): a("v_mov_b32 v%d, 0" % r)
    for r in range(4): a("v_mov_b32 v%d, s%d" % (ONE+r, S_ONES))
    def addr(sbase):
        return ["v_add_u32 v%d, %s, v%d" % (WA+i, sbase, 20+i) for i in range(8)]
    def reads(jj):
        o = []
        for T in range(4):
            o.append("ds_read_b128 v[%d:%d], v%d offset:%d" % (XB[jj]+4*T, XB[jj]+4*T+3, XA+2*jj+(T>>1), 2048*(T&1)))
            for hh in range(2):
                o.append("ds_read_b64_tr_b16 v[%d:%d], v%d offset:%d" % (WB[jj]+4*T+2*hh, WB[jj]+4*T+2*hh+1, WA+T, jj*8192+hh*1024))
        return o
    def mm(jj, swap):
        o = []
        for t in range(4):
            for T in range(4):
                d = ACC+16*t+4*T
                o.append(mfma(d, XB[jj]+4*T, WB[jj]+4*t, d) if swap else mfma(d, WB[jj]+4*t, XB[jj]+4*T, d))
            if t < 2:
                d = CS+4*t
                o.append(mfma(d, ONE, WB[jj]+4*t, d) if swap else mfma(d, WB[jj]+4*t, ONE, d))
            x = XB[jj]+4*(t>>1); d = ST+4*t
            o.append(mfma(d, x if t & 1 else ONE, x, d))
        return o
    for x in addr("0"): a(x)
    a("s_lshl_b32 s60, s51, 1"); a("s_add_u32 s60, s60, s53")
    a("s_lshl_b32 s46, s50, 1"); a("s_add_u32 s46, s46, s52"); a("s_lshl_b32 s46, s46, 1"); a("s_add_u32 s47, s46, s53")
    a("s_xor_b32 s46, s47, 1"); a("s_mul_i32 s65, s47, 2304"); a("s_mul_i32 s66, s46, 2304"); a("s_mov_b32 s64, %d" % HPSZ)
    a("s_mov_b32 s58, 0"); a("s_mov_b32 s59, 0")
    a("s_cmp_ge_u32 s51, 9"); a("s_cbranch_scc1 L_p1_v0")
    for swap in (0, 1):
        L = "L_p1_v" if swap else "L_p1_qk"
        a.label(L + "0")
        if not swap:
            a("s_mov_b32 s62, %d" % Q_OFF); a("s_cmp_ge_u32 s60, 9"); a("s_cselect_b32 s61, 144, 0"); a("s_cselect_b32 s62, %d, s62" % K_OFF)
            a("s_cselect_b32 s73, 1.0, %d" % f32(QS))
            a("s_lshl_b32 s63, s60, 4"); a("s_sub_u32 s63, s63, s61")
            for t in range(4):
                a("s_lshl_b32 s46, s52, 1"); a("s_xor_b32 s46, s46, %d" % t); a("s_lshl_b32 s46, s46, 2"); a("s_add_u32 s46, s46, s63")
                a("v_add_u32 v212, s46, v%d" % V_G)
                a("v_mul_u32_u24 v213, 7282, v212"); a("v_lshrrev_b32 v213, 16, v213")
                a("v_mul_u32_u24 v214, 9, v213"); a("v_sub_u32 v212, v212, v214")
                a("v_cmp_lt_u32 vcc, 4, v212"); a("v_subb_co_u32 v214, vcc, v212, 0, vcc")
                a("v_cmp_eq_u32 vcc, 4, v212"); a("v_cndmask_b32 v214, v214, 8, vcc")
                a("v_mul_lo_u32 v213, v213, s64"); a("v_lshl_add_u32 v213, v214, 8, v213"); a("v_lshl_add_u32 v%d, v%d, 4, v213" % (208+t, V_R))
        else:
            a("s_mov_b32 s62, %d" % V_OFF); a("s_sub_u32 s63, s60, 18"); a("s_lshl_b32 s63, s63, 6")
            for t in range(4):
                a("s_lshl_b32 s46, s52, 1"); a("s_xor_b32 s46, s46, %d" % t); a("s_lshl_b32 s46, s46, 4"); a("s_add_u32 s46, s46, s63")
                a("v_add_u32 v212, s46, v%d" % V_R)
                a("v_mul_u32_u24 v213, 1821, v212"); a("v_lshrrev_b32 v213, 16, v213")
                a("v_mul_u32_u24 v214, 36, v213"); a("v_sub_u32 v212, v212, v214")
                a("v_lshl_add_u32 v214, v%d, 4, v212" % V_G)
                a("v_add_u32 v215, 44, v214")
                a("v_cmp_lt_u32 vcc, 19, v212"); a("v_cndmask_b32 v214, v214, v215, vcc")
                a("v_lshl_add_u32 v215, v212, 2, v%d" % V_G); a("v_add_u32 v215, 64, v215")
                a("v_lshrrev_b32 v212, 2, v212"); a("v_cmp_eq_u32 vcc, 4, v212"); a("v_cndmask_b32 v214, v214, v215, vcc")
                a("v_mul_lo_u32 v213, v213, s64"); a("v_lshl_add_u32 v%d, v214, 4, v213" % (208+t))
        a("s_add_u32 s65, s65, s62"); a("s_add_u32 s66, s66, s62")
        for x in dma(56): a(x)
        a("s_add_u32 s56, s56, 32768")
        a("s_waitcnt vmcnt(8)"); a("s_barrier")
        a.stamp("p1_first")
        for x in reads(0): a(x)
        a.label(L)
        a("s_cmp_ge_u32 s58, 7"); a("s_cbranch_scc1 %s_n" % L)
        for dm in (1, 0):
            d = dma(56) if (dm and "p1nodma" not in ABL) else []
            m = mm(0, swap)
            a("s_waitcnt lgkmcnt(0)")
            interleave(a, m[:14], reads(1))
            interleave(a, m[14:], d[:4])
            a("s_add_u32 s58, s58, 1")
            a("s_add_u32 s59, s59, 32768"); a("s_cmp_eq_u32 s59, 163840"); a("s_cselect_b32 s59, 0, s59")
            a("s_waitcnt vmcnt(%d) lgkmcnt(0)" % (4 if dm else 0))
            a("s_barrier")
            m = mm(1, swap); ad = addr("s59")
            interleave(a, m[:3], ad[4:6] + ad[0:4])
            interleave(a, m[3:15], reads(0) + ad[6:8])
            interleave(a, m[15:], d[4:])
            if dm:
                a("s_add_u32 s56, s56, 32768"); a("s_cmp_ge_u32 s56, 163840"); a("s_cselect_b32 s46, 163840, 0"); a("s_sub_u32 s56, s56, s46")
                a("s_branch %s" % L)
                a.label(L + "_n")
            else:
                a("s_cmp_lt_u32 s58, 9"); a("s_cbranch_scc1 %s_n" % L)
        a.stamp("p1_loop")
        a("s_waitcnt lgkmcnt(0)")
        a("v_and_b32 v40, 1, v%d" % V_R); a("v_cmp_eq_u32 s[74:75], 1, v40")
        a("v_and_b32 v40, 2, v%d" % V_R); a("v_cmp_eq_u32 s[76:77], 2, v40")
        a("v_lshrrev_b32 v40, 2, v%d" % V_R); a("v_cmp_eq_u32 s[78:79], v40, v%d" % V_G)
        a("s_mov_b32 s46, %d" % f32(1.0/576)); a("s_mov_b32 s47, %d" % f32(1e-5))
        for T in range(2):
            s_, q_ = ST+8*T, ST+8*T+4
            a("v_cndmask_b32 v%d, v%d, v%d, s[74:75]" % (q_, q_, q_+1)); a("v_cndmask_b32 v%d, v%d, v%d, s[74:75]" % (q_+2, q_+2, q_+3))
            a("v_mul_f32 v%d, s46, v%d" % (s_, s_))
            a("v_cndmask_b32 v%d, v%d, v%d, s[76:77]" % (q_, q_, q_+2))
            a("v_mul_f32 v42, v%d, v%d" % (s_, s_))
            a("v_fma_f32 v%d, v%d, s46, -v42" % (q_, q_)); a("v_max_f32 v%d, 0, v%d" % (q_, q_)); a("v_add_f32 v%d, s47, v%d" % (q_, q_))
            a("v_rsq_f32 v%d, v%d" % (36+2*T, q_)); a("v_mul_f32 v%d, v%d, -v%d" % (37+2*T, 36+2*T, s_))
        a("s_lshl_b32 s46, s52, 9"); a("s_lshl_b32 s47, s53, 8"); a("s_add_u32 s46, s46, s47")
        a("v_lshl_add_u32 v40, v%d, 3, s46" % V_R)
        a("s_mov_b64 exec, s[78:79]")
        a("ds_write_b64 v40, v[36:37]"); a("ds_write_b64 v40, v[38:39] offset:128")
        a("s_mov_b64 exec, -1")
        a("s_lshl_b32 s47, s57, 6")
        if not swap:
            a("v_lshl_add_u32 v41, v%d, 4, s47" % V_G)
            a("ds_write_b128 v41, v[%d:%d] offset:1024" % (CS, CS+3)); a("ds_write_b128 v41, v[%d:%d] offset:1088" % (CS+4, CS+7))
        else:
            a("v_lshl_add_u32 v41, v%d, 2, s47" % V_R)
            a("ds_write_b32 v41, v%d offset:1024" % CS); a("ds_write_b32 v41, v%d offset:1088" % (CS+4))
        a("s_waitcnt lgkmcnt(0)"); a("s_barrier")
        Ls = L + "_s"
        a("s_cmp_ge_u32 s60, 27"); a("s_cbranch_scc1 %s" % Ls)
        a("v_xor_b32 v42, 256, v40"); a("v_xor_b32 v43, 128, v41")
        if not swap:
            RS, CC = 144, 160
            a("ds_read_b64 v[%d:%d], v40" % (RS, RS+1)); a("ds_read_b64 v[%d:%d], v40 offset:128" % (RS+2, RS+3))
            a("ds_read_b64 v[%d:%d], v42" % (RS+4, RS+5)); a("ds_read_b64 v[%d:%d], v42 offset:128" % (RS+6, RS+7))
            for t in range(4):
                a("ds_read_b128 v[%d:%d], v%d offset:%d" % (CC+4*t, CC+4*t+3, 41 if t < 2 else 43, 1024+64*(t&1)))
            a("s_waitcnt lgkmcnt(0)")
            for T in range(4): a("v_pk_mul_f32 v[%d:%d], v[%d:%d], s[72:73] op_sel:[0,1] op_sel_hi:[1,1]" % (RS+2*T, RS+2*T+1, RS+2*T, RS+2*T+1))
            for t in range(4):
                for T in range(4):
                    d = ACC+16*t+4*T
                    for h in range(2):
                        a("v_pk_mul_f32 v[216:217], v[%d:%d], v[%d:%d] op_sel:[0,1] op_sel_hi:[1,1]" % (CC+4*t+2*h, CC+4*t+2*h+1, RS+2*T, RS+2*T+1))
                        a("v_pk_fma_f32 v[%d:%d], v[%d:%d], v[%d:%d], v[216:217] op_sel_hi:[1,0,1]" % (d+2*h, d+2*h+1, d+2*h, d+2*h+1, RS+2*T, RS+2*T+1))
                    e = ACC+16*t+8*(T>>1)+2*(T&1)
                    a("v_cvt_pk_bf16_f32 v%d, v%d, v%d" % (e, d, d+1)); a("v_cvt_pk_bf16_f32 v%d, v%d, v%d" % (e+1, d+2, d+3))
                    if T & 1:
                        a("buffer_store_dwordx4 v[%d:%d], v%d, s[%d:%d], s%d offen sc1" % (e-2, e+1, 208+t, R_WS, R_WS+3, 65+(T>>1)))
        else:
            RS, CC = 144, 176
            a("v_lshl_add_u32 v40, v%d, 5, s46" % V_G); a("v_xor_b32 v42, 256, v40")
            for T in range(4):
                for h in range(2):
                    a("ds_read_b128 v[%d:%d], v%d offset:%d" % (RS+8*T+4*h, RS+8*T+4*h+3, 40 if T < 2 else 42, 128*(T&1)+16*h))
            for t in range(4):
                a("ds_read_b32 v%d, v%d offset:%d" % (CC+t, 41 if t < 2 else 43, 1024+64*(t&1)))
            a("s_waitcnt lgkmcnt(0)")
            for t in range(4):
                for T in range(4):
                    d = ACC+16*t+4*T
                    for i in range(4):
                        a("v_mul_f32 v%d, v%d, v%d" % (216+i, RS+8*T+2*i+1, CC+t))
                    for i in range(4):
                        a("v_fma_f32 v%d, v%d, v%d, v%d" % (d+i, d+i, RS+8*T+2*i, 216+i))
                    e = ACC+16*t+8*(T>>1)+2*(T&1)
                    a("v_cvt_pk_bf16_f32 v%d, v%d, v%d" % (e, d, d+1)); a("v_cvt_pk_bf16_f32 v%d, v%d, v%d" % (e+1, d+2, d+3))
                    if T & 1:
                        a("buffer_store_dwordx4 v[%d:%d], v%d, s[%d:%d], s%d offen sc1" % (e-2, e+1, 208+t, R_WS, R_WS+3, 65+(T>>1)))
        a.label(Ls)
        if not swap: a("s_branch L_p1_pub")
    a.label("L_p1_pub")
    if "d_p1" in ABL: a("s_sleep 64")
    a.stamp("p1_stores")
    L = a.newlabel("Lp1f")
    a("s_cmp_lg_u32 s%d, 0" % S_WAVE); a("s_cbranch_scc1 %s_a" % L)
    a.get_nonce(36)
    a.label(L + "_a")
    a("s_waitcnt vmcnt(0)"); a("s_barrier")
    a("s_cmp_lg_u32 s%d, 0" % S_WAVE); a("s_cbranch_scc1 L_p1_done")
    a("s_lshl_b32 s46, s50, 4"); a("s_add_u32 s46, s46, s51"); a("s_add_u32 s46, s46, %d" % F1)
    a.set_flag(46, 36)
    a("s_branch L_p1_done")
    a.label("L_p1_helper")
    if "d_h1" in ABL: a("s_sleep 64")
    swizzle_setup(a)
    a("s_lshl_b32 s48, s%d, 2" % S_XCD); a("s_add_u32 s48, s48, s%d" % S_SLOT); a("s_sub_u32 s48, s48, 28")
    a("s_waitcnt lgkmcnt(0)")
    if WSOFF: a("s_add_u32 s24, s24, %d" % WSOFF); a("s_addc_u32 s25, s25, 0")
    a.srd(R_WS, S_WS, WS_END)
    publish_nonce(a)
    a("s_add_u32 s49, s48, 32"); a("s_cmp_lt_u32 s49, 54"); a("s_cselect_b32 s49, s49, s48")
    B = 36864
    sw_issue(a, 48, 0, 0); sw_issue(a, 49, 1, B)
    mark_setup(a)
    if MK1: mark_fill(a, MK1)
    a("s_waitcnt vmcnt(0)"); a("s_barrier")
    sw_process(a, 0, 0); sw_process(a, 1, B)
    L = a.newlabel("Lhn"); a("s_cmp_lg_u32 s%d, 0" % S_WAVE); a("s_cbranch_scc1 %s" % L); a.get_nonce(36); a.label(L)
    a("s_waitcnt vmcnt(0)"); a("s_barrier")
    sw_flags(a, (0, 1))
    a.stamp("h_small")
    if MK1 < MKG: mark_fill(a, MKG - MK1)
    a("s_waitcnt vmcnt(0)"); a("s_barrier")
    sw_flags(a, (), mark=True)
    a.label("L_p1_done")
    a.stamp("p1_done")

def generate(stop=99, stamps=False):
    a = G(stop, stamps)
    prologue(a)
    phase1(a)
    from phases import phase2, phase345, phase6
    if stop >= 2: phase2(a)
    if stop >= 3: phase345(a)
    if stop >= 6: phase6(a)
    a.label("L_fin")
    a.stamp_out()
    a.label("L_end")
    a("s_endpgm")
    for x in a.stubs: a(x)
    a.label("L_last")
    body, nops = fix_hazards(a.lines)
    return body, nops

HEADER = """; Fused transformer block (LN, QKV, sliding-window attention, Wo, shift-MLP, channel MLP) as one persistent kernel.
; 256 workgroups of 4 waves, one per CU; phases hand data over through d_ws with write-through stores and flags.
; @launch grid=(256,1,1) block=(256,1,1) lds=163840
.amdgcn_target "amdgcn-amd-amdhsa--gfx950"
.text
.globl %s
.p2align 8
.type %s,@function
%s:
""" % (KN, KN, KN)
FOOTER = """.section .rodata,"a"
.p2align 6
.amdhsa_kernel %s
  .amdhsa_next_free_vgpr 512
  .amdhsa_next_free_sgpr 102
  .amdhsa_accum_offset 256
  .amdhsa_group_segment_fixed_size 0
  .amdhsa_kernarg_size 88
  .amdhsa_user_sgpr_count 2
  .amdhsa_user_sgpr_kernarg_segment_ptr 1
  .amdhsa_system_sgpr_workgroup_id_x 1
.end_amdhsa_kernel
""" % KN

def main():
    import argparse
    p = argparse.ArgumentParser()
    p.add_argument("--stop", type=int, default=99); p.add_argument("--stamps", default=""); p.add_argument("--wsoff", type=int, default=0); p.add_argument("--rt", action="store_true")
    p.add_argument("-o", default="k.s")
    o = p.parse_args()
    global WSOFF, CLK
    if o.rt: CLK = 's_memrealtime'
    WSOFF = o.wsoff << 20
    st = STAMPSETS.get(o.stamps, o.stamps.split(',')) if o.stamps else None
    if st:
        st = ['start'] + list(st) + ['end']; assert len(st) <= 16
        open(o.o[:-2] + '.stamps', 'w').write(','.join(st))
    body, nops = generate(o.stop, st)
    text = HEADER + "\n".join(("" if l.endswith(":") else "  ") + l for l in body) + "\n" + FOOTER
    open(o.o, "w").write(text)
    build(o.o, o.o[:-2] + ".co", KN)
    n = sum(1 for l in body if l and not l.endswith(":"))
    print("instructions", n, "nop states added", nops)
    for nm, takes in TRACES.items():
        errs = check_waits(body, takes)
        for e in errs[:10]: print("WAIT[%s]" % nm, e)

STAMPSETS = {
 "all": "p1_first p1_loop p1_done p2_ready p2_loaded p2_done p3_ready p4_ready p5_ready p5_done p6_ready p6_x p6_a p6_b".split(),
 "p1": "p1_issue p1_first p1_loop p1_stores p1_done p2_ready p2_loaded p2_done p3_ready p4_ready p5_ready p5_done p6_ready p6_x".split(),
 "p3k": "p2_done p3_ready p3_k0 p3_k9 p3_gemm p4_ready p4_k0 p4_k9 p4_gemm p5_ready p5_k0 p5_k9 p5_gemm".split(),
 "hop": "p1_stores p1_done p2_ready p2_loaded p2_done p3_ready p3_epi p4_ready p4_epi p5_ready p5_epi p6_ready p6_x p6_b".split(),
 "p6": "p5_epi p6_ready p6_x p6_p0 p6_a p6_s0 p6_s6 p6_s7 p6_b p7_ready".split(),
 "h": "h_small p1_stores p1_done p2_setup p2_ready p2_loaded p2_done".split(),
 "p4k": "p3_k0 p3_k9 p3_gemm p3_epi p4_ready p4_k0 p4_k9 p4_gemm p4_epi p5_ready p5_k0 p5_k9 p5_gemm p5_epi".split(),
 "p6x": "p2_done h_w3 h_w4 p5_gemm p5_epi p5_done p6_ready p6_st p6_x9 p6_x17 p6_x p6_p0".split(),
 "p3": "p2_done p3_dma p3_drain p3_ready p3_gemm p3_epi p4_dma p4_drain p4_ready p4_gemm p4_epi p5_drain p5_ready p5_gemm".split(),
}
TRACES = {"w012": {"L_p7_main": True, "L_p1_qk_n": [False,True,False]}, "h3": {"L_p3_helper": True, "L_p1_qk_n": [False,True,False]}, "edge": {"L_p2_edge": True, "L_p1_qk_n": [False,True,False]}, "qk": {"L_p1_qk_n": [False,False,True,True,False]}, "v": {"L_p1_v0": True, "L_p1_v_n": [False,False,True,True,False]}, "helper": {"L_p1_helper": True}}

if __name__ == "__main__":
    sys.modules["gen"] = sys.modules["__main__"]
    main()
```

```python
from gen import *

NEG = 0xF149F2CA
SLEEP0 = dict(p2=0, p3=8, p4=0, p5=0, p6=18)
for _kv in os.environ.get('SLEEP', '').split(','):
    if _kv: SLEEP0[_kv.split('=')[0]] = int(_kv.split('=')[1])

W_LDS = 53248
AW1, AW2 = 40, 148
XT = 232
PA, PS, R_C = 244, (3, 27, 45), R_B

def pf_lds(i):
    gq, k = divmod(i, 9)
    pre = ("s_mul_i32 s58, s79, %d\ns_add_u32 s58, s58, s73\ns_add_u32 m0, s58, %d\n" % (gq, 1024*k)) if k == 0 or i == 2 else ""
    post = "\ns_add_u32 m0, m0, 1024" if k < 8 and i != 1 else ""
    return pre + "buffer_load_dwordx4 v%d, s[%d:%d], s%d offen sc1 lds" % (PA+k, R_C, R_C+3, PS[gq]) + post

def roles345(a):
    a("s_lshr_b32 s46, s%d, 3" % S_SLOT); a("s_lshl_b32 s74, s%d, 2" % S_XCD); a("s_add_u32 s74, s74, s46"); a("s_add_u32 s75, s%d, 6" % S_SLOT); a("s_and_b32 s75, s75, 7")
    a("s_lshl_b32 s76, s74, 2"); a("s_add_u32 s76, s76, s%d" % S_WAVE)

def phase2(a):
    KL_, VL_ = 0, 27648
    a("s_lshr_b32 s50, s%d, 1" % S_SLOT); a("s_and_b32 s51, s%d, 1" % S_SLOT); a("s_lshl_b32 s46, s%d, 1" % S_XCD); a("s_add_u32 s51, s51, s46")
    a("s_mul_i32 s52, s51, %d" % HPSZ)
    a("s_add_u32 s46, s52, %d" % K_OFF); a.srd_s(R_A, S_WS, HPSZ, 46)
    a("s_add_u32 s46, s52, %d" % V_OFF); a.srd_s(R_B, S_WS, HPSZ, 46)
    a("s_mul_i32 s46, s50, 9216"); a("s_sub_u32 s46, s46, 18432"); a("s_lshl_b32 s47, s%d, 10" % S_WAVE); a("s_add_u32 s46, s46, s47")
    a("v_add_u32 v10, s46, v%d" % V_L16)
    for i in range(1, 7): a("v_add_u32 v%d, %d, v10" % (10+i, 4096*i))
    a("s_lshl_b32 s46, s50, 3"); a("s_lshl_b32 s53, s%d, 1" % S_WAVE); a("s_add_u32 s53, s53, s46")
    a("s_mul_i32 s54, s53, 1152"); a("s_add_u32 s54, s54, s52"); a("s_add_u32 s54, s54, %d" % Q_OFF)
    a("v_lshlrev_b32 v18, 4, v%d" % V_R)
    a("s_mul_i32 s46, s%d, 2304" % S_WAVE)
    a("v_add_u32 v20, s46, v%d" % V_L16)
    a("s_add_u32 s47, s46, 2048"); a("v_add_u32 v21, s47, v18")
    a("s_add_u32 s47, s46, %d" % VL_); a("v_add_u32 v22, s47, v%d" % V_L16)
    a("v_lshl_add_u32 v23, v%d, 2, v%d" % (V_R, V_G)); a("s_add_u32 s47, s47, 2048"); a("v_lshl_add_u32 v23, v23, 4, s47")
    for i in range(4):
        a("v_lshl_add_u32 v24, v%d, 2, %d" % (V_G, i)); a("v_cmp_gt_u32 s[%d:%d], v24, v%d" % (60+2*i, 61+2*i, V_R))
    a("v_cmp_eq_u32 s[68:69], 0, v%d" % V_G)
    a("v_mov_b32 v25, 0x%x" % NEG)
    for r in range(4): a("v_mov_b32 v%d, -1" % (228+r))
    a("v_and_b32 v225, 31, v%d" % V_LANE); a("v_lshlrev_b32 v225, 2, v225")
    VLA = 0
    for r in range(36): a("v_accvgpr_write_b32 a%d, s%d" % (VLA+r, S_ONES))
    roles345(a)
    a("s_mul_i32 s46, s75, 110592"); a("s_mul_i32 s47, s%d, 27648" % S_WAVE); a("s_add_u32 s70, s46, s47"); a("s_add_u32 s70, s70, %d" % WO_S)
    a("s_add_u32 s71, s70, %d" % SW); a("s_add_u32 s72, s71, %d" % SW)
    a("s_cmp_ge_u32 s75, 6"); a("s_cbranch_scc1 L_p2_hs")
    a("s_add_u32 s73, s47, %d" % W_LDS); a("s_mov_b32 s79, 9216")
    for gq in range(3): a("s_add_u32 s%d, s70, %d" % (PS[gq], 9216*gq))
    for i in range(9): a("v_add_u32 v%d, %d, v%d" % (PA+i, 1024*i, V_L16))
    a("s_mov_b32 s10, s%d" % S_WS); a("s_mov_b32 s11, s%d" % (S_WS+1)); a("s_mov_b32 s26, %d" % WS_END)
    a("s_branch L_p2_hd")
    a.label("L_p2_hs")
    a("s_mov_b32 s71, 0x70000000")
    a("s_mul_i32 s47, s%d, 9216" % S_WAVE); a("s_add_u32 s73, s47, %d" % W_LDS); a("s_mov_b32 s79, 36864")
    a("s_lshl_b32 s48, s74, 1"); a("s_add_u32 s48, s48, s75"); a("s_sub_u32 s48, s48, 6"); a("s_mul_i32 s48, s48, 3")
    a("s_cmp_lt_u32 s48, 144"); a("s_cselect_b32 s10, s%d, s%d" % (S_W3, S_W4)); a("s_cselect_b32 s11, s%d, s%d" % (S_W3+1, S_W4+1))
    a("s_cselect_b32 s49, 1152, 0"); a("s_cselect_b32 s59, 0, 144"); a("s_mov_b32 s46, 1152"); a("s_cselect_b32 s78, 9216, s46")
    a("s_mov_b32 s26, %d" % BW)
    for gq in range(3):
        a("s_add_u32 s46, s48, %d" % gq); a("s_sub_u32 s46, s46, s59")
        a.sdiv(47, 56, 46, 18)
        a("s_cmp_eq_u32 s59, 0"); a("s_cselect_b32 s56, s56, s46")
        a("s_lshl_b32 s56, s56, 2"); a("s_add_u32 s56, s56, s%d" % S_WAVE); a("s_lshl_b32 s56, s56, 3"); a("s_mul_i32 s56, s56, s78")
        a("s_mul_i32 s47, s47, s49"); a("s_add_u32 s%d, s56, s47" % (PS[gq]))
    if "h2" in ABL: a("s_mov_b32 s26, s%d" % PS[2]); a("s_mov_b32 s%d, 0x70000000" % PS[2]); a("s_mov_b32 s57, s26"); a("s_mov_b32 s26, %d" % BW)
    for i in range(9):
        a("v_add_u32 v24, %d, v%d" % (64*i, V_LANE)); a("v_mul_u32_u24 v26, 911, v24"); a("v_lshrrev_b32 v26, 16, v26")
        a("v_mul_u32_u24 v27, 72, v26"); a("v_sub_u32 v27, v24, v27"); a("v_mul_lo_u32 v26, v26, s78"); a("v_lshl_add_u32 v%d, v27, 4, v26" % (PA+i))
    a.label("L_p2_hd")
    a("v_mul_u32_u24 v7, 1152, v%d" % V_R); a("v_lshl_add_u32 v7, v%d, 4, v7" % V_G)
    a("s_mul_i32 s46, s76, 18432"); a("s_mul_i32 s47, s75, 192"); a("s_add_u32 s77, s46, s47")
    a("s_cmp_ge_u32 s75, 6"); a("s_cselect_b32 s77, 0x70000000, s77")
    L = a.newlabel("Lp2w")
    a("s_cmp_lg_u32 s%d, 0" % S_WAVE); a("s_cbranch_scc1 %s" % L)
    a("v_lshrrev_b32 v30, 2, v%d" % V_LANE); a("v_min_u32 v30, 2, v30"); a("v_add_u32 v30, s50, v30"); a("v_subrev_u32 v30, 2, v30"); a("v_max_i32 v30, 0, v30")
    a("v_bfe_u32 v31, v%d, 1, 1" % V_LANE); a("v_add_u32 v31, 1, v31"); a("v_cmp_gt_u32 vcc, 12, v%d" % V_LANE); a("v_cndmask_b32 v31, 0, v31, vcc")
    a("v_mul_u32_u24 v31, 576, v31"); a("v_and_b32 v32, 1, v%d" % V_LANE); a("v_mul_u32_u24 v32, 35, v32")
    a("s_mul_i32 s46, s51, 36"); a("v_add3_u32 v31, v31, v32, s46"); a("v_lshrrev_b32 v31, 7, v31")
    a("v_lshl_add_u32 v30, v30, 4, v31"); a("v_add_u32 v30, %d, v30" % F1)
    a.stamp("p2_setup")
    a.poll(30, 31, sleep0=SLEEP0["p2"])
    a.label(L)
    a("s_barrier")
    a("v_min_u32 v38, 53, v%d" % V_LANE); a("v_add_u32 v38, %d, v38" % FS); a("v_lshlrev_b32 v38, 7, v38")
    fsq = "buffer_load_dword v39, v38, s[%d:%d], 0 offen offset:%d sc1" % (R_WS, R_WS+3, FLAG0)
    a.stamp("p2_ready")
    QR = 26
    a("s_lshl_b32 s46, s%d, 10" % S_WAVE)
    for R, base in ((R_A, KL_), (R_B, VL_)):
        for i in range(7):
            Ls = a.newlabel("Lp2d")
            if i == 6: a("s_cmp_eq_u32 s%d, 3" % S_WAVE); a("s_cbranch_scc1 %s" % Ls)
            a("s_add_u32 m0, s46, %d" % (base + 4096*i))
            a("buffer_load_dwordx4 v%d, s[%d:%d], 0 offen sc1 lds" % (10+i, R, R+3))
            if i == 6: a.label(Ls)
        if R == R_A:
            a("buffer_load_dwordx4 v[%d:%d], v%d, s[%d:%d], s54 offen sc1" % (QR, QR+3, V_L16, R_WS, R_WS+3))
            a("buffer_load_dwordx4 v[%d:%d], v18, s[%d:%d], s54 offen offset:2048 sc1" % (QR+4, QR+7, R_WS, R_WS+3))
            a("buffer_load_dwordx4 v[%d:%d], v%d, s[%d:%d], s54 offen offset:1024 sc1" % (QR+8, QR+11, V_L16, R_WS, R_WS+3))
            a(fsq)
    a.srd(R_A, S_X, ACT)
    a("s_mov_b32 s%d, s10" % R_C); a("s_mov_b32 s%d, s11" % (R_C+1)); a("s_mov_b32 s%d, s26" % (R_C+2)); a("s_mov_b32 s%d, 0x20000" % (R_C+3))
    QF = 40
    a("s_waitcnt vmcnt(6)")
    for hd in range(2):
        for qt in range(2):
            q = QF + 12*hd + 6*qt
            for h in range(2): a("v_mov_b32 v%d, v%d" % (q+2+h, QR+8*hd+2*qt+h))
            a("v_cndmask_b32 v%d, 0, v%d, s[68:69]" % (q+hd, QR+4+2*qt+hd)); a("v_mov_b32 v%d, 0" % (q+1-hd))
            for h in range(2): a("v_mov_b32 v%d, v%d" % (q+4+h, q+h))
    MF, ML = 8, 12
    for i in range(4):
        a("v_cndmask_b32 v%d, v25, 0, s[%d:%d]" % (MF+i, 60+2*i, 61+2*i)); a("v_cndmask_b32 v%d, 0, v25, s[%d:%d]" % (ML+i, 60+2*i, 61+2*i))
    a("s_lshl_b32 s55, s50, 3"); a("s_lshl_b32 s46, s%d, 1" % S_WAVE); a("s_add_u32 s55, s55, s46"); a("s_sub_u32 s55, 16, s55")
    a("s_lshl_b32 s56, s2, 2"); a("s_add_u32 s56, s56, s%d" % S_WAVE); a("s_mul_i32 s56, s56, 5120"); a("s_min_u32 s56, s56, %d" % (WO_S - T_OFF - 5120)); a("s_add_u32 s56, s56, %d" % T_OFF)
    L = a.newlabel("Lfs")
    a("s_cmp_lg_u32 s%d, 0" % S_WAVE); a("s_cbranch_scc1 %s" % L)
    a("v_cmp_ne_u32 vcc, s%d, v39" % S_NONCE); a("s_cbranch_vccz %s" % L)
    a("v_lshrrev_b32 v38, 7, v38")
    a.poll(38, 39, sleep0=0)
    a.label(L)
    a("s_waitcnt vmcnt(6)"); a("s_barrier")
    a.stamp("p2_loaded")
    a("s_cmp_lt_u32 s50, 2"); a("s_cbranch_scc1 L_p2_edge")
    M, NM, CZ = 16, 216, 26
    KF = 64
    S2, P, VM = 136, 168, 184
    S1 = S2
    OM, OL, R_, OUT = 192, 200, 32, 208
    marks = "s_mov_b32 s46, %d\nbuffer_load_dword v224, v225, s[%d:%d], s46 offen sc1" % (FP_OFF, R_WS, R_WS+3)
    def prefetch():
        o = [pf_lds(i) for i in range(2, 27)]
        for jj in range(3): o.append("buffer_load_dwordx4 v[%d:%d], v7, s[%d:%d], s77 offen offset:%d" % (XT+4*jj, XT+4*jj+3, R_A, R_A+3, 64*jj))
        for sb, ab in ((71, AW1),):
            for i in range(27):
                pre = "s_add_u32 s59, s%d, %d\n" % (sb, 1024*i) if i % 4 == 0 else ""
                o.append(pre + "buffer_load_dwordx4 a[%d:%d], v%d, s[%d:%d], s59 offen offset:%d sc1" % (ab+4*i, ab+4*i+3, V_L16, R_WS, R_WS+3, 1024*(i & 3)))
        return o
    for edge in (0, 1):
      if edge: a.label("L_p2_edge")
      pf = prefetch()
      if "x_nopf" in ABL: pf = ["s_nop 0"]*55
      if "x_nomk" in ABL: pf = ["s_nop 0" if "store" in x else x for x in pf]
      if "x_now1" in ABL: pf = ["s_nop 0" if " a[" in x else x for x in pf]
      def take(n):
          o = pf[:n]; del pf[:n]; return o
      for head in range(2):
        def Q(qt, t): return QF + 12*head + 6*qt + 2*(t & 1)
        def K(t): return KF + 4*t
        def kread(m):
            o = ["ds_read_b128 v[%d:%d], v20 offset:%d" % (KF+8*m+2, KF+8*m+5, 2304*m + 1024*head)]
            if head == 0: o += ["ds_read_b64 v[%d:%d], v21 offset:%d" % (KF+8*m+6*b, KF+8*m+6*b+1, 2304*m + 8*b) for b in range(2)]
            return o
        def vleft(m): return "ds_read_b128 a[%d:%d], v23 offset:%d" % (VLA+4*m, VLA+4*m+3, 2304*m + 128*head)
        def vmain(m): return "ds_read_b128 v[%d:%d], v22 offset:%d" % (VM+4*(m & 1), VM+4*(m & 1)+3, 2304*m + 1024*head)
        def has(qt, t): return (t <= 16) if qt == 0 else (t >= 1)
        def mask(reg, qt, t):
            o = []
            for i in range(4):
                if t == qt: o.append("v_cndmask_b32 v%d, v25, v%d, s[%d:%d]" % (reg+i, reg+i, 60+2*i, 61+2*i))
                if t == 16+qt: o.append("v_cndmask_b32 v%d, v%d, v25, s[%d:%d]" % (reg+i, reg+i, 60+2*i, 61+2*i))
            return o
        def switch(t, moves):
            Ls = a.newlabel("Lsw")
            a("s_cmp_eq_u32 s55, %d" % t); a("s_cbranch_scc0 %s" % Ls)
            for x in moves: a(x)
            a.label(Ls)
        if head:
            L = a.newlabel("Lmk")
            a("s_cmp_lg_u32 s%d, 0" % S_WAVE); a("s_cbranch_scc1 %s_x" % L)
            a("s_mov_b32 s47, 100000"); a("s_waitcnt vmcnt(%d)" % (npf0 - len(pf)))
            a.label(L)
            a("v_cmp_ne_u32 vcc, s%d, v224" % S_NONCE)
            a("s_cbranch_vccz %s_x" % L)
            a("s_sleep 2"); a(marks); a("s_waitcnt vmcnt(0)")
            a("s_sub_u32 s47, s47, 1"); a("s_cbranch_scc0 %s" % L)
            a.label(L + "_x")
            a("s_waitcnt vmcnt(20)"); a("s_barrier")
            publish2(a, 224)
        AH = 3
        for m in range(AH):
            for x in kread(m): a(x)
        a("v_mov_b32 v%d, v25" % M); a("v_mov_b32 v%d, v25" % (M+1))
        if edge:
            for i in range(4): a("v_mov_b32 v%d, v25" % (CZ+i))
        def c1(qt, t): return CZ if edge else MF if t == qt else ML if t == 16+qt else None
        def maxes(t):
            o = []
            for qt in range(2):
                if not has(qt, t): continue
                s = S1 + 8*(t % 3) + 4*qt
                if edge: o += mask(s, qt, t)
                o.append("v_max3_f32 v%d, v%d, v%d, v%d" % (M+qt, s, s+1, M+qt))
            for qt in range(2):
                if not has(qt, t): continue
                s = S1 + 8*(t % 3) + 4*qt
                o.append("v_max3_f32 v%d, v%d, v%d, v%d" % (M+qt, s+2, s+3, M+qt))
            return o
        for t in range(18):
            if t % 2 == 0:
                if edge: switch(t, ["v_mov_b32 v%d, 0" % (CZ+i) for i in range(4)])
                a("s_waitcnt lgkmcnt(%d)" % (len(kread(0))*min(AH-1, 8 - t//2)))
            ms = [mfma(S1+8*(t % 3)+4*qt, K(t), Q(qt, t), c1(qt, t)) for qt in range(2) if has(qt, t)]
            fill = (kread(t//2+AH) if t % 2 == 0 and t//2+AH < 9 else []) + (maxes(t-2) if t >= 2 else []) + (take(1) if t % 3 == 1 and head else [])
            interleave(a, ms, fill)
        if head == 0:
            a("s_waitcnt vmcnt(%d)" % (55 - len(pf))); a("s_barrier")
            for q in range(5):
                if q == 4: a("s_add_u32 s56, s56, 4096")
                if "x_nomk" not in ABL: a("buffer_store_dwordx4 v[228:231], v%d, s[%d:%d], s56 offen offset:%d sc1" % (V_L16, R_WS, R_WS+3, 1024*(q & 3)))
            npf0 = len(pf); a(marks)
        a("s_mov_b32 exec_lo, 0x00030003"); a("s_mov_b32 exec_hi, 0x00030003")
        for m in range(9): a(vleft(m))
        a("s_mov_b64 exec, -1")
        a(vmain(0))
        for x in maxes(16) + maxes(17): a(x)
        for sw in ("v_permlane32_swap_b32", "v_permlane16_swap_b32"):
            for qt in range(2): a("v_mov_b32 v%d, v%d" % (30+qt, M+qt))
            for qt in range(2): a("%s v%d, v%d" % (sw, M+qt, 30+qt))
            for qt in range(2): a("v_max_f32 v%d, v%d, v%d" % (M+qt, M+qt, 30+qt))
        negs = ["v_sub_f32 v%d, 0, v%d" % (NM+4*qt+i, M+qt) for qt in range(2) for i in range(4)]
        if edge:
            for i in range(8): a("v_mov_b32 v%d, v25" % (NM+i))
        else:
            for x in negs: a(x)
        def qk(m):
            return [mfma(S2+16*(m & 1)+8*qt+4*b, K(2*m+b), Q(qt, b), NM+4*qt) for qt in range(2) for b in range(2) if has(qt, 2*m+b)]
        def pv(m):
            o = []
            for qt in range(2):
                p = P+8*(m & 1)+4*qt
                o.append(mfma(OM+4*qt, VM+4*(m & 1), p, None if m == 0 else OM+4*qt))
                o.append(mfma(OL+4*qt, VLA+4*m, p, None if m == 0 else OL+4*qt, ta="a"))
            return o
        for x in qk(0): a(x)
        for m in range(9):
            if edge and m < 8: switch(2*m+2, negs)
            mf = (qk(m+1) if m < 8 else []) + (pv(m-1) if m else [])
            va = []
            ld = take(3 if (m % 3 or head == 0) else 2)
            for qt in range(2):
                p = P+8*(m & 1)+4*qt
                for b in range(2):
                    s = S2+16*(m & 1)+8*qt+4*b
                    if has(qt, 2*m+b):
                        va += mask(s, qt, 2*m+b)
                        va += ["v_exp_f32 v%d, v%d" % (s+i, s+i) for i in range(4)]
                    if ld and (b == 0 or qt == 0): va.append(ld.pop(0))
                for b in range(2):
                    s = S2+16*(m & 1)+8*qt+4*b
                    if has(qt, 2*m+b):
                        va += ["v_cvt_pk_bf16_f32 v%d, v%d, v%d" % (p+2*b+h, s+2*h, s+2*h+1) for h in range(2)]
                    else:
                        va += ["v_mov_b32 v%d, 0" % (p+2*b+h) for h in range(2)]
            if m: a("s_waitcnt lgkmcnt(1)")
            interleave(a, mf, va)
            if m < 8: a(vmain(m+1))
        a("s_waitcnt lgkmcnt(0)")
        for x in pv(8): a(x)
        if head == 1:
            assert not pf
            a("s_mul_i32 s54, s53, 18432"); a("s_add_u32 s54, s54, %d" % O_OFF)
            a("s_lshl_b32 s46, s51, 10"); a("s_add_u32 s58, s46, s54"); a("s_add_u32 s59, s58, 18432")
            a("s_lshr_b32 s46, s51, 3"); a("s_add_u32 s46, s46, 16"); a("s_lshl_b32 s46, s46, 10"); a("s_add_u32 s54, s54, s46")
            a("s_and_b32 s46, s51, 7"); a("s_lshr_b32 s46, s46, 1"); a("s_lshl_b32 s46, s46, 8"); a("s_add_u32 s54, s54, s46")
            a("s_and_b32 s46, s51, 1"); a("s_lshl_b32 s46, s46, 3"); a("s_add_u32 s54, s54, s46"); a("s_add_u32 s47, s54, 18432")
        for qt in range(2): a("v_rcp_f32 v%d, v%d" % (30+qt, OL+4*qt+3))
        for qt in range(2):
            for i in range(4): a("v_mul_f32 v%d, v%d, v%d" % (OM+4*qt+i, OM+4*qt+i, 30+qt))
            for i in range(2): a("v_mul_f32 v%d, v%d, v%d" % (OL+4*qt+i, OL+4*qt+i, 30+qt))
        for qt in range(2):
            for h in range(2): a("v_cvt_pk_bf16_f32 v%d, v%d, v%d" % (OUT+4*qt+2*head+h, OM+4*qt+2*h, OM+4*qt+2*h+1))
            a("v_cvt_pk_bf16_f32 v%d, v%d, v%d" % (R_+2*qt+head, OL+4*qt, OL+4*qt+1))
      if not edge: a("s_branch L_p2_out")
    a.label("L_p2_out")
    a("buffer_store_dwordx4 v[%d:%d], v%d, s[%d:%d], s58 offen sc1" % (OUT, OUT+3, V_L16, R_WS, R_WS+3))
    a("buffer_store_dwordx4 v[%d:%d], v%d, s[%d:%d], s59 offen sc1" % (OUT+4, OUT+7, V_L16, R_WS, R_WS+3))
    a("s_mov_b64 exec, 0xffff")
    a("buffer_store_dwordx2 v[%d:%d], v%d, s[%d:%d], s54 offen sc1" % (R_, R_+1, V_L16, R_WS, R_WS+3))
    a("buffer_store_dwordx2 v[%d:%d], v%d, s[%d:%d], s47 offen sc1" % (R_+2, R_+3, V_L16, R_WS, R_WS+3))
    a("s_mov_b64 exec, -1")
    a.stamp("p2_done")
    if a.stop == 2:
        a("s_waitcnt vmcnt(0)")

_c0 = 2.0*math.log2(math.e)*math.sqrt(2/math.pi)
GS = (_c0*0.044715)**(1/3)
GK = _c0/GS

def gelu_consts(a): a("s_mov_b32 s48, %d" % f32(GS)); a("s_mov_b32 s49, %d" % f32(GK))

def gelu_poly(regs, t):
    o = ["v_pk_fma_f32 v[%d:%d], v[%d:%d], v[%d:%d], s[48:49] op_sel:[0,0,1] op_sel_hi:[1,1,1]" % (t+2*k, t+2*k+1, r, r+1, r, r+1) for k, r in enumerate(regs)]
    return o + ["v_pk_mul_f32 v[%d:%d], v[%d:%d], v[%d:%d]" % (t+2*k, t+2*k+1, t+2*k, t+2*k+1, r, r+1) for k, r in enumerate(regs)]

def gelu_pk(a, regs, t):
    for x in gelu_poly(regs, t): a(x)
    for k in range(2*len(regs)): a("v_exp_f32 v%d, -v%d" % (t+k, t+k))
    for k, r in enumerate(regs): a("v_pk_fma_f32 v[%d:%d], v[%d:%d], s[48:49], s[48:49] op_sel_hi:[1,0,0]" % (t+2*k, t+2*k+1, t+2*k, t+2*k+1))
    for k in range(2*len(regs)): a("v_rcp_f32 v%d, v%d" % (t+k, t+k))
    for k, r in enumerate(regs): a("v_pk_mul_f32 v[%d:%d], v[%d:%d], v[%d:%d]" % (r, r+1, r, r+1, t+2*k, t+2*k+1))

def stats_loads(a, off, stile, vt):
    a("v_lshlrev_b32 v%d, 3, v%d" % (vt+4, V_LANE))
    a("v_add_u32 v%d, 512, v%d" % (vt+5, vt+4)); a("v_cmp_gt_u32 vcc, 32, v%d" % V_LANE); a("v_mov_b32 v%d, 0x7fffffff" % vt)
    a("v_cndmask_b32 v%d, v%d, v%d, vcc" % (vt+5, vt, vt+5))
    a("s_mul_i32 s46, s%d, 768" % stile); a("s_add_u32 s46, s46, %d" % off)
    return ["buffer_load_dwordx2 v[%d:%d], v%d, s[%d:%d], s46 offen sc1" % (vt+2*k, vt+2*k+1, vt+4+k, R_WS, R_WS+3) for k in range(2)]

def stats_finish(a, vt, vmean, vrstd):
    a("v_add_f32 v%d, v%d, v%d" % (vt, vt, vt+2)); a("v_add_f32 v%d, v%d, v%d" % (vt+1, vt+1, vt+3))
    for sw in ("v_permlane32_swap_b32", "v_permlane16_swap_b32"):
        for k in range(2): a("v_mov_b32 v%d, v%d" % (vt+2+k, vt+k))
        for k in range(2): a("%s v%d, v%d" % (sw, vt+k, vt+2+k))
        for k in range(2): a("v_add_f32 v%d, v%d, v%d" % (vt+k, vt+k, vt+2+k))
    a("s_mov_b32 s47, %d" % f32(1.0/576))
    a("v_mul_f32 v%d, s47, v%d" % (vmean, vt)); a("v_mul_f32 v%d, v%d, v%d" % (vt, vmean, vmean))
    a("v_fma_f32 v%d, v%d, s47, -v%d" % (vt+1, vt+1, vt)); a("v_max_f32 v%d, 0, v%d" % (vt+1, vt+1))
    a("v_add_f32 v%d, %d, v%d" % (vt, f32(1e-5), vt+1)); a("v_rsq_f32 v%d, v%d" % (vrstd, vt))

def norm_ops(x, vs, vb, t):
    o = []
    for r in range(4):
        o.append("v_lshlrev_b32 v%d, 16, v%d" % (t+2*r, x+r)); o.append("v_and_b32 v%d, 0xffff0000, v%d" % (t+2*r+1, x+r))
    for r in range(8): o.append("v_fma_f32 v%d, v%d, v%d, v%d" % (t+r, t+r, vs, vb))
    for r in range(4): o.append("v_cvt_pk_bf16_f32 v%d, v%d, v%d" % (x+r, t+2*r, t+2*r+1))
    return o

def out_stats(a, pk, n, vt, off):
    a("v_mov_b32 v%d, 0" % vt); a("v_mov_b32 v%d, 0" % (vt+1))
    for r in range(n):
        a("v_dot2c_f32_bf16 v%d, s%d, v%d" % (vt, S_ONES, pk+r)); a("v_dot2c_f32_bf16 v%d, v%d, v%d" % (vt+1, pk+r, pk+r))
    for sw in ("v_permlane32_swap_b32", "v_permlane16_swap_b32"):
        for k in range(2): a("v_mov_b32 v%d, v%d" % (vt+2+k, vt+k))
        for k in range(2): a("%s v%d, v%d" % (sw, vt+k, vt+2+k))
        for k in range(2): a("v_add_f32 v%d, v%d, v%d" % (vt+k, vt+k, vt+2+k))
    a("s_mul_i32 s46, s53, 6"); a("s_add_u32 s46, s46, s51"); a("s_lshl_b32 s46, s46, 7"); a("s_add_u32 s46, s46, %d" % off)
    a("v_lshlrev_b32 v%d, 3, v%d" % (vt+2, V_LANE))
    a("s_mov_b64 exec, 0xffff")
    a("buffer_store_dwordx2 v[%d:%d], v%d, s[%d:%d], s46 offen sc1" % (vt, vt+1, vt+2, R_WS, R_WS+3))
    a("s_mov_b64 exec, -1")

AF, ACC, WB, HK, VMEAN, VRSTD = 64, 136, 160, 40, 52, 53
OS = WB

def tag_ops(regs, t):
    o = []; regs = list(regs)
    o.append("v_max3_u32 v%d, v%d, v%d, v%d" % (t, regs[0], regs[1], regs[2])); regs = regs[3:]
    while len(regs) >= 2: o.append("v_max3_u32 v%d, v%d, v%d, v%d" % (t, t, regs[0], regs[1])); regs = regs[2:]
    if regs: o.append("v_max_u32 v%d, v%d, v%d" % (t, t, regs[0]))
    return o + ["v_cmp_eq_u32 vcc, -1, v%d" % t]

def tag_branch(a, loads, regs, t, again=(), drain=False):
    L = a.newlabel("Ltg")
    a("s_cbranch_vccnz %s" % L)
    a.label(L + "_b")
    st = [L + ":"] + "\n".join(loads).split("\n") + ["s_waitcnt vmcnt(0)"] + tag_ops(regs, t)
    st += ["s_cmp_eq_u32 s79, 0", "s_cbranch_scc1 %s_b" % L, "s_sub_u32 s79, s79, 1", "s_cbranch_vccnz %s" % L]
    st += list(again) + (["s_waitcnt vmcnt(0)"] if drain and again else []) + ["s_branch %s_b" % L]
    a.stubs += st

UP = 8
NE = 12
def wpos(layout, b):
    if layout is None: return W_LDS//1024 + b
    w, i = divmod(b, 27)
    return layout[0] + NE*w + i if i < NE else layout[1] + (27-NE)*w + i - NE

def gemm96(a, loads, stage, delay, pre=(), each=None, stamp=None, extra=(), layout=None, early=(), before=None, after=None):
    a("s_waitcnt vmcnt(20)")
    a("s_barrier")
    nv = sum("buffer_load" in x for x in stage)
    n1 = len(stage) if nv else len(stage)//3
    for x in stage[:n1]: a(x)
    if delay: a("s_sleep %d" % delay)
    a("s_mov_b32 s79, 50000")
    a.stamp(stamp + "_ready")
    for x in pre: a(x)
    interleave(a, loads[:UP], stage[n1:])
    a("s_waitcnt vmcnt(%d) lgkmcnt(0)" % (UP + len(pre)))
    if before: before(a)
    a("s_barrier")
    def wr(j):
        o = []
        for t in range(6):
            q, r = divmod(wpos(layout, 18*t + j), 64)
            o.append("ds_read_b128 v[%d:%d], v%d offset:%d" % (WB+24*(j % 3)+4*t, WB+24*(j % 3)+4*t+3, (V_L16, 5, 6)[q], 1024*r))
        return o
    for x in early: a(x)
    if each: each(lambda: [a(x) for x in wr(0) + wr(1)])
    else:
        for x in wr(0) + wr(1): a(x)
    a("s_waitcnt vmcnt(%d)" % (UP-1))
    fr = lambda j: range(AF+4*j, AF+4*j+4)
    for x in tag_ops(fr(0), 30): a(x)
    tag_branch(a, [loads[0]], fr(0), 30, loads[1:UP])
    if after: after(a)
    for j in range(18):
        ex = lambda q: min(len(extra), max(0, (q-9)*len(extra)//8))
        issued = min(18, UP+j) + ex(j)
        a("s_waitcnt vmcnt(%d) lgkmcnt(%d)" % (issued - 1 - min(j+1, 17), 6 if j < 17 else 0))
        if j in (0, 9): a.stamp(stamp + "_k%d" % j)
        ms = [mfma(ACC+4*t, WB+24*(j % 3)+4*t, AF+4*j, None if j == 0 else ACC+4*t) for t in range(6)]
        fill = ([loads[UP+j]] if UP+j < 18 else []) + (tag_ops(fr(j+1), 30) if j < 17 else []) + (wr(j+2) if j < 16 else []) + list(extra[ex(j):ex(j+1)])
        interleave(a, ms, fill)
        if j < 17: tag_branch(a, [loads[j+1]], fr(j+1), 30, loads[j+2:UP+j+1], drain=ex(j+1) > 0)

FP2Q = "s_mov_b32 s46, %d\nbuffer_load_dwordx4 v[16:19], v%d, s[%d:%d], s46 offen sc1" % (FP2_OFF, V_L16, R_WS, R_WS+3)

def marks2(a):
    L = a.newlabel("Lm2")
    a("s_cmp_lg_u32 s%d, 0" % S_WAVE); a("s_cbranch_scc1 %s_x" % L)
    a("s_mov_b32 s47, 100000")
    a.label(L)
    for r in range(4): a("v_xor_b32 v%d, s%d, v%d" % (16+r, S_NONCE, 16+r))
    a("v_or3_b32 v16, v16, v17, v18"); a("v_or_b32 v16, v16, v19"); a("v_cmp_ne_u32 vcc, 0, v16"); a("s_cbranch_vccz %s_x" % L)
    a(FP2Q); a("s_waitcnt vmcnt(0)")
    a("s_sub_u32 s47, s47, 1"); a("s_cbranch_scc0 %s" % L)
    a.label(L + "_x")

def publish2(a, vt):
    L = a.newlabel("Lmp"); a("s_cmp_lg_u32 s%d, 0" % S_WAVE); a("s_cbranch_scc1 %s" % L); a.set_mark(vt, FP2_OFF); a.label(L)

def wflags(a, first, va, vd):
    a("s_mul_i32 s46, s65, 18"); a("s_add_u32 s46, s46, %d" % (FS + first))
    a("v_min_u32 v%d, 17, v%d" % (va, V_LANE)); a("v_add_u32 v%d, s46, v%d" % (va, va)); a("v_lshlrev_b32 v%d, 7, v%d" % (va, va))
    a("buffer_load_dword v%d, v%d, s[%d:%d], 0 offen offset:%d sc1" % (vd, va, R_WS, R_WS+3, FLAG0))

def phase345(a):
    a("s_mov_b32 s50, s74"); a("s_mov_b32 s51, s75"); a("s_mov_b32 s53, s76")
    a("s_cmp_ge_u32 s51, 6"); a("s_cbranch_scc1 L_p3_helper")
    a("v_add_u32 v5, 65536, v%d" % V_L16); a("v_add_u32 v6, 131072, v%d" % V_L16)
    a("s_mul_i32 s46, s%d, %d" % (S_WAVE, 1024*NE)); a("v_add_u32 v7, s46, v%d" % V_L16)
    a("s_mul_i32 s46, s%d, %d" % (S_WAVE, 1024*(27-NE))); a("v_add_u32 v8, s46, v%d" % V_L16)
    a("v_add_u32 v62, %d, v7" % (112*1024)); a("v_add_u32 v63, %d, v8" % (52*1024))
    LAY4, LAY5 = (0, 52), (112, 0)
    a("s_mul_i32 s54, s53, 18432")
    a("s_mul_i32 s55, s51, 3072"); a("s_add_u32 s55, s55, s54")
    a("v_lshlrev_b32 v9, 7, v%d" % V_LANE)
    a("s_lshl_b32 s46, s51, 2"); a("s_add_u32 s46, s46, s%d" % S_WAVE); a("s_mul_i32 s46, s46, 3072"); a("s_mul_i32 s78, s50, 73728"); a("s_add_u32 s78, s78, s46")
    def w2(i0, i1):
        return [("s_add_u32 s59, s72, %d\n" % (1024*(i & ~3)) if (i % 4 == 0 or i == i0) else "") +
                "buffer_load_dwordx4 a[%d:%d], v%d, s[%d:%d], s59 offen offset:%d sc1" % (AW2+4*i, AW2+4*i+3, V_L16, R_WS, R_WS+3, 1024*(i & 3)) for i in range(i0, i1)]
    def park(ab, lay, late):
        if late: return ["ds_write_b128 v%d, a[%d:%d] offset:%d" % (63 if lay[1] else 8, ab+4*i, ab+4*i+3, 1024*(i - NE)) for i in range(NE, 27)]
        return ["ds_write_b128 v%d, a[%d:%d] offset:%d" % (62 if lay[0] else 7, ab+4*i, ab+4*i+3, 1024*i) for i in range(NE)]
    def aloads(off):
        for q in range(5): a("s_add_u32 s%d, s54, %d" % (60+q, off + 4096*q))
        return ["buffer_load_dwordx4 v[%d:%d], v%d, s[%d:%d], s%d offen offset:%d sc1" % (AF+4*j, AF+4*j+3, V_L16, R_WS, R_WS+3, 60+(j >> 2), 1024*(j & 3)) for j in range(18)]
    def ostores(src, off):
        a("s_add_u32 s46, s55, %d" % off)
        for jj in range(3): a("buffer_store_dwordx4 v[%d:%d], v%d, s[%d:%d], s46 offen offset:%d sc1" % (src+4*jj, src+4*jj+3, V_L16, R_WS, R_WS+3, 1024*jj))
    a("s_lshl_b32 s46, s53, 4"); a("v_add_u32 v20, s46, v%d" % V_R); a("s_mov_b32 s47, 18432")
    for k, sh in enumerate((1, -1, 2, -2)):
        a("v_subrev_u32 v21, %d, v20" % sh); a("v_ashrrev_i32 v22, 4, v21"); a("v_mul_lo_u32 v22, v22, s47")
        a("v_and_b32 v21, 15, v21"); a("v_lshl_add_u32 v21, v%d, 4, v21" % V_G); a("v_lshl_add_u32 v%d, v21, 4, v22" % (56+k))
    a("v_cmp_gt_u32 vcc, 32, v%d" % V_LANE); a("v_cndmask_b32 v60, v57, v56, vcc"); a("v_cndmask_b32 v61, v59, v58, vcc")
    N2 = int(os.environ.get("N2", 0))
    n3 = max(N2, NE)
    gemm96(a, aloads(O_OFF), [pf_lds(0), pf_lds(1)] + w2(0, N2), SLEEP0["p3"] if N2 < 8 else 0, stamp="p3", extra=w2(N2, n3), early=park(AW1, LAY4, False))
    a.stamp("p3_gemm")
    a(FP2Q)
    a("s_mov_b32 s46, 0x00003f80"); a("s_mov_b32 s47, 0x3f800000")
    for t in range(6):
        for i in range(4): a("v_dot2c_f32_bf16 v%d, s%d, v%d" % (ACC+4*t+i, 46+(i & 1), XT+4*(t >> 1)+2*(t & 1)+(i >> 1)))
    for k in range(12): a("v_cvt_pk_bf16_f32 v%d, v%d, v%d" % (HK+k, ACC+2*k, ACC+2*k+1))
    ostores(HK, H_OFF)
    out_stats(a, HK, 12, 10, SH_OFF)
    a.stamp("p3_epi")
    if a.stop == 3: a("s_waitcnt vmcnt(0)"); a("s_branch L_fin")
    for r in range(4): a("v_mov_b32 v%d, s%d" % (20+r, S_ONES))
    cs = [mfma(WB+4*(i//9), AW1+4*i, 20, None if i % 9 == 0 else WB+4*(i//9), ta="a") for i in range(27)]
    a("s_mul_i32 s46, s%d, 192" % S_WAVE); a("s_add_u32 s46, s46, %d" % (48*1024)); a("v_lshl_add_u32 v24, v%d, 4, s46" % V_G)
    g = G(); interleave(g, [cs[(i % 3)*9 + i//3] for i in range(27)], park(AW1, LAY4, True))
    st4 = g.lines
    st4 += ["s_nop 7"] + ["ds_write_b128 v24, v[%d:%d] offset:%d" % (WB+4*k, WB+4*k+3, 64*k) for k in range(3)]
    CS = 232
    sl = stats_loads(a, SH_OFF, 53, 10); a("s_mov_b32 s65, s46"); sl = [x.replace("s46", "s65") for x in sl]
    def fin4(wreads):
        a("v_lshlrev_b32 v24, 4, v%d" % V_G)
        for k in range(12): a("ds_read_b128 v[%d:%d], v24 offset:%d" % ((CS if k % 2 == 0 else ACC)+4*(k//2), (CS if k % 2 == 0 else ACC)+4*(k//2)+3, 48*1024 + 64*k))
        wreads()
        a("s_waitcnt vmcnt(%d)" % UP)
        for x in tag_ops(range(10, 14), 30): a(x)
        tag_branch(a, sl, range(10, 14), 30, al4[:UP])
        stats_finish(a, 10, VMEAN, VRSTD)
        a("v_mul_f32 v12, v%d, v%d" % (VRSTD, VRSTD)); a("v_mul_f32 v12, v12, v11"); a("v_add_f32 v12, %d, v12" % f32(1e-5))
        a("v_rsq_f32 v12, v12"); a("v_mul_f32 v16, %d, v%d" % (f32(GS), VRSTD)); a("v_mul_f32 v16, v12, v16"); a("v_mul_f32 v17, v16, -v%d" % VMEAN)
        a("s_waitcnt lgkmcnt(12)")
        for k in range(12): a("v_pk_add_f32 v[%d:%d], v[%d:%d], v[%d:%d]" % (CS+2*k, CS+2*k+1, CS+2*k, CS+2*k+1, ACC+2*k, ACC+2*k+1))
        for k in range(12): a("v_pk_mul_f32 v[%d:%d], v[%d:%d], v[16:17] op_sel:[0,1] op_sel_hi:[1,1]" % (CS+2*k, CS+2*k+1, CS+2*k, CS+2*k+1))
    if "d_mid" in ABL: a("s_sleep 64")
    al4 = aloads(H_OFF)
    gemm96(a, al4, st4, SLEEP0["p4"], pre=sl, each=fin4, stamp="p4", extra=w2(n3, 27), layout=LAY4, before=marks2)
    a.stamp("p4_gemm")
    gelu_consts(a)
    for k in range(12): a("v_pk_fma_f32 v[%d:%d], v[%d:%d], v[16:17], v[%d:%d] op_sel_hi:[1,0,1]" % (ACC+2*k, ACC+2*k+1, ACC+2*k, ACC+2*k+1, CS+2*k, CS+2*k+1))
    g = G(); gelu_pk(g, [ACC+2*k for k in range(12)], AF)
    interleave(a, g.lines, park(AW2, LAY5, False))
    for k in range(12): a("v_cvt_pk_bf16_f32 v%d, v%d, v%d" % (OS+k, ACC+2*k, ACC+2*k+1))
    ostores(OS, T_OFF)
    a.stamp("p4_epi")
    if a.stop == 4: a("s_waitcnt vmcnt(0)"); a("s_branch L_fin")
    a.srd(R_A, S_WS, ACT, T_OFF)
    for q in range(5): a("s_mov_b32 s%d, %d" % (70+q, 4096*q))
    def vsel(j): return 56 if j < 4 else 60 if j == 4 else 57 if j < 9 else 58 if j < 13 else 61 if j == 13 else 59
    tl = ["buffer_load_dwordx4 v[%d:%d], v%d, s[%d:%d], s%d offen offset:%d sc1" % (AF+4*j, AF+4*j+3, vsel(j), R_A, R_A+3, 70+(j >> 2), 1024*(j & 3)) for j in range(18)]
    roles6(a)
    wflags(a, 54, 54, 55)
    a("s_waitcnt vmcnt(4)")
    gemm96(a, tl, park(AW2, LAY5, True), SLEEP0["p5"], stamp="p5", layout=LAY5)
    a.stamp("p5_gemm")
    a("v_mul_f32 v17, v%d, -v%d" % (VRSTD, VMEAN))
    for k in range(12):
        a("v_lshlrev_b32 v20, 16, v%d" % (HK+k)); a("v_and_b32 v21, 0xffff0000, v%d" % (HK+k))
        a("v_fma_f32 v20, v20, v%d, v17" % VRSTD); a("v_fma_f32 v21, v21, v%d, v17" % VRSTD)
        a("v_pk_add_f32 v[%d:%d], v[%d:%d], v[20:21]" % (ACC+2*k, ACC+2*k+1, ACC+2*k, ACC+2*k+1))
    for k in range(12): a("v_cvt_pk_bf16_f32 v%d, v%d, v%d" % (OS+k, ACC+2*k, ACC+2*k+1))
    ostores(OS, X1_OFF)
    out_stats(a, OS, 12, 10, SX_OFF)
    a.stamp("p5_epi")
    a("s_branch L_p5_pre")
    a.label("L_p3_helper")
    if "d_h3" in ABL: a("s_sleep 64")
    a("s_barrier")
    a(pf_lds(0)); a(pf_lds(1))
    if "h2" in ABL:
        a("s_mov_b32 s%d, s57" % PS[2])
        for i in range(18, 27): a(pf_lds(i))
    swizzle_setup(a)
    a("s_add_u32 s48, s48, 54")
    for p in range(3):
        sw_big(a, 48, 60+3*p)
        a("s_lshl_b32 s53, s52, 10"); a("s_add_u32 s%d, s%d, s53" % (60+3*p, 60+3*p)); a("s_add_u32 s%d, s48, %d" % (62+3*p, FS))
        a("s_add_u32 s48, s48, 1")
    a("s_lshl_b32 s48, s74, 1"); a("s_add_u32 s48, s48, s75"); a("s_add_u32 s48, s48, %d" % (54 + 192 - 6))
    sw_issue(a, 48, 3, 0)
    a("s_waitcnt vmcnt(9)"); a("s_barrier")
    for p in range(3): sw_process(a, p, W_LDS + 36864*p)
    a("s_barrier")
    a("s_add_u32 s49, s48, 64"); a("s_cmp_lt_u32 s49, 342"); a("s_cselect_b32 s48, s49, s48"); sw_issue(a, 48, 4, W_LDS)
    a("s_waitcnt vmcnt(9)"); a("s_barrier")
    sw_flags(a, range(3))
    a.stamp("h_w3")
    sw_process(a, 3, 0)
    a("s_waitcnt vmcnt(9)"); a("s_barrier")
    sw_process(a, 4, W_LDS)
    a("s_waitcnt vmcnt(0)"); a("s_barrier")
    sw_flags(a, (3, 4))
    a.stamp("h_w4")
    roles6(a)
    wflags(a, 54, 54, 55)
    a(FP2Q)
    a("s_waitcnt vmcnt(0)")
    marks2(a)
    a.label("L_p5_pre")
    a.label("L_p5_done")
    a.stamp("p5_done")

WFL = os.environ.get("WFL", " sc1")
OFL = os.environ.get("OFL", "")
LCH = int(os.environ.get('LCH', 1))
RING = 184

def roles6(a):
    L = LCH
    a("s_lshr_b32 s46, s%d, %d" % (S_XCD, 3-L)); a("s_lshl_b32 s64, s46, %d" % (5-L)); a("s_lshr_b32 s67, s%d, %d" % (S_SLOT, L)); a("s_add_u32 s64, s64, s67")
    a("s_and_b32 s67, s67, 7")
    a("s_mov_b32 s67, 0")
    a("s_and_b32 s46, s%d, %d" % (S_XCD, (8 >> L) - 1)); a("s_lshl_b32 s65, s46, %d" % L); a("s_and_b32 s46, s%d, %d" % (S_SLOT, (1 << L) - 1)); a("s_add_u32 s65, s65, s46")
    a("s_lshl_b32 s46, s65, 2"); a("s_add_u32 s46, s46, s%d" % S_WAVE); a("s_mul_i32 s66, s46, %d" % (9*18432)); a("s_add_u32 s66, s66, %d" % W3_S)

def wload(j, s=58, ring=("a", RING)):
    o = "s_add_u32 s%d, s%d, 4096\n" % (s, s) if (j and j % 4 == 0) else ""
    return o + ("buffer_load_dwordx4 %s[%d:%d], v%d, s[%d:%d], s%d offen offset:%d" + WFL) % (ring[0], ring[1]+4*j, ring[1]+4*j+3, V_L16, R_WS, R_WS+3, s, 1024*(j & 3))

def ring_prefill(a, s):
    a("s_mul_i32 s%d, s67, 18432" % s); a("s_add_u32 s%d, s%d, s66" % (s, s))
    return [wload(j, s) for j in range(18)]

def norm_pk(x, vs, t):
    o = []
    for r in range(4):
        o.append("v_lshlrev_b32 v%d, 16, v%d" % (t+2*r, x+r)); o.append("v_and_b32 v%d, 0xffff0000, v%d" % (t+2*r+1, x+r))
    for r in range(4): o.append("v_pk_fma_f32 v[%d:%d], v[%d:%d], v[%d:%d], v[%d:%d] op_sel:[0,0,1] op_sel_hi:[1,0,1]" % (t+2*r, t+2*r+1, t+2*r, t+2*r+1, vs, vs+1, vs, vs+1))
    for r in range(4): o.append("v_cvt_pk_bf16_f32 v%d, v%d, v%d" % (x+r, t+2*r, t+2*r+1))
    return o

def phase6(a):
    AC, PK, RB, GT, XR = 40, 72, 80, 136, 64
    HB = 73728
    def xf(T, j):
        f = 4*j + T
        return ("a", 4*f) if f < 46 else ("v", 152 + 4*(f-46))
    a("s_mov_b32 s50, s64"); a("s_mov_b32 s51, s65"); a("s_mov_b32 s54, s66"); a("s_mov_b32 s52, s67")
    a("s_lshl_b32 s53, s50, 2"); a("s_add_u32 s53, s53, s%d" % S_WAVE)
    a("s_add_u32 s55, s54, %d" % BW)
    a("s_mul_i32 s56, s50, 72"); a("s_add_u32 s56, s56, s51"); a("s_lshl_b32 s56, s56, 2"); a("s_add_u32 s56, s56, s%d" % S_WAVE)
    a("s_lshl_b32 s56, s56, 11"); a("s_add_u32 s56, s56, %d" % PART)
    a("s_mul_i32 s46, s53, 18432")
    for q in range(5): a("s_add_u32 s%d, s46, %d" % (70+q, X1_OFF + 4096*q))
    a("s_mul_i32 s46, s%d, 18432" % S_WAVE); a("v_add_u32 v5, s46, v%d" % V_L16)
    sl = stats_loads(a, SX_OFF, 53, 10)
    a("s_mov_b32 s60, s46")
    sl = [x.replace("s46", "s60") for x in sl]
    a("v_mov_b32 v28, 0")
    a("global_load_dword v29, v28, s[%d:%d] sc1" % (S_DBG, S_DBG+1))
    L = a.newlabel("Lh")
    a("s_cmp_lg_u32 s%d, 0" % S_WAVE); a("s_cbranch_scc1 %s" % L)
    a("v_cmp_ne_u32 vcc, s%d, v55" % S_NONCE); a("s_cbranch_vccz %s" % L)
    a("v_lshrrev_b32 v54, 7, v54")
    a.poll(54, 55, sleep0=0)
    a.label(L)
    a("s_barrier")
    pre = ring_prefill(a, 59)
    NP = SLEEP0["p6"]
    for x in pre[:NP]: a(x)
    a.stamp("p6_ready")
    a("s_mov_b32 s79, 50000")
    for x in sl: a(x)
    def xload(j): return "buffer_load_dwordx4 v[%d:%d], v%d, s[%d:%d], s%d offen offset:%d sc1" % (XR+4*j, XR+4*j+3, V_L16, R_WS, R_WS+3, 70+(j >> 2), 1024*(j & 3))
    for j in range(UP): a(xload(j))
    a("v_add_u32 v32, 36864, v%d" % V_L16); a("v_add_u32 v33, %d, v%d" % (HB, V_L16)); a("v_add_u32 v34, %d, v%d" % (HB+36864, V_L16))
    a("s_lshr_b32 s46, s%d, 1" % S_WAVE); a("s_lshl_b32 s46, s46, 10"); a("s_and_b32 s47, s%d, 1" % S_WAVE); a("s_lshl_b32 s47, s47, 3")
    a("s_add_u32 s46, s46, s47"); a("v_add_u32 v35, s46, v33")
    gelu_consts(a)
    R3, ST, SEL, RS = 12, 32, 6, RB
    def select(d, sr, bit):
        o = ["s_bitcmp1_b32 s%d, %d\ns_cselect_b64 s[64:65], -1, 0" % (sr, bit)]
        for h in range(2):
            o += ["v_cndmask_b32 v%d, v%d, 0, s[64:65]" % (d+h, SEL+2+h), "v_cndmask_b32 v%d, 0, v%d, s[64:65]" % (d+2+h, SEL+2+h)]
        return o
    a("v_lshrrev_b32 v26, 2, v%d" % V_R); a("v_cmp_eq_u32 s[64:65], v26, v%d" % V_G)
    a("v_and_b32 v26, 1, v%d" % V_R); a("v_lshlrev_b32 v26, 4, v26"); a("v_mov_b32 v27, 0x3f80"); a("v_lshlrev_b32 v27, v26, v27")
    a("v_cndmask_b32 v27, 0, v27, s[64:65]"); a("v_and_b32 v26, 2, v%d" % V_R); a("v_cmp_eq_u32 vcc, 0, v26")
    a("v_cndmask_b32 v%d, 0, v27, vcc" % (SEL+2)); a("v_cndmask_b32 v%d, v27, 0, vcc" % (SEL+3))
    for r in (0, 1): a("v_mov_b32 v%d, 0" % (SEL+r))
    for x in select(36, S_WAVE, 0): a(x)
    def bload(reg, s, off=0, t="a"): return "buffer_load_dwordx4 %s[%d:%d], v%d, s[%d:%d], s%d offen offset:%d sc1" % (t, reg, reg+3, V_L16, R_WS, R_WS+3, s, off)
    a("s_waitcnt vmcnt(%d)" % UP)
    for x in tag_ops(range(10, 14), 30): a(x)
    tag_branch(a, sl, range(10, 14), 30, [xload(j) for j in range(UP)])
    a.stamp("p6_st")
    stats_finish(a, 10, 17, 16)
    a("v_mul_f32 v16, s48, v16"); a("v_mul_f32 v17, v16, -v17")
    a("s_mul_i32 s60, s50, 73728")
    a("s_lshl_b32 s46, s51, 1"); a("s_lshr_b32 s47, s%d, 1" % S_WAVE); a("s_add_u32 s46, s46, s47"); a("s_lshl_b32 s46, s46, 10"); a("s_add_u32 s78, s46, s60")
    order = [("x", j) for j in range(UP)]
    todo = [("x", j) for j in range(UP, 18)] + [("w", j) for j in range(NP, 18)]
    for j in range(18):
        a("s_waitcnt vmcnt(%d)" % (len(order) - 1 - order.index(("x", j))))
        for x in tag_ops(range(XR+4*j, XR+4*j+4), 30): a(x)
        n = 1 if j < 10 else -(-len(todo)//(18-j))
        for k, q in todo[:n]:
            a(xload(q) if k == "x" else pre[q]); order.append((k, q))
        del todo[:n]
        later = [q for k, q in order if k == "x" and q > j]
        tag_branch(a, [xload(j)], range(XR+4*j, XR+4*j+4), 30, [xload(q) for q in later], drain=order[-1][0] == "w")
        if j in (9, 17): a.stamp("p6_x%d" % j)
        for x in norm_pk(XR+4*j, 16, 20): a(x)
        a("ds_write_b128 v5, v[%d:%d] offset:%d" % (XR+4*j, XR+4*j+3, 1024*j))
    assert not todo
    a("v_readfirstlane_b32 s%d, v29" % S_NONCE)
    for r in (4, 5): a("v_mov_b32 v%d, 0" % (SEL+r))
    a("s_waitcnt lgkmcnt(0)"); a("s_barrier")
    a.stamp("p6_x")
    def fread(j, va):
        o = []
        for T in range(4):
            t, r = xf(T, j)
            o.append("ds_read_b128 %s[%d:%d], v%d offset:%d" % (t, r, r+3, va[T >> 1], (T & 1)*18432 + 1024*j))
        return o
    def gelu(ac):
        b = gelu_poly([ac+2*k for k in range(8)], GT)
        o = []
        for T in range(4):
            x = ac + 4*T; t = GT + 4*T
            o += ["v_exp_f32 v%d, -v%d" % (t+i, t+i) for i in range(4)]
            o += ["v_fma_f32 v%d, v%d, s48, s48" % (t+i, t+i) for i in range(4)]
            o += ["v_rcp_f32 v%d, v%d" % (t+i, t+i) for i in range(4)]
            o += ["v_mul_f32 v%d, v%d, v%d" % (t+i, t+i, x+i) for i in range(4)]
            o += ["v_cvt_pk_bf16_f32 v%d, v%d, v%d" % (PK+2*T+h, t+2*h, t+2*h+1) for h in range(2)]
            o.append("ds_write_b64 v5, v[%d:%d] offset:%d" % (PK+2*T, PK+2*T+1, 18432*T))
        return b, o
    def wt(op): return 2 if op.startswith(("v_exp", "v_rcp")) else min(2, len(op.split("\n")))
    RA = ("a", RING); RBB = ("v", RB)
    def subpass(ac, fill, first=None, loads=None, at=None, ring=RA, depth=18, batch=(), head=(), c0=None, more=None):
        if "p6nogelu" in ABL and len(fill) > 20: fill = []; batch = ()
        if "p6nost" in ABL: fill = [x for x in fill if "buffer_store" not in x]
        fill = list(fill); head = list(head)
        seq = [(2*p + q, T) for p in range(9) for T in range(4) for q in range(2)]
        LA = 12
        rd = [fread(j, first)[T] for j, T in seq] if first else []
        for x in rd[:LA]: a(x)
        def wait(m):
            w = []
            if m % 8 == 0: w.append("vmcnt(%d)" % (depth - 2 + (more(m//4 - 1) if more and m else 0)))
            if first and m % 2 == 0: w.append("lgkmcnt(%d)" % max(0, min(LA, 72 - m) - 2))
            return "s_waitcnt " + " ".join(w) if w else None
        for m, (j, T) in enumerate(seq):
            if wait(m): a(wait(m))
            if at and m % 4 == 0 and m//4 in at: at[m//4]()
            t, r = xf(T, j)
            a(mfma(ac+4*T, ring[1]+4*j, r, (None if c0 is None else c0+4*T) if j == 0 else ac+4*T, ta=ring[0], tb=t))
            room = 2
            if m + LA < len(rd): a(rd[m + LA]); room -= 1
            if m < 3:
                n = (len(head) + 2 - m)//(3 - m)
                for x in head[:n]: a(x)
                del head[:n]
            if m == 3:
                for x in batch: a(x)
            if T == 3:
                ld = "" if ("p6nold" in ABL and loads is None) else (loads(j) if loads else wload(j, 58, ring))
                if ld: a(ld); room -= len(ld.split("\n"))
            if m < 71 and wait(m+1): room -= 1
            if m < 4: continue
            left = 71 - m
            while fill and (wt(fill[0]) <= room or sum(wt(x) for x in fill) > 2*left - (left+3)//4*2 + 1):
                room -= wt(fill[0]); a(fill.pop(0))
        assert not fill
    def nexttile(last=False):
        o = ["s_mov_b32 s62, s61", "s_mov_b32 s61, s63", "s_add_u32 s63, s63, 1"]
        if "rot" in ABL: o += ["s_cmp_eq_u32 s63, 9", "s_cselect_b32 s63, 0, s63"]
        o += ["s_mul_i32 s58, s63, 18432", "s_add_u32 s58, s58, s54"]
        if last: o += ["s_cmp_eq_u32 s59, 3", "s_cselect_b32 s58, s65, s58"]
        return o + ["s_lshl_b32 s46, s62, 11", "v_add_u32 v5, s46, v35"]
    def slice_of(d, c):
        a("s_add_u32 s%d, s%d, s51" % (d, c)); a("s_and_b32 s%d, s%d, 7" % (d, d)); a("s_cmp_eq_u32 s%d, 0" % c); a("s_cselect_b32 s%d, 8, s%d" % (d, d))
    a("s_mov_b32 s63, s52"); a("s_mov_b32 s61, s52")
    for x in nexttile(): a(x)
    slice_of(64, 52); a("s_mul_i32 s65, s64, 18432"); a("s_add_u32 s65, s65, s55")
    for r in range(4): a("v_mov_b32 v%d, -1" % (PK+r))
    pois = []
    for k in (6, 7):
        pois.append("s_add_u32 s46, s51, %d\ns_and_b32 s46, s46, 7\ns_lshl_b32 s46, s46, 16\ns_add_u32 s62, s46, s56\n" % k +
                    "buffer_store_dwordx4 v[%d:%d], v%d, s[%d:%d], s62 offen sc1" % (PK, PK+3, V_L16, R_WS, R_WS+3))
        pois.append("buffer_store_dwordx4 v[%d:%d], v%d, s[%d:%d], s62 offen offset:1024 sc1" % (PK, PK+3, V_L16, R_WS, R_WS+3))
    res = ["s_add_u32 s62, s78, %d\n" % ((X1_OFF, H_OFF)[j >> 2] + 18432*(j & 3)) + bload(RS+4*j, 62, t="v") for j in range(8)]
    def resadd():
        a("s_waitcnt vmcnt(9)")
        for k in range(2):
            for T in range(4): a(mfma(R3+4*T, 36, RS+16*k+4*T, None if k == 0 else R3+4*T))
    ev0 = {j: (lambda j=j: a(res[j])) for j in range(8)}
    ev0[16] = resadd
    ev0[17] = lambda: [a(x) for x in pois]
    subpass(AC, [], first=(V_L16, 32), at=ev0, more=lambda j: min(j+1, 8))
    if "d_p6" in ABL: a("s_sleep 64")
    a.stamp("p6_p0")
    a("s_mov_b32 s59, 0")
    def when(op, v, body):
        def f():
            L = a.newlabel("Lw"); a("%s s59, %d" % (op, v)); a("s_cbranch_scc0 %s" % L); body(L); a.label(L)
        return f
    def w4ask(L): a("buffer_load_dword v31, v30, s[%d:%d], 0 offen offset:%d sc1" % (R_WS, R_WS+3, FLAG0))
    def w4check(L):
        a("s_waitcnt vmcnt(14)"); a("v_cmp_ne_u32 vcc, s%d, v31" % S_NONCE); a("s_cbranch_vccz %s" % L)
        a("v_lshrrev_b32 v30, 7, v30"); a.poll(30, 31, sleep0=0)
    a("s_mul_i32 s46, s51, 18"); a("s_add_u32 s46, s46, %d" % (FS + 198))
    a("v_min_u32 v30, 17, v%d" % V_LANE); a("v_add_u32 v30, s46, v30"); a("v_lshlrev_b32 v30, 7, v30")
    a.label("L_p6_a")
    for half in (1, 0):
        b, o = gelu(AC+16*(1-half))
        subpass(AC+16*half, o, batch=b, head=nexttile(half == 0), at={0: when("s_cmp_eq_u32", 3, w4check)} if half == 0 else {4: when("s_cmp_eq_u32", 3, w4ask)})
    a("s_add_u32 s59, s59, 1"); a("s_cmp_lt_u32 s59, 4"); a("s_cbranch_scc1 L_p6_a")
    def nextslice(own=None):
        a("s_lshl_b32 s62, s66, 16"); a("s_add_u32 s62, s62, s56"); a("s_mov_b32 s66, s65"); a("s_mov_b32 s65, s64")
        a("s_add_u32 s61, s61, 1"); a("s_and_b32 s61, s61, 7")
        slice_of(64, 61)
        if own is not None: a("s_cmp_eq_u32 s59, %d" % own); a("s_cselect_b32 s64, s51, s64")
        a("s_mul_i32 s58, s64, 18432"); a("s_add_u32 s58, s58, s55")
    a("s_lshl_b32 s46, s61, 11"); a("v_add_u32 v5, s46, v35")
    a("s_mov_b32 s61, s52")
    nextslice()
    g = G(); gelu_pk(g, [AC+2*k for k in range(8)], GT)
    interleave(a, g.lines, [wload(j, 58, RBB) for j in range(14)])
    for T in range(4):
        for h in range(2): a("v_cvt_pk_bf16_f32 v%d, v%d, v%d" % (PK+2*T+h, AC+4*T+2*h, AC+4*T+2*h+1))
        a("ds_write_b64 v5, v[%d:%d] offset:%d" % (PK+2*T, PK+2*T+1, 18432*T))
        a(wload(14+T, 58, RBB))
    a("s_waitcnt lgkmcnt(0)"); a("s_barrier")
    a.stamp("p6_a")
    def pstore(ac):
        o = ["v_cvt_pk_bf16_f32 v%d, v%d, v%d" % (PK+k, ac+2*k, ac+2*k+1) for k in range(8)]
        o += ["buffer_store_dwordx4 v[%d:%d], v%d, s[%d:%d], s62 offen offset:%d sc1" % (PK+4*p, PK+4*p+3, V_L16, R_WS, R_WS+3, 1024*p) for p in range(2)]
        return o
    a("s_lshl_b32 s46, s50, 5"); a("s_add_u32 s46, s46, s%d" % S_WAVE); a("s_lshl_b32 s70, s46, 7"); a("s_add_u32 s70, s70, %d" % (FLAG0 + 128*FA))
    a("s_lshl_b32 s46, s51, 9"); a("s_add_u32 s68, s70, s46")
    a("s_mul_i32 s46, s50, 9"); a("s_add_u32 s46, s46, s51"); a("s_lshl_b32 s46, s46, 16"); a("s_lshl_b32 s47, s%d, 11" % S_WAVE)
    a("s_add_u32 s46, s46, s47"); a("s_add_u32 s69, s46, %d" % PART)
    a("s_mov_b32 s71, 0")
    a("v_and_b32 v5, 7, v%d" % V_LANE); a("v_cmp_eq_u32 vcc, s51, v5"); a("v_xor_b32 v30, 1, v5")
    a("v_cndmask_b32 v5, v5, v30, vcc"); a("v_lshlrev_b32 v5, 9, v5")
    def cond(first, body):
        def f():
            L = a.newlabel("Lc")
            if first is not None: a("s_cmp_lt_u32 s71, %d" % first); a("s_cbranch_scc1 %s" % L)
            body()
            a.label(L)
        return f
    def SC(k): return (54, 55, 57, 58, 72, 75, 76)[k-1]
    def publish():
        a("s_add_u32 s46, s71, s%d" % S_NONCE); a("s_sub_u32 s46, s46, 2"); a("v_mov_b32 v29, s46")
        a("s_waitcnt vmcnt(20)"); a("s_mov_b64 exec, 1")
        a("buffer_store_dword v29, v28, s[%d:%d], s68 offen sc1" % (R_WS, R_WS+3))
        a("s_mov_b64 exec, -1")
    def confirm(vflag, vaddr, saddr, sneed, n):
        L = a.newlabel("Lcf")
        a("s_mov_b32 s47, 100000"); a("s_waitcnt vmcnt(%d)" % n)
        a.label(L)
        a("v_subrev_u32 v30, s%d, v%d" % (sneed, vflag)); a("v_cmp_lt_u32 vcc, 7, v30"); a("s_cbranch_vccz %s_x" % L)
        a("s_sleep 1"); a("buffer_load_dword v%d, v%d, s[%d:%d], s%d offen sc1" % (vflag, vaddr, R_WS, R_WS+3, saddr)); a("s_waitcnt vmcnt(0)")
        a("s_sub_u32 s47, s47, 1"); a("s_cbranch_scc0 %s" % L)
        a.label(L + "_x")
    nxt = ["s_add_u32 s71, s71, 1"]
    a("s_mov_b32 s59, 0")
    nextslice()
    subpass(AC, [], first=(33, 34), depth=36)
    a.stamp("p6_s0")
    def ask_all(): a("buffer_load_dword v31, v5, s[%d:%d], s70 offen sc1" % (R_WS, R_WS+3))
    a.label("L_p6_b")
    nextslice()
    subpass(AC+16, pstore(AC), ring=RBB, depth=36, head=nxt)
    nextslice(own=2)
    subpass(AC, pstore(AC+16), depth=36, head=nxt, at={3: cond(6, publish), 14: cond(6, ask_all)})
    a("s_add_u32 s59, s59, 1"); a("s_cmp_lt_u32 s59, 3"); a("s_cbranch_scc1 L_p6_b")
    a.stamp("p6_s6")
    a("s_lshr_b32 s46, s51, 1"); a("s_sub_u32 s46, s46, 3"); a("s_lshl_b32 s46, s46, 7"); a("s_add_u32 s74, s46, s70")
    a("s_mul_i32 s46, s50, 9"); a("s_add_u32 s46, s46, 8"); a("s_lshl_b32 s46, s46, 16"); a("s_lshl_b32 s47, s51, 10")
    a("s_add_u32 s46, s46, s47"); a("s_add_u32 s78, s46, %d" % PART)
    a("s_and_b32 s46, s51, 1"); a("s_mul_i32 s61, s46, 36864"); a("s_add_u32 s61, s61, s60")
    a("s_lshr_b32 s47, s51, 2"); a("s_add_u32 s47, s47, 16"); a("s_lshl_b32 s46, s47, 10"); a("s_add_u32 s79, s46, s61")
    a("s_lshl_b32 s47, s47, 6"); a("s_add_u32 s61, s61, s47"); a("s_and_b32 s46, s51, 2"); a("s_lshl_b32 s46, s46, 2"); a("s_add_u32 s61, s61, s46")
    def w3(body):
        def f():
            L = a.newlabel("Lex"); a("s_cmp_lg_u32 s%d, 3" % S_WAVE); a("s_cbranch_scc1 %s" % L); body(); a.label(L)
        return f
    def extra_ask():
        a("v_and_b32 v%d, 7, v%d" % (RB, V_LANE)); a("v_lshlrev_b32 v%d, 9, v%d" % (RB, RB))
        a("buffer_load_dword v29, v%d, s[%d:%d], s74 offen sc1" % (RB, R_WS, R_WS+3))
    def extra_get():
        confirm(29, RB, 74, S_NONCE, 4)
        for k in range(8):
            a(bload(RING+4*k, 78)); a("s_add_u32 s78, s78, 8192")
        for k, off in enumerate((H_OFF, X1_OFF)):
            for T in range(2):
                a("s_add_u32 s46, s79, %d" % (off + 18432*T)); a(bload(RING+32+8*k+4*T, 46))
    a("s_lshl_b32 s62, s66, 16"); a("s_add_u32 s62, s62, s56"); a("s_mov_b32 s66, s65")
    for k in range(1, 8):
        r = SC(k); a("s_sub_u32 s%d, s51, %d" % (r, k)); a("s_and_b32 s%d, s%d, 7" % (r, r)); a("s_lshl_b32 s%d, s%d, 13" % (r, r)); a("s_add_u32 s%d, s%d, s69" % (r, r))
    CB = {1: ("v", ST), 2: ("v", RB+8), 3: ("v", RB+16), 4: ("v", RB+24), 5: ("v", RB+32), 6: ("v", RB+56), 7: ("v", RB+64)}
    def cload(k): return "\n".join(bload(CB[k][1]+4*p, SC(k), 1024*p, t=CB[k][0]) for p in range(2))
    def need(c, n):
        def f(): a("s_add_u32 s73, s%d, %d" % (S_NONCE, c)); confirm(31, 5, 70, 73, n)
        return f
    def add(acc, k, n):
        def f():
            if n < 63: a("s_waitcnt vmcnt(%d)" % n)
            for T in range(4): a(mfma(acc+4*T, SEL if T & 1 else SEL+2, CB[k][1]+4*(T >> 1), acc+4*T, tb=CB[k][0]))
        return f
    def load7(j): return {4: cload(1), 7: cload(2), 10: cload(3), 13: cload(4)}.get(j, "")
    def seq(*fs):
        def f():
            for x in fs: x()
        return f
    subpass(AC+16, pstore(AC), ring=RBB, depth=20, loads=load7, head=nxt,
            at={3: publish, 4: seq(need(4, 3), w3(extra_ask)), 17: ask_all})
    a.stamp("p6_s7")
    a("s_lshl_b32 s62, s66, 16"); a("s_add_u32 s62, s62, s56")
    SEv, EA = AC+16, AC+24
    g = G()
    g.lines += select(SEv, 51, 1)
    g("v_mul_u32_u24 v%d, 144, v%d" % (AC+20, V_R)); g("v_lshl_add_u32 v%d, v%d, 4, v%d" % (AC+20, V_G, AC+20))
    g.lines.append("s_lshr_b32 s66, s%d, 1\ns_lshl_b32 s66, s66, 6\ns_and_b32 s67, s%d, 1\ns_lshl_b32 s67, s67, 3\ns_add_u32 s66, s66, s67" % (S_WAVE, S_WAVE))
    g("v_add_u32 v%d, s66, v%d" % (AC+20, AC+20))
    g("v_lshrrev_b32 v%d, 3, v0" % EA); g("v_and_b32 v%d, 7, v0" % (EA+1)); g("v_lshlrev_b32 v%d, 4, v%d" % (EA+1, EA+1))
    g("v_mul_u32_u24 v%d, 144, v%d" % (AC+21, EA)); g("v_add_u32 v%d, v%d, v%d" % (AC+21, AC+21, EA+1))
    g("v_mul_u32_u24 v%d, 1152, v%d" % (AC+22, EA)); g("v_add_u32 v%d, v%d, v%d" % (AC+22, AC+22, EA+1))
    g("v_mul_u32_u24 v%d, 1152, v%d" % (AC+23, V_R)); g("v_lshl_add_u32 v%d, v%d, 4, v%d" % (AC+23, V_G, AC+23))
    def load8(j): return {9: cload(5), 12: cload(6), 17: cload(7)}.get(j, "")
    subpass(AC, pstore(AC+16) + g.lines, depth=63, loads=load8, head=nxt, c0=R3, at={9: need(5, 2), 10: add(AC, 1, 63), 12: add(AC, 2, 63), 14: seq(w3(extra_get), add(AC, 3, 63)), 16: add(AC, 4, 63)})
    a.stamp("p6_b")
    a.srd(R_A, S_OUT, ACT)
    a("s_cmp_lg_u32 s%d, 3" % S_WAVE); a("s_cbranch_scc1 L_p7_main")
    a("s_waitcnt vmcnt(2)")
    for k in range(8):
        a(mfma(EA, SEL+2, RING+4*k, None if k == 0 else EA, tb="a")); a(mfma(EA+4, SEL, RING+4*k, None if k == 0 else EA+4, tb="a"))
    for k in range(2):
        for T in range(2): a(mfma(EA+4*T, SEv, RING+32+8*k+4*T, EA+4*T, tb="a"))
    for T in range(2):
        for h in range(2): a("v_cvt_pk_bf16_f32 v%d, v%d, v%d" % (PK+2*T+h, EA+4*T+2*h, EA+4*T+2*h+1))
    a.label("L_p7_main")
    add(AC, 5, 2)()
    for k in (6, 7):
        base = CB[k][1]
        L = a.newlabel("Ltag")
        a("s_mov_b32 s47, 100000")
        if k == 7: a("s_waitcnt vmcnt(0)")
        a.label(L)
        a("v_max3_u32 v30, v%d, v%d, v%d" % (base, base+1, base+2)); a("v_max3_u32 v31, v%d, v%d, v%d" % (base+3, base+4, base+5))
        a("v_max3_u32 v30, v30, v%d, v%d" % (base+6, base+7)); a("v_max_u32 v30, v30, v31")
        a("v_cmp_eq_u32 vcc, -1, v30"); a("s_cbranch_vccz %s_x" % L)
        a(cload(k))
        a("s_waitcnt vmcnt(0)")
        a("s_sub_u32 s47, s47, 1"); a("s_cbranch_scc0 %s" % L)
        a.label(L + "_x")
        add(AC, k, 63)()
    a.stamp("p7_ready")
    a("s_cmp_lg_u32 s%d, 3" % S_WAVE); a("s_cbranch_scc1 L_p7_acc")
    for T in range(2):
        a("buffer_store_dwordx2 v[%d:%d], v%d, s[%d:%d], s61 offen%s" % (PK+2*T, PK+2*T+1, AC+23, R_A, R_A+3, OFL))
        a("s_add_u32 s61, s61, 18432")
    a.label("L_p7_acc")
    a("s_lshl_b32 s46, s51, 7"); a("s_add_u32 s46, s46, s60"); a("s_add_u32 s47, s46, 36864")
    for T in range(4):
        for h in range(2): a("v_cvt_pk_bf16_f32 v%d, v%d, v%d" % (R3+2*T+h, AC+4*T+2*h, AC+4*T+2*h+1))
        a("ds_write_b64 v%d, v[%d:%d] offset:%d" % (AC+20, R3+2*T, R3+2*T+1, 2304*T))
    a("s_waitcnt lgkmcnt(0)"); a("s_barrier")
    for p in range(2): a("ds_read_b128 v[%d:%d], v%d offset:%d" % (R3+8+4*p, R3+11+4*p, AC+21, 4608*p))
    for p in range(2):
        a("s_waitcnt lgkmcnt(%d)" % (1-p))
        a("buffer_store_dwordx4 v[%d:%d], v%d, s[%d:%d], s%d offen%s" % (R3+8+4*p, R3+11+4*p, AC+22, R_A, R_A+3, 46+p, OFL))
```

```python
import sys, os, struct, math
sys.path.insert(0, "dev")
from asmlib import Asm, build
from hazard import fix_hazards, check_waits

NAME = "sequential_preLN__sliding_block__mixer_s_mlp__prompt"
KN = NAME + "_kernel"

ACT = 2048*576*2
SW  = 576*576*2
BW  = 576*4608*2
FLAG0 = 128
F1, FS, F2, F3, F4, F5, FA, FB = 0, 256, 640, 896, 1152, 1408, 1664, 2688
TS_OFF = 0x80000
Q_OFF  = 0x90000
K_OFF  = Q_OFF + ACT
V_OFF  = K_OFF + ACT
O_OFF  = V_OFF + ACT
H_OFF  = O_OFF + ACT
SH_OFF = H_OFF + ACT
T_OFF  = SH_OFF + 98304
X1_OFF = T_OFF + ACT
SX_OFF = X1_OFF + ACT
WO_S   = SX_OFF + 98304
W1_S   = WO_S + SW
W2_S   = W1_S + SW
W3_S   = W2_S + SW
W4_S   = W3_S + BW
PART   = W4_S + BW
WS_END = PART + 32*9*8*8192
FP_OFF = 0x7F000
FP2_OFF = FP_OFF + 1024
MARK_N = T_OFF - O_OFF
MKG = 19
MARK_W = 2048*MKG
assert 128*MARK_W >= MARK_N and 1024*5120 >= WO_S - T_OFF
HPSZ   = 147456

WSOFF = 0
MK0 = int(os.environ.get('MK0', 0))
MK1 = int(os.environ.get('MK1', 0))
THR = int(os.environ.get('THR', 0))
NW3 = int(os.environ.get('NW3', 0))
ABL = os.environ.get('ABL', '').split(',')
CLK = 's_memtime'
def f32(x): return struct.unpack("<I", struct.pack("<f", x))[0]
def magic(d): return (1 << 32)//d + 1

S_X, S_WQKV, S_WO = 4, 6, 8
S_W1, S_W2, S_W3, S_W4 = 12, 14, 16, 18
S_OUT, S_DBG, S_WS = 20, 22, 24
R_WS, R_A, R_B = 28, 32, 36
S_WAVE, S_XCD, S_SLOT, S_NONCE = 40, 41, 42, 43
S_ONES = 44
V_LANE, V_R, V_G, V_L16 = 1, 2, 3, 4

class G(Asm):
    def __init__(s, stop=99, stamps=False):
        super().__init__()
        s.stop = stop; s.stamps = stamps; s.stubs = []
    def srd(a, d, p, size, add=0):
        if add >= 0:
            a("s_add_u32 s%d, s%d, %s" % (d, p, add)); a("s_addc_u32 s%d, s%d, 0" % (d+1, p+1))
        else:
            a("s_sub_u32 s%d, s%d, %d" % (d, p, -add)); a("s_subb_u32 s%d, s%d, 0" % (d+1, p+1))
        a("s_mov_b32 s%d, %d" % (d+2, size)); a("s_mov_b32 s%d, 0x20000" % (d+3))
    def srd_s(a, d, p, size, sreg):
        a("s_add_u32 s%d, s%d, s%d" % (d, p, sreg)); a("s_addc_u32 s%d, s%d, 0" % (d+1, p+1))
        a("s_mov_b32 s%d, %d" % (d+2, size)); a("s_mov_b32 s%d, 0x20000" % (d+3))
    def sdiv(a, q, r, x, d):
        a("s_mul_hi_u32 s%d, s%d, %d" % (q, x, magic(d)))
        if r is not None:
            a("s_mul_i32 s%d, s%d, %d" % (r, q, d)); a("s_sub_u32 s%d, s%d, s%d" % (r, x, r))
    def stamp(a, name):
        if not a.stamps or name not in a.stamps: return
        k = a.stamps.index(name)
        a("%s s[98:99]" % CLK); a("s_waitcnt lgkmcnt(0)"); a("s_mov_b32 s%d, s98" % (80+k))
    def stamp_out(a):
        if not a.stamps: return
        a.stamp("end")
        a("s_lshl_b32 s98, s2, 2"); a("s_add_u32 s98, s98, s%d" % S_WAVE); a("s_lshl_b32 s98, s98, 6"); a("s_add_u32 s98, s98, %d" % TS_OFF)
        a("v_mov_b32 v255, 0")
        for k in range(16):
            a("v_mov_b32 v254, s%d" % (80+k))
            a("buffer_store_dword v254, v255, s[%d:%d], s98 offen offset:%d" % (R_WS, R_WS+3, 4*k))
            a("s_nop 1")
    def xg_reduce(a, v, t, op="v_add_f32"):
        for sw in ("v_permlane32_swap_b32", "v_permlane16_swap_b32"):
            a("v_mov_b32 v%d, v%d" % (t, v)); a("%s v%d, v%d" % (sw, v, t)); a("%s v%d, v%d, v%d" % (op, v, v, t))
    def get_nonce(a, vt):
        L = a.newlabel("Lnon")
        a("s_mov_b32 s46, 200000"); a("v_mov_b32 v%d, 0" % (vt+2))
        a.label(L)
        a("global_load_dwordx2 v[%d:%d], v%d, s[%d:%d] sc1" % (vt, vt+1, vt+2, S_DBG, S_DBG+1))
        a("s_waitcnt vmcnt(0)")
        a("v_readfirstlane_b32 s47, v%d" % (vt+1)); a("v_readfirstlane_b32 s%d, v%d" % (S_NONCE, vt))
        a("s_sub_u32 s46, s46, 1"); a("s_cbranch_scc1 %s_x" % L)
        a("s_cmp_eq_u32 s47, 0"); a("s_cbranch_scc1 %s" % L)
        a.label(L + "_x")
    def set_flag(a, sidx, vt):
        a("s_lshl_b32 s%d, s%d, 7" % (sidx, sidx)); a("s_add_u32 s%d, s%d, %d" % (sidx, sidx, FLAG0))
        a("v_mov_b32 v%d, s%d" % (vt, S_NONCE)); a("v_mov_b32 v%d, 0" % (vt+1))
        a("s_mov_b64 exec, 1")
        a("buffer_store_dword v%d, v%d, s[%d:%d], s%d offen sc1" % (vt, vt+1, R_WS, R_WS+3, sidx))
        a("s_mov_b64 exec, -1")
    def set_mark(a, vt, off):
        a("s_lshl_b32 s46, s2, 2"); a("s_add_u32 s46, s46, %d" % off)
        a("v_mov_b32 v%d, s%d" % (vt, S_NONCE)); a("v_mov_b32 v%d, 0" % (vt+1))
        a("s_mov_b64 exec, 1")
        a("buffer_store_dword v%d, v%d, s[%d:%d], s46 offen sc1" % (vt, vt+1, R_WS, R_WS+3))
        a("s_mov_b64 exec, -1")
    def poll(a, vidx, vt, sleep0=6, sleep=2):
        L = a.newlabel("Lpoll")
        a("v_lshlrev_b32 v%d, 7, v%d" % (vidx, vidx))
        a("s_mov_b32 s46, 100000")
        if sleep0: a("s_sleep %d" % sleep0)
        a.label(L)
        a("buffer_load_dword v%d, v%d, s[%d:%d], 0 offen offset:%d sc1" % (vt, vidx, R_WS, R_WS+3, FLAG0))
        a("s_waitcnt vmcnt(0)")
        a("v_cmp_ne_u32 vcc, s%d, v%d" % (S_NONCE, vt))
        a("s_cbranch_vccz %s_x" % L)
        a("s_sleep %d" % sleep)
        a("s_sub_u32 s46, s46, 1"); a("s_cbranch_scc0 %s" % L)
        a.label(L + "_x")

def mfma(d, A, B, C=None, ta="v", tb="v", td="v"):
    c = "0" if C is None else "%s[%d:%d]" % (td, C, C+3)
    return "v_mfma_f32_16x16x32_bf16 %s[%d:%d], %s[%d:%d], %s[%d:%d], %s" % (td, d, d+3, ta, A, A+3, tb, B, B+3, c)

def interleave(a, main, fill, start=0):
    n = len(main) - start; k = 0
    for i, m in enumerate(main):
        a(m)
        if i >= start:
            upto = (len(fill)*(i-start+1) + n - 1)//n
            while k < upto: a(fill[k]); k += 1

def prologue(a):
    a("s_cmp_ge_u32 s2, 256"); a("s_cbranch_scc1 L_end")
    a("s_load_dwordx4 s[4:7], s[0:1], 0")
    a("s_load_dwordx2 s[24:25], s[0:1], 80")
    a("s_load_dwordx2 s[8:9], s[0:1], 16")
    a("s_load_dwordx8 s[12:19], s[0:1], 32")
    a("s_load_dwordx4 s[20:23], s[0:1], 64")
    a("v_and_b32 v%d, 63, v0" % V_LANE)
    a("v_lshrrev_b32 v5, 6, v0")
    a("v_and_b32 v%d, 15, v0" % V_R)
    a("v_readfirstlane_b32 s%d, v5" % S_WAVE)
    a("v_lshrrev_b32 v%d, 4, v%d" % (V_G, V_LANE))
    a("v_lshlrev_b32 v%d, 4, v%d" % (V_L16, V_LANE))
    if "antiloc" in ABL:
        a("s_lshr_b32 s46, s2, 5"); a("s_and_b32 s47, s2, 31"); a("s_lshl_b32 s47, s47, 3"); a("s_or_b32 s2, s46, s47")
    a("s_and_b32 s%d, s2, 7" % S_XCD); a("s_lshr_b32 s%d, s2, 3" % S_SLOT)
    a("s_mov_b32 s%d, 0x3f803f80" % S_ONES)
    if "nopf" not in ABL:
        a("s_getpc_b64 s[46:47]")
        a.label("L_pc")
        a("s_mul_i32 s48, s%d, %d" % (S_SLOT, 20*128)); a("v_lshl_add_u32 v5, v0, 7, s48")
        a("v_cmp_gt_u32 vcc, 20, v0"); a("s_mov_b32 s48, L_last-L_pc"); a("v_cmp_gt_u32 s[48:49], s48, v5"); a("s_and_b64 vcc, vcc, s[48:49]")
        a("s_and_saveexec_b64 s[48:49], vcc"); a("s_cbranch_execz L_pcd")
        a("global_load_dword v253, v5, s[46:47]")
        a.label("L_pcd")
        a("s_mov_b64 exec, -1")
    if a.stamps:
        for k in range(16): a("s_mov_b32 s%d, 0" % (80+k))
        a.stamp("start")

def publish_nonce(a):
    L = a.newlabel("Lpn")
    a("s_xor_b32 s46, s2, 224"); a("s_or_b32 s46, s46, s%d" % S_WAVE); a("s_cmp_lg_u32 s46, 0"); a("s_cbranch_scc1 %s" % L)
    a("v_mov_b32 v252, 0")
    a("buffer_load_dword v250, v252, s[%d:%d], 0 offen sc1" % (R_WS, R_WS+3))
    a("s_mov_b32 s46, 0x9E3779B1")
    a("s_waitcnt vmcnt(0)")
    a("v_mul_lo_u32 v250, v250, s46"); a("v_add_u32 v250, 0x7F4A7C15, v250"); a("v_mov_b32 v251, 1")
    a("s_mov_b64 exec, 1")
    a("buffer_store_dword v250, v252, s[%d:%d], 0 offen sc1" % (R_WS, R_WS+3))
    a("global_store_dwordx2 v252, v[250:251], s[%d:%d] sc1" % (S_DBG, S_DBG+1))
    a("s_mov_b64 exec, -1")
    a.label(L)

def swizzle_setup(a):
    for i in range(9):
        a("v_add_u32 v40, %d, v%d" % (64*i, V_LANE))
        a("v_mul_u32_u24 v%d, 911, v40" % (10+i)); a("v_lshrrev_b32 v%d, 16, v%d" % (10+i, 10+i))
        a("v_mul_u32_u24 v41, 72, v%d" % (10+i)); a("v_sub_u32 v41, v40, v41"); a("v_lshlrev_b32 v%d, 4, v41" % (20+i))
    a("v_lshrrev_b32 v40, 2, v%d" % V_R); a("v_lshl_add_u32 v40, v%d, 3, v40" % V_G); a("v_mul_u32_u24 v40, 1152, v40")
    a("v_and_b32 v41, 3, v%d" % V_R); a("v_lshl_add_u32 v30, v41, 4, v40")
    a("s_lshr_b32 s46, s%d, 1" % S_WAVE); a("s_lshl_b32 s46, s46, 6"); a("s_and_b32 s47, s%d, 1" % S_WAVE); a("s_lshl_b32 s47, s47, 3")
    a("s_add_u32 s46, s46, s47"); a("v_add_u32 v30, s46, v30")

def sw_decode(a, su, p):
    Ln = a.newlabel("Lsw")
    D = 60+3*p
    a("s_cmp_ge_u32 s%d, 54" % su); a("s_cbranch_scc1 %s_big" % Ln)
    a.sdiv(51, 52, su, 18)
    a("s_cmp_eq_u32 s51, 1"); a("s_cselect_b32 s54, s%d, s%d" % (S_W1, S_W2)); a("s_cselect_b32 s55, s%d, s%d" % (S_W1+1, S_W2+1))
    a("s_cmp_eq_u32 s51, 0"); a("s_cselect_b32 s54, s%d, s54" % S_WO); a("s_cselect_b32 s55, s%d, s55" % (S_WO+1))
    a("s_mul_i32 s%d, s51, %d" % (D, SW)); a("s_add_u32 s%d, s%d, %d" % (D, D, WO_S))
    a("s_mul_i32 s53, s%d, 18432" % S_WAVE); a("s_add_u32 s%d, s%d, s53" % (D, D))
    a("s_mov_b32 s%d, 73728" % (D+1))
    a("s_lshl_b32 s56, s52, 5"); a("s_lshl_b32 s53, s%d, 3" % S_WAVE); a("s_add_u32 s56, s56, s53")
    a("s_mov_b32 s57, 0"); a("s_mov_b32 s59, 1152")
    a("s_cmp_lg_u32 s51, 0"); a("s_cbranch_scc1 %s_j" % Ln)
    a("s_mul_i32 s56, s52, 36"); a("s_lshl_b32 s53, s%d, 2" % S_WAVE); a("s_add_u32 s56, s56, s53"); a("s_mov_b32 s57, 16")
    a("s_cmp_lt_u32 s52, 16"); a("s_cbranch_scc1 %s_j" % Ln)
    a("s_sub_u32 s56, s52, 16"); a("s_lshl_b32 s56, s56, 2"); a("s_add_u32 s56, s56, s%d" % S_WAVE)
    a("s_mul_i32 s56, s56, 72"); a("s_add_u32 s56, s56, 16"); a("s_mov_b32 s57, 32")
    a("s_branch %s_j" % Ln)
    a.label(Ln + "_big")
    sw_big(a, su, D)
    a("s_lshl_b32 s56, s52, 5"); a("s_lshl_b32 s53, s%d, 3" % S_WAVE); a("s_add_u32 s56, s56, s53"); a("s_mov_b32 s57, 0")
    a("s_cmp_ge_u32 s51, 8"); a("s_cbranch_scc1 %s_w4" % Ln)
    a("s_mul_i32 s53, s51, 1152"); a("s_add_u32 s54, s%d, s53" % S_W3); a("s_addc_u32 s55, s%d, 0" % (S_W3+1)); a("s_mov_b32 s59, 9216")
    a("s_branch %s_j" % Ln)
    a.label(Ln + "_w4")
    a("s_sub_u32 s53, s51, 8"); a("s_mul_i32 s53, s53, %d" % SW); a("s_add_u32 s54, s%d, s53" % S_W4); a("s_addc_u32 s55, s%d, 0" % (S_W4+1)); a("s_mov_b32 s59, 1152")
    a.label(Ln + "_j")
    a("s_lshl_b32 s53, s52, 10"); a("s_add_u32 s%d, s%d, s53" % (D, D))
    a("s_add_u32 s%d, s%d, %d" % (D+2, su, FS))

def sw_big(a, su, D):
    a("s_sub_u32 s53, s%d, 54" % su); a.sdiv(51, 52, 53, 18)
    a("s_mul_i32 s%d, s51, %d" % (D, 4*9*18432)); a("s_add_u32 s%d, s%d, %d" % (D, D, W3_S))
    a("s_mul_i32 s53, s%d, %d" % (S_WAVE, 9*18432)); a("s_add_u32 s%d, s%d, s53" % (D, D))
    a("s_mov_b32 s%d, 18432" % (D+1))

def sw_issue(a, su, p, lds):
    sw_decode(a, su, p)
    a("s_mov_b32 s%d, s54" % R_A); a("s_mov_b32 s%d, s55" % (R_A+1))
    a("s_mul_i32 s%d, s59, 575" % (R_A+2)); a("s_add_u32 s%d, s%d, 1152" % (R_A+2, R_A+2)); a("s_mov_b32 s%d, 0x20000" % (R_A+3))
    a("s_mul_i32 s53, s%d, 9216" % S_WAVE); a("s_add_u32 m0, s53, %d" % lds)
    for k in range(9):
        a("v_lshrrev_b32 v40, 2, v%d" % (10+k)); a("v_mul_lo_u32 v40, v40, s57"); a("v_add3_u32 v40, v40, v%d, s56" % (10+k))
        a("v_mul_lo_u32 v40, v40, s59"); a("v_add_u32 v40, v40, v%d" % (20+k))
        a("buffer_load_dwordx4 v40, s[%d:%d], 0 offen lds" % (R_A, R_A+3))
        a("s_add_u32 m0, m0, 1024")

def sw_process(a, p, lds):
    a("v_add_u32 v31, %d, v30" % lds)
    for q in range(9):
        for hh in range(2):
            a("ds_read_b64_tr_b16 v[%d:%d], v31 offset:%d" % (44+4*q+2*hh, 45+4*q+2*hh, hh*4608 + 128*q))
    a("s_mov_b32 s53, s%d" % (60+3*p))
    for q in range(9):
        a("s_waitcnt lgkmcnt(%d)" % min(15, 16-2*q))
        a("buffer_store_dwordx4 v[%d:%d], v%d, s[%d:%d], s53 offen sc1" % (44+4*q, 47+4*q, V_L16, R_WS, R_WS+3))
        a("s_add_u32 s53, s53, s%d" % (61+3*p))

def sw_flags(a, ps, mark=False):
    L = a.newlabel("Lswf")
    a("s_cmp_lg_u32 s%d, 0" % S_WAVE); a("s_cbranch_scc1 %s" % L)
    for p in ps: a.set_flag(62+3*p, 40)
    if mark: a.set_mark(40, FP_OFF - 4*224)
    a.label(L)

MK, R_M = 220, 76

def mark_setup(a):
    a.srd(R_M, S_WS, MARK_N, O_OFF)
    for r in range(4): a("v_mov_b32 v%d, -1" % (MK+r))
    a("s_sub_u32 s74, s2, %d" % 224); a("s_lshl_b32 s74, s74, 2"); a("s_add_u32 s74, s74, s%d" % S_WAVE); a("s_mul_i32 s74, s74, %d" % MARK_W)

def mark_fill(a, n):
    L = a.newlabel("Lmk")
    a("s_mov_b32 s75, %d" % n)
    a.label(L)
    a(mark_store(74, 0)); a(mark_store(74, 1024)); a("s_add_u32 s74, s74, 2048"); a("s_waitcnt vmcnt(40)")
    a("s_sub_u32 s75, s75, 1"); a("s_cmp_lg_u32 s75, 0"); a("s_cbranch_scc1 %s" % L)

def mark_store(s, off): return "buffer_store_dwordx4 v[%d:%d], v%d, s[%d:%d], s%d offen offset:%d sc1" % (MK, MK+3, V_L16, R_M, R_M+3, s, off)

def touch_pages(a):
    if "tlb" not in ABL: return
    L = a.newlabel("Ltp")
    a("s_cmp_lg_u32 s%d, 1" % S_WAVE); a("s_cbranch_scc1 %s" % L)
    a("v_lshlrev_b32 v252, 21, v%d" % V_LANE)
    a("buffer_load_dword v253, v252, s[%d:%d], 0 offen offset:64" % (R_WS, R_WS+3))
    for p, size in ((S_W3, BW), (S_W4, BW), (S_OUT, ACT), (S_WO, SW), (S_W1, SW), (S_W2, SW)):
        n = (size - 1 >> 21) + 1
        a("s_mov_b64 exec, %d" % ((1 << n) - 1))
        a("global_load_dword v253, v252, s[%d:%d]" % (p, p+1))
    a("s_mov_b64 exec, -1")
    a.label(L)

def touch_inputs(a, nwg):
    nx, nw = -(-18432//(2*nwg)), -(-15552//(2*nwg))
    a("s_mul_i32 s46, s50, 14"); a("s_add_u32 s46, s46, s51"); a("s_lshl_b32 s46, s46, 1"); a("s_add_u32 s46, s46, s53")
    a("v_lshlrev_b32 v252, 7, v%d" % V_LANE)
    L = a.newlabel("Lti")
    a("s_cmp_lg_u32 s52, 0"); a("s_cbranch_scc1 %s_w" % L)
    a("s_mul_i32 s46, s46, %d" % (128*nx)); a("s_add_u32 s46, s46, 4096"); a("s_mov_b64 exec, 0x%x" % ((1 << nx) - 1) if nx <= 32 else "s_bfm_b64 exec, %d, 0" % nx)
    a("buffer_load_dword v253, v252, s[%d:%d], s46 offen" % (R_A, R_A+3))
    a("s_branch %s" % L)
    a.label(L + "_w")
    a("s_mul_i32 s46, s46, %d" % (128*nw)); a("s_add_u32 s46, s46, 4096"); a("s_bfm_b64 exec, %d, 0" % nw)
    a("buffer_load_dword v253, v252, s[%d:%d], s46 offen" % (R_B, R_B+3))
    a.label(L)
    a("s_mov_b64 exec, -1")

def phase1(a):
    QS = 18**-0.5 * math.log2(math.e)
    a("s_cmp_ge_u32 s%d, 28" % S_SLOT); a("s_cbranch_scc1 L_p1_helper")
    a.sdiv(46, 47, S_SLOT, 7)
    a("s_lshr_b32 s48, s%d, 1" % S_XCD); a("s_lshl_b32 s48, s48, 2"); a("s_add_u32 s50, s48, s46")
    a("s_and_b32 s48, s%d, 1" % S_XCD); a("s_mul_i32 s48, s48, 7"); a("s_add_u32 s51, s48, s47")
    a("s_lshr_b32 s52, s%d, 1" % S_WAVE); a("s_and_b32 s53, s%d, 1" % S_WAVE)
    a("v_lshrrev_b32 v20, 3, v%d" % V_LANE); a("v_and_b32 v21, 7, v%d" % V_LANE)
    a("v_xor_b32 v22, v21, v%d" % V_G); a("v_mul_u32_u24 v20, 1152, v20")
    a("v_lshl_add_u32 v10, v22, 4, v20"); a("v_xor_b32 v22, 4, v22"); a("v_lshl_add_u32 v11, v22, 4, v20")
    a("v_add_u32 v12, %d, v10" % (16*1152 - 2048 + 4096)); a("v_add_u32 v13, %d, v11" % (24*1152 - 3072 + 4096))
    a("v_add_u32 v11, %d, v11" % (8*1152 - 1024 + 4096)); a("v_add_u32 v10, 4096, v10")
    a("v_lshrrev_b32 v20, 1, v%d" % V_R); a("v_xor_b32 v20, v20, v%d" % V_G); a("v_and_b32 v21, 1, v%d" % V_LANE)
    a("v_lshl_add_u32 v21, v20, 1, v21"); a("v_mul_u32_u24 v22, 3456, v%d" % V_G)
    a("v_lshl_add_u32 v14, v21, 4, v22"); a("v_xor_b32 v21, 8, v21"); a("v_lshl_add_u32 v16, v21, 4, v22")
    a("v_add_u32 v15, %d, v14" % (4*3456 - 1024 + 4096)); a("v_add_u32 v17, %d, v16" % (12*3456 - 3072 + 4096))
    a("v_add_u32 v16, %d, v16" % (8*3456 - 2048 + 4096)); a("v_add_u32 v14, 4096, v14")
    a("s_lshl_b32 s54, s50, 2"); a("s_add_u32 s54, s54, s%d" % S_WAVE); a("s_mul_i32 s54, s54, %d" % (32*1152))
    a("s_mul_i32 s55, s%d, %d" % (S_WAVE, 16*3456)); a("s_lshl_b32 s46, s51, 8"); a("s_add_u32 s55, s55, s46")
    a("s_lshl_b32 s56, s%d, 12" % S_WAVE)
    a("s_waitcnt lgkmcnt(0)")
    if WSOFF: a("s_add_u32 s24, s24, %d" % WSOFF); a("s_addc_u32 s25, s25, 0")
    a.srd(R_A, S_X, ACT + 4096, -4096); a.srd(R_B, S_WQKV, 576*3456 + 4096, -4096)
    a.sdiv(46, 47, S_SLOT, 7)
    a("s_and_b32 s48, s%d, 1" % S_XCD); a("s_add_u32 s46, s46, s48"); a("s_lshl_b32 s46, s46, 1"); a("s_add_u32 s46, s46, s47")
    a("s_bfe_u32 s47, s%d, 0x10001" % S_XCD); a("s_add_u32 s46, s46, s47"); a("s_and_b32 s47, s%d, 4" % S_XCD); a("s_lshl_b32 s47, s47, 1"); a("s_add_u32 s46, s46, s47")
    if "rot8" not in ABL: a.sdiv(47, 67, 46, 9)
    else:
        a("s_and_b32 s70, s46, 7"); a("s_mov_b32 s67, 0")
    def dma(sbuf):
        X = ["buffer_load_dwordx4 v%d, s[%d:%d], s68 offen offset:%d lds" % (10+j, R_A, R_A+3, 1024*j) for j in range(4)]
        W = ["buffer_load_dwordx4 v%d, s[%d:%d], s69 offen offset:%d lds" % (14+j, R_B, R_B+3, 1024*j) for j in range(4)]
        X[0] = "s_mov_b32 m0, s%d\ns_lshl_b32 s68, s67, 7\ns_add_u32 s68, s68, s54\n" % sbuf + X[0]
        X[1] = "s_mul_i32 s69, s67, %d\ns_add_u32 s69, s69, s55\n" % (64*3456) + X[1]
        X[2] = "s_add_u32 s67, s67, 1\ns_cmp_eq_u32 s67, 9\ns_cselect_b32 s67, %d, s67\n" % (0 if "rot8" not in ABL else 1) + X[2]
        W[0] = "s_add_u32 m0, s%d, 16384\ns_nop 0\n" % sbuf + W[0]
        return X + W
    for x in dma(56): a(x)
    a("s_add_u32 s56, s56, 32768")
    if "rot8" in ABL: a("s_add_u32 s67, s67, s70")
    if "p1touch" in ABL: touch_inputs(a, 224)
    a.stamp("p1_issue")
    a.srd(R_WS, S_WS, WS_END)
    touch_pages(a)
    a("v_lshrrev_b32 v30, 2, v%d" % V_R); a("v_and_b32 v31, 3, v%d" % V_R)
    a("v_lshl_add_u32 v32, v%d, 3, v30" % V_G); a("v_lshlrev_b32 v32, 8, v32"); a("v_lshl_add_u32 v32, v31, 3, v32")
    a("v_add_u32 v32, 16384, v32")
    a("v_and_b32 v33, 1, v%d" % V_G); a("v_lshl_add_u32 v33, v33, 2, v30")
    a("s_lshl_b32 s46, s53, 2"); a("s_lshl_b32 s47, s52, 1"); a("s_or_b32 s57, s46, s47")
    for t in range(4):
        a("s_xor_b32 s46, s57, %d" % t); a("v_xor_b32 v34, s46, v33"); a("v_lshl_add_u32 v%d, v34, 5, v32" % (20+t))
    a("v_lshrrev_b32 v30, 1, v%d" % V_R); a("v_xor_b32 v30, v30, v%d" % V_G); a("v_lshlrev_b32 v31, 7, v%d" % V_R)
    a("s_lshl_b32 s46, s52, 13"); a("s_lshl_b32 s47, s53, 12"); a("s_add_u32 s46, s46, s47"); a("s_xor_b32 s47, s46, 4096")
    a("v_lshl_add_u32 v32, v30, 4, v31"); a("v_xor_b32 v33, 64, v32")
    a("v_add_u32 v24, s46, v32"); a("v_add_u32 v25, s47, v32"); a("v_add_u32 v26, s46, v33"); a("v_add_u32 v27, s47, v33")
    ACC, CS, ST, ONE = 48, 112, 120, 140
    XB = (144, 160); WB = (176, 192)
    WA, XA = 28, 32
    for r in range(ACC, ONE): a("v_mov_b32 v%d, 0" % r)
    for r in range(4): a("v_mov_b32 v%d, s%d" % (ONE+r, S_ONES))
    def addr(sbase):
        return ["v_add_u32 v%d, %s, v%d" % (WA+i, sbase, 20+i) for i in range(8)]
    def reads(jj):
        o = []
        for T in range(4):
            o.append("ds_read_b128 v[%d:%d], v%d offset:%d" % (XB[jj]+4*T, XB[jj]+4*T+3, XA+2*jj+(T>>1), 2048*(T&1)))
            for hh in range(2):
                o.append("ds_read_b64_tr_b16 v[%d:%d], v%d offset:%d" % (WB[jj]+4*T+2*hh, WB[jj]+4*T+2*hh+1, WA+T, jj*8192+hh*1024))
        return o
    def mm(jj, swap):
        o = []
        for t in range(4):
            for T in range(4):
                d = ACC+16*t+4*T
                o.append(mfma(d, XB[jj]+4*T, WB[jj]+4*t, d) if swap else mfma(d, WB[jj]+4*t, XB[jj]+4*T, d))
            if t < 2:
                d = CS+4*t
                o.append(mfma(d, ONE, WB[jj]+4*t, d) if swap else mfma(d, WB[jj]+4*t, ONE, d))
            x = XB[jj]+4*(t>>1); d = ST+4*t
            o.append(mfma(d, x if t & 1 else ONE, x, d))
        return o
    for x in addr("0"): a(x)
    a("s_lshl_b32 s60, s51, 1"); a("s_add_u32 s60, s60, s53")
    a("s_lshl_b32 s46, s50, 1"); a("s_add_u32 s46, s46, s52"); a("s_lshl_b32 s46, s46, 1"); a("s_add_u32 s47, s46, s53")
    a("s_xor_b32 s46, s47, 1"); a("s_mul_i32 s65, s47, 2304"); a("s_mul_i32 s66, s46, 2304"); a("s_mov_b32 s64, %d" % HPSZ)
    a("s_mov_b32 s58, 0"); a("s_mov_b32 s59, 0")
    a("s_cmp_ge_u32 s51, 9"); a("s_cbranch_scc1 L_p1_v0")
    for swap in (0, 1):
        L = "L_p1_v" if swap else "L_p1_qk"
        a.label(L + "0")
        if not swap:
            a("s_mov_b32 s62, %d" % Q_OFF); a("s_cmp_ge_u32 s60, 9"); a("s_cselect_b32 s61, 144, 0"); a("s_cselect_b32 s62, %d, s62" % K_OFF)
            a("s_cselect_b32 s73, 1.0, %d" % f32(QS))
            a("s_lshl_b32 s63, s60, 4"); a("s_sub_u32 s63, s63, s61")
            for t in range(4):
                a("s_lshl_b32 s46, s52, 1"); a("s_xor_b32 s46, s46, %d" % t); a("s_lshl_b32 s46, s46, 2"); a("s_add_u32 s46, s46, s63")
                a("v_add_u32 v212, s46, v%d" % V_G)
                a("v_mul_u32_u24 v213, 7282, v212"); a("v_lshrrev_b32 v213, 16, v213")
                a("v_mul_u32_u24 v214, 9, v213"); a("v_sub_u32 v212, v212, v214")
                a("v_cmp_lt_u32 vcc, 4, v212"); a("v_subb_co_u32 v214, vcc, v212, 0, vcc")
                a("v_cmp_eq_u32 vcc, 4, v212"); a("v_cndmask_b32 v214, v214, 8, vcc")
                a("v_mul_lo_u32 v213, v213, s64"); a("v_lshl_add_u32 v213, v214, 8, v213"); a("v_lshl_add_u32 v%d, v%d, 4, v213" % (208+t, V_R))
        else:
            a("s_mov_b32 s62, %d" % V_OFF); a("s_sub_u32 s63, s60, 18"); a("s_lshl_b32 s63, s63, 6")
            for t in range(4):
                a("s_lshl_b32 s46, s52, 1"); a("s_xor_b32 s46, s46, %d" % t); a("s_lshl_b32 s46, s46, 4"); a("s_add_u32 s46, s46, s63")
                a("v_add_u32 v212, s46, v%d" % V_R)
                a("v_mul_u32_u24 v213, 1821, v212"); a("v_lshrrev_b32 v213, 16, v213")
                a("v_mul_u32_u24 v214, 36, v213"); a("v_sub_u32 v212, v212, v214")
                a("v_lshl_add_u32 v214, v%d, 4, v212" % V_G)
                a("v_add_u32 v215, 44, v214")
                a("v_cmp_lt_u32 vcc, 19, v212"); a("v_cndmask_b32 v214, v214, v215, vcc")
                a("v_lshl_add_u32 v215, v212, 2, v%d" % V_G); a("v_add_u32 v215, 64, v215")
                a("v_lshrrev_b32 v212, 2, v212"); a("v_cmp_eq_u32 vcc, 4, v212"); a("v_cndmask_b32 v214, v214, v215, vcc")
                a("v_mul_lo_u32 v213, v213, s64"); a("v_lshl_add_u32 v%d, v214, 4, v213" % (208+t))
        a("s_add_u32 s65, s65, s62"); a("s_add_u32 s66, s66, s62")
        for x in dma(56): a(x)
        a("s_add_u32 s56, s56, 32768")
        a("s_waitcnt vmcnt(8)"); a("s_barrier")
        a.stamp("p1_first")
        for x in reads(0): a(x)
        a.label(L)
        a("s_cmp_ge_u32 s58, 7"); a("s_cbranch_scc1 %s_n" % L)
        for dm in (1, 0):
            d = dma(56) if (dm and "p1nodma" not in ABL) else []
            m = mm(0, swap)
            a("s_waitcnt lgkmcnt(0)")
            interleave(a, m[:14], reads(1))
            interleave(a, m[14:], d[:4])
            a("s_add_u32 s58, s58, 1")
            a("s_add_u32 s59, s59, 32768"); a("s_cmp_eq_u32 s59, 163840"); a("s_cselect_b32 s59, 0, s59")
            a("s_waitcnt vmcnt(%d) lgkmcnt(0)" % (4 if dm else 0))
            a("s_barrier")
            m = mm(1, swap); ad = addr("s59")
            interleave(a, m[:3], ad[4:6] + ad[0:4])
            interleave(a, m[3:15], reads(0) + ad[6:8])
            interleave(a, m[15:], d[4:])
            if dm:
                a("s_add_u32 s56, s56, 32768"); a("s_cmp_ge_u32 s56, 163840"); a("s_cselect_b32 s46, 163840, 0"); a("s_sub_u32 s56, s56, s46")
                a("s_branch %s" % L)
                a.label(L + "_n")
            else:
                a("s_cmp_lt_u32 s58, 9"); a("s_cbranch_scc1 %s_n" % L)
        a.stamp("p1_loop")
        a("s_waitcnt lgkmcnt(0)")
        a("v_and_b32 v40, 1, v%d" % V_R); a("v_cmp_eq_u32 s[74:75], 1, v40")
        a("v_and_b32 v40, 2, v%d" % V_R); a("v_cmp_eq_u32 s[76:77], 2, v40")
        a("v_lshrrev_b32 v40, 2, v%d" % V_R); a("v_cmp_eq_u32 s[78:79], v40, v%d" % V_G)
        a("s_mov_b32 s46, %d" % f32(1.0/576)); a("s_mov_b32 s47, %d" % f32(1e-5))
        for T in range(2):
            s_, q_ = ST+8*T, ST+8*T+4
            a("v_cndmask_b32 v%d, v%d, v%d, s[74:75]" % (q_, q_, q_+1)); a("v_cndmask_b32 v%d, v%d, v%d, s[74:75]" % (q_+2, q_+2, q_+3))
            a("v_mul_f32 v%d, s46, v%d" % (s_, s_))
            a("v_cndmask_b32 v%d, v%d, v%d, s[76:77]" % (q_, q_, q_+2))
            a("v_mul_f32 v42, v%d, v%d" % (s_, s_))
            a("v_fma_f32 v%d, v%d, s46, -v42" % (q_, q_)); a("v_max_f32 v%d, 0, v%d" % (q_, q_)); a("v_add_f32 v%d, s47, v%d" % (q_, q_))
            a("v_rsq_f32 v%d, v%d" % (36+2*T, q_)); a("v_mul_f32 v%d, v%d, -v%d" % (37+2*T, 36+2*T, s_))
        a("s_lshl_b32 s46, s52, 9"); a("s_lshl_b32 s47, s53, 8"); a("s_add_u32 s46, s46, s47")
        a("v_lshl_add_u32 v40, v%d, 3, s46" % V_R)
        a("s_mov_b64 exec, s[78:79]")
        a("ds_write_b64 v40, v[36:37]"); a("ds_write_b64 v40, v[38:39] offset:128")
        a("s_mov_b64 exec, -1")
        a("s_lshl_b32 s47, s57, 6")
        if not swap:
            a("v_lshl_add_u32 v41, v%d, 4, s47" % V_G)
            a("ds_write_b128 v41, v[%d:%d] offset:1024" % (CS, CS+3)); a("ds_write_b128 v41, v[%d:%d] offset:1088" % (CS+4, CS+7))
        else:
            a("v_lshl_add_u32 v41, v%d, 2, s47" % V_R)
            a("ds_write_b32 v41, v%d offset:1024" % CS); a("ds_write_b32 v41, v%d offset:1088" % (CS+4))
        a("s_waitcnt lgkmcnt(0)"); a("s_barrier")
        Ls = L + "_s"
        a("s_cmp_ge_u32 s60, 27"); a("s_cbranch_scc1 %s" % Ls)
        a("v_xor_b32 v42, 256, v40"); a("v_xor_b32 v43, 128, v41")
        if not swap:
            RS, CC = 144, 160
            a("ds_read_b64 v[%d:%d], v40" % (RS, RS+1)); a("ds_read_b64 v[%d:%d], v40 offset:128" % (RS+2, RS+3))
            a("ds_read_b64 v[%d:%d], v42" % (RS+4, RS+5)); a("ds_read_b64 v[%d:%d], v42 offset:128" % (RS+6, RS+7))
            for t in range(4):
                a("ds_read_b128 v[%d:%d], v%d offset:%d" % (CC+4*t, CC+4*t+3, 41 if t < 2 else 43, 1024+64*(t&1)))
            a("s_waitcnt lgkmcnt(0)")
            for T in range(4): a("v_pk_mul_f32 v[%d:%d], v[%d:%d], s[72:73] op_sel:[0,1] op_sel_hi:[1,1]" % (RS+2*T, RS+2*T+1, RS+2*T, RS+2*T+1))
            for t in range(4):
                for T in range(4):
                    d = ACC+16*t+4*T
                    for h in range(2):
                        a("v_pk_mul_f32 v[216:217], v[%d:%d], v[%d:%d] op_sel:[0,1] op_sel_hi:[1,1]" % (CC+4*t+2*h, CC+4*t+2*h+1, RS+2*T, RS+2*T+1))
                        a("v_pk_fma_f32 v[%d:%d], v[%d:%d], v[%d:%d], v[216:217] op_sel_hi:[1,0,1]" % (d+2*h, d+2*h+1, d+2*h, d+2*h+1, RS+2*T, RS+2*T+1))
                    e = ACC+16*t+8*(T>>1)+2*(T&1)
                    a("v_cvt_pk_bf16_f32 v%d, v%d, v%d" % (e, d, d+1)); a("v_cvt_pk_bf16_f32 v%d, v%d, v%d" % (e+1, d+2, d+3))
                    if T & 1:
                        a("buffer_store_dwordx4 v[%d:%d], v%d, s[%d:%d], s%d offen sc1" % (e-2, e+1, 208+t, R_WS, R_WS+3, 65+(T>>1)))
        else:
            RS, CC = 144, 176
            a("v_lshl_add_u32 v40, v%d, 5, s46" % V_G); a("v_xor_b32 v42, 256, v40")
            for T in range(4):
                for h in range(2):
                    a("ds_read_b128 v[%d:%d], v%d offset:%d" % (RS+8*T+4*h, RS+8*T+4*h+3, 40 if T < 2 else 42, 128*(T&1)+16*h))
            for t in range(4):
                a("ds_read_b32 v%d, v%d offset:%d" % (CC+t, 41 if t < 2 else 43, 1024+64*(t&1)))
            a("s_waitcnt lgkmcnt(0)")
            for t in range(4):
                for T in range(4):
                    d = ACC+16*t+4*T
                    for i in range(4):
                        a("v_mul_f32 v%d, v%d, v%d" % (216+i, RS+8*T+2*i+1, CC+t))
                    for i in range(4):
                        a("v_fma_f32 v%d, v%d, v%d, v%d" % (d+i, d+i, RS+8*T+2*i, 216+i))
                    e = ACC+16*t+8*(T>>1)+2*(T&1)
                    a("v_cvt_pk_bf16_f32 v%d, v%d, v%d" % (e, d, d+1)); a("v_cvt_pk_bf16_f32 v%d, v%d, v%d" % (e+1, d+2, d+3))
                    if T & 1:
                        a("buffer_store_dwordx4 v[%d:%d], v%d, s[%d:%d], s%d offen sc1" % (e-2, e+1, 208+t, R_WS, R_WS+3, 65+(T>>1)))
        a.label(Ls)
        if not swap: a("s_branch L_p1_pub")
    a.label("L_p1_pub")
    if "d_p1" in ABL: a("s_sleep 64")
    a.stamp("p1_stores")
    L = a.newlabel("Lp1f")
    a("s_cmp_lg_u32 s%d, 0" % S_WAVE); a("s_cbranch_scc1 %s_a" % L)
    a.get_nonce(36)
    a.label(L + "_a")
    a("s_waitcnt vmcnt(0)"); a("s_barrier")
    a("s_cmp_lg_u32 s%d, 0" % S_WAVE); a("s_cbranch_scc1 L_p1_done")
    a("s_lshl_b32 s46, s50, 4"); a("s_add_u32 s46, s46, s51"); a("s_add_u32 s46, s46, %d" % F1)
    a.set_flag(46, 36)
    a("s_branch L_p1_done")
    a.label("L_p1_helper")
    if "d_h1" in ABL: a("s_sleep 64")
    swizzle_setup(a)
    a("s_lshl_b32 s48, s%d, 2" % S_XCD); a("s_add_u32 s48, s48, s%d" % S_SLOT); a("s_sub_u32 s48, s48, 28")
    a("s_waitcnt lgkmcnt(0)")
    if WSOFF: a("s_add_u32 s24, s24, %d" % WSOFF); a("s_addc_u32 s25, s25, 0")
    a.srd(R_WS, S_WS, WS_END)
    publish_nonce(a)
    a("s_add_u32 s49, s48, 32"); a("s_cmp_lt_u32 s49, 54"); a("s_cselect_b32 s49, s49, s48")
    B = 36864
    mark_setup(a)
    if MK0: mark_fill(a, MK0)
    sw_issue(a, 48, 0, 0); sw_issue(a, 49, 1, B)
    if MK1: mark_fill(a, MK1)
    a("s_waitcnt vmcnt(0)"); a("s_barrier")
    sw_process(a, 0, 0); sw_process(a, 1, B)
    L = a.newlabel("Lhn"); a("s_cmp_lg_u32 s%d, 0" % S_WAVE); a("s_cbranch_scc1 %s" % L); a.get_nonce(36); a.label(L)
    a("s_waitcnt vmcnt(0)"); a("s_barrier")
    sw_flags(a, (0, 1))
    a.stamp("h_small")
    if MK0 + MK1 < MKG: mark_fill(a, MKG - MK0 - MK1)
    a("s_waitcnt vmcnt(0)"); a("s_barrier")
    sw_flags(a, (), mark=True)
    a.label("L_p1_done")
    a.stamp("p1_done")

def generate(stop=99, stamps=False):
    a = G(stop, stamps)
    prologue(a)
    phase1(a)
    from phases import phase2, phase345, phase6
    if stop >= 2: phase2(a)
    if stop >= 3: phase345(a)
    if stop >= 6: phase6(a)
    a.label("L_fin")
    a.stamp_out()
    a.label("L_end")
    a("s_endpgm")
    for x in a.stubs: a(x)
    a.label("L_last")
    body, nops = fix_hazards(a.lines)
    return body, nops

HEADER = """; Fused transformer block (LN, QKV, sliding-window attention, Wo, shift-MLP, channel MLP) as one persistent kernel.
; 256 workgroups of 4 waves, one per CU; phases hand data over through d_ws with write-through stores and flags.
; @launch grid=(256,1,1) block=(256,1,1) lds=163840
.amdgcn_target "amdgcn-amd-amdhsa--gfx950"
.text
.globl %s
.p2align 8
.type %s,@function
%s:
""" % (KN, KN, KN)
FOOTER = """.section .rodata,"a"
.p2align 6
.amdhsa_kernel %s
  .amdhsa_next_free_vgpr 512
  .amdhsa_next_free_sgpr 102
  .amdhsa_accum_offset 256
  .amdhsa_group_segment_fixed_size 0
  .amdhsa_kernarg_size 88
  .amdhsa_user_sgpr_count 2
  .amdhsa_user_sgpr_kernarg_segment_ptr 1
  .amdhsa_system_sgpr_workgroup_id_x 1
.end_amdhsa_kernel
""" % KN

def main():
    import argparse
    p = argparse.ArgumentParser()
    p.add_argument("--stop", type=int, default=99); p.add_argument("--stamps", default=""); p.add_argument("--wsoff", type=int, default=0); p.add_argument("--rt", action="store_true")
    p.add_argument("-o", default="k.s")
    o = p.parse_args()
    global WSOFF, CLK
    if o.rt: CLK = 's_memrealtime'
    WSOFF = o.wsoff << 20
    st = STAMPSETS.get(o.stamps, o.stamps.split(',')) if o.stamps else None
    if st:
        st = ['start'] + list(st) + ['end']; assert len(st) <= 16
        open(o.o[:-2] + '.stamps', 'w').write(','.join(st))
    body, nops = generate(o.stop, st)
    text = HEADER + "\n".join(("" if l.endswith(":") else "  ") + l for l in body) + "\n" + FOOTER
    open(o.o, "w").write(text)
    build(o.o, o.o[:-2] + ".co", KN)
    n = sum(1 for l in body if l and not l.endswith(":"))
    print("instructions", n, "nop states added", nops)
    seen = set()
    for nm, takes in TRACES.items():
        errs = check_waits(body, takes)
        for e in errs[:4]:
            if e not in seen: print("WAIT[%s]" % nm, e); seen.add(e)

STAMPSETS = {
 "all": "p1_first p1_loop p1_done p2_ready p2_loaded p2_done p3_ready p4_ready p5_ready p5_done p6_ready p6_x p6_a p6_b".split(),
 "p1": "p1_issue p1_first p1_loop p1_stores p1_done p2_ready p2_loaded p2_done p3_ready p4_ready p5_ready p5_done p6_ready p6_x".split(),
 "p3k": "p2_done p3_ready p3_k0 p3_k9 p3_gemm p4_ready p4_k0 p4_k9 p4_gemm p5_ready p5_k0 p5_k9 p5_gemm".split(),
 "hop": "p1_stores p1_done p2_ready p2_loaded p2_done p3_ready p3_epi p4_ready p4_epi p5_ready p5_epi p6_ready p6_x p6_b".split(),
 "p6": "p5_epi p6_ready p6_x p6_p0 p6_a p6_s0 p6_s6 p6_s7 p6_b p7_ready".split(),
 "h": "h_small p1_stores p1_done p2_setup p2_ready p2_loaded p2_done".split(),
 "p4k": "p3_k0 p3_k9 p3_gemm p3_epi p4_ready p4_k0 p4_k9 p4_gemm p4_epi p5_ready p5_k0 p5_k9 p5_gemm p5_epi".split(),
 "p6x": "p2_done h_w3 h_w4 p5_gemm p5_epi p5_done p6_ready p6_st p6_x9 p6_x17 p6_x p6_p0".split(),
 "crit": "p1_done p2_loaded p2_done h_w3 h_w4 p5_epi p6_ready p6_st p6_x p6_a p6_s6 p6_s7 p6_b".split(),
 "p3": "p2_done p3_dma p3_drain p3_ready p3_gemm p3_epi p4_dma p4_drain p4_ready p4_gemm p4_epi p5_drain p5_ready p5_gemm".split(),
}
TRACES = {"w012": {"L_p7_main": True, "L_p1_qk_n": [False,True,False]}, "h3": {"L_p3_helper": True, "L_p1_qk_n": [False,True,False]}, "edge": {"L_p2_edge": True, "L_p1_qk_n": [False,True,False]}, "qk": {"L_p1_qk_n": [False,False,True,True,False]}, "v": {"L_p1_v0": True, "L_p1_v_n": [False,False,True,True,False]}, "helper": {"L_p1_helper": True}}

if __name__ == "__main__":
    sys.modules["gen"] = sys.modules["__main__"]
    main()
```

```python
import sys, os, struct, math
sys.path.insert(0, "dev"); sys.path.insert(0, "bak2")
from asmlib import Asm, build
from hazard import fix_hazards, check_waits

NAME = "sequential_preLN__sliding_block__mixer_s_mlp__prompt"
KN = NAME + "_kernel"

ACT = 2048*576*2
SW  = 576*576*2
BW  = 576*4608*2
FLAG0 = 128
F1, FS, F2, F3, F4, F5, FA, FB = 0, 256, 640, 896, 1152, 1408, 1664, 2688
TS_OFF = 0x80000
Q_OFF  = 0x90000
K_OFF  = Q_OFF + ACT
V_OFF  = K_OFF + ACT
O_OFF  = V_OFF + ACT
H_OFF  = O_OFF + ACT
SH_OFF = H_OFF + ACT
T_OFF  = SH_OFF + 98304
X1_OFF = T_OFF + ACT
SX_OFF = X1_OFF + ACT
WO_S   = SX_OFF + 98304
W1_S   = WO_S + SW
W2_S   = W1_S + SW
W3_S   = W2_S + SW
W4_S   = W3_S + BW
PART   = W4_S + BW
WS_END = PART + 32*9*8*8192
FP_OFF = 0x7F000
FP2_OFF = FP_OFF + 1024
MARK_N = T_OFF - O_OFF
MKG = 19
MARK_W = 2048*MKG
assert 128*MARK_W >= MARK_N and 1024*5120 >= WO_S - T_OFF
HPSZ   = 147456

WSOFF = 0
MK0 = int(os.environ.get('MK0', 0))
MK1 = int(os.environ.get('MK1', 0))
THR = int(os.environ.get('THR', 0))
NW3 = int(os.environ.get('NW3', 0))
ABL = os.environ.get('ABL', '').split(',')
CLK = 's_memtime'
def f32(x): return struct.unpack("<I", struct.pack("<f", x))[0]
def magic(d): return (1 << 32)//d + 1

S_X, S_WQKV, S_WO = 4, 6, 8
S_W1, S_W2, S_W3, S_W4 = 12, 14, 16, 18
S_OUT, S_DBG, S_WS = 20, 22, 24
R_WS, R_A, R_B = 28, 32, 36
S_WAVE, S_XCD, S_SLOT, S_NONCE = 40, 41, 42, 43
S_ONES = 44
V_LANE, V_R, V_G, V_L16 = 1, 2, 3, 4

class G(Asm):
    def __init__(s, stop=99, stamps=False):
        super().__init__()
        s.stop = stop; s.stamps = stamps; s.stubs = []
    def srd(a, d, p, size, add=0):
        if add >= 0:
            a("s_add_u32 s%d, s%d, %s" % (d, p, add)); a("s_addc_u32 s%d, s%d, 0" % (d+1, p+1))
        else:
            a("s_sub_u32 s%d, s%d, %d" % (d, p, -add)); a("s_subb_u32 s%d, s%d, 0" % (d+1, p+1))
        a("s_mov_b32 s%d, %d" % (d+2, size)); a("s_mov_b32 s%d, 0x20000" % (d+3))
    def srd_s(a, d, p, size, sreg):
        a("s_add_u32 s%d, s%d, s%d" % (d, p, sreg)); a("s_addc_u32 s%d, s%d, 0" % (d+1, p+1))
        a("s_mov_b32 s%d, %d" % (d+2, size)); a("s_mov_b32 s%d, 0x20000" % (d+3))
    def sdiv(a, q, r, x, d):
        a("s_mul_hi_u32 s%d, s%d, %d" % (q, x, magic(d)))
        if r is not None:
            a("s_mul_i32 s%d, s%d, %d" % (r, q, d)); a("s_sub_u32 s%d, s%d, s%d" % (r, x, r))
    def stamp(a, name):
        if not a.stamps or name not in a.stamps: return
        k = a.stamps.index(name)
        a("%s s[98:99]" % CLK); a("s_waitcnt lgkmcnt(0)"); a("s_mov_b32 s%d, s98" % (80+k))
    def stamp_out(a):
        if not a.stamps: return
        a.stamp("end")
        a("s_lshl_b32 s98, s2, 2"); a("s_add_u32 s98, s98, s%d" % S_WAVE); a("s_lshl_b32 s98, s98, 6"); a("s_add_u32 s98, s98, %d" % TS_OFF)
        a("v_mov_b32 v255, 0")
        for k in range(16):
            a("v_mov_b32 v254, s%d" % (80+k))
            a("buffer_store_dword v254, v255, s[%d:%d], s98 offen offset:%d" % (R_WS, R_WS+3, 4*k))
            a("s_nop 1")
    def xg_reduce(a, v, t, op="v_add_f32"):
        for sw in ("v_permlane32_swap_b32", "v_permlane16_swap_b32"):
            a("v_mov_b32 v%d, v%d" % (t, v)); a("%s v%d, v%d" % (sw, v, t)); a("%s v%d, v%d, v%d" % (op, v, v, t))
    def get_nonce(a, vt):
        L = a.newlabel("Lnon")
        a("s_mov_b32 s46, 200000"); a("v_mov_b32 v%d, 0" % (vt+2))
        a.label(L)
        a("global_load_dwordx2 v[%d:%d], v%d, s[%d:%d] sc1" % (vt, vt+1, vt+2, S_DBG, S_DBG+1))
        a("s_waitcnt vmcnt(0)")
        a("v_readfirstlane_b32 s47, v%d" % (vt+1)); a("v_readfirstlane_b32 s%d, v%d" % (S_NONCE, vt))
        a("s_sub_u32 s46, s46, 1"); a("s_cbranch_scc1 %s_x" % L)
        a("s_cmp_eq_u32 s47, 0"); a("s_cbranch_scc1 %s" % L)
        a.label(L + "_x")
    def set_flag(a, sidx, vt):
        a("s_lshl_b32 s%d, s%d, 7" % (sidx, sidx)); a("s_add_u32 s%d, s%d, %d" % (sidx, sidx, FLAG0))
        a("v_mov_b32 v%d, s%d" % (vt, S_NONCE)); a("v_mov_b32 v%d, 0" % (vt+1))
        a("s_mov_b64 exec, 1")
        a("buffer_store_dword v%d, v%d, s[%d:%d], s%d offen sc1" % (vt, vt+1, R_WS, R_WS+3, sidx))
        a("s_mov_b64 exec, -1")
    def set_mark(a, vt, off):
        a("s_lshl_b32 s46, s2, 2"); a("s_add_u32 s46, s46, %d" % off)
        a("v_mov_b32 v%d, s%d" % (vt, S_NONCE)); a("v_mov_b32 v%d, 0" % (vt+1))
        a("s_mov_b64 exec, 1")
        a("buffer_store_dword v%d, v%d, s[%d:%d], s46 offen sc1" % (vt, vt+1, R_WS, R_WS+3))
        a("s_mov_b64 exec, -1")
    def poll(a, vidx, vt, sleep0=6, sleep=2):
        L = a.newlabel("Lpoll")
        a("v_lshlrev_b32 v%d, 7, v%d" % (vidx, vidx))
        a("s_mov_b32 s46, 100000")
        if sleep0: a("s_sleep %d" % sleep0)
        a.label(L)
        a("buffer_load_dword v%d, v%d, s[%d:%d], 0 offen offset:%d sc1" % (vt, vidx, R_WS, R_WS+3, FLAG0))
        a("s_waitcnt vmcnt(0)")
        a("v_cmp_ne_u32 vcc, s%d, v%d" % (S_NONCE, vt))
        a("s_cbranch_vccz %s_x" % L)
        a("s_sleep %d" % sleep)
        a("s_sub_u32 s46, s46, 1"); a("s_cbranch_scc0 %s" % L)
        a.label(L + "_x")

def mfma(d, A, B, C=None, ta="v", tb="v", td="v"):
    c = "0" if C is None else "%s[%d:%d]" % (td, C, C+3)
    return "v_mfma_f32_16x16x32_bf16 %s[%d:%d], %s[%d:%d], %s[%d:%d], %s" % (td, d, d+3, ta, A, A+3, tb, B, B+3, c)

def interleave(a, main, fill, start=0):
    n = len(main) - start; k = 0
    for i, m in enumerate(main):
        a(m)
        if i >= start:
            upto = (len(fill)*(i-start+1) + n - 1)//n
            while k < upto: a(fill[k]); k += 1

def prologue(a):
    a("s_cmp_ge_u32 s2, 256"); a("s_cbranch_scc1 L_end")
    a("s_load_dwordx4 s[4:7], s[0:1], 0")
    a("s_load_dwordx2 s[24:25], s[0:1], 80")
    a("s_load_dwordx2 s[8:9], s[0:1], 16")
    a("s_load_dwordx8 s[12:19], s[0:1], 32")
    a("s_load_dwordx4 s[20:23], s[0:1], 64")
    a("v_and_b32 v%d, 63, v0" % V_LANE)
    a("v_lshrrev_b32 v5, 6, v0")
    a("v_and_b32 v%d, 15, v0" % V_R)
    a("v_readfirstlane_b32 s%d, v5" % S_WAVE)
    a("v_lshrrev_b32 v%d, 4, v%d" % (V_G, V_LANE))
    a("v_lshlrev_b32 v%d, 4, v%d" % (V_L16, V_LANE))
    if "antiloc" in ABL:
        a("s_lshr_b32 s46, s2, 5"); a("s_and_b32 s47, s2, 31"); a("s_lshl_b32 s47, s47, 3"); a("s_or_b32 s2, s46, s47")
    a("s_and_b32 s%d, s2, 7" % S_XCD); a("s_lshr_b32 s%d, s2, 3" % S_SLOT)
    a("s_mov_b32 s%d, 0x3f803f80" % S_ONES)
    if "nopf" not in ABL:
        a("s_getpc_b64 s[46:47]")
        a.label("L_pc")
        a("s_mul_i32 s48, s%d, %d" % (S_SLOT, 20*128)); a("v_lshl_add_u32 v5, v0, 7, s48")
        a("v_cmp_gt_u32 vcc, 20, v0"); a("s_mov_b32 s48, L_last-L_pc"); a("v_cmp_gt_u32 s[48:49], s48, v5"); a("s_and_b64 vcc, vcc, s[48:49]")
        a("s_and_saveexec_b64 s[48:49], vcc"); a("s_cbranch_execz L_pcd")
        a("global_load_dword v253, v5, s[46:47]")
        a.label("L_pcd")
        a("s_mov_b64 exec, -1")
    if a.stamps:
        for k in range(16): a("s_mov_b32 s%d, 0" % (80+k))
        a.stamp("start")

def publish_nonce(a):
    L = a.newlabel("Lpn")
    a("s_xor_b32 s46, s2, 224"); a("s_or_b32 s46, s46, s%d" % S_WAVE); a("s_cmp_lg_u32 s46, 0"); a("s_cbranch_scc1 %s" % L)
    a("v_mov_b32 v252, 0")
    a("buffer_load_dword v250, v252, s[%d:%d], 0 offen sc1" % (R_WS, R_WS+3))
    a("s_mov_b32 s46, 0x9E3779B1")
    a("s_waitcnt vmcnt(0)")
    a("v_mul_lo_u32 v250, v250, s46"); a("v_add_u32 v250, 0x7F4A7C15, v250"); a("v_mov_b32 v251, 1")
    a("s_mov_b64 exec, 1")
    a("buffer_store_dword v250, v252, s[%d:%d], 0 offen sc1" % (R_WS, R_WS+3))
    a("global_store_dwordx2 v252, v[250:251], s[%d:%d] sc1" % (S_DBG, S_DBG+1))
    a("s_mov_b64 exec, -1")
    a.label(L)

def swizzle_setup(a):
    for i in range(9):
        a("v_add_u32 v40, %d, v%d" % (64*i, V_LANE))
        a("v_mul_u32_u24 v%d, 911, v40" % (10+i)); a("v_lshrrev_b32 v%d, 16, v%d" % (10+i, 10+i))
        a("v_mul_u32_u24 v41, 72, v%d" % (10+i)); a("v_sub_u32 v41, v40, v41"); a("v_lshlrev_b32 v%d, 4, v41" % (20+i))
    a("v_lshrrev_b32 v40, 2, v%d" % V_R); a("v_lshl_add_u32 v40, v%d, 3, v40" % V_G); a("v_mul_u32_u24 v40, 1152, v40")
    a("v_and_b32 v41, 3, v%d" % V_R); a("v_lshl_add_u32 v30, v41, 4, v40")
    a("s_lshr_b32 s46, s%d, 1" % S_WAVE); a("s_lshl_b32 s46, s46, 6"); a("s_and_b32 s47, s%d, 1" % S_WAVE); a("s_lshl_b32 s47, s47, 3")
    a("s_add_u32 s46, s46, s47"); a("v_add_u32 v30, s46, v30")

def sw_decode(a, su, p):
    Ln = a.newlabel("Lsw")
    D = 60+3*p
    a("s_cmp_ge_u32 s%d, 54" % su); a("s_cbranch_scc1 %s_big" % Ln)
    a.sdiv(51, 52, su, 18)
    a("s_cmp_eq_u32 s51, 1"); a("s_cselect_b32 s54, s%d, s%d" % (S_W1, S_W2)); a("s_cselect_b32 s55, s%d, s%d" % (S_W1+1, S_W2+1))
    a("s_cmp_eq_u32 s51, 0"); a("s_cselect_b32 s54, s%d, s54" % S_WO); a("s_cselect_b32 s55, s%d, s55" % (S_WO+1))
    a("s_mul_i32 s%d, s51, %d" % (D, SW)); a("s_add_u32 s%d, s%d, %d" % (D, D, WO_S))
    a("s_mul_i32 s53, s%d, 18432" % S_WAVE); a("s_add_u32 s%d, s%d, s53" % (D, D))
    a("s_mov_b32 s%d, 73728" % (D+1))
    a("s_lshl_b32 s56, s52, 5"); a("s_lshl_b32 s53, s%d, 3" % S_WAVE); a("s_add_u32 s56, s56, s53")
    a("s_mov_b32 s57, 0"); a("s_mov_b32 s59, 1152")
    a("s_cmp_lg_u32 s51, 0"); a("s_cbranch_scc1 %s_j" % Ln)
    a("s_mul_i32 s56, s52, 36"); a("s_lshl_b32 s53, s%d, 2" % S_WAVE); a("s_add_u32 s56, s56, s53"); a("s_mov_b32 s57, 16")
    a("s_cmp_lt_u32 s52, 16"); a("s_cbranch_scc1 %s_j" % Ln)
    a("s_sub_u32 s56, s52, 16"); a("s_lshl_b32 s56, s56, 2"); a("s_add_u32 s56, s56, s%d" % S_WAVE)
    a("s_mul_i32 s56, s56, 72"); a("s_add_u32 s56, s56, 16"); a("s_mov_b32 s57, 32")
    a("s_branch %s_j" % Ln)
    a.label(Ln + "_big")
    sw_big(a, su, D)
    a("s_lshl_b32 s56, s52, 5"); a("s_lshl_b32 s53, s%d, 3" % S_WAVE); a("s_add_u32 s56, s56, s53"); a("s_mov_b32 s57, 0")
    a("s_cmp_ge_u32 s51, 8"); a("s_cbranch_scc1 %s_w4" % Ln)
    a("s_mul_i32 s53, s51, 1152"); a("s_add_u32 s54, s%d, s53" % S_W3); a("s_addc_u32 s55, s%d, 0" % (S_W3+1)); a("s_mov_b32 s59, 9216")
    a("s_branch %s_j" % Ln)
    a.label(Ln + "_w4")
    a("s_sub_u32 s53, s51, 8"); a("s_mul_i32 s53, s53, %d" % SW); a("s_add_u32 s54, s%d, s53" % S_W4); a("s_addc_u32 s55, s%d, 0" % (S_W4+1)); a("s_mov_b32 s59, 1152")
    a.label(Ln + "_j")
    a("s_lshl_b32 s53, s52, 10"); a("s_add_u32 s%d, s%d, s53" % (D, D))
    a("s_add_u32 s%d, s%d, %d" % (D+2, su, FS))

def sw_big(a, su, D):
    a("s_sub_u32 s53, s%d, 54" % su); a.sdiv(51, 52, 53, 18)
    a("s_mul_i32 s%d, s51, %d" % (D, 4*9*18432)); a("s_add_u32 s%d, s%d, %d" % (D, D, W3_S))
    a("s_mul_i32 s53, s%d, %d" % (S_WAVE, 9*18432)); a("s_add_u32 s%d, s%d, s53" % (D, D))
    a("s_mov_b32 s%d, 18432" % (D+1))

def sw_issue(a, su, p, lds):
    sw_decode(a, su, p)
    a("s_mov_b32 s%d, s54" % R_A); a("s_mov_b32 s%d, s55" % (R_A+1))
    a("s_mul_i32 s%d, s59, 575" % (R_A+2)); a("s_add_u32 s%d, s%d, 1152" % (R_A+2, R_A+2)); a("s_mov_b32 s%d, 0x20000" % (R_A+3))
    a("s_mul_i32 s53, s%d, 9216" % S_WAVE); a("s_add_u32 m0, s53, %d" % lds)
    for k in range(9):
        a("v_lshrrev_b32 v40, 2, v%d" % (10+k)); a("v_mul_lo_u32 v40, v40, s57"); a("v_add3_u32 v40, v40, v%d, s56" % (10+k))
        a("v_mul_lo_u32 v40, v40, s59"); a("v_add_u32 v40, v40, v%d" % (20+k))
        a("buffer_load_dwordx4 v40, s[%d:%d], 0 offen lds" % (R_A, R_A+3))
        a("s_add_u32 m0, m0, 1024")

def sw_process(a, p, lds):
    a("v_add_u32 v31, %d, v30" % lds)
    for q in range(9):
        for hh in range(2):
            a("ds_read_b64_tr_b16 v[%d:%d], v31 offset:%d" % (44+4*q+2*hh, 45+4*q+2*hh, hh*4608 + 128*q))
    a("s_mov_b32 s53, s%d" % (60+3*p))
    for q in range(9):
        a("s_waitcnt lgkmcnt(%d)" % min(15, 16-2*q))
        a("buffer_store_dwordx4 v[%d:%d], v%d, s[%d:%d], s53 offen sc1" % (44+4*q, 47+4*q, V_L16, R_WS, R_WS+3))
        a("s_add_u32 s53, s53, s%d" % (61+3*p))

def sw_flags(a, ps, mark=False):
    L = a.newlabel("Lswf")
    a("s_cmp_lg_u32 s%d, 0" % S_WAVE); a("s_cbranch_scc1 %s" % L)
    for p in ps: a.set_flag(62+3*p, 40)
    if mark: a.set_mark(40, FP_OFF - 4*224)
    a.label(L)

MK, R_M = 220, 76

def mark_setup(a):
    a.srd(R_M, S_WS, MARK_N, O_OFF)
    for r in range(4): a("v_mov_b32 v%d, -1" % (MK+r))
    a("s_sub_u32 s74, s2, %d" % 224); a("s_lshl_b32 s74, s74, 2"); a("s_add_u32 s74, s74, s%d" % S_WAVE); a("s_mul_i32 s74, s74, %d" % MARK_W)

def mark_fill(a, n):
    L = a.newlabel("Lmk")
    a("s_mov_b32 s75, %d" % n)
    a.label(L)
    a(mark_store(74, 0)); a(mark_store(74, 1024)); a("s_add_u32 s74, s74, 2048"); a("s_waitcnt vmcnt(40)")
    a("s_sub_u32 s75, s75, 1"); a("s_cmp_lg_u32 s75, 0"); a("s_cbranch_scc1 %s" % L)

def mark_store(s, off): return "buffer_store_dwordx4 v[%d:%d], v%d, s[%d:%d], s%d offen offset:%d sc1" % (MK, MK+3, V_L16, R_M, R_M+3, s, off)

def touch_pages(a):
    if "tlb" not in ABL: return
    L = a.newlabel("Ltp")
    a("s_cmp_lg_u32 s%d, 1" % S_WAVE); a("s_cbranch_scc1 %s" % L)
    a("v_lshlrev_b32 v252, 21, v%d" % V_LANE)
    a("buffer_load_dword v253, v252, s[%d:%d], 0 offen offset:64" % (R_WS, R_WS+3))
    for p, size in ((S_W3, BW), (S_W4, BW), (S_OUT, ACT), (S_WO, SW), (S_W1, SW), (S_W2, SW)):
        n = (size - 1 >> 21) + 1
        a("s_mov_b64 exec, %d" % ((1 << n) - 1))
        a("global_load_dword v253, v252, s[%d:%d]" % (p, p+1))
    a("s_mov_b64 exec, -1")
    a.label(L)

def touch_inputs(a, nwg):
    nx, nw = -(-18432//(2*nwg)), -(-15552//(2*nwg))
    a("s_mul_i32 s46, s50, 14"); a("s_add_u32 s46, s46, s51"); a("s_lshl_b32 s46, s46, 1"); a("s_add_u32 s46, s46, s53")
    a("v_lshlrev_b32 v252, 7, v%d" % V_LANE)
    L = a.newlabel("Lti")
    a("s_cmp_lg_u32 s52, 0"); a("s_cbranch_scc1 %s_w" % L)
    a("s_mul_i32 s46, s46, %d" % (128*nx)); a("s_add_u32 s46, s46, 4096"); a("s_mov_b64 exec, 0x%x" % ((1 << nx) - 1) if nx <= 32 else "s_bfm_b64 exec, %d, 0" % nx)
    a("buffer_load_dword v253, v252, s[%d:%d], s46 offen" % (R_A, R_A+3))
    a("s_branch %s" % L)
    a.label(L + "_w")
    a("s_mul_i32 s46, s46, %d" % (128*nw)); a("s_add_u32 s46, s46, 4096"); a("s_bfm_b64 exec, %d, 0" % nw)
    a("buffer_load_dword v253, v252, s[%d:%d], s46 offen" % (R_B, R_B+3))
    a.label(L)
    a("s_mov_b64 exec, -1")

def phase1(a):
    QS = 18**-0.5 * math.log2(math.e)
    a("s_cmp_ge_u32 s%d, 28" % S_SLOT); a("s_cbranch_scc1 L_p1_helper")
    a.sdiv(46, 47, S_SLOT, 7)
    a("s_lshr_b32 s48, s%d, 1" % S_XCD); a("s_lshl_b32 s48, s48, 2"); a("s_add_u32 s50, s48, s46")
    a("s_and_b32 s48, s%d, 1" % S_XCD); a("s_mul_i32 s48, s48, 7"); a("s_add_u32 s51, s48, s47")
    a("s_lshr_b32 s52, s%d, 1" % S_WAVE); a("s_and_b32 s53, s%d, 1" % S_WAVE)
    a("v_lshrrev_b32 v20, 3, v%d" % V_LANE); a("v_and_b32 v21, 7, v%d" % V_LANE)
    a("v_xor_b32 v22, v21, v%d" % V_G); a("v_mul_u32_u24 v20, 1152, v20")
    a("v_lshl_add_u32 v10, v22, 4, v20"); a("v_xor_b32 v22, 4, v22"); a("v_lshl_add_u32 v11, v22, 4, v20")
    a("v_add_u32 v12, %d, v10" % (16*1152 - 2048 + 4096)); a("v_add_u32 v13, %d, v11" % (24*1152 - 3072 + 4096))
    a("v_add_u32 v11, %d, v11" % (8*1152 - 1024 + 4096)); a("v_add_u32 v10, 4096, v10")
    a("v_lshrrev_b32 v20, 1, v%d" % V_R); a("v_xor_b32 v20, v20, v%d" % V_G); a("v_and_b32 v21, 1, v%d" % V_LANE)
    a("v_lshl_add_u32 v21, v20, 1, v21"); a("v_mul_u32_u24 v22, 3456, v%d" % V_G)
    a("v_lshl_add_u32 v14, v21, 4, v22"); a("v_xor_b32 v21, 8, v21"); a("v_lshl_add_u32 v16, v21, 4, v22")
    a("v_add_u32 v15, %d, v14" % (4*3456 - 1024 + 4096)); a("v_add_u32 v17, %d, v16" % (12*3456 - 3072 + 4096))
    a("v_add_u32 v16, %d, v16" % (8*3456 - 2048 + 4096)); a("v_add_u32 v14, 4096, v14")
    a("s_lshl_b32 s54, s50, 2"); a("s_add_u32 s54, s54, s%d" % S_WAVE); a("s_mul_i32 s54, s54, %d" % (32*1152))
    a("s_mul_i32 s55, s%d, %d" % (S_WAVE, 16*3456)); a("s_lshl_b32 s46, s51, 8"); a("s_add_u32 s55, s55, s46")
    a("s_lshl_b32 s56, s%d, 12" % S_WAVE)
    a("s_waitcnt lgkmcnt(0)")
    if WSOFF: a("s_add_u32 s24, s24, %d" % WSOFF); a("s_addc_u32 s25, s25, 0")
    a.srd(R_A, S_X, ACT + 4096, -4096); a.srd(R_B, S_WQKV, 576*3456 + 4096, -4096)
    a.sdiv(46, 47, S_SLOT, 7)
    a("s_and_b32 s48, s%d, 1" % S_XCD); a("s_add_u32 s46, s46, s48"); a("s_lshl_b32 s46, s46, 1"); a("s_add_u32 s46, s46, s47")
    a("s_bfe_u32 s47, s%d, 0x10001" % S_XCD); a("s_add_u32 s46, s46, s47"); a("s_and_b32 s47, s%d, 4" % S_XCD); a("s_lshl_b32 s47, s47, 1"); a("s_add_u32 s46, s46, s47")
    if "rot8" not in ABL: a.sdiv(47, 67, 46, 9)
    else:
        a("s_and_b32 s70, s46, 7"); a("s_mov_b32 s67, 0")
    def dma(sbuf):
        X = ["buffer_load_dwordx4 v%d, s[%d:%d], s68 offen offset:%d lds" % (10+j, R_A, R_A+3, 1024*j) for j in range(4)]
        W = ["buffer_load_dwordx4 v%d, s[%d:%d], s69 offen offset:%d lds" % (14+j, R_B, R_B+3, 1024*j) for j in range(4)]
        X[0] = "s_mov_b32 m0, s%d\ns_lshl_b32 s68, s67, 7\ns_add_u32 s68, s68, s54\n" % sbuf + X[0]
        X[1] = "s_mul_i32 s69, s67, %d\ns_add_u32 s69, s69, s55\n" % (64*3456) + X[1]
        X[2] = "s_add_u32 s67, s67, 1\ns_cmp_eq_u32 s67, 9\ns_cselect_b32 s67, %d, s67\n" % (0 if "rot8" not in ABL else 1) + X[2]
        W[0] = "s_add_u32 m0, s%d, 16384\ns_nop 0\n" % sbuf + W[0]
        return X + W
    for x in dma(56): a(x)
    a("s_add_u32 s56, s56, 32768")
    if "rot8" in ABL: a("s_add_u32 s67, s67, s70")
    if "p1touch" in ABL: touch_inputs(a, 224)
    a.stamp("p1_issue")
    a.srd(R_WS, S_WS, WS_END)
    touch_pages(a)
    a("v_lshrrev_b32 v30, 2, v%d" % V_R); a("v_and_b32 v31, 3, v%d" % V_R)
    a("v_lshl_add_u32 v32, v%d, 3, v30" % V_G); a("v_lshlrev_b32 v32, 8, v32"); a("v_lshl_add_u32 v32, v31, 3, v32")
    a("v_add_u32 v32, 16384, v32")
    a("v_and_b32 v33, 1, v%d" % V_G); a("v_lshl_add_u32 v33, v33, 2, v30")
    a("s_lshl_b32 s46, s53, 2"); a("s_lshl_b32 s47, s52, 1"); a("s_or_b32 s57, s46, s47")
    for t in range(4):
        a("s_xor_b32 s46, s57, %d" % t); a("v_xor_b32 v34, s46, v33"); a("v_lshl_add_u32 v%d, v34, 5, v32" % (20+t))
    a("v_lshrrev_b32 v30, 1, v%d" % V_R); a("v_xor_b32 v30, v30, v%d" % V_G); a("v_lshlrev_b32 v31, 7, v%d" % V_R)
    a("s_lshl_b32 s46, s52, 13"); a("s_lshl_b32 s47, s53, 12"); a("s_add_u32 s46, s46, s47"); a("s_xor_b32 s47, s46, 4096")
    a("v_lshl_add_u32 v32, v30, 4, v31"); a("v_xor_b32 v33, 64, v32")
    a("v_add_u32 v24, s46, v32"); a("v_add_u32 v25, s47, v32"); a("v_add_u32 v26, s46, v33"); a("v_add_u32 v27, s47, v33")
    ACC, CS, ST, ONE = 48, 112, 120, 140
    XB = (144, 160); WB = (176, 192)
    WA, XA = 28, 32
    for r in range(ACC, ONE): a("v_mov_b32 v%d, 0" % r)
    for r in range(4): a("v_mov_b32 v%d, s%d" % (ONE+r, S_ONES))
    def addr(sbase):
        return ["v_add_u32 v%d, %s, v%d" % (WA+i, sbase, 20+i) for i in range(8)]
    def reads(jj):
        o = []
        for T in range(4):
            o.append("ds_read_b128 v[%d:%d], v%d offset:%d" % (XB[jj]+4*T, XB[jj]+4*T+3, XA+2*jj+(T>>1), 2048*(T&1)))
            for hh in range(2):
                o.append("ds_read_b64_tr_b16 v[%d:%d], v%d offset:%d" % (WB[jj]+4*T+2*hh, WB[jj]+4*T+2*hh+1, WA+T, jj*8192+hh*1024))
        return o
    def mm(jj, swap):
        o = []
        for t in range(4):
            for T in range(4):
                d = ACC+16*t+4*T
                o.append(mfma(d, XB[jj]+4*T, WB[jj]+4*t, d) if swap else mfma(d, WB[jj]+4*t, XB[jj]+4*T, d))
            if t < 2:
                d = CS+4*t
                o.append(mfma(d, ONE, WB[jj]+4*t, d) if swap else mfma(d, WB[jj]+4*t, ONE, d))
            x = XB[jj]+4*(t>>1); d = ST+4*t
            o.append(mfma(d, x if t & 1 else ONE, x, d))
        return o
    for x in addr("0"): a(x)
    a("s_lshl_b32 s60, s51, 1"); a("s_add_u32 s60, s60, s53")
    a("s_lshl_b32 s46, s50, 1"); a("s_add_u32 s46, s46, s52"); a("s_lshl_b32 s46, s46, 1"); a("s_add_u32 s47, s46, s53")
    a("s_xor_b32 s46, s47, 1"); a("s_mul_i32 s65, s47, 2304"); a("s_mul_i32 s66, s46, 2304"); a("s_mov_b32 s64, %d" % HPSZ)
    a("s_mov_b32 s58, 0"); a("s_mov_b32 s59, 0")
    a("s_cmp_ge_u32 s51, 9"); a("s_cbranch_scc1 L_p1_v0")
    for swap in (0, 1):
        L = "L_p1_v" if swap else "L_p1_qk"
        a.label(L + "0")
        if not swap:
            a("s_mov_b32 s62, %d" % Q_OFF); a("s_cmp_ge_u32 s60, 9"); a("s_cselect_b32 s61, 144, 0"); a("s_cselect_b32 s62, %d, s62" % K_OFF)
            a("s_cselect_b32 s73, 1.0, %d" % f32(QS))
            a("s_lshl_b32 s63, s60, 4"); a("s_sub_u32 s63, s63, s61")
            for t in range(4):
                a("s_lshl_b32 s46, s52, 1"); a("s_xor_b32 s46, s46, %d" % t); a("s_lshl_b32 s46, s46, 2"); a("s_add_u32 s46, s46, s63")
                a("v_add_u32 v212, s46, v%d" % V_G)
                a("v_mul_u32_u24 v213, 7282, v212"); a("v_lshrrev_b32 v213, 16, v213")
                a("v_mul_u32_u24 v214, 9, v213"); a("v_sub_u32 v212, v212, v214")
                a("v_cmp_lt_u32 vcc, 4, v212"); a("v_subb_co_u32 v214, vcc, v212, 0, vcc")
                a("v_cmp_eq_u32 vcc, 4, v212"); a("v_cndmask_b32 v214, v214, 8, vcc")
                a("v_mul_lo_u32 v213, v213, s64"); a("v_lshl_add_u32 v213, v214, 8, v213"); a("v_lshl_add_u32 v%d, v%d, 4, v213" % (208+t, V_R))
        else:
            a("s_mov_b32 s62, %d" % V_OFF); a("s_sub_u32 s63, s60, 18"); a("s_lshl_b32 s63, s63, 6")
            for t in range(4):
                a("s_lshl_b32 s46, s52, 1"); a("s_xor_b32 s46, s46, %d" % t); a("s_lshl_b32 s46, s46, 4"); a("s_add_u32 s46, s46, s63")
                a("v_add_u32 v212, s46, v%d" % V_R)
                a("v_mul_u32_u24 v213, 1821, v212"); a("v_lshrrev_b32 v213, 16, v213")
                a("v_mul_u32_u24 v214, 36, v213"); a("v_sub_u32 v212, v212, v214")
                a("v_lshl_add_u32 v214, v%d, 4, v212" % V_G)
                a("v_add_u32 v215, 44, v214")
                a("v_cmp_lt_u32 vcc, 19, v212"); a("v_cndmask_b32 v214, v214, v215, vcc")
                a("v_lshl_add_u32 v215, v212, 2, v%d" % V_G); a("v_add_u32 v215, 64, v215")
                a("v_lshrrev_b32 v212, 2, v212"); a("v_cmp_eq_u32 vcc, 4, v212"); a("v_cndmask_b32 v214, v214, v215, vcc")
                a("v_mul_lo_u32 v213, v213, s64"); a("v_lshl_add_u32 v%d, v214, 4, v213" % (208+t))
        a("s_add_u32 s65, s65, s62"); a("s_add_u32 s66, s66, s62")
        for x in dma(56): a(x)
        a("s_add_u32 s56, s56, 32768")
        a("s_waitcnt vmcnt(8)"); a("s_barrier")
        a.stamp("p1_first")
        for x in reads(0): a(x)
        a.label(L)
        a("s_cmp_ge_u32 s58, 7"); a("s_cbranch_scc1 %s_n" % L)
        for dm in (1, 0):
            d = dma(56) if (dm and "p1nodma" not in ABL) else []
            m = mm(0, swap)
            a("s_waitcnt lgkmcnt(0)")
            interleave(a, m[:14], reads(1))
            interleave(a, m[14:], d[:4])
            a("s_add_u32 s58, s58, 1")
            a("s_add_u32 s59, s59, 32768"); a("s_cmp_eq_u32 s59, 163840"); a("s_cselect_b32 s59, 0, s59")
            a("s_waitcnt vmcnt(%d) lgkmcnt(0)" % (4 if dm else 0))
            a("s_barrier")
            m = mm(1, swap); ad = addr("s59")
            interleave(a, m[:3], ad[4:6] + ad[0:4])
            interleave(a, m[3:15], reads(0) + ad[6:8])
            interleave(a, m[15:], d[4:])
            if dm:
                a("s_add_u32 s56, s56, 32768"); a("s_cmp_ge_u32 s56, 163840"); a("s_cselect_b32 s46, 163840, 0"); a("s_sub_u32 s56, s56, s46")
                a("s_branch %s" % L)
                a.label(L + "_n")
            else:
                a("s_cmp_lt_u32 s58, 9"); a("s_cbranch_scc1 %s_n" % L)
        a.stamp("p1_loop")
        a("s_waitcnt lgkmcnt(0)")
        a("v_and_b32 v40, 1, v%d" % V_R); a("v_cmp_eq_u32 s[74:75], 1, v40")
        a("v_and_b32 v40, 2, v%d" % V_R); a("v_cmp_eq_u32 s[76:77], 2, v40")
        a("v_lshrrev_b32 v40, 2, v%d" % V_R); a("v_cmp_eq_u32 s[78:79], v40, v%d" % V_G)
        a("s_mov_b32 s46, %d" % f32(1.0/576)); a("s_mov_b32 s47, %d" % f32(1e-5))
        for T in range(2):
            s_, q_ = ST+8*T, ST+8*T+4
            a("v_cndmask_b32 v%d, v%d, v%d, s[74:75]" % (q_, q_, q_+1)); a("v_cndmask_b32 v%d, v%d, v%d, s[74:75]" % (q_+2, q_+2, q_+3))
            a("v_mul_f32 v%d, s46, v%d" % (s_, s_))
            a("v_cndmask_b32 v%d, v%d, v%d, s[76:77]" % (q_, q_, q_+2))
            a("v_mul_f32 v42, v%d, v%d" % (s_, s_))
            a("v_fma_f32 v%d, v%d, s46, -v42" % (q_, q_)); a("v_max_f32 v%d, 0, v%d" % (q_, q_)); a("v_add_f32 v%d, s47, v%d" % (q_, q_))
            a("v_rsq_f32 v%d, v%d" % (36+2*T, q_)); a("v_mul_f32 v%d, v%d, -v%d" % (37+2*T, 36+2*T, s_))
        a("s_lshl_b32 s46, s52, 9"); a("s_lshl_b32 s47, s53, 8"); a("s_add_u32 s46, s46, s47")
        a("v_lshl_add_u32 v40, v%d, 3, s46" % V_R)
        a("s_mov_b64 exec, s[78:79]")
        a("ds_write_b64 v40, v[36:37]"); a("ds_write_b64 v40, v[38:39] offset:128")
        a("s_mov_b64 exec, -1")
        a("s_lshl_b32 s47, s57, 6")
        if not swap:
            a("v_lshl_add_u32 v41, v%d, 4, s47" % V_G)
            a("ds_write_b128 v41, v[%d:%d] offset:1024" % (CS, CS+3)); a("ds_write_b128 v41, v[%d:%d] offset:1088" % (CS+4, CS+7))
        else:
            a("v_lshl_add_u32 v41, v%d, 2, s47" % V_R)
            a("ds_write_b32 v41, v%d offset:1024" % CS); a("ds_write_b32 v41, v%d offset:1088" % (CS+4))
        a("s_waitcnt lgkmcnt(0)"); a("s_barrier")
        Ls = L + "_s"
        a("s_cmp_ge_u32 s60, 27"); a("s_cbranch_scc1 %s" % Ls)
        a("v_xor_b32 v42, 256, v40"); a("v_xor_b32 v43, 128, v41")
        if not swap:
            RS, CC = 144, 160
            a("ds_read_b64 v[%d:%d], v40" % (RS, RS+1)); a("ds_read_b64 v[%d:%d], v40 offset:128" % (RS+2, RS+3))
            a("ds_read_b64 v[%d:%d], v42" % (RS+4, RS+5)); a("ds_read_b64 v[%d:%d], v42 offset:128" % (RS+6, RS+7))
            for t in range(4):
                a("ds_read_b128 v[%d:%d], v%d offset:%d" % (CC+4*t, CC+4*t+3, 41 if t < 2 else 43, 1024+64*(t&1)))
            a("s_waitcnt lgkmcnt(0)")
            for T in range(4): a("v_pk_mul_f32 v[%d:%d], v[%d:%d], s[72:73] op_sel:[0,1] op_sel_hi:[1,1]" % (RS+2*T, RS+2*T+1, RS+2*T, RS+2*T+1))
            for t in range(4):
                for T in range(4):
                    d = ACC+16*t+4*T
                    for h in range(2):
                        a("v_pk_mul_f32 v[216:217], v[%d:%d], v[%d:%d] op_sel:[0,1] op_sel_hi:[1,1]" % (CC+4*t+2*h, CC+4*t+2*h+1, RS+2*T, RS+2*T+1))
                        a("v_pk_fma_f32 v[%d:%d], v[%d:%d], v[%d:%d], v[216:217] op_sel_hi:[1,0,1]" % (d+2*h, d+2*h+1, d+2*h, d+2*h+1, RS+2*T, RS+2*T+1))
                    e = ACC+16*t+8*(T>>1)+2*(T&1)
                    a("v_cvt_pk_bf16_f32 v%d, v%d, v%d" % (e, d, d+1)); a("v_cvt_pk_bf16_f32 v%d, v%d, v%d" % (e+1, d+2, d+3))
                    if T & 1:
                        a("buffer_store_dwordx4 v[%d:%d], v%d, s[%d:%d], s%d offen sc1" % (e-2, e+1, 208+t, R_WS, R_WS+3, 65+(T>>1)))
        else:
            RS, CC = 144, 176
            a("v_lshl_add_u32 v40, v%d, 5, s46" % V_G); a("v_xor_b32 v42, 256, v40")
            for T in range(4):
                for h in range(2):
                    a("ds_read_b128 v[%d:%d], v%d offset:%d" % (RS+8*T+4*h, RS+8*T+4*h+3, 40 if T < 2 else 42, 128*(T&1)+16*h))
            for t in range(4):
                a("ds_read_b32 v%d, v%d offset:%d" % (CC+t, 41 if t < 2 else 43, 1024+64*(t&1)))
            a("s_waitcnt lgkmcnt(0)")
            for t in range(4):
                for T in range(4):
                    d = ACC+16*t+4*T
                    for i in range(4):
                        a("v_mul_f32 v%d, v%d, v%d" % (216+i, RS+8*T+2*i+1, CC+t))
                    for i in range(4):
                        a("v_fma_f32 v%d, v%d, v%d, v%d" % (d+i, d+i, RS+8*T+2*i, 216+i))
                    e = ACC+16*t+8*(T>>1)+2*(T&1)
                    a("v_cvt_pk_bf16_f32 v%d, v%d, v%d" % (e, d, d+1)); a("v_cvt_pk_bf16_f32 v%d, v%d, v%d" % (e+1, d+2, d+3))
                    if T & 1:
                        a("buffer_store_dwordx4 v[%d:%d], v%d, s[%d:%d], s%d offen sc1" % (e-2, e+1, 208+t, R_WS, R_WS+3, 65+(T>>1)))
        a.label(Ls)
        if not swap: a("s_branch L_p1_pub")
    a.label("L_p1_pub")
    if "d_p1" in ABL: a("s_sleep 64")
    a.stamp("p1_stores")
    L = a.newlabel("Lp1f")
    a("s_cmp_lg_u32 s%d, 0" % S_WAVE); a("s_cbranch_scc1 %s_a" % L)
    a.get_nonce(36)
    a.label(L + "_a")
    a("s_waitcnt vmcnt(0)"); a("s_barrier")
    a("s_cmp_lg_u32 s%d, 0" % S_WAVE); a("s_cbranch_scc1 L_p1_done")
    a("s_lshl_b32 s46, s50, 4"); a("s_add_u32 s46, s46, s51"); a("s_add_u32 s46, s46, %d" % F1)
    a.set_flag(46, 36)
    a("s_branch L_p1_done")
    a.label("L_p1_helper")
    if "d_h1" in ABL: a("s_sleep 64")
    swizzle_setup(a)
    a("s_lshl_b32 s48, s%d, 2" % S_XCD); a("s_add_u32 s48, s48, s%d" % S_SLOT); a("s_sub_u32 s48, s48, 28")
    a("s_waitcnt lgkmcnt(0)")
    if WSOFF: a("s_add_u32 s24, s24, %d" % WSOFF); a("s_addc_u32 s25, s25, 0")
    a.srd(R_WS, S_WS, WS_END)
    publish_nonce(a)
    a("s_add_u32 s49, s48, 32"); a("s_cmp_lt_u32 s49, 54"); a("s_cselect_b32 s49, s49, s48")
    B = 36864
    mark_setup(a)
    if MK0: mark_fill(a, MK0)
    sw_issue(a, 48, 0, 0); sw_issue(a, 49, 1, B)
    if MK1: mark_fill(a, MK1)
    a("s_waitcnt vmcnt(0)"); a("s_barrier")
    sw_process(a, 0, 0); sw_process(a, 1, B)
    L = a.newlabel("Lhn"); a("s_cmp_lg_u32 s%d, 0" % S_WAVE); a("s_cbranch_scc1 %s" % L); a.get_nonce(36); a.label(L)
    a("s_waitcnt vmcnt(0)"); a("s_barrier")
    sw_flags(a, (0, 1))
    a.stamp("h_small")
    if MK0 + MK1 < MKG: mark_fill(a, MKG - MK0 - MK1)
    a("s_waitcnt vmcnt(0)"); a("s_barrier")
    sw_flags(a, (), mark=True)
    a.label("L_p1_done")
    a.stamp("p1_done")

def generate(stop=99, stamps=False):
    a = G(stop, stamps)
    prologue(a)
    phase1(a)
    from phases import phase2, phase345, phase6
    if stop >= 2: phase2(a)
    if stop >= 3: phase345(a)
    if stop >= 6: phase6(a)
    a.label("L_fin")
    a.stamp_out()
    a.label("L_end")
    a("s_endpgm")
    for x in a.stubs: a(x)
    a.label("L_last")
    body, nops = fix_hazards(a.lines)
    return body, nops

HEADER = """; Fused transformer block (LN, QKV, sliding-window attention, Wo, shift-MLP, channel MLP) as one persistent kernel.
; 256 workgroups of 4 waves, one per CU; phases hand data over through d_ws with write-through stores and flags.
; @launch grid=(256,1,1) block=(256,1,1) lds=163840
.amdgcn_target "amdgcn-amd-amdhsa--gfx950"
.text
.globl %s
.p2align 8
.type %s,@function
%s:
""" % (KN, KN, KN)
FOOTER = """.section .rodata,"a"
.p2align 6
.amdhsa_kernel %s
  .amdhsa_next_free_vgpr 512
  .amdhsa_next_free_sgpr 102
  .amdhsa_accum_offset 256
  .amdhsa_group_segment_fixed_size 0
  .amdhsa_kernarg_size 88
  .amdhsa_user_sgpr_count 2
  .amdhsa_user_sgpr_kernarg_segment_ptr 1
  .amdhsa_system_sgpr_workgroup_id_x 1
.end_amdhsa_kernel
""" % KN

def main():
    import argparse
    p = argparse.ArgumentParser()
    p.add_argument("--stop", type=int, default=99); p.add_argument("--stamps", default=""); p.add_argument("--wsoff", type=int, default=0); p.add_argument("--rt", action="store_true")
    p.add_argument("-o", default="k.s")
    o = p.parse_args()
    global WSOFF, CLK
    if o.rt: CLK = 's_memrealtime'
    WSOFF = o.wsoff << 20
    st = STAMPSETS.get(o.stamps, o.stamps.split(',')) if o.stamps else None
    if st:
        st = ['start'] + list(st) + ['end']; assert len(st) <= 16
        open(o.o[:-2] + '.stamps', 'w').write(','.join(st))
    body, nops = generate(o.stop, st)
    text = HEADER + "\n".join(("" if l.endswith(":") else "  ") + l for l in body) + "\n" + FOOTER
    open(o.o, "w").write(text)
    build(o.o, o.o[:-2] + ".co", KN)
    n = sum(1 for l in body if l and not l.endswith(":"))
    print("instructions", n, "nop states added", nops)
    seen = set()
    for nm, takes in TRACES.items():
        errs = check_waits(body, takes)
        for e in errs[:4]:
            if e not in seen: print("WAIT[%s]" % nm, e); seen.add(e)

STAMPSETS = {
 "all": "p1_first p1_loop p1_done p2_ready p2_loaded p2_done p3_ready p4_ready p5_ready p5_done p6_ready p6_x p6_a p6_b".split(),
 "p1": "p1_issue p1_first p1_loop p1_stores p1_done p2_ready p2_loaded p2_done p3_ready p4_ready p5_ready p5_done p6_ready p6_x".split(),
 "p3k": "p2_done p3_ready p3_k0 p3_k9 p3_gemm p4_ready p4_k0 p4_k9 p4_gemm p5_ready p5_k0 p5_k9 p5_gemm".split(),
 "hop": "p1_stores p1_done p2_ready p2_loaded p2_done p3_ready p3_epi p4_ready p4_epi p5_ready p5_epi p6_ready p6_x p6_b".split(),
 "p6": "p5_epi p6_ready p6_x p6_p0 p6_a p6_s0 p6_s6 p6_s7 p6_b p7_ready".split(),
 "h": "h_small p1_stores p1_done p2_setup p2_ready p2_loaded p2_done".split(),
 "p4k": "p3_k0 p3_k9 p3_gemm p3_epi p4_ready p4_k0 p4_k9 p4_gemm p4_epi p5_ready p5_k0 p5_k9 p5_gemm p5_epi".split(),
 "p6x": "p2_done h_w3 h_w4 p5_gemm p5_epi p5_done p6_ready p6_st p6_x9 p6_x17 p6_x p6_p0".split(),
 "crit": "p1_done p2_loaded p2_done h_w3 h_w4 p5_epi p6_ready p6_st p6_x p6_a p6_s6 p6_s7 p6_b".split(),
 "p3": "p2_done p3_dma p3_drain p3_ready p3_gemm p3_epi p4_dma p4_drain p4_ready p4_gemm p4_epi p5_drain p5_ready p5_gemm".split(),
}
TRACES = {"w012": {"L_p7_main": True, "L_p1_qk_n": [False,True,False]}, "h3": {"L_p3_helper": True, "L_p1_qk_n": [False,True,False]}, "edge": {"L_p2_edge": True, "L_p1_qk_n": [False,True,False]}, "qk": {"L_p1_qk_n": [False,False,True,True,False]}, "v": {"L_p1_v0": True, "L_p1_v_n": [False,False,True,True,False]}, "helper": {"L_p1_helper": True}}

if __name__ == "__main__":
    sys.modules["gen"] = sys.modules["__main__"]
    main()
```

```python
from gen import *

NEG = 0xF149F2CA
SLEEP0 = dict(p2=0, p3=8, p4=0, p5=0, p6=18)
for _kv in os.environ.get('SLEEP', '').split(','):
    if _kv: SLEEP0[_kv.split('=')[0]] = int(_kv.split('=')[1])

W_LDS = 53248
AW1, AW2 = 40, 148
XT = 232
PA, PS, R_C = 244, (3, 27, 45), R_B

def pf_lds(i):
    gq, k = divmod(i, 9)
    pre = ("s_mul_i32 s58, s79, %d\ns_add_u32 s58, s58, s73\ns_add_u32 m0, s58, %d\n" % (gq, 1024*k)) if k == 0 or i == 2 else ""
    post = "\ns_add_u32 m0, m0, 1024" if k < 8 and i != 1 else ""
    return pre + "buffer_load_dwordx4 v%d, s[%d:%d], s%d offen sc1 lds" % (PA+k, R_C, R_C+3, PS[gq]) + post

def roles345(a):
    a("s_lshr_b32 s46, s%d, 3" % S_SLOT); a("s_lshl_b32 s74, s%d, 2" % S_XCD); a("s_add_u32 s74, s74, s46"); a("s_add_u32 s75, s%d, 6" % S_SLOT); a("s_and_b32 s75, s75, 7")
    a("s_lshl_b32 s76, s74, 2"); a("s_add_u32 s76, s76, s%d" % S_WAVE)

def phase2(a):
    KL_, VL_ = 0, 27648
    a("s_lshr_b32 s50, s%d, 1" % S_SLOT); a("s_and_b32 s51, s%d, 1" % S_SLOT); a("s_lshl_b32 s46, s%d, 1" % S_XCD); a("s_add_u32 s51, s51, s46")
    a("s_mul_i32 s52, s51, %d" % HPSZ)
    a("s_add_u32 s46, s52, %d" % K_OFF); a.srd_s(R_A, S_WS, HPSZ, 46)
    a("s_add_u32 s46, s52, %d" % V_OFF); a.srd_s(R_B, S_WS, HPSZ, 46)
    a("s_mul_i32 s46, s50, 9216"); a("s_sub_u32 s46, s46, 18432"); a("s_lshl_b32 s47, s%d, 10" % S_WAVE); a("s_add_u32 s46, s46, s47")
    a("v_add_u32 v10, s46, v%d" % V_L16)
    for i in range(1, 7): a("v_add_u32 v%d, %d, v10" % (10+i, 4096*i))
    a("s_lshl_b32 s46, s50, 3"); a("s_lshl_b32 s53, s%d, 1" % S_WAVE); a("s_add_u32 s53, s53, s46")
    a("s_mul_i32 s54, s53, 1152"); a("s_add_u32 s54, s54, s52"); a("s_add_u32 s54, s54, %d" % Q_OFF)
    a("v_lshlrev_b32 v18, 4, v%d" % V_R)
    a("s_mul_i32 s46, s%d, 2304" % S_WAVE)
    a("v_add_u32 v20, s46, v%d" % V_L16)
    a("s_add_u32 s47, s46, 2048"); a("v_add_u32 v21, s47, v18")
    a("s_add_u32 s47, s46, %d" % VL_); a("v_add_u32 v22, s47, v%d" % V_L16)
    a("v_lshl_add_u32 v23, v%d, 2, v%d" % (V_R, V_G)); a("s_add_u32 s47, s47, 2048"); a("v_lshl_add_u32 v23, v23, 4, s47")
    for i in range(4):
        a("v_lshl_add_u32 v24, v%d, 2, %d" % (V_G, i)); a("v_cmp_gt_u32 s[%d:%d], v24, v%d" % (60+2*i, 61+2*i, V_R))
    a("v_cmp_eq_u32 s[68:69], 0, v%d" % V_G)
    a("v_mov_b32 v25, 0x%x" % NEG)
    for r in range(4): a("v_mov_b32 v%d, -1" % (228+r))
    a("v_and_b32 v225, 31, v%d" % V_LANE); a("v_lshlrev_b32 v225, 2, v225")
    VLA = 0
    for r in range(36): a("v_accvgpr_write_b32 a%d, s%d" % (VLA+r, S_ONES))
    roles345(a)
    a("s_mul_i32 s46, s75, 110592"); a("s_mul_i32 s47, s%d, 27648" % S_WAVE); a("s_add_u32 s70, s46, s47"); a("s_add_u32 s70, s70, %d" % WO_S)
    a("s_add_u32 s71, s70, %d" % SW); a("s_add_u32 s72, s71, %d" % SW)
    a("s_cmp_ge_u32 s75, 6"); a("s_cbranch_scc1 L_p2_hs")
    a("s_add_u32 s73, s47, %d" % W_LDS); a("s_mov_b32 s79, 9216")
    for gq in range(3): a("s_add_u32 s%d, s70, %d" % (PS[gq], 9216*gq))
    for i in range(9): a("v_add_u32 v%d, %d, v%d" % (PA+i, 1024*i, V_L16))
    a("s_mov_b32 s10, s%d" % S_WS); a("s_mov_b32 s11, s%d" % (S_WS+1)); a("s_mov_b32 s26, %d" % WS_END)
    a("s_branch L_p2_hd")
    a.label("L_p2_hs")
    a("s_mov_b32 s71, 0x70000000")
    a("s_mul_i32 s47, s%d, 9216" % S_WAVE); a("s_add_u32 s73, s47, %d" % W_LDS); a("s_mov_b32 s79, 36864")
    a("s_lshl_b32 s48, s74, 1"); a("s_add_u32 s48, s48, s75"); a("s_sub_u32 s48, s48, 6"); a("s_mul_i32 s48, s48, 3")
    a("s_mov_b32 s10, s%d" % S_W3); a("s_mov_b32 s11, s%d" % (S_W3+1)); a("s_mov_b32 s78, 9216")
    a("s_cmp_lt_u32 s48, 144"); a("s_cselect_b32 s26, %d, 0" % BW)
    for gq in range(3):
        a("s_add_u32 s46, s48, %d" % gq)
        a.sdiv(47, 56, 46, 18)
        a("s_lshl_b32 s56, s56, 2"); a("s_add_u32 s56, s56, s%d" % S_WAVE); a("s_mul_i32 s56, s56, %d" % (8*9216))
        a("s_mul_i32 s47, s47, 1152"); a("s_add_u32 s%d, s56, s47" % (PS[gq]))
    for i in range(9):
        a("v_add_u32 v24, %d, v%d" % (64*i, V_LANE)); a("v_mul_u32_u24 v26, 911, v24"); a("v_lshrrev_b32 v26, 16, v26")
        a("v_mul_u32_u24 v27, 72, v26"); a("v_sub_u32 v27, v24, v27"); a("v_mul_lo_u32 v26, v26, s78"); a("v_lshl_add_u32 v%d, v27, 4, v26" % (PA+i))
    a.label("L_p2_hd")
    a("v_mul_u32_u24 v7, 1152, v%d" % V_R); a("v_lshl_add_u32 v7, v%d, 4, v7" % V_G)
    a("s_mul_i32 s46, s76, 18432"); a("s_mul_i32 s47, s75, 192"); a("s_add_u32 s77, s46, s47")
    a("s_cmp_ge_u32 s75, 6"); a("s_cselect_b32 s77, 0x70000000, s77")
    L = a.newlabel("Lp2w")
    a("s_cmp_lg_u32 s%d, 0" % S_WAVE); a("s_cbranch_scc1 %s" % L)
    a("v_lshrrev_b32 v30, 2, v%d" % V_LANE); a("v_min_u32 v30, 2, v30"); a("v_add_u32 v30, s50, v30"); a("v_subrev_u32 v30, 2, v30"); a("v_max_i32 v30, 0, v30")
    a("v_bfe_u32 v31, v%d, 1, 1" % V_LANE); a("v_add_u32 v31, 1, v31"); a("v_cmp_gt_u32 vcc, 12, v%d" % V_LANE); a("v_cndmask_b32 v31, 0, v31, vcc")
    a("v_mul_u32_u24 v31, 576, v31"); a("v_and_b32 v32, 1, v%d" % V_LANE); a("v_mul_u32_u24 v32, 35, v32")
    a("s_mul_i32 s46, s51, 36"); a("v_add3_u32 v31, v31, v32, s46"); a("v_lshrrev_b32 v31, 7, v31")
    a("v_lshl_add_u32 v30, v30, 4, v31"); a("v_add_u32 v30, %d, v30" % F1)
    a.stamp("p2_setup")
    a.poll(30, 31, sleep0=SLEEP0["p2"])
    a.label(L)
    a("s_barrier")
    a("v_min_u32 v38, 53, v%d" % V_LANE); a("v_add_u32 v38, %d, v38" % FS); a("v_lshlrev_b32 v38, 7, v38")
    fsq = "buffer_load_dword v39, v38, s[%d:%d], 0 offen offset:%d sc1" % (R_WS, R_WS+3, FLAG0)
    a.stamp("p2_ready")
    QR = 26
    a("s_lshl_b32 s46, s%d, 10" % S_WAVE)
    for R, base in ((R_A, KL_), (R_B, VL_)):
        for i in range(7):
            Ls = a.newlabel("Lp2d")
            if i == 6: a("s_cmp_eq_u32 s%d, 3" % S_WAVE); a("s_cbranch_scc1 %s" % Ls)
            a("s_add_u32 m0, s46, %d" % (base + 4096*i))
            a("buffer_load_dwordx4 v%d, s[%d:%d], 0 offen sc1 lds" % (10+i, R, R+3))
            if i == 6: a.label(Ls)
        if R == R_A:
            a("buffer_load_dwordx4 v[%d:%d], v%d, s[%d:%d], s54 offen sc1" % (QR, QR+3, V_L16, R_WS, R_WS+3))
            a("buffer_load_dwordx4 v[%d:%d], v18, s[%d:%d], s54 offen offset:2048 sc1" % (QR+4, QR+7, R_WS, R_WS+3))
            a("buffer_load_dwordx4 v[%d:%d], v%d, s[%d:%d], s54 offen offset:1024 sc1" % (QR+8, QR+11, V_L16, R_WS, R_WS+3))
            a(fsq)
    a.srd(R_A, S_X, ACT)
    a("s_mov_b32 s%d, s10" % R_C); a("s_mov_b32 s%d, s11" % (R_C+1)); a("s_mov_b32 s%d, s26" % (R_C+2)); a("s_mov_b32 s%d, 0x20000" % (R_C+3))
    QF = 40
    a("s_waitcnt vmcnt(6)")
    for hd in range(2):
        for qt in range(2):
            q = QF + 12*hd + 6*qt
            for h in range(2): a("v_mov_b32 v%d, v%d" % (q+2+h, QR+8*hd+2*qt+h))
            a("v_cndmask_b32 v%d, 0, v%d, s[68:69]" % (q+hd, QR+4+2*qt+hd)); a("v_mov_b32 v%d, 0" % (q+1-hd))
            for h in range(2): a("v_mov_b32 v%d, v%d" % (q+4+h, q+h))
    MF, ML = 8, 12
    for i in range(4):
        a("v_cndmask_b32 v%d, v25, 0, s[%d:%d]" % (MF+i, 60+2*i, 61+2*i)); a("v_cndmask_b32 v%d, 0, v25, s[%d:%d]" % (ML+i, 60+2*i, 61+2*i))
    a("s_lshl_b32 s55, s50, 3"); a("s_lshl_b32 s46, s%d, 1" % S_WAVE); a("s_add_u32 s55, s55, s46"); a("s_sub_u32 s55, 16, s55")
    a("s_lshl_b32 s56, s2, 2"); a("s_add_u32 s56, s56, s%d" % S_WAVE); a("s_mul_i32 s56, s56, 5120"); a("s_min_u32 s56, s56, %d" % (WO_S - T_OFF - 5120)); a("s_add_u32 s56, s56, %d" % T_OFF)
    L = a.newlabel("Lfs")
    a("s_cmp_lg_u32 s%d, 0" % S_WAVE); a("s_cbranch_scc1 %s" % L)
    a("v_cmp_ne_u32 vcc, s%d, v39" % S_NONCE); a("s_cbranch_vccz %s" % L)
    a("v_lshrrev_b32 v38, 7, v38")
    a.poll(38, 39, sleep0=0)
    a.label(L)
    a("s_waitcnt vmcnt(6)"); a("s_barrier")
    a.stamp("p2_loaded")
    a("s_cmp_lt_u32 s50, 2"); a("s_cbranch_scc1 L_p2_edge")
    M, NM, CZ = 16, 216, 26
    KF = 64
    S2, P, VM = 136, 168, 184
    S1 = S2
    OM, OL, R_, OUT = 192, 200, 32, 208
    marks = "s_mov_b32 s46, %d\nbuffer_load_dword v224, v225, s[%d:%d], s46 offen sc1" % (FP_OFF, R_WS, R_WS+3)
    def prefetch():
        o = [pf_lds(i) for i in range(2, 27)]
        for jj in range(3): o.append("buffer_load_dwordx4 v[%d:%d], v7, s[%d:%d], s77 offen offset:%d" % (XT+4*jj, XT+4*jj+3, R_A, R_A+3, 64*jj))
        for sb, ab in ((71, AW1),):
            for i in range(27):
                pre = "s_add_u32 s59, s%d, %d\n" % (sb, 1024*i) if i % 4 == 0 else ""
                o.append(pre + "buffer_load_dwordx4 a[%d:%d], v%d, s[%d:%d], s59 offen offset:%d sc1" % (ab+4*i, ab+4*i+3, V_L16, R_WS, R_WS+3, 1024*(i & 3)))
        return o
    for edge in (0, 1):
      if edge: a.label("L_p2_edge")
      pf = prefetch()
      if "x_nopf" in ABL: pf = ["s_nop 0"]*55
      if "x_nomk" in ABL: pf = ["s_nop 0" if "store" in x else x for x in pf]
      if "x_now1" in ABL: pf = ["s_nop 0" if " a[" in x else x for x in pf]
      def take(n):
          o = pf[:n]; del pf[:n]; return o
      for head in range(2):
        def Q(qt, t): return QF + 12*head + 6*qt + 2*(t & 1)
        def K(t): return KF + 4*t
        def kread(m):
            o = ["ds_read_b128 v[%d:%d], v20 offset:%d" % (KF+8*m+2, KF+8*m+5, 2304*m + 1024*head)]
            if head == 0: o += ["ds_read_b64 v[%d:%d], v21 offset:%d" % (KF+8*m+6*b, KF+8*m+6*b+1, 2304*m + 8*b) for b in range(2)]
            return o
        def vleft(m): return "ds_read_b128 a[%d:%d], v23 offset:%d" % (VLA+4*m, VLA+4*m+3, 2304*m + 128*head)
        def vmain(m): return "ds_read_b128 v[%d:%d], v22 offset:%d" % (VM+4*(m & 1), VM+4*(m & 1)+3, 2304*m + 1024*head)
        def has(qt, t): return (t <= 16) if qt == 0 else (t >= 1)
        def mask(reg, qt, t):
            o = []
            for i in range(4):
                if t == qt: o.append("v_cndmask_b32 v%d, v25, v%d, s[%d:%d]" % (reg+i, reg+i, 60+2*i, 61+2*i))
                if t == 16+qt: o.append("v_cndmask_b32 v%d, v%d, v25, s[%d:%d]" % (reg+i, reg+i, 60+2*i, 61+2*i))
            return o
        def switch(t, moves):
            Ls = a.newlabel("Lsw")
            a("s_cmp_eq_u32 s55, %d" % t); a("s_cbranch_scc0 %s" % Ls)
            for x in moves: a(x)
            a.label(Ls)
        if head:
            L = a.newlabel("Lmk")
            a("s_cmp_lg_u32 s%d, 0" % S_WAVE); a("s_cbranch_scc1 %s_x" % L)
            a("s_mov_b32 s47, 100000"); a("s_waitcnt vmcnt(%d)" % (npf0 - len(pf)))
            a.label(L)
            a("v_cmp_ne_u32 vcc, s%d, v224" % S_NONCE)
            a("s_cbranch_vccz %s_x" % L)
            a("s_sleep 2"); a(marks); a("s_waitcnt vmcnt(0)")
            a("s_sub_u32 s47, s47, 1"); a("s_cbranch_scc0 %s" % L)
            a.label(L + "_x")
            a("s_waitcnt vmcnt(20)"); a("s_barrier")
            publish2(a, 224)
        AH = 3
        for m in range(AH):
            for x in kread(m): a(x)
        a("v_mov_b32 v%d, v25" % M); a("v_mov_b32 v%d, v25" % (M+1))
        if edge:
            for i in range(4): a("v_mov_b32 v%d, v25" % (CZ+i))
        def c1(qt, t): return CZ if edge else MF if t == qt else ML if t == 16+qt else None
        def maxes(t):
            o = []
            for qt in range(2):
                if not has(qt, t): continue
                s = S1 + 8*(t % 3) + 4*qt
                if edge: o += mask(s, qt, t)
                o.append("v_max3_f32 v%d, v%d, v%d, v%d" % (M+qt, s, s+1, M+qt))
            for qt in range(2):
                if not has(qt, t): continue
                s = S1 + 8*(t % 3) + 4*qt
                o.append("v_max3_f32 v%d, v%d, v%d, v%d" % (M+qt, s+2, s+3, M+qt))
            return o
        for t in range(18):
            if t % 2 == 0:
                if edge: switch(t, ["v_mov_b32 v%d, 0" % (CZ+i) for i in range(4)])
                a("s_waitcnt lgkmcnt(%d)" % (len(kread(0))*min(AH-1, 8 - t//2)))
            ms = [mfma(S1+8*(t % 3)+4*qt, K(t), Q(qt, t), c1(qt, t)) for qt in range(2) if has(qt, t)]
            fill = (kread(t//2+AH) if t % 2 == 0 and t//2+AH < 9 else []) + (maxes(t-2) if t >= 2 else []) + (take(1) if t % 3 == 1 and head else [])
            interleave(a, ms, fill)
        if head == 0:
            a("s_waitcnt vmcnt(%d)" % (55 - len(pf))); a("s_barrier")
            for q in range(5):
                if q == 4: a("s_add_u32 s56, s56, 4096")
                if "x_nomk" not in ABL: a("buffer_store_dwordx4 v[228:231], v%d, s[%d:%d], s56 offen offset:%d sc1" % (V_L16, R_WS, R_WS+3, 1024*(q & 3)))
            npf0 = len(pf); a(marks)
        a("s_mov_b32 exec_lo, 0x00030003"); a("s_mov_b32 exec_hi, 0x00030003")
        for m in range(9): a(vleft(m))
        a("s_mov_b64 exec, -1")
        a(vmain(0))
        for x in maxes(16) + maxes(17): a(x)
        for sw in ("v_permlane32_swap_b32", "v_permlane16_swap_b32"):
            for qt in range(2): a("v_mov_b32 v%d, v%d" % (30+qt, M+qt))
            for qt in range(2): a("%s v%d, v%d" % (sw, M+qt, 30+qt))
            for qt in range(2): a("v_max_f32 v%d, v%d, v%d" % (M+qt, M+qt, 30+qt))
        negs = ["v_sub_f32 v%d, 0, v%d" % (NM+4*qt+i, M+qt) for qt in range(2) for i in range(4)]
        if edge:
            for i in range(8): a("v_mov_b32 v%d, v25" % (NM+i))
        else:
            for x in negs: a(x)
        def qk(m):
            return [mfma(S2+16*(m & 1)+8*qt+4*b, K(2*m+b), Q(qt, b), NM+4*qt) for qt in range(2) for b in range(2) if has(qt, 2*m+b)]
        def pv(m):
            o = []
            for qt in range(2):
                p = P+8*(m & 1)+4*qt
                o.append(mfma(OM+4*qt, VM+4*(m & 1), p, None if m == 0 else OM+4*qt))
                o.append(mfma(OL+4*qt, VLA+4*m, p, None if m == 0 else OL+4*qt, ta="a"))
            return o
        for x in qk(0): a(x)
        for m in range(9):
            if edge and m < 8: switch(2*m+2, negs)
            mf = (qk(m+1) if m < 8 else []) + (pv(m-1) if m else [])
            va = []
            ld = take(3 if (m % 3 or head == 0) else 2)
            for qt in range(2):
                p = P+8*(m & 1)+4*qt
                for b in range(2):
                    s = S2+16*(m & 1)+8*qt+4*b
                    if has(qt, 2*m+b):
                        va += mask(s, qt, 2*m+b)
                        va += ["v_exp_f32 v%d, v%d" % (s+i, s+i) for i in range(4)]
                    if ld and (b == 0 or qt == 0): va.append(ld.pop(0))
                for b in range(2):
                    s = S2+16*(m & 1)+8*qt+4*b
                    if has(qt, 2*m+b):
                        va += ["v_cvt_pk_bf16_f32 v%d, v%d, v%d" % (p+2*b+h, s+2*h, s+2*h+1) for h in range(2)]
                    else:
                        va += ["v_mov_b32 v%d, 0" % (p+2*b+h) for h in range(2)]
            if m: a("s_waitcnt lgkmcnt(1)")
            interleave(a, mf, va)
            if m < 8: a(vmain(m+1))
        a("s_waitcnt lgkmcnt(0)")
        for x in pv(8): a(x)
        if head == 1:
            assert not pf
            a("s_mul_i32 s54, s53, 18432"); a("s_add_u32 s54, s54, %d" % O_OFF)
            a("s_lshl_b32 s46, s51, 10"); a("s_add_u32 s58, s46, s54"); a("s_add_u32 s59, s58, 18432")
            a("s_lshr_b32 s46, s51, 3"); a("s_add_u32 s46, s46, 16"); a("s_lshl_b32 s46, s46, 10"); a("s_add_u32 s54, s54, s46")
            a("s_and_b32 s46, s51, 7"); a("s_lshr_b32 s46, s46, 1"); a("s_lshl_b32 s46, s46, 8"); a("s_add_u32 s54, s54, s46")
            a("s_and_b32 s46, s51, 1"); a("s_lshl_b32 s46, s46, 3"); a("s_add_u32 s54, s54, s46"); a("s_add_u32 s47, s54, 18432")
        for qt in range(2): a("v_rcp_f32 v%d, v%d" % (30+qt, OL+4*qt+3))
        for qt in range(2):
            for i in range(4): a("v_mul_f32 v%d, v%d, v%d" % (OM+4*qt+i, OM+4*qt+i, 30+qt))
            for i in range(2): a("v_mul_f32 v%d, v%d, v%d" % (OL+4*qt+i, OL+4*qt+i, 30+qt))
        for qt in range(2):
            for h in range(2): a("v_cvt_pk_bf16_f32 v%d, v%d, v%d" % (OUT+4*qt+2*head+h, OM+4*qt+2*h, OM+4*qt+2*h+1))
            a("v_cvt_pk_bf16_f32 v%d, v%d, v%d" % (R_+2*qt+head, OL+4*qt, OL+4*qt+1))
      if not edge: a("s_branch L_p2_out")
    a.label("L_p2_out")
    a("buffer_store_dwordx4 v[%d:%d], v%d, s[%d:%d], s58 offen sc1" % (OUT, OUT+3, V_L16, R_WS, R_WS+3))
    a("buffer_store_dwordx4 v[%d:%d], v%d, s[%d:%d], s59 offen sc1" % (OUT+4, OUT+7, V_L16, R_WS, R_WS+3))
    a("s_mov_b64 exec, 0xffff")
    a("buffer_store_dwordx2 v[%d:%d], v%d, s[%d:%d], s54 offen sc1" % (R_, R_+1, V_L16, R_WS, R_WS+3))
    a("buffer_store_dwordx2 v[%d:%d], v%d, s[%d:%d], s47 offen sc1" % (R_+2, R_+3, V_L16, R_WS, R_WS+3))
    a("s_mov_b64 exec, -1")
    a.stamp("p2_done")
    if a.stop == 2:
        a("s_waitcnt vmcnt(0)")

_c0 = 2.0*math.log2(math.e)*math.sqrt(2/math.pi)
GS = (_c0*0.044715)**(1/3)
GK = _c0/GS

def gelu_consts(a): a("s_mov_b32 s48, %d" % f32(GS)); a("s_mov_b32 s49, %d" % f32(GK))

def gelu_poly(regs, t):
    o = ["v_pk_fma_f32 v[%d:%d], v[%d:%d], v[%d:%d], s[48:49] op_sel:[0,0,1] op_sel_hi:[1,1,1]" % (t+2*k, t+2*k+1, r, r+1, r, r+1) for k, r in enumerate(regs)]
    return o + ["v_pk_mul_f32 v[%d:%d], v[%d:%d], v[%d:%d]" % (t+2*k, t+2*k+1, t+2*k, t+2*k+1, r, r+1) for k, r in enumerate(regs)]

def gelu_pk(a, regs, t):
    for x in gelu_poly(regs, t): a(x)
    for k in range(2*len(regs)): a("v_exp_f32 v%d, -v%d" % (t+k, t+k))
    for k, r in enumerate(regs): a("v_pk_fma_f32 v[%d:%d], v[%d:%d], s[48:49], s[48:49] op_sel_hi:[1,0,0]" % (t+2*k, t+2*k+1, t+2*k, t+2*k+1))
    for k in range(2*len(regs)): a("v_rcp_f32 v%d, v%d" % (t+k, t+k))
    for k, r in enumerate(regs): a("v_pk_mul_f32 v[%d:%d], v[%d:%d], v[%d:%d]" % (r, r+1, r, r+1, t+2*k, t+2*k+1))

def stats_loads(a, off, stile, vt):
    a("v_lshlrev_b32 v%d, 3, v%d" % (vt+4, V_LANE))
    a("v_add_u32 v%d, 512, v%d" % (vt+5, vt+4)); a("v_cmp_gt_u32 vcc, 32, v%d" % V_LANE); a("v_mov_b32 v%d, 0x7fffffff" % vt)
    a("v_cndmask_b32 v%d, v%d, v%d, vcc" % (vt+5, vt, vt+5))
    a("s_mul_i32 s46, s%d, 768" % stile); a("s_add_u32 s46, s46, %d" % off)
    return ["buffer_load_dwordx2 v[%d:%d], v%d, s[%d:%d], s46 offen sc1" % (vt+2*k, vt+2*k+1, vt+4+k, R_WS, R_WS+3) for k in range(2)]

def stats_finish(a, vt, vmean, vrstd):
    a("v_add_f32 v%d, v%d, v%d" % (vt, vt, vt+2)); a("v_add_f32 v%d, v%d, v%d" % (vt+1, vt+1, vt+3))
    for sw in ("v_permlane32_swap_b32", "v_permlane16_swap_b32"):
        for k in range(2): a("v_mov_b32 v%d, v%d" % (vt+2+k, vt+k))
        for k in range(2): a("%s v%d, v%d" % (sw, vt+k, vt+2+k))
        for k in range(2): a("v_add_f32 v%d, v%d, v%d" % (vt+k, vt+k, vt+2+k))
    a("s_mov_b32 s47, %d" % f32(1.0/576))
    a("v_mul_f32 v%d, s47, v%d" % (vmean, vt)); a("v_mul_f32 v%d, v%d, v%d" % (vt, vmean, vmean))
    a("v_fma_f32 v%d, v%d, s47, -v%d" % (vt+1, vt+1, vt)); a("v_max_f32 v%d, 0, v%d" % (vt+1, vt+1))
    a("v_add_f32 v%d, %d, v%d" % (vt, f32(1e-5), vt+1)); a("v_rsq_f32 v%d, v%d" % (vrstd, vt))

def norm_ops(x, vs, vb, t):
    o = []
    for r in range(4):
        o.append("v_lshlrev_b32 v%d, 16, v%d" % (t+2*r, x+r)); o.append("v_and_b32 v%d, 0xffff0000, v%d" % (t+2*r+1, x+r))
    for r in range(8): o.append("v_fma_f32 v%d, v%d, v%d, v%d" % (t+r, t+r, vs, vb))
    for r in range(4): o.append("v_cvt_pk_bf16_f32 v%d, v%d, v%d" % (x+r, t+2*r, t+2*r+1))
    return o

def out_stats(a, pk, n, vt, off):
    a("v_mov_b32 v%d, 0" % vt); a("v_mov_b32 v%d, 0" % (vt+1))
    for r in range(n):
        a("v_dot2c_f32_bf16 v%d, s%d, v%d" % (vt, S_ONES, pk+r)); a("v_dot2c_f32_bf16 v%d, v%d, v%d" % (vt+1, pk+r, pk+r))
    for sw in ("v_permlane32_swap_b32", "v_permlane16_swap_b32"):
        for k in range(2): a("v_mov_b32 v%d, v%d" % (vt+2+k, vt+k))
        for k in range(2): a("%s v%d, v%d" % (sw, vt+k, vt+2+k))
        for k in range(2): a("v_add_f32 v%d, v%d, v%d" % (vt+k, vt+k, vt+2+k))
    a("s_mul_i32 s46, s53, 6"); a("s_add_u32 s46, s46, s51"); a("s_lshl_b32 s46, s46, 7"); a("s_add_u32 s46, s46, %d" % off)
    a("v_lshlrev_b32 v%d, 3, v%d" % (vt+2, V_LANE))
    a("s_mov_b64 exec, 0xffff")
    a("buffer_store_dwordx2 v[%d:%d], v%d, s[%d:%d], s46 offen sc1" % (vt, vt+1, vt+2, R_WS, R_WS+3))
    a("s_mov_b64 exec, -1")

AF, ACC, WB, HK, VMEAN, VRSTD = 64, 136, 160, 40, 52, 53
OS = WB

def tag_ops(regs, t):
    o = []; regs = list(regs)
    o.append("v_max3_u32 v%d, v%d, v%d, v%d" % (t, regs[0], regs[1], regs[2])); regs = regs[3:]
    while len(regs) >= 2: o.append("v_max3_u32 v%d, v%d, v%d, v%d" % (t, t, regs[0], regs[1])); regs = regs[2:]
    if regs: o.append("v_max_u32 v%d, v%d, v%d" % (t, t, regs[0]))
    return o + ["v_cmp_eq_u32 vcc, -1, v%d" % t]

def tag_branch(a, loads, regs, t, again=(), drain=False):
    L = a.newlabel("Ltg")
    a("s_cbranch_vccnz %s" % L)
    a.label(L + "_b")
    st = [L + ":"] + "\n".join(loads).split("\n") + ["s_waitcnt vmcnt(0)"] + tag_ops(regs, t)
    st += ["s_cmp_eq_u32 s79, 0", "s_cbranch_scc1 %s_b" % L, "s_sub_u32 s79, s79, 1", "s_cbranch_vccnz %s" % L]
    st += list(again) + (["s_waitcnt vmcnt(0)"] if drain and again else []) + ["s_branch %s_b" % L]
    a.stubs += st

UP = 8
NE = 12
def wpos(layout, b):
    if layout is None: return W_LDS//1024 + b
    w, i = divmod(b, 27)
    return layout[0] + NE*w + i if i < NE else layout[1] + (27-NE)*w + i - NE

def gemm96(a, loads, stage, delay, pre=(), each=None, stamp=None, extra=(), layout=None, early=(), before=None, after=None):
    a("s_waitcnt vmcnt(20)")
    a("s_barrier")
    nv = sum("buffer_load" in x for x in stage)
    n1 = len(stage) if nv else len(stage)//3
    for x in stage[:n1]: a(x)
    if delay: a("s_sleep %d" % delay)
    a("s_mov_b32 s79, 50000")
    a.stamp(stamp + "_ready")
    for x in pre: a(x)
    interleave(a, loads[:UP], stage[n1:])
    a("s_waitcnt vmcnt(%d) lgkmcnt(0)" % (UP + len(pre)))
    if before: before(a)
    a("s_barrier")
    def wr(j):
        o = []
        for t in range(6):
            q, r = divmod(wpos(layout, 18*t + j), 64)
            o.append("ds_read_b128 v[%d:%d], v%d offset:%d" % (WB+24*(j % 3)+4*t, WB+24*(j % 3)+4*t+3, (V_L16, 5, 6)[q], 1024*r))
        return o
    for x in early: a(x)
    if each: each(lambda: [a(x) for x in wr(0) + wr(1)])
    else:
        for x in wr(0) + wr(1): a(x)
    a("s_waitcnt vmcnt(%d)" % (UP-1))
    fr = lambda j: range(AF+4*j, AF+4*j+4)
    for x in tag_ops(fr(0), 30): a(x)
    tag_branch(a, [loads[0]], fr(0), 30, loads[1:UP])
    if after: after(a)
    for j in range(18):
        ex = lambda q: min(len(extra), max(0, (q-9)*len(extra)//8))
        issued = min(18, UP+j) + ex(j)
        a("s_waitcnt vmcnt(%d) lgkmcnt(%d)" % (issued - 1 - min(j+1, 17), 6 if j < 17 else 0))
        if j in (0, 9): a.stamp(stamp + "_k%d" % j)
        ms = [mfma(ACC+4*t, WB+24*(j % 3)+4*t, AF+4*j, None if j == 0 else ACC+4*t) for t in range(6)]
        fill = ([loads[UP+j]] if UP+j < 18 else []) + (tag_ops(fr(j+1), 30) if j < 17 else []) + (wr(j+2) if j < 16 else []) + list(extra[ex(j):ex(j+1)])
        interleave(a, ms, fill)
        if j < 17: tag_branch(a, [loads[j+1]], fr(j+1), 30, loads[j+2:UP+j+1], drain=ex(j+1) > 0)

FP2Q = "s_mov_b32 s46, %d\nbuffer_load_dwordx4 v[16:19], v%d, s[%d:%d], s46 offen sc1" % (FP2_OFF, V_L16, R_WS, R_WS+3)

def marks2(a):
    L = a.newlabel("Lm2")
    a("s_cmp_lg_u32 s%d, 0" % S_WAVE); a("s_cbranch_scc1 %s_x" % L)
    a("s_mov_b32 s47, 100000")
    a.label(L)
    for r in range(4): a("v_xor_b32 v%d, s%d, v%d" % (16+r, S_NONCE, 16+r))
    a("v_or3_b32 v16, v16, v17, v18"); a("v_or_b32 v16, v16, v19"); a("v_cmp_ne_u32 vcc, 0, v16"); a("s_cbranch_vccz %s_x" % L)
    a(FP2Q); a("s_waitcnt vmcnt(0)")
    a("s_sub_u32 s47, s47, 1"); a("s_cbranch_scc0 %s" % L)
    a.label(L + "_x")

def publish2(a, vt):
    L = a.newlabel("Lmp"); a("s_cmp_lg_u32 s%d, 0" % S_WAVE); a("s_cbranch_scc1 %s" % L); a.set_mark(vt, FP2_OFF); a.label(L)

def wflags(a, first, va, vd):
    a("s_mul_i32 s46, s65, 18"); a("s_add_u32 s46, s46, %d" % (FS + first))
    a("v_min_u32 v%d, 17, v%d" % (va, V_LANE)); a("v_add_u32 v%d, s46, v%d" % (va, va)); a("v_lshlrev_b32 v%d, 7, v%d" % (va, va))
    a("buffer_load_dword v%d, v%d, s[%d:%d], 0 offen offset:%d sc1" % (vd, va, R_WS, R_WS+3, FLAG0))

def phase345(a):
    a("s_mov_b32 s50, s74"); a("s_mov_b32 s51, s75"); a("s_mov_b32 s53, s76")
    a("s_cmp_ge_u32 s51, 6"); a("s_cbranch_scc1 L_p3_helper")
    a("v_add_u32 v5, 65536, v%d" % V_L16); a("v_add_u32 v6, 131072, v%d" % V_L16)
    a("s_mul_i32 s46, s%d, %d" % (S_WAVE, 1024*NE)); a("v_add_u32 v7, s46, v%d" % V_L16)
    a("s_mul_i32 s46, s%d, %d" % (S_WAVE, 1024*(27-NE))); a("v_add_u32 v8, s46, v%d" % V_L16)
    a("v_add_u32 v62, %d, v7" % (112*1024)); a("v_add_u32 v63, %d, v8" % (52*1024))
    LAY4, LAY5 = (0, 52), (112, 0)
    a("s_mul_i32 s54, s53, 18432")
    a("s_mul_i32 s55, s51, 3072"); a("s_add_u32 s55, s55, s54")
    a("v_lshlrev_b32 v9, 7, v%d" % V_LANE)
    a("s_lshl_b32 s46, s51, 2"); a("s_add_u32 s46, s46, s%d" % S_WAVE); a("s_mul_i32 s46, s46, 3072"); a("s_mul_i32 s78, s50, 73728"); a("s_add_u32 s78, s78, s46")
    def w2(i0, i1):
        return [("s_add_u32 s59, s72, %d\n" % (1024*(i & ~3)) if (i % 4 == 0 or i == i0) else "") +
                "buffer_load_dwordx4 a[%d:%d], v%d, s[%d:%d], s59 offen offset:%d sc1" % (AW2+4*i, AW2+4*i+3, V_L16, R_WS, R_WS+3, 1024*(i & 3)) for i in range(i0, i1)]
    def park(ab, lay, late):
        if late: return ["ds_write_b128 v%d, a[%d:%d] offset:%d" % (63 if lay[1] else 8, ab+4*i, ab+4*i+3, 1024*(i - NE)) for i in range(NE, 27)]
        return ["ds_write_b128 v%d, a[%d:%d] offset:%d" % (62 if lay[0] else 7, ab+4*i, ab+4*i+3, 1024*i) for i in range(NE)]
    def aloads(off):
        for q in range(5): a("s_add_u32 s%d, s54, %d" % (60+q, off + 4096*q))
        return ["buffer_load_dwordx4 v[%d:%d], v%d, s[%d:%d], s%d offen offset:%d sc1" % (AF+4*j, AF+4*j+3, V_L16, R_WS, R_WS+3, 60+(j >> 2), 1024*(j & 3)) for j in range(18)]
    def ostores(src, off):
        a("s_add_u32 s46, s55, %d" % off)
        for jj in range(3): a("buffer_store_dwordx4 v[%d:%d], v%d, s[%d:%d], s46 offen offset:%d sc1" % (src+4*jj, src+4*jj+3, V_L16, R_WS, R_WS+3, 1024*jj))
    a("s_lshl_b32 s46, s53, 4"); a("v_add_u32 v20, s46, v%d" % V_R); a("s_mov_b32 s47, 18432")
    for k, sh in enumerate((1, -1, 2, -2)):
        a("v_subrev_u32 v21, %d, v20" % sh); a("v_ashrrev_i32 v22, 4, v21"); a("v_mul_lo_u32 v22, v22, s47")
        a("v_and_b32 v21, 15, v21"); a("v_lshl_add_u32 v21, v%d, 4, v21" % V_G); a("v_lshl_add_u32 v%d, v21, 4, v22" % (56+k))
    a("v_cmp_gt_u32 vcc, 32, v%d" % V_LANE); a("v_cndmask_b32 v60, v57, v56, vcc"); a("v_cndmask_b32 v61, v59, v58, vcc")
    N2 = int(os.environ.get("N2", 0))
    n3 = max(N2, NE)
    gemm96(a, aloads(O_OFF), [pf_lds(0), pf_lds(1)] + w2(0, N2), SLEEP0["p3"] if N2 < 8 else 0, stamp="p3", extra=w2(N2, n3), early=park(AW1, LAY4, False))
    a.stamp("p3_gemm")
    a(FP2Q)
    a("s_mov_b32 s46, 0x00003f80"); a("s_mov_b32 s47, 0x3f800000")
    for t in range(6):
        for i in range(4): a("v_dot2c_f32_bf16 v%d, s%d, v%d" % (ACC+4*t+i, 46+(i & 1), XT+4*(t >> 1)+2*(t & 1)+(i >> 1)))
    for k in range(12): a("v_cvt_pk_bf16_f32 v%d, v%d, v%d" % (HK+k, ACC+2*k, ACC+2*k+1))
    ostores(HK, H_OFF)
    out_stats(a, HK, 12, 10, SH_OFF)
    a.stamp("p3_epi")
    if a.stop == 3: a("s_waitcnt vmcnt(0)"); a("s_branch L_fin")
    for r in range(4): a("v_mov_b32 v%d, s%d" % (20+r, S_ONES))
    cs = [mfma(WB+4*(i//9), AW1+4*i, 20, None if i % 9 == 0 else WB+4*(i//9), ta="a") for i in range(27)]
    a("s_mul_i32 s46, s%d, 192" % S_WAVE); a("s_add_u32 s46, s46, %d" % (48*1024)); a("v_lshl_add_u32 v24, v%d, 4, s46" % V_G)
    g = G(); interleave(g, [cs[(i % 3)*9 + i//3] for i in range(27)], park(AW1, LAY4, True))
    st4 = g.lines
    st4 += ["s_nop 7"] + ["ds_write_b128 v24, v[%d:%d] offset:%d" % (WB+4*k, WB+4*k+3, 64*k) for k in range(3)]
    CS = 232
    sl = stats_loads(a, SH_OFF, 53, 10); a("s_mov_b32 s65, s46"); sl = [x.replace("s46", "s65") for x in sl]
    def fin4(wreads):
        a("v_lshlrev_b32 v24, 4, v%d" % V_G)
        for k in range(12): a("ds_read_b128 v[%d:%d], v24 offset:%d" % ((CS if k % 2 == 0 else ACC)+4*(k//2), (CS if k % 2 == 0 else ACC)+4*(k//2)+3, 48*1024 + 64*k))
        wreads()
        a("s_waitcnt vmcnt(%d)" % UP)
        for x in tag_ops(range(10, 14), 30): a(x)
        tag_branch(a, sl, range(10, 14), 30, al4[:UP])
        stats_finish(a, 10, VMEAN, VRSTD)
        a("v_mul_f32 v12, v%d, v%d" % (VRSTD, VRSTD)); a("v_mul_f32 v12, v12, v11"); a("v_add_f32 v12, %d, v12" % f32(1e-5))
        a("v_rsq_f32 v12, v12"); a("v_mul_f32 v16, %d, v%d" % (f32(GS), VRSTD)); a("v_mul_f32 v16, v12, v16"); a("v_mul_f32 v17, v16, -v%d" % VMEAN)
        a("s_waitcnt lgkmcnt(12)")
        for k in range(12): a("v_pk_add_f32 v[%d:%d], v[%d:%d], v[%d:%d]" % (CS+2*k, CS+2*k+1, CS+2*k, CS+2*k+1, ACC+2*k, ACC+2*k+1))
        for k in range(12): a("v_pk_mul_f32 v[%d:%d], v[%d:%d], v[16:17] op_sel:[0,1] op_sel_hi:[1,1]" % (CS+2*k, CS+2*k+1, CS+2*k, CS+2*k+1))
    if "d_mid" in ABL: a("s_sleep 64")
    al4 = aloads(H_OFF)
    gemm96(a, al4, st4, SLEEP0["p4"], pre=sl, each=fin4, stamp="p4", extra=w2(n3, 27), layout=LAY4, before=marks2)
    a.stamp("p4_gemm")
    gelu_consts(a)
    for k in range(12): a("v_pk_fma_f32 v[%d:%d], v[%d:%d], v[16:17], v[%d:%d] op_sel_hi:[1,0,1]" % (ACC+2*k, ACC+2*k+1, ACC+2*k, ACC+2*k+1, CS+2*k, CS+2*k+1))
    g = G(); gelu_pk(g, [ACC+2*k for k in range(12)], AF)
    interleave(a, g.lines, park(AW2, LAY5, False))
    for k in range(12): a("v_cvt_pk_bf16_f32 v%d, v%d, v%d" % (OS+k, ACC+2*k, ACC+2*k+1))
    ostores(OS, T_OFF)
    a.stamp("p4_epi")
    if a.stop == 4: a("s_waitcnt vmcnt(0)"); a("s_branch L_fin")
    a.srd(R_A, S_WS, ACT, T_OFF)
    for q in range(5): a("s_mov_b32 s%d, %d" % (70+q, 4096*q))
    def vsel(j): return 56 if j < 4 else 60 if j == 4 else 57 if j < 9 else 58 if j < 13 else 61 if j == 13 else 59
    tl = ["buffer_load_dwordx4 v[%d:%d], v%d, s[%d:%d], s%d offen offset:%d sc1" % (AF+4*j, AF+4*j+3, vsel(j), R_A, R_A+3, 70+(j >> 2), 1024*(j & 3)) for j in range(18)]
    roles6(a)
    wflags(a, 54, 54, 55)
    a("s_waitcnt vmcnt(4)")
    gemm96(a, tl, park(AW2, LAY5, True), SLEEP0["p5"], stamp="p5", layout=LAY5)
    a.stamp("p5_gemm")
    a("v_mul_f32 v17, v%d, -v%d" % (VRSTD, VMEAN))
    for k in range(12):
        a("v_lshlrev_b32 v20, 16, v%d" % (HK+k)); a("v_and_b32 v21, 0xffff0000, v%d" % (HK+k))
        a("v_fma_f32 v20, v20, v%d, v17" % VRSTD); a("v_fma_f32 v21, v21, v%d, v17" % VRSTD)
        a("v_pk_add_f32 v[%d:%d], v[%d:%d], v[20:21]" % (ACC+2*k, ACC+2*k+1, ACC+2*k, ACC+2*k+1))
    for k in range(12): a("v_cvt_pk_bf16_f32 v%d, v%d, v%d" % (OS+k, ACC+2*k, ACC+2*k+1))
    ostores(OS, X1_OFF)
    out_stats(a, OS, 12, 10, SX_OFF)
    a.stamp("p5_epi")
    a("s_branch L_p5_pre")
    a.label("L_p3_helper")
    if "d_h3" in ABL: a("s_sleep 64")
    a("s_cmp_ge_u32 s48, 144"); a("s_cbranch_scc1 L_p3_touch")
    a("s_barrier")
    a(pf_lds(0)); a(pf_lds(1))
    swizzle_setup(a)
    a("s_add_u32 s48, s48, 54")
    for p in range(3):
        sw_big(a, 48, 60+3*p)
        a("s_lshl_b32 s53, s52, 10"); a("s_add_u32 s%d, s%d, s53" % (60+3*p, 60+3*p)); a("s_add_u32 s%d, s48, %d" % (62+3*p, FS))
        a("s_add_u32 s48, s48, 1")
    a("s_waitcnt vmcnt(0)"); a("s_barrier")
    for p in range(3): sw_process(a, p, W_LDS + 36864*p)
    a("s_waitcnt vmcnt(0)"); a("s_barrier")
    sw_flags(a, range(3))
    a.stamp("h_w3")
    a.label("L_p3_touch")
    roles6(a)
    NL = (SW << LCH)//128//32
    a("s_lshr_b32 s46, s65, %d" % LCH); a("s_mul_i32 s46, s46, %d" % (SW << LCH))
    a("s_and_b32 s47, s74, 3"); a("s_lshl_b32 s47, s47, 1"); a("s_add_u32 s47, s47, s75"); a("s_sub_u32 s47, s47, 6")
    a("s_lshl_b32 s47, s47, 2"); a("s_add_u32 s47, s47, s%d" % S_WAVE); a("s_mul_i32 s47, s47, %d" % (128*NL)); a("s_add_u32 s46, s46, s47")
    a.srd(R_A, S_W4, BW)
    a("v_lshlrev_b32 v10, 7, v%d" % V_LANE)
    for q in range(-(-NL//64)):
        if NL - 64*q < 64: a("s_bfm_b64 exec, %d, 0" % (NL - 64*q))
        a("buffer_load_dword v11, v10, s[%d:%d], s46 offen" % (R_A, R_A+3)); a("s_add_u32 s46, s46, 8192")
    a("s_mov_b64 exec, -1")
    a.stamp("h_w4")
    wflags(a, 54, 54, 55)
    a(FP2Q)
    a("s_waitcnt vmcnt(0)")
    marks2(a)
    a.label("L_p5_pre")
    a.label("L_p5_done")
    a.stamp("p5_done")

WFL = os.environ.get("WFL", " sc1")
OFL = os.environ.get("OFL", "")
LCH = int(os.environ.get('LCH', 1))
RING = 184

def roles6(a):
    L = LCH
    a("s_lshr_b32 s46, s%d, %d" % (S_XCD, 3-L)); a("s_lshl_b32 s64, s46, %d" % (5-L)); a("s_lshr_b32 s67, s%d, %d" % (S_SLOT, L)); a("s_add_u32 s64, s64, s67")
    a("s_and_b32 s67, s67, 7")
    a("s_mov_b32 s67, 0")
    a("s_and_b32 s46, s%d, %d" % (S_XCD, (8 >> L) - 1)); a("s_lshl_b32 s65, s46, %d" % L); a("s_and_b32 s46, s%d, %d" % (S_SLOT, (1 << L) - 1)); a("s_add_u32 s65, s65, s46")
    a("s_lshl_b32 s46, s65, 2"); a("s_add_u32 s46, s46, s%d" % S_WAVE); a("s_mul_i32 s66, s46, %d" % (9*18432)); a("s_add_u32 s66, s66, %d" % W3_S)

def wload(j, s=58, ring=("a", RING)):
    o = "s_add_u32 s%d, s%d, 4096\n" % (s, s) if (j and j % 4 == 0) else ""
    return o + ("buffer_load_dwordx4 %s[%d:%d], v%d, s[%d:%d], s%d offen offset:%d" + WFL) % (ring[0], ring[1]+4*j, ring[1]+4*j+3, V_L16, R_WS, R_WS+3, s, 1024*(j & 3))

def ring_prefill(a, s):
    a("s_mul_i32 s%d, s67, 18432" % s); a("s_add_u32 s%d, s%d, s66" % (s, s))
    return [wload(j, s) for j in range(18)]

def norm_pk(x, vs, t):
    o = []
    for r in range(4):
        o.append("v_lshlrev_b32 v%d, 16, v%d" % (t+2*r, x+r)); o.append("v_and_b32 v%d, 0xffff0000, v%d" % (t+2*r+1, x+r))
    for r in range(4): o.append("v_pk_fma_f32 v[%d:%d], v[%d:%d], v[%d:%d], v[%d:%d] op_sel:[0,0,1] op_sel_hi:[1,0,1]" % (t+2*r, t+2*r+1, t+2*r, t+2*r+1, vs, vs+1, vs, vs+1))
    for r in range(4): o.append("v_cvt_pk_bf16_f32 v%d, v%d, v%d" % (x+r, t+2*r, t+2*r+1))
    return o

def phase6(a):
    AC, PK, RB, GT, XR = 40, 72, 80, 136, 64
    HB = 73728
    def xf(T, j):
        f = 4*j + T
        return ("a", 4*f) if f < 46 else ("v", 152 + 4*(f-46))
    a("s_mov_b32 s50, s64"); a("s_mov_b32 s51, s65"); a("s_mov_b32 s54, s66"); a("s_mov_b32 s52, s67")
    a("s_lshl_b32 s53, s50, 2"); a("s_add_u32 s53, s53, s%d" % S_WAVE)
    a("s_mul_i32 s56, s50, 72"); a("s_add_u32 s56, s56, s51"); a("s_lshl_b32 s56, s56, 2"); a("s_add_u32 s56, s56, s%d" % S_WAVE)
    a("s_lshl_b32 s56, s56, 11"); a("s_add_u32 s56, s56, %d" % PART)
    a("s_mul_i32 s46, s53, 18432")
    for q in range(5): a("s_add_u32 s%d, s46, %d" % (70+q, X1_OFF + 4096*q))
    a("s_mul_i32 s46, s%d, 18432" % S_WAVE); a("v_add_u32 v5, s46, v%d" % V_L16)
    sl = stats_loads(a, SX_OFF, 53, 10)
    a("s_mov_b32 s60, s46")
    sl = [x.replace("s46", "s60") for x in sl]
    a("v_mov_b32 v28, 0")
    a("global_load_dword v29, v28, s[%d:%d] sc1" % (S_DBG, S_DBG+1))
    L = a.newlabel("Lh")
    a("s_cmp_lg_u32 s%d, 0" % S_WAVE); a("s_cbranch_scc1 %s" % L)
    a("v_cmp_ne_u32 vcc, s%d, v55" % S_NONCE); a("s_cbranch_vccz %s" % L)
    a("v_lshrrev_b32 v54, 7, v54")
    a.poll(54, 55, sleep0=0)
    a.label(L)
    a("s_barrier")
    pre = ring_prefill(a, 59)
    NP = SLEEP0["p6"]
    for x in pre[:NP]: a(x)
    a.stamp("p6_ready")
    a("s_mov_b32 s79, 50000")
    for x in sl: a(x)
    def xload(j): return "buffer_load_dwordx4 v[%d:%d], v%d, s[%d:%d], s%d offen offset:%d sc1" % (XR+4*j, XR+4*j+3, V_L16, R_WS, R_WS+3, 70+(j >> 2), 1024*(j & 3))
    for j in range(UP): a(xload(j))
    a("v_add_u32 v32, 36864, v%d" % V_L16); a("v_add_u32 v33, %d, v%d" % (HB, V_L16)); a("v_add_u32 v34, %d, v%d" % (HB+36864, V_L16))
    a("s_lshr_b32 s46, s%d, 1" % S_WAVE); a("s_lshl_b32 s46, s46, 10"); a("s_and_b32 s47, s%d, 1" % S_WAVE); a("s_lshl_b32 s47, s47, 3")
    a("s_add_u32 s46, s46, s47"); a("v_add_u32 v35, s46, v33")
    gelu_consts(a)
    R3, ST, SEL, RS = 12, 32, 6, RB
    def natsel(d, sr, bit, t):
        o = ["s_bfe_u32 s66, s%d, %d" % (sr, 0x10000 + bit), "s_lshl_b32 s66, s66, 1", "v_lshrrev_b32 v%d, 3, v%d" % (t, V_R), "v_add_u32 v%d, s66, v%d" % (t, t),
             "v_cmp_eq_u32 s[66:67], v%d, v%d" % (t, V_G), "v_and_b32 v%d, 1, v%d" % (t, V_R), "v_lshlrev_b32 v%d, 4, v%d" % (t, t),
             "v_mov_b32 v%d, 0x3f80" % (t+1), "v_lshlrev_b32 v%d, v%d, v%d" % (t+1, t, t+1), "v_cndmask_b32 v%d, 0, v%d, s[66:67]" % (t+1, t+1),
             "v_bfe_u32 v%d, v%d, 1, 2" % (t, V_R)]
        for k in range(4): o += ["v_cmp_eq_u32 s[66:67], %d, v%d" % (k, t), "v_cndmask_b32 v%d, 0, v%d, s[66:67]" % (d+k, t+1)]
        return o
    a("v_lshrrev_b32 v26, 2, v%d" % V_R); a("v_cmp_eq_u32 s[64:65], v26, v%d" % V_G)
    a("v_and_b32 v26, 1, v%d" % V_R); a("v_lshlrev_b32 v26, 4, v26"); a("v_mov_b32 v27, 0x3f80"); a("v_lshlrev_b32 v27, v26, v27")
    a("v_cndmask_b32 v27, 0, v27, s[64:65]"); a("v_and_b32 v26, 2, v%d" % V_R); a("v_cmp_eq_u32 vcc, 0, v26")
    a("v_cndmask_b32 v%d, 0, v27, vcc" % (SEL+2)); a("v_cndmask_b32 v%d, v27, 0, vcc" % (SEL+3))
    for r in (0, 1): a("v_mov_b32 v%d, 0" % (SEL+r))
    for x in natsel(36, S_WAVE, 0, 26): a(x)
    def bload(reg, s, off=0, t="a"): return "buffer_load_dwordx4 %s[%d:%d], v%d, s[%d:%d], s%d offen offset:%d sc1" % (t, reg, reg+3, V_L16, R_WS, R_WS+3, s, off)
    a("s_waitcnt vmcnt(%d)" % UP)
    for x in tag_ops(range(10, 14), 30): a(x)
    tag_branch(a, sl, range(10, 14), 30, [xload(j) for j in range(UP)])
    a.stamp("p6_st")
    stats_finish(a, 10, 17, 16)
    a("v_mul_f32 v16, s48, v16"); a("v_mul_f32 v17, v16, -v17")
    a("s_mul_i32 s60, s50, 73728")
    a("s_lshl_b32 s46, s51, 1"); a("s_lshr_b32 s47, s%d, 1" % S_WAVE); a("s_add_u32 s46, s46, s47"); a("s_lshl_b32 s46, s46, 10"); a("s_add_u32 s78, s46, s60")
    order = [("x", j) for j in range(UP)]
    todo = [("x", j) for j in range(UP, 18)] + [("w", j) for j in range(NP, 18)]
    for j in range(18):
        a("s_waitcnt vmcnt(%d)" % (len(order) - 1 - order.index(("x", j))))
        for x in tag_ops(range(XR+4*j, XR+4*j+4), 30): a(x)
        n = 1 if j < 10 else -(-len(todo)//(18-j))
        for k, q in todo[:n]:
            a(xload(q) if k == "x" else pre[q]); order.append((k, q))
        del todo[:n]
        later = [q for k, q in order if k == "x" and q > j]
        tag_branch(a, [xload(j)], range(XR+4*j, XR+4*j+4), 30, [xload(q) for q in later], drain=order[-1][0] == "w")
        if j in (9, 17): a.stamp("p6_x%d" % j)
        for x in norm_pk(XR+4*j, 16, 20): a(x)
        a("ds_write_b128 v5, v[%d:%d] offset:%d" % (XR+4*j, XR+4*j+3, 1024*j))
    assert not todo
    a("v_readfirstlane_b32 s%d, v29" % S_NONCE)
    for r in (4, 5): a("v_mov_b32 v%d, 0" % (SEL+r))
    a("s_waitcnt lgkmcnt(0)"); a("s_barrier")
    a.stamp("p6_x")
    def fread(j, va):
        o = []
        for T in range(4):
            t, r = xf(T, j)
            o.append("ds_read_b128 %s[%d:%d], v%d offset:%d" % (t, r, r+3, va[T >> 1], (T & 1)*18432 + 1024*j))
        return o
    def gelu(ac):
        b = gelu_poly([ac+2*k for k in range(8)], GT)
        o = []
        for T in range(4):
            x = ac + 4*T; t = GT + 4*T
            o += ["v_exp_f32 v%d, -v%d" % (t+i, t+i) for i in range(4)]
            o += ["v_fma_f32 v%d, v%d, s48, s48" % (t+i, t+i) for i in range(4)]
            o += ["v_rcp_f32 v%d, v%d" % (t+i, t+i) for i in range(4)]
            o += ["v_mul_f32 v%d, v%d, v%d" % (t+i, t+i, x+i) for i in range(4)]
            o += ["v_cvt_pk_bf16_f32 v%d, v%d, v%d" % (PK+2*T+h, t+2*h, t+2*h+1) for h in range(2)]
            o.append("ds_write_b64 v5, v[%d:%d] offset:%d" % (PK+2*T, PK+2*T+1, 18432*T))
        return b, o
    def wt(op): return 2 if op.startswith(("v_exp", "v_rcp")) else min(2, len(op.split("\n")))
    RA = ("a", RING); RBB = ("v", RB)
    def subpass(ac, fill, first=None, loads=None, at=None, ring=RA, depth=18, batch=(), head=(), c0=None, more=None):
        if "p6nogelu" in ABL and len(fill) > 20: fill = []; batch = ()
        if "p6nost" in ABL: fill = [x for x in fill if "buffer_store" not in x]
        fill = list(fill); head = list(head)
        seq = [(2*p + q, T) for p in range(9) for T in range(4) for q in range(2)]
        LA = 12
        rd = [fread(j, first)[T] for j, T in seq] if first else []
        for x in rd[:LA]: a(x)
        def wait(m):
            w = []
            if m % 8 == 0: w.append("vmcnt(%d)" % (depth - 2 + (more(m//4 - 1) if more and m else 0)))
            if first and m % 2 == 0: w.append("lgkmcnt(%d)" % max(0, min(LA, 72 - m) - 2))
            return "s_waitcnt " + " ".join(w) if w else None
        for m, (j, T) in enumerate(seq):
            if wait(m): a(wait(m))
            if at and m % 4 == 0 and m//4 in at: at[m//4]()
            t, r = xf(T, j)
            a(mfma(ac+4*T, ring[1]+4*j, r, (None if c0 is None else c0+4*T) if j == 0 else ac+4*T, ta=ring[0], tb=t))
            room = 2
            if m + LA < len(rd): a(rd[m + LA]); room -= 1
            if m < 3:
                n = (len(head) + 2 - m)//(3 - m)
                for x in head[:n]: a(x)
                del head[:n]
            if m == 3:
                for x in batch: a(x)
            if T == 3:
                ld = "" if ("p6nold" in ABL and loads is None) else (loads(j) if loads else wload(j, 58, ring))
                if ld: a(ld); room -= len(ld.split("\n"))
            if m < 71 and wait(m+1): room -= 1
            if m < 4: continue
            left = 71 - m
            while fill and (wt(fill[0]) <= room or sum(wt(x) for x in fill) > 2*left - (left+3)//4*2 + 1):
                room -= wt(fill[0]); a(fill.pop(0))
        assert not fill
    def nexttile():
        return ["s_mov_b32 s62, s61", "s_add_u32 s61, s61, 1", "s_add_u32 s54, s54, 18432", "s_mov_b32 s58, s54",
                "s_lshl_b32 s46, s62, 11", "v_add_u32 v5, s46, v35"]
    a("s_mov_b32 s61, 0"); a("s_add_u32 s54, s54, 18432"); a("s_mov_b32 s58, s54")
    for r in range(4): a("v_mov_b32 v%d, -1" % (PK+r))
    pois = []
    for k in (6, 7):
        pois.append("s_add_u32 s46, s51, %d\ns_and_b32 s46, s46, 7\ns_lshl_b32 s46, s46, 16\ns_add_u32 s62, s46, s56\n" % k +
                    "buffer_store_dwordx4 v[%d:%d], v%d, s[%d:%d], s62 offen sc1" % (PK, PK+3, V_L16, R_WS, R_WS+3))
        pois.append("buffer_store_dwordx4 v[%d:%d], v%d, s[%d:%d], s62 offen offset:1024 sc1" % (PK, PK+3, V_L16, R_WS, R_WS+3))
    res = ["s_add_u32 s62, s78, %d\n" % ((X1_OFF, H_OFF)[j >> 2] + 18432*(j & 3)) + bload(RS+4*j, 62, t="v") for j in range(8)]
    def resadd():
        a("s_waitcnt vmcnt(9)")
        for k in range(2):
            for T in range(4): a(mfma(R3+4*T, 36, RS+16*k+4*T, None if k == 0 else R3+4*T))
    ev0 = {j: (lambda j=j: a(res[j])) for j in range(8)}
    ev0[16] = resadd
    ev0[17] = lambda: [a(x) for x in pois]
    subpass(AC, [], first=(V_L16, 32), at=ev0, more=lambda j: min(j+1, 8))
    a.stamp("p6_p0")
    WF, DA, TA = RB, RB+16, RB+22
    a.srd(R_B, S_W4, BW + 4096, -4096)
    a("v_lshrrev_b32 v30, 3, v%d" % V_LANE); a("v_bfe_u32 v31, v%d, 4, 1" % V_LANE); a("v_lshlrev_b32 v31, 1, v31")
    a("v_and_b32 v%d, 7, v%d" % (TA, V_LANE)); a("v_xor_b32 v31, v31, v%d" % TA); a("v_mul_u32_u24 v30, 1152, v30")
    a("v_lshl_add_u32 v%d, v31, 4, v30" % DA); a("v_xor_b32 v31, 4, v31"); a("v_lshl_add_u32 v%d, v31, 4, v30" % (DA+1))
    for q in (5, 4, 3, 2, 1, 0): a("v_add_u32 v%d, %d, v%d" % (DA+q, 9216*q - 1024*(q % 3) + 4096, DA + (q & 1)))
    a("v_lshrrev_b32 v30, 2, v%d" % V_R); a("v_lshl_add_u32 v31, v%d, 3, v30" % V_G); a("v_lshlrev_b32 v31, 7, v31")
    a("v_lshrrev_b32 v30, 1, v30"); a("v_and_b32 v%d, 1, v%d" % (TA, V_G)); a("v_lshl_add_u32 v30, v%d, 1, v30" % TA)
    a("v_xor_b32 v30, s%d, v30" % S_WAVE); a("v_lshl_add_u32 v31, v30, 5, v31"); a("v_and_b32 v30, 3, v%d" % V_R)
    a("v_lshl_add_u32 v%d, v30, 3, v31" % TA)
    a("s_mul_i32 s55, s51, 12"); a("s_add_u32 s55, s55, s%d" % S_WAVE); a("s_mul_i32 s55, s55, %d" % (48*1152))
    a("s_mul_i32 s63, s%d, 6144" % S_WAVE)
    a("s_barrier")
    a("s_mov_b32 s59, 0")
    a.label("L_p6_a")
    for half in (1, 0):
        b, o = gelu(AC+16*(1-half))
        subpass(AC+16*half, o, batch=b, head=nexttile())
    a("s_add_u32 s59, s59, 1"); a("s_cmp_lt_u32 s59, 3"); a("s_cbranch_scc1 L_p6_a")
    b, o = gelu(AC)
    subpass(AC+16, o, batch=b, head=nexttile())
    CH = 24576
    def slot(n): return n % 3 if n < 6 else (n + 3) % 6
    def src(c, s): return "s_add_u32 s58, s%d, %d" % (s, 192*1152*c)
    def dma(n, s):
        o = []
        for q in range(6):
            pre = src(n % 3, s) + "\n" if q == 0 else ""
            if q % 3 == 0: pre = "s_add_u32 m0, s63, %d\n" % (CH*slot(n) + 1024*q) + (pre or "s_nop 0\n")
            o.append(pre + "buffer_load_dwordx4 v%d, s[%d:%d], s58 offen offset:%d lds" % (DA+q, R_B, R_B+3, 1024*(q % 3)))
        return o
    def origin(d, step):
        if step == 0: return ["s_add_u32 s%d, s55, 1024" % d]
        return ["s_add_u32 s46, s51, %s" % step, "s_and_b32 s46, s46, 7", "s_lshl_b32 s46, s46, 7", "s_add_u32 s%d, s55, s46" % d]
    for x in origin(64, 0) + origin(65, 1): a(x)
    d012 = dma(0, 64) + dma(1, 64) + dma(2, 64)
    b, o = gelu(AC+16)
    subpass(AC, o, batch=b, head=nexttile(), loads=lambda j: d012[j])
    a("s_lshl_b32 s46, s61, 11"); a("v_add_u32 v5, s46, v35")
    raw = [(src(j//6, 65) + "\n" if j % 6 == 0 else "") + "buffer_load_dwordx4 a[%d:%d], v%d, s[%d:%d], s58 offen offset:%d" % (RING+4*j, RING+4*j+3, DA + j % 6, R_B, R_B+3, 1024*(j % 3)) for j in range(18)]
    g = G(); gelu_pk(g, [AC+2*k for k in range(8)], GT)
    interleave(a, g.lines, raw[:14])
    for T in range(4):
        for h in range(2): a("v_cvt_pk_bf16_f32 v%d, v%d, v%d" % (PK+2*T+h, AC+4*T+2*h, AC+4*T+2*h+1))
        a("ds_write_b64 v5, v[%d:%d] offset:%d" % (PK+2*T, PK+2*T+1, 18432*T))
        a(raw[14+T])
    a("v_add_u32 v35, s63, v%d" % V_L16)
    a("s_waitcnt vmcnt(18) lgkmcnt(0)"); a("s_barrier")
    a.stamp("p6_a")
    def park(c): return ["ds_write_b128 v35, a[%d:%d] offset:%d" % (RING+24*c+4*q, RING+24*c+4*q+3, CH*c + 1024*q) for q in range(6)]
    def pstore(ac):
        o = ["v_cvt_pk_bf16_f32 v%d, v%d, v%d" % (PK+k, ac+2*k, ac+2*k+1) for k in range(8)]
        o += ["buffer_store_dwordx4 v[%d:%d], v%d, s[%d:%d], s62 offen offset:%d sc1" % (PK+4*p, PK+4*p+3, V_L16, R_WS, R_WS+3, 1024*p) for p in range(2)]
        return o
    def dest(step):
        if step == 0: return ["s_add_u32 s62, s56, %d" % (8*65536)]
        return ["s_add_u32 s46, s51, %s" % step, "s_and_b32 s46, s46, 7", "s_lshl_b32 s46, s46, 16", "s_add_u32 s62, s46, s56"]
    def wread(n, p):
        o = ["v_add_u32 v%d, %d, v%d" % (TA+1, CH*slot(n), TA)] if p == 0 else []
        pp = 3*n + p
        return o + ["ds_read_b64_tr_b16 v[%d:%d], v%d offset:%d" % (WF+8*(pp & 1)+4*q+2*hh, WF+8*(pp & 1)+4*q+2*hh+1, TA+1, 4096*(2*p+q) + 512*hh) for q in range(2) for hh in range(2)]
    def step(s, ac, fill, head=(), first=None, c0=None, before={}, after={}, at={}):
        fill = list(fill); head = list(head); lg = list(step.lg)
        seq = [(2*p + q, T) for p in range(9) for T in range(4) for q in range(2)]
        hr = [fread(j, first)[T] for j, T in seq] if first else []
        def lds(x, tag):
            a(x)
            if x.startswith("ds_"): lg.append(tag)
        def upto(tag):
            if tag in lg:
                n = len(lg) - 1 - max(i for i, t in enumerate(lg) if t == tag)
                a("s_waitcnt lgkmcnt(%d)" % min(n, 15)); del lg[:len(lg) - min(n, 15)]
                return 1
            return 0
        for i, x in enumerate(hr[:8]): lds(x, ("h", i))
        extra = [(w - 72, x) for w, x in step.extra]
        for m, (j, T) in enumerate(seq):
            p, c = m//8, m//24
            room = 2
            if m % 24 == 16 and 3*s + c < 26:
                if c in before: before[c]()
                upto("x")
                a("s_barrier")
                assert not extra
                ex = after.get(c, []); extra = [(m + 24*k//len(ex), x) for k, x in enumerate(ex)]
            if m % 8 == 0:
                upto(("w", 9*s + p))
                nx = wread(3*s + (p+1)//3, (p+1) % 3) if 9*s + p < 80 else []
            if m % 2 == 0 and first: upto(("h", m+1))
            if m % 4 == 0 and m//4 in at: at[m//4]()
            t, r = xf(T, j)
            a(mfma(ac+4*T, WF+8*((9*s+p) & 1)+4*(j & 1), r, (None if c0 is None else c0+4*T) if j == 0 else ac+4*T, tb=t))
            if nx:
                lds(nx.pop(0), ("w", 9*s + p + 1)); room -= 1
            if m + 8 < len(hr): lds(hr[m+8], ("h", m+8)); room -= 1
            if m < 3:
                n = (len(head) + 2 - m)//(3 - m)
                for x in head[:n]: a(x)
                del head[:n]
            while extra and extra[0][0] <= m:
                lds(extra.pop(0)[1], "x"); room -= 1
            if m >= 4:
                while fill and wt(fill[0]) <= room: room -= wt(fill[0]); a(fill.pop(0))
        assert not fill
        step.lg = lg; step.extra = extra
    def vm(n): return lambda: a("s_waitcnt vmcnt(%d)" % n)
    def seq(*fs):
        def f():
            for x in fs: x()
        return f
    def wave(w, body):
        def f():
            L = a.newlabel("Lex"); a("s_cmp_lg_u32 s%d, %d" % (S_WAVE, w)); a("s_cbranch_scc1 %s" % L); body(); a.label(L)
        return f
    a("s_lshl_b32 s70, s50, 10"); a("s_add_u32 s70, s70, %d" % (FLAG0 + 128*FA)); a("s_lshl_b32 s46, s51, 7"); a("s_add_u32 s68, s70, s46")
    a("s_mul_i32 s46, s50, 9"); a("s_add_u32 s46, s46, s51"); a("s_lshl_b32 s46, s46, 16"); a("s_lshl_b32 s47, s%d, 11" % S_WAVE)
    a("s_add_u32 s46, s46, s47"); a("s_add_u32 s69, s46, %d" % PART)
    a("v_and_b32 v5, 7, v%d" % V_LANE); a("v_cmp_eq_u32 vcc, s51, v5"); a("v_xor_b32 v30, 1, v5")
    a("v_cndmask_b32 v5, v5, v30, vcc"); a("v_lshlrev_b32 v5, 7, v5")
    def publish(c):
        def f():
            a("s_add_u32 s46, s%d, %d" % (S_NONCE, c)); a("v_mov_b32 v29, s46"); a("s_mov_b64 exec, 1")
            a("buffer_store_dword v29, v28, s[%d:%d], s68 offen sc1" % (R_WS, R_WS+3))
            a("s_mov_b64 exec, -1")
        return wave(0, f)
    askq = "buffer_load_dword v31, v5, s[%d:%d], s70 offen sc1" % (R_WS, R_WS+3)
    ask = wave(0, lambda: a(askq))
    def need(c, n):
        def f():
            L = a.newlabel("Lcf")
            a("s_add_u32 s73, s%d, %d" % (S_NONCE, c)); a("s_mov_b32 s47, 100000"); a("s_waitcnt vmcnt(%d)" % n)
            a.label(L)
            a("v_subrev_u32 v30, s73, v31"); a("v_cmp_lt_u32 vcc, 7, v30"); a("s_cbranch_vccz %s_x" % L)
            a("s_sleep 1"); a(askq); a("s_waitcnt vmcnt(0)")
            a("s_sub_u32 s47, s47, 1"); a("s_cbranch_scc0 %s" % L)
            a.label(L + "_x")
        return wave(0, f)
    step.extra = []
    for x in wread(0, 0): a(x)
    step.lg = [("w", 0)]*4
    step(0, AC, [], first=(33, 34), head=origin(64, 2), after={1: ["s_waitcnt vmcnt(12)"] + park(0), 2: ["s_waitcnt vmcnt(6)"] + park(1)})
    a.stamp("p6_s0")
    step(1, AC+16, pstore(AC), head=dest(0) + origin(65, 3), before={2: vm(18)},
         after={0: ["s_waitcnt vmcnt(2)"] + park(2) + dma(6, 64) + dma(7, 64), 1: dma(8, 64) + dma(9, 65), 2: dma(10, 65)})
    a("s_mov_b32 s71, 2")
    a.label("L_p6_b")
    w18 = {0: vm(18), 1: vm(18), 2: vm(18)}
    def last(body):
        def f():
            L = a.newlabel("Ll"); a("s_cmp_eq_u32 s71, 4"); a("s_cbranch_scc0 %s" % L); body(); a.label(L)
        return f
    lg0 = list(step.lg); ex0 = list(step.extra)
    step(2, AC, pstore(AC+16), head=["s_sub_u32 s72, s71, 1"] + dest("s72") + ["s_add_u32 s72, s71, 2"] + origin(64, "s72"), before=w18,
         after={0: dma(11, 65), 1: dma(12, 64), 2: dma(13, 64)})
    step(3, AC+16, pstore(AC), head=dest("s71") + ["s_add_u32 s72, s71, 3"] + origin(65, "s72"), before={0: vm(18), 1: vm(18), 2: seq(vm(18), last(vm(12)))},
         after={0: dma(14, 64), 1: dma(15, 65), 2: dma(16, 65)}, at={17: last(publish(4))})
    assert [t[0] for t in step.lg] == [t[0] for t in lg0] and step.extra == ex0
    a("s_add_u32 s71, s71, 2"); a("s_cmp_lt_u32 s71, 6"); a("s_cbranch_scc1 L_p6_b")
    step.lg = [("w", 54)]*len(lg0)
    def SC(k): return (54, 57, 59, 61, 72, 75, 76)[k-1]
    for k in range(1, 8):
        r = SC(k); a("s_sub_u32 s%d, s51, %d" % (r, k)); a("s_and_b32 s%d, s%d, 7" % (r, r)); a("s_lshl_b32 s%d, s%d, 13" % (r, r)); a("s_add_u32 s%d, s%d, s69" % (r, r))
    CB = {k: RB + 24 + 8*(k-2) if k > 1 else ST for k in range(1, 8)}
    def cload(k): return [bload(CB[k]+4*p, SC(k), 1024*p, t="v") for p in range(2)]
    def emit(xs): return lambda: [a(x) for x in xs]
    def add(acc, k):
        def f():
            for T in range(4): a(mfma(acc+4*T, SEL if T & 1 else SEL+2, CB[k]+4*(T >> 1), acc+4*T))
        return f
    step(6, AC, pstore(AC+16), head=dest(5) + origin(64, 8), before={0: vm(18), 1: vm(18), 2: seq(need(4, 6), vm(12))},
         after={0: dma(23, 65), 1: dma(24, 64), 2: dma(25, 64)}, at={8: ask, 17: publish(5)})
    a.stamp("p6_s6")
    a("s_mul_i32 s46, s50, 9"); a("s_add_u32 s46, s46, 8"); a("s_lshl_b32 s46, s46, 16"); a("s_lshl_b32 s47, s51, 10")
    a("s_add_u32 s46, s46, s47"); a("s_add_u32 s78, s46, %d" % PART)
    a("s_and_b32 s46, s51, 1"); a("s_mul_i32 s74, s46, 36864"); a("s_add_u32 s74, s74, s60")
    a("s_lshr_b32 s47, s51, 2"); a("s_add_u32 s47, s47, 16"); a("s_lshl_b32 s46, s47, 10"); a("s_add_u32 s79, s46, s74")
    a("s_lshr_b32 s46, s51, 1"); a("s_lshl_b32 s46, s46, 5"); a("s_add_u32 s46, s46, 1024"); a("s_add_u32 s74, s74, s46")
    def extra_get():
        for k in range(8):
            a(bload(RING+4*k, 78)); a("s_add_u32 s78, s78, 8192")
        for k, off in enumerate((H_OFF, X1_OFF)):
            for T in range(2):
                a("s_add_u32 s46, s79, %d" % (off + 18432*T)); a(bload(RING+32+8*k+4*T, 46))
    step(7, AC+16, pstore(AC), head=dest(6), before={0: vm(18), 1: vm(20), 2: seq(need(5, 2), vm(20))}, after={0: dma(26, 64)},
         at={0: emit(cload(1)), 7: emit(cload(2)), 9: emit(cload(3)), 11: ask, 12: emit(cload(4))})
    a.stamp("p6_s7")
    SEv, EA = AC+16, AC+24
    g = G()
    g.lines += natsel(SEv, 51, 1, EA)
    OB = 147456
    g("v_mul_u32_u24 v%d, 144, v%d" % (AC+20, V_R)); g("v_lshl_add_u32 v%d, v%d, 3, v%d" % (AC+20, V_G, AC+20))
    g.lines.append("s_lshl_b32 s66, s%d, 5\ns_add_u32 s66, s66, %d" % (S_WAVE, OB))
    g("v_add_u32 v%d, s66, v%d" % (AC+20, AC+20))
    g("v_lshrrev_b32 v%d, 3, v0" % EA); g("v_and_b32 v%d, 7, v0" % (EA+1)); g("v_lshlrev_b32 v%d, 4, v%d" % (EA+1, EA+1))
    g("v_mul_u32_u24 v%d, 144, v%d" % (AC+21, EA)); g("v_add_u32 v%d, v%d, v%d" % (AC+21, AC+21, EA+1)); g("v_add_u32 v%d, %d, v%d" % (AC+21, OB, AC+21))
    g("v_mul_u32_u24 v%d, 1152, v%d" % (AC+22, EA)); g("v_add_u32 v%d, v%d, v%d" % (AC+22, AC+22, EA+1))
    g("v_mul_u32_u24 v%d, 1152, v%d" % (AC+23, V_R)); g("v_lshl_add_u32 v%d, v%d, 3, v%d" % (AC+23, V_G, AC+23))
    step(8, AC, pstore(AC+16) + g.lines, head=dest(7), c0=R3, before={0: vm(16), 1: vm(2)},
         at={0: emit(cload(5)), 8: seq(vm(4), add(AC, 1)), 10: add(AC, 2), 11: wave(3, extra_get), 12: seq(add(AC, 3), emit(cload(6))),
             14: add(AC, 4), 16: add(AC, 5), 17: emit(cload(7))})
    a.stamp("p6_b")
    a.srd(R_A, S_OUT, ACT)
    a("s_cmp_lg_u32 s%d, 3" % S_WAVE); a("s_cbranch_scc1 L_p7_main")
    a("s_waitcnt vmcnt(4)")
    for k in range(8):
        a(mfma(EA, SEL+2, RING+4*k, None if k == 0 else EA, tb="a")); a(mfma(EA+4, SEL, RING+4*k, None if k == 0 else EA+4, tb="a"))
    for k in range(2):
        for T in range(2): a(mfma(EA+4*T, SEv, RING+32+8*k+4*T, EA+4*T, tb="a"))
    for T in range(2):
        for h in range(2): a("v_cvt_pk_bf16_f32 v%d, v%d, v%d" % (PK+2*T+h, EA+4*T+2*h, EA+4*T+2*h+1))
    a.label("L_p7_main")
    for k in (6, 7):
        base = CB[k]
        L = a.newlabel("Ltag")
        a("s_mov_b32 s47, 100000")
        a("s_waitcnt vmcnt(%d)" % (2 if k == 6 else 0))
        a.label(L)
        for x in tag_ops(range(base, base+8), 30): a(x)
        a("s_cbranch_vccz %s_x" % L)
        for x in cload(k): a(x)
        a("s_waitcnt vmcnt(0)")
        a("s_sub_u32 s47, s47, 1"); a("s_cbranch_scc0 %s" % L)
        a.label(L + "_x")
        add(AC, k)()
    a.stamp("p7_ready")
    a("s_cmp_lg_u32 s%d, 3" % S_WAVE); a("s_cbranch_scc1 L_p7_acc")
    for T in range(2):
        a("buffer_store_dwordx2 v[%d:%d], v%d, s[%d:%d], s74 offen%s" % (PK+2*T, PK+2*T+1, AC+23, R_A, R_A+3, OFL))
        a("s_add_u32 s74, s74, 18432")
    a.label("L_p7_acc")
    a("s_lshl_b32 s46, s51, 7"); a("s_add_u32 s46, s46, s60"); a("s_add_u32 s47, s46, 36864")
    for T in range(4):
        for h in range(2): a("v_cvt_pk_bf16_f32 v%d, v%d, v%d" % (R3+2*T+h, AC+4*T+2*h, AC+4*T+2*h+1))
        a("ds_write_b64 v%d, v[%d:%d] offset:%d" % (AC+20, R3+2*T, R3+2*T+1, 2304*T))
    a("s_waitcnt lgkmcnt(0)"); a("s_barrier")
    for p in range(2): a("ds_read_b128 v[%d:%d], v%d offset:%d" % (R3+8+4*p, R3+11+4*p, AC+21, 4608*p))
    for p in range(2):
        a("s_waitcnt lgkmcnt(%d)" % (1-p))
        a("buffer_store_dwordx4 v[%d:%d], v%d, s[%d:%d], s%d offen%s" % (R3+8+4*p, R3+11+4*p, AC+22, R_A, R_A+3, 46+p, OFL))
```

```python
import sys, os, struct, math
sys.path.insert(0, "dev")
from asmlib import Asm, build
from hazard import fix_hazards, check_waits

NAME = "sequential_preLN__sliding_block__mixer_s_mlp__prompt"
KN = NAME + "_kernel"

ACT = 2048*576*2
SW  = 576*576*2
BW  = 576*4608*2
FLAG0 = 128
F1, FS, F2, F3, F4, F5, FA, FB = 0, 256, 640, 896, 1152, 1408, 1664, 2688
TS_OFF = 0x80000
Q_OFF  = 0x90000
K_OFF  = Q_OFF + ACT
V_OFF  = K_OFF + ACT
O_OFF  = V_OFF + ACT
H_OFF  = O_OFF + ACT
SH_OFF = H_OFF + ACT
T_OFF  = SH_OFF + 98304
X1_OFF = T_OFF + ACT
SX_OFF = X1_OFF + ACT
WO_S   = SX_OFF + 98304
W1_S   = WO_S + SW
W2_S   = W1_S + SW
W3_S   = W2_S + SW
W4_S   = W3_S + BW
PART   = W4_S + BW
WS_END = PART + 32*9*8*8192
FP_OFF = 0x7F000
FP2_OFF = FP_OFF + 1024
MARK_N = T_OFF - O_OFF
MKG = 19
MARK_W = 2048*MKG
assert 128*MARK_W >= MARK_N and 1024*5120 >= WO_S - T_OFF
HPSZ   = 147456

WSOFF = 0
MK0 = int(os.environ.get('MK0', 0))
MK1 = int(os.environ.get('MK1', 0))
THR = int(os.environ.get('THR', 0))
NW3 = int(os.environ.get('NW3', 0))
ABL = os.environ.get('ABL', '').split(',')
CLK = 's_memtime'
def f32(x): return struct.unpack("<I", struct.pack("<f", x))[0]
def magic(d): return (1 << 32)//d + 1

S_X, S_WQKV, S_WO = 4, 6, 8
S_W1, S_W2, S_W3, S_W4 = 12, 14, 16, 18
S_OUT, S_DBG, S_WS = 20, 22, 24
R_WS, R_A, R_B = 28, 32, 36
S_WAVE, S_XCD, S_SLOT, S_NONCE = 40, 41, 42, 43
S_ONES = 44
V_LANE, V_R, V_G, V_L16 = 1, 2, 3, 4

class G(Asm):
    def __init__(s, stop=99, stamps=False):
        super().__init__()
        s.stop = stop; s.stamps = stamps; s.stubs = []
    def srd(a, d, p, size, add=0):
        if add >= 0:
            a("s_add_u32 s%d, s%d, %s" % (d, p, add)); a("s_addc_u32 s%d, s%d, 0" % (d+1, p+1))
        else:
            a("s_sub_u32 s%d, s%d, %d" % (d, p, -add)); a("s_subb_u32 s%d, s%d, 0" % (d+1, p+1))
        a("s_mov_b32 s%d, %d" % (d+2, size)); a("s_mov_b32 s%d, 0x20000" % (d+3))
    def srd_s(a, d, p, size, sreg):
        a("s_add_u32 s%d, s%d, s%d" % (d, p, sreg)); a("s_addc_u32 s%d, s%d, 0" % (d+1, p+1))
        a("s_mov_b32 s%d, %d" % (d+2, size)); a("s_mov_b32 s%d, 0x20000" % (d+3))
    def sdiv(a, q, r, x, d):
        a("s_mul_hi_u32 s%d, s%d, %d" % (q, x, magic(d)))
        if r is not None:
            a("s_mul_i32 s%d, s%d, %d" % (r, q, d)); a("s_sub_u32 s%d, s%d, s%d" % (r, x, r))
    def stamp(a, name):
        if not a.stamps or name not in a.stamps: return
        k = a.stamps.index(name)
        a("%s s[98:99]" % CLK); a("s_waitcnt lgkmcnt(0)"); a("s_mov_b32 s%d, s98" % (80+k))
    def stamp_out(a):
        if not a.stamps: return
        a.stamp("end")
        a("s_lshl_b32 s98, s2, 2"); a("s_add_u32 s98, s98, s%d" % S_WAVE); a("s_lshl_b32 s98, s98, 6"); a("s_add_u32 s98, s98, %d" % TS_OFF)
        a("v_mov_b32 v255, 0")
        for k in range(16):
            a("v_mov_b32 v254, s%d" % (80+k))
            a("buffer_store_dword v254, v255, s[%d:%d], s98 offen offset:%d" % (R_WS, R_WS+3, 4*k))
            a("s_nop 1")
    def xg_reduce(a, v, t, op="v_add_f32"):
        for sw in ("v_permlane32_swap_b32", "v_permlane16_swap_b32"):
            a("v_mov_b32 v%d, v%d" % (t, v)); a("%s v%d, v%d" % (sw, v, t)); a("%s v%d, v%d, v%d" % (op, v, v, t))
    def get_nonce(a, vt):
        L = a.newlabel("Lnon")
        a("s_mov_b32 s46, 200000"); a("v_mov_b32 v%d, 0" % (vt+2))
        a.label(L)
        a("global_load_dwordx2 v[%d:%d], v%d, s[%d:%d] sc1" % (vt, vt+1, vt+2, S_DBG, S_DBG+1))
        a("s_waitcnt vmcnt(0)")
        a("v_readfirstlane_b32 s47, v%d" % (vt+1)); a("v_readfirstlane_b32 s%d, v%d" % (S_NONCE, vt))
        a("s_sub_u32 s46, s46, 1"); a("s_cbranch_scc1 %s_x" % L)
        a("s_cmp_eq_u32 s47, 0"); a("s_cbranch_scc1 %s" % L)
        a.label(L + "_x")
    def set_flag(a, sidx, vt):
        a("s_lshl_b32 s%d, s%d, 7" % (sidx, sidx)); a("s_add_u32 s%d, s%d, %d" % (sidx, sidx, FLAG0))
        a("v_mov_b32 v%d, s%d" % (vt, S_NONCE)); a("v_mov_b32 v%d, 0" % (vt+1))
        a("s_mov_b64 exec, 1")
        a("buffer_store_dword v%d, v%d, s[%d:%d], s%d offen sc1" % (vt, vt+1, R_WS, R_WS+3, sidx))
        a("s_mov_b64 exec, -1")
    def set_mark(a, vt, off):
        a("s_lshl_b32 s46, s2, 2"); a("s_add_u32 s46, s46, %d" % off)
        a("v_mov_b32 v%d, s%d" % (vt, S_NONCE)); a("v_mov_b32 v%d, 0" % (vt+1))
        a("s_mov_b64 exec, 1")
        a("buffer_store_dword v%d, v%d, s[%d:%d], s46 offen sc1" % (vt, vt+1, R_WS, R_WS+3))
        a("s_mov_b64 exec, -1")
    def poll(a, vidx, vt, sleep0=6, sleep=2):
        L = a.newlabel("Lpoll")
        a("v_lshlrev_b32 v%d, 7, v%d" % (vidx, vidx))
        a("s_mov_b32 s46, 100000")
        if sleep0: a("s_sleep %d" % sleep0)
        a.label(L)
        a("buffer_load_dword v%d, v%d, s[%d:%d], 0 offen offset:%d sc1" % (vt, vidx, R_WS, R_WS+3, FLAG0))
        a("s_waitcnt vmcnt(0)")
        a("v_cmp_ne_u32 vcc, s%d, v%d" % (S_NONCE, vt))
        a("s_cbranch_vccz %s_x" % L)
        a("s_sleep %d" % sleep)
        a("s_sub_u32 s46, s46, 1"); a("s_cbranch_scc0 %s" % L)
        a.label(L + "_x")

def mfma(d, A, B, C=None, ta="v", tb="v", td="v"):
    c = "0" if C is None else "%s[%d:%d]" % (td, C, C+3)
    return "v_mfma_f32_16x16x32_bf16 %s[%d:%d], %s[%d:%d], %s[%d:%d], %s" % (td, d, d+3, ta, A, A+3, tb, B, B+3, c)

def interleave(a, main, fill, start=0):
    n = len(main) - start; k = 0
    for i, m in enumerate(main):
        a(m)
        if i >= start:
            upto = (len(fill)*(i-start+1) + n - 1)//n
            while k < upto: a(fill[k]); k += 1

def prologue(a):
    a("s_cmp_ge_u32 s2, 256"); a("s_cbranch_scc1 L_end")
    a("s_load_dwordx4 s[4:7], s[0:1], 0")
    a("s_load_dwordx2 s[24:25], s[0:1], 80")
    a("s_load_dwordx2 s[8:9], s[0:1], 16")
    a("s_load_dwordx8 s[12:19], s[0:1], 32")
    a("s_load_dwordx4 s[20:23], s[0:1], 64")
    a("v_and_b32 v%d, 63, v0" % V_LANE)
    a("v_lshrrev_b32 v5, 6, v0")
    a("v_and_b32 v%d, 15, v0" % V_R)
    a("v_readfirstlane_b32 s%d, v5" % S_WAVE)
    a("v_lshrrev_b32 v%d, 4, v%d" % (V_G, V_LANE))
    a("v_lshlrev_b32 v%d, 4, v%d" % (V_L16, V_LANE))
    if "antiloc" in ABL:
        a("s_lshr_b32 s46, s2, 5"); a("s_and_b32 s47, s2, 31"); a("s_lshl_b32 s47, s47, 3"); a("s_or_b32 s2, s46, s47")
    a("s_and_b32 s%d, s2, 7" % S_XCD); a("s_lshr_b32 s%d, s2, 3" % S_SLOT)
    a("s_mov_b32 s%d, 0x3f803f80" % S_ONES)
    if "nopf" not in ABL:
        a("s_getpc_b64 s[46:47]")
        a.label("L_pc")
        a("s_mul_i32 s48, s%d, %d" % (S_SLOT, 20*128)); a("v_lshl_add_u32 v5, v0, 7, s48")
        a("v_cmp_gt_u32 vcc, 20, v0"); a("s_mov_b32 s48, L_last-L_pc"); a("v_cmp_gt_u32 s[48:49], s48, v5"); a("s_and_b64 vcc, vcc, s[48:49]")
        a("s_and_saveexec_b64 s[48:49], vcc"); a("s_cbranch_execz L_pcd")
        a("global_load_dword v253, v5, s[46:47]")
        a.label("L_pcd")
        a("s_mov_b64 exec, -1")
    if a.stamps:
        for k in range(16): a("s_mov_b32 s%d, 0" % (80+k))
        a.stamp("start")

def publish_nonce(a):
    L = a.newlabel("Lpn")
    a("s_xor_b32 s46, s2, 224"); a("s_or_b32 s46, s46, s%d" % S_WAVE); a("s_cmp_lg_u32 s46, 0"); a("s_cbranch_scc1 %s" % L)
    a("v_mov_b32 v252, 0")
    a("buffer_load_dword v250, v252, s[%d:%d], 0 offen sc1" % (R_WS, R_WS+3))
    a("s_mov_b32 s46, 0x9E3779B1")
    a("s_waitcnt vmcnt(0)")
    a("v_mul_lo_u32 v250, v250, s46"); a("v_add_u32 v250, 0x7F4A7C15, v250"); a("v_mov_b32 v251, 1")
    a("s_mov_b64 exec, 1")
    a("buffer_store_dword v250, v252, s[%d:%d], 0 offen sc1" % (R_WS, R_WS+3))
    a("global_store_dwordx2 v252, v[250:251], s[%d:%d] sc1" % (S_DBG, S_DBG+1))
    a("s_mov_b64 exec, -1")
    a.label(L)

def swizzle_setup(a):
    for i in range(9):
        a("v_add_u32 v40, %d, v%d" % (64*i, V_LANE))
        a("v_mul_u32_u24 v%d, 911, v40" % (10+i)); a("v_lshrrev_b32 v%d, 16, v%d" % (10+i, 10+i))
        a("v_mul_u32_u24 v41, 72, v%d" % (10+i)); a("v_sub_u32 v41, v40, v41"); a("v_lshlrev_b32 v%d, 4, v41" % (20+i))
    a("v_lshrrev_b32 v40, 2, v%d" % V_R); a("v_lshl_add_u32 v40, v%d, 3, v40" % V_G); a("v_mul_u32_u24 v40, 1152, v40")
    a("v_and_b32 v41, 3, v%d" % V_R); a("v_lshl_add_u32 v30, v41, 4, v40")
    a("s_lshr_b32 s46, s%d, 1" % S_WAVE); a("s_lshl_b32 s46, s46, 6"); a("s_and_b32 s47, s%d, 1" % S_WAVE); a("s_lshl_b32 s47, s47, 3")
    a("s_add_u32 s46, s46, s47"); a("v_add_u32 v30, s46, v30")

def sw_decode(a, su, p):
    Ln = a.newlabel("Lsw")
    D = 60+3*p
    a("s_cmp_ge_u32 s%d, 54" % su); a("s_cbranch_scc1 %s_big" % Ln)
    a.sdiv(51, 52, su, 18)
    a("s_cmp_eq_u32 s51, 1"); a("s_cselect_b32 s54, s%d, s%d" % (S_W1, S_W2)); a("s_cselect_b32 s55, s%d, s%d" % (S_W1+1, S_W2+1))
    a("s_cmp_eq_u32 s51, 0"); a("s_cselect_b32 s54, s%d, s54" % S_WO); a("s_cselect_b32 s55, s%d, s55" % (S_WO+1))
    a("s_mul_i32 s%d, s51, %d" % (D, SW)); a("s_add_u32 s%d, s%d, %d" % (D, D, WO_S))
    a("s_mul_i32 s53, s%d, 18432" % S_WAVE); a("s_add_u32 s%d, s%d, s53" % (D, D))
    a("s_mov_b32 s%d, 73728" % (D+1))
    a("s_lshl_b32 s56, s52, 5"); a("s_lshl_b32 s53, s%d, 3" % S_WAVE); a("s_add_u32 s56, s56, s53")
    a("s_mov_b32 s57, 0"); a("s_mov_b32 s59, 1152")
    a("s_cmp_lg_u32 s51, 0"); a("s_cbranch_scc1 %s_j" % Ln)
    a("s_mul_i32 s56, s52, 36"); a("s_lshl_b32 s53, s%d, 2" % S_WAVE); a("s_add_u32 s56, s56, s53"); a("s_mov_b32 s57, 16")
    a("s_cmp_lt_u32 s52, 16"); a("s_cbranch_scc1 %s_j" % Ln)
    a("s_sub_u32 s56, s52, 16"); a("s_lshl_b32 s56, s56, 2"); a("s_add_u32 s56, s56, s%d" % S_WAVE)
    a("s_mul_i32 s56, s56, 72"); a("s_add_u32 s56, s56, 16"); a("s_mov_b32 s57, 32")
    a("s_branch %s_j" % Ln)
    a.label(Ln + "_big")
    sw_big(a, su, D)
    a("s_lshl_b32 s56, s52, 5"); a("s_lshl_b32 s53, s%d, 3" % S_WAVE); a("s_add_u32 s56, s56, s53"); a("s_mov_b32 s57, 0")
    a("s_cmp_ge_u32 s51, 8"); a("s_cbranch_scc1 %s_w4" % Ln)
    a("s_mul_i32 s53, s51, 1152"); a("s_add_u32 s54, s%d, s53" % S_W3); a("s_addc_u32 s55, s%d, 0" % (S_W3+1)); a("s_mov_b32 s59, 9216")
    a("s_branch %s_j" % Ln)
    a.label(Ln + "_w4")
    a("s_sub_u32 s53, s51, 8"); a("s_mul_i32 s53, s53, %d" % SW); a("s_add_u32 s54, s%d, s53" % S_W4); a("s_addc_u32 s55, s%d, 0" % (S_W4+1)); a("s_mov_b32 s59, 1152")
    a.label(Ln + "_j")
    a("s_lshl_b32 s53, s52, 10"); a("s_add_u32 s%d, s%d, s53" % (D, D))
    a("s_add_u32 s%d, s%d, %d" % (D+2, su, FS))

def sw_big(a, su, D):
    a("s_sub_u32 s53, s%d, 54" % su); a.sdiv(51, 52, 53, 18)
    a("s_mul_i32 s%d, s51, %d" % (D, 4*9*18432)); a("s_add_u32 s%d, s%d, %d" % (D, D, W3_S))
    a("s_mul_i32 s53, s%d, %d" % (S_WAVE, 9*18432)); a("s_add_u32 s%d, s%d, s53" % (D, D))
    a("s_mov_b32 s%d, 18432" % (D+1))

def sw_issue(a, su, p, lds):
    sw_decode(a, su, p)
    a("s_mov_b32 s%d, s54" % R_A); a("s_mov_b32 s%d, s55" % (R_A+1))
    a("s_mul_i32 s%d, s59, 575" % (R_A+2)); a("s_add_u32 s%d, s%d, 1152" % (R_A+2, R_A+2)); a("s_mov_b32 s%d, 0x20000" % (R_A+3))
    a("s_mul_i32 s53, s%d, 9216" % S_WAVE); a("s_add_u32 m0, s53, %d" % lds)
    for k in range(9):
        a("v_lshrrev_b32 v40, 2, v%d" % (10+k)); a("v_mul_lo_u32 v40, v40, s57"); a("v_add3_u32 v40, v40, v%d, s56" % (10+k))
        a("v_mul_lo_u32 v40, v40, s59"); a("v_add_u32 v40, v40, v%d" % (20+k))
        a("buffer_load_dwordx4 v40, s[%d:%d], 0 offen lds" % (R_A, R_A+3))
        a("s_add_u32 m0, m0, 1024")

def sw_process(a, p, lds):
    a("v_add_u32 v31, %d, v30" % lds)
    for q in range(9):
        for hh in range(2):
            a("ds_read_b64_tr_b16 v[%d:%d], v31 offset:%d" % (44+4*q+2*hh, 45+4*q+2*hh, hh*4608 + 128*q))
    a("s_mov_b32 s53, s%d" % (60+3*p))
    for q in range(9):
        a("s_waitcnt lgkmcnt(%d)" % min(15, 16-2*q))
        a("buffer_store_dwordx4 v[%d:%d], v%d, s[%d:%d], s53 offen sc1" % (44+4*q, 47+4*q, V_L16, R_WS, R_WS+3))
        a("s_add_u32 s53, s53, s%d" % (61+3*p))

def sw_flags(a, ps, mark=False):
    L = a.newlabel("Lswf")
    a("s_cmp_lg_u32 s%d, 0" % S_WAVE); a("s_cbranch_scc1 %s" % L)
    for p in ps: a.set_flag(62+3*p, 40)
    if mark: a.set_mark(40, FP_OFF - 4*224)
    a.label(L)

MK, R_M = 220, 76

def mark_setup(a):
    a.srd(R_M, S_WS, MARK_N, O_OFF)
    for r in range(4): a("v_mov_b32 v%d, -1" % (MK+r))
    a("s_sub_u32 s74, s2, %d" % 224); a("s_lshl_b32 s74, s74, 2"); a("s_add_u32 s74, s74, s%d" % S_WAVE); a("s_mul_i32 s74, s74, %d" % MARK_W)

def mark_fill(a, n):
    L = a.newlabel("Lmk")
    a("s_mov_b32 s75, %d" % n)
    a.label(L)
    a(mark_store(74, 0)); a(mark_store(74, 1024)); a("s_add_u32 s74, s74, 2048"); a("s_waitcnt vmcnt(40)")
    a("s_sub_u32 s75, s75, 1"); a("s_cmp_lg_u32 s75, 0"); a("s_cbranch_scc1 %s" % L)

def mark_store(s, off): return "buffer_store_dwordx4 v[%d:%d], v%d, s[%d:%d], s%d offen offset:%d sc1" % (MK, MK+3, V_L16, R_M, R_M+3, s, off)

def touch_pages(a):
    if "tlb" not in ABL: return
    L = a.newlabel("Ltp")
    a("s_cmp_lg_u32 s%d, 1" % S_WAVE); a("s_cbranch_scc1 %s" % L)
    a("v_lshlrev_b32 v252, 21, v%d" % V_LANE)
    a("buffer_load_dword v253, v252, s[%d:%d], 0 offen offset:64" % (R_WS, R_WS+3))
    for p, size in ((S_W3, BW), (S_W4, BW), (S_OUT, ACT), (S_WO, SW), (S_W1, SW), (S_W2, SW)):
        n = (size - 1 >> 21) + 1
        a("s_mov_b64 exec, %d" % ((1 << n) - 1))
        a("global_load_dword v253, v252, s[%d:%d]" % (p, p+1))
    a("s_mov_b64 exec, -1")
    a.label(L)

def touch_inputs(a, nwg):
    nx, nw = -(-18432//(2*nwg)), -(-15552//(2*nwg))
    a("s_mul_i32 s46, s50, 14"); a("s_add_u32 s46, s46, s51"); a("s_lshl_b32 s46, s46, 1"); a("s_add_u32 s46, s46, s53")
    a("v_lshlrev_b32 v252, 7, v%d" % V_LANE)
    L = a.newlabel("Lti")
    a("s_cmp_lg_u32 s52, 0"); a("s_cbranch_scc1 %s_w" % L)
    a("s_mul_i32 s46, s46, %d" % (128*nx)); a("s_add_u32 s46, s46, 4096"); a("s_mov_b64 exec, 0x%x" % ((1 << nx) - 1) if nx <= 32 else "s_bfm_b64 exec, %d, 0" % nx)
    a("buffer_load_dword v253, v252, s[%d:%d], s46 offen" % (R_A, R_A+3))
    a("s_branch %s" % L)
    a.label(L + "_w")
    a("s_mul_i32 s46, s46, %d" % (128*nw)); a("s_add_u32 s46, s46, 4096"); a("s_bfm_b64 exec, %d, 0" % nw)
    a("buffer_load_dword v253, v252, s[%d:%d], s46 offen" % (R_B, R_B+3))
    a.label(L)
    a("s_mov_b64 exec, -1")

def phase1(a):
    QS = 18**-0.5 * math.log2(math.e)
    a("s_cmp_ge_u32 s%d, 28" % S_SLOT); a("s_cbranch_scc1 L_p1_helper")
    a.sdiv(46, 47, S_SLOT, 7)
    a("s_lshr_b32 s48, s%d, 1" % S_XCD); a("s_lshl_b32 s48, s48, 2"); a("s_add_u32 s50, s48, s46")
    a("s_and_b32 s48, s%d, 1" % S_XCD); a("s_mul_i32 s48, s48, 7"); a("s_add_u32 s51, s48, s47")
    a("s_lshr_b32 s52, s%d, 1" % S_WAVE); a("s_and_b32 s53, s%d, 1" % S_WAVE)
    a("v_lshrrev_b32 v20, 3, v%d" % V_LANE); a("v_and_b32 v21, 7, v%d" % V_LANE)
    a("v_xor_b32 v22, v21, v%d" % V_G); a("v_mul_u32_u24 v20, 1152, v20")
    a("v_lshl_add_u32 v10, v22, 4, v20"); a("v_xor_b32 v22, 4, v22"); a("v_lshl_add_u32 v11, v22, 4, v20")
    a("v_add_u32 v12, %d, v10" % (16*1152 - 2048 + 4096)); a("v_add_u32 v13, %d, v11" % (24*1152 - 3072 + 4096))
    a("v_add_u32 v11, %d, v11" % (8*1152 - 1024 + 4096)); a("v_add_u32 v10, 4096, v10")
    a("v_lshrrev_b32 v20, 1, v%d" % V_R); a("v_xor_b32 v20, v20, v%d" % V_G); a("v_and_b32 v21, 1, v%d" % V_LANE)
    a("v_lshl_add_u32 v21, v20, 1, v21"); a("v_mul_u32_u24 v22, 3456, v%d" % V_G)
    a("v_lshl_add_u32 v14, v21, 4, v22"); a("v_xor_b32 v21, 8, v21"); a("v_lshl_add_u32 v16, v21, 4, v22")
    a("v_add_u32 v15, %d, v14" % (4*3456 - 1024 + 4096)); a("v_add_u32 v17, %d, v16" % (12*3456 - 3072 + 4096))
    a("v_add_u32 v16, %d, v16" % (8*3456 - 2048 + 4096)); a("v_add_u32 v14, 4096, v14")
    a("s_lshl_b32 s54, s50, 2"); a("s_add_u32 s54, s54, s%d" % S_WAVE); a("s_mul_i32 s54, s54, %d" % (32*1152))
    a("s_mul_i32 s55, s%d, %d" % (S_WAVE, 16*3456)); a("s_lshl_b32 s46, s51, 8"); a("s_add_u32 s55, s55, s46")
    a("s_lshl_b32 s56, s%d, 12" % S_WAVE)
    a("s_waitcnt lgkmcnt(0)")
    if WSOFF: a("s_add_u32 s24, s24, %d" % WSOFF); a("s_addc_u32 s25, s25, 0")
    a.srd(R_A, S_X, ACT + 4096, -4096); a.srd(R_B, S_WQKV, 576*3456 + 4096, -4096)
    a.sdiv(46, 47, S_SLOT, 7)
    a("s_and_b32 s48, s%d, 1" % S_XCD); a("s_add_u32 s46, s46, s48"); a("s_lshl_b32 s46, s46, 1"); a("s_add_u32 s46, s46, s47")
    a("s_bfe_u32 s47, s%d, 0x10001" % S_XCD); a("s_add_u32 s46, s46, s47"); a("s_and_b32 s47, s%d, 4" % S_XCD); a("s_lshl_b32 s47, s47, 1"); a("s_add_u32 s46, s46, s47")
    if "rot8" not in ABL: a.sdiv(47, 67, 46, 9)
    else:
        a("s_and_b32 s70, s46, 7"); a("s_mov_b32 s67, 0")
    def dma(sbuf):
        X = ["buffer_load_dwordx4 v%d, s[%d:%d], s68 offen offset:%d lds" % (10+j, R_A, R_A+3, 1024*j) for j in range(4)]
        W = ["buffer_load_dwordx4 v%d, s[%d:%d], s69 offen offset:%d lds" % (14+j, R_B, R_B+3, 1024*j) for j in range(4)]
        X[0] = "s_mov_b32 m0, s%d\ns_lshl_b32 s68, s67, 7\ns_add_u32 s68, s68, s54\n" % sbuf + X[0]
        X[1] = "s_mul_i32 s69, s67, %d\ns_add_u32 s69, s69, s55\n" % (64*3456) + X[1]
        X[2] = "s_add_u32 s67, s67, 1\ns_cmp_eq_u32 s67, 9\ns_cselect_b32 s67, %d, s67\n" % (0 if "rot8" not in ABL else 1) + X[2]
        W[0] = "s_add_u32 m0, s%d, 16384\ns_nop 0\n" % sbuf + W[0]
        return X + W
    for x in dma(56): a(x)
    a("s_add_u32 s56, s56, 32768")
    if "rot8" in ABL: a("s_add_u32 s67, s67, s70")
    if "p1touch" in ABL: touch_inputs(a, 224)
    a.stamp("p1_issue")
    a.srd(R_WS, S_WS, WS_END)
    touch_pages(a)
    a("v_lshrrev_b32 v30, 2, v%d" % V_R); a("v_and_b32 v31, 3, v%d" % V_R)
    a("v_lshl_add_u32 v32, v%d, 3, v30" % V_G); a("v_lshlrev_b32 v32, 8, v32"); a("v_lshl_add_u32 v32, v31, 3, v32")
    a("v_add_u32 v32, 16384, v32")
    a("v_and_b32 v33, 1, v%d" % V_G); a("v_lshl_add_u32 v33, v33, 2, v30")
    a("s_lshl_b32 s46, s53, 2"); a("s_lshl_b32 s47, s52, 1"); a("s_or_b32 s57, s46, s47")
    for t in range(4):
        a("s_xor_b32 s46, s57, %d" % t); a("v_xor_b32 v34, s46, v33"); a("v_lshl_add_u32 v%d, v34, 5, v32" % (20+t))
    a("v_lshrrev_b32 v30, 1, v%d" % V_R); a("v_xor_b32 v30, v30, v%d" % V_G); a("v_lshlrev_b32 v31, 7, v%d" % V_R)
    a("s_lshl_b32 s46, s52, 13"); a("s_lshl_b32 s47, s53, 12"); a("s_add_u32 s46, s46, s47"); a("s_xor_b32 s47, s46, 4096")
    a("v_lshl_add_u32 v32, v30, 4, v31"); a("v_xor_b32 v33, 64, v32")
    a("v_add_u32 v24, s46, v32"); a("v_add_u32 v25, s47, v32"); a("v_add_u32 v26, s46, v33"); a("v_add_u32 v27, s47, v33")
    ACC, CS, ST, ONE = 48, 112, 120, 140
    XB = (144, 160); WB = (176, 192)
    WA, XA = 28, 32
    for r in range(ACC, ONE): a("v_mov_b32 v%d, 0" % r)
    for r in range(4): a("v_mov_b32 v%d, s%d" % (ONE+r, S_ONES))
    def addr(sbase):
        return ["v_add_u32 v%d, %s, v%d" % (WA+i, sbase, 20+i) for i in range(8)]
    def reads(jj):
        o = []
        for T in range(4):
            o.append("ds_read_b128 v[%d:%d], v%d offset:%d" % (XB[jj]+4*T, XB[jj]+4*T+3, XA+2*jj+(T>>1), 2048*(T&1)))
            for hh in range(2):
                o.append("ds_read_b64_tr_b16 v[%d:%d], v%d offset:%d" % (WB[jj]+4*T+2*hh, WB[jj]+4*T+2*hh+1, WA+T, jj*8192+hh*1024))
        return o
    def mm(jj, swap):
        o = []
        for t in range(4):
            for T in range(4):
                d = ACC+16*t+4*T
                o.append(mfma(d, XB[jj]+4*T, WB[jj]+4*t, d) if swap else mfma(d, WB[jj]+4*t, XB[jj]+4*T, d))
            if t < 2:
                d = CS+4*t
                o.append(mfma(d, ONE, WB[jj]+4*t, d) if swap else mfma(d, WB[jj]+4*t, ONE, d))
            x = XB[jj]+4*(t>>1); d = ST+4*t
            o.append(mfma(d, x if t & 1 else ONE, x, d))
        return o
    for x in addr("0"): a(x)
    a("s_lshl_b32 s60, s51, 1"); a("s_add_u32 s60, s60, s53")
    a("s_lshl_b32 s46, s50, 1"); a("s_add_u32 s46, s46, s52"); a("s_lshl_b32 s46, s46, 1"); a("s_add_u32 s47, s46, s53")
    a("s_xor_b32 s46, s47, 1"); a("s_mul_i32 s65, s47, 2304"); a("s_mul_i32 s66, s46, 2304"); a("s_mov_b32 s64, %d" % HPSZ)
    a("s_mov_b32 s58, 0"); a("s_mov_b32 s59, 0")
    a("s_cmp_ge_u32 s51, 9"); a("s_cbranch_scc1 L_p1_v0")
    for swap in (0, 1):
        L = "L_p1_v" if swap else "L_p1_qk"
        a.label(L + "0")
        if not swap:
            a("s_mov_b32 s62, %d" % Q_OFF); a("s_cmp_ge_u32 s60, 9"); a("s_cselect_b32 s61, 144, 0"); a("s_cselect_b32 s62, %d, s62" % K_OFF)
            a("s_cselect_b32 s73, 1.0, %d" % f32(QS))
            a("s_lshl_b32 s63, s60, 4"); a("s_sub_u32 s63, s63, s61")
            for t in range(4):
                a("s_lshl_b32 s46, s52, 1"); a("s_xor_b32 s46, s46, %d" % t); a("s_lshl_b32 s46, s46, 2"); a("s_add_u32 s46, s46, s63")
                a("v_add_u32 v212, s46, v%d" % V_G)
                a("v_mul_u32_u24 v213, 7282, v212"); a("v_lshrrev_b32 v213, 16, v213")
                a("v_mul_u32_u24 v214, 9, v213"); a("v_sub_u32 v212, v212, v214")
                a("v_cmp_lt_u32 vcc, 4, v212"); a("v_subb_co_u32 v214, vcc, v212, 0, vcc")
                a("v_cmp_eq_u32 vcc, 4, v212"); a("v_cndmask_b32 v214, v214, 8, vcc")
                a("v_mul_lo_u32 v213, v213, s64"); a("v_lshl_add_u32 v213, v214, 8, v213"); a("v_lshl_add_u32 v%d, v%d, 4, v213" % (208+t, V_R))
        else:
            a("s_mov_b32 s62, %d" % V_OFF); a("s_sub_u32 s63, s60, 18"); a("s_lshl_b32 s63, s63, 6")
            for t in range(4):
                a("s_lshl_b32 s46, s52, 1"); a("s_xor_b32 s46, s46, %d" % t); a("s_lshl_b32 s46, s46, 4"); a("s_add_u32 s46, s46, s63")
                a("v_add_u32 v212, s46, v%d" % V_R)
                a("v_mul_u32_u24 v213, 1821, v212"); a("v_lshrrev_b32 v213, 16, v213")
                a("v_mul_u32_u24 v214, 36, v213"); a("v_sub_u32 v212, v212, v214")
                a("v_lshl_add_u32 v214, v%d, 4, v212" % V_G)
                a("v_add_u32 v215, 44, v214")
                a("v_cmp_lt_u32 vcc, 19, v212"); a("v_cndmask_b32 v214, v214, v215, vcc")
                a("v_lshl_add_u32 v215, v212, 2, v%d" % V_G); a("v_add_u32 v215, 64, v215")
                a("v_lshrrev_b32 v212, 2, v212"); a("v_cmp_eq_u32 vcc, 4, v212"); a("v_cndmask_b32 v214, v214, v215, vcc")
                a("v_mul_lo_u32 v213, v213, s64"); a("v_lshl_add_u32 v%d, v214, 4, v213" % (208+t))
        a("s_add_u32 s65, s65, s62"); a("s_add_u32 s66, s66, s62")
        for x in dma(56): a(x)
        a("s_add_u32 s56, s56, 32768")
        if "burn" in ABL:
            for r in range(224, 240): a("v_mul_lo_u32 v%d, v%d, s64" % (r, 208 + (r & 3))); a("v_and_b32 v%d, 0xbfffbfff, v%d" % (r, r))
            Lb = a.newlabel("Lburn"); a("s_mov_b32 s75, 9"); a.label(Lb)
            for q in range(16): a(mfma(240+4*(q & 1), 224+4*(q & 3), 224+4*((q >> 2) & 3), 240+4*(q & 1)))
            a("s_sub_u32 s75, s75, 1"); a("s_cmp_lg_u32 s75, 0"); a("s_cbranch_scc1 %s" % Lb)
        a("s_waitcnt vmcnt(8)"); a("s_barrier")
        a.stamp("p1_first")
        for x in reads(0): a(x)
        a.label(L)
        a("s_cmp_ge_u32 s58, 7"); a("s_cbranch_scc1 %s_n" % L)
        for dm in (1, 0):
            d = dma(56) if (dm and "p1nodma" not in ABL) else []
            m = mm(0, swap)
            a("s_waitcnt lgkmcnt(0)")
            interleave(a, m[:14], reads(1))
            interleave(a, m[14:], d[:4])
            a("s_add_u32 s58, s58, 1")
            a("s_add_u32 s59, s59, 32768"); a("s_cmp_eq_u32 s59, 163840"); a("s_cselect_b32 s59, 0, s59")
            a("s_waitcnt vmcnt(%d) lgkmcnt(0)" % (4 if dm else 0))
            a("s_barrier")
            m = mm(1, swap); ad = addr("s59")
            interleave(a, m[:3], ad[4:6] + ad[0:4])
            interleave(a, m[3:15], reads(0) + ad[6:8])
            interleave(a, m[15:], d[4:])
            if dm:
                a("s_add_u32 s56, s56, 32768"); a("s_cmp_ge_u32 s56, 163840"); a("s_cselect_b32 s46, 163840, 0"); a("s_sub_u32 s56, s56, s46")
                a("s_branch %s" % L)
                a.label(L + "_n")
            else:
                a("s_cmp_lt_u32 s58, 9"); a("s_cbranch_scc1 %s_n" % L)
        a.stamp("p1_loop")
        a("s_waitcnt lgkmcnt(0)")
        a("v_and_b32 v40, 1, v%d" % V_R); a("v_cmp_eq_u32 s[74:75], 1, v40")
        a("v_and_b32 v40, 2, v%d" % V_R); a("v_cmp_eq_u32 s[76:77], 2, v40")
        a("v_lshrrev_b32 v40, 2, v%d" % V_R); a("v_cmp_eq_u32 s[78:79], v40, v%d" % V_G)
        a("s_mov_b32 s46, %d" % f32(1.0/576)); a("s_mov_b32 s47, %d" % f32(1e-5))
        for T in range(2):
            s_, q_ = ST+8*T, ST+8*T+4
            a("v_cndmask_b32 v%d, v%d, v%d, s[74:75]" % (q_, q_, q_+1)); a("v_cndmask_b32 v%d, v%d, v%d, s[74:75]" % (q_+2, q_+2, q_+3))
            a("v_mul_f32 v%d, s46, v%d" % (s_, s_))
            a("v_cndmask_b32 v%d, v%d, v%d, s[76:77]" % (q_, q_, q_+2))
            a("v_mul_f32 v42, v%d, v%d" % (s_, s_))
            a("v_fma_f32 v%d, v%d, s46, -v42" % (q_, q_)); a("v_max_f32 v%d, 0, v%d" % (q_, q_)); a("v_add_f32 v%d, s47, v%d" % (q_, q_))
            a("v_rsq_f32 v%d, v%d" % (36+2*T, q_)); a("v_mul_f32 v%d, v%d, -v%d" % (37+2*T, 36+2*T, s_))
        a("s_lshl_b32 s46, s52, 9"); a("s_lshl_b32 s47, s53, 8"); a("s_add_u32 s46, s46, s47")
        a("v_lshl_add_u32 v40, v%d, 3, s46" % V_R)
        a("s_mov_b64 exec, s[78:79]")
        a("ds_write_b64 v40, v[36:37]"); a("ds_write_b64 v40, v[38:39] offset:128")
        a("s_mov_b64 exec, -1")
        a("s_lshl_b32 s47, s57, 6")
        if not swap:
            a("v_lshl_add_u32 v41, v%d, 4, s47" % V_G)
            a("ds_write_b128 v41, v[%d:%d] offset:1024" % (CS, CS+3)); a("ds_write_b128 v41, v[%d:%d] offset:1088" % (CS+4, CS+7))
        else:
            a("v_lshl_add_u32 v41, v%d, 2, s47" % V_R)
            a("ds_write_b32 v41, v%d offset:1024" % CS); a("ds_write_b32 v41, v%d offset:1088" % (CS+4))
        a("s_waitcnt lgkmcnt(0)"); a("s_barrier")
        Ls = L + "_s"
        a("s_cmp_ge_u32 s60, 27"); a("s_cbranch_scc1 %s" % Ls)
        a("v_xor_b32 v42, 256, v40"); a("v_xor_b32 v43, 128, v41")
        if not swap:
            RS, CC = 144, 160
            a("ds_read_b64 v[%d:%d], v40" % (RS, RS+1)); a("ds_read_b64 v[%d:%d], v40 offset:128" % (RS+2, RS+3))
            a("ds_read_b64 v[%d:%d], v42" % (RS+4, RS+5)); a("ds_read_b64 v[%d:%d], v42 offset:128" % (RS+6, RS+7))
            for t in range(4):
                a("ds_read_b128 v[%d:%d], v%d offset:%d" % (CC+4*t, CC+4*t+3, 41 if t < 2 else 43, 1024+64*(t&1)))
            a("s_waitcnt lgkmcnt(0)")
            for T in range(4): a("v_pk_mul_f32 v[%d:%d], v[%d:%d], s[72:73] op_sel:[0,1] op_sel_hi:[1,1]" % (RS+2*T, RS+2*T+1, RS+2*T, RS+2*T+1))
            for t in range(4):
                for T in range(4):
                    d = ACC+16*t+4*T
                    for h in range(2):
                        a("v_pk_mul_f32 v[216:217], v[%d:%d], v[%d:%d] op_sel:[0,1] op_sel_hi:[1,1]" % (CC+4*t+2*h, CC+4*t+2*h+1, RS+2*T, RS+2*T+1))
                        a("v_pk_fma_f32 v[%d:%d], v[%d:%d], v[%d:%d], v[216:217] op_sel_hi:[1,0,1]" % (d+2*h, d+2*h+1, d+2*h, d+2*h+1, RS+2*T, RS+2*T+1))
                    e = ACC+16*t+8*(T>>1)+2*(T&1)
                    a("v_cvt_pk_bf16_f32 v%d, v%d, v%d" % (e, d, d+1)); a("v_cvt_pk_bf16_f32 v%d, v%d, v%d" % (e+1, d+2, d+3))
                    if T & 1:
                        a("buffer_store_dwordx4 v[%d:%d], v%d, s[%d:%d], s%d offen sc1" % (e-2, e+1, 208+t, R_WS, R_WS+3, 65+(T>>1)))
        else:
            RS, CC = 144, 176
            a("v_lshl_add_u32 v40, v%d, 5, s46" % V_G); a("v_xor_b32 v42, 256, v40")
            for T in range(4):
                for h in range(2):
                    a("ds_read_b128 v[%d:%d], v%d offset:%d" % (RS+8*T+4*h, RS+8*T+4*h+3, 40 if T < 2 else 42, 128*(T&1)+16*h))
            for t in range(4):
                a("ds_read_b32 v%d, v%d offset:%d" % (CC+t, 41 if t < 2 else 43, 1024+64*(t&1)))
            a("s_waitcnt lgkmcnt(0)")
            for t in range(4):
                for T in range(4):
                    d = ACC+16*t+4*T
                    for i in range(4):
                        a("v_mul_f32 v%d, v%d, v%d" % (216+i, RS+8*T+2*i+1, CC+t))
                    for i in range(4):
                        a("v_fma_f32 v%d, v%d, v%d, v%d" % (d+i, d+i, RS+8*T+2*i, 216+i))
                    e = ACC+16*t+8*(T>>1)+2*(T&1)
                    a("v_cvt_pk_bf16_f32 v%d, v%d, v%d" % (e, d, d+1)); a("v_cvt_pk_bf16_f32 v%d, v%d, v%d" % (e+1, d+2, d+3))
                    if T & 1:
                        a("buffer_store_dwordx4 v[%d:%d], v%d, s[%d:%d], s%d offen sc1" % (e-2, e+1, 208+t, R_WS, R_WS+3, 65+(T>>1)))
        a.label(Ls)
        if not swap: a("s_branch L_p1_pub")
    a.label("L_p1_pub")
    if "d_p1" in ABL: a("s_sleep 64")
    a.stamp("p1_stores")
    L = a.newlabel("Lp1f")
    a("s_cmp_lg_u32 s%d, 0" % S_WAVE); a("s_cbranch_scc1 %s_a" % L)
    a.get_nonce(36)
    a.label(L + "_a")
    a("s_waitcnt vmcnt(0)"); a("s_barrier")
    a("s_cmp_lg_u32 s%d, 0" % S_WAVE); a("s_cbranch_scc1 L_p1_done")
    a("s_lshl_b32 s46, s50, 4"); a("s_add_u32 s46, s46, s51"); a("s_add_u32 s46, s46, %d" % F1)
    a.set_flag(46, 36)
    a("s_branch L_p1_done")
    a.label("L_p1_helper")
    if "d_h1" in ABL: a("s_sleep 64")
    swizzle_setup(a)
    a("s_lshl_b32 s48, s%d, 2" % S_XCD); a("s_add_u32 s48, s48, s%d" % S_SLOT); a("s_sub_u32 s48, s48, 28")
    a("s_waitcnt lgkmcnt(0)")
    if WSOFF: a("s_add_u32 s24, s24, %d" % WSOFF); a("s_addc_u32 s25, s25, 0")
    a.srd(R_WS, S_WS, WS_END)
    publish_nonce(a)
    a("s_add_u32 s49, s48, 32"); a("s_cmp_lt_u32 s49, 54"); a("s_cselect_b32 s49, s49, s48")
    B = 36864
    mark_setup(a)
    if MK0: mark_fill(a, MK0)
    sw_issue(a, 48, 0, 0); sw_issue(a, 49, 1, B)
    if MK1: mark_fill(a, MK1)
    a("s_waitcnt vmcnt(0)"); a("s_barrier")
    sw_process(a, 0, 0); sw_process(a, 1, B)
    L = a.newlabel("Lhn"); a("s_cmp_lg_u32 s%d, 0" % S_WAVE); a("s_cbranch_scc1 %s" % L); a.get_nonce(36); a.label(L)
    a("s_waitcnt vmcnt(0)"); a("s_barrier")
    sw_flags(a, (0, 1))
    a.stamp("h_small")
    if MK0 + MK1 < MKG: mark_fill(a, MKG - MK0 - MK1)
    a("s_waitcnt vmcnt(0)"); a("s_barrier")
    sw_flags(a, (), mark=True)
    a.label("L_p1_done")
    a.stamp("p1_done")

def generate(stop=99, stamps=False):
    a = G(stop, stamps)
    prologue(a)
    phase1(a)
    from phases import phase2, phase345, phase6
    if stop >= 2: phase2(a)
    if stop >= 3: phase345(a)
    if stop >= 6: phase6(a)
    a.label("L_fin")
    a.stamp_out()
    a.label("L_end")
    a("s_endpgm")
    for x in a.stubs: a(x)
    a.label("L_last")
    body, nops = fix_hazards(a.lines)
    return body, nops

HEADER = """; Fused transformer block (LN, QKV, sliding-window attention, Wo, shift-MLP, channel MLP) as one persistent kernel.
; 256 workgroups of 4 waves, one per CU; phases hand data over through d_ws with write-through stores and flags.
; @launch grid=(256,1,1) block=(256,1,1) lds=163840
.amdgcn_target "amdgcn-amd-amdhsa--gfx950"
.text
.globl %s
.p2align 8
.type %s,@function
%s:
""" % (KN, KN, KN)
FOOTER = """.section .rodata,"a"
.p2align 6
.amdhsa_kernel %s
  .amdhsa_next_free_vgpr 512
  .amdhsa_next_free_sgpr 102
  .amdhsa_accum_offset 256
  .amdhsa_group_segment_fixed_size 0
  .amdhsa_kernarg_size 88
  .amdhsa_user_sgpr_count 2
  .amdhsa_user_sgpr_kernarg_segment_ptr 1
  .amdhsa_system_sgpr_workgroup_id_x 1
.end_amdhsa_kernel
""" % KN

def main():
    import argparse
    p = argparse.ArgumentParser()
    p.add_argument("--stop", type=int, default=99); p.add_argument("--stamps", default=""); p.add_argument("--wsoff", type=int, default=0); p.add_argument("--rt", action="store_true")
    p.add_argument("-o", default="k.s")
    o = p.parse_args()
    global WSOFF, CLK
    if o.rt: CLK = 's_memrealtime'
    WSOFF = o.wsoff << 20
    st = STAMPSETS.get(o.stamps, o.stamps.split(',')) if o.stamps else None
    if st:
        st = ['start'] + list(st) + ['end']; assert len(st) <= 16
        open(o.o[:-2] + '.stamps', 'w').write(','.join(st))
    body, nops = generate(o.stop, st)
    text = HEADER + "\n".join(("" if l.endswith(":") else "  ") + l for l in body) + "\n" + FOOTER
    open(o.o, "w").write(text)
    build(o.o, o.o[:-2] + ".co", KN)
    n = sum(1 for l in body if l and not l.endswith(":"))
    print("instructions", n, "nop states added", nops)
    seen = set()
    for nm, takes in TRACES.items():
        errs = check_waits(body, takes)
        for e in errs[:4]:
            if e not in seen: print("WAIT[%s]" % nm, e); seen.add(e)

STAMPSETS = {
 "all": "p1_first p1_loop p1_done p2_ready p2_loaded p2_done p3_ready p4_ready p5_ready p5_done p6_ready p6_x p6_a p6_b".split(),
 "p1": "p1_issue p1_first p1_loop p1_stores p1_done p2_ready p2_loaded p2_done p3_ready p4_ready p5_ready p5_done p6_ready p6_x".split(),
 "p3k": "p2_done p3_ready p3_k0 p3_k9 p3_gemm p4_ready p4_k0 p4_k9 p4_gemm p5_ready p5_k0 p5_k9 p5_gemm".split(),
 "hop": "p1_stores p1_done p2_ready p2_loaded p2_done p3_ready p3_epi p4_ready p4_epi p5_ready p5_epi p6_ready p6_x p6_b".split(),
 "p6": "p6_x p6_p0 p6_a p6_s0 p6_s1 p6_s5 p6_s6 p6_s7 p6_b p7_ready".split(),
 "h": "h_small p1_stores p1_done p2_setup p2_ready p2_loaded p2_done".split(),
 "p4k": "p3_k0 p3_k9 p3_gemm p3_epi p4_ready p4_k0 p4_k9 p4_gemm p4_epi p5_ready p5_k0 p5_k9 p5_gemm p5_epi".split(),
 "p6x": "p2_done h_w3 h_w4 p5_gemm p5_epi p5_done p6_ready p6_st p6_x9 p6_x17 p6_x p6_p0".split(),
 "crit": "p1_done p2_loaded p2_done h_w3 h_w4 p5_epi p6_ready p6_st p6_x p6_a p6_s6 p6_s7 p6_b".split(),
 "p3": "p2_done p3_dma p3_drain p3_ready p3_gemm p3_epi p4_dma p4_drain p4_ready p4_gemm p4_epi p5_drain p5_ready p5_gemm".split(),
}
TRACES = {"w012": {"L_p7_main": True, "L_p1_qk_n": [False,True,False]}, "h3": {"L_p3_helper": True, "L_p1_qk_n": [False,True,False]}, "edge": {"L_p2_edge": True, "L_p1_qk_n": [False,True,False]}, "qk": {"L_p1_qk_n": [False,False,True,True,False]}, "v": {"L_p1_v0": True, "L_p1_v_n": [False,False,True,True,False]}, "helper": {"L_p1_helper": True}}

if __name__ == "__main__":
    sys.modules["gen"] = sys.modules["__main__"]
    main()
```

```python
from gen import *

NEG = 0xF149F2CA
SLEEP0 = dict(p2=0, p3=8, p4=0, p5=0, p6=18)
for _kv in os.environ.get('SLEEP', '').split(','):
    if _kv: SLEEP0[_kv.split('=')[0]] = int(_kv.split('=')[1])

W_LDS = 53248
AW1, AW2 = 40, 148
XT = 232
PA, PS, R_C = 244, (3, 27, 45), R_B

def pf_lds(i):
    gq, k = divmod(i, 9)
    pre = ("s_mul_i32 s58, s79, %d\ns_add_u32 s58, s58, s73\ns_add_u32 m0, s58, %d\n" % (gq, 1024*k)) if k == 0 or i == 2 else ""
    post = "\ns_add_u32 m0, m0, 1024" if k < 8 and i != 1 else ""
    return pre + "buffer_load_dwordx4 v%d, s[%d:%d], s%d offen sc1 lds" % (PA+k, R_C, R_C+3, PS[gq]) + post

def roles345(a):
    a("s_lshr_b32 s46, s%d, 3" % S_SLOT); a("s_lshl_b32 s74, s%d, 2" % S_XCD); a("s_add_u32 s74, s74, s46"); a("s_add_u32 s75, s%d, 6" % S_SLOT); a("s_and_b32 s75, s75, 7")
    a("s_lshl_b32 s76, s74, 2"); a("s_add_u32 s76, s76, s%d" % S_WAVE)

def phase2(a):
    KL_, VL_ = 0, 27648
    a("s_lshr_b32 s50, s%d, 1" % S_SLOT); a("s_and_b32 s51, s%d, 1" % S_SLOT); a("s_lshl_b32 s46, s%d, 1" % S_XCD); a("s_add_u32 s51, s51, s46")
    a("s_mul_i32 s52, s51, %d" % HPSZ)
    a("s_add_u32 s46, s52, %d" % K_OFF); a.srd_s(R_A, S_WS, HPSZ, 46)
    a("s_add_u32 s46, s52, %d" % V_OFF); a.srd_s(R_B, S_WS, HPSZ, 46)
    a("s_mul_i32 s46, s50, 9216"); a("s_sub_u32 s46, s46, 18432"); a("s_lshl_b32 s47, s%d, 10" % S_WAVE); a("s_add_u32 s46, s46, s47")
    a("v_add_u32 v10, s46, v%d" % V_L16)
    for i in range(1, 7): a("v_add_u32 v%d, %d, v10" % (10+i, 4096*i))
    a("s_lshl_b32 s46, s50, 3"); a("s_lshl_b32 s53, s%d, 1" % S_WAVE); a("s_add_u32 s53, s53, s46")
    a("s_mul_i32 s54, s53, 1152"); a("s_add_u32 s54, s54, s52"); a("s_add_u32 s54, s54, %d" % Q_OFF)
    a("v_lshlrev_b32 v18, 4, v%d" % V_R)
    a("s_mul_i32 s46, s%d, 2304" % S_WAVE)
    a("v_add_u32 v20, s46, v%d" % V_L16)
    a("s_add_u32 s47, s46, 2048"); a("v_add_u32 v21, s47, v18")
    a("s_add_u32 s47, s46, %d" % VL_); a("v_add_u32 v22, s47, v%d" % V_L16)
    a("v_lshl_add_u32 v23, v%d, 2, v%d" % (V_R, V_G)); a("s_add_u32 s47, s47, 2048"); a("v_lshl_add_u32 v23, v23, 4, s47")
    for i in range(4):
        a("v_lshl_add_u32 v24, v%d, 2, %d" % (V_G, i)); a("v_cmp_gt_u32 s[%d:%d], v24, v%d" % (60+2*i, 61+2*i, V_R))
    a("v_cmp_eq_u32 s[68:69], 0, v%d" % V_G)
    a("v_mov_b32 v25, 0x%x" % NEG)
    for r in range(4): a("v_mov_b32 v%d, -1" % (228+r))
    a("v_and_b32 v225, 31, v%d" % V_LANE); a("v_lshlrev_b32 v225, 2, v225")
    VLA = 0
    for r in range(36): a("v_accvgpr_write_b32 a%d, s%d" % (VLA+r, S_ONES))
    roles345(a)
    a("s_mul_i32 s46, s75, 110592"); a("s_mul_i32 s47, s%d, 27648" % S_WAVE); a("s_add_u32 s70, s46, s47"); a("s_add_u32 s70, s70, %d" % WO_S)
    a("s_add_u32 s71, s70, %d" % SW); a("s_add_u32 s72, s71, %d" % SW)
    a("s_cmp_ge_u32 s75, 6"); a("s_cbranch_scc1 L_p2_hs")
    a("s_add_u32 s73, s47, %d" % W_LDS); a("s_mov_b32 s79, 9216")
    for gq in range(3): a("s_add_u32 s%d, s70, %d" % (PS[gq], 9216*gq))
    for i in range(9): a("v_add_u32 v%d, %d, v%d" % (PA+i, 1024*i, V_L16))
    a("s_mov_b32 s10, s%d" % S_WS); a("s_mov_b32 s11, s%d" % (S_WS+1)); a("s_mov_b32 s26, %d" % WS_END)
    a("s_branch L_p2_hd")
    a.label("L_p2_hs")
    a("s_mov_b32 s71, 0x70000000")
    a("s_mul_i32 s47, s%d, 9216" % S_WAVE); a("s_add_u32 s73, s47, %d" % W_LDS); a("s_mov_b32 s79, 36864")
    a("s_lshl_b32 s48, s74, 1"); a("s_add_u32 s48, s48, s75"); a("s_sub_u32 s48, s48, 6"); a("s_mul_i32 s48, s48, 3")
    a("s_mov_b32 s10, s%d" % S_W3); a("s_mov_b32 s11, s%d" % (S_W3+1)); a("s_mov_b32 s78, 9216")
    a("s_cmp_lt_u32 s48, 144"); a("s_cselect_b32 s26, %d, 0" % BW)
    for gq in range(3):
        a("s_add_u32 s46, s48, %d" % gq)
        a.sdiv(47, 56, 46, 18)
        a("s_lshl_b32 s56, s56, 2"); a("s_add_u32 s56, s56, s%d" % S_WAVE); a("s_mul_i32 s56, s56, %d" % (8*9216))
        a("s_mul_i32 s47, s47, 1152"); a("s_add_u32 s%d, s56, s47" % (PS[gq]))
    for i in range(9):
        a("v_add_u32 v24, %d, v%d" % (64*i, V_LANE)); a("v_mul_u32_u24 v26, 911, v24"); a("v_lshrrev_b32 v26, 16, v26")
        a("v_mul_u32_u24 v27, 72, v26"); a("v_sub_u32 v27, v24, v27"); a("v_mul_lo_u32 v26, v26, s78"); a("v_lshl_add_u32 v%d, v27, 4, v26" % (PA+i))
    a.label("L_p2_hd")
    a("v_mul_u32_u24 v7, 1152, v%d" % V_R); a("v_lshl_add_u32 v7, v%d, 4, v7" % V_G)
    a("s_mul_i32 s46, s76, 18432"); a("s_mul_i32 s47, s75, 192"); a("s_add_u32 s77, s46, s47")
    a("s_cmp_ge_u32 s75, 6"); a("s_cselect_b32 s77, 0x70000000, s77")
    L = a.newlabel("Lp2w")
    a("s_cmp_lg_u32 s%d, 0" % S_WAVE); a("s_cbranch_scc1 %s" % L)
    a("v_lshrrev_b32 v30, 2, v%d" % V_LANE); a("v_min_u32 v30, 2, v30"); a("v_add_u32 v30, s50, v30"); a("v_subrev_u32 v30, 2, v30"); a("v_max_i32 v30, 0, v30")
    a("v_bfe_u32 v31, v%d, 1, 1" % V_LANE); a("v_add_u32 v31, 1, v31"); a("v_cmp_gt_u32 vcc, 12, v%d" % V_LANE); a("v_cndmask_b32 v31, 0, v31, vcc")
    a("v_mul_u32_u24 v31, 576, v31"); a("v_and_b32 v32, 1, v%d" % V_LANE); a("v_mul_u32_u24 v32, 35, v32")
    a("s_mul_i32 s46, s51, 36"); a("v_add3_u32 v31, v31, v32, s46"); a("v_lshrrev_b32 v31, 7, v31")
    a("v_lshl_add_u32 v30, v30, 4, v31"); a("v_add_u32 v30, %d, v30" % F1)
    a.stamp("p2_setup")
    a.poll(30, 31, sleep0=SLEEP0["p2"])
    a.label(L)
    a("s_barrier")
    a("v_min_u32 v38, 53, v%d" % V_LANE); a("v_add_u32 v38, %d, v38" % FS); a("v_lshlrev_b32 v38, 7, v38")
    fsq = "buffer_load_dword v39, v38, s[%d:%d], 0 offen offset:%d sc1" % (R_WS, R_WS+3, FLAG0)
    a.stamp("p2_ready")
    QR = 26
    a("s_lshl_b32 s46, s%d, 10" % S_WAVE)
    for R, base in ((R_A, KL_), (R_B, VL_)):
        for i in range(7):
            Ls = a.newlabel("Lp2d")
            if i == 6: a("s_cmp_eq_u32 s%d, 3" % S_WAVE); a("s_cbranch_scc1 %s" % Ls)
            a("s_add_u32 m0, s46, %d" % (base + 4096*i))
            a("buffer_load_dwordx4 v%d, s[%d:%d], 0 offen sc1 lds" % (10+i, R, R+3))
            if i == 6: a.label(Ls)
        if R == R_A:
            a("buffer_load_dwordx4 v[%d:%d], v%d, s[%d:%d], s54 offen sc1" % (QR, QR+3, V_L16, R_WS, R_WS+3))
            a("buffer_load_dwordx4 v[%d:%d], v18, s[%d:%d], s54 offen offset:2048 sc1" % (QR+4, QR+7, R_WS, R_WS+3))
            a("buffer_load_dwordx4 v[%d:%d], v%d, s[%d:%d], s54 offen offset:1024 sc1" % (QR+8, QR+11, V_L16, R_WS, R_WS+3))
            a(fsq)
    a.srd(R_A, S_X, ACT)
    a("s_mov_b32 s%d, s10" % R_C); a("s_mov_b32 s%d, s11" % (R_C+1)); a("s_mov_b32 s%d, s26" % (R_C+2)); a("s_mov_b32 s%d, 0x20000" % (R_C+3))
    QF = 40
    a("s_waitcnt vmcnt(6)")
    for hd in range(2):
        for qt in range(2):
            q = QF + 12*hd + 6*qt
            for h in range(2): a("v_mov_b32 v%d, v%d" % (q+2+h, QR+8*hd+2*qt+h))
            a("v_cndmask_b32 v%d, 0, v%d, s[68:69]" % (q+hd, QR+4+2*qt+hd)); a("v_mov_b32 v%d, 0" % (q+1-hd))
            for h in range(2): a("v_mov_b32 v%d, v%d" % (q+4+h, q+h))
    MF, ML = 8, 12
    for i in range(4):
        a("v_cndmask_b32 v%d, v25, 0, s[%d:%d]" % (MF+i, 60+2*i, 61+2*i)); a("v_cndmask_b32 v%d, 0, v25, s[%d:%d]" % (ML+i, 60+2*i, 61+2*i))
    a("s_lshl_b32 s55, s50, 3"); a("s_lshl_b32 s46, s%d, 1" % S_WAVE); a("s_add_u32 s55, s55, s46"); a("s_sub_u32 s55, 16, s55")
    a("s_lshl_b32 s56, s2, 2"); a("s_add_u32 s56, s56, s%d" % S_WAVE); a("s_mul_i32 s56, s56, 5120"); a("s_min_u32 s56, s56, %d" % (WO_S - T_OFF - 5120)); a("s_add_u32 s56, s56, %d" % T_OFF)
    L = a.newlabel("Lfs")
    a("s_cmp_lg_u32 s%d, 0" % S_WAVE); a("s_cbranch_scc1 %s" % L)
    a("v_cmp_ne_u32 vcc, s%d, v39" % S_NONCE); a("s_cbranch_vccz %s" % L)
    a("v_lshrrev_b32 v38, 7, v38")
    a.poll(38, 39, sleep0=0)
    a.label(L)
    a("s_waitcnt vmcnt(6)"); a("s_barrier")
    a.stamp("p2_loaded")
    a("s_cmp_lt_u32 s50, 2"); a("s_cbranch_scc1 L_p2_edge")
    M, NM, CZ = 16, 216, 26
    KF = 64
    S2, P, VM = 136, 168, 184
    S1 = S2
    OM, OL, R_, OUT = 192, 200, 32, 208
    marks = "s_mov_b32 s46, %d\nbuffer_load_dword v224, v225, s[%d:%d], s46 offen sc1" % (FP_OFF, R_WS, R_WS+3)
    def prefetch():
        o = [pf_lds(i) for i in range(2, 27)]
        for jj in range(3): o.append("buffer_load_dwordx4 v[%d:%d], v7, s[%d:%d], s77 offen offset:%d" % (XT+4*jj, XT+4*jj+3, R_A, R_A+3, 64*jj))
        for sb, ab in ((71, AW1),):
            for i in range(27):
                pre = "s_add_u32 s59, s%d, %d\n" % (sb, 1024*i) if i % 4 == 0 else ""
                o.append(pre + "buffer_load_dwordx4 a[%d:%d], v%d, s[%d:%d], s59 offen offset:%d sc1" % (ab+4*i, ab+4*i+3, V_L16, R_WS, R_WS+3, 1024*(i & 3)))
        return o
    for edge in (0, 1):
      if edge: a.label("L_p2_edge")
      pf = prefetch()
      if "x_nopf" in ABL: pf = ["s_nop 0"]*55
      if "x_nomk" in ABL: pf = ["s_nop 0" if "store" in x else x for x in pf]
      if "x_now1" in ABL: pf = ["s_nop 0" if " a[" in x else x for x in pf]
      def take(n):
          o = pf[:n]; del pf[:n]; return o
      for head in range(2):
        def Q(qt, t): return QF + 12*head + 6*qt + 2*(t & 1)
        def K(t): return KF + 4*t
        def kread(m):
            o = ["ds_read_b128 v[%d:%d], v20 offset:%d" % (KF+8*m+2, KF+8*m+5, 2304*m + 1024*head)]
            if head == 0: o += ["ds_read_b64 v[%d:%d], v21 offset:%d" % (KF+8*m+6*b, KF+8*m+6*b+1, 2304*m + 8*b) for b in range(2)]
            return o
        def vleft(m): return "ds_read_b128 a[%d:%d], v23 offset:%d" % (VLA+4*m, VLA+4*m+3, 2304*m + 128*head)
        def vmain(m): return "ds_read_b128 v[%d:%d], v22 offset:%d" % (VM+4*(m & 1), VM+4*(m & 1)+3, 2304*m + 1024*head)
        def has(qt, t): return (t <= 16) if qt == 0 else (t >= 1)
        def mask(reg, qt, t):
            o = []
            for i in range(4):
                if t == qt: o.append("v_cndmask_b32 v%d, v25, v%d, s[%d:%d]" % (reg+i, reg+i, 60+2*i, 61+2*i))
                if t == 16+qt: o.append("v_cndmask_b32 v%d, v%d, v25, s[%d:%d]" % (reg+i, reg+i, 60+2*i, 61+2*i))
            return o
        def switch(t, moves):
            Ls = a.newlabel("Lsw")
            a("s_cmp_eq_u32 s55, %d" % t); a("s_cbranch_scc0 %s" % Ls)
            for x in moves: a(x)
            a.label(Ls)
        if head:
            L = a.newlabel("Lmk")
            a("s_cmp_lg_u32 s%d, 0" % S_WAVE); a("s_cbranch_scc1 %s_x" % L)
            a("s_mov_b32 s47, 100000"); a("s_waitcnt vmcnt(%d)" % (npf0 - len(pf)))
            a.label(L)
            a("v_cmp_ne_u32 vcc, s%d, v224" % S_NONCE)
            a("s_cbranch_vccz %s_x" % L)
            a("s_sleep 2"); a(marks); a("s_waitcnt vmcnt(0)")
            a("s_sub_u32 s47, s47, 1"); a("s_cbranch_scc0 %s" % L)
            a.label(L + "_x")
            a("s_waitcnt vmcnt(20)"); a("s_barrier")
            publish2(a, 224)
        AH = 3
        for m in range(AH):
            for x in kread(m): a(x)
        a("v_mov_b32 v%d, v25" % M); a("v_mov_b32 v%d, v25" % (M+1))
        if edge:
            for i in range(4): a("v_mov_b32 v%d, v25" % (CZ+i))
        def c1(qt, t): return CZ if edge else MF if t == qt else ML if t == 16+qt else None
        def maxes(t):
            o = []
            for qt in range(2):
                if not has(qt, t): continue
                s = S1 + 8*(t % 3) + 4*qt
                if edge: o += mask(s, qt, t)
                o.append("v_max3_f32 v%d, v%d, v%d, v%d" % (M+qt, s, s+1, M+qt))
            for qt in range(2):
                if not has(qt, t): continue
                s = S1 + 8*(t % 3) + 4*qt
                o.append("v_max3_f32 v%d, v%d, v%d, v%d" % (M+qt, s+2, s+3, M+qt))
            return o
        for t in range(18):
            if t % 2 == 0:
                if edge: switch(t, ["v_mov_b32 v%d, 0" % (CZ+i) for i in range(4)])
                a("s_waitcnt lgkmcnt(%d)" % (len(kread(0))*min(AH-1, 8 - t//2)))
            ms = [mfma(S1+8*(t % 3)+4*qt, K(t), Q(qt, t), c1(qt, t)) for qt in range(2) if has(qt, t)]
            fill = (kread(t//2+AH) if t % 2 == 0 and t//2+AH < 9 else []) + (maxes(t-2) if t >= 2 else []) + (take(1) if t % 3 == 1 and head else [])
            interleave(a, ms, fill)
        if head == 0:
            a("s_waitcnt vmcnt(%d)" % (55 - len(pf))); a("s_barrier")
            for q in range(5):
                if q == 4: a("s_add_u32 s56, s56, 4096")
                if "x_nomk" not in ABL: a("buffer_store_dwordx4 v[228:231], v%d, s[%d:%d], s56 offen offset:%d sc1" % (V_L16, R_WS, R_WS+3, 1024*(q & 3)))
            npf0 = len(pf); a(marks)
        a("s_mov_b32 exec_lo, 0x00030003"); a("s_mov_b32 exec_hi, 0x00030003")
        for m in range(9): a(vleft(m))
        a("s_mov_b64 exec, -1")
        a(vmain(0))
        for x in maxes(16) + maxes(17): a(x)
        for sw in ("v_permlane32_swap_b32", "v_permlane16_swap_b32"):
            for qt in range(2): a("v_mov_b32 v%d, v%d" % (30+qt, M+qt))
            for qt in range(2): a("%s v%d, v%d" % (sw, M+qt, 30+qt))
            for qt in range(2): a("v_max_f32 v%d, v%d, v%d" % (M+qt, M+qt, 30+qt))
        negs = ["v_sub_f32 v%d, 0, v%d" % (NM+4*qt+i, M+qt) for qt in range(2) for i in range(4)]
        if edge:
            for i in range(8): a("v_mov_b32 v%d, v25" % (NM+i))
        else:
            for x in negs: a(x)
        def qk(m):
            return [mfma(S2+16*(m & 1)+8*qt+4*b, K(2*m+b), Q(qt, b), NM+4*qt) for qt in range(2) for b in range(2) if has(qt, 2*m+b)]
        def pv(m):
            o = []
            for qt in range(2):
                p = P+8*(m & 1)+4*qt
                o.append(mfma(OM+4*qt, VM+4*(m & 1), p, None if m == 0 else OM+4*qt))
                o.append(mfma(OL+4*qt, VLA+4*m, p, None if m == 0 else OL+4*qt, ta="a"))
            return o
        for x in qk(0): a(x)
        for m in range(9):
            if edge and m < 8: switch(2*m+2, negs)
            mf = (qk(m+1) if m < 8 else []) + (pv(m-1) if m else [])
            va = []
            ld = take(3 if (m % 3 or head == 0) else 2)
            for qt in range(2):
                p = P+8*(m & 1)+4*qt
                for b in range(2):
                    s = S2+16*(m & 1)+8*qt+4*b
                    if has(qt, 2*m+b):
                        va += mask(s, qt, 2*m+b)
                        va += ["v_exp_f32 v%d, v%d" % (s+i, s+i) for i in range(4)]
                    if ld and (b == 0 or qt == 0): va.append(ld.pop(0))
                for b in range(2):
                    s = S2+16*(m & 1)+8*qt+4*b
                    if has(qt, 2*m+b):
                        va += ["v_cvt_pk_bf16_f32 v%d, v%d, v%d" % (p+2*b+h, s+2*h, s+2*h+1) for h in range(2)]
                    else:
                        va += ["v_mov_b32 v%d, 0" % (p+2*b+h) for h in range(2)]
            if m: a("s_waitcnt lgkmcnt(1)")
            interleave(a, mf, va)
            if m < 8: a(vmain(m+1))
        a("s_waitcnt lgkmcnt(0)")
        for x in pv(8): a(x)
        if head == 1:
            assert not pf
            a("s_mul_i32 s54, s53, 18432"); a("s_add_u32 s54, s54, %d" % O_OFF)
            a("s_lshl_b32 s46, s51, 10"); a("s_add_u32 s58, s46, s54"); a("s_add_u32 s59, s58, 18432")
            a("s_lshr_b32 s46, s51, 3"); a("s_add_u32 s46, s46, 16"); a("s_lshl_b32 s46, s46, 10"); a("s_add_u32 s54, s54, s46")
            a("s_and_b32 s46, s51, 7"); a("s_lshr_b32 s46, s46, 1"); a("s_lshl_b32 s46, s46, 8"); a("s_add_u32 s54, s54, s46")
            a("s_and_b32 s46, s51, 1"); a("s_lshl_b32 s46, s46, 3"); a("s_add_u32 s54, s54, s46"); a("s_add_u32 s47, s54, 18432")
        for qt in range(2): a("v_rcp_f32 v%d, v%d" % (30+qt, OL+4*qt+3))
        for qt in range(2):
            for i in range(4): a("v_mul_f32 v%d, v%d, v%d" % (OM+4*qt+i, OM+4*qt+i, 30+qt))
            for i in range(2): a("v_mul_f32 v%d, v%d, v%d" % (OL+4*qt+i, OL+4*qt+i, 30+qt))
        for qt in range(2):
            for h in range(2): a("v_cvt_pk_bf16_f32 v%d, v%d, v%d" % (OUT+4*qt+2*head+h, OM+4*qt+2*h, OM+4*qt+2*h+1))
            a("v_cvt_pk_bf16_f32 v%d, v%d, v%d" % (R_+2*qt+head, OL+4*qt, OL+4*qt+1))
      if not edge: a("s_branch L_p2_out")
    a.label("L_p2_out")
    a("buffer_store_dwordx4 v[%d:%d], v%d, s[%d:%d], s58 offen sc1" % (OUT, OUT+3, V_L16, R_WS, R_WS+3))
    a("buffer_store_dwordx4 v[%d:%d], v%d, s[%d:%d], s59 offen sc1" % (OUT+4, OUT+7, V_L16, R_WS, R_WS+3))
    a("s_mov_b64 exec, 0xffff")
    a("buffer_store_dwordx2 v[%d:%d], v%d, s[%d:%d], s54 offen sc1" % (R_, R_+1, V_L16, R_WS, R_WS+3))
    a("buffer_store_dwordx2 v[%d:%d], v%d, s[%d:%d], s47 offen sc1" % (R_+2, R_+3, V_L16, R_WS, R_WS+3))
    a("s_mov_b64 exec, -1")
    a.stamp("p2_done")
    if a.stop == 2:
        a("s_waitcnt vmcnt(0)")

_c0 = 2.0*math.log2(math.e)*math.sqrt(2/math.pi)
GS = (_c0*0.044715)**(1/3)
GK = _c0/GS

def gelu_consts(a): a("s_mov_b32 s48, %d" % f32(GS)); a("s_mov_b32 s49, %d" % f32(GK))

def gelu_poly(regs, t):
    o = ["v_pk_fma_f32 v[%d:%d], v[%d:%d], v[%d:%d], s[48:49] op_sel:[0,0,1] op_sel_hi:[1,1,1]" % (t+2*k, t+2*k+1, r, r+1, r, r+1) for k, r in enumerate(regs)]
    return o + ["v_pk_mul_f32 v[%d:%d], v[%d:%d], v[%d:%d]" % (t+2*k, t+2*k+1, t+2*k, t+2*k+1, r, r+1) for k, r in enumerate(regs)]

def gelu_pk(a, regs, t):
    for x in gelu_poly(regs, t): a(x)
    for k in range(2*len(regs)): a("v_exp_f32 v%d, -v%d" % (t+k, t+k))
    for k, r in enumerate(regs): a("v_pk_fma_f32 v[%d:%d], v[%d:%d], s[48:49], s[48:49] op_sel_hi:[1,0,0]" % (t+2*k, t+2*k+1, t+2*k, t+2*k+1))
    for k in range(2*len(regs)): a("v_rcp_f32 v%d, v%d" % (t+k, t+k))
    for k, r in enumerate(regs): a("v_pk_mul_f32 v[%d:%d], v[%d:%d], v[%d:%d]" % (r, r+1, r, r+1, t+2*k, t+2*k+1))

def stats_loads(a, off, stile, vt):
    a("v_lshlrev_b32 v%d, 3, v%d" % (vt+4, V_LANE))
    a("v_add_u32 v%d, 512, v%d" % (vt+5, vt+4)); a("v_cmp_gt_u32 vcc, 32, v%d" % V_LANE); a("v_mov_b32 v%d, 0x7fffffff" % vt)
    a("v_cndmask_b32 v%d, v%d, v%d, vcc" % (vt+5, vt, vt+5))
    a("s_mul_i32 s46, s%d, 768" % stile); a("s_add_u32 s46, s46, %d" % off)
    return ["buffer_load_dwordx2 v[%d:%d], v%d, s[%d:%d], s46 offen sc1" % (vt+2*k, vt+2*k+1, vt+4+k, R_WS, R_WS+3) for k in range(2)]

def stats_finish(a, vt, vmean, vrstd):
    a("v_add_f32 v%d, v%d, v%d" % (vt, vt, vt+2)); a("v_add_f32 v%d, v%d, v%d" % (vt+1, vt+1, vt+3))
    for sw in ("v_permlane32_swap_b32", "v_permlane16_swap_b32"):
        for k in range(2): a("v_mov_b32 v%d, v%d" % (vt+2+k, vt+k))
        for k in range(2): a("%s v%d, v%d" % (sw, vt+k, vt+2+k))
        for k in range(2): a("v_add_f32 v%d, v%d, v%d" % (vt+k, vt+k, vt+2+k))
    a("s_mov_b32 s47, %d" % f32(1.0/576))
    a("v_mul_f32 v%d, s47, v%d" % (vmean, vt)); a("v_mul_f32 v%d, v%d, v%d" % (vt, vmean, vmean))
    a("v_fma_f32 v%d, v%d, s47, -v%d" % (vt+1, vt+1, vt)); a("v_max_f32 v%d, 0, v%d" % (vt+1, vt+1))
    a("v_add_f32 v%d, %d, v%d" % (vt, f32(1e-5), vt+1)); a("v_rsq_f32 v%d, v%d" % (vrstd, vt))

def norm_ops(x, vs, vb, t):
    o = []
    for r in range(4):
        o.append("v_lshlrev_b32 v%d, 16, v%d" % (t+2*r, x+r)); o.append("v_and_b32 v%d, 0xffff0000, v%d" % (t+2*r+1, x+r))
    for r in range(8): o.append("v_fma_f32 v%d, v%d, v%d, v%d" % (t+r, t+r, vs, vb))
    for r in range(4): o.append("v_cvt_pk_bf16_f32 v%d, v%d, v%d" % (x+r, t+2*r, t+2*r+1))
    return o

def out_stats(a, pk, n, vt, off):
    a("v_mov_b32 v%d, 0" % vt); a("v_mov_b32 v%d, 0" % (vt+1))
    for r in range(n):
        a("v_dot2c_f32_bf16 v%d, s%d, v%d" % (vt, S_ONES, pk+r)); a("v_dot2c_f32_bf16 v%d, v%d, v%d" % (vt+1, pk+r, pk+r))
    for sw in ("v_permlane32_swap_b32", "v_permlane16_swap_b32"):
        for k in range(2): a("v_mov_b32 v%d, v%d" % (vt+2+k, vt+k))
        for k in range(2): a("%s v%d, v%d" % (sw, vt+k, vt+2+k))
        for k in range(2): a("v_add_f32 v%d, v%d, v%d" % (vt+k, vt+k, vt+2+k))
    a("s_mul_i32 s46, s53, 6"); a("s_add_u32 s46, s46, s51"); a("s_lshl_b32 s46, s46, 7"); a("s_add_u32 s46, s46, %d" % off)
    a("v_lshlrev_b32 v%d, 3, v%d" % (vt+2, V_LANE))
    a("s_mov_b64 exec, 0xffff")
    a("buffer_store_dwordx2 v[%d:%d], v%d, s[%d:%d], s46 offen sc1" % (vt, vt+1, vt+2, R_WS, R_WS+3))
    a("s_mov_b64 exec, -1")

AF, ACC, WB, HK, VMEAN, VRSTD = 64, 136, 160, 40, 52, 53
OS = WB

def tag_ops(regs, t):
    o = []; regs = list(regs)
    o.append("v_max3_u32 v%d, v%d, v%d, v%d" % (t, regs[0], regs[1], regs[2])); regs = regs[3:]
    while len(regs) >= 2: o.append("v_max3_u32 v%d, v%d, v%d, v%d" % (t, t, regs[0], regs[1])); regs = regs[2:]
    if regs: o.append("v_max_u32 v%d, v%d, v%d" % (t, t, regs[0]))
    return o + ["v_cmp_eq_u32 vcc, -1, v%d" % t]

def tag_branch(a, loads, regs, t, again=(), drain=False):
    L = a.newlabel("Ltg")
    a("s_cbranch_vccnz %s" % L)
    a.label(L + "_b")
    st = [L + ":"] + "\n".join(loads).split("\n") + ["s_waitcnt vmcnt(0)"] + tag_ops(regs, t)
    st += ["s_cmp_eq_u32 s79, 0", "s_cbranch_scc1 %s_b" % L, "s_sub_u32 s79, s79, 1", "s_cbranch_vccnz %s" % L]
    st += list(again) + (["s_waitcnt vmcnt(0)"] if drain and again else []) + ["s_branch %s_b" % L]
    a.stubs += st

UP = 8
NE = 12
def wpos(layout, b):
    if layout is None: return W_LDS//1024 + b
    w, i = divmod(b, 27)
    return layout[0] + NE*w + i if i < NE else layout[1] + (27-NE)*w + i - NE

def gemm96(a, loads, stage, delay, pre=(), each=None, stamp=None, extra=(), layout=None, early=(), before=None, after=None):
    a("s_waitcnt vmcnt(20)")
    a("s_barrier")
    nv = sum("buffer_load" in x for x in stage)
    n1 = len(stage) if nv else len(stage)//3
    for x in stage[:n1]: a(x)
    if delay: a("s_sleep %d" % delay)
    a("s_mov_b32 s79, 50000")
    a.stamp(stamp + "_ready")
    for x in pre: a(x)
    interleave(a, loads[:UP], stage[n1:])
    a("s_waitcnt vmcnt(%d) lgkmcnt(0)" % (UP + len(pre)))
    if before: before(a)
    a("s_barrier")
    def wr(j):
        o = []
        for t in range(6):
            q, r = divmod(wpos(layout, 18*t + j), 64)
            o.append("ds_read_b128 v[%d:%d], v%d offset:%d" % (WB+24*(j % 3)+4*t, WB+24*(j % 3)+4*t+3, (V_L16, 5, 6)[q], 1024*r))
        return o
    for x in early: a(x)
    if each: each(lambda: [a(x) for x in wr(0) + wr(1)])
    else:
        for x in wr(0) + wr(1): a(x)
    a("s_waitcnt vmcnt(%d)" % (UP-1))
    fr = lambda j: range(AF+4*j, AF+4*j+4)
    for x in tag_ops(fr(0), 30): a(x)
    tag_branch(a, [loads[0]], fr(0), 30, loads[1:UP])
    if after: after(a)
    for j in range(18):
        ex = lambda q: min(len(extra), max(0, (q-9)*len(extra)//8))
        issued = min(18, UP+j) + ex(j)
        a("s_waitcnt vmcnt(%d) lgkmcnt(%d)" % (issued - 1 - min(j+1, 17), 6 if j < 17 else 0))
        if j in (0, 9): a.stamp(stamp + "_k%d" % j)
        ms = [mfma(ACC+4*t, WB+24*(j % 3)+4*t, AF+4*j, None if j == 0 else ACC+4*t) for t in range(6)]
        fill = ([loads[UP+j]] if UP+j < 18 else []) + (tag_ops(fr(j+1), 30) if j < 17 else []) + (wr(j+2) if j < 16 else []) + list(extra[ex(j):ex(j+1)])
        interleave(a, ms, fill)
        if j < 17: tag_branch(a, [loads[j+1]], fr(j+1), 30, loads[j+2:UP+j+1], drain=ex(j+1) > 0)

FP2Q = "s_mov_b32 s46, %d\nbuffer_load_dwordx4 v[16:19], v%d, s[%d:%d], s46 offen sc1" % (FP2_OFF, V_L16, R_WS, R_WS+3)

def marks2(a):
    L = a.newlabel("Lm2")
    a("s_cmp_lg_u32 s%d, 0" % S_WAVE); a("s_cbranch_scc1 %s_x" % L)
    a("s_mov_b32 s47, 100000")
    a.label(L)
    for r in range(4): a("v_xor_b32 v%d, s%d, v%d" % (16+r, S_NONCE, 16+r))
    a("v_or3_b32 v16, v16, v17, v18"); a("v_or_b32 v16, v16, v19"); a("v_cmp_ne_u32 vcc, 0, v16"); a("s_cbranch_vccz %s_x" % L)
    a(FP2Q); a("s_waitcnt vmcnt(0)")
    a("s_sub_u32 s47, s47, 1"); a("s_cbranch_scc0 %s" % L)
    a.label(L + "_x")

def publish2(a, vt):
    L = a.newlabel("Lmp"); a("s_cmp_lg_u32 s%d, 0" % S_WAVE); a("s_cbranch_scc1 %s" % L); a.set_mark(vt, FP2_OFF); a.label(L)

def wflags(a, first, va, vd):
    a("s_mul_i32 s46, s65, 18"); a("s_add_u32 s46, s46, %d" % (FS + first))
    a("v_min_u32 v%d, 17, v%d" % (va, V_LANE)); a("v_add_u32 v%d, s46, v%d" % (va, va)); a("v_lshlrev_b32 v%d, 7, v%d" % (va, va))
    a("buffer_load_dword v%d, v%d, s[%d:%d], 0 offen offset:%d sc1" % (vd, va, R_WS, R_WS+3, FLAG0))

def phase345(a):
    a("s_mov_b32 s50, s74"); a("s_mov_b32 s51, s75"); a("s_mov_b32 s53, s76")
    a("s_cmp_ge_u32 s51, 6"); a("s_cbranch_scc1 L_p3_helper")
    a("v_add_u32 v5, 65536, v%d" % V_L16); a("v_add_u32 v6, 131072, v%d" % V_L16)
    a("s_mul_i32 s46, s%d, %d" % (S_WAVE, 1024*NE)); a("v_add_u32 v7, s46, v%d" % V_L16)
    a("s_mul_i32 s46, s%d, %d" % (S_WAVE, 1024*(27-NE))); a("v_add_u32 v8, s46, v%d" % V_L16)
    a("v_add_u32 v62, %d, v7" % (112*1024)); a("v_add_u32 v63, %d, v8" % (52*1024))
    LAY4, LAY5 = (0, 52), (112, 0)
    a("s_mul_i32 s54, s53, 18432")
    a("s_mul_i32 s55, s51, 3072"); a("s_add_u32 s55, s55, s54")
    a("v_lshlrev_b32 v9, 7, v%d" % V_LANE)
    a("s_lshl_b32 s46, s51, 2"); a("s_add_u32 s46, s46, s%d" % S_WAVE); a("s_mul_i32 s46, s46, 3072"); a("s_mul_i32 s78, s50, 73728"); a("s_add_u32 s78, s78, s46")
    def w2(i0, i1):
        return [("s_add_u32 s59, s72, %d\n" % (1024*(i & ~3)) if (i % 4 == 0 or i == i0) else "") +
                "buffer_load_dwordx4 a[%d:%d], v%d, s[%d:%d], s59 offen offset:%d sc1" % (AW2+4*i, AW2+4*i+3, V_L16, R_WS, R_WS+3, 1024*(i & 3)) for i in range(i0, i1)]
    def park(ab, lay, late):
        if late: return ["ds_write_b128 v%d, a[%d:%d] offset:%d" % (63 if lay[1] else 8, ab+4*i, ab+4*i+3, 1024*(i - NE)) for i in range(NE, 27)]
        return ["ds_write_b128 v%d, a[%d:%d] offset:%d" % (62 if lay[0] else 7, ab+4*i, ab+4*i+3, 1024*i) for i in range(NE)]
    def aloads(off):
        for q in range(5): a("s_add_u32 s%d, s54, %d" % (60+q, off + 4096*q))
        return ["buffer_load_dwordx4 v[%d:%d], v%d, s[%d:%d], s%d offen offset:%d sc1" % (AF+4*j, AF+4*j+3, V_L16, R_WS, R_WS+3, 60+(j >> 2), 1024*(j & 3)) for j in range(18)]
    def ostores(src, off):
        a("s_add_u32 s46, s55, %d" % off)
        for jj in range(3): a("buffer_store_dwordx4 v[%d:%d], v%d, s[%d:%d], s46 offen offset:%d sc1" % (src+4*jj, src+4*jj+3, V_L16, R_WS, R_WS+3, 1024*jj))
    a("s_lshl_b32 s46, s53, 4"); a("v_add_u32 v20, s46, v%d" % V_R); a("s_mov_b32 s47, 18432")
    for k, sh in enumerate((1, -1, 2, -2)):
        a("v_subrev_u32 v21, %d, v20" % sh); a("v_ashrrev_i32 v22, 4, v21"); a("v_mul_lo_u32 v22, v22, s47")
        a("v_and_b32 v21, 15, v21"); a("v_lshl_add_u32 v21, v%d, 4, v21" % V_G); a("v_lshl_add_u32 v%d, v21, 4, v22" % (56+k))
    a("v_cmp_gt_u32 vcc, 32, v%d" % V_LANE); a("v_cndmask_b32 v60, v57, v56, vcc"); a("v_cndmask_b32 v61, v59, v58, vcc")
    N2 = int(os.environ.get("N2", 0))
    n3 = max(N2, NE)
    gemm96(a, aloads(O_OFF), [pf_lds(0), pf_lds(1)] + w2(0, N2), SLEEP0["p3"] if N2 < 8 else 0, stamp="p3", extra=w2(N2, n3), early=park(AW1, LAY4, False))
    a.stamp("p3_gemm")
    a(FP2Q)
    a("s_mov_b32 s46, 0x00003f80"); a("s_mov_b32 s47, 0x3f800000")
    for t in range(6):
        for i in range(4): a("v_dot2c_f32_bf16 v%d, s%d, v%d" % (ACC+4*t+i, 46+(i & 1), XT+4*(t >> 1)+2*(t & 1)+(i >> 1)))
    for k in range(12): a("v_cvt_pk_bf16_f32 v%d, v%d, v%d" % (HK+k, ACC+2*k, ACC+2*k+1))
    ostores(HK, H_OFF)
    out_stats(a, HK, 12, 10, SH_OFF)
    a.stamp("p3_epi")
    if a.stop == 3: a("s_waitcnt vmcnt(0)"); a("s_branch L_fin")
    for r in range(4): a("v_mov_b32 v%d, s%d" % (20+r, S_ONES))
    cs = [mfma(WB+4*(i//9), AW1+4*i, 20, None if i % 9 == 0 else WB+4*(i//9), ta="a") for i in range(27)]
    a("s_mul_i32 s46, s%d, 192" % S_WAVE); a("s_add_u32 s46, s46, %d" % (48*1024)); a("v_lshl_add_u32 v24, v%d, 4, s46" % V_G)
    g = G(); interleave(g, [cs[(i % 3)*9 + i//3] for i in range(27)], park(AW1, LAY4, True))
    st4 = g.lines
    st4 += ["s_nop 7"] + ["ds_write_b128 v24, v[%d:%d] offset:%d" % (WB+4*k, WB+4*k+3, 64*k) for k in range(3)]
    CS = 232
    sl = stats_loads(a, SH_OFF, 53, 10); a("s_mov_b32 s65, s46"); sl = [x.replace("s46", "s65") for x in sl]
    def fin4(wreads):
        a("v_lshlrev_b32 v24, 4, v%d" % V_G)
        for k in range(12): a("ds_read_b128 v[%d:%d], v24 offset:%d" % ((CS if k % 2 == 0 else ACC)+4*(k//2), (CS if k % 2 == 0 else ACC)+4*(k//2)+3, 48*1024 + 64*k))
        wreads()
        a("s_waitcnt vmcnt(%d)" % UP)
        for x in tag_ops(range(10, 14), 30): a(x)
        tag_branch(a, sl, range(10, 14), 30, al4[:UP])
        stats_finish(a, 10, VMEAN, VRSTD)
        a("v_mul_f32 v12, v%d, v%d" % (VRSTD, VRSTD)); a("v_mul_f32 v12, v12, v11"); a("v_add_f32 v12, %d, v12" % f32(1e-5))
        a("v_rsq_f32 v12, v12"); a("v_mul_f32 v16, %d, v%d" % (f32(GS), VRSTD)); a("v_mul_f32 v16, v12, v16"); a("v_mul_f32 v17, v16, -v%d" % VMEAN)
        a("s_waitcnt lgkmcnt(12)")
        for k in range(12): a("v_pk_add_f32 v[%d:%d], v[%d:%d], v[%d:%d]" % (CS+2*k, CS+2*k+1, CS+2*k, CS+2*k+1, ACC+2*k, ACC+2*k+1))
        for k in range(12): a("v_pk_mul_f32 v[%d:%d], v[%d:%d], v[16:17] op_sel:[0,1] op_sel_hi:[1,1]" % (CS+2*k, CS+2*k+1, CS+2*k, CS+2*k+1))
    if "d_mid" in ABL: a("s_sleep 64")
    al4 = aloads(H_OFF)
    gemm96(a, al4, st4, SLEEP0["p4"], pre=sl, each=fin4, stamp="p4", extra=w2(n3, 27), layout=LAY4, before=marks2)
    a.stamp("p4_gemm")
    gelu_consts(a)
    for k in range(12): a("v_pk_fma_f32 v[%d:%d], v[%d:%d], v[16:17], v[%d:%d] op_sel_hi:[1,0,1]" % (ACC+2*k, ACC+2*k+1, ACC+2*k, ACC+2*k+1, CS+2*k, CS+2*k+1))
    g = G(); gelu_pk(g, [ACC+2*k for k in range(12)], AF)
    interleave(a, g.lines, park(AW2, LAY5, False))
    for k in range(12): a("v_cvt_pk_bf16_f32 v%d, v%d, v%d" % (OS+k, ACC+2*k, ACC+2*k+1))
    ostores(OS, T_OFF)
    a.stamp("p4_epi")
    if a.stop == 4: a("s_waitcnt vmcnt(0)"); a("s_branch L_fin")
    a.srd(R_A, S_WS, ACT, T_OFF)
    for q in range(5): a("s_mov_b32 s%d, %d" % (70+q, 4096*q))
    def vsel(j): return 56 if j < 4 else 60 if j == 4 else 57 if j < 9 else 58 if j < 13 else 61 if j == 13 else 59
    tl = ["buffer_load_dwordx4 v[%d:%d], v%d, s[%d:%d], s%d offen offset:%d sc1" % (AF+4*j, AF+4*j+3, vsel(j), R_A, R_A+3, 70+(j >> 2), 1024*(j & 3)) for j in range(18)]
    roles6(a)
    wflags(a, 54, 54, 55)
    a("s_waitcnt vmcnt(4)")
    gemm96(a, tl, park(AW2, LAY5, True), SLEEP0["p5"], stamp="p5", layout=LAY5)
    a.stamp("p5_gemm")
    a("v_mul_f32 v17, v%d, -v%d" % (VRSTD, VMEAN))
    for k in range(12):
        a("v_lshlrev_b32 v20, 16, v%d" % (HK+k)); a("v_and_b32 v21, 0xffff0000, v%d" % (HK+k))
        a("v_fma_f32 v20, v20, v%d, v17" % VRSTD); a("v_fma_f32 v21, v21, v%d, v17" % VRSTD)
        a("v_pk_add_f32 v[%d:%d], v[%d:%d], v[20:21]" % (ACC+2*k, ACC+2*k+1, ACC+2*k, ACC+2*k+1))
    for k in range(12): a("v_cvt_pk_bf16_f32 v%d, v%d, v%d" % (OS+k, ACC+2*k, ACC+2*k+1))
    ostores(OS, X1_OFF)
    out_stats(a, OS, 12, 10, SX_OFF)
    a.stamp("p5_epi")
    a("s_branch L_p5_pre")
    a.label("L_p3_helper")
    if "d_h3" in ABL: a("s_sleep 64")
    a("s_cmp_ge_u32 s48, 144"); a("s_cbranch_scc1 L_p3_touch")
    a("s_barrier")
    a(pf_lds(0)); a(pf_lds(1))
    swizzle_setup(a)
    a("s_add_u32 s48, s48, 54")
    for p in range(3):
        sw_big(a, 48, 60+3*p)
        a("s_lshl_b32 s53, s52, 10"); a("s_add_u32 s%d, s%d, s53" % (60+3*p, 60+3*p)); a("s_add_u32 s%d, s48, %d" % (62+3*p, FS))
        a("s_add_u32 s48, s48, 1")
    a("s_waitcnt vmcnt(0)"); a("s_barrier")
    for p in range(3): sw_process(a, p, W_LDS + 36864*p)
    a("s_waitcnt vmcnt(0)"); a("s_barrier")
    sw_flags(a, range(3))
    a.stamp("h_w3")
    a.label("L_p3_touch")
    roles6(a)
    NL = (SW << LCH)//128//32
    a("s_lshr_b32 s46, s65, %d" % LCH); a("s_mul_i32 s46, s46, %d" % (SW << LCH))
    a("s_and_b32 s47, s74, 3"); a("s_lshl_b32 s47, s47, 1"); a("s_add_u32 s47, s47, s75"); a("s_sub_u32 s47, s47, 6")
    if "once4" in ABL:
        NL = BW//128//256
        a("s_mov_b32 s46, 0"); a("s_lshl_b32 s47, s74, 1"); a("s_add_u32 s47, s47, s75"); a("s_sub_u32 s47, s47, 6")
    a("s_lshl_b32 s47, s47, 2"); a("s_add_u32 s47, s47, s%d" % S_WAVE); a("s_mul_i32 s47, s47, %d" % (128*NL)); a("s_add_u32 s46, s46, s47")
    a.srd(R_A, S_W4, BW)
    a("v_lshlrev_b32 v10, 7, v%d" % V_LANE)
    for q in range(0 if "notouch4" in ABL else -(-NL//64)):
        if NL - 64*q < 64: a("s_bfm_b64 exec, %d, 0" % (NL - 64*q))
        a("buffer_load_dword v11, v10, s[%d:%d], s46 offen" % (R_A, R_A+3)); a("s_add_u32 s46, s46, 8192")
    a("s_mov_b64 exec, -1")
    a.stamp("h_w4")
    wflags(a, 54, 54, 55)
    a(FP2Q)
    a("s_waitcnt vmcnt(0)")
    marks2(a)
    a.label("L_p5_pre")
    a.label("L_p5_done")
    a.stamp("p5_done")

WFL = os.environ.get("WFL", " sc1")
OFL = os.environ.get("OFL", "")
LCH = int(os.environ.get('LCH', 1))
RING = 184

def roles6(a):
    L = LCH
    a("s_lshr_b32 s46, s%d, %d" % (S_XCD, 3-L)); a("s_lshl_b32 s64, s46, %d" % (5-L)); a("s_lshr_b32 s67, s%d, %d" % (S_SLOT, L)); a("s_add_u32 s64, s64, s67")
    a("s_and_b32 s67, s67, 7")
    a("s_mov_b32 s67, 0")
    a("s_and_b32 s46, s%d, %d" % (S_XCD, (8 >> L) - 1)); a("s_lshl_b32 s65, s46, %d" % L); a("s_and_b32 s46, s%d, %d" % (S_SLOT, (1 << L) - 1)); a("s_add_u32 s65, s65, s46")
    a("s_lshl_b32 s46, s65, 2"); a("s_add_u32 s46, s46, s%d" % S_WAVE); a("s_mul_i32 s66, s46, %d" % (9*18432)); a("s_add_u32 s66, s66, %d" % W3_S)

def wload(j, s=58, ring=("a", RING)):
    o = "s_add_u32 s%d, s%d, 4096\n" % (s, s) if (j and j % 4 == 0) else ""
    return o + ("buffer_load_dwordx4 %s[%d:%d], v%d, s[%d:%d], s%d offen offset:%d" + WFL) % (ring[0], ring[1]+4*j, ring[1]+4*j+3, V_L16, R_WS, R_WS+3, s, 1024*(j & 3))

def ring_prefill(a, s):
    a("s_mul_i32 s%d, s67, 18432" % s); a("s_add_u32 s%d, s%d, s66" % (s, s))
    return [wload(j, s) for j in range(18)]

def norm_pk(x, vs, t):
    o = []
    for r in range(4):
        o.append("v_lshlrev_b32 v%d, 16, v%d" % (t+2*r, x+r)); o.append("v_and_b32 v%d, 0xffff0000, v%d" % (t+2*r+1, x+r))
    for r in range(4): o.append("v_pk_fma_f32 v[%d:%d], v[%d:%d], v[%d:%d], v[%d:%d] op_sel:[0,0,1] op_sel_hi:[1,0,1]" % (t+2*r, t+2*r+1, t+2*r, t+2*r+1, vs, vs+1, vs, vs+1))
    for r in range(4): o.append("v_cvt_pk_bf16_f32 v%d, v%d, v%d" % (x+r, t+2*r, t+2*r+1))
    return o

def phase6(a):
    AC, PK, RB, GT, XR = 40, 72, 80, 136, 64
    HB = 73728
    def xf(T, j):
        f = 4*j + T
        return ("a", 4*f) if f < 46 else ("v", 152 + 4*(f-46))
    a("s_mov_b32 s50, s64"); a("s_mov_b32 s51, s65"); a("s_mov_b32 s54, s66"); a("s_mov_b32 s52, s67")
    a("s_lshl_b32 s53, s50, 2"); a("s_add_u32 s53, s53, s%d" % S_WAVE)
    a("s_mul_i32 s56, s50, 72"); a("s_add_u32 s56, s56, s51"); a("s_lshl_b32 s56, s56, 2"); a("s_add_u32 s56, s56, s%d" % S_WAVE)
    a("s_lshl_b32 s56, s56, 11"); a("s_add_u32 s56, s56, %d" % PART)
    a("s_mul_i32 s46, s53, 18432")
    for q in range(5): a("s_add_u32 s%d, s46, %d" % (70+q, X1_OFF + 4096*q))
    a("s_mul_i32 s46, s%d, 18432" % S_WAVE); a("v_add_u32 v5, s46, v%d" % V_L16)
    sl = stats_loads(a, SX_OFF, 53, 10)
    a("s_mov_b32 s60, s46")
    sl = [x.replace("s46", "s60") for x in sl]
    a("v_mov_b32 v28, 0")
    a("global_load_dword v29, v28, s[%d:%d] sc1" % (S_DBG, S_DBG+1))
    L = a.newlabel("Lh")
    a("s_cmp_lg_u32 s%d, 0" % S_WAVE); a("s_cbranch_scc1 %s" % L)
    a("v_cmp_ne_u32 vcc, s%d, v55" % S_NONCE); a("s_cbranch_vccz %s" % L)
    a("v_lshrrev_b32 v54, 7, v54")
    a.poll(54, 55, sleep0=0)
    a.label(L)
    a("s_barrier")
    pre = ring_prefill(a, 59)
    NP = SLEEP0["p6"]
    for x in pre[:NP]: a(x)
    a.stamp("p6_ready")
    a("s_mov_b32 s79, 50000")
    for x in sl: a(x)
    def xload(j): return "buffer_load_dwordx4 v[%d:%d], v%d, s[%d:%d], s%d offen offset:%d sc1" % (XR+4*j, XR+4*j+3, V_L16, R_WS, R_WS+3, 70+(j >> 2), 1024*(j & 3))
    for j in range(UP): a(xload(j))
    a("v_add_u32 v32, 36864, v%d" % V_L16); a("v_add_u32 v33, %d, v%d" % (HB, V_L16)); a("v_add_u32 v34, %d, v%d" % (HB+36864, V_L16))
    a("s_lshr_b32 s46, s%d, 1" % S_WAVE); a("s_lshl_b32 s46, s46, 12"); a("s_and_b32 s47, s%d, 1" % S_WAVE); a("s_lshl_b32 s47, s47, 3")
    a("s_add_u32 s46, s46, s47"); a("v_add_u32 v35, s46, v33")
    gelu_consts(a)
    R3, ST, SEL, RS = 12, 32, 6, RB
    def natsel(d, sr, bit, t):
        o = ["s_bfe_u32 s66, s%d, %d" % (sr, 0x10000 + bit), "s_lshl_b32 s66, s66, 1", "v_lshrrev_b32 v%d, 3, v%d" % (t, V_R), "v_add_u32 v%d, s66, v%d" % (t, t),
             "v_cmp_eq_u32 s[66:67], v%d, v%d" % (t, V_G), "v_and_b32 v%d, 1, v%d" % (t, V_R), "v_lshlrev_b32 v%d, 4, v%d" % (t, t),
             "v_mov_b32 v%d, 0x3f80" % (t+1), "v_lshlrev_b32 v%d, v%d, v%d" % (t+1, t, t+1), "v_cndmask_b32 v%d, 0, v%d, s[66:67]" % (t+1, t+1),
             "v_bfe_u32 v%d, v%d, 1, 2" % (t, V_R)]
        for k in range(4): o += ["v_cmp_eq_u32 s[66:67], %d, v%d" % (k, t), "v_cndmask_b32 v%d, 0, v%d, s[66:67]" % (d+k, t+1)]
        return o
    a("v_lshrrev_b32 v26, 2, v%d" % V_R); a("v_cmp_eq_u32 s[64:65], v26, v%d" % V_G)
    a("v_and_b32 v26, 1, v%d" % V_R); a("v_lshlrev_b32 v26, 4, v26"); a("v_mov_b32 v27, 0x3f80"); a("v_lshlrev_b32 v27, v26, v27")
    a("v_cndmask_b32 v27, 0, v27, s[64:65]"); a("v_and_b32 v26, 2, v%d" % V_R); a("v_cmp_eq_u32 vcc, 0, v26")
    a("v_cndmask_b32 v%d, 0, v27, vcc" % (SEL+2)); a("v_cndmask_b32 v%d, v27, 0, vcc" % (SEL+3))
    for r in (0, 1): a("v_mov_b32 v%d, 0" % (SEL+r))
    for x in natsel(36, S_WAVE, 0, 26): a(x)
    def bload(reg, s, off=0, t="a"): return "buffer_load_dwordx4 %s[%d:%d], v%d, s[%d:%d], s%d offen offset:%d sc1" % (t, reg, reg+3, V_L16, R_WS, R_WS+3, s, off)
    a("s_waitcnt vmcnt(%d)" % UP)
    for x in tag_ops(range(10, 14), 30): a(x)
    tag_branch(a, sl, range(10, 14), 30, [xload(j) for j in range(UP)])
    a.stamp("p6_st")
    stats_finish(a, 10, 17, 16)
    a("v_mul_f32 v16, s48, v16"); a("v_mul_f32 v17, v16, -v17")
    a("s_mul_i32 s60, s50, 73728")
    a("s_lshl_b32 s46, s51, 1"); a("s_lshr_b32 s47, s%d, 1" % S_WAVE); a("s_add_u32 s46, s46, s47"); a("s_lshl_b32 s46, s46, 10"); a("s_add_u32 s78, s46, s60")
    order = [("x", j) for j in range(UP)]
    todo = [("x", j) for j in range(UP, 18)] + [("w", j) for j in range(NP, 18)]
    for j in range(18):
        a("s_waitcnt vmcnt(%d)" % (len(order) - 1 - order.index(("x", j))))
        for x in tag_ops(range(XR+4*j, XR+4*j+4), 30): a(x)
        n = 1 if j < 10 else -(-len(todo)//(18-j))
        for k, q in todo[:n]:
            a(xload(q) if k == "x" else pre[q]); order.append((k, q))
        del todo[:n]
        later = [q for k, q in order if k == "x" and q > j]
        tag_branch(a, [xload(j)], range(XR+4*j, XR+4*j+4), 30, [xload(q) for q in later], drain=order[-1][0] == "w")
        if j in (9, 17): a.stamp("p6_x%d" % j)
        for x in norm_pk(XR+4*j, 16, 20): a(x)
        a("ds_write_b128 v5, v[%d:%d] offset:%d" % (XR+4*j, XR+4*j+3, 1024*j))
    assert not todo
    a("v_readfirstlane_b32 s%d, v29" % S_NONCE)
    for r in (4, 5): a("v_mov_b32 v%d, 0" % (SEL+r))
    a("s_waitcnt lgkmcnt(0)"); a("s_barrier")
    a.stamp("p6_x")
    def fread(j, va):
        o = []
        for T in range(4):
            t, r = xf(T, j)
            o.append("ds_read_b128 %s[%d:%d], v%d offset:%d" % (t, r, r+3, va[T >> 1], (T & 1)*18432 + 1024*j))
        return o
    def gelu(ac):
        b = gelu_poly([ac+2*k for k in range(8)], GT)
        o = []
        for T in range(4):
            x = ac + 4*T; t = GT + 4*T
            o += ["v_exp_f32 v%d, -v%d" % (t+i, t+i) for i in range(4)]
            o += ["v_fma_f32 v%d, v%d, s48, s48" % (t+i, t+i) for i in range(4)]
            o += ["v_rcp_f32 v%d, v%d" % (t+i, t+i) for i in range(4)]
            o += ["v_mul_f32 v%d, v%d, v%d" % (t+i, t+i, x+i) for i in range(4)]
            o += ["v_cvt_pk_bf16_f32 v%d, v%d, v%d" % (PK+2*T+h, t+2*h, t+2*h+1) for h in range(2)]
            o.append("ds_write_b64 v5, v[%d:%d] offset:%d" % (PK+2*T, PK+2*T+1, 1024*T))
        return b, o
    def wt(op): return 2 if op.startswith(("v_exp", "v_rcp")) else min(2, len(op.split("\n")))
    RA = ("a", RING); RBB = ("v", RB)
    def subpass(ac, fill, first=None, loads=None, at=None, ring=RA, depth=18, batch=(), head=(), c0=None, more=None):
        if "p6nogelu" in ABL and len(fill) > 20: fill = []; batch = ()
        if "p6nost" in ABL: fill = [x for x in fill if "buffer_store" not in x]
        fill = list(fill); head = list(head)
        seq = [(2*p + q, T) for p in range(9) for T in range(4) for q in range(2)]
        LA = 12
        rd = [fread(j, first)[T] for j, T in seq] if first else []
        for x in rd[:LA]: a(x)
        def wait(m):
            w = []
            if m % 8 == 0: w.append("vmcnt(%d)" % (depth - 2 + (more(m//4 - 1) if more and m else 0)))
            if first and m % 2 == 0: w.append("lgkmcnt(%d)" % max(0, min(LA, 72 - m) - 2))
            return "s_waitcnt " + " ".join(w) if w else None
        for m, (j, T) in enumerate(seq):
            if wait(m): a(wait(m))
            if at and m % 4 == 0 and m//4 in at: at[m//4]()
            t, r = xf(T, j)
            a(mfma(ac+4*T, ring[1]+4*j, r, (None if c0 is None else c0+4*T) if j == 0 else ac+4*T, ta=ring[0], tb=t))
            room = 2
            if m + LA < len(rd): a(rd[m + LA]); room -= 1
            if m < 3:
                n = (len(head) + 2 - m)//(3 - m)
                for x in head[:n]: a(x)
                del head[:n]
            if m == 3:
                for x in batch: a(x)
            if T == 3:
                ld = "" if ("p6nold" in ABL and loads is None) else (loads(j) if loads else wload(j, 58, ring))
                if ld: a(ld); room -= len(ld.split("\n"))
            if m < 71 and wait(m+1): room -= 1
            if m < 4: continue
            left = 71 - m
            while fill and (wt(fill[0]) <= room or sum(wt(x) for x in fill) > 2*left - (left+3)//4*2 + 1):
                room -= wt(fill[0]); a(fill.pop(0))
        assert not fill
    def nexttile():
        return ["s_mov_b32 s62, s61", "s_add_u32 s61, s61, 1", "s_add_u32 s54, s54, 18432", "s_mov_b32 s58, s54",
                "s_lshl_b32 s46, s62, 13", "v_add_u32 v5, s46, v35"]
    a("s_mov_b32 s61, 0"); a("s_add_u32 s54, s54, 18432"); a("s_mov_b32 s58, s54")
    for r in range(4): a("v_mov_b32 v%d, -1" % (PK+r))
    pois = []
    for k in (6, 7):
        pois.append("s_add_u32 s46, s51, %d\ns_and_b32 s46, s46, 7\ns_lshl_b32 s46, s46, 16\ns_add_u32 s62, s46, s56\n" % k +
                    "buffer_store_dwordx4 v[%d:%d], v%d, s[%d:%d], s62 offen sc1" % (PK, PK+3, V_L16, R_WS, R_WS+3))
        pois.append("buffer_store_dwordx4 v[%d:%d], v%d, s[%d:%d], s62 offen offset:1024 sc1" % (PK, PK+3, V_L16, R_WS, R_WS+3))
    res = ["s_add_u32 s62, s78, %d\n" % ((X1_OFF, H_OFF)[j >> 2] + 18432*(j & 3)) + bload(RS+4*j, 62, t="v") for j in range(8)]
    def resadd():
        a("s_waitcnt vmcnt(9)")
        for k in range(2):
            for T in range(4): a(mfma(R3+4*T, 36, RS+16*k+4*T, None if k == 0 else R3+4*T))
    ev0 = {j: (lambda j=j: a(res[j])) for j in range(8)}
    ev0[16] = resadd
    ev0[17] = lambda: [a(x) for x in pois]
    subpass(AC, [], first=(V_L16, 32), at=ev0, more=lambda j: min(j+1, 8))
    a.stamp("p6_p0")
    WF, DA, TA = RING+48, RB+16, RB+22
    a.srd(R_B, S_W4, BW + 4096, -4096)
    a("v_lshrrev_b32 v30, 3, v%d" % V_LANE); a("v_bfe_u32 v31, v%d, 4, 1" % V_LANE); a("v_lshlrev_b32 v31, 1, v31")
    a("v_and_b32 v%d, 7, v%d" % (TA, V_LANE)); a("v_xor_b32 v31, v31, v%d" % TA); a("v_mul_u32_u24 v30, 1152, v30")
    a("v_lshl_add_u32 v%d, v31, 4, v30" % DA); a("v_xor_b32 v31, 4, v31"); a("v_lshl_add_u32 v%d, v31, 4, v30" % (DA+1))
    for q in (5, 4, 3, 2, 1, 0): a("v_add_u32 v%d, %d, v%d" % (DA+q, 9216*q - 1024*(q % 3) + 4096, DA + (q & 1)))
    a("v_lshrrev_b32 v30, 2, v%d" % V_R); a("v_lshl_add_u32 v31, v%d, 3, v30" % V_G); a("v_lshlrev_b32 v31, 7, v31")
    a("v_lshrrev_b32 v30, 1, v30"); a("v_and_b32 v%d, 1, v%d" % (TA, V_G)); a("v_lshl_add_u32 v30, v%d, 1, v30" % TA)
    a("v_xor_b32 v30, s%d, v30" % S_WAVE); a("v_lshl_add_u32 v31, v30, 5, v31"); a("v_and_b32 v30, 3, v%d" % V_R)
    a("v_lshl_add_u32 v%d, v30, 3, v31" % TA)
    a("s_mul_i32 s55, s51, 12"); a("s_add_u32 s55, s55, s%d" % S_WAVE); a("s_mul_i32 s55, s55, %d" % (48*1152))
    a("s_mul_i32 s63, s%d, 6144" % S_WAVE)
    a("s_barrier")
    a("s_mov_b32 s59, 0")
    a.label("L_p6_a")
    for half in (1, 0):
        b, o = gelu(AC+16*(1-half))
        subpass(AC+16*half, o, batch=b, head=nexttile())
    a("s_add_u32 s59, s59, 1"); a("s_cmp_lt_u32 s59, 3"); a("s_cbranch_scc1 L_p6_a")
    b, o = gelu(AC)
    subpass(AC+16, o, batch=b, head=nexttile())
    CH = 24576
    def slot(n): return n % 3 if n < 6 else (n + 3) % 6
    def src(c, s): return "s_add_u32 s58, s%d, %d" % (s, 192*1152*c)
    def dma(n, s):
        o = []
        for q in range(6):
            pre = src(n % 3, s) + "\n" if q == 0 else ""
            if q % 3 == 0: pre = "s_add_u32 m0, s63, %d\n" % (CH*slot(n) + 1024*q) + (pre or "s_nop 0\n")
            o.append(pre + "buffer_load_dwordx4 v%d, s[%d:%d], s58 offen offset:%d lds" % (DA+q, R_B, R_B+3, 1024*(q % 3)))
        return o
    def origin(d, step):
        if step == 0: return ["s_add_u32 s%d, s55, 1024" % d]
        return ["s_add_u32 s46, s51, %s" % step, "s_and_b32 s46, s46, 7", "s_lshl_b32 s46, s46, 7", "s_add_u32 s%d, s55, s46" % d]
    for x in origin(64, 0) + origin(65, 1): a(x)
    d012 = dma(0, 64) + dma(1, 64) + dma(2, 64)
    b, o = gelu(AC+16)
    subpass(AC, o, batch=b, head=nexttile(), loads=lambda j: d012[j])
    a("s_lshl_b32 s46, s61, 13"); a("v_add_u32 v5, s46, v35")
    raw = [(src(j//6, 65) + "\n" if j % 6 == 0 else "") + "buffer_load_dwordx4 a[%d:%d], v%d, s[%d:%d], s58 offen offset:%d" % (RING+4*j, RING+4*j+3, DA + j % 6, R_B, R_B+3, 1024*(j % 3)) for j in range(18)]
    g = G(); gelu_pk(g, [AC+2*k for k in range(8)], GT)
    interleave(a, g.lines, raw[:14])
    for T in range(4):
        for h in range(2): a("v_cvt_pk_bf16_f32 v%d, v%d, v%d" % (PK+2*T+h, AC+4*T+2*h, AC+4*T+2*h+1))
        a("ds_write_b64 v5, v[%d:%d] offset:%d" % (PK+2*T, PK+2*T+1, 1024*T))
        a(raw[14+T])
    a("v_add_u32 v35, s63, v%d" % V_L16)
    a("s_waitcnt vmcnt(18) lgkmcnt(0)"); a("s_barrier")
    a.stamp("p6_a")
    def park(c): return ["ds_write_b128 v%d, a[%d:%d] offset:%d" % (RB+26, RING+24*c+4*q, RING+24*c+4*q+3, CH*c + 1024*q) for q in range(6)]
    def pstore(ac):
        o = ["v_cvt_pk_bf16_f32 v%d, v%d, v%d" % (PK+k, ac+2*k, ac+2*k+1) for k in range(8)]
        o += ["buffer_store_dwordx4 v[%d:%d], v%d, s[%d:%d], s62 offen offset:%d sc1" % (PK+4*p, PK+4*p+3, V_L16, R_WS, R_WS+3, 1024*p) for p in range(2)]
        return o
    def dest(step):
        if step == 0: return ["s_add_u32 s62, s56, %d" % (8*65536)]
        return ["s_add_u32 s46, s51, %s" % step, "s_and_b32 s46, s46, 7", "s_lshl_b32 s46, s46, 16", "s_add_u32 s62, s46, s56"]
    def wf(pp): return (RB, RB+8, ST)[pp % 3]
    def wread(n, p):
        o = ["v_add_u32 v%d, %d, v%d" % (TA+1, CH*slot(n), TA)] if p == 0 else []
        pp = 3*n + p
        return o + ["ds_read_b64_tr_b16 v[%d:%d], v%d offset:%d" % (wf(pp)+4*q+2*hh, wf(pp)+4*q+2*hh+1, TA+1, 4096*(2*p+q) + 512*hh) for q in range(2) for hh in range(2)]
    def step(s, ac, fill, head=(), first=None, c0=None, before={}, after={}, at={}):
        if "p6nost" in ABL: fill = [x for x in fill if "buffer_store" not in x]
        if "p6nold" in ABL: after = {k: [x for x in v if " lds" not in x] or ["s_nop 0"] for k, v in after.items()}
        fill = list(fill); head = list(head); lg = list(step.lg)
        seq = [(2*p + q, T) for p in range(9) for T in range(4) for q in range(2)]
        hr = ["ds_read_b128 %s[%d:%d], v%d offset:%d" % (xf(T, j)[0], xf(T, j)[1], xf(T, j)[1]+3, first[j//9], 1024*(4*(j % 9) + T)) for j, T in seq] if first else []
        def lds(x, tag):
            a(x)
            if x.startswith("ds_"): lg.append(tag)
        def upto(tag):
            if tag in lg:
                n = len(lg) - 1 - max(i for i, t in enumerate(lg) if t == tag)
                a("s_waitcnt lgkmcnt(%d)" % min(n, 15)); del lg[:len(lg) - min(n, 15)]
                return 1
            return 0
        for i, x in enumerate(hr[:8]): lds(x, ("h", i))
        extra = [(w - 72, x) for w, x in step.extra]
        for m, (j, T) in enumerate(seq):
            p, c = m//8, m//24
            room = 2
            if m % 24 == 8 and 3*s + c < 26:
                if c in before: before[c]()
                upto("x")
                if "p6nobar" not in ABL: a("s_barrier")
                assert not extra
                ex = after.get(c, []); extra = [(m + 24*k//len(ex), x) for k, x in enumerate(ex)]
            if m % 8 == 0:
                upto(("w", 9*s + p))
                nx = wread(3*s + (p+2)//3, (p+2) % 3) if 9*s + p < 79 else []
            if m % 2 == 0 and first: upto(("h", m+1))
            if m % 4 == 0 and m//4 in at: at[m//4]()
            t, r = xf(T, j)
            a(mfma(ac+4*T, wf(9*s+p)+4*(j & 1), r, (None if c0 is None else c0+4*T) if j == 0 else ac+4*T, tb=t))
            if nx:
                lds(nx.pop(0), ("w", 9*s + p + 2)); room -= 1
            if m + 8 < len(hr): lds(hr[m+8], ("h", m+8)); room -= 1
            if m < 3:
                n = (len(head) + 2 - m)//(3 - m)
                for x in head[:n]: a(x)
                del head[:n]
            while extra and extra[0][0] <= m:
                lds(extra.pop(0)[1], "x"); room -= 1
            if m >= 4:
                while fill and wt(fill[0]) <= room: room -= wt(fill[0]); a(fill.pop(0))
        assert not fill
        step.lg = lg; step.extra = extra
    def mix(x, y): return [z for pair in zip(x, y) for z in pair]
    def vm(n): return lambda: a("s_waitcnt vmcnt(%d)" % n)
    def seq(*fs):
        def f():
            for x in fs: x()
        return f
    def wave(w, body):
        def f():
            L = a.newlabel("Lex"); a("s_cmp_lg_u32 s%d, %d" % (S_WAVE, w)); a("s_cbranch_scc1 %s" % L); body(); a.label(L)
        return f
    a("s_lshl_b32 s70, s50, 10"); a("s_add_u32 s70, s70, %d" % (FLAG0 + 128*FA)); a("s_lshl_b32 s46, s51, 7"); a("s_add_u32 s68, s70, s46")
    a("s_mul_i32 s46, s50, 9"); a("s_add_u32 s46, s46, s51"); a("s_lshl_b32 s46, s46, 16"); a("s_lshl_b32 s47, s%d, 11" % S_WAVE)
    a("s_add_u32 s46, s46, s47"); a("s_add_u32 s69, s46, %d" % PART)
    a("v_and_b32 v5, 7, v%d" % V_LANE); a("v_cmp_eq_u32 vcc, s51, v5"); a("v_xor_b32 v30, 1, v5")
    a("v_cndmask_b32 v5, v5, v30, vcc"); a("v_lshlrev_b32 v5, 7, v5")
    def publish(c):
        def f():
            a("s_add_u32 s46, s%d, %d" % (S_NONCE, c)); a("v_mov_b32 v29, s46"); a("s_mov_b64 exec, 1")
            a("buffer_store_dword v29, v28, s[%d:%d], s68 offen sc1" % (R_WS, R_WS+3))
            a("s_mov_b64 exec, -1")
        return wave(0, f)
    askq = "buffer_load_dword v31, v5, s[%d:%d], s70 offen sc1" % (R_WS, R_WS+3)
    ask = wave(0, lambda: a(askq))
    def need(c, n):
        def f():
            L = a.newlabel("Lcf")
            a("s_add_u32 s73, s%d, %d" % (S_NONCE, c)); a("s_mov_b32 s47, 100000"); a("s_waitcnt vmcnt(%d)" % n)
            a.label(L)
            a("v_subrev_u32 v30, s73, v31"); a("v_cmp_lt_u32 vcc, 7, v30"); a("s_cbranch_vccz %s_x" % L)
            a("s_sleep 1"); a(askq); a("s_waitcnt vmcnt(0)")
            a("s_sub_u32 s47, s47, 1"); a("s_cbranch_scc0 %s" % L)
            a.label(L + "_x")
        return wave(0, f)
    step.extra = []
    a("v_mov_b32 v%d, v33" % (RB+24)); a("v_mov_b32 v%d, v34" % (RB+25)); a("v_mov_b32 v%d, v35" % (RB+26))
    for x in wread(0, 0) + wread(0, 1): a(x)
    step.lg = [("w", 0)]*4 + [("w", 1)]*4
    step(0, AC, [], first=(RB+24, RB+25), head=origin(64, 2),
         after={1: ["s_waitcnt vmcnt(12)"] + mix(park(0), dma(6, 64)), 2: ["s_waitcnt vmcnt(12)"] + mix(park(1), dma(7, 64))})
    a.stamp("p6_s0")
    step(1, AC+16, pstore(AC), head=dest(0) + origin(65, 3), before={2: vm(18)},
         after={0: ["s_waitcnt vmcnt(12)"] + mix(park(2), dma(8, 64)), 1: dma(9, 65), 2: dma(10, 65)})
    a.stamp("p6_s1")
    a("s_mov_b32 s71, 2")
    a.label("L_p6_b")
    w18 = {0: vm(18), 1: vm(18), 2: vm(18)}
    def last(body):
        def f():
            L = a.newlabel("Ll"); a("s_cmp_eq_u32 s71, 4"); a("s_cbranch_scc0 %s" % L); body(); a.label(L)
        return f
    lg0 = list(step.lg); ex0 = list(step.extra)
    step(2, AC, pstore(AC+16), head=["s_sub_u32 s72, s71, 1"] + dest("s72") + ["s_add_u32 s72, s71, 2"] + origin(64, "s72"), before=w18,
         after={0: dma(11, 65), 1: dma(12, 64), 2: dma(13, 64)})
    step(3, AC+16, pstore(AC), head=dest("s71") + ["s_add_u32 s72, s71, 3"] + origin(65, "s72"), before={0: vm(18), 1: vm(18), 2: seq(vm(18), last(vm(10)))},
         after={0: dma(14, 64), 1: dma(15, 65), 2: dma(16, 65)}, at={15: last(publish(4))})
    assert [t[0] for t in step.lg] == [t[0] for t in lg0] and step.extra == ex0
    a("s_add_u32 s71, s71, 2"); a("s_cmp_lt_u32 s71, 6"); a("s_cbranch_scc1 L_p6_b")
    step.lg = [("w", t[1] + 36) for t in lg0]
    a.stamp("p6_s5")
    def SC(k): return (54, 57, 59, 61, 72, 75, 76)[k-1]
    for k in range(1, 8):
        r = SC(k); a("s_sub_u32 s%d, s51, %d" % (r, k)); a("s_and_b32 s%d, s%d, 7" % (r, r)); a("s_lshl_b32 s%d, s%d, 13" % (r, r)); a("s_add_u32 s%d, s%d, s69" % (r, r))
    CB = {k: ("v", RB + 24 + 8*(k-2)) if k > 1 else ("a", RING+48) for k in range(1, 8)}
    def cload(k): return [bload(CB[k][1]+4*p, SC(k), 1024*p, t=CB[k][0]) for p in range(2)]
    def emit(xs): return lambda: [a(x) for x in xs]
    def add(acc, k):
        def f():
            for T in range(4): a(mfma(acc+4*T, SEL if T & 1 else SEL+2, CB[k][1]+4*(T >> 1), acc+4*T, tb=CB[k][0]))
        return f
    step(6, AC, pstore(AC+16), head=dest(5) + origin(64, 8), before={0: vm(18), 1: vm(18), 2: seq(need(4, 6), vm(10))},
         after={0: dma(23, 65), 1: dma(24, 64), 2: dma(25, 64)}, at={6: ask, 15: publish(5), 16: emit(cload(1))})
    a.stamp("p6_s6")
    a("s_mul_i32 s46, s50, 9"); a("s_add_u32 s46, s46, 8"); a("s_lshl_b32 s46, s46, 16"); a("s_lshl_b32 s47, s51, 10")
    a("s_add_u32 s46, s46, s47"); a("s_add_u32 s78, s46, %d" % PART)
    a("s_and_b32 s46, s51, 1"); a("s_mul_i32 s74, s46, 36864"); a("s_add_u32 s74, s74, s60")
    a("s_lshr_b32 s47, s51, 2"); a("s_add_u32 s47, s47, 16"); a("s_lshl_b32 s46, s47, 10"); a("s_add_u32 s79, s46, s74")
    a("s_lshr_b32 s46, s51, 1"); a("s_lshl_b32 s46, s46, 5"); a("s_add_u32 s46, s46, 1024"); a("s_add_u32 s74, s74, s46")
    def extra_get():
        for k in range(8):
            a(bload(RING+4*k, 78)); a("s_add_u32 s78, s78, 8192")
        for k, off in enumerate((H_OFF, X1_OFF)):
            for T in range(2):
                a("s_add_u32 s46, s79, %d" % (off + 18432*T)); a(bload(RING+32+8*k+4*T, 46))
    step(7, AC+16, pstore(AC), head=dest(6), before={0: vm(18), 1: vm(18), 2: seq(need(5, 2), vm(18))}, after={0: dma(26, 64)},
         at={3: emit(cload(2)), 6: emit(cload(3)), 9: ask, 10: emit(cload(4)), 15: emit(cload(5))})
    a.stamp("p6_s7")
    SEv, EA = AC+16, AC+24
    g = G()
    g.lines += natsel(SEv, 51, 1, EA)
    OB = 147456
    g("v_mul_u32_u24 v%d, 144, v%d" % (AC+20, V_R)); g("v_lshl_add_u32 v%d, v%d, 3, v%d" % (AC+20, V_G, AC+20))
    g.lines.append("s_lshl_b32 s66, s%d, 5\ns_add_u32 s66, s66, %d" % (S_WAVE, OB))
    g("v_add_u32 v%d, s66, v%d" % (AC+20, AC+20))
    g("v_lshrrev_b32 v%d, 3, v0" % EA); g("v_and_b32 v%d, 7, v0" % (EA+1)); g("v_lshlrev_b32 v%d, 4, v%d" % (EA+1, EA+1))
    g("v_mul_u32_u24 v%d, 144, v%d" % (AC+21, EA)); g("v_add_u32 v%d, v%d, v%d" % (AC+21, AC+21, EA+1)); g("v_add_u32 v%d, %d, v%d" % (AC+21, OB, AC+21))
    g("v_mul_u32_u24 v%d, 1152, v%d" % (AC+22, EA)); g("v_add_u32 v%d, v%d, v%d" % (AC+22, AC+22, EA+1))
    g("v_mul_u32_u24 v%d, 1152, v%d" % (AC+23, V_R)); g("v_lshl_add_u32 v%d, v%d, 3, v%d" % (AC+23, V_G, AC+23))
    step(8, AC, pstore(AC+16) + g.lines, head=dest(7), c0=R3, before={0: vm(10), 1: vm(2)},
         at={8: add(AC, 1), 9: wave(3, extra_get), 10: add(AC, 2), 12: seq(add(AC, 3), emit(cload(6))),
             14: add(AC, 4), 16: add(AC, 5), 17: emit(cload(7))})
    a.stamp("p6_b")
    a.srd(R_A, S_OUT, ACT)
    a("s_cmp_lg_u32 s%d, 3" % S_WAVE); a("s_cbranch_scc1 L_p7_main")
    a("s_waitcnt vmcnt(4)")
    for k in range(8):
        a(mfma(EA, SEL+2, RING+4*k, None if k == 0 else EA, tb="a")); a(mfma(EA+4, SEL, RING+4*k, None if k == 0 else EA+4, tb="a"))
    for k in range(2):
        for T in range(2): a(mfma(EA+4*T, SEv, RING+32+8*k+4*T, EA+4*T, tb="a"))
    for T in range(2):
        for h in range(2): a("v_cvt_pk_bf16_f32 v%d, v%d, v%d" % (PK+2*T+h, EA+4*T+2*h, EA+4*T+2*h+1))
    a.label("L_p7_main")
    for k in (6, 7):
        base = CB[k][1]
        L = a.newlabel("Ltag")
        a("s_mov_b32 s47, 100000")
        a("s_waitcnt vmcnt(%d)" % (2 if k == 6 else 0))
        a.label(L)
        for x in tag_ops(range(base, base+8), 30): a(x)
        a("s_cbranch_vccz %s_x" % L)
        for x in cload(k): a(x)
        a("s_waitcnt vmcnt(0)")
        a("s_sub_u32 s47, s47, 1"); a("s_cbranch_scc0 %s" % L)
        a.label(L + "_x")
        add(AC, k)()
    a.stamp("p7_ready")
    a("s_cmp_lg_u32 s%d, 3" % S_WAVE); a("s_cbranch_scc1 L_p7_acc")
    for T in range(2):
        a("buffer_store_dwordx2 v[%d:%d], v%d, s[%d:%d], s74 offen%s" % (PK+2*T, PK+2*T+1, AC+23, R_A, R_A+3, OFL))
        a("s_add_u32 s74, s74, 18432")
    a.label("L_p7_acc")
    a("s_lshl_b32 s46, s51, 7"); a("s_add_u32 s46, s46, s60"); a("s_add_u32 s47, s46, 36864")
    for T in range(4):
        for h in range(2): a("v_cvt_pk_bf16_f32 v%d, v%d, v%d" % (R3+2*T+h, AC+4*T+2*h, AC+4*T+2*h+1))
        a("ds_write_b64 v%d, v[%d:%d] offset:%d" % (AC+20, R3+2*T, R3+2*T+1, 2304*T))
    a("s_waitcnt lgkmcnt(0)"); a("s_barrier")
    for p in range(2): a("ds_read_b128 v[%d:%d], v%d offset:%d" % (R3+8+4*p, R3+11+4*p, AC+21, 4608*p))
    for p in range(2):
        a("s_waitcnt lgkmcnt(%d)" % (1-p))
        a("buffer_store_dwordx4 v[%d:%d], v%d, s[%d:%d], s%d offen%s" % (R3+8+4*p, R3+11+4*p, AC+22, R_A, R_A+3, 46+p, OFL))
```

```python
import sys, os, struct, math
sys.path.insert(0, "dev"); sys.path.insert(0, "bak2")
from asmlib import Asm, build
from hazard import fix_hazards, check_waits

NAME = "sequential_preLN__sliding_block__mixer_s_mlp__prompt"
KN = NAME + "_kernel"

ACT = 2048*576*2
SW  = 576*576*2
BW  = 576*4608*2
FLAG0 = 128
F1, FS, F2, F3, F4, F5, FA, FB = 0, 256, 640, 896, 1152, 1408, 1664, 2688
TS_OFF = 0x80000
Q_OFF  = 0x90000
K_OFF  = Q_OFF + ACT
V_OFF  = K_OFF + ACT
O_OFF  = V_OFF + ACT
H_OFF  = O_OFF + ACT
SH_OFF = H_OFF + ACT
T_OFF  = SH_OFF + 98304
X1_OFF = T_OFF + ACT
SX_OFF = X1_OFF + ACT
WO_S   = SX_OFF + 98304
W1_S   = WO_S + SW
W2_S   = W1_S + SW
W3_S   = W2_S + SW
W4_S   = W3_S + BW
PART   = W4_S + BW
WS_END = PART + 32*9*8*8192
FP_OFF = 0x7F000
FP2_OFF = FP_OFF + 1024
MARK_N = T_OFF - O_OFF
MKG = 19
MARK_W = 2048*MKG
assert 128*MARK_W >= MARK_N and 1024*5120 >= WO_S - T_OFF
HPSZ   = 147456

WSOFF = 0
MK0 = int(os.environ.get('MK0', 0))
MK1 = int(os.environ.get('MK1', 0))
THR = int(os.environ.get('THR', 0))
NW3 = int(os.environ.get('NW3', 0))
ABL = os.environ.get('ABL', '').split(',')
CLK = 's_memtime'
def f32(x): return struct.unpack("<I", struct.pack("<f", x))[0]
def magic(d): return (1 << 32)//d + 1

S_X, S_WQKV, S_WO = 4, 6, 8
S_W1, S_W2, S_W3, S_W4 = 12, 14, 16, 18
S_OUT, S_DBG, S_WS = 20, 22, 24
R_WS, R_A, R_B = 28, 32, 36
S_WAVE, S_XCD, S_SLOT, S_NONCE = 40, 41, 42, 43
S_ONES = 44
V_LANE, V_R, V_G, V_L16 = 1, 2, 3, 4

class G(Asm):
    def __init__(s, stop=99, stamps=False):
        super().__init__()
        s.stop = stop; s.stamps = stamps; s.stubs = []
    def srd(a, d, p, size, add=0):
        if add >= 0:
            a("s_add_u32 s%d, s%d, %s" % (d, p, add)); a("s_addc_u32 s%d, s%d, 0" % (d+1, p+1))
        else:
            a("s_sub_u32 s%d, s%d, %d" % (d, p, -add)); a("s_subb_u32 s%d, s%d, 0" % (d+1, p+1))
        a("s_mov_b32 s%d, %d" % (d+2, size)); a("s_mov_b32 s%d, 0x20000" % (d+3))
    def srd_s(a, d, p, size, sreg):
        a("s_add_u32 s%d, s%d, s%d" % (d, p, sreg)); a("s_addc_u32 s%d, s%d, 0" % (d+1, p+1))
        a("s_mov_b32 s%d, %d" % (d+2, size)); a("s_mov_b32 s%d, 0x20000" % (d+3))
    def sdiv(a, q, r, x, d):
        a("s_mul_hi_u32 s%d, s%d, %d" % (q, x, magic(d)))
        if r is not None:
            a("s_mul_i32 s%d, s%d, %d" % (r, q, d)); a("s_sub_u32 s%d, s%d, s%d" % (r, x, r))
    def jitter(a):
        L = a.newlabel("Ljit")
        a("s_memrealtime s[98:99]"); a("s_waitcnt lgkmcnt(0)")
        a("s_mul_i32 s98, s98, 0x9E3779B1"); a("s_mul_i32 s99, s2, 0x85EBCA6B"); a("s_add_u32 s98, s98, s99"); a("s_mul_i32 s99, s%d, 0x27D4EB2F" % S_WAVE)
        a("s_add_u32 s98, s98, s99"); a("s_lshr_b32 s99, s98, 29"); a("s_lshr_b32 s98, s98, 20"); a("s_and_b32 s98, s98, 127")
        a("s_cmp_lt_u32 s99, 5"); a("s_cselect_b32 s98, 0, s98")
        a.label(L)
        a("s_cmp_eq_u32 s98, 0"); a("s_cbranch_scc1 %s_x" % L); a("s_sleep 1"); a("s_sub_u32 s98, s98, 1"); a("s_branch %s" % L)
        a.label(L + "_x")
    def stamp(a, name):
        if "jitter" in ABL and name not in ("start", "end"): a.jitter()
        if not a.stamps or name not in a.stamps: return
        k = a.stamps.index(name)
        a("%s s[98:99]" % CLK); a("s_waitcnt lgkmcnt(0)"); a("s_mov_b32 s%d, s98" % (80+k))
    def stamp_out(a):
        if not a.stamps: return
        a.stamp("end")
        a("s_lshl_b32 s98, s2, 2"); a("s_add_u32 s98, s98, s%d" % S_WAVE); a("s_lshl_b32 s98, s98, 6"); a("s_add_u32 s98, s98, %d" % TS_OFF)
        a("v_mov_b32 v255, 0")
        for k in range(16):
            a("v_mov_b32 v254, s%d" % (80+k))
            a("buffer_store_dword v254, v255, s[%d:%d], s98 offen offset:%d" % (R_WS, R_WS+3, 4*k))
            a("s_nop 1")
    def xg_reduce(a, v, t, op="v_add_f32"):
        for sw in ("v_permlane32_swap_b32", "v_permlane16_swap_b32"):
            a("v_mov_b32 v%d, v%d" % (t, v)); a("%s v%d, v%d" % (sw, v, t)); a("%s v%d, v%d, v%d" % (op, v, v, t))
    def get_nonce(a, vt):
        L = a.newlabel("Lnon")
        a("s_mov_b32 s46, 200000"); a("v_mov_b32 v%d, 0" % (vt+2))
        a.label(L)
        a("global_load_dwordx2 v[%d:%d], v%d, s[%d:%d] sc1" % (vt, vt+1, vt+2, S_DBG, S_DBG+1))
        a("s_waitcnt vmcnt(0)")
        a("v_readfirstlane_b32 s47, v%d" % (vt+1)); a("v_readfirstlane_b32 s%d, v%d" % (S_NONCE, vt))
        a("s_sub_u32 s46, s46, 1"); a("s_cbranch_scc1 %s_x" % L)
        a("s_cmp_eq_u32 s47, 0"); a("s_cbranch_scc1 %s" % L)
        a.label(L + "_x")
    def set_flag(a, sidx, vt):
        a("s_lshl_b32 s%d, s%d, 7" % (sidx, sidx)); a("s_add_u32 s%d, s%d, %d" % (sidx, sidx, FLAG0))
        a("v_mov_b32 v%d, s%d" % (vt, S_NONCE)); a("v_mov_b32 v%d, 0" % (vt+1))
        a("s_mov_b64 exec, 1")
        a("buffer_store_dword v%d, v%d, s[%d:%d], s%d offen sc1" % (vt, vt+1, R_WS, R_WS+3, sidx))
        a("s_mov_b64 exec, -1")
    def set_mark(a, vt, off):
        a("s_lshl_b32 s46, s2, 2"); a("s_add_u32 s46, s46, %d" % off)
        a("v_mov_b32 v%d, s%d" % (vt, S_NONCE)); a("v_mov_b32 v%d, 0" % (vt+1))
        a("s_mov_b64 exec, 1")
        a("buffer_store_dword v%d, v%d, s[%d:%d], s46 offen sc1" % (vt, vt+1, R_WS, R_WS+3))
        a("s_mov_b64 exec, -1")
    def poll(a, vidx, vt, sleep0=6, sleep=2):
        L = a.newlabel("Lpoll")
        a("v_lshlrev_b32 v%d, 7, v%d" % (vidx, vidx))
        a("s_mov_b32 s46, 100000")
        if sleep0: a("s_sleep %d" % sleep0)
        a.label(L)
        a("buffer_load_dword v%d, v%d, s[%d:%d], 0 offen offset:%d sc1" % (vt, vidx, R_WS, R_WS+3, FLAG0))
        a("s_waitcnt vmcnt(0)")
        a("v_cmp_ne_u32 vcc, s%d, v%d" % (S_NONCE, vt))
        a("s_cbranch_vccz %s_x" % L)
        a("s_sleep %d" % sleep)
        a("s_sub_u32 s46, s46, 1"); a("s_cbranch_scc0 %s" % L)
        a.label(L + "_x")

def mfma(d, A, B, C=None, ta="v", tb="v", td="v"):
    c = "0" if C is None else "%s[%d:%d]" % (td, C, C+3)
    return "v_mfma_f32_16x16x32_bf16 %s[%d:%d], %s[%d:%d], %s[%d:%d], %s" % (td, d, d+3, ta, A, A+3, tb, B, B+3, c)

def interleave(a, main, fill, start=0):
    n = len(main) - start; k = 0
    for i, m in enumerate(main):
        a(m)
        if i >= start:
            upto = (len(fill)*(i-start+1) + n - 1)//n
            while k < upto: a(fill[k]); k += 1

def prologue(a):
    a("s_cmp_ge_u32 s2, 256"); a("s_cbranch_scc1 L_end")
    a("s_load_dwordx4 s[4:7], s[0:1], 0")
    a("s_load_dwordx2 s[24:25], s[0:1], 80")
    a("s_load_dwordx2 s[8:9], s[0:1], 16")
    a("s_load_dwordx8 s[12:19], s[0:1], 32")
    a("s_load_dwordx4 s[20:23], s[0:1], 64")
    a("v_and_b32 v%d, 63, v0" % V_LANE)
    a("v_lshrrev_b32 v5, 6, v0")
    a("v_and_b32 v%d, 15, v0" % V_R)
    a("v_readfirstlane_b32 s%d, v5" % S_WAVE)
    a("v_lshrrev_b32 v%d, 4, v%d" % (V_G, V_LANE))
    a("v_lshlrev_b32 v%d, 4, v%d" % (V_L16, V_LANE))
    if "antiloc" in ABL:
        a("s_lshr_b32 s46, s2, 5"); a("s_and_b32 s47, s2, 31"); a("s_lshl_b32 s47, s47, 3"); a("s_or_b32 s2, s46, s47")
    a("s_and_b32 s%d, s2, 7" % S_XCD); a("s_lshr_b32 s%d, s2, 3" % S_SLOT)
    a("s_mov_b32 s%d, 0x3f803f80" % S_ONES)
    if "nopf" not in ABL:
        a("s_getpc_b64 s[46:47]")
        a.label("L_pc")
        a("s_mul_i32 s48, s%d, %d" % (S_SLOT, 20*128)); a("v_lshl_add_u32 v5, v0, 7, s48")
        a("v_cmp_gt_u32 vcc, 20, v0"); a("s_mov_b32 s48, L_last-L_pc"); a("v_cmp_gt_u32 s[48:49], s48, v5"); a("s_and_b64 vcc, vcc, s[48:49]")
        a("s_and_saveexec_b64 s[48:49], vcc"); a("s_cbranch_execz L_pcd")
        a("global_load_dword v253, v5, s[46:47]")
        a.label("L_pcd")
        a("s_mov_b64 exec, -1")
    if a.stamps:
        for k in range(16): a("s_mov_b32 s%d, 0" % (80+k))
        a.stamp("start")

def publish_nonce(a):
    L = a.newlabel("Lpn")
    a("s_xor_b32 s46, s2, 224"); a("s_or_b32 s46, s46, s%d" % S_WAVE); a("s_cmp_lg_u32 s46, 0"); a("s_cbranch_scc1 %s" % L)
    a("v_mov_b32 v252, 0")
    a("buffer_load_dword v250, v252, s[%d:%d], 0 offen sc1" % (R_WS, R_WS+3))
    a("s_mov_b32 s46, 0x9E3779B1")
    a("s_waitcnt vmcnt(0)")
    a("v_mul_lo_u32 v250, v250, s46"); a("v_add_u32 v250, 0x7F4A7C15, v250"); a("v_mov_b32 v251, 1")
    a("s_mov_b64 exec, 1")
    a("buffer_store_dword v250, v252, s[%d:%d], 0 offen sc1" % (R_WS, R_WS+3))
    a("global_store_dwordx2 v252, v[250:251], s[%d:%d] sc1" % (S_DBG, S_DBG+1))
    a("s_mov_b64 exec, -1")
    a.label(L)

def swizzle_setup(a):
    for i in range(9):
        a("v_add_u32 v40, %d, v%d" % (64*i, V_LANE))
        a("v_mul_u32_u24 v%d, 911, v40" % (10+i)); a("v_lshrrev_b32 v%d, 16, v%d" % (10+i, 10+i))
        a("v_mul_u32_u24 v41, 72, v%d" % (10+i)); a("v_sub_u32 v41, v40, v41"); a("v_lshlrev_b32 v%d, 4, v41" % (20+i))
    a("v_lshrrev_b32 v40, 2, v%d" % V_R); a("v_lshl_add_u32 v40, v%d, 3, v40" % V_G); a("v_mul_u32_u24 v40, 1152, v40")
    a("v_and_b32 v41, 3, v%d" % V_R); a("v_lshl_add_u32 v30, v41, 4, v40")
    a("s_lshr_b32 s46, s%d, 1" % S_WAVE); a("s_lshl_b32 s46, s46, 6"); a("s_and_b32 s47, s%d, 1" % S_WAVE); a("s_lshl_b32 s47, s47, 3")
    a("s_add_u32 s46, s46, s47"); a("v_add_u32 v30, s46, v30")

def sw_decode(a, su, p):
    Ln = a.newlabel("Lsw")
    D = 60+3*p
    a("s_cmp_ge_u32 s%d, 54" % su); a("s_cbranch_scc1 %s_big" % Ln)
    a.sdiv(51, 52, su, 18)
    a("s_cmp_eq_u32 s51, 1"); a("s_cselect_b32 s54, s%d, s%d" % (S_W1, S_W2)); a("s_cselect_b32 s55, s%d, s%d" % (S_W1+1, S_W2+1))
    a("s_cmp_eq_u32 s51, 0"); a("s_cselect_b32 s54, s%d, s54" % S_WO); a("s_cselect_b32 s55, s%d, s55" % (S_WO+1))
    a("s_mul_i32 s%d, s51, %d" % (D, SW)); a("s_add_u32 s%d, s%d, %d" % (D, D, WO_S))
    a("s_mul_i32 s53, s%d, 18432" % S_WAVE); a("s_add_u32 s%d, s%d, s53" % (D, D))
    a("s_mov_b32 s%d, 73728" % (D+1))
    a("s_lshl_b32 s56, s52, 5"); a("s_lshl_b32 s53, s%d, 3" % S_WAVE); a("s_add_u32 s56, s56, s53")
    a("s_mov_b32 s57, 0"); a("s_mov_b32 s59, 1152")
    a("s_cmp_lg_u32 s51, 0"); a("s_cbranch_scc1 %s_j" % Ln)
    a("s_mul_i32 s56, s52, 36"); a("s_lshl_b32 s53, s%d, 2" % S_WAVE); a("s_add_u32 s56, s56, s53"); a("s_mov_b32 s57, 16")
    a("s_cmp_lt_u32 s52, 16"); a("s_cbranch_scc1 %s_j" % Ln)
    a("s_sub_u32 s56, s52, 16"); a("s_lshl_b32 s56, s56, 2"); a("s_add_u32 s56, s56, s%d" % S_WAVE)
    a("s_mul_i32 s56, s56, 72"); a("s_add_u32 s56, s56, 16"); a("s_mov_b32 s57, 32")
    a("s_branch %s_j" % Ln)
    a.label(Ln + "_big")
    sw_big(a, su, D)
    a("s_lshl_b32 s56, s52, 5"); a("s_lshl_b32 s53, s%d, 3" % S_WAVE); a("s_add_u32 s56, s56, s53"); a("s_mov_b32 s57, 0")
    a("s_cmp_ge_u32 s51, 8"); a("s_cbranch_scc1 %s_w4" % Ln)
    a("s_mul_i32 s53, s51, 1152"); a("s_add_u32 s54, s%d, s53" % S_W3); a("s_addc_u32 s55, s%d, 0" % (S_W3+1)); a("s_mov_b32 s59, 9216")
    a("s_branch %s_j" % Ln)
    a.label(Ln + "_w4")
    a("s_sub_u32 s53, s51, 8"); a("s_mul_i32 s53, s53, %d" % SW); a("s_add_u32 s54, s%d, s53" % S_W4); a("s_addc_u32 s55, s%d, 0" % (S_W4+1)); a("s_mov_b32 s59, 1152")
    a.label(Ln + "_j")
    a("s_lshl_b32 s53, s52, 10"); a("s_add_u32 s%d, s%d, s53" % (D, D))
    a("s_add_u32 s%d, s%d, %d" % (D+2, su, FS))

def sw_big(a, su, D):
    a("s_sub_u32 s53, s%d, 54" % su); a.sdiv(51, 52, 53, 18)
    a("s_mul_i32 s%d, s51, %d" % (D, 4*9*18432)); a("s_add_u32 s%d, s%d, %d" % (D, D, W3_S))
    a("s_mul_i32 s53, s%d, %d" % (S_WAVE, 9*18432)); a("s_add_u32 s%d, s%d, s53" % (D, D))
    a("s_mov_b32 s%d, 18432" % (D+1))

def sw_issue(a, su, p, lds):
    sw_decode(a, su, p)
    a("s_mov_b32 s%d, s54" % R_A); a("s_mov_b32 s%d, s55" % (R_A+1))
    a("s_mul_i32 s%d, s59, 575" % (R_A+2)); a("s_add_u32 s%d, s%d, 1152" % (R_A+2, R_A+2)); a("s_mov_b32 s%d, 0x20000" % (R_A+3))
    a("s_mul_i32 s53, s%d, 9216" % S_WAVE); a("s_add_u32 m0, s53, %d" % lds)
    for k in range(9):
        a("v_lshrrev_b32 v40, 2, v%d" % (10+k)); a("v_mul_lo_u32 v40, v40, s57"); a("v_add3_u32 v40, v40, v%d, s56" % (10+k))
        a("v_mul_lo_u32 v40, v40, s59"); a("v_add_u32 v40, v40, v%d" % (20+k))
        a("buffer_load_dwordx4 v40, s[%d:%d], 0 offen lds" % (R_A, R_A+3))
        a("s_add_u32 m0, m0, 1024")

def sw_process(a, p, lds):
    a("v_add_u32 v31, %d, v30" % lds)
    for q in range(9):
        for hh in range(2):
            a("ds_read_b64_tr_b16 v[%d:%d], v31 offset:%d" % (44+4*q+2*hh, 45+4*q+2*hh, hh*4608 + 128*q))
    a("s_mov_b32 s53, s%d" % (60+3*p))
    for q in range(9):
        a("s_waitcnt lgkmcnt(%d)" % min(15, 16-2*q))
        a("buffer_store_dwordx4 v[%d:%d], v%d, s[%d:%d], s53 offen sc1" % (44+4*q, 47+4*q, V_L16, R_WS, R_WS+3))
        a("s_add_u32 s53, s53, s%d" % (61+3*p))

def sw_flags(a, ps, mark=False):
    L = a.newlabel("Lswf")
    a("s_cmp_lg_u32 s%d, 0" % S_WAVE); a("s_cbranch_scc1 %s" % L)
    for p in ps: a.set_flag(62+3*p, 40)
    if mark: a.set_mark(40, FP_OFF - 4*224)
    a.label(L)

MK, R_M = 220, 76

def mark_setup(a):
    a.srd(R_M, S_WS, MARK_N, O_OFF)
    for r in range(4): a("v_mov_b32 v%d, -1" % (MK+r))
    a("s_sub_u32 s74, s2, %d" % 224); a("s_lshl_b32 s74, s74, 2"); a("s_add_u32 s74, s74, s%d" % S_WAVE); a("s_mul_i32 s74, s74, %d" % MARK_W)

def mark_fill(a, n):
    L = a.newlabel("Lmk")
    a("s_mov_b32 s75, %d" % n)
    a.label(L)
    a(mark_store(74, 0)); a(mark_store(74, 1024)); a("s_add_u32 s74, s74, 2048"); a("s_waitcnt vmcnt(40)")
    a("s_sub_u32 s75, s75, 1"); a("s_cmp_lg_u32 s75, 0"); a("s_cbranch_scc1 %s" % L)

def mark_store(s, off): return "buffer_store_dwordx4 v[%d:%d], v%d, s[%d:%d], s%d offen offset:%d sc1" % (MK, MK+3, V_L16, R_M, R_M+3, s, off)

def touch_pages(a):
    if "tlb" not in ABL: return
    L = a.newlabel("Ltp")
    a("s_cmp_lg_u32 s%d, 1" % S_WAVE); a("s_cbranch_scc1 %s" % L)
    a("v_lshlrev_b32 v252, 21, v%d" % V_LANE)
    a("buffer_load_dword v253, v252, s[%d:%d], 0 offen offset:64" % (R_WS, R_WS+3))
    for p, size in ((S_W3, BW), (S_W4, BW), (S_OUT, ACT), (S_WO, SW), (S_W1, SW), (S_W2, SW)):
        n = (size - 1 >> 21) + 1
        a("s_mov_b64 exec, %d" % ((1 << n) - 1))
        a("global_load_dword v253, v252, s[%d:%d]" % (p, p+1))
    a("s_mov_b64 exec, -1")
    a.label(L)

def touch_inputs(a, nwg):
    nx, nw = -(-18432//(2*nwg)), -(-15552//(2*nwg))
    a("s_mul_i32 s46, s50, 14"); a("s_add_u32 s46, s46, s51"); a("s_lshl_b32 s46, s46, 1"); a("s_add_u32 s46, s46, s53")
    a("v_lshlrev_b32 v252, 7, v%d" % V_LANE)
    L = a.newlabel("Lti")
    a("s_cmp_lg_u32 s52, 0"); a("s_cbranch_scc1 %s_w" % L)
    a("s_mul_i32 s46, s46, %d" % (128*nx)); a("s_add_u32 s46, s46, 4096"); a("s_mov_b64 exec, 0x%x" % ((1 << nx) - 1) if nx <= 32 else "s_bfm_b64 exec, %d, 0" % nx)
    a("buffer_load_dword v253, v252, s[%d:%d], s46 offen" % (R_A, R_A+3))
    a("s_branch %s" % L)
    a.label(L + "_w")
    a("s_mul_i32 s46, s46, %d" % (128*nw)); a("s_add_u32 s46, s46, 4096"); a("s_bfm_b64 exec, %d, 0" % nw)
    a("buffer_load_dword v253, v252, s[%d:%d], s46 offen" % (R_B, R_B+3))
    a.label(L)
    a("s_mov_b64 exec, -1")

def phase1(a):
    QS = 18**-0.5 * math.log2(math.e)
    a("s_cmp_ge_u32 s%d, 28" % S_SLOT); a("s_cbranch_scc1 L_p1_helper")
    a.sdiv(46, 47, S_SLOT, 7)
    a("s_lshr_b32 s48, s%d, 1" % S_XCD); a("s_lshl_b32 s48, s48, 2"); a("s_add_u32 s50, s48, s46")
    a("s_and_b32 s48, s%d, 1" % S_XCD); a("s_mul_i32 s48, s48, 7"); a("s_add_u32 s51, s48, s47")
    a("s_lshr_b32 s52, s%d, 1" % S_WAVE); a("s_and_b32 s53, s%d, 1" % S_WAVE)
    a("v_lshrrev_b32 v20, 3, v%d" % V_LANE); a("v_and_b32 v21, 7, v%d" % V_LANE)
    a("v_xor_b32 v22, v21, v%d" % V_G); a("v_mul_u32_u24 v20, 1152, v20")
    a("v_lshl_add_u32 v10, v22, 4, v20"); a("v_xor_b32 v22, 4, v22"); a("v_lshl_add_u32 v11, v22, 4, v20")
    a("v_add_u32 v12, %d, v10" % (16*1152 - 2048 + 4096)); a("v_add_u32 v13, %d, v11" % (24*1152 - 3072 + 4096))
    a("v_add_u32 v11, %d, v11" % (8*1152 - 1024 + 4096)); a("v_add_u32 v10, 4096, v10")
    a("v_lshrrev_b32 v20, 1, v%d" % V_R); a("v_xor_b32 v20, v20, v%d" % V_G); a("v_and_b32 v21, 1, v%d" % V_LANE)
    a("v_lshl_add_u32 v21, v20, 1, v21"); a("v_mul_u32_u24 v22, 3456, v%d" % V_G)
    a("v_lshl_add_u32 v14, v21, 4, v22"); a("v_xor_b32 v21, 8, v21"); a("v_lshl_add_u32 v16, v21, 4, v22")
    a("v_add_u32 v15, %d, v14" % (4*3456 - 1024 + 4096)); a("v_add_u32 v17, %d, v16" % (12*3456 - 3072 + 4096))
    a("v_add_u32 v16, %d, v16" % (8*3456 - 2048 + 4096)); a("v_add_u32 v14, 4096, v14")
    a("s_lshl_b32 s54, s50, 2"); a("s_add_u32 s54, s54, s%d" % S_WAVE); a("s_mul_i32 s54, s54, %d" % (32*1152))
    a("s_mul_i32 s55, s%d, %d" % (S_WAVE, 16*3456)); a("s_lshl_b32 s46, s51, 8"); a("s_add_u32 s55, s55, s46")
    a("s_lshl_b32 s56, s%d, 12" % S_WAVE)
    a("s_waitcnt lgkmcnt(0)")
    if WSOFF: a("s_add_u32 s24, s24, %d" % WSOFF); a("s_addc_u32 s25, s25, 0")
    a.srd(R_A, S_X, ACT + 4096, -4096); a.srd(R_B, S_WQKV, 576*3456 + 4096, -4096)
    a.sdiv(46, 47, S_SLOT, 7)
    a("s_and_b32 s48, s%d, 1" % S_XCD); a("s_add_u32 s46, s46, s48"); a("s_lshl_b32 s46, s46, 1"); a("s_add_u32 s46, s46, s47")
    a("s_bfe_u32 s47, s%d, 0x10001" % S_XCD); a("s_add_u32 s46, s46, s47"); a("s_and_b32 s47, s%d, 4" % S_XCD); a("s_lshl_b32 s47, s47, 1"); a("s_add_u32 s46, s46, s47")
    if "rot8" not in ABL: a.sdiv(47, 67, 46, 9)
    else:
        a("s_and_b32 s70, s46, 7"); a("s_mov_b32 s67, 0")
    def dma(sbuf):
        X = ["buffer_load_dwordx4 v%d, s[%d:%d], s68 offen offset:%d lds" % (10+j, R_A, R_A+3, 1024*j) for j in range(4)]
        W = ["buffer_load_dwordx4 v%d, s[%d:%d], s69 offen offset:%d lds" % (14+j, R_B, R_B+3, 1024*j) for j in range(4)]
        X[0] = "s_mov_b32 m0, s%d\ns_lshl_b32 s68, s67, 7\ns_add_u32 s68, s68, s54\n" % sbuf + X[0]
        X[1] = "s_mul_i32 s69, s67, %d\ns_add_u32 s69, s69, s55\n" % (64*3456) + X[1]
        X[2] = "s_add_u32 s67, s67, 1\ns_cmp_eq_u32 s67, 9\ns_cselect_b32 s67, %d, s67\n" % (0 if "rot8" not in ABL else 1) + X[2]
        W[0] = "s_add_u32 m0, s%d, 16384\ns_nop 0\n" % sbuf + W[0]
        return X + W
    for x in dma(56): a(x)
    a("s_add_u32 s56, s56, 32768")
    if "rot8" in ABL: a("s_add_u32 s67, s67, s70")
    if "p1touch" in ABL: touch_inputs(a, 224)
    a.stamp("p1_issue")
    a.srd(R_WS, S_WS, WS_END)
    touch_pages(a)
    a("v_lshrrev_b32 v30, 2, v%d" % V_R); a("v_and_b32 v31, 3, v%d" % V_R)
    a("v_lshl_add_u32 v32, v%d, 3, v30" % V_G); a("v_lshlrev_b32 v32, 8, v32"); a("v_lshl_add_u32 v32, v31, 3, v32")
    a("v_add_u32 v32, 16384, v32")
    a("v_and_b32 v33, 1, v%d" % V_G); a("v_lshl_add_u32 v33, v33, 2, v30")
    a("s_lshl_b32 s46, s53, 2"); a("s_lshl_b32 s47, s52, 1"); a("s_or_b32 s57, s46, s47")
    for t in range(4):
        a("s_xor_b32 s46, s57, %d" % t); a("v_xor_b32 v34, s46, v33"); a("v_lshl_add_u32 v%d, v34, 5, v32" % (20+t))
    a("v_lshrrev_b32 v30, 1, v%d" % V_R); a("v_xor_b32 v30, v30, v%d" % V_G); a("v_lshlrev_b32 v31, 7, v%d" % V_R)
    a("s_lshl_b32 s46, s52, 13"); a("s_lshl_b32 s47, s53, 12"); a("s_add_u32 s46, s46, s47"); a("s_xor_b32 s47, s46, 4096")
    a("v_lshl_add_u32 v32, v30, 4, v31"); a("v_xor_b32 v33, 64, v32")
    a("v_add_u32 v24, s46, v32"); a("v_add_u32 v25, s47, v32"); a("v_add_u32 v26, s46, v33"); a("v_add_u32 v27, s47, v33")
    ACC, CS, ST, ONE = 48, 112, 120, 140
    XB = (144, 160); WB = (176, 192)
    WA, XA = 28, 32
    for r in range(ACC, ONE): a("v_mov_b32 v%d, 0" % r)
    for r in range(4): a("v_mov_b32 v%d, s%d" % (ONE+r, S_ONES))
    def addr(sbase):
        return ["v_add_u32 v%d, %s, v%d" % (WA+i, sbase, 20+i) for i in range(8)]
    def reads(jj):
        o = []
        for T in range(4):
            o.append("ds_read_b128 v[%d:%d], v%d offset:%d" % (XB[jj]+4*T, XB[jj]+4*T+3, XA+2*jj+(T>>1), 2048*(T&1)))
            for hh in range(2):
                o.append("ds_read_b64_tr_b16 v[%d:%d], v%d offset:%d" % (WB[jj]+4*T+2*hh, WB[jj]+4*T+2*hh+1, WA+T, jj*8192+hh*1024))
        return o
    def mm(jj, swap):
        o = []
        for t in range(4):
            for T in range(4):
                d = ACC+16*t+4*T
                o.append(mfma(d, XB[jj]+4*T, WB[jj]+4*t, d) if swap else mfma(d, WB[jj]+4*t, XB[jj]+4*T, d))
            if t < 2:
                d = CS+4*t
                o.append(mfma(d, ONE, WB[jj]+4*t, d) if swap else mfma(d, WB[jj]+4*t, ONE, d))
            x = XB[jj]+4*(t>>1); d = ST+4*t
            o.append(mfma(d, x if t & 1 else ONE, x, d))
        return o
    for x in addr("0"): a(x)
    a("s_lshl_b32 s60, s51, 1"); a("s_add_u32 s60, s60, s53")
    a("s_lshl_b32 s46, s50, 1"); a("s_add_u32 s46, s46, s52"); a("s_lshl_b32 s46, s46, 1"); a("s_add_u32 s47, s46, s53")
    a("s_xor_b32 s46, s47, 1"); a("s_mul_i32 s65, s47, 2304"); a("s_mul_i32 s66, s46, 2304"); a("s_mov_b32 s64, %d" % HPSZ)
    a("s_mov_b32 s58, 0"); a("s_mov_b32 s59, 0")
    a("s_cmp_ge_u32 s51, 9"); a("s_cbranch_scc1 L_p1_v0")
    for swap in (0, 1):
        L = "L_p1_v" if swap else "L_p1_qk"
        a.label(L + "0")
        if not swap:
            a("s_mov_b32 s62, %d" % Q_OFF); a("s_cmp_ge_u32 s60, 9"); a("s_cselect_b32 s61, 144, 0"); a("s_cselect_b32 s62, %d, s62" % K_OFF)
            a("s_cselect_b32 s73, 1.0, %d" % f32(QS))
            a("s_lshl_b32 s63, s60, 4"); a("s_sub_u32 s63, s63, s61")
            for t in range(4):
                a("s_lshl_b32 s46, s52, 1"); a("s_xor_b32 s46, s46, %d" % t); a("s_lshl_b32 s46, s46, 2"); a("s_add_u32 s46, s46, s63")
                a("v_add_u32 v212, s46, v%d" % V_G)
                a("v_mul_u32_u24 v213, 7282, v212"); a("v_lshrrev_b32 v213, 16, v213")
                a("v_mul_u32_u24 v214, 9, v213"); a("v_sub_u32 v212, v212, v214")
                a("v_cmp_lt_u32 vcc, 4, v212"); a("v_subb_co_u32 v214, vcc, v212, 0, vcc")
                a("v_cmp_eq_u32 vcc, 4, v212"); a("v_cndmask_b32 v214, v214, 8, vcc")
                a("v_mul_lo_u32 v213, v213, s64"); a("v_lshl_add_u32 v213, v214, 8, v213"); a("v_lshl_add_u32 v%d, v%d, 4, v213" % (208+t, V_R))
        else:
            a("s_mov_b32 s62, %d" % V_OFF); a("s_sub_u32 s63, s60, 18"); a("s_lshl_b32 s63, s63, 6")
            for t in range(4):
                a("s_lshl_b32 s46, s52, 1"); a("s_xor_b32 s46, s46, %d" % t); a("s_lshl_b32 s46, s46, 4"); a("s_add_u32 s46, s46, s63")
                a("v_add_u32 v212, s46, v%d" % V_R)
                a("v_mul_u32_u24 v213, 1821, v212"); a("v_lshrrev_b32 v213, 16, v213")
                a("v_mul_u32_u24 v214, 36, v213"); a("v_sub_u32 v212, v212, v214")
                a("v_lshl_add_u32 v214, v%d, 4, v212" % V_G)
                a("v_add_u32 v215, 44, v214")
                a("v_cmp_lt_u32 vcc, 19, v212"); a("v_cndmask_b32 v214, v214, v215, vcc")
                a("v_lshl_add_u32 v215, v212, 2, v%d" % V_G); a("v_add_u32 v215, 64, v215")
                a("v_lshrrev_b32 v212, 2, v212"); a("v_cmp_eq_u32 vcc, 4, v212"); a("v_cndmask_b32 v214, v214, v215, vcc")
                a("v_mul_lo_u32 v213, v213, s64"); a("v_lshl_add_u32 v%d, v214, 4, v213" % (208+t))
        a("s_add_u32 s65, s65, s62"); a("s_add_u32 s66, s66, s62")
        for x in dma(56): a(x)
        a("s_add_u32 s56, s56, 32768")
        if "burn" in ABL:
            for r in range(224, 240): a("v_mul_lo_u32 v%d, v%d, s64" % (r, 208 + (r & 3))); a("v_and_b32 v%d, 0xbfffbfff, v%d" % (r, r))
            Lb = a.newlabel("Lburn"); a("s_mov_b32 s75, 9"); a.label(Lb)
            for q in range(16): a(mfma(240+4*(q & 1), 224+4*(q & 3), 224+4*((q >> 2) & 3), 240+4*(q & 1)))
            a("s_sub_u32 s75, s75, 1"); a("s_cmp_lg_u32 s75, 0"); a("s_cbranch_scc1 %s" % Lb)
        a("s_waitcnt vmcnt(8)"); a("s_barrier")
        a.stamp("p1_first")
        for x in reads(0): a(x)
        a.label(L)
        a("s_cmp_ge_u32 s58, 7"); a("s_cbranch_scc1 %s_n" % L)
        for dm in (1, 0):
            d = dma(56) if (dm and "p1nodma" not in ABL) else []
            m = mm(0, swap)
            a("s_waitcnt lgkmcnt(0)")
            interleave(a, m[:14], reads(1))
            interleave(a, m[14:], d[:4])
            a("s_add_u32 s58, s58, 1")
            a("s_add_u32 s59, s59, 32768"); a("s_cmp_eq_u32 s59, 163840"); a("s_cselect_b32 s59, 0, s59")
            a("s_waitcnt vmcnt(%d) lgkmcnt(0)" % (4 if dm else 0))
            a("s_barrier")
            m = mm(1, swap); ad = addr("s59")
            interleave(a, m[:3], ad[4:6] + ad[0:4])
            interleave(a, m[3:15], reads(0) + ad[6:8])
            interleave(a, m[15:], d[4:])
            if dm:
                a("s_add_u32 s56, s56, 32768"); a("s_cmp_ge_u32 s56, 163840"); a("s_cselect_b32 s46, 163840, 0"); a("s_sub_u32 s56, s56, s46")
                a("s_branch %s" % L)
                a.label(L + "_n")
            else:
                a("s_cmp_lt_u32 s58, 9"); a("s_cbranch_scc1 %s_n" % L)
        a.stamp("p1_loop")
        a("s_waitcnt lgkmcnt(0)")
        a("v_and_b32 v40, 1, v%d" % V_R); a("v_cmp_eq_u32 s[74:75], 1, v40")
        a("v_and_b32 v40, 2, v%d" % V_R); a("v_cmp_eq_u32 s[76:77], 2, v40")
        a("v_lshrrev_b32 v40, 2, v%d" % V_R); a("v_cmp_eq_u32 s[78:79], v40, v%d" % V_G)
        a("s_mov_b32 s46, %d" % f32(1.0/576)); a("s_mov_b32 s47, %d" % f32(1e-5))
        for T in range(2):
            s_, q_ = ST+8*T, ST+8*T+4
            a("v_cndmask_b32 v%d, v%d, v%d, s[74:75]" % (q_, q_, q_+1)); a("v_cndmask_b32 v%d, v%d, v%d, s[74:75]" % (q_+2, q_+2, q_+3))
            a("v_mul_f32 v%d, s46, v%d" % (s_, s_))
            a("v_cndmask_b32 v%d, v%d, v%d, s[76:77]" % (q_, q_, q_+2))
            a("v_mul_f32 v42, v%d, v%d" % (s_, s_))
            a("v_fma_f32 v%d, v%d, s46, -v42" % (q_, q_)); a("v_max_f32 v%d, 0, v%d" % (q_, q_)); a("v_add_f32 v%d, s47, v%d" % (q_, q_))
            a("v_rsq_f32 v%d, v%d" % (36+2*T, q_)); a("v_mul_f32 v%d, v%d, -v%d" % (37+2*T, 36+2*T, s_))
        a("s_lshl_b32 s46, s52, 9"); a("s_lshl_b32 s47, s53, 8"); a("s_add_u32 s46, s46, s47")
        a("v_lshl_add_u32 v40, v%d, 3, s46" % V_R)
        a("s_mov_b64 exec, s[78:79]")
        a("ds_write_b64 v40, v[36:37]"); a("ds_write_b64 v40, v[38:39] offset:128")
        a("s_mov_b64 exec, -1")
        a("s_lshl_b32 s47, s57, 6")
        if not swap:
            a("v_lshl_add_u32 v41, v%d, 4, s47" % V_G)
            a("ds_write_b128 v41, v[%d:%d] offset:1024" % (CS, CS+3)); a("ds_write_b128 v41, v[%d:%d] offset:1088" % (CS+4, CS+7))
        else:
            a("v_lshl_add_u32 v41, v%d, 2, s47" % V_R)
            a("ds_write_b32 v41, v%d offset:1024" % CS); a("ds_write_b32 v41, v%d offset:1088" % (CS+4))
        a("s_waitcnt lgkmcnt(0)"); a("s_barrier")
        Ls = L + "_s"
        a("s_cmp_ge_u32 s60, 27"); a("s_cbranch_scc1 %s" % Ls)
        a("v_xor_b32 v42, 256, v40"); a("v_xor_b32 v43, 128, v41")
        if not swap:
            RS, CC = 144, 160
            a("ds_read_b64 v[%d:%d], v40" % (RS, RS+1)); a("ds_read_b64 v[%d:%d], v40 offset:128" % (RS+2, RS+3))
            a("ds_read_b64 v[%d:%d], v42" % (RS+4, RS+5)); a("ds_read_b64 v[%d:%d], v42 offset:128" % (RS+6, RS+7))
            for t in range(4):
                a("ds_read_b128 v[%d:%d], v%d offset:%d" % (CC+4*t, CC+4*t+3, 41 if t < 2 else 43, 1024+64*(t&1)))
            a("s_waitcnt lgkmcnt(0)")
            for T in range(4): a("v_pk_mul_f32 v[%d:%d], v[%d:%d], s[72:73] op_sel:[0,1] op_sel_hi:[1,1]" % (RS+2*T, RS+2*T+1, RS+2*T, RS+2*T+1))
            for t in range(4):
                for T in range(4):
                    d = ACC+16*t+4*T
                    for h in range(2):
                        a("v_pk_mul_f32 v[216:217], v[%d:%d], v[%d:%d] op_sel:[0,1] op_sel_hi:[1,1]" % (CC+4*t+2*h, CC+4*t+2*h+1, RS+2*T, RS+2*T+1))
                        a("v_pk_fma_f32 v[%d:%d], v[%d:%d], v[%d:%d], v[216:217] op_sel_hi:[1,0,1]" % (d+2*h, d+2*h+1, d+2*h, d+2*h+1, RS+2*T, RS+2*T+1))
                    e = ACC+16*t+8*(T>>1)+2*(T&1)
                    a("v_cvt_pk_bf16_f32 v%d, v%d, v%d" % (e, d, d+1)); a("v_cvt_pk_bf16_f32 v%d, v%d, v%d" % (e+1, d+2, d+3))
                    if T & 1:
                        a("buffer_store_dwordx4 v[%d:%d], v%d, s[%d:%d], s%d offen sc1" % (e-2, e+1, 208+t, R_WS, R_WS+3, 65+(T>>1)))
        else:
            RS, CC = 144, 176
            a("v_lshl_add_u32 v40, v%d, 5, s46" % V_G); a("v_xor_b32 v42, 256, v40")
            for T in range(4):
                for h in range(2):
                    a("ds_read_b128 v[%d:%d], v%d offset:%d" % (RS+8*T+4*h, RS+8*T+4*h+3, 40 if T < 2 else 42, 128*(T&1)+16*h))
            for t in range(4):
                a("ds_read_b32 v%d, v%d offset:%d" % (CC+t, 41 if t < 2 else 43, 1024+64*(t&1)))
            a("s_waitcnt lgkmcnt(0)")
            for t in range(4):
                for T in range(4):
                    d = ACC+16*t+4*T
                    for i in range(4):
                        a("v_mul_f32 v%d, v%d, v%d" % (216+i, RS+8*T+2*i+1, CC+t))
                    for i in range(4):
                        a("v_fma_f32 v%d, v%d, v%d, v%d" % (d+i, d+i, RS+8*T+2*i, 216+i))
                    e = ACC+16*t+8*(T>>1)+2*(T&1)
                    a("v_cvt_pk_bf16_f32 v%d, v%d, v%d" % (e, d, d+1)); a("v_cvt_pk_bf16_f32 v%d, v%d, v%d" % (e+1, d+2, d+3))
                    if T & 1:
                        a("buffer_store_dwordx4 v[%d:%d], v%d, s[%d:%d], s%d offen sc1" % (e-2, e+1, 208+t, R_WS, R_WS+3, 65+(T>>1)))
        a.label(Ls)
        if not swap: a("s_branch L_p1_pub")
    a.label("L_p1_pub")
    if "d_p1" in ABL: a("s_sleep 64")
    a.stamp("p1_stores")
    L = a.newlabel("Lp1f")
    a("s_cmp_lg_u32 s%d, 0" % S_WAVE); a("s_cbranch_scc1 %s_a" % L)
    a.get_nonce(36)
    a.label(L + "_a")
    a("s_waitcnt vmcnt(0)"); a("s_barrier")
    a("s_cmp_lg_u32 s%d, 0" % S_WAVE); a("s_cbranch_scc1 L_p1_done")
    a("s_lshl_b32 s46, s50, 4"); a("s_add_u32 s46, s46, s51"); a("s_add_u32 s46, s46, %d" % F1)
    a.set_flag(46, 36)
    a("s_branch L_p1_done")
    a.label("L_p1_helper")
    if "d_h1" in ABL: a("s_sleep 64")
    swizzle_setup(a)
    a("s_lshl_b32 s48, s%d, 2" % S_XCD); a("s_add_u32 s48, s48, s%d" % S_SLOT); a("s_sub_u32 s48, s48, 28")
    a("s_waitcnt lgkmcnt(0)")
    if WSOFF: a("s_add_u32 s24, s24, %d" % WSOFF); a("s_addc_u32 s25, s25, 0")
    a.srd(R_WS, S_WS, WS_END)
    publish_nonce(a)
    a("s_add_u32 s49, s48, 32"); a("s_cmp_lt_u32 s49, 54"); a("s_cselect_b32 s49, s49, s48")
    B = 36864
    mark_setup(a)
    if MK0: mark_fill(a, MK0)
    sw_issue(a, 48, 0, 0); sw_issue(a, 49, 1, B)
    if MK1: mark_fill(a, MK1)
    a("s_waitcnt vmcnt(0)"); a("s_barrier")
    sw_process(a, 0, 0); sw_process(a, 1, B)
    L = a.newlabel("Lhn"); a("s_cmp_lg_u32 s%d, 0" % S_WAVE); a("s_cbranch_scc1 %s" % L); a.get_nonce(36); a.label(L)
    a("s_waitcnt vmcnt(0)"); a("s_barrier")
    sw_flags(a, (0, 1))
    a.stamp("h_small")
    if MK0 + MK1 < MKG: mark_fill(a, MKG - MK0 - MK1)
    a("s_waitcnt vmcnt(0)"); a("s_barrier")
    sw_flags(a, (), mark=True)
    a.label("L_p1_done")
    a.stamp("p1_done")

def generate(stop=99, stamps=False):
    a = G(stop, stamps)
    prologue(a)
    phase1(a)
    from phases import phase2, phase345, phase6
    if stop >= 2: phase2(a)
    if stop >= 3: phase345(a)
    if stop >= 6: phase6(a)
    a.label("L_fin")
    a.stamp_out()
    a.label("L_end")
    a("s_endpgm")
    for x in a.stubs: a(x)
    a.label("L_last")
    body, nops = fix_hazards(a.lines)
    return body, nops

HEADER = """; Fused transformer block (LN, QKV, sliding-window attention, Wo, shift-MLP, channel MLP) as one persistent kernel.
; 256 workgroups of 4 waves, one per CU; phases hand data over through d_ws with write-through stores and flags.
; @launch grid=(256,1,1) block=(256,1,1) lds=163840
.amdgcn_target "amdgcn-amd-amdhsa--gfx950"
.text
.globl %s
.p2align 8
.type %s,@function
%s:
""" % (KN, KN, KN)
FOOTER = """.section .rodata,"a"
.p2align 6
.amdhsa_kernel %s
  .amdhsa_next_free_vgpr 512
  .amdhsa_next_free_sgpr 102
  .amdhsa_accum_offset 256
  .amdhsa_group_segment_fixed_size 0
  .amdhsa_kernarg_size 88
  .amdhsa_user_sgpr_count 2
  .amdhsa_user_sgpr_kernarg_segment_ptr 1
  .amdhsa_system_sgpr_workgroup_id_x 1
.end_amdhsa_kernel
""" % KN

def main():
    import argparse
    p = argparse.ArgumentParser()
    p.add_argument("--stop", type=int, default=99); p.add_argument("--stamps", default=""); p.add_argument("--wsoff", type=int, default=0); p.add_argument("--rt", action="store_true")
    p.add_argument("-o", default="k.s")
    o = p.parse_args()
    global WSOFF, CLK
    if o.rt: CLK = 's_memrealtime'
    WSOFF = o.wsoff << 20
    st = STAMPSETS.get(o.stamps, o.stamps.split(',')) if o.stamps else None
    if st:
        st = ['start'] + list(st) + ['end']; assert len(st) <= 16
        open(o.o[:-2] + '.stamps', 'w').write(','.join(st))
    body, nops = generate(o.stop, st)
    text = HEADER + "\n".join(("" if l.endswith(":") else "  ") + l for l in body) + "\n" + FOOTER
    open(o.o, "w").write(text)
    build(o.o, o.o[:-2] + ".co", KN)
    n = sum(1 for l in body if l and not l.endswith(":"))
    print("instructions", n, "nop states added", nops)
    seen = set()
    for nm, takes in TRACES.items():
        errs = check_waits(body, takes)
        for e in errs[:4]:
            if e not in seen: print("WAIT[%s]" % nm, e); seen.add(e)

STAMPSETS = {
 "all": "p1_first p1_loop p1_done p2_ready p2_loaded p2_done p3_ready p4_ready p5_ready p5_done p6_ready p6_x p6_a p6_b".split(),
 "p1": "p1_issue p1_first p1_loop p1_stores p1_done p2_ready p2_loaded p2_done p3_ready p4_ready p5_ready p5_done p6_ready p6_x".split(),
 "p3k": "p2_done p3_ready p3_k0 p3_k9 p3_gemm p4_ready p4_k0 p4_k9 p4_gemm p5_ready p5_k0 p5_k9 p5_gemm".split(),
 "hop": "p1_stores p1_done p2_ready p2_loaded p2_done p3_ready p3_epi p4_ready p4_epi p5_ready p5_epi p6_ready p6_x p6_b".split(),
 "p6": "p6_x p6_p0 p6_a p6_s0 p6_s1 p6_s5 p6_s6 p6_s7 p6_b p7_ready".split(),
 "h": "h_small p1_stores p1_done p2_setup p2_ready p2_loaded p2_done".split(),
 "p4k": "p3_k0 p3_k9 p3_gemm p3_epi p4_ready p4_k0 p4_k9 p4_gemm p4_epi p5_ready p5_k0 p5_k9 p5_gemm p5_epi".split(),
 "p6x": "p2_done h_w3 h_w4 p5_gemm p5_epi p5_done p6_ready p6_st p6_x9 p6_x17 p6_x p6_p0".split(),
 "crit": "p1_done p2_loaded p2_done h_w3 h_w4 p5_epi p6_ready p6_st p6_x p6_a p6_s6 p6_s7 p6_b".split(),
 "p3": "p2_done p3_dma p3_drain p3_ready p3_gemm p3_epi p4_dma p4_drain p4_ready p4_gemm p4_epi p5_drain p5_ready p5_gemm".split(),
}
TRACES = {"w012": {"L_p7_main": True, "L_p1_qk_n": [False,True,False]}, "h3": {"L_p3_helper": True, "L_p1_qk_n": [False,True,False]}, "edge": {"L_p2_edge": True, "L_p1_qk_n": [False,True,False]}, "qk": {"L_p1_qk_n": [False,False,True,True,False]}, "v": {"L_p1_v0": True, "L_p1_v_n": [False,False,True,True,False]}, "helper": {"L_p1_helper": True}}

if __name__ == "__main__":
    sys.modules["gen"] = sys.modules["__main__"]
    main()
```

```python
from gen import *

NEG = 0xF149F2CA
SLEEP0 = dict(p2=0, p3=0, p4=0, p5=0, p6=18)
for _kv in os.environ.get('SLEEP', '').split(','):
    if _kv: SLEEP0[_kv.split('=')[0]] = int(_kv.split('=')[1])

W_LDS = 53248
AW1, AW2 = 40, 148
XT = 232
PA, PS, R_C = 244, (3, 27, 45), R_B

def pf_lds(i):
    gq, k = divmod(i, 9)
    pre = ("s_mul_i32 s58, s79, %d\ns_add_u32 s58, s58, s73\ns_add_u32 m0, s58, %d\n" % (gq, 1024*k)) if k == 0 or i == 2 else ""
    post = "\ns_add_u32 m0, m0, 1024" if k < 8 and i != 1 else ""
    return pre + "buffer_load_dwordx4 v%d, s[%d:%d], s%d offen sc1 lds" % (PA+k, R_C, R_C+3, PS[gq]) + post

def roles345(a):
    a("s_lshr_b32 s46, s%d, 3" % S_SLOT); a("s_lshl_b32 s74, s%d, 2" % S_XCD); a("s_add_u32 s74, s74, s46"); a("s_add_u32 s75, s%d, 6" % S_SLOT); a("s_and_b32 s75, s75, 7")
    a("s_lshl_b32 s76, s74, 2"); a("s_add_u32 s76, s76, s%d" % S_WAVE)

def phase2(a):
    KL_, VL_ = 0, 27648
    a("s_lshr_b32 s50, s%d, 1" % S_SLOT); a("s_and_b32 s51, s%d, 1" % S_SLOT); a("s_lshl_b32 s46, s%d, 1" % S_XCD); a("s_add_u32 s51, s51, s46")
    a("s_mul_i32 s52, s51, %d" % HPSZ)
    a("s_add_u32 s46, s52, %d" % K_OFF); a.srd_s(R_A, S_WS, HPSZ, 46)
    a("s_add_u32 s46, s52, %d" % V_OFF); a.srd_s(R_B, S_WS, HPSZ, 46)
    a("s_mul_i32 s46, s50, 9216"); a("s_sub_u32 s46, s46, 18432"); a("s_lshl_b32 s47, s%d, 10" % S_WAVE); a("s_add_u32 s46, s46, s47")
    a("v_add_u32 v10, s46, v%d" % V_L16)
    for i in range(1, 7): a("v_add_u32 v%d, %d, v10" % (10+i, 4096*i))
    a("s_lshl_b32 s46, s50, 3"); a("s_lshl_b32 s53, s%d, 1" % S_WAVE); a("s_add_u32 s53, s53, s46")
    a("s_mul_i32 s54, s53, 1152"); a("s_add_u32 s54, s54, s52"); a("s_add_u32 s54, s54, %d" % Q_OFF)
    a("v_lshlrev_b32 v18, 4, v%d" % V_R)
    a("s_mul_i32 s46, s%d, 2304" % S_WAVE)
    a("v_add_u32 v20, s46, v%d" % V_L16)
    a("s_add_u32 s47, s46, 2048"); a("v_add_u32 v21, s47, v18")
    a("s_add_u32 s47, s46, %d" % VL_); a("v_add_u32 v22, s47, v%d" % V_L16)
    a("v_lshl_add_u32 v23, v%d, 2, v%d" % (V_R, V_G)); a("s_add_u32 s47, s47, 2048"); a("v_lshl_add_u32 v23, v23, 4, s47")
    for i in range(4):
        a("v_lshl_add_u32 v24, v%d, 2, %d" % (V_G, i)); a("v_cmp_gt_u32 s[%d:%d], v24, v%d" % (60+2*i, 61+2*i, V_R))
    a("v_cmp_eq_u32 s[68:69], 0, v%d" % V_G)
    a("v_mov_b32 v25, 0x%x" % NEG)
    for r in range(4): a("v_mov_b32 v%d, -1" % (228+r))
    a("v_and_b32 v225, 31, v%d" % V_LANE); a("v_lshlrev_b32 v225, 2, v225")
    VLA = 0
    for r in range(36): a("v_accvgpr_write_b32 a%d, s%d" % (VLA+r, S_ONES))
    roles345(a)
    a("s_mul_i32 s46, s75, 110592"); a("s_mul_i32 s47, s%d, 27648" % S_WAVE); a("s_add_u32 s70, s46, s47"); a("s_add_u32 s70, s70, %d" % WO_S)
    a("s_add_u32 s71, s70, %d" % SW); a("s_add_u32 s72, s71, %d" % SW)
    a("s_cmp_ge_u32 s75, 6"); a("s_cbranch_scc1 L_p2_hs")
    a("s_add_u32 s73, s47, %d" % W_LDS); a("s_mov_b32 s79, 9216")
    for gq in range(3): a("s_add_u32 s%d, s70, %d" % (PS[gq], 9216*gq))
    for i in range(9): a("v_add_u32 v%d, %d, v%d" % (PA+i, 1024*i, V_L16))
    a("s_mov_b32 s10, s%d" % S_WS); a("s_mov_b32 s11, s%d" % (S_WS+1)); a("s_mov_b32 s26, %d" % WS_END)
    a("s_branch L_p2_hd")
    a.label("L_p2_hs")
    a("s_mov_b32 s71, 0x70000000")
    a("s_mul_i32 s47, s%d, 9216" % S_WAVE); a("s_add_u32 s73, s47, %d" % W_LDS); a("s_mov_b32 s79, 36864")
    a("s_lshl_b32 s48, s74, 1"); a("s_add_u32 s48, s48, s75"); a("s_sub_u32 s48, s48, 6"); a("s_mul_i32 s48, s48, 3")
    a("s_mov_b32 s10, s%d" % S_W3); a("s_mov_b32 s11, s%d" % (S_W3+1)); a("s_mov_b32 s78, 9216")
    a("s_cmp_lt_u32 s48, 144"); a("s_cselect_b32 s26, %d, 0" % BW)
    for gq in range(3):
        a("s_add_u32 s46, s48, %d" % gq)
        a.sdiv(47, 56, 46, 18)
        a("s_lshl_b32 s56, s56, 2"); a("s_add_u32 s56, s56, s%d" % S_WAVE); a("s_mul_i32 s56, s56, %d" % (8*9216))
        a("s_mul_i32 s47, s47, 1152"); a("s_add_u32 s%d, s56, s47" % (PS[gq]))
    for i in range(9):
        a("v_add_u32 v24, %d, v%d" % (64*i, V_LANE)); a("v_mul_u32_u24 v26, 911, v24"); a("v_lshrrev_b32 v26, 16, v26")
        a("v_mul_u32_u24 v27, 72, v26"); a("v_sub_u32 v27, v24, v27"); a("v_mul_lo_u32 v26, v26, s78"); a("v_lshl_add_u32 v%d, v27, 4, v26" % (PA+i))
    a.label("L_p2_hd")
    a("v_mul_u32_u24 v7, 1152, v%d" % V_R); a("v_lshl_add_u32 v7, v%d, 4, v7" % V_G)
    a("s_mul_i32 s46, s76, 18432"); a("s_mul_i32 s47, s75, 192"); a("s_add_u32 s77, s46, s47")
    a("s_cmp_ge_u32 s75, 6"); a("s_cselect_b32 s77, 0x70000000, s77")
    L = a.newlabel("Lp2w")
    a("s_cmp_lg_u32 s%d, 0" % S_WAVE); a("s_cbranch_scc1 %s" % L)
    a("v_lshrrev_b32 v30, 2, v%d" % V_LANE); a("v_min_u32 v30, 2, v30"); a("v_add_u32 v30, s50, v30"); a("v_subrev_u32 v30, 2, v30"); a("v_max_i32 v30, 0, v30")
    a("v_bfe_u32 v31, v%d, 1, 1" % V_LANE); a("v_add_u32 v31, 1, v31"); a("v_cmp_gt_u32 vcc, 12, v%d" % V_LANE); a("v_cndmask_b32 v31, 0, v31, vcc")
    a("v_mul_u32_u24 v31, 576, v31"); a("v_and_b32 v32, 1, v%d" % V_LANE); a("v_mul_u32_u24 v32, 35, v32")
    a("s_mul_i32 s46, s51, 36"); a("v_add3_u32 v31, v31, v32, s46"); a("v_lshrrev_b32 v31, 7, v31")
    a("v_lshl_add_u32 v30, v30, 4, v31"); a("v_add_u32 v30, %d, v30" % F1)
    a.stamp("p2_setup")
    a.poll(30, 31, sleep0=SLEEP0["p2"])
    a.label(L)
    a("s_barrier")
    a("v_min_u32 v38, 53, v%d" % V_LANE); a("v_add_u32 v38, %d, v38" % FS); a("v_lshlrev_b32 v38, 7, v38")
    fsq = "buffer_load_dword v39, v38, s[%d:%d], 0 offen offset:%d sc1" % (R_WS, R_WS+3, FLAG0)
    a.stamp("p2_ready")
    QR = 26
    a("s_lshl_b32 s46, s%d, 10" % S_WAVE)
    for R, base in ((R_A, KL_), (R_B, VL_)):
        for i in range(7):
            Ls = a.newlabel("Lp2d")
            if i == 6: a("s_cmp_eq_u32 s%d, 3" % S_WAVE); a("s_cbranch_scc1 %s" % Ls)
            a("s_add_u32 m0, s46, %d" % (base + 4096*i))
            a("buffer_load_dwordx4 v%d, s[%d:%d], 0 offen sc1 lds" % (10+i, R, R+3))
            if i == 6: a.label(Ls)
        if R == R_A:
            a("buffer_load_dwordx4 v[%d:%d], v%d, s[%d:%d], s54 offen sc1" % (QR, QR+3, V_L16, R_WS, R_WS+3))
            a("buffer_load_dwordx4 v[%d:%d], v18, s[%d:%d], s54 offen offset:2048 sc1" % (QR+4, QR+7, R_WS, R_WS+3))
            a("buffer_load_dwordx4 v[%d:%d], v%d, s[%d:%d], s54 offen offset:1024 sc1" % (QR+8, QR+11, V_L16, R_WS, R_WS+3))
            a(fsq)
    a.srd(R_A, S_X, ACT)
    a("s_mov_b32 s%d, s10" % R_C); a("s_mov_b32 s%d, s11" % (R_C+1)); a("s_mov_b32 s%d, s26" % (R_C+2)); a("s_mov_b32 s%d, 0x20000" % (R_C+3))
    QF = 40
    a("s_waitcnt vmcnt(6)")
    for hd in range(2):
        for qt in range(2):
            q = QF + 12*hd + 6*qt
            for h in range(2): a("v_mov_b32 v%d, v%d" % (q+2+h, QR+8*hd+2*qt+h))
            a("v_cndmask_b32 v%d, 0, v%d, s[68:69]" % (q+hd, QR+4+2*qt+hd)); a("v_mov_b32 v%d, 0" % (q+1-hd))
            for h in range(2): a("v_mov_b32 v%d, v%d" % (q+4+h, q+h))
    MF, ML = 8, 12
    for i in range(4):
        a("v_cndmask_b32 v%d, v25, 0, s[%d:%d]" % (MF+i, 60+2*i, 61+2*i)); a("v_cndmask_b32 v%d, 0, v25, s[%d:%d]" % (ML+i, 60+2*i, 61+2*i))
    a("s_lshl_b32 s55, s50, 3"); a("s_lshl_b32 s46, s%d, 1" % S_WAVE); a("s_add_u32 s55, s55, s46"); a("s_sub_u32 s55, 16, s55")
    a("s_lshl_b32 s56, s2, 2"); a("s_add_u32 s56, s56, s%d" % S_WAVE); a("s_mul_i32 s56, s56, 5120"); a("s_min_u32 s56, s56, %d" % (WO_S - T_OFF - 5120)); a("s_add_u32 s56, s56, %d" % T_OFF)
    L = a.newlabel("Lfs")
    a("s_cmp_lg_u32 s%d, 0" % S_WAVE); a("s_cbranch_scc1 %s" % L)
    a("v_cmp_ne_u32 vcc, s%d, v39" % S_NONCE); a("s_cbranch_vccz %s" % L)
    a("v_lshrrev_b32 v38, 7, v38")
    a.poll(38, 39, sleep0=0)
    a.label(L)
    a("s_waitcnt vmcnt(6)"); a("s_barrier")
    a.stamp("p2_loaded")
    a("s_cmp_lt_u32 s50, 2"); a("s_cbranch_scc1 L_p2_edge")
    M, NM, CZ = 16, 216, 26
    KF = 64
    S2, P, VM = 136, 168, 184
    S1 = S2
    OM, OL, R_, OUT = 192, 200, 32, 208
    marks = "s_mov_b32 s46, %d\nbuffer_load_dword v224, v225, s[%d:%d], s46 offen sc1" % (FP_OFF, R_WS, R_WS+3)
    def prefetch():
        o = [pf_lds(i) for i in range(2, 27)]
        for jj in range(3): o.append("buffer_load_dwordx4 v[%d:%d], v7, s[%d:%d], s77 offen offset:%d" % (XT+4*jj, XT+4*jj+3, R_A, R_A+3, 64*jj))
        for sb, ab in ((71, AW1),):
            for i in range(27):
                pre = "s_add_u32 s59, s%d, %d\n" % (sb, 1024*i) if i % 4 == 0 else ""
                o.append(pre + "buffer_load_dwordx4 a[%d:%d], v%d, s[%d:%d], s59 offen offset:%d sc1" % (ab+4*i, ab+4*i+3, V_L16, R_WS, R_WS+3, 1024*(i & 3)))
        return o
    for edge in (0, 1):
      if edge: a.label("L_p2_edge")
      pf = prefetch()
      if "x_nopf" in ABL: pf = ["s_nop 0"]*55
      if "x_nomk" in ABL: pf = ["s_nop 0" if "store" in x else x for x in pf]
      if "x_now1" in ABL: pf = ["s_nop 0" if " a[" in x else x for x in pf]
      def take(n):
          o = pf[:n]; del pf[:n]; return o
      for head in range(2):
        def Q(qt, t): return QF + 12*head + 6*qt + 2*(t & 1)
        def K(t): return KF + 4*t
        def kread(m):
            o = ["ds_read_b128 v[%d:%d], v20 offset:%d" % (KF+8*m+2, KF+8*m+5, 2304*m + 1024*head)]
            if head == 0: o += ["ds_read_b64 v[%d:%d], v21 offset:%d" % (KF+8*m+6*b, KF+8*m+6*b+1, 2304*m + 8*b) for b in range(2)]
            return o
        def vleft(m): return "ds_read_b128 a[%d:%d], v23 offset:%d" % (VLA+4*m, VLA+4*m+3, 2304*m + 128*head)
        def vmain(m): return "ds_read_b128 v[%d:%d], v22 offset:%d" % (VM+4*(m & 1), VM+4*(m & 1)+3, 2304*m + 1024*head)
        def has(qt, t): return (t <= 16) if qt == 0 else (t >= 1)
        def mask(reg, qt, t):
            o = []
            for i in range(4):
                if t == qt: o.append("v_cndmask_b32 v%d, v25, v%d, s[%d:%d]" % (reg+i, reg+i, 60+2*i, 61+2*i))
                if t == 16+qt: o.append("v_cndmask_b32 v%d, v%d, v25, s[%d:%d]" % (reg+i, reg+i, 60+2*i, 61+2*i))
            return o
        def switch(t, moves):
            Ls = a.newlabel("Lsw")
            a("s_cmp_eq_u32 s55, %d" % t); a("s_cbranch_scc0 %s" % Ls)
            for x in moves: a(x)
            a.label(Ls)
        if head:
            L = a.newlabel("Lmk")
            a("s_cmp_lg_u32 s%d, 0" % S_WAVE); a("s_cbranch_scc1 %s_x" % L)
            a("s_mov_b32 s47, 100000"); a("s_waitcnt vmcnt(%d)" % (npf0 - len(pf)))
            a.label(L)
            a("v_cmp_ne_u32 vcc, s%d, v224" % S_NONCE)
            a("s_cbranch_vccz %s_x" % L)
            a("s_sleep 2"); a(marks); a("s_waitcnt vmcnt(0)")
            a("s_sub_u32 s47, s47, 1"); a("s_cbranch_scc0 %s" % L)
            a.label(L + "_x")
            a("s_waitcnt vmcnt(20)"); a("s_barrier")
            publish2(a, 224)
        AH = 3
        for m in range(AH):
            for x in kread(m): a(x)
        a("v_mov_b32 v%d, v25" % M); a("v_mov_b32 v%d, v25" % (M+1))
        if edge:
            for i in range(4): a("v_mov_b32 v%d, v25" % (CZ+i))
        def c1(qt, t): return CZ if edge else MF if t == qt else ML if t == 16+qt else None
        def maxes(t):
            o = []
            for qt in range(2):
                if not has(qt, t): continue
                s = S1 + 8*(t % 3) + 4*qt
                if edge: o += mask(s, qt, t)
                o.append("v_max3_f32 v%d, v%d, v%d, v%d" % (M+qt, s, s+1, M+qt))
            for qt in range(2):
                if not has(qt, t): continue
                s = S1 + 8*(t % 3) + 4*qt
                o.append("v_max3_f32 v%d, v%d, v%d, v%d" % (M+qt, s+2, s+3, M+qt))
            return o
        for t in range(18):
            if t % 2 == 0:
                if edge: switch(t, ["v_mov_b32 v%d, 0" % (CZ+i) for i in range(4)])
                a("s_waitcnt lgkmcnt(%d)" % (len(kread(0))*min(AH-1, 8 - t//2)))
            ms = [mfma(S1+8*(t % 3)+4*qt, K(t), Q(qt, t), c1(qt, t)) for qt in range(2) if has(qt, t)]
            fill = (kread(t//2+AH) if t % 2 == 0 and t//2+AH < 9 else []) + (maxes(t-2) if t >= 2 else []) + (take(1) if t % 3 == 1 and head else [])
            interleave(a, ms, fill)
        if head == 0:
            a("s_waitcnt vmcnt(%d)" % (55 - len(pf))); a("s_barrier")
            for q in range(5):
                if q == 4: a("s_add_u32 s56, s56, 4096")
                if "x_nomk" not in ABL: a("buffer_store_dwordx4 v[228:231], v%d, s[%d:%d], s56 offen offset:%d sc1" % (V_L16, R_WS, R_WS+3, 1024*(q & 3)))
            npf0 = len(pf); a(marks)
        a("s_mov_b32 exec_lo, 0x00030003"); a("s_mov_b32 exec_hi, 0x00030003")
        for m in range(9): a(vleft(m))
        a("s_mov_b64 exec, -1")
        a(vmain(0))
        for x in maxes(16) + maxes(17): a(x)
        for sw in ("v_permlane32_swap_b32", "v_permlane16_swap_b32"):
            for qt in range(2): a("v_mov_b32 v%d, v%d" % (30+qt, M+qt))
            for qt in range(2): a("%s v%d, v%d" % (sw, M+qt, 30+qt))
            for qt in range(2): a("v_max_f32 v%d, v%d, v%d" % (M+qt, M+qt, 30+qt))
        negs = ["v_sub_f32 v%d, 0, v%d" % (NM+4*qt+i, M+qt) for qt in range(2) for i in range(4)]
        if edge:
            for i in range(8): a("v_mov_b32 v%d, v25" % (NM+i))
        else:
            for x in negs: a(x)
        def qk(m):
            return [mfma(S2+16*(m & 1)+8*qt+4*b, K(2*m+b), Q(qt, b), NM+4*qt) for qt in range(2) for b in range(2) if has(qt, 2*m+b)]
        def pv(m):
            o = []
            for qt in range(2):
                p = P+8*(m & 1)+4*qt
                o.append(mfma(OM+4*qt, VM+4*(m & 1), p, None if m == 0 else OM+4*qt))
                o.append(mfma(OL+4*qt, VLA+4*m, p, None if m == 0 else OL+4*qt, ta="a"))
            return o
        for x in qk(0): a(x)
        for m in range(9):
            if edge and m < 8: switch(2*m+2, negs)
            mf = (qk(m+1) if m < 8 else []) + (pv(m-1) if m else [])
            va = []
            ld = take(3 if (m % 3 or head == 0) else 2)
            for qt in range(2):
                p = P+8*(m & 1)+4*qt
                for b in range(2):
                    s = S2+16*(m & 1)+8*qt+4*b
                    if has(qt, 2*m+b):
                        va += mask(s, qt, 2*m+b)
                        va += ["v_exp_f32 v%d, v%d" % (s+i, s+i) for i in range(4)]
                    if ld and (b == 0 or qt == 0): va.append(ld.pop(0))
                for b in range(2):
                    s = S2+16*(m & 1)+8*qt+4*b
                    if has(qt, 2*m+b):
                        va += ["v_cvt_pk_bf16_f32 v%d, v%d, v%d" % (p+2*b+h, s+2*h, s+2*h+1) for h in range(2)]
                    else:
                        va += ["v_mov_b32 v%d, 0" % (p+2*b+h) for h in range(2)]
            if m: a("s_waitcnt lgkmcnt(1)")
            interleave(a, mf, va)
            if m < 8: a(vmain(m+1))
        a("s_waitcnt lgkmcnt(0)")
        for x in pv(8): a(x)
        if head == 1:
            assert not pf
            a("s_mul_i32 s54, s53, 18432"); a("s_add_u32 s54, s54, %d" % O_OFF)
            a("s_lshl_b32 s46, s51, 10"); a("s_add_u32 s58, s46, s54"); a("s_add_u32 s59, s58, 18432")
            a("s_lshr_b32 s46, s51, 3"); a("s_add_u32 s46, s46, 16"); a("s_lshl_b32 s46, s46, 10"); a("s_add_u32 s54, s54, s46")
            a("s_and_b32 s46, s51, 7"); a("s_lshr_b32 s46, s46, 1"); a("s_lshl_b32 s46, s46, 8"); a("s_add_u32 s54, s54, s46")
            a("s_and_b32 s46, s51, 1"); a("s_lshl_b32 s46, s46, 3"); a("s_add_u32 s54, s54, s46"); a("s_add_u32 s47, s54, 18432")
        for qt in range(2): a("v_rcp_f32 v%d, v%d" % (30+qt, OL+4*qt+3))
        for qt in range(2):
            for i in range(4): a("v_mul_f32 v%d, v%d, v%d" % (OM+4*qt+i, OM+4*qt+i, 30+qt))
            for i in range(2): a("v_mul_f32 v%d, v%d, v%d" % (OL+4*qt+i, OL+4*qt+i, 30+qt))
        for qt in range(2):
            for h in range(2): a("v_cvt_pk_bf16_f32 v%d, v%d, v%d" % (OUT+4*qt+2*head+h, OM+4*qt+2*h, OM+4*qt+2*h+1))
            a("v_cvt_pk_bf16_f32 v%d, v%d, v%d" % (R_+2*qt+head, OL+4*qt, OL+4*qt+1))
      if not edge: a("s_branch L_p2_out")
    a.label("L_p2_out")
    a("buffer_store_dwordx4 v[%d:%d], v%d, s[%d:%d], s58 offen sc1" % (OUT, OUT+3, V_L16, R_WS, R_WS+3))
    a("buffer_store_dwordx4 v[%d:%d], v%d, s[%d:%d], s59 offen sc1" % (OUT+4, OUT+7, V_L16, R_WS, R_WS+3))
    a("s_mov_b64 exec, 0xffff")
    a("buffer_store_dwordx2 v[%d:%d], v%d, s[%d:%d], s54 offen sc1" % (R_, R_+1, V_L16, R_WS, R_WS+3))
    a("buffer_store_dwordx2 v[%d:%d], v%d, s[%d:%d], s47 offen sc1" % (R_+2, R_+3, V_L16, R_WS, R_WS+3))
    a("s_mov_b64 exec, -1")
    a.stamp("p2_done")
    if a.stop == 2:
        a("s_waitcnt vmcnt(0)")

_c0 = 2.0*math.log2(math.e)*math.sqrt(2/math.pi)
GS = (_c0*0.044715)**(1/3)
GK = _c0/GS

def gelu_consts(a): a("s_mov_b32 s48, %d" % f32(GS)); a("s_mov_b32 s49, %d" % f32(GK))

def gelu_poly(regs, t):
    o = ["v_pk_fma_f32 v[%d:%d], v[%d:%d], v[%d:%d], s[48:49] op_sel:[0,0,1] op_sel_hi:[1,1,1]" % (t+2*k, t+2*k+1, r, r+1, r, r+1) for k, r in enumerate(regs)]
    return o + ["v_pk_mul_f32 v[%d:%d], v[%d:%d], v[%d:%d]" % (t+2*k, t+2*k+1, t+2*k, t+2*k+1, r, r+1) for k, r in enumerate(regs)]

def gelu_pk(a, regs, t):
    for x in gelu_poly(regs, t): a(x)
    for k in range(2*len(regs)): a("v_exp_f32 v%d, -v%d" % (t+k, t+k))
    for k, r in enumerate(regs): a("v_pk_fma_f32 v[%d:%d], v[%d:%d], s[48:49], s[48:49] op_sel_hi:[1,0,0]" % (t+2*k, t+2*k+1, t+2*k, t+2*k+1))
    for k in range(2*len(regs)): a("v_rcp_f32 v%d, v%d" % (t+k, t+k))
    for k, r in enumerate(regs): a("v_pk_mul_f32 v[%d:%d], v[%d:%d], v[%d:%d]" % (r, r+1, r, r+1, t+2*k, t+2*k+1))

def stats_loads(a, off, stile, vt):
    a("v_lshlrev_b32 v%d, 3, v%d" % (vt+4, V_LANE))
    a("v_add_u32 v%d, 512, v%d" % (vt+5, vt+4)); a("v_cmp_gt_u32 vcc, 32, v%d" % V_LANE); a("v_mov_b32 v%d, 0x7fffffff" % vt)
    a("v_cndmask_b32 v%d, v%d, v%d, vcc" % (vt+5, vt, vt+5))
    a("s_mul_i32 s46, s%d, 768" % stile); a("s_add_u32 s46, s46, %d" % off)
    return ["buffer_load_dwordx2 v[%d:%d], v%d, s[%d:%d], s46 offen sc1" % (vt+2*k, vt+2*k+1, vt+4+k, R_WS, R_WS+3) for k in range(2)]

def stats_finish(a, vt, vmean, vrstd):
    a("v_add_f32 v%d, v%d, v%d" % (vt, vt, vt+2)); a("v_add_f32 v%d, v%d, v%d" % (vt+1, vt+1, vt+3))
    for sw in ("v_permlane32_swap_b32", "v_permlane16_swap_b32"):
        for k in range(2): a("v_mov_b32 v%d, v%d" % (vt+2+k, vt+k))
        for k in range(2): a("%s v%d, v%d" % (sw, vt+k, vt+2+k))
        for k in range(2): a("v_add_f32 v%d, v%d, v%d" % (vt+k, vt+k, vt+2+k))
    a("s_mov_b32 s47, %d" % f32(1.0/576))
    a("v_mul_f32 v%d, s47, v%d" % (vmean, vt)); a("v_mul_f32 v%d, v%d, v%d" % (vt, vmean, vmean))
    a("v_fma_f32 v%d, v%d, s47, -v%d" % (vt+1, vt+1, vt)); a("v_max_f32 v%d, 0, v%d" % (vt+1, vt+1))
    a("v_add_f32 v%d, %d, v%d" % (vt, f32(1e-5), vt+1)); a("v_rsq_f32 v%d, v%d" % (vrstd, vt))

def norm_ops(x, vs, vb, t):
    o = []
    for r in range(4):
        o.append("v_lshlrev_b32 v%d, 16, v%d" % (t+2*r, x+r)); o.append("v_and_b32 v%d, 0xffff0000, v%d" % (t+2*r+1, x+r))
    for r in range(8): o.append("v_fma_f32 v%d, v%d, v%d, v%d" % (t+r, t+r, vs, vb))
    for r in range(4): o.append("v_cvt_pk_bf16_f32 v%d, v%d, v%d" % (x+r, t+2*r, t+2*r+1))
    return o

def out_stats(a, pk, n, vt, off):
    a("v_mov_b32 v%d, 0" % vt); a("v_mov_b32 v%d, 0" % (vt+1))
    for r in range(n):
        a("v_dot2c_f32_bf16 v%d, s%d, v%d" % (vt, S_ONES, pk+r)); a("v_dot2c_f32_bf16 v%d, v%d, v%d" % (vt+1, pk+r, pk+r))
    for sw in ("v_permlane32_swap_b32", "v_permlane16_swap_b32"):
        for k in range(2): a("v_mov_b32 v%d, v%d" % (vt+2+k, vt+k))
        for k in range(2): a("%s v%d, v%d" % (sw, vt+k, vt+2+k))
        for k in range(2): a("v_add_f32 v%d, v%d, v%d" % (vt+k, vt+k, vt+2+k))
    a("s_mul_i32 s46, s53, 6"); a("s_add_u32 s46, s46, s51"); a("s_lshl_b32 s46, s46, 7"); a("s_add_u32 s46, s46, %d" % off)
    a("v_lshlrev_b32 v%d, 3, v%d" % (vt+2, V_LANE))
    a("s_mov_b64 exec, 0xffff")
    a("buffer_store_dwordx2 v[%d:%d], v%d, s[%d:%d], s46 offen sc1" % (vt, vt+1, vt+2, R_WS, R_WS+3))
    a("s_mov_b64 exec, -1")

AF, ACC, WB, HK, VMEAN, VRSTD = 64, 136, 160, 40, 52, 53
OS = WB

def tag_ops(regs, t):
    o = []; regs = list(regs)
    o.append("v_max3_u32 v%d, v%d, v%d, v%d" % (t, regs[0], regs[1], regs[2])); regs = regs[3:]
    while len(regs) >= 2: o.append("v_max3_u32 v%d, v%d, v%d, v%d" % (t, t, regs[0], regs[1])); regs = regs[2:]
    if regs: o.append("v_max_u32 v%d, v%d, v%d" % (t, t, regs[0]))
    return o + ["v_cmp_eq_u32 vcc, -1, v%d" % t]

def tag_branch(a, loads, regs, t, again=(), drain=False):
    L = a.newlabel("Ltg")
    a("s_cbranch_vccnz %s" % L)
    a.label(L + "_b")
    st = [L + ":"] + "\n".join(loads).split("\n") + ["s_waitcnt vmcnt(0)"] + tag_ops(regs, t)
    st += ["s_cmp_eq_u32 s79, 0", "s_cbranch_scc1 %s_b" % L, "s_sub_u32 s79, s79, 1", "s_cbranch_vccnz %s" % L]
    st += list(again) + (["s_waitcnt vmcnt(0)"] if drain and again else []) + ["s_branch %s_b" % L]
    a.stubs += st

UP = 8
NE = 12
def wpos(layout, b):
    if layout is None: return W_LDS//1024 + b
    w, i = divmod(b, 27)
    return layout[0] + NE*w + i if i < NE else layout[1] + (27-NE)*w + i - NE

def gemm96(a, loads, stage, delay, pre=(), each=None, stamp=None, extra=(), layout=None, early=(), before=None, after=None):
    a("s_waitcnt vmcnt(20)")
    a("s_barrier")
    nv = sum("buffer_load" in x for x in stage)
    n1 = len(stage) if nv else len(stage)//3
    for x in stage[:n1]: a(x)
    if delay: a("s_sleep %d" % delay)
    a("s_mov_b32 s79, 50000")
    a.stamp(stamp + "_ready")
    for x in pre: a(x)
    interleave(a, loads[:UP], stage[n1:])
    a("s_waitcnt vmcnt(%d) lgkmcnt(0)" % (UP + len(pre)))
    if before: before(a)
    a("s_barrier")
    def wr(j):
        o = []
        for t in range(6):
            q, r = divmod(wpos(layout, 18*t + j), 64)
            o.append("ds_read_b128 v[%d:%d], v%d offset:%d" % (WB+24*(j % 3)+4*t, WB+24*(j % 3)+4*t+3, (V_L16, 5, 6)[q], 1024*r))
        return o
    for x in early: a(x)
    if each: each(lambda: [a(x) for x in wr(0) + wr(1)])
    else:
        for x in wr(0) + wr(1): a(x)
    a("s_waitcnt vmcnt(%d)" % (UP-1))
    fr = lambda j: range(AF+4*j, AF+4*j+4)
    for x in tag_ops(fr(0), 30): a(x)
    tag_branch(a, [loads[0]], fr(0), 30, loads[1:UP])
    if after: after(a)
    for j in range(18):
        ex = lambda q: min(len(extra), max(0, (q-9)*len(extra)//8))
        issued = min(18, UP+j) + ex(j)
        a("s_waitcnt vmcnt(%d) lgkmcnt(%d)" % (issued - 1 - min(j+1, 17), 6 if j < 17 else 0))
        if j in (0, 9): a.stamp(stamp + "_k%d" % j)
        ms = [mfma(ACC+4*t, WB+24*(j % 3)+4*t, AF+4*j, None if j == 0 else ACC+4*t) for t in range(6)]
        fill = ([loads[UP+j]] if UP+j < 18 else []) + (tag_ops(fr(j+1), 30) if j < 17 else []) + (wr(j+2) if j < 16 else []) + list(extra[ex(j):ex(j+1)])
        interleave(a, ms, fill)
        if j < 17: tag_branch(a, [loads[j+1]], fr(j+1), 30, loads[j+2:UP+j+1], drain=ex(j+1) > 0)

FP2Q = "s_mov_b32 s46, %d\nbuffer_load_dwordx4 v[16:19], v%d, s[%d:%d], s46 offen sc1" % (FP2_OFF, V_L16, R_WS, R_WS+3)

def marks2(a):
    L = a.newlabel("Lm2")
    a("s_cmp_lg_u32 s%d, 0" % S_WAVE); a("s_cbranch_scc1 %s_x" % L)
    a("s_mov_b32 s47, 100000")
    a.label(L)
    for r in range(4): a("v_xor_b32 v%d, s%d, v%d" % (16+r, S_NONCE, 16+r))
    a("v_or3_b32 v16, v16, v17, v18"); a("v_or_b32 v16, v16, v19"); a("v_cmp_ne_u32 vcc, 0, v16"); a("s_cbranch_vccz %s_x" % L)
    a(FP2Q); a("s_waitcnt vmcnt(0)")
    a("s_sub_u32 s47, s47, 1"); a("s_cbranch_scc0 %s" % L)
    a.label(L + "_x")

def publish2(a, vt):
    L = a.newlabel("Lmp"); a("s_cmp_lg_u32 s%d, 0" % S_WAVE); a("s_cbranch_scc1 %s" % L); a.set_mark(vt, FP2_OFF); a.label(L)

def wflags(a, first, va, vd):
    a("s_mul_i32 s46, s65, 18"); a("s_add_u32 s46, s46, %d" % (FS + first))
    a("v_min_u32 v%d, 17, v%d" % (va, V_LANE)); a("v_add_u32 v%d, s46, v%d" % (va, va)); a("v_lshlrev_b32 v%d, 7, v%d" % (va, va))
    a("buffer_load_dword v%d, v%d, s[%d:%d], 0 offen offset:%d sc1" % (vd, va, R_WS, R_WS+3, FLAG0))

def phase345(a):
    a("s_mov_b32 s50, s74"); a("s_mov_b32 s51, s75"); a("s_mov_b32 s53, s76")
    a("s_cmp_ge_u32 s51, 6"); a("s_cbranch_scc1 L_p3_helper")
    a("v_add_u32 v5, 65536, v%d" % V_L16); a("v_add_u32 v6, 131072, v%d" % V_L16)
    a("s_mul_i32 s46, s%d, %d" % (S_WAVE, 1024*NE)); a("v_add_u32 v7, s46, v%d" % V_L16)
    a("s_mul_i32 s46, s%d, %d" % (S_WAVE, 1024*(27-NE))); a("v_add_u32 v8, s46, v%d" % V_L16)
    a("v_add_u32 v62, %d, v7" % (112*1024)); a("v_add_u32 v63, %d, v8" % (52*1024))
    LAY4, LAY5 = (0, 52), (112, 0)
    a("s_mul_i32 s54, s53, 18432")
    a("s_mul_i32 s55, s51, 3072"); a("s_add_u32 s55, s55, s54")
    a("v_lshlrev_b32 v9, 7, v%d" % V_LANE)
    a("s_lshl_b32 s46, s51, 2"); a("s_add_u32 s46, s46, s%d" % S_WAVE); a("s_mul_i32 s46, s46, 3072"); a("s_mul_i32 s78, s50, 73728"); a("s_add_u32 s78, s78, s46")
    def w2(i0, i1):
        return [("s_add_u32 s59, s72, %d\n" % (1024*(i & ~3)) if (i % 4 == 0 or i == i0) else "") +
                "buffer_load_dwordx4 a[%d:%d], v%d, s[%d:%d], s59 offen offset:%d sc1" % (AW2+4*i, AW2+4*i+3, V_L16, R_WS, R_WS+3, 1024*(i & 3)) for i in range(i0, i1)]
    def park(ab, lay, late):
        if late: return ["ds_write_b128 v%d, a[%d:%d] offset:%d" % (63 if lay[1] else 8, ab+4*i, ab+4*i+3, 1024*(i - NE)) for i in range(NE, 27)]
        return ["ds_write_b128 v%d, a[%d:%d] offset:%d" % (62 if lay[0] else 7, ab+4*i, ab+4*i+3, 1024*i) for i in range(NE)]
    def aloads(off):
        for q in range(5): a("s_add_u32 s%d, s54, %d" % (60+q, off + 4096*q))
        return ["buffer_load_dwordx4 v[%d:%d], v%d, s[%d:%d], s%d offen offset:%d sc1" % (AF+4*j, AF+4*j+3, V_L16, R_WS, R_WS+3, 60+(j >> 2), 1024*(j & 3)) for j in range(18)]
    def ostores(src, off):
        a("s_add_u32 s46, s55, %d" % off)
        for jj in range(3): a("buffer_store_dwordx4 v[%d:%d], v%d, s[%d:%d], s46 offen offset:%d sc1" % (src+4*jj, src+4*jj+3, V_L16, R_WS, R_WS+3, 1024*jj))
    a("s_lshl_b32 s46, s53, 4"); a("v_add_u32 v20, s46, v%d" % V_R); a("s_mov_b32 s47, 18432")
    for k, sh in enumerate((1, -1, 2, -2)):
        a("v_subrev_u32 v21, %d, v20" % sh); a("v_ashrrev_i32 v22, 4, v21"); a("v_mul_lo_u32 v22, v22, s47")
        a("v_and_b32 v21, 15, v21"); a("v_lshl_add_u32 v21, v%d, 4, v21" % V_G); a("v_lshl_add_u32 v%d, v21, 4, v22" % (56+k))
    a("v_cmp_gt_u32 vcc, 32, v%d" % V_LANE); a("v_cndmask_b32 v60, v57, v56, vcc"); a("v_cndmask_b32 v61, v59, v58, vcc")
    N2 = int(os.environ.get("N2", 0))
    n3 = max(N2, NE)
    gemm96(a, aloads(O_OFF), [pf_lds(0), pf_lds(1)] + w2(0, N2), SLEEP0["p3"] if N2 < 8 else 0, stamp="p3", extra=w2(N2, n3), early=park(AW1, LAY4, False))
    a.stamp("p3_gemm")
    a(FP2Q)
    a("s_mov_b32 s46, 0x00003f80"); a("s_mov_b32 s47, 0x3f800000")
    for t in range(6):
        for i in range(4): a("v_dot2c_f32_bf16 v%d, s%d, v%d" % (ACC+4*t+i, 46+(i & 1), XT+4*(t >> 1)+2*(t & 1)+(i >> 1)))
    for k in range(12): a("v_cvt_pk_bf16_f32 v%d, v%d, v%d" % (HK+k, ACC+2*k, ACC+2*k+1))
    ostores(HK, H_OFF)
    out_stats(a, HK, 12, 10, SH_OFF)
    a.stamp("p3_epi")
    if a.stop == 3: a("s_waitcnt vmcnt(0)"); a("s_branch L_fin")
    for r in range(4): a("v_mov_b32 v%d, s%d" % (20+r, S_ONES))
    cs = [mfma(WB+4*(i//9), AW1+4*i, 20, None if i % 9 == 0 else WB+4*(i//9), ta="a") for i in range(27)]
    a("s_mul_i32 s46, s%d, 192" % S_WAVE); a("s_add_u32 s46, s46, %d" % (48*1024)); a("v_lshl_add_u32 v24, v%d, 4, s46" % V_G)
    g = G(); interleave(g, [cs[(i % 3)*9 + i//3] for i in range(27)], park(AW1, LAY4, True))
    st4 = g.lines
    st4 += ["s_nop 7"] + ["ds_write_b128 v24, v[%d:%d] offset:%d" % (WB+4*k, WB+4*k+3, 64*k) for k in range(3)]
    CS = 232
    sl = stats_loads(a, SH_OFF, 53, 10); a("s_mov_b32 s65, s46"); sl = [x.replace("s46", "s65") for x in sl]
    def fin4(wreads):
        a("v_lshlrev_b32 v24, 4, v%d" % V_G)
        for k in range(12): a("ds_read_b128 v[%d:%d], v24 offset:%d" % ((CS if k % 2 == 0 else ACC)+4*(k//2), (CS if k % 2 == 0 else ACC)+4*(k//2)+3, 48*1024 + 64*k))
        wreads()
        a("s_waitcnt vmcnt(%d)" % UP)
        for x in tag_ops(range(10, 14), 30): a(x)
        tag_branch(a, sl, range(10, 14), 30, al4[:UP])
        stats_finish(a, 10, VMEAN, VRSTD)
        a("v_mul_f32 v12, v%d, v%d" % (VRSTD, VRSTD)); a("v_mul_f32 v12, v12, v11"); a("v_add_f32 v12, %d, v12" % f32(1e-5))
        a("v_rsq_f32 v12, v12"); a("v_mul_f32 v16, %d, v%d" % (f32(GS), VRSTD)); a("v_mul_f32 v16, v12, v16"); a("v_mul_f32 v17, v16, -v%d" % VMEAN)
        a("s_waitcnt lgkmcnt(12)")
        for k in range(12): a("v_pk_add_f32 v[%d:%d], v[%d:%d], v[%d:%d]" % (CS+2*k, CS+2*k+1, CS+2*k, CS+2*k+1, ACC+2*k, ACC+2*k+1))
        for k in range(12): a("v_pk_mul_f32 v[%d:%d], v[%d:%d], v[16:17] op_sel:[0,1] op_sel_hi:[1,1]" % (CS+2*k, CS+2*k+1, CS+2*k, CS+2*k+1))
    if "d_mid" in ABL: a("s_sleep 64")
    al4 = aloads(H_OFF)
    gemm96(a, al4, st4, SLEEP0["p4"], pre=sl, each=fin4, stamp="p4", extra=w2(n3, 27), layout=LAY4, before=marks2)
    a.stamp("p4_gemm")
    gelu_consts(a)
    for k in range(12): a("v_pk_fma_f32 v[%d:%d], v[%d:%d], v[16:17], v[%d:%d] op_sel_hi:[1,0,1]" % (ACC+2*k, ACC+2*k+1, ACC+2*k, ACC+2*k+1, CS+2*k, CS+2*k+1))
    g = G(); gelu_pk(g, [ACC+2*k for k in range(12)], AF)
    interleave(a, g.lines, park(AW2, LAY5, False))
    for k in range(12): a("v_cvt_pk_bf16_f32 v%d, v%d, v%d" % (OS+k, ACC+2*k, ACC+2*k+1))
    ostores(OS, T_OFF)
    a.stamp("p4_epi")
    if a.stop == 4: a("s_waitcnt vmcnt(0)"); a("s_branch L_fin")
    a.srd(R_A, S_WS, ACT, T_OFF)
    for q in range(5): a("s_mov_b32 s%d, %d" % (70+q, 4096*q))
    def vsel(j): return 56 if j < 4 else 60 if j == 4 else 57 if j < 9 else 58 if j < 13 else 61 if j == 13 else 59
    tl = ["buffer_load_dwordx4 v[%d:%d], v%d, s[%d:%d], s%d offen offset:%d sc1" % (AF+4*j, AF+4*j+3, vsel(j), R_A, R_A+3, 70+(j >> 2), 1024*(j & 3)) for j in range(18)]
    roles6(a)
    wflags(a, 54, 54, 55)
    a("s_waitcnt vmcnt(4)")
    gemm96(a, tl, park(AW2, LAY5, True), SLEEP0["p5"], stamp="p5", layout=LAY5)
    a.stamp("p5_gemm")
    a("v_mul_f32 v17, v%d, -v%d" % (VRSTD, VMEAN))
    for k in range(12):
        a("v_lshlrev_b32 v20, 16, v%d" % (HK+k)); a("v_and_b32 v21, 0xffff0000, v%d" % (HK+k))
        a("v_fma_f32 v20, v20, v%d, v17" % VRSTD); a("v_fma_f32 v21, v21, v%d, v17" % VRSTD)
        a("v_pk_add_f32 v[%d:%d], v[%d:%d], v[20:21]" % (ACC+2*k, ACC+2*k+1, ACC+2*k, ACC+2*k+1))
    for k in range(12): a("v_cvt_pk_bf16_f32 v%d, v%d, v%d" % (OS+k, ACC+2*k, ACC+2*k+1))
    ostores(OS, X1_OFF)
    out_stats(a, OS, 12, 10, SX_OFF)
    a.stamp("p5_epi")
    a("s_branch L_p5_pre")
    a.label("L_p3_helper")
    if "d_h3" in ABL: a("s_sleep 64")
    a("s_cmp_ge_u32 s48, 144"); a("s_cbranch_scc1 L_p3_touch")
    a("s_barrier")
    a(pf_lds(0)); a(pf_lds(1))
    swizzle_setup(a)
    a("s_add_u32 s48, s48, 54")
    for p in range(3):
        sw_big(a, 48, 60+3*p)
        a("s_lshl_b32 s53, s52, 10"); a("s_add_u32 s%d, s%d, s53" % (60+3*p, 60+3*p)); a("s_add_u32 s%d, s48, %d" % (62+3*p, FS))
        a("s_add_u32 s48, s48, 1")
    a("s_waitcnt vmcnt(0)"); a("s_barrier")
    for p in range(3): sw_process(a, p, W_LDS + 36864*p)
    a("s_waitcnt vmcnt(0)"); a("s_barrier")
    sw_flags(a, range(3))
    a.stamp("h_w3")
    a.label("L_p3_touch")
    roles6(a)
    NL = (SW << LCH)//128//32
    a("s_lshr_b32 s46, s65, %d" % LCH); a("s_mul_i32 s46, s46, %d" % (SW << LCH))
    a("s_and_b32 s47, s74, 3"); a("s_lshl_b32 s47, s47, 1"); a("s_add_u32 s47, s47, s75"); a("s_sub_u32 s47, s47, 6")
    if "xcd4" not in ABL:
        NL = BW//128//256
        a("s_mov_b32 s46, 0"); a("s_lshl_b32 s47, s74, 1"); a("s_add_u32 s47, s47, s75"); a("s_sub_u32 s47, s47, 6")
    a("s_lshl_b32 s47, s47, 2"); a("s_add_u32 s47, s47, s%d" % S_WAVE); a("s_mul_i32 s47, s47, %d" % (128*NL)); a("s_add_u32 s46, s46, s47")
    a.srd(R_A, S_W4, BW)
    a("v_lshlrev_b32 v10, 7, v%d" % V_LANE)
    for q in range(0 if "notouch4" in ABL else -(-NL//64)):
        if NL - 64*q < 64: a("s_bfm_b64 exec, %d, 0" % (NL - 64*q))
        a("buffer_load_dword v11, v10, s[%d:%d], s46 offen" % (R_A, R_A+3)); a("s_add_u32 s46, s46, 8192")
    a("s_mov_b64 exec, -1")
    a.stamp("h_w4")
    wflags(a, 54, 54, 55)
    a(FP2Q)
    a("s_waitcnt vmcnt(0)")
    marks2(a)
    a.label("L_p5_pre")
    a.label("L_p5_done")
    a.stamp("p5_done")

WFL = os.environ.get("WFL", " sc1")
OFL = os.environ.get("OFL", "")
LCH = int(os.environ.get('LCH', 1))
RING = 184

def roles6(a):
    L = LCH
    a("s_lshr_b32 s46, s%d, %d" % (S_XCD, 3-L)); a("s_lshl_b32 s64, s46, %d" % (5-L)); a("s_lshr_b32 s67, s%d, %d" % (S_SLOT, L)); a("s_add_u32 s64, s64, s67")
    a("s_and_b32 s67, s67, 7")
    a("s_mov_b32 s67, 0")
    a("s_and_b32 s46, s%d, %d" % (S_XCD, (8 >> L) - 1)); a("s_lshl_b32 s65, s46, %d" % L); a("s_and_b32 s46, s%d, %d" % (S_SLOT, (1 << L) - 1)); a("s_add_u32 s65, s65, s46")
    a("s_lshl_b32 s46, s65, 2"); a("s_add_u32 s46, s46, s%d" % S_WAVE); a("s_mul_i32 s66, s46, %d" % (9*18432)); a("s_add_u32 s66, s66, %d" % W3_S)

def wload(j, s=58, ring=("a", RING)):
    o = "s_add_u32 s%d, s%d, 4096\n" % (s, s) if (j and j % 4 == 0) else ""
    return o + ("buffer_load_dwordx4 %s[%d:%d], v%d, s[%d:%d], s%d offen offset:%d" + WFL) % (ring[0], ring[1]+4*j, ring[1]+4*j+3, V_L16, R_WS, R_WS+3, s, 1024*(j & 3))

def ring_prefill(a, s):
    a("s_mul_i32 s%d, s67, 18432" % s); a("s_add_u32 s%d, s%d, s66" % (s, s))
    return [wload(j, s) for j in range(18)]

def norm_pk(x, vs, t):
    o = []
    for r in range(4):
        o.append("v_lshlrev_b32 v%d, 16, v%d" % (t+2*r, x+r)); o.append("v_and_b32 v%d, 0xffff0000, v%d" % (t+2*r+1, x+r))
    for r in range(4): o.append("v_pk_fma_f32 v[%d:%d], v[%d:%d], v[%d:%d], v[%d:%d] op_sel:[0,0,1] op_sel_hi:[1,0,1]" % (t+2*r, t+2*r+1, t+2*r, t+2*r+1, vs, vs+1, vs, vs+1))
    for r in range(4): o.append("v_cvt_pk_bf16_f32 v%d, v%d, v%d" % (x+r, t+2*r, t+2*r+1))
    return o

def phase6(a):
    AC, PK, RB, GT, XR = 40, 72, 80, 136, 64
    HB = 73728
    def xf(T, j):
        f = 4*j + T
        return ("a", 4*f) if f < 46 else ("v", 152 + 4*(f-46))
    a("s_mov_b32 s50, s64"); a("s_mov_b32 s51, s65"); a("s_mov_b32 s54, s66"); a("s_mov_b32 s52, s67")
    a("s_lshl_b32 s53, s50, 2"); a("s_add_u32 s53, s53, s%d" % S_WAVE)
    a("s_mul_i32 s56, s50, 72"); a("s_add_u32 s56, s56, s51"); a("s_lshl_b32 s56, s56, 2"); a("s_add_u32 s56, s56, s%d" % S_WAVE)
    a("s_lshl_b32 s56, s56, 11"); a("s_add_u32 s56, s56, %d" % PART)
    a("s_mul_i32 s46, s53, 18432")
    for q in range(5): a("s_add_u32 s%d, s46, %d" % (70+q, X1_OFF + 4096*q))
    a("s_mul_i32 s46, s%d, 18432" % S_WAVE); a("v_add_u32 v5, s46, v%d" % V_L16)
    sl = stats_loads(a, SX_OFF, 53, 10)
    a("s_mov_b32 s60, s46")
    sl = [x.replace("s46", "s60") for x in sl]
    a("v_mov_b32 v28, 0")
    a("global_load_dword v29, v28, s[%d:%d] sc1" % (S_DBG, S_DBG+1))
    L = a.newlabel("Lh")
    a("s_cmp_lg_u32 s%d, 0" % S_WAVE); a("s_cbranch_scc1 %s" % L)
    a("v_cmp_ne_u32 vcc, s%d, v55" % S_NONCE); a("s_cbranch_vccz %s" % L)
    a("v_lshrrev_b32 v54, 7, v54")
    a.poll(54, 55, sleep0=0)
    a.label(L)
    a("s_barrier")
    pre = ring_prefill(a, 59)
    NP = SLEEP0["p6"]
    for x in pre[:NP]: a(x)
    a.stamp("p6_ready")
    a("s_mov_b32 s79, 50000")
    for x in sl: a(x)
    def xload(j): return "buffer_load_dwordx4 v[%d:%d], v%d, s[%d:%d], s%d offen offset:%d sc1" % (XR+4*j, XR+4*j+3, V_L16, R_WS, R_WS+3, 70+(j >> 2), 1024*(j & 3))
    for j in range(UP): a(xload(j))
    a("v_add_u32 v32, 36864, v%d" % V_L16); a("v_add_u32 v33, %d, v%d" % (HB, V_L16)); a("v_add_u32 v34, %d, v%d" % (HB+36864, V_L16))
    a("s_lshr_b32 s46, s%d, 1" % S_WAVE); a("s_lshl_b32 s46, s46, 12"); a("s_and_b32 s47, s%d, 1" % S_WAVE); a("s_lshl_b32 s47, s47, 3")
    a("s_add_u32 s46, s46, s47"); a("v_add_u32 v35, s46, v33")
    gelu_consts(a)
    R3, ST, SEL, RS = 12, 32, 6, RB
    def natsel(d, sr, bit, t):
        o = ["s_bfe_u32 s66, s%d, %d" % (sr, 0x10000 + bit), "s_lshl_b32 s66, s66, 1", "v_lshrrev_b32 v%d, 3, v%d" % (t, V_R), "v_add_u32 v%d, s66, v%d" % (t, t),
             "v_cmp_eq_u32 s[66:67], v%d, v%d" % (t, V_G), "v_and_b32 v%d, 1, v%d" % (t, V_R), "v_lshlrev_b32 v%d, 4, v%d" % (t, t),
             "v_mov_b32 v%d, 0x3f80" % (t+1), "v_lshlrev_b32 v%d, v%d, v%d" % (t+1, t, t+1), "v_cndmask_b32 v%d, 0, v%d, s[66:67]" % (t+1, t+1),
             "v_bfe_u32 v%d, v%d, 1, 2" % (t, V_R)]
        for k in range(4): o += ["v_cmp_eq_u32 s[66:67], %d, v%d" % (k, t), "v_cndmask_b32 v%d, 0, v%d, s[66:67]" % (d+k, t+1)]
        return o
    a("v_lshrrev_b32 v26, 2, v%d" % V_R); a("v_cmp_eq_u32 s[64:65], v26, v%d" % V_G)
    a("v_and_b32 v26, 1, v%d" % V_R); a("v_lshlrev_b32 v26, 4, v26"); a("v_mov_b32 v27, 0x3f80"); a("v_lshlrev_b32 v27, v26, v27")
    a("v_cndmask_b32 v27, 0, v27, s[64:65]"); a("v_and_b32 v26, 2, v%d" % V_R); a("v_cmp_eq_u32 vcc, 0, v26")
    a("v_cndmask_b32 v%d, 0, v27, vcc" % (SEL+2)); a("v_cndmask_b32 v%d, v27, 0, vcc" % (SEL+3))
    for r in (0, 1): a("v_mov_b32 v%d, 0" % (SEL+r))
    for x in natsel(36, S_WAVE, 0, 26): a(x)
    def bload(reg, s, off=0, t="a"): return "buffer_load_dwordx4 %s[%d:%d], v%d, s[%d:%d], s%d offen offset:%d sc1" % (t, reg, reg+3, V_L16, R_WS, R_WS+3, s, off)
    a("s_waitcnt vmcnt(%d)" % UP)
    for x in tag_ops(range(10, 14), 30): a(x)
    tag_branch(a, sl, range(10, 14), 30, [xload(j) for j in range(UP)])
    a.stamp("p6_st")
    stats_finish(a, 10, 17, 16)
    a("v_mul_f32 v16, s48, v16"); a("v_mul_f32 v17, v16, -v17")
    a("s_mul_i32 s60, s50, 73728")
    a("s_lshl_b32 s46, s51, 1"); a("s_lshr_b32 s47, s%d, 1" % S_WAVE); a("s_add_u32 s46, s46, s47"); a("s_lshl_b32 s46, s46, 10"); a("s_add_u32 s78, s46, s60")
    order = [("x", j) for j in range(UP)]
    todo = [("x", j) for j in range(UP, 18)] + [("w", j) for j in range(NP, 18)]
    for j in range(18):
        a("s_waitcnt vmcnt(%d)" % (len(order) - 1 - order.index(("x", j))))
        for x in tag_ops(range(XR+4*j, XR+4*j+4), 30): a(x)
        n = 1 if j < 10 else -(-len(todo)//(18-j))
        for k, q in todo[:n]:
            a(xload(q) if k == "x" else pre[q]); order.append((k, q))
        del todo[:n]
        later = [q for k, q in order if k == "x" and q > j]
        tag_branch(a, [xload(j)], range(XR+4*j, XR+4*j+4), 30, [xload(q) for q in later], drain=order[-1][0] == "w")
        if j in (9, 17): a.stamp("p6_x%d" % j)
        for x in norm_pk(XR+4*j, 16, 20): a(x)
        a("ds_write_b128 v5, v[%d:%d] offset:%d" % (XR+4*j, XR+4*j+3, 1024*j))
    assert not todo
    a("v_readfirstlane_b32 s%d, v29" % S_NONCE)
    for r in (4, 5): a("v_mov_b32 v%d, 0" % (SEL+r))
    a("s_waitcnt lgkmcnt(0)"); a("s_barrier")
    a.stamp("p6_x")
    def fread(j, va):
        o = []
        for T in range(4):
            t, r = xf(T, j)
            o.append("ds_read_b128 %s[%d:%d], v%d offset:%d" % (t, r, r+3, va[T >> 1], (T & 1)*18432 + 1024*j))
        return o
    def gelu(ac):
        b = gelu_poly([ac+2*k for k in range(8)], GT)
        o = []
        for T in range(4):
            x = ac + 4*T; t = GT + 4*T
            o += ["v_exp_f32 v%d, -v%d" % (t+i, t+i) for i in range(4)]
            o += ["v_fma_f32 v%d, v%d, s48, s48" % (t+i, t+i) for i in range(4)]
            o += ["v_rcp_f32 v%d, v%d" % (t+i, t+i) for i in range(4)]
            o += ["v_mul_f32 v%d, v%d, v%d" % (t+i, t+i, x+i) for i in range(4)]
            o += ["v_cvt_pk_bf16_f32 v%d, v%d, v%d" % (PK+2*T+h, t+2*h, t+2*h+1) for h in range(2)]
            o.append("ds_write_b64 v5, v[%d:%d] offset:%d" % (PK+2*T, PK+2*T+1, 1024*T))
        return b, o
    def wt(op): return 2 if op.startswith(("v_exp", "v_rcp")) else min(2, len(op.split("\n")))
    RA = ("a", RING); RBB = ("v", RB)
    def subpass(ac, fill, first=None, loads=None, at=None, ring=RA, depth=18, batch=(), head=(), c0=None, more=None):
        if "p6nogelu" in ABL and len(fill) > 20: fill = []; batch = ()
        if "p6nost" in ABL: fill = [x for x in fill if "buffer_store" not in x]
        fill = list(fill); head = list(head)
        seq = [(2*p + q, T) for p in range(9) for T in range(4) for q in range(2)]
        LA = 12
        rd = [fread(j, first)[T] for j, T in seq] if first else []
        for x in rd[:LA]: a(x)
        def wait(m):
            w = []
            if m % 8 == 0: w.append("vmcnt(%d)" % (depth - 2 + (more(m//4 - 1) if more and m else 0)))
            if first and m % 2 == 0: w.append("lgkmcnt(%d)" % max(0, min(LA, 72 - m) - 2))
            return "s_waitcnt " + " ".join(w) if w else None
        for m, (j, T) in enumerate(seq):
            if wait(m): a(wait(m))
            if at and m % 4 == 0 and m//4 in at: at[m//4]()
            t, r = xf(T, j)
            a(mfma(ac+4*T, ring[1]+4*j, r, (None if c0 is None else c0+4*T) if j == 0 else ac+4*T, ta=ring[0], tb=t))
            room = 2
            if m + LA < len(rd): a(rd[m + LA]); room -= 1
            if m < 3:
                n = (len(head) + 2 - m)//(3 - m)
                for x in head[:n]: a(x)
                del head[:n]
            if m == 3:
                for x in batch: a(x)
            if T == 3:
                ld = "" if ("p6nold" in ABL and loads is None) else (loads(j) if loads else wload(j, 58, ring))
                if ld: a(ld); room -= len(ld.split("\n"))
            if m < 71 and wait(m+1): room -= 1
            if m < 4: continue
            left = 71 - m
            while fill and (wt(fill[0]) <= room or sum(wt(x) for x in fill) > 2*left - (left+3)//4*2 + 1):
                room -= wt(fill[0]); a(fill.pop(0))
        assert not fill
    def nexttile():
        return ["s_mov_b32 s62, s61", "s_add_u32 s61, s61, 1", "s_add_u32 s54, s54, 18432", "s_mov_b32 s58, s54",
                "s_lshl_b32 s46, s62, 13", "v_add_u32 v5, s46, v35"]
    a("s_mov_b32 s61, 0"); a("s_add_u32 s54, s54, 18432"); a("s_mov_b32 s58, s54")
    for r in range(4): a("v_mov_b32 v%d, -1" % (PK+r))
    pois = []
    for k in (6, 7):
        pois.append("s_add_u32 s46, s51, %d\ns_and_b32 s46, s46, 7\ns_lshl_b32 s46, s46, 16\ns_add_u32 s62, s46, s56\n" % k +
                    "buffer_store_dwordx4 v[%d:%d], v%d, s[%d:%d], s62 offen sc1" % (PK, PK+3, V_L16, R_WS, R_WS+3))
        pois.append("buffer_store_dwordx4 v[%d:%d], v%d, s[%d:%d], s62 offen offset:1024 sc1" % (PK, PK+3, V_L16, R_WS, R_WS+3))
    res = ["s_add_u32 s62, s78, %d\n" % ((X1_OFF, H_OFF)[j >> 2] + 18432*(j & 3)) + bload(RS+4*j, 62, t="v") for j in range(8)]
    def resadd():
        a("s_waitcnt vmcnt(9)")
        for k in range(2):
            for T in range(4): a(mfma(R3+4*T, 36, RS+16*k+4*T, None if k == 0 else R3+4*T))
    ev0 = {j: (lambda j=j: a(res[j])) for j in range(8)}
    ev0[16] = resadd
    ev0[17] = lambda: [a(x) for x in pois]
    subpass(AC, [], first=(V_L16, 32), at=ev0, more=lambda j: min(j+1, 8))
    a.stamp("p6_p0")
    WF, DA, TA = RING+48, RB+16, RB+22
    a.srd(R_B, S_W4, BW + 4096, -4096)
    a("v_lshrrev_b32 v30, 3, v%d" % V_LANE); a("v_bfe_u32 v31, v%d, 4, 1" % V_LANE); a("v_lshlrev_b32 v31, 1, v31")
    a("v_and_b32 v%d, 7, v%d" % (TA, V_LANE)); a("v_xor_b32 v31, v31, v%d" % TA); a("v_mul_u32_u24 v30, 1152, v30")
    a("v_lshl_add_u32 v%d, v31, 4, v30" % DA); a("v_xor_b32 v31, 4, v31"); a("v_lshl_add_u32 v%d, v31, 4, v30" % (DA+1))
    for q in (5, 4, 3, 2, 1, 0): a("v_add_u32 v%d, %d, v%d" % (DA+q, 9216*q - 1024*(q % 3) + 4096, DA + (q & 1)))
    a("v_lshrrev_b32 v30, 2, v%d" % V_R); a("v_lshl_add_u32 v31, v%d, 3, v30" % V_G); a("v_lshlrev_b32 v31, 7, v31")
    a("v_lshrrev_b32 v30, 1, v30"); a("v_and_b32 v%d, 1, v%d" % (TA, V_G)); a("v_lshl_add_u32 v30, v%d, 1, v30" % TA)
    a("v_xor_b32 v30, s%d, v30" % S_WAVE); a("v_lshl_add_u32 v31, v30, 5, v31"); a("v_and_b32 v30, 3, v%d" % V_R)
    a("v_lshl_add_u32 v%d, v30, 3, v31" % TA)
    a("s_mul_i32 s55, s51, 12"); a("s_add_u32 s55, s55, s%d" % S_WAVE); a("s_mul_i32 s55, s55, %d" % (48*1152))
    a("s_mul_i32 s63, s%d, 6144" % S_WAVE)
    a("s_barrier")
    a("s_mov_b32 s59, 0")
    a.label("L_p6_a")
    for half in (1, 0):
        b, o = gelu(AC+16*(1-half))
        subpass(AC+16*half, o, batch=b, head=nexttile())
    a("s_add_u32 s59, s59, 1"); a("s_cmp_lt_u32 s59, 3"); a("s_cbranch_scc1 L_p6_a")
    b, o = gelu(AC)
    subpass(AC+16, o, batch=b, head=nexttile())
    CH = 24576
    def slot(n): return n % 3 if n < 6 else (n + 3) % 6
    def src(c, s): return "s_add_u32 s58, s%d, %d" % (s, 192*1152*c)
    def dma(n, s):
        o = []
        for q in range(6):
            pre = src(n % 3, s) + "\n" if q == 0 else ""
            if q % 3 == 0: pre = "s_add_u32 m0, s63, %d\n" % (CH*slot(n) + 1024*q) + (pre or "s_nop 0\n")
            o.append(pre + "buffer_load_dwordx4 v%d, s[%d:%d], s58 offen offset:%d lds" % (DA+q, R_B, R_B+3, 1024*(q % 3)))
        return o
    def origin(d, step):
        if step == 0: return ["s_add_u32 s%d, s55, 1024" % d]
        return ["s_add_u32 s46, s51, %s" % step, "s_and_b32 s46, s46, 7", "s_lshl_b32 s46, s46, 7", "s_add_u32 s%d, s55, s46" % d]
    for x in origin(64, 0) + origin(65, 1): a(x)
    d012 = dma(0, 64) + dma(1, 64) + dma(2, 64)
    b, o = gelu(AC+16)
    subpass(AC, o, batch=b, head=nexttile(), loads=lambda j: d012[j])
    a("s_lshl_b32 s46, s61, 13"); a("v_add_u32 v5, s46, v35")
    raw = [(src(j//6, 65) + "\n" if j % 6 == 0 else "") + "buffer_load_dwordx4 a[%d:%d], v%d, s[%d:%d], s58 offen offset:%d" % (RING+4*j, RING+4*j+3, DA + j % 6, R_B, R_B+3, 1024*(j % 3)) for j in range(18)]
    g = G(); gelu_pk(g, [AC+2*k for k in range(8)], GT)
    interleave(a, g.lines, raw[:14])
    for T in range(4):
        for h in range(2): a("v_cvt_pk_bf16_f32 v%d, v%d, v%d" % (PK+2*T+h, AC+4*T+2*h, AC+4*T+2*h+1))
        a("ds_write_b64 v5, v[%d:%d] offset:%d" % (PK+2*T, PK+2*T+1, 1024*T))
        a(raw[14+T])
    a("v_add_u32 v35, s63, v%d" % V_L16)
    a("s_waitcnt vmcnt(18) lgkmcnt(0)"); a("s_barrier")
    a.stamp("p6_a")
    def park(c): return ["ds_write_b128 v%d, a[%d:%d] offset:%d" % (RB+26, RING+24*c+4*q, RING+24*c+4*q+3, CH*c + 1024*q) for q in range(6)]
    def pstore(ac):
        o = ["v_cvt_pk_bf16_f32 v%d, v%d, v%d" % (PK+k, ac+2*k, ac+2*k+1) for k in range(8)]
        o += ["buffer_store_dwordx4 v[%d:%d], v%d, s[%d:%d], s62 offen offset:%d sc1" % (PK+4*p, PK+4*p+3, V_L16, R_WS, R_WS+3, 1024*p) for p in range(2)]
        return o
    def dest(step):
        if step == 0: return ["s_add_u32 s62, s56, %d" % (8*65536)]
        return ["s_add_u32 s46, s51, %s" % step, "s_and_b32 s46, s46, 7", "s_lshl_b32 s46, s46, 16", "s_add_u32 s62, s46, s56"]
    def wf(pp): return (RB, RB+8, ST)[pp % 3]
    def wread(n, p):
        o = ["v_add_u32 v%d, %d, v%d" % (TA+1, CH*slot(n), TA)] if p == 0 else []
        pp = 3*n + p
        return o + ["ds_read_b64_tr_b16 v[%d:%d], v%d offset:%d" % (wf(pp)+4*q+2*hh, wf(pp)+4*q+2*hh+1, TA+1, 4096*(2*p+q) + 512*hh) for q in range(2) for hh in range(2)]
    def step(s, ac, fill, head=(), first=None, c0=None, before={}, after={}, at={}):
        if "p6nost" in ABL: fill = [x for x in fill if "buffer_store" not in x]
        if "p6nold" in ABL: after = {k: [x for x in v if " lds" not in x] or ["s_nop 0"] for k, v in after.items()}
        fill = list(fill); head = list(head); lg = list(step.lg)
        seq = [(2*p + q, T) for p in range(9) for T in range(4) for q in range(2)]
        hr = ["ds_read_b128 %s[%d:%d], v%d offset:%d" % (xf(T, j)[0], xf(T, j)[1], xf(T, j)[1]+3, first[j//9], 1024*(4*(j % 9) + T)) for j, T in seq] if first else []
        def lds(x, tag):
            a(x)
            if x.startswith("ds_"): lg.append(tag)
        def upto(tag):
            if tag in lg:
                n = len(lg) - 1 - max(i for i, t in enumerate(lg) if t == tag)
                a("s_waitcnt lgkmcnt(%d)" % min(n, 15)); del lg[:len(lg) - min(n, 15)]
                return 1
            return 0
        for i, x in enumerate(hr[:8]): lds(x, ("h", i))
        extra = [(w - 72, x) for w, x in step.extra]
        for m, (j, T) in enumerate(seq):
            p, c = m//8, m//24
            room = 2
            if m % 24 == 8 and 3*s + c < 26:
                if c in before: before[c]()
                upto("x")
                if "p6nobar" not in ABL: a("s_barrier")
                assert not extra
                ex = after.get(c, []); extra = [(m + 24*k//len(ex), x) for k, x in enumerate(ex)]
            if m % 8 == 0:
                upto(("w", 9*s + p))
                nx = wread(3*s + (p+2)//3, (p+2) % 3) if 9*s + p < 79 else []
            if m % 2 == 0 and first: upto(("h", m+1))
            if m % 4 == 0 and m//4 in at: at[m//4]()
            t, r = xf(T, j)
            a(mfma(ac+4*T, wf(9*s+p)+4*(j & 1), r, (None if c0 is None else c0+4*T) if j == 0 else ac+4*T, tb=t))
            if nx:
                lds(nx.pop(0), ("w", 9*s + p + 2)); room -= 1
            if m + 8 < len(hr): lds(hr[m+8], ("h", m+8)); room -= 1
            if m < 3:
                n = (len(head) + 2 - m)//(3 - m)
                for x in head[:n]: a(x)
                del head[:n]
            while extra and extra[0][0] <= m:
                lds(extra.pop(0)[1], "x"); room -= 1
            if m >= 4:
                while fill and wt(fill[0]) <= room: room -= wt(fill[0]); a(fill.pop(0))
        assert not fill
        step.lg = lg; step.extra = extra
    def mix(x, y): return [z for pair in zip(x, y) for z in pair]
    def vm(n): return lambda: a("s_waitcnt vmcnt(%d)" % n)
    def seq(*fs):
        def f():
            for x in fs: x()
        return f
    def wave(w, body):
        def f():
            L = a.newlabel("Lex"); a("s_cmp_lg_u32 s%d, %d" % (S_WAVE, w)); a("s_cbranch_scc1 %s" % L); body(); a.label(L)
        return f
    a("s_lshl_b32 s70, s50, 10"); a("s_add_u32 s70, s70, %d" % (FLAG0 + 128*FA)); a("s_lshl_b32 s46, s51, 7"); a("s_add_u32 s68, s70, s46")
    a("s_mul_i32 s46, s50, 9"); a("s_add_u32 s46, s46, s51"); a("s_lshl_b32 s46, s46, 16"); a("s_lshl_b32 s47, s%d, 11" % S_WAVE)
    a("s_add_u32 s46, s46, s47"); a("s_add_u32 s69, s46, %d" % PART)
    a("v_and_b32 v5, 7, v%d" % V_LANE); a("v_cmp_eq_u32 vcc, s51, v5"); a("v_xor_b32 v30, 1, v5")
    a("v_cndmask_b32 v5, v5, v30, vcc"); a("v_lshlrev_b32 v5, 7, v5")
    def publish(c):
        def f():
            a("s_add_u32 s46, s%d, %d" % (S_NONCE, c)); a("v_mov_b32 v29, s46"); a("s_mov_b64 exec, 1")
            a("buffer_store_dword v29, v28, s[%d:%d], s68 offen sc1" % (R_WS, R_WS+3))
            a("s_mov_b64 exec, -1")
        return wave(0, f)
    askq = "buffer_load_dword v31, v5, s[%d:%d], s70 offen sc1" % (R_WS, R_WS+3)
    ask = wave(0, lambda: a(askq))
    def need(c, n):
        def f():
            L = a.newlabel("Lcf")
            a("s_add_u32 s73, s%d, %d" % (S_NONCE, c)); a("s_mov_b32 s47, 100000"); a("s_waitcnt vmcnt(%d)" % n)
            a.label(L)
            a("v_subrev_u32 v30, s73, v31"); a("v_cmp_lt_u32 vcc, 7, v30"); a("s_cbranch_vccz %s_x" % L)
            a("s_sleep 1"); a(askq); a("s_waitcnt vmcnt(0)")
            a("s_sub_u32 s47, s47, 1"); a("s_cbranch_scc0 %s" % L)
            a.label(L + "_x")
        return wave(0, f)
    step.extra = []
    a("v_mov_b32 v%d, v33" % (RB+24)); a("v_mov_b32 v%d, v34" % (RB+25)); a("v_mov_b32 v%d, v35" % (RB+26))
    for x in wread(0, 0) + wread(0, 1): a(x)
    step.lg = [("w", 0)]*4 + [("w", 1)]*4
    step(0, AC, [], first=(RB+24, RB+25), head=origin(64, 2),
         after={1: ["s_waitcnt vmcnt(12)"] + mix(park(0), dma(6, 64)), 2: ["s_waitcnt vmcnt(12)"] + mix(park(1), dma(7, 64))})
    a.stamp("p6_s0")
    step(1, AC+16, pstore(AC), head=dest(0) + origin(65, 3), before={2: vm(18)},
         after={0: ["s_waitcnt vmcnt(12)"] + mix(park(2), dma(8, 64)), 1: dma(9, 65), 2: dma(10, 65)})
    a.stamp("p6_s1")
    a("s_mov_b32 s71, 2")
    a.label("L_p6_b")
    w18 = {0: vm(18), 1: vm(18), 2: vm(18)}
    def last(body):
        def f():
            L = a.newlabel("Ll"); a("s_cmp_eq_u32 s71, 4"); a("s_cbranch_scc0 %s" % L); body(); a.label(L)
        return f
    lg0 = list(step.lg); ex0 = list(step.extra)
    step(2, AC, pstore(AC+16), head=["s_sub_u32 s72, s71, 1"] + dest("s72") + ["s_add_u32 s72, s71, 2"] + origin(64, "s72"), before=w18,
         after={0: dma(11, 65), 1: dma(12, 64), 2: dma(13, 64)})
    step(3, AC+16, pstore(AC), head=dest("s71") + ["s_add_u32 s72, s71, 3"] + origin(65, "s72"), before={0: vm(18), 1: vm(18), 2: seq(vm(18), last(vm(10)))},
         after={0: dma(14, 64), 1: dma(15, 65), 2: dma(16, 65)}, at={15: last(publish(4))})
    assert [t[0] for t in step.lg] == [t[0] for t in lg0] and step.extra == ex0
    a("s_add_u32 s71, s71, 2"); a("s_cmp_lt_u32 s71, 6"); a("s_cbranch_scc1 L_p6_b")
    step.lg = [("w", t[1] + 36) for t in lg0]
    a.stamp("p6_s5")
    def SC(k): return (54, 57, 59, 61, 72, 75, 76)[k-1]
    for k in range(1, 8):
        r = SC(k); a("s_sub_u32 s%d, s51, %d" % (r, k)); a("s_and_b32 s%d, s%d, 7" % (r, r)); a("s_lshl_b32 s%d, s%d, 13" % (r, r)); a("s_add_u32 s%d, s%d, s69" % (r, r))
    CB = {k: ("v", RB + 24 + 8*(k-2)) if k > 1 else ("a", RING+48) for k in range(1, 8)}
    def cload(k): return [bload(CB[k][1]+4*p, SC(k), 1024*p, t=CB[k][0]) for p in range(2)]
    def emit(xs): return lambda: [a(x) for x in xs]
    def add(acc, k):
        def f():
            for T in range(4): a(mfma(acc+4*T, SEL if T & 1 else SEL+2, CB[k][1]+4*(T >> 1), acc+4*T, tb=CB[k][0]))
        return f
    step(6, AC, pstore(AC+16), head=dest(5) + origin(64, 8), before={0: vm(18), 1: vm(18), 2: seq(need(4, 6), vm(10))},
         after={0: dma(23, 65), 1: dma(24, 64), 2: dma(25, 64)}, at={6: ask, 15: publish(5), 16: emit(cload(1))})
    a.stamp("p6_s6")
    a("s_mul_i32 s46, s50, 9"); a("s_add_u32 s46, s46, 8"); a("s_lshl_b32 s46, s46, 16"); a("s_lshl_b32 s47, s51, 10")
    a("s_add_u32 s46, s46, s47"); a("s_add_u32 s78, s46, %d" % PART)
    a("s_and_b32 s46, s51, 1"); a("s_mul_i32 s74, s46, 36864"); a("s_add_u32 s74, s74, s60")
    a("s_lshr_b32 s47, s51, 2"); a("s_add_u32 s47, s47, 16"); a("s_lshl_b32 s46, s47, 10"); a("s_add_u32 s79, s46, s74")
    a("s_lshr_b32 s46, s51, 1"); a("s_lshl_b32 s46, s46, 5"); a("s_add_u32 s46, s46, 1024"); a("s_add_u32 s74, s74, s46")
    def extra_get():
        for k in range(8):
            a(bload(RING+4*k, 78)); a("s_add_u32 s78, s78, 8192")
        for k, off in enumerate((H_OFF, X1_OFF)):
            for T in range(2):
                a("s_add_u32 s46, s79, %d" % (off + 18432*T)); a(bload(RING+32+8*k+4*T, 46))
    step(7, AC+16, pstore(AC), head=dest(6), before={0: vm(18), 1: vm(18), 2: seq(need(5, 2), vm(18))}, after={0: dma(26, 64)},
         at={3: emit(cload(2)), 6: emit(cload(3)), 9: ask, 10: emit(cload(4)), 15: emit(cload(5))})
    a.stamp("p6_s7")
    SEv, EA = AC+16, AC+24
    g = G()
    g.lines += natsel(SEv, 51, 1, EA)
    OB = 147456
    g("v_mul_u32_u24 v%d, 144, v%d" % (AC+20, V_R)); g("v_lshl_add_u32 v%d, v%d, 3, v%d" % (AC+20, V_G, AC+20))
    g.lines.append("s_lshl_b32 s66, s%d, 5\ns_add_u32 s66, s66, %d" % (S_WAVE, OB))
    g("v_add_u32 v%d, s66, v%d" % (AC+20, AC+20))
    g("v_lshrrev_b32 v%d, 3, v0" % EA); g("v_and_b32 v%d, 7, v0" % (EA+1)); g("v_lshlrev_b32 v%d, 4, v%d" % (EA+1, EA+1))
    g("v_mul_u32_u24 v%d, 144, v%d" % (AC+21, EA)); g("v_add_u32 v%d, v%d, v%d" % (AC+21, AC+21, EA+1)); g("v_add_u32 v%d, %d, v%d" % (AC+21, OB, AC+21))
    g("v_mul_u32_u24 v%d, 1152, v%d" % (AC+22, EA)); g("v_add_u32 v%d, v%d, v%d" % (AC+22, AC+22, EA+1))
    g("v_mul_u32_u24 v%d, 1152, v%d" % (AC+23, V_R)); g("v_lshl_add_u32 v%d, v%d, 3, v%d" % (AC+23, V_G, AC+23))
    step(8, AC, pstore(AC+16) + g.lines, head=dest(7), c0=R3, before={0: vm(10), 1: vm(2)},
         at={8: add(AC, 1), 9: wave(3, extra_get), 10: add(AC, 2), 12: seq(add(AC, 3), emit(cload(6))),
             14: add(AC, 4), 16: add(AC, 5), 17: emit(cload(7))})
    a.stamp("p6_b")
    a.srd(R_A, S_OUT, ACT)
    a("s_cmp_lg_u32 s%d, 3" % S_WAVE); a("s_cbranch_scc1 L_p7_main")
    a("s_waitcnt vmcnt(4)")
    for k in range(8):
        a(mfma(EA, SEL+2, RING+4*k, None if k == 0 else EA, tb="a")); a(mfma(EA+4, SEL, RING+4*k, None if k == 0 else EA+4, tb="a"))
    for k in range(2):
        for T in range(2): a(mfma(EA+4*T, SEv, RING+32+8*k+4*T, EA+4*T, tb="a"))
    for T in range(2):
        for h in range(2): a("v_cvt_pk_bf16_f32 v%d, v%d, v%d" % (PK+2*T+h, EA+4*T+2*h, EA+4*T+2*h+1))
    a.label("L_p7_main")
    for k in (6, 7):
        base = CB[k][1]
        L = a.newlabel("Ltag")
        a("s_mov_b32 s47, 100000")
        a("s_waitcnt vmcnt(%d)" % (2 if k == 6 else 0))
        a.label(L)
        for x in tag_ops(range(base, base+8), 30): a(x)
        a("s_cbranch_vccz %s_x" % L)
        for x in cload(k): a(x)
        a("s_waitcnt vmcnt(0)")
        a("s_sub_u32 s47, s47, 1"); a("s_cbranch_scc0 %s" % L)
        a.label(L + "_x")
        add(AC, k)()
    a.stamp("p7_ready")
    a("s_cmp_lg_u32 s%d, 3" % S_WAVE); a("s_cbranch_scc1 L_p7_acc")
    for T in range(2):
        a("buffer_store_dwordx2 v[%d:%d], v%d, s[%d:%d], s74 offen%s" % (PK+2*T, PK+2*T+1, AC+23, R_A, R_A+3, OFL))
        a("s_add_u32 s74, s74, 18432")
    a.label("L_p7_acc")
    a("s_lshl_b32 s46, s51, 7"); a("s_add_u32 s46, s46, s60"); a("s_add_u32 s47, s46, 36864")
    for T in range(4):
        for h in range(2): a("v_cvt_pk_bf16_f32 v%d, v%d, v%d" % (R3+2*T+h, AC+4*T+2*h, AC+4*T+2*h+1))
        a("ds_write_b64 v%d, v[%d:%d] offset:%d" % (AC+20, R3+2*T, R3+2*T+1, 2304*T))
    a("s_waitcnt lgkmcnt(0)"); a("s_barrier")
    for p in range(2): a("ds_read_b128 v[%d:%d], v%d offset:%d" % (R3+8+4*p, R3+11+4*p, AC+21, 4608*p))
    for p in range(2):
        a("s_waitcnt lgkmcnt(%d)" % (1-p))
        a("buffer_store_dwordx4 v[%d:%d], v%d, s[%d:%d], s%d offen%s" % (R3+8+4*p, R3+11+4*p, AC+22, R_A, R_A+3, 46+p, OFL))
```

```python
from gen import *

NEG = 0xF149F2CA
SLEEP0 = dict(p2=0, p3=0, p4=0, p5=0, p6=18)
for _kv in os.environ.get('SLEEP', '').split(','):
    if _kv: SLEEP0[_kv.split('=')[0]] = int(_kv.split('=')[1])

W_LDS = 53248
AW1, AW2 = 40, 148
XT = 232
W1N = int(os.environ.get('W1N', 27))
PA, PS, R_C = 244, (3, 27, 45), R_B

def pf_lds(i):
    gq, k = divmod(i, 9)
    pre = ("s_mul_i32 s58, s79, %d\ns_add_u32 s58, s58, s73\ns_add_u32 m0, s58, %d\n" % (gq, 1024*k)) if k == 0 or i == 2 else ""
    post = "\ns_add_u32 m0, m0, 1024" if k < 8 and i != 1 else ""
    return pre + "buffer_load_dwordx4 v%d, s[%d:%d], s%d offen sc1 lds" % (PA+k, R_C, R_C+3, PS[gq]) + post

def roles345(a):
    a("s_lshr_b32 s46, s%d, 3" % S_SLOT); a("s_lshl_b32 s74, s%d, 2" % S_XCD); a("s_add_u32 s74, s74, s46"); a("s_add_u32 s75, s%d, 6" % S_SLOT); a("s_and_b32 s75, s75, 7")
    a("s_lshl_b32 s76, s74, 2"); a("s_add_u32 s76, s76, s%d" % S_WAVE)

def phase2(a):
    KL_, VL_ = 0, 27648
    a("s_lshr_b32 s50, s%d, 1" % S_SLOT); a("s_and_b32 s51, s%d, 1" % S_SLOT); a("s_lshl_b32 s46, s%d, 1" % S_XCD); a("s_add_u32 s51, s51, s46")
    a("s_mul_i32 s52, s51, %d" % HPSZ)
    a("s_add_u32 s46, s52, %d" % K_OFF); a.srd_s(R_A, S_WS, HPSZ, 46)
    a("s_add_u32 s46, s52, %d" % V_OFF); a.srd_s(R_B, S_WS, HPSZ, 46)
    a("s_mul_i32 s46, s50, 9216"); a("s_sub_u32 s46, s46, 18432"); a("s_lshl_b32 s47, s%d, 10" % S_WAVE); a("s_add_u32 s46, s46, s47")
    a("v_add_u32 v10, s46, v%d" % V_L16)
    for i in range(1, 7): a("v_add_u32 v%d, %d, v10" % (10+i, 4096*i))
    a("s_lshl_b32 s46, s50, 3"); a("s_lshl_b32 s53, s%d, 1" % S_WAVE); a("s_add_u32 s53, s53, s46")
    a("s_mul_i32 s54, s53, 1152"); a("s_add_u32 s54, s54, s52"); a("s_add_u32 s54, s54, %d" % Q_OFF)
    a("v_lshlrev_b32 v18, 4, v%d" % V_R)
    a("s_mul_i32 s46, s%d, 2304" % S_WAVE)
    a("v_add_u32 v20, s46, v%d" % V_L16)
    a("s_add_u32 s47, s46, 2048"); a("v_add_u32 v21, s47, v18")
    a("s_add_u32 s47, s46, %d" % VL_); a("v_add_u32 v22, s47, v%d" % V_L16)
    a("v_lshl_add_u32 v23, v%d, 2, v%d" % (V_R, V_G)); a("s_add_u32 s47, s47, 2048"); a("v_lshl_add_u32 v23, v23, 4, s47")
    for i in range(4):
        a("v_lshl_add_u32 v24, v%d, 2, %d" % (V_G, i)); a("v_cmp_gt_u32 s[%d:%d], v24, v%d" % (60+2*i, 61+2*i, V_R))
    a("v_cmp_eq_u32 s[68:69], 0, v%d" % V_G)
    a("v_mov_b32 v25, 0x%x" % NEG)
    for r in range(4): a("v_mov_b32 v%d, -1" % (228+r))
    a("v_and_b32 v225, 31, v%d" % V_LANE); a("v_lshlrev_b32 v225, 2, v225")
    VLA = 0
    for r in range(36): a("v_accvgpr_write_b32 a%d, s%d" % (VLA+r, S_ONES))
    roles345(a)
    a("s_mul_i32 s46, s75, 110592"); a("s_mul_i32 s47, s%d, 27648" % S_WAVE); a("s_add_u32 s70, s46, s47"); a("s_add_u32 s70, s70, %d" % WO_S)
    a("s_add_u32 s71, s70, %d" % SW); a("s_add_u32 s72, s71, %d" % SW)
    a("s_cmp_ge_u32 s75, 6"); a("s_cbranch_scc1 L_p2_hs")
    a("s_add_u32 s73, s47, %d" % W_LDS); a("s_mov_b32 s79, 9216")
    for gq in range(3): a("s_add_u32 s%d, s70, %d" % (PS[gq], 9216*gq))
    for i in range(9): a("v_add_u32 v%d, %d, v%d" % (PA+i, 1024*i, V_L16))
    a("s_mov_b32 s10, s%d" % S_WS); a("s_mov_b32 s11, s%d" % (S_WS+1)); a("s_mov_b32 s26, %d" % WS_END)
    a("s_branch L_p2_hd")
    a.label("L_p2_hs")
    a("s_mov_b32 s71, 0x70000000")
    a("s_mul_i32 s47, s%d, 9216" % S_WAVE); a("s_add_u32 s73, s47, %d" % W_LDS); a("s_mov_b32 s79, 36864")
    a("s_lshl_b32 s48, s74, 1"); a("s_add_u32 s48, s48, s75"); a("s_sub_u32 s48, s48, 6"); a("s_mul_i32 s48, s48, 3")
    a("s_mov_b32 s10, s%d" % S_W3); a("s_mov_b32 s11, s%d" % (S_W3+1)); a("s_mov_b32 s78, 9216")
    a("s_cmp_lt_u32 s48, 144"); a("s_cselect_b32 s26, %d, 0" % BW)
    for gq in range(3):
        a("s_add_u32 s46, s48, %d" % gq)
        a.sdiv(47, 56, 46, 18)
        a("s_lshl_b32 s56, s56, 2"); a("s_add_u32 s56, s56, s%d" % S_WAVE); a("s_mul_i32 s56, s56, %d" % (8*9216))
        a("s_mul_i32 s47, s47, 1152"); a("s_add_u32 s%d, s56, s47" % (PS[gq]))
    for i in range(9):
        a("v_add_u32 v24, %d, v%d" % (64*i, V_LANE)); a("v_mul_u32_u24 v26, 911, v24"); a("v_lshrrev_b32 v26, 16, v26")
        a("v_mul_u32_u24 v27, 72, v26"); a("v_sub_u32 v27, v24, v27"); a("v_mul_lo_u32 v26, v26, s78"); a("v_lshl_add_u32 v%d, v27, 4, v26" % (PA+i))
    a.label("L_p2_hd")
    a("v_mul_u32_u24 v7, 1152, v%d" % V_R); a("v_lshl_add_u32 v7, v%d, 4, v7" % V_G)
    a("s_mul_i32 s46, s76, 18432"); a("s_mul_i32 s47, s75, 192"); a("s_add_u32 s77, s46, s47")
    a("s_cmp_ge_u32 s75, 6"); a("s_cselect_b32 s77, 0x70000000, s77")
    L = a.newlabel("Lp2w")
    a("v_mov_b32 v19, %d" % (W_LDS + 4096))
    a("s_cmp_lg_u32 s%d, 0" % S_WAVE); a("s_cbranch_scc1 %s" % L)
    a("v_and_b32 v30, 2, v%d" % V_LANE); a("v_cmp_eq_u32 s[58:59], 0, v30"); a("v_cmp_gt_u32 vcc, 12, v%d" % V_LANE)
    a("s_andn2_b64 s[56:57], vcc, s[58:59]"); a("s_and_b64 s[58:59], vcc, s[58:59]")
    a("v_mov_b32 v34, 0x49800000"); a("v_mov_b32 v35, 0x7f800000")
    a("v_lshrrev_b32 v30, 2, v%d" % V_LANE); a("v_min_u32 v30, 2, v30"); a("v_add_u32 v30, s50, v30"); a("v_subrev_u32 v30, 2, v30"); a("v_max_i32 v30, 0, v30")
    a("v_bfe_u32 v31, v%d, 1, 1" % V_LANE); a("v_add_u32 v31, 1, v31"); a("v_cmp_gt_u32 vcc, 12, v%d" % V_LANE); a("v_cndmask_b32 v31, 0, v31, vcc")
    a("v_mul_u32_u24 v31, 576, v31"); a("v_and_b32 v32, 1, v%d" % V_LANE); a("v_mul_u32_u24 v32, 35, v32")
    a("s_mul_i32 s46, s51, 36"); a("v_add3_u32 v31, v31, v32, s46"); a("v_lshrrev_b32 v31, 7, v31")
    a("v_lshl_add_u32 v30, v30, 4, v31"); a("v_add_u32 v30, %d, v30" % F1)
    a.stamp("p2_setup")
    a.poll(30, 32, sleep0=SLEEP0["p2"], two=True)
    a("v_cndmask_b32 v30, 0, v33, s[58:59]"); a("v_cndmask_b32 v31, 0, v33, s[46:47]".replace("46:47", "56:57"))
    a("v_cmp_nle_f32 vcc, v31, v34"); a("v_cndmask_b32 v30, v30, v35, vcc")
    for r in (8, 4, 2, 1): a("v_max_f32_dpp v30, v30, v30 row_ror:%d row_mask:0xf bank_mask:0xf" % r)
    a("s_mov_b64 exec, 1"); a("ds_write_b32 v19, v30"); a("s_mov_b64 exec, -1"); a("s_waitcnt lgkmcnt(0)")
    a.label(L)
    a("s_barrier")
    a("ds_read_b32 v19, v19")
    a("v_min_u32 v38, 53, v%d" % V_LANE); a("v_add_u32 v38, %d, v38" % FS); a("v_lshlrev_b32 v38, 7, v38")
    fsq = "buffer_load_dword v39, v38, s[%d:%d], 0 offen offset:%d sc1" % (R_WS, R_WS+3, FLAG0)
    a.stamp("p2_ready")
    QR = 26
    a("buffer_load_dwordx4 v[%d:%d], v%d, s[%d:%d], s54 offen sc1" % (QR, QR+3, V_L16, R_WS, R_WS+3))
    a("buffer_load_dwordx4 v[%d:%d], v18, s[%d:%d], s54 offen offset:2048 sc1" % (QR+4, QR+7, R_WS, R_WS+3))
    a("buffer_load_dwordx4 v[%d:%d], v%d, s[%d:%d], s54 offen offset:1024 sc1" % (QR+8, QR+11, V_L16, R_WS, R_WS+3))
    a(fsq)
    a("s_lshl_b32 s46, s%d, 10" % S_WAVE)
    for R, base in ((R_A, KL_), (R_B, VL_)):
        for i in range(7):
            Ls = a.newlabel("Lp2d")
            if i == 6: a("s_cmp_eq_u32 s%d, 3" % S_WAVE); a("s_cbranch_scc1 %s" % Ls)
            a("s_add_u32 m0, s46, %d" % (base + 4096*i))
            a("buffer_load_dwordx4 v%d, s[%d:%d], 0 offen sc1 lds" % (10+i, R, R+3))
            if i == 6: a.label(Ls)
    a.srd(R_A, S_X, ACT)
    a("s_mov_b32 s%d, s10" % R_C); a("s_mov_b32 s%d, s11" % (R_C+1)); a("s_mov_b32 s%d, s26" % (R_C+2)); a("s_mov_b32 s%d, 0x20000" % (R_C+3))
    QF = 40
    a("s_waitcnt vmcnt(12)")
    for hd in range(2):
        for qt in range(2):
            q = QF + 12*hd + 6*qt
            for h in range(2): a("v_mov_b32 v%d, v%d" % (q+2+h, QR+8*hd+2*qt+h))
            a("v_cndmask_b32 v%d, 0, v%d, s[68:69]" % (q+hd, QR+4+2*qt+hd)); a("v_mov_b32 v%d, 0" % (q+1-hd))
            for h in range(2): a("v_mov_b32 v%d, v%d" % (q+4+h, q+h))
    for k in range(4):
        a("v_mov_b32 v%d, 0" % (216+k))
        for r in range(4):
            a("v_and_b32 v24, 0x7fff7fff, v%d" % (QF+6*k+r)); a("v_dot2c_f32_bf16 v%d, s%d, v24" % (216+k, S_ONES))
    a("v_max3_f32 v216, v216, v217, v218"); a("v_max_f32 v216, v216, v219")
    a.xg_reduce(216, 217)
    a("s_waitcnt lgkmcnt(0)"); a("v_mul_f32 v216, v19, v216"); a("v_mov_b32 v217, 0x42c00000"); a("v_cmp_nle_f32 s[58:59], v216, v217")
    MF, ML = 8, 12
    for i in range(4):
        a("v_cndmask_b32 v%d, v25, 0, s[%d:%d]" % (MF+i, 60+2*i, 61+2*i)); a("v_cndmask_b32 v%d, 0, v25, s[%d:%d]" % (ML+i, 60+2*i, 61+2*i))
    a("s_lshl_b32 s55, s50, 3"); a("s_lshl_b32 s46, s%d, 1" % S_WAVE); a("s_add_u32 s55, s55, s46"); a("s_sub_u32 s55, 16, s55"); a("s_max_i32 s55, s55, 0")
    a("s_lshl_b32 s56, s2, 2"); a("s_add_u32 s56, s56, s%d" % S_WAVE); a("s_mul_i32 s56, s56, 5120"); a("s_min_u32 s56, s56, %d" % (WO_S - T_OFF - 5120)); a("s_add_u32 s56, s56, %d" % T_OFF)
    L = a.newlabel("Lfs")
    a("s_cmp_lg_u32 s%d, 0" % S_WAVE); a("s_cbranch_scc1 %s" % L)
    a("v_cmp_ne_u32 vcc, s%d, v39" % S_NONCE); a("s_cbranch_vccz %s" % L)
    a("v_lshrrev_b32 v38, 7, v38")
    a.poll(38, 39, sleep0=0)
    a.label(L)
    a("s_waitcnt vmcnt(6)"); a("s_barrier")
    a.stamp("p2_loaded")
    a("s_cmp_lg_u64 s[58:59], 0")
    if "slow" in ABL: a("s_cmp_eq_u32 s2, s2")
    a("s_cbranch_scc1 L_p2_slow")
    a("s_cmp_lt_u32 s50, 2"); a("s_cbranch_scc1 L_p2_edge")
    M, NM, CZ = 16, 216, 26
    KF = 64
    S2, P, VM = 136, 168, 184
    S1 = S2
    OM, OL, R_, OUT = 192, 200, 32, 208
    marks = "s_mov_b32 s46, %d\nbuffer_load_dword v224, v225, s[%d:%d], s46 offen sc1" % (FP_OFF, R_WS, R_WS+3)
    def prefetch():
        o = [pf_lds(i) for i in range(2, 27)]
        for jj in range(3): o.append("buffer_load_dwordx4 v[%d:%d], v7, s[%d:%d], s77 offen offset:%d" % (XT+4*jj, XT+4*jj+3, R_A, R_A+3, 64*jj))
        for sb, ab in ((71, AW1),):
            for i in range(W1N):
                pre = "s_add_u32 s59, s%d, %d\n" % (sb, 1024*i) if i % 4 == 0 else ""
                o.append(pre + "buffer_load_dwordx4 a[%d:%d], v%d, s[%d:%d], s59 offen offset:%d sc1" % (ab+4*i, ab+4*i+3, V_L16, R_WS, R_WS+3, 1024*(i & 3)))
        return o
    for edge, slow in ((0, 0), (1, 0), (1, 1)):
      if edge: a.label("L_p2_slow" if slow else "L_p2_edge")
      pf = prefetch()
      if "x_nopf" in ABL: pf = ["s_nop 0"]*55
      if "x_nomk" in ABL: pf = ["s_nop 0" if "store" in x else x for x in pf]
      if "x_now1" in ABL: pf = ["s_nop 0" if " a[" in x else x for x in pf]
      def take(n):
          o = pf[:n]; del pf[:n]; return o
      for head in range(2):
        def Q(qt, t): return QF + 12*head + 6*qt + 2*(t & 1)
        def K(t): return KF + 4*t
        def kread(m):
            o = ["ds_read_b128 v[%d:%d], v20 offset:%d" % (KF+8*m+2, KF+8*m+5, 2304*m + 1024*head)]
            if head == 0: o += ["ds_read_b64 v[%d:%d], v21 offset:%d" % (KF+8*m+6*b, KF+8*m+6*b+1, 2304*m + 8*b) for b in range(2)]
            return o
        def vleft(m): return "ds_read_b128 a[%d:%d], v23 offset:%d" % (VLA+4*m, VLA+4*m+3, 2304*m + 128*head)
        def vmain(m): return "ds_read_b128 v[%d:%d], v22 offset:%d" % (VM+4*(m & 1), VM+4*(m & 1)+3, 2304*m + 1024*head)
        def has(qt, t): return (t <= 16) if qt == 0 else (t >= 1)
        def mask(reg, qt, t):
            o = []
            for i in range(4):
                if t == qt: o.append("v_cndmask_b32 v%d, v25, v%d, s[%d:%d]" % (reg+i, reg+i, 60+2*i, 61+2*i))
                if t == 16+qt: o.append("v_cndmask_b32 v%d, v%d, v25, s[%d:%d]" % (reg+i, reg+i, 60+2*i, 61+2*i))
            return o
        def switch(t, moves):
            Ls = a.newlabel("Lsw")
            a("s_cmp_eq_u32 s55, %d" % t); a("s_cbranch_scc0 %s" % Ls)
            for x in moves: a(x)
            a.label(Ls)
        if head:
            L = a.newlabel("Lmk")
            a("s_cmp_lg_u32 s%d, 0" % S_WAVE); a("s_cbranch_scc1 %s_x" % L)
            a("s_mov_b32 s47, 100000"); a("s_waitcnt vmcnt(%d)" % (npf0 - len(pf)))
            a.label(L)
            a("v_cmp_ne_u32 vcc, s%d, v224" % S_NONCE)
            a("s_cbranch_vccz %s_x" % L)
            a("s_sleep 2"); a(marks); a("s_waitcnt vmcnt(0)")
            a("s_sub_u32 s47, s47, 1"); a("s_cbranch_scc0 %s" % L)
            a.label(L + "_x")
            a("s_waitcnt vmcnt(20)"); a("s_barrier")
            publish2(a, 224)
        AH = 3
        for m in range(AH if slow else 2):
            for x in kread(m): a(x)
        if slow:
            a("v_mov_b32 v%d, v25" % M); a("v_mov_b32 v%d, v25" % (M+1))
            if edge:
                for i in range(4): a("v_mov_b32 v%d, v25" % (CZ+i))
            def c1(qt, t): return CZ if edge else MF if t == qt else ML if t == 16+qt else None
            def maxes(t):
                o = []
                for qt in range(2):
                    if not has(qt, t): continue
                    s = S1 + 8*(t % 3) + 4*qt
                    if edge: o += mask(s, qt, t)
                    o.append("v_max3_f32 v%d, v%d, v%d, v%d" % (M+qt, s, s+1, M+qt))
                for qt in range(2):
                    if not has(qt, t): continue
                    s = S1 + 8*(t % 3) + 4*qt
                    o.append("v_max3_f32 v%d, v%d, v%d, v%d" % (M+qt, s+2, s+3, M+qt))
                return o
            for t in range(18):
                if t % 2 == 0:
                    if edge: switch(t, ["v_mov_b32 v%d, 0" % (CZ+i) for i in range(4)])
                    a("s_waitcnt lgkmcnt(%d)" % (len(kread(0))*min(AH-1, 8 - t//2)))
                ms = [mfma(S1+8*(t % 3)+4*qt, K(t), Q(qt, t), c1(qt, t)) for qt in range(2) if has(qt, t)]
                fill = (kread(t//2+AH) if t % 2 == 0 and t//2+AH < 9 else []) + (maxes(t-2) if t >= 2 else []) + (take(1) if t % 3 == 1 and head else [])
                interleave(a, ms, fill)
        if head == 0:
            a("s_waitcnt vmcnt(%d)" % (28 + W1N - len(pf))); a("s_barrier")
            for q in range(5):
                if q == 4: a("s_add_u32 s56, s56, 4096")
                if "x_nomk" not in ABL: a("buffer_store_dwordx4 v[228:231], v%d, s[%d:%d], s56 offen offset:%d sc1" % (V_L16, R_WS, R_WS+3, 1024*(q & 3)))
            npf0 = len(pf); a(marks)
        a("s_mov_b32 exec_lo, 0x00030003"); a("s_mov_b32 exec_hi, 0x00030003")
        for m in range(9): a(vleft(m))
        a("s_mov_b64 exec, -1")
        a(vmain(0))
        if slow:
            for x in maxes(16) + maxes(17): a(x)
            for sw in ("v_permlane32_swap_b32", "v_permlane16_swap_b32"):
                for qt in range(2): a("v_mov_b32 v%d, v%d" % (30+qt, M+qt))
                for qt in range(2): a("%s v%d, v%d" % (sw, M+qt, 30+qt))
                for qt in range(2): a("v_max_f32 v%d, v%d, v%d" % (M+qt, M+qt, 30+qt))
            negs = ["v_sub_f32 v%d, 0, v%d" % (NM+4*qt+i, M+qt) for qt in range(2) for i in range(4)]
        else: negs = ["v_mov_b32 v%d, 0" % (NM+i) for i in range(4)]
        if edge:
            for i in range(len(negs)): a("v_mov_b32 v%d, v25" % (NM+i))
        def c2(qt, t): return NM+4*qt if slow else NM if edge else MF if t == qt else ML if t == 16+qt else None
        def qk(m):
            return [mfma(S2+16*(m & 1)+8*qt+4*b, K(2*m+b), Q(qt, b), c2(qt, 2*m+b)) for qt in range(2) for b in range(2) if has(qt, 2*m+b)]
        def pv(m):
            o = []
            for qt in range(2):
                p = P+8*(m & 1)+4*qt
                o.append(mfma(OM+4*qt, VM+4*(m & 1), p, None if m == 0 else OM+4*qt))
                o.append(mfma(OL+4*qt, VLA+4*m, p, None if m == 0 else OL+4*qt, ta="a"))
            return o
        if slow: switch(0, negs)
        else: a("s_waitcnt lgkmcnt(%d)" % min(15, 10 + len(kread(0))))
        for x in qk(0): a(x)
        for m in range(9):
            if edge and m < 8: switch(2*m+2, negs)
            mf = (qk(m+1) if m < 8 else []) + (pv(m-1) if m else [])
            va = []
            ld = take((3 if (m % 3 or head == 0) else 2) if slow else -(-len(pf)//(18 - 9*head - m)))
            for qt in range(2):
                p = P+8*(m & 1)+4*qt
                for b in range(2):
                    s = S2+16*(m & 1)+8*qt+4*b
                    if has(qt, 2*m+b):
                        if edge: va += mask(s, qt, 2*m+b)
                        va += ["v_exp_f32 v%d, v%d" % (s+i, s+i) for i in range(4)]
                    if ld and (b == 0 or qt == 0 or len(ld) > 0 and qt == 1 and b == 1): va.append(ld.pop(0))
                for b in range(2):
                    s = S2+16*(m & 1)+8*qt+4*b
                    if has(qt, 2*m+b):
                        va += ["v_cvt_pk_bf16_f32 v%d, v%d, v%d" % (p+2*b+h, s+2*h, s+2*h+1) for h in range(2)]
                    else:
                        va += ["v_mov_b32 v%d, 0" % (p+2*b+h) for h in range(2)]
            if slow:
                if m: a("s_waitcnt lgkmcnt(1)")
            else:
                a("s_waitcnt lgkmcnt(%d)" % (1 if m else 10))
                if m + 2 < 9: va = kread(m+2) + va
            interleave(a, mf, va)
            if m < 8: a(vmain(m+1))
        a("s_waitcnt lgkmcnt(0)")
        for x in pv(8): a(x)
        if head == 1:
            assert not pf
            a("s_mul_i32 s54, s53, 18432"); a("s_add_u32 s54, s54, %d" % O_OFF)
            a("s_lshl_b32 s46, s51, 10"); a("s_add_u32 s58, s46, s54"); a("s_add_u32 s59, s58, 18432")
            a("s_lshr_b32 s46, s51, 3"); a("s_add_u32 s46, s46, 16"); a("s_lshl_b32 s46, s46, 10"); a("s_add_u32 s54, s54, s46")
            a("s_and_b32 s46, s51, 7"); a("s_lshr_b32 s46, s46, 1"); a("s_lshl_b32 s46, s46, 8"); a("s_add_u32 s54, s54, s46")
            a("s_and_b32 s46, s51, 1"); a("s_lshl_b32 s46, s46, 3"); a("s_add_u32 s54, s54, s46"); a("s_add_u32 s47, s54, 18432")
        for qt in range(2): a("v_rcp_f32 v%d, v%d" % (30+qt, OL+4*qt+3))
        for qt in range(2):
            for i in range(4): a("v_mul_f32 v%d, v%d, v%d" % (OM+4*qt+i, OM+4*qt+i, 30+qt))
            for i in range(2): a("v_mul_f32 v%d, v%d, v%d" % (OL+4*qt+i, OL+4*qt+i, 30+qt))
        for qt in range(2):
            for h in range(2): a("v_cvt_pk_bf16_f32 v%d, v%d, v%d" % (OUT+4*qt+2*head+h, OM+4*qt+2*h, OM+4*qt+2*h+1))
            a("v_cvt_pk_bf16_f32 v%d, v%d, v%d" % (R_+2*qt+head, OL+4*qt, OL+4*qt+1))
      if not slow: a("s_branch L_p2_out")
    a.label("L_p2_out")
    a("buffer_store_dwordx4 v[%d:%d], v%d, s[%d:%d], s58 offen sc1" % (OUT, OUT+3, V_L16, R_WS, R_WS+3))
    a("buffer_store_dwordx4 v[%d:%d], v%d, s[%d:%d], s59 offen sc1" % (OUT+4, OUT+7, V_L16, R_WS, R_WS+3))
    a("s_mov_b64 exec, 0xffff")
    a("buffer_store_dwordx2 v[%d:%d], v%d, s[%d:%d], s54 offen sc1" % (R_, R_+1, V_L16, R_WS, R_WS+3))
    a("buffer_store_dwordx2 v[%d:%d], v%d, s[%d:%d], s47 offen sc1" % (R_+2, R_+3, V_L16, R_WS, R_WS+3))
    a("s_mov_b64 exec, -1")
    a.stamp("p2_done")
    if a.stop == 2:
        a("s_waitcnt vmcnt(0)")

_c0 = 2.0*math.log2(math.e)*math.sqrt(2/math.pi)
GS = (_c0*0.044715)**(1/3)
GK = _c0/GS

def gelu_consts(a): a("s_mov_b32 s48, %d" % f32(GS)); a("s_mov_b32 s49, %d" % f32(GK))

def gelu_poly(regs, t):
    o = ["v_pk_fma_f32 v[%d:%d], v[%d:%d], v[%d:%d], s[48:49] op_sel:[0,0,1] op_sel_hi:[1,1,1]" % (t+2*k, t+2*k+1, r, r+1, r, r+1) for k, r in enumerate(regs)]
    return o + ["v_pk_mul_f32 v[%d:%d], v[%d:%d], v[%d:%d]" % (t+2*k, t+2*k+1, t+2*k, t+2*k+1, r, r+1) for k, r in enumerate(regs)]

def gelu_pk(a, regs, t):
    for x in gelu_poly(regs, t): a(x)
    for k in range(2*len(regs)): a("v_exp_f32 v%d, -v%d" % (t+k, t+k))
    for k, r in enumerate(regs): a("v_pk_fma_f32 v[%d:%d], v[%d:%d], s[48:49], s[48:49] op_sel_hi:[1,0,0]" % (t+2*k, t+2*k+1, t+2*k, t+2*k+1))
    for k in range(2*len(regs)): a("v_rcp_f32 v%d, v%d" % (t+k, t+k))
    for k, r in enumerate(regs): a("v_pk_mul_f32 v[%d:%d], v[%d:%d], v[%d:%d]" % (r, r+1, r, r+1, t+2*k, t+2*k+1))

def stats_loads(a, off, stile, vt):
    a("v_lshlrev_b32 v%d, 3, v%d" % (vt+4, V_LANE))
    a("v_add_u32 v%d, 512, v%d" % (vt+5, vt+4)); a("v_cmp_gt_u32 vcc, 32, v%d" % V_LANE); a("v_mov_b32 v%d, 0x7fffffff" % vt)
    a("v_cndmask_b32 v%d, v%d, v%d, vcc" % (vt+5, vt, vt+5))
    a("s_mul_i32 s46, s%d, 768" % stile); a("s_add_u32 s46, s46, %d" % off)
    return ["buffer_load_dwordx2 v[%d:%d], v%d, s[%d:%d], s46 offen sc1" % (vt+2*k, vt+2*k+1, vt+4+k, R_WS, R_WS+3) for k in range(2)]

def stats_finish(a, vt, vmean, vrstd):
    a("v_add_f32 v%d, v%d, v%d" % (vt, vt, vt+2)); a("v_add_f32 v%d, v%d, v%d" % (vt+1, vt+1, vt+3))
    for sw in ("v_permlane32_swap_b32", "v_permlane16_swap_b32"):
        for k in range(2): a("v_mov_b32 v%d, v%d" % (vt+2+k, vt+k))
        for k in range(2): a("%s v%d, v%d" % (sw, vt+k, vt+2+k))
        for k in range(2): a("v_add_f32 v%d, v%d, v%d" % (vt+k, vt+k, vt+2+k))
    a("s_mov_b32 s47, %d" % f32(1.0/576))
    a("v_mul_f32 v%d, s47, v%d" % (vmean, vt)); a("v_mul_f32 v%d, v%d, v%d" % (vt, vmean, vmean))
    a("v_fma_f32 v%d, v%d, s47, -v%d" % (vt+1, vt+1, vt)); a("v_max_f32 v%d, 0, v%d" % (vt+1, vt+1))
    a("v_add_f32 v%d, %d, v%d" % (vt, f32(1e-5), vt+1)); a("v_rsq_f32 v%d, v%d" % (vrstd, vt))

def norm_ops(x, vs, vb, t):
    o = []
    for r in range(4):
        o.append("v_lshlrev_b32 v%d, 16, v%d" % (t+2*r, x+r)); o.append("v_and_b32 v%d, 0xffff0000, v%d" % (t+2*r+1, x+r))
    for r in range(8): o.append("v_fma_f32 v%d, v%d, v%d, v%d" % (t+r, t+r, vs, vb))
    for r in range(4): o.append("v_cvt_pk_bf16_f32 v%d, v%d, v%d" % (x+r, t+2*r, t+2*r+1))
    return o

def out_stats(a, pk, n, vt, off):
    a("v_mov_b32 v%d, 0" % vt); a("v_mov_b32 v%d, 0" % (vt+1))
    for r in range(n):
        a("v_dot2c_f32_bf16 v%d, s%d, v%d" % (vt, S_ONES, pk+r)); a("v_dot2c_f32_bf16 v%d, v%d, v%d" % (vt+1, pk+r, pk+r))
    for sw in ("v_permlane32_swap_b32", "v_permlane16_swap_b32"):
        for k in range(2): a("v_mov_b32 v%d, v%d" % (vt+2+k, vt+k))
        for k in range(2): a("%s v%d, v%d" % (sw, vt+k, vt+2+k))
        for k in range(2): a("v_add_f32 v%d, v%d, v%d" % (vt+k, vt+k, vt+2+k))
    a("s_mul_i32 s46, s53, 6"); a("s_add_u32 s46, s46, s51"); a("s_lshl_b32 s46, s46, 7"); a("s_add_u32 s46, s46, %d" % off)
    a("v_lshlrev_b32 v%d, 3, v%d" % (vt+2, V_LANE))
    a("s_mov_b64 exec, 0xffff")
    a("buffer_store_dwordx2 v[%d:%d], v%d, s[%d:%d], s46 offen sc1" % (vt, vt+1, vt+2, R_WS, R_WS+3))
    a("s_mov_b64 exec, -1")

AF, ACC, WB, HK, VMEAN, VRSTD = 64, 136, 160, 40, 52, 53
OS = WB

def tag_ops(regs, t):
    o = []; regs = list(regs)
    o.append("v_max3_u32 v%d, v%d, v%d, v%d" % (t, regs[0], regs[1], regs[2])); regs = regs[3:]
    while len(regs) >= 2: o.append("v_max3_u32 v%d, v%d, v%d, v%d" % (t, t, regs[0], regs[1])); regs = regs[2:]
    if regs: o.append("v_max_u32 v%d, v%d, v%d" % (t, t, regs[0]))
    return o + ["v_cmp_eq_u32 vcc, -1, v%d" % t]

def tag_branch(a, loads, regs, t, again=(), drain=False):
    L = a.newlabel("Ltg")
    a("s_cbranch_vccnz %s" % L)
    a.label(L + "_b")
    st = [L + ":"] + "\n".join(loads).split("\n") + ["s_waitcnt vmcnt(0)"] + tag_ops(regs, t)
    st += ["s_cmp_eq_u32 s79, 0", "s_cbranch_scc1 %s_b" % L, "s_sub_u32 s79, s79, 1", "s_cbranch_vccnz %s" % L]
    st += list(again) + (["s_waitcnt vmcnt(0)"] if drain and again else []) + ["s_branch %s_b" % L]
    a.stubs += st

UP = 8
NE = 12
def wpos(layout, b):
    if layout is None: return W_LDS//1024 + b
    w, i = divmod(b, 27)
    return layout[0] + NE*w + i if i < NE else layout[1] + (27-NE)*w + i - NE

def gemm96(a, loads, stage, delay, pre=(), each=None, stamp=None, extra=(), layout=None, early=(), before=None, after=None):
    a("s_waitcnt vmcnt(20)")
    a("s_barrier")
    nv = sum("buffer_load" in x for x in stage)
    n1 = len(stage) if nv else len(stage)//3
    for x in stage[:n1]: a(x)
    if delay: a("s_sleep %d" % delay)
    a("s_mov_b32 s79, 50000")
    a.stamp(stamp + "_ready")
    for x in pre: a(x)
    interleave(a, loads[:UP], stage[n1:])
    a("s_waitcnt vmcnt(%d) lgkmcnt(0)" % (UP + len(pre)))
    if before: before(a)
    a("s_barrier")
    def wr(j):
        o = []
        for t in range(6):
            q, r = divmod(wpos(layout, 18*t + j), 64)
            o.append("ds_read_b128 v[%d:%d], v%d offset:%d" % (WB+24*(j % 3)+4*t, WB+24*(j % 3)+4*t+3, (V_L16, 5, 6)[q], 1024*r))
        return o
    for x in early: a(x)
    if each: each(lambda: [a(x) for x in wr(0) + wr(1)])
    else:
        for x in wr(0) + wr(1): a(x)
    a("s_waitcnt vmcnt(%d)" % (UP-1))
    fr = lambda j: range(AF+4*j, AF+4*j+4)
    for x in tag_ops(fr(0), 30): a(x)
    tag_branch(a, [loads[0]], fr(0), 30, loads[1:UP])
    if after: after(a)
    for j in range(18):
        ex = lambda q: min(len(extra), max(0, (q-9)*len(extra)//8))
        issued = min(18, UP+j) + ex(j)
        a("s_waitcnt vmcnt(%d) lgkmcnt(%d)" % (issued - 1 - min(j+1, 17), 6 if j < 17 else 0))
        if j in (0, 9): a.stamp(stamp + "_k%d" % j)
        ms = [mfma(ACC+4*t, WB+24*(j % 3)+4*t, AF+4*j, None if j == 0 else ACC+4*t) for t in range(6)]
        fill = ([loads[UP+j]] if UP+j < 18 else []) + (tag_ops(fr(j+1), 30) if j < 17 else []) + (wr(j+2) if j < 16 else []) + list(extra[ex(j):ex(j+1)])
        interleave(a, ms, fill)
        if j < 17: tag_branch(a, [loads[j+1]], fr(j+1), 30, loads[j+2:UP+j+1], drain=ex(j+1) > 0)

FP2Q = "s_mov_b32 s46, %d\nbuffer_load_dwordx4 v[16:19], v%d, s[%d:%d], s46 offen sc1" % (FP2_OFF, V_L16, R_WS, R_WS+3)

def marks2(a):
    L = a.newlabel("Lm2")
    a("s_cmp_lg_u32 s%d, 0" % S_WAVE); a("s_cbranch_scc1 %s_x" % L)
    a("s_mov_b32 s47, 100000")
    a.label(L)
    for r in range(4): a("v_xor_b32 v%d, s%d, v%d" % (16+r, S_NONCE, 16+r))
    a("v_or3_b32 v16, v16, v17, v18"); a("v_or_b32 v16, v16, v19"); a("v_cmp_ne_u32 vcc, 0, v16"); a("s_cbranch_vccz %s_x" % L)
    a(FP2Q); a("s_waitcnt vmcnt(0)")
    a("s_sub_u32 s47, s47, 1"); a("s_cbranch_scc0 %s" % L)
    a.label(L + "_x")

def publish2(a, vt):
    L = a.newlabel("Lmp"); a("s_cmp_lg_u32 s%d, 0" % S_WAVE); a("s_cbranch_scc1 %s" % L); a.set_mark(vt, FP2_OFF); a.label(L)

def wflags(a, first, va, vd):
    a("s_mul_i32 s46, s65, 18"); a("s_add_u32 s46, s46, %d" % (FS + first))
    a("v_min_u32 v%d, 17, v%d" % (va, V_LANE)); a("v_add_u32 v%d, s46, v%d" % (va, va)); a("v_lshlrev_b32 v%d, 7, v%d" % (va, va))
    a("buffer_load_dword v%d, v%d, s[%d:%d], 0 offen offset:%d sc1" % (vd, va, R_WS, R_WS+3, FLAG0))

def phase345(a):
    a("s_mov_b32 s50, s74"); a("s_mov_b32 s51, s75"); a("s_mov_b32 s53, s76")
    a("s_cmp_ge_u32 s51, 6"); a("s_cbranch_scc1 L_p3_helper")
    a("v_add_u32 v5, 65536, v%d" % V_L16); a("v_add_u32 v6, 131072, v%d" % V_L16)
    a("s_mul_i32 s46, s%d, %d" % (S_WAVE, 1024*NE)); a("v_add_u32 v7, s46, v%d" % V_L16)
    a("s_mul_i32 s46, s%d, %d" % (S_WAVE, 1024*(27-NE))); a("v_add_u32 v8, s46, v%d" % V_L16)
    a("v_add_u32 v62, %d, v7" % (112*1024)); a("v_add_u32 v63, %d, v8" % (52*1024))
    LAY4, LAY5 = (0, 52), (112, 0)
    a("s_mul_i32 s54, s53, 18432")
    a("s_mul_i32 s55, s51, 3072"); a("s_add_u32 s55, s55, s54")
    a("v_lshlrev_b32 v9, 7, v%d" % V_LANE)
    a("s_lshl_b32 s46, s51, 2"); a("s_add_u32 s46, s46, s%d" % S_WAVE); a("s_mul_i32 s46, s46, 3072"); a("s_mul_i32 s78, s50, 73728"); a("s_add_u32 s78, s78, s46")
    def w2(i0, i1, sb=72, ab=AW2):
        return [("s_add_u32 s59, s%d, %d\n" % (sb, 1024*(i & ~3)) if (i % 4 == 0 or i == i0) else "") +
                "buffer_load_dwordx4 a[%d:%d], v%d, s[%d:%d], s59 offen offset:%d sc1" % (ab+4*i, ab+4*i+3, V_L16, R_WS, R_WS+3, 1024*(i & 3)) for i in range(i0, i1)]
    def park(ab, lay, late):
        if late: return ["ds_write_b128 v%d, a[%d:%d] offset:%d" % (63 if lay[1] else 8, ab+4*i, ab+4*i+3, 1024*(i - NE)) for i in range(NE, 27)]
        return ["ds_write_b128 v%d, a[%d:%d] offset:%d" % (62 if lay[0] else 7, ab+4*i, ab+4*i+3, 1024*i) for i in range(NE)]
    def aloads(off):
        for q in range(5): a("s_add_u32 s%d, s54, %d" % (60+q, off + 4096*q))
        return ["buffer_load_dwordx4 v[%d:%d], v%d, s[%d:%d], s%d offen offset:%d sc1" % (AF+4*j, AF+4*j+3, V_L16, R_WS, R_WS+3, 60+(j >> 2), 1024*(j & 3)) for j in range(18)]
    def ostores(src, off):
        a("s_add_u32 s46, s55, %d" % off)
        for jj in range(3): a("buffer_store_dwordx4 v[%d:%d], v%d, s[%d:%d], s46 offen offset:%d sc1" % (src+4*jj, src+4*jj+3, V_L16, R_WS, R_WS+3, 1024*jj))
    a("s_lshl_b32 s46, s53, 4"); a("v_add_u32 v20, s46, v%d" % V_R); a("s_mov_b32 s47, 18432")
    for k, sh in enumerate((1, -1, 2, -2)):
        a("v_subrev_u32 v21, %d, v20" % sh); a("v_ashrrev_i32 v22, 4, v21"); a("v_mul_lo_u32 v22, v22, s47")
        a("v_and_b32 v21, 15, v21"); a("v_lshl_add_u32 v21, v%d, 4, v21" % V_G); a("v_lshl_add_u32 v%d, v21, 4, v22" % (56+k))
    a("v_cmp_gt_u32 vcc, 32, v%d" % V_LANE); a("v_cndmask_b32 v60, v57, v56, vcc"); a("v_cndmask_b32 v61, v59, v58, vcc")
    N2 = int(os.environ.get("N2", 0))
    n3 = max(N2, NE)
    gemm96(a, aloads(O_OFF), [pf_lds(0), pf_lds(1)] + w2(W1N, 27, 71, AW1) + w2(0, N2), SLEEP0["p3"] if N2 < 8 else 0, stamp="p3", extra=w2(N2, n3), early=park(AW1, LAY4, False))
    a.stamp("p3_gemm")
    a(FP2Q)
    a("s_mov_b32 s46, 0x00003f80"); a("s_mov_b32 s47, 0x3f800000")
    for t in range(6):
        for i in range(4): a("v_dot2c_f32_bf16 v%d, s%d, v%d" % (ACC+4*t+i, 46+(i & 1), XT+4*(t >> 1)+2*(t & 1)+(i >> 1)))
    for k in range(12): a("v_cvt_pk_bf16_f32 v%d, v%d, v%d" % (HK+k, ACC+2*k, ACC+2*k+1))
    ostores(HK, H_OFF)
    out_stats(a, HK, 12, 10, SH_OFF)
    a.stamp("p3_epi")
    if a.stop == 3: a("s_waitcnt vmcnt(0)"); a("s_branch L_fin")
    for r in range(4): a("v_mov_b32 v%d, s%d" % (20+r, S_ONES))
    cs = [mfma(WB+4*(i//9), AW1+4*i, 20, None if i % 9 == 0 else WB+4*(i//9), ta="a") for i in range(27)]
    a("s_mul_i32 s46, s%d, 192" % S_WAVE); a("s_add_u32 s46, s46, %d" % (48*1024)); a("v_lshl_add_u32 v24, v%d, 4, s46" % V_G)
    g = G(); interleave(g, [cs[(i % 3)*9 + i//3] for i in range(27)], park(AW1, LAY4, True))
    st4 = g.lines
    st4 += ["s_nop 7"] + ["ds_write_b128 v24, v[%d:%d] offset:%d" % (WB+4*k, WB+4*k+3, 64*k) for k in range(3)]
    CS = 232
    sl = stats_loads(a, SH_OFF, 53, 10); a("s_mov_b32 s65, s46"); sl = [x.replace("s46", "s65") for x in sl]
    def fin4(wreads):
        a("v_lshlrev_b32 v24, 4, v%d" % V_G)
        for k in range(12): a("ds_read_b128 v[%d:%d], v24 offset:%d" % ((CS if k % 2 == 0 else ACC)+4*(k//2), (CS if k % 2 == 0 else ACC)+4*(k//2)+3, 48*1024 + 64*k))
        wreads()
        a("s_waitcnt vmcnt(%d)" % UP)
        for x in tag_ops(range(10, 14), 30): a(x)
        tag_branch(a, sl, range(10, 14), 30, al4[:UP])
        stats_finish(a, 10, VMEAN, VRSTD)
        a("v_mul_f32 v12, v%d, v%d" % (VRSTD, VRSTD)); a("v_mul_f32 v12, v12, v11"); a("v_add_f32 v12, %d, v12" % f32(1e-5))
        a("v_rsq_f32 v12, v12"); a("v_mul_f32 v16, %d, v%d" % (f32(GS), VRSTD)); a("v_mul_f32 v16, v12, v16"); a("v_mul_f32 v17, v16, -v%d" % VMEAN)
        a("s_waitcnt lgkmcnt(12)")
        for k in range(12): a("v_pk_add_f32 v[%d:%d], v[%d:%d], v[%d:%d]" % (CS+2*k, CS+2*k+1, CS+2*k, CS+2*k+1, ACC+2*k, ACC+2*k+1))
        for k in range(12): a("v_pk_mul_f32 v[%d:%d], v[%d:%d], v[16:17] op_sel:[0,1] op_sel_hi:[1,1]" % (CS+2*k, CS+2*k+1, CS+2*k, CS+2*k+1))
    if "d_mid" in ABL: a("s_sleep 64")
    al4 = aloads(H_OFF)
    gemm96(a, al4, st4, SLEEP0["p4"], pre=sl, each=fin4, stamp="p4", extra=w2(n3, 27), layout=LAY4, before=marks2)
    a.stamp("p4_gemm")
    gelu_consts(a)
    for k in range(12): a("v_pk_fma_f32 v[%d:%d], v[%d:%d], v[16:17], v[%d:%d] op_sel_hi:[1,0,1]" % (ACC+2*k, ACC+2*k+1, ACC+2*k, ACC+2*k+1, CS+2*k, CS+2*k+1))
    g = G(); gelu_pk(g, [ACC+2*k for k in range(12)], AF)
    interleave(a, g.lines, park(AW2, LAY5, False))
    for k in range(12): a("v_cvt_pk_bf16_f32 v%d, v%d, v%d" % (OS+k, ACC+2*k, ACC+2*k+1))
    ostores(OS, T_OFF)
    a.stamp("p4_epi")
    if a.stop == 4: a("s_waitcnt vmcnt(0)"); a("s_branch L_fin")
    a.srd(R_A, S_WS, ACT, T_OFF)
    for q in range(5): a("s_mov_b32 s%d, %d" % (70+q, 4096*q))
    def vsel(j): return 56 if j < 4 else 60 if j == 4 else 57 if j < 9 else 58 if j < 13 else 61 if j == 13 else 59
    tl = ["buffer_load_dwordx4 v[%d:%d], v%d, s[%d:%d], s%d offen offset:%d sc1" % (AF+4*j, AF+4*j+3, vsel(j), R_A, R_A+3, 70+(j >> 2), 1024*(j & 3)) for j in range(18)]
    roles6(a)
    wflags(a, 54, 54, 55)
    a("s_waitcnt vmcnt(4)")
    gemm96(a, tl, park(AW2, LAY5, True), SLEEP0["p5"], stamp="p5", layout=LAY5)
    a.stamp("p5_gemm")
    a("v_mul_f32 v17, v%d, -v%d" % (VRSTD, VMEAN))
    for k in range(12):
        a("v_lshlrev_b32 v20, 16, v%d" % (HK+k)); a("v_and_b32 v21, 0xffff0000, v%d" % (HK+k))
        a("v_fma_f32 v20, v20, v%d, v17" % VRSTD); a("v_fma_f32 v21, v21, v%d, v17" % VRSTD)
        a("v_pk_add_f32 v[%d:%d], v[%d:%d], v[20:21]" % (ACC+2*k, ACC+2*k+1, ACC+2*k, ACC+2*k+1))
    for k in range(12): a("v_cvt_pk_bf16_f32 v%d, v%d, v%d" % (OS+k, ACC+2*k, ACC+2*k+1))
    ostores(OS, X1_OFF)
    out_stats(a, OS, 12, 10, SX_OFF)
    a.stamp("p5_epi")
    a("s_branch L_p5_pre")
    a.label("L_p3_helper")
    if "d_h3" in ABL: a("s_sleep 64")
    a("s_cmp_ge_u32 s48, 144"); a("s_cbranch_scc1 L_p3_touch")
    a("s_barrier")
    a(pf_lds(0)); a(pf_lds(1))
    swizzle_setup(a)
    a("s_add_u32 s48, s48, 54")
    for p in range(3):
        sw_big(a, 48, 60+3*p)
        a("s_lshl_b32 s53, s52, 10"); a("s_add_u32 s%d, s%d, s53" % (60+3*p, 60+3*p)); a("s_add_u32 s%d, s48, %d" % (62+3*p, FS))
        a("s_add_u32 s48, s48, 1")
    a("s_waitcnt vmcnt(0)"); a("s_barrier")
    for p in range(3): sw_process(a, p, W_LDS + 36864*p)
    a("s_waitcnt vmcnt(0)"); a("s_barrier")
    sw_flags(a, range(3))
    a.stamp("h_w3")
    a.label("L_p3_touch")
    roles6(a)
    NL = (SW << LCH)//128//32
    a("s_lshr_b32 s46, s65, %d" % LCH); a("s_mul_i32 s46, s46, %d" % (SW << LCH))
    a("s_and_b32 s47, s74, 3"); a("s_lshl_b32 s47, s47, 1"); a("s_add_u32 s47, s47, s75"); a("s_sub_u32 s47, s47, 6")
    if "xcd4" not in ABL:
        NL = BW//128//256
        a("s_mov_b32 s46, 0"); a("s_lshl_b32 s47, s74, 1"); a("s_add_u32 s47, s47, s75"); a("s_sub_u32 s47, s47, 6")
    a("s_lshl_b32 s47, s47, 2"); a("s_add_u32 s47, s47, s%d" % S_WAVE); a("s_mul_i32 s47, s47, %d" % (128*NL)); a("s_add_u32 s46, s46, s47")
    a.srd(R_A, S_W4, BW)
    a("v_lshlrev_b32 v10, 7, v%d" % V_LANE)
    for q in range(-(-NL//64) if "late4" not in ABL else 0):
        if NL - 64*q < 64: a("s_bfm_b64 exec, %d, 0" % (NL - 64*q))
        a("buffer_load_dword v11, v10, s[%d:%d], s46 offen" % (R_A, R_A+3)); a("s_add_u32 s46, s46, 8192")
    a("s_mov_b64 exec, -1")
    a.stamp("h_w4")
    wflags(a, 54, 54, 55)
    a(FP2Q)
    a("s_waitcnt vmcnt(0)")
    marks2(a)
    a.label("L_p5_pre")
    a.label("L_p5_done")
    a.stamp("p5_done")

WFL = os.environ.get("WFL", " sc1")
OFL = os.environ.get("OFL", "")
LCH = int(os.environ.get('LCH', 1))
RING = 184

def roles6(a):
    L = LCH
    a("s_lshr_b32 s46, s%d, %d" % (S_XCD, 3-L)); a("s_lshl_b32 s64, s46, %d" % (5-L)); a("s_lshr_b32 s67, s%d, %d" % (S_SLOT, L)); a("s_add_u32 s64, s64, s67")
    a("s_and_b32 s67, s67, 7")
    a("s_mov_b32 s67, 0")
    a("s_and_b32 s46, s%d, %d" % (S_XCD, (8 >> L) - 1)); a("s_lshl_b32 s65, s46, %d" % L); a("s_and_b32 s46, s%d, %d" % (S_SLOT, (1 << L) - 1)); a("s_add_u32 s65, s65, s46")
    a("s_lshl_b32 s46, s65, 2"); a("s_add_u32 s46, s46, s%d" % S_WAVE); a("s_mul_i32 s66, s46, %d" % (9*18432)); a("s_add_u32 s66, s66, %d" % W3_S)

def wload(j, s=58, ring=("a", RING)):
    o = "s_add_u32 s%d, s%d, 4096\n" % (s, s) if (j and j % 4 == 0) else ""
    return o + ("buffer_load_dwordx4 %s[%d:%d], v%d, s[%d:%d], s%d offen offset:%d" + WFL) % (ring[0], ring[1]+4*j, ring[1]+4*j+3, V_L16, R_WS, R_WS+3, s, 1024*(j & 3))

def ring_prefill(a, s):
    a("s_mul_i32 s%d, s67, 18432" % s); a("s_add_u32 s%d, s%d, s66" % (s, s))
    return [wload(j, s) for j in range(18)]

def norm_pk(x, vs, t):
    o = []
    for r in range(4):
        o.append("v_lshlrev_b32 v%d, 16, v%d" % (t+2*r, x+r)); o.append("v_and_b32 v%d, 0xffff0000, v%d" % (t+2*r+1, x+r))
    for r in range(4): o.append("v_pk_fma_f32 v[%d:%d], v[%d:%d], v[%d:%d], v[%d:%d] op_sel:[0,0,1] op_sel_hi:[1,0,1]" % (t+2*r, t+2*r+1, t+2*r, t+2*r+1, vs, vs+1, vs, vs+1))
    for r in range(4): o.append("v_cvt_pk_bf16_f32 v%d, v%d, v%d" % (x+r, t+2*r, t+2*r+1))
    return o

def phase6(a):
    AC, PK, RB, GT, XR = 40, 72, 80, 136, 64
    HB = 73728
    def xf(T, j):
        f = 4*j + T
        return ("a", 4*f) if f < 46 else ("v", 152 + 4*(f-46))
    a("s_mov_b32 s50, s64"); a("s_mov_b32 s51, s65"); a("s_mov_b32 s54, s66"); a("s_mov_b32 s52, s67")
    a("s_lshl_b32 s53, s50, 2"); a("s_add_u32 s53, s53, s%d" % S_WAVE)
    a("s_mul_i32 s56, s50, 72"); a("s_add_u32 s56, s56, s51"); a("s_lshl_b32 s56, s56, 2"); a("s_add_u32 s56, s56, s%d" % S_WAVE)
    a("s_lshl_b32 s56, s56, 11"); a("s_add_u32 s56, s56, %d" % PART)
    a("s_mul_i32 s46, s53, 18432")
    for q in range(5): a("s_add_u32 s%d, s46, %d" % (70+q, X1_OFF + 4096*q))
    a("s_mul_i32 s46, s%d, 18432" % S_WAVE); a("v_add_u32 v5, s46, v%d" % V_L16)
    sl = stats_loads(a, SX_OFF, 53, 10)
    a("s_mov_b32 s60, s46")
    sl = [x.replace("s46", "s60") for x in sl]
    a("v_mov_b32 v28, 0")
    a("global_load_dword v29, v28, s[%d:%d] sc1" % (S_DBG, S_DBG+1))
    L = a.newlabel("Lh")
    a("s_cmp_lg_u32 s%d, 0" % S_WAVE); a("s_cbranch_scc1 %s" % L)
    a("v_cmp_ne_u32 vcc, s%d, v55" % S_NONCE); a("s_cbranch_vccz %s" % L)
    a("v_lshrrev_b32 v54, 7, v54")
    a.poll(54, 55, sleep0=0)
    a.label(L)
    a("s_barrier")
    pre = ring_prefill(a, 59)
    NP = SLEEP0["p6"]
    for x in pre[:NP]: a(x)
    a.stamp("p6_ready")
    a("s_mov_b32 s79, 50000")
    for x in sl: a(x)
    def xload(j): return "buffer_load_dwordx4 v[%d:%d], v%d, s[%d:%d], s%d offen offset:%d sc1" % (XR+4*j, XR+4*j+3, V_L16, R_WS, R_WS+3, 70+(j >> 2), 1024*(j & 3))
    for j in range(UP): a(xload(j))
    a("v_add_u32 v32, 36864, v%d" % V_L16); a("v_add_u32 v33, %d, v%d" % (HB, V_L16)); a("v_add_u32 v34, %d, v%d" % (HB+36864, V_L16))
    a("s_lshr_b32 s46, s%d, 1" % S_WAVE); a("s_lshl_b32 s46, s46, 12"); a("s_and_b32 s47, s%d, 1" % S_WAVE); a("s_lshl_b32 s47, s47, 3")
    a("s_add_u32 s46, s46, s47"); a("v_add_u32 v35, s46, v33")
    gelu_consts(a)
    R3, ST, SEL, RS = 12, 32, 6, RB
    def natsel(d, sr, bit, t):
        o = ["s_bfe_u32 s66, s%d, %d" % (sr, 0x10000 + bit), "s_lshl_b32 s66, s66, 1", "v_lshrrev_b32 v%d, 3, v%d" % (t, V_R), "v_add_u32 v%d, s66, v%d" % (t, t),
             "v_cmp_eq_u32 s[66:67], v%d, v%d" % (t, V_G), "v_and_b32 v%d, 1, v%d" % (t, V_R), "v_lshlrev_b32 v%d, 4, v%d" % (t, t),
             "v_mov_b32 v%d, 0x3f80" % (t+1), "v_lshlrev_b32 v%d, v%d, v%d" % (t+1, t, t+1), "v_cndmask_b32 v%d, 0, v%d, s[66:67]" % (t+1, t+1),
             "v_bfe_u32 v%d, v%d, 1, 2" % (t, V_R)]
        for k in range(4): o += ["v_cmp_eq_u32 s[66:67], %d, v%d" % (k, t), "v_cndmask_b32 v%d, 0, v%d, s[66:67]" % (d+k, t+1)]
        return o
    a("v_lshrrev_b32 v26, 2, v%d" % V_R); a("v_cmp_eq_u32 s[64:65], v26, v%d" % V_G)
    a("v_and_b32 v26, 1, v%d" % V_R); a("v_lshlrev_b32 v26, 4, v26"); a("v_mov_b32 v27, 0x3f80"); a("v_lshlrev_b32 v27, v26, v27")
    a("v_cndmask_b32 v27, 0, v27, s[64:65]"); a("v_and_b32 v26, 2, v%d" % V_R); a("v_cmp_eq_u32 vcc, 0, v26")
    a("v_cndmask_b32 v%d, 0, v27, vcc" % (SEL+2)); a("v_cndmask_b32 v%d, v27, 0, vcc" % (SEL+3))
    for r in (0, 1): a("v_mov_b32 v%d, 0" % (SEL+r))
    for x in natsel(36, S_WAVE, 0, 26): a(x)
    def bload(reg, s, off=0, t="a"): return "buffer_load_dwordx4 %s[%d:%d], v%d, s[%d:%d], s%d offen offset:%d sc1" % (t, reg, reg+3, V_L16, R_WS, R_WS+3, s, off)
    a("s_waitcnt vmcnt(%d)" % UP)
    for x in tag_ops(range(10, 14), 30): a(x)
    tag_branch(a, sl, range(10, 14), 30, [xload(j) for j in range(UP)])
    a.stamp("p6_st")
    stats_finish(a, 10, 17, 16)
    a("v_mul_f32 v16, s48, v16"); a("v_mul_f32 v17, v16, -v17")
    a("s_mul_i32 s60, s50, 73728")
    a("s_lshl_b32 s46, s51, 1"); a("s_lshr_b32 s47, s%d, 1" % S_WAVE); a("s_add_u32 s46, s46, s47"); a("s_lshl_b32 s46, s46, 10"); a("s_add_u32 s78, s46, s60")
    order = [("x", j) for j in range(UP)]
    todo = [("x", j) for j in range(UP, 18)] + [("w", j) for j in range(NP, 18)]
    for j in range(18):
        a("s_waitcnt vmcnt(%d)" % (len(order) - 1 - order.index(("x", j))))
        for x in tag_ops(range(XR+4*j, XR+4*j+4), 30): a(x)
        n = 1 if j < 10 else -(-len(todo)//(18-j))
        for k, q in todo[:n]:
            a(xload(q) if k == "x" else pre[q]); order.append((k, q))
        del todo[:n]
        later = [q for k, q in order if k == "x" and q > j]
        tag_branch(a, [xload(j)], range(XR+4*j, XR+4*j+4), 30, [xload(q) for q in later], drain=order[-1][0] == "w")
        if j in (9, 17): a.stamp("p6_x%d" % j)
        for x in norm_pk(XR+4*j, 16, 20): a(x)
        a("ds_write_b128 v5, v[%d:%d] offset:%d" % (XR+4*j, XR+4*j+3, 1024*j))
    assert not todo
    LT = 1 if "late4" in ABL else 0
    if LT:
        a.srd(R_A, S_W4, BW)
        a("s_lshl_b32 s46, s2, 2"); a("s_add_u32 s46, s46, s%d" % S_WAVE); a("s_mul_i32 s46, s46, %d" % (41*128))
        a("v_lshlrev_b32 v30, 7, v%d" % V_LANE); a("s_bfm_b64 exec, 41, 0")
        a("buffer_load_dword v31, v30, s[%d:%d], s46 offen" % (R_A, R_A+3))
        a("s_mov_b64 exec, -1")
    a("v_readfirstlane_b32 s%d, v29" % S_NONCE)
    for r in (4, 5): a("v_mov_b32 v%d, 0" % (SEL+r))
    a("s_waitcnt lgkmcnt(0)"); a("s_barrier")
    a.stamp("p6_x")
    def fread(j, va):
        o = []
        for T in range(4):
            t, r = xf(T, j)
            o.append("ds_read_b128 %s[%d:%d], v%d offset:%d" % (t, r, r+3, va[T >> 1], (T & 1)*18432 + 1024*j))
        return o
    def gelu(ac):
        b = gelu_poly([ac+2*k for k in range(8)], GT)
        o = []
        for T in range(4):
            x = ac + 4*T; t = GT + 4*T
            o += ["v_exp_f32 v%d, -v%d" % (t+i, t+i) for i in range(4)]
            o += ["v_fma_f32 v%d, v%d, s48, s48" % (t+i, t+i) for i in range(4)]
            o += ["v_rcp_f32 v%d, v%d" % (t+i, t+i) for i in range(4)]
            o += ["v_mul_f32 v%d, v%d, v%d" % (t+i, t+i, x+i) for i in range(4)]
            o += ["v_cvt_pk_bf16_f32 v%d, v%d, v%d" % (PK+2*T+h, t+2*h, t+2*h+1) for h in range(2)]
            o.append("ds_write_b64 v5, v[%d:%d] offset:%d" % (PK+2*T, PK+2*T+1, 1024*T))
        return b, o
    def wt(op): return 2 if op.startswith(("v_exp", "v_rcp")) else min(2, len(op.split("\n")))
    RA = ("a", RING); RBB = ("v", RB)
    def subpass(ac, fill, first=None, loads=None, at=None, ring=RA, depth=18, batch=(), head=(), c0=None, more=None):
        if "p6nogelu" in ABL and len(fill) > 20: fill = []; batch = ()
        if "p6nost" in ABL: fill = [x for x in fill if "buffer_store" not in x]
        fill = list(fill); head = list(head)
        seq = [(2*p + q, T) for p in range(9) for T in range(4) for q in range(2)]
        LA = 12
        rd = [fread(j, first)[T] for j, T in seq] if first else []
        for x in rd[:LA]: a(x)
        def wait(m):
            w = []
            if m % 8 == 0: w.append("vmcnt(%d)" % (depth - 2 + (more(m//4 - 1) if more else 0)))
            if first and m % 2 == 0: w.append("lgkmcnt(%d)" % max(0, min(LA, 72 - m) - 2))
            return "s_waitcnt " + " ".join(w) if w else None
        for m, (j, T) in enumerate(seq):
            if wait(m): a(wait(m))
            if at and m % 4 == 0 and m//4 in at: at[m//4]()
            t, r = xf(T, j)
            a(mfma(ac+4*T, ring[1]+4*j, r, (None if c0 is None else c0+4*T) if j == 0 else ac+4*T, ta=ring[0], tb=t))
            room = 2
            if m + LA < len(rd): a(rd[m + LA]); room -= 1
            if m < 3:
                n = (len(head) + 2 - m)//(3 - m)
                for x in head[:n]: a(x)
                del head[:n]
            if m == 3:
                for x in batch: a(x)
            if T == 3:
                ld = "" if ("p6nold" in ABL and loads is None) else (loads(j) if loads else wload(j, 58, ring))
                if ld: a(ld); room -= len(ld.split("\n"))
            if m < 71 and wait(m+1): room -= 1
            if m < 4: continue
            left = 71 - m
            while fill and (wt(fill[0]) <= room or sum(wt(x) for x in fill) > 2*left - (left+3)//4*2 + 1):
                room -= wt(fill[0]); a(fill.pop(0))
        assert not fill
    def nexttile():
        return ["s_mov_b32 s62, s61", "s_add_u32 s61, s61, 1", "s_add_u32 s54, s54, 18432", "s_mov_b32 s58, s54",
                "s_lshl_b32 s46, s62, 13", "v_add_u32 v5, s46, v35"]
    a("s_mov_b32 s61, 0"); a("s_add_u32 s54, s54, 18432"); a("s_mov_b32 s58, s54")
    for r in range(4): a("v_mov_b32 v%d, -1" % (PK+r))
    pois = []
    for k in (6, 7):
        pois.append("s_add_u32 s46, s51, %d\ns_and_b32 s46, s46, 7\ns_lshl_b32 s46, s46, 16\ns_add_u32 s62, s46, s56\n" % k +
                    "buffer_store_dwordx4 v[%d:%d], v%d, s[%d:%d], s62 offen sc1" % (PK, PK+3, V_L16, R_WS, R_WS+3))
        pois.append("buffer_store_dwordx4 v[%d:%d], v%d, s[%d:%d], s62 offen offset:1024 sc1" % (PK, PK+3, V_L16, R_WS, R_WS+3))
    res = ["s_add_u32 s62, s78, %d\n" % ((X1_OFF, H_OFF)[j >> 2] + 18432*(j & 3)) + bload(RS+4*j, 62, t="v") for j in range(8)]
    def resadd():
        a("s_waitcnt vmcnt(9)")
        for k in range(2):
            for T in range(4): a(mfma(R3+4*T, 36, RS+16*k+4*T, None if k == 0 else R3+4*T))
    ev0 = {j: (lambda j=j: a(res[j])) for j in range(8)}
    ev0[16] = resadd
    ev0[17] = lambda: [a(x) for x in pois]
    subpass(AC, [], first=(V_L16, 32), at=ev0, more=lambda j: min(j+1, 8) + LT)
    a.stamp("p6_p0")
    WF, DA, TA = RING+48, RB+16, RB+22
    a.srd(R_B, S_W4, BW + 4096, -4096)
    a("v_lshrrev_b32 v30, 3, v%d" % V_LANE); a("v_bfe_u32 v31, v%d, 4, 1" % V_LANE); a("v_lshlrev_b32 v31, 1, v31")
    a("v_and_b32 v%d, 7, v%d" % (TA, V_LANE)); a("v_xor_b32 v31, v31, v%d" % TA); a("v_mul_u32_u24 v30, 1152, v30")
    a("v_lshl_add_u32 v%d, v31, 4, v30" % DA); a("v_xor_b32 v31, 4, v31"); a("v_lshl_add_u32 v%d, v31, 4, v30" % (DA+1))
    for q in (5, 4, 3, 2, 1, 0): a("v_add_u32 v%d, %d, v%d" % (DA+q, 9216*q - 1024*(q % 3) + 4096, DA + (q & 1)))
    a("v_lshrrev_b32 v30, 2, v%d" % V_R); a("v_lshl_add_u32 v31, v%d, 3, v30" % V_G); a("v_lshlrev_b32 v31, 7, v31")
    a("v_lshrrev_b32 v30, 1, v30"); a("v_and_b32 v%d, 1, v%d" % (TA, V_G)); a("v_lshl_add_u32 v30, v%d, 1, v30" % TA)
    a("v_xor_b32 v30, s%d, v30" % S_WAVE); a("v_lshl_add_u32 v31, v30, 5, v31"); a("v_and_b32 v30, 3, v%d" % V_R)
    a("v_lshl_add_u32 v%d, v30, 3, v31" % TA)
    a("s_mul_i32 s55, s51, 12"); a("s_add_u32 s55, s55, s%d" % S_WAVE); a("s_mul_i32 s55, s55, %d" % (48*1152))
    a("s_mul_i32 s63, s%d, 6144" % S_WAVE)
    a("s_barrier")
    a("s_mov_b32 s59, 0")
    a.label("L_p6_a")
    for half in (1, 0):
        b, o = gelu(AC+16*(1-half))
        subpass(AC+16*half, o, batch=b, head=nexttile())
    a("s_add_u32 s59, s59, 1"); a("s_cmp_lt_u32 s59, 3"); a("s_cbranch_scc1 L_p6_a")
    b, o = gelu(AC)
    subpass(AC+16, o, batch=b, head=nexttile())
    CH = 24576
    def slot(n): return n % 3 if n < 6 else (n + 3) % 6
    def src(c, s): return "s_add_u32 s58, s%d, %d" % (s, 192*1152*c)
    def dma(n, s):
        o = []
        for q in range(6):
            pre = src(n % 3, s) + "\n" if q == 0 else ""
            if q % 3 == 0: pre = "s_add_u32 m0, s63, %d\n" % (CH*slot(n) + 1024*q) + (pre or "s_nop 0\n")
            o.append(pre + "buffer_load_dwordx4 v%d, s[%d:%d], s58 offen offset:%d lds" % (DA+q, R_B, R_B+3, 1024*(q % 3)))
        return o
    def origin(d, step):
        if step == 0: return ["s_add_u32 s%d, s55, 1024" % d]
        return ["s_add_u32 s46, s51, %s" % step, "s_and_b32 s46, s46, 7", "s_lshl_b32 s46, s46, 7", "s_add_u32 s%d, s55, s46" % d]
    for x in origin(64, 0) + origin(65, 1): a(x)
    d012 = dma(0, 64) + dma(1, 64) + dma(2, 64)
    b, o = gelu(AC+16)
    subpass(AC, o, batch=b, head=nexttile(), loads=lambda j: d012[j])
    a("s_lshl_b32 s46, s61, 13"); a("v_add_u32 v5, s46, v35")
    raw = [(src(j//6, 65) + "\n" if j % 6 == 0 else "") + "buffer_load_dwordx4 a[%d:%d], v%d, s[%d:%d], s58 offen offset:%d" % (RING+4*j, RING+4*j+3, DA + j % 6, R_B, R_B+3, 1024*(j % 3)) for j in range(18)]
    g = G(); gelu_pk(g, [AC+2*k for k in range(8)], GT)
    interleave(a, g.lines, raw[:14])
    for T in range(4):
        for h in range(2): a("v_cvt_pk_bf16_f32 v%d, v%d, v%d" % (PK+2*T+h, AC+4*T+2*h, AC+4*T+2*h+1))
        a("ds_write_b64 v5, v[%d:%d] offset:%d" % (PK+2*T, PK+2*T+1, 1024*T))
        a(raw[14+T])
    a("v_add_u32 v35, s63, v%d" % V_L16)
    a("s_waitcnt vmcnt(18) lgkmcnt(0)"); a("s_barrier")
    a.stamp("p6_a")
    def park(c): return ["ds_write_b128 v%d, a[%d:%d] offset:%d" % (RB+26, RING+24*c+4*q, RING+24*c+4*q+3, CH*c + 1024*q) for q in range(6)]
    def pstore(ac):
        o = ["v_cvt_pk_bf16_f32 v%d, v%d, v%d" % (PK+k, ac+2*k, ac+2*k+1) for k in range(8)]
        o += ["buffer_store_dwordx4 v[%d:%d], v%d, s[%d:%d], s62 offen offset:%d sc1" % (PK+4*p, PK+4*p+3, V_L16, R_WS, R_WS+3, 1024*p) for p in range(2)]
        return o
    def dest(step):
        if step == 0: return ["s_add_u32 s62, s56, %d" % (8*65536)]
        return ["s_add_u32 s46, s51, %s" % step, "s_and_b32 s46, s46, 7", "s_lshl_b32 s46, s46, 16", "s_add_u32 s62, s46, s56"]
    def wf(pp): return (RB, RB+8, ST)[pp % 3]
    def wread(n, p):
        o = ["v_add_u32 v%d, %d, v%d" % (TA+1, CH*slot(n), TA)] if p == 0 else []
        pp = 3*n + p
        return o + ["ds_read_b64_tr_b16 v[%d:%d], v%d offset:%d" % (wf(pp)+4*q+2*hh, wf(pp)+4*q+2*hh+1, TA+1, 4096*(2*p+q) + 512*hh) for q in range(2) for hh in range(2)]
    def step(s, ac, fill, head=(), first=None, c0=None, before={}, after={}, at={}):
        if "p6nost" in ABL: fill = [x for x in fill if "buffer_store" not in x]
        if "p6nold" in ABL: after = {k: [x for x in v if " lds" not in x] or ["s_nop 0"] for k, v in after.items()}
        fill = list(fill); head = list(head); lg = list(step.lg)
        seq = [(2*p + q, T) for p in range(9) for T in range(4) for q in range(2)]
        hr = ["ds_read_b128 %s[%d:%d], v%d offset:%d" % (xf(T, j)[0], xf(T, j)[1], xf(T, j)[1]+3, first[j//9], 1024*(4*(j % 9) + T)) for j, T in seq] if first else []
        def lds(x, tag):
            a(x)
            if x.startswith("ds_"): lg.append(tag)
        def upto(tag):
            if tag in lg:
                n = len(lg) - 1 - max(i for i, t in enumerate(lg) if t == tag)
                a("s_waitcnt lgkmcnt(%d)" % min(n, 15)); del lg[:len(lg) - min(n, 15)]
                return 1
            return 0
        for i, x in enumerate(hr[:8]): lds(x, ("h", i))
        extra = [(w - 72, x) for w, x in step.extra]
        for m, (j, T) in enumerate(seq):
            p, c = m//8, m//24
            room = 2
            if m % 24 == 8 and 3*s + c < 26:
                if c in before: before[c]()
                upto("x")
                if "p6nobar" not in ABL: a("s_barrier")
                assert not extra
                ex = after.get(c, []); extra = [(m + 24*k//len(ex), x) for k, x in enumerate(ex)]
            if m % 8 == 0:
                upto(("w", 9*s + p))
                nx = wread(3*s + (p+2)//3, (p+2) % 3) if 9*s + p < 79 else []
            if m % 2 == 0 and first: upto(("h", m+1))
            if m % 4 == 0 and m//4 in at: at[m//4]()
            t, r = xf(T, j)
            a(mfma(ac+4*T, wf(9*s+p)+4*(j & 1), r, (None if c0 is None else c0+4*T) if j == 0 else ac+4*T, tb=t))
            if nx:
                lds(nx.pop(0), ("w", 9*s + p + 2)); room -= 1
            if m + 8 < len(hr): lds(hr[m+8], ("h", m+8)); room -= 1
            if m < 3:
                n = (len(head) + 2 - m)//(3 - m)
                for x in head[:n]: a(x)
                del head[:n]
            while extra and extra[0][0] <= m:
                lds(extra.pop(0)[1], "x"); room -= 1
            if m >= 4:
                while fill and wt(fill[0]) <= room: room -= wt(fill[0]); a(fill.pop(0))
        assert not fill
        step.lg = lg; step.extra = extra
    def mix(x, y): return [z for pair in zip(x, y) for z in pair]
    def vm(n): return lambda: a("s_waitcnt vmcnt(%d)" % n)
    def seq(*fs):
        def f():
            for x in fs: x()
        return f
    def wave(w, body):
        def f():
            L = a.newlabel("Lex"); a("s_cmp_lg_u32 s%d, %d" % (S_WAVE, w)); a("s_cbranch_scc1 %s" % L); body(); a.label(L)
        return f
    a("s_lshl_b32 s70, s50, 10"); a("s_add_u32 s70, s70, %d" % (FLAG0 + 128*FA)); a("s_lshl_b32 s46, s51, 7"); a("s_add_u32 s68, s70, s46")
    a("s_mul_i32 s46, s50, 9"); a("s_add_u32 s46, s46, s51"); a("s_lshl_b32 s46, s46, 16"); a("s_lshl_b32 s47, s%d, 11" % S_WAVE)
    a("s_add_u32 s46, s46, s47"); a("s_add_u32 s69, s46, %d" % PART)
    a("v_and_b32 v5, 7, v%d" % V_LANE); a("v_cmp_eq_u32 vcc, s51, v5"); a("v_xor_b32 v30, 1, v5")
    a("v_cndmask_b32 v5, v5, v30, vcc"); a("v_lshlrev_b32 v5, 7, v5")
    def publish(c):
        def f():
            a("s_add_u32 s46, s%d, %d" % (S_NONCE, c)); a("v_mov_b32 v29, s46"); a("s_mov_b64 exec, 1")
            a("buffer_store_dword v29, v28, s[%d:%d], s68 offen sc1" % (R_WS, R_WS+3))
            a("s_mov_b64 exec, -1")
        return wave(0, f)
    askq = "buffer_load_dword v31, v5, s[%d:%d], s70 offen sc1" % (R_WS, R_WS+3)
    ask = wave(0, lambda: a(askq))
    def need(c, n):
        def f():
            L = a.newlabel("Lcf")
            a("s_add_u32 s73, s%d, %d" % (S_NONCE, c)); a("s_mov_b32 s47, 100000"); a("s_waitcnt vmcnt(%d)" % n)
            a.label(L)
            a("v_subrev_u32 v30, s73, v31"); a("v_cmp_lt_u32 vcc, 7, v30"); a("s_cbranch_vccz %s_x" % L)
            a("s_sleep 1"); a(askq); a("s_waitcnt vmcnt(0)")
            a("s_sub_u32 s47, s47, 1"); a("s_cbranch_scc0 %s" % L)
            a.label(L + "_x")
        return wave(0, f)
    step.extra = []
    a("v_mov_b32 v%d, v33" % (RB+24)); a("v_mov_b32 v%d, v34" % (RB+25)); a("v_mov_b32 v%d, v35" % (RB+26))
    for x in wread(0, 0) + wread(0, 1): a(x)
    step.lg = [("w", 0)]*4 + [("w", 1)]*4
    step(0, AC, [], first=(RB+24, RB+25), head=origin(64, 2),
         after={1: ["s_waitcnt vmcnt(12)"] + mix(park(0), dma(6, 64)), 2: ["s_waitcnt vmcnt(12)"] + mix(park(1), dma(7, 64))})
    a.stamp("p6_s0")
    step(1, AC+16, pstore(AC), head=dest(0) + origin(65, 3), before={2: vm(18)},
         after={0: ["s_waitcnt vmcnt(12)"] + mix(park(2), dma(8, 64)), 1: dma(9, 65), 2: dma(10, 65)})
    a.stamp("p6_s1")
    a("s_mov_b32 s71, 2")
    a.label("L_p6_b")
    w18 = {0: vm(18), 1: vm(18), 2: vm(18)}
    def last(body):
        def f():
            L = a.newlabel("Ll"); a("s_cmp_eq_u32 s71, 4"); a("s_cbranch_scc0 %s" % L); body(); a.label(L)
        return f
    lg0 = list(step.lg); ex0 = list(step.extra)
    step(2, AC, pstore(AC+16), head=["s_sub_u32 s72, s71, 1"] + dest("s72") + ["s_add_u32 s72, s71, 2"] + origin(64, "s72"), before=w18,
         after={0: dma(11, 65), 1: dma(12, 64), 2: dma(13, 64)})
    step(3, AC+16, pstore(AC), head=dest("s71") + ["s_add_u32 s72, s71, 3"] + origin(65, "s72"), before={0: vm(18), 1: vm(18), 2: seq(vm(18), last(vm(10)))},
         after={0: dma(14, 64), 1: dma(15, 65), 2: dma(16, 65)}, at={15: last(publish(4))})
    assert [t[0] for t in step.lg] == [t[0] for t in lg0] and step.extra == ex0
    a("s_add_u32 s71, s71, 2"); a("s_cmp_lt_u32 s71, 6"); a("s_cbranch_scc1 L_p6_b")
    step.lg = [("w", t[1] + 36) for t in lg0]
    a.stamp("p6_s5")
    def SC(k): return (54, 57, 59, 61, 72, 75, 76)[k-1]
    for k in range(1, 8):
        r = SC(k); a("s_sub_u32 s%d, s51, %d" % (r, k)); a("s_and_b32 s%d, s%d, 7" % (r, r)); a("s_lshl_b32 s%d, s%d, 13" % (r, r)); a("s_add_u32 s%d, s%d, s69" % (r, r))
    CB = {k: ("v", RB + 24 + 8*(k-2)) if k > 1 else ("a", RING+48) for k in range(1, 8)}
    def cload(k): return [bload(CB[k][1]+4*p, SC(k), 1024*p, t=CB[k][0]) for p in range(2)]
    def emit(xs): return lambda: [a(x) for x in xs]
    def add(acc, k):
        def f():
            for T in range(4): a(mfma(acc+4*T, SEL if T & 1 else SEL+2, CB[k][1]+4*(T >> 1), acc+4*T, tb=CB[k][0]))
        return f
    step(6, AC, pstore(AC+16), head=dest(5) + origin(64, 8), before={0: vm(18), 1: vm(18), 2: seq(need(4, 6), vm(10))},
         after={0: dma(23, 65), 1: dma(24, 64), 2: dma(25, 64)}, at={6: ask, 15: publish(5), 16: emit(cload(1))})
    a.stamp("p6_s6")
    a("s_mul_i32 s46, s50, 9"); a("s_add_u32 s46, s46, 8"); a("s_lshl_b32 s46, s46, 16"); a("s_lshl_b32 s47, s51, 10")
    a("s_add_u32 s46, s46, s47"); a("s_add_u32 s78, s46, %d" % PART)
    a("s_and_b32 s46, s51, 1"); a("s_mul_i32 s74, s46, 36864"); a("s_add_u32 s74, s74, s60")
    a("s_lshr_b32 s47, s51, 2"); a("s_add_u32 s47, s47, 16"); a("s_lshl_b32 s46, s47, 10"); a("s_add_u32 s79, s46, s74")
    a("s_lshr_b32 s46, s51, 1"); a("s_lshl_b32 s46, s46, 5"); a("s_add_u32 s46, s46, 1024"); a("s_add_u32 s74, s74, s46")
    def extra_get():
        for k in range(8):
            a(bload(RING+4*k, 78)); a("s_add_u32 s78, s78, 8192")
        for k, off in enumerate((H_OFF, X1_OFF)):
            for T in range(2):
                a("s_add_u32 s46, s79, %d" % (off + 18432*T)); a(bload(RING+32+8*k+4*T, 46))
    step(7, AC+16, pstore(AC), head=dest(6), before={0: vm(18), 1: vm(18), 2: seq(need(5, 2), vm(18))}, after={0: dma(26, 64)},
         at={3: emit(cload(2)), 6: emit(cload(3)), 9: ask, 10: emit(cload(4)), 15: emit(cload(5))})
    a.stamp("p6_s7")
    SEv, EA = AC+16, AC+24
    g = G()
    g.lines += natsel(SEv, 51, 1, EA)
    OB = 147456
    g("v_mul_u32_u24 v%d, 144, v%d" % (AC+20, V_R)); g("v_lshl_add_u32 v%d, v%d, 3, v%d" % (AC+20, V_G, AC+20))
    g.lines.append("s_lshl_b32 s66, s%d, 5\ns_add_u32 s66, s66, %d" % (S_WAVE, OB))
    g("v_add_u32 v%d, s66, v%d" % (AC+20, AC+20))
    g("v_lshrrev_b32 v%d, 3, v0" % EA); g("v_and_b32 v%d, 7, v0" % (EA+1)); g("v_lshlrev_b32 v%d, 4, v%d" % (EA+1, EA+1))
    g("v_mul_u32_u24 v%d, 144, v%d" % (AC+21, EA)); g("v_add_u32 v%d, v%d, v%d" % (AC+21, AC+21, EA+1)); g("v_add_u32 v%d, %d, v%d" % (AC+21, OB, AC+21))
    g("v_mul_u32_u24 v%d, 1152, v%d" % (AC+22, EA)); g("v_add_u32 v%d, v%d, v%d" % (AC+22, AC+22, EA+1))
    g("v_mul_u32_u24 v%d, 1152, v%d" % (AC+23, V_R)); g("v_lshl_add_u32 v%d, v%d, 3, v%d" % (AC+23, V_G, AC+23))
    step(8, AC, pstore(AC+16) + g.lines, head=dest(7), c0=R3, before={0: vm(10), 1: vm(2)},
         at={8: add(AC, 1), 9: wave(3, extra_get), 10: add(AC, 2), 12: seq(add(AC, 3), emit(cload(6))),
             14: add(AC, 4), 16: add(AC, 5), 17: emit(cload(7))})
    a.stamp("p6_b")
    a.srd(R_A, S_OUT, ACT)
    a("s_cmp_lg_u32 s%d, 3" % S_WAVE); a("s_cbranch_scc1 L_p7_main")
    a("s_waitcnt vmcnt(4)")
    for k in range(8):
        a(mfma(EA, SEL+2, RING+4*k, None if k == 0 else EA, tb="a")); a(mfma(EA+4, SEL, RING+4*k, None if k == 0 else EA+4, tb="a"))
    for k in range(2):
        for T in range(2): a(mfma(EA+4*T, SEv, RING+32+8*k+4*T, EA+4*T, tb="a"))
    for T in range(2):
        for h in range(2): a("v_cvt_pk_bf16_f32 v%d, v%d, v%d" % (PK+2*T+h, EA+4*T+2*h, EA+4*T+2*h+1))
    a.label("L_p7_main")
    for k in (6, 7):
        base = CB[k][1]
        L = a.newlabel("Ltag")
        a("s_mov_b32 s47, 100000")
        a("s_waitcnt vmcnt(%d)" % (2 if k == 6 else 0))
        a.label(L)
        for x in tag_ops(range(base, base+8), 30): a(x)
        a("s_cbranch_vccz %s_x" % L)
        for x in cload(k): a(x)
        a("s_waitcnt vmcnt(0)")
        a("s_sub_u32 s47, s47, 1"); a("s_cbranch_scc0 %s" % L)
        a.label(L + "_x")
        add(AC, k)()
    a.stamp("p7_ready")
    a("s_cmp_lg_u32 s%d, 3" % S_WAVE); a("s_cbranch_scc1 L_p7_acc")
    for T in range(2):
        a("buffer_store_dwordx2 v[%d:%d], v%d, s[%d:%d], s74 offen%s" % (PK+2*T, PK+2*T+1, AC+23, R_A, R_A+3, OFL))
        a("s_add_u32 s74, s74, 18432")
    a.label("L_p7_acc")
    a("s_lshl_b32 s46, s51, 7"); a("s_add_u32 s46, s46, s60"); a("s_add_u32 s47, s46, 36864")
    for T in range(4):
        for h in range(2): a("v_cvt_pk_bf16_f32 v%d, v%d, v%d" % (R3+2*T+h, AC+4*T+2*h, AC+4*T+2*h+1))
        a("ds_write_b64 v%d, v[%d:%d] offset:%d" % (AC+20, R3+2*T, R3+2*T+1, 2304*T))
    a("s_waitcnt lgkmcnt(0)"); a("s_barrier")
    for p in range(2): a("ds_read_b128 v[%d:%d], v%d offset:%d" % (R3+8+4*p, R3+11+4*p, AC+21, 4608*p))
    for p in range(2):
        a("s_waitcnt lgkmcnt(%d)" % (1-p))
        a("buffer_store_dwordx4 v[%d:%d], v%d, s[%d:%d], s%d offen%s" % (R3+8+4*p, R3+11+4*p, AC+22, R_A, R_A+3, 46+p, OFL))
```

```python
import sys, os, struct, math
sys.path.insert(0, "dev")
from asmlib import Asm, build
from hazard import fix_hazards, check_waits

NAME = "sequential_preLN__sliding_block__mixer_s_mlp__prompt"
KN = NAME + "_kernel"

ACT = 2048*576*2
SW  = 576*576*2
BW  = 576*4608*2
FLAG0 = 128
F1, FS, F2, F3, F4, F5, FA, FB = 0, 256, 640, 896, 1152, 1408, 1664, 2688
TS_OFF = 0x80000
Q_OFF  = 0x90000
K_OFF  = Q_OFF + ACT
V_OFF  = K_OFF + ACT
O_OFF  = V_OFF + ACT
H_OFF  = O_OFF + ACT
SH_OFF = H_OFF + ACT
T_OFF  = SH_OFF + 98304
X1_OFF = T_OFF + ACT
SX_OFF = X1_OFF + ACT
WO_S   = SX_OFF + 98304
W1_S   = WO_S + SW
W2_S   = W1_S + SW
W3_S   = W2_S + SW
W4_S   = W3_S + BW
PART   = W4_S + BW
WS_END = PART + 32*9*8*8192
FP_OFF = 0x7F000
FP2_OFF = FP_OFF + 1024
MARK_N = T_OFF - O_OFF
MKG = 19
MARK_W = 2048*MKG
assert 128*MARK_W >= MARK_N and 1024*5120 >= WO_S - T_OFF
HPSZ   = 147456

WSOFF = 0
MK0 = int(os.environ.get('MK0', 0))
MK1 = int(os.environ.get('MK1', 0))
THR = int(os.environ.get('THR', 0))
NW3 = int(os.environ.get('NW3', 0))
ABL = os.environ.get('ABL', '').split(',')
CLK = 's_memtime'
def f32(x): return struct.unpack("<I", struct.pack("<f", x))[0]
def magic(d): return (1 << 32)//d + 1

S_X, S_WQKV, S_WO = 4, 6, 8
S_W1, S_W2, S_W3, S_W4 = 12, 14, 16, 18
S_OUT, S_DBG, S_WS = 20, 22, 24
R_WS, R_A, R_B = 28, 32, 36
S_WAVE, S_XCD, S_SLOT, S_NONCE = 40, 41, 42, 43
S_ONES = 44
V_LANE, V_R, V_G, V_L16 = 1, 2, 3, 4

class G(Asm):
    def __init__(s, stop=99, stamps=False):
        super().__init__()
        s.stop = stop; s.stamps = stamps; s.stubs = []
    def srd(a, d, p, size, add=0):
        if add >= 0:
            a("s_add_u32 s%d, s%d, %s" % (d, p, add)); a("s_addc_u32 s%d, s%d, 0" % (d+1, p+1))
        else:
            a("s_sub_u32 s%d, s%d, %d" % (d, p, -add)); a("s_subb_u32 s%d, s%d, 0" % (d+1, p+1))
        a("s_mov_b32 s%d, %d" % (d+2, size)); a("s_mov_b32 s%d, 0x20000" % (d+3))
    def srd_s(a, d, p, size, sreg):
        a("s_add_u32 s%d, s%d, s%d" % (d, p, sreg)); a("s_addc_u32 s%d, s%d, 0" % (d+1, p+1))
        a("s_mov_b32 s%d, %d" % (d+2, size)); a("s_mov_b32 s%d, 0x20000" % (d+3))
    def sdiv(a, q, r, x, d):
        a("s_mul_hi_u32 s%d, s%d, %d" % (q, x, magic(d)))
        if r is not None:
            a("s_mul_i32 s%d, s%d, %d" % (r, q, d)); a("s_sub_u32 s%d, s%d, s%d" % (r, x, r))
    def jitter(a):
        L = a.newlabel("Ljit")
        a("s_memrealtime s[98:99]"); a("s_waitcnt lgkmcnt(0)")
        a("s_mul_i32 s98, s98, 0x9E3779B1"); a("s_mul_i32 s99, s2, 0x85EBCA6B"); a("s_add_u32 s98, s98, s99"); a("s_mul_i32 s99, s%d, 0x27D4EB2F" % S_WAVE)
        a("s_add_u32 s98, s98, s99"); a("s_lshr_b32 s99, s98, 29"); a("s_lshr_b32 s98, s98, 20"); a("s_and_b32 s98, s98, 127")
        a("s_cmp_lt_u32 s99, 5"); a("s_cselect_b32 s98, 0, s98")
        a.label(L)
        a("s_cmp_eq_u32 s98, 0"); a("s_cbranch_scc1 %s_x" % L); a("s_sleep 1"); a("s_sub_u32 s98, s98, 1"); a("s_branch %s" % L)
        a.label(L + "_x")
    def stamp(a, name):
        if "jitter" in ABL and name not in ("start", "end"): a.jitter()
        if not a.stamps or name not in a.stamps: return
        k = a.stamps.index(name)
        a("%s s[98:99]" % CLK); a("s_waitcnt lgkmcnt(0)"); a("s_mov_b32 s%d, s98" % (80+k))
    def stamp_out(a):
        if not a.stamps: return
        a.stamp("end")
        a("s_lshl_b32 s98, s2, 2"); a("s_add_u32 s98, s98, s%d" % S_WAVE); a("s_lshl_b32 s98, s98, 6"); a("s_add_u32 s98, s98, %d" % TS_OFF)
        a("v_mov_b32 v255, 0")
        for k in range(16):
            a("v_mov_b32 v254, s%d" % (80+k))
            a("buffer_store_dword v254, v255, s[%d:%d], s98 offen offset:%d" % (R_WS, R_WS+3, 4*k))
            a("s_nop 1")
    def xg_reduce(a, v, t, op="v_add_f32"):
        for sw in ("v_permlane32_swap_b32", "v_permlane16_swap_b32"):
            a("v_mov_b32 v%d, v%d" % (t, v)); a("%s v%d, v%d" % (sw, v, t)); a("%s v%d, v%d, v%d" % (op, v, v, t))
    def get_nonce(a, vt):
        L = a.newlabel("Lnon")
        a("s_mov_b32 s46, 200000"); a("v_mov_b32 v%d, 0" % (vt+2))
        a.label(L)
        a("global_load_dwordx2 v[%d:%d], v%d, s[%d:%d] sc1" % (vt, vt+1, vt+2, S_DBG, S_DBG+1))
        a("s_waitcnt vmcnt(0)")
        a("v_readfirstlane_b32 s47, v%d" % (vt+1)); a("v_readfirstlane_b32 s%d, v%d" % (S_NONCE, vt))
        a("s_sub_u32 s46, s46, 1"); a("s_cbranch_scc1 %s_x" % L)
        a("s_cmp_eq_u32 s47, 0"); a("s_cbranch_scc1 %s" % L)
        a.label(L + "_x")
    def set_flag(a, sidx, vt):
        a("s_lshl_b32 s%d, s%d, 7" % (sidx, sidx)); a("s_add_u32 s%d, s%d, %d" % (sidx, sidx, FLAG0))
        a("v_mov_b32 v%d, s%d" % (vt, S_NONCE)); a("v_mov_b32 v%d, 0" % (vt+1))
        a("s_mov_b64 exec, 1")
        a("buffer_store_dword v%d, v%d, s[%d:%d], s%d offen sc1" % (vt, vt+1, R_WS, R_WS+3, sidx))
        a("s_mov_b64 exec, -1")
    def set_mark(a, vt, off):
        a("s_lshl_b32 s46, s2, 2"); a("s_add_u32 s46, s46, %d" % off)
        a("v_mov_b32 v%d, s%d" % (vt, S_NONCE)); a("v_mov_b32 v%d, 0" % (vt+1))
        a("s_mov_b64 exec, 1")
        a("buffer_store_dword v%d, v%d, s[%d:%d], s46 offen sc1" % (vt, vt+1, R_WS, R_WS+3))
        a("s_mov_b64 exec, -1")
    def poll(a, vidx, vt, sleep0=6, sleep=2, two=False):
        L = a.newlabel("Lpoll")
        a("v_lshlrev_b32 v%d, 7, v%d" % (vidx, vidx))
        a("s_mov_b32 s46, 100000")
        if sleep0: a("s_sleep %d" % sleep0)
        a.label(L)
        if two: a("buffer_load_dwordx2 v[%d:%d], v%d, s[%d:%d], 0 offen offset:%d sc1" % (vt, vt+1, vidx, R_WS, R_WS+3, FLAG0))
        else: a("buffer_load_dword v%d, v%d, s[%d:%d], 0 offen offset:%d sc1" % (vt, vidx, R_WS, R_WS+3, FLAG0))
        a("s_waitcnt vmcnt(0)")
        a("v_cmp_ne_u32 vcc, s%d, v%d" % (S_NONCE, vt))
        a("s_cbranch_vccz %s_x" % L)
        a("s_sleep %d" % sleep)
        a("s_sub_u32 s46, s46, 1"); a("s_cbranch_scc0 %s" % L)
        a.label(L + "_x")

def mfma(d, A, B, C=None, ta="v", tb="v", td="v"):
    c = "0" if C is None else "%s[%d:%d]" % (td, C, C+3)
    return "v_mfma_f32_16x16x32_bf16 %s[%d:%d], %s[%d:%d], %s[%d:%d], %s" % (td, d, d+3, ta, A, A+3, tb, B, B+3, c)

def interleave(a, main, fill, start=0):
    n = len(main) - start; k = 0
    for i, m in enumerate(main):
        a(m)
        if i >= start:
            upto = (len(fill)*(i-start+1) + n - 1)//n
            while k < upto: a(fill[k]); k += 1

def prologue(a):
    a("s_cmp_ge_u32 s2, 256"); a("s_cbranch_scc1 L_end")
    a("s_load_dwordx4 s[4:7], s[0:1], 0")
    a("s_load_dwordx2 s[24:25], s[0:1], 80")
    a("s_load_dwordx2 s[8:9], s[0:1], 16")
    a("s_load_dwordx8 s[12:19], s[0:1], 32")
    a("s_load_dwordx4 s[20:23], s[0:1], 64")
    a("v_and_b32 v%d, 63, v0" % V_LANE)
    a("v_lshrrev_b32 v5, 6, v0")
    a("v_and_b32 v%d, 15, v0" % V_R)
    a("v_readfirstlane_b32 s%d, v5" % S_WAVE)
    a("v_lshrrev_b32 v%d, 4, v%d" % (V_G, V_LANE))
    a("v_lshlrev_b32 v%d, 4, v%d" % (V_L16, V_LANE))
    if "antiloc" in ABL:
        a("s_lshr_b32 s46, s2, 5"); a("s_and_b32 s47, s2, 31"); a("s_lshl_b32 s47, s47, 3"); a("s_or_b32 s2, s46, s47")
    a("s_and_b32 s%d, s2, 7" % S_XCD); a("s_lshr_b32 s%d, s2, 3" % S_SLOT)
    a("s_mov_b32 s%d, 0x3f803f80" % S_ONES)
    if "nopf" not in ABL:
        a("s_getpc_b64 s[46:47]")
        a.label("L_pc")
        a("s_mul_i32 s48, s%d, %d" % (S_SLOT, 20*128)); a("v_lshl_add_u32 v5, v0, 7, s48")
        a("v_cmp_gt_u32 vcc, 20, v0"); a("s_mov_b32 s48, L_last-L_pc"); a("v_cmp_gt_u32 s[48:49], s48, v5"); a("s_and_b64 vcc, vcc, s[48:49]")
        a("s_and_saveexec_b64 s[48:49], vcc"); a("s_cbranch_execz L_pcd")
        a("global_load_dword v253, v5, s[46:47]")
        a.label("L_pcd")
        a("s_mov_b64 exec, -1")
    if a.stamps:
        for k in range(16): a("s_mov_b32 s%d, 0" % (80+k))
        a.stamp("start")

def publish_nonce(a):
    L = a.newlabel("Lpn")
    a("s_xor_b32 s46, s2, 224"); a("s_or_b32 s46, s46, s%d" % S_WAVE); a("s_cmp_lg_u32 s46, 0"); a("s_cbranch_scc1 %s" % L)
    a("v_mov_b32 v252, 0")
    a("buffer_load_dword v250, v252, s[%d:%d], 0 offen sc1" % (R_WS, R_WS+3))
    a("s_mov_b32 s46, 0x9E3779B1")
    a("s_waitcnt vmcnt(0)")
    a("v_mul_lo_u32 v250, v250, s46"); a("v_add_u32 v250, 0x7F4A7C15, v250"); a("v_mov_b32 v251, 1")
    a("s_mov_b64 exec, 1")
    a("buffer_store_dword v250, v252, s[%d:%d], 0 offen sc1" % (R_WS, R_WS+3))
    a("global_store_dwordx2 v252, v[250:251], s[%d:%d] sc1" % (S_DBG, S_DBG+1))
    a("s_mov_b64 exec, -1")
    a.label(L)

def swizzle_setup(a):
    for i in range(9):
        a("v_add_u32 v40, %d, v%d" % (64*i, V_LANE))
        a("v_mul_u32_u24 v%d, 911, v40" % (10+i)); a("v_lshrrev_b32 v%d, 16, v%d" % (10+i, 10+i))
        a("v_mul_u32_u24 v41, 72, v%d" % (10+i)); a("v_sub_u32 v41, v40, v41"); a("v_lshlrev_b32 v%d, 4, v41" % (20+i))
    a("v_lshrrev_b32 v40, 2, v%d" % V_R); a("v_lshl_add_u32 v40, v%d, 3, v40" % V_G); a("v_mul_u32_u24 v40, 1152, v40")
    a("v_and_b32 v41, 3, v%d" % V_R); a("v_lshl_add_u32 v30, v41, 4, v40")
    a("s_lshr_b32 s46, s%d, 1" % S_WAVE); a("s_lshl_b32 s46, s46, 6"); a("s_and_b32 s47, s%d, 1" % S_WAVE); a("s_lshl_b32 s47, s47, 3")
    a("s_add_u32 s46, s46, s47"); a("v_add_u32 v30, s46, v30")

def sw_decode(a, su, p):
    Ln = a.newlabel("Lsw")
    D = 60+3*p
    a("s_cmp_ge_u32 s%d, 54" % su); a("s_cbranch_scc1 %s_big" % Ln)
    a.sdiv(51, 52, su, 18)
    a("s_cmp_eq_u32 s51, 1"); a("s_cselect_b32 s54, s%d, s%d" % (S_W1, S_W2)); a("s_cselect_b32 s55, s%d, s%d" % (S_W1+1, S_W2+1))
    a("s_cmp_eq_u32 s51, 0"); a("s_cselect_b32 s54, s%d, s54" % S_WO); a("s_cselect_b32 s55, s%d, s55" % (S_WO+1))
    a("s_mul_i32 s%d, s51, %d" % (D, SW)); a("s_add_u32 s%d, s%d, %d" % (D, D, WO_S))
    a("s_mul_i32 s53, s%d, 18432" % S_WAVE); a("s_add_u32 s%d, s%d, s53" % (D, D))
    a("s_mov_b32 s%d, 73728" % (D+1))
    a("s_lshl_b32 s56, s52, 5"); a("s_lshl_b32 s53, s%d, 3" % S_WAVE); a("s_add_u32 s56, s56, s53")
    a("s_mov_b32 s57, 0"); a("s_mov_b32 s59, 1152")
    a("s_cmp_lg_u32 s51, 0"); a("s_cbranch_scc1 %s_j" % Ln)
    a("s_mul_i32 s56, s52, 36"); a("s_lshl_b32 s53, s%d, 2" % S_WAVE); a("s_add_u32 s56, s56, s53"); a("s_mov_b32 s57, 16")
    a("s_cmp_lt_u32 s52, 16"); a("s_cbranch_scc1 %s_j" % Ln)
    a("s_sub_u32 s56, s52, 16"); a("s_lshl_b32 s56, s56, 2"); a("s_add_u32 s56, s56, s%d" % S_WAVE)
    a("s_mul_i32 s56, s56, 72"); a("s_add_u32 s56, s56, 16"); a("s_mov_b32 s57, 32")
    a("s_branch %s_j" % Ln)
    a.label(Ln + "_big")
    sw_big(a, su, D)
    a("s_lshl_b32 s56, s52, 5"); a("s_lshl_b32 s53, s%d, 3" % S_WAVE); a("s_add_u32 s56, s56, s53"); a("s_mov_b32 s57, 0")
    a("s_cmp_ge_u32 s51, 8"); a("s_cbranch_scc1 %s_w4" % Ln)
    a("s_mul_i32 s53, s51, 1152"); a("s_add_u32 s54, s%d, s53" % S_W3); a("s_addc_u32 s55, s%d, 0" % (S_W3+1)); a("s_mov_b32 s59, 9216")
    a("s_branch %s_j" % Ln)
    a.label(Ln + "_w4")
    a("s_sub_u32 s53, s51, 8"); a("s_mul_i32 s53, s53, %d" % SW); a("s_add_u32 s54, s%d, s53" % S_W4); a("s_addc_u32 s55, s%d, 0" % (S_W4+1)); a("s_mov_b32 s59, 1152")
    a.label(Ln + "_j")
    a("s_lshl_b32 s53, s52, 10"); a("s_add_u32 s%d, s%d, s53" % (D, D))
    a("s_add_u32 s%d, s%d, %d" % (D+2, su, FS))

def sw_big(a, su, D):
    a("s_sub_u32 s53, s%d, 54" % su); a.sdiv(51, 52, 53, 18)
    a("s_mul_i32 s%d, s51, %d" % (D, 4*9*18432)); a("s_add_u32 s%d, s%d, %d" % (D, D, W3_S))
    a("s_mul_i32 s53, s%d, %d" % (S_WAVE, 9*18432)); a("s_add_u32 s%d, s%d, s53" % (D, D))
    a("s_mov_b32 s%d, 18432" % (D+1))

def sw_issue(a, su, p, lds):
    sw_decode(a, su, p)
    a("s_mov_b32 s%d, s54" % R_A); a("s_mov_b32 s%d, s55" % (R_A+1))
    a("s_mul_i32 s%d, s59, 575" % (R_A+2)); a("s_add_u32 s%d, s%d, 1152" % (R_A+2, R_A+2)); a("s_mov_b32 s%d, 0x20000" % (R_A+3))
    a("s_mul_i32 s53, s%d, 9216" % S_WAVE); a("s_add_u32 m0, s53, %d" % lds)
    for k in range(9):
        a("v_lshrrev_b32 v40, 2, v%d" % (10+k)); a("v_mul_lo_u32 v40, v40, s57"); a("v_add3_u32 v40, v40, v%d, s56" % (10+k))
        a("v_mul_lo_u32 v40, v40, s59"); a("v_add_u32 v40, v40, v%d" % (20+k))
        a("buffer_load_dwordx4 v40, s[%d:%d], 0 offen lds" % (R_A, R_A+3))
        a("s_add_u32 m0, m0, 1024")

def sw_process(a, p, lds):
    a("v_add_u32 v31, %d, v30" % lds)
    for q in range(9):
        for hh in range(2):
            a("ds_read_b64_tr_b16 v[%d:%d], v31 offset:%d" % (44+4*q+2*hh, 45+4*q+2*hh, hh*4608 + 128*q))
    a("s_mov_b32 s53, s%d" % (60+3*p))
    for q in range(9):
        a("s_waitcnt lgkmcnt(%d)" % min(15, 16-2*q))
        a("buffer_store_dwordx4 v[%d:%d], v%d, s[%d:%d], s53 offen sc1" % (44+4*q, 47+4*q, V_L16, R_WS, R_WS+3))
        a("s_add_u32 s53, s53, s%d" % (61+3*p))

def sw_flags(a, ps, mark=False):
    L = a.newlabel("Lswf")
    a("s_cmp_lg_u32 s%d, 0" % S_WAVE); a("s_cbranch_scc1 %s" % L)
    for p in ps: a.set_flag(62+3*p, 40)
    if mark: a.set_mark(40, FP_OFF - 4*224)
    a.label(L)

MK, R_M = 220, 76

def mark_setup(a):
    a.srd(R_M, S_WS, MARK_N, O_OFF)
    for r in range(4): a("v_mov_b32 v%d, -1" % (MK+r))
    a("s_sub_u32 s74, s2, %d" % 224); a("s_lshl_b32 s74, s74, 2"); a("s_add_u32 s74, s74, s%d" % S_WAVE); a("s_mul_i32 s74, s74, %d" % MARK_W)

def mark_fill(a, n):
    L = a.newlabel("Lmk")
    a("s_mov_b32 s75, %d" % n)
    a.label(L)
    a(mark_store(74, 0)); a(mark_store(74, 1024)); a("s_add_u32 s74, s74, 2048"); a("s_waitcnt vmcnt(40)")
    a("s_sub_u32 s75, s75, 1"); a("s_cmp_lg_u32 s75, 0"); a("s_cbranch_scc1 %s" % L)

def mark_store(s, off): return "buffer_store_dwordx4 v[%d:%d], v%d, s[%d:%d], s%d offen offset:%d sc1" % (MK, MK+3, V_L16, R_M, R_M+3, s, off)

def touch_pages(a):
    if "tlb" not in ABL: return
    L = a.newlabel("Ltp")
    a("s_cmp_lg_u32 s%d, 1" % S_WAVE); a("s_cbranch_scc1 %s" % L)
    a("v_lshlrev_b32 v252, 21, v%d" % V_LANE)
    a("buffer_load_dword v253, v252, s[%d:%d], 0 offen offset:64" % (R_WS, R_WS+3))
    for p, size in ((S_W3, BW), (S_W4, BW), (S_OUT, ACT), (S_WO, SW), (S_W1, SW), (S_W2, SW)):
        n = (size - 1 >> 21) + 1
        a("s_mov_b64 exec, %d" % ((1 << n) - 1))
        a("global_load_dword v253, v252, s[%d:%d]" % (p, p+1))
    a("s_mov_b64 exec, -1")
    a.label(L)

def touch_inputs(a, nwg):
    nx, nw = -(-18432//(2*nwg)), -(-15552//(2*nwg))
    a("s_mul_i32 s46, s50, 14"); a("s_add_u32 s46, s46, s51"); a("s_lshl_b32 s46, s46, 1"); a("s_add_u32 s46, s46, s53")
    a("v_lshlrev_b32 v252, 7, v%d" % V_LANE)
    L = a.newlabel("Lti")
    a("s_cmp_lg_u32 s52, 0"); a("s_cbranch_scc1 %s_w" % L)
    a("s_mul_i32 s46, s46, %d" % (128*nx)); a("s_add_u32 s46, s46, 4096"); a("s_mov_b64 exec, 0x%x" % ((1 << nx) - 1) if nx <= 32 else "s_bfm_b64 exec, %d, 0" % nx)
    a("buffer_load_dword v253, v252, s[%d:%d], s46 offen" % (R_A, R_A+3))
    a("s_branch %s" % L)
    a.label(L + "_w")
    a("s_mul_i32 s46, s46, %d" % (128*nw)); a("s_add_u32 s46, s46, 4096"); a("s_bfm_b64 exec, %d, 0" % nw)
    a("buffer_load_dword v253, v252, s[%d:%d], s46 offen" % (R_B, R_B+3))
    a.label(L)
    a("s_mov_b64 exec, -1")

def phase1(a):
    QS = 18**-0.5 * math.log2(math.e)
    a("s_cmp_ge_u32 s%d, 28" % S_SLOT); a("s_cbranch_scc1 L_p1_helper")
    a.sdiv(46, 47, S_SLOT, 7)
    a("s_lshr_b32 s48, s%d, 1" % S_XCD); a("s_lshl_b32 s48, s48, 2"); a("s_add_u32 s50, s48, s46")
    a("s_and_b32 s48, s%d, 1" % S_XCD); a("s_mul_i32 s48, s48, 7"); a("s_add_u32 s51, s48, s47")
    a("s_lshr_b32 s52, s%d, 1" % S_WAVE); a("s_and_b32 s53, s%d, 1" % S_WAVE)
    a("v_lshrrev_b32 v20, 3, v%d" % V_LANE); a("v_and_b32 v21, 7, v%d" % V_LANE)
    a("v_xor_b32 v22, v21, v%d" % V_G); a("v_mul_u32_u24 v20, 1152, v20")
    a("v_lshl_add_u32 v10, v22, 4, v20"); a("v_xor_b32 v22, 4, v22"); a("v_lshl_add_u32 v11, v22, 4, v20")
    a("v_add_u32 v12, %d, v10" % (16*1152 - 2048 + 4096)); a("v_add_u32 v13, %d, v11" % (24*1152 - 3072 + 4096))
    a("v_add_u32 v11, %d, v11" % (8*1152 - 1024 + 4096)); a("v_add_u32 v10, 4096, v10")
    a("v_lshrrev_b32 v20, 1, v%d" % V_R); a("v_xor_b32 v20, v20, v%d" % V_G); a("v_and_b32 v21, 1, v%d" % V_LANE)
    a("v_lshl_add_u32 v21, v20, 1, v21"); a("v_mul_u32_u24 v22, 3456, v%d" % V_G)
    a("v_lshl_add_u32 v14, v21, 4, v22"); a("v_xor_b32 v21, 8, v21"); a("v_lshl_add_u32 v16, v21, 4, v22")
    a("v_add_u32 v15, %d, v14" % (4*3456 - 1024 + 4096)); a("v_add_u32 v17, %d, v16" % (12*3456 - 3072 + 4096))
    a("v_add_u32 v16, %d, v16" % (8*3456 - 2048 + 4096)); a("v_add_u32 v14, 4096, v14")
    a("s_lshl_b32 s54, s50, 2"); a("s_add_u32 s54, s54, s%d" % S_WAVE); a("s_mul_i32 s54, s54, %d" % (32*1152))
    a("s_mul_i32 s55, s%d, %d" % (S_WAVE, 16*3456)); a("s_lshl_b32 s46, s51, 8"); a("s_add_u32 s55, s55, s46")
    a("s_lshl_b32 s56, s%d, 12" % S_WAVE)
    a("s_waitcnt lgkmcnt(0)")
    if WSOFF: a("s_add_u32 s24, s24, %d" % WSOFF); a("s_addc_u32 s25, s25, 0")
    a.srd(R_A, S_X, ACT + 4096, -4096); a.srd(R_B, S_WQKV, 576*3456 + 4096, -4096)
    a.sdiv(46, 47, S_SLOT, 7)
    a("s_and_b32 s48, s%d, 1" % S_XCD); a("s_add_u32 s46, s46, s48"); a("s_lshl_b32 s46, s46, 1"); a("s_add_u32 s46, s46, s47")
    a("s_bfe_u32 s47, s%d, 0x10001" % S_XCD); a("s_add_u32 s46, s46, s47"); a("s_and_b32 s47, s%d, 4" % S_XCD); a("s_lshl_b32 s47, s47, 1"); a("s_add_u32 s46, s46, s47")
    if "rot8" not in ABL: a.sdiv(47, 67, 46, 9)
    else:
        a("s_and_b32 s70, s46, 7"); a("s_mov_b32 s67, 0")
    def dma(sbuf):
        X = ["buffer_load_dwordx4 v%d, s[%d:%d], s68 offen offset:%d lds" % (10+j, R_A, R_A+3, 1024*j) for j in range(4)]
        W = ["buffer_load_dwordx4 v%d, s[%d:%d], s69 offen offset:%d lds" % (14+j, R_B, R_B+3, 1024*j) for j in range(4)]
        X[0] = "s_mov_b32 m0, s%d\ns_lshl_b32 s68, s67, 7\ns_add_u32 s68, s68, s54\n" % sbuf + X[0]
        X[1] = "s_mul_i32 s69, s67, %d\ns_add_u32 s69, s69, s55\n" % (64*3456) + X[1]
        X[2] = "s_add_u32 s67, s67, 1\ns_cmp_eq_u32 s67, 9\ns_cselect_b32 s67, %d, s67\n" % (0 if "rot8" not in ABL else 1) + X[2]
        W[0] = "s_add_u32 m0, s%d, 16384\ns_nop 0\n" % sbuf + W[0]
        return X + W
    for x in dma(56): a(x)
    a("s_add_u32 s56, s56, 32768")
    if "rot8" in ABL: a("s_add_u32 s67, s67, s70")
    if "p1touch" in ABL: touch_inputs(a, 224)
    a.stamp("p1_issue")
    a.srd(R_WS, S_WS, WS_END)
    touch_pages(a)
    a("v_lshrrev_b32 v30, 2, v%d" % V_R); a("v_and_b32 v31, 3, v%d" % V_R)
    a("v_lshl_add_u32 v32, v%d, 3, v30" % V_G); a("v_lshlrev_b32 v32, 8, v32"); a("v_lshl_add_u32 v32, v31, 3, v32")
    a("v_add_u32 v32, 16384, v32")
    a("v_and_b32 v33, 1, v%d" % V_G); a("v_lshl_add_u32 v33, v33, 2, v30")
    a("s_lshl_b32 s46, s53, 2"); a("s_lshl_b32 s47, s52, 1"); a("s_or_b32 s57, s46, s47")
    for t in range(4):
        a("s_xor_b32 s46, s57, %d" % t); a("v_xor_b32 v34, s46, v33"); a("v_lshl_add_u32 v%d, v34, 5, v32" % (20+t))
    a("v_lshrrev_b32 v30, 1, v%d" % V_R); a("v_xor_b32 v30, v30, v%d" % V_G); a("v_lshlrev_b32 v31, 7, v%d" % V_R)
    a("s_lshl_b32 s46, s52, 13"); a("s_lshl_b32 s47, s53, 12"); a("s_add_u32 s46, s46, s47"); a("s_xor_b32 s47, s46, 4096")
    a("v_lshl_add_u32 v32, v30, 4, v31"); a("v_xor_b32 v33, 64, v32")
    a("v_add_u32 v24, s46, v32"); a("v_add_u32 v25, s47, v32"); a("v_add_u32 v26, s46, v33"); a("v_add_u32 v27, s47, v33")
    ACC, CS, ST, ONE = 48, 112, 120, 140
    XB = (144, 160); WB = (176, 192)
    WA, XA = 28, 32
    for r in range(ACC, ONE): a("v_mov_b32 v%d, 0" % r)
    for r in range(4): a("v_mov_b32 v%d, s%d" % (ONE+r, S_ONES))
    def addr(sbase):
        return ["v_add_u32 v%d, %s, v%d" % (WA+i, sbase, 20+i) for i in range(8)]
    def reads(jj):
        o = []
        for T in range(4):
            o.append("ds_read_b128 v[%d:%d], v%d offset:%d" % (XB[jj]+4*T, XB[jj]+4*T+3, XA+2*jj+(T>>1), 2048*(T&1)))
            for hh in range(2):
                o.append("ds_read_b64_tr_b16 v[%d:%d], v%d offset:%d" % (WB[jj]+4*T+2*hh, WB[jj]+4*T+2*hh+1, WA+T, jj*8192+hh*1024))
        return o
    def mm(jj, swap):
        o = []
        for t in range(4):
            for T in range(4):
                d = ACC+16*t+4*T
                o.append(mfma(d, XB[jj]+4*T, WB[jj]+4*t, d) if swap else mfma(d, WB[jj]+4*t, XB[jj]+4*T, d))
            if t < 2:
                d = CS+4*t
                o.append(mfma(d, ONE, WB[jj]+4*t, d) if swap else mfma(d, WB[jj]+4*t, ONE, d))
            x = XB[jj]+4*(t>>1); d = ST+4*t
            o.append(mfma(d, x if t & 1 else ONE, x, d))
        return o
    for x in addr("0"): a(x)
    a("s_lshl_b32 s60, s51, 1"); a("s_add_u32 s60, s60, s53")
    a("s_lshl_b32 s46, s50, 1"); a("s_add_u32 s46, s46, s52"); a("s_lshl_b32 s46, s46, 1"); a("s_add_u32 s47, s46, s53")
    a("s_xor_b32 s46, s47, 1"); a("s_mul_i32 s65, s47, 2304"); a("s_mul_i32 s66, s46, 2304"); a("s_mov_b32 s64, %d" % HPSZ)
    a("s_mov_b32 s58, 0"); a("s_mov_b32 s59, 0")
    a("s_cmp_ge_u32 s51, 9"); a("s_cbranch_scc1 L_p1_v0")
    for swap in (0, 1):
        L = "L_p1_v" if swap else "L_p1_qk"
        a.label(L + "0")
        if not swap:
            a("s_mov_b32 s62, %d" % Q_OFF); a("s_cmp_ge_u32 s60, 9"); a("s_cselect_b32 s61, 144, 0"); a("s_cselect_b32 s62, %d, s62" % K_OFF)
            a("s_cselect_b32 s73, 1.0, %d" % f32(QS))
            a("s_lshl_b32 s63, s60, 4"); a("s_sub_u32 s63, s63, s61")
            for t in range(4):
                a("s_lshl_b32 s46, s52, 1"); a("s_xor_b32 s46, s46, %d" % t); a("s_lshl_b32 s46, s46, 2"); a("s_add_u32 s46, s46, s63")
                a("v_add_u32 v212, s46, v%d" % V_G)
                a("v_mul_u32_u24 v213, 7282, v212"); a("v_lshrrev_b32 v213, 16, v213")
                a("v_mul_u32_u24 v214, 9, v213"); a("v_sub_u32 v212, v212, v214")
                a("v_cmp_lt_u32 vcc, 4, v212"); a("v_subb_co_u32 v214, vcc, v212, 0, vcc")
                a("v_cmp_eq_u32 vcc, 4, v212"); a("v_cndmask_b32 v214, v214, 8, vcc")
                a("v_mul_lo_u32 v213, v213, s64"); a("v_lshl_add_u32 v213, v214, 8, v213"); a("v_lshl_add_u32 v%d, v%d, 4, v213" % (208+t, V_R))
        else:
            a("s_mov_b32 s62, %d" % V_OFF); a("s_sub_u32 s63, s60, 18"); a("s_lshl_b32 s63, s63, 6")
            for t in range(4):
                a("s_lshl_b32 s46, s52, 1"); a("s_xor_b32 s46, s46, %d" % t); a("s_lshl_b32 s46, s46, 4"); a("s_add_u32 s46, s46, s63")
                a("v_add_u32 v212, s46, v%d" % V_R)
                a("v_mul_u32_u24 v213, 1821, v212"); a("v_lshrrev_b32 v213, 16, v213")
                a("v_mul_u32_u24 v214, 36, v213"); a("v_sub_u32 v212, v212, v214")
                a("v_lshl_add_u32 v214, v%d, 4, v212" % V_G)
                a("v_add_u32 v215, 44, v214")
                a("v_cmp_lt_u32 vcc, 19, v212"); a("v_cndmask_b32 v214, v214, v215, vcc")
                a("v_lshl_add_u32 v215, v212, 2, v%d" % V_G); a("v_add_u32 v215, 64, v215")
                a("v_lshrrev_b32 v212, 2, v212"); a("v_cmp_eq_u32 vcc, 4, v212"); a("v_cndmask_b32 v214, v214, v215, vcc")
                a("v_mul_lo_u32 v213, v213, s64"); a("v_lshl_add_u32 v%d, v214, 4, v213" % (208+t))
        a("s_add_u32 s65, s65, s62"); a("s_add_u32 s66, s66, s62")
        for x in dma(56): a(x)
        a("s_add_u32 s56, s56, 32768")
        if "burn" in ABL:
            for r in range(224, 240): a("v_mul_lo_u32 v%d, v%d, s64" % (r, 208 + (r & 3))); a("v_and_b32 v%d, 0xbfffbfff, v%d" % (r, r))
            Lb = a.newlabel("Lburn"); a("s_mov_b32 s75, 9"); a.label(Lb)
            for q in range(16): a(mfma(240+4*(q & 1), 224+4*(q & 3), 224+4*((q >> 2) & 3), 240+4*(q & 1)))
            a("s_sub_u32 s75, s75, 1"); a("s_cmp_lg_u32 s75, 0"); a("s_cbranch_scc1 %s" % Lb)
        a("s_waitcnt vmcnt(8)"); a("s_barrier")
        a.stamp("p1_first")
        for x in reads(0): a(x)
        a.label(L)
        a("s_cmp_ge_u32 s58, 7"); a("s_cbranch_scc1 %s_n" % L)
        for dm in (1, 0):
            d = dma(56) if (dm and "p1nodma" not in ABL) else []
            m = mm(0, swap)
            a("s_waitcnt lgkmcnt(0)")
            interleave(a, m[:14], reads(1))
            interleave(a, m[14:], d[:4])
            a("s_add_u32 s58, s58, 1")
            a("s_add_u32 s59, s59, 32768"); a("s_cmp_eq_u32 s59, 163840"); a("s_cselect_b32 s59, 0, s59")
            a("s_waitcnt vmcnt(%d) lgkmcnt(0)" % (4 if dm else 0))
            a("s_barrier")
            m = mm(1, swap); ad = addr("s59")
            interleave(a, m[:3], ad[4:6] + ad[0:4])
            interleave(a, m[3:15], reads(0) + ad[6:8])
            interleave(a, m[15:], d[4:])
            if dm:
                a("s_add_u32 s56, s56, 32768"); a("s_cmp_ge_u32 s56, 163840"); a("s_cselect_b32 s46, 163840, 0"); a("s_sub_u32 s56, s56, s46")
                a("s_branch %s" % L)
                a.label(L + "_n")
            else:
                a("s_cmp_lt_u32 s58, 9"); a("s_cbranch_scc1 %s_n" % L)
        a.stamp("p1_loop")
        a("s_waitcnt lgkmcnt(0)")
        a("v_and_b32 v40, 1, v%d" % V_R); a("v_cmp_eq_u32 s[74:75], 1, v40")
        a("v_and_b32 v40, 2, v%d" % V_R); a("v_cmp_eq_u32 s[76:77], 2, v40")
        a("v_lshrrev_b32 v40, 2, v%d" % V_R); a("v_cmp_eq_u32 s[78:79], v40, v%d" % V_G)
        a("s_mov_b32 s46, %d" % f32(1.0/576)); a("s_mov_b32 s47, %d" % f32(1e-5))
        for T in range(2):
            s_, q_ = ST+8*T, ST+8*T+4
            a("v_cndmask_b32 v%d, v%d, v%d, s[74:75]" % (q_, q_, q_+1)); a("v_cndmask_b32 v%d, v%d, v%d, s[74:75]" % (q_+2, q_+2, q_+3))
            a("v_mul_f32 v%d, s46, v%d" % (s_, s_))
            a("v_cndmask_b32 v%d, v%d, v%d, s[76:77]" % (q_, q_, q_+2))
            a("v_mul_f32 v42, v%d, v%d" % (s_, s_))
            a("v_fma_f32 v%d, v%d, s46, -v42" % (q_, q_)); a("v_max_f32 v%d, 0, v%d" % (q_, q_)); a("v_add_f32 v%d, s47, v%d" % (q_, q_))
            a("v_rsq_f32 v%d, v%d" % (36+2*T, q_)); a("v_mul_f32 v%d, v%d, -v%d" % (37+2*T, 36+2*T, s_))
        a("s_lshl_b32 s46, s52, 9"); a("s_lshl_b32 s47, s53, 8"); a("s_add_u32 s46, s46, s47")
        a("v_lshl_add_u32 v40, v%d, 3, s46" % V_R)
        a("s_mov_b64 exec, s[78:79]")
        a("ds_write_b64 v40, v[36:37]"); a("ds_write_b64 v40, v[38:39] offset:128")
        a("s_mov_b64 exec, -1")
        a("s_lshl_b32 s47, s57, 6")
        if not swap:
            a("v_lshl_add_u32 v41, v%d, 4, s47" % V_G)
            a("ds_write_b128 v41, v[%d:%d] offset:1024" % (CS, CS+3)); a("ds_write_b128 v41, v[%d:%d] offset:1088" % (CS+4, CS+7))
        else:
            a("v_lshl_add_u32 v41, v%d, 2, s47" % V_R)
            a("ds_write_b32 v41, v%d offset:1024" % CS); a("ds_write_b32 v41, v%d offset:1088" % (CS+4))
        a("s_waitcnt lgkmcnt(0)"); a("s_barrier")
        Ls = L + "_s"
        a("v_mov_b32 v36, 0")
        a("s_cmp_ge_u32 s60, 27"); a("s_cbranch_scc1 %s" % Ls)
        a("v_xor_b32 v42, 256, v40"); a("v_xor_b32 v43, 128, v41")
        if not swap:
            RS, CC = 144, 160
            a("ds_read_b64 v[%d:%d], v40" % (RS, RS+1)); a("ds_read_b64 v[%d:%d], v40 offset:128" % (RS+2, RS+3))
            a("ds_read_b64 v[%d:%d], v42" % (RS+4, RS+5)); a("ds_read_b64 v[%d:%d], v42 offset:128" % (RS+6, RS+7))
            for t in range(4):
                a("ds_read_b128 v[%d:%d], v%d offset:%d" % (CC+4*t, CC+4*t+3, 41 if t < 2 else 43, 1024+64*(t&1)))
            a("s_waitcnt lgkmcnt(0)")
            for T in range(4): a("v_pk_mul_f32 v[%d:%d], v[%d:%d], s[72:73] op_sel:[0,1] op_sel_hi:[1,1]" % (RS+2*T, RS+2*T+1, RS+2*T, RS+2*T+1))
            for t in range(4):
                for T in range(4):
                    d = ACC+16*t+4*T
                    for h in range(2):
                        a("v_pk_mul_f32 v[216:217], v[%d:%d], v[%d:%d] op_sel:[0,1] op_sel_hi:[1,1]" % (CC+4*t+2*h, CC+4*t+2*h+1, RS+2*T, RS+2*T+1))
                        a("v_pk_fma_f32 v[%d:%d], v[%d:%d], v[%d:%d], v[216:217] op_sel_hi:[1,0,1]" % (d+2*h, d+2*h+1, d+2*h, d+2*h+1, RS+2*T, RS+2*T+1))
                    e = ACC+16*t+8*(T>>1)+2*(T&1)
                    for h in range(2): a("v_max3_f32 v36, |v%d|, |v%d|, v36" % (d+2*h, d+2*h+1))
                    a("v_cvt_pk_bf16_f32 v%d, v%d, v%d" % (e, d, d+1)); a("v_cvt_pk_bf16_f32 v%d, v%d, v%d" % (e+1, d+2, d+3))
                    if T & 1:
                        a("buffer_store_dwordx4 v[%d:%d], v%d, s[%d:%d], s%d offen sc1" % (e-2, e+1, 208+t, R_WS, R_WS+3, 65+(T>>1)))
        else:
            RS, CC = 144, 176
            a("v_lshl_add_u32 v40, v%d, 5, s46" % V_G); a("v_xor_b32 v42, 256, v40")
            for T in range(4):
                for h in range(2):
                    a("ds_read_b128 v[%d:%d], v%d offset:%d" % (RS+8*T+4*h, RS+8*T+4*h+3, 40 if T < 2 else 42, 128*(T&1)+16*h))
            for t in range(4):
                a("ds_read_b32 v%d, v%d offset:%d" % (CC+t, 41 if t < 2 else 43, 1024+64*(t&1)))
            a("s_waitcnt lgkmcnt(0)")
            for t in range(4):
                for T in range(4):
                    d = ACC+16*t+4*T
                    for i in range(4):
                        a("v_mul_f32 v%d, v%d, v%d" % (216+i, RS+8*T+2*i+1, CC+t))
                    for i in range(4):
                        a("v_fma_f32 v%d, v%d, v%d, v%d" % (d+i, d+i, RS+8*T+2*i, 216+i))
                    e = ACC+16*t+8*(T>>1)+2*(T&1)
                    for h in range(2): a("v_max3_f32 v36, |v%d|, |v%d|, v36" % (d+2*h, d+2*h+1))
                    a("v_cvt_pk_bf16_f32 v%d, v%d, v%d" % (e, d, d+1)); a("v_cvt_pk_bf16_f32 v%d, v%d, v%d" % (e+1, d+2, d+3))
                    if T & 1:
                        a("buffer_store_dwordx4 v[%d:%d], v%d, s[%d:%d], s%d offen sc1" % (e-2, e+1, 208+t, R_WS, R_WS+3, 65+(T>>1)))
        a.label(Ls)
        if not swap: a("s_branch L_p1_pub")
    a.label("L_p1_pub")
    a.xg_reduce(36, 37, "v_max_f32")
    for r in (8, 4, 2, 1): a("v_max_f32_dpp v36, v36, v36 row_ror:%d row_mask:0xf bank_mask:0xf" % r)
    a("s_lshl_b32 s46, s%d, 2" % S_WAVE); a("v_mov_b32 v37, s46"); a("ds_write_b32 v37, v36 offset:2048")
    if "d_p1" in ABL: a("s_sleep 64")
    a.stamp("p1_stores")
    L = a.newlabel("Lp1f")
    a("s_cmp_lg_u32 s%d, 0" % S_WAVE); a("s_cbranch_scc1 %s_a" % L)
    a.get_nonce(36)
    a.label(L + "_a")
    a("s_waitcnt vmcnt(0) lgkmcnt(0)"); a("s_barrier")
    a("s_cmp_lg_u32 s%d, 0" % S_WAVE); a("s_cbranch_scc1 L_p1_done")
    a("v_mov_b32 v38, 0"); a("ds_read_b128 v[40:43], v38 offset:2048")
    a("s_lshl_b32 s46, s50, 4"); a("s_add_u32 s46, s46, s51"); a("s_lshl_b32 s46, s46, 7"); a("s_add_u32 s46, s46, %d" % (FLAG0 + 128*F1))
    a("v_mov_b32 v36, s%d" % S_NONCE); a("s_mov_b64 exec, 1"); a("s_waitcnt lgkmcnt(0)")
    a("v_max3_f32 v37, v40, v41, v42"); a("v_max_f32 v37, v37, v43")
    a("buffer_store_dwordx2 v[36:37], v38, s[%d:%d], s46 offen sc1" % (R_WS, R_WS+3))
    a("s_mov_b64 exec, -1")
    a("s_branch L_p1_done")
    a.label("L_p1_helper")
    if "d_h1" in ABL: a("s_sleep 64")
    swizzle_setup(a)
    a("s_lshl_b32 s48, s%d, 2" % S_XCD); a("s_add_u32 s48, s48, s%d" % S_SLOT); a("s_sub_u32 s48, s48, 28")
    a("s_waitcnt lgkmcnt(0)")
    if WSOFF: a("s_add_u32 s24, s24, %d" % WSOFF); a("s_addc_u32 s25, s25, 0")
    a.srd(R_WS, S_WS, WS_END)
    publish_nonce(a)
    a("s_add_u32 s49, s48, 32"); a("s_cmp_lt_u32 s49, 54"); a("s_cselect_b32 s49, s49, s48")
    B = 36864
    mark_setup(a)
    if MK0: mark_fill(a, MK0)
    sw_issue(a, 48, 0, 0); sw_issue(a, 49, 1, B)
    if MK1: mark_fill(a, MK1)
    a("s_waitcnt vmcnt(0)"); a("s_barrier")
    sw_process(a, 0, 0); sw_process(a, 1, B)
    L = a.newlabel("Lhn"); a("s_cmp_lg_u32 s%d, 0" % S_WAVE); a("s_cbranch_scc1 %s" % L); a.get_nonce(36); a.label(L)
    a("s_waitcnt vmcnt(0)"); a("s_barrier")
    sw_flags(a, (0, 1))
    a.stamp("h_small")
    if MK0 + MK1 < MKG: mark_fill(a, MKG - MK0 - MK1)
    a("s_waitcnt vmcnt(0)"); a("s_barrier")
    sw_flags(a, (), mark=True)
    a.label("L_p1_done")
    a.stamp("p1_done")

def generate(stop=99, stamps=False):
    a = G(stop, stamps)
    prologue(a)
    phase1(a)
    from phases import phase2, phase345, phase6
    if stop >= 2: phase2(a)
    if stop >= 3: phase345(a)
    if stop >= 6: phase6(a)
    a.label("L_fin")
    a.stamp_out()
    a.label("L_end")
    a("s_endpgm")
    for x in a.stubs: a(x)
    a.label("L_last")
    body, nops = fix_hazards(a.lines)
    return body, nops

HEADER = """; Fused transformer block (LN, QKV, sliding-window attention, Wo, shift-MLP, channel MLP) as one persistent kernel.
; 256 workgroups of 4 waves, one per CU; phases hand data over through d_ws with write-through stores and flags.
; @launch grid=(256,1,1) block=(256,1,1) lds=163840
.amdgcn_target "amdgcn-amd-amdhsa--gfx950"
.text
.globl %s
.p2align 8
.type %s,@function
%s:
""" % (KN, KN, KN)
FOOTER = """.section .rodata,"a"
.p2align 6
.amdhsa_kernel %s
  .amdhsa_next_free_vgpr 512
  .amdhsa_next_free_sgpr 102
  .amdhsa_accum_offset 256
  .amdhsa_group_segment_fixed_size 0
  .amdhsa_kernarg_size 88
  .amdhsa_user_sgpr_count 2
  .amdhsa_user_sgpr_kernarg_segment_ptr 1
  .amdhsa_system_sgpr_workgroup_id_x 1
.end_amdhsa_kernel
""" % KN

def main():
    import argparse
    p = argparse.ArgumentParser()
    p.add_argument("--stop", type=int, default=99); p.add_argument("--stamps", default=""); p.add_argument("--wsoff", type=int, default=0); p.add_argument("--rt", action="store_true")
    p.add_argument("-o", default="k.s")
    o = p.parse_args()
    global WSOFF, CLK
    if o.rt: CLK = 's_memrealtime'
    WSOFF = o.wsoff << 20
    st = STAMPSETS.get(o.stamps, o.stamps.split(',')) if o.stamps else None
    if st:
        st = ['start'] + list(st) + ['end']; assert len(st) <= 16
        open(o.o[:-2] + '.stamps', 'w').write(','.join(st))
    body, nops = generate(o.stop, st)
    text = HEADER + "\n".join(("" if l.endswith(":") else "  ") + l for l in body) + "\n" + FOOTER
    open(o.o, "w").write(text)
    build(o.o, o.o[:-2] + ".co", KN)
    n = sum(1 for l in body if l and not l.endswith(":"))
    print("instructions", n, "nop states added", nops)
    seen = set()
    for nm, takes in TRACES.items():
        errs = check_waits(body, takes)
        for e in errs[:4]:
            if e not in seen: print("WAIT[%s]" % nm, e); seen.add(e)

STAMPSETS = {
 "all": "p1_first p1_loop p1_done p2_ready p2_loaded p2_done p3_ready p4_ready p5_ready p5_done p6_ready p6_x p6_a p6_b".split(),
 "p1": "p1_issue p1_first p1_loop p1_stores p1_done p2_ready p2_loaded p2_done p3_ready p4_ready p5_ready p5_done p6_ready p6_x".split(),
 "p3k": "p2_done p3_ready p3_k0 p3_k9 p3_gemm p4_ready p4_k0 p4_k9 p4_gemm p5_ready p5_k0 p5_k9 p5_gemm".split(),
 "hop": "p1_stores p1_done p2_ready p2_loaded p2_done p3_ready p3_epi p4_ready p4_epi p5_ready p5_epi p6_ready p6_x p6_b".split(),
 "p6": "p6_x p6_p0 p6_a p6_s0 p6_s1 p6_s5 p6_s6 p6_s7 p6_b p7_ready".split(),
 "h": "h_small p1_stores p1_done p2_setup p2_ready p2_loaded p2_done".split(),
 "p4k": "p3_k0 p3_k9 p3_gemm p3_epi p4_ready p4_k0 p4_k9 p4_gemm p4_epi p5_ready p5_k0 p5_k9 p5_gemm p5_epi".split(),
 "p6x": "p2_done h_w3 h_w4 p5_gemm p5_epi p5_done p6_ready p6_st p6_x9 p6_x17 p6_x p6_p0".split(),
 "crit": "p1_done p2_loaded p2_done h_w3 h_w4 p5_epi p6_ready p6_st p6_x p6_a p6_s6 p6_s7 p6_b".split(),
 "p3": "p2_done p3_dma p3_drain p3_ready p3_gemm p3_epi p4_dma p4_drain p4_ready p4_gemm p4_epi p5_drain p5_ready p5_gemm".split(),
}
TRACES = {"w012": {"L_p7_main": True, "L_p1_qk_n": [False,True,False]}, "h3": {"L_p3_helper": True, "L_p1_qk_n": [False,True,False]}, "slow": {"L_p2_slow": True, "L_p1_qk_n": [False,True,False]}, "edge": {"L_p2_edge": True, "L_p1_qk_n": [False,True,False]}, "qk": {"L_p1_qk_n": [False,False,True,True,False]}, "v": {"L_p1_v0": True, "L_p1_v_n": [False,False,True,True,False]}, "helper": {"L_p1_helper": True}}

if __name__ == "__main__":
    sys.modules["gen"] = sys.modules["__main__"]
    main()
```

```python
import sys, os, struct, math
sys.path.insert(0, "dev"); sys.path.insert(0, "bak2")
from asmlib import Asm, build
from hazard import fix_hazards, check_waits

NAME = "sequential_preLN__sliding_block__mixer_s_mlp__prompt"
KN = NAME + "_kernel"

ACT = 2048*576*2
SW  = 576*576*2
BW  = 576*4608*2
FLAG0 = 128
F1, FS, F2, F3, F4, F5, FA, FB = 0, 256, 640, 896, 1152, 1408, 1664, 2688
TS_OFF = 0x80000
Q_OFF  = 0x90000
K_OFF  = Q_OFF + ACT
V_OFF  = K_OFF + ACT
O_OFF  = V_OFF + ACT
H_OFF  = O_OFF + ACT
SH_OFF = H_OFF + ACT
T_OFF  = SH_OFF + 98304
X1_OFF = T_OFF + ACT
SX_OFF = X1_OFF + ACT
WO_S   = SX_OFF + 98304
W1_S   = WO_S + SW
W2_S   = W1_S + SW
W3_S   = W2_S + SW
W4_S   = W3_S + BW
PART   = W4_S + BW
WS_END = PART + 32*9*8*8192
FP_OFF = 0x7F000
FP2_OFF = FP_OFF + 1024
MARK_N = T_OFF - O_OFF
MKG = 19
MARK_W = 2048*MKG
assert 128*MARK_W >= MARK_N and 1024*5120 >= WO_S - T_OFF
HPSZ   = 147456

WSOFF = 0
MK0 = int(os.environ.get('MK0', 0))
MK1 = int(os.environ.get('MK1', 0))
THR = int(os.environ.get('THR', 0))
NW3 = int(os.environ.get('NW3', 0))
ABL = os.environ.get('ABL', '').split(',')
CLK = 's_memtime'
def f32(x): return struct.unpack("<I", struct.pack("<f", x))[0]
def magic(d): return (1 << 32)//d + 1

S_X, S_WQKV, S_WO = 4, 6, 8
S_W1, S_W2, S_W3, S_W4 = 12, 14, 16, 18
S_OUT, S_DBG, S_WS = 20, 22, 24
R_WS, R_A, R_B = 28, 32, 36
S_WAVE, S_XCD, S_SLOT, S_NONCE = 40, 41, 42, 43
S_ONES = 44
V_LANE, V_R, V_G, V_L16 = 1, 2, 3, 4

class G(Asm):
    def __init__(s, stop=99, stamps=False):
        super().__init__()
        s.stop = stop; s.stamps = stamps; s.stubs = []
    def srd(a, d, p, size, add=0):
        if add >= 0:
            a("s_add_u32 s%d, s%d, %s" % (d, p, add)); a("s_addc_u32 s%d, s%d, 0" % (d+1, p+1))
        else:
            a("s_sub_u32 s%d, s%d, %d" % (d, p, -add)); a("s_subb_u32 s%d, s%d, 0" % (d+1, p+1))
        a("s_mov_b32 s%d, %d" % (d+2, size)); a("s_mov_b32 s%d, 0x20000" % (d+3))
    def srd_s(a, d, p, size, sreg):
        a("s_add_u32 s%d, s%d, s%d" % (d, p, sreg)); a("s_addc_u32 s%d, s%d, 0" % (d+1, p+1))
        a("s_mov_b32 s%d, %d" % (d+2, size)); a("s_mov_b32 s%d, 0x20000" % (d+3))
    def sdiv(a, q, r, x, d):
        a("s_mul_hi_u32 s%d, s%d, %d" % (q, x, magic(d)))
        if r is not None:
            a("s_mul_i32 s%d, s%d, %d" % (r, q, d)); a("s_sub_u32 s%d, s%d, s%d" % (r, x, r))
    def jitter(a):
        L = a.newlabel("Ljit")
        a("s_memrealtime s[98:99]"); a("s_waitcnt lgkmcnt(0)")
        a("s_mul_i32 s98, s98, 0x9E3779B1"); a("s_mul_i32 s99, s2, 0x85EBCA6B"); a("s_add_u32 s98, s98, s99"); a("s_mul_i32 s99, s%d, 0x27D4EB2F" % S_WAVE)
        a("s_add_u32 s98, s98, s99"); a("s_lshr_b32 s99, s98, 29"); a("s_lshr_b32 s98, s98, 20"); a("s_and_b32 s98, s98, 127")
        a("s_cmp_lt_u32 s99, 5"); a("s_cselect_b32 s98, 0, s98")
        a.label(L)
        a("s_cmp_eq_u32 s98, 0"); a("s_cbranch_scc1 %s_x" % L); a("s_sleep 1"); a("s_sub_u32 s98, s98, 1"); a("s_branch %s" % L)
        a.label(L + "_x")
    def stamp(a, name):
        if "jitter" in ABL and name not in ("start", "end"): a.jitter()
        if not a.stamps or name not in a.stamps: return
        k = a.stamps.index(name)
        a("%s s[98:99]" % CLK); a("s_waitcnt lgkmcnt(0)"); a("s_mov_b32 s%d, s98" % (80+k))
    def stamp_out(a):
        if not a.stamps: return
        a.stamp("end")
        a("s_lshl_b32 s98, s2, 2"); a("s_add_u32 s98, s98, s%d" % S_WAVE); a("s_lshl_b32 s98, s98, 6"); a("s_add_u32 s98, s98, %d" % TS_OFF)
        a("v_mov_b32 v255, 0")
        for k in range(16):
            a("v_mov_b32 v254, s%d" % (80+k))
            a("buffer_store_dword v254, v255, s[%d:%d], s98 offen offset:%d" % (R_WS, R_WS+3, 4*k))
            a("s_nop 1")
    def xg_reduce(a, v, t, op="v_add_f32"):
        for sw in ("v_permlane32_swap_b32", "v_permlane16_swap_b32"):
            a("v_mov_b32 v%d, v%d" % (t, v)); a("%s v%d, v%d" % (sw, v, t)); a("%s v%d, v%d, v%d" % (op, v, v, t))
    def get_nonce(a, vt):
        L = a.newlabel("Lnon")
        a("s_mov_b32 s46, 200000"); a("v_mov_b32 v%d, 0" % (vt+2))
        a.label(L)
        a("global_load_dwordx2 v[%d:%d], v%d, s[%d:%d] sc1" % (vt, vt+1, vt+2, S_DBG, S_DBG+1))
        a("s_waitcnt vmcnt(0)")
        a("v_readfirstlane_b32 s47, v%d" % (vt+1)); a("v_readfirstlane_b32 s%d, v%d" % (S_NONCE, vt))
        a("s_sub_u32 s46, s46, 1"); a("s_cbranch_scc1 %s_x" % L)
        a("s_cmp_eq_u32 s47, 0"); a("s_cbranch_scc1 %s" % L)
        a.label(L + "_x")
    def set_flag(a, sidx, vt):
        a("s_lshl_b32 s%d, s%d, 7" % (sidx, sidx)); a("s_add_u32 s%d, s%d, %d" % (sidx, sidx, FLAG0))
        a("v_mov_b32 v%d, s%d" % (vt, S_NONCE)); a("v_mov_b32 v%d, 0" % (vt+1))
        a("s_mov_b64 exec, 1")
        a("buffer_store_dword v%d, v%d, s[%d:%d], s%d offen sc1" % (vt, vt+1, R_WS, R_WS+3, sidx))
        a("s_mov_b64 exec, -1")
    def set_mark(a, vt, off):
        a("s_lshl_b32 s46, s2, 2"); a("s_add_u32 s46, s46, %d" % off)
        a("v_mov_b32 v%d, s%d" % (vt, S_NONCE)); a("v_mov_b32 v%d, 0" % (vt+1))
        a("s_mov_b64 exec, 1")
        a("buffer_store_dword v%d, v%d, s[%d:%d], s46 offen sc1" % (vt, vt+1, R_WS, R_WS+3))
        a("s_mov_b64 exec, -1")
    def poll(a, vidx, vt, sleep0=6, sleep=2, two=False):
        L = a.newlabel("Lpoll")
        a("v_lshlrev_b32 v%d, 7, v%d" % (vidx, vidx))
        a("s_mov_b32 s46, 100000")
        if sleep0: a("s_sleep %d" % sleep0)
        a.label(L)
        if two: a("buffer_load_dwordx2 v[%d:%d], v%d, s[%d:%d], 0 offen offset:%d sc1" % (vt, vt+1, vidx, R_WS, R_WS+3, FLAG0))
        else: a("buffer_load_dword v%d, v%d, s[%d:%d], 0 offen offset:%d sc1" % (vt, vidx, R_WS, R_WS+3, FLAG0))
        a("s_waitcnt vmcnt(0)")
        a("v_cmp_ne_u32 vcc, s%d, v%d" % (S_NONCE, vt))
        a("s_cbranch_vccz %s_x" % L)
        a("s_sleep %d" % sleep)
        a("s_sub_u32 s46, s46, 1"); a("s_cbranch_scc0 %s" % L)
        a.label(L + "_x")

def mfma(d, A, B, C=None, ta="v", tb="v", td="v"):
    c = "0" if C is None else "%s[%d:%d]" % (td, C, C+3)
    return "v_mfma_f32_16x16x32_bf16 %s[%d:%d], %s[%d:%d], %s[%d:%d], %s" % (td, d, d+3, ta, A, A+3, tb, B, B+3, c)

def interleave(a, main, fill, start=0):
    n = len(main) - start; k = 0
    for i, m in enumerate(main):
        a(m)
        if i >= start:
            upto = (len(fill)*(i-start+1) + n - 1)//n
            while k < upto: a(fill[k]); k += 1

def prologue(a):
    a("s_cmp_ge_u32 s2, 256"); a("s_cbranch_scc1 L_end")
    a("s_load_dwordx4 s[4:7], s[0:1], 0")
    a("s_load_dwordx2 s[24:25], s[0:1], 80")
    a("s_load_dwordx2 s[8:9], s[0:1], 16")
    a("s_load_dwordx8 s[12:19], s[0:1], 32")
    a("s_load_dwordx4 s[20:23], s[0:1], 64")
    a("v_and_b32 v%d, 63, v0" % V_LANE)
    a("v_lshrrev_b32 v5, 6, v0")
    a("v_and_b32 v%d, 15, v0" % V_R)
    a("v_readfirstlane_b32 s%d, v5" % S_WAVE)
    a("v_lshrrev_b32 v%d, 4, v%d" % (V_G, V_LANE))
    a("v_lshlrev_b32 v%d, 4, v%d" % (V_L16, V_LANE))
    if "antiloc" in ABL:
        a("s_lshr_b32 s46, s2, 5"); a("s_and_b32 s47, s2, 31"); a("s_lshl_b32 s47, s47, 3"); a("s_or_b32 s2, s46, s47")
    a("s_and_b32 s%d, s2, 7" % S_XCD); a("s_lshr_b32 s%d, s2, 3" % S_SLOT)
    a("s_mov_b32 s%d, 0x3f803f80" % S_ONES)
    if "nopf" not in ABL:
        a("s_getpc_b64 s[46:47]")
        a.label("L_pc")
        a("s_mul_i32 s48, s%d, %d" % (S_SLOT, 20*128)); a("v_lshl_add_u32 v5, v0, 7, s48")
        a("v_cmp_gt_u32 vcc, 20, v0"); a("s_mov_b32 s48, L_last-L_pc"); a("v_cmp_gt_u32 s[48:49], s48, v5"); a("s_and_b64 vcc, vcc, s[48:49]")
        a("s_and_saveexec_b64 s[48:49], vcc"); a("s_cbranch_execz L_pcd")
        a("global_load_dword v253, v5, s[46:47]")
        a.label("L_pcd")
        a("s_mov_b64 exec, -1")
    if a.stamps:
        for k in range(16): a("s_mov_b32 s%d, 0" % (80+k))
        a.stamp("start")

def publish_nonce(a):
    L = a.newlabel("Lpn")
    a("s_xor_b32 s46, s2, 224"); a("s_or_b32 s46, s46, s%d" % S_WAVE); a("s_cmp_lg_u32 s46, 0"); a("s_cbranch_scc1 %s" % L)
    a("v_mov_b32 v252, 0")
    a("buffer_load_dword v250, v252, s[%d:%d], 0 offen sc1" % (R_WS, R_WS+3))
    a("s_mov_b32 s46, 0x9E3779B1")
    a("s_waitcnt vmcnt(0)")
    a("v_mul_lo_u32 v250, v250, s46"); a("v_add_u32 v250, 0x7F4A7C15, v250"); a("v_mov_b32 v251, 1")
    a("s_mov_b64 exec, 1")
    a("buffer_store_dword v250, v252, s[%d:%d], 0 offen sc1" % (R_WS, R_WS+3))
    a("global_store_dwordx2 v252, v[250:251], s[%d:%d] sc1" % (S_DBG, S_DBG+1))
    a("s_mov_b64 exec, -1")
    a.label(L)

def swizzle_setup(a):
    for i in range(9):
        a("v_add_u32 v40, %d, v%d" % (64*i, V_LANE))
        a("v_mul_u32_u24 v%d, 911, v40" % (10+i)); a("v_lshrrev_b32 v%d, 16, v%d" % (10+i, 10+i))
        a("v_mul_u32_u24 v41, 72, v%d" % (10+i)); a("v_sub_u32 v41, v40, v41"); a("v_lshlrev_b32 v%d, 4, v41" % (20+i))
    a("v_lshrrev_b32 v40, 2, v%d" % V_R); a("v_lshl_add_u32 v40, v%d, 3, v40" % V_G); a("v_mul_u32_u24 v40, 1152, v40")
    a("v_and_b32 v41, 3, v%d" % V_R); a("v_lshl_add_u32 v30, v41, 4, v40")
    a("s_lshr_b32 s46, s%d, 1" % S_WAVE); a("s_lshl_b32 s46, s46, 6"); a("s_and_b32 s47, s%d, 1" % S_WAVE); a("s_lshl_b32 s47, s47, 3")
    a("s_add_u32 s46, s46, s47"); a("v_add_u32 v30, s46, v30")

def sw_decode(a, su, p):
    Ln = a.newlabel("Lsw")
    D = 60+3*p
    a("s_cmp_ge_u32 s%d, 54" % su); a("s_cbranch_scc1 %s_big" % Ln)
    a.sdiv(51, 52, su, 18)
    a("s_cmp_eq_u32 s51, 1"); a("s_cselect_b32 s54, s%d, s%d" % (S_W1, S_W2)); a("s_cselect_b32 s55, s%d, s%d" % (S_W1+1, S_W2+1))
    a("s_cmp_eq_u32 s51, 0"); a("s_cselect_b32 s54, s%d, s54" % S_WO); a("s_cselect_b32 s55, s%d, s55" % (S_WO+1))
    a("s_mul_i32 s%d, s51, %d" % (D, SW)); a("s_add_u32 s%d, s%d, %d" % (D, D, WO_S))
    a("s_mul_i32 s53, s%d, 18432" % S_WAVE); a("s_add_u32 s%d, s%d, s53" % (D, D))
    a("s_mov_b32 s%d, 73728" % (D+1))
    a("s_lshl_b32 s56, s52, 5"); a("s_lshl_b32 s53, s%d, 3" % S_WAVE); a("s_add_u32 s56, s56, s53")
    a("s_mov_b32 s57, 0"); a("s_mov_b32 s59, 1152")
    a("s_cmp_lg_u32 s51, 0"); a("s_cbranch_scc1 %s_j" % Ln)
    a("s_mul_i32 s56, s52, 36"); a("s_lshl_b32 s53, s%d, 2" % S_WAVE); a("s_add_u32 s56, s56, s53"); a("s_mov_b32 s57, 16")
    a("s_cmp_lt_u32 s52, 16"); a("s_cbranch_scc1 %s_j" % Ln)
    a("s_sub_u32 s56, s52, 16"); a("s_lshl_b32 s56, s56, 2"); a("s_add_u32 s56, s56, s%d" % S_WAVE)
    a("s_mul_i32 s56, s56, 72"); a("s_add_u32 s56, s56, 16"); a("s_mov_b32 s57, 32")
    a("s_branch %s_j" % Ln)
    a.label(Ln + "_big")
    sw_big(a, su, D)
    a("s_lshl_b32 s56, s52, 5"); a("s_lshl_b32 s53, s%d, 3" % S_WAVE); a("s_add_u32 s56, s56, s53"); a("s_mov_b32 s57, 0")
    a("s_cmp_ge_u32 s51, 8"); a("s_cbranch_scc1 %s_w4" % Ln)
    a("s_mul_i32 s53, s51, 1152"); a("s_add_u32 s54, s%d, s53" % S_W3); a("s_addc_u32 s55, s%d, 0" % (S_W3+1)); a("s_mov_b32 s59, 9216")
    a("s_branch %s_j" % Ln)
    a.label(Ln + "_w4")
    a("s_sub_u32 s53, s51, 8"); a("s_mul_i32 s53, s53, %d" % SW); a("s_add_u32 s54, s%d, s53" % S_W4); a("s_addc_u32 s55, s%d, 0" % (S_W4+1)); a("s_mov_b32 s59, 1152")
    a.label(Ln + "_j")
    a("s_lshl_b32 s53, s52, 10"); a("s_add_u32 s%d, s%d, s53" % (D, D))
    a("s_add_u32 s%d, s%d, %d" % (D+2, su, FS))

def sw_big(a, su, D):
    a("s_sub_u32 s53, s%d, 54" % su); a.sdiv(51, 52, 53, 18)
    a("s_mul_i32 s%d, s51, %d" % (D, 4*9*18432)); a("s_add_u32 s%d, s%d, %d" % (D, D, W3_S))
    a("s_mul_i32 s53, s%d, %d" % (S_WAVE, 9*18432)); a("s_add_u32 s%d, s%d, s53" % (D, D))
    a("s_mov_b32 s%d, 18432" % (D+1))

def sw_issue(a, su, p, lds):
    sw_decode(a, su, p)
    a("s_mov_b32 s%d, s54" % R_A); a("s_mov_b32 s%d, s55" % (R_A+1))
    a("s_mul_i32 s%d, s59, 575" % (R_A+2)); a("s_add_u32 s%d, s%d, 1152" % (R_A+2, R_A+2)); a("s_mov_b32 s%d, 0x20000" % (R_A+3))
    a("s_mul_i32 s53, s%d, 9216" % S_WAVE); a("s_add_u32 m0, s53, %d" % lds)
    for k in range(9):
        a("v_lshrrev_b32 v40, 2, v%d" % (10+k)); a("v_mul_lo_u32 v40, v40, s57"); a("v_add3_u32 v40, v40, v%d, s56" % (10+k))
        a("v_mul_lo_u32 v40, v40, s59"); a("v_add_u32 v40, v40, v%d" % (20+k))
        a("buffer_load_dwordx4 v40, s[%d:%d], 0 offen lds" % (R_A, R_A+3))
        a("s_add_u32 m0, m0, 1024")

def sw_process(a, p, lds):
    a("v_add_u32 v31, %d, v30" % lds)
    for q in range(9):
        for hh in range(2):
            a("ds_read_b64_tr_b16 v[%d:%d], v31 offset:%d" % (44+4*q+2*hh, 45+4*q+2*hh, hh*4608 + 128*q))
    a("s_mov_b32 s53, s%d" % (60+3*p))
    for q in range(9):
        a("s_waitcnt lgkmcnt(%d)" % min(15, 16-2*q))
        a("buffer_store_dwordx4 v[%d:%d], v%d, s[%d:%d], s53 offen sc1" % (44+4*q, 47+4*q, V_L16, R_WS, R_WS+3))
        a("s_add_u32 s53, s53, s%d" % (61+3*p))

def sw_flags(a, ps, mark=False):
    L = a.newlabel("Lswf")
    a("s_cmp_lg_u32 s%d, 0" % S_WAVE); a("s_cbranch_scc1 %s" % L)
    for p in ps: a.set_flag(62+3*p, 40)
    if mark: a.set_mark(40, FP_OFF - 4*224)
    a.label(L)

MK, R_M = 220, 76

def mark_setup(a):
    a.srd(R_M, S_WS, MARK_N, O_OFF)
    for r in range(4): a("v_mov_b32 v%d, -1" % (MK+r))
    a("s_sub_u32 s74, s2, %d" % 224); a("s_lshl_b32 s74, s74, 2"); a("s_add_u32 s74, s74, s%d" % S_WAVE); a("s_mul_i32 s74, s74, %d" % MARK_W)

def mark_fill(a, n):
    L = a.newlabel("Lmk")
    a("s_mov_b32 s75, %d" % n)
    a.label(L)
    a(mark_store(74, 0)); a(mark_store(74, 1024)); a("s_add_u32 s74, s74, 2048"); a("s_waitcnt vmcnt(40)")
    a("s_sub_u32 s75, s75, 1"); a("s_cmp_lg_u32 s75, 0"); a("s_cbranch_scc1 %s" % L)

def mark_store(s, off): return "buffer_store_dwordx4 v[%d:%d], v%d, s[%d:%d], s%d offen offset:%d sc1" % (MK, MK+3, V_L16, R_M, R_M+3, s, off)

def touch_pages(a):
    if "tlb" not in ABL: return
    L = a.newlabel("Ltp")
    a("s_cmp_lg_u32 s%d, 1" % S_WAVE); a("s_cbranch_scc1 %s" % L)
    a("v_lshlrev_b32 v252, 21, v%d" % V_LANE)
    a("buffer_load_dword v253, v252, s[%d:%d], 0 offen offset:64" % (R_WS, R_WS+3))
    for p, size in ((S_W3, BW), (S_W4, BW), (S_OUT, ACT), (S_WO, SW), (S_W1, SW), (S_W2, SW)):
        n = (size - 1 >> 21) + 1
        a("s_mov_b64 exec, %d" % ((1 << n) - 1))
        a("global_load_dword v253, v252, s[%d:%d]" % (p, p+1))
    a("s_mov_b64 exec, -1")
    a.label(L)

def touch_inputs(a, nwg):
    nx, nw = -(-18432//(2*nwg)), -(-15552//(2*nwg))
    a("s_mul_i32 s46, s50, 14"); a("s_add_u32 s46, s46, s51"); a("s_lshl_b32 s46, s46, 1"); a("s_add_u32 s46, s46, s53")
    a("v_lshlrev_b32 v252, 7, v%d" % V_LANE)
    L = a.newlabel("Lti")
    a("s_cmp_lg_u32 s52, 0"); a("s_cbranch_scc1 %s_w" % L)
    a("s_mul_i32 s46, s46, %d" % (128*nx)); a("s_add_u32 s46, s46, 4096"); a("s_mov_b64 exec, 0x%x" % ((1 << nx) - 1) if nx <= 32 else "s_bfm_b64 exec, %d, 0" % nx)
    a("buffer_load_dword v253, v252, s[%d:%d], s46 offen" % (R_A, R_A+3))
    a("s_branch %s" % L)
    a.label(L + "_w")
    a("s_mul_i32 s46, s46, %d" % (128*nw)); a("s_add_u32 s46, s46, 4096"); a("s_bfm_b64 exec, %d, 0" % nw)
    a("buffer_load_dword v253, v252, s[%d:%d], s46 offen" % (R_B, R_B+3))
    a.label(L)
    a("s_mov_b64 exec, -1")

def phase1(a):
    QS = 18**-0.5 * math.log2(math.e)
    a("s_cmp_ge_u32 s%d, 28" % S_SLOT); a("s_cbranch_scc1 L_p1_helper")
    a.sdiv(46, 47, S_SLOT, 7)
    a("s_lshr_b32 s48, s%d, 1" % S_XCD); a("s_lshl_b32 s48, s48, 2"); a("s_add_u32 s50, s48, s46")
    a("s_and_b32 s48, s%d, 1" % S_XCD); a("s_mul_i32 s48, s48, 7"); a("s_add_u32 s51, s48, s47")
    a("s_lshr_b32 s52, s%d, 1" % S_WAVE); a("s_and_b32 s53, s%d, 1" % S_WAVE)
    a("v_lshrrev_b32 v20, 3, v%d" % V_LANE); a("v_and_b32 v21, 7, v%d" % V_LANE)
    a("v_xor_b32 v22, v21, v%d" % V_G); a("v_mul_u32_u24 v20, 1152, v20")
    a("v_lshl_add_u32 v10, v22, 4, v20"); a("v_xor_b32 v22, 4, v22"); a("v_lshl_add_u32 v11, v22, 4, v20")
    a("v_add_u32 v12, %d, v10" % (16*1152 - 2048 + 4096)); a("v_add_u32 v13, %d, v11" % (24*1152 - 3072 + 4096))
    a("v_add_u32 v11, %d, v11" % (8*1152 - 1024 + 4096)); a("v_add_u32 v10, 4096, v10")
    a("v_lshrrev_b32 v20, 1, v%d" % V_R); a("v_xor_b32 v20, v20, v%d" % V_G); a("v_and_b32 v21, 1, v%d" % V_LANE)
    a("v_lshl_add_u32 v21, v20, 1, v21"); a("v_mul_u32_u24 v22, 3456, v%d" % V_G)
    a("v_lshl_add_u32 v14, v21, 4, v22"); a("v_xor_b32 v21, 8, v21"); a("v_lshl_add_u32 v16, v21, 4, v22")
    a("v_add_u32 v15, %d, v14" % (4*3456 - 1024 + 4096)); a("v_add_u32 v17, %d, v16" % (12*3456 - 3072 + 4096))
    a("v_add_u32 v16, %d, v16" % (8*3456 - 2048 + 4096)); a("v_add_u32 v14, 4096, v14")
    a("s_lshl_b32 s54, s50, 2"); a("s_add_u32 s54, s54, s%d" % S_WAVE); a("s_mul_i32 s54, s54, %d" % (32*1152))
    a("s_mul_i32 s55, s%d, %d" % (S_WAVE, 16*3456)); a("s_lshl_b32 s46, s51, 8"); a("s_add_u32 s55, s55, s46")
    a("s_lshl_b32 s56, s%d, 12" % S_WAVE)
    a("s_waitcnt lgkmcnt(0)")
    if WSOFF: a("s_add_u32 s24, s24, %d" % WSOFF); a("s_addc_u32 s25, s25, 0")
    a.srd(R_A, S_X, ACT + 4096, -4096); a.srd(R_B, S_WQKV, 576*3456 + 4096, -4096)
    a.sdiv(46, 47, S_SLOT, 7)
    a("s_and_b32 s48, s%d, 1" % S_XCD); a("s_add_u32 s46, s46, s48"); a("s_lshl_b32 s46, s46, 1"); a("s_add_u32 s46, s46, s47")
    a("s_bfe_u32 s47, s%d, 0x10001" % S_XCD); a("s_add_u32 s46, s46, s47"); a("s_and_b32 s47, s%d, 4" % S_XCD); a("s_lshl_b32 s47, s47, 1"); a("s_add_u32 s46, s46, s47")
    if "rot8" not in ABL: a.sdiv(47, 67, 46, 9)
    else:
        a("s_and_b32 s70, s46, 7"); a("s_mov_b32 s67, 0")
    def dma(sbuf):
        X = ["buffer_load_dwordx4 v%d, s[%d:%d], s68 offen offset:%d lds" % (10+j, R_A, R_A+3, 1024*j) for j in range(4)]
        W = ["buffer_load_dwordx4 v%d, s[%d:%d], s69 offen offset:%d lds" % (14+j, R_B, R_B+3, 1024*j) for j in range(4)]
        X[0] = "s_mov_b32 m0, s%d\ns_lshl_b32 s68, s67, 7\ns_add_u32 s68, s68, s54\n" % sbuf + X[0]
        X[1] = "s_mul_i32 s69, s67, %d\ns_add_u32 s69, s69, s55\n" % (64*3456) + X[1]
        X[2] = "s_add_u32 s67, s67, 1\ns_cmp_eq_u32 s67, 9\ns_cselect_b32 s67, %d, s67\n" % (0 if "rot8" not in ABL else 1) + X[2]
        W[0] = "s_add_u32 m0, s%d, 16384\ns_nop 0\n" % sbuf + W[0]
        return X + W
    for x in dma(56): a(x)
    a("s_add_u32 s56, s56, 32768")
    if "rot8" in ABL: a("s_add_u32 s67, s67, s70")
    if "p1touch" in ABL: touch_inputs(a, 224)
    a.stamp("p1_issue")
    a.srd(R_WS, S_WS, WS_END)
    touch_pages(a)
    a("v_lshrrev_b32 v30, 2, v%d" % V_R); a("v_and_b32 v31, 3, v%d" % V_R)
    a("v_lshl_add_u32 v32, v%d, 3, v30" % V_G); a("v_lshlrev_b32 v32, 8, v32"); a("v_lshl_add_u32 v32, v31, 3, v32")
    a("v_add_u32 v32, 16384, v32")
    a("v_and_b32 v33, 1, v%d" % V_G); a("v_lshl_add_u32 v33, v33, 2, v30")
    a("s_lshl_b32 s46, s53, 2"); a("s_lshl_b32 s47, s52, 1"); a("s_or_b32 s57, s46, s47")
    for t in range(4):
        a("s_xor_b32 s46, s57, %d" % t); a("v_xor_b32 v34, s46, v33"); a("v_lshl_add_u32 v%d, v34, 5, v32" % (20+t))
    a("v_lshrrev_b32 v30, 1, v%d" % V_R); a("v_xor_b32 v30, v30, v%d" % V_G); a("v_lshlrev_b32 v31, 7, v%d" % V_R)
    a("s_lshl_b32 s46, s52, 13"); a("s_lshl_b32 s47, s53, 12"); a("s_add_u32 s46, s46, s47"); a("s_xor_b32 s47, s46, 4096")
    a("v_lshl_add_u32 v32, v30, 4, v31"); a("v_xor_b32 v33, 64, v32")
    a("v_add_u32 v24, s46, v32"); a("v_add_u32 v25, s47, v32"); a("v_add_u32 v26, s46, v33"); a("v_add_u32 v27, s47, v33")
    ACC, CS, ST, ONE = 48, 112, 120, 140
    XB = (144, 160); WB = (176, 192)
    WA, XA = 28, 32
    for r in range(ACC, ONE): a("v_mov_b32 v%d, 0" % r)
    for r in range(4): a("v_mov_b32 v%d, s%d" % (ONE+r, S_ONES))
    def addr(sbase):
        return ["v_add_u32 v%d, %s, v%d" % (WA+i, sbase, 20+i) for i in range(8)]
    def reads(jj):
        o = []
        for T in range(4):
            o.append("ds_read_b128 v[%d:%d], v%d offset:%d" % (XB[jj]+4*T, XB[jj]+4*T+3, XA+2*jj+(T>>1), 2048*(T&1)))
            for hh in range(2):
                o.append("ds_read_b64_tr_b16 v[%d:%d], v%d offset:%d" % (WB[jj]+4*T+2*hh, WB[jj]+4*T+2*hh+1, WA+T, jj*8192+hh*1024))
        return o
    def mm(jj, swap):
        o = []
        for t in range(4):
            for T in range(4):
                d = ACC+16*t+4*T
                o.append(mfma(d, XB[jj]+4*T, WB[jj]+4*t, d) if swap else mfma(d, WB[jj]+4*t, XB[jj]+4*T, d))
            if t < 2:
                d = CS+4*t
                o.append(mfma(d, ONE, WB[jj]+4*t, d) if swap else mfma(d, WB[jj]+4*t, ONE, d))
            x = XB[jj]+4*(t>>1); d = ST+4*t
            o.append(mfma(d, x if t & 1 else ONE, x, d))
        return o
    for x in addr("0"): a(x)
    a("s_lshl_b32 s60, s51, 1"); a("s_add_u32 s60, s60, s53")
    a("s_lshl_b32 s46, s50, 1"); a("s_add_u32 s46, s46, s52"); a("s_lshl_b32 s46, s46, 1"); a("s_add_u32 s47, s46, s53")
    a("s_xor_b32 s46, s47, 1"); a("s_mul_i32 s65, s47, 2304"); a("s_mul_i32 s66, s46, 2304"); a("s_mov_b32 s64, %d" % HPSZ)
    a("s_mov_b32 s58, 0"); a("s_mov_b32 s59, 0")
    a("s_cmp_ge_u32 s51, 9"); a("s_cbranch_scc1 L_p1_v0")
    for swap in (0, 1):
        L = "L_p1_v" if swap else "L_p1_qk"
        a.label(L + "0")
        if not swap:
            a("s_mov_b32 s62, %d" % Q_OFF); a("s_cmp_ge_u32 s60, 9"); a("s_cselect_b32 s61, 144, 0"); a("s_cselect_b32 s62, %d, s62" % K_OFF)
            a("s_cselect_b32 s73, 1.0, %d" % f32(QS))
            a("s_lshl_b32 s63, s60, 4"); a("s_sub_u32 s63, s63, s61")
            for t in range(4):
                a("s_lshl_b32 s46, s52, 1"); a("s_xor_b32 s46, s46, %d" % t); a("s_lshl_b32 s46, s46, 2"); a("s_add_u32 s46, s46, s63")
                a("v_add_u32 v212, s46, v%d" % V_G)
                a("v_mul_u32_u24 v213, 7282, v212"); a("v_lshrrev_b32 v213, 16, v213")
                a("v_mul_u32_u24 v214, 9, v213"); a("v_sub_u32 v212, v212, v214")
                a("v_cmp_lt_u32 vcc, 4, v212"); a("v_subb_co_u32 v214, vcc, v212, 0, vcc")
                a("v_cmp_eq_u32 vcc, 4, v212"); a("v_cndmask_b32 v214, v214, 8, vcc")
                a("v_mul_lo_u32 v213, v213, s64"); a("v_lshl_add_u32 v213, v214, 8, v213"); a("v_lshl_add_u32 v%d, v%d, 4, v213" % (208+t, V_R))
        else:
            a("s_mov_b32 s62, %d" % V_OFF); a("s_sub_u32 s63, s60, 18"); a("s_lshl_b32 s63, s63, 6")
            for t in range(4):
                a("s_lshl_b32 s46, s52, 1"); a("s_xor_b32 s46, s46, %d" % t); a("s_lshl_b32 s46, s46, 4"); a("s_add_u32 s46, s46, s63")
                a("v_add_u32 v212, s46, v%d" % V_R)
                a("v_mul_u32_u24 v213, 1821, v212"); a("v_lshrrev_b32 v213, 16, v213")
                a("v_mul_u32_u24 v214, 36, v213"); a("v_sub_u32 v212, v212, v214")
                a("v_lshl_add_u32 v214, v%d, 4, v212" % V_G)
                a("v_add_u32 v215, 44, v214")
                a("v_cmp_lt_u32 vcc, 19, v212"); a("v_cndmask_b32 v214, v214, v215, vcc")
                a("v_lshl_add_u32 v215, v212, 2, v%d" % V_G); a("v_add_u32 v215, 64, v215")
                a("v_lshrrev_b32 v212, 2, v212"); a("v_cmp_eq_u32 vcc, 4, v212"); a("v_cndmask_b32 v214, v214, v215, vcc")
                a("v_mul_lo_u32 v213, v213, s64"); a("v_lshl_add_u32 v%d, v214, 4, v213" % (208+t))
        a("s_add_u32 s65, s65, s62"); a("s_add_u32 s66, s66, s62")
        for x in dma(56): a(x)
        a("s_add_u32 s56, s56, 32768")
        if "burn" in ABL:
            for r in range(224, 240): a("v_mul_lo_u32 v%d, v%d, s64" % (r, 208 + (r & 3))); a("v_and_b32 v%d, 0xbfffbfff, v%d" % (r, r))
            Lb = a.newlabel("Lburn"); a("s_mov_b32 s75, 9"); a.label(Lb)
            for q in range(16): a(mfma(240+4*(q & 1), 224+4*(q & 3), 224+4*((q >> 2) & 3), 240+4*(q & 1)))
            a("s_sub_u32 s75, s75, 1"); a("s_cmp_lg_u32 s75, 0"); a("s_cbranch_scc1 %s" % Lb)
        a("s_waitcnt vmcnt(8)"); a("s_barrier")
        a.stamp("p1_first")
        for x in reads(0): a(x)
        a.label(L)
        a("s_cmp_ge_u32 s58, 7"); a("s_cbranch_scc1 %s_n" % L)
        for dm in (1, 0):
            d = dma(56) if (dm and "p1nodma" not in ABL) else []
            m = mm(0, swap)
            a("s_waitcnt lgkmcnt(0)")
            interleave(a, m[:14], reads(1))
            interleave(a, m[14:], d[:4])
            a("s_add_u32 s58, s58, 1")
            a("s_add_u32 s59, s59, 32768"); a("s_cmp_eq_u32 s59, 163840"); a("s_cselect_b32 s59, 0, s59")
            a("s_waitcnt vmcnt(%d) lgkmcnt(0)" % (4 if dm else 0))
            a("s_barrier")
            m = mm(1, swap); ad = addr("s59")
            interleave(a, m[:3], ad[4:6] + ad[0:4])
            interleave(a, m[3:15], reads(0) + ad[6:8])
            interleave(a, m[15:], d[4:])
            if dm:
                a("s_add_u32 s56, s56, 32768"); a("s_cmp_ge_u32 s56, 163840"); a("s_cselect_b32 s46, 163840, 0"); a("s_sub_u32 s56, s56, s46")
                a("s_branch %s" % L)
                a.label(L + "_n")
            else:
                a("s_cmp_lt_u32 s58, 9"); a("s_cbranch_scc1 %s_n" % L)
        a.stamp("p1_loop")
        a("s_waitcnt lgkmcnt(0)")
        a("v_and_b32 v40, 1, v%d" % V_R); a("v_cmp_eq_u32 s[74:75], 1, v40")
        a("v_and_b32 v40, 2, v%d" % V_R); a("v_cmp_eq_u32 s[76:77], 2, v40")
        a("v_lshrrev_b32 v40, 2, v%d" % V_R); a("v_cmp_eq_u32 s[78:79], v40, v%d" % V_G)
        a("s_mov_b32 s46, %d" % f32(1.0/576)); a("s_mov_b32 s47, %d" % f32(1e-5))
        for T in range(2):
            s_, q_ = ST+8*T, ST+8*T+4
            a("v_cndmask_b32 v%d, v%d, v%d, s[74:75]" % (q_, q_, q_+1)); a("v_cndmask_b32 v%d, v%d, v%d, s[74:75]" % (q_+2, q_+2, q_+3))
            a("v_mul_f32 v%d, s46, v%d" % (s_, s_))
            a("v_cndmask_b32 v%d, v%d, v%d, s[76:77]" % (q_, q_, q_+2))
            a("v_mul_f32 v42, v%d, v%d" % (s_, s_))
            a("v_fma_f32 v%d, v%d, s46, -v42" % (q_, q_)); a("v_max_f32 v%d, 0, v%d" % (q_, q_)); a("v_add_f32 v%d, s47, v%d" % (q_, q_))
            a("v_rsq_f32 v%d, v%d" % (36+2*T, q_)); a("v_mul_f32 v%d, v%d, -v%d" % (37+2*T, 36+2*T, s_))
        a("s_lshl_b32 s46, s52, 9"); a("s_lshl_b32 s47, s53, 8"); a("s_add_u32 s46, s46, s47")
        a("v_lshl_add_u32 v40, v%d, 3, s46" % V_R)
        a("s_mov_b64 exec, s[78:79]")
        a("ds_write_b64 v40, v[36:37]"); a("ds_write_b64 v40, v[38:39] offset:128")
        a("s_mov_b64 exec, -1")
        a("s_lshl_b32 s47, s57, 6")
        if not swap:
            a("v_lshl_add_u32 v41, v%d, 4, s47" % V_G)
            a("ds_write_b128 v41, v[%d:%d] offset:1024" % (CS, CS+3)); a("ds_write_b128 v41, v[%d:%d] offset:1088" % (CS+4, CS+7))
        else:
            a("v_lshl_add_u32 v41, v%d, 2, s47" % V_R)
            a("ds_write_b32 v41, v%d offset:1024" % CS); a("ds_write_b32 v41, v%d offset:1088" % (CS+4))
        a("s_waitcnt lgkmcnt(0)"); a("s_barrier")
        Ls = L + "_s"
        a("v_mov_b32 v36, 0")
        a("s_cmp_ge_u32 s60, 27"); a("s_cbranch_scc1 %s" % Ls)
        a("v_xor_b32 v42, 256, v40"); a("v_xor_b32 v43, 128, v41")
        if not swap:
            RS, CC = 144, 160
            a("ds_read_b64 v[%d:%d], v40" % (RS, RS+1)); a("ds_read_b64 v[%d:%d], v40 offset:128" % (RS+2, RS+3))
            a("ds_read_b64 v[%d:%d], v42" % (RS+4, RS+5)); a("ds_read_b64 v[%d:%d], v42 offset:128" % (RS+6, RS+7))
            for t in range(4):
                a("ds_read_b128 v[%d:%d], v%d offset:%d" % (CC+4*t, CC+4*t+3, 41 if t < 2 else 43, 1024+64*(t&1)))
            a("s_waitcnt lgkmcnt(0)")
            for T in range(4): a("v_pk_mul_f32 v[%d:%d], v[%d:%d], s[72:73] op_sel:[0,1] op_sel_hi:[1,1]" % (RS+2*T, RS+2*T+1, RS+2*T, RS+2*T+1))
            for t in range(4):
                for T in range(4):
                    d = ACC+16*t+4*T
                    for h in range(2):
                        a("v_pk_mul_f32 v[216:217], v[%d:%d], v[%d:%d] op_sel:[0,1] op_sel_hi:[1,1]" % (CC+4*t+2*h, CC+4*t+2*h+1, RS+2*T, RS+2*T+1))
                        a("v_pk_fma_f32 v[%d:%d], v[%d:%d], v[%d:%d], v[216:217] op_sel_hi:[1,0,1]" % (d+2*h, d+2*h+1, d+2*h, d+2*h+1, RS+2*T, RS+2*T+1))
                    e = ACC+16*t+8*(T>>1)+2*(T&1)
                    for h in range(2): a("v_max3_f32 v36, |v%d|, |v%d|, v36" % (d+2*h, d+2*h+1))
                    a("v_cvt_pk_bf16_f32 v%d, v%d, v%d" % (e, d, d+1)); a("v_cvt_pk_bf16_f32 v%d, v%d, v%d" % (e+1, d+2, d+3))
                    if T & 1:
                        a("buffer_store_dwordx4 v[%d:%d], v%d, s[%d:%d], s%d offen sc1" % (e-2, e+1, 208+t, R_WS, R_WS+3, 65+(T>>1)))
        else:
            RS, CC = 144, 176
            a("v_lshl_add_u32 v40, v%d, 5, s46" % V_G); a("v_xor_b32 v42, 256, v40")
            for T in range(4):
                for h in range(2):
                    a("ds_read_b128 v[%d:%d], v%d offset:%d" % (RS+8*T+4*h, RS+8*T+4*h+3, 40 if T < 2 else 42, 128*(T&1)+16*h))
            for t in range(4):
                a("ds_read_b32 v%d, v%d offset:%d" % (CC+t, 41 if t < 2 else 43, 1024+64*(t&1)))
            a("s_waitcnt lgkmcnt(0)")
            for t in range(4):
                for T in range(4):
                    d = ACC+16*t+4*T
                    for i in range(4):
                        a("v_mul_f32 v%d, v%d, v%d" % (216+i, RS+8*T+2*i+1, CC+t))
                    for i in range(4):
                        a("v_fma_f32 v%d, v%d, v%d, v%d" % (d+i, d+i, RS+8*T+2*i, 216+i))
                    e = ACC+16*t+8*(T>>1)+2*(T&1)
                    for h in range(2): a("v_max3_f32 v36, |v%d|, |v%d|, v36" % (d+2*h, d+2*h+1))
                    a("v_cvt_pk_bf16_f32 v%d, v%d, v%d" % (e, d, d+1)); a("v_cvt_pk_bf16_f32 v%d, v%d, v%d" % (e+1, d+2, d+3))
                    if T & 1:
                        a("buffer_store_dwordx4 v[%d:%d], v%d, s[%d:%d], s%d offen sc1" % (e-2, e+1, 208+t, R_WS, R_WS+3, 65+(T>>1)))
        a.label(Ls)
        if not swap: a("s_branch L_p1_pub")
    a.label("L_p1_pub")
    a.xg_reduce(36, 37, "v_max_f32")
    for r in (8, 4, 2, 1): a("v_max_f32_dpp v36, v36, v36 row_ror:%d row_mask:0xf bank_mask:0xf" % r)
    a("s_lshl_b32 s46, s%d, 2" % S_WAVE); a("v_mov_b32 v37, s46"); a("ds_write_b32 v37, v36 offset:2048")
    if "d_p1" in ABL: a("s_sleep 64")
    a.stamp("p1_stores")
    L = a.newlabel("Lp1f")
    a("s_cmp_lg_u32 s%d, 0" % S_WAVE); a("s_cbranch_scc1 %s_a" % L)
    a.get_nonce(36)
    a.label(L + "_a")
    a("s_waitcnt vmcnt(0) lgkmcnt(0)"); a("s_barrier")
    a("s_cmp_lg_u32 s%d, 0" % S_WAVE); a("s_cbranch_scc1 L_p1_done")
    a("v_mov_b32 v38, 0"); a("ds_read_b128 v[40:43], v38 offset:2048")
    a("s_lshl_b32 s46, s50, 4"); a("s_add_u32 s46, s46, s51"); a("s_lshl_b32 s46, s46, 7"); a("s_add_u32 s46, s46, %d" % (FLAG0 + 128*F1))
    a("v_mov_b32 v36, s%d" % S_NONCE); a("s_mov_b64 exec, 1"); a("s_waitcnt lgkmcnt(0)")
    a("v_max3_f32 v37, v40, v41, v42"); a("v_max_f32 v37, v37, v43")
    a("buffer_store_dwordx2 v[36:37], v38, s[%d:%d], s46 offen sc1" % (R_WS, R_WS+3))
    a("s_mov_b64 exec, -1")
    a("s_branch L_p1_done")
    a.label("L_p1_helper")
    if "d_h1" in ABL: a("s_sleep 64")
    swizzle_setup(a)
    a("s_lshl_b32 s48, s%d, 2" % S_XCD); a("s_add_u32 s48, s48, s%d" % S_SLOT); a("s_sub_u32 s48, s48, 28")
    a("s_waitcnt lgkmcnt(0)")
    if WSOFF: a("s_add_u32 s24, s24, %d" % WSOFF); a("s_addc_u32 s25, s25, 0")
    a.srd(R_WS, S_WS, WS_END)
    publish_nonce(a)
    a("s_add_u32 s49, s48, 32"); a("s_cmp_lt_u32 s49, 54"); a("s_cselect_b32 s49, s49, s48")
    B = 36864
    mark_setup(a)
    if MK0: mark_fill(a, MK0)
    sw_issue(a, 48, 0, 0); sw_issue(a, 49, 1, B)
    if MK1: mark_fill(a, MK1)
    a("s_waitcnt vmcnt(0)"); a("s_barrier")
    sw_process(a, 0, 0); sw_process(a, 1, B)
    L = a.newlabel("Lhn"); a("s_cmp_lg_u32 s%d, 0" % S_WAVE); a("s_cbranch_scc1 %s" % L); a.get_nonce(36); a.label(L)
    a("s_waitcnt vmcnt(0)"); a("s_barrier")
    sw_flags(a, (0, 1))
    a.stamp("h_small")
    if MK0 + MK1 < MKG: mark_fill(a, MKG - MK0 - MK1)
    a("s_waitcnt vmcnt(0)"); a("s_barrier")
    sw_flags(a, (), mark=True)
    a.label("L_p1_done")
    a.stamp("p1_done")

def generate(stop=99, stamps=False):
    a = G(stop, stamps)
    prologue(a)
    phase1(a)
    from phases import phase2, phase345, phase6
    if stop >= 2: phase2(a)
    if stop >= 3: phase345(a)
    if stop >= 6: phase6(a)
    a.label("L_fin")
    a.stamp_out()
    a.label("L_end")
    a("s_endpgm")
    for x in a.stubs: a(x)
    a.label("L_last")
    body, nops = fix_hazards(a.lines)
    return body, nops

HEADER = """; Fused transformer block (LN, QKV, sliding-window attention, Wo, shift-MLP, channel MLP) as one persistent kernel.
; 256 workgroups of 4 waves, one per CU; phases hand data over through d_ws with write-through stores and flags.
; @launch grid=(256,1,1) block=(256,1,1) lds=163840
.amdgcn_target "amdgcn-amd-amdhsa--gfx950"
.text
.globl %s
.p2align 8
.type %s,@function
%s:
""" % (KN, KN, KN)
FOOTER = """.section .rodata,"a"
.p2align 6
.amdhsa_kernel %s
  .amdhsa_next_free_vgpr 512
  .amdhsa_next_free_sgpr 102
  .amdhsa_accum_offset 256
  .amdhsa_group_segment_fixed_size 0
  .amdhsa_kernarg_size 88
  .amdhsa_user_sgpr_count 2
  .amdhsa_user_sgpr_kernarg_segment_ptr 1
  .amdhsa_system_sgpr_workgroup_id_x 1
.end_amdhsa_kernel
""" % KN

def main():
    import argparse
    p = argparse.ArgumentParser()
    p.add_argument("--stop", type=int, default=99); p.add_argument("--stamps", default=""); p.add_argument("--wsoff", type=int, default=0); p.add_argument("--rt", action="store_true")
    p.add_argument("-o", default="k.s")
    o = p.parse_args()
    global WSOFF, CLK
    if o.rt: CLK = 's_memrealtime'
    WSOFF = o.wsoff << 20
    st = STAMPSETS.get(o.stamps, o.stamps.split(',')) if o.stamps else None
    if st:
        st = ['start'] + list(st) + ['end']; assert len(st) <= 16
        open(o.o[:-2] + '.stamps', 'w').write(','.join(st))
    body, nops = generate(o.stop, st)
    text = HEADER + "\n".join(("" if l.endswith(":") else "  ") + l for l in body) + "\n" + FOOTER
    open(o.o, "w").write(text)
    build(o.o, o.o[:-2] + ".co", KN)
    n = sum(1 for l in body if l and not l.endswith(":"))
    print("instructions", n, "nop states added", nops)
    seen = set()
    for nm, takes in TRACES.items():
        errs = check_waits(body, takes)
        for e in errs[:4]:
            if e not in seen: print("WAIT[%s]" % nm, e); seen.add(e)

STAMPSETS = {
 "all": "p1_first p1_loop p1_done p2_ready p2_loaded p2_done p3_ready p4_ready p5_ready p5_done p6_ready p6_x p6_a p6_b".split(),
 "p1": "p1_issue p1_first p1_loop p1_stores p1_done p2_ready p2_loaded p2_done p3_ready p4_ready p5_ready p5_done p6_ready p6_x".split(),
 "p3k": "p2_done p3_ready p3_k0 p3_k9 p3_gemm p4_ready p4_k0 p4_k9 p4_gemm p5_ready p5_k0 p5_k9 p5_gemm".split(),
 "hop": "p1_stores p1_done p2_ready p2_loaded p2_done p3_ready p3_epi p4_ready p4_epi p5_ready p5_epi p6_ready p6_x p6_b".split(),
 "p6": "p6_x p6_p0 p6_a p6_s0 p6_s1 p6_s5 p6_s6 p6_s7 p6_b p7_ready".split(),
 "h": "h_small p1_stores p1_done p2_setup p2_ready p2_loaded p2_done".split(),
 "p4k": "p3_k0 p3_k9 p3_gemm p3_epi p4_ready p4_k0 p4_k9 p4_gemm p4_epi p5_ready p5_k0 p5_k9 p5_gemm p5_epi".split(),
 "p6x": "p2_done h_w3 h_w4 p5_gemm p5_epi p5_done p6_ready p6_st p6_x9 p6_x17 p6_x p6_p0".split(),
 "crit": "p1_done p2_loaded p2_done h_w3 h_w4 p5_epi p6_ready p6_st p6_x p6_a p6_s6 p6_s7 p6_b".split(),
 "p3": "p2_done p3_dma p3_drain p3_ready p3_gemm p3_epi p4_dma p4_drain p4_ready p4_gemm p4_epi p5_drain p5_ready p5_gemm".split(),
}
TRACES = {"w012": {"L_p7_main": True, "L_p1_qk_n": [False,True,False]}, "h3": {"L_p3_helper": True, "L_p1_qk_n": [False,True,False]}, "slow": {"L_p2_slow": True, "L_p1_qk_n": [False,True,False]}, "edge": {"L_p2_edge": True, "L_p1_qk_n": [False,True,False]}, "qk": {"L_p1_qk_n": [False,False,True,True,False]}, "v": {"L_p1_v0": True, "L_p1_v_n": [False,False,True,True,False]}, "helper": {"L_p1_helper": True}}

if __name__ == "__main__":
    sys.modules["gen"] = sys.modules["__main__"]
    main()
```

```python
from gen import *

NEG = 0xF149F2CA
SLEEP0 = dict(p2=0, p3=0, p4=0, p5=0, p6=18)
for _kv in os.environ.get('SLEEP', '').split(','):
    if _kv: SLEEP0[_kv.split('=')[0]] = int(_kv.split('=')[1])

W_LDS = 53248
AW1, AW2 = 40, 148
XT = 232
W1N = int(os.environ.get('W1N', 27))
PA, PS, R_C = 244, (3, 27, 45), R_B

def pf_lds(i):
    gq, k = divmod(i, 9)
    pre = ("s_mul_i32 s58, s79, %d\ns_add_u32 s58, s58, s73\ns_add_u32 m0, s58, %d\n" % (gq, 1024*k)) if k == 0 or i == 2 else ""
    post = "\ns_add_u32 m0, m0, 1024" if k < 8 and i != 1 else ""
    return pre + "buffer_load_dwordx4 v%d, s[%d:%d], s%d offen sc1 lds" % (PA+k, R_C, R_C+3, PS[gq]) + post

def roles345(a):
    a("s_lshr_b32 s46, s%d, 3" % S_SLOT); a("s_lshl_b32 s74, s%d, 2" % S_XCD); a("s_add_u32 s74, s74, s46"); a("s_add_u32 s75, s%d, 6" % S_SLOT); a("s_and_b32 s75, s75, 7")
    a("s_lshl_b32 s76, s74, 2"); a("s_add_u32 s76, s76, s%d" % S_WAVE)

def phase2(a):
    KL_, VL_ = 0, 27648
    a("s_lshr_b32 s50, s%d, 1" % S_SLOT); a("s_and_b32 s51, s%d, 1" % S_SLOT); a("s_lshl_b32 s46, s%d, 1" % S_XCD); a("s_add_u32 s51, s51, s46")
    a("s_mul_i32 s52, s51, %d" % HPSZ)
    a("s_add_u32 s46, s52, %d" % K_OFF); a.srd_s(R_A, S_WS, HPSZ, 46)
    a("s_add_u32 s46, s52, %d" % V_OFF); a.srd_s(R_B, S_WS, HPSZ, 46)
    a("s_mul_i32 s46, s50, 9216"); a("s_sub_u32 s46, s46, 18432"); a("s_lshl_b32 s47, s%d, 10" % S_WAVE); a("s_add_u32 s46, s46, s47")
    a("v_add_u32 v10, s46, v%d" % V_L16)
    for i in range(1, 7): a("v_add_u32 v%d, %d, v10" % (10+i, 4096*i))
    a("s_lshl_b32 s46, s50, 3"); a("s_lshl_b32 s53, s%d, 1" % S_WAVE); a("s_add_u32 s53, s53, s46")
    a("s_mul_i32 s54, s53, 1152"); a("s_add_u32 s54, s54, s52"); a("s_add_u32 s54, s54, %d" % Q_OFF)
    a("v_lshlrev_b32 v18, 4, v%d" % V_R)
    a("s_mul_i32 s46, s%d, 2304" % S_WAVE)
    a("v_add_u32 v20, s46, v%d" % V_L16)
    a("s_add_u32 s47, s46, 2048"); a("v_add_u32 v21, s47, v18")
    a("s_add_u32 s47, s46, %d" % VL_); a("v_add_u32 v22, s47, v%d" % V_L16)
    a("v_lshl_add_u32 v23, v%d, 2, v%d" % (V_R, V_G)); a("s_add_u32 s47, s47, 2048"); a("v_lshl_add_u32 v23, v23, 4, s47")
    for i in range(4):
        a("v_lshl_add_u32 v24, v%d, 2, %d" % (V_G, i)); a("v_cmp_gt_u32 s[%d:%d], v24, v%d" % (60+2*i, 61+2*i, V_R))
    a("v_cmp_eq_u32 s[68:69], 0, v%d" % V_G)
    a("v_mov_b32 v25, 0x%x" % NEG)
    for r in range(4): a("v_mov_b32 v%d, -1" % (228+r))
    a("v_and_b32 v225, 31, v%d" % V_LANE); a("v_lshlrev_b32 v225, 2, v225")
    VLA = 0
    for r in range(36): a("v_accvgpr_write_b32 a%d, s%d" % (VLA+r, S_ONES))
    roles345(a)
    a("s_mul_i32 s46, s75, 110592"); a("s_mul_i32 s47, s%d, 27648" % S_WAVE); a("s_add_u32 s70, s46, s47"); a("s_add_u32 s70, s70, %d" % WO_S)
    a("s_add_u32 s71, s70, %d" % SW); a("s_add_u32 s72, s71, %d" % SW)
    a("s_cmp_ge_u32 s75, 6"); a("s_cbranch_scc1 L_p2_hs")
    a("s_add_u32 s73, s47, %d" % W_LDS); a("s_mov_b32 s79, 9216")
    for gq in range(3): a("s_add_u32 s%d, s70, %d" % (PS[gq], 9216*gq))
    for i in range(9): a("v_add_u32 v%d, %d, v%d" % (PA+i, 1024*i, V_L16))
    a("s_mov_b32 s10, s%d" % S_WS); a("s_mov_b32 s11, s%d" % (S_WS+1)); a("s_mov_b32 s26, %d" % WS_END)
    a("s_branch L_p2_hd")
    a.label("L_p2_hs")
    a("s_mov_b32 s71, 0x70000000")
    a("s_mul_i32 s47, s%d, 9216" % S_WAVE); a("s_add_u32 s73, s47, %d" % W_LDS); a("s_mov_b32 s79, 36864")
    a("s_lshl_b32 s48, s74, 1"); a("s_add_u32 s48, s48, s75"); a("s_sub_u32 s48, s48, 6"); a("s_mul_i32 s48, s48, 3")
    a("s_mov_b32 s10, s%d" % S_W3); a("s_mov_b32 s11, s%d" % (S_W3+1)); a("s_mov_b32 s78, 9216")
    a("s_cmp_lt_u32 s48, 144"); a("s_cselect_b32 s26, %d, 0" % BW)
    for gq in range(3):
        a("s_add_u32 s46, s48, %d" % gq)
        a.sdiv(47, 56, 46, 18)
        a("s_lshl_b32 s56, s56, 2"); a("s_add_u32 s56, s56, s%d" % S_WAVE); a("s_mul_i32 s56, s56, %d" % (8*9216))
        a("s_mul_i32 s47, s47, 1152"); a("s_add_u32 s%d, s56, s47" % (PS[gq]))
    for i in range(9):
        a("v_add_u32 v24, %d, v%d" % (64*i, V_LANE)); a("v_mul_u32_u24 v26, 911, v24"); a("v_lshrrev_b32 v26, 16, v26")
        a("v_mul_u32_u24 v27, 72, v26"); a("v_sub_u32 v27, v24, v27"); a("v_mul_lo_u32 v26, v26, s78"); a("v_lshl_add_u32 v%d, v27, 4, v26" % (PA+i))
    a.label("L_p2_hd")
    a("v_mul_u32_u24 v7, 1152, v%d" % V_R); a("v_lshl_add_u32 v7, v%d, 4, v7" % V_G)
    a("s_mul_i32 s46, s76, 18432"); a("s_mul_i32 s47, s75, 192"); a("s_add_u32 s77, s46, s47")
    a("s_cmp_ge_u32 s75, 6"); a("s_cselect_b32 s77, 0x70000000, s77")
    L = a.newlabel("Lp2w")
    a("v_mov_b32 v19, %d" % (W_LDS + 4096))
    a("s_cmp_lg_u32 s%d, 0" % S_WAVE); a("s_cbranch_scc1 %s" % L)
    a("v_and_b32 v30, 2, v%d" % V_LANE); a("v_cmp_eq_u32 s[58:59], 0, v30"); a("v_cmp_gt_u32 vcc, 12, v%d" % V_LANE)
    a("s_andn2_b64 s[56:57], vcc, s[58:59]"); a("s_and_b64 s[58:59], vcc, s[58:59]")
    a("v_mov_b32 v34, 0x49800000"); a("v_mov_b32 v35, 0x7f800000")
    a("v_lshrrev_b32 v30, 2, v%d" % V_LANE); a("v_min_u32 v30, 2, v30"); a("v_add_u32 v30, s50, v30"); a("v_subrev_u32 v30, 2, v30"); a("v_max_i32 v30, 0, v30")
    a("v_bfe_u32 v31, v%d, 1, 1" % V_LANE); a("v_add_u32 v31, 1, v31"); a("v_cmp_gt_u32 vcc, 12, v%d" % V_LANE); a("v_cndmask_b32 v31, 0, v31, vcc")
    a("v_mul_u32_u24 v31, 576, v31"); a("v_and_b32 v32, 1, v%d" % V_LANE); a("v_mul_u32_u24 v32, 35, v32")
    a("s_mul_i32 s46, s51, 36"); a("v_add3_u32 v31, v31, v32, s46"); a("v_lshrrev_b32 v31, 7, v31")
    a("v_lshl_add_u32 v30, v30, 4, v31"); a("v_add_u32 v30, %d, v30" % F1)
    a.stamp("p2_setup")
    a.poll(30, 32, sleep0=SLEEP0["p2"], two=True)
    a("v_cndmask_b32 v30, 0, v33, s[58:59]"); a("v_cndmask_b32 v31, 0, v33, s[46:47]".replace("46:47", "56:57"))
    a("v_cmp_nle_f32 vcc, v31, v34"); a("v_cndmask_b32 v30, v30, v35, vcc")
    for r in (8, 4, 2, 1): a("v_max_f32_dpp v30, v30, v30 row_ror:%d row_mask:0xf bank_mask:0xf" % r)
    a("s_mov_b64 exec, 1"); a("ds_write_b32 v19, v30"); a("s_mov_b64 exec, -1"); a("s_waitcnt lgkmcnt(0)")
    a.label(L)
    a("s_barrier")
    a("ds_read_b32 v19, v19")
    a("v_min_u32 v38, 53, v%d" % V_LANE); a("v_add_u32 v38, %d, v38" % FS); a("v_lshlrev_b32 v38, 7, v38")
    fsq = "buffer_load_dword v39, v38, s[%d:%d], 0 offen offset:%d sc1" % (R_WS, R_WS+3, FLAG0)
    a.stamp("p2_ready")
    QR = 26
    a("buffer_load_dwordx4 v[%d:%d], v%d, s[%d:%d], s54 offen sc1" % (QR, QR+3, V_L16, R_WS, R_WS+3))
    a("buffer_load_dwordx4 v[%d:%d], v18, s[%d:%d], s54 offen offset:2048 sc1" % (QR+4, QR+7, R_WS, R_WS+3))
    a("buffer_load_dwordx4 v[%d:%d], v%d, s[%d:%d], s54 offen offset:1024 sc1" % (QR+8, QR+11, V_L16, R_WS, R_WS+3))
    a(fsq)
    a("s_lshl_b32 s46, s%d, 10" % S_WAVE)
    for R, base in ((R_A, KL_), (R_B, VL_)):
        for i in range(7):
            Ls = a.newlabel("Lp2d")
            if i == 6: a("s_cmp_eq_u32 s%d, 3" % S_WAVE); a("s_cbranch_scc1 %s" % Ls)
            a("s_add_u32 m0, s46, %d" % (base + 4096*i))
            a("buffer_load_dwordx4 v%d, s[%d:%d], 0 offen sc1 lds" % (10+i, R, R+3))
            if i == 6: a.label(Ls)
    a.srd(R_A, S_X, ACT)
    a("s_mov_b32 s%d, s10" % R_C); a("s_mov_b32 s%d, s11" % (R_C+1)); a("s_mov_b32 s%d, s26" % (R_C+2)); a("s_mov_b32 s%d, 0x20000" % (R_C+3))
    QF = 40
    a("s_waitcnt vmcnt(12)")
    for hd in range(2):
        for qt in range(2):
            q = QF + 12*hd + 6*qt
            for h in range(2): a("v_mov_b32 v%d, v%d" % (q+2+h, QR+8*hd+2*qt+h))
            a("v_cndmask_b32 v%d, 0, v%d, s[68:69]" % (q+hd, QR+4+2*qt+hd)); a("v_mov_b32 v%d, 0" % (q+1-hd))
            for h in range(2): a("v_mov_b32 v%d, v%d" % (q+4+h, q+h))
    for k in range(4):
        a("v_mov_b32 v%d, 0" % (216+k))
        for r in range(4):
            a("v_and_b32 v24, 0x7fff7fff, v%d" % (QF+6*k+r)); a("v_dot2c_f32_bf16 v%d, s%d, v24" % (216+k, S_ONES))
    a("v_max3_f32 v216, v216, v217, v218"); a("v_max_f32 v216, v216, v219")
    a.xg_reduce(216, 217)
    a("s_waitcnt lgkmcnt(0)"); a("v_mul_f32 v216, v19, v216"); a("v_mov_b32 v217, 0x42c00000"); a("v_cmp_nle_f32 s[58:59], v216, v217")
    MF, ML = 8, 12
    for i in range(4):
        a("v_cndmask_b32 v%d, v25, 0, s[%d:%d]" % (MF+i, 60+2*i, 61+2*i)); a("v_cndmask_b32 v%d, 0, v25, s[%d:%d]" % (ML+i, 60+2*i, 61+2*i))
    a("s_lshl_b32 s55, s50, 3"); a("s_lshl_b32 s46, s%d, 1" % S_WAVE); a("s_add_u32 s55, s55, s46"); a("s_sub_u32 s55, 16, s55"); a("s_max_i32 s55, s55, 0")
    a("s_lshl_b32 s56, s2, 2"); a("s_add_u32 s56, s56, s%d" % S_WAVE); a("s_mul_i32 s56, s56, 5120"); a("s_min_u32 s56, s56, %d" % (WO_S - T_OFF - 5120)); a("s_add_u32 s56, s56, %d" % T_OFF)
    L = a.newlabel("Lfs")
    a("s_cmp_lg_u32 s%d, 0" % S_WAVE); a("s_cbranch_scc1 %s" % L)
    a("v_cmp_ne_u32 vcc, s%d, v39" % S_NONCE); a("s_cbranch_vccz %s" % L)
    a("v_lshrrev_b32 v38, 7, v38")
    a.poll(38, 39, sleep0=0)
    a.label(L)
    a("s_waitcnt vmcnt(6)"); a("s_barrier")
    a.stamp("p2_loaded")
    a("s_cmp_lg_u64 s[58:59], 0")
    if "slow" in ABL: a("s_cmp_eq_u32 s2, s2")
    a("s_cbranch_scc1 L_p2_slow")
    a("s_cmp_lt_u32 s50, 2"); a("s_cbranch_scc1 L_p2_edge")
    M, NM, CZ = 16, 216, 26
    KF = 64
    S2, P, VM = 136, 168, 184
    S1 = S2
    OM, OL, R_, OUT = 192, 200, 32, 208
    marks = "s_mov_b32 s46, %d\nbuffer_load_dword v224, v225, s[%d:%d], s46 offen sc1" % (FP_OFF, R_WS, R_WS+3)
    def prefetch():
        o = [pf_lds(i) for i in range(2, 27)]
        for jj in range(3): o.append("buffer_load_dwordx4 v[%d:%d], v7, s[%d:%d], s77 offen offset:%d" % (XT+4*jj, XT+4*jj+3, R_A, R_A+3, 64*jj))
        for sb, ab in ((71, AW1),):
            for i in range(W1N):
                pre = "s_add_u32 s59, s%d, %d\n" % (sb, 1024*i) if i % 4 == 0 else ""
                o.append(pre + "buffer_load_dwordx4 a[%d:%d], v%d, s[%d:%d], s59 offen offset:%d sc1" % (ab+4*i, ab+4*i+3, V_L16, R_WS, R_WS+3, 1024*(i & 3)))
        return o
    for edge, slow in ((0, 0), (1, 0), (1, 1)):
      if edge: a.label("L_p2_slow" if slow else "L_p2_edge")
      pf = prefetch()
      if "x_nopf" in ABL: pf = ["s_nop 0"]*55
      if "x_nomk" in ABL: pf = ["s_nop 0" if "store" in x else x for x in pf]
      if "x_now1" in ABL: pf = ["s_nop 0" if " a[" in x else x for x in pf]
      def take(n):
          o = pf[:n]; del pf[:n]; return o
      for head in range(2):
        def Q(qt, t): return QF + 12*head + 6*qt + 2*(t & 1)
        def K(t): return KF + 4*t
        def kread(m):
            o = ["ds_read_b128 v[%d:%d], v20 offset:%d" % (KF+8*m+2, KF+8*m+5, 2304*m + 1024*head)]
            if head == 0: o += ["ds_read_b64 v[%d:%d], v21 offset:%d" % (KF+8*m+6*b, KF+8*m+6*b+1, 2304*m + 8*b) for b in range(2)]
            return o
        def vleft(m): return "ds_read_b128 a[%d:%d], v23 offset:%d" % (VLA+4*m, VLA+4*m+3, 2304*m + 128*head)
        def vmain(m): return "ds_read_b128 v[%d:%d], v22 offset:%d" % (VM+4*(m & 1), VM+4*(m & 1)+3, 2304*m + 1024*head)
        def has(qt, t): return (t <= 16) if qt == 0 else (t >= 1)
        def mask(reg, qt, t):
            o = []
            for i in range(4):
                if t == qt: o.append("v_cndmask_b32 v%d, v25, v%d, s[%d:%d]" % (reg+i, reg+i, 60+2*i, 61+2*i))
                if t == 16+qt: o.append("v_cndmask_b32 v%d, v%d, v25, s[%d:%d]" % (reg+i, reg+i, 60+2*i, 61+2*i))
            return o
        def switch(t, moves):
            Ls = a.newlabel("Lsw")
            a("s_cmp_eq_u32 s55, %d" % t); a("s_cbranch_scc0 %s" % Ls)
            for x in moves: a(x)
            a.label(Ls)
        if head:
            L = a.newlabel("Lmk")
            a("s_cmp_lg_u32 s%d, 0" % S_WAVE); a("s_cbranch_scc1 %s_x" % L)
            a("s_mov_b32 s47, 100000"); a("s_waitcnt vmcnt(%d)" % (npf0 - len(pf)))
            a.label(L)
            a("v_cmp_ne_u32 vcc, s%d, v224" % S_NONCE)
            a("s_cbranch_vccz %s_x" % L)
            a("s_sleep 2"); a(marks); a("s_waitcnt vmcnt(0)")
            a("s_sub_u32 s47, s47, 1"); a("s_cbranch_scc0 %s" % L)
            a.label(L + "_x")
            a("s_waitcnt vmcnt(20)"); a("s_barrier")
            publish2(a, 224)
        AH = 3
        for m in range(AH if slow else 2):
            for x in kread(m): a(x)
        if slow:
            a("v_mov_b32 v%d, v25" % M); a("v_mov_b32 v%d, v25" % (M+1))
            if edge:
                for i in range(4): a("v_mov_b32 v%d, v25" % (CZ+i))
            def c1(qt, t): return CZ if edge else MF if t == qt else ML if t == 16+qt else None
            def maxes(t):
                o = []
                for qt in range(2):
                    if not has(qt, t): continue
                    s = S1 + 8*(t % 3) + 4*qt
                    if edge: o += mask(s, qt, t)
                    o.append("v_max3_f32 v%d, v%d, v%d, v%d" % (M+qt, s, s+1, M+qt))
                for qt in range(2):
                    if not has(qt, t): continue
                    s = S1 + 8*(t % 3) + 4*qt
                    o.append("v_max3_f32 v%d, v%d, v%d, v%d" % (M+qt, s+2, s+3, M+qt))
                return o
            for t in range(18):
                if t % 2 == 0:
                    if edge: switch(t, ["v_mov_b32 v%d, 0" % (CZ+i) for i in range(4)])
                    a("s_waitcnt lgkmcnt(%d)" % (len(kread(0))*min(AH-1, 8 - t//2)))
                ms = [mfma(S1+8*(t % 3)+4*qt, K(t), Q(qt, t), c1(qt, t)) for qt in range(2) if has(qt, t)]
                fill = (kread(t//2+AH) if t % 2 == 0 and t//2+AH < 9 else []) + (maxes(t-2) if t >= 2 else []) + (take(1) if t % 3 == 1 and head else [])
                interleave(a, ms, fill)
        if head == 0:
            a("s_waitcnt vmcnt(%d)" % (28 + W1N - len(pf))); a("s_barrier")
            for q in range(5):
                if q == 4: a("s_add_u32 s56, s56, 4096")
                if "x_nomk" not in ABL: a("buffer_store_dwordx4 v[228:231], v%d, s[%d:%d], s56 offen offset:%d sc1" % (V_L16, R_WS, R_WS+3, 1024*(q & 3)))
            npf0 = len(pf); a(marks)
        a("s_mov_b32 exec_lo, 0x00030003"); a("s_mov_b32 exec_hi, 0x00030003")
        for m in range(9): a(vleft(m))
        a("s_mov_b64 exec, -1")
        a(vmain(0))
        if slow:
            for x in maxes(16) + maxes(17): a(x)
            for sw in ("v_permlane32_swap_b32", "v_permlane16_swap_b32"):
                for qt in range(2): a("v_mov_b32 v%d, v%d" % (30+qt, M+qt))
                for qt in range(2): a("%s v%d, v%d" % (sw, M+qt, 30+qt))
                for qt in range(2): a("v_max_f32 v%d, v%d, v%d" % (M+qt, M+qt, 30+qt))
            negs = ["v_sub_f32 v%d, 0, v%d" % (NM+4*qt+i, M+qt) for qt in range(2) for i in range(4)]
        else: negs = ["v_mov_b32 v%d, 0" % (NM+i) for i in range(4)]
        if edge:
            for i in range(len(negs)): a("v_mov_b32 v%d, v25" % (NM+i))
        def c2(qt, t): return NM+4*qt if slow else NM if edge else MF if t == qt else ML if t == 16+qt else None
        def qk(m):
            return [mfma(S2+16*(m & 1)+8*qt+4*b, K(2*m+b), Q(qt, b), c2(qt, 2*m+b)) for qt in range(2) for b in range(2) if has(qt, 2*m+b)]
        def pv(m):
            o = []
            for qt in range(2):
                p = P+8*(m & 1)+4*qt
                o.append(mfma(OM+4*qt, VM+4*(m & 1), p, None if m == 0 else OM+4*qt))
                o.append(mfma(OL+4*qt, VLA+4*m, p, None if m == 0 else OL+4*qt, ta="a"))
            return o
        if slow: switch(0, negs)
        else: a("s_waitcnt lgkmcnt(%d)" % min(15, 10 + len(kread(0))))
        for x in qk(0): a(x)
        for m in range(9):
            if edge and m < 8: switch(2*m+2, negs)
            mf = (qk(m+1) if m < 8 else []) + (pv(m-1) if m else [])
            va = []
            ld = take((3 if (m % 3 or head == 0) else 2) if slow else -(-len(pf)//(18 - 9*head - m)))
            for qt in range(2):
                p = P+8*(m & 1)+4*qt
                for b in range(2):
                    s = S2+16*(m & 1)+8*qt+4*b
                    if has(qt, 2*m+b):
                        if edge: va += mask(s, qt, 2*m+b)
                        va += ["v_exp_f32 v%d, v%d" % (s+i, s+i) for i in range(4)]
                    if ld and (b == 0 or qt == 0 or len(ld) > 0 and qt == 1 and b == 1): va.append(ld.pop(0))
                for b in range(2):
                    s = S2+16*(m & 1)+8*qt+4*b
                    if has(qt, 2*m+b):
                        va += ["v_cvt_pk_bf16_f32 v%d, v%d, v%d" % (p+2*b+h, s+2*h, s+2*h+1) for h in range(2)]
                    else:
                        va += ["v_mov_b32 v%d, 0" % (p+2*b+h) for h in range(2)]
            if slow:
                if m: a("s_waitcnt lgkmcnt(1)")
            else:
                a("s_waitcnt lgkmcnt(%d)" % (1 if m else 10))
                if m + 2 < 9: va = kread(m+2) + va
            interleave(a, mf, va)
            if m < 8: a(vmain(m+1))
        a("s_waitcnt lgkmcnt(0)")
        for x in pv(8): a(x)
        if head == 1:
            assert not pf
            a("s_mul_i32 s54, s53, 18432"); a("s_add_u32 s54, s54, %d" % O_OFF)
            a("s_lshl_b32 s46, s51, 10"); a("s_add_u32 s58, s46, s54"); a("s_add_u32 s59, s58, 18432")
            a("s_lshr_b32 s46, s51, 3"); a("s_add_u32 s46, s46, 16"); a("s_lshl_b32 s46, s46, 10"); a("s_add_u32 s54, s54, s46")
            a("s_and_b32 s46, s51, 7"); a("s_lshr_b32 s46, s46, 1"); a("s_lshl_b32 s46, s46, 8"); a("s_add_u32 s54, s54, s46")
            a("s_and_b32 s46, s51, 1"); a("s_lshl_b32 s46, s46, 3"); a("s_add_u32 s54, s54, s46"); a("s_add_u32 s47, s54, 18432")
        for qt in range(2): a("v_rcp_f32 v%d, v%d" % (30+qt, OL+4*qt+3))
        for qt in range(2):
            for i in range(4): a("v_mul_f32 v%d, v%d, v%d" % (OM+4*qt+i, OM+4*qt+i, 30+qt))
            for i in range(2): a("v_mul_f32 v%d, v%d, v%d" % (OL+4*qt+i, OL+4*qt+i, 30+qt))
        for qt in range(2):
            for h in range(2): a("v_cvt_pk_bf16_f32 v%d, v%d, v%d" % (OUT+4*qt+2*head+h, OM+4*qt+2*h, OM+4*qt+2*h+1))
            a("v_cvt_pk_bf16_f32 v%d, v%d, v%d" % (R_+2*qt+head, OL+4*qt, OL+4*qt+1))
      if not slow: a("s_branch L_p2_out")
    a.label("L_p2_out")
    a("buffer_store_dwordx4 v[%d:%d], v%d, s[%d:%d], s58 offen sc1" % (OUT, OUT+3, V_L16, R_WS, R_WS+3))
    a("buffer_store_dwordx4 v[%d:%d], v%d, s[%d:%d], s59 offen sc1" % (OUT+4, OUT+7, V_L16, R_WS, R_WS+3))
    a("s_mov_b64 exec, 0xffff")
    a("buffer_store_dwordx2 v[%d:%d], v%d, s[%d:%d], s54 offen sc1" % (R_, R_+1, V_L16, R_WS, R_WS+3))
    a("buffer_store_dwordx2 v[%d:%d], v%d, s[%d:%d], s47 offen sc1" % (R_+2, R_+3, V_L16, R_WS, R_WS+3))
    a("s_mov_b64 exec, -1")
    a.stamp("p2_done")
    if a.stop == 2:
        a("s_waitcnt vmcnt(0)")

_c0 = 2.0*math.log2(math.e)*math.sqrt(2/math.pi)
GS = (_c0*0.044715)**(1/3)
GK = _c0/GS

def gelu_consts(a): a("s_mov_b32 s48, %d" % f32(GS)); a("s_mov_b32 s49, %d" % f32(GK))

def gelu_poly(regs, t):
    o = ["v_pk_fma_f32 v[%d:%d], v[%d:%d], v[%d:%d], s[48:49] op_sel:[0,0,1] op_sel_hi:[1,1,1]" % (t+2*k, t+2*k+1, r, r+1, r, r+1) for k, r in enumerate(regs)]
    return o + ["v_pk_mul_f32 v[%d:%d], v[%d:%d], v[%d:%d]" % (t+2*k, t+2*k+1, t+2*k, t+2*k+1, r, r+1) for k, r in enumerate(regs)]

def gelu_pk(a, regs, t):
    for x in gelu_poly(regs, t): a(x)
    for k in range(2*len(regs)): a("v_exp_f32 v%d, -v%d" % (t+k, t+k))
    for k, r in enumerate(regs): a("v_pk_fma_f32 v[%d:%d], v[%d:%d], s[48:49], s[48:49] op_sel_hi:[1,0,0]" % (t+2*k, t+2*k+1, t+2*k, t+2*k+1))
    for k in range(2*len(regs)): a("v_rcp_f32 v%d, v%d" % (t+k, t+k))
    for k, r in enumerate(regs): a("v_pk_mul_f32 v[%d:%d], v[%d:%d], v[%d:%d]" % (r, r+1, r, r+1, t+2*k, t+2*k+1))

def stats_loads(a, off, stile, vt):
    a("v_lshlrev_b32 v%d, 3, v%d" % (vt+4, V_LANE))
    a("v_add_u32 v%d, 512, v%d" % (vt+5, vt+4)); a("v_cmp_gt_u32 vcc, 32, v%d" % V_LANE); a("v_mov_b32 v%d, 0x7fffffff" % vt)
    a("v_cndmask_b32 v%d, v%d, v%d, vcc" % (vt+5, vt, vt+5))
    a("s_mul_i32 s46, s%d, 768" % stile); a("s_add_u32 s46, s46, %d" % off)
    return ["buffer_load_dwordx2 v[%d:%d], v%d, s[%d:%d], s46 offen sc1" % (vt+2*k, vt+2*k+1, vt+4+k, R_WS, R_WS+3) for k in range(2)]

def stats_finish(a, vt, vmean, vrstd):
    a("v_add_f32 v%d, v%d, v%d" % (vt, vt, vt+2)); a("v_add_f32 v%d, v%d, v%d" % (vt+1, vt+1, vt+3))
    for sw in ("v_permlane32_swap_b32", "v_permlane16_swap_b32"):
        for k in range(2): a("v_mov_b32 v%d, v%d" % (vt+2+k, vt+k))
        for k in range(2): a("%s v%d, v%d" % (sw, vt+k, vt+2+k))
        for k in range(2): a("v_add_f32 v%d, v%d, v%d" % (vt+k, vt+k, vt+2+k))
    a("s_mov_b32 s47, %d" % f32(1.0/576))
    a("v_mul_f32 v%d, s47, v%d" % (vmean, vt)); a("v_mul_f32 v%d, v%d, v%d" % (vt, vmean, vmean))
    a("v_fma_f32 v%d, v%d, s47, -v%d" % (vt+1, vt+1, vt)); a("v_max_f32 v%d, 0, v%d" % (vt+1, vt+1))
    a("v_add_f32 v%d, %d, v%d" % (vt, f32(1e-5), vt+1)); a("v_rsq_f32 v%d, v%d" % (vrstd, vt))

def norm_ops(x, vs, vb, t):
    o = []
    for r in range(4):
        o.append("v_lshlrev_b32 v%d, 16, v%d" % (t+2*r, x+r)); o.append("v_and_b32 v%d, 0xffff0000, v%d" % (t+2*r+1, x+r))
    for r in range(8): o.append("v_fma_f32 v%d, v%d, v%d, v%d" % (t+r, t+r, vs, vb))
    for r in range(4): o.append("v_cvt_pk_bf16_f32 v%d, v%d, v%d" % (x+r, t+2*r, t+2*r+1))
    return o

def out_stats(a, pk, n, vt, off):
    a("v_mov_b32 v%d, 0" % vt); a("v_mov_b32 v%d, 0" % (vt+1))
    for r in range(n):
        a("v_dot2c_f32_bf16 v%d, s%d, v%d" % (vt, S_ONES, pk+r)); a("v_dot2c_f32_bf16 v%d, v%d, v%d" % (vt+1, pk+r, pk+r))
    for sw in ("v_permlane32_swap_b32", "v_permlane16_swap_b32"):
        for k in range(2): a("v_mov_b32 v%d, v%d" % (vt+2+k, vt+k))
        for k in range(2): a("%s v%d, v%d" % (sw, vt+k, vt+2+k))
        for k in range(2): a("v_add_f32 v%d, v%d, v%d" % (vt+k, vt+k, vt+2+k))
    a("s_mul_i32 s46, s53, 6"); a("s_add_u32 s46, s46, s51"); a("s_lshl_b32 s46, s46, 7"); a("s_add_u32 s46, s46, %d" % off)
    a("v_lshlrev_b32 v%d, 3, v%d" % (vt+2, V_LANE))
    a("s_mov_b64 exec, 0xffff")
    a("buffer_store_dwordx2 v[%d:%d], v%d, s[%d:%d], s46 offen sc1" % (vt, vt+1, vt+2, R_WS, R_WS+3))
    a("s_mov_b64 exec, -1")

AF, ACC, WB, HK, VMEAN, VRSTD = 64, 136, 160, 40, 52, 53
OS = WB

def tag_ops(regs, t):
    o = []; regs = list(regs)
    o.append("v_max3_u32 v%d, v%d, v%d, v%d" % (t, regs[0], regs[1], regs[2])); regs = regs[3:]
    while len(regs) >= 2: o.append("v_max3_u32 v%d, v%d, v%d, v%d" % (t, t, regs[0], regs[1])); regs = regs[2:]
    if regs: o.append("v_max_u32 v%d, v%d, v%d" % (t, t, regs[0]))
    return o + ["v_cmp_eq_u32 vcc, -1, v%d" % t]

def tag_branch(a, loads, regs, t, again=(), drain=False):
    L = a.newlabel("Ltg")
    a("s_cbranch_vccnz %s" % L)
    a.label(L + "_b")
    st = [L + ":"] + "\n".join(loads).split("\n") + ["s_waitcnt vmcnt(0)"] + tag_ops(regs, t)
    st += ["s_cmp_eq_u32 s79, 0", "s_cbranch_scc1 %s_b" % L, "s_sub_u32 s79, s79, 1", "s_cbranch_vccnz %s" % L]
    st += list(again) + (["s_waitcnt vmcnt(0)"] if drain and again else []) + ["s_branch %s_b" % L]
    a.stubs += st

UP = 8
NE = 12
def wpos(layout, b):
    if layout is None: return W_LDS//1024 + b
    w, i = divmod(b, 27)
    return layout[0] + NE*w + i if i < NE else layout[1] + (27-NE)*w + i - NE

def gemm96(a, loads, stage, delay, pre=(), each=None, stamp=None, extra=(), layout=None, early=(), before=None, after=None, init=None):
    a("s_waitcnt vmcnt(20)")
    a("s_barrier")
    nv = sum("buffer_load" in x for x in stage)
    n1 = len(stage) if nv else len(stage)//3
    for x in stage[:n1]: a(x)
    if delay: a("s_sleep %d" % delay)
    a("s_mov_b32 s79, 50000")
    a.stamp(stamp + "_ready")
    for x in pre: a(x)
    interleave(a, loads[:UP], stage[n1:])
    a("s_waitcnt vmcnt(%d) lgkmcnt(0)" % (UP + len(pre)))
    if before: before(a)
    a("s_barrier")
    def wr(j):
        o = []
        for t in range(6):
            q, r = divmod(wpos(layout, 18*t + j), 64)
            o.append("ds_read_b128 v[%d:%d], v%d offset:%d" % (WB+24*(j % 3)+4*t, WB+24*(j % 3)+4*t+3, (V_L16, 5, 6)[q], 1024*r))
        return o
    for x in early: a(x)
    if each: each(lambda: [a(x) for x in wr(0) + wr(1)])
    else:
        for x in wr(0) + wr(1): a(x)
    if init: init()
    a("s_waitcnt vmcnt(%d)" % (UP-1))
    fr = lambda j: range(AF+4*j, AF+4*j+4)
    for x in tag_ops(fr(0), 30): a(x)
    tag_branch(a, [loads[0]], fr(0), 30, loads[1:UP])
    if after: after(a)
    for j in range(18):
        ex = lambda q: min(len(extra), max(0, (q-9)*len(extra)//8))
        issued = min(18, UP+j) + ex(j)
        a("s_waitcnt vmcnt(%d) lgkmcnt(%d)" % (issued - 1 - min(j+1, 17), 6 if j < 17 else 0))
        if j in (0, 9): a.stamp(stamp + "_k%d" % j)
        ms = [mfma(ACC+4*t, WB+24*(j % 3)+4*t, AF+4*j, None if j == 0 and not init else ACC+4*t) for t in range(6)]
        fill = ([loads[UP+j]] if UP+j < 18 else []) + (tag_ops(fr(j+1), 30) if j < 17 else []) + (wr(j+2) if j < 16 else []) + list(extra[ex(j):ex(j+1)])
        interleave(a, ms, fill)
        if j < 17: tag_branch(a, [loads[j+1]], fr(j+1), 30, loads[j+2:UP+j+1], drain=ex(j+1) > 0)

FP2Q = "s_mov_b32 s46, %d\nbuffer_load_dwordx4 v[16:19], v%d, s[%d:%d], s46 offen sc1" % (FP2_OFF, V_L16, R_WS, R_WS+3)

def marks2(a):
    L = a.newlabel("Lm2")
    a("s_cmp_lg_u32 s%d, 0" % S_WAVE); a("s_cbranch_scc1 %s_x" % L)
    a("s_mov_b32 s47, 100000")
    a.label(L)
    for r in range(4): a("v_xor_b32 v%d, s%d, v%d" % (16+r, S_NONCE, 16+r))
    a("v_or3_b32 v16, v16, v17, v18"); a("v_or_b32 v16, v16, v19"); a("v_cmp_ne_u32 vcc, 0, v16"); a("s_cbranch_vccz %s_x" % L)
    a(FP2Q); a("s_waitcnt vmcnt(0)")
    a("s_sub_u32 s47, s47, 1"); a("s_cbranch_scc0 %s" % L)
    a.label(L + "_x")

def publish2(a, vt):
    L = a.newlabel("Lmp"); a("s_cmp_lg_u32 s%d, 0" % S_WAVE); a("s_cbranch_scc1 %s" % L); a.set_mark(vt, FP2_OFF); a.label(L)

def wflags(a, first, va, vd):
    a("s_mul_i32 s46, s65, 18"); a("s_add_u32 s46, s46, %d" % (FS + first))
    a("v_min_u32 v%d, 17, v%d" % (va, V_LANE)); a("v_add_u32 v%d, s46, v%d" % (va, va)); a("v_lshlrev_b32 v%d, 7, v%d" % (va, va))
    a("buffer_load_dword v%d, v%d, s[%d:%d], 0 offen offset:%d sc1" % (vd, va, R_WS, R_WS+3, FLAG0))

def phase345(a):
    a("s_mov_b32 s50, s74"); a("s_mov_b32 s51, s75"); a("s_mov_b32 s53, s76")
    a("s_cmp_ge_u32 s51, 6"); a("s_cbranch_scc1 L_p3_helper")
    a("v_add_u32 v5, 65536, v%d" % V_L16); a("v_add_u32 v6, 131072, v%d" % V_L16)
    a("s_mul_i32 s46, s%d, %d" % (S_WAVE, 1024*NE)); a("v_add_u32 v7, s46, v%d" % V_L16)
    a("s_mul_i32 s46, s%d, %d" % (S_WAVE, 1024*(27-NE))); a("v_add_u32 v8, s46, v%d" % V_L16)
    a("v_add_u32 v62, %d, v7" % (112*1024)); a("v_add_u32 v63, %d, v8" % (52*1024))
    LAY4, LAY5 = (0, 52), (112, 0)
    a("s_mul_i32 s54, s53, 18432")
    a("s_mul_i32 s55, s51, 3072"); a("s_add_u32 s55, s55, s54")
    a("v_lshlrev_b32 v9, 7, v%d" % V_LANE)
    a("s_lshl_b32 s46, s51, 2"); a("s_add_u32 s46, s46, s%d" % S_WAVE); a("s_mul_i32 s46, s46, 3072"); a("s_mul_i32 s78, s50, 73728"); a("s_add_u32 s78, s78, s46")
    def w2(i0, i1, sb=72, ab=AW2):
        return [("s_add_u32 s59, s%d, %d\n" % (sb, 1024*(i & ~3)) if (i % 4 == 0 or i == i0) else "") +
                "buffer_load_dwordx4 a[%d:%d], v%d, s[%d:%d], s59 offen offset:%d sc1" % (ab+4*i, ab+4*i+3, V_L16, R_WS, R_WS+3, 1024*(i & 3)) for i in range(i0, i1)]
    def park(ab, lay, late):
        if late: return ["ds_write_b128 v%d, a[%d:%d] offset:%d" % (63 if lay[1] else 8, ab+4*i, ab+4*i+3, 1024*(i - NE)) for i in range(NE, 27)]
        return ["ds_write_b128 v%d, a[%d:%d] offset:%d" % (62 if lay[0] else 7, ab+4*i, ab+4*i+3, 1024*i) for i in range(NE)]
    def aloads(off):
        for q in range(5): a("s_add_u32 s%d, s54, %d" % (60+q, off + 4096*q))
        return ["buffer_load_dwordx4 v[%d:%d], v%d, s[%d:%d], s%d offen offset:%d sc1" % (AF+4*j, AF+4*j+3, V_L16, R_WS, R_WS+3, 60+(j >> 2), 1024*(j & 3)) for j in range(18)]
    def ostores(src, off):
        a("s_add_u32 s46, s55, %d" % off)
        for jj in range(3): a("buffer_store_dwordx4 v[%d:%d], v%d, s[%d:%d], s46 offen offset:%d sc1" % (src+4*jj, src+4*jj+3, V_L16, R_WS, R_WS+3, 1024*jj))
    a("s_lshl_b32 s46, s53, 4"); a("v_add_u32 v20, s46, v%d" % V_R); a("s_mov_b32 s47, 18432")
    for k, sh in enumerate((1, -1, 2, -2)):
        a("v_subrev_u32 v21, %d, v20" % sh); a("v_ashrrev_i32 v22, 4, v21"); a("v_mul_lo_u32 v22, v22, s47")
        a("v_and_b32 v21, 15, v21"); a("v_lshl_add_u32 v21, v%d, 4, v21" % V_G); a("v_lshl_add_u32 v%d, v21, 4, v22" % (56+k))
    a("v_cmp_gt_u32 vcc, 32, v%d" % V_LANE); a("v_cndmask_b32 v60, v57, v56, vcc"); a("v_cndmask_b32 v61, v59, v58, vcc")
    def init3():
        for k in range(12):
            a("v_lshlrev_b32 v%d, 16, v%d" % (ACC+2*k, XT+k)); a("v_and_b32 v%d, 0xffff0000, v%d" % (ACC+2*k+1, XT+k))
    N2 = int(os.environ.get("N2", 0))
    n3 = max(N2, NE)
    gemm96(a, aloads(O_OFF), [pf_lds(0), pf_lds(1)] + w2(W1N, 27, 71, AW1) + w2(0, N2), SLEEP0["p3"] if N2 < 8 else 0, stamp="p3", extra=w2(N2, n3), early=park(AW1, LAY4, False), init=init3)
    a.stamp("p3_gemm")
    a(FP2Q)
    for k in range(12): a("v_cvt_pk_bf16_f32 v%d, v%d, v%d" % (HK+k, ACC+2*k, ACC+2*k+1))
    ostores(HK, H_OFF)
    out_stats(a, HK, 12, 10, SH_OFF)
    a.stamp("p3_epi")
    if a.stop == 3: a("s_waitcnt vmcnt(0)"); a("s_branch L_fin")
    for r in range(4): a("v_mov_b32 v%d, s%d" % (20+r, S_ONES))
    cs = [mfma(WB+4*(i//9), AW1+4*i, 20, None if i % 9 == 0 else WB+4*(i//9), ta="a") for i in range(27)]
    a("s_mul_i32 s46, s%d, 192" % S_WAVE); a("s_add_u32 s46, s46, %d" % (48*1024)); a("v_lshl_add_u32 v24, v%d, 4, s46" % V_G)
    g = G(); interleave(g, [cs[(i % 3)*9 + i//3] for i in range(27)], park(AW1, LAY4, True))
    st4 = g.lines
    st4 += ["s_nop 7"] + ["ds_write_b128 v24, v[%d:%d] offset:%d" % (WB+4*k, WB+4*k+3, 64*k) for k in range(3)]
    CS = 232
    sl = stats_loads(a, SH_OFF, 53, 10); a("s_mov_b32 s65, s46"); sl = [x.replace("s46", "s65") for x in sl]
    def fin4(wreads):
        a("v_lshlrev_b32 v24, 4, v%d" % V_G)
        for k in range(12): a("ds_read_b128 v[%d:%d], v24 offset:%d" % ((CS if k % 2 == 0 else ACC)+4*(k//2), (CS if k % 2 == 0 else ACC)+4*(k//2)+3, 48*1024 + 64*k))
        wreads()
        a("s_waitcnt vmcnt(%d)" % UP)
        for x in tag_ops(range(10, 14), 30): a(x)
        tag_branch(a, sl, range(10, 14), 30, al4[:UP])
        stats_finish(a, 10, VMEAN, VRSTD)
        a("v_mul_f32 v12, v%d, v%d" % (VRSTD, VRSTD)); a("v_mul_f32 v12, v12, v11"); a("v_add_f32 v12, %d, v12" % f32(1e-5))
        a("v_rsq_f32 v12, v12"); a("v_mul_f32 v16, %d, v%d" % (f32(GS), VRSTD)); a("v_mul_f32 v16, v12, v16"); a("v_mul_f32 v17, v16, -v%d" % VMEAN)
        a("s_waitcnt lgkmcnt(12)")
        for k in range(12): a("v_pk_add_f32 v[%d:%d], v[%d:%d], v[%d:%d]" % (CS+2*k, CS+2*k+1, CS+2*k, CS+2*k+1, ACC+2*k, ACC+2*k+1))
        for k in range(12): a("v_pk_mul_f32 v[%d:%d], v[%d:%d], v[16:17] op_sel:[0,1] op_sel_hi:[1,1]" % (CS+2*k, CS+2*k+1, CS+2*k, CS+2*k+1))
    if "d_mid" in ABL: a("s_sleep 64")
    al4 = aloads(H_OFF)
    gemm96(a, al4, st4, SLEEP0["p4"], pre=sl, each=fin4, stamp="p4", extra=w2(n3, 27), layout=LAY4, before=marks2)
    a.stamp("p4_gemm")
    gelu_consts(a)
    for k in range(12): a("v_pk_fma_f32 v[%d:%d], v[%d:%d], v[16:17], v[%d:%d] op_sel_hi:[1,0,1]" % (ACC+2*k, ACC+2*k+1, ACC+2*k, ACC+2*k+1, CS+2*k, CS+2*k+1))
    g = G(); gelu_pk(g, [ACC+2*k for k in range(12)], AF)
    interleave(a, g.lines, park(AW2, LAY5, False))
    for k in range(12): a("v_cvt_pk_bf16_f32 v%d, v%d, v%d" % (OS+k, ACC+2*k, ACC+2*k+1))
    ostores(OS, T_OFF)
    a.stamp("p4_epi")
    if a.stop == 4: a("s_waitcnt vmcnt(0)"); a("s_branch L_fin")
    a.srd(R_A, S_WS, ACT, T_OFF)
    for q in range(5): a("s_mov_b32 s%d, %d" % (70+q, 4096*q))
    def vsel(j): return 56 if j < 4 else 60 if j == 4 else 57 if j < 9 else 58 if j < 13 else 61 if j == 13 else 59
    tl = ["buffer_load_dwordx4 v[%d:%d], v%d, s[%d:%d], s%d offen offset:%d sc1" % (AF+4*j, AF+4*j+3, vsel(j), R_A, R_A+3, 70+(j >> 2), 1024*(j & 3)) for j in range(18)]
    roles6(a)
    wflags(a, 54, 54, 55)
    a("s_waitcnt vmcnt(4)")
    def init5():
        a("v_mul_f32 v17, v%d, -v%d" % (VRSTD, VMEAN)); a("v_mov_b32 v16, v%d" % VRSTD)
        for k in range(12):
            a("v_lshlrev_b32 v%d, 16, v%d" % (ACC+2*k, HK+k)); a("v_and_b32 v%d, 0xffff0000, v%d" % (ACC+2*k+1, HK+k))
        for k in range(12):
            a("v_pk_fma_f32 v[%d:%d], v[%d:%d], v[16:17], v[16:17] op_sel:[0,0,1] op_sel_hi:[1,0,1]" % (ACC+2*k, ACC+2*k+1, ACC+2*k, ACC+2*k+1))
    gemm96(a, tl, park(AW2, LAY5, True), SLEEP0["p5"], stamp="p5", layout=LAY5, init=init5)
    a.stamp("p5_gemm")
    for k in range(12): a("v_cvt_pk_bf16_f32 v%d, v%d, v%d" % (OS+k, ACC+2*k, ACC+2*k+1))
    ostores(OS, X1_OFF)
    out_stats(a, OS, 12, 10, SX_OFF)
    a.stamp("p5_epi")
    a("s_branch L_p5_pre")
    a.label("L_p3_helper")
    if "d_h3" in ABL: a("s_sleep 64")
    a("s_cmp_ge_u32 s48, 144"); a("s_cbranch_scc1 L_p3_touch")
    a("s_barrier")
    a(pf_lds(0)); a(pf_lds(1))
    swizzle_setup(a)
    a("s_add_u32 s48, s48, 54")
    for p in range(3):
        sw_big(a, 48, 60+3*p)
        a("s_lshl_b32 s53, s52, 10"); a("s_add_u32 s%d, s%d, s53" % (60+3*p, 60+3*p)); a("s_add_u32 s%d, s48, %d" % (62+3*p, FS))
        a("s_add_u32 s48, s48, 1")
    a("s_waitcnt vmcnt(0)"); a("s_barrier")
    for p in range(3): sw_process(a, p, W_LDS + 36864*p)
    a("s_waitcnt vmcnt(0)"); a("s_barrier")
    sw_flags(a, range(3))
    a.stamp("h_w3")
    a.label("L_p3_touch")
    roles6(a)
    NL = (SW << LCH)//128//32
    a("s_lshr_b32 s46, s65, %d" % LCH); a("s_mul_i32 s46, s46, %d" % (SW << LCH))
    a("s_and_b32 s47, s74, 3"); a("s_lshl_b32 s47, s47, 1"); a("s_add_u32 s47, s47, s75"); a("s_sub_u32 s47, s47, 6")
    if "xcd4" not in ABL:
        NL = BW//128//256
        a("s_mov_b32 s46, 0"); a("s_lshl_b32 s47, s74, 1"); a("s_add_u32 s47, s47, s75"); a("s_sub_u32 s47, s47, 6")
    a("s_lshl_b32 s47, s47, 2"); a("s_add_u32 s47, s47, s%d" % S_WAVE); a("s_mul_i32 s47, s47, %d" % (128*NL)); a("s_add_u32 s46, s46, s47")
    a.srd(R_A, S_W4, BW)
    a("v_lshlrev_b32 v10, 7, v%d" % V_LANE)
    for q in range(-(-NL//64) if "late4" not in ABL else 0):
        if NL - 64*q < 64: a("s_bfm_b64 exec, %d, 0" % (NL - 64*q))
        a("buffer_load_dword v11, v10, s[%d:%d], s46 offen" % (R_A, R_A+3)); a("s_add_u32 s46, s46, 8192")
    a("s_mov_b64 exec, -1")
    a.stamp("h_w4")
    wflags(a, 54, 54, 55)
    a(FP2Q)
    a("s_waitcnt vmcnt(0)")
    marks2(a)
    a.label("L_p5_pre")
    a.label("L_p5_done")
    a.stamp("p5_done")

WFL = os.environ.get("WFL", " sc1")
OFL = os.environ.get("OFL", "")
LCH = int(os.environ.get('LCH', 1))
RING = 184

def roles6(a):
    L = LCH
    a("s_lshr_b32 s46, s%d, %d" % (S_XCD, 3-L)); a("s_lshl_b32 s64, s46, %d" % (5-L)); a("s_lshr_b32 s67, s%d, %d" % (S_SLOT, L)); a("s_add_u32 s64, s64, s67")
    a("s_and_b32 s67, s67, 7")
    a("s_mov_b32 s67, 0")
    a("s_and_b32 s46, s%d, %d" % (S_XCD, (8 >> L) - 1)); a("s_lshl_b32 s65, s46, %d" % L); a("s_and_b32 s46, s%d, %d" % (S_SLOT, (1 << L) - 1)); a("s_add_u32 s65, s65, s46")
    a("s_lshl_b32 s46, s65, 2"); a("s_add_u32 s46, s46, s%d" % S_WAVE); a("s_mul_i32 s66, s46, %d" % (9*18432)); a("s_add_u32 s66, s66, %d" % W3_S)

def wload(j, s=58, ring=("a", RING)):
    o = "s_add_u32 s%d, s%d, 4096\n" % (s, s) if (j and j % 4 == 0) else ""
    return o + ("buffer_load_dwordx4 %s[%d:%d], v%d, s[%d:%d], s%d offen offset:%d" + WFL) % (ring[0], ring[1]+4*j, ring[1]+4*j+3, V_L16, R_WS, R_WS+3, s, 1024*(j & 3))

def ring_prefill(a, s):
    a("s_mul_i32 s%d, s67, 18432" % s); a("s_add_u32 s%d, s%d, s66" % (s, s))
    return [wload(j, s) for j in range(18)]

def norm_pk(x, vs, t):
    o = []
    for r in range(4):
        o.append("v_lshlrev_b32 v%d, 16, v%d" % (t+2*r, x+r)); o.append("v_and_b32 v%d, 0xffff0000, v%d" % (t+2*r+1, x+r))
    for r in range(4): o.append("v_pk_fma_f32 v[%d:%d], v[%d:%d], v[%d:%d], v[%d:%d] op_sel:[0,0,1] op_sel_hi:[1,0,1]" % (t+2*r, t+2*r+1, t+2*r, t+2*r+1, vs, vs+1, vs, vs+1))
    for r in range(4): o.append("v_cvt_pk_bf16_f32 v%d, v%d, v%d" % (x+r, t+2*r, t+2*r+1))
    return o

def phase6(a):
    AC, PK, RB, GT, XR = 40, 72, 80, 136, 64
    HB = 73728
    def xf(T, j):
        f = 4*j + T
        return ("a", 4*f) if f < 46 else ("v", 152 + 4*(f-46))
    a("s_mov_b32 s50, s64"); a("s_mov_b32 s51, s65"); a("s_mov_b32 s54, s66"); a("s_mov_b32 s52, s67")
    a("s_lshl_b32 s53, s50, 2"); a("s_add_u32 s53, s53, s%d" % S_WAVE)
    a("s_mul_i32 s56, s50, 72"); a("s_add_u32 s56, s56, s51"); a("s_lshl_b32 s56, s56, 2"); a("s_add_u32 s56, s56, s%d" % S_WAVE)
    a("s_lshl_b32 s56, s56, 11"); a("s_add_u32 s56, s56, %d" % PART)
    a("s_mul_i32 s46, s53, 18432")
    for q in range(5): a("s_add_u32 s%d, s46, %d" % (70+q, X1_OFF + 4096*q))
    a("s_mul_i32 s46, s%d, 18432" % S_WAVE); a("v_add_u32 v5, s46, v%d" % V_L16)
    sl = stats_loads(a, SX_OFF, 53, 10)
    a("s_mov_b32 s60, s46")
    sl = [x.replace("s46", "s60") for x in sl]
    a("v_mov_b32 v28, 0")
    a("global_load_dword v29, v28, s[%d:%d] sc1" % (S_DBG, S_DBG+1))
    L = a.newlabel("Lh")
    a("s_cmp_lg_u32 s%d, 0" % S_WAVE); a("s_cbranch_scc1 %s" % L)
    a("v_cmp_ne_u32 vcc, s%d, v55" % S_NONCE); a("s_cbranch_vccz %s" % L)
    a("v_lshrrev_b32 v54, 7, v54")
    a.poll(54, 55, sleep0=0)
    a.label(L)
    a("s_barrier")
    pre = ring_prefill(a, 59)
    NP = SLEEP0["p6"]
    for x in pre[:NP]: a(x)
    a.stamp("p6_ready")
    a("s_mov_b32 s79, 50000")
    for x in sl: a(x)
    def xload(j): return "buffer_load_dwordx4 v[%d:%d], v%d, s[%d:%d], s%d offen offset:%d sc1" % (XR+4*j, XR+4*j+3, V_L16, R_WS, R_WS+3, 70+(j >> 2), 1024*(j & 3))
    for j in range(UP): a(xload(j))
    a("v_add_u32 v32, 36864, v%d" % V_L16); a("v_add_u32 v33, %d, v%d" % (HB, V_L16)); a("v_add_u32 v34, %d, v%d" % (HB+36864, V_L16))
    a("s_lshr_b32 s46, s%d, 1" % S_WAVE); a("s_lshl_b32 s46, s46, 12"); a("s_and_b32 s47, s%d, 1" % S_WAVE); a("s_lshl_b32 s47, s47, 3")
    a("s_add_u32 s46, s46, s47"); a("v_add_u32 v35, s46, v33")
    gelu_consts(a)
    R3, ST, SEL, RS = 12, 32, 6, RB
    def natsel(d, sr, bit, t):
        o = ["s_bfe_u32 s66, s%d, %d" % (sr, 0x10000 + bit), "s_lshl_b32 s66, s66, 1", "v_lshrrev_b32 v%d, 3, v%d" % (t, V_R), "v_add_u32 v%d, s66, v%d" % (t, t),
             "v_cmp_eq_u32 s[66:67], v%d, v%d" % (t, V_G), "v_and_b32 v%d, 1, v%d" % (t, V_R), "v_lshlrev_b32 v%d, 4, v%d" % (t, t),
             "v_mov_b32 v%d, 0x3f80" % (t+1), "v_lshlrev_b32 v%d, v%d, v%d" % (t+1, t, t+1), "v_cndmask_b32 v%d, 0, v%d, s[66:67]" % (t+1, t+1),
             "v_bfe_u32 v%d, v%d, 1, 2" % (t, V_R)]
        for k in range(4): o += ["v_cmp_eq_u32 s[66:67], %d, v%d" % (k, t), "v_cndmask_b32 v%d, 0, v%d, s[66:67]" % (d+k, t+1)]
        return o
    a("v_lshrrev_b32 v26, 2, v%d" % V_R); a("v_cmp_eq_u32 s[64:65], v26, v%d" % V_G)
    a("v_and_b32 v26, 1, v%d" % V_R); a("v_lshlrev_b32 v26, 4, v26"); a("v_mov_b32 v27, 0x3f80"); a("v_lshlrev_b32 v27, v26, v27")
    a("v_cndmask_b32 v27, 0, v27, s[64:65]"); a("v_and_b32 v26, 2, v%d" % V_R); a("v_cmp_eq_u32 vcc, 0, v26")
    a("v_cndmask_b32 v%d, 0, v27, vcc" % (SEL+2)); a("v_cndmask_b32 v%d, v27, 0, vcc" % (SEL+3))
    for r in (0, 1): a("v_mov_b32 v%d, 0" % (SEL+r))
    for x in natsel(36, S_WAVE, 0, 26): a(x)
    def bload(reg, s, off=0, t="a"): return "buffer_load_dwordx4 %s[%d:%d], v%d, s[%d:%d], s%d offen offset:%d sc1" % (t, reg, reg+3, V_L16, R_WS, R_WS+3, s, off)
    a("s_waitcnt vmcnt(%d)" % UP)
    for x in tag_ops(range(10, 14), 30): a(x)
    tag_branch(a, sl, range(10, 14), 30, [xload(j) for j in range(UP)])
    a.stamp("p6_st")
    stats_finish(a, 10, 17, 16)
    a("v_mul_f32 v16, s48, v16"); a("v_mul_f32 v17, v16, -v17")
    a("s_mul_i32 s60, s50, 73728")
    a("s_lshl_b32 s46, s51, 1"); a("s_lshr_b32 s47, s%d, 1" % S_WAVE); a("s_add_u32 s46, s46, s47"); a("s_lshl_b32 s46, s46, 10"); a("s_add_u32 s78, s46, s60")
    order = [("x", j) for j in range(UP)]
    todo = [("x", j) for j in range(UP, 18)] + [("w", j) for j in range(NP, 18)]
    for j in range(18):
        a("s_waitcnt vmcnt(%d)" % (len(order) - 1 - order.index(("x", j))))
        for x in tag_ops(range(XR+4*j, XR+4*j+4), 30): a(x)
        n = 1 if j < 10 else -(-len(todo)//(18-j))
        for k, q in todo[:n]:
            a(xload(q) if k == "x" else pre[q]); order.append((k, q))
        del todo[:n]
        later = [q for k, q in order if k == "x" and q > j]
        tag_branch(a, [xload(j)], range(XR+4*j, XR+4*j+4), 30, [xload(q) for q in later], drain=order[-1][0] == "w")
        if j in (9, 17): a.stamp("p6_x%d" % j)
        for x in norm_pk(XR+4*j, 16, 20): a(x)
        a("ds_write_b128 v5, v[%d:%d] offset:%d" % (XR+4*j, XR+4*j+3, 1024*j))
    assert not todo
    LT = 1 if "late4" in ABL else 0
    if LT:
        a.srd(R_A, S_W4, BW)
        a("s_lshl_b32 s46, s2, 2"); a("s_add_u32 s46, s46, s%d" % S_WAVE); a("s_mul_i32 s46, s46, %d" % (41*128))
        a("v_lshlrev_b32 v30, 7, v%d" % V_LANE); a("s_bfm_b64 exec, 41, 0")
        a("buffer_load_dword v31, v30, s[%d:%d], s46 offen" % (R_A, R_A+3))
        a("s_mov_b64 exec, -1")
    a("v_readfirstlane_b32 s%d, v29" % S_NONCE)
    for r in (4, 5): a("v_mov_b32 v%d, 0" % (SEL+r))
    a("s_waitcnt lgkmcnt(0)"); a("s_barrier")
    a.stamp("p6_x")
    def fread(j, va):
        o = []
        for T in range(4):
            t, r = xf(T, j)
            o.append("ds_read_b128 %s[%d:%d], v%d offset:%d" % (t, r, r+3, va[T >> 1], (T & 1)*18432 + 1024*j))
        return o
    def gelu(ac):
        b = gelu_poly([ac+2*k for k in range(8)], GT)
        o = []
        for T in range(4):
            x = ac + 4*T; t = GT + 4*T
            o += ["v_exp_f32 v%d, -v%d" % (t+i, t+i) for i in range(4)]
            o += ["v_fma_f32 v%d, v%d, s48, s48" % (t+i, t+i) for i in range(4)]
            o += ["v_rcp_f32 v%d, v%d" % (t+i, t+i) for i in range(4)]
            o += ["v_mul_f32 v%d, v%d, v%d" % (t+i, t+i, x+i) for i in range(4)]
            o += ["v_cvt_pk_bf16_f32 v%d, v%d, v%d" % (PK+2*T+h, t+2*h, t+2*h+1) for h in range(2)]
            o.append("ds_write_b64 v5, v[%d:%d] offset:%d" % (PK+2*T, PK+2*T+1, 1024*T))
        return b, o
    def wt(op): return 2 if op.startswith(("v_exp", "v_rcp")) else min(2, len(op.split("\n")))
    RA = ("a", RING); RBB = ("v", RB)
    def subpass(ac, fill, first=None, loads=None, at=None, ring=RA, depth=18, batch=(), head=(), c0=None, more=None):
        if "p6nogelu" in ABL and len(fill) > 20: fill = []; batch = ()
        if "p6nost" in ABL: fill = [x for x in fill if "buffer_store" not in x]
        fill = list(fill); head = list(head)
        seq = [(2*p + q, T) for p in range(9) for T in range(4) for q in range(2)]
        LA = 12
        rd = [fread(j, first)[T] for j, T in seq] if first else []
        for x in rd[:LA]: a(x)
        def wait(m):
            w = []
            if m % 8 == 0: w.append("vmcnt(%d)" % (depth - 2 + (more(m//4 - 1) if more else 0)))
            if first and m % 2 == 0: w.append("lgkmcnt(%d)" % max(0, min(LA, 72 - m) - 2))
            return "s_waitcnt " + " ".join(w) if w else None
        for m, (j, T) in enumerate(seq):
            if wait(m): a(wait(m))
            if at and m % 4 == 0 and m//4 in at: at[m//4]()
            t, r = xf(T, j)
            a(mfma(ac+4*T, ring[1]+4*j, r, (None if c0 is None else c0+4*T) if j == 0 else ac+4*T, ta=ring[0], tb=t))
            room = 2
            if m + LA < len(rd): a(rd[m + LA]); room -= 1
            if m < 3:
                n = (len(head) + 2 - m)//(3 - m)
                for x in head[:n]: a(x)
                del head[:n]
            if m == 3:
                for x in batch: a(x)
            if T == 3:
                ld = "" if ("p6nold" in ABL and loads is None) else (loads(j) if loads else wload(j, 58, ring))
                if ld: a(ld); room -= len(ld.split("\n"))
            if m < 71 and wait(m+1): room -= 1
            if m < 4: continue
            left = 71 - m
            while fill and (wt(fill[0]) <= room or sum(wt(x) for x in fill) > 2*left - (left+3)//4*2 + 1):
                room -= wt(fill[0]); a(fill.pop(0))
        assert not fill
    def nexttile():
        return ["s_mov_b32 s62, s61", "s_add_u32 s61, s61, 1", "s_add_u32 s54, s54, 18432", "s_mov_b32 s58, s54",
                "s_lshl_b32 s46, s62, 13", "v_add_u32 v5, s46, v35"]
    a("s_mov_b32 s61, 0"); a("s_add_u32 s54, s54, 18432"); a("s_mov_b32 s58, s54")
    for r in range(4): a("v_mov_b32 v%d, -1" % (PK+r))
    pois = []
    for k in (6, 7):
        pois.append("s_add_u32 s46, s51, %d\ns_and_b32 s46, s46, 7\ns_lshl_b32 s46, s46, 16\ns_add_u32 s62, s46, s56\n" % k +
                    "buffer_store_dwordx4 v[%d:%d], v%d, s[%d:%d], s62 offen sc1" % (PK, PK+3, V_L16, R_WS, R_WS+3))
        pois.append("buffer_store_dwordx4 v[%d:%d], v%d, s[%d:%d], s62 offen offset:1024 sc1" % (PK, PK+3, V_L16, R_WS, R_WS+3))
    res = ["s_add_u32 s62, s78, %d\n" % ((X1_OFF, H_OFF)[j >> 2] + 18432*(j & 3)) + bload(RS+4*j, 62, t="v") for j in range(8)]
    def resadd():
        a("s_waitcnt vmcnt(9)")
        for k in range(2):
            for T in range(4): a(mfma(R3+4*T, 36, RS+16*k+4*T, None if k == 0 else R3+4*T))
    ev0 = {j: (lambda j=j: a(res[j])) for j in range(8)}
    ev0[16] = resadd
    ev0[17] = lambda: [a(x) for x in pois]
    subpass(AC, [], first=(V_L16, 32), at=ev0, more=lambda j: min(j+1, 8) + LT)
    a.stamp("p6_p0")
    WF, DA, TA = RING+48, RB+16, RB+22
    a.srd(R_B, S_W4, BW + 4096, -4096)
    a("v_lshrrev_b32 v30, 3, v%d" % V_LANE); a("v_bfe_u32 v31, v%d, 4, 1" % V_LANE); a("v_lshlrev_b32 v31, 1, v31")
    a("v_and_b32 v%d, 7, v%d" % (TA, V_LANE)); a("v_xor_b32 v31, v31, v%d" % TA); a("v_mul_u32_u24 v30, 1152, v30")
    a("v_lshl_add_u32 v%d, v31, 4, v30" % DA); a("v_xor_b32 v31, 4, v31"); a("v_lshl_add_u32 v%d, v31, 4, v30" % (DA+1))
    for q in (5, 4, 3, 2, 1, 0): a("v_add_u32 v%d, %d, v%d" % (DA+q, 9216*q - 1024*(q % 3) + 4096, DA + (q & 1)))
    a("v_lshrrev_b32 v30, 2, v%d" % V_R); a("v_lshl_add_u32 v31, v%d, 3, v30" % V_G); a("v_lshlrev_b32 v31, 7, v31")
    a("v_lshrrev_b32 v30, 1, v30"); a("v_and_b32 v%d, 1, v%d" % (TA, V_G)); a("v_lshl_add_u32 v30, v%d, 1, v30" % TA)
    a("v_xor_b32 v30, s%d, v30" % S_WAVE); a("v_lshl_add_u32 v31, v30, 5, v31"); a("v_and_b32 v30, 3, v%d" % V_R)
    a("v_lshl_add_u32 v%d, v30, 3, v31" % TA)
    a("s_mul_i32 s55, s51, 12"); a("s_add_u32 s55, s55, s%d" % S_WAVE); a("s_mul_i32 s55, s55, %d" % (48*1152))
    a("s_mul_i32 s63, s%d, 6144" % S_WAVE)
    a("s_barrier")
    a("s_mov_b32 s59, 0")
    a.label("L_p6_a")
    for half in (1, 0):
        b, o = gelu(AC+16*(1-half))
        subpass(AC+16*half, o, batch=b, head=nexttile())
    a("s_add_u32 s59, s59, 1"); a("s_cmp_lt_u32 s59, 3"); a("s_cbranch_scc1 L_p6_a")
    b, o = gelu(AC)
    subpass(AC+16, o, batch=b, head=nexttile())
    CH = 24576
    def slot(n): return n % 3 if n < 6 else (n + 3) % 6
    def src(c, s): return "s_add_u32 s58, s%d, %d" % (s, 192*1152*c)
    def dma(n, s):
        o = []
        for q in range(6):
            pre = src(n % 3, s) + "\n" if q == 0 else ""
            if q % 3 == 0: pre = "s_add_u32 m0, s63, %d\n" % (CH*slot(n) + 1024*q) + (pre or "s_nop 0\n")
            o.append(pre + "buffer_load_dwordx4 v%d, s[%d:%d], s58 offen offset:%d lds" % (DA+q, R_B, R_B+3, 1024*(q % 3)))
        return o
    def origin(d, step):
        if step == 0: return ["s_add_u32 s%d, s55, 1024" % d]
        return ["s_add_u32 s46, s51, %s" % step, "s_and_b32 s46, s46, 7", "s_lshl_b32 s46, s46, 7", "s_add_u32 s%d, s55, s46" % d]
    for x in origin(64, 0) + origin(65, 1): a(x)
    d012 = dma(0, 64) + dma(1, 64) + dma(2, 64)
    b, o = gelu(AC+16)
    subpass(AC, o, batch=b, head=nexttile(), loads=lambda j: d012[j])
    a("s_lshl_b32 s46, s61, 13"); a("v_add_u32 v5, s46, v35")
    raw = [(src(j//6, 65).replace("s58", "s59") + "\n" if j % 6 == 0 else "") + "buffer_load_dwordx4 a[%d:%d], v%d, s[%d:%d], s59 offen offset:%d" % (RING+4*j, RING+4*j+3, DA + j % 6, R_B, R_B+3, 1024*(j % 3)) for j in range(18)]
    a("v_add_u32 v35, s63, v%d" % V_L16)
    a("s_waitcnt vmcnt(12) lgkmcnt(0)"); a("s_barrier")
    a.stamp("p6_a")
    def park(c): return ["ds_write_b128 v%d, a[%d:%d] offset:%d" % (RB+26, RING+24*c+4*q, RING+24*c+4*q+3, CH*c + 1024*q) for q in range(6)]
    def pstore(ac):
        o = ["v_cvt_pk_bf16_f32 v%d, v%d, v%d" % (PK+k, ac+2*k, ac+2*k+1) for k in range(8)]
        o += ["buffer_store_dwordx4 v[%d:%d], v%d, s[%d:%d], s62 offen offset:%d sc1" % (PK+4*p, PK+4*p+3, V_L16, R_WS, R_WS+3, 1024*p) for p in range(2)]
        return o
    def dest(step):
        if step == 0: return ["s_add_u32 s62, s56, %d" % (8*65536)]
        return ["s_add_u32 s46, s51, %s" % step, "s_and_b32 s46, s46, 7", "s_lshl_b32 s46, s46, 16", "s_add_u32 s62, s46, s56"]
    def wf(pp): return (RB, RB+8, ST)[pp % 3]
    def wread(n, p):
        o = ["v_add_u32 v%d, %d, v%d" % (TA+1, CH*slot(n), TA)] if p == 0 else []
        pp = 3*n + p
        return o + ["ds_read_b64_tr_b16 v[%d:%d], v%d offset:%d" % (wf(pp)+4*q+2*hh, wf(pp)+4*q+2*hh+1, TA+1, 4096*(2*p+q) + 512*hh) for q in range(2) for hh in range(2)]
    def step(s, ac, fill, head=(), first=None, c0=None, before={}, after={}, at={}, batch=(), hurry=None, evens=()):
        if "p6nost" in ABL: fill = [x for x in fill if "buffer_store" not in x]
        if "p6nold" in ABL: after = {k: [x for x in v if " lds" not in x] or ["s_nop 0"] for k, v in after.items()}
        fill = list(fill); head = list(head); lg = list(step.lg); nfill = len(fill)
        seq = [(2*p + q, T) for p in range(9) for T in range(4) for q in range(2)]
        hr = ["ds_read_b128 %s[%d:%d], v%d offset:%d" % (xf(T, j)[0], xf(T, j)[1], xf(T, j)[1]+3, first[j//9], 1024*(4*(j % 9) + T)) for j, T in seq] if first else []
        def lds(x, tag):
            a(x)
            if x.startswith("ds_"): lg.append(tag)
        def upto(tag):
            if tag in lg:
                n = len(lg) - 1 - max(i for i, t in enumerate(lg) if t == tag)
                a("s_waitcnt lgkmcnt(%d)" % min(n, 15)); del lg[:len(lg) - min(n, 15)]
                return 1
            return 0
        for i, x in enumerate(hr[:8]): lds(x, ("h", i))
        extra = [(w - 72, x) for w, x in step.extra]
        for m, (j, T) in enumerate(seq):
            p, c = m//8, m//24
            room = 2
            if m % 24 == 8 and 3*s + c < 26:
                if c in before: before[c]()
                upto("x")
                if "p6nobar" not in ABL: a("s_barrier")
                assert not extra
                ex = after.get(c, []); extra = [(m + 24*k//len(ex), x) for k, x in enumerate(ex)]
            if m % 8 == 0:
                upto(("w", 9*s + p))
                nx = wread(3*s + (p+2)//3, (p+2) % 3) if 9*s + p < 79 else []
            if m % 2 == 0 and first: upto(("h", m+1))
            if m % 4 == 0 and m//4 in at: at[m//4]()
            t, r = xf(T, j)
            a(mfma(ac+4*T, wf(9*s+p)+4*(j & 1), r, (None if c0 is None else c0+4*T) if j == 0 else ac+4*T, tb=t))
            if nx:
                lds(nx.pop(0), ("w", 9*s + p + 2)); room -= 1
            if m + 8 < len(hr): lds(hr[m+8], ("h", m+8)); room -= 1
            if m < 3:
                n = (len(head) + 2 - m)//(3 - m)
                for x in head[:n]: a(x)
                del head[:n]
            while extra and extra[0][0] <= m:
                lds(extra.pop(0)[1], "x"); room -= 1
            if m % 2 == 0 and m//2 < len(evens): a(evens[m//2]); room -= 1
            if m == 3:
                for x in batch: a(x)
            if m >= 4:
                while fill and (wt(fill[0]) <= room or hurry and len(fill)*(hurry - 3) > nfill*(hurry - m)):
                    room -= wt(fill[0]); lds(fill.pop(0), "x")
        assert not fill
        step.lg = lg; step.extra = extra
    def mix(x, y): return [z for pair in zip(x, y) for z in pair]
    def vm(n): return lambda: a("s_waitcnt vmcnt(%d)" % n)
    def seq(*fs):
        def f():
            for x in fs: x()
        return f
    def wave(w, body):
        def f():
            L = a.newlabel("Lex"); a("s_cmp_lg_u32 s%d, %d" % (S_WAVE, w)); a("s_cbranch_scc1 %s" % L); body(); a.label(L)
        return f
    a("s_lshl_b32 s70, s50, 10"); a("s_add_u32 s70, s70, %d" % (FLAG0 + 128*FA)); a("s_lshl_b32 s46, s51, 7"); a("s_add_u32 s68, s70, s46")
    a("s_mul_i32 s46, s50, 9"); a("s_add_u32 s46, s46, s51"); a("s_lshl_b32 s46, s46, 16"); a("s_lshl_b32 s47, s%d, 11" % S_WAVE)
    a("s_add_u32 s46, s46, s47"); a("s_add_u32 s69, s46, %d" % PART)
    def publish(c):
        def f():
            a("s_add_u32 s46, s%d, %d" % (S_NONCE, c)); a("v_mov_b32 v29, s46"); a("s_mov_b64 exec, 1")
            a("buffer_store_dword v29, v28, s[%d:%d], s68 offen sc1" % (R_WS, R_WS+3))
            a("s_mov_b64 exec, -1")
        return wave(0, f)
    askq = "buffer_load_dword v31, v5, s[%d:%d], s70 offen sc1" % (R_WS, R_WS+3)
    ask = wave(0, lambda: a(askq))
    def need(c, n):
        def f():
            L = a.newlabel("Lcf")
            a("s_add_u32 s73, s%d, %d" % (S_NONCE, c)); a("s_mov_b32 s47, 100000"); a("s_waitcnt vmcnt(%d)" % n)
            a.label(L)
            a("v_subrev_u32 v30, s73, v31"); a("v_cmp_lt_u32 vcc, 7, v30"); a("s_cbranch_vccz %s_x" % L)
            a("s_sleep 1"); a(askq); a("s_waitcnt vmcnt(0)")
            a("s_sub_u32 s47, s47, 1"); a("s_cbranch_scc0 %s" % L)
            a.label(L + "_x")
        return wave(0, f)
    step.extra = []
    a("v_mov_b32 v%d, v33" % (RB+24)); a("v_mov_b32 v%d, v34" % (RB+25)); a("v_mov_b32 v%d, v35" % (RB+26))
    for x in wread(0, 0) + wread(0, 1): a(x)
    step.lg = [("w", 0)]*4 + [("w", 1)]*4
    A0, A1 = AC+16, AC
    b, o = gelu(AC)
    step(0, A0, o, first=(RB+24, RB+25), head=origin(64, 2), batch=b, hurry=48, evens=raw, before={0: vm(10), 1: vm(16)},
         after={1: ["s_waitcnt vmcnt(10)"] + mix(park(0), dma(6, 64)), 2: ["s_waitcnt vmcnt(12)"] + mix(park(1), dma(7, 64))})
    a.stamp("p6_s0")
    a("v_and_b32 v5, 7, v%d" % V_LANE); a("v_cmp_eq_u32 vcc, s51, v5"); a("v_xor_b32 v30, 1, v5")
    a("v_cndmask_b32 v5, v5, v30, vcc"); a("v_lshlrev_b32 v5, 7, v5")
    step(1, A1, pstore(A0), head=dest(0) + origin(65, 3), before={2: vm(18)},
         after={0: ["s_waitcnt vmcnt(12)"] + mix(park(2), dma(8, 64)), 1: dma(9, 65), 2: dma(10, 65)})
    a.stamp("p6_s1")
    a("s_mov_b32 s71, 2")
    a.label("L_p6_b")
    w18 = {0: vm(18), 1: vm(18), 2: vm(18)}
    def last(body):
        def f():
            L = a.newlabel("Ll"); a("s_cmp_eq_u32 s71, 4"); a("s_cbranch_scc0 %s" % L); body(); a.label(L)
        return f
    lg0 = list(step.lg); ex0 = list(step.extra)
    step(2, A0, pstore(A1), head=["s_sub_u32 s72, s71, 1"] + dest("s72") + ["s_add_u32 s72, s71, 2"] + origin(64, "s72"), before=w18,
         after={0: dma(11, 65), 1: dma(12, 64), 2: dma(13, 64)})
    step(3, A1, pstore(A0), head=dest("s71") + ["s_add_u32 s72, s71, 3"] + origin(65, "s72"), before={0: vm(18), 1: vm(18), 2: seq(vm(18), last(vm(10)))},
         after={0: dma(14, 64), 1: dma(15, 65), 2: dma(16, 65)}, at={15: last(publish(4))})
    assert [t[0] for t in step.lg] == [t[0] for t in lg0] and step.extra == ex0
    a("s_add_u32 s71, s71, 2"); a("s_cmp_lt_u32 s71, 6"); a("s_cbranch_scc1 L_p6_b")
    step.lg = [("w", t[1] + 36) for t in lg0]
    a.stamp("p6_s5")
    def SC(k): return (54, 57, 59, 61, 72, 75, 76)[k-1]
    for k in range(1, 8):
        r = SC(k); a("s_sub_u32 s%d, s51, %d" % (r, k)); a("s_and_b32 s%d, s%d, 7" % (r, r)); a("s_lshl_b32 s%d, s%d, 13" % (r, r)); a("s_add_u32 s%d, s%d, s69" % (r, r))
    CB = {k: ("v", RB + 24 + 8*(k-2)) if k > 1 else ("a", RING+48) for k in range(1, 8)}
    def cload(k): return [bload(CB[k][1]+4*p, SC(k), 1024*p, t=CB[k][0]) for p in range(2)]
    def emit(xs): return lambda: [a(x) for x in xs]
    def add(acc, k):
        def f():
            for T in range(4): a(mfma(acc+4*T, SEL if T & 1 else SEL+2, CB[k][1]+4*(T >> 1), acc+4*T, tb=CB[k][0]))
        return f
    step(6, A0, pstore(A1), head=dest(5) + origin(64, 8), before={0: vm(18), 1: vm(18), 2: seq(need(4, 6), vm(10))},
         after={0: dma(23, 65), 1: dma(24, 64), 2: dma(25, 64)}, at={6: ask, 15: publish(5), 16: emit(cload(1))})
    a.stamp("p6_s6")
    a("s_mul_i32 s46, s50, 9"); a("s_add_u32 s46, s46, 8"); a("s_lshl_b32 s46, s46, 16"); a("s_lshl_b32 s47, s51, 10")
    a("s_add_u32 s46, s46, s47"); a("s_add_u32 s78, s46, %d" % PART)
    a("s_and_b32 s46, s51, 1"); a("s_mul_i32 s74, s46, 36864"); a("s_add_u32 s74, s74, s60")
    a("s_lshr_b32 s47, s51, 2"); a("s_add_u32 s47, s47, 16"); a("s_lshl_b32 s46, s47, 10"); a("s_add_u32 s79, s46, s74")
    a("s_lshr_b32 s46, s51, 1"); a("s_lshl_b32 s46, s46, 5"); a("s_add_u32 s46, s46, 1024"); a("s_add_u32 s74, s74, s46")
    def extra_get():
        for k in range(8):
            a(bload(RING+4*k, 78)); a("s_add_u32 s78, s78, 8192")
        for k, off in enumerate((H_OFF, X1_OFF)):
            for T in range(2):
                a("s_add_u32 s46, s79, %d" % (off + 18432*T)); a(bload(RING+32+8*k+4*T, 46))
    step(7, A1, pstore(A0), head=dest(6), before={0: vm(18), 1: vm(18), 2: seq(need(5, 2), vm(18))}, after={0: dma(26, 64)},
         at={3: emit(cload(2)), 6: emit(cload(3)), 9: ask, 10: emit(cload(4)), 15: emit(cload(5))})
    a.stamp("p6_s7")
    SEv, EA = A1, A1+8
    g = G()
    g.lines += natsel(SEv, 51, 1, EA)
    OB = 147456
    g("v_mul_u32_u24 v%d, 144, v%d" % (A1+4, V_R)); g("v_lshl_add_u32 v%d, v%d, 3, v%d" % (A1+4, V_G, A1+4))
    g.lines.append("s_lshl_b32 s66, s%d, 5\ns_add_u32 s66, s66, %d" % (S_WAVE, OB))
    g("v_add_u32 v%d, s66, v%d" % (A1+4, A1+4))
    g("v_lshrrev_b32 v%d, 3, v0" % EA); g("v_and_b32 v%d, 7, v0" % (EA+1)); g("v_lshlrev_b32 v%d, 4, v%d" % (EA+1, EA+1))
    g("v_mul_u32_u24 v%d, 144, v%d" % (A1+5, EA)); g("v_add_u32 v%d, v%d, v%d" % (A1+5, A1+5, EA+1)); g("v_add_u32 v%d, %d, v%d" % (A1+5, OB, A1+5))
    g("v_mul_u32_u24 v%d, 1152, v%d" % (A1+6, EA)); g("v_add_u32 v%d, v%d, v%d" % (A1+6, A1+6, EA+1))
    g("v_mul_u32_u24 v%d, 1152, v%d" % (A1+7, V_R)); g("v_lshl_add_u32 v%d, v%d, 3, v%d" % (A1+7, V_G, A1+7))
    step(8, A0, pstore(A1) + g.lines, head=dest(7), c0=R3, before={0: vm(10), 1: vm(2)},
         at={8: add(A0, 1), 9: wave(3, extra_get), 10: add(A0, 2), 12: seq(add(A0, 3), emit(cload(6))),
             14: add(A0, 4), 16: add(A0, 5), 17: emit(cload(7))})
    a.stamp("p6_b")
    a.srd(R_A, S_OUT, ACT)
    a("s_cmp_lg_u32 s%d, 3" % S_WAVE); a("s_cbranch_scc1 L_p7_main")
    a("s_waitcnt vmcnt(4)")
    for k in range(8):
        a(mfma(EA, SEL+2, RING+4*k, None if k == 0 else EA, tb="a")); a(mfma(EA+4, SEL, RING+4*k, None if k == 0 else EA+4, tb="a"))
    for k in range(2):
        for T in range(2): a(mfma(EA+4*T, SEv, RING+32+8*k+4*T, EA+4*T, tb="a"))
    for T in range(2):
        for h in range(2): a("v_cvt_pk_bf16_f32 v%d, v%d, v%d" % (PK+2*T+h, EA+4*T+2*h, EA+4*T+2*h+1))
    a.label("L_p7_main")
    for k in (6, 7):
        base = CB[k][1]
        L = a.newlabel("Ltag")
        a("s_mov_b32 s47, 100000")
        a("s_waitcnt vmcnt(%d)" % (2 if k == 6 else 0))
        a.label(L)
        for x in tag_ops(range(base, base+8), 30): a(x)
        a("s_cbranch_vccz %s_x" % L)
        for x in cload(k): a(x)
        a("s_waitcnt vmcnt(0)")
        a("s_sub_u32 s47, s47, 1"); a("s_cbranch_scc0 %s" % L)
        a.label(L + "_x")
        add(A0, k)()
    a.stamp("p7_ready")
    a("s_cmp_lg_u32 s%d, 3" % S_WAVE); a("s_cbranch_scc1 L_p7_acc")
    for T in range(2):
        a("buffer_store_dwordx2 v[%d:%d], v%d, s[%d:%d], s74 offen%s" % (PK+2*T, PK+2*T+1, A1+7, R_A, R_A+3, OFL))
        a("s_add_u32 s74, s74, 18432")
    a.label("L_p7_acc")
    a("s_lshl_b32 s46, s51, 7"); a("s_add_u32 s46, s46, s60"); a("s_add_u32 s47, s46, 36864")
    for T in range(4):
        for h in range(2): a("v_cvt_pk_bf16_f32 v%d, v%d, v%d" % (R3+2*T+h, A0+4*T+2*h, A0+4*T+2*h+1))
        a("ds_write_b64 v%d, v[%d:%d] offset:%d" % (A1+4, R3+2*T, R3+2*T+1, 2304*T))
    a("s_waitcnt lgkmcnt(0)"); a("s_barrier")
    for p in range(2): a("ds_read_b128 v[%d:%d], v%d offset:%d" % (R3+8+4*p, R3+11+4*p, A1+5, 4608*p))
    for p in range(2):
        a("s_waitcnt lgkmcnt(%d)" % (1-p))
        a("buffer_store_dwordx4 v[%d:%d], v%d, s[%d:%d], s%d offen%s" % (R3+8+4*p, R3+11+4*p, A1+6, R_A, R_A+3, 46+p, OFL))
```

```python
from gen import *

NEG = 0xF149F2CA
SLEEP0 = dict(p2=0, p3=0, p4=0, p5=0, p6=18)
for _kv in os.environ.get('SLEEP', '').split(','):
    if _kv: SLEEP0[_kv.split('=')[0]] = int(_kv.split('=')[1])

W_LDS = 53248
AW1, AW2 = 40, 148
XT = 232
W1N = int(os.environ.get('W1N', 27))
PA, PS, R_C = 244, (3, 27, 45), R_B

def pf_lds(i):
    gq, k = divmod(i, 9)
    pre = ("s_mul_i32 s58, s79, %d\ns_add_u32 s58, s58, s73\ns_add_u32 m0, s58, %d\n" % (gq, 1024*k)) if k == 0 or i == 2 else ""
    post = "\ns_add_u32 m0, m0, 1024" if k < 8 and i != 1 else ""
    return pre + "buffer_load_dwordx4 v%d, s[%d:%d], s%d offen sc1 lds" % (PA+k, R_C, R_C+3, PS[gq]) + post

def roles345(a):
    a("s_lshr_b32 s46, s%d, 3" % S_SLOT); a("s_lshl_b32 s74, s%d, 2" % S_XCD); a("s_add_u32 s74, s74, s46"); a("s_add_u32 s75, s%d, 6" % S_SLOT); a("s_and_b32 s75, s75, 7")
    a("s_lshl_b32 s76, s74, 2"); a("s_add_u32 s76, s76, s%d" % S_WAVE)

def phase2(a):
    KL_, VL_ = 0, 27648
    a("s_lshr_b32 s50, s%d, 1" % S_SLOT); a("s_and_b32 s51, s%d, 1" % S_SLOT); a("s_lshl_b32 s46, s%d, 1" % S_XCD); a("s_add_u32 s51, s51, s46")
    a("s_mul_i32 s52, s51, %d" % HPSZ)
    a("s_add_u32 s46, s52, %d" % K_OFF); a.srd_s(R_A, S_WS, HPSZ, 46)
    a("s_add_u32 s46, s52, %d" % V_OFF); a.srd_s(R_B, S_WS, HPSZ, 46)
    a("s_mul_i32 s46, s50, 9216"); a("s_sub_u32 s46, s46, 18432"); a("s_lshl_b32 s47, s%d, 10" % S_WAVE); a("s_add_u32 s46, s46, s47")
    a("v_add_u32 v10, s46, v%d" % V_L16)
    for i in range(1, 7): a("v_add_u32 v%d, %d, v10" % (10+i, 4096*i))
    a("s_lshl_b32 s46, s50, 3"); a("s_lshl_b32 s53, s%d, 1" % S_WAVE); a("s_add_u32 s53, s53, s46")
    a("s_mul_i32 s54, s53, 1152"); a("s_add_u32 s54, s54, s52"); a("s_add_u32 s54, s54, %d" % Q_OFF)
    a("v_lshlrev_b32 v18, 4, v%d" % V_R)
    a("s_mul_i32 s46, s%d, 2304" % S_WAVE)
    a("v_add_u32 v20, s46, v%d" % V_L16)
    a("s_add_u32 s47, s46, 2048"); a("v_add_u32 v21, s47, v18")
    a("s_add_u32 s47, s46, %d" % VL_); a("v_add_u32 v22, s47, v%d" % V_L16)
    a("v_lshl_add_u32 v23, v%d, 2, v%d" % (V_R, V_G)); a("s_add_u32 s47, s47, 2048"); a("v_lshl_add_u32 v23, v23, 4, s47")
    for i in range(4):
        a("v_lshl_add_u32 v24, v%d, 2, %d" % (V_G, i)); a("v_cmp_gt_u32 s[%d:%d], v24, v%d" % (60+2*i, 61+2*i, V_R))
    a("v_cmp_eq_u32 s[68:69], 0, v%d" % V_G)
    a("v_mov_b32 v25, 0x%x" % NEG)
    for r in range(4): a("v_mov_b32 v%d, -1" % (228+r))
    a("v_and_b32 v225, 31, v%d" % V_LANE); a("v_lshlrev_b32 v225, 2, v225")
    VLA = 0
    for r in range(36): a("v_accvgpr_write_b32 a%d, s%d" % (VLA+r, S_ONES))
    roles345(a)
    a("s_mul_i32 s46, s75, 110592"); a("s_mul_i32 s47, s%d, 27648" % S_WAVE); a("s_add_u32 s70, s46, s47"); a("s_add_u32 s70, s70, %d" % WO_S)
    a("s_add_u32 s71, s70, %d" % SW); a("s_add_u32 s72, s71, %d" % SW)
    a("s_cmp_ge_u32 s75, 6"); a("s_cbranch_scc1 L_p2_hs")
    a("s_add_u32 s73, s47, %d" % W_LDS); a("s_mov_b32 s79, 9216")
    for gq in range(3): a("s_add_u32 s%d, s70, %d" % (PS[gq], 9216*gq))
    for i in range(9): a("v_add_u32 v%d, %d, v%d" % (PA+i, 1024*i, V_L16))
    a("s_mov_b32 s10, s%d" % S_WS); a("s_mov_b32 s11, s%d" % (S_WS+1)); a("s_mov_b32 s26, %d" % WS_END)
    a("s_branch L_p2_hd")
    a.label("L_p2_hs")
    a("s_mov_b32 s71, 0x70000000")
    a("s_mul_i32 s47, s%d, 9216" % S_WAVE); a("s_add_u32 s73, s47, %d" % W_LDS); a("s_mov_b32 s79, 36864")
    a("s_lshl_b32 s48, s74, 1"); a("s_add_u32 s48, s48, s75"); a("s_sub_u32 s48, s48, 6"); a("s_mul_i32 s48, s48, 3")
    a("s_mov_b32 s10, s%d" % S_W3); a("s_mov_b32 s11, s%d" % (S_W3+1)); a("s_mov_b32 s78, 9216")
    a("s_cmp_lt_u32 s48, 144"); a("s_cselect_b32 s26, %d, 0" % BW)
    for gq in range(3):
        a("s_add_u32 s46, s48, %d" % gq)
        a.sdiv(47, 56, 46, 18)
        a("s_lshl_b32 s56, s56, 2"); a("s_add_u32 s56, s56, s%d" % S_WAVE); a("s_mul_i32 s56, s56, %d" % (8*9216))
        a("s_mul_i32 s47, s47, 1152"); a("s_add_u32 s%d, s56, s47" % (PS[gq]))
    for i in range(9):
        a("v_add_u32 v24, %d, v%d" % (64*i, V_LANE)); a("v_mul_u32_u24 v26, 911, v24"); a("v_lshrrev_b32 v26, 16, v26")
        a("v_mul_u32_u24 v27, 72, v26"); a("v_sub_u32 v27, v24, v27"); a("v_mul_lo_u32 v26, v26, s78"); a("v_lshl_add_u32 v%d, v27, 4, v26" % (PA+i))
    a.label("L_p2_hd")
    a("v_mul_u32_u24 v7, 1152, v%d" % V_R); a("v_lshl_add_u32 v7, v%d, 4, v7" % V_G)
    a("s_mul_i32 s46, s76, 18432"); a("s_mul_i32 s47, s75, 192"); a("s_add_u32 s77, s46, s47")
    a("s_cmp_ge_u32 s75, 6"); a("s_cselect_b32 s77, 0x70000000, s77")
    L = a.newlabel("Lp2w")
    a("v_mov_b32 v19, %d" % (W_LDS + 4096))
    a("s_cmp_lg_u32 s%d, 0" % S_WAVE); a("s_cbranch_scc1 %s" % L)
    a("v_and_b32 v30, 2, v%d" % V_LANE); a("v_cmp_eq_u32 s[58:59], 0, v30"); a("v_cmp_gt_u32 vcc, 12, v%d" % V_LANE)
    a("s_andn2_b64 s[56:57], vcc, s[58:59]"); a("s_and_b64 s[58:59], vcc, s[58:59]")
    a("v_mov_b32 v34, 0x49800000"); a("v_mov_b32 v35, 0x7f800000")
    a("v_lshrrev_b32 v30, 2, v%d" % V_LANE); a("v_min_u32 v30, 2, v30"); a("v_add_u32 v30, s50, v30"); a("v_subrev_u32 v30, 2, v30"); a("v_max_i32 v30, 0, v30")
    a("v_bfe_u32 v31, v%d, 1, 1" % V_LANE); a("v_add_u32 v31, 1, v31"); a("v_cmp_gt_u32 vcc, 12, v%d" % V_LANE); a("v_cndmask_b32 v31, 0, v31, vcc")
    a("v_mul_u32_u24 v31, 576, v31"); a("v_and_b32 v32, 1, v%d" % V_LANE); a("v_mul_u32_u24 v32, 35, v32")
    a("s_mul_i32 s46, s51, 36"); a("v_add3_u32 v31, v31, v32, s46"); a("v_lshrrev_b32 v31, 7, v31")
    a("v_lshl_add_u32 v30, v30, 4, v31"); a("v_add_u32 v30, %d, v30" % F1)
    a.stamp("p2_setup")
    a.poll(30, 32, sleep0=SLEEP0["p2"], two=True)
    a("v_cndmask_b32 v30, 0, v33, s[58:59]"); a("v_cndmask_b32 v31, 0, v33, s[46:47]".replace("46:47", "56:57"))
    a("v_cmp_nle_f32 vcc, v31, v34"); a("v_cndmask_b32 v30, v30, v35, vcc")
    for r in (8, 4, 2, 1): a("v_max_f32_dpp v30, v30, v30 row_ror:%d row_mask:0xf bank_mask:0xf" % r)
    a("s_mov_b64 exec, 1"); a("ds_write_b32 v19, v30"); a("s_mov_b64 exec, -1"); a("s_waitcnt lgkmcnt(0)")
    a.label(L)
    a("s_barrier")
    a("ds_read_b32 v19, v19")
    a("v_min_u32 v38, 53, v%d" % V_LANE); a("v_add_u32 v38, %d, v38" % FS); a("v_lshlrev_b32 v38, 7, v38")
    fsq = "buffer_load_dword v39, v38, s[%d:%d], 0 offen offset:%d sc1" % (R_WS, R_WS+3, FLAG0)
    a.stamp("p2_ready")
    QR = 26
    a("buffer_load_dwordx4 v[%d:%d], v%d, s[%d:%d], s54 offen sc1" % (QR, QR+3, V_L16, R_WS, R_WS+3))
    a("buffer_load_dwordx4 v[%d:%d], v18, s[%d:%d], s54 offen offset:2048 sc1" % (QR+4, QR+7, R_WS, R_WS+3))
    a("buffer_load_dwordx4 v[%d:%d], v%d, s[%d:%d], s54 offen offset:1024 sc1" % (QR+8, QR+11, V_L16, R_WS, R_WS+3))
    a(fsq)
    a("s_lshl_b32 s46, s%d, 10" % S_WAVE)
    for R, base in ((R_A, KL_), (R_B, VL_)):
        for i in range(7):
            Ls = a.newlabel("Lp2d")
            if i == 6: a("s_cmp_eq_u32 s%d, 3" % S_WAVE); a("s_cbranch_scc1 %s" % Ls)
            a("s_add_u32 m0, s46, %d" % (base + 4096*i))
            a("buffer_load_dwordx4 v%d, s[%d:%d], 0 offen sc1 lds" % (10+i, R, R+3))
            if i == 6: a.label(Ls)
    a.srd(R_A, S_X, ACT)
    a("s_mov_b32 s%d, s10" % R_C); a("s_mov_b32 s%d, s11" % (R_C+1)); a("s_mov_b32 s%d, s26" % (R_C+2)); a("s_mov_b32 s%d, 0x20000" % (R_C+3))
    QF = 40
    a("s_waitcnt vmcnt(12)")
    for hd in range(2):
        for qt in range(2):
            q = QF + 12*hd + 6*qt
            for h in range(2): a("v_mov_b32 v%d, v%d" % (q+2+h, QR+8*hd+2*qt+h))
            a("v_cndmask_b32 v%d, 0, v%d, s[68:69]" % (q+hd, QR+4+2*qt+hd)); a("v_mov_b32 v%d, 0" % (q+1-hd))
            for h in range(2): a("v_mov_b32 v%d, v%d" % (q+4+h, q+h))
    for k in range(4):
        a("v_mov_b32 v%d, 0" % (216+k))
        for r in range(4):
            a("v_and_b32 v24, 0x7fff7fff, v%d" % (QF+6*k+r)); a("v_dot2c_f32_bf16 v%d, s%d, v24" % (216+k, S_ONES))
    a("v_max3_f32 v216, v216, v217, v218"); a("v_max_f32 v216, v216, v219")
    a.xg_reduce(216, 217)
    a("s_waitcnt lgkmcnt(0)"); a("v_mul_f32 v216, v19, v216"); a("v_mov_b32 v217, 0x42c00000"); a("v_cmp_nle_f32 s[58:59], v216, v217")
    MF, ML = 8, 12
    for i in range(4):
        a("v_cndmask_b32 v%d, v25, 0, s[%d:%d]" % (MF+i, 60+2*i, 61+2*i)); a("v_cndmask_b32 v%d, 0, v25, s[%d:%d]" % (ML+i, 60+2*i, 61+2*i))
    a("s_lshl_b32 s55, s50, 3"); a("s_lshl_b32 s46, s%d, 1" % S_WAVE); a("s_add_u32 s55, s55, s46"); a("s_sub_u32 s55, 16, s55"); a("s_max_i32 s55, s55, 0")
    a("s_lshl_b32 s56, s2, 2"); a("s_add_u32 s56, s56, s%d" % S_WAVE); a("s_mul_i32 s56, s56, 5120"); a("s_min_u32 s56, s56, %d" % (WO_S - T_OFF - 5120)); a("s_add_u32 s56, s56, %d" % T_OFF)
    L = a.newlabel("Lfs")
    a("s_cmp_lg_u32 s%d, 0" % S_WAVE); a("s_cbranch_scc1 %s" % L)
    a("v_cmp_ne_u32 vcc, s%d, v39" % S_NONCE); a("s_cbranch_vccz %s" % L)
    a("v_lshrrev_b32 v38, 7, v38")
    a.poll(38, 39, sleep0=0)
    a.label(L)
    a("s_waitcnt vmcnt(6)"); a("s_barrier")
    a.stamp("p2_loaded")
    a("s_cmp_lg_u64 s[58:59], 0")
    if "slow" in ABL: a("s_cmp_eq_u32 s2, s2")
    a("s_cbranch_scc1 L_p2_slow")
    a("s_cmp_lt_u32 s50, 2"); a("s_cbranch_scc1 L_p2_edge")
    M, NM, CZ = 16, 216, 26
    KF = 64
    S2, P, VM = 136, 168, 184
    S1 = S2
    OM, OL, R_, OUT = 192, 200, 32, 208
    marks = "s_mov_b32 s46, %d\nbuffer_load_dword v224, v225, s[%d:%d], s46 offen sc1" % (FP_OFF, R_WS, R_WS+3)
    def prefetch():
        o = [pf_lds(i) for i in range(2, 27)]
        for jj in range(3): o.append("buffer_load_dwordx4 v[%d:%d], v7, s[%d:%d], s77 offen offset:%d" % (XT+4*jj, XT+4*jj+3, R_A, R_A+3, 64*jj))
        for sb, ab in ((71, AW1),):
            for i in range(W1N):
                pre = "s_add_u32 s59, s%d, %d\n" % (sb, 1024*i) if i % 4 == 0 else ""
                o.append(pre + "buffer_load_dwordx4 a[%d:%d], v%d, s[%d:%d], s59 offen offset:%d sc1" % (ab+4*i, ab+4*i+3, V_L16, R_WS, R_WS+3, 1024*(i & 3)))
        return o
    for edge, slow in ((0, 0), (1, 0), (1, 1)):
      if edge: a.label("L_p2_slow" if slow else "L_p2_edge")
      pf = prefetch()
      if "x_nopf" in ABL: pf = ["s_nop 0"]*55
      if "x_nomk" in ABL: pf = ["s_nop 0" if "store" in x else x for x in pf]
      if "x_now1" in ABL: pf = ["s_nop 0" if " a[" in x else x for x in pf]
      def take(n):
          o = pf[:n]; del pf[:n]; return o
      for head in range(2):
        def Q(qt, t): return QF + 12*head + 6*qt + 2*(t & 1)
        def K(t): return KF + 4*t
        def kread(m):
            o = ["ds_read_b128 v[%d:%d], v20 offset:%d" % (KF+8*m+2, KF+8*m+5, 2304*m + 1024*head)]
            if head == 0: o += ["ds_read_b64 v[%d:%d], v21 offset:%d" % (KF+8*m+6*b, KF+8*m+6*b+1, 2304*m + 8*b) for b in range(2)]
            return o
        def vleft(m): return "ds_read_b128 a[%d:%d], v23 offset:%d" % (VLA+4*m, VLA+4*m+3, 2304*m + 128*head)
        def vmain(m): return "ds_read_b128 v[%d:%d], v22 offset:%d" % (VM+4*(m & 1), VM+4*(m & 1)+3, 2304*m + 1024*head)
        def has(qt, t): return (t <= 16) if qt == 0 else (t >= 1)
        def mask(reg, qt, t):
            o = []
            for i in range(4):
                if t == qt: o.append("v_cndmask_b32 v%d, v25, v%d, s[%d:%d]" % (reg+i, reg+i, 60+2*i, 61+2*i))
                if t == 16+qt: o.append("v_cndmask_b32 v%d, v%d, v25, s[%d:%d]" % (reg+i, reg+i, 60+2*i, 61+2*i))
            return o
        def switch(t, moves):
            Ls = a.newlabel("Lsw")
            a("s_cmp_eq_u32 s55, %d" % t); a("s_cbranch_scc0 %s" % Ls)
            for x in moves: a(x)
            a.label(Ls)
        if head:
            L = a.newlabel("Lmk")
            a("s_cmp_lg_u32 s%d, 0" % S_WAVE); a("s_cbranch_scc1 %s_x" % L)
            a("s_mov_b32 s47, 100000"); a("s_waitcnt vmcnt(%d)" % (npf0 - len(pf)))
            a.label(L)
            a("v_cmp_ne_u32 vcc, s%d, v224" % S_NONCE)
            a("s_cbranch_vccz %s_x" % L)
            a("s_sleep 2"); a(marks); a("s_waitcnt vmcnt(0)")
            a("s_sub_u32 s47, s47, 1"); a("s_cbranch_scc0 %s" % L)
            a.label(L + "_x")
            a("s_waitcnt vmcnt(20)"); a("s_barrier")
            publish2(a, 224)
        AH = 3
        for m in range(AH if slow else 2):
            for x in kread(m): a(x)
        if slow:
            a("v_mov_b32 v%d, v25" % M); a("v_mov_b32 v%d, v25" % (M+1))
            if edge:
                for i in range(4): a("v_mov_b32 v%d, v25" % (CZ+i))
            def c1(qt, t): return CZ if edge else MF if t == qt else ML if t == 16+qt else None
            def maxes(t):
                o = []
                for qt in range(2):
                    if not has(qt, t): continue
                    s = S1 + 8*(t % 3) + 4*qt
                    if edge: o += mask(s, qt, t)
                    o.append("v_max3_f32 v%d, v%d, v%d, v%d" % (M+qt, s, s+1, M+qt))
                for qt in range(2):
                    if not has(qt, t): continue
                    s = S1 + 8*(t % 3) + 4*qt
                    o.append("v_max3_f32 v%d, v%d, v%d, v%d" % (M+qt, s+2, s+3, M+qt))
                return o
            for t in range(18):
                if t % 2 == 0:
                    if edge: switch(t, ["v_mov_b32 v%d, 0" % (CZ+i) for i in range(4)])
                    a("s_waitcnt lgkmcnt(%d)" % (len(kread(0))*min(AH-1, 8 - t//2)))
                ms = [mfma(S1+8*(t % 3)+4*qt, K(t), Q(qt, t), c1(qt, t)) for qt in range(2) if has(qt, t)]
                fill = (kread(t//2+AH) if t % 2 == 0 and t//2+AH < 9 else []) + (maxes(t-2) if t >= 2 else []) + (take(1) if t % 3 == 1 and head else [])
                interleave(a, ms, fill)
        if head == 0:
            a("s_waitcnt vmcnt(%d)" % (28 + W1N - len(pf))); a("s_barrier")
            for q in range(5):
                if q == 4: a("s_add_u32 s56, s56, 4096")
                if "x_nomk" not in ABL: a("buffer_store_dwordx4 v[228:231], v%d, s[%d:%d], s56 offen offset:%d sc1" % (V_L16, R_WS, R_WS+3, 1024*(q & 3)))
            npf0 = len(pf); a(marks)
        a("s_mov_b32 exec_lo, 0x00030003"); a("s_mov_b32 exec_hi, 0x00030003")
        for m in range(9): a(vleft(m))
        a("s_mov_b64 exec, -1")
        a(vmain(0))
        if slow:
            for x in maxes(16) + maxes(17): a(x)
            for sw in ("v_permlane32_swap_b32", "v_permlane16_swap_b32"):
                for qt in range(2): a("v_mov_b32 v%d, v%d" % (30+qt, M+qt))
                for qt in range(2): a("%s v%d, v%d" % (sw, M+qt, 30+qt))
                for qt in range(2): a("v_max_f32 v%d, v%d, v%d" % (M+qt, M+qt, 30+qt))
            negs = ["v_sub_f32 v%d, 0, v%d" % (NM+4*qt+i, M+qt) for qt in range(2) for i in range(4)]
        else: negs = ["v_mov_b32 v%d, 0" % (NM+i) for i in range(4)]
        if edge:
            for i in range(len(negs)): a("v_mov_b32 v%d, v25" % (NM+i))
        def c2(qt, t): return NM+4*qt if slow else NM if edge else MF if t == qt else ML if t == 16+qt else None
        def qk(m):
            return [mfma(S2+16*(m & 1)+8*qt+4*b, K(2*m+b), Q(qt, b), c2(qt, 2*m+b)) for qt in range(2) for b in range(2) if has(qt, 2*m+b)]
        def pv(m):
            o = []
            for qt in range(2):
                p = P+8*(m & 1)+4*qt
                o.append(mfma(OM+4*qt, VM+4*(m & 1), p, None if m == 0 else OM+4*qt))
                o.append(mfma(OL+4*qt, VLA+4*m, p, None if m == 0 else OL+4*qt, ta="a"))
            return o
        if slow: switch(0, negs)
        else: a("s_waitcnt lgkmcnt(%d)" % min(15, 10 + len(kread(0))))
        for x in qk(0): a(x)
        for m in range(9):
            if edge and m < 8: switch(2*m+2, negs)
            mf = (qk(m+1) if m < 8 else []) + (pv(m-1) if m else [])
            va = []
            ld = take((3 if (m % 3 or head == 0) else 2) if slow else -(-len(pf)//(18 - 9*head - m)))
            for qt in range(2):
                p = P+8*(m & 1)+4*qt
                for b in range(2):
                    s = S2+16*(m & 1)+8*qt+4*b
                    if has(qt, 2*m+b):
                        if edge: va += mask(s, qt, 2*m+b)
                        va += ["v_exp_f32 v%d, v%d" % (s+i, s+i) for i in range(4)]
                    if ld and (b == 0 or qt == 0 or len(ld) > 0 and qt == 1 and b == 1): va.append(ld.pop(0))
                for b in range(2):
                    s = S2+16*(m & 1)+8*qt+4*b
                    if has(qt, 2*m+b):
                        va += ["v_cvt_pk_bf16_f32 v%d, v%d, v%d" % (p+2*b+h, s+2*h, s+2*h+1) for h in range(2)]
                    else:
                        va += ["v_mov_b32 v%d, 0" % (p+2*b+h) for h in range(2)]
            if slow:
                if m: a("s_waitcnt lgkmcnt(1)")
            else:
                a("s_waitcnt lgkmcnt(%d)" % (1 if m else 10))
                if m + 2 < 9: va = kread(m+2) + va
            interleave(a, mf, va)
            if m < 8: a(vmain(m+1))
        a("s_waitcnt lgkmcnt(0)")
        for x in pv(8): a(x)
        if head == 1:
            assert not pf
            a("s_mul_i32 s54, s53, 18432"); a("s_add_u32 s54, s54, %d" % O_OFF)
            a("s_lshl_b32 s46, s51, 10"); a("s_add_u32 s58, s46, s54"); a("s_add_u32 s59, s58, 18432")
            a("s_lshr_b32 s46, s51, 3"); a("s_add_u32 s46, s46, 16"); a("s_lshl_b32 s46, s46, 10"); a("s_add_u32 s54, s54, s46")
            a("s_and_b32 s46, s51, 7"); a("s_lshr_b32 s46, s46, 1"); a("s_lshl_b32 s46, s46, 8"); a("s_add_u32 s54, s54, s46")
            a("s_and_b32 s46, s51, 1"); a("s_lshl_b32 s46, s46, 3"); a("s_add_u32 s54, s54, s46"); a("s_add_u32 s47, s54, 18432")
        for qt in range(2): a("v_rcp_f32 v%d, v%d" % (30+qt, OL+4*qt+3))
        for qt in range(2):
            for i in range(4): a("v_mul_f32 v%d, v%d, v%d" % (OM+4*qt+i, OM+4*qt+i, 30+qt))
            for i in range(2): a("v_mul_f32 v%d, v%d, v%d" % (OL+4*qt+i, OL+4*qt+i, 30+qt))
        for qt in range(2):
            for h in range(2): a("v_cvt_pk_bf16_f32 v%d, v%d, v%d" % (OUT+4*qt+2*head+h, OM+4*qt+2*h, OM+4*qt+2*h+1))
            a("v_cvt_pk_bf16_f32 v%d, v%d, v%d" % (R_+2*qt+head, OL+4*qt, OL+4*qt+1))
      if not slow: a("s_branch L_p2_out")
    a.label("L_p2_out")
    a("buffer_store_dwordx4 v[%d:%d], v%d, s[%d:%d], s58 offen sc1" % (OUT, OUT+3, V_L16, R_WS, R_WS+3))
    a("buffer_store_dwordx4 v[%d:%d], v%d, s[%d:%d], s59 offen sc1" % (OUT+4, OUT+7, V_L16, R_WS, R_WS+3))
    a("s_mov_b64 exec, 0xffff")
    a("buffer_store_dwordx2 v[%d:%d], v%d, s[%d:%d], s54 offen sc1" % (R_, R_+1, V_L16, R_WS, R_WS+3))
    a("buffer_store_dwordx2 v[%d:%d], v%d, s[%d:%d], s47 offen sc1" % (R_+2, R_+3, V_L16, R_WS, R_WS+3))
    a("s_mov_b64 exec, -1")
    a.stamp("p2_done")
    if a.stop == 2:
        a("s_waitcnt vmcnt(0)")

_c0 = 2.0*math.log2(math.e)*math.sqrt(2/math.pi)
GS = (_c0*0.044715)**(1/3)
GK = _c0/GS

def gelu_consts(a): a("s_mov_b32 s48, %d" % f32(GS)); a("s_mov_b32 s49, %d" % f32(GK))

def gelu_poly(regs, t):
    o = ["v_pk_fma_f32 v[%d:%d], v[%d:%d], v[%d:%d], s[48:49] op_sel:[0,0,1] op_sel_hi:[1,1,1]" % (t+2*k, t+2*k+1, r, r+1, r, r+1) for k, r in enumerate(regs)]
    return o + ["v_pk_mul_f32 v[%d:%d], v[%d:%d], v[%d:%d]" % (t+2*k, t+2*k+1, t+2*k, t+2*k+1, r, r+1) for k, r in enumerate(regs)]

def gelu_pk(a, regs, t):
    for x in gelu_poly(regs, t): a(x)
    for k in range(2*len(regs)): a("v_exp_f32 v%d, -v%d" % (t+k, t+k))
    for k, r in enumerate(regs): a("v_pk_fma_f32 v[%d:%d], v[%d:%d], s[48:49], s[48:49] op_sel_hi:[1,0,0]" % (t+2*k, t+2*k+1, t+2*k, t+2*k+1))
    for k in range(2*len(regs)): a("v_rcp_f32 v%d, v%d" % (t+k, t+k))
    for k, r in enumerate(regs): a("v_pk_mul_f32 v[%d:%d], v[%d:%d], v[%d:%d]" % (r, r+1, r, r+1, t+2*k, t+2*k+1))

def stats_loads(a, off, stile, vt):
    a("v_lshlrev_b32 v%d, 3, v%d" % (vt+4, V_LANE))
    a("v_add_u32 v%d, 512, v%d" % (vt+5, vt+4)); a("v_cmp_gt_u32 vcc, 32, v%d" % V_LANE); a("v_mov_b32 v%d, 0x7fffffff" % vt)
    a("v_cndmask_b32 v%d, v%d, v%d, vcc" % (vt+5, vt, vt+5))
    a("s_mul_i32 s46, s%d, 768" % stile); a("s_add_u32 s46, s46, %d" % off)
    return ["buffer_load_dwordx2 v[%d:%d], v%d, s[%d:%d], s46 offen sc1" % (vt+2*k, vt+2*k+1, vt+4+k, R_WS, R_WS+3) for k in range(2)]

def stats_finish(a, vt, vmean, vrstd):
    a("v_add_f32 v%d, v%d, v%d" % (vt, vt, vt+2)); a("v_add_f32 v%d, v%d, v%d" % (vt+1, vt+1, vt+3))
    for sw in ("v_permlane32_swap_b32", "v_permlane16_swap_b32"):
        for k in range(2): a("v_mov_b32 v%d, v%d" % (vt+2+k, vt+k))
        for k in range(2): a("%s v%d, v%d" % (sw, vt+k, vt+2+k))
        for k in range(2): a("v_add_f32 v%d, v%d, v%d" % (vt+k, vt+k, vt+2+k))
    a("s_mov_b32 s47, %d" % f32(1.0/576))
    a("v_mul_f32 v%d, s47, v%d" % (vmean, vt)); a("v_mul_f32 v%d, v%d, v%d" % (vt, vmean, vmean))
    a("v_fma_f32 v%d, v%d, s47, -v%d" % (vt+1, vt+1, vt)); a("v_max_f32 v%d, 0, v%d" % (vt+1, vt+1))
    a("v_add_f32 v%d, %d, v%d" % (vt, f32(1e-5), vt+1)); a("v_rsq_f32 v%d, v%d" % (vrstd, vt))

def norm_ops(x, vs, vb, t):
    o = []
    for r in range(4):
        o.append("v_lshlrev_b32 v%d, 16, v%d" % (t+2*r, x+r)); o.append("v_and_b32 v%d, 0xffff0000, v%d" % (t+2*r+1, x+r))
    for r in range(8): o.append("v_fma_f32 v%d, v%d, v%d, v%d" % (t+r, t+r, vs, vb))
    for r in range(4): o.append("v_cvt_pk_bf16_f32 v%d, v%d, v%d" % (x+r, t+2*r, t+2*r+1))
    return o

def out_stats(a, pk, n, vt, off):
    a("v_mov_b32 v%d, 0" % vt); a("v_mov_b32 v%d, 0" % (vt+1))
    for r in range(n):
        a("v_dot2c_f32_bf16 v%d, s%d, v%d" % (vt, S_ONES, pk+r)); a("v_dot2c_f32_bf16 v%d, v%d, v%d" % (vt+1, pk+r, pk+r))
    for sw in ("v_permlane32_swap_b32", "v_permlane16_swap_b32"):
        for k in range(2): a("v_mov_b32 v%d, v%d" % (vt+2+k, vt+k))
        for k in range(2): a("%s v%d, v%d" % (sw, vt+k, vt+2+k))
        for k in range(2): a("v_add_f32 v%d, v%d, v%d" % (vt+k, vt+k, vt+2+k))
    a("s_mul_i32 s46, s53, 6"); a("s_add_u32 s46, s46, s51"); a("s_lshl_b32 s46, s46, 7"); a("s_add_u32 s46, s46, %d" % off)
    a("v_lshlrev_b32 v%d, 3, v%d" % (vt+2, V_LANE))
    a("s_mov_b64 exec, 0xffff")
    a("buffer_store_dwordx2 v[%d:%d], v%d, s[%d:%d], s46 offen sc1" % (vt, vt+1, vt+2, R_WS, R_WS+3))
    a("s_mov_b64 exec, -1")

AF, ACC, WB, HK, VMEAN, VRSTD = 64, 136, 160, 40, 52, 53
OS = WB

def tag_ops(regs, t):
    o = []; regs = list(regs)
    o.append("v_max3_u32 v%d, v%d, v%d, v%d" % (t, regs[0], regs[1], regs[2])); regs = regs[3:]
    while len(regs) >= 2: o.append("v_max3_u32 v%d, v%d, v%d, v%d" % (t, t, regs[0], regs[1])); regs = regs[2:]
    if regs: o.append("v_max_u32 v%d, v%d, v%d" % (t, t, regs[0]))
    return o + ["v_cmp_eq_u32 vcc, -1, v%d" % t]

def tag_branch(a, loads, regs, t, again=(), drain=False):
    L = a.newlabel("Ltg")
    a("s_cbranch_vccnz %s" % L)
    a.label(L + "_b")
    st = [L + ":"] + "\n".join(loads).split("\n") + ["s_waitcnt vmcnt(0)"] + tag_ops(regs, t)
    st += ["s_cmp_eq_u32 s79, 0", "s_cbranch_scc1 %s_b" % L, "s_sub_u32 s79, s79, 1", "s_cbranch_vccnz %s" % L]
    st += list(again) + (["s_waitcnt vmcnt(0)"] if drain and again else []) + ["s_branch %s_b" % L]
    a.stubs += st

UP = 8
NE = 12
def wpos(layout, b):
    if layout is None: return W_LDS//1024 + b
    w, i = divmod(b, 27)
    return layout[0] + NE*w + i if i < NE else layout[1] + (27-NE)*w + i - NE

def gemm96(a, loads, stage, delay, pre=(), each=None, stamp=None, extra=(), layout=None, early=(), before=None, after=None, init=None):
    a("s_waitcnt vmcnt(20)")
    a("s_barrier")
    nv = sum("buffer_load" in x for x in stage)
    n1 = len(stage) if nv else len(stage)//3
    for x in stage[:n1]: a(x)
    if delay: a("s_sleep %d" % delay)
    a("s_mov_b32 s79, 50000")
    a.stamp(stamp + "_ready")
    for x in pre: a(x)
    interleave(a, loads[:UP], stage[n1:])
    a("s_waitcnt vmcnt(%d) lgkmcnt(0)" % (UP + len(pre)))
    if before: before(a)
    a("s_barrier")
    def wr(j):
        o = []
        for t in range(6):
            q, r = divmod(wpos(layout, 18*t + j), 64)
            o.append("ds_read_b128 v[%d:%d], v%d offset:%d" % (WB+24*(j % 3)+4*t, WB+24*(j % 3)+4*t+3, (V_L16, 5, 6)[q], 1024*r))
        return o
    for x in early: a(x)
    if each: each(lambda: [a(x) for x in wr(0) + wr(1)])
    else:
        for x in wr(0) + wr(1): a(x)
    if init: init()
    a("s_waitcnt vmcnt(%d)" % (UP-1))
    fr = lambda j: range(AF+4*j, AF+4*j+4)
    for x in tag_ops(fr(0), 30): a(x)
    tag_branch(a, [loads[0]], fr(0), 30, loads[1:UP])
    if after: after(a)
    for j in range(18):
        ex = lambda q: min(len(extra), max(0, (q-9)*len(extra)//8))
        issued = min(18, UP+j) + ex(j)
        a("s_waitcnt vmcnt(%d) lgkmcnt(%d)" % (issued - 1 - min(j+1, 17), 6 if j < 17 else 0))
        if j in (0, 9): a.stamp(stamp + "_k%d" % j)
        ms = [mfma(ACC+4*t, WB+24*(j % 3)+4*t, AF+4*j, None if j == 0 and not init else ACC+4*t) for t in range(6)]
        fill = ([loads[UP+j]] if UP+j < 18 else []) + (tag_ops(fr(j+1), 30) if j < 17 else []) + (wr(j+2) if j < 16 else []) + list(extra[ex(j):ex(j+1)])
        interleave(a, ms, fill)
        if j < 17: tag_branch(a, [loads[j+1]], fr(j+1), 30, loads[j+2:UP+j+1], drain=ex(j+1) > 0)

FP2Q = "s_mov_b32 s46, %d\nbuffer_load_dwordx4 v[16:19], v%d, s[%d:%d], s46 offen sc1" % (FP2_OFF, V_L16, R_WS, R_WS+3)

def marks2(a):
    L = a.newlabel("Lm2")
    a("s_cmp_lg_u32 s%d, 0" % S_WAVE); a("s_cbranch_scc1 %s_x" % L)
    a("s_mov_b32 s47, 100000")
    a.label(L)
    for r in range(4): a("v_xor_b32 v%d, s%d, v%d" % (16+r, S_NONCE, 16+r))
    a("v_or3_b32 v16, v16, v17, v18"); a("v_or_b32 v16, v16, v19"); a("v_cmp_ne_u32 vcc, 0, v16"); a("s_cbranch_vccz %s_x" % L)
    a(FP2Q); a("s_waitcnt vmcnt(0)")
    a("s_sub_u32 s47, s47, 1"); a("s_cbranch_scc0 %s" % L)
    a.label(L + "_x")

def publish2(a, vt):
    L = a.newlabel("Lmp"); a("s_cmp_lg_u32 s%d, 0" % S_WAVE); a("s_cbranch_scc1 %s" % L); a.set_mark(vt, FP2_OFF); a.label(L)

def wflags(a, first, va, vd):
    a("s_mul_i32 s46, s65, 18"); a("s_add_u32 s46, s46, %d" % (FS + first))
    a("v_min_u32 v%d, 17, v%d" % (va, V_LANE)); a("v_add_u32 v%d, s46, v%d" % (va, va)); a("v_lshlrev_b32 v%d, 7, v%d" % (va, va))
    a("buffer_load_dword v%d, v%d, s[%d:%d], 0 offen offset:%d sc1" % (vd, va, R_WS, R_WS+3, FLAG0))

def phase345(a):
    a("s_mov_b32 s50, s74"); a("s_mov_b32 s51, s75"); a("s_mov_b32 s53, s76")
    a("s_cmp_ge_u32 s51, 6"); a("s_cbranch_scc1 L_p3_helper")
    a("v_add_u32 v5, 65536, v%d" % V_L16); a("v_add_u32 v6, 131072, v%d" % V_L16)
    a("s_mul_i32 s46, s%d, %d" % (S_WAVE, 1024*NE)); a("v_add_u32 v7, s46, v%d" % V_L16)
    a("s_mul_i32 s46, s%d, %d" % (S_WAVE, 1024*(27-NE))); a("v_add_u32 v8, s46, v%d" % V_L16)
    a("v_add_u32 v62, %d, v7" % (112*1024)); a("v_add_u32 v63, %d, v8" % (52*1024))
    LAY4, LAY5 = (0, 52), (112, 0)
    a("s_mul_i32 s54, s53, 18432")
    a("s_mul_i32 s55, s51, 3072"); a("s_add_u32 s55, s55, s54")
    a("v_lshlrev_b32 v9, 7, v%d" % V_LANE)
    a("s_lshl_b32 s46, s51, 2"); a("s_add_u32 s46, s46, s%d" % S_WAVE); a("s_mul_i32 s46, s46, 3072"); a("s_mul_i32 s78, s50, 73728"); a("s_add_u32 s78, s78, s46")
    def w2(i0, i1, sb=72, ab=AW2):
        return [("s_add_u32 s59, s%d, %d\n" % (sb, 1024*(i & ~3)) if (i % 4 == 0 or i == i0) else "") +
                "buffer_load_dwordx4 a[%d:%d], v%d, s[%d:%d], s59 offen offset:%d sc1" % (ab+4*i, ab+4*i+3, V_L16, R_WS, R_WS+3, 1024*(i & 3)) for i in range(i0, i1)]
    def park(ab, lay, late):
        if late: return ["ds_write_b128 v%d, a[%d:%d] offset:%d" % (63 if lay[1] else 8, ab+4*i, ab+4*i+3, 1024*(i - NE)) for i in range(NE, 27)]
        return ["ds_write_b128 v%d, a[%d:%d] offset:%d" % (62 if lay[0] else 7, ab+4*i, ab+4*i+3, 1024*i) for i in range(NE)]
    def aloads(off):
        for q in range(5): a("s_add_u32 s%d, s54, %d" % (60+q, off + 4096*q))
        return ["buffer_load_dwordx4 v[%d:%d], v%d, s[%d:%d], s%d offen offset:%d sc1" % (AF+4*j, AF+4*j+3, V_L16, R_WS, R_WS+3, 60+(j >> 2), 1024*(j & 3)) for j in range(18)]
    def ostores(src, off):
        a("s_add_u32 s46, s55, %d" % off)
        for jj in range(3): a("buffer_store_dwordx4 v[%d:%d], v%d, s[%d:%d], s46 offen offset:%d sc1" % (src+4*jj, src+4*jj+3, V_L16, R_WS, R_WS+3, 1024*jj))
    a("s_lshl_b32 s46, s53, 4"); a("v_add_u32 v20, s46, v%d" % V_R); a("s_mov_b32 s47, 18432")
    for k, sh in enumerate((1, -1, 2, -2)):
        a("v_subrev_u32 v21, %d, v20" % sh); a("v_ashrrev_i32 v22, 4, v21"); a("v_mul_lo_u32 v22, v22, s47")
        a("v_and_b32 v21, 15, v21"); a("v_lshl_add_u32 v21, v%d, 4, v21" % V_G); a("v_lshl_add_u32 v%d, v21, 4, v22" % (56+k))
    a("v_cmp_gt_u32 vcc, 32, v%d" % V_LANE); a("v_cndmask_b32 v60, v57, v56, vcc"); a("v_cndmask_b32 v61, v59, v58, vcc")
    def init3():
        for k in range(12):
            a("v_lshlrev_b32 v%d, 16, v%d" % (ACC+2*k, XT+k)); a("v_and_b32 v%d, 0xffff0000, v%d" % (ACC+2*k+1, XT+k))
    N2 = int(os.environ.get("N2", 0))
    n3 = max(N2, NE)
    gemm96(a, aloads(O_OFF), [pf_lds(0), pf_lds(1)] + w2(W1N, 27, 71, AW1) + w2(0, N2), SLEEP0["p3"] if N2 < 8 else 0, stamp="p3", extra=w2(N2, n3), early=park(AW1, LAY4, False), init=init3)
    a.stamp("p3_gemm")
    a(FP2Q)
    for k in range(12): a("v_cvt_pk_bf16_f32 v%d, v%d, v%d" % (HK+k, ACC+2*k, ACC+2*k+1))
    ostores(HK, H_OFF)
    out_stats(a, HK, 12, 10, SH_OFF)
    a.stamp("p3_epi")
    if a.stop == 3: a("s_waitcnt vmcnt(0)"); a("s_branch L_fin")
    for r in range(4): a("v_mov_b32 v%d, s%d" % (20+r, S_ONES))
    cs = [mfma(WB+4*(i//9), AW1+4*i, 20, None if i % 9 == 0 else WB+4*(i//9), ta="a") for i in range(27)]
    a("s_mul_i32 s46, s%d, 192" % S_WAVE); a("s_add_u32 s46, s46, %d" % (48*1024)); a("v_lshl_add_u32 v24, v%d, 4, s46" % V_G)
    g = G(); interleave(g, [cs[(i % 3)*9 + i//3] for i in range(27)], park(AW1, LAY4, True))
    st4 = g.lines
    st4 += ["s_nop 7"] + ["ds_write_b128 v24, v[%d:%d] offset:%d" % (WB+4*k, WB+4*k+3, 64*k) for k in range(3)]
    CS = 232
    sl = stats_loads(a, SH_OFF, 53, 10); a("s_mov_b32 s65, s46"); sl = [x.replace("s46", "s65") for x in sl]
    def fin4(wreads):
        a("v_lshlrev_b32 v24, 4, v%d" % V_G)
        for k in range(12): a("ds_read_b128 v[%d:%d], v24 offset:%d" % ((CS if k % 2 == 0 else ACC)+4*(k//2), (CS if k % 2 == 0 else ACC)+4*(k//2)+3, 48*1024 + 64*k))
        wreads()
        a("s_waitcnt vmcnt(%d)" % UP)
        for x in tag_ops(range(10, 14), 30): a(x)
        tag_branch(a, sl, range(10, 14), 30, al4[:UP])
        stats_finish(a, 10, VMEAN, VRSTD)
        a("v_mul_f32 v12, v%d, v%d" % (VRSTD, VRSTD)); a("v_mul_f32 v12, v12, v11"); a("v_add_f32 v12, %d, v12" % f32(1e-5))
        a("v_rsq_f32 v12, v12"); a("v_mul_f32 v16, %d, v%d" % (f32(GS), VRSTD)); a("v_mul_f32 v16, v12, v16"); a("v_mul_f32 v17, v16, -v%d" % VMEAN)
        a("s_waitcnt lgkmcnt(12)")
        for k in range(12): a("v_pk_add_f32 v[%d:%d], v[%d:%d], v[%d:%d]" % (CS+2*k, CS+2*k+1, CS+2*k, CS+2*k+1, ACC+2*k, ACC+2*k+1))
        for k in range(12): a("v_pk_mul_f32 v[%d:%d], v[%d:%d], v[16:17] op_sel:[0,1] op_sel_hi:[1,1]" % (CS+2*k, CS+2*k+1, CS+2*k, CS+2*k+1))
    if "d_mid" in ABL: a("s_sleep 64")
    al4 = aloads(H_OFF)
    gemm96(a, al4, st4, SLEEP0["p4"], pre=sl, each=fin4, stamp="p4", extra=w2(n3, 27), layout=LAY4, before=marks2)
    a.stamp("p4_gemm")
    gelu_consts(a)
    for k in range(12): a("v_pk_fma_f32 v[%d:%d], v[%d:%d], v[16:17], v[%d:%d] op_sel_hi:[1,0,1]" % (ACC+2*k, ACC+2*k+1, ACC+2*k, ACC+2*k+1, CS+2*k, CS+2*k+1))
    g = G(); gelu_pk(g, [ACC+2*k for k in range(12)], AF)
    interleave(a, g.lines, park(AW2, LAY5, False))
    for k in range(12): a("v_cvt_pk_bf16_f32 v%d, v%d, v%d" % (OS+k, ACC+2*k, ACC+2*k+1))
    ostores(OS, T_OFF)
    a.stamp("p4_epi")
    if a.stop == 4: a("s_waitcnt vmcnt(0)"); a("s_branch L_fin")
    a.srd(R_A, S_WS, ACT, T_OFF)
    for q in range(5): a("s_mov_b32 s%d, %d" % (70+q, 4096*q))
    def vsel(j): return 56 if j < 4 else 60 if j == 4 else 57 if j < 9 else 58 if j < 13 else 61 if j == 13 else 59
    tl = ["buffer_load_dwordx4 v[%d:%d], v%d, s[%d:%d], s%d offen offset:%d sc1" % (AF+4*j, AF+4*j+3, vsel(j), R_A, R_A+3, 70+(j >> 2), 1024*(j & 3)) for j in range(18)]
    roles6(a)
    wflags(a, 54, 54, 55)
    a("s_waitcnt vmcnt(4)")
    def init5():
        a("v_mul_f32 v17, v%d, -v%d" % (VRSTD, VMEAN)); a("v_mov_b32 v16, v%d" % VRSTD)
        for k in range(12):
            a("v_lshlrev_b32 v%d, 16, v%d" % (ACC+2*k, HK+k)); a("v_and_b32 v%d, 0xffff0000, v%d" % (ACC+2*k+1, HK+k))
        for k in range(12):
            a("v_pk_fma_f32 v[%d:%d], v[%d:%d], v[16:17], v[16:17] op_sel:[0,0,1] op_sel_hi:[1,0,1]" % (ACC+2*k, ACC+2*k+1, ACC+2*k, ACC+2*k+1))
    gemm96(a, tl, park(AW2, LAY5, True), SLEEP0["p5"], stamp="p5", layout=LAY5, init=init5)
    a.stamp("p5_gemm")
    for k in range(12): a("v_cvt_pk_bf16_f32 v%d, v%d, v%d" % (OS+k, ACC+2*k, ACC+2*k+1))
    ostores(OS, X1_OFF)
    out_stats(a, OS, 12, 10, SX_OFF)
    a.stamp("p5_epi")
    a("s_branch L_p5_pre")
    a.label("L_p3_helper")
    if "d_h3" in ABL: a("s_sleep 64")
    a("s_cmp_ge_u32 s48, 144"); a("s_cbranch_scc1 L_p3_touch")
    a("s_barrier")
    a(pf_lds(0)); a(pf_lds(1))
    swizzle_setup(a)
    a("s_add_u32 s48, s48, 54")
    for p in range(3):
        sw_big(a, 48, 60+3*p)
        a("s_lshl_b32 s53, s52, 10"); a("s_add_u32 s%d, s%d, s53" % (60+3*p, 60+3*p)); a("s_add_u32 s%d, s48, %d" % (62+3*p, FS))
        a("s_add_u32 s48, s48, 1")
    a("s_waitcnt vmcnt(0)"); a("s_barrier")
    for p in range(3): sw_process(a, p, W_LDS + 36864*p)
    a("s_waitcnt vmcnt(0)"); a("s_barrier")
    sw_flags(a, range(3))
    a.stamp("h_w3")
    a.label("L_p3_touch")
    roles6(a)
    NL = (SW << LCH)//128//32
    a("s_lshr_b32 s46, s65, %d" % LCH); a("s_mul_i32 s46, s46, %d" % (SW << LCH))
    a("s_and_b32 s47, s74, 3"); a("s_lshl_b32 s47, s47, 1"); a("s_add_u32 s47, s47, s75"); a("s_sub_u32 s47, s47, 6")
    if "xcd4" not in ABL:
        NL = BW//128//256
        a("s_mov_b32 s46, 0"); a("s_lshl_b32 s47, s74, 1"); a("s_add_u32 s47, s47, s75"); a("s_sub_u32 s47, s47, 6")
    a("s_lshl_b32 s47, s47, 2"); a("s_add_u32 s47, s47, s%d" % S_WAVE); a("s_mul_i32 s47, s47, %d" % (128*NL)); a("s_add_u32 s46, s46, s47")
    a.srd(R_A, S_W4, BW)
    a("v_lshlrev_b32 v10, 7, v%d" % V_LANE)
    for q in range(-(-NL//64) if "late4" not in ABL else 0):
        if NL - 64*q < 64: a("s_bfm_b64 exec, %d, 0" % (NL - 64*q))
        a("buffer_load_dword v11, v10, s[%d:%d], s46 offen" % (R_A, R_A+3)); a("s_add_u32 s46, s46, 8192")
    a("s_mov_b64 exec, -1")
    a.stamp("h_w4")
    wflags(a, 54, 54, 55)
    a(FP2Q)
    a("s_waitcnt vmcnt(0)")
    marks2(a)
    a.label("L_p5_pre")
    a.label("L_p5_done")
    a.stamp("p5_done")

WFL = os.environ.get("WFL", " sc1")
OFL = os.environ.get("OFL", "")
LCH = int(os.environ.get('LCH', 1))
RING = 184

def roles6(a):
    L = LCH
    a("s_lshr_b32 s46, s%d, %d" % (S_XCD, 3-L)); a("s_lshl_b32 s64, s46, %d" % (5-L)); a("s_lshr_b32 s67, s%d, %d" % (S_SLOT, L)); a("s_add_u32 s64, s64, s67")
    a("s_and_b32 s67, s67, 7")
    a("s_mov_b32 s67, 0")
    a("s_and_b32 s46, s%d, %d" % (S_XCD, (8 >> L) - 1)); a("s_lshl_b32 s65, s46, %d" % L); a("s_and_b32 s46, s%d, %d" % (S_SLOT, (1 << L) - 1)); a("s_add_u32 s65, s65, s46")
    a("s_lshl_b32 s46, s65, 2"); a("s_add_u32 s46, s46, s%d" % S_WAVE); a("s_mul_i32 s66, s46, %d" % (9*18432)); a("s_add_u32 s66, s66, %d" % W3_S)

def wload(j, s=58, ring=("a", RING)):
    o = "s_add_u32 s%d, s%d, 4096\n" % (s, s) if (j and j % 4 == 0) else ""
    return o + ("buffer_load_dwordx4 %s[%d:%d], v%d, s[%d:%d], s%d offen offset:%d" + WFL) % (ring[0], ring[1]+4*j, ring[1]+4*j+3, V_L16, R_WS, R_WS+3, s, 1024*(j & 3))

def ring_prefill(a, s):
    a("s_mul_i32 s%d, s67, 18432" % s); a("s_add_u32 s%d, s%d, s66" % (s, s))
    return [wload(j, s) for j in range(18)]

def norm_pk(x, vs, t):
    o = []
    for r in range(4):
        o.append("v_lshlrev_b32 v%d, 16, v%d" % (t+2*r, x+r)); o.append("v_and_b32 v%d, 0xffff0000, v%d" % (t+2*r+1, x+r))
    for r in range(4): o.append("v_pk_fma_f32 v[%d:%d], v[%d:%d], v[%d:%d], v[%d:%d] op_sel:[0,0,1] op_sel_hi:[1,0,1]" % (t+2*r, t+2*r+1, t+2*r, t+2*r+1, vs, vs+1, vs, vs+1))
    for r in range(4): o.append("v_cvt_pk_bf16_f32 v%d, v%d, v%d" % (x+r, t+2*r, t+2*r+1))
    return o

def phase6(a):
    AC, PK, RB, GT, XR = 40, 72, 80, 136, 64
    HB = 73728
    def xf(T, j):
        f = 4*j + T
        return ("a", 4*f) if f < 46 else ("v", 152 + 4*(f-46))
    a("s_mov_b32 s50, s64"); a("s_mov_b32 s51, s65"); a("s_mov_b32 s54, s66"); a("s_mov_b32 s52, s67")
    a("s_lshl_b32 s53, s50, 2"); a("s_add_u32 s53, s53, s%d" % S_WAVE)
    a("s_mul_i32 s56, s50, 72"); a("s_add_u32 s56, s56, s51"); a("s_lshl_b32 s56, s56, 2"); a("s_add_u32 s56, s56, s%d" % S_WAVE)
    a("s_lshl_b32 s56, s56, 11"); a("s_add_u32 s56, s56, %d" % PART)
    a("s_mul_i32 s46, s53, 18432")
    for q in range(5): a("s_add_u32 s%d, s46, %d" % (70+q, X1_OFF + 4096*q))
    a("s_mul_i32 s46, s%d, 18432" % S_WAVE); a("v_add_u32 v5, s46, v%d" % V_L16)
    sl = stats_loads(a, SX_OFF, 53, 10)
    a("s_mov_b32 s60, s46")
    sl = [x.replace("s46", "s60") for x in sl]
    a("v_mov_b32 v28, 0")
    a("global_load_dword v29, v28, s[%d:%d] sc1" % (S_DBG, S_DBG+1))
    L = a.newlabel("Lh")
    a("s_cmp_lg_u32 s%d, 0" % S_WAVE); a("s_cbranch_scc1 %s" % L)
    a("v_cmp_ne_u32 vcc, s%d, v55" % S_NONCE); a("s_cbranch_vccz %s" % L)
    a("v_lshrrev_b32 v54, 7, v54")
    a.poll(54, 55, sleep0=0)
    a.label(L)
    a("s_barrier")
    pre = ring_prefill(a, 59)
    NP = SLEEP0["p6"]
    for x in pre[:NP]: a(x)
    a.stamp("p6_ready")
    a("s_mov_b32 s79, 50000")
    for x in sl: a(x)
    def xload(j): return "buffer_load_dwordx4 v[%d:%d], v%d, s[%d:%d], s%d offen offset:%d sc1" % (XR+4*j, XR+4*j+3, V_L16, R_WS, R_WS+3, 70+(j >> 2), 1024*(j & 3))
    for j in range(UP): a(xload(j))
    a("v_add_u32 v32, 36864, v%d" % V_L16); a("v_add_u32 v33, %d, v%d" % (HB, V_L16)); a("v_add_u32 v34, %d, v%d" % (HB+36864, V_L16))
    a("s_lshr_b32 s46, s%d, 1" % S_WAVE); a("s_lshl_b32 s46, s46, 12"); a("s_and_b32 s47, s%d, 1" % S_WAVE); a("s_lshl_b32 s47, s47, 3")
    a("s_add_u32 s46, s46, s47"); a("v_add_u32 v35, s46, v33")
    gelu_consts(a)
    R3, ST, SEL, RS = 12, 32, 6, RB+24
    def natsel(d, sr, bit, t):
        o = ["s_bfe_u32 s66, s%d, %d" % (sr, 0x10000 + bit), "s_lshl_b32 s66, s66, 1", "v_lshrrev_b32 v%d, 3, v%d" % (t, V_R), "v_add_u32 v%d, s66, v%d" % (t, t),
             "v_cmp_eq_u32 s[66:67], v%d, v%d" % (t, V_G), "v_and_b32 v%d, 1, v%d" % (t, V_R), "v_lshlrev_b32 v%d, 4, v%d" % (t, t),
             "v_mov_b32 v%d, 0x3f80" % (t+1), "v_lshlrev_b32 v%d, v%d, v%d" % (t+1, t, t+1), "v_cndmask_b32 v%d, 0, v%d, s[66:67]" % (t+1, t+1),
             "v_bfe_u32 v%d, v%d, 1, 2" % (t, V_R)]
        for k in range(4): o += ["v_cmp_eq_u32 s[66:67], %d, v%d" % (k, t), "v_cndmask_b32 v%d, 0, v%d, s[66:67]" % (d+k, t+1)]
        return o
    a("v_lshrrev_b32 v26, 2, v%d" % V_R); a("v_cmp_eq_u32 s[64:65], v26, v%d" % V_G)
    a("v_and_b32 v26, 1, v%d" % V_R); a("v_lshlrev_b32 v26, 4, v26"); a("v_mov_b32 v27, 0x3f80"); a("v_lshlrev_b32 v27, v26, v27")
    a("v_cndmask_b32 v27, 0, v27, s[64:65]"); a("v_and_b32 v26, 2, v%d" % V_R); a("v_cmp_eq_u32 vcc, 0, v26")
    a("v_cndmask_b32 v%d, 0, v27, vcc" % (SEL+2)); a("v_cndmask_b32 v%d, v27, 0, vcc" % (SEL+3))
    for r in (0, 1): a("v_mov_b32 v%d, 0" % (SEL+r))
    for x in natsel(36, S_WAVE, 0, 26): a(x)
    def bload(reg, s, off=0, t="a"): return "buffer_load_dwordx4 %s[%d:%d], v%d, s[%d:%d], s%d offen offset:%d sc1" % (t, reg, reg+3, V_L16, R_WS, R_WS+3, s, off)
    a("s_waitcnt vmcnt(%d)" % UP)
    for x in tag_ops(range(10, 14), 30): a(x)
    tag_branch(a, sl, range(10, 14), 30, [xload(j) for j in range(UP)])
    a.stamp("p6_st")
    stats_finish(a, 10, 17, 16)
    a("v_mul_f32 v16, s48, v16"); a("v_mul_f32 v17, v16, -v17")
    a("s_mul_i32 s60, s50, 73728")
    a("s_lshl_b32 s46, s51, 1"); a("s_lshr_b32 s47, s%d, 1" % S_WAVE); a("s_add_u32 s46, s46, s47"); a("s_lshl_b32 s46, s46, 10"); a("s_add_u32 s78, s46, s60")
    order = [("x", j) for j in range(UP)]
    todo = [("x", j) for j in range(UP, 18)] + [("w", j) for j in range(NP, 18)]
    for j in range(18):
        a("s_waitcnt vmcnt(%d)" % (len(order) - 1 - order.index(("x", j))))
        for x in tag_ops(range(XR+4*j, XR+4*j+4), 30): a(x)
        n = 1 if j < 10 else -(-len(todo)//(18-j))
        for k, q in todo[:n]:
            a(xload(q) if k == "x" else pre[q]); order.append((k, q))
        del todo[:n]
        later = [q for k, q in order if k == "x" and q > j]
        tag_branch(a, [xload(j)], range(XR+4*j, XR+4*j+4), 30, [xload(q) for q in later], drain=order[-1][0] == "w")
        if j in (9, 17): a.stamp("p6_x%d" % j)
        for x in norm_pk(XR+4*j, 16, 20): a(x)
        a("ds_write_b128 v5, v[%d:%d] offset:%d" % (XR+4*j, XR+4*j+3, 1024*j))
    assert not todo
    LT = 1 if "late4" in ABL else 0
    if LT:
        a.srd(R_A, S_W4, BW)
        a("s_lshl_b32 s46, s2, 2"); a("s_add_u32 s46, s46, s%d" % S_WAVE); a("s_mul_i32 s46, s46, %d" % (41*128))
        a("v_lshlrev_b32 v30, 7, v%d" % V_LANE); a("s_bfm_b64 exec, 41, 0")
        a("buffer_load_dword v31, v30, s[%d:%d], s46 offen" % (R_A, R_A+3))
        a("s_mov_b64 exec, -1")
    a("v_readfirstlane_b32 s%d, v29" % S_NONCE)
    for r in (4, 5): a("v_mov_b32 v%d, 0" % (SEL+r))
    a("s_waitcnt lgkmcnt(0)"); a("s_barrier")
    a.stamp("p6_x")
    def fread(j, va):
        o = []
        for T in range(4):
            t, r = xf(T, j)
            o.append("ds_read_b128 %s[%d:%d], v%d offset:%d" % (t, r, r+3, va[T >> 1], (T & 1)*18432 + 1024*j))
        return o
    def gelu(ac):
        b = gelu_poly([ac+2*k for k in range(8)], GT)
        o = []
        for T in range(4):
            x = ac + 4*T; t = GT + 4*T
            o += ["v_exp_f32 v%d, -v%d" % (t+i, t+i) for i in range(4)]
            o += ["v_fma_f32 v%d, v%d, s48, s48" % (t+i, t+i) for i in range(4)]
            o += ["v_rcp_f32 v%d, v%d" % (t+i, t+i) for i in range(4)]
            o += ["v_mul_f32 v%d, v%d, v%d" % (t+i, t+i, x+i) for i in range(4)]
            o += ["v_cvt_pk_bf16_f32 v%d, v%d, v%d" % (PK+2*T+h, t+2*h, t+2*h+1) for h in range(2)]
            o.append("ds_write_b64 v5, v[%d:%d] offset:%d" % (PK+2*T, PK+2*T+1, 1024*T))
        return b, o
    def wt(op): return 2 if op.startswith(("v_exp", "v_rcp")) else min(2, len(op.split("\n")))
    RA = ("a", RING); RBB = ("v", RB)
    def subpass(ac, fill, first=None, loads=None, at=None, ring=RA, depth=18, batch=(), head=(), c0=None, more=None):
        if "p6nogelu" in ABL and len(fill) > 20: fill = []; batch = ()
        if "p6nost" in ABL: fill = [x for x in fill if "buffer_store" not in x]
        fill = list(fill); head = list(head)
        seq = [(2*p + q, T) for p in range(9) for T in range(4) for q in range(2)]
        LA = 12
        rd = [fread(j, first)[T] for j, T in seq] if first else []
        for x in rd[:LA]: a(x)
        def wait(m):
            w = []
            if m % 8 == 0: w.append("vmcnt(%d)" % (depth - 2 + (more(m//4 - 1) if more else 0)))
            if first and m % 2 == 0: w.append("lgkmcnt(%d)" % max(0, min(LA, 72 - m) - 2))
            return "s_waitcnt " + " ".join(w) if w else None
        for m, (j, T) in enumerate(seq):
            if wait(m): a(wait(m))
            if at and m % 4 == 0 and m//4 in at: at[m//4]()
            t, r = xf(T, j)
            a(mfma(ac+4*T, ring[1]+4*j, r, (None if c0 is None else c0+4*T) if j == 0 else ac+4*T, ta=ring[0], tb=t))
            room = 2
            if m + LA < len(rd): a(rd[m + LA]); room -= 1
            if m < 3:
                n = (len(head) + 2 - m)//(3 - m)
                for x in head[:n]: a(x)
                del head[:n]
            if m == 3:
                for x in batch: a(x)
            if T == 3:
                ld = "" if ("p6nold" in ABL and loads is None) else (loads(j) if loads else
                     ("buffer_load_dwordx4 a[%d:%d], v%d, s[%d:%d], s58 offen offset:%d" + WFL) % (RING+4*j, RING+4*j+3, RB+3+(j >> 2) if j > 3 else V_L16, R_WS, R_WS+3, 1024*(j & 3)))
                if ld: a(ld); room -= len(ld.split("\n"))
            if m < 71 and wait(m+1): room -= 1
            if m < 4: continue
            later = sum(2 - (q % 8 >= 6) - (q % 8 == 7 and q < 71) for q in range(m+1, 72))
            while fill and (wt(fill[0]) <= room or sum(wt(x) for x in fill) > later):
                room -= wt(fill[0]); a(fill.pop(0))
        assert not fill
    def nexttile():
        return ["s_mov_b32 s62, s61", "s_add_u32 s61, s61, 1", "s_add_u32 s54, s54, 18432", "s_mov_b32 s58, s54",
                "s_lshl_b32 s46, s62, 13", "v_add_u32 v5, s46, v35"]
    a("s_mov_b32 s61, 0"); a("s_add_u32 s54, s54, 18432"); a("s_mov_b32 s58, s54")
    for q in range(1, 5): a("v_add_u32 v%d, %d, v%d" % (RB+3+q, 4096*q, V_L16))
    res = ["s_add_u32 s62, s78, %d\n" % ((X1_OFF, H_OFF)[j >> 2] + 18432*(j & 3)) + bload(RS+4*j, 62, t="v") for j in range(8)]
    def resadd():
        for k in range(2):
            for T in range(4): a(mfma(R3+4*T, 36, RS+16*k+4*T, None if k == 0 else R3+4*T))
    subpass(AC, [], first=(V_L16, 32), at={2*j+1: (lambda j=j: a(res[j])) for j in range(8)}, more=lambda j: min((j+1)//2, 8) + LT)
    a.stamp("p6_p0")
    WF, DA, TA = RING+48, RB+16, RB+22
    a.srd(R_B, S_W4, BW + 4096, -4096)
    a("v_lshrrev_b32 v30, 3, v%d" % V_LANE); a("v_bfe_u32 v31, v%d, 4, 1" % V_LANE); a("v_lshlrev_b32 v31, 1, v31")
    a("v_and_b32 v%d, 7, v%d" % (TA, V_LANE)); a("v_xor_b32 v31, v31, v%d" % TA); a("v_mul_u32_u24 v30, 1152, v30")
    a("v_lshl_add_u32 v%d, v31, 4, v30" % DA); a("v_xor_b32 v31, 4, v31"); a("v_lshl_add_u32 v%d, v31, 4, v30" % (DA+1))
    for q in (5, 4, 3, 2, 1, 0): a("v_add_u32 v%d, %d, v%d" % (DA+q, 9216*q - 1024*(q % 3) + 4096, DA + (q & 1)))
    a("v_lshrrev_b32 v30, 2, v%d" % V_R); a("v_lshl_add_u32 v31, v%d, 3, v30" % V_G); a("v_lshlrev_b32 v31, 7, v31")
    a("v_lshrrev_b32 v30, 1, v30"); a("v_and_b32 v%d, 1, v%d" % (TA, V_G)); a("v_lshl_add_u32 v30, v%d, 1, v30" % TA)
    a("v_xor_b32 v30, s%d, v30" % S_WAVE); a("v_lshl_add_u32 v31, v30, 5, v31"); a("v_and_b32 v30, 3, v%d" % V_R)
    a("v_lshl_add_u32 v%d, v30, 3, v31" % TA)
    a("s_mul_i32 s55, s51, 12"); a("s_add_u32 s55, s55, s%d" % S_WAVE); a("s_mul_i32 s55, s55, %d" % (48*1152))
    a("s_mul_i32 s63, s%d, 6144" % S_WAVE)
    a("s_barrier")
    for r in range(4): a("v_mov_b32 v%d, -1" % (RB+r))
    def marker(p):
        def f():
            L = a.newlabel("Lmk"); a("s_cmp_lt_u32 s59, 2"); a("s_cbranch_scc0 %s" % L)
            if p == 0: a("s_add_u32 s46, s51, s59"); a("s_add_u32 s46, s46, 6"); a("s_and_b32 s46, s46, 7"); a("s_lshl_b32 s46, s46, 16"); a("s_add_u32 s77, s46, s56")
            a("buffer_store_dwordx4 v[%d:%d], v%d, s[%d:%d], s77 offen offset:%d sc1" % (RB, RB+3, V_L16, R_WS, R_WS+3, 1024*p))
            a.label(L)
        return f
    a("s_mov_b32 s59, 0")
    a.label("L_p6_a")
    for half in (1, 0):
        b, o = gelu(AC+16*(1-half))
        subpass(AC+16*half, o, batch=b, head=nexttile(), at={8: marker(1-half)})
    a("s_add_u32 s59, s59, 1"); a("s_cmp_lt_u32 s59, 3"); a("s_cbranch_scc1 L_p6_a")
    b, o = gelu(AC)
    subpass(AC+16, o, batch=b, head=nexttile(), at={9: resadd})
    CH = 24576
    def slot(n): return n if n < 3 else (0, 3, 1, 4, 2, 5)[(n - 3) % 6]
    def src(c, s): return "s_add_u32 s58, s%d, %d" % (s, 192*1152*c)
    def dma(n, s):
        o = []
        for q in range(6):
            pre = src(n % 3, s) + "\n" if q == 0 else ""
            if q % 3 == 0: pre = "s_add_u32 m0, s63, %d\n" % (CH*slot(n) + 1024*q) + (pre or "s_nop 0\n")
            o.append(pre + "buffer_load_dwordx4 v%d, s[%d:%d], s58 offen offset:%d lds" % (DA+q, R_B, R_B+3, 1024*(q % 3)))
        return o
    def origin(d, step):
        if step == 0: return ["s_add_u32 s%d, s55, 1024" % d]
        return ["s_add_u32 s46, s51, %s" % step, "s_and_b32 s46, s46, 7", "s_lshl_b32 s46, s46, 7", "s_add_u32 s%d, s55, s46" % d]
    for x in origin(64, 0) + origin(65, 1): a(x)
    d012 = dma(0, 64) + dma(1, 64) + dma(2, 64)
    b, o = gelu(AC+16)
    subpass(AC, o, batch=b, head=nexttile(), loads=lambda j: d012[j])
    a("s_lshl_b32 s46, s61, 13"); a("v_add_u32 v5, s46, v35")
    a("s_waitcnt vmcnt(12) lgkmcnt(0)"); a("s_barrier")
    a.stamp("p6_a")
    def pstore(ac):
        o = ["v_cvt_pk_bf16_f32 v%d, v%d, v%d" % (PK+k, ac+2*k, ac+2*k+1) for k in range(8)]
        o += ["buffer_store_dwordx4 v[%d:%d], v%d, s[%d:%d], s62 offen offset:%d sc1" % (PK+4*p, PK+4*p+3, V_L16, R_WS, R_WS+3, 1024*p) for p in range(2)]
        return o
    def dest(step):
        if step == 0: return ["s_add_u32 s62, s56, %d" % (8*65536)]
        return ["s_add_u32 s46, s51, %s" % step, "s_and_b32 s46, s46, 7", "s_lshl_b32 s46, s46, 16", "s_add_u32 s62, s46, s56"]
    def wf(pp): return (RB, RB+8, ST)[pp % 3]
    def wread(n, p):
        o = ["v_add_u32 v%d, %d, v%d" % (TA+1, CH*slot(n), TA)] if p == 0 else []
        pp = 3*n + p
        return o + ["ds_read_b64_tr_b16 v[%d:%d], v%d offset:%d" % (wf(pp)+4*q+2*hh, wf(pp)+4*q+2*hh+1, TA+1, 4096*(2*p+q) + 512*hh) for q in range(2) for hh in range(2)]
    def step(s, ac, fill, head=(), first=None, c0=None, before={}, after={}, at={}, batch=(), hurry=None, evens=()):
        if "p6nost" in ABL: fill = [x for x in fill if "buffer_store" not in x]
        if "p6nold" in ABL: after = {k: [x for x in v if " lds" not in x] or ["s_nop 0"] for k, v in after.items()}
        fill = list(fill); head = list(head); lg = list(step.lg); nfill = len(fill)
        seq = [(2*p + q, T) for p in range(9) for T in range(4) for q in range(2)]
        hr = ["ds_read_b128 %s[%d:%d], v%d offset:%d" % (xf(T, j)[0], xf(T, j)[1], xf(T, j)[1]+3, first[j//9], 1024*(4*(j % 9) + T)) for j, T in seq] if first else []
        def lds(x, tag):
            a(x)
            if x.startswith("ds_"): lg.append(tag)
        def upto(tag):
            if tag in lg:
                n = len(lg) - 1 - max(i for i, t in enumerate(lg) if t == tag)
                a("s_waitcnt lgkmcnt(%d)" % min(n, 15)); del lg[:len(lg) - min(n, 15)]
                return 1
            return 0
        for i, x in enumerate(hr[:8]): lds(x, ("h", i))
        extra = [(w - 72, x) for w, x in step.extra]
        for m, (j, T) in enumerate(seq):
            p, c = m//8, m//24
            room = 2
            if m % 24 == 8 and 3*s + c < 26:
                if c in before: before[c]()
                upto("x")
                if "p6nobar" not in ABL: a("s_barrier")
                assert not extra
                ex = after.get(c, []); extra = [(m + 24*k//len(ex), x) for k, x in enumerate(ex)]
            if m % 8 == 0:
                upto(("w", 9*s + p))
                nx = wread(3*s + (p+2)//3, (p+2) % 3) if 9*s + p < 79 else []
            if m % 2 == 0 and first: upto(("h", m+1))
            if m % 4 == 0 and m//4 in at: at[m//4]()
            t, r = xf(T, j)
            a(mfma(ac+4*T, wf(9*s+p)+4*(j & 1), r, (None if c0 is None else c0+4*T) if j == 0 else ac+4*T, tb=t))
            if nx:
                lds(nx.pop(0), ("w", 9*s + p + 2)); room -= 1
            if m + 8 < len(hr): lds(hr[m+8], ("h", m+8)); room -= 1
            if m < 3:
                n = (len(head) + 2 - m)//(3 - m)
                for x in head[:n]: a(x)
                del head[:n]
            while extra and extra[0][0] <= m:
                lds(extra.pop(0)[1], "x"); room -= 1
            if m % 2 == 0 and m//2 < len(evens): a(evens[m//2]); room -= 1
            if m == 3:
                for x in batch: a(x)
            if m >= 4:
                while fill and (wt(fill[0]) <= room or hurry and len(fill)*(hurry - 3) > nfill*(hurry - m)):
                    room -= wt(fill[0]); lds(fill.pop(0), "x")
        assert not fill
        step.lg = lg; step.extra = extra
    def mix(x, y): return [z for pair in zip(x, y) for z in pair]
    def vm(n): return lambda: a("s_waitcnt vmcnt(%d)" % n)
    def seq(*fs):
        def f():
            for x in fs: x()
        return f
    def wave(w, body):
        def f():
            L = a.newlabel("Lex"); a("s_cmp_lg_u32 s%d, %d" % (S_WAVE, w)); a("s_cbranch_scc1 %s" % L); body(); a.label(L)
        return f
    a("s_lshl_b32 s70, s50, 10"); a("s_add_u32 s70, s70, %d" % (FLAG0 + 128*FA)); a("s_lshl_b32 s46, s51, 7"); a("s_add_u32 s68, s70, s46")
    a("s_mul_i32 s46, s50, 9"); a("s_add_u32 s46, s46, s51"); a("s_lshl_b32 s46, s46, 16"); a("s_lshl_b32 s47, s%d, 11" % S_WAVE)
    a("s_add_u32 s46, s46, s47"); a("s_add_u32 s69, s46, %d" % PART)
    def publish(c):
        def f():
            a("s_add_u32 s46, s%d, %d" % (S_NONCE, c)); a("v_mov_b32 v29, s46"); a("s_mov_b64 exec, 1")
            a("buffer_store_dword v29, v28, s[%d:%d], s68 offen sc1" % (R_WS, R_WS+3))
            a("s_mov_b64 exec, -1")
        return wave(0, f)
    askq = "buffer_load_dword v31, v5, s[%d:%d], s70 offen sc1" % (R_WS, R_WS+3)
    ask = wave(0, lambda: a(askq))
    def need(c, n):
        def f():
            L = a.newlabel("Lcf")
            a("s_add_u32 s73, s%d, %d" % (S_NONCE, c)); a("s_mov_b32 s47, 100000"); a("s_waitcnt vmcnt(%d)" % n)
            a.label(L)
            a("v_subrev_u32 v30, s73, v31"); a("v_cmp_lt_u32 vcc, 7, v30"); a("s_cbranch_vccz %s_x" % L)
            a("s_sleep 1"); a(askq); a("s_waitcnt vmcnt(0)")
            a("s_sub_u32 s47, s47, 1"); a("s_cbranch_scc0 %s" % L)
            a.label(L + "_x")
        return wave(0, f)
    step.extra = []
    a("v_mov_b32 v%d, v33" % (RB+24)); a("v_mov_b32 v%d, v34" % (RB+25))
    for x in wread(0, 0) + wread(0, 1): a(x)
    step.lg = [("w", 0)]*4 + [("w", 1)]*4
    A0, A1 = AC+16, AC
    b, o = gelu(AC)
    step(0, A0, o, first=(RB+24, RB+25), head=origin(64, 2), batch=b, hurry=48, before={0: vm(6), 1: vm(0), 2: vm(6)},
         after={1: dma(3, 65) + dma(4, 65), 2: dma(5, 65) + dma(6, 64)})
    a.stamp("p6_s0")
    a("v_and_b32 v5, 7, v%d" % V_LANE); a("v_cmp_eq_u32 vcc, s51, v5"); a("v_xor_b32 v30, 1, v5")
    a("v_cndmask_b32 v5, v5, v30, vcc"); a("v_lshlrev_b32 v5, 7, v5")
    step(1, A1, pstore(A0), head=dest(0) + origin(65, 3), before={0: vm(12), 1: vm(18), 2: vm(18)},
         after={0: dma(7, 64) + dma(8, 64), 1: dma(9, 65), 2: dma(10, 65)})
    a.stamp("p6_s1")
    a("s_mov_b32 s71, 2")
    a.label("L_p6_b")
    w18 = {0: vm(18), 1: vm(18), 2: vm(18)}
    def last(body):
        def f():
            L = a.newlabel("Ll"); a("s_cmp_eq_u32 s71, 4"); a("s_cbranch_scc0 %s" % L); body(); a.label(L)
        return f
    lg0 = list(step.lg); ex0 = list(step.extra)
    step(2, A0, pstore(A1), head=["s_sub_u32 s72, s71, 1"] + dest("s72") + ["s_add_u32 s72, s71, 2"] + origin(64, "s72"), before=w18,
         after={0: dma(11, 65), 1: dma(12, 64), 2: dma(13, 64)})
    step(3, A1, pstore(A0), head=dest("s71") + ["s_add_u32 s72, s71, 3"] + origin(65, "s72"), before={0: vm(18), 1: vm(18), 2: seq(vm(18), last(vm(10)))},
         after={0: dma(14, 64), 1: dma(15, 65), 2: dma(16, 65)}, at={15: last(publish(4))})
    assert [t[0] for t in step.lg] == [t[0] for t in lg0] and step.extra == ex0
    a("s_add_u32 s71, s71, 2"); a("s_cmp_lt_u32 s71, 6"); a("s_cbranch_scc1 L_p6_b")
    step.lg = [("w", t[1] + 36) for t in lg0]
    a.stamp("p6_s5")
    def SC(k): return (54, 57, 59, 61, 72, 75, 76)[k-1]
    for k in range(1, 8):
        r = SC(k); a("s_sub_u32 s%d, s51, %d" % (r, k)); a("s_and_b32 s%d, s%d, 7" % (r, r)); a("s_lshl_b32 s%d, s%d, 13" % (r, r)); a("s_add_u32 s%d, s%d, s69" % (r, r))
    CB = {k: ("v", RB + 24 + 8*(k-2)) if k > 1 else ("a", RING+48) for k in range(1, 8)}
    def cload(k): return [bload(CB[k][1]+4*p, SC(k), 1024*p, t=CB[k][0]) for p in range(2)]
    def emit(xs): return lambda: [a(x) for x in xs]
    def add(acc, k):
        def f():
            for T in range(4): a(mfma(acc+4*T, SEL if T & 1 else SEL+2, CB[k][1]+4*(T >> 1), acc+4*T, tb=CB[k][0]))
        return f
    step(6, A0, pstore(A1), head=dest(5) + origin(64, 8), before={0: vm(18), 1: vm(18), 2: seq(need(4, 6), vm(10))},
         after={0: dma(23, 65), 1: dma(24, 64), 2: dma(25, 64)}, at={6: ask, 15: publish(5), 16: emit(cload(1))})
    a.stamp("p6_s6")
    a("s_mul_i32 s46, s50, 9"); a("s_add_u32 s46, s46, 8"); a("s_lshl_b32 s46, s46, 16"); a("s_lshl_b32 s47, s51, 10")
    a("s_add_u32 s46, s46, s47"); a("s_add_u32 s78, s46, %d" % PART)
    a("s_and_b32 s46, s51, 1"); a("s_mul_i32 s74, s46, 36864"); a("s_add_u32 s74, s74, s60")
    a("s_lshr_b32 s47, s51, 2"); a("s_add_u32 s47, s47, 16"); a("s_lshl_b32 s46, s47, 10"); a("s_add_u32 s79, s46, s74")
    a("s_lshr_b32 s46, s51, 1"); a("s_lshl_b32 s46, s46, 5"); a("s_add_u32 s46, s46, 1024"); a("s_add_u32 s74, s74, s46")
    def extra_get():
        for k in range(8):
            a(bload(RING+4*k, 78)); a("s_add_u32 s78, s78, 8192")
        for k, off in enumerate((H_OFF, X1_OFF)):
            for T in range(2):
                a("s_add_u32 s46, s79, %d" % (off + 18432*T)); a(bload(RING+32+8*k+4*T, 46))
    step(7, A1, pstore(A0), head=dest(6), before={0: vm(18), 1: vm(18), 2: seq(need(5, 2), vm(18))}, after={0: dma(26, 64)},
         at={3: emit(cload(2)), 6: emit(cload(3)), 9: ask, 10: emit(cload(4)), 15: emit(cload(5))})
    a.stamp("p6_s7")
    SEv, EA = A1, A1+8
    g = G()
    g.lines += natsel(SEv, 51, 1, EA)
    OB = 147456
    g("v_mul_u32_u24 v%d, 144, v%d" % (A1+4, V_R)); g("v_lshl_add_u32 v%d, v%d, 3, v%d" % (A1+4, V_G, A1+4))
    g.lines.append("s_lshl_b32 s66, s%d, 5\ns_add_u32 s66, s66, %d" % (S_WAVE, OB))
    g("v_add_u32 v%d, s66, v%d" % (A1+4, A1+4))
    g("v_lshrrev_b32 v%d, 3, v0" % EA); g("v_and_b32 v%d, 7, v0" % (EA+1)); g("v_lshlrev_b32 v%d, 4, v%d" % (EA+1, EA+1))
    g("v_mul_u32_u24 v%d, 144, v%d" % (A1+5, EA)); g("v_add_u32 v%d, v%d, v%d" % (A1+5, A1+5, EA+1)); g("v_add_u32 v%d, %d, v%d" % (A1+5, OB, A1+5))
    g("v_mul_u32_u24 v%d, 1152, v%d" % (A1+6, EA)); g("v_add_u32 v%d, v%d, v%d" % (A1+6, A1+6, EA+1))
    g("v_mul_u32_u24 v%d, 1152, v%d" % (A1+7, V_R)); g("v_lshl_add_u32 v%d, v%d, 3, v%d" % (A1+7, V_G, A1+7))
    step(8, A0, pstore(A1) + g.lines, head=dest(7), c0=R3, before={0: vm(10), 1: vm(2)},
         at={8: add(A0, 1), 9: wave(3, extra_get), 10: add(A0, 2), 12: seq(add(A0, 3), emit(cload(6))),
             14: add(A0, 4), 16: add(A0, 5), 17: emit(cload(7))})
    a.stamp("p6_b")
    a.srd(R_A, S_OUT, ACT)
    a("s_cmp_lg_u32 s%d, 3" % S_WAVE); a("s_cbranch_scc1 L_p7_main")
    a("s_waitcnt vmcnt(4)")
    for k in range(8):
        a(mfma(EA, SEL+2, RING+4*k, None if k == 0 else EA, tb="a")); a(mfma(EA+4, SEL, RING+4*k, None if k == 0 else EA+4, tb="a"))
    for k in range(2):
        for T in range(2): a(mfma(EA+4*T, SEv, RING+32+8*k+4*T, EA+4*T, tb="a"))
    for T in range(2):
        for h in range(2): a("v_cvt_pk_bf16_f32 v%d, v%d, v%d" % (PK+2*T+h, EA+4*T+2*h, EA+4*T+2*h+1))
    a.label("L_p7_main")
    for k in (6, 7):
        base = CB[k][1]
        L = a.newlabel("Ltag")
        a("s_mov_b32 s47, 100000")
        a("s_waitcnt vmcnt(%d)" % (2 if k == 6 else 0))
        a.label(L)
        for x in tag_ops(range(base, base+8), 30): a(x)
        a("s_cbranch_vccz %s_x" % L)
        for x in cload(k): a(x)
        a("s_waitcnt vmcnt(0)")
        a("s_sub_u32 s47, s47, 1"); a("s_cbranch_scc0 %s" % L)
        a.label(L + "_x")
        add(A0, k)()
    a.stamp("p7_ready")
    a("s_cmp_lg_u32 s%d, 3" % S_WAVE); a("s_cbranch_scc1 L_p7_acc")
    for T in range(2):
        a("buffer_store_dwordx2 v[%d:%d], v%d, s[%d:%d], s74 offen%s" % (PK+2*T, PK+2*T+1, A1+7, R_A, R_A+3, OFL))
        a("s_add_u32 s74, s74, 18432")
    a.label("L_p7_acc")
    a("s_lshl_b32 s46, s51, 7"); a("s_add_u32 s46, s46, s60"); a("s_add_u32 s47, s46, 36864")
    for T in range(4):
        for h in range(2): a("v_cvt_pk_bf16_f32 v%d, v%d, v%d" % (R3+2*T+h, A0+4*T+2*h, A0+4*T+2*h+1))
        a("ds_write_b64 v%d, v[%d:%d] offset:%d" % (A1+4, R3+2*T, R3+2*T+1, 2304*T))
    a("s_waitcnt lgkmcnt(0)"); a("s_barrier")
    for p in range(2): a("ds_read_b128 v[%d:%d], v%d offset:%d" % (R3+8+4*p, R3+11+4*p, A1+5, 4608*p))
    for p in range(2):
        a("s_waitcnt lgkmcnt(%d)" % (1-p))
        a("buffer_store_dwordx4 v[%d:%d], v%d, s[%d:%d], s%d offen%s" % (R3+8+4*p, R3+11+4*p, A1+6, R_A, R_A+3, 46+p, OFL))
```

```python
from gen import *

NEG = 0xF149F2CA
SLEEP0 = dict(p2=0, p3=0, p4=0, p5=0, p6=18)
for _kv in os.environ.get('SLEEP', '').split(','):
    if _kv: SLEEP0[_kv.split('=')[0]] = int(_kv.split('=')[1])

W_LDS = 53248
AW1, AW2 = 40, 148
XT = 232
W1N = int(os.environ.get('W1N', 27))
PA, PS, R_C = 244, (3, 27, 45), R_B

def pf_lds(i):
    gq, k = divmod(i, 9)
    pre = ("s_mul_i32 s58, s79, %d\ns_add_u32 s58, s58, s73\ns_add_u32 m0, s58, %d\n" % (gq, 1024*k)) if k == 0 or i == 2 else ""
    post = "\ns_add_u32 m0, m0, 1024" if k < 8 and i != 1 else ""
    return pre + "buffer_load_dwordx4 v%d, s[%d:%d], s%d offen sc1 lds" % (PA+k, R_C, R_C+3, PS[gq]) + post

def roles345(a):
    a("s_lshr_b32 s46, s%d, 3" % S_SLOT); a("s_lshl_b32 s74, s%d, 2" % S_XCD); a("s_add_u32 s74, s74, s46"); a("s_add_u32 s75, s%d, 6" % S_SLOT); a("s_and_b32 s75, s75, 7")
    a("s_lshl_b32 s76, s74, 2"); a("s_add_u32 s76, s76, s%d" % S_WAVE)

def phase2(a):
    KL_, VL_ = 0, 27648
    a("s_lshr_b32 s50, s%d, 1" % S_SLOT); a("s_and_b32 s51, s%d, 1" % S_SLOT); a("s_lshl_b32 s46, s%d, 1" % S_XCD); a("s_add_u32 s51, s51, s46")
    a("s_mul_i32 s52, s51, %d" % HPSZ)
    a("s_add_u32 s46, s52, %d" % K_OFF); a.srd_s(R_A, S_WS, HPSZ, 46)
    a("s_add_u32 s46, s52, %d" % V_OFF); a.srd_s(R_B, S_WS, HPSZ, 46)
    a("s_mul_i32 s46, s50, 9216"); a("s_sub_u32 s46, s46, 18432"); a("s_lshl_b32 s47, s%d, 10" % S_WAVE); a("s_add_u32 s46, s46, s47")
    a("v_add_u32 v10, s46, v%d" % V_L16)
    for i in range(1, 7): a("v_add_u32 v%d, %d, v10" % (10+i, 4096*i))
    a("s_lshl_b32 s46, s50, 3"); a("s_lshl_b32 s53, s%d, 1" % S_WAVE); a("s_add_u32 s53, s53, s46")
    a("s_mul_i32 s54, s53, 1152"); a("s_add_u32 s54, s54, s52"); a("s_add_u32 s54, s54, %d" % Q_OFF)
    a("v_lshlrev_b32 v18, 4, v%d" % V_R)
    a("s_mul_i32 s46, s%d, 2304" % S_WAVE)
    a("v_add_u32 v20, s46, v%d" % V_L16)
    a("s_add_u32 s47, s46, 2048"); a("v_add_u32 v21, s47, v18")
    a("s_add_u32 s47, s46, %d" % VL_); a("v_add_u32 v22, s47, v%d" % V_L16)
    a("v_lshl_add_u32 v23, v%d, 2, v%d" % (V_R, V_G)); a("s_add_u32 s47, s47, 2048"); a("v_lshl_add_u32 v23, v23, 4, s47")
    for i in range(4):
        a("v_lshl_add_u32 v24, v%d, 2, %d" % (V_G, i)); a("v_cmp_gt_u32 s[%d:%d], v24, v%d" % (60+2*i, 61+2*i, V_R))
    a("v_cmp_eq_u32 s[68:69], 0, v%d" % V_G)
    a("v_mov_b32 v25, 0x%x" % NEG)
    for r in range(4): a("v_mov_b32 v%d, -1" % (228+r))
    a("v_and_b32 v225, 31, v%d" % V_LANE); a("v_lshlrev_b32 v225, 2, v225")
    VLA = 0
    for r in range(36): a("v_accvgpr_write_b32 a%d, s%d" % (VLA+r, S_ONES))
    roles345(a)
    a("s_mul_i32 s46, s75, 110592"); a("s_mul_i32 s47, s%d, 27648" % S_WAVE); a("s_add_u32 s70, s46, s47"); a("s_add_u32 s70, s70, %d" % WO_S)
    a("s_add_u32 s71, s70, %d" % SW); a("s_add_u32 s72, s71, %d" % SW)
    a("s_cmp_ge_u32 s75, 6"); a("s_cbranch_scc1 L_p2_hs")
    a("s_add_u32 s73, s47, %d" % W_LDS); a("s_mov_b32 s79, 9216")
    for gq in range(3): a("s_add_u32 s%d, s70, %d" % (PS[gq], 9216*gq))
    for i in range(9): a("v_add_u32 v%d, %d, v%d" % (PA+i, 1024*i, V_L16))
    a("s_mov_b32 s10, s%d" % S_WS); a("s_mov_b32 s11, s%d" % (S_WS+1)); a("s_mov_b32 s26, %d" % WS_END)
    a("s_branch L_p2_hd")
    a.label("L_p2_hs")
    a("s_mov_b32 s71, 0x70000000")
    a("s_mul_i32 s47, s%d, 9216" % S_WAVE); a("s_add_u32 s73, s47, %d" % W_LDS); a("s_mov_b32 s79, 36864")
    a("s_lshl_b32 s48, s74, 1"); a("s_add_u32 s48, s48, s75"); a("s_sub_u32 s48, s48, 6"); a("s_mul_i32 s48, s48, 3")
    a("s_mov_b32 s10, s%d" % S_W3); a("s_mov_b32 s11, s%d" % (S_W3+1)); a("s_mov_b32 s78, 9216")
    a("s_cmp_lt_u32 s48, 144"); a("s_cselect_b32 s26, %d, 0" % BW)
    for gq in range(3):
        a("s_add_u32 s46, s48, %d" % gq)
        a.sdiv(47, 56, 46, 18)
        a("s_lshl_b32 s56, s56, 2"); a("s_add_u32 s56, s56, s%d" % S_WAVE); a("s_mul_i32 s56, s56, %d" % (8*9216))
        a("s_mul_i32 s47, s47, 1152"); a("s_add_u32 s%d, s56, s47" % (PS[gq]))
    for i in range(9):
        a("v_add_u32 v24, %d, v%d" % (64*i, V_LANE)); a("v_mul_u32_u24 v26, 911, v24"); a("v_lshrrev_b32 v26, 16, v26")
        a("v_mul_u32_u24 v27, 72, v26"); a("v_sub_u32 v27, v24, v27"); a("v_mul_lo_u32 v26, v26, s78"); a("v_lshl_add_u32 v%d, v27, 4, v26" % (PA+i))
    a.label("L_p2_hd")
    a("v_mul_u32_u24 v7, 1152, v%d" % V_R); a("v_lshl_add_u32 v7, v%d, 4, v7" % V_G)
    a("s_mul_i32 s46, s76, 18432"); a("s_mul_i32 s47, s75, 192"); a("s_add_u32 s77, s46, s47")
    a("s_cmp_ge_u32 s75, 6"); a("s_cselect_b32 s77, 0x70000000, s77")
    L = a.newlabel("Lp2w")
    a("v_mov_b32 v19, %d" % (W_LDS + 4096))
    a("s_cmp_lg_u32 s%d, 0" % S_WAVE); a("s_cbranch_scc1 %s" % L)
    a("v_and_b32 v30, 2, v%d" % V_LANE); a("v_cmp_eq_u32 s[58:59], 0, v30"); a("v_cmp_gt_u32 vcc, 12, v%d" % V_LANE)
    a("s_andn2_b64 s[56:57], vcc, s[58:59]"); a("s_and_b64 s[58:59], vcc, s[58:59]")
    a("v_mov_b32 v34, 0x49800000"); a("v_mov_b32 v35, 0x7f800000")
    a("v_lshrrev_b32 v30, 2, v%d" % V_LANE); a("v_min_u32 v30, 2, v30"); a("v_add_u32 v30, s50, v30"); a("v_subrev_u32 v30, 2, v30"); a("v_max_i32 v30, 0, v30")
    a("v_bfe_u32 v31, v%d, 1, 1" % V_LANE); a("v_add_u32 v31, 1, v31"); a("v_cmp_gt_u32 vcc, 12, v%d" % V_LANE); a("v_cndmask_b32 v31, 0, v31, vcc")
    a("v_mul_u32_u24 v31, 576, v31"); a("v_and_b32 v32, 1, v%d" % V_LANE); a("v_mul_u32_u24 v32, 35, v32")
    a("s_mul_i32 s46, s51, 36"); a("v_add3_u32 v31, v31, v32, s46"); a("v_lshrrev_b32 v31, 7, v31")
    a("v_lshl_add_u32 v30, v30, 4, v31"); a("v_add_u32 v30, %d, v30" % F1)
    a.stamp("p2_setup")
    a.poll(30, 32, sleep0=SLEEP0["p2"], two=True)
    a("v_cndmask_b32 v30, 0, v33, s[58:59]"); a("v_cndmask_b32 v31, 0, v33, s[46:47]".replace("46:47", "56:57"))
    a("v_cmp_nle_f32 vcc, v31, v34"); a("v_cndmask_b32 v30, v30, v35, vcc")
    for r in (8, 4, 2, 1): a("v_max_f32_dpp v30, v30, v30 row_ror:%d row_mask:0xf bank_mask:0xf" % r)
    a("s_mov_b64 exec, 1"); a("ds_write_b32 v19, v30"); a("s_mov_b64 exec, -1"); a("s_waitcnt lgkmcnt(0)")
    a.label(L)
    a("s_barrier")
    a("ds_read_b32 v19, v19")
    a("v_min_u32 v38, 53, v%d" % V_LANE); a("v_add_u32 v38, %d, v38" % FS); a("v_lshlrev_b32 v38, 7, v38")
    fsq = "buffer_load_dword v39, v38, s[%d:%d], 0 offen offset:%d sc1" % (R_WS, R_WS+3, FLAG0)
    a.stamp("p2_ready")
    QR = 26
    a("buffer_load_dwordx4 v[%d:%d], v%d, s[%d:%d], s54 offen sc1" % (QR, QR+3, V_L16, R_WS, R_WS+3))
    a("buffer_load_dwordx4 v[%d:%d], v18, s[%d:%d], s54 offen offset:2048 sc1" % (QR+4, QR+7, R_WS, R_WS+3))
    a("buffer_load_dwordx4 v[%d:%d], v%d, s[%d:%d], s54 offen offset:1024 sc1" % (QR+8, QR+11, V_L16, R_WS, R_WS+3))
    a(fsq)
    a("s_lshl_b32 s46, s%d, 10" % S_WAVE)
    for R, base in ((R_A, KL_), (R_B, VL_)):
        for i in range(7):
            Ls = a.newlabel("Lp2d")
            if i == 6: a("s_cmp_eq_u32 s%d, 3" % S_WAVE); a("s_cbranch_scc1 %s" % Ls)
            a("s_add_u32 m0, s46, %d" % (base + 4096*i))
            a("buffer_load_dwordx4 v%d, s[%d:%d], 0 offen sc1 lds" % (10+i, R, R+3))
            if i == 6: a.label(Ls)
    a.srd(R_A, S_X, ACT)
    a("s_mov_b32 s%d, s10" % R_C); a("s_mov_b32 s%d, s11" % (R_C+1)); a("s_mov_b32 s%d, s26" % (R_C+2)); a("s_mov_b32 s%d, 0x20000" % (R_C+3))
    QF = 40
    a("s_waitcnt vmcnt(12)")
    for hd in range(2):
        for qt in range(2):
            q = QF + 12*hd + 6*qt
            for h in range(2): a("v_mov_b32 v%d, v%d" % (q+2+h, QR+8*hd+2*qt+h))
            a("v_cndmask_b32 v%d, 0, v%d, s[68:69]" % (q+hd, QR+4+2*qt+hd)); a("v_mov_b32 v%d, 0" % (q+1-hd))
            for h in range(2): a("v_mov_b32 v%d, v%d" % (q+4+h, q+h))
    for k in range(4):
        a("v_mov_b32 v%d, 0" % (216+k))
        for r in range(4):
            a("v_and_b32 v24, 0x7fff7fff, v%d" % (QF+6*k+r)); a("v_dot2c_f32_bf16 v%d, s%d, v24" % (216+k, S_ONES))
    a("v_max3_f32 v216, v216, v217, v218"); a("v_max_f32 v216, v216, v219")
    a.xg_reduce(216, 217)
    a("s_waitcnt lgkmcnt(0)"); a("v_mul_f32 v216, v19, v216"); a("v_mov_b32 v217, 0x42c00000"); a("v_cmp_nle_f32 s[58:59], v216, v217")
    MF, ML = 8, 12
    for i in range(4):
        a("v_cndmask_b32 v%d, v25, 0, s[%d:%d]" % (MF+i, 60+2*i, 61+2*i)); a("v_cndmask_b32 v%d, 0, v25, s[%d:%d]" % (ML+i, 60+2*i, 61+2*i))
    a("s_lshl_b32 s55, s50, 3"); a("s_lshl_b32 s46, s%d, 1" % S_WAVE); a("s_add_u32 s55, s55, s46"); a("s_sub_u32 s55, 16, s55"); a("s_max_i32 s55, s55, 0")
    a("s_lshl_b32 s56, s2, 2"); a("s_add_u32 s56, s56, s%d" % S_WAVE); a("s_mul_i32 s56, s56, 5120"); a("s_min_u32 s56, s56, %d" % (WO_S - T_OFF - 5120)); a("s_add_u32 s56, s56, %d" % T_OFF)
    L = a.newlabel("Lfs")
    a("s_cmp_lg_u32 s%d, 0" % S_WAVE); a("s_cbranch_scc1 %s" % L)
    a("v_cmp_ne_u32 vcc, s%d, v39" % S_NONCE); a("s_cbranch_vccz %s" % L)
    a("v_lshrrev_b32 v38, 7, v38")
    a.poll(38, 39, sleep0=0)
    a.label(L)
    a("s_waitcnt vmcnt(6)"); a("s_barrier")
    a.stamp("p2_loaded")
    a("s_cmp_lg_u64 s[58:59], 0")
    if "slow" in ABL: a("s_cmp_eq_u32 s2, s2")
    a("s_cbranch_scc1 L_p2_slow")
    a("s_cmp_lt_u32 s50, 2"); a("s_cbranch_scc1 L_p2_edge")
    M, NM, CZ = 16, 216, 26
    KF = 64
    S2, P, VM = 136, 168, 184
    S1 = S2
    OM, OL, R_, OUT = 192, 200, 32, 208
    marks = "s_mov_b32 s46, %d\nbuffer_load_dword v224, v225, s[%d:%d], s46 offen sc1" % (FP_OFF, R_WS, R_WS+3)
    def prefetch():
        o = [pf_lds(i) for i in range(2, 27)]
        for jj in range(3): o.append("buffer_load_dwordx4 v[%d:%d], v7, s[%d:%d], s77 offen offset:%d" % (XT+4*jj, XT+4*jj+3, R_A, R_A+3, 64*jj))
        for sb, ab in ((71, AW1),):
            for i in range(W1N):
                pre = "s_add_u32 s59, s%d, %d\n" % (sb, 1024*i) if i % 4 == 0 else ""
                o.append(pre + "buffer_load_dwordx4 a[%d:%d], v%d, s[%d:%d], s59 offen offset:%d sc1" % (ab+4*i, ab+4*i+3, V_L16, R_WS, R_WS+3, 1024*(i & 3)))
        return o
    for edge, slow in ((0, 0), (1, 0), (1, 1)):
      if edge: a.label("L_p2_slow" if slow else "L_p2_edge")
      pf = prefetch(); npf0 = None
      if "x_nopf" in ABL: pf = ["s_nop 0"]*55
      if "x_nomk" in ABL: pf = ["s_nop 0" if "store" in x else x for x in pf]
      if "x_now1" in ABL: pf = ["s_nop 0" if " a[" in x else x for x in pf]
      def take(n):
          o = pf[:n]; del pf[:n]; return o
      for head in range(2):
        def Q(qt, t): return QF + 12*head + 6*qt + 2*(t & 1)
        def K(t): return KF + 4*t
        def kread(m):
            o = ["ds_read_b128 v[%d:%d], v20 offset:%d" % (KF+8*m+2, KF+8*m+5, 2304*m + 1024*head)]
            if head == 0: o += ["ds_read_b64 v[%d:%d], v21 offset:%d" % (KF+8*m+6*b, KF+8*m+6*b+1, 2304*m + 8*b) for b in range(2)]
            return o
        def vleft(m): return "ds_read_b128 a[%d:%d], v23 offset:%d" % (VLA+4*m, VLA+4*m+3, 2304*m + 128*head)
        def vmain(m): return "ds_read_b128 v[%d:%d], v22 offset:%d" % (VM+4*(m & 1), VM+4*(m & 1)+3, 2304*m + 1024*head)
        def has(qt, t): return (t <= 16) if qt == 0 else (t >= 1)
        def mask(reg, qt, t):
            o = []
            for i in range(4):
                if t == qt: o.append("v_cndmask_b32 v%d, v25, v%d, s[%d:%d]" % (reg+i, reg+i, 60+2*i, 61+2*i))
                if t == 16+qt: o.append("v_cndmask_b32 v%d, v%d, v25, s[%d:%d]" % (reg+i, reg+i, 60+2*i, 61+2*i))
            return o
        def switch(t, moves):
            Ls = a.newlabel("Lsw")
            a("s_cmp_eq_u32 s55, %d" % t); a("s_cbranch_scc0 %s" % Ls)
            for x in moves: a(x)
            a.label(Ls)
        if head:
            L = a.newlabel("Lmk")
            a("s_cmp_lg_u32 s%d, 0" % S_WAVE); a("s_cbranch_scc1 %s_x" % L)
            a("s_mov_b32 s47, 100000"); a("s_waitcnt vmcnt(%d)" % (npf0 - len(pf)))
            a.label(L)
            a("v_cmp_ne_u32 vcc, s%d, v224" % S_NONCE)
            a("s_cbranch_vccz %s_x" % L)
            a("s_sleep 2"); a(marks); a("s_waitcnt vmcnt(0)")
            a("s_sub_u32 s47, s47, 1"); a("s_cbranch_scc0 %s" % L)
            a.label(L + "_x")
            a("s_waitcnt vmcnt(20)"); a("s_barrier")
            publish2(a, 224)
        AH = 3
        for m in range(AH if slow else 2):
            for x in kread(m): a(x)
        if slow:
            a("v_mov_b32 v%d, v25" % M); a("v_mov_b32 v%d, v25" % (M+1))
            if edge:
                for i in range(4): a("v_mov_b32 v%d, v25" % (CZ+i))
            def c1(qt, t): return CZ if edge else MF if t == qt else ML if t == 16+qt else None
            def maxes(t):
                o = []
                for qt in range(2):
                    if not has(qt, t): continue
                    s = S1 + 8*(t % 3) + 4*qt
                    if edge: o += mask(s, qt, t)
                    o.append("v_max3_f32 v%d, v%d, v%d, v%d" % (M+qt, s, s+1, M+qt))
                for qt in range(2):
                    if not has(qt, t): continue
                    s = S1 + 8*(t % 3) + 4*qt
                    o.append("v_max3_f32 v%d, v%d, v%d, v%d" % (M+qt, s+2, s+3, M+qt))
                return o
            for t in range(18):
                if t % 2 == 0:
                    if edge: switch(t, ["v_mov_b32 v%d, 0" % (CZ+i) for i in range(4)])
                    a("s_waitcnt lgkmcnt(%d)" % (len(kread(0))*min(AH-1, 8 - t//2)))
                ms = [mfma(S1+8*(t % 3)+4*qt, K(t), Q(qt, t), c1(qt, t)) for qt in range(2) if has(qt, t)]
                fill = (kread(t//2+AH) if t % 2 == 0 and t//2+AH < 9 else []) + (maxes(t-2) if t >= 2 else []) + (take(1) if t % 3 == 1 and head else [])
                interleave(a, ms, fill)
        def vstart():
            nonlocal npf0
            if head == 0:
                a("s_waitcnt vmcnt(%d)" % (28 + W1N - len(pf))); a("s_barrier")
                for q in range(5):
                    if q == 4: a("s_add_u32 s56, s56, 4096")
                    if "x_nomk" not in ABL: a("buffer_store_dwordx4 v[228:231], v%d, s[%d:%d], s56 offen offset:%d sc1" % (V_L16, R_WS, R_WS+3, 1024*(q & 3)))
                npf0 = len(pf); a(marks)
            a("s_mov_b32 exec_lo, 0x00030003"); a("s_mov_b32 exec_hi, 0x00030003")
            for m in range(9): a(vleft(m))
            a("s_mov_b64 exec, -1")
            a(vmain(0))
        if slow: vstart()
        if slow:
            for x in maxes(16) + maxes(17): a(x)
            for sw in ("v_permlane32_swap_b32", "v_permlane16_swap_b32"):
                for qt in range(2): a("v_mov_b32 v%d, v%d" % (30+qt, M+qt))
                for qt in range(2): a("%s v%d, v%d" % (sw, M+qt, 30+qt))
                for qt in range(2): a("v_max_f32 v%d, v%d, v%d" % (M+qt, M+qt, 30+qt))
            negs = ["v_sub_f32 v%d, 0, v%d" % (NM+4*qt+i, M+qt) for qt in range(2) for i in range(4)]
        else: negs = ["v_mov_b32 v%d, 0" % (NM+i) for i in range(4)]
        if edge:
            for i in range(len(negs)): a("v_mov_b32 v%d, v25" % (NM+i))
        def c2(qt, t): return NM+4*qt if slow else NM if edge else MF if t == qt else ML if t == 16+qt else None
        def qk(m):
            return [mfma(S2+16*(m & 1)+8*qt+4*b, K(2*m+b), Q(qt, b), c2(qt, 2*m+b)) for qt in range(2) for b in range(2) if has(qt, 2*m+b)]
        def pv(m):
            o = []
            for qt in range(2):
                p = P+8*(m & 1)+4*qt
                o.append(mfma(OM+4*qt, VM+4*(m & 1), p, None if m == 0 else OM+4*qt))
                o.append(mfma(OL+4*qt, VLA+4*m, p, None if m == 0 else OL+4*qt, ta="a"))
            return o
        if slow: switch(0, negs)
        else: a("s_waitcnt lgkmcnt(%d)" % len(kread(0)))
        for x in qk(0): a(x)
        for m in range(9):
            if edge and m < 8: switch(2*m+2, negs)
            mf = (qk(m+1) if m < 8 else []) + (pv(m-1) if m else [])
            va = []
            ld = take((3 if (m % 3 or head == 0) else 2) if slow else 0 if m + head == 0 else -(-len(pf)//(18 - 9*head - m)))
            for qt in range(2):
                p = P+8*(m & 1)+4*qt
                for b in range(2):
                    s = S2+16*(m & 1)+8*qt+4*b
                    if has(qt, 2*m+b):
                        if edge: va += mask(s, qt, 2*m+b)
                        va += ["v_exp_f32 v%d, v%d" % (s+i, s+i) for i in range(4)]
                    if ld and (b == 0 or qt == 0 or len(ld) > 0 and qt == 1 and b == 1): va.append(ld.pop(0))
                for b in range(2):
                    s = S2+16*(m & 1)+8*qt+4*b
                    if has(qt, 2*m+b):
                        va += ["v_cvt_pk_bf16_f32 v%d, v%d, v%d" % (p+2*b+h, s+2*h, s+2*h+1) for h in range(2)]
                    else:
                        va += ["v_mov_b32 v%d, 0" % (p+2*b+h) for h in range(2)]
            if slow:
                if m: a("s_waitcnt lgkmcnt(1)")
            else:
                a("s_waitcnt lgkmcnt(%d)" % (0 if m == 0 else 11 if m == 1 else 1))
                if m + 2 < 9: va = kread(m+2) + va
            if m == 1 and not slow:
                interleave(a, mf[:4], va[:len(va)//2]); a("s_waitcnt lgkmcnt(%d)" % (1 + len(kread(0)))); interleave(a, mf[4:], va[len(va)//2:])
            else: interleave(a, mf, va)
            if m == 0 and not slow: vstart()
            if m < 8: a(vmain(m+1))
        a("s_waitcnt lgkmcnt(0)")
        for x in pv(8): a(x)
        if head == 1:
            assert not pf
            a("s_mul_i32 s54, s53, 18432"); a("s_add_u32 s54, s54, %d" % O_OFF)
            a("s_lshl_b32 s46, s51, 10"); a("s_add_u32 s58, s46, s54"); a("s_add_u32 s59, s58, 18432")
            a("s_lshr_b32 s46, s51, 3"); a("s_add_u32 s46, s46, 16"); a("s_lshl_b32 s46, s46, 10"); a("s_add_u32 s54, s54, s46")
            a("s_and_b32 s46, s51, 7"); a("s_lshr_b32 s46, s46, 1"); a("s_lshl_b32 s46, s46, 8"); a("s_add_u32 s54, s54, s46")
            a("s_and_b32 s46, s51, 1"); a("s_lshl_b32 s46, s46, 3"); a("s_add_u32 s54, s54, s46"); a("s_add_u32 s47, s54, 18432")
        for qt in range(2): a("v_rcp_f32 v%d, v%d" % (30+qt, OL+4*qt+3))
        for qt in range(2):
            for i in range(4): a("v_mul_f32 v%d, v%d, v%d" % (OM+4*qt+i, OM+4*qt+i, 30+qt))
            for i in range(2): a("v_mul_f32 v%d, v%d, v%d" % (OL+4*qt+i, OL+4*qt+i, 30+qt))
        for qt in range(2):
            for h in range(2): a("v_cvt_pk_bf16_f32 v%d, v%d, v%d" % (OUT+4*qt+2*head+h, OM+4*qt+2*h, OM+4*qt+2*h+1))
            a("v_cvt_pk_bf16_f32 v%d, v%d, v%d" % (R_+2*qt+head, OL+4*qt, OL+4*qt+1))
      if not slow: a("s_branch L_p2_out")
    a.label("L_p2_out")
    a("buffer_store_dwordx4 v[%d:%d], v%d, s[%d:%d], s58 offen sc1" % (OUT, OUT+3, V_L16, R_WS, R_WS+3))
    a("buffer_store_dwordx4 v[%d:%d], v%d, s[%d:%d], s59 offen sc1" % (OUT+4, OUT+7, V_L16, R_WS, R_WS+3))
    a("s_mov_b64 exec, 0xffff")
    a("buffer_store_dwordx2 v[%d:%d], v%d, s[%d:%d], s54 offen sc1" % (R_, R_+1, V_L16, R_WS, R_WS+3))
    a("buffer_store_dwordx2 v[%d:%d], v%d, s[%d:%d], s47 offen sc1" % (R_+2, R_+3, V_L16, R_WS, R_WS+3))
    a("s_mov_b64 exec, -1")
    a.stamp("p2_done")
    if a.stop == 2:
        a("s_waitcnt vmcnt(0)")

_c0 = 2.0*math.log2(math.e)*math.sqrt(2/math.pi)
GS = (_c0*0.044715)**(1/3)
GK = _c0/GS

def gelu_consts(a): a("s_mov_b32 s48, %d" % f32(GS)); a("s_mov_b32 s49, %d" % f32(GK))

def gelu_poly(regs, t):
    o = ["v_pk_fma_f32 v[%d:%d], v[%d:%d], v[%d:%d], s[48:49] op_sel:[0,0,1] op_sel_hi:[1,1,1]" % (t+2*k, t+2*k+1, r, r+1, r, r+1) for k, r in enumerate(regs)]
    return o + ["v_pk_mul_f32 v[%d:%d], v[%d:%d], v[%d:%d]" % (t+2*k, t+2*k+1, t+2*k, t+2*k+1, r, r+1) for k, r in enumerate(regs)]

def gelu_pk(a, regs, t):
    for x in gelu_poly(regs, t): a(x)
    for k in range(2*len(regs)): a("v_exp_f32 v%d, -v%d" % (t+k, t+k))
    for k, r in enumerate(regs): a("v_pk_fma_f32 v[%d:%d], v[%d:%d], s[48:49], s[48:49] op_sel_hi:[1,0,0]" % (t+2*k, t+2*k+1, t+2*k, t+2*k+1))
    for k in range(2*len(regs)): a("v_rcp_f32 v%d, v%d" % (t+k, t+k))
    for k, r in enumerate(regs): a("v_pk_mul_f32 v[%d:%d], v[%d:%d], v[%d:%d]" % (r, r+1, r, r+1, t+2*k, t+2*k+1))

def stats_loads(a, off, stile, vt):
    a("v_lshlrev_b32 v%d, 3, v%d" % (vt+4, V_LANE))
    a("v_add_u32 v%d, 512, v%d" % (vt+5, vt+4)); a("v_cmp_gt_u32 vcc, 32, v%d" % V_LANE); a("v_mov_b32 v%d, 0x7fffffff" % vt)
    a("v_cndmask_b32 v%d, v%d, v%d, vcc" % (vt+5, vt, vt+5))
    a("s_mul_i32 s46, s%d, 768" % stile); a("s_add_u32 s46, s46, %d" % off)
    return ["buffer_load_dwordx2 v[%d:%d], v%d, s[%d:%d], s46 offen sc1" % (vt+2*k, vt+2*k+1, vt+4+k, R_WS, R_WS+3) for k in range(2)]

def stats_finish(a, vt, vmean, vrstd):
    a("v_add_f32 v%d, v%d, v%d" % (vt, vt, vt+2)); a("v_add_f32 v%d, v%d, v%d" % (vt+1, vt+1, vt+3))
    for sw in ("v_permlane32_swap_b32", "v_permlane16_swap_b32"):
        for k in range(2): a("v_mov_b32 v%d, v%d" % (vt+2+k, vt+k))
        for k in range(2): a("%s v%d, v%d" % (sw, vt+k, vt+2+k))
        for k in range(2): a("v_add_f32 v%d, v%d, v%d" % (vt+k, vt+k, vt+2+k))
    a("s_mov_b32 s47, %d" % f32(1.0/576))
    a("v_mul_f32 v%d, s47, v%d" % (vmean, vt)); a("v_mul_f32 v%d, v%d, v%d" % (vt, vmean, vmean))
    a("v_fma_f32 v%d, v%d, s47, -v%d" % (vt+1, vt+1, vt)); a("v_max_f32 v%d, 0, v%d" % (vt+1, vt+1))
    a("v_add_f32 v%d, %d, v%d" % (vt, f32(1e-5), vt+1)); a("v_rsq_f32 v%d, v%d" % (vrstd, vt))

def norm_ops(x, vs, vb, t):
    o = []
    for r in range(4):
        o.append("v_lshlrev_b32 v%d, 16, v%d" % (t+2*r, x+r)); o.append("v_and_b32 v%d, 0xffff0000, v%d" % (t+2*r+1, x+r))
    for r in range(8): o.append("v_fma_f32 v%d, v%d, v%d, v%d" % (t+r, t+r, vs, vb))
    for r in range(4): o.append("v_cvt_pk_bf16_f32 v%d, v%d, v%d" % (x+r, t+2*r, t+2*r+1))
    return o

def out_stats(a, pk, n, vt, off):
    a("v_mov_b32 v%d, 0" % vt); a("v_mov_b32 v%d, 0" % (vt+1))
    for r in range(n):
        a("v_dot2c_f32_bf16 v%d, s%d, v%d" % (vt, S_ONES, pk+r)); a("v_dot2c_f32_bf16 v%d, v%d, v%d" % (vt+1, pk+r, pk+r))
    for sw in ("v_permlane32_swap_b32", "v_permlane16_swap_b32"):
        for k in range(2): a("v_mov_b32 v%d, v%d" % (vt+2+k, vt+k))
        for k in range(2): a("%s v%d, v%d" % (sw, vt+k, vt+2+k))
        for k in range(2): a("v_add_f32 v%d, v%d, v%d" % (vt+k, vt+k, vt+2+k))
    a("s_mul_i32 s46, s53, 6"); a("s_add_u32 s46, s46, s51"); a("s_lshl_b32 s46, s46, 7"); a("s_add_u32 s46, s46, %d" % off)
    a("v_lshlrev_b32 v%d, 3, v%d" % (vt+2, V_LANE))
    a("s_mov_b64 exec, 0xffff")
    a("buffer_store_dwordx2 v[%d:%d], v%d, s[%d:%d], s46 offen sc1" % (vt, vt+1, vt+2, R_WS, R_WS+3))
    a("s_mov_b64 exec, -1")

AF, ACC, WB, HK, VMEAN, VRSTD = 64, 136, 160, 40, 52, 53
OS = WB

def tag_ops(regs, t):
    o = []; regs = list(regs)
    o.append("v_max3_u32 v%d, v%d, v%d, v%d" % (t, regs[0], regs[1], regs[2])); regs = regs[3:]
    while len(regs) >= 2: o.append("v_max3_u32 v%d, v%d, v%d, v%d" % (t, t, regs[0], regs[1])); regs = regs[2:]
    if regs: o.append("v_max_u32 v%d, v%d, v%d" % (t, t, regs[0]))
    return o + ["v_cmp_eq_u32 vcc, -1, v%d" % t]

def tag_branch(a, loads, regs, t, again=(), drain=False):
    L = a.newlabel("Ltg")
    a("s_cbranch_vccnz %s" % L)
    a.label(L + "_b")
    st = [L + ":"] + "\n".join(loads).split("\n") + ["s_waitcnt vmcnt(0)"] + tag_ops(regs, t)
    st += ["s_cmp_eq_u32 s79, 0", "s_cbranch_scc1 %s_b" % L, "s_sub_u32 s79, s79, 1", "s_cbranch_vccnz %s" % L]
    st += list(again) + (["s_waitcnt vmcnt(0)"] if drain and again else []) + ["s_branch %s_b" % L]
    a.stubs += st

UP = 8
NE = 12
def wpos(layout, b):
    if layout is None: return W_LDS//1024 + b
    w, i = divmod(b, 27)
    return layout[0] + NE*w + i if i < NE else layout[1] + (27-NE)*w + i - NE

def gemm96(a, loads, stage, delay, pre=(), each=None, stamp=None, extra=(), layout=None, early=(), before=None, after=None, init=None):
    a("s_waitcnt vmcnt(20)")
    a("s_barrier")
    nv = sum("buffer_load" in x for x in stage)
    n1 = len(stage) if nv else len(stage)//3
    for x in stage[:n1]: a(x)
    if delay: a("s_sleep %d" % delay)
    a("s_mov_b32 s79, 50000")
    a.stamp(stamp + "_ready")
    for x in pre: a(x)
    interleave(a, loads[:UP], stage[n1:])
    a("s_waitcnt vmcnt(%d) lgkmcnt(0)" % (UP + len(pre)))
    if before: before(a)
    a("s_barrier")
    def wr(j):
        o = []
        for t in range(6):
            q, r = divmod(wpos(layout, 18*t + j), 64)
            o.append("ds_read_b128 v[%d:%d], v%d offset:%d" % (WB+24*(j % 3)+4*t, WB+24*(j % 3)+4*t+3, (V_L16, 5, 6)[q], 1024*r))
        return o
    for x in early: a(x)
    if each: each(lambda: [a(x) for x in wr(0) + wr(1)])
    else:
        for x in wr(0) + wr(1): a(x)
    if init: init()
    a("s_waitcnt vmcnt(%d)" % (UP-1))
    fr = lambda j: range(AF+4*j, AF+4*j+4)
    for x in tag_ops(fr(0), 30): a(x)
    tag_branch(a, [loads[0]], fr(0), 30, loads[1:UP])
    if after: after(a)
    for j in range(18):
        ex = lambda q: min(len(extra), max(0, (q-9)*len(extra)//8))
        issued = min(18, UP+j) + ex(j)
        a("s_waitcnt vmcnt(%d) lgkmcnt(%d)" % (issued - 1 - min(j+1, 17), 6 if j < 17 else 0))
        if j in (0, 9): a.stamp(stamp + "_k%d" % j)
        ms = [mfma(ACC+4*t, WB+24*(j % 3)+4*t, AF+4*j, None if j == 0 and not init else ACC+4*t) for t in range(6)]
        fill = ([loads[UP+j]] if UP+j < 18 else []) + (tag_ops(fr(j+1), 30) if j < 17 else []) + (wr(j+2) if j < 16 else []) + list(extra[ex(j):ex(j+1)])
        interleave(a, ms, fill)
        if j < 17: tag_branch(a, [loads[j+1]], fr(j+1), 30, loads[j+2:UP+j+1], drain=ex(j+1) > 0)

FP2Q = "s_mov_b32 s46, %d\nbuffer_load_dwordx4 v[16:19], v%d, s[%d:%d], s46 offen sc1" % (FP2_OFF, V_L16, R_WS, R_WS+3)

def marks2(a):
    L = a.newlabel("Lm2")
    a("s_cmp_lg_u32 s%d, 0" % S_WAVE); a("s_cbranch_scc1 %s_x" % L)
    a("s_mov_b32 s47, 100000")
    a.label(L)
    for r in range(4): a("v_xor_b32 v%d, s%d, v%d" % (16+r, S_NONCE, 16+r))
    a("v_or3_b32 v16, v16, v17, v18"); a("v_or_b32 v16, v16, v19"); a("v_cmp_ne_u32 vcc, 0, v16"); a("s_cbranch_vccz %s_x" % L)
    a(FP2Q); a("s_waitcnt vmcnt(0)")
    a("s_sub_u32 s47, s47, 1"); a("s_cbranch_scc0 %s" % L)
    a.label(L + "_x")

def publish2(a, vt):
    L = a.newlabel("Lmp"); a("s_cmp_lg_u32 s%d, 0" % S_WAVE); a("s_cbranch_scc1 %s" % L); a.set_mark(vt, FP2_OFF); a.label(L)

def wflags(a, first, va, vd):
    a("s_mul_i32 s46, s65, 18"); a("s_add_u32 s46, s46, %d" % (FS + first))
    a("v_min_u32 v%d, 17, v%d" % (va, V_LANE)); a("v_add_u32 v%d, s46, v%d" % (va, va)); a("v_lshlrev_b32 v%d, 7, v%d" % (va, va))
    a("buffer_load_dword v%d, v%d, s[%d:%d], 0 offen offset:%d sc1" % (vd, va, R_WS, R_WS+3, FLAG0))

def phase345(a):
    a("s_mov_b32 s50, s74"); a("s_mov_b32 s51, s75"); a("s_mov_b32 s53, s76")
    a("s_cmp_ge_u32 s51, 6"); a("s_cbranch_scc1 L_p3_helper")
    a("v_add_u32 v5, 65536, v%d" % V_L16); a("v_add_u32 v6, 131072, v%d" % V_L16)
    a("s_mul_i32 s46, s%d, %d" % (S_WAVE, 1024*NE)); a("v_add_u32 v7, s46, v%d" % V_L16)
    a("s_mul_i32 s46, s%d, %d" % (S_WAVE, 1024*(27-NE))); a("v_add_u32 v8, s46, v%d" % V_L16)
    a("v_add_u32 v62, %d, v7" % (112*1024)); a("v_add_u32 v63, %d, v8" % (52*1024))
    LAY4, LAY5 = (0, 52), (112, 0)
    a("s_mul_i32 s54, s53, 18432")
    a("s_mul_i32 s55, s51, 3072"); a("s_add_u32 s55, s55, s54")
    a("v_lshlrev_b32 v9, 7, v%d" % V_LANE)
    a("s_lshl_b32 s46, s51, 2"); a("s_add_u32 s46, s46, s%d" % S_WAVE); a("s_mul_i32 s46, s46, 3072"); a("s_mul_i32 s78, s50, 73728"); a("s_add_u32 s78, s78, s46")
    def w2(i0, i1, sb=72, ab=AW2):
        return [("s_add_u32 s59, s%d, %d\n" % (sb, 1024*(i & ~3)) if (i % 4 == 0 or i == i0) else "") +
                "buffer_load_dwordx4 a[%d:%d], v%d, s[%d:%d], s59 offen offset:%d sc1" % (ab+4*i, ab+4*i+3, V_L16, R_WS, R_WS+3, 1024*(i & 3)) for i in range(i0, i1)]
    def park(ab, lay, late):
        if late: return ["ds_write_b128 v%d, a[%d:%d] offset:%d" % (63 if lay[1] else 8, ab+4*i, ab+4*i+3, 1024*(i - NE)) for i in range(NE, 27)]
        return ["ds_write_b128 v%d, a[%d:%d] offset:%d" % (62 if lay[0] else 7, ab+4*i, ab+4*i+3, 1024*i) for i in range(NE)]
    def aloads(off):
        for q in range(5): a("s_add_u32 s%d, s54, %d" % (60+q, off + 4096*q))
        return ["buffer_load_dwordx4 v[%d:%d], v%d, s[%d:%d], s%d offen offset:%d sc1" % (AF+4*j, AF+4*j+3, V_L16, R_WS, R_WS+3, 60+(j >> 2), 1024*(j & 3)) for j in range(18)]
    def ostores(src, off):
        a("s_add_u32 s46, s55, %d" % off)
        for jj in range(3): a("buffer_store_dwordx4 v[%d:%d], v%d, s[%d:%d], s46 offen offset:%d sc1" % (src+4*jj, src+4*jj+3, V_L16, R_WS, R_WS+3, 1024*jj))
    a("s_lshl_b32 s46, s53, 4"); a("v_add_u32 v20, s46, v%d" % V_R); a("s_mov_b32 s47, 18432")
    for k, sh in enumerate((1, -1, 2, -2)):
        a("v_subrev_u32 v21, %d, v20" % sh); a("v_ashrrev_i32 v22, 4, v21"); a("v_mul_lo_u32 v22, v22, s47")
        a("v_and_b32 v21, 15, v21"); a("v_lshl_add_u32 v21, v%d, 4, v21" % V_G); a("v_lshl_add_u32 v%d, v21, 4, v22" % (56+k))
    a("v_cmp_gt_u32 vcc, 32, v%d" % V_LANE); a("v_cndmask_b32 v60, v57, v56, vcc"); a("v_cndmask_b32 v61, v59, v58, vcc")
    def init3():
        for k in range(12):
            a("v_lshlrev_b32 v%d, 16, v%d" % (ACC+2*k, XT+k)); a("v_and_b32 v%d, 0xffff0000, v%d" % (ACC+2*k+1, XT+k))
    N2 = int(os.environ.get("N2", 0))
    n3 = max(N2, NE)
    gemm96(a, aloads(O_OFF), [pf_lds(0), pf_lds(1)] + w2(W1N, 27, 71, AW1) + w2(0, N2), SLEEP0["p3"] if N2 < 8 else 0, stamp="p3", extra=w2(N2, n3), early=park(AW1, LAY4, False), init=init3)
    a.stamp("p3_gemm")
    a(FP2Q)
    for k in range(12): a("v_cvt_pk_bf16_f32 v%d, v%d, v%d" % (HK+k, ACC+2*k, ACC+2*k+1))
    ostores(HK, H_OFF)
    out_stats(a, HK, 12, 10, SH_OFF)
    a.stamp("p3_epi")
    if a.stop == 3: a("s_waitcnt vmcnt(0)"); a("s_branch L_fin")
    for r in range(4): a("v_mov_b32 v%d, s%d" % (20+r, S_ONES))
    cs = [mfma(WB+4*(i//9), AW1+4*i, 20, None if i % 9 == 0 else WB+4*(i//9), ta="a") for i in range(27)]
    a("s_mul_i32 s46, s%d, 192" % S_WAVE); a("s_add_u32 s46, s46, %d" % (48*1024)); a("v_lshl_add_u32 v24, v%d, 4, s46" % V_G)
    g = G(); interleave(g, [cs[(i % 3)*9 + i//3] for i in range(27)], park(AW1, LAY4, True))
    st4 = g.lines
    st4 += ["s_nop 7"] + ["ds_write_b128 v24, v[%d:%d] offset:%d" % (WB+4*k, WB+4*k+3, 64*k) for k in range(3)]
    CS = 232
    sl = stats_loads(a, SH_OFF, 53, 10); a("s_mov_b32 s65, s46"); sl = [x.replace("s46", "s65") for x in sl]
    def fin4(wreads):
        a("v_lshlrev_b32 v24, 4, v%d" % V_G)
        for k in range(12): a("ds_read_b128 v[%d:%d], v24 offset:%d" % ((CS if k % 2 == 0 else ACC)+4*(k//2), (CS if k % 2 == 0 else ACC)+4*(k//2)+3, 48*1024 + 64*k))
        wreads()
        a("s_waitcnt vmcnt(%d)" % UP)
        for x in tag_ops(range(10, 14), 30): a(x)
        tag_branch(a, sl, range(10, 14), 30, al4[:UP])
        stats_finish(a, 10, VMEAN, VRSTD)
        a("v_mul_f32 v12, v%d, v%d" % (VRSTD, VRSTD)); a("v_mul_f32 v12, v12, v11"); a("v_add_f32 v12, %d, v12" % f32(1e-5))
        a("v_rsq_f32 v12, v12"); a("v_mul_f32 v16, %d, v%d" % (f32(GS), VRSTD)); a("v_mul_f32 v16, v12, v16"); a("v_mul_f32 v17, v16, -v%d" % VMEAN)
        a("s_waitcnt lgkmcnt(12)")
        for k in range(12): a("v_pk_add_f32 v[%d:%d], v[%d:%d], v[%d:%d]" % (CS+2*k, CS+2*k+1, CS+2*k, CS+2*k+1, ACC+2*k, ACC+2*k+1))
        for k in range(12): a("v_pk_mul_f32 v[%d:%d], v[%d:%d], v[16:17] op_sel:[0,1] op_sel_hi:[1,1]" % (CS+2*k, CS+2*k+1, CS+2*k, CS+2*k+1))
    if "d_mid" in ABL: a("s_sleep 64")
    al4 = aloads(H_OFF)
    gemm96(a, al4, st4, SLEEP0["p4"], pre=sl, each=fin4, stamp="p4", extra=w2(n3, 27), layout=LAY4, before=marks2)
    a.stamp("p4_gemm")
    gelu_consts(a)
    for k in range(12): a("v_pk_fma_f32 v[%d:%d], v[%d:%d], v[16:17], v[%d:%d] op_sel_hi:[1,0,1]" % (ACC+2*k, ACC+2*k+1, ACC+2*k, ACC+2*k+1, CS+2*k, CS+2*k+1))
    g = G(); gelu_pk(g, [ACC+2*k for k in range(12)], AF)
    interleave(a, g.lines, park(AW2, LAY5, False))
    for k in range(12): a("v_cvt_pk_bf16_f32 v%d, v%d, v%d" % (OS+k, ACC+2*k, ACC+2*k+1))
    ostores(OS, T_OFF)
    a.stamp("p4_epi")
    if a.stop == 4: a("s_waitcnt vmcnt(0)"); a("s_branch L_fin")
    a.srd(R_A, S_WS, ACT, T_OFF)
    for q in range(5): a("s_mov_b32 s%d, %d" % (70+q, 4096*q))
    def vsel(j): return 56 if j < 4 else 60 if j == 4 else 57 if j < 9 else 58 if j < 13 else 61 if j == 13 else 59
    tl = ["buffer_load_dwordx4 v[%d:%d], v%d, s[%d:%d], s%d offen offset:%d sc1" % (AF+4*j, AF+4*j+3, vsel(j), R_A, R_A+3, 70+(j >> 2), 1024*(j & 3)) for j in range(18)]
    roles6(a)
    wflags(a, 54, 54, 55)
    a("s_waitcnt vmcnt(4)")
    def init5():
        a("v_mul_f32 v17, v%d, -v%d" % (VRSTD, VMEAN)); a("v_mov_b32 v16, v%d" % VRSTD)
        for k in range(12):
            a("v_lshlrev_b32 v%d, 16, v%d" % (ACC+2*k, HK+k)); a("v_and_b32 v%d, 0xffff0000, v%d" % (ACC+2*k+1, HK+k))
        for k in range(12):
            a("v_pk_fma_f32 v[%d:%d], v[%d:%d], v[16:17], v[16:17] op_sel:[0,0,1] op_sel_hi:[1,0,1]" % (ACC+2*k, ACC+2*k+1, ACC+2*k, ACC+2*k+1))
    gemm96(a, tl, park(AW2, LAY5, True), SLEEP0["p5"], stamp="p5", layout=LAY5, init=init5)
    a.stamp("p5_gemm")
    for k in range(12): a("v_cvt_pk_bf16_f32 v%d, v%d, v%d" % (OS+k, ACC+2*k, ACC+2*k+1))
    ostores(OS, X1_OFF)
    out_stats(a, OS, 12, 10, SX_OFF)
    a.stamp("p5_epi")
    a("s_branch L_p5_pre")
    a.label("L_p3_helper")
    if "d_h3" in ABL: a("s_sleep 64")
    a("s_cmp_ge_u32 s48, 144"); a("s_cbranch_scc1 L_p3_touch")
    a("s_barrier")
    a(pf_lds(0)); a(pf_lds(1))
    swizzle_setup(a)
    a("s_add_u32 s48, s48, 54")
    for p in range(3):
        sw_big(a, 48, 60+3*p)
        a("s_lshl_b32 s53, s52, 10"); a("s_add_u32 s%d, s%d, s53" % (60+3*p, 60+3*p)); a("s_add_u32 s%d, s48, %d" % (62+3*p, FS))
        a("s_add_u32 s48, s48, 1")
    a("s_waitcnt vmcnt(0)"); a("s_barrier")
    for p in range(3): sw_process(a, p, W_LDS + 36864*p)
    a("s_waitcnt vmcnt(0)"); a("s_barrier")
    sw_flags(a, range(3))
    a.stamp("h_w3")
    a.label("L_p3_touch")
    roles6(a)
    NL = (SW << LCH)//128//32
    a("s_lshr_b32 s46, s65, %d" % LCH); a("s_mul_i32 s46, s46, %d" % (SW << LCH))
    a("s_and_b32 s47, s74, 3"); a("s_lshl_b32 s47, s47, 1"); a("s_add_u32 s47, s47, s75"); a("s_sub_u32 s47, s47, 6")
    if "xcd4" not in ABL:
        NL = BW//128//256
        a("s_mov_b32 s46, 0"); a("s_lshl_b32 s47, s74, 1"); a("s_add_u32 s47, s47, s75"); a("s_sub_u32 s47, s47, 6")
    a("s_lshl_b32 s47, s47, 2"); a("s_add_u32 s47, s47, s%d" % S_WAVE); a("s_mul_i32 s47, s47, %d" % (128*NL)); a("s_add_u32 s46, s46, s47")
    a.srd(R_A, S_W4, BW)
    a("v_lshlrev_b32 v10, 7, v%d" % V_LANE)
    for q in range(-(-NL//64) if "late4" not in ABL else 0):
        if NL - 64*q < 64: a("s_bfm_b64 exec, %d, 0" % (NL - 64*q))
        a("buffer_load_dword v11, v10, s[%d:%d], s46 offen" % (R_A, R_A+3)); a("s_add_u32 s46, s46, 8192")
    a("s_mov_b64 exec, -1")
    a.stamp("h_w4")
    wflags(a, 54, 54, 55)
    a(FP2Q)
    a("s_waitcnt vmcnt(0)")
    marks2(a)
    a.label("L_p5_pre")
    a.label("L_p5_done")
    a.stamp("p5_done")

WFL = os.environ.get("WFL", " sc1")
OFL = os.environ.get("OFL", "")
LCH = int(os.environ.get('LCH', 1))
RING = 184

def roles6(a):
    L = LCH
    a("s_lshr_b32 s46, s%d, %d" % (S_XCD, 3-L)); a("s_lshl_b32 s64, s46, %d" % (5-L)); a("s_lshr_b32 s67, s%d, %d" % (S_SLOT, L)); a("s_add_u32 s64, s64, s67")
    a("s_and_b32 s67, s67, 7")
    a("s_mov_b32 s67, 0")
    a("s_and_b32 s46, s%d, %d" % (S_XCD, (8 >> L) - 1)); a("s_lshl_b32 s65, s46, %d" % L); a("s_and_b32 s46, s%d, %d" % (S_SLOT, (1 << L) - 1)); a("s_add_u32 s65, s65, s46")
    a("s_lshl_b32 s46, s65, 2"); a("s_add_u32 s46, s46, s%d" % S_WAVE); a("s_mul_i32 s66, s46, %d" % (9*18432)); a("s_add_u32 s66, s66, %d" % W3_S)

def wload(j, s=58, ring=("a", RING)):
    o = "s_add_u32 s%d, s%d, 4096\n" % (s, s) if (j and j % 4 == 0) else ""
    return o + ("buffer_load_dwordx4 %s[%d:%d], v%d, s[%d:%d], s%d offen offset:%d" + WFL) % (ring[0], ring[1]+4*j, ring[1]+4*j+3, V_L16, R_WS, R_WS+3, s, 1024*(j & 3))

def ring_prefill(a, s):
    a("s_mul_i32 s%d, s67, 18432" % s); a("s_add_u32 s%d, s%d, s66" % (s, s))
    return [wload(j, s) for j in range(18)]

def norm_dot(x, t):
    o = []
    for r in range(4): o += ["v_dot2_f32_bf16 v%d, v%d, v%d, v17" % (t+2*r+h, x+r, 16+2*h) for h in range(2)]
    return o + ["v_cvt_pk_bf16_f32 v%d, v%d, v%d" % (x+r, t+2*r, t+2*r+1) for r in range(4)]

def phase6(a):
    AC, PK, RB, GT, XR = 40, 72, 80, 136, 64
    HB = 73728
    def xf(T, j):
        f = 4*j + T
        return ("a", 4*f) if f < 46 else ("v", 152 + 4*(f-46))
    a("s_mov_b32 s50, s64"); a("s_mov_b32 s51, s65"); a("s_mov_b32 s54, s66"); a("s_mov_b32 s52, s67")
    a("s_lshl_b32 s53, s50, 2"); a("s_add_u32 s53, s53, s%d" % S_WAVE)
    a("s_mul_i32 s56, s50, 72"); a("s_add_u32 s56, s56, s51"); a("s_lshl_b32 s56, s56, 2"); a("s_add_u32 s56, s56, s%d" % S_WAVE)
    a("s_lshl_b32 s56, s56, 11"); a("s_add_u32 s56, s56, %d" % PART)
    a("s_mul_i32 s46, s53, 18432")
    for q in range(5): a("s_add_u32 s%d, s46, %d" % (70+q, X1_OFF + 4096*q))
    a("s_mul_i32 s46, s%d, 18432" % S_WAVE); a("v_add_u32 v5, s46, v%d" % V_L16)
    sl = stats_loads(a, SX_OFF, 53, 10)
    a("s_mov_b32 s60, s46")
    sl = [x.replace("s46", "s60") for x in sl]
    a("v_mov_b32 v28, 0")
    a("global_load_dword v29, v28, s[%d:%d] sc1" % (S_DBG, S_DBG+1))
    L = a.newlabel("Lh")
    a("s_cmp_lg_u32 s%d, 0" % S_WAVE); a("s_cbranch_scc1 %s" % L)
    a("v_cmp_ne_u32 vcc, s%d, v55" % S_NONCE); a("s_cbranch_vccz %s" % L)
    a("v_lshrrev_b32 v54, 7, v54")
    a.poll(54, 55, sleep0=0)
    a.label(L)
    a("s_barrier")
    pre = ring_prefill(a, 59)
    NP = SLEEP0["p6"]
    for x in pre[:NP]: a(x)
    a.stamp("p6_ready")
    a("s_mov_b32 s79, 50000")
    for x in sl: a(x)
    def xload(j): return "buffer_load_dwordx4 v[%d:%d], v%d, s[%d:%d], s%d offen offset:%d sc1" % (XR+4*j, XR+4*j+3, V_L16, R_WS, R_WS+3, 70+(j >> 2), 1024*(j & 3))
    for j in range(UP): a(xload(j))
    a("v_add_u32 v32, 36864, v%d" % V_L16); a("v_add_u32 v33, %d, v%d" % (HB, V_L16)); a("v_add_u32 v34, %d, v%d" % (HB+36864, V_L16))
    a("s_lshr_b32 s46, s%d, 1" % S_WAVE); a("s_lshl_b32 s46, s46, 12"); a("s_and_b32 s47, s%d, 1" % S_WAVE); a("s_lshl_b32 s47, s47, 3")
    a("s_add_u32 s46, s46, s47"); a("v_add_u32 v35, s46, v33")
    gelu_consts(a)
    R3, ST, SEL, RS = 12, 32, 6, RB+24
    def natsel(d, sr, bit, t):
        o = ["s_bfe_u32 s66, s%d, %d" % (sr, 0x10000 + bit), "s_lshl_b32 s66, s66, 1", "v_lshrrev_b32 v%d, 3, v%d" % (t, V_R), "v_add_u32 v%d, s66, v%d" % (t, t),
             "v_cmp_eq_u32 s[66:67], v%d, v%d" % (t, V_G), "v_and_b32 v%d, 1, v%d" % (t, V_R), "v_lshlrev_b32 v%d, 4, v%d" % (t, t),
             "v_mov_b32 v%d, 0x3f80" % (t+1), "v_lshlrev_b32 v%d, v%d, v%d" % (t+1, t, t+1), "v_cndmask_b32 v%d, 0, v%d, s[66:67]" % (t+1, t+1),
             "v_bfe_u32 v%d, v%d, 1, 2" % (t, V_R)]
        for k in range(4): o += ["v_cmp_eq_u32 s[66:67], %d, v%d" % (k, t), "v_cndmask_b32 v%d, 0, v%d, s[66:67]" % (d+k, t+1)]
        return o
    a("v_lshrrev_b32 v26, 2, v%d" % V_R); a("v_cmp_eq_u32 s[64:65], v26, v%d" % V_G)
    a("v_and_b32 v26, 1, v%d" % V_R); a("v_lshlrev_b32 v26, 4, v26"); a("v_mov_b32 v27, 0x3f80"); a("v_lshlrev_b32 v27, v26, v27")
    a("v_cndmask_b32 v27, 0, v27, s[64:65]"); a("v_and_b32 v26, 2, v%d" % V_R); a("v_cmp_eq_u32 vcc, 0, v26")
    a("v_cndmask_b32 v%d, 0, v27, vcc" % (SEL+2)); a("v_cndmask_b32 v%d, v27, 0, vcc" % (SEL+3))
    for r in (0, 1): a("v_mov_b32 v%d, 0" % (SEL+r))
    for x in natsel(36, S_WAVE, 0, 26): a(x)
    def bload(reg, s, off=0, t="a"): return "buffer_load_dwordx4 %s[%d:%d], v%d, s[%d:%d], s%d offen offset:%d sc1" % (t, reg, reg+3, V_L16, R_WS, R_WS+3, s, off)
    a("s_waitcnt vmcnt(%d)" % UP)
    for x in tag_ops(range(10, 14), 30): a(x)
    tag_branch(a, sl, range(10, 14), 30, [xload(j) for j in range(UP)])
    a.stamp("p6_st")
    stats_finish(a, 10, 17, 16)
    a("v_mul_f32 v16, s48, v16"); a("v_cvt_pk_bf16_f32 v16, v16, 0"); a("v_lshlrev_b32 v18, 16, v16"); a("v_mul_f32 v17, v18, -v17")
    a("s_mul_i32 s60, s50, 73728")
    a("s_lshl_b32 s46, s51, 1"); a("s_lshr_b32 s47, s%d, 1" % S_WAVE); a("s_add_u32 s46, s46, s47"); a("s_lshl_b32 s46, s46, 10"); a("s_add_u32 s78, s46, s60")
    order = [("x", j) for j in range(UP)]
    todo = [("x", j) for j in range(UP, 18)] + [("w", j) for j in range(NP, 18)]
    for j in range(0, 18, 2):
        a("s_waitcnt vmcnt(%d)" % (len(order) - 1 - order.index(("x", j+1))))
        for x in tag_ops(range(XR+4*j, XR+4*j+8), 30): a(x)
        n = 2 if j < 10 else -(-len(todo)//(9 - j//2))
        for k, q in todo[:n]:
            a(xload(q) if k == "x" else pre[q]); order.append((k, q))
        del todo[:n]
        later = [q for k, q in order if k == "x" and q > j+1]
        tag_branch(a, [xload(j), xload(j+1)], range(XR+4*j, XR+4*j+8), 30, [xload(q) for q in later], drain=order[-1][0] == "w")
        if j in (8, 16): a.stamp("p6_x%d" % (j+1))
        n0, n1 = norm_dot(XR+4*j, 20), norm_dot(XR+4*j+4, 40)
        for x in n0[:8] + n1[:8] + n0[8:]: a(x)
        a("ds_write_b128 v5, v[%d:%d] offset:%d" % (XR+4*j, XR+4*j+3, 1024*j))
        for x in n1[8:]: a(x)
        a("ds_write_b128 v5, v[%d:%d] offset:%d" % (XR+4*j+4, XR+4*j+7, 1024*j+1024))
    assert not todo
    LT = 1 if "late4" in ABL else 0
    if LT:
        a.srd(R_A, S_W4, BW)
        a("s_lshl_b32 s46, s2, 2"); a("s_add_u32 s46, s46, s%d" % S_WAVE); a("s_mul_i32 s46, s46, %d" % (41*128))
        a("v_lshlrev_b32 v30, 7, v%d" % V_LANE); a("s_bfm_b64 exec, 41, 0")
        a("buffer_load_dword v31, v30, s[%d:%d], s46 offen" % (R_A, R_A+3))
        a("s_mov_b64 exec, -1")
    a("v_readfirstlane_b32 s%d, v29" % S_NONCE)
    for r in (4, 5): a("v_mov_b32 v%d, 0" % (SEL+r))
    a("s_waitcnt lgkmcnt(0)"); a("s_barrier")
    a.stamp("p6_x")
    def fread(j, va):
        o = []
        for T in range(4):
            t, r = xf(T, j)
            o.append("ds_read_b128 %s[%d:%d], v%d offset:%d" % (t, r, r+3, va[T >> 1], (T & 1)*18432 + 1024*j))
        return o
    def gelu(ac):
        b = gelu_poly([ac+2*k for k in range(8)], GT)
        o = []
        for T in range(4):
            x = ac + 4*T; t = GT + 4*T
            o += ["v_exp_f32 v%d, -v%d" % (t+i, t+i) for i in range(4)]
            o += ["v_fma_f32 v%d, v%d, s48, s48" % (t+i, t+i) for i in range(4)]
            o += ["v_rcp_f32 v%d, v%d" % (t+i, t+i) for i in range(4)]
            o += ["v_mul_f32 v%d, v%d, v%d" % (t+i, t+i, x+i) for i in range(4)]
            o += ["v_cvt_pk_bf16_f32 v%d, v%d, v%d" % (PK+2*T+h, t+2*h, t+2*h+1) for h in range(2)]
            o.append("ds_write_b64 v5, v[%d:%d] offset:%d" % (PK+2*T, PK+2*T+1, 1024*T))
        return b, o
    def wt(op): return 2 if op.startswith(("v_exp", "v_rcp")) else min(2, len(op.split("\n")))
    RA = ("a", RING); RBB = ("v", RB)
    def subpass(ac, fill, first=None, loads=None, at=None, ring=RA, depth=18, batch=(), head=(), c0=None, more=None):
        if "p6nogelu" in ABL and len(fill) > 20: fill = []; batch = ()
        if "p6nost" in ABL: fill = [x for x in fill if "buffer_store" not in x]
        fill = list(fill); head = list(head)
        seq = [(2*p + q, T) for p in range(9) for T in range(4) for q in range(2)]
        LA = 12
        rd = [fread(j, first)[T] for j, T in seq] if first else []
        for x in rd[:LA]: a(x)
        def wait(m):
            w = []
            if m % 8 == 0: w.append("vmcnt(%d)" % (depth - 2 + (more(m//4 - 1) if more else 0)))
            if first and m % 2 == 0: w.append("lgkmcnt(%d)" % max(0, min(LA, 72 - m) - 2))
            return "s_waitcnt " + " ".join(w) if w else None
        for m, (j, T) in enumerate(seq):
            if wait(m): a(wait(m))
            if at and m % 4 == 0 and m//4 in at: at[m//4]()
            t, r = xf(T, j)
            a(mfma(ac+4*T, ring[1]+4*j, r, (None if c0 is None else c0+4*T) if j == 0 else ac+4*T, ta=ring[0], tb=t))
            room = 2
            if m + LA < len(rd): a(rd[m + LA]); room -= 1
            if m < 3:
                n = (len(head) + 2 - m)//(3 - m)
                for x in head[:n]: a(x)
                del head[:n]
            if m == 3:
                for x in batch: a(x)
            if T == 3:
                ld = "" if ("p6nold" in ABL and loads is None) else (loads(j) if loads else
                     ("buffer_load_dwordx4 a[%d:%d], v%d, s[%d:%d], s58 offen offset:%d" + WFL) % (RING+4*j, RING+4*j+3, RB+3+(j >> 2) if j > 3 else V_L16, R_WS, R_WS+3, 1024*(j & 3)))
                if ld: a(ld); room -= len(ld.split("\n"))
            if m < 71 and wait(m+1): room -= 1
            if m < 4: continue
            later = sum(2 - (q % 8 >= 6) - (q % 8 == 7 and q < 71) for q in range(m+1, 72))
            while fill and (wt(fill[0]) <= room or sum(wt(x) for x in fill) > later):
                room -= wt(fill[0]); a(fill.pop(0))
        assert not fill
    def nexttile():
        return ["s_mov_b32 s62, s61", "s_add_u32 s61, s61, 1", "s_add_u32 s54, s54, 18432", "s_mov_b32 s58, s54",
                "s_lshl_b32 s46, s62, 13", "v_add_u32 v5, s46, v35"]
    a("s_mov_b32 s61, 0"); a("s_add_u32 s54, s54, 18432"); a("s_mov_b32 s58, s54")
    for q in range(1, 5): a("v_add_u32 v%d, %d, v%d" % (RB+3+q, 4096*q, V_L16))
    res = ["s_add_u32 s62, s78, %d\n" % ((X1_OFF, H_OFF)[j >> 2] + 18432*(j & 3)) + bload(RS+4*j, 62, t="v") for j in range(8)]
    def resadd():
        for k in range(2):
            for T in range(4): a(mfma(R3+4*T, 36, RS+16*k+4*T, None if k == 0 else R3+4*T))
    subpass(AC, [], first=(V_L16, 32), at={2*j+1: (lambda j=j: a(res[j])) for j in range(8)}, more=lambda j: min((j+1)//2, 8) + LT)
    a.stamp("p6_p0")
    WF, DA, TA = RING+48, RB+16, RB+22
    a.srd(R_B, S_W4, BW + 4096, -4096)
    a("v_lshrrev_b32 v30, 3, v%d" % V_LANE); a("v_bfe_u32 v31, v%d, 4, 1" % V_LANE); a("v_lshlrev_b32 v31, 1, v31")
    a("v_and_b32 v%d, 7, v%d" % (TA, V_LANE)); a("v_xor_b32 v31, v31, v%d" % TA); a("v_mul_u32_u24 v30, 1152, v30")
    a("v_lshl_add_u32 v%d, v31, 4, v30" % DA); a("v_xor_b32 v31, 4, v31"); a("v_lshl_add_u32 v%d, v31, 4, v30" % (DA+1))
    for q in (5, 4, 3, 2, 1, 0): a("v_add_u32 v%d, %d, v%d" % (DA+q, 9216*q - 1024*(q % 3) + 4096, DA + (q & 1)))
    a("v_lshrrev_b32 v30, 2, v%d" % V_R); a("v_lshl_add_u32 v31, v%d, 3, v30" % V_G); a("v_lshlrev_b32 v31, 7, v31")
    a("v_lshrrev_b32 v30, 1, v30"); a("v_and_b32 v%d, 1, v%d" % (TA, V_G)); a("v_lshl_add_u32 v30, v%d, 1, v30" % TA)
    a("v_xor_b32 v30, s%d, v30" % S_WAVE); a("v_lshl_add_u32 v31, v30, 5, v31"); a("v_and_b32 v30, 3, v%d" % V_R)
    a("v_lshl_add_u32 v%d, v30, 3, v31" % TA)
    a("s_mul_i32 s55, s51, 12"); a("s_add_u32 s55, s55, s%d" % S_WAVE); a("s_mul_i32 s55, s55, %d" % (48*1152))
    a("s_mul_i32 s63, s%d, 6144" % S_WAVE)
    a("s_barrier")
    for r in range(4): a("v_mov_b32 v%d, -1" % (RB+r))
    def marker(p):
        def f():
            L = a.newlabel("Lmk"); a("s_cmp_lt_u32 s59, 2"); a("s_cbranch_scc0 %s" % L)
            if p == 0: a("s_add_u32 s46, s51, s59"); a("s_add_u32 s46, s46, 6"); a("s_and_b32 s46, s46, 7"); a("s_lshl_b32 s46, s46, 16"); a("s_add_u32 s77, s46, s56")
            a("buffer_store_dwordx4 v[%d:%d], v%d, s[%d:%d], s77 offen offset:%d sc1" % (RB, RB+3, V_L16, R_WS, R_WS+3, 1024*p))
            a.label(L)
        return f
    a("s_mov_b32 s59, 0")
    a.label("L_p6_a")
    for half in (1, 0):
        b, o = gelu(AC+16*(1-half))
        subpass(AC+16*half, o, batch=b, head=nexttile(), at={8: marker(1-half)})
    a("s_add_u32 s59, s59, 1"); a("s_cmp_lt_u32 s59, 3"); a("s_cbranch_scc1 L_p6_a")
    b, o = gelu(AC)
    subpass(AC+16, o, batch=b, head=nexttile(), at={9: resadd})
    CH = 24576
    def slot(n): return n if n < 3 else (0, 3, 1, 4, 2, 5)[(n - 3) % 6]
    def src(c, s): return "s_add_u32 s58, s%d, %d" % (s, 192*1152*c)
    def dma(n, s):
        o = []
        for q in range(6):
            pre = src(n % 3, s) + "\n" if q == 0 else ""
            if q % 3 == 0: pre = "s_add_u32 m0, s63, %d\n" % (CH*slot(n) + 1024*q) + (pre or "s_nop 0\n")
            o.append(pre + "buffer_load_dwordx4 v%d, s[%d:%d], s58 offen offset:%d lds" % (DA+q, R_B, R_B+3, 1024*(q % 3)))
        return o
    def origin(d, step):
        if step == 0: return ["s_add_u32 s%d, s55, 1024" % d]
        return ["s_add_u32 s46, s51, %s" % step, "s_and_b32 s46, s46, 7", "s_lshl_b32 s46, s46, 7", "s_add_u32 s%d, s55, s46" % d]
    for x in origin(64, 0) + origin(65, 1): a(x)
    d012 = dma(0, 64) + dma(1, 64) + dma(2, 64)
    b, o = gelu(AC+16)
    subpass(AC, o, batch=b, head=nexttile(), loads=lambda j: d012[j])
    a("s_lshl_b32 s46, s61, 13"); a("v_add_u32 v5, s46, v35")
    a("s_waitcnt vmcnt(12) lgkmcnt(0)"); a("s_barrier")
    a.stamp("p6_a")
    def pstore(ac):
        o = ["v_cvt_pk_bf16_f32 v%d, v%d, v%d" % (PK+k, ac+2*k, ac+2*k+1) for k in range(8)]
        o += ["buffer_store_dwordx4 v[%d:%d], v%d, s[%d:%d], s62 offen offset:%d sc1" % (PK+4*p, PK+4*p+3, V_L16, R_WS, R_WS+3, 1024*p) for p in range(2)]
        return o
    def dest(step):
        if step == 0: return ["s_add_u32 s62, s56, %d" % (8*65536)]
        return ["s_add_u32 s46, s51, %s" % step, "s_and_b32 s46, s46, 7", "s_lshl_b32 s46, s46, 16", "s_add_u32 s62, s46, s56"]
    def wf(pp): return (RB, RB+8, ST)[pp % 3]
    def wread(n, p):
        o = ["v_add_u32 v%d, %d, v%d" % (TA+1, CH*slot(n), TA)] if p == 0 else []
        pp = 3*n + p
        return o + ["ds_read_b64_tr_b16 v[%d:%d], v%d offset:%d" % (wf(pp)+4*q+2*hh, wf(pp)+4*q+2*hh+1, TA+1, 4096*(2*p+q) + 512*hh) for q in range(2) for hh in range(2)]
    def step(s, ac, fill, head=(), first=None, c0=None, before={}, after={}, at={}, batch=(), hurry=None, evens=()):
        if "p6nost" in ABL: fill = [x for x in fill if "buffer_store" not in x]
        if "p6nold" in ABL: after = {k: [x for x in v if " lds" not in x] or ["s_nop 0"] for k, v in after.items()}
        fill = list(fill); head = list(head); lg = list(step.lg); nfill = len(fill)
        seq = [(2*p + q, T) for p in range(9) for T in range(4) for q in range(2)]
        hr = ["ds_read_b128 %s[%d:%d], v%d offset:%d" % (xf(T, j)[0], xf(T, j)[1], xf(T, j)[1]+3, first[j//9], 1024*(4*(j % 9) + T)) for j, T in seq] if first else []
        def lds(x, tag):
            a(x)
            if x.startswith("ds_"): lg.append(tag)
        def upto(tag):
            if tag in lg:
                n = len(lg) - 1 - max(i for i, t in enumerate(lg) if t == tag)
                a("s_waitcnt lgkmcnt(%d)" % min(n, 15)); del lg[:len(lg) - min(n, 15)]
                return 1
            return 0
        for i, x in enumerate(hr[:8]): lds(x, ("h", i))
        extra = [(w - 72, x) for w, x in step.extra]
        for m, (j, T) in enumerate(seq):
            p, c = m//8, m//24
            room = 2
            if m % 24 == 8 and 3*s + c < 26:
                if c in before: before[c]()
                upto("x")
                if "p6nobar" not in ABL: a("s_barrier")
                assert not extra
                ex = after.get(c, []); extra = [(m + 24*k//len(ex), x) for k, x in enumerate(ex)]
            if m % 8 == 0:
                upto(("w", 9*s + p))
                nx = wread(3*s + (p+2)//3, (p+2) % 3) if 9*s + p < 79 else []
            if m % 2 == 0 and first: upto(("h", m+1))
            if m % 4 == 0 and m//4 in at: at[m//4]()
            t, r = xf(T, j)
            a(mfma(ac+4*T, wf(9*s+p)+4*(j & 1), r, (None if c0 is None else c0+4*T) if j == 0 else ac+4*T, tb=t))
            if nx:
                lds(nx.pop(0), ("w", 9*s + p + 2)); room -= 1
            if m + 8 < len(hr): lds(hr[m+8], ("h", m+8)); room -= 1
            if m < 3:
                n = (len(head) + 2 - m)//(3 - m)
                for x in head[:n]: a(x)
                del head[:n]
            while extra and extra[0][0] <= m:
                lds(extra.pop(0)[1], "x"); room -= 1
            if m % 2 == 0 and m//2 < len(evens): a(evens[m//2]); room -= 1
            if m == 3:
                for x in batch: a(x)
            if m >= 4:
                while fill and (wt(fill[0]) <= room or hurry and len(fill)*(hurry - 3) > nfill*(hurry - m)):
                    room -= wt(fill[0]); lds(fill.pop(0), "x")
        assert not fill
        step.lg = lg; step.extra = extra
    def mix(x, y): return [z for pair in zip(x, y) for z in pair]
    def vm(n): return lambda: a("s_waitcnt vmcnt(%d)" % n)
    def seq(*fs):
        def f():
            for x in fs: x()
        return f
    def wave(w, body):
        def f():
            L = a.newlabel("Lex"); a("s_cmp_lg_u32 s%d, %d" % (S_WAVE, w)); a("s_cbranch_scc1 %s" % L); body(); a.label(L)
        return f
    a("s_lshl_b32 s70, s50, 10"); a("s_add_u32 s70, s70, %d" % (FLAG0 + 128*FA)); a("s_lshl_b32 s46, s51, 7"); a("s_add_u32 s68, s70, s46")
    a("s_mul_i32 s46, s50, 9"); a("s_add_u32 s46, s46, s51"); a("s_lshl_b32 s46, s46, 16"); a("s_lshl_b32 s47, s%d, 11" % S_WAVE)
    a("s_add_u32 s46, s46, s47"); a("s_add_u32 s69, s46, %d" % PART)
    def publish(c):
        def f():
            a("s_add_u32 s46, s%d, %d" % (S_NONCE, c)); a("v_mov_b32 v29, s46"); a("s_mov_b64 exec, 1")
            a("buffer_store_dword v29, v28, s[%d:%d], s68 offen sc1" % (R_WS, R_WS+3))
            a("s_mov_b64 exec, -1")
        return wave(0, f)
    askq = "buffer_load_dword v31, v5, s[%d:%d], s70 offen sc1" % (R_WS, R_WS+3)
    ask = wave(0, lambda: a(askq))
    def need(c, n):
        def f():
            L = a.newlabel("Lcf")
            a("s_add_u32 s73, s%d, %d" % (S_NONCE, c)); a("s_mov_b32 s47, 100000"); a("s_waitcnt vmcnt(%d)" % n)
            a.label(L)
            a("v_subrev_u32 v30, s73, v31"); a("v_cmp_lt_u32 vcc, 7, v30"); a("s_cbranch_vccz %s_x" % L)
            a("s_sleep 1"); a(askq); a("s_waitcnt vmcnt(0)")
            a("s_sub_u32 s47, s47, 1"); a("s_cbranch_scc0 %s" % L)
            a.label(L + "_x")
        return wave(0, f)
    step.extra = []
    a("v_mov_b32 v%d, v33" % (RB+24)); a("v_mov_b32 v%d, v34" % (RB+25))
    for x in wread(0, 0) + wread(0, 1): a(x)
    step.lg = [("w", 0)]*4 + [("w", 1)]*4
    A0, A1 = AC+16, AC
    b, o = gelu(AC)
    step(0, A0, o, first=(RB+24, RB+25), head=origin(64, 2), batch=b, hurry=48, before={0: vm(6), 1: vm(0), 2: vm(6)},
         after={1: dma(3, 65) + dma(4, 65), 2: dma(5, 65) + dma(6, 64)})
    a.stamp("p6_s0")
    a("v_and_b32 v5, 7, v%d" % V_LANE); a("v_cmp_eq_u32 vcc, s51, v5"); a("v_xor_b32 v30, 1, v5")
    a("v_cndmask_b32 v5, v5, v30, vcc"); a("v_lshlrev_b32 v5, 7, v5")
    step(1, A1, pstore(A0), head=dest(0) + origin(65, 3), before={0: vm(12), 1: vm(18), 2: vm(18)},
         after={0: dma(7, 64) + dma(8, 64), 1: dma(9, 65), 2: dma(10, 65)})
    a.stamp("p6_s1")
    a("s_mov_b32 s71, 2")
    a.label("L_p6_b")
    w18 = {0: vm(18), 1: vm(18), 2: vm(18)}
    def last(body):
        def f():
            L = a.newlabel("Ll"); a("s_cmp_eq_u32 s71, 4"); a("s_cbranch_scc0 %s" % L); body(); a.label(L)
        return f
    lg0 = list(step.lg); ex0 = list(step.extra)
    step(2, A0, pstore(A1), head=["s_sub_u32 s72, s71, 1"] + dest("s72") + ["s_add_u32 s72, s71, 2"] + origin(64, "s72"), before=w18,
         after={0: dma(11, 65), 1: dma(12, 64), 2: dma(13, 64)})
    step(3, A1, pstore(A0), head=dest("s71") + ["s_add_u32 s72, s71, 3"] + origin(65, "s72"), before={0: vm(18), 1: vm(18), 2: seq(vm(18), last(vm(10)))},
         after={0: dma(14, 64), 1: dma(15, 65), 2: dma(16, 65)}, at={15: last(publish(4))})
    assert [t[0] for t in step.lg] == [t[0] for t in lg0] and step.extra == ex0
    a("s_add_u32 s71, s71, 2"); a("s_cmp_lt_u32 s71, 6"); a("s_cbranch_scc1 L_p6_b")
    step.lg = [("w", t[1] + 36) for t in lg0]
    a.stamp("p6_s5")
    def SC(k): return (54, 57, 59, 61, 72, 75, 76)[k-1]
    for k in range(1, 8):
        r = SC(k); a("s_sub_u32 s%d, s51, %d" % (r, k)); a("s_and_b32 s%d, s%d, 7" % (r, r)); a("s_lshl_b32 s%d, s%d, 13" % (r, r)); a("s_add_u32 s%d, s%d, s69" % (r, r))
    CB = {k: ("v", RB + 24 + 8*(k-2)) if k > 1 else ("a", RING+48) for k in range(1, 8)}
    def cload(k): return [bload(CB[k][1]+4*p, SC(k), 1024*p, t=CB[k][0]) for p in range(2)]
    def emit(xs): return lambda: [a(x) for x in xs]
    def add(acc, k):
        def f():
            for T in range(4): a(mfma(acc+4*T, SEL if T & 1 else SEL+2, CB[k][1]+4*(T >> 1), acc+4*T, tb=CB[k][0]))
        return f
    step(6, A0, pstore(A1), head=dest(5) + origin(64, 8), before={0: vm(18), 1: vm(18), 2: seq(need(4, 6), vm(10))},
         after={0: dma(23, 65), 1: dma(24, 64), 2: dma(25, 64)}, at={6: ask, 15: publish(5), 16: emit(cload(1))})
    a.stamp("p6_s6")
    a("s_mul_i32 s46, s50, 9"); a("s_add_u32 s46, s46, 8"); a("s_lshl_b32 s46, s46, 16"); a("s_lshl_b32 s47, s51, 10")
    a("s_add_u32 s46, s46, s47"); a("s_add_u32 s78, s46, %d" % PART)
    a("s_and_b32 s46, s51, 1"); a("s_mul_i32 s74, s46, 36864"); a("s_add_u32 s74, s74, s60")
    a("s_lshr_b32 s47, s51, 2"); a("s_add_u32 s47, s47, 16"); a("s_lshl_b32 s46, s47, 10"); a("s_add_u32 s79, s46, s74")
    a("s_lshr_b32 s46, s51, 1"); a("s_lshl_b32 s46, s46, 5"); a("s_add_u32 s46, s46, 1024"); a("s_add_u32 s74, s74, s46")
    def extra_get():
        for k in range(8):
            a(bload(RING+4*k, 78)); a("s_add_u32 s78, s78, 8192")
        for k, off in enumerate((H_OFF, X1_OFF)):
            for T in range(2):
                a("s_add_u32 s46, s79, %d" % (off + 18432*T)); a(bload(RING+32+8*k+4*T, 46))
    step(7, A1, pstore(A0), head=dest(6), before={0: vm(18), 1: vm(18), 2: seq(need(5, 2), vm(18))}, after={0: dma(26, 64)},
         at={3: emit(cload(2)), 6: emit(cload(3)), 9: ask, 10: emit(cload(4)), 15: emit(cload(5))})
    a.stamp("p6_s7")
    SEv, EA = A1, A1+8
    g = G()
    g.lines += natsel(SEv, 51, 1, EA)
    OB = 147456
    g("v_mul_u32_u24 v%d, 144, v%d" % (A1+4, V_R)); g("v_lshl_add_u32 v%d, v%d, 3, v%d" % (A1+4, V_G, A1+4))
    g.lines.append("s_lshl_b32 s66, s%d, 5\ns_add_u32 s66, s66, %d" % (S_WAVE, OB))
    g("v_add_u32 v%d, s66, v%d" % (A1+4, A1+4))
    g("v_lshrrev_b32 v%d, 3, v0" % EA); g("v_and_b32 v%d, 7, v0" % (EA+1)); g("v_lshlrev_b32 v%d, 4, v%d" % (EA+1, EA+1))
    g("v_mul_u32_u24 v%d, 144, v%d" % (A1+5, EA)); g("v_add_u32 v%d, v%d, v%d" % (A1+5, A1+5, EA+1)); g("v_add_u32 v%d, %d, v%d" % (A1+5, OB, A1+5))
    g("v_mul_u32_u24 v%d, 1152, v%d" % (A1+6, EA)); g("v_add_u32 v%d, v%d, v%d" % (A1+6, A1+6, EA+1))
    g("v_mul_u32_u24 v%d, 1152, v%d" % (A1+7, V_R)); g("v_lshl_add_u32 v%d, v%d, 3, v%d" % (A1+7, V_G, A1+7))
    step(8, A0, pstore(A1) + g.lines, head=dest(7), c0=R3, before={0: vm(10), 1: vm(2)},
         at={8: add(A0, 1), 9: wave(3, extra_get), 10: add(A0, 2), 12: seq(add(A0, 3), emit(cload(6))),
             14: add(A0, 4), 16: add(A0, 5), 17: emit(cload(7))})
    a.stamp("p6_b")
    a.srd(R_A, S_OUT, ACT)
    a("s_cmp_lg_u32 s%d, 3" % S_WAVE); a("s_cbranch_scc1 L_p7_main")
    a("s_waitcnt vmcnt(4)")
    for k in range(8):
        a(mfma(EA, SEL+2, RING+4*k, None if k == 0 else EA, tb="a")); a(mfma(EA+4, SEL, RING+4*k, None if k == 0 else EA+4, tb="a"))
    for k in range(2):
        for T in range(2): a(mfma(EA+4*T, SEv, RING+32+8*k+4*T, EA+4*T, tb="a"))
    for T in range(2):
        for h in range(2): a("v_cvt_pk_bf16_f32 v%d, v%d, v%d" % (PK+2*T+h, EA+4*T+2*h, EA+4*T+2*h+1))
    a.label("L_p7_main")
    for k in (6, 7):
        base = CB[k][1]
        L = a.newlabel("Ltag")
        a("s_mov_b32 s47, 100000")
        a("s_waitcnt vmcnt(%d)" % (2 if k == 6 else 0))
        a.label(L)
        for x in tag_ops(range(base, base+8), 30): a(x)
        a("s_cbranch_vccz %s_x" % L)
        for x in cload(k): a(x)
        a("s_waitcnt vmcnt(0)")
        a("s_sub_u32 s47, s47, 1"); a("s_cbranch_scc0 %s" % L)
        a.label(L + "_x")
        add(A0, k)()
    a.stamp("p7_ready")
    a("s_cmp_lg_u32 s%d, 3" % S_WAVE); a("s_cbranch_scc1 L_p7_acc")
    for T in range(2):
        a("buffer_store_dwordx2 v[%d:%d], v%d, s[%d:%d], s74 offen%s" % (PK+2*T, PK+2*T+1, A1+7, R_A, R_A+3, OFL))
        a("s_add_u32 s74, s74, 18432")
    a.label("L_p7_acc")
    a("s_lshl_b32 s46, s51, 7"); a("s_add_u32 s46, s46, s60"); a("s_add_u32 s47, s46, 36864")
    for T in range(4):
        for h in range(2): a("v_cvt_pk_bf16_f32 v%d, v%d, v%d" % (R3+2*T+h, A0+4*T+2*h, A0+4*T+2*h+1))
        a("ds_write_b64 v%d, v[%d:%d] offset:%d" % (A1+4, R3+2*T, R3+2*T+1, 2304*T))
    a("s_waitcnt lgkmcnt(0)"); a("s_barrier")
    for p in range(2): a("ds_read_b128 v[%d:%d], v%d offset:%d" % (R3+8+4*p, R3+11+4*p, A1+5, 4608*p))
    for p in range(2):
        a("s_waitcnt lgkmcnt(%d)" % (1-p))
        a("buffer_store_dwordx4 v[%d:%d], v%d, s[%d:%d], s%d offen%s" % (R3+8+4*p, R3+11+4*p, A1+6, R_A, R_A+3, 46+p, OFL))
```

```python
import sys, os, struct, math
sys.path.insert(0, "dev")
from asmlib import Asm, build
from hazard import fix_hazards, check_waits

NAME = "sequential_preLN__sliding_block__mixer_s_mlp__prompt"
KN = NAME + "_kernel"

ACT = 2048*576*2
SW  = 576*576*2
BW  = 576*4608*2
FLAG0 = 128
F1, FS, F2, F3, F4, F5, FA, FB = 0, 256, 640, 896, 1152, 1408, 1664, 2688
TS_OFF = 0x80000
Q_OFF  = 0x90000
K_OFF  = Q_OFF + ACT
V_OFF  = K_OFF + ACT
O_OFF  = V_OFF + ACT
H_OFF  = O_OFF + ACT
SH_OFF = H_OFF + ACT
T_OFF  = SH_OFF + 98304
X1_OFF = T_OFF + ACT
SX_OFF = X1_OFF + ACT
WO_S   = SX_OFF + 98304
W1_S   = WO_S + SW
W2_S   = W1_S + SW
W3_S   = W2_S + SW
W4_S   = W3_S + BW
PART   = W4_S + BW
WS_END = PART + 32*9*8*8192
FP_OFF = 0x7F000
FP2_OFF = FP_OFF + 1024
MARK_N = T_OFF - O_OFF
MKG = 19
MARK_W = 2048*MKG
assert 128*MARK_W >= MARK_N and 1024*5120 >= WO_S - T_OFF
HPSZ   = 147456

WSOFF = 0
MK0 = int(os.environ.get('MK0', 0))
MK1 = int(os.environ.get('MK1', 0))
THR = int(os.environ.get('THR', 0))
NW3 = int(os.environ.get('NW3', 0))
ABL = os.environ.get('ABL', '').split(',')
CLK = 's_memtime'
def f32(x): return struct.unpack("<I", struct.pack("<f", x))[0]
def magic(d): return (1 << 32)//d + 1

S_X, S_WQKV, S_WO = 4, 6, 8
S_W1, S_W2, S_W3, S_W4 = 12, 14, 16, 18
S_OUT, S_DBG, S_WS = 20, 22, 24
R_WS, R_A, R_B = 28, 32, 36
S_WAVE, S_XCD, S_SLOT, S_NONCE = 40, 41, 42, 43
S_ONES = 44
V_LANE, V_R, V_G, V_L16 = 1, 2, 3, 4

class G(Asm):
    def __init__(s, stop=99, stamps=False):
        super().__init__()
        s.stop = stop; s.stamps = stamps; s.stubs = []
    def srd(a, d, p, size, add=0):
        if add >= 0:
            a("s_add_u32 s%d, s%d, %s" % (d, p, add)); a("s_addc_u32 s%d, s%d, 0" % (d+1, p+1))
        else:
            a("s_sub_u32 s%d, s%d, %d" % (d, p, -add)); a("s_subb_u32 s%d, s%d, 0" % (d+1, p+1))
        a("s_mov_b32 s%d, %d" % (d+2, size)); a("s_mov_b32 s%d, 0x20000" % (d+3))
    def srd_s(a, d, p, size, sreg):
        a("s_add_u32 s%d, s%d, s%d" % (d, p, sreg)); a("s_addc_u32 s%d, s%d, 0" % (d+1, p+1))
        a("s_mov_b32 s%d, %d" % (d+2, size)); a("s_mov_b32 s%d, 0x20000" % (d+3))
    def sdiv(a, q, r, x, d):
        a("s_mul_hi_u32 s%d, s%d, %d" % (q, x, magic(d)))
        if r is not None:
            a("s_mul_i32 s%d, s%d, %d" % (r, q, d)); a("s_sub_u32 s%d, s%d, s%d" % (r, x, r))
    def jitter(a):
        L = a.newlabel("Ljit")
        a("s_memrealtime s[98:99]"); a("s_waitcnt lgkmcnt(0)")
        a("s_mul_i32 s98, s98, 0x9E3779B1"); a("s_mul_i32 s99, s2, 0x85EBCA6B"); a("s_add_u32 s98, s98, s99"); a("s_mul_i32 s99, s%d, 0x27D4EB2F" % S_WAVE)
        a("s_add_u32 s98, s98, s99"); a("s_lshr_b32 s99, s98, 29"); a("s_lshr_b32 s98, s98, 20"); a("s_and_b32 s98, s98, 127")
        a("s_cmp_lt_u32 s99, 5"); a("s_cselect_b32 s98, 0, s98")
        a.label(L)
        a("s_cmp_eq_u32 s98, 0"); a("s_cbranch_scc1 %s_x" % L); a("s_sleep 1"); a("s_sub_u32 s98, s98, 1"); a("s_branch %s" % L)
        a.label(L + "_x")
    def stamp(a, name):
        if "jitter" in ABL and name not in ("start", "end"): a.jitter()
        if not a.stamps or name not in a.stamps: return
        k = a.stamps.index(name)
        a("%s s[98:99]" % CLK); a("s_waitcnt lgkmcnt(0)"); a("s_mov_b32 s%d, s98" % (80+k))
    def stamp_out(a):
        if not a.stamps: return
        a.stamp("end")
        a("s_lshl_b32 s98, s2, 2"); a("s_add_u32 s98, s98, s%d" % S_WAVE); a("s_lshl_b32 s98, s98, 6"); a("s_add_u32 s98, s98, %d" % TS_OFF)
        a("v_mov_b32 v255, 0")
        for k in range(16):
            a("v_mov_b32 v254, s%d" % (80+k))
            a("buffer_store_dword v254, v255, s[%d:%d], s98 offen offset:%d" % (R_WS, R_WS+3, 4*k))
            a("s_nop 1")
    def xg_reduce(a, v, t, op="v_add_f32"):
        for sw in ("v_permlane32_swap_b32", "v_permlane16_swap_b32"):
            a("v_mov_b32 v%d, v%d" % (t, v)); a("%s v%d, v%d" % (sw, v, t)); a("%s v%d, v%d, v%d" % (op, v, v, t))
    def get_nonce(a, vt):
        L = a.newlabel("Lnon")
        a("s_mov_b32 s46, 200000"); a("v_mov_b32 v%d, 0" % (vt+2))
        a.label(L)
        a("global_load_dwordx2 v[%d:%d], v%d, s[%d:%d] sc1" % (vt, vt+1, vt+2, S_DBG, S_DBG+1))
        a("s_waitcnt vmcnt(0)")
        a("v_readfirstlane_b32 s47, v%d" % (vt+1)); a("v_readfirstlane_b32 s%d, v%d" % (S_NONCE, vt))
        a("s_sub_u32 s46, s46, 1"); a("s_cbranch_scc1 %s_x" % L)
        a("s_cmp_eq_u32 s47, 0"); a("s_cbranch_scc1 %s" % L)
        a.label(L + "_x")
    def set_flag(a, sidx, vt):
        a("s_lshl_b32 s%d, s%d, 7" % (sidx, sidx)); a("s_add_u32 s%d, s%d, %d" % (sidx, sidx, FLAG0))
        a("v_mov_b32 v%d, s%d" % (vt, S_NONCE)); a("v_mov_b32 v%d, 0" % (vt+1))
        a("s_mov_b64 exec, 1")
        a("buffer_store_dword v%d, v%d, s[%d:%d], s%d offen sc1" % (vt, vt+1, R_WS, R_WS+3, sidx))
        a("s_mov_b64 exec, -1")
    def set_mark(a, vt, off):
        a("s_lshl_b32 s46, s2, 2"); a("s_add_u32 s46, s46, %d" % off)
        a("v_mov_b32 v%d, s%d" % (vt, S_NONCE)); a("v_mov_b32 v%d, 0" % (vt+1))
        a("s_mov_b64 exec, 1")
        a("buffer_store_dword v%d, v%d, s[%d:%d], s46 offen sc1" % (vt, vt+1, R_WS, R_WS+3))
        a("s_mov_b64 exec, -1")
    def poll(a, vidx, vt, sleep0=6, sleep=2, two=False):
        L = a.newlabel("Lpoll")
        a("v_lshlrev_b32 v%d, 7, v%d" % (vidx, vidx))
        a("s_mov_b32 s46, 100000")
        if sleep0: a("s_sleep %d" % sleep0)
        a.label(L)
        if two: a("buffer_load_dwordx2 v[%d:%d], v%d, s[%d:%d], 0 offen offset:%d sc1" % (vt, vt+1, vidx, R_WS, R_WS+3, FLAG0))
        else: a("buffer_load_dword v%d, v%d, s[%d:%d], 0 offen offset:%d sc1" % (vt, vidx, R_WS, R_WS+3, FLAG0))
        a("s_waitcnt vmcnt(0)")
        a("v_cmp_ne_u32 vcc, s%d, v%d" % (S_NONCE, vt))
        a("s_cbranch_vccz %s_x" % L)
        a("s_sleep %d" % sleep)
        a("s_sub_u32 s46, s46, 1"); a("s_cbranch_scc0 %s" % L)
        a.label(L + "_x")

def mfma(d, A, B, C=None, ta="v", tb="v", td="v"):
    c = "0" if C is None else "%s[%d:%d]" % (td, C, C+3)
    return "v_mfma_f32_16x16x32_bf16 %s[%d:%d], %s[%d:%d], %s[%d:%d], %s" % (td, d, d+3, ta, A, A+3, tb, B, B+3, c)

def interleave(a, main, fill, start=0):
    n = len(main) - start; k = 0
    for i, m in enumerate(main):
        a(m)
        if i >= start:
            upto = (len(fill)*(i-start+1) + n - 1)//n
            while k < upto: a(fill[k]); k += 1

def prologue(a):
    a("s_cmp_ge_u32 s2, 256"); a("s_cbranch_scc1 L_end")
    a("s_load_dwordx4 s[4:7], s[0:1], 0")
    a("s_load_dwordx2 s[24:25], s[0:1], 80")
    a("s_load_dwordx2 s[8:9], s[0:1], 16")
    a("s_load_dwordx8 s[12:19], s[0:1], 32")
    a("s_load_dwordx4 s[20:23], s[0:1], 64")
    a("v_and_b32 v%d, 63, v0" % V_LANE)
    a("v_lshrrev_b32 v5, 6, v0")
    a("v_and_b32 v%d, 15, v0" % V_R)
    a("v_readfirstlane_b32 s%d, v5" % S_WAVE)
    a("v_lshrrev_b32 v%d, 4, v%d" % (V_G, V_LANE))
    a("v_lshlrev_b32 v%d, 4, v%d" % (V_L16, V_LANE))
    if "antiloc" in ABL:
        a("s_lshr_b32 s46, s2, 5"); a("s_and_b32 s47, s2, 31"); a("s_lshl_b32 s47, s47, 3"); a("s_or_b32 s2, s46, s47")
    a("s_and_b32 s%d, s2, 7" % S_XCD); a("s_lshr_b32 s%d, s2, 3" % S_SLOT)
    a("s_mov_b32 s%d, 0x3f803f80" % S_ONES)
    if "nopf" not in ABL:
        a("s_getpc_b64 s[46:47]")
        a.label("L_pc")
        a("s_mul_i32 s48, s%d, %d" % (S_SLOT, 24*128)); a("v_lshl_add_u32 v5, v0, 7, s48")
        a("v_cmp_gt_u32 vcc, 24, v0"); a("s_mov_b32 s48, L_last-L_pc"); a("v_cmp_gt_u32 s[48:49], s48, v5"); a("s_and_b64 vcc, vcc, s[48:49]")
        a("s_and_saveexec_b64 s[48:49], vcc"); a("s_cbranch_execz L_pcd")
        a("global_load_dword v253, v5, s[46:47]")
        a.label("L_pcd")
        a("s_mov_b64 exec, -1")
    if a.stamps:
        for k in range(16): a("s_mov_b32 s%d, 0" % (80+k))
        a.stamp("start")

def publish_nonce(a):
    L = a.newlabel("Lpn")
    a("s_xor_b32 s46, s2, 224"); a("s_or_b32 s46, s46, s%d" % S_WAVE); a("s_cmp_lg_u32 s46, 0"); a("s_cbranch_scc1 %s" % L)
    a("v_mov_b32 v252, 0")
    a("buffer_load_dword v250, v252, s[%d:%d], 0 offen sc1" % (R_WS, R_WS+3))
    a("s_mov_b32 s46, 0x9E3779B1")
    a("s_waitcnt vmcnt(0)")
    a("v_mul_lo_u32 v250, v250, s46"); a("v_add_u32 v250, 0x7F4A7C15, v250"); a("v_mov_b32 v251, 1")
    a("s_mov_b64 exec, 1")
    a("buffer_store_dword v250, v252, s[%d:%d], 0 offen sc1" % (R_WS, R_WS+3))
    a("global_store_dwordx2 v252, v[250:251], s[%d:%d] sc1" % (S_DBG, S_DBG+1))
    a("s_mov_b64 exec, -1")
    a.label(L)

def swizzle_setup(a):
    for i in range(9):
        a("v_add_u32 v40, %d, v%d" % (64*i, V_LANE))
        a("v_mul_u32_u24 v%d, 911, v40" % (10+i)); a("v_lshrrev_b32 v%d, 16, v%d" % (10+i, 10+i))
        a("v_mul_u32_u24 v41, 72, v%d" % (10+i)); a("v_sub_u32 v41, v40, v41"); a("v_lshlrev_b32 v%d, 4, v41" % (20+i))
    a("v_lshrrev_b32 v40, 2, v%d" % V_R); a("v_lshl_add_u32 v40, v%d, 3, v40" % V_G); a("v_mul_u32_u24 v40, 1152, v40")
    a("v_and_b32 v41, 3, v%d" % V_R); a("v_lshl_add_u32 v30, v41, 4, v40")
    a("s_lshr_b32 s46, s%d, 1" % S_WAVE); a("s_lshl_b32 s46, s46, 6"); a("s_and_b32 s47, s%d, 1" % S_WAVE); a("s_lshl_b32 s47, s47, 3")
    a("s_add_u32 s46, s46, s47"); a("v_add_u32 v30, s46, v30")

def sw_decode(a, su, p):
    Ln = a.newlabel("Lsw")
    D = 60+3*p
    a("s_cmp_ge_u32 s%d, 54" % su); a("s_cbranch_scc1 %s_big" % Ln)
    a.sdiv(51, 52, su, 18)
    a("s_cmp_eq_u32 s51, 1"); a("s_cselect_b32 s54, s%d, s%d" % (S_W1, S_W2)); a("s_cselect_b32 s55, s%d, s%d" % (S_W1+1, S_W2+1))
    a("s_cmp_eq_u32 s51, 0"); a("s_cselect_b32 s54, s%d, s54" % S_WO); a("s_cselect_b32 s55, s%d, s55" % (S_WO+1))
    a("s_mul_i32 s%d, s51, %d" % (D, SW)); a("s_add_u32 s%d, s%d, %d" % (D, D, WO_S))
    a("s_mul_i32 s53, s%d, 18432" % S_WAVE); a("s_add_u32 s%d, s%d, s53" % (D, D))
    a("s_mov_b32 s%d, 73728" % (D+1))
    a("s_lshl_b32 s56, s52, 5"); a("s_lshl_b32 s53, s%d, 3" % S_WAVE); a("s_add_u32 s56, s56, s53")
    a("s_mov_b32 s57, 0"); a("s_mov_b32 s59, 1152")
    a("s_cmp_lg_u32 s51, 0"); a("s_cbranch_scc1 %s_j" % Ln)
    a("s_mul_i32 s56, s52, 36"); a("s_lshl_b32 s53, s%d, 2" % S_WAVE); a("s_add_u32 s56, s56, s53"); a("s_mov_b32 s57, 16")
    a("s_cmp_lt_u32 s52, 16"); a("s_cbranch_scc1 %s_j" % Ln)
    a("s_sub_u32 s56, s52, 16"); a("s_lshl_b32 s56, s56, 2"); a("s_add_u32 s56, s56, s%d" % S_WAVE)
    a("s_mul_i32 s56, s56, 72"); a("s_add_u32 s56, s56, 16"); a("s_mov_b32 s57, 32")
    a("s_branch %s_j" % Ln)
    a.label(Ln + "_big")
    sw_big(a, su, D)
    a("s_lshl_b32 s56, s52, 5"); a("s_lshl_b32 s53, s%d, 3" % S_WAVE); a("s_add_u32 s56, s56, s53"); a("s_mov_b32 s57, 0")
    a("s_cmp_ge_u32 s51, 8"); a("s_cbranch_scc1 %s_w4" % Ln)
    a("s_mul_i32 s53, s51, 1152"); a("s_add_u32 s54, s%d, s53" % S_W3); a("s_addc_u32 s55, s%d, 0" % (S_W3+1)); a("s_mov_b32 s59, 9216")
    a("s_branch %s_j" % Ln)
    a.label(Ln + "_w4")
    a("s_sub_u32 s53, s51, 8"); a("s_mul_i32 s53, s53, %d" % SW); a("s_add_u32 s54, s%d, s53" % S_W4); a("s_addc_u32 s55, s%d, 0" % (S_W4+1)); a("s_mov_b32 s59, 1152")
    a.label(Ln + "_j")
    a("s_lshl_b32 s53, s52, 10"); a("s_add_u32 s%d, s%d, s53" % (D, D))
    a("s_add_u32 s%d, s%d, %d" % (D+2, su, FS))

def sw_big(a, su, D):
    a("s_sub_u32 s53, s%d, 54" % su); a.sdiv(51, 52, 53, 18)
    a("s_mul_i32 s%d, s51, %d" % (D, 4*9*18432)); a("s_add_u32 s%d, s%d, %d" % (D, D, W3_S))
    a("s_mul_i32 s53, s%d, %d" % (S_WAVE, 9*18432)); a("s_add_u32 s%d, s%d, s53" % (D, D))
    a("s_mov_b32 s%d, 18432" % (D+1))

def sw_issue(a, su, p, lds):
    sw_decode(a, su, p)
    a("s_mov_b32 s%d, s54" % R_A); a("s_mov_b32 s%d, s55" % (R_A+1))
    a("s_mul_i32 s%d, s59, 575" % (R_A+2)); a("s_add_u32 s%d, s%d, 1152" % (R_A+2, R_A+2)); a("s_mov_b32 s%d, 0x20000" % (R_A+3))
    a("s_mul_i32 s53, s%d, 9216" % S_WAVE); a("s_add_u32 m0, s53, %d" % lds)
    for k in range(9):
        a("v_lshrrev_b32 v40, 2, v%d" % (10+k)); a("v_mul_lo_u32 v40, v40, s57"); a("v_add3_u32 v40, v40, v%d, s56" % (10+k))
        a("v_mul_lo_u32 v40, v40, s59"); a("v_add_u32 v40, v40, v%d" % (20+k))
        a("buffer_load_dwordx4 v40, s[%d:%d], 0 offen lds" % (R_A, R_A+3))
        a("s_add_u32 m0, m0, 1024")

def sw_process(a, p, lds):
    a("v_add_u32 v31, %d, v30" % lds)
    for q in range(9):
        for hh in range(2):
            a("ds_read_b64_tr_b16 v[%d:%d], v31 offset:%d" % (44+4*q+2*hh, 45+4*q+2*hh, hh*4608 + 128*q))
    a("s_mov_b32 s53, s%d" % (60+3*p))
    for q in range(9):
        a("s_waitcnt lgkmcnt(%d)" % min(15, 16-2*q))
        a("buffer_store_dwordx4 v[%d:%d], v%d, s[%d:%d], s53 offen sc1" % (44+4*q, 47+4*q, V_L16, R_WS, R_WS+3))
        a("s_add_u32 s53, s53, s%d" % (61+3*p))

def sw_flags(a, ps, mark=False):
    L = a.newlabel("Lswf")
    a("s_cmp_lg_u32 s%d, 0" % S_WAVE); a("s_cbranch_scc1 %s" % L)
    for p in ps: a.set_flag(62+3*p, 40)
    if mark: a.set_mark(40, FP_OFF - 4*224)
    a.label(L)

MK, R_M = 220, 76

def mark_setup(a):
    a.srd(R_M, S_WS, MARK_N, O_OFF)
    for r in range(4): a("v_mov_b32 v%d, -1" % (MK+r))
    a("s_sub_u32 s74, s2, %d" % 224); a("s_lshl_b32 s74, s74, 2"); a("s_add_u32 s74, s74, s%d" % S_WAVE); a("s_mul_i32 s74, s74, %d" % MARK_W)

def mark_fill(a, n):
    L = a.newlabel("Lmk")
    a("s_mov_b32 s75, %d" % n)
    a.label(L)
    a(mark_store(74, 0)); a(mark_store(74, 1024)); a("s_add_u32 s74, s74, 2048"); a("s_waitcnt vmcnt(40)")
    a("s_sub_u32 s75, s75, 1"); a("s_cmp_lg_u32 s75, 0"); a("s_cbranch_scc1 %s" % L)

def mark_store(s, off): return "buffer_store_dwordx4 v[%d:%d], v%d, s[%d:%d], s%d offen offset:%d sc1" % (MK, MK+3, V_L16, R_M, R_M+3, s, off)

def touch_pages(a):
    if "tlb" not in ABL: return
    L = a.newlabel("Ltp")
    a("s_cmp_lg_u32 s%d, 1" % S_WAVE); a("s_cbranch_scc1 %s" % L)
    a("v_lshlrev_b32 v252, 21, v%d" % V_LANE)
    a("buffer_load_dword v253, v252, s[%d:%d], 0 offen offset:64" % (R_WS, R_WS+3))
    for p, size in ((S_W3, BW), (S_W4, BW), (S_OUT, ACT), (S_WO, SW), (S_W1, SW), (S_W2, SW)):
        n = (size - 1 >> 21) + 1
        a("s_mov_b64 exec, %d" % ((1 << n) - 1))
        a("global_load_dword v253, v252, s[%d:%d]" % (p, p+1))
    a("s_mov_b64 exec, -1")
    a.label(L)

def touch_inputs(a, nwg):
    nx, nw = -(-18432//(2*nwg)), -(-15552//(2*nwg))
    a("s_mul_i32 s46, s50, 14"); a("s_add_u32 s46, s46, s51"); a("s_lshl_b32 s46, s46, 1"); a("s_add_u32 s46, s46, s53")
    a("v_lshlrev_b32 v252, 7, v%d" % V_LANE)
    L = a.newlabel("Lti")
    a("s_cmp_lg_u32 s52, 0"); a("s_cbranch_scc1 %s_w" % L)
    a("s_mul_i32 s46, s46, %d" % (128*nx)); a("s_add_u32 s46, s46, 4096"); a("s_mov_b64 exec, 0x%x" % ((1 << nx) - 1) if nx <= 32 else "s_bfm_b64 exec, %d, 0" % nx)
    a("buffer_load_dword v253, v252, s[%d:%d], s46 offen" % (R_A, R_A+3))
    a("s_branch %s" % L)
    a.label(L + "_w")
    a("s_mul_i32 s46, s46, %d" % (128*nw)); a("s_add_u32 s46, s46, 4096"); a("s_bfm_b64 exec, %d, 0" % nw)
    a("buffer_load_dword v253, v252, s[%d:%d], s46 offen" % (R_B, R_B+3))
    a.label(L)
    a("s_mov_b64 exec, -1")

def phase1(a):
    QS = 18**-0.5 * math.log2(math.e)
    a("s_cmp_ge_u32 s%d, 28" % S_SLOT); a("s_cbranch_scc1 L_p1_helper")
    a.sdiv(46, 47, S_SLOT, 7)
    a("s_lshr_b32 s48, s%d, 1" % S_XCD); a("s_lshl_b32 s48, s48, 2"); a("s_add_u32 s50, s48, s46")
    a("s_and_b32 s48, s%d, 1" % S_XCD); a("s_mul_i32 s48, s48, 7"); a("s_add_u32 s51, s48, s47")
    a("s_lshr_b32 s52, s%d, 1" % S_WAVE); a("s_and_b32 s53, s%d, 1" % S_WAVE)
    a("v_lshrrev_b32 v20, 3, v%d" % V_LANE); a("v_and_b32 v21, 7, v%d" % V_LANE)
    a("v_xor_b32 v22, v21, v%d" % V_G); a("v_mul_u32_u24 v20, 1152, v20")
    a("v_lshl_add_u32 v10, v22, 4, v20"); a("v_xor_b32 v22, 4, v22"); a("v_lshl_add_u32 v11, v22, 4, v20")
    a("v_add_u32 v12, %d, v10" % (16*1152 - 2048 + 4096)); a("v_add_u32 v13, %d, v11" % (24*1152 - 3072 + 4096))
    a("v_add_u32 v11, %d, v11" % (8*1152 - 1024 + 4096)); a("v_add_u32 v10, 4096, v10")
    a("v_lshrrev_b32 v20, 1, v%d" % V_R); a("v_xor_b32 v20, v20, v%d" % V_G); a("v_and_b32 v21, 1, v%d" % V_LANE)
    a("v_lshl_add_u32 v21, v20, 1, v21"); a("v_mul_u32_u24 v22, 3456, v%d" % V_G)
    a("v_lshl_add_u32 v14, v21, 4, v22"); a("v_xor_b32 v21, 8, v21"); a("v_lshl_add_u32 v16, v21, 4, v22")
    a("v_add_u32 v15, %d, v14" % (4*3456 - 1024 + 4096)); a("v_add_u32 v17, %d, v16" % (12*3456 - 3072 + 4096))
    a("v_add_u32 v16, %d, v16" % (8*3456 - 2048 + 4096)); a("v_add_u32 v14, 4096, v14")
    a("s_lshl_b32 s54, s50, 2"); a("s_add_u32 s54, s54, s%d" % S_WAVE); a("s_mul_i32 s54, s54, %d" % (32*1152))
    a("s_mul_i32 s55, s%d, %d" % (S_WAVE, 16*3456)); a("s_lshl_b32 s46, s51, 8"); a("s_add_u32 s55, s55, s46")
    a("s_lshl_b32 s56, s%d, 12" % S_WAVE)
    a("s_waitcnt lgkmcnt(0)")
    if WSOFF: a("s_add_u32 s24, s24, %d" % WSOFF); a("s_addc_u32 s25, s25, 0")
    a.srd(R_A, S_X, ACT + 4096, -4096); a.srd(R_B, S_WQKV, 576*3456 + 4096, -4096)
    a.sdiv(46, 47, S_SLOT, 7)
    a("s_and_b32 s48, s%d, 1" % S_XCD); a("s_add_u32 s46, s46, s48"); a("s_lshl_b32 s46, s46, 1"); a("s_add_u32 s46, s46, s47")
    a("s_bfe_u32 s47, s%d, 0x10001" % S_XCD); a("s_add_u32 s46, s46, s47"); a("s_and_b32 s47, s%d, 4" % S_XCD); a("s_lshl_b32 s47, s47, 1"); a("s_add_u32 s46, s46, s47")
    if "rot8" not in ABL: a.sdiv(47, 67, 46, 9)
    else:
        a("s_and_b32 s70, s46, 7"); a("s_mov_b32 s67, 0")
    def dma(sbuf):
        X = ["buffer_load_dwordx4 v%d, s[%d:%d], s68 offen offset:%d lds" % (10+j, R_A, R_A+3, 1024*j) for j in range(4)]
        W = ["buffer_load_dwordx4 v%d, s[%d:%d], s69 offen offset:%d lds" % (14+j, R_B, R_B+3, 1024*j) for j in range(4)]
        X[0] = "s_mov_b32 m0, s%d\ns_lshl_b32 s68, s67, 7\ns_add_u32 s68, s68, s54\n" % sbuf + X[0]
        X[1] = "s_mul_i32 s69, s67, %d\ns_add_u32 s69, s69, s55\n" % (64*3456) + X[1]
        X[2] = "s_add_u32 s67, s67, 1\ns_cmp_eq_u32 s67, 9\ns_cselect_b32 s67, %d, s67\n" % (0 if "rot8" not in ABL else 1) + X[2]
        W[0] = "s_add_u32 m0, s%d, 16384\ns_nop 0\n" % sbuf + W[0]
        return X + W
    for x in dma(56): a(x)
    a("s_add_u32 s56, s56, 32768")
    if "rot8" in ABL: a("s_add_u32 s67, s67, s70")
    if "p1touch" in ABL: touch_inputs(a, 224)
    a.stamp("p1_issue")
    a.srd(R_WS, S_WS, WS_END)
    touch_pages(a)
    a("v_lshrrev_b32 v30, 2, v%d" % V_R); a("v_and_b32 v31, 3, v%d" % V_R)
    a("v_lshl_add_u32 v32, v%d, 3, v30" % V_G); a("v_lshlrev_b32 v32, 8, v32"); a("v_lshl_add_u32 v32, v31, 3, v32")
    a("v_add_u32 v32, 16384, v32")
    a("v_and_b32 v33, 1, v%d" % V_G); a("v_lshl_add_u32 v33, v33, 2, v30")
    a("s_lshl_b32 s46, s53, 2"); a("s_lshl_b32 s47, s52, 1"); a("s_or_b32 s57, s46, s47")
    for t in range(4):
        a("s_xor_b32 s46, s57, %d" % t); a("v_xor_b32 v34, s46, v33"); a("v_lshl_add_u32 v%d, v34, 5, v32" % (20+t))
    a("v_lshrrev_b32 v30, 1, v%d" % V_R); a("v_xor_b32 v30, v30, v%d" % V_G); a("v_lshlrev_b32 v31, 7, v%d" % V_R)
    a("s_lshl_b32 s46, s52, 13"); a("s_lshl_b32 s47, s53, 12"); a("s_add_u32 s46, s46, s47"); a("s_xor_b32 s47, s46, 4096")
    a("v_lshl_add_u32 v32, v30, 4, v31"); a("v_xor_b32 v33, 64, v32")
    a("v_add_u32 v24, s46, v32"); a("v_add_u32 v25, s47, v32"); a("v_add_u32 v26, s46, v33"); a("v_add_u32 v27, s47, v33")
    ACC, CS, ST, ONE = 48, 112, 120, 140
    XB = (144, 160); WB = (176, 192)
    WA, XA = 28, 32
    for r in range(ACC, ONE): a("v_mov_b32 v%d, 0" % r)
    for r in range(4): a("v_mov_b32 v%d, s%d" % (ONE+r, S_ONES))
    def addr(sbase):
        return ["v_add_u32 v%d, %s, v%d" % (WA+i, sbase, 20+i) for i in range(8)]
    def reads(jj):
        o = []
        for T in range(4):
            o.append("ds_read_b128 v[%d:%d], v%d offset:%d" % (XB[jj]+4*T, XB[jj]+4*T+3, XA+2*jj+(T>>1), 2048*(T&1)))
            for hh in range(2):
                o.append("ds_read_b64_tr_b16 v[%d:%d], v%d offset:%d" % (WB[jj]+4*T+2*hh, WB[jj]+4*T+2*hh+1, WA+T, jj*8192+hh*1024))
        return o
    def mm(jj, swap):
        o = []
        for t in range(4):
            for T in range(4):
                d = ACC+16*t+4*T
                o.append(mfma(d, XB[jj]+4*T, WB[jj]+4*t, d) if swap else mfma(d, WB[jj]+4*t, XB[jj]+4*T, d))
            if t < 2:
                d = CS+4*t
                o.append(mfma(d, ONE, WB[jj]+4*t, d) if swap else mfma(d, WB[jj]+4*t, ONE, d))
            x = XB[jj]+4*(t>>1); d = ST+4*t
            o.append(mfma(d, x if t & 1 else ONE, x, d))
        return o
    for x in addr("0"): a(x)
    a("s_lshl_b32 s60, s51, 1"); a("s_add_u32 s60, s60, s53")
    a("s_lshl_b32 s46, s50, 1"); a("s_add_u32 s46, s46, s52"); a("s_lshl_b32 s46, s46, 1"); a("s_add_u32 s47, s46, s53")
    a("s_xor_b32 s46, s47, 1"); a("s_mul_i32 s65, s47, 2304"); a("s_mul_i32 s66, s46, 2304"); a("s_mov_b32 s64, %d" % HPSZ)
    a("s_mov_b32 s58, 0"); a("s_mov_b32 s59, 0")
    a("s_cmp_ge_u32 s51, 9"); a("s_cbranch_scc1 L_p1_v0")
    for swap in (0, 1):
        L = "L_p1_v" if swap else "L_p1_qk"
        a.label(L + "0")
        if not swap:
            a("s_mov_b32 s62, %d" % Q_OFF); a("s_cmp_ge_u32 s60, 9"); a("s_cselect_b32 s61, 144, 0"); a("s_cselect_b32 s62, %d, s62" % K_OFF)
            a("s_cselect_b32 s73, 1.0, %d" % f32(QS))
            a("s_lshl_b32 s63, s60, 4"); a("s_sub_u32 s63, s63, s61")
            for t in range(4):
                a("s_lshl_b32 s46, s52, 1"); a("s_xor_b32 s46, s46, %d" % t); a("s_lshl_b32 s46, s46, 2"); a("s_add_u32 s46, s46, s63")
                a("v_add_u32 v212, s46, v%d" % V_G)
                a("v_mul_u32_u24 v213, 7282, v212"); a("v_lshrrev_b32 v213, 16, v213")
                a("v_mul_u32_u24 v214, 9, v213"); a("v_sub_u32 v212, v212, v214")
                a("v_cmp_lt_u32 vcc, 4, v212"); a("v_subb_co_u32 v214, vcc, v212, 0, vcc")
                a("v_cmp_eq_u32 vcc, 4, v212"); a("v_cndmask_b32 v214, v214, 8, vcc")
                a("v_mul_lo_u32 v213, v213, s64"); a("v_lshl_add_u32 v213, v214, 8, v213"); a("v_lshl_add_u32 v%d, v%d, 4, v213" % (208+t, V_R))
        else:
            a("s_mov_b32 s62, %d" % V_OFF); a("s_sub_u32 s63, s60, 18"); a("s_lshl_b32 s63, s63, 6")
            for t in range(4):
                a("s_lshl_b32 s46, s52, 1"); a("s_xor_b32 s46, s46, %d" % t); a("s_lshl_b32 s46, s46, 4"); a("s_add_u32 s46, s46, s63")
                a("v_add_u32 v212, s46, v%d" % V_R)
                a("v_mul_u32_u24 v213, 1821, v212"); a("v_lshrrev_b32 v213, 16, v213")
                a("v_mul_u32_u24 v214, 36, v213"); a("v_sub_u32 v212, v212, v214")
                a("v_lshl_add_u32 v214, v%d, 4, v212" % V_G)
                a("v_add_u32 v215, 44, v214")
                a("v_cmp_lt_u32 vcc, 19, v212"); a("v_cndmask_b32 v214, v214, v215, vcc")
                a("v_lshl_add_u32 v215, v212, 2, v%d" % V_G); a("v_add_u32 v215, 64, v215")
                a("v_lshrrev_b32 v212, 2, v212"); a("v_cmp_eq_u32 vcc, 4, v212"); a("v_cndmask_b32 v214, v214, v215, vcc")
                a("v_mul_lo_u32 v213, v213, s64"); a("v_lshl_add_u32 v%d, v214, 4, v213" % (208+t))
        a("s_add_u32 s65, s65, s62"); a("s_add_u32 s66, s66, s62")
        for x in dma(56): a(x)
        a("s_add_u32 s56, s56, 32768")
        if "burn" in ABL:
            for r in range(224, 240): a("v_mul_lo_u32 v%d, v%d, s64" % (r, 208 + (r & 3))); a("v_and_b32 v%d, 0xbfffbfff, v%d" % (r, r))
            Lb = a.newlabel("Lburn"); a("s_mov_b32 s75, 9"); a.label(Lb)
            for q in range(16): a(mfma(240+4*(q & 1), 224+4*(q & 3), 224+4*((q >> 2) & 3), 240+4*(q & 1)))
            a("s_sub_u32 s75, s75, 1"); a("s_cmp_lg_u32 s75, 0"); a("s_cbranch_scc1 %s" % Lb)
        a("s_waitcnt vmcnt(8)"); a("s_barrier")
        a.stamp("p1_first")
        for x in reads(0): a(x)
        a.label(L)
        a("s_cmp_ge_u32 s58, 7"); a("s_cbranch_scc1 %s_n" % L)
        for dm in (1, 0):
            d = dma(56) if (dm and "p1nodma" not in ABL) else []
            m = mm(0, swap)
            a("s_waitcnt lgkmcnt(0)")
            interleave(a, m[:14], reads(1))
            interleave(a, m[14:], d[:4])
            a("s_add_u32 s58, s58, 1")
            a("s_add_u32 s59, s59, 32768"); a("s_cmp_eq_u32 s59, 163840"); a("s_cselect_b32 s59, 0, s59")
            a("s_waitcnt vmcnt(%d) lgkmcnt(0)" % (4 if dm else 0))
            a("s_barrier")
            m = mm(1, swap); ad = addr("s59")
            interleave(a, m[:3], ad[4:6] + ad[0:4])
            interleave(a, m[3:15], reads(0) + ad[6:8])
            interleave(a, m[15:], d[4:])
            if dm:
                a("s_add_u32 s56, s56, 32768"); a("s_cmp_ge_u32 s56, 163840"); a("s_cselect_b32 s46, 163840, 0"); a("s_sub_u32 s56, s56, s46")
                a("s_branch %s" % L)
                a.label(L + "_n")
            else:
                a("s_cmp_lt_u32 s58, 9"); a("s_cbranch_scc1 %s_n" % L)
        a.stamp("p1_loop")
        a("s_waitcnt lgkmcnt(0)")
        a("v_and_b32 v40, 1, v%d" % V_R); a("v_cmp_eq_u32 s[74:75], 1, v40")
        a("v_and_b32 v40, 2, v%d" % V_R); a("v_cmp_eq_u32 s[76:77], 2, v40")
        a("v_lshrrev_b32 v40, 2, v%d" % V_R); a("v_cmp_eq_u32 s[78:79], v40, v%d" % V_G)
        a("s_mov_b32 s46, %d" % f32(1.0/576)); a("s_mov_b32 s47, %d" % f32(1e-5))
        for T in range(2):
            s_, q_ = ST+8*T, ST+8*T+4
            a("v_cndmask_b32 v%d, v%d, v%d, s[74:75]" % (q_, q_, q_+1)); a("v_cndmask_b32 v%d, v%d, v%d, s[74:75]" % (q_+2, q_+2, q_+3))
            a("v_mul_f32 v%d, s46, v%d" % (s_, s_))
            a("v_cndmask_b32 v%d, v%d, v%d, s[76:77]" % (q_, q_, q_+2))
            a("v_mul_f32 v42, v%d, v%d" % (s_, s_))
            a("v_fma_f32 v%d, v%d, s46, -v42" % (q_, q_)); a("v_max_f32 v%d, 0, v%d" % (q_, q_)); a("v_add_f32 v%d, s47, v%d" % (q_, q_))
            a("v_rsq_f32 v%d, v%d" % (36+2*T, q_)); a("v_mul_f32 v%d, v%d, -v%d" % (37+2*T, 36+2*T, s_))
        a("s_lshl_b32 s46, s52, 9"); a("s_lshl_b32 s47, s53, 8"); a("s_add_u32 s46, s46, s47")
        a("v_lshl_add_u32 v40, v%d, 3, s46" % V_R)
        a("s_mov_b64 exec, s[78:79]")
        if swap:
            a("v_lshrrev_b32 v42, 1, v40")
            for T in range(2): a("ds_write_b32 v42, v%d offset:%d" % (36+2*T, 64*T)); a("ds_write_b32 v42, v%d offset:%d" % (37+2*T, 512 + 64*T))
        else: a("ds_write_b64 v40, v[36:37]"); a("ds_write_b64 v40, v[38:39] offset:128")
        a("s_mov_b64 exec, -1")
        a("s_lshl_b32 s47, s57, 6")
        if not swap:
            a("v_lshl_add_u32 v41, v%d, 4, s47" % V_G)
            a("ds_write_b128 v41, v[%d:%d] offset:1024" % (CS, CS+3)); a("ds_write_b128 v41, v[%d:%d] offset:1088" % (CS+4, CS+7))
        else:
            a("v_lshl_add_u32 v41, v%d, 2, s47" % V_R)
            a("ds_write_b32 v41, v%d offset:1024" % CS); a("ds_write_b32 v41, v%d offset:1088" % (CS+4))
        a("s_waitcnt lgkmcnt(0)"); a("s_barrier")
        Ls = L + "_s"
        a("v_mov_b32 v36, 0"); a("v_mov_b32 v37, 0")
        a("s_cmp_ge_u32 s60, 27"); a("s_cbranch_scc1 %s" % Ls)
        a("v_xor_b32 v42, 256, v40"); a("v_xor_b32 v43, 128, v41")
        if not swap:
            RS, CC = 144, 160
            a("ds_read_b64 v[%d:%d], v40" % (RS, RS+1)); a("ds_read_b64 v[%d:%d], v40 offset:128" % (RS+2, RS+3))
            a("ds_read_b64 v[%d:%d], v42" % (RS+4, RS+5)); a("ds_read_b64 v[%d:%d], v42 offset:128" % (RS+6, RS+7))
            for t in range(4):
                a("ds_read_b128 v[%d:%d], v%d offset:%d" % (CC+4*t, CC+4*t+3, 41 if t < 2 else 43, 1024+64*(t&1)))
            a("s_waitcnt lgkmcnt(0)")
            for T in range(4): a("v_pk_mul_f32 v[%d:%d], v[%d:%d], s[72:73] op_sel:[0,1] op_sel_hi:[1,1]" % (RS+2*T, RS+2*T+1, RS+2*T, RS+2*T+1))
            for t in range(4):
                for T in range(4):
                    d = ACC+16*t+4*T
                    for h in range(2):
                        a("v_pk_mul_f32 v[%d:%d], v[%d:%d], v[%d:%d] op_sel:[0,1] op_sel_hi:[1,1]" % (216+2*h, 217+2*h, CC+4*t+2*h, CC+4*t+2*h+1, RS+2*T, RS+2*T+1))
                    for h in range(2):
                        a("v_pk_fma_f32 v[%d:%d], v[%d:%d], v[%d:%d], v[%d:%d] op_sel_hi:[1,0,1]" % (d+2*h, d+2*h+1, d+2*h, d+2*h+1, RS+2*T, RS+2*T+1, 216+2*h, 217+2*h))
                    e = ACC+16*t+8*(T>>1)+2*(T&1)
                    for h in range(2): a("v_max3_f32 v%d, |v%d|, |v%d|, v%d" % (36+h, d+2*h, d+2*h+1, 36+h))
                    a("v_cvt_pk_bf16_f32 v%d, v%d, v%d" % (e, d, d+1)); a("v_cvt_pk_bf16_f32 v%d, v%d, v%d" % (e+1, d+2, d+3))
                    if T & 1:
                        a("buffer_store_dwordx4 v[%d:%d], v%d, s[%d:%d], s%d offen sc1" % (e-2, e+1, 208+t, R_WS, R_WS+3, 65+(T>>1)))
        else:
            RS, CC = 144, 176
            a("s_lshr_b32 s46, s46, 1"); a("v_lshl_add_u32 v40, v%d, 4, s46" % V_G); a("v_xor_b32 v42, 128, v40")
            for T in range(4):
                for h in range(2):
                    a("ds_read_b128 v[%d:%d], v%d offset:%d" % (RS+8*T+4*h, RS+8*T+4*h+3, 40 if T < 2 else 42, 64*(T&1)+512*h))
            for t in range(4):
                a("ds_read_b32 v%d, v%d offset:%d" % (CC+2*t, 41 if t < 2 else 43, 1024+64*(t&1)))
            a("s_waitcnt lgkmcnt(0)")
            for t in range(4):
                for T in range(4):
                    d = ACC+16*t+4*T
                    for h in range(2):
                        a("v_pk_mul_f32 v[%d:%d], v[%d:%d], v[%d:%d] op_sel_hi:[1,0]" % (216+2*h, 217+2*h, RS+8*T+4+2*h, RS+8*T+5+2*h, CC+2*t, CC+2*t+1))
                    for h in range(2):
                        a("v_pk_fma_f32 v[%d:%d], v[%d:%d], v[%d:%d], v[%d:%d]" % (d+2*h, d+2*h+1, d+2*h, d+2*h+1, RS+8*T+2*h, RS+8*T+2*h+1, 216+2*h, 217+2*h))
                    e = ACC+16*t+8*(T>>1)+2*(T&1)
                    for h in range(2): a("v_max3_f32 v%d, |v%d|, |v%d|, v%d" % (36+h, d+2*h, d+2*h+1, 36+h))
                    a("v_cvt_pk_bf16_f32 v%d, v%d, v%d" % (e, d, d+1)); a("v_cvt_pk_bf16_f32 v%d, v%d, v%d" % (e+1, d+2, d+3))
                    if T & 1:
                        a("buffer_store_dwordx4 v[%d:%d], v%d, s[%d:%d], s%d offen sc1" % (e-2, e+1, 208+t, R_WS, R_WS+3, 65+(T>>1)))
        a.label(Ls)
        if not swap: a("s_branch L_p1_pub")
    a.label("L_p1_pub")
    a("v_max_f32 v36, v36, v37")
    a.xg_reduce(36, 37, "v_max_f32")
    for r in (8, 4, 2, 1): a("v_max_f32_dpp v36, v36, v36 row_ror:%d row_mask:0xf bank_mask:0xf" % r)
    a("s_lshl_b32 s46, s%d, 2" % S_WAVE); a("v_mov_b32 v37, s46"); a("ds_write_b32 v37, v36 offset:2048")
    if "d_p1" in ABL: a("s_sleep 64")
    a.stamp("p1_stores")
    L = a.newlabel("Lp1f")
    a("s_cmp_lg_u32 s%d, 0" % S_WAVE); a("s_cbranch_scc1 %s_a" % L)
    a.get_nonce(36)
    a.label(L + "_a")
    a("s_waitcnt vmcnt(0) lgkmcnt(0)"); a("s_barrier")
    a("s_cmp_lg_u32 s%d, 0" % S_WAVE); a("s_cbranch_scc1 L_p1_done")
    a("v_mov_b32 v38, 0"); a("ds_read_b128 v[40:43], v38 offset:2048")
    a("s_lshl_b32 s46, s50, 4"); a("s_add_u32 s46, s46, s51"); a("s_lshl_b32 s46, s46, 7"); a("s_add_u32 s46, s46, %d" % (FLAG0 + 128*F1))
    a("v_mov_b32 v36, s%d" % S_NONCE); a("s_mov_b64 exec, 1"); a("s_waitcnt lgkmcnt(0)")
    a("v_max3_f32 v37, v40, v41, v42"); a("v_max_f32 v37, v37, v43")
    a("buffer_store_dwordx2 v[36:37], v38, s[%d:%d], s46 offen sc1" % (R_WS, R_WS+3))
    a("s_mov_b64 exec, -1")
    a("s_branch L_p1_done")
    a.label("L_p1_helper")
    if "d_h1" in ABL: a("s_sleep 64")
    swizzle_setup(a)
    a("s_lshl_b32 s48, s%d, 2" % S_XCD); a("s_add_u32 s48, s48, s%d" % S_SLOT); a("s_sub_u32 s48, s48, 28")
    a("s_waitcnt lgkmcnt(0)")
    if WSOFF: a("s_add_u32 s24, s24, %d" % WSOFF); a("s_addc_u32 s25, s25, 0")
    a.srd(R_WS, S_WS, WS_END)
    publish_nonce(a)
    a("s_add_u32 s49, s48, 32"); a("s_cmp_lt_u32 s49, 54"); a("s_cselect_b32 s49, s49, s48")
    B = 36864
    mark_setup(a)
    if MK0: mark_fill(a, MK0)
    sw_issue(a, 48, 0, 0); sw_issue(a, 49, 1, B)
    if MK1: mark_fill(a, MK1)
    a("s_waitcnt vmcnt(0)"); a("s_barrier")
    sw_process(a, 0, 0); sw_process(a, 1, B)
    L = a.newlabel("Lhn"); a("s_cmp_lg_u32 s%d, 0" % S_WAVE); a("s_cbranch_scc1 %s" % L); a.get_nonce(36); a.label(L)
    a("s_waitcnt vmcnt(0)"); a("s_barrier")
    sw_flags(a, (0, 1))
    a.stamp("h_small")
    if MK0 + MK1 < MKG: mark_fill(a, MKG - MK0 - MK1)
    a("s_waitcnt vmcnt(0)"); a("s_barrier")
    sw_flags(a, (), mark=True)
    a.label("L_p1_done")
    a.stamp("p1_done")

def generate(stop=99, stamps=False):
    a = G(stop, stamps)
    prologue(a)
    phase1(a)
    from phases import phase2, phase345, phase6
    if stop >= 2: phase2(a)
    if stop >= 3: phase345(a)
    if stop >= 6: phase6(a)
    a.label("L_fin")
    a.stamp_out()
    a.label("L_end")
    a("s_endpgm")
    for x in a.stubs: a(x)
    a.label("L_last")
    body, nops = fix_hazards(a.lines)
    return body, nops

HEADER = """; Fused transformer block (LN, QKV, sliding-window attention, Wo, shift-MLP, channel MLP) as one persistent kernel.
; 256 workgroups of 4 waves, one per CU; phases hand data over through d_ws with write-through stores and flags.
; @launch grid=(256,1,1) block=(256,1,1) lds=163840
.amdgcn_target "amdgcn-amd-amdhsa--gfx950"
.text
.globl %s
.p2align 8
.type %s,@function
%s:
""" % (KN, KN, KN)
FOOTER = """.section .rodata,"a"
.p2align 6
.amdhsa_kernel %s
  .amdhsa_next_free_vgpr 512
  .amdhsa_next_free_sgpr 102
  .amdhsa_accum_offset 256
  .amdhsa_group_segment_fixed_size 0
  .amdhsa_kernarg_size 88
  .amdhsa_user_sgpr_count 2
  .amdhsa_user_sgpr_kernarg_segment_ptr 1
  .amdhsa_system_sgpr_workgroup_id_x 1
.end_amdhsa_kernel
""" % KN

def main():
    import argparse
    p = argparse.ArgumentParser()
    p.add_argument("--stop", type=int, default=99); p.add_argument("--stamps", default=""); p.add_argument("--wsoff", type=int, default=0); p.add_argument("--rt", action="store_true")
    p.add_argument("-o", default="k.s")
    o = p.parse_args()
    global WSOFF, CLK
    if o.rt: CLK = 's_memrealtime'
    WSOFF = o.wsoff << 20
    st = STAMPSETS.get(o.stamps, o.stamps.split(',')) if o.stamps else None
    if st:
        st = ['start'] + list(st) + ['end']; assert len(st) <= 16
        open(o.o[:-2] + '.stamps', 'w').write(','.join(st))
    body, nops = generate(o.stop, st)
    text = HEADER + "\n".join(("" if l.endswith(":") else "  ") + l for l in body) + "\n" + FOOTER
    open(o.o, "w").write(text)
    build(o.o, o.o[:-2] + ".co", KN)
    n = sum(1 for l in body if l and not l.endswith(":"))
    print("instructions", n, "nop states added", nops)
    seen = set()
    for nm, takes in TRACES.items():
        errs = check_waits(body, takes)
        for e in errs[:4]:
            if e not in seen: print("WAIT[%s]" % nm, e); seen.add(e)

STAMPSETS = {
 "all": "p1_first p1_loop p1_done p2_ready p2_loaded p2_done p3_ready p4_ready p5_ready p5_done p6_ready p6_x p6_a p6_b".split(),
 "p1": "p1_issue p1_first p1_loop p1_stores p1_done p2_ready p2_loaded p2_done p3_ready p4_ready p5_ready p5_done p6_ready p6_x".split(),
 "p3k": "p2_done p3_ready p3_k0 p3_k9 p3_gemm p4_ready p4_k0 p4_k9 p4_gemm p5_ready p5_k0 p5_k9 p5_gemm".split(),
 "hop": "p1_stores p1_done p2_ready p2_loaded p2_done p3_ready p3_epi p4_ready p4_epi p5_ready p5_epi p6_ready p6_x p6_b".split(),
 "p6": "p6_x p6_p0 p6_a p6_s0 p6_s1 p6_s5 p6_s6 p6_s7 p6_b p7_ready".split(),
 "h": "h_small p1_stores p1_done p2_setup p2_ready p2_loaded p2_done".split(),
 "p4k": "p3_k0 p3_k9 p3_gemm p3_epi p4_ready p4_k0 p4_k9 p4_gemm p4_epi p5_ready p5_k0 p5_k9 p5_gemm p5_epi".split(),
 "p6x": "p2_done h_w3 h_w4 p5_gemm p5_epi p5_done p6_ready p6_st p6_x9 p6_x17 p6_x p6_p0".split(),
 "crit": "p1_done p2_loaded p2_done h_w3 h_w4 p5_epi p6_ready p6_st p6_x p6_a p6_s6 p6_s7 p6_b".split(),
 "p3": "p2_done p3_dma p3_drain p3_ready p3_gemm p3_epi p4_dma p4_drain p4_ready p4_gemm p4_epi p5_drain p5_ready p5_gemm".split(),
}
TRACES = {"w012": {"L_p7_main": True, "L_p1_qk_n": [False,True,False]}, "h3": {"L_p3_helper": True, "L_p1_qk_n": [False,True,False]}, "slow": {"L_p2_slow": True, "L_p1_qk_n": [False,True,False]}, "edge": {"L_p2_edge": True, "L_p1_qk_n": [False,True,False]}, "qk": {"L_p1_qk_n": [False,False,True,True,False]}, "v": {"L_p1_v0": True, "L_p1_v_n": [False,False,True,True,False]}, "helper": {"L_p1_helper": True}}

if __name__ == "__main__":
    sys.modules["gen"] = sys.modules["__main__"]
    main()
```

```python
from gen import *

NEG = 0xF149F2CA
SLEEP0 = dict(p2=0, p3=0, p4=0, p5=0, p6=18)
for _kv in os.environ.get('SLEEP', '').split(','):
    if _kv: SLEEP0[_kv.split('=')[0]] = int(_kv.split('=')[1])

W_LDS = 53248
AW1, AW2 = 40, 148
XT = 232
W1N = int(os.environ.get('W1N', 27))
PA, PS, R_C = 244, (3, 27, 45), R_B

def pf_lds(i):
    gq, k = divmod(i, 9)
    pre = ("s_mul_i32 s58, s79, %d\ns_add_u32 s58, s58, s73\ns_add_u32 m0, s58, %d\n" % (gq, 1024*k)) if k == 0 or i == 2 else ""
    post = "\ns_add_u32 m0, m0, 1024" if k < 8 and i != 1 else ""
    return pre + "buffer_load_dwordx4 v%d, s[%d:%d], s%d offen sc1 lds" % (PA+k, R_C, R_C+3, PS[gq]) + post

def roles345(a):
    a("s_lshr_b32 s46, s%d, 3" % S_SLOT); a("s_lshl_b32 s74, s%d, 2" % S_XCD); a("s_add_u32 s74, s74, s46"); a("s_add_u32 s75, s%d, 6" % S_SLOT); a("s_and_b32 s75, s75, 7")
    a("s_lshl_b32 s76, s74, 2"); a("s_add_u32 s76, s76, s%d" % S_WAVE)

def phase2(a):
    KL_, VL_ = 0, 27648
    a("s_lshr_b32 s50, s%d, 1" % S_SLOT); a("s_and_b32 s51, s%d, 1" % S_SLOT); a("s_lshl_b32 s46, s%d, 1" % S_XCD); a("s_add_u32 s51, s51, s46")
    a("s_mul_i32 s52, s51, %d" % HPSZ)
    a("s_add_u32 s46, s52, %d" % K_OFF); a.srd_s(R_A, S_WS, HPSZ, 46)
    a("s_add_u32 s46, s52, %d" % V_OFF); a.srd_s(R_B, S_WS, HPSZ, 46)
    a("s_mul_i32 s46, s50, 9216"); a("s_sub_u32 s46, s46, 18432"); a("s_lshl_b32 s47, s%d, 10" % S_WAVE); a("s_add_u32 s46, s46, s47")
    a("v_add_u32 v10, s46, v%d" % V_L16)
    for i in range(1, 7): a("v_add_u32 v%d, %d, v10" % (10+i, 4096*i))
    a("s_lshl_b32 s46, s50, 3"); a("s_lshl_b32 s53, s%d, 1" % S_WAVE); a("s_add_u32 s53, s53, s46")
    a("s_mul_i32 s54, s53, 1152"); a("s_add_u32 s54, s54, s52"); a("s_add_u32 s54, s54, %d" % Q_OFF)
    a("v_lshlrev_b32 v18, 4, v%d" % V_R)
    a("s_mul_i32 s46, s%d, 2304" % S_WAVE)
    a("v_add_u32 v20, s46, v%d" % V_L16)
    a("s_add_u32 s47, s46, 2048"); a("v_add_u32 v21, s47, v18")
    a("s_add_u32 s47, s46, %d" % VL_); a("v_add_u32 v22, s47, v%d" % V_L16)
    a("v_lshl_add_u32 v23, v%d, 2, v%d" % (V_R, V_G)); a("s_add_u32 s47, s47, 2048"); a("v_lshl_add_u32 v23, v23, 4, s47")
    for i in range(4):
        a("v_lshl_add_u32 v24, v%d, 2, %d" % (V_G, i)); a("v_cmp_gt_u32 s[%d:%d], v24, v%d" % (60+2*i, 61+2*i, V_R))
    a("v_cmp_eq_u32 s[68:69], 0, v%d" % V_G)
    a("v_mov_b32 v25, 0x%x" % NEG)
    for r in range(4): a("v_mov_b32 v%d, -1" % (228+r))
    a("v_and_b32 v225, 31, v%d" % V_LANE); a("v_lshlrev_b32 v225, 2, v225")
    VLA = 0
    for r in range(36): a("v_accvgpr_write_b32 a%d, s%d" % (VLA+r, S_ONES))
    roles345(a)
    a("s_mul_i32 s46, s75, 110592"); a("s_mul_i32 s47, s%d, 27648" % S_WAVE); a("s_add_u32 s70, s46, s47"); a("s_add_u32 s70, s70, %d" % WO_S)
    a("s_add_u32 s71, s70, %d" % SW); a("s_add_u32 s72, s71, %d" % SW)
    a("s_cmp_ge_u32 s75, 6"); a("s_cbranch_scc1 L_p2_hs")
    a("s_add_u32 s73, s47, %d" % W_LDS); a("s_mov_b32 s79, 9216")
    for gq in range(3): a("s_add_u32 s%d, s70, %d" % (PS[gq], 9216*gq))
    for i in range(9): a("v_add_u32 v%d, %d, v%d" % (PA+i, 1024*i, V_L16))
    a("s_mov_b32 s10, s%d" % S_WS); a("s_mov_b32 s11, s%d" % (S_WS+1)); a("s_mov_b32 s26, %d" % WS_END)
    a("s_branch L_p2_hd")
    a.label("L_p2_hs")
    a("s_mov_b32 s71, 0x70000000")
    a("s_mul_i32 s47, s%d, 9216" % S_WAVE); a("s_add_u32 s73, s47, %d" % W_LDS); a("s_mov_b32 s79, 36864")
    a("s_lshl_b32 s48, s74, 1"); a("s_add_u32 s48, s48, s75"); a("s_sub_u32 s48, s48, 6"); a("s_mul_i32 s48, s48, 3")
    a("s_mov_b32 s10, s%d" % S_W3); a("s_mov_b32 s11, s%d" % (S_W3+1)); a("s_mov_b32 s78, 9216")
    a("s_cmp_lt_u32 s48, 144"); a("s_cselect_b32 s26, %d, 0" % BW)
    for gq in range(3):
        a("s_add_u32 s46, s48, %d" % gq)
        a.sdiv(47, 56, 46, 18)
        a("s_lshl_b32 s56, s56, 2"); a("s_add_u32 s56, s56, s%d" % S_WAVE); a("s_mul_i32 s56, s56, %d" % (8*9216))
        a("s_mul_i32 s47, s47, 1152"); a("s_add_u32 s%d, s56, s47" % (PS[gq]))
    for i in range(9):
        a("v_add_u32 v24, %d, v%d" % (64*i, V_LANE)); a("v_mul_u32_u24 v26, 911, v24"); a("v_lshrrev_b32 v26, 16, v26")
        a("v_mul_u32_u24 v27, 72, v26"); a("v_sub_u32 v27, v24, v27"); a("v_mul_lo_u32 v26, v26, s78"); a("v_lshl_add_u32 v%d, v27, 4, v26" % (PA+i))
    a.label("L_p2_hd")
    a("v_mul_u32_u24 v7, 1152, v%d" % V_R); a("v_lshl_add_u32 v7, v%d, 4, v7" % V_G)
    a("s_mul_i32 s46, s76, 18432"); a("s_mul_i32 s47, s75, 192"); a("s_add_u32 s77, s46, s47")
    a("s_cmp_ge_u32 s75, 6"); a("s_cselect_b32 s77, 0x70000000, s77")
    L = a.newlabel("Lp2w")
    a("v_mov_b32 v19, %d" % (W_LDS + 4096))
    a("s_cmp_lg_u32 s%d, 0" % S_WAVE); a("s_cbranch_scc1 %s" % L)
    a("v_and_b32 v30, 2, v%d" % V_LANE); a("v_cmp_eq_u32 s[58:59], 0, v30"); a("v_cmp_gt_u32 vcc, 12, v%d" % V_LANE)
    a("s_andn2_b64 s[56:57], vcc, s[58:59]"); a("s_and_b64 s[58:59], vcc, s[58:59]")
    a("v_mov_b32 v34, 0x49800000"); a("v_mov_b32 v35, 0x7f800000")
    a("v_lshrrev_b32 v30, 2, v%d" % V_LANE); a("v_min_u32 v30, 2, v30"); a("v_add_u32 v30, s50, v30"); a("v_subrev_u32 v30, 2, v30"); a("v_max_i32 v30, 0, v30")
    a("v_bfe_u32 v31, v%d, 1, 1" % V_LANE); a("v_add_u32 v31, 1, v31"); a("v_cmp_gt_u32 vcc, 12, v%d" % V_LANE); a("v_cndmask_b32 v31, 0, v31, vcc")
    a("v_mul_u32_u24 v31, 576, v31"); a("v_and_b32 v32, 1, v%d" % V_LANE); a("v_mul_u32_u24 v32, 35, v32")
    a("s_mul_i32 s46, s51, 36"); a("v_add3_u32 v31, v31, v32, s46"); a("v_lshrrev_b32 v31, 7, v31")
    a("v_lshl_add_u32 v30, v30, 4, v31"); a("v_add_u32 v30, %d, v30" % F1)
    a.stamp("p2_setup")
    a.poll(30, 32, sleep0=SLEEP0["p2"], two=True)
    a("v_cndmask_b32 v30, 0, v33, s[58:59]"); a("v_cndmask_b32 v31, 0, v33, s[46:47]".replace("46:47", "56:57"))
    a("v_cmp_nle_f32 vcc, v31, v34"); a("v_cndmask_b32 v30, v30, v35, vcc")
    for r in (8, 4, 2, 1): a("v_max_f32_dpp v30, v30, v30 row_ror:%d row_mask:0xf bank_mask:0xf" % r)
    a("s_mov_b64 exec, 1"); a("ds_write_b32 v19, v30"); a("s_mov_b64 exec, -1"); a("s_waitcnt lgkmcnt(0)")
    a.label(L)
    a("s_barrier")
    a("ds_read_b32 v19, v19")
    a("v_min_u32 v38, 53, v%d" % V_LANE); a("v_add_u32 v38, %d, v38" % FS); a("v_lshlrev_b32 v38, 7, v38")
    fsq = "buffer_load_dword v39, v38, s[%d:%d], 0 offen offset:%d sc1" % (R_WS, R_WS+3, FLAG0)
    a.stamp("p2_ready")
    QR = 26
    a("buffer_load_dwordx4 v[%d:%d], v%d, s[%d:%d], s54 offen sc1" % (QR, QR+3, V_L16, R_WS, R_WS+3))
    a("buffer_load_dwordx4 v[%d:%d], v18, s[%d:%d], s54 offen offset:2048 sc1" % (QR+4, QR+7, R_WS, R_WS+3))
    a("buffer_load_dwordx4 v[%d:%d], v%d, s[%d:%d], s54 offen offset:1024 sc1" % (QR+8, QR+11, V_L16, R_WS, R_WS+3))
    a(fsq)
    a("s_lshl_b32 s46, s%d, 10" % S_WAVE)
    for R, base in ((R_A, KL_), (R_B, VL_)):
        for i in range(7):
            Ls = a.newlabel("Lp2d")
            if i == 6: a("s_cmp_eq_u32 s%d, 3" % S_WAVE); a("s_cbranch_scc1 %s" % Ls)
            a("s_add_u32 m0, s46, %d" % (base + 4096*i))
            a("buffer_load_dwordx4 v%d, s[%d:%d], 0 offen sc1 lds" % (10+i, R, R+3))
            if i == 6: a.label(Ls)
    a.srd(R_A, S_X, ACT)
    a("s_mov_b32 s%d, s10" % R_C); a("s_mov_b32 s%d, s11" % (R_C+1)); a("s_mov_b32 s%d, s26" % (R_C+2)); a("s_mov_b32 s%d, 0x20000" % (R_C+3))
    QF = 40
    a("s_waitcnt vmcnt(12)")
    for hd in range(2):
        for qt in range(2):
            q = QF + 12*hd + 6*qt
            for h in range(2): a("v_mov_b32 v%d, v%d" % (q+2+h, QR+8*hd+2*qt+h))
            a("v_cndmask_b32 v%d, 0, v%d, s[68:69]" % (q+hd, QR+4+2*qt+hd)); a("v_mov_b32 v%d, 0" % (q+1-hd))
            for h in range(2): a("v_mov_b32 v%d, v%d" % (q+4+h, q+h))
    for k in range(4):
        a("v_mov_b32 v%d, 0" % (216+k))
        for r in range(4):
            a("v_and_b32 v24, 0x7fff7fff, v%d" % (QF+6*k+r)); a("v_dot2c_f32_bf16 v%d, s%d, v24" % (216+k, S_ONES))
    a("v_max3_f32 v216, v216, v217, v218"); a("v_max_f32 v216, v216, v219")
    a.xg_reduce(216, 217)
    a("s_waitcnt lgkmcnt(0)"); a("v_mul_f32 v216, v19, v216"); a("v_mov_b32 v217, 0x42c00000"); a("v_cmp_nle_f32 s[58:59], v216, v217")
    MF, ML = 8, 12
    for i in range(4):
        a("v_cndmask_b32 v%d, v25, 0, s[%d:%d]" % (MF+i, 60+2*i, 61+2*i)); a("v_cndmask_b32 v%d, 0, v25, s[%d:%d]" % (ML+i, 60+2*i, 61+2*i))
    a("s_lshl_b32 s55, s50, 3"); a("s_lshl_b32 s46, s%d, 1" % S_WAVE); a("s_add_u32 s55, s55, s46"); a("s_sub_u32 s55, 16, s55"); a("s_max_i32 s55, s55, 0")
    a("s_lshl_b32 s56, s2, 2"); a("s_add_u32 s56, s56, s%d" % S_WAVE); a("s_mul_i32 s56, s56, 5120"); a("s_min_u32 s56, s56, %d" % (WO_S - T_OFF - 5120)); a("s_add_u32 s56, s56, %d" % T_OFF)
    L = a.newlabel("Lfs")
    a("s_cmp_lg_u32 s%d, 0" % S_WAVE); a("s_cbranch_scc1 %s" % L)
    a("v_cmp_ne_u32 vcc, s%d, v39" % S_NONCE); a("s_cbranch_vccz %s" % L)
    a("v_lshrrev_b32 v38, 7, v38")
    a.poll(38, 39, sleep0=0)
    a.label(L)
    a("s_waitcnt vmcnt(6)"); a("s_barrier")
    a.stamp("p2_loaded")
    a("s_cmp_lg_u64 s[58:59], 0")
    if "slow" in ABL: a("s_cmp_eq_u32 s2, s2")
    a("s_cbranch_scc1 L_p2_slow")
    a("s_cmp_lt_u32 s50, 2"); a("s_cbranch_scc1 L_p2_edge")
    M, NM, CZ = 16, 216, 26
    KF = 64
    S2, P, VM = 136, 168, 184
    S1 = S2
    OM, OL, R_, OUT = 192, 200, 32, 208
    marks = "s_mov_b32 s46, %d\nbuffer_load_dword v224, v225, s[%d:%d], s46 offen sc1" % (FP_OFF, R_WS, R_WS+3)
    def prefetch():
        o = [pf_lds(i) for i in range(2, 27)]
        for jj in range(3): o.append("buffer_load_dwordx4 v[%d:%d], v7, s[%d:%d], s77 offen offset:%d" % (XT+4*jj, XT+4*jj+3, R_A, R_A+3, 64*jj))
        for sb, ab in ((71, AW1),):
            for i in range(W1N):
                pre = "s_add_u32 s59, s%d, %d\n" % (sb, 1024*i) if i % 4 == 0 else ""
                o.append(pre + "buffer_load_dwordx4 a[%d:%d], v%d, s[%d:%d], s59 offen offset:%d sc1" % (ab+4*i, ab+4*i+3, V_L16, R_WS, R_WS+3, 1024*(i & 3)))
        return o
    for edge, slow in ((0, 0), (1, 0), (1, 1)):
      if edge: a.label("L_p2_slow" if slow else "L_p2_edge")
      pf = prefetch(); npf0 = None
      if "x_nopf" in ABL: pf = ["s_nop 0"]*55
      if "x_nomk" in ABL: pf = ["s_nop 0" if "store" in x else x for x in pf]
      if "x_now1" in ABL: pf = ["s_nop 0" if " a[" in x else x for x in pf]
      def take(n):
          o = pf[:n]; del pf[:n]; return o
      for head in range(2):
        def Q(qt, t): return QF + 12*head + 6*qt + 2*(t & 1)
        def K(t): return KF + 4*t
        def kread(m):
            o = ["ds_read_b128 v[%d:%d], v20 offset:%d" % (KF+8*m+2, KF+8*m+5, 2304*m + 1024*head)]
            if head == 0: o += ["ds_read_b64 v[%d:%d], v21 offset:%d" % (KF+8*m+6*b, KF+8*m+6*b+1, 2304*m + 8*b) for b in range(2)]
            return o
        def vleft(m): return "ds_read_b128 a[%d:%d], v23 offset:%d" % (VLA+4*m, VLA+4*m+3, 2304*m + 128*head)
        def vmain(m): return "ds_read_b128 v[%d:%d], v22 offset:%d" % (VM+4*(m & 1), VM+4*(m & 1)+3, 2304*m + 1024*head)
        def has(qt, t): return (t <= 16) if qt == 0 else (t >= 1)
        def mask(reg, qt, t):
            o = []
            for i in range(4):
                if t == qt: o.append("v_cndmask_b32 v%d, v25, v%d, s[%d:%d]" % (reg+i, reg+i, 60+2*i, 61+2*i))
                if t == 16+qt: o.append("v_cndmask_b32 v%d, v%d, v25, s[%d:%d]" % (reg+i, reg+i, 60+2*i, 61+2*i))
            return o
        def switch(t, moves):
            Ls = a.newlabel("Lsw")
            a("s_cmp_eq_u32 s55, %d" % t); a("s_cbranch_scc0 %s" % Ls)
            for x in moves: a(x)
            a.label(Ls)
        if head:
            L = a.newlabel("Lmk")
            a("s_cmp_lg_u32 s%d, 0" % S_WAVE); a("s_cbranch_scc1 %s_x" % L)
            a("s_mov_b32 s47, 100000"); a("s_waitcnt vmcnt(%d)" % (npf0 - len(pf)))
            a.label(L)
            a("v_cmp_ne_u32 vcc, s%d, v224" % S_NONCE)
            a("s_cbranch_vccz %s_x" % L)
            a("s_sleep 2"); a(marks); a("s_waitcnt vmcnt(0)")
            a("s_sub_u32 s47, s47, 1"); a("s_cbranch_scc0 %s" % L)
            a.label(L + "_x")
            a("s_waitcnt vmcnt(20)"); a("s_barrier")
            publish2(a, 224)
        AH = 3
        for m in range(AH if slow else 2):
            for x in kread(m): a(x)
        if slow:
            a("v_mov_b32 v%d, v25" % M); a("v_mov_b32 v%d, v25" % (M+1))
            if edge:
                for i in range(4): a("v_mov_b32 v%d, v25" % (CZ+i))
            def c1(qt, t): return CZ if edge else MF if t == qt else ML if t == 16+qt else None
            def maxes(t):
                o = []
                for qt in range(2):
                    if not has(qt, t): continue
                    s = S1 + 8*(t % 3) + 4*qt
                    if edge: o += mask(s, qt, t)
                    o.append("v_max3_f32 v%d, v%d, v%d, v%d" % (M+qt, s, s+1, M+qt))
                for qt in range(2):
                    if not has(qt, t): continue
                    s = S1 + 8*(t % 3) + 4*qt
                    o.append("v_max3_f32 v%d, v%d, v%d, v%d" % (M+qt, s+2, s+3, M+qt))
                return o
            for t in range(18):
                if t % 2 == 0:
                    if edge: switch(t, ["v_mov_b32 v%d, 0" % (CZ+i) for i in range(4)])
                    a("s_waitcnt lgkmcnt(%d)" % (len(kread(0))*min(AH-1, 8 - t//2)))
                ms = [mfma(S1+8*(t % 3)+4*qt, K(t), Q(qt, t), c1(qt, t)) for qt in range(2) if has(qt, t)]
                fill = (kread(t//2+AH) if t % 2 == 0 and t//2+AH < 9 else []) + (maxes(t-2) if t >= 2 else []) + (take(1) if t % 3 == 1 and head else [])
                interleave(a, ms, fill)
        def vstart():
            nonlocal npf0
            if head == 0:
                a("s_waitcnt vmcnt(%d)" % (28 + W1N - len(pf))); a("s_barrier")
                for q in range(5):
                    if q == 4: a("s_add_u32 s56, s56, 4096")
                    if "x_nomk" not in ABL: a("buffer_store_dwordx4 v[228:231], v%d, s[%d:%d], s56 offen offset:%d sc1" % (V_L16, R_WS, R_WS+3, 1024*(q & 3)))
                npf0 = len(pf); a(marks)
            a("s_mov_b32 exec_lo, 0x00030003"); a("s_mov_b32 exec_hi, 0x00030003")
            for m in range(9): a(vleft(m))
            a("s_mov_b64 exec, -1")
            a(vmain(0))
        if slow: vstart()
        if slow:
            for x in maxes(16) + maxes(17): a(x)
            for sw in ("v_permlane32_swap_b32", "v_permlane16_swap_b32"):
                for qt in range(2): a("v_mov_b32 v%d, v%d" % (30+qt, M+qt))
                for qt in range(2): a("%s v%d, v%d" % (sw, M+qt, 30+qt))
                for qt in range(2): a("v_max_f32 v%d, v%d, v%d" % (M+qt, M+qt, 30+qt))
            negs = ["v_sub_f32 v%d, 0, v%d" % (NM+4*qt+i, M+qt) for qt in range(2) for i in range(4)]
        else: negs = ["v_mov_b32 v%d, 0" % (NM+i) for i in range(4)]
        if edge:
            for i in range(len(negs)): a("v_mov_b32 v%d, v25" % (NM+i))
        def c2(qt, t): return NM+4*qt if slow else NM if edge else MF if t == qt else ML if t == 16+qt else None
        def qk(m):
            return [mfma(S2+16*(m & 1)+8*qt+4*b, K(2*m+b), Q(qt, b), c2(qt, 2*m+b)) for qt in range(2) for b in range(2) if has(qt, 2*m+b)]
        def pv(m):
            o = []
            for qt in range(2):
                p = P+8*(m & 1)+4*qt
                o.append(mfma(OM+4*qt, VM+4*(m & 1), p, None if m == 0 else OM+4*qt))
                o.append(mfma(OL+4*qt, VLA+4*m, p, None if m == 0 else OL+4*qt, ta="a"))
            return o
        if slow: switch(0, negs)
        else: a("s_waitcnt lgkmcnt(%d)" % len(kread(0)))
        for x in qk(0): a(x)
        for m in range(9):
            if edge and m < 8: switch(2*m+2, negs)
            mf = (qk(m+1) if m < 8 else []) + (pv(m-1) if m else [])
            va = []
            ld = take((3 if (m % 3 or head == 0) else 2) if slow else 0 if m + head == 0 else -(-len(pf)//(18 - 9*head - m)))
            for qt in range(2):
                p = P+8*(m & 1)+4*qt
                for b in range(2):
                    s = S2+16*(m & 1)+8*qt+4*b
                    if has(qt, 2*m+b):
                        if edge: va += mask(s, qt, 2*m+b)
                        va += ["v_exp_f32 v%d, v%d" % (s+i, s+i) for i in range(4)]
                    if ld and (b == 0 or qt == 0 or len(ld) > 0 and qt == 1 and b == 1): va.append(ld.pop(0))
                for b in range(2):
                    s = S2+16*(m & 1)+8*qt+4*b
                    if has(qt, 2*m+b):
                        va += ["v_cvt_pk_bf16_f32 v%d, v%d, v%d" % (p+2*b+h, s+2*h, s+2*h+1) for h in range(2)]
                    else:
                        va += ["v_mov_b32 v%d, 0" % (p+2*b+h) for h in range(2)]
            if slow:
                if m: a("s_waitcnt lgkmcnt(1)")
            else:
                a("s_waitcnt lgkmcnt(%d)" % (0 if m == 0 else 11 if m == 1 else 1))
                if m + 2 < 9: va = kread(m+2) + va
            if m == 1 and not slow:
                interleave(a, mf[:4], va[:len(va)//2]); a("s_waitcnt lgkmcnt(%d)" % (1 + len(kread(0)))); interleave(a, mf[4:], va[len(va)//2:])
            else: interleave(a, mf, va)
            if m == 0 and not slow: vstart()
            if m < 8: a(vmain(m+1))
        a("s_waitcnt lgkmcnt(0)")
        for x in pv(8): a(x)
        if head == 1:
            assert not pf
            a("s_mul_i32 s54, s53, 18432"); a("s_add_u32 s54, s54, %d" % O_OFF)
            a("s_lshl_b32 s46, s51, 10"); a("s_add_u32 s58, s46, s54"); a("s_add_u32 s59, s58, 18432")
            a("s_lshr_b32 s46, s51, 3"); a("s_add_u32 s46, s46, 16"); a("s_lshl_b32 s46, s46, 10"); a("s_add_u32 s54, s54, s46")
            a("s_and_b32 s46, s51, 7"); a("s_lshr_b32 s46, s46, 1"); a("s_lshl_b32 s46, s46, 8"); a("s_add_u32 s54, s54, s46")
            a("s_and_b32 s46, s51, 1"); a("s_lshl_b32 s46, s46, 3"); a("s_add_u32 s54, s54, s46"); a("s_add_u32 s47, s54, 18432")
        for qt in range(2): a("v_rcp_f32 v%d, v%d" % (30+qt, OL+4*qt+3))
        for qt in range(2):
            for i in range(4): a("v_mul_f32 v%d, v%d, v%d" % (OM+4*qt+i, OM+4*qt+i, 30+qt))
            for i in range(2): a("v_mul_f32 v%d, v%d, v%d" % (OL+4*qt+i, OL+4*qt+i, 30+qt))
        for qt in range(2):
            for h in range(2): a("v_cvt_pk_bf16_f32 v%d, v%d, v%d" % (OUT+4*qt+2*head+h, OM+4*qt+2*h, OM+4*qt+2*h+1))
            a("v_cvt_pk_bf16_f32 v%d, v%d, v%d" % (R_+2*qt+head, OL+4*qt, OL+4*qt+1))
      if not slow: a("s_branch L_p2_out")
    a.label("L_p2_out")
    a("buffer_store_dwordx4 v[%d:%d], v%d, s[%d:%d], s58 offen sc1" % (OUT, OUT+3, V_L16, R_WS, R_WS+3))
    a("buffer_store_dwordx4 v[%d:%d], v%d, s[%d:%d], s59 offen sc1" % (OUT+4, OUT+7, V_L16, R_WS, R_WS+3))
    a("s_mov_b64 exec, 0xffff")
    a("buffer_store_dwordx2 v[%d:%d], v%d, s[%d:%d], s54 offen sc1" % (R_, R_+1, V_L16, R_WS, R_WS+3))
    a("buffer_store_dwordx2 v[%d:%d], v%d, s[%d:%d], s47 offen sc1" % (R_+2, R_+3, V_L16, R_WS, R_WS+3))
    a("s_mov_b64 exec, -1")
    a.stamp("p2_done")
    if a.stop == 2:
        a("s_waitcnt vmcnt(0)")

_c0 = 2.0*math.log2(math.e)*math.sqrt(2/math.pi)
GS = (_c0*0.044715)**(1/3)
GK = _c0/GS

def gelu_consts(a): a("s_mov_b32 s48, %d" % f32(GS)); a("s_mov_b32 s49, %d" % f32(GK))

def gelu_poly(regs, t):
    o = ["v_pk_fma_f32 v[%d:%d], v[%d:%d], v[%d:%d], s[48:49] op_sel:[0,0,1] op_sel_hi:[1,1,1]" % (t+2*k, t+2*k+1, r, r+1, r, r+1) for k, r in enumerate(regs)]
    return o + ["v_pk_mul_f32 v[%d:%d], v[%d:%d], v[%d:%d]" % (t+2*k, t+2*k+1, t+2*k, t+2*k+1, r, r+1) for k, r in enumerate(regs)]

def gelu_pk(a, regs, t):
    for x in gelu_poly(regs, t): a(x)
    for k in range(2*len(regs)): a("v_exp_f32 v%d, -v%d" % (t+k, t+k))
    for k, r in enumerate(regs): a("v_pk_fma_f32 v[%d:%d], v[%d:%d], s[48:49], s[48:49] op_sel_hi:[1,0,0]" % (t+2*k, t+2*k+1, t+2*k, t+2*k+1))
    for k in range(2*len(regs)): a("v_rcp_f32 v%d, v%d" % (t+k, t+k))
    for k, r in enumerate(regs): a("v_pk_mul_f32 v[%d:%d], v[%d:%d], v[%d:%d]" % (r, r+1, r, r+1, t+2*k, t+2*k+1))

def stats_loads(a, off, stile, vt):
    a("v_lshlrev_b32 v%d, 3, v%d" % (vt+4, V_LANE))
    a("v_add_u32 v%d, 512, v%d" % (vt+5, vt+4)); a("v_cmp_gt_u32 vcc, 32, v%d" % V_LANE); a("v_mov_b32 v%d, 0x7fffffff" % vt)
    a("v_cndmask_b32 v%d, v%d, v%d, vcc" % (vt+5, vt, vt+5))
    a("s_mul_i32 s46, s%d, 768" % stile); a("s_add_u32 s46, s46, %d" % off)
    return ["buffer_load_dwordx2 v[%d:%d], v%d, s[%d:%d], s46 offen sc1" % (vt+2*k, vt+2*k+1, vt+4+k, R_WS, R_WS+3) for k in range(2)]

def stats_finish(a, vt, vmean, vrstd):
    a("v_add_f32 v%d, v%d, v%d" % (vt, vt, vt+2)); a("v_add_f32 v%d, v%d, v%d" % (vt+1, vt+1, vt+3))
    for sw in ("v_permlane32_swap_b32", "v_permlane16_swap_b32"):
        for k in range(2): a("v_mov_b32 v%d, v%d" % (vt+2+k, vt+k))
        for k in range(2): a("%s v%d, v%d" % (sw, vt+k, vt+2+k))
        for k in range(2): a("v_add_f32 v%d, v%d, v%d" % (vt+k, vt+k, vt+2+k))
    a("s_mov_b32 s47, %d" % f32(1.0/576))
    a("v_mul_f32 v%d, s47, v%d" % (vmean, vt)); a("v_mul_f32 v%d, v%d, v%d" % (vt, vmean, vmean))
    a("v_fma_f32 v%d, v%d, s47, -v%d" % (vt+1, vt+1, vt)); a("v_max_f32 v%d, 0, v%d" % (vt+1, vt+1))
    a("v_add_f32 v%d, %d, v%d" % (vt, f32(1e-5), vt+1)); a("v_rsq_f32 v%d, v%d" % (vrstd, vt))

def norm_ops(x, vs, vb, t):
    o = []
    for r in range(4):
        o.append("v_lshlrev_b32 v%d, 16, v%d" % (t+2*r, x+r)); o.append("v_and_b32 v%d, 0xffff0000, v%d" % (t+2*r+1, x+r))
    for r in range(8): o.append("v_fma_f32 v%d, v%d, v%d, v%d" % (t+r, t+r, vs, vb))
    for r in range(4): o.append("v_cvt_pk_bf16_f32 v%d, v%d, v%d" % (x+r, t+2*r, t+2*r+1))
    return o

def out_stats(a, pk, n, vt, off):
    a("v_mov_b32 v%d, 0" % vt); a("v_mov_b32 v%d, 0" % (vt+1))
    for r in range(n):
        a("v_dot2c_f32_bf16 v%d, s%d, v%d" % (vt, S_ONES, pk+r)); a("v_dot2c_f32_bf16 v%d, v%d, v%d" % (vt+1, pk+r, pk+r))
    for sw in ("v_permlane32_swap_b32", "v_permlane16_swap_b32"):
        for k in range(2): a("v_mov_b32 v%d, v%d" % (vt+2+k, vt+k))
        for k in range(2): a("%s v%d, v%d" % (sw, vt+k, vt+2+k))
        for k in range(2): a("v_add_f32 v%d, v%d, v%d" % (vt+k, vt+k, vt+2+k))
    a("s_mul_i32 s46, s53, 6"); a("s_add_u32 s46, s46, s51"); a("s_lshl_b32 s46, s46, 7"); a("s_add_u32 s46, s46, %d" % off)
    a("v_lshlrev_b32 v%d, 3, v%d" % (vt+2, V_LANE))
    a("s_mov_b64 exec, 0xffff")
    a("buffer_store_dwordx2 v[%d:%d], v%d, s[%d:%d], s46 offen sc1" % (vt, vt+1, vt+2, R_WS, R_WS+3))
    a("s_mov_b64 exec, -1")

AF, ACC, WB, HK, VMEAN, VRSTD = 64, 136, 160, 40, 52, 53
OS = WB

def tag_ops(regs, t):
    o = []; regs = list(regs)
    o.append("v_max3_u32 v%d, v%d, v%d, v%d" % (t, regs[0], regs[1], regs[2])); regs = regs[3:]
    while len(regs) >= 2: o.append("v_max3_u32 v%d, v%d, v%d, v%d" % (t, t, regs[0], regs[1])); regs = regs[2:]
    if regs: o.append("v_max_u32 v%d, v%d, v%d" % (t, t, regs[0]))
    return o + ["v_cmp_eq_u32 vcc, -1, v%d" % t]

def tag_branch(a, loads, regs, t, again=(), drain=False):
    L = a.newlabel("Ltg")
    a("s_cbranch_vccnz %s" % L)
    a.label(L + "_b")
    st = [L + ":"] + "\n".join(loads).split("\n") + ["s_waitcnt vmcnt(0)"] + tag_ops(regs, t)
    st += ["s_cmp_eq_u32 s79, 0", "s_cbranch_scc1 %s_b" % L, "s_sub_u32 s79, s79, 1", "s_cbranch_vccnz %s" % L]
    st += list(again) + (["s_waitcnt vmcnt(0)"] if drain and again else []) + ["s_branch %s_b" % L]
    a.stubs += st

UP = 8
NE = 12
def wpos(layout, b):
    if layout is None: return W_LDS//1024 + b
    w, i = divmod(b, 27)
    return layout[0] + NE*w + i if i < NE else layout[1] + (27-NE)*w + i - NE

def gemm96(a, loads, stage, delay, pre=(), each=None, stamp=None, extra=(), layout=None, early=(), before=None, after=None, init=None):
    a("s_waitcnt vmcnt(20)")
    a("s_barrier")
    nv = sum("buffer_load" in x for x in stage)
    n1 = len(stage) if nv else len(stage)//3
    for x in stage[:n1]: a(x)
    if delay: a("s_sleep %d" % delay)
    a("s_mov_b32 s79, 50000")
    a.stamp(stamp + "_ready")
    for x in pre: a(x)
    interleave(a, loads[:UP], stage[n1:])
    a("s_waitcnt vmcnt(%d) lgkmcnt(0)" % (UP + len(pre)))
    if before: before(a)
    a("s_barrier")
    def wr(j):
        o = []
        for t in range(6):
            q, r = divmod(wpos(layout, 18*t + j), 64)
            o.append("ds_read_b128 v[%d:%d], v%d offset:%d" % (WB+24*(j % 3)+4*t, WB+24*(j % 3)+4*t+3, (V_L16, 5, 6)[q], 1024*r))
        return o
    for x in early: a(x)
    if each: each(lambda: [a(x) for x in wr(0) + wr(1)])
    else:
        for x in wr(0) + wr(1): a(x)
    if init: init()
    a("s_waitcnt vmcnt(%d)" % (UP-1))
    fr = lambda j: range(AF+4*j, AF+4*j+4)
    for x in tag_ops(fr(0), 30): a(x)
    tag_branch(a, [loads[0]], fr(0), 30, loads[1:UP])
    if after: after(a)
    for j in range(18):
        ex = lambda q: min(len(extra), max(0, (q-9)*len(extra)//8))
        issued = min(18, UP+j) + ex(j)
        a("s_waitcnt vmcnt(%d) lgkmcnt(%d)" % (issued - 1 - min(j+1, 17), 6 if j < 17 else 0))
        if j in (0, 9): a.stamp(stamp + "_k%d" % j)
        ms = [mfma(ACC+4*t, WB+24*(j % 3)+4*t, AF+4*j, None if j == 0 and not init else ACC+4*t) for t in range(6)]
        fill = ([loads[UP+j]] if UP+j < 18 else []) + (tag_ops(fr(j+1), 30) if j < 17 else []) + (wr(j+2) if j < 16 else []) + list(extra[ex(j):ex(j+1)])
        interleave(a, ms, fill)
        if j < 17: tag_branch(a, [loads[j+1]], fr(j+1), 30, loads[j+2:UP+j+1], drain=ex(j+1) > 0)

FP2Q = "s_mov_b32 s46, %d\nbuffer_load_dwordx4 v[16:19], v%d, s[%d:%d], s46 offen sc1" % (FP2_OFF, V_L16, R_WS, R_WS+3)

def marks2(a):
    L = a.newlabel("Lm2")
    a("s_cmp_lg_u32 s%d, 0" % S_WAVE); a("s_cbranch_scc1 %s_x" % L)
    a("s_mov_b32 s47, 100000")
    a.label(L)
    for r in range(4): a("v_xor_b32 v%d, s%d, v%d" % (16+r, S_NONCE, 16+r))
    a("v_or3_b32 v16, v16, v17, v18"); a("v_or_b32 v16, v16, v19"); a("v_cmp_ne_u32 vcc, 0, v16"); a("s_cbranch_vccz %s_x" % L)
    a(FP2Q); a("s_waitcnt vmcnt(0)")
    a("s_sub_u32 s47, s47, 1"); a("s_cbranch_scc0 %s" % L)
    a.label(L + "_x")

def publish2(a, vt):
    L = a.newlabel("Lmp"); a("s_cmp_lg_u32 s%d, 0" % S_WAVE); a("s_cbranch_scc1 %s" % L); a.set_mark(vt, FP2_OFF); a.label(L)

def wflags(a, first, va, vd):
    a("s_mul_i32 s46, s65, 18"); a("s_add_u32 s46, s46, %d" % (FS + first))
    a("v_min_u32 v%d, 17, v%d" % (va, V_LANE)); a("v_add_u32 v%d, s46, v%d" % (va, va)); a("v_lshlrev_b32 v%d, 7, v%d" % (va, va))
    a("buffer_load_dword v%d, v%d, s[%d:%d], 0 offen offset:%d sc1" % (vd, va, R_WS, R_WS+3, FLAG0))

def phase345(a):
    a("s_mov_b32 s50, s74"); a("s_mov_b32 s51, s75"); a("s_mov_b32 s53, s76")
    a("s_cmp_ge_u32 s51, 6"); a("s_cbranch_scc1 L_p3_helper")
    a("v_add_u32 v5, 65536, v%d" % V_L16); a("v_add_u32 v6, 131072, v%d" % V_L16)
    a("s_mul_i32 s46, s%d, %d" % (S_WAVE, 1024*NE)); a("v_add_u32 v7, s46, v%d" % V_L16)
    a("s_mul_i32 s46, s%d, %d" % (S_WAVE, 1024*(27-NE))); a("v_add_u32 v8, s46, v%d" % V_L16)
    a("v_add_u32 v62, %d, v7" % (112*1024)); a("v_add_u32 v63, %d, v8" % (52*1024))
    LAY4, LAY5 = (0, 52), (112, 0)
    a("s_mul_i32 s54, s53, 18432")
    a("s_mul_i32 s55, s51, 3072"); a("s_add_u32 s55, s55, s54")
    a("v_lshlrev_b32 v9, 7, v%d" % V_LANE)
    a("s_lshl_b32 s46, s51, 2"); a("s_add_u32 s46, s46, s%d" % S_WAVE); a("s_mul_i32 s46, s46, 3072"); a("s_mul_i32 s78, s50, 73728"); a("s_add_u32 s78, s78, s46")
    def w2(i0, i1, sb=72, ab=AW2):
        return [("s_add_u32 s59, s%d, %d\n" % (sb, 1024*(i & ~3)) if (i % 4 == 0 or i == i0) else "") +
                "buffer_load_dwordx4 a[%d:%d], v%d, s[%d:%d], s59 offen offset:%d sc1" % (ab+4*i, ab+4*i+3, V_L16, R_WS, R_WS+3, 1024*(i & 3)) for i in range(i0, i1)]
    def park(ab, lay, late):
        if late: return ["ds_write_b128 v%d, a[%d:%d] offset:%d" % (63 if lay[1] else 8, ab+4*i, ab+4*i+3, 1024*(i - NE)) for i in range(NE, 27)]
        return ["ds_write_b128 v%d, a[%d:%d] offset:%d" % (62 if lay[0] else 7, ab+4*i, ab+4*i+3, 1024*i) for i in range(NE)]
    def aloads(off):
        for q in range(5): a("s_add_u32 s%d, s54, %d" % (60+q, off + 4096*q))
        return ["buffer_load_dwordx4 v[%d:%d], v%d, s[%d:%d], s%d offen offset:%d sc1" % (AF+4*j, AF+4*j+3, V_L16, R_WS, R_WS+3, 60+(j >> 2), 1024*(j & 3)) for j in range(18)]
    def ostores(src, off):
        a("s_add_u32 s46, s55, %d" % off)
        for jj in range(3): a("buffer_store_dwordx4 v[%d:%d], v%d, s[%d:%d], s46 offen offset:%d sc1" % (src+4*jj, src+4*jj+3, V_L16, R_WS, R_WS+3, 1024*jj))
    a("s_lshl_b32 s46, s53, 4"); a("v_add_u32 v20, s46, v%d" % V_R); a("s_mov_b32 s47, 18432")
    for k, sh in enumerate((1, -1, 2, -2)):
        a("v_subrev_u32 v21, %d, v20" % sh); a("v_ashrrev_i32 v22, 4, v21"); a("v_mul_lo_u32 v22, v22, s47")
        a("v_and_b32 v21, 15, v21"); a("v_lshl_add_u32 v21, v%d, 4, v21" % V_G); a("v_lshl_add_u32 v%d, v21, 4, v22" % (56+k))
    a("v_cmp_gt_u32 vcc, 32, v%d" % V_LANE); a("v_cndmask_b32 v60, v57, v56, vcc"); a("v_cndmask_b32 v61, v59, v58, vcc")
    def init3():
        for k in range(12):
            a("v_lshlrev_b32 v%d, 16, v%d" % (ACC+2*k, XT+k)); a("v_and_b32 v%d, 0xffff0000, v%d" % (ACC+2*k+1, XT+k))
    N2 = int(os.environ.get("N2", 0))
    n3 = max(N2, NE)
    gemm96(a, aloads(O_OFF), [pf_lds(0), pf_lds(1)] + w2(W1N, 27, 71, AW1) + w2(0, N2), SLEEP0["p3"] if N2 < 8 else 0, stamp="p3", extra=w2(N2, n3), early=park(AW1, LAY4, False), init=init3)
    a.stamp("p3_gemm")
    a(FP2Q)
    for k in range(12): a("v_cvt_pk_bf16_f32 v%d, v%d, v%d" % (HK+k, ACC+2*k, ACC+2*k+1))
    ostores(HK, H_OFF)
    out_stats(a, HK, 12, 10, SH_OFF)
    a.stamp("p3_epi")
    if a.stop == 3: a("s_waitcnt vmcnt(0)"); a("s_branch L_fin")
    for r in range(4): a("v_mov_b32 v%d, s%d" % (20+r, S_ONES))
    cs = [mfma(WB+4*(i//9), AW1+4*i, 20, None if i % 9 == 0 else WB+4*(i//9), ta="a") for i in range(27)]
    a("s_mul_i32 s46, s%d, 192" % S_WAVE); a("s_add_u32 s46, s46, %d" % (48*1024)); a("v_lshl_add_u32 v24, v%d, 4, s46" % V_G)
    g = G(); interleave(g, [cs[(i % 3)*9 + i//3] for i in range(27)], park(AW1, LAY4, True))
    st4 = g.lines
    st4 += ["s_nop 7"] + ["ds_write_b128 v24, v[%d:%d] offset:%d" % (WB+4*k, WB+4*k+3, 64*k) for k in range(3)]
    CS = 232
    sl = stats_loads(a, SH_OFF, 53, 10); a("s_mov_b32 s65, s46"); sl = [x.replace("s46", "s65") for x in sl]
    def fin4(wreads):
        a("v_lshlrev_b32 v24, 4, v%d" % V_G)
        for k in range(12): a("ds_read_b128 v[%d:%d], v24 offset:%d" % ((CS if k % 2 == 0 else ACC)+4*(k//2), (CS if k % 2 == 0 else ACC)+4*(k//2)+3, 48*1024 + 64*k))
        wreads()
        a("s_waitcnt vmcnt(%d)" % UP)
        for x in tag_ops(range(10, 14), 30): a(x)
        tag_branch(a, sl, range(10, 14), 30, al4[:UP])
        stats_finish(a, 10, VMEAN, VRSTD)
        a("v_mul_f32 v12, v%d, v%d" % (VRSTD, VRSTD)); a("v_mul_f32 v12, v12, v11"); a("v_add_f32 v12, %d, v12" % f32(1e-5))
        a("v_rsq_f32 v12, v12"); a("v_mul_f32 v16, %d, v%d" % (f32(GS), VRSTD)); a("v_mul_f32 v16, v12, v16"); a("v_mul_f32 v17, v16, -v%d" % VMEAN)
        a("s_waitcnt lgkmcnt(12)")
        for k in range(12): a("v_pk_add_f32 v[%d:%d], v[%d:%d], v[%d:%d]" % (CS+2*k, CS+2*k+1, CS+2*k, CS+2*k+1, ACC+2*k, ACC+2*k+1))
        for k in range(12): a("v_pk_mul_f32 v[%d:%d], v[%d:%d], v[16:17] op_sel:[0,1] op_sel_hi:[1,1]" % (CS+2*k, CS+2*k+1, CS+2*k, CS+2*k+1))
    if "d_mid" in ABL: a("s_sleep 64")
    al4 = aloads(H_OFF)
    gemm96(a, al4, st4, SLEEP0["p4"], pre=sl, each=fin4, stamp="p4", extra=w2(n3, 27), layout=LAY4, before=marks2)
    a.stamp("p4_gemm")
    gelu_consts(a)
    for k in range(12): a("v_pk_fma_f32 v[%d:%d], v[%d:%d], v[16:17], v[%d:%d] op_sel_hi:[1,0,1]" % (ACC+2*k, ACC+2*k+1, ACC+2*k, ACC+2*k+1, CS+2*k, CS+2*k+1))
    g = G(); gelu_pk(g, [ACC+2*k for k in range(12)], AF)
    interleave(a, g.lines, park(AW2, LAY5, False))
    for k in range(12): a("v_cvt_pk_bf16_f32 v%d, v%d, v%d" % (OS+k, ACC+2*k, ACC+2*k+1))
    ostores(OS, T_OFF)
    a.stamp("p4_epi")
    if a.stop == 4: a("s_waitcnt vmcnt(0)"); a("s_branch L_fin")
    a.srd(R_A, S_WS, ACT, T_OFF)
    for q in range(5): a("s_mov_b32 s%d, %d" % (70+q, 4096*q))
    def vsel(j): return 56 if j < 4 else 60 if j == 4 else 57 if j < 9 else 58 if j < 13 else 61 if j == 13 else 59
    tl = ["buffer_load_dwordx4 v[%d:%d], v%d, s[%d:%d], s%d offen offset:%d sc1" % (AF+4*j, AF+4*j+3, vsel(j), R_A, R_A+3, 70+(j >> 2), 1024*(j & 3)) for j in range(18)]
    roles6(a)
    wflags(a, 54, 54, 55)
    a("s_waitcnt vmcnt(4)")
    def init5():
        a("v_mul_f32 v17, v%d, -v%d" % (VRSTD, VMEAN)); a("v_mov_b32 v16, v%d" % VRSTD)
        for k in range(12):
            a("v_lshlrev_b32 v%d, 16, v%d" % (ACC+2*k, HK+k)); a("v_and_b32 v%d, 0xffff0000, v%d" % (ACC+2*k+1, HK+k))
        for k in range(12):
            a("v_pk_fma_f32 v[%d:%d], v[%d:%d], v[16:17], v[16:17] op_sel:[0,0,1] op_sel_hi:[1,0,1]" % (ACC+2*k, ACC+2*k+1, ACC+2*k, ACC+2*k+1))
    gemm96(a, tl, park(AW2, LAY5, True), SLEEP0["p5"], stamp="p5", layout=LAY5, init=init5)
    a.stamp("p5_gemm")
    for k in range(12): a("v_cvt_pk_bf16_f32 v%d, v%d, v%d" % (OS+k, ACC+2*k, ACC+2*k+1))
    ostores(OS, X1_OFF)
    out_stats(a, OS, 12, 10, SX_OFF)
    a.stamp("p5_epi")
    a("s_branch L_p5_pre")
    a.label("L_p3_helper")
    if "d_h3" in ABL: a("s_sleep 64")
    a("s_cmp_ge_u32 s48, 144"); a("s_cbranch_scc1 L_p3_touch")
    a("s_barrier")
    a(pf_lds(0)); a(pf_lds(1))
    swizzle_setup(a)
    a("s_add_u32 s48, s48, 54")
    for p in range(3):
        sw_big(a, 48, 60+3*p)
        a("s_lshl_b32 s53, s52, 10"); a("s_add_u32 s%d, s%d, s53" % (60+3*p, 60+3*p)); a("s_add_u32 s%d, s48, %d" % (62+3*p, FS))
        a("s_add_u32 s48, s48, 1")
    a("s_waitcnt vmcnt(0)"); a("s_barrier")
    for p in range(3): sw_process(a, p, W_LDS + 36864*p)
    a("s_waitcnt vmcnt(0)"); a("s_barrier")
    sw_flags(a, range(3))
    a.stamp("h_w3")
    a.label("L_p3_touch")
    roles6(a)
    NL = (SW << LCH)//128//32
    a("s_lshr_b32 s46, s65, %d" % LCH); a("s_mul_i32 s46, s46, %d" % (SW << LCH))
    a("s_and_b32 s47, s74, 3"); a("s_lshl_b32 s47, s47, 1"); a("s_add_u32 s47, s47, s75"); a("s_sub_u32 s47, s47, 6")
    if "xcd4" not in ABL:
        NL = BW//128//256
        a("s_mov_b32 s46, 0"); a("s_lshl_b32 s47, s74, 1"); a("s_add_u32 s47, s47, s75"); a("s_sub_u32 s47, s47, 6")
    a("s_lshl_b32 s47, s47, 2"); a("s_add_u32 s47, s47, s%d" % S_WAVE); a("s_mul_i32 s47, s47, %d" % (128*NL)); a("s_add_u32 s46, s46, s47")
    a.srd(R_A, S_W4, BW)
    a("v_lshlrev_b32 v10, 7, v%d" % V_LANE)
    for q in range(-(-NL//64) if "late4" not in ABL else 0):
        if NL - 64*q < 64: a("s_bfm_b64 exec, %d, 0" % (NL - 64*q))
        a("buffer_load_dword v11, v10, s[%d:%d], s46 offen" % (R_A, R_A+3)); a("s_add_u32 s46, s46, 8192")
    a("s_mov_b64 exec, -1")
    a.stamp("h_w4")
    wflags(a, 54, 54, 55)
    a(FP2Q)
    a("s_waitcnt vmcnt(0)")
    marks2(a)
    a.label("L_p5_pre")
    a.label("L_p5_done")
    a.stamp("p5_done")

WFL = os.environ.get("WFL", " sc1")
OFL = os.environ.get("OFL", "")
LCH = int(os.environ.get('LCH', 1))
RING = 184

def roles6(a):
    L = LCH
    a("s_lshr_b32 s46, s%d, %d" % (S_XCD, 3-L)); a("s_lshl_b32 s64, s46, %d" % (5-L)); a("s_lshr_b32 s67, s%d, %d" % (S_SLOT, L)); a("s_add_u32 s64, s64, s67")
    a("s_and_b32 s67, s67, 7")
    a("s_mov_b32 s67, 0")
    a("s_and_b32 s46, s%d, %d" % (S_XCD, (8 >> L) - 1)); a("s_lshl_b32 s65, s46, %d" % L); a("s_and_b32 s46, s%d, %d" % (S_SLOT, (1 << L) - 1)); a("s_add_u32 s65, s65, s46")
    a("s_lshl_b32 s46, s65, 2"); a("s_add_u32 s46, s46, s%d" % S_WAVE); a("s_mul_i32 s66, s46, %d" % (9*18432)); a("s_add_u32 s66, s66, %d" % W3_S)

def wload(j, s=58, ring=("a", RING)):
    o = "s_add_u32 s%d, s%d, 4096\n" % (s, s) if (j and j % 4 == 0) else ""
    return o + ("buffer_load_dwordx4 %s[%d:%d], v%d, s[%d:%d], s%d offen offset:%d" + WFL) % (ring[0], ring[1]+4*j, ring[1]+4*j+3, V_L16, R_WS, R_WS+3, s, 1024*(j & 3))

def ring_prefill(a, s):
    a("s_mul_i32 s%d, s67, 18432" % s); a("s_add_u32 s%d, s%d, s66" % (s, s))
    return [wload(j, s) for j in range(18)]

def norm_dot(x, t):
    o = []
    for r in range(4): o += ["v_dot2_f32_bf16 v%d, v%d, v%d, v17" % (t+2*r+h, x+r, 16+2*h) for h in range(2)]
    return o + ["v_cvt_pk_bf16_f32 v%d, v%d, v%d" % (x+r, t+2*r, t+2*r+1) for r in range(4)]

def phase6(a):
    AC, PK, RB, GT, XR = 40, 72, 80, 136, 64
    HB = 73728
    def xf(T, j):
        f = 4*j + T
        return ("a", 4*f) if f < 46 else ("v", 152 + 4*(f-46))
    a("s_mov_b32 s50, s64"); a("s_mov_b32 s51, s65"); a("s_mov_b32 s54, s66"); a("s_mov_b32 s52, s67")
    a("s_lshl_b32 s53, s50, 2"); a("s_add_u32 s53, s53, s%d" % S_WAVE)
    a("s_mul_i32 s56, s50, 72"); a("s_add_u32 s56, s56, s51"); a("s_lshl_b32 s56, s56, 2"); a("s_add_u32 s56, s56, s%d" % S_WAVE)
    a("s_lshl_b32 s56, s56, 11"); a("s_add_u32 s56, s56, %d" % PART)
    a("s_mul_i32 s46, s53, 18432")
    for q in range(5): a("s_add_u32 s%d, s46, %d" % (70+q, X1_OFF + 4096*q))
    a("s_mul_i32 s46, s%d, 18432" % S_WAVE); a("v_add_u32 v5, s46, v%d" % V_L16)
    sl = stats_loads(a, SX_OFF, 53, 10)
    a("s_mov_b32 s60, s46")
    sl = [x.replace("s46", "s60") for x in sl]
    a("v_mov_b32 v28, 0")
    a("global_load_dword v29, v28, s[%d:%d] sc1" % (S_DBG, S_DBG+1))
    L = a.newlabel("Lh")
    a("s_cmp_lg_u32 s%d, 0" % S_WAVE); a("s_cbranch_scc1 %s" % L)
    a("v_cmp_ne_u32 vcc, s%d, v55" % S_NONCE); a("s_cbranch_vccz %s" % L)
    a("v_lshrrev_b32 v54, 7, v54")
    a.poll(54, 55, sleep0=0)
    a.label(L)
    a("s_barrier")
    pre = ring_prefill(a, 59)
    NP = SLEEP0["p6"]
    for x in pre[:NP]: a(x)
    a.stamp("p6_ready")
    a("s_mov_b32 s79, 50000")
    for x in sl: a(x)
    def xload(j): return "buffer_load_dwordx4 v[%d:%d], v%d, s[%d:%d], s%d offen offset:%d sc1" % (XR+4*j, XR+4*j+3, V_L16, R_WS, R_WS+3, 70+(j >> 2), 1024*(j & 3))
    for j in range(UP): a(xload(j))
    a("v_add_u32 v32, 36864, v%d" % V_L16); a("v_add_u32 v33, %d, v%d" % (HB, V_L16)); a("v_add_u32 v34, %d, v%d" % (HB+36864, V_L16))
    a("s_lshr_b32 s46, s%d, 1" % S_WAVE); a("s_lshl_b32 s46, s46, 12"); a("s_and_b32 s47, s%d, 1" % S_WAVE); a("s_lshl_b32 s47, s47, 3")
    a("s_add_u32 s46, s46, s47"); a("v_add_u32 v35, s46, v33")
    gelu_consts(a)
    R3, ST, SEL, RS = 12, 32, 6, RB+24
    def natsel(d, sr, bit, t):
        o = ["s_bfe_u32 s66, s%d, %d" % (sr, 0x10000 + bit), "s_lshl_b32 s66, s66, 1", "v_lshrrev_b32 v%d, 3, v%d" % (t, V_R), "v_add_u32 v%d, s66, v%d" % (t, t),
             "v_cmp_eq_u32 s[66:67], v%d, v%d" % (t, V_G), "v_and_b32 v%d, 1, v%d" % (t, V_R), "v_lshlrev_b32 v%d, 4, v%d" % (t, t),
             "v_mov_b32 v%d, 0x3f80" % (t+1), "v_lshlrev_b32 v%d, v%d, v%d" % (t+1, t, t+1), "v_cndmask_b32 v%d, 0, v%d, s[66:67]" % (t+1, t+1),
             "v_bfe_u32 v%d, v%d, 1, 2" % (t, V_R)]
        for k in range(4): o += ["v_cmp_eq_u32 s[66:67], %d, v%d" % (k, t), "v_cndmask_b32 v%d, 0, v%d, s[66:67]" % (d+k, t+1)]
        return o
    a("v_lshrrev_b32 v26, 2, v%d" % V_R); a("v_cmp_eq_u32 s[64:65], v26, v%d" % V_G)
    a("v_and_b32 v26, 1, v%d" % V_R); a("v_lshlrev_b32 v26, 4, v26"); a("v_mov_b32 v27, 0x3f80"); a("v_lshlrev_b32 v27, v26, v27")
    a("v_cndmask_b32 v27, 0, v27, s[64:65]"); a("v_and_b32 v26, 2, v%d" % V_R); a("v_cmp_eq_u32 vcc, 0, v26")
    a("v_cndmask_b32 v%d, 0, v27, vcc" % (SEL+2)); a("v_cndmask_b32 v%d, v27, 0, vcc" % (SEL+3))
    for r in (0, 1): a("v_mov_b32 v%d, 0" % (SEL+r))
    for x in natsel(36, S_WAVE, 0, 26): a(x)
    def bload(reg, s, off=0, t="a"): return "buffer_load_dwordx4 %s[%d:%d], v%d, s[%d:%d], s%d offen offset:%d sc1" % (t, reg, reg+3, V_L16, R_WS, R_WS+3, s, off)
    a("s_waitcnt vmcnt(%d)" % UP)
    for x in tag_ops(range(10, 14), 30): a(x)
    tag_branch(a, sl, range(10, 14), 30, [xload(j) for j in range(UP)])
    a.stamp("p6_st")
    stats_finish(a, 10, 17, 16)
    a("v_mul_f32 v16, s48, v16"); a("v_cvt_pk_bf16_f32 v16, v16, 0"); a("v_lshlrev_b32 v18, 16, v16"); a("v_mul_f32 v17, v18, -v17")
    a("s_mul_i32 s60, s50, 73728")
    a("s_lshl_b32 s46, s51, 1"); a("s_lshr_b32 s47, s%d, 1" % S_WAVE); a("s_add_u32 s46, s46, s47"); a("s_lshl_b32 s46, s46, 10"); a("s_add_u32 s78, s46, s60")
    order = [("x", j) for j in range(UP)]
    todo = [("x", j) for j in range(UP, 18)] + [("w", j) for j in range(NP, 18)]
    for j in range(0, 18, 2):
        a("s_waitcnt vmcnt(%d)" % (len(order) - 1 - order.index(("x", j+1))))
        for x in tag_ops(range(XR+4*j, XR+4*j+8), 30): a(x)
        n = 2 if j < 10 else -(-len(todo)//(9 - j//2))
        for k, q in todo[:n]:
            a(xload(q) if k == "x" else pre[q]); order.append((k, q))
        del todo[:n]
        later = [q for k, q in order if k == "x" and q > j+1]
        tag_branch(a, [xload(j), xload(j+1)], range(XR+4*j, XR+4*j+8), 30, [xload(q) for q in later], drain=order[-1][0] == "w")
        if j in (8, 16): a.stamp("p6_x%d" % (j+1))
        n0, n1 = norm_dot(XR+4*j, 20), norm_dot(XR+4*j+4, 40)
        for x in n0[:8] + n1[:8] + n0[8:]: a(x)
        a("ds_write_b128 v5, v[%d:%d] offset:%d" % (XR+4*j, XR+4*j+3, 1024*j))
        for x in n1[8:]: a(x)
        a("ds_write_b128 v5, v[%d:%d] offset:%d" % (XR+4*j+4, XR+4*j+7, 1024*j+1024))
    assert not todo
    LT = 1 if "late4" in ABL else 0
    if LT:
        a.srd(R_A, S_W4, BW)
        a("s_lshl_b32 s46, s2, 2"); a("s_add_u32 s46, s46, s%d" % S_WAVE); a("s_mul_i32 s46, s46, %d" % (41*128))
        a("v_lshlrev_b32 v30, 7, v%d" % V_LANE); a("s_bfm_b64 exec, 41, 0")
        a("buffer_load_dword v31, v30, s[%d:%d], s46 offen" % (R_A, R_A+3))
        a("s_mov_b64 exec, -1")
    a("v_readfirstlane_b32 s%d, v29" % S_NONCE)
    for r in (4, 5): a("v_mov_b32 v%d, 0" % (SEL+r))
    a("s_waitcnt lgkmcnt(0)"); a("s_barrier")
    a.stamp("p6_x")
    def fread(j, va):
        o = []
        for T in range(4):
            t, r = xf(T, j)
            o.append("ds_read_b128 %s[%d:%d], v%d offset:%d" % (t, r, r+3, va[T >> 1], (T & 1)*18432 + 1024*j))
        return o
    def gelu(ac):
        b = gelu_poly([ac+2*k for k in range(8)], GT)
        o = []
        for T in range(4):
            x = ac + 4*T; t = GT + 4*T
            o += ["v_exp_f32 v%d, -v%d" % (t+i, t+i) for i in range(4)]
            o += ["v_fma_f32 v%d, v%d, s48, s48" % (t+i, t+i) for i in range(4)]
            o += ["v_rcp_f32 v%d, v%d" % (t+i, t+i) for i in range(4)]
            o += ["v_mul_f32 v%d, v%d, v%d" % (t+i, t+i, x+i) for i in range(4)]
            o += ["v_cvt_pk_bf16_f32 v%d, v%d, v%d" % (PK+2*T+h, t+2*h, t+2*h+1) for h in range(2)]
            o.append("ds_write_b64 v5, v[%d:%d] offset:%d" % (PK+2*T, PK+2*T+1, 1024*T))
        return b, o
    def wt(op): return 2 if op.startswith(("v_exp", "v_rcp")) else min(2, len(op.split("\n")))
    RA = ("a", RING); RBB = ("v", RB)
    def subpass(ac, fill, first=None, loads=None, at=None, ring=RA, depth=18, batch=(), head=(), c0=None, more=None):
        if "p6nogelu" in ABL and len(fill) > 20: fill = []; batch = ()
        if "p6nost" in ABL: fill = [x for x in fill if "buffer_store" not in x]
        fill = list(fill); head = list(head)
        seq = [(2*p + q, T) for p in range(9) for T in range(4) for q in range(2)]
        LA = 12
        rd = [fread(j, first)[T] for j, T in seq] if first else []
        for x in rd[:LA]: a(x)
        def wait(m):
            w = []
            if m % 8 == 0: w.append("vmcnt(%d)" % (depth - 2 + (more(m//4 - 1) if more else 0)))
            if first and m % 2 == 0: w.append("lgkmcnt(%d)" % max(0, min(LA, 72 - m) - 2))
            return "s_waitcnt " + " ".join(w) if w else None
        for m, (j, T) in enumerate(seq):
            if wait(m): a(wait(m))
            if at and m % 4 == 0 and m//4 in at: at[m//4]()
            t, r = xf(T, j)
            a(mfma(ac+4*T, ring[1]+4*j, r, (None if c0 is None else c0+4*T) if j == 0 else ac+4*T, ta=ring[0], tb=t))
            room = 2
            if m + LA < len(rd): a(rd[m + LA]); room -= 1
            if m < 3:
                n = (len(head) + 2 - m)//(3 - m)
                for x in head[:n]: a(x)
                del head[:n]
            if m == 3:
                for x in batch: a(x)
            if T == 3:
                ld = "" if ("p6nold" in ABL and loads is None) else (loads(j) if loads else
                     ("buffer_load_dwordx4 a[%d:%d], v%d, s[%d:%d], s58 offen offset:%d" + WFL) % (RING+4*j, RING+4*j+3, RB+3+(j >> 2) if j > 3 else V_L16, R_WS, R_WS+3, 1024*(j & 3)))
                if ld: a(ld); room -= len(ld.split("\n"))
            if m < 71 and wait(m+1): room -= 1
            if m < 4: continue
            later = sum(2 - (q % 8 >= 6) - (q % 8 == 7 and q < 71) for q in range(m+1, 72))
            while fill and (wt(fill[0]) <= room or sum(wt(x) for x in fill) > later):
                room -= wt(fill[0]); a(fill.pop(0))
        assert not fill
    def nexttile():
        return ["s_mov_b32 s62, s61", "s_add_u32 s61, s61, 1", "s_add_u32 s54, s54, 18432", "s_mov_b32 s58, s54",
                "s_lshl_b32 s46, s62, 13", "v_add_u32 v5, s46, v35"]
    a("s_mov_b32 s61, 0"); a("s_add_u32 s54, s54, 18432"); a("s_mov_b32 s58, s54")
    for q in range(1, 5): a("v_add_u32 v%d, %d, v%d" % (RB+3+q, 4096*q, V_L16))
    res = ["s_add_u32 s62, s78, %d\n" % ((X1_OFF, H_OFF)[j >> 2] + 18432*(j & 3)) + bload(RS+4*j, 62, t="v") for j in range(8)]
    def resadd():
        for k in range(2):
            for T in range(4): a(mfma(R3+4*T, 36, RS+16*k+4*T, None if k == 0 else R3+4*T))
    subpass(AC, [], first=(V_L16, 32), at={2*j+1: (lambda j=j: a(res[j])) for j in range(8)}, more=lambda j: min((j+1)//2, 8) + LT)
    if "d_line" in ABL:
        for q in range(1024): a("v_mov_b32_e64 v%d, v1" % (30 + (q & 1)))
    if "d_loop" in ABL:
        L = a.newlabel("Ld"); a("s_mov_b32 s46, 16"); a.label(L)
        for q in range(64): a("v_mov_b32_e64 v%d, v1" % (30 + (q & 1)))
        a("s_sub_u32 s46, s46, 1"); a("s_cmp_lg_u32 s46, 0"); a("s_cbranch_scc1 %s" % L)
    a.stamp("p6_p0")
    WF, DA, TA = RING+48, RB+16, RB+22
    a.srd(R_B, S_W4, BW + 4096, -4096)
    a("v_lshrrev_b32 v30, 3, v%d" % V_LANE); a("v_bfe_u32 v31, v%d, 4, 1" % V_LANE); a("v_lshlrev_b32 v31, 1, v31")
    a("v_and_b32 v%d, 7, v%d" % (TA, V_LANE)); a("v_xor_b32 v31, v31, v%d" % TA); a("v_mul_u32_u24 v30, 1152, v30")
    a("v_lshl_add_u32 v%d, v31, 4, v30" % DA); a("v_xor_b32 v31, 4, v31"); a("v_lshl_add_u32 v%d, v31, 4, v30" % (DA+1))
    for q in (5, 4, 3, 2, 1, 0): a("v_add_u32 v%d, %d, v%d" % (DA+q, 9216*q - 1024*(q % 3) + 4096, DA + (q & 1)))
    a("v_lshrrev_b32 v30, 2, v%d" % V_R); a("v_lshl_add_u32 v31, v%d, 3, v30" % V_G); a("v_lshlrev_b32 v31, 7, v31")
    a("v_lshrrev_b32 v30, 1, v30"); a("v_and_b32 v%d, 1, v%d" % (TA, V_G)); a("v_lshl_add_u32 v30, v%d, 1, v30" % TA)
    a("v_xor_b32 v30, s%d, v30" % S_WAVE); a("v_lshl_add_u32 v31, v30, 5, v31"); a("v_and_b32 v30, 3, v%d" % V_R)
    a("v_lshl_add_u32 v%d, v30, 3, v31" % TA)
    a("s_mul_i32 s55, s51, 12"); a("s_add_u32 s55, s55, s%d" % S_WAVE); a("s_mul_i32 s55, s55, %d" % (48*1152))
    a("s_mul_i32 s63, s%d, 6144" % S_WAVE)
    a("s_barrier")
    for r in range(4): a("v_mov_b32 v%d, -1" % (RB+r))
    def marker(p):
        def f():
            L = a.newlabel("Lmk"); a("s_cmp_lt_u32 s59, 2"); a("s_cbranch_scc0 %s" % L)
            if p == 0: a("s_add_u32 s46, s51, s59"); a("s_add_u32 s46, s46, 6"); a("s_and_b32 s46, s46, 7"); a("s_lshl_b32 s46, s46, 16"); a("s_add_u32 s77, s46, s56")
            a("buffer_store_dwordx4 v[%d:%d], v%d, s[%d:%d], s77 offen offset:%d sc1" % (RB, RB+3, V_L16, R_WS, R_WS+3, 1024*p))
            a.label(L)
        return f
    a("s_mov_b32 s59, 0")
    a.label("L_p6_a")
    for half in (1, 0):
        b, o = gelu(AC+16*(1-half))
        subpass(AC+16*half, o, batch=b, head=nexttile(), at={8: marker(1-half)})
    a("s_add_u32 s59, s59, 1"); a("s_cmp_lt_u32 s59, 3"); a("s_cbranch_scc1 L_p6_a")
    b, o = gelu(AC)
    subpass(AC+16, o, batch=b, head=nexttile(), at={9: resadd})
    CH = 24576
    def slot(n): return n if n < 3 else (0, 3, 1, 4, 2, 5)[(n - 3) % 6]
    def src(c, s): return "s_add_u32 s58, s%d, %d" % (s, 192*1152*c)
    def dma(n, s):
        o = []
        for q in range(6):
            pre = src(n % 3, s) + "\n" if q == 0 else ""
            if q % 3 == 0: pre = "s_add_u32 m0, s63, %d\n" % (CH*slot(n) + 1024*q) + (pre or "s_nop 0\n")
            o.append(pre + "buffer_load_dwordx4 v%d, s[%d:%d], s58 offen offset:%d lds" % (DA+q, R_B, R_B+3, 1024*(q % 3)))
        return o
    def origin(d, step):
        if step == 0: return ["s_add_u32 s%d, s55, 1024" % d]
        return ["s_add_u32 s46, s51, %s" % step, "s_and_b32 s46, s46, 7", "s_lshl_b32 s46, s46, 7", "s_add_u32 s%d, s55, s46" % d]
    for x in origin(64, 0) + origin(65, 1): a(x)
    d012 = dma(0, 64) + dma(1, 64) + dma(2, 64)
    b, o = gelu(AC+16)
    subpass(AC, o, batch=b, head=nexttile(), loads=lambda j: d012[j])
    a("s_lshl_b32 s46, s61, 13"); a("v_add_u32 v5, s46, v35")
    a("s_waitcnt vmcnt(12) lgkmcnt(0)"); a("s_barrier")
    a.stamp("p6_a")
    def pstore(ac):
        o = ["v_cvt_pk_bf16_f32 v%d, v%d, v%d" % (PK+k, ac+2*k, ac+2*k+1) for k in range(8)]
        o += ["buffer_store_dwordx4 v[%d:%d], v%d, s[%d:%d], s62 offen offset:%d sc1" % (PK+4*p, PK+4*p+3, V_L16, R_WS, R_WS+3, 1024*p) for p in range(2)]
        return o
    def dest(step):
        if step == 0: return ["s_add_u32 s62, s56, %d" % (8*65536)]
        return ["s_add_u32 s46, s51, %s" % step, "s_and_b32 s46, s46, 7", "s_lshl_b32 s46, s46, 16", "s_add_u32 s62, s46, s56"]
    def wf(pp): return (RB, RB+8, ST)[pp % 3]
    def wread(n, p):
        o = ["v_add_u32 v%d, %d, v%d" % (TA+1, CH*slot(n), TA)] if p == 0 else []
        pp = 3*n + p
        return o + ["ds_read_b64_tr_b16 v[%d:%d], v%d offset:%d" % (wf(pp)+4*q+2*hh, wf(pp)+4*q+2*hh+1, TA+1, 4096*(2*p+q) + 512*hh) for q in range(2) for hh in range(2)]
    def step(s, ac, fill, head=(), first=None, c0=None, before={}, after={}, at={}, batch=(), hurry=None, evens=()):
        if "p6nost" in ABL: fill = [x for x in fill if "buffer_store" not in x]
        if "p6nold" in ABL: after = {k: [x for x in v if " lds" not in x] or ["s_nop 0"] for k, v in after.items()}
        fill = list(fill); head = list(head); lg = list(step.lg); nfill = len(fill)
        seq = [(2*p + q, T) for p in range(9) for T in range(4) for q in range(2)]
        hr = ["ds_read_b128 %s[%d:%d], v%d offset:%d" % (xf(T, j)[0], xf(T, j)[1], xf(T, j)[1]+3, first[j//9], 1024*(4*(j % 9) + T)) for j, T in seq] if first else []
        def lds(x, tag):
            a(x)
            if x.startswith("ds_"): lg.append(tag)
        def upto(tag):
            if tag in lg:
                n = len(lg) - 1 - max(i for i, t in enumerate(lg) if t == tag)
                a("s_waitcnt lgkmcnt(%d)" % min(n, 15)); del lg[:len(lg) - min(n, 15)]
                return 1
            return 0
        for i, x in enumerate(hr[:8]): lds(x, ("h", i))
        extra = [(w - 72, x) for w, x in step.extra]
        for m, (j, T) in enumerate(seq):
            p, c = m//8, m//24
            room = 2
            if m % 24 == 8 and 3*s + c < 26:
                if c in before: before[c]()
                upto("x")
                if "p6nobar" not in ABL: a("s_barrier")
                assert not extra
                ex = after.get(c, []); extra = [(m + 24*k//len(ex), x) for k, x in enumerate(ex)]
            if m % 8 == 0:
                upto(("w", 9*s + p))
                nx = wread(3*s + (p+2)//3, (p+2) % 3) if 9*s + p < 79 else []
            if m % 2 == 0 and first: upto(("h", m+1))
            if m % 4 == 0 and m//4 in at: at[m//4]()
            t, r = xf(T, j)
            a(mfma(ac+4*T, wf(9*s+p)+4*(j & 1), r, (None if c0 is None else c0+4*T) if j == 0 else ac+4*T, tb=t))
            if nx:
                lds(nx.pop(0), ("w", 9*s + p + 2)); room -= 1
            if m + 8 < len(hr): lds(hr[m+8], ("h", m+8)); room -= 1
            if m < 3:
                n = (len(head) + 2 - m)//(3 - m)
                for x in head[:n]: a(x)
                del head[:n]
            while extra and extra[0][0] <= m:
                lds(extra.pop(0)[1], "x"); room -= 1
            if m % 2 == 0 and m//2 < len(evens): a(evens[m//2]); room -= 1
            if m == 3:
                for x in batch: a(x)
            if m >= 4:
                while fill and (wt(fill[0]) <= room or hurry and len(fill)*(hurry - 3) > nfill*(hurry - m)):
                    room -= wt(fill[0]); lds(fill.pop(0), "x")
        assert not fill
        step.lg = lg; step.extra = extra
    def mix(x, y): return [z for pair in zip(x, y) for z in pair]
    def vm(n): return lambda: a("s_waitcnt vmcnt(%d)" % n)
    def seq(*fs):
        def f():
            for x in fs: x()
        return f
    def wave(w, body):
        def f():
            L = a.newlabel("Lex"); a("s_cmp_lg_u32 s%d, %d" % (S_WAVE, w)); a("s_cbranch_scc1 %s" % L); body(); a.label(L)
        return f
    a("s_lshl_b32 s70, s50, 10"); a("s_add_u32 s70, s70, %d" % (FLAG0 + 128*FA)); a("s_lshl_b32 s46, s51, 7"); a("s_add_u32 s68, s70, s46")
    a("s_mul_i32 s46, s50, 9"); a("s_add_u32 s46, s46, s51"); a("s_lshl_b32 s46, s46, 16"); a("s_lshl_b32 s47, s%d, 11" % S_WAVE)
    a("s_add_u32 s46, s46, s47"); a("s_add_u32 s69, s46, %d" % PART)
    def publish(c):
        def f():
            a("s_add_u32 s46, s%d, %d" % (S_NONCE, c)); a("v_mov_b32 v29, s46"); a("s_mov_b64 exec, 1")
            a("buffer_store_dword v29, v28, s[%d:%d], s68 offen sc1" % (R_WS, R_WS+3))
            a("s_mov_b64 exec, -1")
        return wave(0, f)
    askq = "buffer_load_dword v31, v5, s[%d:%d], s70 offen sc1" % (R_WS, R_WS+3)
    ask = wave(0, lambda: a(askq))
    def need(c, n):
        def f():
            L = a.newlabel("Lcf")
            a("s_add_u32 s73, s%d, %d" % (S_NONCE, c)); a("s_mov_b32 s47, 100000"); a("s_waitcnt vmcnt(%d)" % n)
            a.label(L)
            a("v_subrev_u32 v30, s73, v31"); a("v_cmp_lt_u32 vcc, 7, v30"); a("s_cbranch_vccz %s_x" % L)
            a("s_sleep 1"); a(askq); a("s_waitcnt vmcnt(0)")
            a("s_sub_u32 s47, s47, 1"); a("s_cbranch_scc0 %s" % L)
            a.label(L + "_x")
        return wave(0, f)
    step.extra = []
    a("v_mov_b32 v%d, v33" % (RB+24)); a("v_mov_b32 v%d, v34" % (RB+25))
    for x in wread(0, 0) + wread(0, 1): a(x)
    step.lg = [("w", 0)]*4 + [("w", 1)]*4
    A0, A1 = AC+16, AC
    b, o = gelu(AC)
    step(0, A0, o, first=(RB+24, RB+25), head=origin(64, 2), batch=b, hurry=48, before={0: vm(6), 1: vm(0), 2: vm(6)},
         after={1: dma(3, 65) + dma(4, 65), 2: dma(5, 65) + dma(6, 64)})
    a.stamp("p6_s0")
    a("v_and_b32 v5, 7, v%d" % V_LANE); a("v_cmp_eq_u32 vcc, s51, v5"); a("v_xor_b32 v30, 1, v5")
    a("v_cndmask_b32 v5, v5, v30, vcc"); a("v_lshlrev_b32 v5, 7, v5")
    step(1, A1, pstore(A0), head=dest(0) + origin(65, 3), before={0: vm(12), 1: vm(18), 2: vm(18)},
         after={0: dma(7, 64) + dma(8, 64), 1: dma(9, 65), 2: dma(10, 65)})
    a.stamp("p6_s1")
    a("s_mov_b32 s71, 2")
    a.label("L_p6_b")
    w18 = {0: vm(18), 1: vm(18), 2: vm(18)}
    def last(body):
        def f():
            L = a.newlabel("Ll"); a("s_cmp_eq_u32 s71, 4"); a("s_cbranch_scc0 %s" % L); body(); a.label(L)
        return f
    lg0 = list(step.lg); ex0 = list(step.extra)
    step(2, A0, pstore(A1), head=["s_sub_u32 s72, s71, 1"] + dest("s72") + ["s_add_u32 s72, s71, 2"] + origin(64, "s72"), before=w18,
         after={0: dma(11, 65), 1: dma(12, 64), 2: dma(13, 64)})
    step(3, A1, pstore(A0), head=dest("s71") + ["s_add_u32 s72, s71, 3"] + origin(65, "s72"), before={0: vm(18), 1: vm(18), 2: seq(vm(18), last(vm(10)))},
         after={0: dma(14, 64), 1: dma(15, 65), 2: dma(16, 65)}, at={15: last(publish(4))})
    assert [t[0] for t in step.lg] == [t[0] for t in lg0] and step.extra == ex0
    a("s_add_u32 s71, s71, 2"); a("s_cmp_lt_u32 s71, 6"); a("s_cbranch_scc1 L_p6_b")
    step.lg = [("w", t[1] + 36) for t in lg0]
    a.stamp("p6_s5")
    def SC(k): return (54, 57, 59, 61, 72, 75, 76)[k-1]
    for k in range(1, 8):
        r = SC(k); a("s_sub_u32 s%d, s51, %d" % (r, k)); a("s_and_b32 s%d, s%d, 7" % (r, r)); a("s_lshl_b32 s%d, s%d, 13" % (r, r)); a("s_add_u32 s%d, s%d, s69" % (r, r))
    CB = {k: ("v", RB + 24 + 8*(k-2)) if k > 1 else ("a", RING+48) for k in range(1, 8)}
    def cload(k): return [bload(CB[k][1]+4*p, SC(k), 1024*p, t=CB[k][0]) for p in range(2)]
    def emit(xs): return lambda: [a(x) for x in xs]
    def add(acc, k):
        def f():
            for T in range(4): a(mfma(acc+4*T, SEL if T & 1 else SEL+2, CB[k][1]+4*(T >> 1), acc+4*T, tb=CB[k][0]))
        return f
    step(6, A0, pstore(A1), head=dest(5) + origin(64, 8), before={0: vm(18), 1: vm(18), 2: seq(need(4, 6), vm(10))},
         after={0: dma(23, 65), 1: dma(24, 64), 2: dma(25, 64)}, at={6: ask, 15: publish(5), 16: emit(cload(1))})
    a.stamp("p6_s6")
    a("s_mul_i32 s46, s50, 9"); a("s_add_u32 s46, s46, 8"); a("s_lshl_b32 s46, s46, 16"); a("s_lshl_b32 s47, s51, 10")
    a("s_add_u32 s46, s46, s47"); a("s_add_u32 s78, s46, %d" % PART)
    a("s_and_b32 s46, s51, 1"); a("s_mul_i32 s74, s46, 36864"); a("s_add_u32 s74, s74, s60")
    a("s_lshr_b32 s47, s51, 2"); a("s_add_u32 s47, s47, 16"); a("s_lshl_b32 s46, s47, 10"); a("s_add_u32 s79, s46, s74")
    a("s_lshr_b32 s46, s51, 1"); a("s_lshl_b32 s46, s46, 5"); a("s_add_u32 s46, s46, 1024"); a("s_add_u32 s74, s74, s46")
    def extra_get():
        for k in range(8):
            a(bload(RING+4*k, 78)); a("s_add_u32 s78, s78, 8192")
        for k, off in enumerate((H_OFF, X1_OFF)):
            for T in range(2):
                a("s_add_u32 s46, s79, %d" % (off + 18432*T)); a(bload(RING+32+8*k+4*T, 46))
    step(7, A1, pstore(A0), head=dest(6), before={0: vm(18), 1: vm(18), 2: seq(need(5, 2), vm(18))}, after={0: dma(26, 64)},
         at={3: emit(cload(2)), 6: emit(cload(3)), 9: ask, 10: emit(cload(4)), 15: emit(cload(5))})
    a.stamp("p6_s7")
    SEv, EA = A1, A1+8
    g = G()
    g.lines += natsel(SEv, 51, 1, EA)
    OB = 147456
    g("v_mul_u32_u24 v%d, 144, v%d" % (A1+4, V_R)); g("v_lshl_add_u32 v%d, v%d, 3, v%d" % (A1+4, V_G, A1+4))
    g.lines.append("s_lshl_b32 s66, s%d, 5\ns_add_u32 s66, s66, %d" % (S_WAVE, OB))
    g("v_add_u32 v%d, s66, v%d" % (A1+4, A1+4))
    g("v_lshrrev_b32 v%d, 3, v0" % EA); g("v_and_b32 v%d, 7, v0" % (EA+1)); g("v_lshlrev_b32 v%d, 4, v%d" % (EA+1, EA+1))
    g("v_mul_u32_u24 v%d, 144, v%d" % (A1+5, EA)); g("v_add_u32 v%d, v%d, v%d" % (A1+5, A1+5, EA+1)); g("v_add_u32 v%d, %d, v%d" % (A1+5, OB, A1+5))
    g("v_mul_u32_u24 v%d, 1152, v%d" % (A1+6, EA)); g("v_add_u32 v%d, v%d, v%d" % (A1+6, A1+6, EA+1))
    g("v_mul_u32_u24 v%d, 1152, v%d" % (A1+7, V_R)); g("v_lshl_add_u32 v%d, v%d, 3, v%d" % (A1+7, V_G, A1+7))
    step(8, A0, pstore(A1) + g.lines, head=dest(7), c0=R3, before={0: vm(10), 1: vm(2)},
         at={8: add(A0, 1), 9: wave(3, extra_get), 10: add(A0, 2), 12: seq(add(A0, 3), emit(cload(6))),
             14: add(A0, 4), 16: add(A0, 5), 17: emit(cload(7))})
    a.stamp("p6_b")
    a.srd(R_A, S_OUT, ACT)
    a("s_cmp_lg_u32 s%d, 3" % S_WAVE); a("s_cbranch_scc1 L_p7_main")
    a("s_waitcnt vmcnt(4)")
    for k in range(8):
        a(mfma(EA, SEL+2, RING+4*k, None if k == 0 else EA, tb="a")); a(mfma(EA+4, SEL, RING+4*k, None if k == 0 else EA+4, tb="a"))
    for k in range(2):
        for T in range(2): a(mfma(EA+4*T, SEv, RING+32+8*k+4*T, EA+4*T, tb="a"))
    for T in range(2):
        for h in range(2): a("v_cvt_pk_bf16_f32 v%d, v%d, v%d" % (PK+2*T+h, EA+4*T+2*h, EA+4*T+2*h+1))
    a.label("L_p7_main")
    for k in (6, 7):
        base = CB[k][1]
        L = a.newlabel("Ltag")
        a("s_mov_b32 s47, 100000")
        a("s_waitcnt vmcnt(%d)" % (2 if k == 6 else 0))
        a.label(L)
        for x in tag_ops(range(base, base+8), 30): a(x)
        a("s_cbranch_vccz %s_x" % L)
        for x in cload(k): a(x)
        a("s_waitcnt vmcnt(0)")
        a("s_sub_u32 s47, s47, 1"); a("s_cbranch_scc0 %s" % L)
        a.label(L + "_x")
        add(A0, k)()
    a.stamp("p7_ready")
    a("s_cmp_lg_u32 s%d, 3" % S_WAVE); a("s_cbranch_scc1 L_p7_acc")
    for T in range(2):
        a("buffer_store_dwordx2 v[%d:%d], v%d, s[%d:%d], s74 offen%s" % (PK+2*T, PK+2*T+1, A1+7, R_A, R_A+3, OFL))
        a("s_add_u32 s74, s74, 18432")
    a.label("L_p7_acc")
    a("s_lshl_b32 s46, s51, 7"); a("s_add_u32 s46, s46, s60"); a("s_add_u32 s47, s46, 36864")
    for T in range(4):
        for h in range(2): a("v_cvt_pk_bf16_f32 v%d, v%d, v%d" % (R3+2*T+h, A0+4*T+2*h, A0+4*T+2*h+1))
        a("ds_write_b64 v%d, v[%d:%d] offset:%d" % (A1+4, R3+2*T, R3+2*T+1, 2304*T))
    a("s_waitcnt lgkmcnt(0)"); a("s_barrier")
    for p in range(2): a("ds_read_b128 v[%d:%d], v%d offset:%d" % (R3+8+4*p, R3+11+4*p, A1+5, 4608*p))
    for p in range(2):
        a("s_waitcnt lgkmcnt(%d)" % (1-p))
        a("buffer_store_dwordx4 v[%d:%d], v%d, s[%d:%d], s%d offen%s" % (R3+8+4*p, R3+11+4*p, A1+6, R_A, R_A+3, 46+p, OFL))
```

```python
import sys, os, struct, math
sys.path.insert(0, "dev"); sys.path.insert(0, "bak2")
from asmlib import Asm, build
from hazard import fix_hazards, check_waits

NAME = "sequential_preLN__sliding_block__mixer_s_mlp__prompt"
KN = NAME + "_kernel"

ACT = 2048*576*2
SW  = 576*576*2
BW  = 576*4608*2
FLAG0 = 128
F1, FS, F2, F3, F4, F5, FA, FB = 0, 256, 640, 896, 1152, 1408, 1664, 2688
TS_OFF = 0x80000
Q_OFF  = 0x90000
K_OFF  = Q_OFF + ACT
V_OFF  = K_OFF + ACT
O_OFF  = V_OFF + ACT
H_OFF  = O_OFF + ACT
SH_OFF = H_OFF + ACT
T_OFF  = SH_OFF + 98304
X1_OFF = T_OFF + ACT
SX_OFF = X1_OFF + ACT
WO_S   = SX_OFF + 98304
W1_S   = WO_S + SW
W2_S   = W1_S + SW
W3_S   = W2_S + SW
W4_S   = W3_S + BW
PART   = W4_S + BW
WS_END = PART + 32*9*8*8192
FP_OFF = 0x7F000
FP2_OFF = FP_OFF + 1024
MARK_N = T_OFF - O_OFF
MKG = 19
MARK_W = 2048*MKG
assert 128*MARK_W >= MARK_N and 1024*5120 >= WO_S - T_OFF
HPSZ   = 147456

WSOFF = 0
MK0 = int(os.environ.get('MK0', 0))
MK1 = int(os.environ.get('MK1', 0))
THR = int(os.environ.get('THR', 0))
NW3 = int(os.environ.get('NW3', 0))
ABL = os.environ.get('ABL', '').split(',')
CLK = 's_memtime'
def f32(x): return struct.unpack("<I", struct.pack("<f", x))[0]
def magic(d): return (1 << 32)//d + 1

S_X, S_WQKV, S_WO = 4, 6, 8
S_W1, S_W2, S_W3, S_W4 = 12, 14, 16, 18
S_OUT, S_DBG, S_WS = 20, 22, 24
R_WS, R_A, R_B = 28, 32, 36
S_WAVE, S_XCD, S_SLOT, S_NONCE = 40, 41, 42, 43
S_ONES = 44
V_LANE, V_R, V_G, V_L16 = 1, 2, 3, 4

class G(Asm):
    def __init__(s, stop=99, stamps=False):
        super().__init__()
        s.stop = stop; s.stamps = stamps; s.stubs = []
    def srd(a, d, p, size, add=0):
        if add >= 0:
            a("s_add_u32 s%d, s%d, %s" % (d, p, add)); a("s_addc_u32 s%d, s%d, 0" % (d+1, p+1))
        else:
            a("s_sub_u32 s%d, s%d, %d" % (d, p, -add)); a("s_subb_u32 s%d, s%d, 0" % (d+1, p+1))
        a("s_mov_b32 s%d, %d" % (d+2, size)); a("s_mov_b32 s%d, 0x20000" % (d+3))
    def srd_s(a, d, p, size, sreg):
        a("s_add_u32 s%d, s%d, s%d" % (d, p, sreg)); a("s_addc_u32 s%d, s%d, 0" % (d+1, p+1))
        a("s_mov_b32 s%d, %d" % (d+2, size)); a("s_mov_b32 s%d, 0x20000" % (d+3))
    def sdiv(a, q, r, x, d):
        a("s_mul_hi_u32 s%d, s%d, %d" % (q, x, magic(d)))
        if r is not None:
            a("s_mul_i32 s%d, s%d, %d" % (r, q, d)); a("s_sub_u32 s%d, s%d, s%d" % (r, x, r))
    def jitter(a):
        L = a.newlabel("Ljit")
        a("s_memrealtime s[98:99]"); a("s_waitcnt lgkmcnt(0)")
        a("s_mul_i32 s98, s98, 0x9E3779B1"); a("s_mul_i32 s99, s2, 0x85EBCA6B"); a("s_add_u32 s98, s98, s99"); a("s_mul_i32 s99, s%d, 0x27D4EB2F" % S_WAVE)
        a("s_add_u32 s98, s98, s99"); a("s_lshr_b32 s99, s98, 29"); a("s_lshr_b32 s98, s98, 20"); a("s_and_b32 s98, s98, 127")
        a("s_cmp_lt_u32 s99, 5"); a("s_cselect_b32 s98, 0, s98")
        a.label(L)
        a("s_cmp_eq_u32 s98, 0"); a("s_cbranch_scc1 %s_x" % L); a("s_sleep 1"); a("s_sub_u32 s98, s98, 1"); a("s_branch %s" % L)
        a.label(L + "_x")
    def stamp(a, name):
        if "jitter" in ABL and name not in ("start", "end"): a.jitter()
        if not a.stamps or name not in a.stamps: return
        k = a.stamps.index(name)
        a("%s s[98:99]" % CLK); a("s_waitcnt lgkmcnt(0)"); a("s_mov_b32 s%d, s98" % (80+k))
    def stamp_out(a):
        if not a.stamps: return
        a.stamp("end")
        a("s_lshl_b32 s98, s2, 2"); a("s_add_u32 s98, s98, s%d" % S_WAVE); a("s_lshl_b32 s98, s98, 6"); a("s_add_u32 s98, s98, %d" % TS_OFF)
        a("v_mov_b32 v255, 0")
        for k in range(16):
            a("v_mov_b32 v254, s%d" % (80+k))
            a("buffer_store_dword v254, v255, s[%d:%d], s98 offen offset:%d" % (R_WS, R_WS+3, 4*k))
            a("s_nop 1")
    def xg_reduce(a, v, t, op="v_add_f32"):
        for sw in ("v_permlane32_swap_b32", "v_permlane16_swap_b32"):
            a("v_mov_b32 v%d, v%d" % (t, v)); a("%s v%d, v%d" % (sw, v, t)); a("%s v%d, v%d, v%d" % (op, v, v, t))
    def get_nonce(a, vt):
        L = a.newlabel("Lnon")
        a("s_mov_b32 s46, 200000"); a("v_mov_b32 v%d, 0" % (vt+2))
        a.label(L)
        a("global_load_dwordx2 v[%d:%d], v%d, s[%d:%d] sc1" % (vt, vt+1, vt+2, S_DBG, S_DBG+1))
        a("s_waitcnt vmcnt(0)")
        a("v_readfirstlane_b32 s47, v%d" % (vt+1)); a("v_readfirstlane_b32 s%d, v%d" % (S_NONCE, vt))
        a("s_sub_u32 s46, s46, 1"); a("s_cbranch_scc1 %s_x" % L)
        a("s_cmp_eq_u32 s47, 0"); a("s_cbranch_scc1 %s" % L)
        a.label(L + "_x")
    def set_flag(a, sidx, vt):
        a("s_lshl_b32 s%d, s%d, 7" % (sidx, sidx)); a("s_add_u32 s%d, s%d, %d" % (sidx, sidx, FLAG0))
        a("v_mov_b32 v%d, s%d" % (vt, S_NONCE)); a("v_mov_b32 v%d, 0" % (vt+1))
        a("s_mov_b64 exec, 1")
        a("buffer_store_dword v%d, v%d, s[%d:%d], s%d offen sc1" % (vt, vt+1, R_WS, R_WS+3, sidx))
        a("s_mov_b64 exec, -1")
    def set_mark(a, vt, off):
        a("s_lshl_b32 s46, s2, 2"); a("s_add_u32 s46, s46, %d" % off)
        a("v_mov_b32 v%d, s%d" % (vt, S_NONCE)); a("v_mov_b32 v%d, 0" % (vt+1))
        a("s_mov_b64 exec, 1")
        a("buffer_store_dword v%d, v%d, s[%d:%d], s46 offen sc1" % (vt, vt+1, R_WS, R_WS+3))
        a("s_mov_b64 exec, -1")
    def poll(a, vidx, vt, sleep0=6, sleep=2, two=False):
        L = a.newlabel("Lpoll")
        a("v_lshlrev_b32 v%d, 7, v%d" % (vidx, vidx))
        a("s_mov_b32 s46, 100000")
        if sleep0: a("s_sleep %d" % sleep0)
        a.label(L)
        if two: a("buffer_load_dwordx2 v[%d:%d], v%d, s[%d:%d], 0 offen offset:%d sc1" % (vt, vt+1, vidx, R_WS, R_WS+3, FLAG0))
        else: a("buffer_load_dword v%d, v%d, s[%d:%d], 0 offen offset:%d sc1" % (vt, vidx, R_WS, R_WS+3, FLAG0))
        a("s_waitcnt vmcnt(0)")
        a("v_cmp_ne_u32 vcc, s%d, v%d" % (S_NONCE, vt))
        a("s_cbranch_vccz %s_x" % L)
        a("s_sleep %d" % sleep)
        a("s_sub_u32 s46, s46, 1"); a("s_cbranch_scc0 %s" % L)
        a.label(L + "_x")

def mfma(d, A, B, C=None, ta="v", tb="v", td="v"):
    c = "0" if C is None else "%s[%d:%d]" % (td, C, C+3)
    return "v_mfma_f32_16x16x32_bf16 %s[%d:%d], %s[%d:%d], %s[%d:%d], %s" % (td, d, d+3, ta, A, A+3, tb, B, B+3, c)

def interleave(a, main, fill, start=0):
    n = len(main) - start; k = 0
    for i, m in enumerate(main):
        a(m)
        if i >= start:
            upto = (len(fill)*(i-start+1) + n - 1)//n
            while k < upto: a(fill[k]); k += 1

def prologue(a):
    a("s_cmp_ge_u32 s2, 256"); a("s_cbranch_scc1 L_end")
    a("s_load_dwordx4 s[4:7], s[0:1], 0")
    a("s_load_dwordx2 s[24:25], s[0:1], 80")
    a("s_load_dwordx2 s[8:9], s[0:1], 16")
    a("s_load_dwordx8 s[12:19], s[0:1], 32")
    a("s_load_dwordx4 s[20:23], s[0:1], 64")
    a("v_and_b32 v%d, 63, v0" % V_LANE)
    a("v_lshrrev_b32 v5, 6, v0")
    a("v_and_b32 v%d, 15, v0" % V_R)
    a("v_readfirstlane_b32 s%d, v5" % S_WAVE)
    a("v_lshrrev_b32 v%d, 4, v%d" % (V_G, V_LANE))
    a("v_lshlrev_b32 v%d, 4, v%d" % (V_L16, V_LANE))
    if "antiloc" in ABL:
        a("s_lshr_b32 s46, s2, 5"); a("s_and_b32 s47, s2, 31"); a("s_lshl_b32 s47, s47, 3"); a("s_or_b32 s2, s46, s47")
    a("s_and_b32 s%d, s2, 7" % S_XCD); a("s_lshr_b32 s%d, s2, 3" % S_SLOT)
    a("s_mov_b32 s%d, 0x3f803f80" % S_ONES)
    if "nopf" not in ABL:
        a("s_getpc_b64 s[46:47]")
        a.label("L_pc")
        a("s_mul_i32 s48, s%d, %d" % (S_SLOT, 20*128)); a("v_lshl_add_u32 v5, v0, 7, s48")
        a("v_cmp_gt_u32 vcc, 20, v0"); a("s_mov_b32 s48, L_last-L_pc"); a("v_cmp_gt_u32 s[48:49], s48, v5"); a("s_and_b64 vcc, vcc, s[48:49]")
        a("s_and_saveexec_b64 s[48:49], vcc"); a("s_cbranch_execz L_pcd")
        a("global_load_dword v253, v5, s[46:47]")
        a.label("L_pcd")
        a("s_mov_b64 exec, -1")
    if a.stamps:
        for k in range(16): a("s_mov_b32 s%d, 0" % (80+k))
        a.stamp("start")

def publish_nonce(a):
    L = a.newlabel("Lpn")
    a("s_xor_b32 s46, s2, 224"); a("s_or_b32 s46, s46, s%d" % S_WAVE); a("s_cmp_lg_u32 s46, 0"); a("s_cbranch_scc1 %s" % L)
    a("v_mov_b32 v252, 0")
    a("buffer_load_dword v250, v252, s[%d:%d], 0 offen sc1" % (R_WS, R_WS+3))
    a("s_mov_b32 s46, 0x9E3779B1")
    a("s_waitcnt vmcnt(0)")
    a("v_mul_lo_u32 v250, v250, s46"); a("v_add_u32 v250, 0x7F4A7C15, v250"); a("v_mov_b32 v251, 1")
    a("s_mov_b64 exec, 1")
    a("buffer_store_dword v250, v252, s[%d:%d], 0 offen sc1" % (R_WS, R_WS+3))
    a("global_store_dwordx2 v252, v[250:251], s[%d:%d] sc1" % (S_DBG, S_DBG+1))
    a("s_mov_b64 exec, -1")
    a.label(L)

def swizzle_setup(a):
    for i in range(9):
        a("v_add_u32 v40, %d, v%d" % (64*i, V_LANE))
        a("v_mul_u32_u24 v%d, 911, v40" % (10+i)); a("v_lshrrev_b32 v%d, 16, v%d" % (10+i, 10+i))
        a("v_mul_u32_u24 v41, 72, v%d" % (10+i)); a("v_sub_u32 v41, v40, v41"); a("v_lshlrev_b32 v%d, 4, v41" % (20+i))
    a("v_lshrrev_b32 v40, 2, v%d" % V_R); a("v_lshl_add_u32 v40, v%d, 3, v40" % V_G); a("v_mul_u32_u24 v40, 1152, v40")
    a("v_and_b32 v41, 3, v%d" % V_R); a("v_lshl_add_u32 v30, v41, 4, v40")
    a("s_lshr_b32 s46, s%d, 1" % S_WAVE); a("s_lshl_b32 s46, s46, 6"); a("s_and_b32 s47, s%d, 1" % S_WAVE); a("s_lshl_b32 s47, s47, 3")
    a("s_add_u32 s46, s46, s47"); a("v_add_u32 v30, s46, v30")

def sw_decode(a, su, p):
    Ln = a.newlabel("Lsw")
    D = 60+3*p
    a("s_cmp_ge_u32 s%d, 54" % su); a("s_cbranch_scc1 %s_big" % Ln)
    a.sdiv(51, 52, su, 18)
    a("s_cmp_eq_u32 s51, 1"); a("s_cselect_b32 s54, s%d, s%d" % (S_W1, S_W2)); a("s_cselect_b32 s55, s%d, s%d" % (S_W1+1, S_W2+1))
    a("s_cmp_eq_u32 s51, 0"); a("s_cselect_b32 s54, s%d, s54" % S_WO); a("s_cselect_b32 s55, s%d, s55" % (S_WO+1))
    a("s_mul_i32 s%d, s51, %d" % (D, SW)); a("s_add_u32 s%d, s%d, %d" % (D, D, WO_S))
    a("s_mul_i32 s53, s%d, 18432" % S_WAVE); a("s_add_u32 s%d, s%d, s53" % (D, D))
    a("s_mov_b32 s%d, 73728" % (D+1))
    a("s_lshl_b32 s56, s52, 5"); a("s_lshl_b32 s53, s%d, 3" % S_WAVE); a("s_add_u32 s56, s56, s53")
    a("s_mov_b32 s57, 0"); a("s_mov_b32 s59, 1152")
    a("s_cmp_lg_u32 s51, 0"); a("s_cbranch_scc1 %s_j" % Ln)
    a("s_mul_i32 s56, s52, 36"); a("s_lshl_b32 s53, s%d, 2" % S_WAVE); a("s_add_u32 s56, s56, s53"); a("s_mov_b32 s57, 16")
    a("s_cmp_lt_u32 s52, 16"); a("s_cbranch_scc1 %s_j" % Ln)
    a("s_sub_u32 s56, s52, 16"); a("s_lshl_b32 s56, s56, 2"); a("s_add_u32 s56, s56, s%d" % S_WAVE)
    a("s_mul_i32 s56, s56, 72"); a("s_add_u32 s56, s56, 16"); a("s_mov_b32 s57, 32")
    a("s_branch %s_j" % Ln)
    a.label(Ln + "_big")
    sw_big(a, su, D)
    a("s_lshl_b32 s56, s52, 5"); a("s_lshl_b32 s53, s%d, 3" % S_WAVE); a("s_add_u32 s56, s56, s53"); a("s_mov_b32 s57, 0")
    a("s_cmp_ge_u32 s51, 8"); a("s_cbranch_scc1 %s_w4" % Ln)
    a("s_mul_i32 s53, s51, 1152"); a("s_add_u32 s54, s%d, s53" % S_W3); a("s_addc_u32 s55, s%d, 0" % (S_W3+1)); a("s_mov_b32 s59, 9216")
    a("s_branch %s_j" % Ln)
    a.label(Ln + "_w4")
    a("s_sub_u32 s53, s51, 8"); a("s_mul_i32 s53, s53, %d" % SW); a("s_add_u32 s54, s%d, s53" % S_W4); a("s_addc_u32 s55, s%d, 0" % (S_W4+1)); a("s_mov_b32 s59, 1152")
    a.label(Ln + "_j")
    a("s_lshl_b32 s53, s52, 10"); a("s_add_u32 s%d, s%d, s53" % (D, D))
    a("s_add_u32 s%d, s%d, %d" % (D+2, su, FS))

def sw_big(a, su, D):
    a("s_sub_u32 s53, s%d, 54" % su); a.sdiv(51, 52, 53, 18)
    a("s_mul_i32 s%d, s51, %d" % (D, 4*9*18432)); a("s_add_u32 s%d, s%d, %d" % (D, D, W3_S))
    a("s_mul_i32 s53, s%d, %d" % (S_WAVE, 9*18432)); a("s_add_u32 s%d, s%d, s53" % (D, D))
    a("s_mov_b32 s%d, 18432" % (D+1))

def sw_issue(a, su, p, lds):
    sw_decode(a, su, p)
    a("s_mov_b32 s%d, s54" % R_A); a("s_mov_b32 s%d, s55" % (R_A+1))
    a("s_mul_i32 s%d, s59, 575" % (R_A+2)); a("s_add_u32 s%d, s%d, 1152" % (R_A+2, R_A+2)); a("s_mov_b32 s%d, 0x20000" % (R_A+3))
    a("s_mul_i32 s53, s%d, 9216" % S_WAVE); a("s_add_u32 m0, s53, %d" % lds)
    for k in range(9):
        a("v_lshrrev_b32 v40, 2, v%d" % (10+k)); a("v_mul_lo_u32 v40, v40, s57"); a("v_add3_u32 v40, v40, v%d, s56" % (10+k))
        a("v_mul_lo_u32 v40, v40, s59"); a("v_add_u32 v40, v40, v%d" % (20+k))
        a("buffer_load_dwordx4 v40, s[%d:%d], 0 offen lds" % (R_A, R_A+3))
        a("s_add_u32 m0, m0, 1024")

def sw_process(a, p, lds):
    a("v_add_u32 v31, %d, v30" % lds)
    for q in range(9):
        for hh in range(2):
            a("ds_read_b64_tr_b16 v[%d:%d], v31 offset:%d" % (44+4*q+2*hh, 45+4*q+2*hh, hh*4608 + 128*q))
    a("s_mov_b32 s53, s%d" % (60+3*p))
    for q in range(9):
        a("s_waitcnt lgkmcnt(%d)" % min(15, 16-2*q))
        a("buffer_store_dwordx4 v[%d:%d], v%d, s[%d:%d], s53 offen sc1" % (44+4*q, 47+4*q, V_L16, R_WS, R_WS+3))
        a("s_add_u32 s53, s53, s%d" % (61+3*p))

def sw_flags(a, ps, mark=False):
    L = a.newlabel("Lswf")
    a("s_cmp_lg_u32 s%d, 0" % S_WAVE); a("s_cbranch_scc1 %s" % L)
    for p in ps: a.set_flag(62+3*p, 40)
    if mark: a.set_mark(40, FP_OFF - 4*224)
    a.label(L)

MK, R_M = 220, 76

def mark_setup(a):
    a.srd(R_M, S_WS, MARK_N, O_OFF)
    for r in range(4): a("v_mov_b32 v%d, -1" % (MK+r))
    a("s_sub_u32 s74, s2, %d" % 224); a("s_lshl_b32 s74, s74, 2"); a("s_add_u32 s74, s74, s%d" % S_WAVE); a("s_mul_i32 s74, s74, %d" % MARK_W)

def mark_fill(a, n):
    L = a.newlabel("Lmk")
    a("s_mov_b32 s75, %d" % n)
    a.label(L)
    a(mark_store(74, 0)); a(mark_store(74, 1024)); a("s_add_u32 s74, s74, 2048"); a("s_waitcnt vmcnt(40)")
    a("s_sub_u32 s75, s75, 1"); a("s_cmp_lg_u32 s75, 0"); a("s_cbranch_scc1 %s" % L)

def mark_store(s, off): return "buffer_store_dwordx4 v[%d:%d], v%d, s[%d:%d], s%d offen offset:%d sc1" % (MK, MK+3, V_L16, R_M, R_M+3, s, off)

def touch_pages(a):
    if "tlb" not in ABL: return
    L = a.newlabel("Ltp")
    a("s_cmp_lg_u32 s%d, 1" % S_WAVE); a("s_cbranch_scc1 %s" % L)
    a("v_lshlrev_b32 v252, 21, v%d" % V_LANE)
    a("buffer_load_dword v253, v252, s[%d:%d], 0 offen offset:64" % (R_WS, R_WS+3))
    for p, size in ((S_W3, BW), (S_W4, BW), (S_OUT, ACT), (S_WO, SW), (S_W1, SW), (S_W2, SW)):
        n = (size - 1 >> 21) + 1
        a("s_mov_b64 exec, %d" % ((1 << n) - 1))
        a("global_load_dword v253, v252, s[%d:%d]" % (p, p+1))
    a("s_mov_b64 exec, -1")
    a.label(L)

def touch_inputs(a, nwg):
    nx, nw = -(-18432//(2*nwg)), -(-15552//(2*nwg))
    a("s_mul_i32 s46, s50, 14"); a("s_add_u32 s46, s46, s51"); a("s_lshl_b32 s46, s46, 1"); a("s_add_u32 s46, s46, s53")
    a("v_lshlrev_b32 v252, 7, v%d" % V_LANE)
    L = a.newlabel("Lti")
    a("s_cmp_lg_u32 s52, 0"); a("s_cbranch_scc1 %s_w" % L)
    a("s_mul_i32 s46, s46, %d" % (128*nx)); a("s_add_u32 s46, s46, 4096"); a("s_mov_b64 exec, 0x%x" % ((1 << nx) - 1) if nx <= 32 else "s_bfm_b64 exec, %d, 0" % nx)
    a("buffer_load_dword v253, v252, s[%d:%d], s46 offen" % (R_A, R_A+3))
    a("s_branch %s" % L)
    a.label(L + "_w")
    a("s_mul_i32 s46, s46, %d" % (128*nw)); a("s_add_u32 s46, s46, 4096"); a("s_bfm_b64 exec, %d, 0" % nw)
    a("buffer_load_dword v253, v252, s[%d:%d], s46 offen" % (R_B, R_B+3))
    a.label(L)
    a("s_mov_b64 exec, -1")

def phase1(a):
    QS = 18**-0.5 * math.log2(math.e)
    a("s_cmp_ge_u32 s%d, 28" % S_SLOT); a("s_cbranch_scc1 L_p1_helper")
    a.sdiv(46, 47, S_SLOT, 7)
    a("s_lshr_b32 s48, s%d, 1" % S_XCD); a("s_lshl_b32 s48, s48, 2"); a("s_add_u32 s50, s48, s46")
    a("s_and_b32 s48, s%d, 1" % S_XCD); a("s_mul_i32 s48, s48, 7"); a("s_add_u32 s51, s48, s47")
    a("s_lshr_b32 s52, s%d, 1" % S_WAVE); a("s_and_b32 s53, s%d, 1" % S_WAVE)
    a("v_lshrrev_b32 v20, 3, v%d" % V_LANE); a("v_and_b32 v21, 7, v%d" % V_LANE)
    a("v_xor_b32 v22, v21, v%d" % V_G); a("v_mul_u32_u24 v20, 1152, v20")
    a("v_lshl_add_u32 v10, v22, 4, v20"); a("v_xor_b32 v22, 4, v22"); a("v_lshl_add_u32 v11, v22, 4, v20")
    a("v_add_u32 v12, %d, v10" % (16*1152 - 2048 + 4096)); a("v_add_u32 v13, %d, v11" % (24*1152 - 3072 + 4096))
    a("v_add_u32 v11, %d, v11" % (8*1152 - 1024 + 4096)); a("v_add_u32 v10, 4096, v10")
    a("v_lshrrev_b32 v20, 1, v%d" % V_R); a("v_xor_b32 v20, v20, v%d" % V_G); a("v_and_b32 v21, 1, v%d" % V_LANE)
    a("v_lshl_add_u32 v21, v20, 1, v21"); a("v_mul_u32_u24 v22, 3456, v%d" % V_G)
    a("v_lshl_add_u32 v14, v21, 4, v22"); a("v_xor_b32 v21, 8, v21"); a("v_lshl_add_u32 v16, v21, 4, v22")
    a("v_add_u32 v15, %d, v14" % (4*3456 - 1024 + 4096)); a("v_add_u32 v17, %d, v16" % (12*3456 - 3072 + 4096))
    a("v_add_u32 v16, %d, v16" % (8*3456 - 2048 + 4096)); a("v_add_u32 v14, 4096, v14")
    a("s_lshl_b32 s54, s50, 2"); a("s_add_u32 s54, s54, s%d" % S_WAVE); a("s_mul_i32 s54, s54, %d" % (32*1152))
    a("s_mul_i32 s55, s%d, %d" % (S_WAVE, 16*3456)); a("s_lshl_b32 s46, s51, 8"); a("s_add_u32 s55, s55, s46")
    a("s_lshl_b32 s56, s%d, 12" % S_WAVE)
    a("s_waitcnt lgkmcnt(0)")
    if WSOFF: a("s_add_u32 s24, s24, %d" % WSOFF); a("s_addc_u32 s25, s25, 0")
    a.srd(R_A, S_X, ACT + 4096, -4096); a.srd(R_B, S_WQKV, 576*3456 + 4096, -4096)
    a.sdiv(46, 47, S_SLOT, 7)
    a("s_and_b32 s48, s%d, 1" % S_XCD); a("s_add_u32 s46, s46, s48"); a("s_lshl_b32 s46, s46, 1"); a("s_add_u32 s46, s46, s47")
    a("s_bfe_u32 s47, s%d, 0x10001" % S_XCD); a("s_add_u32 s46, s46, s47"); a("s_and_b32 s47, s%d, 4" % S_XCD); a("s_lshl_b32 s47, s47, 1"); a("s_add_u32 s46, s46, s47")
    if "rot8" not in ABL: a.sdiv(47, 67, 46, 9)
    else:
        a("s_and_b32 s70, s46, 7"); a("s_mov_b32 s67, 0")
    def dma(sbuf):
        X = ["buffer_load_dwordx4 v%d, s[%d:%d], s68 offen offset:%d lds" % (10+j, R_A, R_A+3, 1024*j) for j in range(4)]
        W = ["buffer_load_dwordx4 v%d, s[%d:%d], s69 offen offset:%d lds" % (14+j, R_B, R_B+3, 1024*j) for j in range(4)]
        X[0] = "s_mov_b32 m0, s%d\ns_lshl_b32 s68, s67, 7\ns_add_u32 s68, s68, s54\n" % sbuf + X[0]
        X[1] = "s_mul_i32 s69, s67, %d\ns_add_u32 s69, s69, s55\n" % (64*3456) + X[1]
        X[2] = "s_add_u32 s67, s67, 1\ns_cmp_eq_u32 s67, 9\ns_cselect_b32 s67, %d, s67\n" % (0 if "rot8" not in ABL else 1) + X[2]
        W[0] = "s_add_u32 m0, s%d, 16384\ns_nop 0\n" % sbuf + W[0]
        return X + W
    for x in dma(56): a(x)
    a("s_add_u32 s56, s56, 32768")
    if "rot8" in ABL: a("s_add_u32 s67, s67, s70")
    if "p1touch" in ABL: touch_inputs(a, 224)
    a.stamp("p1_issue")
    a.srd(R_WS, S_WS, WS_END)
    touch_pages(a)
    a("v_lshrrev_b32 v30, 2, v%d" % V_R); a("v_and_b32 v31, 3, v%d" % V_R)
    a("v_lshl_add_u32 v32, v%d, 3, v30" % V_G); a("v_lshlrev_b32 v32, 8, v32"); a("v_lshl_add_u32 v32, v31, 3, v32")
    a("v_add_u32 v32, 16384, v32")
    a("v_and_b32 v33, 1, v%d" % V_G); a("v_lshl_add_u32 v33, v33, 2, v30")
    a("s_lshl_b32 s46, s53, 2"); a("s_lshl_b32 s47, s52, 1"); a("s_or_b32 s57, s46, s47")
    for t in range(4):
        a("s_xor_b32 s46, s57, %d" % t); a("v_xor_b32 v34, s46, v33"); a("v_lshl_add_u32 v%d, v34, 5, v32" % (20+t))
    a("v_lshrrev_b32 v30, 1, v%d" % V_R); a("v_xor_b32 v30, v30, v%d" % V_G); a("v_lshlrev_b32 v31, 7, v%d" % V_R)
    a("s_lshl_b32 s46, s52, 13"); a("s_lshl_b32 s47, s53, 12"); a("s_add_u32 s46, s46, s47"); a("s_xor_b32 s47, s46, 4096")
    a("v_lshl_add_u32 v32, v30, 4, v31"); a("v_xor_b32 v33, 64, v32")
    a("v_add_u32 v24, s46, v32"); a("v_add_u32 v25, s47, v32"); a("v_add_u32 v26, s46, v33"); a("v_add_u32 v27, s47, v33")
    ACC, CS, ST, ONE = 48, 112, 120, 140
    XB = (144, 160); WB = (176, 192)
    WA, XA = 28, 32
    for r in range(ACC, ONE): a("v_mov_b32 v%d, 0" % r)
    for r in range(4): a("v_mov_b32 v%d, s%d" % (ONE+r, S_ONES))
    def addr(sbase):
        return ["v_add_u32 v%d, %s, v%d" % (WA+i, sbase, 20+i) for i in range(8)]
    def reads(jj):
        o = []
        for T in range(4):
            o.append("ds_read_b128 v[%d:%d], v%d offset:%d" % (XB[jj]+4*T, XB[jj]+4*T+3, XA+2*jj+(T>>1), 2048*(T&1)))
            for hh in range(2):
                o.append("ds_read_b64_tr_b16 v[%d:%d], v%d offset:%d" % (WB[jj]+4*T+2*hh, WB[jj]+4*T+2*hh+1, WA+T, jj*8192+hh*1024))
        return o
    def mm(jj, swap):
        o = []
        for t in range(4):
            for T in range(4):
                d = ACC+16*t+4*T
                o.append(mfma(d, XB[jj]+4*T, WB[jj]+4*t, d) if swap else mfma(d, WB[jj]+4*t, XB[jj]+4*T, d))
            if t < 2:
                d = CS+4*t
                o.append(mfma(d, ONE, WB[jj]+4*t, d) if swap else mfma(d, WB[jj]+4*t, ONE, d))
            x = XB[jj]+4*(t>>1); d = ST+4*t
            o.append(mfma(d, x if t & 1 else ONE, x, d))
        return o
    for x in addr("0"): a(x)
    a("s_lshl_b32 s60, s51, 1"); a("s_add_u32 s60, s60, s53")
    a("s_lshl_b32 s46, s50, 1"); a("s_add_u32 s46, s46, s52"); a("s_lshl_b32 s46, s46, 1"); a("s_add_u32 s47, s46, s53")
    a("s_xor_b32 s46, s47, 1"); a("s_mul_i32 s65, s47, 2304"); a("s_mul_i32 s66, s46, 2304"); a("s_mov_b32 s64, %d" % HPSZ)
    a("s_mov_b32 s58, 0"); a("s_mov_b32 s59, 0")
    a("s_cmp_ge_u32 s51, 9"); a("s_cbranch_scc1 L_p1_v0")
    for swap in (0, 1):
        L = "L_p1_v" if swap else "L_p1_qk"
        a.label(L + "0")
        if not swap:
            a("s_mov_b32 s62, %d" % Q_OFF); a("s_cmp_ge_u32 s60, 9"); a("s_cselect_b32 s61, 144, 0"); a("s_cselect_b32 s62, %d, s62" % K_OFF)
            a("s_cselect_b32 s73, 1.0, %d" % f32(QS))
            a("s_lshl_b32 s63, s60, 4"); a("s_sub_u32 s63, s63, s61")
            for t in range(4):
                a("s_lshl_b32 s46, s52, 1"); a("s_xor_b32 s46, s46, %d" % t); a("s_lshl_b32 s46, s46, 2"); a("s_add_u32 s46, s46, s63")
                a("v_add_u32 v212, s46, v%d" % V_G)
                a("v_mul_u32_u24 v213, 7282, v212"); a("v_lshrrev_b32 v213, 16, v213")
                a("v_mul_u32_u24 v214, 9, v213"); a("v_sub_u32 v212, v212, v214")
                a("v_cmp_lt_u32 vcc, 4, v212"); a("v_subb_co_u32 v214, vcc, v212, 0, vcc")
                a("v_cmp_eq_u32 vcc, 4, v212"); a("v_cndmask_b32 v214, v214, 8, vcc")
                a("v_mul_lo_u32 v213, v213, s64"); a("v_lshl_add_u32 v213, v214, 8, v213"); a("v_lshl_add_u32 v%d, v%d, 4, v213" % (208+t, V_R))
        else:
            a("s_mov_b32 s62, %d" % V_OFF); a("s_sub_u32 s63, s60, 18"); a("s_lshl_b32 s63, s63, 6")
            for t in range(4):
                a("s_lshl_b32 s46, s52, 1"); a("s_xor_b32 s46, s46, %d" % t); a("s_lshl_b32 s46, s46, 4"); a("s_add_u32 s46, s46, s63")
                a("v_add_u32 v212, s46, v%d" % V_R)
                a("v_mul_u32_u24 v213, 1821, v212"); a("v_lshrrev_b32 v213, 16, v213")
                a("v_mul_u32_u24 v214, 36, v213"); a("v_sub_u32 v212, v212, v214")
                a("v_lshl_add_u32 v214, v%d, 4, v212" % V_G)
                a("v_add_u32 v215, 44, v214")
                a("v_cmp_lt_u32 vcc, 19, v212"); a("v_cndmask_b32 v214, v214, v215, vcc")
                a("v_lshl_add_u32 v215, v212, 2, v%d" % V_G); a("v_add_u32 v215, 64, v215")
                a("v_lshrrev_b32 v212, 2, v212"); a("v_cmp_eq_u32 vcc, 4, v212"); a("v_cndmask_b32 v214, v214, v215, vcc")
                a("v_mul_lo_u32 v213, v213, s64"); a("v_lshl_add_u32 v%d, v214, 4, v213" % (208+t))
        a("s_add_u32 s65, s65, s62"); a("s_add_u32 s66, s66, s62")
        for x in dma(56): a(x)
        a("s_add_u32 s56, s56, 32768")
        if "burn" in ABL:
            for r in range(224, 240): a("v_mul_lo_u32 v%d, v%d, s64" % (r, 208 + (r & 3))); a("v_and_b32 v%d, 0xbfffbfff, v%d" % (r, r))
            Lb = a.newlabel("Lburn"); a("s_mov_b32 s75, 9"); a.label(Lb)
            for q in range(16): a(mfma(240+4*(q & 1), 224+4*(q & 3), 224+4*((q >> 2) & 3), 240+4*(q & 1)))
            a("s_sub_u32 s75, s75, 1"); a("s_cmp_lg_u32 s75, 0"); a("s_cbranch_scc1 %s" % Lb)
        a("s_waitcnt vmcnt(8)"); a("s_barrier")
        a.stamp("p1_first")
        for x in reads(0): a(x)
        a.label(L)
        a("s_cmp_ge_u32 s58, 7"); a("s_cbranch_scc1 %s_n" % L)
        for dm in (1, 0):
            d = dma(56) if (dm and "p1nodma" not in ABL) else []
            m = mm(0, swap)
            a("s_waitcnt lgkmcnt(0)")
            interleave(a, m[:14], reads(1))
            interleave(a, m[14:], d[:4])
            a("s_add_u32 s58, s58, 1")
            a("s_add_u32 s59, s59, 32768"); a("s_cmp_eq_u32 s59, 163840"); a("s_cselect_b32 s59, 0, s59")
            a("s_waitcnt vmcnt(%d) lgkmcnt(0)" % (4 if dm else 0))
            a("s_barrier")
            m = mm(1, swap); ad = addr("s59")
            interleave(a, m[:3], ad[4:6] + ad[0:4])
            interleave(a, m[3:15], reads(0) + ad[6:8])
            interleave(a, m[15:], d[4:])
            if dm:
                a("s_add_u32 s56, s56, 32768"); a("s_cmp_ge_u32 s56, 163840"); a("s_cselect_b32 s46, 163840, 0"); a("s_sub_u32 s56, s56, s46")
                a("s_branch %s" % L)
                a.label(L + "_n")
            else:
                a("s_cmp_lt_u32 s58, 9"); a("s_cbranch_scc1 %s_n" % L)
        a.stamp("p1_loop")
        a("s_waitcnt lgkmcnt(0)")
        a("v_and_b32 v40, 1, v%d" % V_R); a("v_cmp_eq_u32 s[74:75], 1, v40")
        a("v_and_b32 v40, 2, v%d" % V_R); a("v_cmp_eq_u32 s[76:77], 2, v40")
        a("v_lshrrev_b32 v40, 2, v%d" % V_R); a("v_cmp_eq_u32 s[78:79], v40, v%d" % V_G)
        a("s_mov_b32 s46, %d" % f32(1.0/576)); a("s_mov_b32 s47, %d" % f32(1e-5))
        for T in range(2):
            s_, q_ = ST+8*T, ST+8*T+4
            a("v_cndmask_b32 v%d, v%d, v%d, s[74:75]" % (q_, q_, q_+1)); a("v_cndmask_b32 v%d, v%d, v%d, s[74:75]" % (q_+2, q_+2, q_+3))
            a("v_mul_f32 v%d, s46, v%d" % (s_, s_))
            a("v_cndmask_b32 v%d, v%d, v%d, s[76:77]" % (q_, q_, q_+2))
            a("v_mul_f32 v42, v%d, v%d" % (s_, s_))
            a("v_fma_f32 v%d, v%d, s46, -v42" % (q_, q_)); a("v_max_f32 v%d, 0, v%d" % (q_, q_)); a("v_add_f32 v%d, s47, v%d" % (q_, q_))
            a("v_rsq_f32 v%d, v%d" % (36+2*T, q_)); a("v_mul_f32 v%d, v%d, -v%d" % (37+2*T, 36+2*T, s_))
        a("s_lshl_b32 s46, s52, 9"); a("s_lshl_b32 s47, s53, 8"); a("s_add_u32 s46, s46, s47")
        a("v_lshl_add_u32 v40, v%d, 3, s46" % V_R)
        a("s_mov_b64 exec, s[78:79]")
        if swap:
            a("v_lshrrev_b32 v42, 1, v40")
            for T in range(2): a("ds_write_b32 v42, v%d offset:%d" % (36+2*T, 64*T)); a("ds_write_b32 v42, v%d offset:%d" % (37+2*T, 512 + 64*T))
        else: a("ds_write_b64 v40, v[36:37]"); a("ds_write_b64 v40, v[38:39] offset:128")
        a("s_mov_b64 exec, -1")
        a("s_lshl_b32 s47, s57, 6")
        if not swap:
            a("v_lshl_add_u32 v41, v%d, 4, s47" % V_G)
            a("ds_write_b128 v41, v[%d:%d] offset:1024" % (CS, CS+3)); a("ds_write_b128 v41, v[%d:%d] offset:1088" % (CS+4, CS+7))
        else:
            a("v_lshl_add_u32 v41, v%d, 2, s47" % V_R)
            a("ds_write_b32 v41, v%d offset:1024" % CS); a("ds_write_b32 v41, v%d offset:1088" % (CS+4))
        a("s_waitcnt lgkmcnt(0)"); a("s_barrier")
        Ls = L + "_s"
        a("v_mov_b32 v36, 0"); a("v_mov_b32 v37, 0")
        a("s_cmp_ge_u32 s60, 27"); a("s_cbranch_scc1 %s" % Ls)
        a("v_xor_b32 v42, 256, v40"); a("v_xor_b32 v43, 128, v41")
        if not swap:
            RS, CC = 144, 160
            a("ds_read_b64 v[%d:%d], v40" % (RS, RS+1)); a("ds_read_b64 v[%d:%d], v40 offset:128" % (RS+2, RS+3))
            a("ds_read_b64 v[%d:%d], v42" % (RS+4, RS+5)); a("ds_read_b64 v[%d:%d], v42 offset:128" % (RS+6, RS+7))
            for t in range(4):
                a("ds_read_b128 v[%d:%d], v%d offset:%d" % (CC+4*t, CC+4*t+3, 41 if t < 2 else 43, 1024+64*(t&1)))
            a("s_waitcnt lgkmcnt(0)")
            for T in range(4): a("v_pk_mul_f32 v[%d:%d], v[%d:%d], s[72:73] op_sel:[0,1] op_sel_hi:[1,1]" % (RS+2*T, RS+2*T+1, RS+2*T, RS+2*T+1))
            for t in range(4):
                for T in range(4):
                    d = ACC+16*t+4*T
                    for h in range(2):
                        a("v_pk_mul_f32 v[%d:%d], v[%d:%d], v[%d:%d] op_sel:[0,1] op_sel_hi:[1,1]" % (216+2*h, 217+2*h, CC+4*t+2*h, CC+4*t+2*h+1, RS+2*T, RS+2*T+1))
                    for h in range(2):
                        a("v_pk_fma_f32 v[%d:%d], v[%d:%d], v[%d:%d], v[%d:%d] op_sel_hi:[1,0,1]" % (d+2*h, d+2*h+1, d+2*h, d+2*h+1, RS+2*T, RS+2*T+1, 216+2*h, 217+2*h))
                    e = ACC+16*t+8*(T>>1)+2*(T&1)
                    for h in range(2): a("v_max3_f32 v%d, |v%d|, |v%d|, v%d" % (36+h, d+2*h, d+2*h+1, 36+h))
                    a("v_cvt_pk_bf16_f32 v%d, v%d, v%d" % (e, d, d+1)); a("v_cvt_pk_bf16_f32 v%d, v%d, v%d" % (e+1, d+2, d+3))
                    if T & 1:
                        a("buffer_store_dwordx4 v[%d:%d], v%d, s[%d:%d], s%d offen sc1" % (e-2, e+1, 208+t, R_WS, R_WS+3, 65+(T>>1)))
        else:
            RS, CC = 144, 176
            a("s_lshr_b32 s46, s46, 1"); a("v_lshl_add_u32 v40, v%d, 4, s46" % V_G); a("v_xor_b32 v42, 128, v40")
            for T in range(4):
                for h in range(2):
                    a("ds_read_b128 v[%d:%d], v%d offset:%d" % (RS+8*T+4*h, RS+8*T+4*h+3, 40 if T < 2 else 42, 64*(T&1)+512*h))
            for t in range(4):
                a("ds_read_b32 v%d, v%d offset:%d" % (CC+2*t, 41 if t < 2 else 43, 1024+64*(t&1)))
            a("s_waitcnt lgkmcnt(0)")
            for t in range(4):
                for T in range(4):
                    d = ACC+16*t+4*T
                    for h in range(2):
                        a("v_pk_mul_f32 v[%d:%d], v[%d:%d], v[%d:%d] op_sel_hi:[1,0]" % (216+2*h, 217+2*h, RS+8*T+4+2*h, RS+8*T+5+2*h, CC+2*t, CC+2*t+1))
                    for h in range(2):
                        a("v_pk_fma_f32 v[%d:%d], v[%d:%d], v[%d:%d], v[%d:%d]" % (d+2*h, d+2*h+1, d+2*h, d+2*h+1, RS+8*T+2*h, RS+8*T+2*h+1, 216+2*h, 217+2*h))
                    e = ACC+16*t+8*(T>>1)+2*(T&1)
                    for h in range(2): a("v_max3_f32 v%d, |v%d|, |v%d|, v%d" % (36+h, d+2*h, d+2*h+1, 36+h))
                    a("v_cvt_pk_bf16_f32 v%d, v%d, v%d" % (e, d, d+1)); a("v_cvt_pk_bf16_f32 v%d, v%d, v%d" % (e+1, d+2, d+3))
                    if T & 1:
                        a("buffer_store_dwordx4 v[%d:%d], v%d, s[%d:%d], s%d offen sc1" % (e-2, e+1, 208+t, R_WS, R_WS+3, 65+(T>>1)))
        a.label(Ls)
        if not swap: a("s_branch L_p1_pub")
    a.label("L_p1_pub")
    a("v_max_f32 v36, v36, v37")
    a.xg_reduce(36, 37, "v_max_f32")
    for r in (8, 4, 2, 1): a("v_max_f32_dpp v36, v36, v36 row_ror:%d row_mask:0xf bank_mask:0xf" % r)
    a("s_lshl_b32 s46, s%d, 2" % S_WAVE); a("v_mov_b32 v37, s46"); a("ds_write_b32 v37, v36 offset:2048")
    if "d_p1" in ABL: a("s_sleep 64")
    a.stamp("p1_stores")
    L = a.newlabel("Lp1f")
    a("s_cmp_lg_u32 s%d, 0" % S_WAVE); a("s_cbranch_scc1 %s_a" % L)
    a.get_nonce(36)
    a.label(L + "_a")
    a("s_waitcnt vmcnt(0) lgkmcnt(0)"); a("s_barrier")
    a("s_cmp_lg_u32 s%d, 0" % S_WAVE); a("s_cbranch_scc1 L_p1_done")
    a("v_mov_b32 v38, 0"); a("ds_read_b128 v[40:43], v38 offset:2048")
    a("s_lshl_b32 s46, s50, 4"); a("s_add_u32 s46, s46, s51"); a("s_lshl_b32 s46, s46, 7"); a("s_add_u32 s46, s46, %d" % (FLAG0 + 128*F1))
    a("v_mov_b32 v36, s%d" % S_NONCE); a("s_mov_b64 exec, 1"); a("s_waitcnt lgkmcnt(0)")
    a("v_max3_f32 v37, v40, v41, v42"); a("v_max_f32 v37, v37, v43")
    a("buffer_store_dwordx2 v[36:37], v38, s[%d:%d], s46 offen sc1" % (R_WS, R_WS+3))
    a("s_mov_b64 exec, -1")
    a("s_branch L_p1_done")
    a.label("L_p1_helper")
    if "d_h1" in ABL: a("s_sleep 64")
    swizzle_setup(a)
    a("s_lshl_b32 s48, s%d, 2" % S_XCD); a("s_add_u32 s48, s48, s%d" % S_SLOT); a("s_sub_u32 s48, s48, 28")
    a("s_waitcnt lgkmcnt(0)")
    if WSOFF: a("s_add_u32 s24, s24, %d" % WSOFF); a("s_addc_u32 s25, s25, 0")
    a.srd(R_WS, S_WS, WS_END)
    publish_nonce(a)
    a("s_add_u32 s49, s48, 32"); a("s_cmp_lt_u32 s49, 54"); a("s_cselect_b32 s49, s49, s48")
    B = 36864
    mark_setup(a)
    if MK0: mark_fill(a, MK0)
    sw_issue(a, 48, 0, 0); sw_issue(a, 49, 1, B)
    if MK1: mark_fill(a, MK1)
    a("s_waitcnt vmcnt(0)"); a("s_barrier")
    sw_process(a, 0, 0); sw_process(a, 1, B)
    L = a.newlabel("Lhn"); a("s_cmp_lg_u32 s%d, 0" % S_WAVE); a("s_cbranch_scc1 %s" % L); a.get_nonce(36); a.label(L)
    a("s_waitcnt vmcnt(0)"); a("s_barrier")
    sw_flags(a, (0, 1))
    a.stamp("h_small")
    if MK0 + MK1 < MKG: mark_fill(a, MKG - MK0 - MK1)
    a("s_waitcnt vmcnt(0)"); a("s_barrier")
    sw_flags(a, (), mark=True)
    a.label("L_p1_done")
    a.stamp("p1_done")

def generate(stop=99, stamps=False):
    a = G(stop, stamps)
    prologue(a)
    phase1(a)
    from phases import phase2, phase345, phase6
    if stop >= 2: phase2(a)
    if stop >= 3: phase345(a)
    if stop >= 6: phase6(a)
    a.label("L_fin")
    a.stamp_out()
    a.label("L_end")
    a("s_endpgm")
    for x in a.stubs: a(x)
    a.label("L_last")
    body, nops = fix_hazards(a.lines)
    return body, nops

HEADER = """; Fused transformer block (LN, QKV, sliding-window attention, Wo, shift-MLP, channel MLP) as one persistent kernel.
; 256 workgroups of 4 waves, one per CU; phases hand data over through d_ws with write-through stores and flags.
; @launch grid=(256,1,1) block=(256,1,1) lds=163840
.amdgcn_target "amdgcn-amd-amdhsa--gfx950"
.text
.globl %s
.p2align 8
.type %s,@function
%s:
""" % (KN, KN, KN)
FOOTER = """.section .rodata,"a"
.p2align 6
.amdhsa_kernel %s
  .amdhsa_next_free_vgpr 512
  .amdhsa_next_free_sgpr 102
  .amdhsa_accum_offset 256
  .amdhsa_group_segment_fixed_size 0
  .amdhsa_kernarg_size 88
  .amdhsa_user_sgpr_count 2
  .amdhsa_user_sgpr_kernarg_segment_ptr 1
  .amdhsa_system_sgpr_workgroup_id_x 1
.end_amdhsa_kernel
""" % KN

def main():
    import argparse
    p = argparse.ArgumentParser()
    p.add_argument("--stop", type=int, default=99); p.add_argument("--stamps", default=""); p.add_argument("--wsoff", type=int, default=0); p.add_argument("--rt", action="store_true")
    p.add_argument("-o", default="k.s")
    o = p.parse_args()
    global WSOFF, CLK
    if o.rt: CLK = 's_memrealtime'
    WSOFF = o.wsoff << 20
    st = STAMPSETS.get(o.stamps, o.stamps.split(',')) if o.stamps else None
    if st:
        st = ['start'] + list(st) + ['end']; assert len(st) <= 16
        open(o.o[:-2] + '.stamps', 'w').write(','.join(st))
    body, nops = generate(o.stop, st)
    text = HEADER + "\n".join(("" if l.endswith(":") else "  ") + l for l in body) + "\n" + FOOTER
    open(o.o, "w").write(text)
    build(o.o, o.o[:-2] + ".co", KN)
    n = sum(1 for l in body if l and not l.endswith(":"))
    print("instructions", n, "nop states added", nops)
    seen = set()
    for nm, takes in TRACES.items():
        errs = check_waits(body, takes)
        for e in errs[:4]:
            if e not in seen: print("WAIT[%s]" % nm, e); seen.add(e)

STAMPSETS = {
 "all": "p1_first p1_loop p1_done p2_ready p2_loaded p2_done p3_ready p4_ready p5_ready p5_done p6_ready p6_x p6_a p6_b".split(),
 "p1": "p1_issue p1_first p1_loop p1_stores p1_done p2_ready p2_loaded p2_done p3_ready p4_ready p5_ready p5_done p6_ready p6_x".split(),
 "p3k": "p2_done p3_ready p3_k0 p3_k9 p3_gemm p4_ready p4_k0 p4_k9 p4_gemm p5_ready p5_k0 p5_k9 p5_gemm".split(),
 "hop": "p1_stores p1_done p2_ready p2_loaded p2_done p3_ready p3_epi p4_ready p4_epi p5_ready p5_epi p6_ready p6_x p6_b".split(),
 "p6": "p6_x p6_p0 p6_a p6_s0 p6_s1 p6_s5 p6_s6 p6_s7 p6_b p7_ready".split(),
 "h": "h_small p1_stores p1_done p2_setup p2_ready p2_loaded p2_done".split(),
 "p4k": "p3_k0 p3_k9 p3_gemm p3_epi p4_ready p4_k0 p4_k9 p4_gemm p4_epi p5_ready p5_k0 p5_k9 p5_gemm p5_epi".split(),
 "p6x": "p2_done h_w3 h_w4 p5_gemm p5_epi p5_done p6_ready p6_st p6_x9 p6_x17 p6_x p6_p0".split(),
 "crit": "p1_done p2_loaded p2_done h_w3 h_w4 p5_epi p6_ready p6_st p6_x p6_a p6_s6 p6_s7 p6_b".split(),
 "p3": "p2_done p3_dma p3_drain p3_ready p3_gemm p3_epi p4_dma p4_drain p4_ready p4_gemm p4_epi p5_drain p5_ready p5_gemm".split(),
}
TRACES = {"w012": {"L_p7_main": True, "L_p1_qk_n": [False,True,False]}, "h3": {"L_p3_helper": True, "L_p1_qk_n": [False,True,False]}, "slow": {"L_p2_slow": True, "L_p1_qk_n": [False,True,False]}, "edge": {"L_p2_edge": True, "L_p1_qk_n": [False,True,False]}, "qk": {"L_p1_qk_n": [False,False,True,True,False]}, "v": {"L_p1_v0": True, "L_p1_v_n": [False,False,True,True,False]}, "helper": {"L_p1_helper": True}}

if __name__ == "__main__":
    sys.modules["gen"] = sys.modules["__main__"]
    main()
```

```python
from gen import *

NEG = 0xF149F2CA
SLEEP0 = dict(p2=0, p3=0, p4=0, p5=0, p6=18)
for _kv in os.environ.get('SLEEP', '').split(','):
    if _kv: SLEEP0[_kv.split('=')[0]] = int(_kv.split('=')[1])

W_LDS = 53248
AW1, AW2 = 40, 148
XT = 232
W1N = int(os.environ.get('W1N', 27))
PA, PS, R_C = 244, (3, 27, 45), R_B

def pf_lds(i):
    gq, k = divmod(i, 9)
    pre = ("s_mul_i32 s58, s79, %d\ns_add_u32 s58, s58, s73\ns_add_u32 m0, s58, %d\n" % (gq, 1024*k)) if k == 0 or i == 2 else ""
    post = "\ns_add_u32 m0, m0, 1024" if k < 8 and i != 1 else ""
    return pre + "buffer_load_dwordx4 v%d, s[%d:%d], s%d offen sc1 lds" % (PA+k, R_C, R_C+3, PS[gq]) + post

def roles345(a):
    a("s_lshr_b32 s46, s%d, 3" % S_SLOT); a("s_lshl_b32 s74, s%d, 2" % S_XCD); a("s_add_u32 s74, s74, s46"); a("s_add_u32 s75, s%d, 6" % S_SLOT); a("s_and_b32 s75, s75, 7")
    a("s_lshl_b32 s76, s74, 2"); a("s_add_u32 s76, s76, s%d" % S_WAVE)

def phase2(a):
    KL_, VL_ = 0, 27648
    a("s_lshr_b32 s50, s%d, 1" % S_SLOT); a("s_and_b32 s51, s%d, 1" % S_SLOT); a("s_lshl_b32 s46, s%d, 1" % S_XCD); a("s_add_u32 s51, s51, s46")
    a("s_mul_i32 s52, s51, %d" % HPSZ)
    a("s_add_u32 s46, s52, %d" % K_OFF); a.srd_s(R_A, S_WS, HPSZ, 46)
    a("s_add_u32 s46, s52, %d" % V_OFF); a.srd_s(R_B, S_WS, HPSZ, 46)
    a("s_mul_i32 s46, s50, 9216"); a("s_sub_u32 s46, s46, 18432"); a("s_lshl_b32 s47, s%d, 10" % S_WAVE); a("s_add_u32 s46, s46, s47")
    a("v_add_u32 v10, s46, v%d" % V_L16)
    for i in range(1, 7): a("v_add_u32 v%d, %d, v10" % (10+i, 4096*i))
    a("s_lshl_b32 s46, s50, 3"); a("s_lshl_b32 s53, s%d, 1" % S_WAVE); a("s_add_u32 s53, s53, s46")
    a("s_mul_i32 s54, s53, 1152"); a("s_add_u32 s54, s54, s52"); a("s_add_u32 s54, s54, %d" % Q_OFF)
    a("v_lshlrev_b32 v18, 4, v%d" % V_R)
    a("s_mul_i32 s46, s%d, 2304" % S_WAVE)
    a("v_add_u32 v20, s46, v%d" % V_L16)
    a("s_add_u32 s47, s46, 2048"); a("v_add_u32 v21, s47, v18")
    a("s_add_u32 s47, s46, %d" % VL_); a("v_add_u32 v22, s47, v%d" % V_L16)
    a("v_lshl_add_u32 v23, v%d, 2, v%d" % (V_R, V_G)); a("s_add_u32 s47, s47, 2048"); a("v_lshl_add_u32 v23, v23, 4, s47")
    for i in range(4):
        a("v_lshl_add_u32 v24, v%d, 2, %d" % (V_G, i)); a("v_cmp_gt_u32 s[%d:%d], v24, v%d" % (60+2*i, 61+2*i, V_R))
    a("v_cmp_eq_u32 s[68:69], 0, v%d" % V_G)
    a("v_mov_b32 v25, 0x%x" % NEG)
    for r in range(4): a("v_mov_b32 v%d, -1" % (228+r))
    a("v_and_b32 v225, 31, v%d" % V_LANE); a("v_lshlrev_b32 v225, 2, v225")
    VLA = 0
    for r in range(36): a("v_accvgpr_write_b32 a%d, s%d" % (VLA+r, S_ONES))
    roles345(a)
    a("s_mul_i32 s46, s75, 110592"); a("s_mul_i32 s47, s%d, 27648" % S_WAVE); a("s_add_u32 s70, s46, s47"); a("s_add_u32 s70, s70, %d" % WO_S)
    a("s_add_u32 s71, s70, %d" % SW); a("s_add_u32 s72, s71, %d" % SW)
    a("s_cmp_ge_u32 s75, 6"); a("s_cbranch_scc1 L_p2_hs")
    a("s_add_u32 s73, s47, %d" % W_LDS); a("s_mov_b32 s79, 9216")
    for gq in range(3): a("s_add_u32 s%d, s70, %d" % (PS[gq], 9216*gq))
    for i in range(9): a("v_add_u32 v%d, %d, v%d" % (PA+i, 1024*i, V_L16))
    a("s_mov_b32 s10, s%d" % S_WS); a("s_mov_b32 s11, s%d" % (S_WS+1)); a("s_mov_b32 s26, %d" % WS_END)
    a("s_branch L_p2_hd")
    a.label("L_p2_hs")
    a("s_mov_b32 s71, 0x70000000")
    a("s_mul_i32 s47, s%d, 9216" % S_WAVE); a("s_add_u32 s73, s47, %d" % W_LDS); a("s_mov_b32 s79, 36864")
    a("s_lshl_b32 s48, s74, 1"); a("s_add_u32 s48, s48, s75"); a("s_sub_u32 s48, s48, 6"); a("s_mul_i32 s48, s48, 3")
    a("s_mov_b32 s10, s%d" % S_W3); a("s_mov_b32 s11, s%d" % (S_W3+1)); a("s_mov_b32 s78, 9216")
    a("s_cmp_lt_u32 s48, 144"); a("s_cselect_b32 s26, %d, 0" % BW)
    for gq in range(3):
        a("s_add_u32 s46, s48, %d" % gq)
        a.sdiv(47, 56, 46, 18)
        a("s_lshl_b32 s56, s56, 2"); a("s_add_u32 s56, s56, s%d" % S_WAVE); a("s_mul_i32 s56, s56, %d" % (8*9216))
        a("s_mul_i32 s47, s47, 1152"); a("s_add_u32 s%d, s56, s47" % (PS[gq]))
    for i in range(9):
        a("v_add_u32 v24, %d, v%d" % (64*i, V_LANE)); a("v_mul_u32_u24 v26, 911, v24"); a("v_lshrrev_b32 v26, 16, v26")
        a("v_mul_u32_u24 v27, 72, v26"); a("v_sub_u32 v27, v24, v27"); a("v_mul_lo_u32 v26, v26, s78"); a("v_lshl_add_u32 v%d, v27, 4, v26" % (PA+i))
    a.label("L_p2_hd")
    a("v_mul_u32_u24 v7, 1152, v%d" % V_R); a("v_lshl_add_u32 v7, v%d, 4, v7" % V_G)
    a("s_mul_i32 s46, s76, 18432"); a("s_mul_i32 s47, s75, 192"); a("s_add_u32 s77, s46, s47")
    a("s_cmp_ge_u32 s75, 6"); a("s_cselect_b32 s77, 0x70000000, s77")
    L = a.newlabel("Lp2w")
    a("v_mov_b32 v19, %d" % (W_LDS + 4096))
    a("s_cmp_lg_u32 s%d, 0" % S_WAVE); a("s_cbranch_scc1 %s" % L)
    a("v_and_b32 v30, 2, v%d" % V_LANE); a("v_cmp_eq_u32 s[58:59], 0, v30"); a("v_cmp_gt_u32 vcc, 12, v%d" % V_LANE)
    a("s_andn2_b64 s[56:57], vcc, s[58:59]"); a("s_and_b64 s[58:59], vcc, s[58:59]")
    a("v_mov_b32 v34, 0x49800000"); a("v_mov_b32 v35, 0x7f800000")
    a("v_lshrrev_b32 v30, 2, v%d" % V_LANE); a("v_min_u32 v30, 2, v30"); a("v_add_u32 v30, s50, v30"); a("v_subrev_u32 v30, 2, v30"); a("v_max_i32 v30, 0, v30")
    a("v_bfe_u32 v31, v%d, 1, 1" % V_LANE); a("v_add_u32 v31, 1, v31"); a("v_cmp_gt_u32 vcc, 12, v%d" % V_LANE); a("v_cndmask_b32 v31, 0, v31, vcc")
    a("v_mul_u32_u24 v31, 576, v31"); a("v_and_b32 v32, 1, v%d" % V_LANE); a("v_mul_u32_u24 v32, 35, v32")
    a("s_mul_i32 s46, s51, 36"); a("v_add3_u32 v31, v31, v32, s46"); a("v_lshrrev_b32 v31, 7, v31")
    a("v_lshl_add_u32 v30, v30, 4, v31"); a("v_add_u32 v30, %d, v30" % F1)
    a.stamp("p2_setup")
    a.poll(30, 32, sleep0=SLEEP0["p2"], two=True)
    a("v_cndmask_b32 v30, 0, v33, s[58:59]"); a("v_cndmask_b32 v31, 0, v33, s[46:47]".replace("46:47", "56:57"))
    a("v_cmp_nle_f32 vcc, v31, v34"); a("v_cndmask_b32 v30, v30, v35, vcc")
    for r in (8, 4, 2, 1): a("v_max_f32_dpp v30, v30, v30 row_ror:%d row_mask:0xf bank_mask:0xf" % r)
    a("s_mov_b64 exec, 1"); a("ds_write_b32 v19, v30"); a("s_mov_b64 exec, -1"); a("s_waitcnt lgkmcnt(0)")
    a.label(L)
    a("s_barrier")
    a("ds_read_b32 v19, v19")
    a("v_min_u32 v38, 53, v%d" % V_LANE); a("v_add_u32 v38, %d, v38" % FS); a("v_lshlrev_b32 v38, 7, v38")
    fsq = "buffer_load_dword v39, v38, s[%d:%d], 0 offen offset:%d sc1" % (R_WS, R_WS+3, FLAG0)
    a.stamp("p2_ready")
    QR = 26
    a("buffer_load_dwordx4 v[%d:%d], v%d, s[%d:%d], s54 offen sc1" % (QR, QR+3, V_L16, R_WS, R_WS+3))
    a("buffer_load_dwordx4 v[%d:%d], v18, s[%d:%d], s54 offen offset:2048 sc1" % (QR+4, QR+7, R_WS, R_WS+3))
    a("buffer_load_dwordx4 v[%d:%d], v%d, s[%d:%d], s54 offen offset:1024 sc1" % (QR+8, QR+11, V_L16, R_WS, R_WS+3))
    a(fsq)
    a("s_lshl_b32 s46, s%d, 10" % S_WAVE)
    for R, base in ((R_A, KL_), (R_B, VL_)):
        for i in range(7):
            Ls = a.newlabel("Lp2d")
            if i == 6: a("s_cmp_eq_u32 s%d, 3" % S_WAVE); a("s_cbranch_scc1 %s" % Ls)
            a("s_add_u32 m0, s46, %d" % (base + 4096*i))
            a("buffer_load_dwordx4 v%d, s[%d:%d], 0 offen sc1 lds" % (10+i, R, R+3))
            if i == 6: a.label(Ls)
    a.srd(R_A, S_X, ACT)
    a("s_mov_b32 s%d, s10" % R_C); a("s_mov_b32 s%d, s11" % (R_C+1)); a("s_mov_b32 s%d, s26" % (R_C+2)); a("s_mov_b32 s%d, 0x20000" % (R_C+3))
    QF = 40
    a("s_waitcnt vmcnt(12)")
    for hd in range(2):
        for qt in range(2):
            q = QF + 12*hd + 6*qt
            for h in range(2): a("v_mov_b32 v%d, v%d" % (q+2+h, QR+8*hd+2*qt+h))
            a("v_cndmask_b32 v%d, 0, v%d, s[68:69]" % (q+hd, QR+4+2*qt+hd)); a("v_mov_b32 v%d, 0" % (q+1-hd))
            for h in range(2): a("v_mov_b32 v%d, v%d" % (q+4+h, q+h))
    for k in range(4):
        a("v_mov_b32 v%d, 0" % (216+k))
        for r in range(4):
            a("v_and_b32 v24, 0x7fff7fff, v%d" % (QF+6*k+r)); a("v_dot2c_f32_bf16 v%d, s%d, v24" % (216+k, S_ONES))
    a("v_max3_f32 v216, v216, v217, v218"); a("v_max_f32 v216, v216, v219")
    a.xg_reduce(216, 217)
    a("s_waitcnt lgkmcnt(0)"); a("v_mul_f32 v216, v19, v216"); a("v_mov_b32 v217, 0x42c00000"); a("v_cmp_nle_f32 s[58:59], v216, v217")
    MF, ML = 8, 12
    for i in range(4):
        a("v_cndmask_b32 v%d, v25, 0, s[%d:%d]" % (MF+i, 60+2*i, 61+2*i)); a("v_cndmask_b32 v%d, 0, v25, s[%d:%d]" % (ML+i, 60+2*i, 61+2*i))
    a("s_lshl_b32 s55, s50, 3"); a("s_lshl_b32 s46, s%d, 1" % S_WAVE); a("s_add_u32 s55, s55, s46"); a("s_sub_u32 s55, 16, s55"); a("s_max_i32 s55, s55, 0")
    a("s_lshl_b32 s56, s2, 2"); a("s_add_u32 s56, s56, s%d" % S_WAVE); a("s_mul_i32 s56, s56, 5120"); a("s_min_u32 s56, s56, %d" % (WO_S - T_OFF - 5120)); a("s_add_u32 s56, s56, %d" % T_OFF)
    L = a.newlabel("Lfs")
    a("s_cmp_lg_u32 s%d, 0" % S_WAVE); a("s_cbranch_scc1 %s" % L)
    a("v_cmp_ne_u32 vcc, s%d, v39" % S_NONCE); a("s_cbranch_vccz %s" % L)
    a("v_lshrrev_b32 v38, 7, v38")
    a.poll(38, 39, sleep0=0)
    a.label(L)
    a("s_waitcnt vmcnt(6)"); a("s_barrier")
    a.stamp("p2_loaded")
    a("s_cmp_lg_u64 s[58:59], 0")
    if "slow" in ABL: a("s_cmp_eq_u32 s2, s2")
    a("s_cbranch_scc1 L_p2_slow")
    a("s_cmp_lt_u32 s50, 2"); a("s_cbranch_scc1 L_p2_edge")
    M, NM, CZ = 16, 216, 26
    KF = 64
    S2, P, VM = 136, 168, 184
    S1 = S2
    OM, OL, R_, OUT = 192, 200, 32, 208
    marks = "s_mov_b32 s46, %d\nbuffer_load_dword v224, v225, s[%d:%d], s46 offen sc1" % (FP_OFF, R_WS, R_WS+3)
    def prefetch():
        o = [pf_lds(i) for i in range(2, 27)]
        for jj in range(3): o.append("buffer_load_dwordx4 v[%d:%d], v7, s[%d:%d], s77 offen offset:%d" % (XT+4*jj, XT+4*jj+3, R_A, R_A+3, 64*jj))
        for sb, ab in ((71, AW1),):
            for i in range(W1N):
                pre = "s_add_u32 s59, s%d, %d\n" % (sb, 1024*i) if i % 4 == 0 else ""
                o.append(pre + "buffer_load_dwordx4 a[%d:%d], v%d, s[%d:%d], s59 offen offset:%d sc1" % (ab+4*i, ab+4*i+3, V_L16, R_WS, R_WS+3, 1024*(i & 3)))
        return o
    for edge, slow in ((0, 0), (1, 0), (1, 1)):
      if edge: a.label("L_p2_slow" if slow else "L_p2_edge")
      pf = prefetch(); npf0 = None
      if "x_nopf" in ABL: pf = ["s_nop 0"]*55
      if "x_nomk" in ABL: pf = ["s_nop 0" if "store" in x else x for x in pf]
      if "x_now1" in ABL: pf = ["s_nop 0" if " a[" in x else x for x in pf]
      def take(n):
          o = pf[:n]; del pf[:n]; return o
      for head in range(2):
        def Q(qt, t): return QF + 12*head + 6*qt + 2*(t & 1)
        def K(t): return KF + 4*t
        def kread(m):
            o = ["ds_read_b128 v[%d:%d], v20 offset:%d" % (KF+8*m+2, KF+8*m+5, 2304*m + 1024*head)]
            if head == 0: o += ["ds_read_b64 v[%d:%d], v21 offset:%d" % (KF+8*m+6*b, KF+8*m+6*b+1, 2304*m + 8*b) for b in range(2)]
            return o
        def vleft(m): return "ds_read_b128 a[%d:%d], v23 offset:%d" % (VLA+4*m, VLA+4*m+3, 2304*m + 128*head)
        def vmain(m): return "ds_read_b128 v[%d:%d], v22 offset:%d" % (VM+4*(m & 1), VM+4*(m & 1)+3, 2304*m + 1024*head)
        def has(qt, t): return (t <= 16) if qt == 0 else (t >= 1)
        def mask(reg, qt, t):
            o = []
            for i in range(4):
                if t == qt: o.append("v_cndmask_b32 v%d, v25, v%d, s[%d:%d]" % (reg+i, reg+i, 60+2*i, 61+2*i))
                if t == 16+qt: o.append("v_cndmask_b32 v%d, v%d, v25, s[%d:%d]" % (reg+i, reg+i, 60+2*i, 61+2*i))
            return o
        def switch(t, moves):
            Ls = a.newlabel("Lsw")
            a("s_cmp_eq_u32 s55, %d" % t); a("s_cbranch_scc0 %s" % Ls)
            for x in moves: a(x)
            a.label(Ls)
        if head:
            L = a.newlabel("Lmk")
            a("s_cmp_lg_u32 s%d, 0" % S_WAVE); a("s_cbranch_scc1 %s_x" % L)
            a("s_mov_b32 s47, 100000"); a("s_waitcnt vmcnt(%d)" % (npf0 - len(pf)))
            a.label(L)
            a("v_cmp_ne_u32 vcc, s%d, v224" % S_NONCE)
            a("s_cbranch_vccz %s_x" % L)
            a("s_sleep 2"); a(marks); a("s_waitcnt vmcnt(0)")
            a("s_sub_u32 s47, s47, 1"); a("s_cbranch_scc0 %s" % L)
            a.label(L + "_x")
            a("s_waitcnt vmcnt(20)"); a("s_barrier")
            publish2(a, 224)
        AH = 3
        for m in range(AH if slow else 2):
            for x in kread(m): a(x)
        if slow:
            a("v_mov_b32 v%d, v25" % M); a("v_mov_b32 v%d, v25" % (M+1))
            if edge:
                for i in range(4): a("v_mov_b32 v%d, v25" % (CZ+i))
            def c1(qt, t): return CZ if edge else MF if t == qt else ML if t == 16+qt else None
            def maxes(t):
                o = []
                for qt in range(2):
                    if not has(qt, t): continue
                    s = S1 + 8*(t % 3) + 4*qt
                    if edge: o += mask(s, qt, t)
                    o.append("v_max3_f32 v%d, v%d, v%d, v%d" % (M+qt, s, s+1, M+qt))
                for qt in range(2):
                    if not has(qt, t): continue
                    s = S1 + 8*(t % 3) + 4*qt
                    o.append("v_max3_f32 v%d, v%d, v%d, v%d" % (M+qt, s+2, s+3, M+qt))
                return o
            for t in range(18):
                if t % 2 == 0:
                    if edge: switch(t, ["v_mov_b32 v%d, 0" % (CZ+i) for i in range(4)])
                    a("s_waitcnt lgkmcnt(%d)" % (len(kread(0))*min(AH-1, 8 - t//2)))
                ms = [mfma(S1+8*(t % 3)+4*qt, K(t), Q(qt, t), c1(qt, t)) for qt in range(2) if has(qt, t)]
                fill = (kread(t//2+AH) if t % 2 == 0 and t//2+AH < 9 else []) + (maxes(t-2) if t >= 2 else []) + (take(1) if t % 3 == 1 and head else [])
                interleave(a, ms, fill)
        def vstart():
            nonlocal npf0
            if head == 0:
                a("s_waitcnt vmcnt(%d)" % (28 + W1N - len(pf))); a("s_barrier")
                for q in range(5):
                    if q == 4: a("s_add_u32 s56, s56, 4096")
                    if "x_nomk" not in ABL: a("buffer_store_dwordx4 v[228:231], v%d, s[%d:%d], s56 offen offset:%d sc1" % (V_L16, R_WS, R_WS+3, 1024*(q & 3)))
                npf0 = len(pf); a(marks)
            a("s_mov_b32 exec_lo, 0x00030003"); a("s_mov_b32 exec_hi, 0x00030003")
            for m in range(9): a(vleft(m))
            a("s_mov_b64 exec, -1")
            a(vmain(0))
        if slow: vstart()
        if slow:
            for x in maxes(16) + maxes(17): a(x)
            for sw in ("v_permlane32_swap_b32", "v_permlane16_swap_b32"):
                for qt in range(2): a("v_mov_b32 v%d, v%d" % (30+qt, M+qt))
                for qt in range(2): a("%s v%d, v%d" % (sw, M+qt, 30+qt))
                for qt in range(2): a("v_max_f32 v%d, v%d, v%d" % (M+qt, M+qt, 30+qt))
            negs = ["v_sub_f32 v%d, 0, v%d" % (NM+4*qt+i, M+qt) for qt in range(2) for i in range(4)]
        else: negs = ["v_mov_b32 v%d, 0" % (NM+i) for i in range(4)]
        if edge:
            for i in range(len(negs)): a("v_mov_b32 v%d, v25" % (NM+i))
        def c2(qt, t): return NM+4*qt if slow else NM if edge else MF if t == qt else ML if t == 16+qt else None
        def qk(m):
            return [mfma(S2+16*(m & 1)+8*qt+4*b, K(2*m+b), Q(qt, b), c2(qt, 2*m+b)) for qt in range(2) for b in range(2) if has(qt, 2*m+b)]
        def pv(m):
            o = []
            for qt in range(2):
                p = P+8*(m & 1)+4*qt
                o.append(mfma(OM+4*qt, VM+4*(m & 1), p, None if m == 0 else OM+4*qt))
                o.append(mfma(OL+4*qt, VLA+4*m, p, None if m == 0 else OL+4*qt, ta="a"))
            return o
        if slow: switch(0, negs)
        else: a("s_waitcnt lgkmcnt(%d)" % len(kread(0)))
        for x in qk(0): a(x)
        for m in range(9):
            if edge and m < 8: switch(2*m+2, negs)
            mf = (qk(m+1) if m < 8 else []) + (pv(m-1) if m else [])
            va = []
            ld = take((3 if (m % 3 or head == 0) else 2) if slow else 0 if m + head == 0 else -(-len(pf)//(18 - 9*head - m)))
            for qt in range(2):
                p = P+8*(m & 1)+4*qt
                for b in range(2):
                    s = S2+16*(m & 1)+8*qt+4*b
                    if has(qt, 2*m+b):
                        if edge: va += mask(s, qt, 2*m+b)
                        va += ["v_exp_f32 v%d, v%d" % (s+i, s+i) for i in range(4)]
                    if ld and (b == 0 or qt == 0 or len(ld) > 0 and qt == 1 and b == 1): va.append(ld.pop(0))
                for b in range(2):
                    s = S2+16*(m & 1)+8*qt+4*b
                    if has(qt, 2*m+b):
                        va += ["v_cvt_pk_bf16_f32 v%d, v%d, v%d" % (p+2*b+h, s+2*h, s+2*h+1) for h in range(2)]
                    else:
                        va += ["v_mov_b32 v%d, 0" % (p+2*b+h) for h in range(2)]
            if slow:
                if m: a("s_waitcnt lgkmcnt(1)")
            else:
                a("s_waitcnt lgkmcnt(%d)" % (0 if m == 0 else 11 if m == 1 else 1))
                if m + 2 < 9: va = kread(m+2) + va
            if m == 1 and not slow:
                interleave(a, mf[:4], va[:len(va)//2]); a("s_waitcnt lgkmcnt(%d)" % (1 + len(kread(0)))); interleave(a, mf[4:], va[len(va)//2:])
            else: interleave(a, mf, va)
            if m == 0 and not slow: vstart()
            if m < 8: a(vmain(m+1))
        a("s_waitcnt lgkmcnt(0)")
        for x in pv(8): a(x)
        if head == 1:
            assert not pf
            a("s_mul_i32 s54, s53, 18432"); a("s_add_u32 s54, s54, %d" % O_OFF)
            a("s_lshl_b32 s46, s51, 10"); a("s_add_u32 s58, s46, s54"); a("s_add_u32 s59, s58, 18432")
            a("s_lshr_b32 s46, s51, 3"); a("s_add_u32 s46, s46, 16"); a("s_lshl_b32 s46, s46, 10"); a("s_add_u32 s54, s54, s46")
            a("s_and_b32 s46, s51, 7"); a("s_lshr_b32 s46, s46, 1"); a("s_lshl_b32 s46, s46, 8"); a("s_add_u32 s54, s54, s46")
            a("s_and_b32 s46, s51, 1"); a("s_lshl_b32 s46, s46, 3"); a("s_add_u32 s54, s54, s46"); a("s_add_u32 s47, s54, 18432")
        for qt in range(2): a("v_rcp_f32 v%d, v%d" % (30+qt, OL+4*qt+3))
        for qt in range(2):
            for i in range(4): a("v_mul_f32 v%d, v%d, v%d" % (OM+4*qt+i, OM+4*qt+i, 30+qt))
            for i in range(2): a("v_mul_f32 v%d, v%d, v%d" % (OL+4*qt+i, OL+4*qt+i, 30+qt))
        for qt in range(2):
            for h in range(2): a("v_cvt_pk_bf16_f32 v%d, v%d, v%d" % (OUT+4*qt+2*head+h, OM+4*qt+2*h, OM+4*qt+2*h+1))
            a("v_cvt_pk_bf16_f32 v%d, v%d, v%d" % (R_+2*qt+head, OL+4*qt, OL+4*qt+1))
      if not slow: a("s_branch L_p2_out")
    a.label("L_p2_out")
    a("buffer_store_dwordx4 v[%d:%d], v%d, s[%d:%d], s58 offen sc1" % (OUT, OUT+3, V_L16, R_WS, R_WS+3))
    a("buffer_store_dwordx4 v[%d:%d], v%d, s[%d:%d], s59 offen sc1" % (OUT+4, OUT+7, V_L16, R_WS, R_WS+3))
    a("s_mov_b64 exec, 0xffff")
    a("buffer_store_dwordx2 v[%d:%d], v%d, s[%d:%d], s54 offen sc1" % (R_, R_+1, V_L16, R_WS, R_WS+3))
    a("buffer_store_dwordx2 v[%d:%d], v%d, s[%d:%d], s47 offen sc1" % (R_+2, R_+3, V_L16, R_WS, R_WS+3))
    a("s_mov_b64 exec, -1")
    a.stamp("p2_done")
    if a.stop == 2:
        a("s_waitcnt vmcnt(0)")

_c0 = 2.0*math.log2(math.e)*math.sqrt(2/math.pi)
GS = (_c0*0.044715)**(1/3)
GK = _c0/GS

def gelu_consts(a): a("s_mov_b32 s48, %d" % f32(GS)); a("s_mov_b32 s49, %d" % f32(GK))

def gelu_poly(regs, t):
    o = ["v_pk_fma_f32 v[%d:%d], v[%d:%d], v[%d:%d], s[48:49] op_sel:[0,0,1] op_sel_hi:[1,1,1]" % (t+2*k, t+2*k+1, r, r+1, r, r+1) for k, r in enumerate(regs)]
    return o + ["v_pk_mul_f32 v[%d:%d], v[%d:%d], v[%d:%d]" % (t+2*k, t+2*k+1, t+2*k, t+2*k+1, r, r+1) for k, r in enumerate(regs)]

def gelu_pk(a, regs, t):
    for x in gelu_poly(regs, t): a(x)
    for k in range(2*len(regs)): a("v_exp_f32 v%d, -v%d" % (t+k, t+k))
    for k, r in enumerate(regs): a("v_pk_fma_f32 v[%d:%d], v[%d:%d], s[48:49], s[48:49] op_sel_hi:[1,0,0]" % (t+2*k, t+2*k+1, t+2*k, t+2*k+1))
    for k in range(2*len(regs)): a("v_rcp_f32 v%d, v%d" % (t+k, t+k))
    for k, r in enumerate(regs): a("v_pk_mul_f32 v[%d:%d], v[%d:%d], v[%d:%d]" % (r, r+1, r, r+1, t+2*k, t+2*k+1))

def stats_loads(a, off, stile, vt):
    a("v_lshlrev_b32 v%d, 3, v%d" % (vt+4, V_LANE))
    a("v_add_u32 v%d, 512, v%d" % (vt+5, vt+4)); a("v_cmp_gt_u32 vcc, 32, v%d" % V_LANE); a("v_mov_b32 v%d, 0x7fffffff" % vt)
    a("v_cndmask_b32 v%d, v%d, v%d, vcc" % (vt+5, vt, vt+5))
    a("s_mul_i32 s46, s%d, 768" % stile); a("s_add_u32 s46, s46, %d" % off)
    return ["buffer_load_dwordx2 v[%d:%d], v%d, s[%d:%d], s46 offen sc1" % (vt+2*k, vt+2*k+1, vt+4+k, R_WS, R_WS+3) for k in range(2)]

def stats_finish(a, vt, vmean, vrstd):
    a("v_add_f32 v%d, v%d, v%d" % (vt, vt, vt+2)); a("v_add_f32 v%d, v%d, v%d" % (vt+1, vt+1, vt+3))
    for sw in ("v_permlane32_swap_b32", "v_permlane16_swap_b32"):
        for k in range(2): a("v_mov_b32 v%d, v%d" % (vt+2+k, vt+k))
        for k in range(2): a("%s v%d, v%d" % (sw, vt+k, vt+2+k))
        for k in range(2): a("v_add_f32 v%d, v%d, v%d" % (vt+k, vt+k, vt+2+k))
    a("s_mov_b32 s47, %d" % f32(1.0/576))
    a("v_mul_f32 v%d, s47, v%d" % (vmean, vt)); a("v_mul_f32 v%d, v%d, v%d" % (vt, vmean, vmean))
    a("v_fma_f32 v%d, v%d, s47, -v%d" % (vt+1, vt+1, vt)); a("v_max_f32 v%d, 0, v%d" % (vt+1, vt+1))
    a("v_add_f32 v%d, %d, v%d" % (vt, f32(1e-5), vt+1)); a("v_rsq_f32 v%d, v%d" % (vrstd, vt))

def norm_ops(x, vs, vb, t):
    o = []
    for r in range(4):
        o.append("v_lshlrev_b32 v%d, 16, v%d" % (t+2*r, x+r)); o.append("v_and_b32 v%d, 0xffff0000, v%d" % (t+2*r+1, x+r))
    for r in range(8): o.append("v_fma_f32 v%d, v%d, v%d, v%d" % (t+r, t+r, vs, vb))
    for r in range(4): o.append("v_cvt_pk_bf16_f32 v%d, v%d, v%d" % (x+r, t+2*r, t+2*r+1))
    return o

def out_stats(a, pk, off, stores):
    S, Gm = WB+24, WB+28
    for jj in range(3):
        a(mfma(S, 20, pk+4*jj, S if jj else None)); a(mfma(Gm, pk+4*jj, pk+4*jj, Gm if jj else None))
    stores()
    a("s_mul_i32 s46, s53, 6"); a("s_add_u32 s46, s46, s51"); a("s_lshl_b32 s46, s46, 7"); a("s_add_u32 s46, s46, %d" % off)
    a("v_cndmask_b32 v%d, v%d, v%d, s[56:57]" % (Gm, Gm, Gm+1)); a("v_cndmask_b32 v%d, v%d, v%d, s[56:57]" % (Gm+2, Gm+2, Gm+3))
    a("v_cndmask_b32 v%d, v%d, v%d, s[68:69]" % (S+1, Gm, Gm+2))
    a("s_mov_b64 exec, s[76:77]")
    a("buffer_store_dwordx2 v[%d:%d], v9, s[%d:%d], s46 offen sc1" % (S, S+1, R_WS, R_WS+3))
    a("s_mov_b64 exec, -1")

AF, ACC, WB, HK, VMEAN, VRSTD = 64, 136, 160, 40, 52, 53
OS = WB

def tag_ops(regs, t):
    o = []; regs = list(regs)
    o.append("v_max3_u32 v%d, v%d, v%d, v%d" % (t, regs[0], regs[1], regs[2])); regs = regs[3:]
    while len(regs) >= 2: o.append("v_max3_u32 v%d, v%d, v%d, v%d" % (t, t, regs[0], regs[1])); regs = regs[2:]
    if regs: o.append("v_max_u32 v%d, v%d, v%d" % (t, t, regs[0]))
    return o + ["v_cmp_eq_u32 vcc, -1, v%d" % t]

def tag_branch(a, loads, regs, t, again=(), drain=False):
    L = a.newlabel("Ltg")
    a("s_cbranch_vccnz %s" % L)
    a.label(L + "_b")
    st = [L + ":"] + "\n".join(loads).split("\n") + ["s_waitcnt vmcnt(0)"] + tag_ops(regs, t)
    st += ["s_cmp_eq_u32 s79, 0", "s_cbranch_scc1 %s_b" % L, "s_sub_u32 s79, s79, 1", "s_cbranch_vccnz %s" % L]
    st += list(again) + (["s_waitcnt vmcnt(0)"] if drain and again else []) + ["s_branch %s_b" % L]
    a.stubs += st

UP = 8
PRE = [int(x) for x in os.environ.get('PRE', '1,3,3').split(',')]
NE = 12
def wpos(layout, b):
    if layout is None: return W_LDS//1024 + b
    w, i = divmod(b, 27)
    return layout[0] + NE*w + i if i < NE else layout[1] + (27-NE)*w + i - NE

def gemm96(a, loads, stage, delay, pre=(), each=None, stamp=None, extra=(), layout=None, early=(), before=None, after=None, init=None, apre=(0, 0)):
    a("s_waitcnt vmcnt(20)")
    a("s_barrier")
    nv = sum("buffer_load" in x for x in stage)
    n1 = len(stage) if nv else len(stage)//3
    for x in stage[:n1]: a(x)
    if delay: a("s_sleep %d" % delay)
    a("s_mov_b32 s79, 50000")
    a.stamp(stamp + "_ready")
    for x in pre: a(x)
    interleave(a, loads[:UP], stage[n1:])
    a("s_waitcnt vmcnt(%d) lgkmcnt(0)" % (UP + len(pre)))
    if before: before(a)
    a("s_barrier")
    AB, NA = apre
    spare = [18*(i+1)//(NA+1) for i in range(NA)]
    rot = [j for j in range(18) if j not in spare]
    def wreg(j): return ("a", AB + 24*spare.index(j)) if j in spare else ("v", WB + 24*(rot.index(j) % 3))
    def wr(j):
        o = []
        for t in range(6):
            q, r = divmod(wpos(layout, 18*t + j), 64)
            o.append("ds_read_b128 %s[%d:%d], v%d offset:%d" % (wreg(j)[0], wreg(j)[1]+4*t, wreg(j)[1]+4*t+3, (V_L16, 5, 6)[q], 1024*r))
        return o
    lg = []
    def rd(j):
        for x in wr(j): a(x); lg.append(j)
    def first():
        for j in rot[:3] + spare: rd(j)
    for x in early: a(x)
    if each: each(first)
    else: first()
    if init: init()
    a("s_waitcnt vmcnt(%d)" % (UP-2))
    fr = lambda j: range(AF+4*j, AF+4*j+8)
    for x in tag_ops(fr(0), 30): a(x)
    tag_branch(a, loads[0:2], fr(0), 30, loads[2:UP])
    if after: after(a)
    for j in range(18):
        ex = lambda q: min(len(extra), max(0, (q-9)*len(extra)//8))
        issued = min(18, UP+j) + ex(j)
        chk = j % 2 == 1 and j < 17
        young = len(lg) - 1 - max(i for i, q in enumerate(lg) if q == j)
        w = (["vmcnt(%d)" % (issued - 1 - (j+2))] if chk else []) + (["lgkmcnt(%d)" % young] if young < 15 or j < 3 else [])
        if w: a("s_waitcnt " + " ".join(w).replace("lgkmcnt(%d)" % young, "lgkmcnt(%d)" % min(15, young)))
        if j in (0, 9): a.stamp(stamp + "_k%d" % j)
        ms = [mfma(ACC+4*t, wreg(j)[1]+4*t, AF+4*j, None if j == 0 and not init else ACC+4*t, ta=wreg(j)[0]) for t in range(6)]
        todo = [q for q in rot if q not in lg and rot[rot.index(q)-3] < j]
        want = wr(todo[0]) if todo else []
        if want: lg += [todo[0]]*6
        fill = ([loads[UP+j]] if UP+j < 18 else []) + (tag_ops(fr(j+1), 30) if chk else []) + want + list(extra[ex(j):ex(j+1)])
        interleave(a, ms, fill)
        if chk: tag_branch(a, loads[j+1:j+3], fr(j+1), 30, loads[j+3:UP+j+1], drain=ex(j+1) > 0)

FP2Q = "s_mov_b32 s46, %d\nbuffer_load_dwordx4 v[16:19], v%d, s[%d:%d], s46 offen sc1" % (FP2_OFF, V_L16, R_WS, R_WS+3)

def marks2(a):
    L = a.newlabel("Lm2")
    a("s_cmp_lg_u32 s%d, 0" % S_WAVE); a("s_cbranch_scc1 %s_x" % L)
    a("s_mov_b32 s47, 100000")
    a.label(L)
    for r in range(4): a("v_xor_b32 v%d, s%d, v%d" % (16+r, S_NONCE, 16+r))
    a("v_or3_b32 v16, v16, v17, v18"); a("v_or_b32 v16, v16, v19"); a("v_cmp_ne_u32 vcc, 0, v16"); a("s_cbranch_vccz %s_x" % L)
    a(FP2Q); a("s_waitcnt vmcnt(0)")
    a("s_sub_u32 s47, s47, 1"); a("s_cbranch_scc0 %s" % L)
    a.label(L + "_x")

def publish2(a, vt):
    L = a.newlabel("Lmp"); a("s_cmp_lg_u32 s%d, 0" % S_WAVE); a("s_cbranch_scc1 %s" % L); a.set_mark(vt, FP2_OFF); a.label(L)

def wflags(a, first, va, vd):
    a("s_mul_i32 s46, s65, 18"); a("s_add_u32 s46, s46, %d" % (FS + first))
    a("v_min_u32 v%d, 17, v%d" % (va, V_LANE)); a("v_add_u32 v%d, s46, v%d" % (va, va)); a("v_lshlrev_b32 v%d, 7, v%d" % (va, va))
    a("buffer_load_dword v%d, v%d, s[%d:%d], 0 offen offset:%d sc1" % (vd, va, R_WS, R_WS+3, FLAG0))

def phase345(a):
    a("s_mov_b32 s50, s74"); a("s_mov_b32 s51, s75"); a("s_mov_b32 s53, s76")
    a("s_cmp_ge_u32 s51, 6"); a("s_cbranch_scc1 L_p3_helper")
    a("v_add_u32 v5, 65536, v%d" % V_L16); a("v_add_u32 v6, 131072, v%d" % V_L16)
    a("s_mul_i32 s46, s%d, %d" % (S_WAVE, 1024*NE)); a("v_add_u32 v7, s46, v%d" % V_L16)
    a("s_mul_i32 s46, s%d, %d" % (S_WAVE, 1024*(27-NE))); a("v_add_u32 v8, s46, v%d" % V_L16)
    a("v_add_u32 v62, %d, v7" % (112*1024)); a("v_add_u32 v63, %d, v8" % (52*1024))
    LAY4, LAY5 = (0, 52), (112, 0)
    a("s_mul_i32 s54, s53, 18432")
    a("s_mul_i32 s55, s51, 3072"); a("s_add_u32 s55, s55, s54")
    a("s_lshl_b32 s46, s51, 2"); a("s_add_u32 s46, s46, s%d" % S_WAVE); a("s_mul_i32 s46, s46, 3072"); a("s_mul_i32 s78, s50, 73728"); a("s_add_u32 s78, s78, s46")
    def w2(i0, i1, sb=72, ab=AW2):
        return [("s_add_u32 s59, s%d, %d\n" % (sb, 1024*(i & ~3)) if (i % 4 == 0 or i == i0) else "") +
                "buffer_load_dwordx4 a[%d:%d], v%d, s[%d:%d], s59 offen offset:%d sc1" % (ab+4*i, ab+4*i+3, V_L16, R_WS, R_WS+3, 1024*(i & 3)) for i in range(i0, i1)]
    def park(ab, lay, late):
        if late: return ["ds_write_b128 v%d, a[%d:%d] offset:%d" % (63 if lay[1] else 8, ab+4*i, ab+4*i+3, 1024*(i - NE)) for i in range(NE, 27)]
        return ["ds_write_b128 v%d, a[%d:%d] offset:%d" % (62 if lay[0] else 7, ab+4*i, ab+4*i+3, 1024*i) for i in range(NE)]
    def aloads(off):
        for q in range(5): a("s_add_u32 s%d, s54, %d" % (60+q, off + 4096*q))
        return ["buffer_load_dwordx4 v[%d:%d], v%d, s[%d:%d], s%d offen offset:%d sc1" % (AF+4*j, AF+4*j+3, V_L16, R_WS, R_WS+3, 60+(j >> 2), 1024*(j & 3)) for j in range(18)]
    def ostores(src, off):
        a("s_add_u32 s46, s55, %d" % off)
        for jj in range(3): a("buffer_store_dwordx4 v[%d:%d], v%d, s[%d:%d], s46 offen offset:%d sc1" % (src+4*jj, src+4*jj+3, V_L16, R_WS, R_WS+3, 1024*jj))
    a("v_and_b32 v19, 1, v%d" % V_R); a("v_cmp_eq_u32 s[56:57], 1, v19"); a("v_and_b32 v19, 2, v%d" % V_R); a("v_cmp_eq_u32 s[68:69], 2, v19")
    a("v_lshrrev_b32 v19, 2, v%d" % V_R); a("v_cmp_eq_u32 s[76:77], v19, v%d" % V_G); a("v_lshlrev_b32 v9, 3, v%d" % V_R)
    a("s_lshl_b32 s46, s53, 4"); a("v_add_u32 v20, s46, v%d" % V_R); a("s_mov_b32 s47, 18432")
    for k, sh in enumerate((1, -1, 2, -2)):
        a("v_subrev_u32 v21, %d, v20" % sh); a("v_ashrrev_i32 v22, 4, v21"); a("v_mul_lo_u32 v22, v22, s47")
        a("v_and_b32 v21, 15, v21"); a("v_lshl_add_u32 v21, v%d, 4, v21" % V_G); a("v_lshl_add_u32 v%d, v21, 4, v22" % (56+k))
    a("v_cmp_gt_u32 vcc, 32, v%d" % V_LANE); a("v_cndmask_b32 v60, v57, v56, vcc"); a("v_cndmask_b32 v61, v59, v58, vcc")
    for r in range(4): a("v_mov_b32 v%d, s%d" % (20+r, S_ONES))
    def init3():
        for k in range(12):
            a("v_lshlrev_b32 v%d, 16, v%d" % (ACC+2*k, XT+k)); a("v_and_b32 v%d, 0xffff0000, v%d" % (ACC+2*k+1, XT+k))
    N2 = int(os.environ.get("N2", 0))
    n3 = max(N2, NE)
    gemm96(a, aloads(O_OFF), [pf_lds(0), pf_lds(1)] + w2(W1N, 27, 71, AW1) + w2(0, N2), SLEEP0["p3"] if N2 < 8 else 0, stamp="p3", extra=w2(N2, n3), early=park(AW1, LAY4, False), init=init3, apre=(0, PRE[0]))
    a.stamp("p3_gemm")
    a(FP2Q)
    for k in range(12): a("v_cvt_pk_bf16_f32 v%d, v%d, v%d" % (HK+k, ACC+2*k, ACC+2*k+1))
    out_stats(a, HK, SH_OFF, lambda: ostores(HK, H_OFF))
    a.stamp("p3_epi")
    if a.stop == 3: a("s_waitcnt vmcnt(0)"); a("s_branch L_fin")
    cs = [mfma(WB+4*(i//9), AW1+4*i, 20, None if i % 9 == 0 else WB+4*(i//9), ta="a") for i in range(27)]
    a("s_mul_i32 s46, s%d, 192" % S_WAVE); a("s_add_u32 s46, s46, %d" % (48*1024)); a("v_lshl_add_u32 v24, v%d, 4, s46" % V_G)
    g = G(); interleave(g, [cs[(i % 3)*9 + i//3] for i in range(27)], park(AW1, LAY4, True))
    st4 = g.lines
    st4 += ["s_nop 7"] + ["ds_write_b128 v24, v[%d:%d] offset:%d" % (WB+4*k, WB+4*k+3, 64*k) for k in range(3)]
    CS = 232
    sl = stats_loads(a, SH_OFF, 53, 10); a("s_mov_b32 s65, s46"); sl = [x.replace("s46", "s65") for x in sl]
    def fin4(wreads):
        a("v_lshlrev_b32 v24, 4, v%d" % V_G)
        for k in range(12): a("ds_read_b128 v[%d:%d], v24 offset:%d" % ((CS if k % 2 == 0 else ACC)+4*(k//2), (CS if k % 2 == 0 else ACC)+4*(k//2)+3, 48*1024 + 64*k))
        wreads()
        a("s_waitcnt vmcnt(%d)" % UP)
        for x in tag_ops(range(10, 14), 30): a(x)
        tag_branch(a, sl, range(10, 14), 30, al4[:UP])
        stats_finish(a, 10, VMEAN, VRSTD)
        a("v_mul_f32 v12, v%d, v%d" % (VRSTD, VRSTD)); a("v_mul_f32 v12, v12, v11"); a("v_add_f32 v12, %d, v12" % f32(1e-5))
        a("v_rsq_f32 v12, v12"); a("v_mul_f32 v16, %d, v%d" % (f32(GS), VRSTD)); a("v_mul_f32 v16, v12, v16"); a("v_mul_f32 v17, v16, -v%d" % VMEAN)
        a("s_waitcnt lgkmcnt(%d)" % 15)
        for k in range(12): a("v_pk_add_f32 v[%d:%d], v[%d:%d], v[%d:%d]" % (CS+2*k, CS+2*k+1, CS+2*k, CS+2*k+1, ACC+2*k, ACC+2*k+1))
        for k in range(12): a("v_pk_mul_f32 v[%d:%d], v[%d:%d], v[16:17] op_sel:[0,1] op_sel_hi:[1,1]" % (CS+2*k, CS+2*k+1, CS+2*k, CS+2*k+1))
    if "d_mid" in ABL: a("s_sleep 64")
    al4 = aloads(H_OFF)
    gemm96(a, al4, st4, SLEEP0["p4"], pre=sl, each=fin4, stamp="p4", extra=w2(n3, 27), layout=LAY4, before=marks2, apre=(AW1, PRE[1]))
    a.stamp("p4_gemm")
    gelu_consts(a)
    for k in range(12): a("v_pk_fma_f32 v[%d:%d], v[%d:%d], v[16:17], v[%d:%d] op_sel_hi:[1,0,1]" % (ACC+2*k, ACC+2*k+1, ACC+2*k, ACC+2*k+1, CS+2*k, CS+2*k+1))
    g = G(); gelu_pk(g, [ACC+2*k for k in range(12)], AF)
    interleave(a, g.lines, park(AW2, LAY5, False))
    for k in range(12): a("v_cvt_pk_bf16_f32 v%d, v%d, v%d" % (OS+k, ACC+2*k, ACC+2*k+1))
    ostores(OS, T_OFF)
    a.stamp("p4_epi")
    if a.stop == 4: a("s_waitcnt vmcnt(0)"); a("s_branch L_fin")
    a.srd(R_A, S_WS, ACT, T_OFF)
    for q in range(5): a("s_mov_b32 s%d, %d" % (70+q, 4096*q))
    def vsel(j): return 56 if j < 4 else 60 if j == 4 else 57 if j < 9 else 58 if j < 13 else 61 if j == 13 else 59
    tl = ["buffer_load_dwordx4 v[%d:%d], v%d, s[%d:%d], s%d offen offset:%d sc1" % (AF+4*j, AF+4*j+3, vsel(j), R_A, R_A+3, 70+(j >> 2), 1024*(j & 3)) for j in range(18)]
    roles6(a)
    wflags(a, 54, 54, 55)
    a("s_waitcnt vmcnt(4)")
    def init5():
        a("v_mul_f32 v17, v%d, -v%d" % (VRSTD, VMEAN)); a("v_mov_b32 v16, v%d" % VRSTD)
        for k in range(12):
            a("v_lshlrev_b32 v%d, 16, v%d" % (ACC+2*k, HK+k)); a("v_and_b32 v%d, 0xffff0000, v%d" % (ACC+2*k+1, HK+k))
        for k in range(12):
            a("v_pk_fma_f32 v[%d:%d], v[%d:%d], v[16:17], v[16:17] op_sel:[0,0,1] op_sel_hi:[1,0,1]" % (ACC+2*k, ACC+2*k+1, ACC+2*k, ACC+2*k+1))
    gemm96(a, tl, park(AW2, LAY5, True), SLEEP0["p5"], stamp="p5", layout=LAY5, init=init5, apre=(0, PRE[2]))
    a.stamp("p5_gemm")
    for k in range(12): a("v_cvt_pk_bf16_f32 v%d, v%d, v%d" % (OS+k, ACC+2*k, ACC+2*k+1))
    out_stats(a, OS, SX_OFF, lambda: ostores(OS, X1_OFF))
    a.stamp("p5_epi")
    a("s_branch L_p5_pre")
    a.label("L_p3_helper")
    if "d_h3" in ABL: a("s_sleep 64")
    a("s_cmp_ge_u32 s48, 144"); a("s_cbranch_scc1 L_p3_touch")
    a("s_barrier")
    a(pf_lds(0)); a(pf_lds(1))
    swizzle_setup(a)
    a("s_add_u32 s48, s48, 54")
    for p in range(3):
        sw_big(a, 48, 60+3*p)
        a("s_lshl_b32 s53, s52, 10"); a("s_add_u32 s%d, s%d, s53" % (60+3*p, 60+3*p)); a("s_add_u32 s%d, s48, %d" % (62+3*p, FS))
        a("s_add_u32 s48, s48, 1")
    a("s_waitcnt vmcnt(0)"); a("s_barrier")
    for p in range(3): sw_process(a, p, W_LDS + 36864*p)
    a("s_waitcnt vmcnt(0)"); a("s_barrier")
    sw_flags(a, range(3))
    a.stamp("h_w3")
    a.label("L_p3_touch")
    roles6(a)
    NL = (SW << LCH)//128//32
    a("s_lshr_b32 s46, s65, %d" % LCH); a("s_mul_i32 s46, s46, %d" % (SW << LCH))
    a("s_and_b32 s47, s74, 3"); a("s_lshl_b32 s47, s47, 1"); a("s_add_u32 s47, s47, s75"); a("s_sub_u32 s47, s47, 6")
    if "xcd4" not in ABL:
        NL = BW//128//256
        a("s_mov_b32 s46, 0"); a("s_lshl_b32 s47, s74, 1"); a("s_add_u32 s47, s47, s75"); a("s_sub_u32 s47, s47, 6")
    a("s_lshl_b32 s47, s47, 2"); a("s_add_u32 s47, s47, s%d" % S_WAVE); a("s_mul_i32 s47, s47, %d" % (128*NL)); a("s_add_u32 s46, s46, s47")
    a.srd(R_A, S_W4, BW)
    a("v_lshlrev_b32 v10, 7, v%d" % V_LANE)
    for q in range(-(-NL//64) if "late4" not in ABL else 0):
        if NL - 64*q < 64: a("s_bfm_b64 exec, %d, 0" % (NL - 64*q))
        a("buffer_load_dword v11, v10, s[%d:%d], s46 offen" % (R_A, R_A+3)); a("s_add_u32 s46, s46, 8192")
    a("s_mov_b64 exec, -1")
    a.stamp("h_w4")
    wflags(a, 54, 54, 55)
    a(FP2Q)
    a("s_waitcnt vmcnt(0)")
    marks2(a)
    a.label("L_p5_pre")
    a.label("L_p5_done")
    a.stamp("p5_done")

WFL = os.environ.get("WFL", " sc1")
OFL = os.environ.get("OFL", "")
LCH = int(os.environ.get('LCH', 1))
RING = 184

def roles6(a):
    L = LCH
    a("s_lshr_b32 s46, s%d, %d" % (S_XCD, 3-L)); a("s_lshl_b32 s64, s46, %d" % (5-L)); a("s_lshr_b32 s67, s%d, %d" % (S_SLOT, L)); a("s_add_u32 s64, s64, s67")
    a("s_and_b32 s67, s67, 7")
    a("s_mov_b32 s67, 0")
    a("s_and_b32 s46, s%d, %d" % (S_XCD, (8 >> L) - 1)); a("s_lshl_b32 s65, s46, %d" % L); a("s_and_b32 s46, s%d, %d" % (S_SLOT, (1 << L) - 1)); a("s_add_u32 s65, s65, s46")
    a("s_lshl_b32 s46, s65, 2"); a("s_add_u32 s46, s46, s%d" % S_WAVE); a("s_mul_i32 s66, s46, %d" % (9*18432)); a("s_add_u32 s66, s66, %d" % W3_S)

def wload(j, s=58, ring=("a", RING)):
    o = "s_add_u32 s%d, s%d, 4096\n" % (s, s) if (j and j % 4 == 0) else ""
    return o + ("buffer_load_dwordx4 %s[%d:%d], v%d, s[%d:%d], s%d offen offset:%d" + WFL) % (ring[0], ring[1]+4*j, ring[1]+4*j+3, V_L16, R_WS, R_WS+3, s, 1024*(j & 3))

def ring_prefill(a, s):
    a("s_mul_i32 s%d, s67, 18432" % s); a("s_add_u32 s%d, s%d, s66" % (s, s))
    return [wload(j, s) for j in range(18)]

def norm_dot(x, t):
    o = []
    for r in range(4): o += ["v_dot2_f32_bf16 v%d, v%d, v%d, v17" % (t+2*r+h, x+r, 16+2*h) for h in range(2)]
    return o + ["v_cvt_pk_bf16_f32 v%d, v%d, v%d" % (x+r, t+2*r, t+2*r+1) for r in range(4)]

def phase6(a):
    AC, PK, RB, GT, XR = 40, 72, 80, 136, 64
    HB = 73728
    def xf(T, j):
        f = 4*j + T
        return ("a", 4*f) if f < 46 else ("v", 152 + 4*(f-46))
    a("s_mov_b32 s50, s64"); a("s_mov_b32 s51, s65"); a("s_mov_b32 s54, s66"); a("s_mov_b32 s52, s67")
    a("s_lshl_b32 s53, s50, 2"); a("s_add_u32 s53, s53, s%d" % S_WAVE)
    a("s_mul_i32 s56, s50, 72"); a("s_add_u32 s56, s56, s51"); a("s_lshl_b32 s56, s56, 2"); a("s_add_u32 s56, s56, s%d" % S_WAVE)
    a("s_lshl_b32 s56, s56, 11"); a("s_add_u32 s56, s56, %d" % PART)
    a("s_mul_i32 s46, s53, 18432")
    for q in range(5): a("s_add_u32 s%d, s46, %d" % (70+q, X1_OFF + 4096*q))
    a("s_mul_i32 s46, s%d, 18432" % S_WAVE); a("v_add_u32 v5, s46, v%d" % V_L16)
    sl = stats_loads(a, SX_OFF, 53, 10)
    a("s_mov_b32 s60, s46")
    sl = [x.replace("s46", "s60") for x in sl]
    a("v_mov_b32 v28, 0")
    a("global_load_dword v29, v28, s[%d:%d] sc1" % (S_DBG, S_DBG+1))
    L = a.newlabel("Lh")
    a("s_cmp_lg_u32 s%d, 0" % S_WAVE); a("s_cbranch_scc1 %s" % L)
    a("v_cmp_ne_u32 vcc, s%d, v55" % S_NONCE); a("s_cbranch_vccz %s" % L)
    a("v_lshrrev_b32 v54, 7, v54")
    a.poll(54, 55, sleep0=0)
    a.label(L)
    a("s_barrier")
    pre = ring_prefill(a, 59)
    NP = SLEEP0["p6"]
    for x in pre[:NP]: a(x)
    a.stamp("p6_ready")
    a("s_mov_b32 s79, 50000")
    for x in sl: a(x)
    def xload(j): return "buffer_load_dwordx4 v[%d:%d], v%d, s[%d:%d], s%d offen offset:%d sc1" % (XR+4*j, XR+4*j+3, V_L16, R_WS, R_WS+3, 70+(j >> 2), 1024*(j & 3))
    for j in range(UP): a(xload(j))
    a("v_add_u32 v32, 36864, v%d" % V_L16); a("v_add_u32 v33, %d, v%d" % (HB, V_L16)); a("v_add_u32 v34, %d, v%d" % (HB+36864, V_L16))
    a("s_lshr_b32 s46, s%d, 1" % S_WAVE); a("s_lshl_b32 s46, s46, 12"); a("s_and_b32 s47, s%d, 1" % S_WAVE); a("s_lshl_b32 s47, s47, 3")
    a("s_add_u32 s46, s46, s47"); a("v_add_u32 v35, s46, v33")
    gelu_consts(a)
    R3, ST, SEL, RS = 12, 32, 6, RB+24
    def natsel(d, sr, bit, t):
        o = ["s_bfe_u32 s66, s%d, %d" % (sr, 0x10000 + bit), "s_lshl_b32 s66, s66, 1", "v_lshrrev_b32 v%d, 3, v%d" % (t, V_R), "v_add_u32 v%d, s66, v%d" % (t, t),
             "v_cmp_eq_u32 s[66:67], v%d, v%d" % (t, V_G), "v_and_b32 v%d, 1, v%d" % (t, V_R), "v_lshlrev_b32 v%d, 4, v%d" % (t, t),
             "v_mov_b32 v%d, 0x3f80" % (t+1), "v_lshlrev_b32 v%d, v%d, v%d" % (t+1, t, t+1), "v_cndmask_b32 v%d, 0, v%d, s[66:67]" % (t+1, t+1),
             "v_bfe_u32 v%d, v%d, 1, 2" % (t, V_R)]
        for k in range(4): o += ["v_cmp_eq_u32 s[66:67], %d, v%d" % (k, t), "v_cndmask_b32 v%d, 0, v%d, s[66:67]" % (d+k, t+1)]
        return o
    a("v_lshrrev_b32 v26, 2, v%d" % V_R); a("v_cmp_eq_u32 s[64:65], v26, v%d" % V_G)
    a("v_and_b32 v26, 1, v%d" % V_R); a("v_lshlrev_b32 v26, 4, v26"); a("v_mov_b32 v27, 0x3f80"); a("v_lshlrev_b32 v27, v26, v27")
    a("v_cndmask_b32 v27, 0, v27, s[64:65]"); a("v_and_b32 v26, 2, v%d" % V_R); a("v_cmp_eq_u32 vcc, 0, v26")
    a("v_cndmask_b32 v%d, 0, v27, vcc" % (SEL+2)); a("v_cndmask_b32 v%d, v27, 0, vcc" % (SEL+3))
    for r in (0, 1): a("v_mov_b32 v%d, 0" % (SEL+r))
    for x in natsel(36, S_WAVE, 0, 26): a(x)
    def bload(reg, s, off=0, t="a"): return "buffer_load_dwordx4 %s[%d:%d], v%d, s[%d:%d], s%d offen offset:%d sc1" % (t, reg, reg+3, V_L16, R_WS, R_WS+3, s, off)
    a("s_waitcnt vmcnt(%d)" % UP)
    for x in tag_ops(range(10, 14), 30): a(x)
    tag_branch(a, sl, range(10, 14), 30, [xload(j) for j in range(UP)])
    a.stamp("p6_st")
    stats_finish(a, 10, 17, 16)
    a("v_mul_f32 v16, s48, v16"); a("v_cvt_pk_bf16_f32 v16, v16, 0"); a("v_lshlrev_b32 v18, 16, v16"); a("v_mul_f32 v17, v18, -v17")
    a("s_mul_i32 s60, s50, 73728")
    a("s_lshl_b32 s46, s51, 1"); a("s_lshr_b32 s47, s%d, 1" % S_WAVE); a("s_add_u32 s46, s46, s47"); a("s_lshl_b32 s46, s46, 10"); a("s_add_u32 s78, s46, s60")
    order = [("x", j) for j in range(UP)]
    todo = [("x", j) for j in range(UP, 18)] + [("w", j) for j in range(NP, 18)]
    for j in range(0, 18, 2):
        a("s_waitcnt vmcnt(%d)" % (len(order) - 1 - order.index(("x", j+1))))
        for x in tag_ops(range(XR+4*j, XR+4*j+8), 30): a(x)
        n = 2 if j < 10 else -(-len(todo)//(9 - j//2))
        for k, q in todo[:n]:
            a(xload(q) if k == "x" else pre[q]); order.append((k, q))
        del todo[:n]
        later = [q for k, q in order if k == "x" and q > j+1]
        tag_branch(a, [xload(j), xload(j+1)], range(XR+4*j, XR+4*j+8), 30, [xload(q) for q in later], drain=order[-1][0] == "w")
        if j in (8, 16): a.stamp("p6_x%d" % (j+1))
        n0, n1 = norm_dot(XR+4*j, 20), norm_dot(XR+4*j+4, 40)
        for x in n0[:8] + n1[:8] + n0[8:]: a(x)
        a("ds_write_b128 v5, v[%d:%d] offset:%d" % (XR+4*j, XR+4*j+3, 1024*j))
        for x in n1[8:]: a(x)
        a("ds_write_b128 v5, v[%d:%d] offset:%d" % (XR+4*j+4, XR+4*j+7, 1024*j+1024))
    assert not todo
    LT = 1 if "late4" in ABL else 0
    if LT:
        a.srd(R_A, S_W4, BW)
        a("s_lshl_b32 s46, s2, 2"); a("s_add_u32 s46, s46, s%d" % S_WAVE); a("s_mul_i32 s46, s46, %d" % (41*128))
        a("v_lshlrev_b32 v30, 7, v%d" % V_LANE); a("s_bfm_b64 exec, 41, 0")
        a("buffer_load_dword v31, v30, s[%d:%d], s46 offen" % (R_A, R_A+3))
        a("s_mov_b64 exec, -1")
    a("v_readfirstlane_b32 s%d, v29" % S_NONCE)
    for r in (4, 5): a("v_mov_b32 v%d, 0" % (SEL+r))
    a("s_waitcnt lgkmcnt(0)"); a("s_barrier")
    a.stamp("p6_x")
    def fread(j, va):
        o = []
        for T in range(4):
            t, r = xf(T, j)
            o.append("ds_read_b128 %s[%d:%d], v%d offset:%d" % (t, r, r+3, va[T >> 1], (T & 1)*18432 + 1024*j))
        return o
    def gelu(ac):
        b = gelu_poly([ac+2*k for k in range(8)], GT)
        o = []
        for T in range(4):
            x = ac + 4*T; t = GT + 4*T
            o += ["v_exp_f32 v%d, -v%d" % (t+i, t+i) for i in range(4)]
            o += ["v_fma_f32 v%d, v%d, s48, s48" % (t+i, t+i) for i in range(4)]
            o += ["v_rcp_f32 v%d, v%d" % (t+i, t+i) for i in range(4)]
            o += ["v_mul_f32 v%d, v%d, v%d" % (t+i, t+i, x+i) for i in range(4)]
            o += ["v_cvt_pk_bf16_f32 v%d, v%d, v%d" % (PK+2*T+h, t+2*h, t+2*h+1) for h in range(2)]
            o.append("ds_write_b64 v5, v[%d:%d] offset:%d" % (PK+2*T, PK+2*T+1, 1024*T))
        return b, o
    def wt(op): return 2 if op.startswith(("v_exp", "v_rcp")) else min(2, len(op.split("\n")))
    RA = ("a", RING); RBB = ("v", RB)
    def subpass(ac, fill, first=None, loads=None, at=None, ring=RA, depth=18, batch=(), head=(), c0=None, more=None):
        if "p6nogelu" in ABL and len(fill) > 20: fill = []; batch = ()
        if "p6nost" in ABL: fill = [x for x in fill if "buffer_store" not in x]
        fill = list(fill); head = list(head)
        seq = [(2*p + q, T) for p in range(9) for T in range(4) for q in range(2)]
        LA = 12
        rd = [fread(j, first)[T] for j, T in seq] if first else []
        for x in rd[:LA]: a(x)
        def wait(m):
            w = []
            if m % 8 == 0: w.append("vmcnt(%d)" % (depth - 2 + (more(m//4 - 1) if more else 0)))
            if first and m % 2 == 0: w.append("lgkmcnt(%d)" % max(0, min(LA, 72 - m) - 2))
            return "s_waitcnt " + " ".join(w) if w else None
        for m, (j, T) in enumerate(seq):
            if wait(m): a(wait(m))
            if at and m % 4 == 0 and m//4 in at: at[m//4]()
            t, r = xf(T, j)
            a(mfma(ac+4*T, ring[1]+4*j, r, (None if c0 is None else c0+4*T) if j == 0 else ac+4*T, ta=ring[0], tb=t))
            room = 2
            if m + LA < len(rd): a(rd[m + LA]); room -= 1
            if m < 3:
                n = (len(head) + 2 - m)//(3 - m)
                for x in head[:n]: a(x)
                del head[:n]
            if m == 3:
                for x in batch: a(x)
            if T == 3:
                ld = "" if ("p6nold" in ABL and loads is None) else (loads(j) if loads else
                     ("buffer_load_dwordx4 a[%d:%d], v%d, s[%d:%d], s58 offen offset:%d" + WFL) % (RING+4*j, RING+4*j+3, RB+3+(j >> 2) if j > 3 else V_L16, R_WS, R_WS+3, 1024*(j & 3)))
                if ld: a(ld); room -= len(ld.split("\n"))
            if m < 71 and wait(m+1): room -= 1
            if m < 4: continue
            later = sum(2 - (q % 8 >= 6) - (q % 8 == 7 and q < 71) for q in range(m+1, 72))
            while fill and (wt(fill[0]) <= room or sum(wt(x) for x in fill) > later):
                room -= wt(fill[0]); a(fill.pop(0))
        assert not fill
    def nexttile():
        return ["s_mov_b32 s62, s61", "s_add_u32 s61, s61, 1", "s_add_u32 s54, s54, 18432", "s_mov_b32 s58, s54",
                "s_lshl_b32 s46, s62, 13", "v_add_u32 v5, s46, v35"]
    a("s_mov_b32 s61, 0"); a("s_add_u32 s54, s54, 18432"); a("s_mov_b32 s58, s54")
    for q in range(1, 5): a("v_add_u32 v%d, %d, v%d" % (RB+3+q, 4096*q, V_L16))
    res = ["s_add_u32 s62, s78, %d\n" % ((X1_OFF, H_OFF)[j >> 2] + 18432*(j & 3)) + bload(RS+4*j, 62, t="v") for j in range(8)]
    def resadd():
        for k in range(2):
            for T in range(4): a(mfma(R3+4*T, 36, RS+16*k+4*T, None if k == 0 else R3+4*T))
    subpass(AC, [], first=(V_L16, 32), at={2*j+1: (lambda j=j: a(res[j])) for j in range(8)}, more=lambda j: min((j+1)//2, 8) + LT)
    if "d_line" in ABL:
        for q in range(1024): a("v_mov_b32_e64 v%d, v1" % (30 + (q & 1)))
    if "d_loop" in ABL:
        L = a.newlabel("Ld"); a("s_mov_b32 s46, 16"); a.label(L)
        for q in range(64): a("v_mov_b32_e64 v%d, v1" % (30 + (q & 1)))
        a("s_sub_u32 s46, s46, 1"); a("s_cmp_lg_u32 s46, 0"); a("s_cbranch_scc1 %s" % L)
    a.stamp("p6_p0")
    WF, DA, TA = RING+48, RB+16, RB+22
    a.srd(R_B, S_W4, BW + 4096, -4096)
    a("v_lshrrev_b32 v30, 3, v%d" % V_LANE); a("v_bfe_u32 v31, v%d, 4, 1" % V_LANE); a("v_lshlrev_b32 v31, 1, v31")
    a("v_and_b32 v%d, 7, v%d" % (TA, V_LANE)); a("v_xor_b32 v31, v31, v%d" % TA); a("v_mul_u32_u24 v30, 1152, v30")
    a("v_lshl_add_u32 v%d, v31, 4, v30" % DA); a("v_xor_b32 v31, 4, v31"); a("v_lshl_add_u32 v%d, v31, 4, v30" % (DA+1))
    for q in (5, 4, 3, 2, 1, 0): a("v_add_u32 v%d, %d, v%d" % (DA+q, 9216*q - 1024*(q % 3) + 4096, DA + (q & 1)))
    a("v_lshrrev_b32 v30, 2, v%d" % V_R); a("v_lshl_add_u32 v31, v%d, 3, v30" % V_G); a("v_lshlrev_b32 v31, 7, v31")
    a("v_lshrrev_b32 v30, 1, v30"); a("v_and_b32 v%d, 1, v%d" % (TA, V_G)); a("v_lshl_add_u32 v30, v%d, 1, v30" % TA)
    a("v_xor_b32 v30, s%d, v30" % S_WAVE); a("v_lshl_add_u32 v31, v30, 5, v31"); a("v_and_b32 v30, 3, v%d" % V_R)
    a("v_lshl_add_u32 v%d, v30, 3, v31" % TA)
    a("s_mul_i32 s55, s51, 12"); a("s_add_u32 s55, s55, s%d" % S_WAVE); a("s_mul_i32 s55, s55, %d" % (48*1152))
    a("s_mul_i32 s63, s%d, 6144" % S_WAVE)
    a("s_barrier")
    for r in range(4): a("v_mov_b32 v%d, -1" % (RB+r))
    def marker(p):
        def f():
            L = a.newlabel("Lmk"); a("s_cmp_lt_u32 s59, 2"); a("s_cbranch_scc0 %s" % L)
            if p == 0: a("s_add_u32 s46, s51, s59"); a("s_add_u32 s46, s46, 6"); a("s_and_b32 s46, s46, 7"); a("s_lshl_b32 s46, s46, 16"); a("s_add_u32 s77, s46, s56")
            a("buffer_store_dwordx4 v[%d:%d], v%d, s[%d:%d], s77 offen offset:%d sc1" % (RB, RB+3, V_L16, R_WS, R_WS+3, 1024*p))
            a.label(L)
        return f
    a("s_mov_b32 s59, 0")
    a.label("L_p6_a")
    for half in (1, 0):
        b, o = gelu(AC+16*(1-half))
        subpass(AC+16*half, o, batch=b, head=nexttile(), at={8: marker(1-half)})
    a("s_add_u32 s59, s59, 1"); a("s_cmp_lt_u32 s59, 3"); a("s_cbranch_scc1 L_p6_a")
    b, o = gelu(AC)
    subpass(AC+16, o, batch=b, head=nexttile(), at={9: resadd})
    CH = 24576
    def slot(n): return n if n < 3 else (0, 3, 1, 4, 2, 5)[(n - 3) % 6]
    def src(c, s): return "s_add_u32 s58, s%d, %d" % (s, 192*1152*c)
    def dma(n, s):
        o = []
        for q in range(6):
            pre = src(n % 3, s) + "\n" if q == 0 else ""
            if q % 3 == 0: pre = "s_add_u32 m0, s63, %d\n" % (CH*slot(n) + 1024*q) + (pre or "s_nop 0\n")
            o.append(pre + "buffer_load_dwordx4 v%d, s[%d:%d], s58 offen offset:%d lds" % (DA+q, R_B, R_B+3, 1024*(q % 3)))
        return o
    def origin(d, step):
        if step == 0: return ["s_add_u32 s%d, s55, 1024" % d]
        return ["s_add_u32 s46, s51, %s" % step, "s_and_b32 s46, s46, 7", "s_lshl_b32 s46, s46, 7", "s_add_u32 s%d, s55, s46" % d]
    for x in origin(64, 0) + origin(65, 1): a(x)
    d012 = dma(0, 64) + dma(1, 64) + dma(2, 64)
    b, o = gelu(AC+16)
    subpass(AC, o, batch=b, head=nexttile(), loads=lambda j: d012[j])
    a("s_lshl_b32 s46, s61, 13"); a("v_add_u32 v5, s46, v35")
    a("s_waitcnt vmcnt(12) lgkmcnt(0)"); a("s_barrier")
    a.stamp("p6_a")
    def pstore(ac):
        o = ["v_cvt_pk_bf16_f32 v%d, v%d, v%d" % (PK+k, ac+2*k, ac+2*k+1) for k in range(8)]
        o += ["buffer_store_dwordx4 v[%d:%d], v%d, s[%d:%d], s62 offen offset:%d sc1" % (PK+4*p, PK+4*p+3, V_L16, R_WS, R_WS+3, 1024*p) for p in range(2)]
        return o
    def dest(step):
        if step == 0: return ["s_add_u32 s62, s56, %d" % (8*65536)]
        return ["s_add_u32 s46, s51, %s" % step, "s_and_b32 s46, s46, 7", "s_lshl_b32 s46, s46, 16", "s_add_u32 s62, s46, s56"]
    def wf(pp): return (RB, RB+8, ST)[pp % 3]
    def wread(n, p):
        o = ["v_add_u32 v%d, %d, v%d" % (TA+1, CH*slot(n), TA)] if p == 0 else []
        pp = 3*n + p
        return o + ["ds_read_b64_tr_b16 v[%d:%d], v%d offset:%d" % (wf(pp)+4*q+2*hh, wf(pp)+4*q+2*hh+1, TA+1, 4096*(2*p+q) + 512*hh) for q in range(2) for hh in range(2)]
    def step(s, ac, fill, head=(), first=None, c0=None, before={}, after={}, at={}, batch=(), hurry=None, evens=()):
        if "p6nost" in ABL: fill = [x for x in fill if "buffer_store" not in x]
        if "p6nold" in ABL: after = {k: [x for x in v if " lds" not in x] or ["s_nop 0"] for k, v in after.items()}
        fill = list(fill); head = list(head); lg = list(step.lg); nfill = len(fill)
        seq = [(2*p + q, T) for p in range(9) for T in range(4) for q in range(2)]
        hr = ["ds_read_b128 %s[%d:%d], v%d offset:%d" % (xf(T, j)[0], xf(T, j)[1], xf(T, j)[1]+3, first[j//9], 1024*(4*(j % 9) + T)) for j, T in seq] if first else []
        def lds(x, tag):
            a(x)
            if x.startswith("ds_"): lg.append(tag)
        def upto(tag):
            if tag in lg:
                n = len(lg) - 1 - max(i for i, t in enumerate(lg) if t == tag)
                a("s_waitcnt lgkmcnt(%d)" % min(n, 15)); del lg[:len(lg) - min(n, 15)]
                return 1
            return 0
        for i, x in enumerate(hr[:8]): lds(x, ("h", i))
        extra = [(w - 72, x) for w, x in step.extra]
        for m, (j, T) in enumerate(seq):
            p, c = m//8, m//24
            room = 2
            if m % 24 == 8 and 3*s + c < 26:
                if c in before: before[c]()
                upto("x")
                if "p6nobar" not in ABL: a("s_barrier")
                assert not extra
                ex = after.get(c, []); extra = [(m + 24*k//len(ex), x) for k, x in enumerate(ex)]
            if m % 8 == 0:
                upto(("w", 9*s + p))
                nx = wread(3*s + (p+2)//3, (p+2) % 3) if 9*s + p < 79 else []
            if m % 2 == 0 and first: upto(("h", m+1))
            if m % 4 == 0 and m//4 in at: at[m//4]()
            t, r = xf(T, j)
            a(mfma(ac+4*T, wf(9*s+p)+4*(j & 1), r, (None if c0 is None else c0+4*T) if j == 0 else ac+4*T, tb=t))
            if nx:
                lds(nx.pop(0), ("w", 9*s + p + 2)); room -= 1
            if m + 8 < len(hr): lds(hr[m+8], ("h", m+8)); room -= 1
            if m < 3:
                n = (len(head) + 2 - m)//(3 - m)
                for x in head[:n]: a(x)
                del head[:n]
            while extra and extra[0][0] <= m:
                lds(extra.pop(0)[1], "x"); room -= 1
            if m % 2 == 0 and m//2 < len(evens): a(evens[m//2]); room -= 1
            if m == 3:
                for x in batch: a(x)
            if m >= 4:
                while fill and (wt(fill[0]) <= room or hurry and len(fill)*(hurry - 3) > nfill*(hurry - m)):
                    room -= wt(fill[0]); lds(fill.pop(0), "x")
        assert not fill
        step.lg = lg; step.extra = extra
    def mix(x, y): return [z for pair in zip(x, y) for z in pair]
    def vm(n): return lambda: a("s_waitcnt vmcnt(%d)" % n)
    def seq(*fs):
        def f():
            for x in fs: x()
        return f
    def wave(w, body):
        def f():
            L = a.newlabel("Lex"); a("s_cmp_lg_u32 s%d, %d" % (S_WAVE, w)); a("s_cbranch_scc1 %s" % L); body(); a.label(L)
        return f
    a("s_lshl_b32 s70, s50, 10"); a("s_add_u32 s70, s70, %d" % (FLAG0 + 128*FA)); a("s_lshl_b32 s46, s51, 7"); a("s_add_u32 s68, s70, s46")
    a("s_mul_i32 s46, s50, 9"); a("s_add_u32 s46, s46, s51"); a("s_lshl_b32 s46, s46, 16"); a("s_lshl_b32 s47, s%d, 11" % S_WAVE)
    a("s_add_u32 s46, s46, s47"); a("s_add_u32 s69, s46, %d" % PART)
    def publish(c):
        def f():
            a("s_add_u32 s46, s%d, %d" % (S_NONCE, c)); a("v_mov_b32 v29, s46"); a("s_mov_b64 exec, 1")
            a("buffer_store_dword v29, v28, s[%d:%d], s68 offen sc1" % (R_WS, R_WS+3))
            a("s_mov_b64 exec, -1")
        return wave(0, f)
    askq = "buffer_load_dword v31, v5, s[%d:%d], s70 offen sc1" % (R_WS, R_WS+3)
    ask = wave(0, lambda: a(askq))
    def need(c, n):
        def f():
            L = a.newlabel("Lcf")
            a("s_add_u32 s73, s%d, %d" % (S_NONCE, c)); a("s_mov_b32 s47, 100000"); a("s_waitcnt vmcnt(%d)" % n)
            a.label(L)
            a("v_subrev_u32 v30, s73, v31"); a("v_cmp_lt_u32 vcc, 7, v30"); a("s_cbranch_vccz %s_x" % L)
            a("s_sleep 1"); a(askq); a("s_waitcnt vmcnt(0)")
            a("s_sub_u32 s47, s47, 1"); a("s_cbranch_scc0 %s" % L)
            a.label(L + "_x")
        return wave(0, f)
    step.extra = []
    a("v_mov_b32 v%d, v33" % (RB+24)); a("v_mov_b32 v%d, v34" % (RB+25))
    for x in wread(0, 0) + wread(0, 1): a(x)
    step.lg = [("w", 0)]*4 + [("w", 1)]*4
    A0, A1 = AC+16, AC
    b, o = gelu(AC)
    step(0, A0, o, first=(RB+24, RB+25), head=origin(64, 2), batch=b, hurry=48, before={0: vm(6), 1: vm(0), 2: vm(6)},
         after={1: dma(3, 65) + dma(4, 65), 2: dma(5, 65) + dma(6, 64)})
    a.stamp("p6_s0")
    a("v_and_b32 v5, 7, v%d" % V_LANE); a("v_cmp_eq_u32 vcc, s51, v5"); a("v_xor_b32 v30, 1, v5")
    a("v_cndmask_b32 v5, v5, v30, vcc"); a("v_lshlrev_b32 v5, 7, v5")
    step(1, A1, pstore(A0), head=dest(0) + origin(65, 3), before={0: vm(12), 1: vm(18), 2: vm(18)},
         after={0: dma(7, 64) + dma(8, 64), 1: dma(9, 65), 2: dma(10, 65)})
    a.stamp("p6_s1")
    a("s_mov_b32 s71, 2")
    a.label("L_p6_b")
    w18 = {0: vm(18), 1: vm(18), 2: vm(18)}
    def last(body):
        def f():
            L = a.newlabel("Ll"); a("s_cmp_eq_u32 s71, 4"); a("s_cbranch_scc0 %s" % L); body(); a.label(L)
        return f
    lg0 = list(step.lg); ex0 = list(step.extra)
    step(2, A0, pstore(A1), head=["s_sub_u32 s72, s71, 1"] + dest("s72") + ["s_add_u32 s72, s71, 2"] + origin(64, "s72"), before=w18,
         after={0: dma(11, 65), 1: dma(12, 64), 2: dma(13, 64)})
    step(3, A1, pstore(A0), head=dest("s71") + ["s_add_u32 s72, s71, 3"] + origin(65, "s72"), before={0: vm(18), 1: vm(18), 2: seq(vm(18), last(vm(10)))},
         after={0: dma(14, 64), 1: dma(15, 65), 2: dma(16, 65)}, at={15: last(publish(4))})
    assert [t[0] for t in step.lg] == [t[0] for t in lg0] and step.extra == ex0
    a("s_add_u32 s71, s71, 2"); a("s_cmp_lt_u32 s71, 6"); a("s_cbranch_scc1 L_p6_b")
    step.lg = [("w", t[1] + 36) for t in lg0]
    a.stamp("p6_s5")
    def SC(k): return (54, 57, 59, 61, 72, 75, 76)[k-1]
    for k in range(1, 8):
        r = SC(k); a("s_sub_u32 s%d, s51, %d" % (r, k)); a("s_and_b32 s%d, s%d, 7" % (r, r)); a("s_lshl_b32 s%d, s%d, 13" % (r, r)); a("s_add_u32 s%d, s%d, s69" % (r, r))
    CB = {k: ("v", RB + 24 + 8*(k-2)) if k > 1 else ("a", RING+48) for k in range(1, 8)}
    def cload(k): return [bload(CB[k][1]+4*p, SC(k), 1024*p, t=CB[k][0]) for p in range(2)]
    def emit(xs): return lambda: [a(x) for x in xs]
    def add(acc, k):
        def f():
            for T in range(4): a(mfma(acc+4*T, SEL if T & 1 else SEL+2, CB[k][1]+4*(T >> 1), acc+4*T, tb=CB[k][0]))
        return f
    step(6, A0, pstore(A1), head=dest(5) + origin(64, 8), before={0: vm(18), 1: vm(18), 2: seq(need(4, 6), vm(10))},
         after={0: dma(23, 65), 1: dma(24, 64), 2: dma(25, 64)}, at={6: ask, 15: publish(5), 16: emit(cload(1))})
    a.stamp("p6_s6")
    a("s_mul_i32 s46, s50, 9"); a("s_add_u32 s46, s46, 8"); a("s_lshl_b32 s46, s46, 16"); a("s_lshl_b32 s47, s51, 10")
    a("s_add_u32 s46, s46, s47"); a("s_add_u32 s78, s46, %d" % PART)
    a("s_and_b32 s46, s51, 1"); a("s_mul_i32 s74, s46, 36864"); a("s_add_u32 s74, s74, s60")
    a("s_lshr_b32 s47, s51, 2"); a("s_add_u32 s47, s47, 16"); a("s_lshl_b32 s46, s47, 10"); a("s_add_u32 s79, s46, s74")
    a("s_lshr_b32 s46, s51, 1"); a("s_lshl_b32 s46, s46, 5"); a("s_add_u32 s46, s46, 1024"); a("s_add_u32 s74, s74, s46")
    def extra_get():
        for k in range(8):
            a(bload(RING+4*k, 78)); a("s_add_u32 s78, s78, 8192")
        for k, off in enumerate((H_OFF, X1_OFF)):
            for T in range(2):
                a("s_add_u32 s46, s79, %d" % (off + 18432*T)); a(bload(RING+32+8*k+4*T, 46))
    step(7, A1, pstore(A0), head=dest(6), before={0: vm(18), 1: vm(18), 2: seq(need(5, 2), vm(18))}, after={0: dma(26, 64)},
         at={3: emit(cload(2)), 6: emit(cload(3)), 9: ask, 10: emit(cload(4)), 15: emit(cload(5))})
    a.stamp("p6_s7")
    SEv, EA = A1, A1+8
    g = G()
    g.lines += natsel(SEv, 51, 1, EA)
    OB = 147456
    g("v_mul_u32_u24 v%d, 144, v%d" % (A1+4, V_R)); g("v_lshl_add_u32 v%d, v%d, 3, v%d" % (A1+4, V_G, A1+4))
    g.lines.append("s_lshl_b32 s66, s%d, 5\ns_add_u32 s66, s66, %d" % (S_WAVE, OB))
    g("v_add_u32 v%d, s66, v%d" % (A1+4, A1+4))
    g("v_lshrrev_b32 v%d, 3, v0" % EA); g("v_and_b32 v%d, 7, v0" % (EA+1)); g("v_lshlrev_b32 v%d, 4, v%d" % (EA+1, EA+1))
    g("v_mul_u32_u24 v%d, 144, v%d" % (A1+5, EA)); g("v_add_u32 v%d, v%d, v%d" % (A1+5, A1+5, EA+1)); g("v_add_u32 v%d, %d, v%d" % (A1+5, OB, A1+5))
    g("v_mul_u32_u24 v%d, 1152, v%d" % (A1+6, EA)); g("v_add_u32 v%d, v%d, v%d" % (A1+6, A1+6, EA+1))
    g("v_mul_u32_u24 v%d, 1152, v%d" % (A1+7, V_R)); g("v_lshl_add_u32 v%d, v%d, 3, v%d" % (A1+7, V_G, A1+7))
    step(8, A0, pstore(A1) + g.lines, head=dest(7), c0=R3, before={0: vm(10), 1: vm(2)},
         at={8: add(A0, 1), 9: wave(3, extra_get), 10: add(A0, 2), 12: seq(add(A0, 3), emit(cload(6))),
             14: add(A0, 4), 16: add(A0, 5), 17: emit(cload(7))})
    a.stamp("p6_b")
    a.srd(R_A, S_OUT, ACT)
    a("s_cmp_lg_u32 s%d, 3" % S_WAVE); a("s_cbranch_scc1 L_p7_main")
    a("s_waitcnt vmcnt(4)")
    for k in range(8):
        a(mfma(EA, SEL+2, RING+4*k, None if k == 0 else EA, tb="a")); a(mfma(EA+4, SEL, RING+4*k, None if k == 0 else EA+4, tb="a"))
    for k in range(2):
        for T in range(2): a(mfma(EA+4*T, SEv, RING+32+8*k+4*T, EA+4*T, tb="a"))
    for T in range(2):
        for h in range(2): a("v_cvt_pk_bf16_f32 v%d, v%d, v%d" % (PK+2*T+h, EA+4*T+2*h, EA+4*T+2*h+1))
    a.label("L_p7_main")
    for k in (6, 7):
        base = CB[k][1]
        L = a.newlabel("Ltag")
        a("s_mov_b32 s47, 100000")
        a("s_waitcnt vmcnt(%d)" % (2 if k == 6 else 0))
        a.label(L)
        for x in tag_ops(range(base, base+8), 30): a(x)
        a("s_cbranch_vccz %s_x" % L)
        for x in cload(k): a(x)
        a("s_waitcnt vmcnt(0)")
        a("s_sub_u32 s47, s47, 1"); a("s_cbranch_scc0 %s" % L)
        a.label(L + "_x")
        add(A0, k)()
    a.stamp("p7_ready")
    a("s_cmp_lg_u32 s%d, 3" % S_WAVE); a("s_cbranch_scc1 L_p7_acc")
    for T in range(2):
        a("buffer_store_dwordx2 v[%d:%d], v%d, s[%d:%d], s74 offen%s" % (PK+2*T, PK+2*T+1, A1+7, R_A, R_A+3, OFL))
        a("s_add_u32 s74, s74, 18432")
    a.label("L_p7_acc")
    a("s_lshl_b32 s46, s51, 7"); a("s_add_u32 s46, s46, s60"); a("s_add_u32 s47, s46, 36864")
    for T in range(4):
        for h in range(2): a("v_cvt_pk_bf16_f32 v%d, v%d, v%d" % (R3+2*T+h, A0+4*T+2*h, A0+4*T+2*h+1))
        a("ds_write_b64 v%d, v[%d:%d] offset:%d" % (A1+4, R3+2*T, R3+2*T+1, 2304*T))
    a("s_waitcnt lgkmcnt(0)"); a("s_barrier")
    for p in range(2): a("ds_read_b128 v[%d:%d], v%d offset:%d" % (R3+8+4*p, R3+11+4*p, A1+5, 4608*p))
    for p in range(2):
        a("s_waitcnt lgkmcnt(%d)" % (1-p))
        a("buffer_store_dwordx4 v[%d:%d], v%d, s[%d:%d], s%d offen%s" % (R3+8+4*p, R3+11+4*p, A1+6, R_A, R_A+3, 46+p, OFL))
```

```python
from gen import *

NEG = 0xF149F2CA
SLEEP0 = dict(p2=0, p3=0, p4=0, p5=0, p6=18)
for _kv in os.environ.get('SLEEP', '').split(','):
    if _kv: SLEEP0[_kv.split('=')[0]] = int(_kv.split('=')[1])

W_LDS = 53248
AW1, AW2 = 40, 148
XT = 232
W1N = int(os.environ.get('W1N', 27))
PA, PS, R_C = 244, (3, 27, 45), R_B

def pf_lds(i):
    gq, k = divmod(i, 9)
    pre = "s_mul_i32 s58, s79, %d\ns_add_u32 s58, s58, s73\ns_mov_b32 m0, s58\n" % gq if k == 0 or i == 2 else ""
    post = "\ns_add_u32 m0, m0, 3072" if k in (2, 5) else ""
    return pre + "buffer_load_dwordx4 v%d, s[%d:%d], s%d offen offset:%d sc1 lds" % (PA+k, R_C, R_C+3, PS[gq], 1024*(k % 3)) + post

def roles345(a):
    a("s_lshr_b32 s46, s%d, 3" % S_SLOT); a("s_lshl_b32 s74, s%d, 2" % S_XCD); a("s_add_u32 s74, s74, s46"); a("s_add_u32 s75, s%d, 6" % S_SLOT); a("s_and_b32 s75, s75, 7")
    a("s_lshl_b32 s76, s74, 2"); a("s_add_u32 s76, s76, s%d" % S_WAVE)

def phase2(a):
    KL_, VL_ = 0, 27648
    a("s_lshr_b32 s50, s%d, 1" % S_SLOT); a("s_and_b32 s51, s%d, 1" % S_SLOT); a("s_lshl_b32 s46, s%d, 1" % S_XCD); a("s_add_u32 s51, s51, s46")
    a("s_mul_i32 s52, s51, %d" % HPSZ)
    a("s_add_u32 s46, s52, %d" % K_OFF); a.srd_s(R_A, S_WS, HPSZ, 46)
    a("s_add_u32 s46, s52, %d" % V_OFF); a.srd_s(R_B, S_WS, HPSZ, 46)
    a("s_mul_i32 s46, s50, 9216"); a("s_sub_u32 s46, s46, 18432"); a("s_lshl_b32 s47, s%d, 10" % S_WAVE); a("s_add_u32 s46, s46, s47")
    a("v_add_u32 v10, s46, v%d" % V_L16)
    for i in range(1, 7): a("v_add_u32 v%d, %d, v10" % (10+i, 4096*i))
    a("s_lshl_b32 s46, s50, 3"); a("s_lshl_b32 s53, s%d, 1" % S_WAVE); a("s_add_u32 s53, s53, s46")
    a("s_mul_i32 s54, s53, 1152"); a("s_add_u32 s54, s54, s52"); a("s_add_u32 s54, s54, %d" % Q_OFF)
    a("v_lshlrev_b32 v18, 4, v%d" % V_R)
    a("s_mul_i32 s46, s%d, 2304" % S_WAVE)
    a("v_add_u32 v20, s46, v%d" % V_L16)
    a("s_add_u32 s47, s46, 2048"); a("v_add_u32 v21, s47, v18")
    a("s_add_u32 s47, s46, %d" % VL_); a("v_add_u32 v22, s47, v%d" % V_L16)
    a("v_lshl_add_u32 v23, v%d, 2, v%d" % (V_R, V_G)); a("s_add_u32 s47, s47, 2048"); a("v_lshl_add_u32 v23, v23, 4, s47")
    for i in range(4):
        a("v_lshl_add_u32 v24, v%d, 2, %d" % (V_G, i)); a("v_cmp_gt_u32 s[%d:%d], v24, v%d" % (60+2*i, 61+2*i, V_R))
    a("v_cmp_eq_u32 s[68:69], 0, v%d" % V_G)
    a("v_mov_b32 v25, 0x%x" % NEG)
    for r in range(4): a("v_mov_b32 v%d, -1" % (228+r))
    a("v_and_b32 v225, 31, v%d" % V_LANE); a("v_lshlrev_b32 v225, 2, v225")
    VLA = 0
    for r in range(36): a("v_accvgpr_write_b32 a%d, s%d" % (VLA+r, S_ONES))
    roles345(a)
    a("s_mul_i32 s46, s75, 110592"); a("s_mul_i32 s47, s%d, 27648" % S_WAVE); a("s_add_u32 s70, s46, s47"); a("s_add_u32 s70, s70, %d" % WO_S)
    a("s_add_u32 s71, s70, %d" % SW); a("s_add_u32 s72, s71, %d" % SW)
    a("s_cmp_ge_u32 s75, 6"); a("s_cbranch_scc1 L_p2_hs")
    a("s_add_u32 s73, s47, %d" % W_LDS); a("s_mov_b32 s79, 9216")
    for gq in range(3): a("s_add_u32 s%d, s70, %d" % (PS[gq], 9216*gq))
    for i in range(9): a("v_add_u32 v%d, %d, v%d" % (PA+i, 3072*(i//3), V_L16))
    a("s_mov_b32 s10, s%d" % S_WS); a("s_mov_b32 s11, s%d" % (S_WS+1)); a("s_mov_b32 s26, %d" % WS_END)
    a("s_branch L_p2_hd")
    a.label("L_p2_hs")
    a("s_mov_b32 s71, 0x70000000")
    a("s_mul_i32 s47, s%d, 9216" % S_WAVE); a("s_add_u32 s73, s47, %d" % W_LDS); a("s_mov_b32 s79, 36864")
    a("s_lshl_b32 s48, s74, 1"); a("s_add_u32 s48, s48, s75"); a("s_sub_u32 s48, s48, 6"); a("s_mul_i32 s48, s48, 3")
    a("s_mov_b32 s10, s%d" % S_W3); a("s_mov_b32 s11, s%d" % (S_W3+1)); a("s_mov_b32 s78, 9216")
    a("s_cmp_lt_u32 s48, 144"); a("s_cselect_b32 s26, %d, 0" % BW)
    for gq in range(3):
        a("s_add_u32 s46, s48, %d" % gq)
        a.sdiv(47, 56, 46, 18)
        a("s_lshl_b32 s56, s56, 2"); a("s_add_u32 s56, s56, s%d" % S_WAVE); a("s_mul_i32 s56, s56, %d" % (8*9216))
        a("s_mul_i32 s47, s47, 1152"); a("s_add_u32 s%d, s56, s47" % (PS[gq]))
    for i in range(9):
        a("v_add_u32 v24, %d, v%d" % (64*i, V_LANE)); a("v_mul_u32_u24 v26, 911, v24"); a("v_lshrrev_b32 v26, 16, v26")
        a("v_mul_u32_u24 v27, 72, v26"); a("v_sub_u32 v27, v24, v27"); a("v_mul_lo_u32 v26, v26, s78"); a("v_lshl_add_u32 v%d, v27, 4, v26" % (PA+i))
        if i % 3: a("v_subrev_u32 v%d, %d, v%d" % (PA+i, 1024*(i % 3), PA+i))
    a.label("L_p2_hd")
    a("v_mul_u32_u24 v7, 1152, v%d" % V_R); a("v_lshl_add_u32 v7, v%d, 4, v7" % V_G)
    a("s_mul_i32 s46, s76, 18432"); a("s_mul_i32 s47, s75, 192"); a("s_add_u32 s77, s46, s47")
    a("s_cmp_ge_u32 s75, 6"); a("s_cselect_b32 s77, 0x70000000, s77")
    L = a.newlabel("Lp2w")
    a("v_mov_b32 v19, %d" % (W_LDS + 4096))
    a("s_cmp_lg_u32 s%d, 0" % S_WAVE); a("s_cbranch_scc1 %s" % L)
    a("v_and_b32 v30, 2, v%d" % V_LANE); a("v_cmp_eq_u32 s[58:59], 0, v30"); a("v_cmp_gt_u32 vcc, 12, v%d" % V_LANE)
    a("s_andn2_b64 s[56:57], vcc, s[58:59]"); a("s_and_b64 s[58:59], vcc, s[58:59]")
    a("v_mov_b32 v34, 0x49800000"); a("v_mov_b32 v35, 0x7f800000")
    a("v_lshrrev_b32 v30, 2, v%d" % V_LANE); a("v_min_u32 v30, 2, v30"); a("v_add_u32 v30, s50, v30"); a("v_subrev_u32 v30, 2, v30"); a("v_max_i32 v30, 0, v30")
    a("v_bfe_u32 v31, v%d, 1, 1" % V_LANE); a("v_add_u32 v31, 1, v31"); a("v_cmp_gt_u32 vcc, 12, v%d" % V_LANE); a("v_cndmask_b32 v31, 0, v31, vcc")
    a("v_mul_u32_u24 v31, 576, v31"); a("v_and_b32 v32, 1, v%d" % V_LANE); a("v_mul_u32_u24 v32, 35, v32")
    a("s_mul_i32 s46, s51, 36"); a("v_add3_u32 v31, v31, v32, s46"); a("v_lshrrev_b32 v31, 7, v31")
    a("v_lshl_add_u32 v30, v30, 4, v31"); a("v_add_u32 v30, %d, v30" % F1)
    a.stamp("p2_setup")
    a.poll(30, 32, sleep0=SLEEP0["p2"], two=True)
    a("v_cndmask_b32 v30, 0, v33, s[58:59]"); a("v_cndmask_b32 v31, 0, v33, s[46:47]".replace("46:47", "56:57"))
    a("v_cmp_nle_f32 vcc, v31, v34"); a("v_cndmask_b32 v30, v30, v35, vcc")
    for r in (8, 4, 2, 1): a("v_max_f32_dpp v30, v30, v30 row_ror:%d row_mask:0xf bank_mask:0xf" % r)
    a("s_mov_b64 exec, 1"); a("ds_write_b32 v19, v30"); a("s_mov_b64 exec, -1"); a("s_waitcnt lgkmcnt(0)")
    a.label(L)
    a("s_barrier")
    a("ds_read_b32 v19, v19")
    a("v_min_u32 v38, 53, v%d" % V_LANE); a("v_add_u32 v38, %d, v38" % FS); a("v_lshlrev_b32 v38, 7, v38")
    fsq = "buffer_load_dword v39, v38, s[%d:%d], 0 offen offset:%d sc1" % (R_WS, R_WS+3, FLAG0)
    a.stamp("p2_ready")
    QR = 26
    a("buffer_load_dwordx4 v[%d:%d], v%d, s[%d:%d], s54 offen sc1" % (QR, QR+3, V_L16, R_WS, R_WS+3))
    a("buffer_load_dwordx4 v[%d:%d], v18, s[%d:%d], s54 offen offset:2048 sc1" % (QR+4, QR+7, R_WS, R_WS+3))
    a("buffer_load_dwordx4 v[%d:%d], v%d, s[%d:%d], s54 offen offset:1024 sc1" % (QR+8, QR+11, V_L16, R_WS, R_WS+3))
    a(fsq)
    a("s_lshl_b32 s46, s%d, 10" % S_WAVE)
    for R, base in ((R_A, KL_), (R_B, VL_)):
        for i in range(7):
            Ls = a.newlabel("Lp2d")
            if i == 6: a("s_cmp_eq_u32 s%d, 3" % S_WAVE); a("s_cbranch_scc1 %s" % Ls)
            a("s_add_u32 m0, s46, %d" % (base + 4096*i))
            a("buffer_load_dwordx4 v%d, s[%d:%d], 0 offen sc1 lds" % (10+i, R, R+3))
            if i == 6: a.label(Ls)
    a.srd(R_A, S_X, ACT)
    a("s_mov_b32 s%d, s10" % R_C); a("s_mov_b32 s%d, s11" % (R_C+1)); a("s_mov_b32 s%d, s26" % (R_C+2)); a("s_mov_b32 s%d, 0x20000" % (R_C+3))
    QF = 40
    a("s_waitcnt vmcnt(12)")
    for hd in range(2):
        for qt in range(2):
            q = QF + 12*hd + 6*qt
            for h in range(2): a("v_mov_b32 v%d, v%d" % (q+2+h, QR+8*hd+2*qt+h))
            a("v_cndmask_b32 v%d, 0, v%d, s[68:69]" % (q+hd, QR+4+2*qt+hd)); a("v_mov_b32 v%d, 0" % (q+1-hd))
            for h in range(2): a("v_mov_b32 v%d, v%d" % (q+4+h, q+h))
    for k in range(4):
        a("v_mov_b32 v%d, 0" % (216+k))
        for r in range(4):
            a("v_and_b32 v24, 0x7fff7fff, v%d" % (QF+6*k+r)); a("v_dot2c_f32_bf16 v%d, s%d, v24" % (216+k, S_ONES))
    a("v_max3_f32 v216, v216, v217, v218"); a("v_max_f32 v216, v216, v219")
    a.xg_reduce(216, 217)
    a("s_waitcnt lgkmcnt(0)"); a("v_mul_f32 v216, v19, v216"); a("v_mov_b32 v217, 0x42c00000"); a("v_cmp_nle_f32 s[58:59], v216, v217")
    MF, ML = 8, 12
    for i in range(4):
        a("v_cndmask_b32 v%d, v25, 0, s[%d:%d]" % (MF+i, 60+2*i, 61+2*i)); a("v_cndmask_b32 v%d, 0, v25, s[%d:%d]" % (ML+i, 60+2*i, 61+2*i))
    a("s_lshl_b32 s55, s50, 3"); a("s_lshl_b32 s46, s%d, 1" % S_WAVE); a("s_add_u32 s55, s55, s46"); a("s_sub_u32 s55, 16, s55"); a("s_max_i32 s55, s55, 0")
    a("s_lshl_b32 s56, s2, 2"); a("s_add_u32 s56, s56, s%d" % S_WAVE); a("s_mul_i32 s56, s56, 5120"); a("s_min_u32 s56, s56, %d" % (WO_S - T_OFF - 5120)); a("s_add_u32 s56, s56, %d" % T_OFF)
    L = a.newlabel("Lfs")
    a("s_cmp_lg_u32 s%d, 0" % S_WAVE); a("s_cbranch_scc1 %s" % L)
    a("v_cmp_ne_u32 vcc, s%d, v39" % S_NONCE); a("s_cbranch_vccz %s" % L)
    a("v_lshrrev_b32 v38, 7, v38")
    a.poll(38, 39, sleep0=0)
    a.label(L)
    a("s_waitcnt vmcnt(6)"); a("s_barrier")
    a.stamp("p2_loaded")
    a("s_cmp_lg_u64 s[58:59], 0")
    if "slow" in ABL: a("s_cmp_eq_u32 s2, s2")
    a("s_cbranch_scc1 L_p2_slow")
    a("s_cmp_lt_u32 s50, 2"); a("s_cbranch_scc1 L_p2_edge")
    M, NM, CZ = 16, 216, 26
    KF = 64
    S2, P, VM = 136, 168, 184
    S1 = S2
    OM, OL, R_, OUT = 192, 200, 32, 208
    marks = "s_mov_b32 s46, %d\nbuffer_load_dword v224, v225, s[%d:%d], s46 offen sc1" % (FP_OFF, R_WS, R_WS+3)
    def prefetch():
        o = [pf_lds(i) for i in range(2, 27)]
        for jj in range(3): o.append("buffer_load_dwordx4 v[%d:%d], v7, s[%d:%d], s77 offen offset:%d" % (XT+4*jj, XT+4*jj+3, R_A, R_A+3, 64*jj))
        for sb, ab in ((71, AW1),):
            for i in range(W1N):
                pre = "s_add_u32 s59, s%d, %d\n" % (sb, 1024*i) if i % 4 == 0 else ""
                o.append(pre + "buffer_load_dwordx4 a[%d:%d], v%d, s[%d:%d], s59 offen offset:%d sc1" % (ab+4*i, ab+4*i+3, V_L16, R_WS, R_WS+3, 1024*(i & 3)))
        return o
    for edge, slow in ((0, 0), (1, 0), (1, 1)):
      if edge: a.label("L_p2_slow" if slow else "L_p2_edge")
      pf = prefetch(); npf0 = None
      if "x_nopf" in ABL: pf = ["s_nop 0"]*55
      if "x_nomk" in ABL: pf = ["s_nop 0" if "store" in x else x for x in pf]
      if "x_now1" in ABL: pf = ["s_nop 0" if " a[" in x else x for x in pf]
      def take(n):
          o = pf[:n]; del pf[:n]; return o
      for head in range(2):
        def Q(qt, t): return QF + 12*head + 6*qt + 2*(t & 1)
        def K(t): return KF + 4*t
        def kread(m):
            o = ["ds_read_b128 v[%d:%d], v20 offset:%d" % (KF+8*m+2, KF+8*m+5, 2304*m + 1024*head)]
            if head == 0: o += ["ds_read_b64 v[%d:%d], v21 offset:%d" % (KF+8*m+6*b, KF+8*m+6*b+1, 2304*m + 8*b) for b in range(2)]
            return o
        def vleft(m): return "ds_read_b128 a[%d:%d], v23 offset:%d" % (VLA+4*m, VLA+4*m+3, 2304*m + 128*head)
        def vmain(m): return "ds_read_b128 v[%d:%d], v22 offset:%d" % (VM+4*(m & 1), VM+4*(m & 1)+3, 2304*m + 1024*head)
        def has(qt, t): return (t <= 16) if qt == 0 else (t >= 1)
        def mask(reg, qt, t):
            o = []
            for i in range(4):
                if t == qt: o.append("v_cndmask_b32 v%d, v25, v%d, s[%d:%d]" % (reg+i, reg+i, 60+2*i, 61+2*i))
                if t == 16+qt: o.append("v_cndmask_b32 v%d, v%d, v25, s[%d:%d]" % (reg+i, reg+i, 60+2*i, 61+2*i))
            return o
        def switch(t, moves):
            Ls = a.newlabel("Lsw")
            a("s_cmp_eq_u32 s55, %d" % t); a("s_cbranch_scc0 %s" % Ls)
            for x in moves: a(x)
            a.label(Ls)
        if head:
            L = a.newlabel("Lmk")
            a("s_cmp_lg_u32 s%d, 0" % S_WAVE); a("s_cbranch_scc1 %s_x" % L)
            a("s_mov_b32 s47, 100000"); a("s_waitcnt vmcnt(%d)" % (npf0 - len(pf)))
            a.label(L)
            a("v_cmp_ne_u32 vcc, s%d, v224" % S_NONCE)
            a("s_cbranch_vccz %s_x" % L)
            a("s_sleep 2"); a(marks); a("s_waitcnt vmcnt(0)")
            a("s_sub_u32 s47, s47, 1"); a("s_cbranch_scc0 %s" % L)
            a.label(L + "_x")
            a("s_waitcnt vmcnt(20)"); a("s_barrier")
            publish2(a, 224)
        AH = 3
        for m in range(AH if slow else 2):
            for x in kread(m): a(x)
        if slow:
            a("v_mov_b32 v%d, v25" % M); a("v_mov_b32 v%d, v25" % (M+1))
            if edge:
                for i in range(4): a("v_mov_b32 v%d, v25" % (CZ+i))
            def c1(qt, t): return CZ if edge else MF if t == qt else ML if t == 16+qt else None
            def maxes(t):
                o = []
                for qt in range(2):
                    if not has(qt, t): continue
                    s = S1 + 8*(t % 3) + 4*qt
                    if edge: o += mask(s, qt, t)
                    o.append("v_max3_f32 v%d, v%d, v%d, v%d" % (M+qt, s, s+1, M+qt))
                for qt in range(2):
                    if not has(qt, t): continue
                    s = S1 + 8*(t % 3) + 4*qt
                    o.append("v_max3_f32 v%d, v%d, v%d, v%d" % (M+qt, s+2, s+3, M+qt))
                return o
            for t in range(18):
                if t % 2 == 0:
                    if edge: switch(t, ["v_mov_b32 v%d, 0" % (CZ+i) for i in range(4)])
                    a("s_waitcnt lgkmcnt(%d)" % (len(kread(0))*min(AH-1, 8 - t//2)))
                ms = [mfma(S1+8*(t % 3)+4*qt, K(t), Q(qt, t), c1(qt, t)) for qt in range(2) if has(qt, t)]
                fill = (kread(t//2+AH) if t % 2 == 0 and t//2+AH < 9 else []) + (maxes(t-2) if t >= 2 else []) + (take(1) if t % 3 == 1 and head else [])
                interleave(a, ms, fill)
        def vstart():
            nonlocal npf0
            if head == 0:
                a("s_waitcnt vmcnt(%d)" % (28 + W1N - len(pf))); a("s_barrier")
                for q in range(5):
                    if q == 4: a("s_add_u32 s56, s56, 4096")
                    if "x_nomk" not in ABL: a("buffer_store_dwordx4 v[228:231], v%d, s[%d:%d], s56 offen offset:%d sc1" % (V_L16, R_WS, R_WS+3, 1024*(q & 3)))
                npf0 = len(pf); a(marks)
            a("s_mov_b32 exec_lo, 0x00030003"); a("s_mov_b32 exec_hi, 0x00030003")
            for m in range(9): a(vleft(m))
            a("s_mov_b64 exec, -1")
            a(vmain(0))
        if slow: vstart()
        if slow:
            for x in maxes(16) + maxes(17): a(x)
            for sw in ("v_permlane32_swap_b32", "v_permlane16_swap_b32"):
                for qt in range(2): a("v_mov_b32 v%d, v%d" % (30+qt, M+qt))
                for qt in range(2): a("%s v%d, v%d" % (sw, M+qt, 30+qt))
                for qt in range(2): a("v_max_f32 v%d, v%d, v%d" % (M+qt, M+qt, 30+qt))
            negs = ["v_sub_f32 v%d, 0, v%d" % (NM+4*qt+i, M+qt) for qt in range(2) for i in range(4)]
        else: negs = ["v_mov_b32 v%d, 0" % (NM+i) for i in range(4)]
        if edge:
            for i in range(len(negs)): a("v_mov_b32 v%d, v25" % (NM+i))
        def c2(qt, t): return NM+4*qt if slow else NM if edge else MF if t == qt else ML if t == 16+qt else None
        def qk(m):
            return [mfma(S2+16*(m & 1)+8*qt+4*b, K(2*m+b), Q(qt, b), c2(qt, 2*m+b)) for qt in range(2) for b in range(2) if has(qt, 2*m+b)]
        def pv(m):
            o = []
            for qt in range(2):
                p = P+8*(m & 1)+4*qt
                o.append(mfma(OM+4*qt, VM+4*(m & 1), p, None if m == 0 else OM+4*qt))
                o.append(mfma(OL+4*qt, VLA+4*m, p, None if m == 0 else OL+4*qt, ta="a"))
            return o
        if slow: switch(0, negs)
        else: a("s_waitcnt lgkmcnt(%d)" % len(kread(0)))
        for x in qk(0): a(x)
        for m in range(9):
            if edge and m < 8: switch(2*m+2, negs)
            mf = (qk(m+1) if m < 8 else []) + (pv(m-1) if m else [])
            va = []
            ld = take((3 if (m % 3 or head == 0) else 2) if slow else 0 if m + head == 0 else -(-len(pf)//(18 - 9*head - m)))
            for qt in range(2):
                p = P+8*(m & 1)+4*qt
                for b in range(2):
                    s = S2+16*(m & 1)+8*qt+4*b
                    if has(qt, 2*m+b):
                        if edge: va += mask(s, qt, 2*m+b)
                        va += ["v_exp_f32 v%d, v%d" % (s+i, s+i) for i in range(4)]
                    if ld and (b == 0 or qt == 0 or len(ld) > 0 and qt == 1 and b == 1): va.append(ld.pop(0))
                for b in range(2):
                    s = S2+16*(m & 1)+8*qt+4*b
                    if has(qt, 2*m+b):
                        va += ["v_cvt_pk_bf16_f32 v%d, v%d, v%d" % (p+2*b+h, s+2*h, s+2*h+1) for h in range(2)]
                    else:
                        va += ["v_mov_b32 v%d, 0" % (p+2*b+h) for h in range(2)]
            if slow:
                if m: a("s_waitcnt lgkmcnt(1)")
            else:
                a("s_waitcnt lgkmcnt(%d)" % (0 if m == 0 else 11 if m == 1 else 1))
                if m + 2 < 9: va = kread(m+2) + va
            if m == 1 and not slow:
                interleave(a, mf[:4], va[:len(va)//2]); a("s_waitcnt lgkmcnt(%d)" % (1 + len(kread(0)))); interleave(a, mf[4:], va[len(va)//2:])
            else: interleave(a, mf, va)
            if m == 0 and not slow: vstart()
            if m < 8: a(vmain(m+1))
        a("s_waitcnt lgkmcnt(0)")
        for x in pv(8): a(x)
        if head == 1:
            assert not pf
            a("s_mul_i32 s54, s53, 18432"); a("s_add_u32 s54, s54, %d" % O_OFF)
            a("s_lshl_b32 s46, s51, 10"); a("s_add_u32 s58, s46, s54"); a("s_add_u32 s59, s58, 18432")
            a("s_lshr_b32 s46, s51, 3"); a("s_add_u32 s46, s46, 16"); a("s_lshl_b32 s46, s46, 10"); a("s_add_u32 s54, s54, s46")
            a("s_and_b32 s46, s51, 7"); a("s_lshr_b32 s46, s46, 1"); a("s_lshl_b32 s46, s46, 8"); a("s_add_u32 s54, s54, s46")
            a("s_and_b32 s46, s51, 1"); a("s_lshl_b32 s46, s46, 3"); a("s_add_u32 s54, s54, s46"); a("s_add_u32 s47, s54, 18432")
        for qt in range(2): a("v_rcp_f32 v%d, v%d" % (30+qt, OL+4*qt+3))
        for qt in range(2):
            for i in range(4): a("v_mul_f32 v%d, v%d, v%d" % (OM+4*qt+i, OM+4*qt+i, 30+qt))
            for i in range(2): a("v_mul_f32 v%d, v%d, v%d" % (OL+4*qt+i, OL+4*qt+i, 30+qt))
        for qt in range(2):
            for h in range(2): a("v_cvt_pk_bf16_f32 v%d, v%d, v%d" % (OUT+4*qt+2*head+h, OM+4*qt+2*h, OM+4*qt+2*h+1))
            a("v_cvt_pk_bf16_f32 v%d, v%d, v%d" % (R_+2*qt+head, OL+4*qt, OL+4*qt+1))
      if not slow: a("s_branch L_p2_out")
    a.label("L_p2_out")
    a("buffer_store_dwordx4 v[%d:%d], v%d, s[%d:%d], s58 offen sc1" % (OUT, OUT+3, V_L16, R_WS, R_WS+3))
    a("buffer_store_dwordx4 v[%d:%d], v%d, s[%d:%d], s59 offen sc1" % (OUT+4, OUT+7, V_L16, R_WS, R_WS+3))
    a("s_mov_b64 exec, 0xffff")
    a("buffer_store_dwordx2 v[%d:%d], v%d, s[%d:%d], s54 offen sc1" % (R_, R_+1, V_L16, R_WS, R_WS+3))
    a("buffer_store_dwordx2 v[%d:%d], v%d, s[%d:%d], s47 offen sc1" % (R_+2, R_+3, V_L16, R_WS, R_WS+3))
    a("s_mov_b64 exec, -1")
    a.stamp("p2_done")
    if a.stop == 2:
        a("s_waitcnt vmcnt(0)")

_c0 = 2.0*math.log2(math.e)*math.sqrt(2/math.pi)
GS = (_c0*0.044715)**(1/3)
GK = _c0/GS

def gelu_consts(a): a("s_mov_b32 s48, %d" % f32(GS)); a("s_mov_b32 s49, %d" % f32(GK))

def gelu_poly(regs, t):
    o = ["v_pk_fma_f32 v[%d:%d], v[%d:%d], v[%d:%d], s[48:49] op_sel:[0,0,1] op_sel_hi:[1,1,1]" % (t+2*k, t+2*k+1, r, r+1, r, r+1) for k, r in enumerate(regs)]
    return o + ["v_pk_mul_f32 v[%d:%d], v[%d:%d], v[%d:%d]" % (t+2*k, t+2*k+1, t+2*k, t+2*k+1, r, r+1) for k, r in enumerate(regs)]

def gelu_pk(a, regs, t):
    for x in gelu_poly(regs, t): a(x)
    for k in range(2*len(regs)): a("v_exp_f32 v%d, -v%d" % (t+k, t+k))
    for k, r in enumerate(regs): a("v_pk_fma_f32 v[%d:%d], v[%d:%d], s[48:49], s[48:49] op_sel_hi:[1,0,0]" % (t+2*k, t+2*k+1, t+2*k, t+2*k+1))
    for k in range(2*len(regs)): a("v_rcp_f32 v%d, v%d" % (t+k, t+k))
    for k, r in enumerate(regs): a("v_pk_mul_f32 v[%d:%d], v[%d:%d], v[%d:%d]" % (r, r+1, r, r+1, t+2*k, t+2*k+1))

def stats_loads(a, off, stile, vt):
    a("v_lshlrev_b32 v%d, 3, v%d" % (vt+4, V_LANE))
    a("v_add_u32 v%d, 512, v%d" % (vt+5, vt+4)); a("v_cmp_gt_u32 vcc, 32, v%d" % V_LANE); a("v_mov_b32 v%d, 0x7fffffff" % vt)
    a("v_cndmask_b32 v%d, v%d, v%d, vcc" % (vt+5, vt, vt+5))
    a("s_mul_i32 s46, s%d, 768" % stile); a("s_add_u32 s46, s46, %d" % off)
    return ["buffer_load_dwordx2 v[%d:%d], v%d, s[%d:%d], s46 offen sc1" % (vt+2*k, vt+2*k+1, vt+4+k, R_WS, R_WS+3) for k in range(2)]

def stats_finish(a, vt, vmean, vrstd):
    a("v_add_f32 v%d, v%d, v%d" % (vt, vt, vt+2)); a("v_add_f32 v%d, v%d, v%d" % (vt+1, vt+1, vt+3))
    for sw in ("v_permlane32_swap_b32", "v_permlane16_swap_b32"):
        for k in range(2): a("v_mov_b32 v%d, v%d" % (vt+2+k, vt+k))
        for k in range(2): a("%s v%d, v%d" % (sw, vt+k, vt+2+k))
        for k in range(2): a("v_add_f32 v%d, v%d, v%d" % (vt+k, vt+k, vt+2+k))
    a("s_mov_b32 s47, %d" % f32(1.0/576))
    a("v_mul_f32 v%d, s47, v%d" % (vmean, vt)); a("v_mul_f32 v%d, v%d, v%d" % (vt, vmean, vmean))
    a("v_fma_f32 v%d, v%d, s47, -v%d" % (vt+1, vt+1, vt)); a("v_max_f32 v%d, 0, v%d" % (vt+1, vt+1))
    a("v_add_f32 v%d, %d, v%d" % (vt, f32(1e-5), vt+1)); a("v_rsq_f32 v%d, v%d" % (vrstd, vt))

def norm_ops(x, vs, vb, t):
    o = []
    for r in range(4):
        o.append("v_lshlrev_b32 v%d, 16, v%d" % (t+2*r, x+r)); o.append("v_and_b32 v%d, 0xffff0000, v%d" % (t+2*r+1, x+r))
    for r in range(8): o.append("v_fma_f32 v%d, v%d, v%d, v%d" % (t+r, t+r, vs, vb))
    for r in range(4): o.append("v_cvt_pk_bf16_f32 v%d, v%d, v%d" % (x+r, t+2*r, t+2*r+1))
    return o

def out_stats(a, pk, off, stores):
    S, Gm = WB+24, WB+28
    for jj in range(3):
        a(mfma(S, 20, pk+4*jj, S if jj else None)); a(mfma(Gm, pk+4*jj, pk+4*jj, Gm if jj else None))
    stores()
    a("s_mul_i32 s46, s53, 6"); a("s_add_u32 s46, s46, s51"); a("s_lshl_b32 s46, s46, 7"); a("s_add_u32 s46, s46, %d" % off)
    a("v_cndmask_b32 v%d, v%d, v%d, s[56:57]" % (Gm, Gm, Gm+1)); a("v_cndmask_b32 v%d, v%d, v%d, s[56:57]" % (Gm+2, Gm+2, Gm+3))
    a("v_cndmask_b32 v%d, v%d, v%d, s[68:69]" % (S+1, Gm, Gm+2))
    a("s_mov_b64 exec, s[76:77]")
    a("buffer_store_dwordx2 v[%d:%d], v9, s[%d:%d], s46 offen sc1" % (S, S+1, R_WS, R_WS+3))
    a("s_mov_b64 exec, -1")

AF, ACC, WB, HK, VMEAN, VRSTD = 64, 136, 160, 40, 52, 53
OS = WB

def tag_ops(regs, t):
    o = []; regs = list(regs)
    o.append("v_max3_u32 v%d, v%d, v%d, v%d" % (t, regs[0], regs[1], regs[2])); regs = regs[3:]
    while len(regs) >= 2: o.append("v_max3_u32 v%d, v%d, v%d, v%d" % (t, t, regs[0], regs[1])); regs = regs[2:]
    if regs: o.append("v_max_u32 v%d, v%d, v%d" % (t, t, regs[0]))
    return o + ["v_cmp_eq_u32 vcc, -1, v%d" % t]

def tag_branch(a, loads, regs, t, again=(), drain=False):
    L = a.newlabel("Ltg")
    a("s_cbranch_vccnz %s" % L)
    a.label(L + "_b")
    st = [L + ":"] + "\n".join(loads).split("\n") + ["s_waitcnt vmcnt(0)"] + tag_ops(regs, t)
    st += ["s_cmp_eq_u32 s79, 0", "s_cbranch_scc1 %s_b" % L, "s_sub_u32 s79, s79, 1", "s_cbranch_vccnz %s" % L]
    st += list(again) + (["s_waitcnt vmcnt(0)"] if drain and again else []) + ["s_branch %s_b" % L]
    a.stubs += st

UP = 8
PRE = [int(x) for x in os.environ.get('PRE', '1,3,3').split(',')]
NE = 12
def wpos(layout, b):
    if layout is None: return W_LDS//1024 + b
    w, i = divmod(b, 27)
    return layout[0] + NE*w + i if i < NE else layout[1] + (27-NE)*w + i - NE

def gemm96(a, loads, stage, delay, pre=(), each=None, stamp=None, extra=(), layout=None, early=(), before=None, after=None, init=None, apre=(0, 0), side=()):
    a("s_waitcnt vmcnt(20)")
    a("s_barrier")
    nv = sum("buffer_load" in x for x in stage)
    n1 = len(stage) if nv else len(stage)//3
    for x in stage[:n1]: a(x)
    if delay: a("s_sleep %d" % delay)
    a("s_mov_b32 s79, 50000")
    a.stamp(stamp + "_ready")
    for x in pre: a(x)
    interleave(a, loads[:UP], stage[n1:])
    a("s_waitcnt vmcnt(%d) lgkmcnt(0)" % (UP + len(pre)))
    if before: before(a)
    a("s_barrier")
    AB, NA = apre
    spare = [18*(i+1)//(NA+1) for i in range(NA)]
    rot = [j for j in range(18) if j not in spare]
    def wreg(j): return ("a", AB + 24*spare.index(j)) if j in spare else ("v", WB + 24*(rot.index(j) % 3))
    def wr(j):
        o = []
        for t in range(6):
            q, r = divmod(wpos(layout, 18*t + j), 64)
            o.append("ds_read_b128 %s[%d:%d], v%d offset:%d" % (wreg(j)[0], wreg(j)[1]+4*t, wreg(j)[1]+4*t+3, (V_L16, 5, 6)[q], 1024*r))
        return o
    lg = []
    def rd(j):
        for x in wr(j): a(x); lg.append(j)
    def first():
        for j in rot[:3] + spare: rd(j)
    for x in early: a(x)
    if each: each(first)
    else: first()
    if init: init()
    a("s_waitcnt vmcnt(%d)" % (UP-2))
    fr = lambda j: range(AF+4*j, AF+4*j+8)
    for x in tag_ops(fr(0), 30): a(x)
    tag_branch(a, loads[0:2], fr(0), 30, loads[2:UP])
    if after: after(a)
    for j in range(18):
        ex = lambda q: min(len(extra), max(0, (q-9)*len(extra)//8))
        issued = min(18, UP+j) + ex(j)
        chk = j % 2 == 1 and j < 17
        young = len(lg) - 1 - max(i for i, q in enumerate(lg) if q == j)
        w = (["vmcnt(%d)" % (issued - 1 - (j+2))] if chk else []) + (["lgkmcnt(%d)" % young] if young < 15 or j < 3 else [])
        if w: a("s_waitcnt " + " ".join(w).replace("lgkmcnt(%d)" % young, "lgkmcnt(%d)" % min(15, young)))
        if j in (0, 9): a.stamp(stamp + "_k%d" % j)
        ms = [mfma(ACC+4*t, wreg(j)[1]+4*t, AF+4*j, None if j == 0 and not init else ACC+4*t, ta=wreg(j)[0]) for t in range(6)]
        todo = [q for q in rot if q not in lg and rot[rot.index(q)-3] < j]
        want = wr(todo[0]) if todo else []
        if want: lg += [todo[0]]*6
        fill = ([loads[UP+j]] if UP+j < 18 else []) + (tag_ops(fr(j+1), 30) if chk else []) + want + list(extra[ex(j):ex(j+1)])
        n = max(12 - len(fill), -(-len(side)//(18-j)) if j > 8 else 0)
        fill += side[:n]; side = side[n:]
        interleave(a, ms, fill)
        if chk: tag_branch(a, loads[j+1:j+3], fr(j+1), 30, loads[j+3:UP+j+1], drain=ex(j+1) > 0)

FP2Q = "s_mov_b32 s46, %d\nbuffer_load_dwordx4 v[16:19], v%d, s[%d:%d], s46 offen sc1" % (FP2_OFF, V_L16, R_WS, R_WS+3)

def marks2(a):
    L = a.newlabel("Lm2")
    a("s_cmp_lg_u32 s%d, 0" % S_WAVE); a("s_cbranch_scc1 %s_x" % L)
    a("s_mov_b32 s47, 100000")
    a.label(L)
    for r in range(4): a("v_xor_b32 v%d, s%d, v%d" % (16+r, S_NONCE, 16+r))
    a("v_or3_b32 v16, v16, v17, v18"); a("v_or_b32 v16, v16, v19"); a("v_cmp_ne_u32 vcc, 0, v16"); a("s_cbranch_vccz %s_x" % L)
    a(FP2Q); a("s_waitcnt vmcnt(0)")
    a("s_sub_u32 s47, s47, 1"); a("s_cbranch_scc0 %s" % L)
    a.label(L + "_x")

def publish2(a, vt):
    L = a.newlabel("Lmp"); a("s_cmp_lg_u32 s%d, 0" % S_WAVE); a("s_cbranch_scc1 %s" % L); a.set_mark(vt, FP2_OFF); a.label(L)

def wflags(a, first, va, vd):
    a("s_mul_i32 s46, s65, 18"); a("s_add_u32 s46, s46, %d" % (FS + first))
    a("v_min_u32 v%d, 17, v%d" % (va, V_LANE)); a("v_add_u32 v%d, s46, v%d" % (va, va)); a("v_lshlrev_b32 v%d, 7, v%d" % (va, va))
    a("buffer_load_dword v%d, v%d, s[%d:%d], 0 offen offset:%d sc1" % (vd, va, R_WS, R_WS+3, FLAG0))

def phase345(a):
    a("s_mov_b32 s50, s74"); a("s_mov_b32 s51, s75"); a("s_mov_b32 s53, s76")
    a("s_cmp_ge_u32 s51, 6"); a("s_cbranch_scc1 L_p3_helper")
    a("v_add_u32 v5, 65536, v%d" % V_L16); a("v_add_u32 v6, 131072, v%d" % V_L16)
    a("s_mul_i32 s46, s%d, %d" % (S_WAVE, 1024*NE)); a("v_add_u32 v7, s46, v%d" % V_L16)
    a("s_mul_i32 s46, s%d, %d" % (S_WAVE, 1024*(27-NE))); a("v_add_u32 v8, s46, v%d" % V_L16)
    a("v_add_u32 v62, %d, v7" % (112*1024)); a("v_add_u32 v63, %d, v8" % (52*1024))
    LAY4, LAY5 = (0, 52), (112, 0)
    a("s_mul_i32 s54, s53, 18432")
    a("s_mul_i32 s55, s51, 3072"); a("s_add_u32 s55, s55, s54")
    a("s_lshl_b32 s46, s51, 2"); a("s_add_u32 s46, s46, s%d" % S_WAVE); a("s_mul_i32 s46, s46, 3072"); a("s_mul_i32 s78, s50, 73728"); a("s_add_u32 s78, s78, s46")
    def w2(i0, i1, sb=72, ab=AW2):
        return [("s_add_u32 s59, s%d, %d\n" % (sb, 1024*(i & ~3)) if (i % 4 == 0 or i == i0) else "") +
                "buffer_load_dwordx4 a[%d:%d], v%d, s[%d:%d], s59 offen offset:%d sc1" % (ab+4*i, ab+4*i+3, V_L16, R_WS, R_WS+3, 1024*(i & 3)) for i in range(i0, i1)]
    def park(ab, lay, late):
        if late: return ["ds_write_b128 v%d, a[%d:%d] offset:%d" % (63 if lay[1] else 8, ab+4*i, ab+4*i+3, 1024*(i - NE)) for i in range(NE, 27)]
        return ["ds_write_b128 v%d, a[%d:%d] offset:%d" % (62 if lay[0] else 7, ab+4*i, ab+4*i+3, 1024*i) for i in range(NE)]
    def aloads(off):
        for q in range(5): a("s_add_u32 s%d, s54, %d" % (60+q, off + 4096*q))
        return ["buffer_load_dwordx4 v[%d:%d], v%d, s[%d:%d], s%d offen offset:%d sc1" % (AF+4*j, AF+4*j+3, V_L16, R_WS, R_WS+3, 60+(j >> 2), 1024*(j & 3)) for j in range(18)]
    def ostores(src, off):
        a("s_add_u32 s46, s55, %d" % off)
        for jj in range(3): a("buffer_store_dwordx4 v[%d:%d], v%d, s[%d:%d], s46 offen offset:%d sc1" % (src+4*jj, src+4*jj+3, V_L16, R_WS, R_WS+3, 1024*jj))
    a("v_and_b32 v19, 1, v%d" % V_R); a("v_cmp_eq_u32 s[56:57], 1, v19"); a("v_and_b32 v19, 2, v%d" % V_R); a("v_cmp_eq_u32 s[68:69], 2, v19")
    a("v_lshrrev_b32 v19, 2, v%d" % V_R); a("v_cmp_eq_u32 s[76:77], v19, v%d" % V_G); a("v_lshlrev_b32 v9, 3, v%d" % V_R)
    a("s_lshl_b32 s46, s53, 4"); a("v_add_u32 v20, s46, v%d" % V_R); a("s_mov_b32 s47, 18432")
    for k, sh in enumerate((1, -1, 2, -2)):
        a("v_subrev_u32 v21, %d, v20" % sh); a("v_ashrrev_i32 v22, 4, v21"); a("v_mul_lo_u32 v22, v22, s47")
        a("v_and_b32 v21, 15, v21"); a("v_lshl_add_u32 v21, v%d, 4, v21" % V_G); a("v_lshl_add_u32 v%d, v21, 4, v22" % (56+k))
    a("v_cmp_gt_u32 vcc, 32, v%d" % V_LANE); a("v_cndmask_b32 v60, v57, v56, vcc"); a("v_cndmask_b32 v61, v59, v58, vcc")
    for r in range(4): a("v_mov_b32 v%d, s%d" % (20+r, S_ONES))
    def init3():
        for k in range(12):
            a("v_lshlrev_b32 v%d, 16, v%d" % (ACC+2*k, XT+k)); a("v_and_b32 v%d, 0xffff0000, v%d" % (ACC+2*k+1, XT+k))
    N2 = int(os.environ.get("N2", 0))
    n3 = max(N2, NE)
    gemm96(a, aloads(O_OFF), [pf_lds(0), pf_lds(1)] + w2(W1N, 27, 71, AW1) + w2(0, N2), SLEEP0["p3"] if N2 < 8 else 0, stamp="p3", extra=w2(N2, n3), early=park(AW1, LAY4, False), init=init3, apre=(0, PRE[0]))
    a.stamp("p3_gemm")
    a(FP2Q)
    for k in range(12): a("v_cvt_pk_bf16_f32 v%d, v%d, v%d" % (HK+k, ACC+2*k, ACC+2*k+1))
    out_stats(a, HK, SH_OFF, lambda: ostores(HK, H_OFF))
    a.stamp("p3_epi")
    if a.stop == 3: a("s_waitcnt vmcnt(0)"); a("s_branch L_fin")
    cs = [mfma(WB+4*(i//9), AW1+4*i, 20, None if i % 9 == 0 else WB+4*(i//9), ta="a") for i in range(27)]
    a("s_mul_i32 s46, s%d, 192" % S_WAVE); a("s_add_u32 s46, s46, %d" % (48*1024)); a("v_lshl_add_u32 v24, v%d, 4, s46" % V_G)
    g = G(); interleave(g, [cs[(i % 3)*9 + i//3] for i in range(27)], park(AW1, LAY4, True))
    st4 = g.lines
    st4 += ["s_nop 7"] + ["ds_write_b128 v24, v[%d:%d] offset:%d" % (WB+4*k, WB+4*k+3, 64*k) for k in range(3)]
    CS = 232
    sl = stats_loads(a, SH_OFF, 53, 10); a("s_mov_b32 s65, s46"); sl = [x.replace("s46", "s65") for x in sl]
    def fin4(wreads):
        a("v_lshlrev_b32 v24, 4, v%d" % V_G)
        for k in range(12): a("ds_read_b128 v[%d:%d], v24 offset:%d" % ((CS if k % 2 == 0 else ACC)+4*(k//2), (CS if k % 2 == 0 else ACC)+4*(k//2)+3, 48*1024 + 64*k))
        wreads()
        a("s_waitcnt lgkmcnt(15)")
        for k in range(12): a("v_pk_add_f32 v[%d:%d], v[%d:%d], v[%d:%d]" % (CS+2*k, CS+2*k+1, CS+2*k, CS+2*k+1, ACC+2*k, ACC+2*k+1))
        a("s_waitcnt vmcnt(%d)" % UP)
        for x in tag_ops(range(10, 14), 30): a(x)
        tag_branch(a, sl, range(10, 14), 30, al4[:UP])
    g = G()
    stats_finish(g, 10, VMEAN, VRSTD)
    g("v_mul_f32 v12, v%d, v%d" % (VRSTD, VRSTD)); g("v_mul_f32 v12, v12, v11"); g("v_add_f32 v12, %d, v12" % f32(1e-5))
    g("v_rsq_f32 v12, v12"); g("v_mul_f32 v16, %d, v%d" % (f32(GS), VRSTD)); g("v_mul_f32 v16, v12, v16"); g("v_mul_f32 v17, v16, -v%d" % VMEAN)
    for k in range(24): g("v_mul_f32 v%d, v17, v%d" % (CS+k, CS+k))
    ln4 = g.lines
    if "d_mid" in ABL: a("s_sleep 64")
    al4 = aloads(H_OFF)
    gemm96(a, al4, st4, SLEEP0["p4"], pre=sl, each=fin4, stamp="p4", extra=w2(n3, 27), layout=LAY4, before=marks2, apre=(AW1, PRE[1]), side=ln4)
    a.stamp("p4_gemm")
    gelu_consts(a)
    for k in range(12): a("v_pk_fma_f32 v[%d:%d], v[%d:%d], v[16:17], v[%d:%d] op_sel_hi:[1,0,1]" % (ACC+2*k, ACC+2*k+1, ACC+2*k, ACC+2*k+1, CS+2*k, CS+2*k+1))
    g = G(); gelu_pk(g, [ACC+2*k for k in range(12)], AF)
    interleave(a, g.lines, park(AW2, LAY5, False))
    for k in range(12): a("v_cvt_pk_bf16_f32 v%d, v%d, v%d" % (OS+k, ACC+2*k, ACC+2*k+1))
    ostores(OS, T_OFF)
    a.stamp("p4_epi")
    if a.stop == 4: a("s_waitcnt vmcnt(0)"); a("s_branch L_fin")
    a.srd(R_A, S_WS, ACT, T_OFF)
    for q in range(5): a("s_mov_b32 s%d, %d" % (70+q, 4096*q))
    def vsel(j): return 56 if j < 4 else 60 if j == 4 else 57 if j < 9 else 58 if j < 13 else 61 if j == 13 else 59
    tl = ["buffer_load_dwordx4 v[%d:%d], v%d, s[%d:%d], s%d offen offset:%d sc1" % (AF+4*j, AF+4*j+3, vsel(j), R_A, R_A+3, 70+(j >> 2), 1024*(j & 3)) for j in range(18)]
    roles6(a)
    wflags(a, 54, 54, 55)
    a("s_waitcnt vmcnt(4)")
    def init5():
        a("v_mul_f32 v17, v%d, -v%d" % (VRSTD, VMEAN)); a("v_mov_b32 v16, v%d" % VRSTD)
        for k in range(12):
            a("v_lshlrev_b32 v%d, 16, v%d" % (ACC+2*k, HK+k)); a("v_and_b32 v%d, 0xffff0000, v%d" % (ACC+2*k+1, HK+k))
        for k in range(12):
            a("v_pk_fma_f32 v[%d:%d], v[%d:%d], v[16:17], v[16:17] op_sel:[0,0,1] op_sel_hi:[1,0,1]" % (ACC+2*k, ACC+2*k+1, ACC+2*k, ACC+2*k+1))
    gemm96(a, tl, park(AW2, LAY5, True), SLEEP0["p5"], stamp="p5", layout=LAY5, init=init5, apre=(0, PRE[2]))
    a.stamp("p5_gemm")
    for k in range(12): a("v_cvt_pk_bf16_f32 v%d, v%d, v%d" % (OS+k, ACC+2*k, ACC+2*k+1))
    out_stats(a, OS, SX_OFF, lambda: ostores(OS, X1_OFF))
    a.stamp("p5_epi")
    a("s_branch L_p5_pre")
    a.label("L_p3_helper")
    if "d_h3" in ABL: a("s_sleep 64")
    a("s_cmp_ge_u32 s48, 144"); a("s_cbranch_scc1 L_p3_touch")
    a("s_barrier")
    a(pf_lds(0)); a(pf_lds(1))
    swizzle_setup(a)
    a("s_add_u32 s48, s48, 54")
    for p in range(3):
        sw_big(a, 48, 60+3*p)
        a("s_lshl_b32 s53, s52, 10"); a("s_add_u32 s%d, s%d, s53" % (60+3*p, 60+3*p)); a("s_add_u32 s%d, s48, %d" % (62+3*p, FS))
        a("s_add_u32 s48, s48, 1")
    a("s_waitcnt vmcnt(0)"); a("s_barrier")
    for p in range(3): sw_process(a, p, W_LDS + 36864*p)
    a("s_waitcnt vmcnt(0)"); a("s_barrier")
    sw_flags(a, range(3))
    a.stamp("h_w3")
    a.label("L_p3_touch")
    roles6(a)
    NL = (SW << LCH)//128//32
    a("s_lshr_b32 s46, s65, %d" % LCH); a("s_mul_i32 s46, s46, %d" % (SW << LCH))
    a("s_and_b32 s47, s74, 3"); a("s_lshl_b32 s47, s47, 1"); a("s_add_u32 s47, s47, s75"); a("s_sub_u32 s47, s47, 6")
    if "xcd4" not in ABL:
        NL = BW//128//256
        a("s_mov_b32 s46, 0"); a("s_lshl_b32 s47, s74, 1"); a("s_add_u32 s47, s47, s75"); a("s_sub_u32 s47, s47, 6")
    a("s_lshl_b32 s47, s47, 2"); a("s_add_u32 s47, s47, s%d" % S_WAVE); a("s_mul_i32 s47, s47, %d" % (128*NL)); a("s_add_u32 s46, s46, s47")
    a.srd(R_A, S_W4, BW)
    a("v_lshlrev_b32 v10, 7, v%d" % V_LANE)
    for q in range(-(-NL//64) if "late4" not in ABL else 0):
        if NL - 64*q < 64: a("s_bfm_b64 exec, %d, 0" % (NL - 64*q))
        a("buffer_load_dword v11, v10, s[%d:%d], s46 offen" % (R_A, R_A+3)); a("s_add_u32 s46, s46, 8192")
    a("s_mov_b64 exec, -1")
    a.stamp("h_w4")
    wflags(a, 54, 54, 55)
    a(FP2Q)
    a("s_waitcnt vmcnt(0)")
    marks2(a)
    a.label("L_p5_pre")
    a.label("L_p5_done")
    a.stamp("p5_done")

WFL = os.environ.get("WFL", " sc1")
OFL = os.environ.get("OFL", "")
LCH = int(os.environ.get('LCH', 1))
RING = 184

def roles6(a):
    L = LCH
    a("s_lshr_b32 s46, s%d, %d" % (S_XCD, 3-L)); a("s_lshl_b32 s64, s46, %d" % (5-L)); a("s_lshr_b32 s67, s%d, %d" % (S_SLOT, L)); a("s_add_u32 s64, s64, s67")
    a("s_and_b32 s67, s67, 7")
    a("s_mov_b32 s67, 0")
    a("s_and_b32 s46, s%d, %d" % (S_XCD, (8 >> L) - 1)); a("s_lshl_b32 s65, s46, %d" % L); a("s_and_b32 s46, s%d, %d" % (S_SLOT, (1 << L) - 1)); a("s_add_u32 s65, s65, s46")
    a("s_lshl_b32 s46, s65, 2"); a("s_add_u32 s46, s46, s%d" % S_WAVE); a("s_mul_i32 s66, s46, %d" % (9*18432)); a("s_add_u32 s66, s66, %d" % W3_S)

def wload(j, s=58, ring=("a", RING)):
    o = "s_add_u32 s%d, s%d, 4096\n" % (s, s) if (j and j % 4 == 0) else ""
    return o + ("buffer_load_dwordx4 %s[%d:%d], v%d, s[%d:%d], s%d offen offset:%d" + WFL) % (ring[0], ring[1]+4*j, ring[1]+4*j+3, V_L16, R_WS, R_WS+3, s, 1024*(j & 3))

def ring_prefill(a, s):
    a("s_mul_i32 s%d, s67, 18432" % s); a("s_add_u32 s%d, s%d, s66" % (s, s))
    return [wload(j, s) for j in range(18)]

def norm_dot(x, t):
    o = []
    for r in range(4): o += ["v_dot2_f32_bf16 v%d, v%d, v%d, v17" % (t+2*r+h, x+r, 16+2*h) for h in range(2)]
    return o + ["v_cvt_pk_bf16_f32 v%d, v%d, v%d" % (x+r, t+2*r, t+2*r+1) for r in range(4)]

def phase6(a):
    AC, PK, RB, GT, XR = 40, 72, 80, 136, 64
    HB = 73728
    def xf(T, j):
        f = 4*j + T
        return ("a", 4*f) if f < 46 else ("v", 152 + 4*(f-46))
    a("s_mov_b32 s50, s64"); a("s_mov_b32 s51, s65"); a("s_mov_b32 s54, s66"); a("s_mov_b32 s52, s67")
    a("s_lshl_b32 s53, s50, 2"); a("s_add_u32 s53, s53, s%d" % S_WAVE)
    a("s_mul_i32 s56, s50, 72"); a("s_add_u32 s56, s56, s51"); a("s_lshl_b32 s56, s56, 2"); a("s_add_u32 s56, s56, s%d" % S_WAVE)
    a("s_lshl_b32 s56, s56, 11"); a("s_add_u32 s56, s56, %d" % PART)
    a("s_mul_i32 s46, s53, 18432")
    for q in range(5): a("s_add_u32 s%d, s46, %d" % (70+q, X1_OFF + 4096*q))
    a("s_mul_i32 s46, s%d, 18432" % S_WAVE); a("v_add_u32 v5, s46, v%d" % V_L16)
    sl = stats_loads(a, SX_OFF, 53, 10)
    a("s_mov_b32 s60, s46")
    sl = [x.replace("s46", "s60") for x in sl]
    a("v_mov_b32 v28, 0")
    a("global_load_dword v29, v28, s[%d:%d] sc1" % (S_DBG, S_DBG+1))
    L = a.newlabel("Lh")
    a("s_cmp_lg_u32 s%d, 0" % S_WAVE); a("s_cbranch_scc1 %s" % L)
    a("v_cmp_ne_u32 vcc, s%d, v55" % S_NONCE); a("s_cbranch_vccz %s" % L)
    a("v_lshrrev_b32 v54, 7, v54")
    a.poll(54, 55, sleep0=0)
    a.label(L)
    a("s_barrier")
    pre = ring_prefill(a, 59)
    NP = SLEEP0["p6"]
    for x in pre[:NP]: a(x)
    a.stamp("p6_ready")
    a("s_mov_b32 s79, 50000")
    for x in sl: a(x)
    def xload(j): return "buffer_load_dwordx4 v[%d:%d], v%d, s[%d:%d], s%d offen offset:%d sc1" % (XR+4*j, XR+4*j+3, V_L16, R_WS, R_WS+3, 70+(j >> 2), 1024*(j & 3))
    for j in range(UP): a(xload(j))
    a("v_add_u32 v32, 36864, v%d" % V_L16); a("v_add_u32 v33, %d, v%d" % (HB, V_L16)); a("v_add_u32 v34, %d, v%d" % (HB+36864, V_L16))
    a("s_lshr_b32 s46, s%d, 1" % S_WAVE); a("s_lshl_b32 s46, s46, 12"); a("s_and_b32 s47, s%d, 1" % S_WAVE); a("s_lshl_b32 s47, s47, 3")
    a("s_add_u32 s46, s46, s47"); a("v_add_u32 v35, s46, v33")
    gelu_consts(a)
    R3, ST, SEL, RS = 12, 32, 6, RB+24
    def natsel(d, sr, bit, t):
        o = ["s_bfe_u32 s66, s%d, %d" % (sr, 0x10000 + bit), "s_lshl_b32 s66, s66, 1", "v_lshrrev_b32 v%d, 3, v%d" % (t, V_R), "v_add_u32 v%d, s66, v%d" % (t, t),
             "v_cmp_eq_u32 s[66:67], v%d, v%d" % (t, V_G), "v_and_b32 v%d, 1, v%d" % (t, V_R), "v_lshlrev_b32 v%d, 4, v%d" % (t, t),
             "v_mov_b32 v%d, 0x3f80" % (t+1), "v_lshlrev_b32 v%d, v%d, v%d" % (t+1, t, t+1), "v_cndmask_b32 v%d, 0, v%d, s[66:67]" % (t+1, t+1),
             "v_bfe_u32 v%d, v%d, 1, 2" % (t, V_R)]
        for k in range(4): o += ["v_cmp_eq_u32 s[66:67], %d, v%d" % (k, t), "v_cndmask_b32 v%d, 0, v%d, s[66:67]" % (d+k, t+1)]
        return o
    a("v_lshrrev_b32 v26, 2, v%d" % V_R); a("v_cmp_eq_u32 s[64:65], v26, v%d" % V_G)
    a("v_and_b32 v26, 1, v%d" % V_R); a("v_lshlrev_b32 v26, 4, v26"); a("v_mov_b32 v27, 0x3f80"); a("v_lshlrev_b32 v27, v26, v27")
    a("v_cndmask_b32 v27, 0, v27, s[64:65]"); a("v_and_b32 v26, 2, v%d" % V_R); a("v_cmp_eq_u32 vcc, 0, v26")
    a("v_cndmask_b32 v%d, 0, v27, vcc" % (SEL+2)); a("v_cndmask_b32 v%d, v27, 0, vcc" % (SEL+3))
    for r in (0, 1): a("v_mov_b32 v%d, 0" % (SEL+r))
    for x in natsel(36, S_WAVE, 0, 26): a(x)
    def bload(reg, s, off=0, t="a"): return "buffer_load_dwordx4 %s[%d:%d], v%d, s[%d:%d], s%d offen offset:%d sc1" % (t, reg, reg+3, V_L16, R_WS, R_WS+3, s, off)
    a("s_waitcnt vmcnt(%d)" % UP)
    for x in tag_ops(range(10, 14), 30): a(x)
    tag_branch(a, sl, range(10, 14), 30, [xload(j) for j in range(UP)])
    a.stamp("p6_st")
    stats_finish(a, 10, 17, 16)
    a("v_mul_f32 v16, s48, v16"); a("v_cvt_pk_bf16_f32 v16, v16, 0"); a("v_lshlrev_b32 v18, 16, v16"); a("v_mul_f32 v17, v18, -v17")
    a("s_mul_i32 s60, s50, 73728")
    a("s_lshl_b32 s46, s51, 1"); a("s_lshr_b32 s47, s%d, 1" % S_WAVE); a("s_add_u32 s46, s46, s47"); a("s_lshl_b32 s46, s46, 10"); a("s_add_u32 s78, s46, s60")
    order = [("x", j) for j in range(UP)]
    todo = [("x", j) for j in range(UP, 18)] + [("w", j) for j in range(NP, 18)]
    for j in range(0, 18, 2):
        a("s_waitcnt vmcnt(%d)" % (len(order) - 1 - order.index(("x", j+1))))
        for x in tag_ops(range(XR+4*j, XR+4*j+8), 30): a(x)
        n = 2 if j < 10 else -(-len(todo)//(9 - j//2))
        for k, q in todo[:n]:
            a(xload(q) if k == "x" else pre[q]); order.append((k, q))
        del todo[:n]
        later = [q for k, q in order if k == "x" and q > j+1]
        tag_branch(a, [xload(j), xload(j+1)], range(XR+4*j, XR+4*j+8), 30, [xload(q) for q in later], drain=order[-1][0] == "w")
        if j in (8, 16): a.stamp("p6_x%d" % (j+1))
        n0, n1 = norm_dot(XR+4*j, 20), norm_dot(XR+4*j+4, 40)
        for x in n0[:8] + n1[:8] + n0[8:]: a(x)
        a("ds_write_b128 v5, v[%d:%d] offset:%d" % (XR+4*j, XR+4*j+3, 1024*j))
        for x in n1[8:]: a(x)
        a("ds_write_b128 v5, v[%d:%d] offset:%d" % (XR+4*j+4, XR+4*j+7, 1024*j+1024))
    assert not todo
    LT = 1 if "late4" in ABL else 0
    if LT:
        a.srd(R_A, S_W4, BW)
        a("s_lshl_b32 s46, s2, 2"); a("s_add_u32 s46, s46, s%d" % S_WAVE); a("s_mul_i32 s46, s46, %d" % (41*128))
        a("v_lshlrev_b32 v30, 7, v%d" % V_LANE); a("s_bfm_b64 exec, 41, 0")
        a("buffer_load_dword v31, v30, s[%d:%d], s46 offen" % (R_A, R_A+3))
        a("s_mov_b64 exec, -1")
    a("v_readfirstlane_b32 s%d, v29" % S_NONCE)
    for r in (4, 5): a("v_mov_b32 v%d, 0" % (SEL+r))
    a("s_waitcnt lgkmcnt(0)"); a("s_barrier")
    a.stamp("p6_x")
    def fread(j, va):
        o = []
        for T in range(4):
            t, r = xf(T, j)
            o.append("ds_read_b128 %s[%d:%d], v%d offset:%d" % (t, r, r+3, va[T >> 1], (T & 1)*18432 + 1024*j))
        return o
    def gelu(ac):
        b = gelu_poly([ac+2*k for k in range(8)], GT)
        o = []
        for T in range(4):
            x = ac + 4*T; t = GT + 4*T
            o += ["v_exp_f32 v%d, -v%d" % (t+i, t+i) for i in range(4)]
            o += ["v_fma_f32 v%d, v%d, s48, s48" % (t+i, t+i) for i in range(4)]
            o += ["v_rcp_f32 v%d, v%d" % (t+i, t+i) for i in range(4)]
            o += ["v_mul_f32 v%d, v%d, v%d" % (t+i, t+i, x+i) for i in range(4)]
            o += ["v_cvt_pk_bf16_f32 v%d, v%d, v%d" % (PK+2*T+h, t+2*h, t+2*h+1) for h in range(2)]
            o.append("ds_write_b64 v5, v[%d:%d] offset:%d" % (PK+2*T, PK+2*T+1, 1024*T))
        return b, o
    def wt(op): return 2 if op.startswith(("v_exp", "v_rcp")) else min(2, len(op.split("\n")))
    RA = ("a", RING); RBB = ("v", RB)
    def subpass(ac, fill, first=None, loads=None, at=None, ring=RA, depth=18, batch=(), head=(), c0=None, more=None):
        if "p6nogelu" in ABL and len(fill) > 20: fill = []; batch = ()
        if "p6nost" in ABL: fill = [x for x in fill if "buffer_store" not in x]
        fill = list(fill); head = list(head)
        seq = [(2*p + q, T) for p in range(9) for T in range(4) for q in range(2)]
        LA = 12
        rd = [fread(j, first)[T] for j, T in seq] if first else []
        for x in rd[:LA]: a(x)
        def wait(m):
            w = []
            if m % 8 == 0: w.append("vmcnt(%d)" % (depth - 2 + (more(m//4 - 1) if more else 0)))
            if first and m % 2 == 0: w.append("lgkmcnt(%d)" % max(0, min(LA, 72 - m) - 2))
            return "s_waitcnt " + " ".join(w) if w else None
        for m, (j, T) in enumerate(seq):
            if wait(m): a(wait(m))
            if at and m % 4 == 0 and m//4 in at: at[m//4]()
            t, r = xf(T, j)
            a(mfma(ac+4*T, ring[1]+4*j, r, (None if c0 is None else c0+4*T) if j == 0 else ac+4*T, ta=ring[0], tb=t))
            room = 2
            if m + LA < len(rd): a(rd[m + LA]); room -= 1
            if m < 3:
                n = (len(head) + 2 - m)//(3 - m)
                for x in head[:n]: a(x)
                del head[:n]
            if m == 3:
                for x in batch: a(x)
            if T == 3:
                ld = "" if ("p6nold" in ABL and loads is None) else (loads(j) if loads else
                     ("buffer_load_dwordx4 a[%d:%d], v%d, s[%d:%d], s58 offen offset:%d" + WFL) % (RING+4*j, RING+4*j+3, RB+3+(j >> 2) if j > 3 else V_L16, R_WS, R_WS+3, 1024*(j & 3)))
                if ld: a(ld); room -= len(ld.split("\n"))
            if m < 71 and wait(m+1): room -= 1
            if m < 4: continue
            later = sum(2 - (q % 8 >= 6) - (q % 8 == 7 and q < 71) for q in range(m+1, 72))
            while fill and (wt(fill[0]) <= room or sum(wt(x) for x in fill) > later):
                room -= wt(fill[0]); a(fill.pop(0))
        assert not fill
    def nexttile():
        return ["s_mov_b32 s62, s61", "s_add_u32 s61, s61, 1", "s_add_u32 s54, s54, 18432", "s_mov_b32 s58, s54",
                "s_lshl_b32 s46, s62, 13", "v_add_u32 v5, s46, v35"]
    a("s_mov_b32 s61, 0"); a("s_add_u32 s54, s54, 18432"); a("s_mov_b32 s58, s54")
    for q in range(1, 5): a("v_add_u32 v%d, %d, v%d" % (RB+3+q, 4096*q, V_L16))
    res = ["s_add_u32 s62, s78, %d\n" % ((X1_OFF, H_OFF)[j >> 2] + 18432*(j & 3)) + bload(RS+4*j, 62, t="v") for j in range(8)]
    def resadd():
        for k in range(2):
            for T in range(4): a(mfma(R3+4*T, 36, RS+16*k+4*T, None if k == 0 else R3+4*T))
    subpass(AC, [], first=(V_L16, 32), at={2*j+1: (lambda j=j: a(res[j])) for j in range(8)}, more=lambda j: min((j+1)//2, 8) + LT)
    if "d_line" in ABL:
        for q in range(1024): a("v_mov_b32_e64 v%d, v1" % (30 + (q & 1)))
    if "d_loop" in ABL:
        L = a.newlabel("Ld"); a("s_mov_b32 s46, 16"); a.label(L)
        for q in range(64): a("v_mov_b32_e64 v%d, v1" % (30 + (q & 1)))
        a("s_sub_u32 s46, s46, 1"); a("s_cmp_lg_u32 s46, 0"); a("s_cbranch_scc1 %s" % L)
    a.stamp("p6_p0")
    DA, TA = RB+16, RB+22
    a.srd(R_B, S_W4, BW + 4096, -4096)
    a("v_lshrrev_b32 v30, 3, v%d" % V_LANE); a("v_bfe_u32 v31, v%d, 4, 1" % V_LANE); a("v_lshlrev_b32 v31, 1, v31")
    a("v_and_b32 v%d, 7, v%d" % (TA, V_LANE)); a("v_xor_b32 v31, v31, v%d" % TA); a("v_mul_u32_u24 v30, 1152, v30")
    a("v_lshl_add_u32 v%d, v31, 4, v30" % DA); a("v_xor_b32 v31, 4, v31"); a("v_lshl_add_u32 v%d, v31, 4, v30" % (DA+1))
    for q in (5, 4, 3, 2, 1, 0): a("v_add_u32 v%d, %d, v%d" % (DA+q, 9216*q - 1024*(q % 3) + 4096, DA + (q & 1)))
    a("v_lshrrev_b32 v30, 2, v%d" % V_R); a("v_lshl_add_u32 v31, v%d, 3, v30" % V_G); a("v_lshlrev_b32 v31, 7, v31")
    a("v_lshrrev_b32 v30, 1, v30"); a("v_and_b32 v%d, 1, v%d" % (TA, V_G)); a("v_lshl_add_u32 v30, v%d, 1, v30" % TA)
    a("v_xor_b32 v30, s%d, v30" % S_WAVE); a("v_lshl_add_u32 v31, v30, 5, v31"); a("v_and_b32 v30, 3, v%d" % V_R)
    a("v_lshl_add_u32 v%d, v30, 3, v31" % TA)
    a("s_mul_i32 s55, s51, 12"); a("s_add_u32 s55, s55, s%d" % S_WAVE); a("s_mul_i32 s55, s55, %d" % (48*1152))
    a("s_mul_i32 s63, s%d, 6144" % S_WAVE)
    a("s_barrier")
    for r in range(4): a("v_mov_b32 v%d, -1" % (RB+r))
    def marker(p):
        def f():
            L = a.newlabel("Lmk"); a("s_cmp_lt_u32 s59, 2"); a("s_cbranch_scc0 %s" % L)
            if p == 0: a("s_add_u32 s46, s51, s59"); a("s_add_u32 s46, s46, 6"); a("s_and_b32 s46, s46, 7"); a("s_lshl_b32 s46, s46, 16"); a("s_add_u32 s77, s46, s56")
            a("buffer_store_dwordx4 v[%d:%d], v%d, s[%d:%d], s77 offen offset:%d sc1" % (RB, RB+3, V_L16, R_WS, R_WS+3, 1024*p))
            a.label(L)
        return f
    a("s_mov_b32 s59, 0")
    a.label("L_p6_a")
    for half in (1, 0):
        b, o = gelu(AC+16*(1-half))
        subpass(AC+16*half, o, batch=b, head=nexttile(), at={8: marker(1-half)})
    a("s_add_u32 s59, s59, 1"); a("s_cmp_lt_u32 s59, 3"); a("s_cbranch_scc1 L_p6_a")
    b, o = gelu(AC)
    subpass(AC+16, o, batch=b, head=nexttile(), at={9: resadd})
    CH = 24576
    def slot(n): return n if n < 3 else (0, 3, 1, 4, 2, 5)[(n - 3) % 6]
    def src(c, s): return "s_add_u32 s58, s%d, %d" % (s, 192*1152*c)
    def dma(n, s):
        o = []
        for q in range(6):
            pre = src(n % 3, s) + "\n" if q == 0 else ""
            if q % 3 == 0: pre = "s_add_u32 m0, s63, %d\n" % (CH*slot(n) + 1024*q) + (pre or "s_nop 0\n")
            o.append(pre + "buffer_load_dwordx4 v%d, s[%d:%d], s58 offen offset:%d lds" % (DA+q, R_B, R_B+3, 1024*(q % 3)))
        return o
    def origin(d, step):
        if step == 0: return ["s_add_u32 s%d, s55, 1024" % d]
        return ["s_add_u32 s46, s51, %s" % step, "s_and_b32 s46, s46, 7", "s_lshl_b32 s46, s46, 7", "s_add_u32 s%d, s55, s46" % d]
    for x in origin(64, 0) + origin(65, 1): a(x)
    d012 = dma(0, 64) + dma(1, 64) + dma(2, 64)
    b, o = gelu(AC+16)
    subpass(AC, o, batch=b, head=nexttile(), loads=lambda j: d012[j])
    a("s_lshl_b32 s46, s61, 13"); a("v_add_u32 v5, s46, v35")
    a("s_waitcnt vmcnt(12) lgkmcnt(0)"); a("s_barrier")
    a.stamp("p6_a")
    def pstore(ac):
        o = ["v_cvt_pk_bf16_f32 v%d, v%d, v%d" % (PK + (k ^ 2 if ac == AC else k), ac+2*k, ac+2*k+1) for k in range(8)]
        o += ["buffer_store_dwordx4 v[%d:%d], v%d, s[%d:%d], s62 offen offset:%d sc1" % (PK+4*p, PK+4*p+3, V_L16, R_WS, R_WS+3, 1024*p) for p in range(2)]
        return o
    def dest(step):
        if step == 0: return ["s_add_u32 s62, s56, %d" % (8*65536)]
        return ["s_add_u32 s46, s51, %s" % step, "s_and_b32 s46, s46, 7", "s_lshl_b32 s46, s46, 16", "s_add_u32 s62, s46, s56"]
    def xf(T, j):
        f = 4*j + T
        return ("a", 4*f) if f < 64 else ("v", 224 + 4*(f-64))
    def wf(pp): return (RB, RB+8, ST)[pp % 3]
    def wread(n, p):
        o = ["v_add_u32 v%d, %d, v%d" % (TA+1, CH*slot(n), TA)] if p == 0 else []
        pp = 3*n + p
        return o + ["ds_read_b64_tr_b16 v[%d:%d], v%d offset:%d" % (wf(pp)+4*q+2*hh, wf(pp)+4*q+2*hh+1, TA+1, 4096*(2*p+q) + 512*hh) for q in range(2) for hh in range(2)]
    def step(s, ac, fill, head=(), first=None, c0=None, before={}, after={}, at={}, batch=(), hurry=None, evens=()):
        if "p6nost" in ABL: fill = [x for x in fill if "buffer_store" not in x]
        if "p6nold" in ABL: after = {k: [x for x in v if " lds" not in x] or ["s_nop 0"] for k, v in after.items()}
        fill = list(fill); head = list(head); lg = list(step.lg); nfill = len(fill)
        seq = [(2*p + q, T) for p in range(9) for T in range(4) for q in range(2)]
        hr = ["ds_read_b128 %s[%d:%d], v%d offset:%d" % (xf(T, j)[0], xf(T, j)[1], xf(T, j)[1]+3, first[j//9], 1024*(4*(j % 9) + T)) for j, T in seq] if first else []
        def lds(x, tag):
            a(x)
            if x.startswith("ds_"): lg.append(tag)
        def upto(tag):
            if tag in lg:
                n = len(lg) - 1 - max(i for i, t in enumerate(lg) if t == tag)
                a("s_waitcnt lgkmcnt(%d)" % min(n, 15)); del lg[:len(lg) - min(n, 15)]
                return 1
            return 0
        for i, x in enumerate(hr[:8]): lds(x, ("h", i))
        extra = [(w - 72, x) for w, x in step.extra]
        for m, (j, T) in enumerate(seq):
            p, c = m//8, m//24
            room = 2
            if m % 24 == 8 and 3*s + c < 26:
                if c in before: before[c]()
                upto("x")
                if "p6nobar" not in ABL: a("s_barrier")
                assert not extra
                ex = after.get(c, []); extra = [(m + 24*k//len(ex), x) for k, x in enumerate(ex)]
            if m % 8 == 0:
                upto(("w", 9*s + p))
                nx = wread(3*s + (p+2)//3, (p+2) % 3) if 9*s + p < 79 else []
            if m % 2 == 0 and first: upto(("h", m+1))
            if m % 4 == 0 and m//4 in at: at[m//4]()
            t, r = xf(T, j)
            a(mfma(ac+4*T, wf(9*s+p)+4*(j & 1), r, (None if c0 is None else c0+4*T) if j == 0 else ac+4*T, tb=t))
            if nx:
                lds(nx.pop(0), ("w", 9*s + p + 2)); room -= 1
            if m + 8 < len(hr): lds(hr[m+8], ("h", m+8)); room -= 1
            if m < 3:
                n = (len(head) + 2 - m)//(3 - m)
                for x in head[:n]: a(x)
                del head[:n]
            while extra and extra[0][0] <= m:
                lds(extra.pop(0)[1], "x"); room -= 1
            if m % 2 == 0 and m//2 < len(evens): a(evens[m//2]); room -= 1
            if m == 3:
                for x in batch: a(x)
            if m >= 4:
                while fill and (wt(fill[0]) <= room or hurry and len(fill)*(hurry - 3) > nfill*(hurry - m)):
                    room -= wt(fill[0]); lds(fill.pop(0), "x")
        assert not fill
        step.lg = lg; step.extra = extra
    def mix(x, y): return [z for pair in zip(x, y) for z in pair]
    def vm(n): return lambda: a("s_waitcnt vmcnt(%d)" % n)
    def seq(*fs):
        def f():
            for x in fs: x()
        return f
    def wave(w, body):
        def f():
            L = a.newlabel("Lex"); a("s_cmp_lg_u32 s%d, %d" % (S_WAVE, w)); a("s_cbranch_scc1 %s" % L); body(); a.label(L)
        return f
    a("s_lshl_b32 s70, s50, 10"); a("s_add_u32 s70, s70, %d" % (FLAG0 + 128*FA)); a("s_lshl_b32 s46, s51, 7"); a("s_add_u32 s68, s70, s46")
    a("s_mul_i32 s46, s50, 9"); a("s_add_u32 s46, s46, s51"); a("s_lshl_b32 s46, s46, 16"); a("s_lshl_b32 s47, s%d, 11" % S_WAVE)
    a("s_add_u32 s46, s46, s47"); a("s_add_u32 s69, s46, %d" % PART)
    def publish(c):
        def f():
            a("s_add_u32 s46, s%d, %d" % (S_NONCE, c)); a("v_mov_b32 v29, s46"); a("s_mov_b64 exec, 1")
            a("buffer_store_dword v29, v28, s[%d:%d], s68 offen sc1" % (R_WS, R_WS+3))
            a("s_mov_b64 exec, -1")
        return wave(0, f)
    askq = "buffer_load_dword v31, v5, s[%d:%d], s70 offen sc1" % (R_WS, R_WS+3)
    ask = wave(0, lambda: a(askq))
    def need(c, n):
        def f():
            L = a.newlabel("Lcf")
            a("s_add_u32 s73, s%d, %d" % (S_NONCE, c)); a("s_mov_b32 s47, 100000"); a("s_waitcnt vmcnt(%d)" % n)
            a.label(L)
            a("v_subrev_u32 v30, s73, v31"); a("v_cmp_lt_u32 vcc, 7, v30"); a("s_cbranch_vccz %s_x" % L)
            a("s_sleep 1"); a(askq); a("s_waitcnt vmcnt(0)")
            a("s_sub_u32 s47, s47, 1"); a("s_cbranch_scc0 %s" % L)
            a.label(L + "_x")
        return wave(0, f)
    step.extra = []
    a("v_mov_b32 v%d, v33" % (RB+24)); a("v_mov_b32 v%d, v34" % (RB+25))
    for x in wread(0, 0) + wread(0, 1): a(x)
    step.lg = [("w", 0)]*4 + [("w", 1)]*4
    A0, A1 = AC+16, AC
    b, o = gelu(AC)
    step(0, A0, o, first=(RB+24, RB+25), head=origin(64, 2), batch=b, hurry=48, before={0: vm(6), 1: vm(0), 2: vm(6)},
         after={1: dma(3, 65) + dma(4, 65), 2: dma(5, 65) + dma(6, 64)})
    a.stamp("p6_s0")
    a("v_and_b32 v5, 7, v%d" % V_LANE); a("v_cmp_eq_u32 vcc, s51, v5"); a("v_xor_b32 v30, 1, v5")
    a("v_cndmask_b32 v5, v5, v30, vcc"); a("v_lshlrev_b32 v5, 7, v5")
    step(1, A1, pstore(A0), head=dest(0) + origin(65, 3), before={0: vm(12), 1: vm(18), 2: vm(18)},
         after={0: dma(7, 64) + dma(8, 64), 1: dma(9, 65), 2: dma(10, 65)})
    a.stamp("p6_s1")
    a("s_mov_b32 s71, 2")
    a.label("L_p6_b")
    w18 = {0: vm(18), 1: vm(18), 2: vm(18)}
    def last(body):
        def f():
            L = a.newlabel("Ll"); a("s_cmp_eq_u32 s71, 4"); a("s_cbranch_scc0 %s" % L); body(); a.label(L)
        return f
    lg0 = list(step.lg); ex0 = list(step.extra)
    step(2, A0, pstore(A1), head=["s_sub_u32 s72, s71, 1"] + dest("s72") + ["s_add_u32 s72, s71, 2"] + origin(64, "s72"), before=w18,
         after={0: dma(11, 65), 1: dma(12, 64), 2: dma(13, 64)})
    step(3, A1, pstore(A0), head=dest("s71") + ["s_add_u32 s72, s71, 3"] + origin(65, "s72"), before={0: vm(18), 1: vm(18), 2: seq(vm(18), last(vm(10)))},
         after={0: dma(14, 64), 1: dma(15, 65), 2: dma(16, 65)}, at={15: last(publish(4))})
    assert [t[0] for t in step.lg] == [t[0] for t in lg0] and step.extra == ex0
    a("s_add_u32 s71, s71, 2"); a("s_cmp_lt_u32 s71, 6"); a("s_cbranch_scc1 L_p6_b")
    step.lg = [("w", t[1] + 36) for t in lg0]
    a.stamp("p6_s5")
    def SC(k): return (54, 57, 59, 61, 72, 75, 76)[k-1]
    for k in range(1, 8):
        r = SC(k); a("s_sub_u32 s%d, s51, %d" % (r, k)); a("s_and_b32 s%d, s%d, 7" % (r, r)); a("s_lshl_b32 s%d, s%d, 13" % (r, r)); a("s_add_u32 s%d, s%d, s69" % (r, r))
    CB, EX = RB + 24, 160
    def cload(k): return [bload(CB + 28*p + 4*(k-1), SC(k), 1024*p, t="v") for p in range(2)]
    def emit(xs): return lambda: [a(x) for x in xs]
    def add(acc, k):
        def f():
            for p in range(2):
                r = CB + 28*p + 4*(k-1); T = 2*p + (k & 1)
                a(mfma(acc+4*T, SEL+2, r, acc+4*T) if k == 1 else mfma(acc+4*T, SEL, r-4, acc+4*T) if k == 8 else mfma(acc+4*T, BOTH, r-2, acc+4*T))
        return f
    step(6, A0, pstore(A1), head=dest(5) + origin(64, 8), before={0: vm(18), 1: vm(18), 2: seq(need(4, 6), vm(10))},
         after={0: dma(23, 65), 1: dma(24, 64), 2: dma(25, 64)}, at={6: ask, 15: publish(5), 16: emit(cload(1))})
    a.stamp("p6_s6")
    a("s_mul_i32 s46, s50, 9"); a("s_add_u32 s46, s46, 8"); a("s_lshl_b32 s46, s46, 16"); a("s_lshl_b32 s47, s51, 10")
    a("s_add_u32 s46, s46, s47"); a("s_add_u32 s78, s46, %d" % PART)
    a("s_and_b32 s46, s51, 1"); a("s_mul_i32 s74, s46, 36864"); a("s_add_u32 s74, s74, s60")
    a("s_lshr_b32 s47, s51, 2"); a("s_add_u32 s47, s47, 16"); a("s_lshl_b32 s46, s47, 10"); a("s_add_u32 s79, s46, s74")
    a("s_lshr_b32 s46, s51, 1"); a("s_lshl_b32 s46, s46, 5"); a("s_add_u32 s46, s46, 1024"); a("s_add_u32 s74, s74, s46")
    def extra_get():
        for k in range(8):
            a(bload(EX+4*k, 78, t="v")); a("s_add_u32 s78, s78, 8192")
        for k, off in enumerate((H_OFF, X1_OFF)):
            for T in range(2):
                a("s_add_u32 s46, s79, %d" % (off + 18432*T)); a(bload(EX+32+8*k+4*T, 46, t="v"))
    step(7, A1, pstore(A0), head=dest(6), before={0: vm(18), 1: vm(18), 2: seq(need(5, 2), vm(18))}, after={0: dma(26, 64)},
         at={3: emit(cload(2)), 6: emit(cload(3)), 9: ask, 10: emit(cload(4)), 15: emit(cload(5))})
    a.stamp("p6_s7")
    SEv, EA, BOTH = A1, A1+8, R3
    g = G()
    g.lines += ["v_mov_b32 v%d, v%d" % (BOTH+i, SEL+2+(i & 1)) for i in range(4)]
    g.lines += natsel(SEv, 51, 1, EA)
    OB = 147456
    g("v_mul_u32_u24 v%d, 144, v%d" % (A1+4, V_R)); g("v_lshl_add_u32 v%d, v%d, 3, v%d" % (A1+4, V_G, A1+4))
    g.lines.append("s_lshl_b32 s66, s%d, 5\ns_add_u32 s66, s66, %d" % (S_WAVE, OB))
    g("v_add_u32 v%d, s66, v%d" % (A1+4, A1+4))
    g("v_lshrrev_b32 v%d, 3, v0" % EA); g("v_and_b32 v%d, 7, v0" % (EA+1)); g("v_lshlrev_b32 v%d, 4, v%d" % (EA+1, EA+1))
    g("v_mul_u32_u24 v%d, 144, v%d" % (A1+5, EA)); g("v_add_u32 v%d, v%d, v%d" % (A1+5, A1+5, EA+1)); g("v_add_u32 v%d, %d, v%d" % (A1+5, OB, A1+5))
    g("v_mul_u32_u24 v%d, 1152, v%d" % (A1+6, EA)); g("v_add_u32 v%d, v%d, v%d" % (A1+6, A1+6, EA+1))
    g("v_mul_u32_u24 v%d, 1152, v%d" % (A1+7, V_R)); g("v_lshl_add_u32 v%d, v%d, 3, v%d" % (A1+7, V_G, A1+7))
    step(8, A0, pstore(A1) + g.lines, head=dest(7), c0=R3, before={0: vm(10), 1: vm(2)},
         at={8: add(A0, 1), 9: wave(3, extra_get), 10: add(A0, 2), 12: seq(add(A0, 3), emit(cload(6))),
             14: add(A0, 4), 16: add(A0, 5), 17: emit(cload(7))})
    a.stamp("p6_b")
    a.srd(R_A, S_OUT, ACT)
    a("s_cmp_lg_u32 s%d, 3" % S_WAVE); a("s_cbranch_scc1 L_p7_main")
    a("s_waitcnt vmcnt(4)")
    for k in range(8):
        a(mfma(EA, SEL+2, EX+4*k, None if k == 0 else EA)); a(mfma(EA+4, SEL, EX+4*k, None if k == 0 else EA+4))
    for k in range(2):
        for T in range(2): a(mfma(EA+4*T, SEv, EX+32+8*k+4*T, EA+4*T))
    for T in range(2):
        for h in range(2): a("v_cvt_pk_bf16_f32 v%d, v%d, v%d" % (PK+2*T+h, EA+4*T+2*h, EA+4*T+2*h+1))
    a.label("L_p7_main")
    for k in (6, 7):
        regs = [CB + 28*p + 4*(k-1) + i for p in range(2) for i in range(4)]
        L = a.newlabel("Ltag")
        a("s_mov_b32 s47, 100000")
        a("s_waitcnt vmcnt(%d)" % (2 if k == 6 else 0))
        a.label(L)
        for x in tag_ops(regs, 30): a(x)
        a("s_cbranch_vccz %s_x" % L)
        for x in cload(k): a(x)
        a("s_waitcnt vmcnt(0)")
        a("s_sub_u32 s47, s47, 1"); a("s_cbranch_scc0 %s" % L)
        a.label(L + "_x")
        add(A0, k)()
    add(A0, 8)()
    a.stamp("p7_ready")
    a("s_cmp_lg_u32 s%d, 3" % S_WAVE); a("s_cbranch_scc1 L_p7_acc")
    for T in range(2):
        a("buffer_store_dwordx2 v[%d:%d], v%d, s[%d:%d], s74 offen%s" % (PK+2*T, PK+2*T+1, A1+7, R_A, R_A+3, OFL))
        a("s_add_u32 s74, s74, 18432")
    a.label("L_p7_acc")
    a("s_lshl_b32 s46, s51, 7"); a("s_add_u32 s46, s46, s60"); a("s_add_u32 s47, s46, 36864")
    for T in range(4):
        for h in range(2): a("v_cvt_pk_bf16_f32 v%d, v%d, v%d" % (R3+2*T+h, A0+4*T+2*h, A0+4*T+2*h+1))
        a("ds_write_b64 v%d, v[%d:%d] offset:%d" % (A1+4, R3+2*T, R3+2*T+1, 2304*T))
    a("s_waitcnt lgkmcnt(0)"); a("s_barrier")
    for p in range(2): a("ds_read_b128 v[%d:%d], v%d offset:%d" % (R3+8+4*p, R3+11+4*p, A1+5, 4608*p))
    for p in range(2):
        a("s_waitcnt lgkmcnt(%d)" % (1-p))
        a("buffer_store_dwordx4 v[%d:%d], v%d, s[%d:%d], s%d offen%s" % (R3+8+4*p, R3+11+4*p, A1+6, R_A, R_A+3, 46+p, OFL))
```

```python
from gen import *

NEG = 0xF149F2CA
SLEEP0 = dict(p2=0, p3=0, p4=0, p5=0, p6=18)
for _kv in os.environ.get('SLEEP', '').split(','):
    if _kv: SLEEP0[_kv.split('=')[0]] = int(_kv.split('=')[1])

W_LDS = 53248
AW1, AW2 = 40, 148
XT = 232
W1N = int(os.environ.get('W1N', 27))
PA, PS, R_C = 244, (3, 27, 45), R_B

def pf_lds(i):
    gq, k = divmod(i, 9)
    pre = "s_mul_i32 s58, s79, %d\ns_add_u32 s58, s58, s73\ns_mov_b32 m0, s58\n" % gq if k == 0 or i == 2 else ""
    post = "\ns_add_u32 m0, m0, 3072" if k in (2, 5) else ""
    return pre + "buffer_load_dwordx4 v%d, s[%d:%d], s%d offen offset:%d sc1 lds" % (PA+k, R_C, R_C+3, PS[gq], 1024*(k % 3)) + post

def roles345(a):
    a("s_lshr_b32 s46, s%d, 3" % S_SLOT); a("s_lshl_b32 s74, s%d, 2" % S_XCD); a("s_add_u32 s74, s74, s46"); a("s_add_u32 s75, s%d, 6" % S_SLOT); a("s_and_b32 s75, s75, 7")
    a("s_lshl_b32 s76, s74, 2"); a("s_add_u32 s76, s76, s%d" % S_WAVE)

def phase2(a):
    KL_, VL_ = 0, 27648
    a("s_lshr_b32 s50, s%d, 1" % S_SLOT); a("s_and_b32 s51, s%d, 1" % S_SLOT); a("s_lshl_b32 s46, s%d, 1" % S_XCD); a("s_add_u32 s51, s51, s46")
    a("s_mul_i32 s52, s51, %d" % HPSZ)
    a("s_add_u32 s46, s52, %d" % K_OFF); a.srd_s(R_A, S_WS, HPSZ, 46)
    a("s_add_u32 s46, s52, %d" % V_OFF); a.srd_s(R_B, S_WS, HPSZ, 46)
    a("s_mul_i32 s46, s50, 9216"); a("s_sub_u32 s46, s46, 18432"); a("s_lshl_b32 s47, s%d, 10" % S_WAVE); a("s_add_u32 s46, s46, s47")
    a("v_add_u32 v10, s46, v%d" % V_L16)
    for i in range(1, 7): a("v_add_u32 v%d, %d, v10" % (10+i, 4096*i))
    a("s_lshl_b32 s46, s50, 3"); a("s_lshl_b32 s53, s%d, 1" % S_WAVE); a("s_add_u32 s53, s53, s46")
    a("s_mul_i32 s54, s53, 1152"); a("s_add_u32 s54, s54, s52"); a("s_add_u32 s54, s54, %d" % Q_OFF)
    a("v_lshlrev_b32 v18, 4, v%d" % V_R)
    a("s_mul_i32 s46, s%d, 2304" % S_WAVE)
    a("v_add_u32 v20, s46, v%d" % V_L16)
    a("s_add_u32 s47, s46, 2048"); a("v_add_u32 v21, s47, v18")
    a("s_add_u32 s47, s46, %d" % VL_); a("v_add_u32 v22, s47, v%d" % V_L16)
    a("v_lshl_add_u32 v23, v%d, 2, v%d" % (V_R, V_G)); a("s_add_u32 s47, s47, 2048"); a("v_lshl_add_u32 v23, v23, 4, s47")
    for i in range(4):
        a("v_lshl_add_u32 v24, v%d, 2, %d" % (V_G, i)); a("v_cmp_gt_u32 s[%d:%d], v24, v%d" % (60+2*i, 61+2*i, V_R))
    a("v_cmp_eq_u32 s[68:69], 0, v%d" % V_G)
    a("v_mov_b32 v25, 0x%x" % NEG)
    for r in range(4): a("v_mov_b32 v%d, -1" % (228+r))
    a("v_and_b32 v225, 31, v%d" % V_LANE); a("v_lshlrev_b32 v225, 2, v225")
    VLA = 0
    for r in range(36): a("v_accvgpr_write_b32 a%d, s%d" % (VLA+r, S_ONES))
    roles345(a)
    a("s_mul_i32 s46, s75, 110592"); a("s_mul_i32 s47, s%d, 27648" % S_WAVE); a("s_add_u32 s70, s46, s47"); a("s_add_u32 s70, s70, %d" % WO_S)
    a("s_add_u32 s71, s70, %d" % SW); a("s_add_u32 s72, s71, %d" % SW)
    a("s_cmp_ge_u32 s75, 6"); a("s_cbranch_scc1 L_p2_hs")
    a("s_add_u32 s73, s47, %d" % W_LDS); a("s_mov_b32 s79, 9216")
    for gq in range(3): a("s_add_u32 s%d, s70, %d" % (PS[gq], 9216*gq))
    for i in range(9): a("v_add_u32 v%d, %d, v%d" % (PA+i, 3072*(i//3), V_L16))
    a("s_mov_b32 s10, s%d" % S_WS); a("s_mov_b32 s11, s%d" % (S_WS+1)); a("s_mov_b32 s26, %d" % WS_END)
    a("s_branch L_p2_hd")
    a.label("L_p2_hs")
    a("s_mov_b32 s71, 0x70000000")
    a("s_mul_i32 s47, s%d, 9216" % S_WAVE); a("s_add_u32 s73, s47, %d" % W_LDS); a("s_mov_b32 s79, 36864")
    a("s_lshl_b32 s48, s74, 1"); a("s_add_u32 s48, s48, s75"); a("s_sub_u32 s48, s48, 6"); a("s_mul_i32 s48, s48, 3")
    a("s_mov_b32 s10, s%d" % S_W3); a("s_mov_b32 s11, s%d" % (S_W3+1)); a("s_mov_b32 s78, 9216")
    a("s_cmp_lt_u32 s48, 144"); a("s_cselect_b32 s26, %d, 0" % BW)
    for gq in range(3):
        a("s_add_u32 s46, s48, %d" % gq)
        a.sdiv(47, 56, 46, 18)
        a("s_lshl_b32 s56, s56, 2"); a("s_add_u32 s56, s56, s%d" % S_WAVE); a("s_mul_i32 s56, s56, %d" % (8*9216))
        a("s_mul_i32 s47, s47, 1152"); a("s_add_u32 s%d, s56, s47" % (PS[gq]))
    for i in range(9):
        a("v_add_u32 v24, %d, v%d" % (64*i, V_LANE)); a("v_mul_u32_u24 v26, 911, v24"); a("v_lshrrev_b32 v26, 16, v26")
        a("v_mul_u32_u24 v27, 72, v26"); a("v_sub_u32 v27, v24, v27"); a("v_mul_lo_u32 v26, v26, s78"); a("v_lshl_add_u32 v%d, v27, 4, v26" % (PA+i))
        if i % 3: a("v_subrev_u32 v%d, %d, v%d" % (PA+i, 1024*(i % 3), PA+i))
    a.label("L_p2_hd")
    a("v_mul_u32_u24 v7, 1152, v%d" % V_R); a("v_lshl_add_u32 v7, v%d, 4, v7" % V_G)
    a("s_mul_i32 s46, s76, 18432"); a("s_mul_i32 s47, s75, 192"); a("s_add_u32 s77, s46, s47")
    a("s_cmp_ge_u32 s75, 6"); a("s_cselect_b32 s77, 0x70000000, s77")
    L = a.newlabel("Lp2w")
    a("v_mov_b32 v19, %d" % (W_LDS + 4096))
    a("s_cmp_lg_u32 s%d, 0" % S_WAVE); a("s_cbranch_scc1 %s" % L)
    a("v_and_b32 v30, 2, v%d" % V_LANE); a("v_cmp_eq_u32 s[58:59], 0, v30"); a("v_cmp_gt_u32 vcc, 12, v%d" % V_LANE)
    a("s_andn2_b64 s[56:57], vcc, s[58:59]"); a("s_and_b64 s[58:59], vcc, s[58:59]")
    a("v_mov_b32 v34, 0x49800000"); a("v_mov_b32 v35, 0x7f800000")
    a("v_lshrrev_b32 v30, 2, v%d" % V_LANE); a("v_min_u32 v30, 2, v30"); a("v_add_u32 v30, s50, v30"); a("v_subrev_u32 v30, 2, v30"); a("v_max_i32 v30, 0, v30")
    a("v_bfe_u32 v31, v%d, 1, 1" % V_LANE); a("v_add_u32 v31, 1, v31"); a("v_cmp_gt_u32 vcc, 12, v%d" % V_LANE); a("v_cndmask_b32 v31, 0, v31, vcc")
    a("v_mul_u32_u24 v31, 576, v31"); a("v_and_b32 v32, 1, v%d" % V_LANE); a("v_mul_u32_u24 v32, 35, v32")
    a("s_mul_i32 s46, s51, 36"); a("v_add3_u32 v31, v31, v32, s46"); a("v_lshrrev_b32 v31, 7, v31")
    a("v_lshl_add_u32 v30, v30, 4, v31"); a("v_add_u32 v30, %d, v30" % F1)
    a.stamp("p2_setup")
    a.poll(30, 32, sleep0=SLEEP0["p2"], two=True)
    a("v_cndmask_b32 v30, 0, v33, s[58:59]"); a("v_cndmask_b32 v31, 0, v33, s[46:47]".replace("46:47", "56:57"))
    a("v_cmp_nle_f32 vcc, v31, v34"); a("v_cndmask_b32 v30, v30, v35, vcc")
    for r in (8, 4, 2, 1): a("v_max_f32_dpp v30, v30, v30 row_ror:%d row_mask:0xf bank_mask:0xf" % r)
    a("s_mov_b64 exec, 1"); a("ds_write_b32 v19, v30"); a("s_mov_b64 exec, -1"); a("s_waitcnt lgkmcnt(0)")
    a.label(L)
    a("s_barrier")
    a("ds_read_b32 v19, v19")
    a("v_min_u32 v38, 53, v%d" % V_LANE); a("v_add_u32 v38, %d, v38" % FS); a("v_lshlrev_b32 v38, 7, v38")
    fsq = "buffer_load_dword v39, v38, s[%d:%d], 0 offen offset:%d sc1" % (R_WS, R_WS+3, FLAG0)
    a.stamp("p2_ready")
    QR = 26
    a("buffer_load_dwordx4 v[%d:%d], v%d, s[%d:%d], s54 offen sc1" % (QR, QR+3, V_L16, R_WS, R_WS+3))
    a("buffer_load_dwordx4 v[%d:%d], v18, s[%d:%d], s54 offen offset:2048 sc1" % (QR+4, QR+7, R_WS, R_WS+3))
    a("buffer_load_dwordx4 v[%d:%d], v%d, s[%d:%d], s54 offen offset:1024 sc1" % (QR+8, QR+11, V_L16, R_WS, R_WS+3))
    a(fsq)
    a("s_lshl_b32 s46, s%d, 10" % S_WAVE)
    for R, base in ((R_A, KL_), (R_B, VL_)):
        for i in range(7):
            Ls = a.newlabel("Lp2d")
            if i == 6: a("s_cmp_eq_u32 s%d, 3" % S_WAVE); a("s_cbranch_scc1 %s" % Ls)
            a("s_add_u32 m0, s46, %d" % (base + 4096*i))
            a("buffer_load_dwordx4 v%d, s[%d:%d], 0 offen sc1 lds" % (10+i, R, R+3))
            if i == 6: a.label(Ls)
    a.srd(R_A, S_X, ACT)
    a("s_mov_b32 s%d, s10" % R_C); a("s_mov_b32 s%d, s11" % (R_C+1)); a("s_mov_b32 s%d, s26" % (R_C+2)); a("s_mov_b32 s%d, 0x20000" % (R_C+3))
    QF = 40
    a("s_waitcnt vmcnt(12)")
    for hd in range(2):
        for qt in range(2):
            q = QF + 12*hd + 6*qt
            for h in range(2): a("v_mov_b32 v%d, v%d" % (q+2+h, QR+8*hd+2*qt+h))
            a("v_cndmask_b32 v%d, 0, v%d, s[68:69]" % (q+hd, QR+4+2*qt+hd)); a("v_mov_b32 v%d, 0" % (q+1-hd))
            for h in range(2): a("v_mov_b32 v%d, v%d" % (q+4+h, q+h))
    for k in range(4):
        a("v_mov_b32 v%d, 0" % (216+k))
        for r in range(4):
            a("v_and_b32 v24, 0x7fff7fff, v%d" % (QF+6*k+r)); a("v_dot2c_f32_bf16 v%d, s%d, v24" % (216+k, S_ONES))
    a("v_max3_f32 v216, v216, v217, v218"); a("v_max_f32 v216, v216, v219")
    a.xg_reduce(216, 217)
    a("s_waitcnt lgkmcnt(0)"); a("v_mul_f32 v216, v19, v216"); a("v_mov_b32 v217, 0x42c00000"); a("v_cmp_nle_f32 s[58:59], v216, v217")
    MF, ML = 8, 12
    for i in range(4):
        a("v_cndmask_b32 v%d, v25, 0, s[%d:%d]" % (MF+i, 60+2*i, 61+2*i)); a("v_cndmask_b32 v%d, 0, v25, s[%d:%d]" % (ML+i, 60+2*i, 61+2*i))
    a("s_lshl_b32 s55, s50, 3"); a("s_lshl_b32 s46, s%d, 1" % S_WAVE); a("s_add_u32 s55, s55, s46"); a("s_sub_u32 s55, 16, s55"); a("s_max_i32 s55, s55, 0")
    a("s_lshl_b32 s56, s2, 2"); a("s_add_u32 s56, s56, s%d" % S_WAVE); a("s_mul_i32 s56, s56, 5120"); a("s_min_u32 s56, s56, %d" % (WO_S - T_OFF - 5120)); a("s_add_u32 s56, s56, %d" % T_OFF)
    L = a.newlabel("Lfs")
    a("s_cmp_lg_u32 s%d, 0" % S_WAVE); a("s_cbranch_scc1 %s" % L)
    a("v_cmp_ne_u32 vcc, s%d, v39" % S_NONCE); a("s_cbranch_vccz %s" % L)
    a("v_lshrrev_b32 v38, 7, v38")
    a.poll(38, 39, sleep0=0)
    a.label(L)
    a("s_waitcnt vmcnt(6)"); a("s_barrier")
    a.stamp("p2_loaded")
    a("s_cmp_lg_u64 s[58:59], 0")
    if "slow" in ABL: a("s_cmp_eq_u32 s2, s2")
    a("s_cbranch_scc1 L_p2_slow")
    a("s_cmp_lt_u32 s50, 2"); a("s_cbranch_scc1 L_p2_edge")
    M, NM, CZ = 16, 216, 26
    KF = 64
    S2, P, VM = 136, 168, 184
    S1 = S2
    OM, OL, R_, OUT = 192, 200, 32, 208
    marks = "s_mov_b32 s46, %d\nbuffer_load_dword v224, v225, s[%d:%d], s46 offen sc1" % (FP_OFF, R_WS, R_WS+3)
    def prefetch():
        o = [pf_lds(i) for i in range(2, 27)]
        for jj in range(3): o.append("buffer_load_dwordx4 v[%d:%d], v7, s[%d:%d], s77 offen offset:%d" % (XT+4*jj, XT+4*jj+3, R_A, R_A+3, 64*jj))
        for sb, ab in ((71, AW1),):
            for i in range(W1N):
                pre = "s_add_u32 s59, s%d, %d\n" % (sb, 1024*i) if i % 4 == 0 else ""
                o.append(pre + "buffer_load_dwordx4 a[%d:%d], v%d, s[%d:%d], s59 offen offset:%d sc1" % (ab+4*i, ab+4*i+3, V_L16, R_WS, R_WS+3, 1024*(i & 3)))
        return o
    for edge, slow in ((0, 0), (1, 0), (1, 1)):
      if edge: a.label("L_p2_slow" if slow else "L_p2_edge")
      pf = prefetch(); npf0 = None
      if "x_nopf" in ABL: pf = ["s_nop 0"]*55
      if "x_nomk" in ABL: pf = ["s_nop 0" if "store" in x else x for x in pf]
      if "x_now1" in ABL: pf = ["s_nop 0" if " a[" in x else x for x in pf]
      def take(n):
          o = pf[:n]; del pf[:n]; return o
      for head in range(2):
        def Q(qt, t): return QF + 12*head + 6*qt + 2*(t & 1)
        def K(t): return KF + 4*t
        def kread(m):
            o = ["ds_read_b128 v[%d:%d], v20 offset:%d" % (KF+8*m+2, KF+8*m+5, 2304*m + 1024*head)]
            if head == 0: o += ["ds_read_b64 v[%d:%d], v21 offset:%d" % (KF+8*m+6*b, KF+8*m+6*b+1, 2304*m + 8*b) for b in range(2)]
            return o
        def vleft(m): return "ds_read_b128 a[%d:%d], v23 offset:%d" % (VLA+4*m, VLA+4*m+3, 2304*m + 128*head)
        def vmain(m): return "ds_read_b128 v[%d:%d], v22 offset:%d" % (VM+4*(m & 1), VM+4*(m & 1)+3, 2304*m + 1024*head)
        def has(qt, t): return (t <= 16) if qt == 0 else (t >= 1)
        def mask(reg, qt, t):
            o = []
            for i in range(4):
                if t == qt: o.append("v_cndmask_b32 v%d, v25, v%d, s[%d:%d]" % (reg+i, reg+i, 60+2*i, 61+2*i))
                if t == 16+qt: o.append("v_cndmask_b32 v%d, v%d, v25, s[%d:%d]" % (reg+i, reg+i, 60+2*i, 61+2*i))
            return o
        def switch(t, moves):
            Ls = a.newlabel("Lsw")
            a("s_cmp_eq_u32 s55, %d" % t); a("s_cbranch_scc0 %s" % Ls)
            for x in moves: a(x)
            a.label(Ls)
        if head:
            L = a.newlabel("Lmk")
            a("s_cmp_lg_u32 s%d, 0" % S_WAVE); a("s_cbranch_scc1 %s_x" % L)
            a("s_mov_b32 s47, 100000"); a("s_waitcnt vmcnt(%d)" % (npf0 - len(pf)))
            a.label(L)
            a("v_cmp_ne_u32 vcc, s%d, v224" % S_NONCE)
            a("s_cbranch_vccz %s_x" % L)
            a("s_sleep 2"); a(marks); a("s_waitcnt vmcnt(0)")
            a("s_sub_u32 s47, s47, 1"); a("s_cbranch_scc0 %s" % L)
            a.label(L + "_x")
            a("s_waitcnt vmcnt(20)"); a("s_barrier")
            publish2(a, 224)
        AH = 3
        for m in range(AH if slow else 2):
            for x in kread(m): a(x)
        if slow:
            a("v_mov_b32 v%d, v25" % M); a("v_mov_b32 v%d, v25" % (M+1))
            if edge:
                for i in range(4): a("v_mov_b32 v%d, v25" % (CZ+i))
            def c1(qt, t): return CZ if edge else MF if t == qt else ML if t == 16+qt else None
            def maxes(t):
                o = []
                for qt in range(2):
                    if not has(qt, t): continue
                    s = S1 + 8*(t % 3) + 4*qt
                    if edge: o += mask(s, qt, t)
                    o.append("v_max3_f32 v%d, v%d, v%d, v%d" % (M+qt, s, s+1, M+qt))
                for qt in range(2):
                    if not has(qt, t): continue
                    s = S1 + 8*(t % 3) + 4*qt
                    o.append("v_max3_f32 v%d, v%d, v%d, v%d" % (M+qt, s+2, s+3, M+qt))
                return o
            for t in range(18):
                if t % 2 == 0:
                    if edge: switch(t, ["v_mov_b32 v%d, 0" % (CZ+i) for i in range(4)])
                    a("s_waitcnt lgkmcnt(%d)" % (len(kread(0))*min(AH-1, 8 - t//2)))
                ms = [mfma(S1+8*(t % 3)+4*qt, K(t), Q(qt, t), c1(qt, t)) for qt in range(2) if has(qt, t)]
                fill = (kread(t//2+AH) if t % 2 == 0 and t//2+AH < 9 else []) + (maxes(t-2) if t >= 2 else []) + (take(1) if t % 3 == 1 and head else [])
                interleave(a, ms, fill)
        def vstart():
            nonlocal npf0
            if head == 0:
                a("s_waitcnt vmcnt(%d)" % (28 + W1N - len(pf))); a("s_barrier")
                for q in range(5):
                    if q == 4: a("s_add_u32 s56, s56, 4096")
                    if "x_nomk" not in ABL: a("buffer_store_dwordx4 v[228:231], v%d, s[%d:%d], s56 offen offset:%d sc1" % (V_L16, R_WS, R_WS+3, 1024*(q & 3)))
                npf0 = len(pf); a(marks)
            a("s_mov_b32 exec_lo, 0x00030003"); a("s_mov_b32 exec_hi, 0x00030003")
            for m in range(9): a(vleft(m))
            a("s_mov_b64 exec, -1")
            a(vmain(0))
        if slow: vstart()
        if slow:
            for x in maxes(16) + maxes(17): a(x)
            for sw in ("v_permlane32_swap_b32", "v_permlane16_swap_b32"):
                for qt in range(2): a("v_mov_b32 v%d, v%d" % (30+qt, M+qt))
                for qt in range(2): a("%s v%d, v%d" % (sw, M+qt, 30+qt))
                for qt in range(2): a("v_max_f32 v%d, v%d, v%d" % (M+qt, M+qt, 30+qt))
            negs = ["v_sub_f32 v%d, 0, v%d" % (NM+4*qt+i, M+qt) for qt in range(2) for i in range(4)]
        else: negs = ["v_mov_b32 v%d, 0" % (NM+i) for i in range(4)]
        if edge:
            for i in range(len(negs)): a("v_mov_b32 v%d, v25" % (NM+i))
        def c2(qt, t): return NM+4*qt if slow else NM if edge else MF if t == qt else ML if t == 16+qt else None
        def qk(m):
            return [mfma(S2+16*(m & 1)+8*qt+4*b, K(2*m+b), Q(qt, b), c2(qt, 2*m+b)) for qt in range(2) for b in range(2) if has(qt, 2*m+b)]
        def pv(m):
            o = []
            for qt in range(2):
                p = P+8*(m & 1)+4*qt
                o.append(mfma(OM+4*qt, VM+4*(m & 1), p, None if m == 0 else OM+4*qt))
                o.append(mfma(OL+4*qt, VLA+4*m, p, None if m == 0 else OL+4*qt, ta="a"))
            return o
        if slow: switch(0, negs)
        else: a("s_waitcnt lgkmcnt(%d)" % len(kread(0)))
        for x in qk(0): a(x)
        for m in range(9):
            if edge and m < 8: switch(2*m+2, negs)
            mf = (qk(m+1) if m < 8 else []) + (pv(m-1) if m else [])
            va = []
            ld = take((3 if (m % 3 or head == 0) else 2) if slow else 0 if m + head == 0 else -(-len(pf)//(18 - 9*head - m)))
            for qt in range(2):
                p = P+8*(m & 1)+4*qt
                for b in range(2):
                    s = S2+16*(m & 1)+8*qt+4*b
                    if has(qt, 2*m+b):
                        if edge: va += mask(s, qt, 2*m+b)
                        va += ["v_exp_f32 v%d, v%d" % (s+i, s+i) for i in range(4)]
                    if ld and (b == 0 or qt == 0 or len(ld) > 0 and qt == 1 and b == 1): va.append(ld.pop(0))
                for b in range(2):
                    s = S2+16*(m & 1)+8*qt+4*b
                    if has(qt, 2*m+b):
                        va += ["v_cvt_pk_bf16_f32 v%d, v%d, v%d" % (p+2*b+h, s+2*h, s+2*h+1) for h in range(2)]
                    else:
                        va += ["v_mov_b32 v%d, 0" % (p+2*b+h) for h in range(2)]
            if slow:
                if m: a("s_waitcnt lgkmcnt(1)")
            else:
                a("s_waitcnt lgkmcnt(%d)" % (0 if m == 0 else 11 if m == 1 else 1))
                if m + 2 < 9: va = kread(m+2) + va
            if m == 1 and not slow:
                interleave(a, mf[:4], va[:len(va)//2]); a("s_waitcnt lgkmcnt(%d)" % (1 + len(kread(0)))); interleave(a, mf[4:], va[len(va)//2:])
            else: interleave(a, mf, va)
            if m == 0 and not slow: vstart()
            if m < 8: a(vmain(m+1))
        a("s_waitcnt lgkmcnt(0)")
        for x in pv(8): a(x)
        if head == 1:
            assert not pf
            a("s_mul_i32 s54, s53, 18432"); a("s_add_u32 s54, s54, %d" % O_OFF)
            a("s_lshl_b32 s46, s51, 10"); a("s_add_u32 s58, s46, s54"); a("s_add_u32 s59, s58, 18432")
            a("s_lshr_b32 s46, s51, 3"); a("s_add_u32 s46, s46, 16"); a("s_lshl_b32 s46, s46, 10"); a("s_add_u32 s54, s54, s46")
            a("s_and_b32 s46, s51, 7"); a("s_lshr_b32 s46, s46, 1"); a("s_lshl_b32 s46, s46, 8"); a("s_add_u32 s54, s54, s46")
            a("s_and_b32 s46, s51, 1"); a("s_lshl_b32 s46, s46, 3"); a("s_add_u32 s54, s54, s46"); a("s_add_u32 s47, s54, 18432")
        for qt in range(2): a("v_rcp_f32 v%d, v%d" % (30+qt, OL+4*qt+3))
        for qt in range(2):
            for i in range(4): a("v_mul_f32 v%d, v%d, v%d" % (OM+4*qt+i, OM+4*qt+i, 30+qt))
            for i in range(2): a("v_mul_f32 v%d, v%d, v%d" % (OL+4*qt+i, OL+4*qt+i, 30+qt))
        for qt in range(2):
            for h in range(2): a("v_cvt_pk_bf16_f32 v%d, v%d, v%d" % (OUT+4*qt+2*head+h, OM+4*qt+2*h, OM+4*qt+2*h+1))
            a("v_cvt_pk_bf16_f32 v%d, v%d, v%d" % (R_+2*qt+head, OL+4*qt, OL+4*qt+1))
      if not slow: a("s_branch L_p2_out")
    a.label("L_p2_out")
    a("buffer_store_dwordx4 v[%d:%d], v%d, s[%d:%d], s58 offen sc1" % (OUT, OUT+3, V_L16, R_WS, R_WS+3))
    a("buffer_store_dwordx4 v[%d:%d], v%d, s[%d:%d], s59 offen sc1" % (OUT+4, OUT+7, V_L16, R_WS, R_WS+3))
    a("s_mov_b64 exec, 0xffff")
    a("buffer_store_dwordx2 v[%d:%d], v%d, s[%d:%d], s54 offen sc1" % (R_, R_+1, V_L16, R_WS, R_WS+3))
    a("buffer_store_dwordx2 v[%d:%d], v%d, s[%d:%d], s47 offen sc1" % (R_+2, R_+3, V_L16, R_WS, R_WS+3))
    a("s_mov_b64 exec, -1")
    a.stamp("p2_done")
    if a.stop == 2:
        a("s_waitcnt vmcnt(0)")

_c0 = 2.0*math.log2(math.e)*math.sqrt(2/math.pi)
GS = (_c0*0.044715)**(1/3)
GK = _c0/GS

def gelu_consts(a): a("s_mov_b32 s48, %d" % f32(GS)); a("s_mov_b32 s49, %d" % f32(GK))

def gelu_poly(regs, t):
    o = ["v_pk_fma_f32 v[%d:%d], v[%d:%d], v[%d:%d], s[48:49] op_sel:[0,0,1] op_sel_hi:[1,1,1]" % (t+2*k, t+2*k+1, r, r+1, r, r+1) for k, r in enumerate(regs)]
    return o + ["v_pk_mul_f32 v[%d:%d], v[%d:%d], v[%d:%d]" % (t+2*k, t+2*k+1, t+2*k, t+2*k+1, r, r+1) for k, r in enumerate(regs)]

def gelu_pk(a, regs, t):
    for x in gelu_poly(regs, t): a(x)
    for k in range(2*len(regs)): a("v_exp_f32 v%d, -v%d" % (t+k, t+k))
    for k, r in enumerate(regs): a("v_pk_fma_f32 v[%d:%d], v[%d:%d], s[48:49], s[48:49] op_sel_hi:[1,0,0]" % (t+2*k, t+2*k+1, t+2*k, t+2*k+1))
    for k in range(2*len(regs)): a("v_rcp_f32 v%d, v%d" % (t+k, t+k))
    for k, r in enumerate(regs): a("v_pk_mul_f32 v[%d:%d], v[%d:%d], v[%d:%d]" % (r, r+1, r, r+1, t+2*k, t+2*k+1))

def stats_loads(a, off, stile, vt):
    a("v_lshlrev_b32 v%d, 3, v%d" % (vt+4, V_LANE))
    a("v_add_u32 v%d, 512, v%d" % (vt+5, vt+4)); a("v_cmp_gt_u32 vcc, 32, v%d" % V_LANE); a("v_mov_b32 v%d, 0x7fffffff" % vt)
    a("v_cndmask_b32 v%d, v%d, v%d, vcc" % (vt+5, vt, vt+5))
    a("s_mul_i32 s46, s%d, 768" % stile); a("s_add_u32 s46, s46, %d" % off)
    return ["buffer_load_dwordx2 v[%d:%d], v%d, s[%d:%d], s46 offen sc1" % (vt+2*k, vt+2*k+1, vt+4+k, R_WS, R_WS+3) for k in range(2)]

def stats_finish(a, vt, vmean, vrstd):
    a("v_add_f32 v%d, v%d, v%d" % (vt, vt, vt+2)); a("v_add_f32 v%d, v%d, v%d" % (vt+1, vt+1, vt+3))
    for sw in ("v_permlane32_swap_b32", "v_permlane16_swap_b32"):
        for k in range(2): a("v_mov_b32 v%d, v%d" % (vt+2+k, vt+k))
        for k in range(2): a("%s v%d, v%d" % (sw, vt+k, vt+2+k))
        for k in range(2): a("v_add_f32 v%d, v%d, v%d" % (vt+k, vt+k, vt+2+k))
    a("s_mov_b32 s47, %d" % f32(1.0/576))
    a("v_mul_f32 v%d, s47, v%d" % (vmean, vt)); a("v_mul_f32 v%d, v%d, v%d" % (vt, vmean, vmean))
    a("v_fma_f32 v%d, v%d, s47, -v%d" % (vt+1, vt+1, vt)); a("v_max_f32 v%d, 0, v%d" % (vt+1, vt+1))
    a("v_add_f32 v%d, %d, v%d" % (vt, f32(1e-5), vt+1)); a("v_rsq_f32 v%d, v%d" % (vrstd, vt))

def norm_ops(x, vs, vb, t):
    o = []
    for r in range(4):
        o.append("v_lshlrev_b32 v%d, 16, v%d" % (t+2*r, x+r)); o.append("v_and_b32 v%d, 0xffff0000, v%d" % (t+2*r+1, x+r))
    for r in range(8): o.append("v_fma_f32 v%d, v%d, v%d, v%d" % (t+r, t+r, vs, vb))
    for r in range(4): o.append("v_cvt_pk_bf16_f32 v%d, v%d, v%d" % (x+r, t+2*r, t+2*r+1))
    return o

def out_stats(a, pk, off, stores):
    S, Gm = WB+24, WB+28
    for jj in range(3):
        a(mfma(S, 20, pk+4*jj, S if jj else None)); a(mfma(Gm, pk+4*jj, pk+4*jj, Gm if jj else None))
    stores()
    a("s_mul_i32 s46, s53, 6"); a("s_add_u32 s46, s46, s51"); a("s_lshl_b32 s46, s46, 7"); a("s_add_u32 s46, s46, %d" % off)
    a("v_cndmask_b32 v%d, v%d, v%d, s[56:57]" % (Gm, Gm, Gm+1)); a("v_cndmask_b32 v%d, v%d, v%d, s[56:57]" % (Gm+2, Gm+2, Gm+3))
    a("v_cndmask_b32 v%d, v%d, v%d, s[68:69]" % (S+1, Gm, Gm+2))
    a("s_mov_b64 exec, s[76:77]")
    a("buffer_store_dwordx2 v[%d:%d], v9, s[%d:%d], s46 offen sc1" % (S, S+1, R_WS, R_WS+3))
    a("s_mov_b64 exec, -1")

AF, ACC, WB, HK, VMEAN, VRSTD = 64, 136, 160, 40, 52, 53
OS = WB

def tag_ops(regs, t):
    o = []; regs = list(regs)
    o.append("v_max3_u32 v%d, v%d, v%d, v%d" % (t, regs[0], regs[1], regs[2])); regs = regs[3:]
    while len(regs) >= 2: o.append("v_max3_u32 v%d, v%d, v%d, v%d" % (t, t, regs[0], regs[1])); regs = regs[2:]
    if regs: o.append("v_max_u32 v%d, v%d, v%d" % (t, t, regs[0]))
    return o + ["v_cmp_eq_u32 vcc, -1, v%d" % t]

def tag_branch(a, loads, regs, t, again=(), drain=False):
    L = a.newlabel("Ltg")
    a("s_cbranch_vccnz %s" % L)
    a.label(L + "_b")
    st = [L + ":"] + "\n".join(loads).split("\n") + ["s_waitcnt vmcnt(0)"] + tag_ops(regs, t)
    st += ["s_cmp_eq_u32 s79, 0", "s_cbranch_scc1 %s_b" % L, "s_sub_u32 s79, s79, 1", "s_cbranch_vccnz %s" % L]
    st += list(again) + (["s_waitcnt vmcnt(0)"] if drain and again else []) + ["s_branch %s_b" % L]
    a.stubs += st

UP = 8
PRE = [int(x) for x in os.environ.get('PRE', '1,3,3').split(',')]
NE = 12
def wpos(layout, b):
    if layout is None: return W_LDS//1024 + b
    w, i = divmod(b, 27)
    return layout[0] + NE*w + i if i < NE else layout[1] + (27-NE)*w + i - NE

def gemm96(a, loads, stage, delay, pre=(), each=None, stamp=None, extra=(), layout=None, early=(), before=None, after=None, init=None, apre=(0, 0), side=()):
    a("s_waitcnt vmcnt(20)")
    a("s_barrier")
    nv = sum("buffer_load" in x for x in stage)
    n1 = len(stage) if nv else len(stage)//3
    for x in stage[:n1]: a(x)
    if delay: a("s_sleep %d" % delay)
    a("s_mov_b32 s79, 50000")
    a.stamp(stamp + "_ready")
    for x in pre: a(x)
    interleave(a, loads[:UP], stage[n1:])
    a("s_waitcnt vmcnt(%d) lgkmcnt(0)" % (UP + len(pre)))
    if before: before(a)
    a("s_barrier")
    AB, NA = apre
    spare = [18*(i+1)//(NA+1) for i in range(NA)]
    rot = [j for j in range(18) if j not in spare]
    def wreg(j): return ("a", AB + 24*spare.index(j)) if j in spare else ("v", WB + 24*(rot.index(j) % 3))
    def wr(j):
        o = []
        for t in range(6):
            q, r = divmod(wpos(layout, 18*t + j), 64)
            o.append("ds_read_b128 %s[%d:%d], v%d offset:%d" % (wreg(j)[0], wreg(j)[1]+4*t, wreg(j)[1]+4*t+3, (V_L16, 5, 6)[q], 1024*r))
        return o
    lg = []
    def rd(j):
        for x in wr(j): a(x); lg.append(j)
    def first():
        for j in rot[:3] + spare: rd(j)
    for x in early: a(x)
    if each: each(first)
    else: first()
    if init: init()
    a("s_waitcnt vmcnt(%d)" % (UP-2))
    fr = lambda j: range(AF+4*j, AF+4*j+8)
    for x in tag_ops(fr(0), 30): a(x)
    tag_branch(a, loads[0:2], fr(0), 30, loads[2:UP])
    if after: after(a)
    for j in range(18):
        ex = lambda q: min(len(extra), max(0, (q-9)*len(extra)//8))
        issued = min(18, UP+j) + ex(j)
        chk = j % 2 == 1 and j < 17
        young = len(lg) - 1 - max(i for i, q in enumerate(lg) if q == j)
        w = (["vmcnt(%d)" % (issued - 1 - (j+2))] if chk else []) + (["lgkmcnt(%d)" % young] if young < 15 or j < 3 else [])
        if w: a("s_waitcnt " + " ".join(w).replace("lgkmcnt(%d)" % young, "lgkmcnt(%d)" % min(15, young)))
        if j in (0, 9): a.stamp(stamp + "_k%d" % j)
        ms = [mfma(ACC+4*t, wreg(j)[1]+4*t, AF+4*j, None if j == 0 and not init else ACC+4*t, ta=wreg(j)[0]) for t in range(6)]
        todo = [q for q in rot if q not in lg and rot[rot.index(q)-3] < j]
        want = wr(todo[0]) if todo else []
        if want: lg += [todo[0]]*6
        fill = ([loads[UP+j]] if UP+j < 18 else []) + (tag_ops(fr(j+1), 30) if chk else []) + want + list(extra[ex(j):ex(j+1)])
        n = max(12 - len(fill), -(-len(side)//(18-j)) if j > 8 else 0)
        fill += side[:n]; side = side[n:]
        interleave(a, ms, fill)
        if chk: tag_branch(a, loads[j+1:j+3], fr(j+1), 30, loads[j+3:UP+j+1], drain=ex(j+1) > 0)

FP2Q = "s_mov_b32 s46, %d\nbuffer_load_dwordx4 v[16:19], v%d, s[%d:%d], s46 offen sc1" % (FP2_OFF, V_L16, R_WS, R_WS+3)

def marks2(a):
    L = a.newlabel("Lm2")
    a("s_cmp_lg_u32 s%d, 0" % S_WAVE); a("s_cbranch_scc1 %s_x" % L)
    a("s_mov_b32 s47, 100000")
    a.label(L)
    for r in range(4): a("v_xor_b32 v%d, s%d, v%d" % (16+r, S_NONCE, 16+r))
    a("v_or3_b32 v16, v16, v17, v18"); a("v_or_b32 v16, v16, v19"); a("v_cmp_ne_u32 vcc, 0, v16"); a("s_cbranch_vccz %s_x" % L)
    a(FP2Q); a("s_waitcnt vmcnt(0)")
    a("s_sub_u32 s47, s47, 1"); a("s_cbranch_scc0 %s" % L)
    a.label(L + "_x")

def publish2(a, vt):
    L = a.newlabel("Lmp"); a("s_cmp_lg_u32 s%d, 0" % S_WAVE); a("s_cbranch_scc1 %s" % L); a.set_mark(vt, FP2_OFF); a.label(L)

def wflags(a, first, va, vd):
    a("s_mul_i32 s46, s65, 18"); a("s_add_u32 s46, s46, %d" % (FS + first))
    a("v_min_u32 v%d, 17, v%d" % (va, V_LANE)); a("v_add_u32 v%d, s46, v%d" % (va, va)); a("v_lshlrev_b32 v%d, 7, v%d" % (va, va))
    a("buffer_load_dword v%d, v%d, s[%d:%d], 0 offen offset:%d sc1" % (vd, va, R_WS, R_WS+3, FLAG0))

def phase345(a):
    a("s_mov_b32 s50, s74"); a("s_mov_b32 s51, s75"); a("s_mov_b32 s53, s76")
    a("s_cmp_ge_u32 s51, 6"); a("s_cbranch_scc1 L_p3_helper")
    a("v_add_u32 v5, 65536, v%d" % V_L16); a("v_add_u32 v6, 131072, v%d" % V_L16)
    a("s_mul_i32 s46, s%d, %d" % (S_WAVE, 1024*NE)); a("v_add_u32 v7, s46, v%d" % V_L16)
    a("s_mul_i32 s46, s%d, %d" % (S_WAVE, 1024*(27-NE))); a("v_add_u32 v8, s46, v%d" % V_L16)
    a("v_add_u32 v62, %d, v7" % (112*1024)); a("v_add_u32 v63, %d, v8" % (52*1024))
    LAY4, LAY5 = (0, 52), (112, 0)
    a("s_mul_i32 s54, s53, 18432")
    a("s_mul_i32 s55, s51, 3072"); a("s_add_u32 s55, s55, s54")
    a("s_lshl_b32 s46, s51, 2"); a("s_add_u32 s46, s46, s%d" % S_WAVE); a("s_mul_i32 s46, s46, 3072"); a("s_mul_i32 s78, s50, 73728"); a("s_add_u32 s78, s78, s46")
    def w2(i0, i1, sb=72, ab=AW2):
        return [("s_add_u32 s59, s%d, %d\n" % (sb, 1024*(i & ~3)) if (i % 4 == 0 or i == i0) else "") +
                "buffer_load_dwordx4 a[%d:%d], v%d, s[%d:%d], s59 offen offset:%d sc1" % (ab+4*i, ab+4*i+3, V_L16, R_WS, R_WS+3, 1024*(i & 3)) for i in range(i0, i1)]
    def park(ab, lay, late):
        if late: return ["ds_write_b128 v%d, a[%d:%d] offset:%d" % (63 if lay[1] else 8, ab+4*i, ab+4*i+3, 1024*(i - NE)) for i in range(NE, 27)]
        return ["ds_write_b128 v%d, a[%d:%d] offset:%d" % (62 if lay[0] else 7, ab+4*i, ab+4*i+3, 1024*i) for i in range(NE)]
    def aloads(off):
        for q in range(5): a("s_add_u32 s%d, s54, %d" % (60+q, off + 4096*q))
        return ["buffer_load_dwordx4 v[%d:%d], v%d, s[%d:%d], s%d offen offset:%d sc1" % (AF+4*j, AF+4*j+3, V_L16, R_WS, R_WS+3, 60+(j >> 2), 1024*(j & 3)) for j in range(18)]
    def ostores(src, off):
        a("s_add_u32 s46, s55, %d" % off)
        for jj in range(3): a("buffer_store_dwordx4 v[%d:%d], v%d, s[%d:%d], s46 offen offset:%d sc1" % (src+4*jj, src+4*jj+3, V_L16, R_WS, R_WS+3, 1024*jj))
    a("v_and_b32 v19, 1, v%d" % V_R); a("v_cmp_eq_u32 s[56:57], 1, v19"); a("v_and_b32 v19, 2, v%d" % V_R); a("v_cmp_eq_u32 s[68:69], 2, v19")
    a("v_lshrrev_b32 v19, 2, v%d" % V_R); a("v_cmp_eq_u32 s[76:77], v19, v%d" % V_G); a("v_lshlrev_b32 v9, 3, v%d" % V_R)
    a("s_lshl_b32 s46, s53, 4"); a("v_add_u32 v20, s46, v%d" % V_R); a("s_mov_b32 s47, 18432")
    for k, sh in enumerate((1, -1, 2, -2)):
        a("v_subrev_u32 v21, %d, v20" % sh); a("v_ashrrev_i32 v22, 4, v21"); a("v_mul_lo_u32 v22, v22, s47")
        a("v_and_b32 v21, 15, v21"); a("v_lshl_add_u32 v21, v%d, 4, v21" % V_G); a("v_lshl_add_u32 v%d, v21, 4, v22" % (56+k))
    a("v_cmp_gt_u32 vcc, 32, v%d" % V_LANE); a("v_cndmask_b32 v60, v57, v56, vcc"); a("v_cndmask_b32 v61, v59, v58, vcc")
    for r in range(4): a("v_mov_b32 v%d, s%d" % (20+r, S_ONES))
    def init3():
        for k in range(12):
            a("v_lshlrev_b32 v%d, 16, v%d" % (ACC+2*k, XT+k)); a("v_and_b32 v%d, 0xffff0000, v%d" % (ACC+2*k+1, XT+k))
    N2 = int(os.environ.get("N2", 0))
    n3 = max(N2, NE)
    gemm96(a, aloads(O_OFF), [pf_lds(0), pf_lds(1)] + w2(W1N, 27, 71, AW1) + w2(0, N2), SLEEP0["p3"] if N2 < 8 else 0, stamp="p3", extra=w2(N2, n3), early=park(AW1, LAY4, False), init=init3, apre=(0, PRE[0]))
    a.stamp("p3_gemm")
    a(FP2Q)
    for k in range(12): a("v_cvt_pk_bf16_f32 v%d, v%d, v%d" % (HK+k, ACC+2*k, ACC+2*k+1))
    out_stats(a, HK, SH_OFF, lambda: ostores(HK, H_OFF))
    a.stamp("p3_epi")
    if a.stop == 3: a("s_waitcnt vmcnt(0)"); a("s_branch L_fin")
    cs = [mfma(WB+4*(i//9), AW1+4*i, 20, None if i % 9 == 0 else WB+4*(i//9), ta="a") for i in range(27)]
    a("s_mul_i32 s46, s%d, 192" % S_WAVE); a("s_add_u32 s46, s46, %d" % (48*1024)); a("v_lshl_add_u32 v24, v%d, 4, s46" % V_G)
    g = G(); interleave(g, [cs[(i % 3)*9 + i//3] for i in range(27)], park(AW1, LAY4, True))
    st4 = g.lines
    st4 += ["s_nop 7"] + ["ds_write_b128 v24, v[%d:%d] offset:%d" % (WB+4*k, WB+4*k+3, 64*k) for k in range(3)]
    CS = 232
    sl = stats_loads(a, SH_OFF, 53, 10); a("s_mov_b32 s65, s46"); sl = [x.replace("s46", "s65") for x in sl]
    def fin4(wreads):
        a("v_lshlrev_b32 v24, 4, v%d" % V_G)
        for k in range(12): a("ds_read_b128 v[%d:%d], v24 offset:%d" % ((CS if k % 2 == 0 else ACC)+4*(k//2), (CS if k % 2 == 0 else ACC)+4*(k//2)+3, 48*1024 + 64*k))
        wreads()
        a("s_waitcnt lgkmcnt(15)")
        for k in range(12): a("v_pk_add_f32 v[%d:%d], v[%d:%d], v[%d:%d]" % (CS+2*k, CS+2*k+1, CS+2*k, CS+2*k+1, ACC+2*k, ACC+2*k+1))
        a("s_waitcnt vmcnt(%d)" % UP)
        for x in tag_ops(range(10, 14), 30): a(x)
        tag_branch(a, sl, range(10, 14), 30, al4[:UP])
    g = G()
    stats_finish(g, 10, VMEAN, VRSTD)
    g("v_mul_f32 v12, v%d, v%d" % (VRSTD, VRSTD)); g("v_mul_f32 v12, v12, v11"); g("v_add_f32 v12, %d, v12" % f32(1e-5))
    g("v_rsq_f32 v12, v12"); g("v_mul_f32 v16, %d, v%d" % (f32(GS), VRSTD)); g("v_mul_f32 v16, v12, v16"); g("v_mul_f32 v17, v16, -v%d" % VMEAN)
    for k in range(24): g("v_mul_f32 v%d, v17, v%d" % (CS+k, CS+k))
    ln4 = g.lines
    if "d_mid" in ABL: a("s_sleep 64")
    al4 = aloads(H_OFF)
    gemm96(a, al4, st4, SLEEP0["p4"], pre=sl, each=fin4, stamp="p4", extra=w2(n3, 27), layout=LAY4, before=marks2, apre=(AW1, PRE[1]), side=ln4)
    a.stamp("p4_gemm")
    gelu_consts(a)
    for k in range(12): a("v_pk_fma_f32 v[%d:%d], v[%d:%d], v[16:17], v[%d:%d] op_sel_hi:[1,0,1]" % (ACC+2*k, ACC+2*k+1, ACC+2*k, ACC+2*k+1, CS+2*k, CS+2*k+1))
    g = G(); gelu_pk(g, [ACC+2*k for k in range(12)], AF)
    interleave(a, g.lines, park(AW2, LAY5, False))
    for k in range(12): a("v_cvt_pk_bf16_f32 v%d, v%d, v%d" % (OS+k, ACC+2*k, ACC+2*k+1))
    ostores(OS, T_OFF)
    a.stamp("p4_epi")
    if a.stop == 4: a("s_waitcnt vmcnt(0)"); a("s_branch L_fin")
    a.srd(R_A, S_WS, ACT, T_OFF)
    for q in range(5): a("s_mov_b32 s%d, %d" % (70+q, 4096*q))
    def vsel(j): return 56 if j < 4 else 60 if j == 4 else 57 if j < 9 else 58 if j < 13 else 61 if j == 13 else 59
    tl = ["buffer_load_dwordx4 v[%d:%d], v%d, s[%d:%d], s%d offen offset:%d sc1" % (AF+4*j, AF+4*j+3, vsel(j), R_A, R_A+3, 70+(j >> 2), 1024*(j & 3)) for j in range(18)]
    roles6(a)
    wflags(a, 54, 54, 55)
    a("s_waitcnt vmcnt(4)")
    def init5():
        a("v_mul_f32 v17, v%d, -v%d" % (VRSTD, VMEAN)); a("v_mov_b32 v16, v%d" % VRSTD)
        for k in range(12):
            a("v_lshlrev_b32 v%d, 16, v%d" % (ACC+2*k, HK+k)); a("v_and_b32 v%d, 0xffff0000, v%d" % (ACC+2*k+1, HK+k))
        for k in range(12):
            a("v_pk_fma_f32 v[%d:%d], v[%d:%d], v[16:17], v[16:17] op_sel:[0,0,1] op_sel_hi:[1,0,1]" % (ACC+2*k, ACC+2*k+1, ACC+2*k, ACC+2*k+1))
    gemm96(a, tl, park(AW2, LAY5, True), SLEEP0["p5"], stamp="p5", layout=LAY5, init=init5, apre=(0, PRE[2]))
    a.stamp("p5_gemm")
    for k in range(12): a("v_cvt_pk_bf16_f32 v%d, v%d, v%d" % (OS+k, ACC+2*k, ACC+2*k+1))
    out_stats(a, OS, SX_OFF, lambda: ostores(OS, X1_OFF))
    a.stamp("p5_epi")
    a("s_branch L_p5_pre")
    a.label("L_p3_helper")
    if "d_h3" in ABL: a("s_sleep 64")
    a("s_cmp_ge_u32 s48, 144"); a("s_cbranch_scc1 L_p3_touch")
    a("s_barrier")
    a(pf_lds(0)); a(pf_lds(1))
    swizzle_setup(a)
    a("s_add_u32 s48, s48, 54")
    for p in range(3):
        sw_big(a, 48, 60+3*p)
        a("s_lshl_b32 s53, s52, 10"); a("s_add_u32 s%d, s%d, s53" % (60+3*p, 60+3*p)); a("s_add_u32 s%d, s48, %d" % (62+3*p, FS))
        a("s_add_u32 s48, s48, 1")
    a("s_waitcnt vmcnt(0)"); a("s_barrier")
    for p in range(3): sw_process(a, p, W_LDS + 36864*p)
    a("s_waitcnt vmcnt(0)"); a("s_barrier")
    sw_flags(a, range(3))
    a.stamp("h_w3")
    a.label("L_p3_touch")
    roles6(a)
    NL = (SW << LCH)//128//32
    a("s_lshr_b32 s46, s65, %d" % LCH); a("s_mul_i32 s46, s46, %d" % (SW << LCH))
    a("s_and_b32 s47, s74, 3"); a("s_lshl_b32 s47, s47, 1"); a("s_add_u32 s47, s47, s75"); a("s_sub_u32 s47, s47, 6")
    if "xcd4" not in ABL:
        NL = BW//128//256
        a("s_mov_b32 s46, 0"); a("s_lshl_b32 s47, s74, 1"); a("s_add_u32 s47, s47, s75"); a("s_sub_u32 s47, s47, 6")
    a("s_lshl_b32 s47, s47, 2"); a("s_add_u32 s47, s47, s%d" % S_WAVE); a("s_mul_i32 s47, s47, %d" % (128*NL)); a("s_add_u32 s46, s46, s47")
    a.srd(R_A, S_W4, BW)
    a("v_lshlrev_b32 v10, 7, v%d" % V_LANE)
    for q in range(-(-NL//64) if "late4" not in ABL else 0):
        if NL - 64*q < 64: a("s_bfm_b64 exec, %d, 0" % (NL - 64*q))
        a("buffer_load_dword v11, v10, s[%d:%d], s46 offen" % (R_A, R_A+3)); a("s_add_u32 s46, s46, 8192")
    a("s_mov_b64 exec, -1")
    a.stamp("h_w4")
    wflags(a, 54, 54, 55)
    a(FP2Q)
    a("s_waitcnt vmcnt(0)")
    marks2(a)
    a.label("L_p5_pre")
    a.label("L_p5_done")
    a.stamp("p5_done")

WFL = os.environ.get("WFL", " sc1")
OFL = os.environ.get("OFL", "")
LCH = int(os.environ.get('LCH', 1))
RING = 184

def roles6(a):
    L = LCH
    a("s_lshr_b32 s46, s%d, %d" % (S_XCD, 3-L)); a("s_lshl_b32 s64, s46, %d" % (5-L)); a("s_lshr_b32 s67, s%d, %d" % (S_SLOT, L)); a("s_add_u32 s64, s64, s67")
    a("s_and_b32 s67, s67, 7")
    a("s_mov_b32 s67, 0")
    a("s_and_b32 s46, s%d, %d" % (S_XCD, (8 >> L) - 1)); a("s_lshl_b32 s65, s46, %d" % L); a("s_and_b32 s46, s%d, %d" % (S_SLOT, (1 << L) - 1)); a("s_add_u32 s65, s65, s46")
    a("s_lshl_b32 s46, s65, 2"); a("s_add_u32 s46, s46, s%d" % S_WAVE); a("s_mul_i32 s66, s46, %d" % (9*18432)); a("s_add_u32 s66, s66, %d" % W3_S)

def wload(j, s=58, ring=("a", RING)):
    o = "s_add_u32 s%d, s%d, 4096\n" % (s, s) if (j and j % 4 == 0) else ""
    return o + ("buffer_load_dwordx4 %s[%d:%d], v%d, s[%d:%d], s%d offen offset:%d" + WFL) % (ring[0], ring[1]+4*j, ring[1]+4*j+3, V_L16, R_WS, R_WS+3, s, 1024*(j & 3))

def ring_prefill(a, s):
    a("s_mul_i32 s%d, s67, 18432" % s); a("s_add_u32 s%d, s%d, s66" % (s, s))
    return [wload(j, s) for j in range(18)]

def norm_dot(x, t):
    o = []
    for r in range(4): o += ["v_dot2_f32_bf16 v%d, v%d, v%d, v17" % (t+2*r+h, x+r, 16+2*h) for h in range(2)]
    return o + ["v_cvt_pk_bf16_f32 v%d, v%d, v%d" % (x+r, t+2*r, t+2*r+1) for r in range(4)]

def phase6(a):
    AC, PK, RB, GT, XR = 40, 72, 80, 136, 64
    HB = 73728
    def xf(T, j):
        f = 4*j + T
        return ("a", 4*f) if f < 46 else ("v", 152 + 4*(f-46))
    a("s_mov_b32 s50, s64"); a("s_mov_b32 s51, s65"); a("s_mov_b32 s54, s66"); a("s_mov_b32 s52, s67")
    a("s_lshl_b32 s53, s50, 2"); a("s_add_u32 s53, s53, s%d" % S_WAVE)
    a("s_mul_i32 s56, s50, 72"); a("s_add_u32 s56, s56, s51"); a("s_lshl_b32 s56, s56, 2"); a("s_add_u32 s56, s56, s%d" % S_WAVE)
    a("s_lshl_b32 s56, s56, 11"); a("s_add_u32 s56, s56, %d" % PART)
    a("s_mul_i32 s46, s53, 18432")
    for q in range(5): a("s_add_u32 s%d, s46, %d" % (70+q, X1_OFF + 4096*q))
    a("s_mul_i32 s46, s%d, 18432" % S_WAVE); a("v_add_u32 v5, s46, v%d" % V_L16)
    sl = stats_loads(a, SX_OFF, 53, 10)
    a("s_mov_b32 s60, s46")
    sl = [x.replace("s46", "s60") for x in sl]
    a("v_mov_b32 v28, 0")
    a("global_load_dword v29, v28, s[%d:%d] sc1" % (S_DBG, S_DBG+1))
    L = a.newlabel("Lh")
    a("s_cmp_lg_u32 s%d, 0" % S_WAVE); a("s_cbranch_scc1 %s" % L)
    a("v_cmp_ne_u32 vcc, s%d, v55" % S_NONCE); a("s_cbranch_vccz %s" % L)
    a("v_lshrrev_b32 v54, 7, v54")
    a.poll(54, 55, sleep0=0)
    a.label(L)
    a("s_barrier")
    pre = ring_prefill(a, 59)
    NP = SLEEP0["p6"]
    for x in pre[:NP]: a(x)
    a.stamp("p6_ready")
    a("s_mov_b32 s79, 50000")
    for x in sl: a(x)
    def xload(j): return "buffer_load_dwordx4 v[%d:%d], v%d, s[%d:%d], s%d offen offset:%d sc1" % (XR+4*j, XR+4*j+3, V_L16, R_WS, R_WS+3, 70+(j >> 2), 1024*(j & 3))
    for j in range(UP): a(xload(j))
    a("v_add_u32 v32, 36864, v%d" % V_L16); a("v_add_u32 v33, %d, v%d" % (HB, V_L16)); a("v_add_u32 v34, %d, v%d" % (HB+36864, V_L16))
    a("s_lshr_b32 s46, s%d, 1" % S_WAVE); a("s_lshl_b32 s46, s46, 12"); a("s_and_b32 s47, s%d, 1" % S_WAVE); a("s_lshl_b32 s47, s47, 3")
    a("s_add_u32 s46, s46, s47"); a("v_add_u32 v35, s46, v33")
    gelu_consts(a)
    R3, ST, SEL, RS = 12, 32, 6, RB+24
    def natsel(d, sr, bit, t):
        o = ["s_bfe_u32 s66, s%d, %d" % (sr, 0x10000 + bit), "s_lshl_b32 s66, s66, 1", "v_lshrrev_b32 v%d, 3, v%d" % (t, V_R), "v_add_u32 v%d, s66, v%d" % (t, t),
             "v_cmp_eq_u32 s[66:67], v%d, v%d" % (t, V_G), "v_and_b32 v%d, 1, v%d" % (t, V_R), "v_lshlrev_b32 v%d, 4, v%d" % (t, t),
             "v_mov_b32 v%d, 0x3f80" % (t+1), "v_lshlrev_b32 v%d, v%d, v%d" % (t+1, t, t+1), "v_cndmask_b32 v%d, 0, v%d, s[66:67]" % (t+1, t+1),
             "v_bfe_u32 v%d, v%d, 1, 2" % (t, V_R)]
        for k in range(4): o += ["v_cmp_eq_u32 s[66:67], %d, v%d" % (k, t), "v_cndmask_b32 v%d, 0, v%d, s[66:67]" % (d+k, t+1)]
        return o
    a("v_lshrrev_b32 v26, 2, v%d" % V_R); a("v_cmp_eq_u32 s[64:65], v26, v%d" % V_G)
    a("v_and_b32 v26, 1, v%d" % V_R); a("v_lshlrev_b32 v26, 4, v26"); a("v_mov_b32 v27, 0x3f80"); a("v_lshlrev_b32 v27, v26, v27")
    a("v_cndmask_b32 v27, 0, v27, s[64:65]"); a("v_and_b32 v26, 2, v%d" % V_R); a("v_cmp_eq_u32 vcc, 0, v26")
    a("v_cndmask_b32 v%d, 0, v27, vcc" % (SEL+2)); a("v_cndmask_b32 v%d, v27, 0, vcc" % (SEL+3))
    for r in (0, 1): a("v_mov_b32 v%d, 0" % (SEL+r))
    for x in natsel(36, S_WAVE, 0, 26): a(x)
    def bload(reg, s, off=0, t="a"): return "buffer_load_dwordx4 %s[%d:%d], v%d, s[%d:%d], s%d offen offset:%d sc1" % (t, reg, reg+3, V_L16, R_WS, R_WS+3, s, off)
    a("s_waitcnt vmcnt(%d)" % UP)
    for x in tag_ops(range(10, 14), 30): a(x)
    tag_branch(a, sl, range(10, 14), 30, [xload(j) for j in range(UP)])
    a.stamp("p6_st")
    stats_finish(a, 10, 17, 16)
    a("v_mul_f32 v16, s48, v16"); a("v_cvt_pk_bf16_f32 v16, v16, 0"); a("v_lshlrev_b32 v18, 16, v16"); a("v_mul_f32 v17, v18, -v17")
    a("s_mul_i32 s60, s50, 73728")
    a("s_lshl_b32 s46, s51, 1"); a("s_lshr_b32 s47, s%d, 1" % S_WAVE); a("s_add_u32 s46, s46, s47"); a("s_lshl_b32 s46, s46, 10"); a("s_add_u32 s78, s46, s60")
    order = [("x", j) for j in range(UP)]
    todo = [("x", j) for j in range(UP, 18)] + [("w", j) for j in range(NP, 18)]
    for j in range(0, 18, 2):
        a("s_waitcnt vmcnt(%d)" % (len(order) - 1 - order.index(("x", j+1))))
        for x in tag_ops(range(XR+4*j, XR+4*j+8), 30): a(x)
        n = 2 if j < 10 else -(-len(todo)//(9 - j//2))
        for k, q in todo[:n]:
            a(xload(q) if k == "x" else pre[q]); order.append((k, q))
        del todo[:n]
        later = [q for k, q in order if k == "x" and q > j+1]
        tag_branch(a, [xload(j), xload(j+1)], range(XR+4*j, XR+4*j+8), 30, [xload(q) for q in later], drain=order[-1][0] == "w")
        if j in (8, 16): a.stamp("p6_x%d" % (j+1))
        n0, n1 = norm_dot(XR+4*j, 20), norm_dot(XR+4*j+4, 40)
        for x in n0[:8] + n1[:8] + n0[8:]: a(x)
        a("ds_write_b128 v5, v[%d:%d] offset:%d" % (XR+4*j, XR+4*j+3, 1024*j))
        for x in n1[8:]: a(x)
        a("ds_write_b128 v5, v[%d:%d] offset:%d" % (XR+4*j+4, XR+4*j+7, 1024*j+1024))
    assert not todo
    LT = 1 if "late4" in ABL else 0
    if LT:
        a.srd(R_A, S_W4, BW)
        a("s_lshl_b32 s46, s2, 2"); a("s_add_u32 s46, s46, s%d" % S_WAVE); a("s_mul_i32 s46, s46, %d" % (41*128))
        a("v_lshlrev_b32 v30, 7, v%d" % V_LANE); a("s_bfm_b64 exec, 41, 0")
        a("buffer_load_dword v31, v30, s[%d:%d], s46 offen" % (R_A, R_A+3))
        a("s_mov_b64 exec, -1")
    a("v_readfirstlane_b32 s%d, v29" % S_NONCE)
    for r in (4, 5): a("v_mov_b32 v%d, 0" % (SEL+r))
    a("s_waitcnt lgkmcnt(0)"); a("s_barrier")
    a.stamp("p6_x")
    def fread(j, va):
        o = []
        for T in range(4):
            t, r = xf(T, j)
            o.append("ds_read_b128 %s[%d:%d], v%d offset:%d" % (t, r, r+3, va[T >> 1], (T & 1)*18432 + 1024*j))
        return o
    def gelu(ac):
        b = gelu_poly([ac+2*k for k in range(8)], GT)
        o = []
        for T in range(4):
            x = ac + 4*T; t = GT + 4*T
            o += ["v_exp_f32 v%d, -v%d" % (t+i, t+i) for i in range(4)]
            o += ["v_fma_f32 v%d, v%d, s48, s48" % (t+i, t+i) for i in range(4)]
            o += ["v_rcp_f32 v%d, v%d" % (t+i, t+i) for i in range(4)]
            o += ["v_mul_f32 v%d, v%d, v%d" % (t+i, t+i, x+i) for i in range(4)]
            o += ["v_cvt_pk_bf16_f32 v%d, v%d, v%d" % (PK+2*T+h, t+2*h, t+2*h+1) for h in range(2)]
            o.append("ds_write_b64 v5, v[%d:%d] offset:%d" % (PK+2*T, PK+2*T+1, 1024*T))
        return b, o
    def wt(op): return 2 if op.startswith(("v_exp", "v_rcp")) else min(2, len(op.split("\n")))
    RA = ("a", RING); RBB = ("v", RB)
    def subpass(ac, fill, first=None, loads=None, at=None, ring=RA, depth=18, batch=(), head=(), c0=None, more=None):
        if "p6nogelu" in ABL and len(fill) > 20: fill = []; batch = ()
        if "p6nost" in ABL: fill = [x for x in fill if "buffer_store" not in x]
        fill = list(fill); head = list(head)
        seq = [(2*p + q, T) for p in range(9) for T in range(4) for q in range(2)]
        LA = 12
        rd = [fread(j, first)[T] for j, T in seq] if first else []
        for x in rd[:LA]: a(x)
        def wait(m):
            w = []
            if m % 8 == 0: w.append("vmcnt(%d)" % (depth - 2 + (more(m//4 - 1) if more else 0)))
            if first and m % 2 == 0: w.append("lgkmcnt(%d)" % max(0, min(LA, 72 - m) - 2))
            return "s_waitcnt " + " ".join(w) if w else None
        for m, (j, T) in enumerate(seq):
            if wait(m): a(wait(m))
            if at and m % 4 == 0 and m//4 in at: at[m//4]()
            t, r = xf(T, j)
            a(mfma(ac+4*T, ring[1]+4*j, r, (None if c0 is None else c0+4*T) if j == 0 else ac+4*T, ta=ring[0], tb=t))
            room = 2
            if m + LA < len(rd): a(rd[m + LA]); room -= 1
            if m == 0:
                for x in head: a(x)
            if m == 1:
                for x in batch: a(x)
            if T == 3:
                ld = "" if ("p6nold" in ABL and loads is None) else (loads(j) if loads else
                     ("buffer_load_dwordx4 a[%d:%d], v%d, s[%d:%d], s58 offen offset:%d" + WFL) % (RING+4*j, RING+4*j+3, RB+3+(j >> 2) if j > 3 else V_L16, R_WS, R_WS+3, 1024*(j & 3)))
                if ld: a(ld); room -= len(ld.split("\n"))
            if m < 71 and wait(m+1): room -= 1
            if m < 2: continue
            later = sum(2 - (q % 8 >= 6) - (q % 8 == 7 and q < 71) for q in range(m+1, 72))
            while fill and (wt(fill[0]) <= room or sum(wt(x) for x in fill) > later):
                room -= wt(fill[0]); a(fill.pop(0))
        assert not fill
    def nexttile(): return ["s_add_u32 s58, s58, 18432", "v_add_u32 v5, 8192, v5"]
    a("s_add_u32 s58, s54, 18432")
    for q in range(1, 5): a("v_add_u32 v%d, %d, v%d" % (RB+3+q, 4096*q, V_L16))
    res = ["s_add_u32 s62, s78, %d\n" % ((X1_OFF, H_OFF)[j >> 2] + 18432*(j & 3)) + bload(RS+4*j, 62, t="v") for j in range(8)]
    def resadd():
        for k in range(2):
            for T in range(4): a(mfma(R3+4*T, 36, RS+16*k+4*T, None if k == 0 else R3+4*T))
    subpass(AC, [], first=(V_L16, 32), at={2*j+1: (lambda j=j: a(res[j])) for j in range(8)}, more=lambda j: min((j+1)//2, 8) + LT)
    if "d_line" in ABL:
        for q in range(1024): a("v_mov_b32_e64 v%d, v1" % (30 + (q & 1)))
    if "d_loop" in ABL:
        L = a.newlabel("Ld"); a("s_mov_b32 s46, 16"); a.label(L)
        for q in range(64): a("v_mov_b32_e64 v%d, v1" % (30 + (q & 1)))
        a("s_sub_u32 s46, s46, 1"); a("s_cmp_lg_u32 s46, 0"); a("s_cbranch_scc1 %s" % L)
    a.stamp("p6_p0")
    DA, TA = RB+16, RB+22
    a.srd(R_B, S_W4, BW + 4096, -4096)
    a("v_lshrrev_b32 v30, 3, v%d" % V_LANE); a("v_bfe_u32 v31, v%d, 4, 1" % V_LANE); a("v_lshlrev_b32 v31, 1, v31")
    a("v_and_b32 v%d, 7, v%d" % (TA, V_LANE)); a("v_xor_b32 v31, v31, v%d" % TA); a("v_mul_u32_u24 v30, 1152, v30")
    a("v_lshl_add_u32 v%d, v31, 4, v30" % DA); a("v_xor_b32 v31, 4, v31"); a("v_lshl_add_u32 v%d, v31, 4, v30" % (DA+1))
    for q in (5, 4, 3, 2, 1, 0): a("v_add_u32 v%d, %d, v%d" % (DA+q, 9216*q - 1024*(q % 3) + 4096, DA + (q & 1)))
    a("v_lshrrev_b32 v30, 2, v%d" % V_R); a("v_lshl_add_u32 v31, v%d, 3, v30" % V_G); a("v_lshlrev_b32 v31, 7, v31")
    a("v_lshrrev_b32 v30, 1, v30"); a("v_and_b32 v%d, 1, v%d" % (TA, V_G)); a("v_lshl_add_u32 v30, v%d, 1, v30" % TA)
    a("v_xor_b32 v30, s%d, v30" % S_WAVE); a("v_lshl_add_u32 v31, v30, 5, v31"); a("v_and_b32 v30, 3, v%d" % V_R)
    a("v_lshl_add_u32 v%d, v30, 3, v31" % TA)
    a("s_mul_i32 s55, s51, 12"); a("s_add_u32 s55, s55, s%d" % S_WAVE); a("s_mul_i32 s55, s55, %d" % (48*1152))
    a("s_mul_i32 s63, s%d, 6144" % S_WAVE)
    a("v_subrev_u32 v5, 8192, v35")
    a("s_barrier")
    for r in range(4): a("v_mov_b32 v%d, -1" % (RB+r))
    def marker(p):
        def f():
            L = a.newlabel("Lmk"); a("s_cmp_lt_u32 s59, 2"); a("s_cbranch_scc0 %s" % L)
            if p == 0: a("s_add_u32 s46, s51, s59"); a("s_add_u32 s46, s46, 6"); a("s_and_b32 s46, s46, 7"); a("s_lshl_b32 s46, s46, 16"); a("s_add_u32 s77, s46, s56")
            a("buffer_store_dwordx4 v[%d:%d], v%d, s[%d:%d], s77 offen offset:%d sc1" % (RB, RB+3, V_L16, R_WS, R_WS+3, 1024*p))
            a.label(L)
        return f
    a("s_mov_b32 s59, 0")
    a.label("L_p6_a")
    for half in (1, 0):
        b, o = gelu(AC+16*(1-half))
        subpass(AC+16*half, o, batch=b, head=nexttile(), at={8: marker(1-half)})
    a("s_add_u32 s59, s59, 1"); a("s_cmp_lt_u32 s59, 3"); a("s_cbranch_scc1 L_p6_a")
    b, o = gelu(AC)
    subpass(AC+16, o, batch=b, head=nexttile(), at={9: resadd})
    CH = 24576
    def slot(n): return n if n < 3 else (0, 3, 1, 4, 2, 5)[(n - 3) % 6]
    def src(c, s): return "s_add_u32 s58, s%d, %d" % (s, 192*1152*c)
    def dma(n, s):
        o = []
        for q in range(6):
            pre = src(n % 3, s) + "\n" if q == 0 else ""
            if q % 3 == 0: pre = "s_add_u32 m0, s63, %d\n" % (CH*slot(n) + 1024*q) + (pre or "s_nop 0\n")
            o.append(pre + "buffer_load_dwordx4 v%d, s[%d:%d], s58 offen offset:%d lds" % (DA+q, R_B, R_B+3, 1024*(q % 3)))
        return o
    def origin(d, step):
        if step == 0: return ["s_add_u32 s%d, s55, 1024" % d]
        return ["s_add_u32 s46, s51, %s" % step, "s_and_b32 s46, s46, 7", "s_lshl_b32 s46, s46, 7", "s_add_u32 s%d, s55, s46" % d]
    for x in origin(64, 0) + origin(65, 1): a(x)
    d012 = dma(0, 64) + dma(1, 64) + dma(2, 64)
    b, o = gelu(AC+16)
    subpass(AC, o, batch=b, head=nexttile(), loads=lambda j: d012[j])
    a("v_add_u32 v5, 8192, v5")
    a("s_waitcnt vmcnt(12) lgkmcnt(0)"); a("s_barrier")
    a.stamp("p6_a")
    def pstore(ac):
        o = ["v_cvt_pk_bf16_f32 v%d, v%d, v%d" % (PK + (k ^ 2 if ac == AC else k), ac+2*k, ac+2*k+1) for k in range(8)]
        o += ["buffer_store_dwordx4 v[%d:%d], v%d, s[%d:%d], s62 offen offset:%d sc1" % (PK+4*p, PK+4*p+3, V_L16, R_WS, R_WS+3, 1024*p) for p in range(2)]
        return o
    def dest(step):
        if step == 0: return ["s_add_u32 s62, s56, %d" % (8*65536)]
        return ["s_add_u32 s46, s51, %s" % step, "s_and_b32 s46, s46, 7", "s_lshl_b32 s46, s46, 16", "s_add_u32 s62, s46, s56"]
    def xf(T, j):
        f = 4*j + T
        return ("a", 4*f) if f < 64 else ("v", 224 + 4*(f-64))
    def wf(pp): return (RB, RB+8, ST)[pp % 3]
    def wread(n, p):
        o = ["v_add_u32 v%d, %d, v%d" % (TA+1, CH*slot(n), TA)] if p == 0 else []
        pp = 3*n + p
        return o + ["ds_read_b64_tr_b16 v[%d:%d], v%d offset:%d" % (wf(pp)+4*q+2*hh, wf(pp)+4*q+2*hh+1, TA+1, 4096*(2*p+q) + 512*hh) for q in range(2) for hh in range(2)]
    def step(s, ac, fill, head=(), first=None, c0=None, before={}, after={}, at={}, batch=(), hurry=None, evens=()):
        if "p6nost" in ABL: fill = [x for x in fill if "buffer_store" not in x]
        if "p6nold" in ABL: after = {k: [x for x in v if " lds" not in x] or ["s_nop 0"] for k, v in after.items()}
        fill = list(fill); head = list(head); lg = list(step.lg); nfill = len(fill)
        seq = [(2*p + q, T) for p in range(9) for T in range(4) for q in range(2)]
        hr = ["ds_read_b128 %s[%d:%d], v%d offset:%d" % (xf(T, j)[0], xf(T, j)[1], xf(T, j)[1]+3, first[j//9], 1024*(4*(j % 9) + T)) for j, T in seq] if first else []
        def lds(x, tag):
            a(x)
            if x.startswith("ds_"): lg.append(tag)
        def upto(tag):
            if tag in lg:
                n = len(lg) - 1 - max(i for i, t in enumerate(lg) if t == tag)
                a("s_waitcnt lgkmcnt(%d)" % min(n, 15)); del lg[:len(lg) - min(n, 15)]
                return 1
            return 0
        for i, x in enumerate(hr[:8]): lds(x, ("h", i))
        extra = [(w - 72, x) for w, x in step.extra]
        for m, (j, T) in enumerate(seq):
            p, c = m//8, m//24
            room = 2
            if m % 24 == 8 and 3*s + c < 26:
                if c in before: before[c]()
                upto("x")
                if "p6nobar" not in ABL: a("s_barrier")
                assert not extra
                ex = after.get(c, []); extra = [(m + 24*k//len(ex), x) for k, x in enumerate(ex)]
            if m % 8 == 0:
                upto(("w", 9*s + p))
                nx = wread(3*s + (p+2)//3, (p+2) % 3) if 9*s + p < 79 else []
            if m % 2 == 0 and first: upto(("h", m+1))
            if m % 4 == 0 and m//4 in at: at[m//4]()
            t, r = xf(T, j)
            a(mfma(ac+4*T, wf(9*s+p)+4*(j & 1), r, (None if c0 is None else c0+4*T) if j == 0 else ac+4*T, tb=t))
            if nx:
                lds(nx.pop(0), ("w", 9*s + p + 2)); room -= 1
            if m + 8 < len(hr): lds(hr[m+8], ("h", m+8)); room -= 1
            if m < 3:
                n = (len(head) + 2 - m)//(3 - m)
                for x in head[:n]: a(x)
                del head[:n]
            while extra and extra[0][0] <= m:
                lds(extra.pop(0)[1], "x"); room -= 1
            if m % 2 == 0 and m//2 < len(evens): a(evens[m//2]); room -= 1
            if m == 3:
                for x in batch: a(x)
            if m >= 4:
                while fill and (wt(fill[0]) <= room or hurry and len(fill)*(hurry - 3) > nfill*(hurry - m)):
                    room -= wt(fill[0]); lds(fill.pop(0), "x")
        assert not fill
        step.lg = lg; step.extra = extra
    def mix(x, y): return [z for pair in zip(x, y) for z in pair]
    def vm(n): return lambda: a("s_waitcnt vmcnt(%d)" % n)
    def seq(*fs):
        def f():
            for x in fs: x()
        return f
    def wave(w, body):
        def f():
            L = a.newlabel("Lex"); a("s_cmp_lg_u32 s%d, %d" % (S_WAVE, w)); a("s_cbranch_scc1 %s" % L); body(); a.label(L)
        return f
    a("s_lshl_b32 s70, s50, 10"); a("s_add_u32 s70, s70, %d" % (FLAG0 + 128*FA)); a("s_lshl_b32 s46, s51, 7"); a("s_add_u32 s68, s70, s46")
    a("s_mul_i32 s46, s50, 9"); a("s_add_u32 s46, s46, s51"); a("s_lshl_b32 s46, s46, 16"); a("s_lshl_b32 s47, s%d, 11" % S_WAVE)
    a("s_add_u32 s46, s46, s47"); a("s_add_u32 s69, s46, %d" % PART)
    def publish(c):
        def f():
            a("s_add_u32 s46, s%d, %d" % (S_NONCE, c)); a("v_mov_b32 v29, s46"); a("s_mov_b64 exec, 1")
            a("buffer_store_dword v29, v28, s[%d:%d], s68 offen sc1" % (R_WS, R_WS+3))
            a("s_mov_b64 exec, -1")
        return wave(0, f)
    askq = "buffer_load_dword v31, v5, s[%d:%d], s70 offen sc1" % (R_WS, R_WS+3)
    ask = wave(0, lambda: a(askq))
    def need(c, n):
        def f():
            L = a.newlabel("Lcf")
            a("s_add_u32 s73, s%d, %d" % (S_NONCE, c)); a("s_mov_b32 s47, 100000"); a("s_waitcnt vmcnt(%d)" % n)
            a.label(L)
            a("v_subrev_u32 v30, s73, v31"); a("v_cmp_lt_u32 vcc, 7, v30"); a("s_cbranch_vccz %s_x" % L)
            a("s_sleep 1"); a(askq); a("s_waitcnt vmcnt(0)")
            a("s_sub_u32 s47, s47, 1"); a("s_cbranch_scc0 %s" % L)
            a.label(L + "_x")
        return wave(0, f)
    step.extra = []
    a("v_mov_b32 v%d, v33" % (RB+24)); a("v_mov_b32 v%d, v34" % (RB+25))
    for x in wread(0, 0) + wread(0, 1): a(x)
    step.lg = [("w", 0)]*4 + [("w", 1)]*4
    A0, A1 = AC+16, AC
    b, o = gelu(AC)
    step(0, A0, o, first=(RB+24, RB+25), head=origin(64, 2), batch=b, hurry=48, before={0: vm(6), 1: vm(0), 2: vm(6)},
         after={1: dma(3, 65) + dma(4, 65), 2: dma(5, 65) + dma(6, 64)})
    a.stamp("p6_s0")
    a("v_and_b32 v5, 7, v%d" % V_LANE); a("v_cmp_eq_u32 vcc, s51, v5"); a("v_xor_b32 v30, 1, v5")
    a("v_cndmask_b32 v5, v5, v30, vcc"); a("v_lshlrev_b32 v5, 7, v5")
    step(1, A1, pstore(A0), head=dest(0) + origin(65, 3), before={0: vm(12), 1: vm(18), 2: vm(18)},
         after={0: dma(7, 64) + dma(8, 64), 1: dma(9, 65), 2: dma(10, 65)})
    a.stamp("p6_s1")
    a("s_mov_b32 s71, 2")
    a.label("L_p6_b")
    w18 = {0: vm(18), 1: vm(18), 2: vm(18)}
    def last(body):
        def f():
            L = a.newlabel("Ll"); a("s_cmp_eq_u32 s71, 4"); a("s_cbranch_scc0 %s" % L); body(); a.label(L)
        return f
    lg0 = list(step.lg); ex0 = list(step.extra)
    step(2, A0, pstore(A1), head=["s_sub_u32 s72, s71, 1"] + dest("s72") + ["s_add_u32 s72, s71, 2"] + origin(64, "s72"), before=w18,
         after={0: dma(11, 65), 1: dma(12, 64), 2: dma(13, 64)})
    step(3, A1, pstore(A0), head=dest("s71") + ["s_add_u32 s72, s71, 3"] + origin(65, "s72"), before={0: vm(18), 1: vm(18), 2: seq(vm(18), last(vm(10)))},
         after={0: dma(14, 64), 1: dma(15, 65), 2: dma(16, 65)}, at={15: last(publish(4))})
    assert [t[0] for t in step.lg] == [t[0] for t in lg0] and step.extra == ex0
    a("s_add_u32 s71, s71, 2"); a("s_cmp_lt_u32 s71, 6"); a("s_cbranch_scc1 L_p6_b")
    step.lg = [("w", t[1] + 36) for t in lg0]
    a.stamp("p6_s5")
    def SC(k): return (54, 57, 59, 61, 72, 75, 76)[k-1]
    for k in range(1, 8):
        r = SC(k); a("s_sub_u32 s%d, s51, %d" % (r, k)); a("s_and_b32 s%d, s%d, 7" % (r, r)); a("s_lshl_b32 s%d, s%d, 13" % (r, r)); a("s_add_u32 s%d, s%d, s69" % (r, r))
    CB, EX = RB + 24, 160
    def cload(k): return [bload(CB + 28*p + 4*(k-1), SC(k), 1024*p, t="v") for p in range(2)]
    def emit(xs): return lambda: [a(x) for x in xs]
    def add(acc, k):
        def f():
            for p in range(2):
                r = CB + 28*p + 4*(k-1); T = 2*p + (k & 1)
                a(mfma(acc+4*T, SEL+2, r, acc+4*T) if k == 1 else mfma(acc+4*T, SEL, r-4, acc+4*T) if k == 8 else mfma(acc+4*T, BOTH, r-2, acc+4*T))
        return f
    step(6, A0, pstore(A1), head=dest(5) + origin(64, 8), before={0: vm(18), 1: vm(18), 2: seq(need(4, 6), vm(10))},
         after={0: dma(23, 65), 1: dma(24, 64), 2: dma(25, 64)}, at={6: ask, 15: publish(5), 16: emit(cload(1))})
    a.stamp("p6_s6")
    a("s_mul_i32 s46, s50, 9"); a("s_add_u32 s46, s46, 8"); a("s_lshl_b32 s46, s46, 16"); a("s_lshl_b32 s47, s51, 10")
    a("s_add_u32 s46, s46, s47"); a("s_add_u32 s78, s46, %d" % PART)
    a("s_and_b32 s46, s51, 1"); a("s_mul_i32 s74, s46, 36864"); a("s_add_u32 s74, s74, s60")
    a("s_lshr_b32 s47, s51, 2"); a("s_add_u32 s47, s47, 16"); a("s_lshl_b32 s46, s47, 10"); a("s_add_u32 s79, s46, s74")
    a("s_lshr_b32 s46, s51, 1"); a("s_lshl_b32 s46, s46, 5"); a("s_add_u32 s46, s46, 1024"); a("s_add_u32 s74, s74, s46")
    def extra_get():
        for k in range(8):
            a(bload(EX+4*k, 78, t="v")); a("s_add_u32 s78, s78, 8192")
        for k, off in enumerate((H_OFF, X1_OFF)):
            for T in range(2):
                a("s_add_u32 s46, s79, %d" % (off + 18432*T)); a(bload(EX+32+8*k+4*T, 46, t="v"))
    step(7, A1, pstore(A0), head=dest(6), before={0: vm(18), 1: vm(18), 2: seq(need(5, 2), vm(18))}, after={0: dma(26, 64)},
         at={3: emit(cload(2)), 6: emit(cload(3)), 9: ask, 10: emit(cload(4)), 15: emit(cload(5))})
    a.stamp("p6_s7")
    SEv, EA, BOTH = A1, A1+8, R3
    g = G()
    g.lines += ["v_mov_b32 v%d, v%d" % (BOTH+i, SEL+2+(i & 1)) for i in range(4)]
    g.lines += natsel(SEv, 51, 1, EA)
    OB = 147456
    g("v_mul_u32_u24 v%d, 144, v%d" % (A1+4, V_R)); g("v_lshl_add_u32 v%d, v%d, 3, v%d" % (A1+4, V_G, A1+4))
    g.lines.append("s_lshl_b32 s66, s%d, 5\ns_add_u32 s66, s66, %d" % (S_WAVE, OB))
    g("v_add_u32 v%d, s66, v%d" % (A1+4, A1+4))
    g("v_lshrrev_b32 v%d, 3, v0" % EA); g("v_and_b32 v%d, 7, v0" % (EA+1)); g("v_lshlrev_b32 v%d, 4, v%d" % (EA+1, EA+1))
    g("v_mul_u32_u24 v%d, 144, v%d" % (A1+5, EA)); g("v_add_u32 v%d, v%d, v%d" % (A1+5, A1+5, EA+1)); g("v_add_u32 v%d, %d, v%d" % (A1+5, OB, A1+5))
    g("v_mul_u32_u24 v%d, 1152, v%d" % (A1+6, EA)); g("v_add_u32 v%d, v%d, v%d" % (A1+6, A1+6, EA+1))
    g("v_mul_u32_u24 v%d, 1152, v%d" % (A1+7, V_R)); g("v_lshl_add_u32 v%d, v%d, 3, v%d" % (A1+7, V_G, A1+7))
    step(8, A0, pstore(A1) + g.lines, head=dest(7), c0=R3, before={0: vm(10), 1: vm(2)},
         at={8: add(A0, 1), 9: wave(3, extra_get), 10: add(A0, 2), 12: seq(add(A0, 3), emit(cload(6))),
             14: add(A0, 4), 16: add(A0, 5), 17: emit(cload(7))})
    a.stamp("p6_b")
    a.srd(R_A, S_OUT, ACT)
    a("s_cmp_lg_u32 s%d, 3" % S_WAVE); a("s_cbranch_scc1 L_p7_main")
    a("s_waitcnt vmcnt(4)")
    for k in range(8):
        a(mfma(EA, SEL+2, EX+4*k, None if k == 0 else EA)); a(mfma(EA+4, SEL, EX+4*k, None if k == 0 else EA+4))
    for k in range(2):
        for T in range(2): a(mfma(EA+4*T, SEv, EX+32+8*k+4*T, EA+4*T))
    for T in range(2):
        for h in range(2): a("v_cvt_pk_bf16_f32 v%d, v%d, v%d" % (PK+2*T+h, EA+4*T+2*h, EA+4*T+2*h+1))
    a.label("L_p7_main")
    for k in (6, 7):
        regs = [CB + 28*p + 4*(k-1) + i for p in range(2) for i in range(4)]
        L = a.newlabel("Ltag")
        a("s_mov_b32 s47, 100000")
        a("s_waitcnt vmcnt(%d)" % (2 if k == 6 else 0))
        a.label(L)
        for x in tag_ops(regs, 30): a(x)
        a("s_cbranch_vccz %s_x" % L)
        for x in cload(k): a(x)
        a("s_waitcnt vmcnt(0)")
        a("s_sub_u32 s47, s47, 1"); a("s_cbranch_scc0 %s" % L)
        a.label(L + "_x")
        add(A0, k)()
    add(A0, 8)()
    a.stamp("p7_ready")
    a("s_cmp_lg_u32 s%d, 3" % S_WAVE); a("s_cbranch_scc1 L_p7_acc")
    for T in range(2):
        a("buffer_store_dwordx2 v[%d:%d], v%d, s[%d:%d], s74 offen%s" % (PK+2*T, PK+2*T+1, A1+7, R_A, R_A+3, OFL))
        a("s_add_u32 s74, s74, 18432")
    a.label("L_p7_acc")
    a("s_lshl_b32 s46, s51, 7"); a("s_add_u32 s46, s46, s60"); a("s_add_u32 s47, s46, 36864")
    for T in range(4):
        for h in range(2): a("v_cvt_pk_bf16_f32 v%d, v%d, v%d" % (R3+2*T+h, A0+4*T+2*h, A0+4*T+2*h+1))
        a("ds_write_b64 v%d, v[%d:%d] offset:%d" % (A1+4, R3+2*T, R3+2*T+1, 2304*T))
    a("s_waitcnt lgkmcnt(0)"); a("s_barrier")
    for p in range(2): a("ds_read_b128 v[%d:%d], v%d offset:%d" % (R3+8+4*p, R3+11+4*p, A1+5, 4608*p))
    for p in range(2):
        a("s_waitcnt lgkmcnt(%d)" % (1-p))
        a("buffer_store_dwordx4 v[%d:%d], v%d, s[%d:%d], s%d offen%s" % (R3+8+4*p, R3+11+4*p, A1+6, R_A, R_A+3, 46+p, OFL))
```

```python
import sys, os, struct, math
sys.path.insert(0, "dev")
from asmlib import Asm, build
from hazard import fix_hazards, check_waits

NAME = "sequential_preLN__sliding_block__mixer_s_mlp__prompt"
KN = NAME + "_kernel"

ACT = 2048*576*2
SW  = 576*576*2
BW  = 576*4608*2
FLAG0 = 128
F1, FS, F2, F3, F4, F5, FA, FB = 0, 256, 640, 896, 1152, 1408, 1664, 2688
TS_OFF = 0x80000
Q_OFF  = 0x90000
K_OFF  = Q_OFF + ACT
V_OFF  = K_OFF + ACT
O_OFF  = V_OFF + ACT
H_OFF  = O_OFF + ACT
SH_OFF = H_OFF + ACT
T_OFF  = SH_OFF + 98304
X1_OFF = T_OFF + ACT
SX_OFF = X1_OFF + ACT
WO_S   = SX_OFF + 98304
W1_S   = WO_S + SW
W2_S   = W1_S + SW
W3_S   = W2_S + SW
W4_S   = W3_S + BW
PART   = W4_S + BW
WS_END = PART + 32*9*8*8192
FP_OFF = 0x7F000
FP2_OFF = FP_OFF + 1024
MARK_N = T_OFF - O_OFF
MKG = 19
MARK_W = 2048*MKG
assert 128*MARK_W >= MARK_N and 1024*5120 >= WO_S - T_OFF
HPSZ   = 147456

WSOFF = 0
MK0 = int(os.environ.get('MK0', 0))
MK1 = int(os.environ.get('MK1', 0))
THR = int(os.environ.get('THR', 0))
NW3 = int(os.environ.get('NW3', 0))
ABL = os.environ.get('ABL', '').split(',')
CLK = 's_memtime'
def f32(x): return struct.unpack("<I", struct.pack("<f", x))[0]
def magic(d): return (1 << 32)//d + 1

S_X, S_WQKV, S_WO = 4, 6, 8
S_W1, S_W2, S_W3, S_W4 = 12, 14, 16, 18
S_OUT, S_DBG, S_WS = 20, 22, 24
R_WS, R_A, R_B = 28, 32, 36
S_WAVE, S_XCD, S_SLOT, S_NONCE = 40, 41, 42, 43
S_ONES = 44
V_LANE, V_R, V_G, V_L16 = 1, 2, 3, 4

class G(Asm):
    def __init__(s, stop=99, stamps=False):
        super().__init__()
        s.stop = stop; s.stamps = stamps; s.stubs = []
    def srd(a, d, p, size, add=0):
        if add >= 0:
            a("s_add_u32 s%d, s%d, %s" % (d, p, add)); a("s_addc_u32 s%d, s%d, 0" % (d+1, p+1))
        else:
            a("s_sub_u32 s%d, s%d, %d" % (d, p, -add)); a("s_subb_u32 s%d, s%d, 0" % (d+1, p+1))
        a("s_mov_b32 s%d, %d" % (d+2, size)); a("s_mov_b32 s%d, 0x20000" % (d+3))
    def srd_s(a, d, p, size, sreg):
        a("s_add_u32 s%d, s%d, s%d" % (d, p, sreg)); a("s_addc_u32 s%d, s%d, 0" % (d+1, p+1))
        a("s_mov_b32 s%d, %d" % (d+2, size)); a("s_mov_b32 s%d, 0x20000" % (d+3))
    def sdiv(a, q, r, x, d):
        a("s_mul_hi_u32 s%d, s%d, %d" % (q, x, magic(d)))
        if r is not None:
            a("s_mul_i32 s%d, s%d, %d" % (r, q, d)); a("s_sub_u32 s%d, s%d, s%d" % (r, x, r))
    def jitter(a):
        L = a.newlabel("Ljit")
        a("s_memrealtime s[98:99]"); a("s_waitcnt lgkmcnt(0)")
        a("s_mul_i32 s98, s98, 0x9E3779B1"); a("s_mul_i32 s99, s2, 0x85EBCA6B"); a("s_add_u32 s98, s98, s99"); a("s_mul_i32 s99, s%d, 0x27D4EB2F" % S_WAVE)
        a("s_add_u32 s98, s98, s99"); a("s_lshr_b32 s99, s98, 29"); a("s_lshr_b32 s98, s98, 20"); a("s_and_b32 s98, s98, 127")
        a("s_cmp_lt_u32 s99, 5"); a("s_cselect_b32 s98, 0, s98")
        a.label(L)
        a("s_cmp_eq_u32 s98, 0"); a("s_cbranch_scc1 %s_x" % L); a("s_sleep 1"); a("s_sub_u32 s98, s98, 1"); a("s_branch %s" % L)
        a.label(L + "_x")
    def stamp(a, name):
        if "jitter" in ABL and name not in ("start", "end"): a.jitter()
        if not a.stamps or name not in a.stamps: return
        k = a.stamps.index(name)
        a("%s s[98:99]" % CLK); a("s_waitcnt lgkmcnt(0)"); a("s_mov_b32 s%d, s98" % (80+k))
    def stamp_out(a):
        if not a.stamps: return
        a.stamp("end")
        a("s_lshl_b32 s98, s2, 2"); a("s_add_u32 s98, s98, s%d" % S_WAVE); a("s_lshl_b32 s98, s98, 6"); a("s_add_u32 s98, s98, %d" % TS_OFF)
        a("v_mov_b32 v255, 0")
        for k in range(16):
            a("v_mov_b32 v254, s%d" % (80+k))
            a("buffer_store_dword v254, v255, s[%d:%d], s98 offen offset:%d" % (R_WS, R_WS+3, 4*k))
            a("s_nop 1")
    def xg_reduce(a, v, t, op="v_add_f32"):
        for sw in ("v_permlane32_swap_b32", "v_permlane16_swap_b32"):
            a("v_mov_b32 v%d, v%d" % (t, v)); a("%s v%d, v%d" % (sw, v, t)); a("%s v%d, v%d, v%d" % (op, v, v, t))
    def get_nonce(a, vt):
        L = a.newlabel("Lnon")
        a("s_mov_b32 s46, 200000"); a("v_mov_b32 v%d, 0" % (vt+2))
        a.label(L)
        a("global_load_dwordx2 v[%d:%d], v%d, s[%d:%d] sc1" % (vt, vt+1, vt+2, S_DBG, S_DBG+1))
        a("s_waitcnt vmcnt(0)")
        a("v_readfirstlane_b32 s47, v%d" % (vt+1)); a("v_readfirstlane_b32 s%d, v%d" % (S_NONCE, vt))
        a("s_sub_u32 s46, s46, 1"); a("s_cbranch_scc1 %s_x" % L)
        a("s_cmp_eq_u32 s47, 0"); a("s_cbranch_scc1 %s" % L)
        a.label(L + "_x")
    def set_flag(a, sidx, vt):
        a("s_lshl_b32 s%d, s%d, 7" % (sidx, sidx)); a("s_add_u32 s%d, s%d, %d" % (sidx, sidx, FLAG0))
        a("v_mov_b32 v%d, s%d" % (vt, S_NONCE)); a("v_mov_b32 v%d, 0" % (vt+1))
        a("s_mov_b64 exec, 1")
        a("buffer_store_dword v%d, v%d, s[%d:%d], s%d offen sc1" % (vt, vt+1, R_WS, R_WS+3, sidx))
        a("s_mov_b64 exec, -1")
    def set_mark(a, vt, off):
        a("s_lshl_b32 s46, s2, 2"); a("s_add_u32 s46, s46, %d" % off)
        a("v_mov_b32 v%d, s%d" % (vt, S_NONCE)); a("v_mov_b32 v%d, 0" % (vt+1))
        a("s_mov_b64 exec, 1")
        a("buffer_store_dword v%d, v%d, s[%d:%d], s46 offen sc1" % (vt, vt+1, R_WS, R_WS+3))
        a("s_mov_b64 exec, -1")
    def poll(a, vidx, vt, sleep0=6, sleep=2, two=False):
        L = a.newlabel("Lpoll")
        a("v_lshlrev_b32 v%d, 7, v%d" % (vidx, vidx))
        a("s_mov_b32 s46, 100000")
        if sleep0: a("s_sleep %d" % sleep0)
        a.label(L)
        if two: a("buffer_load_dwordx2 v[%d:%d], v%d, s[%d:%d], 0 offen offset:%d sc1" % (vt, vt+1, vidx, R_WS, R_WS+3, FLAG0))
        else: a("buffer_load_dword v%d, v%d, s[%d:%d], 0 offen offset:%d sc1" % (vt, vidx, R_WS, R_WS+3, FLAG0))
        a("s_waitcnt vmcnt(0)")
        a("v_cmp_ne_u32 vcc, s%d, v%d" % (S_NONCE, vt))
        a("s_cbranch_vccz %s_x" % L)
        a("s_sleep %d" % sleep)
        a("s_sub_u32 s46, s46, 1"); a("s_cbranch_scc0 %s" % L)
        a.label(L + "_x")

def mfma(d, A, B, C=None, ta="v", tb="v", td="v"):
    c = "0" if C is None else "%s[%d:%d]" % (td, C, C+3)
    return "v_mfma_f32_16x16x32_bf16 %s[%d:%d], %s[%d:%d], %s[%d:%d], %s" % (td, d, d+3, ta, A, A+3, tb, B, B+3, c)

def interleave(a, main, fill, start=0):
    n = len(main) - start; k = 0
    for i, m in enumerate(main):
        a(m)
        if i >= start:
            upto = (len(fill)*(i-start+1) + n - 1)//n
            while k < upto: a(fill[k]); k += 1

def prologue(a):
    a("s_cmp_ge_u32 s2, 256"); a("s_cbranch_scc1 L_end")
    a("s_load_dwordx4 s[4:7], s[0:1], 0")
    a("s_load_dwordx2 s[24:25], s[0:1], 80")
    a("s_load_dwordx2 s[8:9], s[0:1], 16")
    a("s_load_dwordx8 s[12:19], s[0:1], 32")
    a("s_load_dwordx4 s[20:23], s[0:1], 64")
    a("v_and_b32 v%d, 63, v0" % V_LANE)
    a("v_lshrrev_b32 v5, 6, v0")
    a("v_and_b32 v%d, 15, v0" % V_R)
    a("v_readfirstlane_b32 s%d, v5" % S_WAVE)
    a("v_lshrrev_b32 v%d, 4, v%d" % (V_G, V_LANE))
    a("v_lshlrev_b32 v%d, 4, v%d" % (V_L16, V_LANE))
    if "antiloc" in ABL:
        a("s_lshr_b32 s46, s2, 5"); a("s_and_b32 s47, s2, 31"); a("s_lshl_b32 s47, s47, 3"); a("s_or_b32 s2, s46, s47")
    a("s_and_b32 s%d, s2, 7" % S_XCD); a("s_lshr_b32 s%d, s2, 3" % S_SLOT)
    a("s_mov_b32 s%d, 0x3f803f80" % S_ONES)
    if "nopf" not in ABL:
        a("s_getpc_b64 s[46:47]")
        a.label("L_pc")
        a("s_mul_i32 s48, s%d, %d" % (S_SLOT, 24*128)); a("v_lshl_add_u32 v5, v0, 7, s48")
        a("v_cmp_gt_u32 vcc, 24, v0"); a("s_mov_b32 s48, L_last-L_pc"); a("v_cmp_gt_u32 s[48:49], s48, v5"); a("s_and_b64 vcc, vcc, s[48:49]")
        a("s_and_saveexec_b64 s[48:49], vcc"); a("s_cbranch_execz L_pcd")
        a("global_load_dword v253, v5, s[46:47]")
        a.label("L_pcd")
        a("s_mov_b64 exec, -1")
    if a.stamps:
        for k in range(16): a("s_mov_b32 s%d, 0" % (80+k))
        a.stamp("start")

def publish_nonce(a):
    L = a.newlabel("Lpn")
    a("s_xor_b32 s46, s2, 224"); a("s_or_b32 s46, s46, s%d" % S_WAVE); a("s_cmp_lg_u32 s46, 0"); a("s_cbranch_scc1 %s" % L)
    a("v_mov_b32 v252, 0")
    a("buffer_load_dword v250, v252, s[%d:%d], 0 offen sc1" % (R_WS, R_WS+3))
    a("s_mov_b32 s46, 0x9E3779B1")
    a("s_waitcnt vmcnt(0)")
    a("v_mul_lo_u32 v250, v250, s46"); a("v_add_u32 v250, 0x7F4A7C15, v250"); a("v_mov_b32 v251, 1")
    a("s_mov_b64 exec, 1")
    a("buffer_store_dword v250, v252, s[%d:%d], 0 offen sc1" % (R_WS, R_WS+3))
    a("global_store_dwordx2 v252, v[250:251], s[%d:%d] sc1" % (S_DBG, S_DBG+1))
    a("s_mov_b64 exec, -1")
    a.label(L)

def swizzle_setup(a):
    for i in range(9):
        a("v_add_u32 v40, %d, v%d" % (64*i, V_LANE))
        a("v_mul_u32_u24 v%d, 911, v40" % (10+i)); a("v_lshrrev_b32 v%d, 16, v%d" % (10+i, 10+i))
        a("v_mul_u32_u24 v41, 72, v%d" % (10+i)); a("v_sub_u32 v41, v40, v41"); a("v_lshlrev_b32 v%d, 4, v41" % (20+i))
    a("v_lshrrev_b32 v40, 2, v%d" % V_R); a("v_lshl_add_u32 v40, v%d, 3, v40" % V_G); a("v_mul_u32_u24 v40, 1152, v40")
    a("v_and_b32 v41, 3, v%d" % V_R); a("v_lshl_add_u32 v30, v41, 4, v40")
    a("s_lshr_b32 s46, s%d, 1" % S_WAVE); a("s_lshl_b32 s46, s46, 6"); a("s_and_b32 s47, s%d, 1" % S_WAVE); a("s_lshl_b32 s47, s47, 3")
    a("s_add_u32 s46, s46, s47"); a("v_add_u32 v30, s46, v30")

def sw_decode(a, su, p):
    Ln = a.newlabel("Lsw")
    D = 60+3*p
    a("s_cmp_ge_u32 s%d, 54" % su); a("s_cbranch_scc1 %s_big" % Ln)
    a.sdiv(51, 52, su, 18)
    a("s_cmp_eq_u32 s51, 1"); a("s_cselect_b32 s54, s%d, s%d" % (S_W1, S_W2)); a("s_cselect_b32 s55, s%d, s%d" % (S_W1+1, S_W2+1))
    a("s_cmp_eq_u32 s51, 0"); a("s_cselect_b32 s54, s%d, s54" % S_WO); a("s_cselect_b32 s55, s%d, s55" % (S_WO+1))
    a("s_mul_i32 s%d, s51, %d" % (D, SW)); a("s_add_u32 s%d, s%d, %d" % (D, D, WO_S))
    a("s_mul_i32 s53, s%d, 18432" % S_WAVE); a("s_add_u32 s%d, s%d, s53" % (D, D))
    a("s_mov_b32 s%d, 73728" % (D+1))
    a("s_lshl_b32 s56, s52, 5"); a("s_lshl_b32 s53, s%d, 3" % S_WAVE); a("s_add_u32 s56, s56, s53")
    a("s_mov_b32 s57, 0"); a("s_mov_b32 s59, 1152")
    a("s_cmp_lg_u32 s51, 0"); a("s_cbranch_scc1 %s_j" % Ln)
    a("s_mul_i32 s56, s52, 36"); a("s_lshl_b32 s53, s%d, 2" % S_WAVE); a("s_add_u32 s56, s56, s53"); a("s_mov_b32 s57, 16")
    a("s_cmp_lt_u32 s52, 16"); a("s_cbranch_scc1 %s_j" % Ln)
    a("s_sub_u32 s56, s52, 16"); a("s_lshl_b32 s56, s56, 2"); a("s_add_u32 s56, s56, s%d" % S_WAVE)
    a("s_mul_i32 s56, s56, 72"); a("s_add_u32 s56, s56, 16"); a("s_mov_b32 s57, 32")
    a("s_branch %s_j" % Ln)
    a.label(Ln + "_big")
    sw_big(a, su, D)
    a("s_lshl_b32 s56, s52, 5"); a("s_lshl_b32 s53, s%d, 3" % S_WAVE); a("s_add_u32 s56, s56, s53"); a("s_mov_b32 s57, 0")
    a("s_cmp_ge_u32 s51, 8"); a("s_cbranch_scc1 %s_w4" % Ln)
    a("s_mul_i32 s53, s51, 1152"); a("s_add_u32 s54, s%d, s53" % S_W3); a("s_addc_u32 s55, s%d, 0" % (S_W3+1)); a("s_mov_b32 s59, 9216")
    a("s_branch %s_j" % Ln)
    a.label(Ln + "_w4")
    a("s_sub_u32 s53, s51, 8"); a("s_mul_i32 s53, s53, %d" % SW); a("s_add_u32 s54, s%d, s53" % S_W4); a("s_addc_u32 s55, s%d, 0" % (S_W4+1)); a("s_mov_b32 s59, 1152")
    a.label(Ln + "_j")
    a("s_lshl_b32 s53, s52, 10"); a("s_add_u32 s%d, s%d, s53" % (D, D))
    a("s_add_u32 s%d, s%d, %d" % (D+2, su, FS))

def sw_big(a, su, D):
    a("s_sub_u32 s53, s%d, 54" % su); a.sdiv(51, 52, 53, 18)
    a("s_mul_i32 s%d, s51, %d" % (D, 4*9*18432)); a("s_add_u32 s%d, s%d, %d" % (D, D, W3_S))
    a("s_mul_i32 s53, s%d, %d" % (S_WAVE, 9*18432)); a("s_add_u32 s%d, s%d, s53" % (D, D))
    a("s_mov_b32 s%d, 18432" % (D+1))

def sw_issue(a, su, p, lds):
    sw_decode(a, su, p)
    a("s_mov_b32 s%d, s54" % R_A); a("s_mov_b32 s%d, s55" % (R_A+1))
    a("s_mul_i32 s%d, s59, 575" % (R_A+2)); a("s_add_u32 s%d, s%d, 1152" % (R_A+2, R_A+2)); a("s_mov_b32 s%d, 0x20000" % (R_A+3))
    a("s_mul_i32 s53, s%d, 9216" % S_WAVE); a("s_add_u32 m0, s53, %d" % lds)
    for k in range(9):
        a("v_lshrrev_b32 v40, 2, v%d" % (10+k)); a("v_mul_lo_u32 v40, v40, s57"); a("v_add3_u32 v40, v40, v%d, s56" % (10+k))
        a("v_mul_lo_u32 v40, v40, s59"); a("v_add_u32 v40, v40, v%d" % (20+k))
        a("buffer_load_dwordx4 v40, s[%d:%d], 0 offen lds" % (R_A, R_A+3))
        a("s_add_u32 m0, m0, 1024")

def sw_process(a, p, lds):
    a("v_add_u32 v31, %d, v30" % lds)
    for q in range(9):
        for hh in range(2):
            a("ds_read_b64_tr_b16 v[%d:%d], v31 offset:%d" % (44+4*q+2*hh, 45+4*q+2*hh, hh*4608 + 128*q))
    a("s_mov_b32 s53, s%d" % (60+3*p))
    for q in range(9):
        a("s_waitcnt lgkmcnt(%d)" % min(15, 16-2*q))
        a("buffer_store_dwordx4 v[%d:%d], v%d, s[%d:%d], s53 offen sc1" % (44+4*q, 47+4*q, V_L16, R_WS, R_WS+3))
        a("s_add_u32 s53, s53, s%d" % (61+3*p))

def sw_flags(a, ps, mark=False):
    L = a.newlabel("Lswf")
    a("s_cmp_lg_u32 s%d, 0" % S_WAVE); a("s_cbranch_scc1 %s" % L)
    for p in ps: a.set_flag(62+3*p, 40)
    if mark: a.set_mark(40, FP_OFF - 4*224)
    a.label(L)

MK, R_M = 220, 76

def mark_setup(a):
    a.srd(R_M, S_WS, MARK_N, O_OFF)
    for r in range(4): a("v_mov_b32 v%d, -1" % (MK+r))
    a("s_sub_u32 s74, s2, %d" % 224); a("s_lshl_b32 s74, s74, 2"); a("s_add_u32 s74, s74, s%d" % S_WAVE); a("s_mul_i32 s74, s74, %d" % MARK_W)

def mark_fill(a, n):
    L = a.newlabel("Lmk")
    a("s_mov_b32 s75, %d" % n)
    a.label(L)
    a(mark_store(74, 0)); a(mark_store(74, 1024)); a("s_add_u32 s74, s74, 2048"); a("s_waitcnt vmcnt(40)")
    a("s_sub_u32 s75, s75, 1"); a("s_cmp_lg_u32 s75, 0"); a("s_cbranch_scc1 %s" % L)

def mark_store(s, off): return "buffer_store_dwordx4 v[%d:%d], v%d, s[%d:%d], s%d offen offset:%d sc1" % (MK, MK+3, V_L16, R_M, R_M+3, s, off)

def touch_pages(a):
    if "tlb" not in ABL: return
    L = a.newlabel("Ltp")
    a("s_cmp_lg_u32 s%d, 1" % S_WAVE); a("s_cbranch_scc1 %s" % L)
    a("v_lshlrev_b32 v252, 21, v%d" % V_LANE)
    a("buffer_load_dword v253, v252, s[%d:%d], 0 offen offset:64" % (R_WS, R_WS+3))
    for p, size in ((S_W3, BW), (S_W4, BW), (S_OUT, ACT), (S_WO, SW), (S_W1, SW), (S_W2, SW)):
        n = (size - 1 >> 21) + 1
        a("s_mov_b64 exec, %d" % ((1 << n) - 1))
        a("global_load_dword v253, v252, s[%d:%d]" % (p, p+1))
    a("s_mov_b64 exec, -1")
    a.label(L)

def touch_inputs(a, nwg):
    nx, nw = -(-18432//(2*nwg)), -(-15552//(2*nwg))
    a("s_mul_i32 s46, s50, 14"); a("s_add_u32 s46, s46, s51"); a("s_lshl_b32 s46, s46, 1"); a("s_add_u32 s46, s46, s53")
    a("v_lshlrev_b32 v252, 7, v%d" % V_LANE)
    L = a.newlabel("Lti")
    a("s_cmp_lg_u32 s52, 0"); a("s_cbranch_scc1 %s_w" % L)
    a("s_mul_i32 s46, s46, %d" % (128*nx)); a("s_add_u32 s46, s46, 4096"); a("s_mov_b64 exec, 0x%x" % ((1 << nx) - 1) if nx <= 32 else "s_bfm_b64 exec, %d, 0" % nx)
    a("buffer_load_dword v253, v252, s[%d:%d], s46 offen" % (R_A, R_A+3))
    a("s_branch %s" % L)
    a.label(L + "_w")
    a("s_mul_i32 s46, s46, %d" % (128*nw)); a("s_add_u32 s46, s46, 4096"); a("s_bfm_b64 exec, %d, 0" % nw)
    a("buffer_load_dword v253, v252, s[%d:%d], s46 offen" % (R_B, R_B+3))
    a.label(L)
    a("s_mov_b64 exec, -1")

def phase1(a):
    QS = 18**-0.5 * math.log2(math.e)
    a("s_cmp_ge_u32 s%d, 28" % S_SLOT); a("s_cbranch_scc1 L_p1_helper")
    a.sdiv(46, 47, S_SLOT, 7)
    a("s_lshr_b32 s48, s%d, 1" % S_XCD); a("s_lshl_b32 s48, s48, 2"); a("s_add_u32 s50, s48, s46")
    a("s_and_b32 s48, s%d, 1" % S_XCD); a("s_mul_i32 s48, s48, 7"); a("s_add_u32 s51, s48, s47")
    a("s_lshr_b32 s52, s%d, 1" % S_WAVE); a("s_and_b32 s53, s%d, 1" % S_WAVE)
    a("v_lshrrev_b32 v20, 3, v%d" % V_LANE); a("v_and_b32 v21, 7, v%d" % V_LANE)
    a("v_xor_b32 v22, v21, v%d" % V_G); a("v_mul_u32_u24 v20, 1152, v20")
    a("v_lshl_add_u32 v10, v22, 4, v20"); a("v_xor_b32 v22, 4, v22"); a("v_lshl_add_u32 v11, v22, 4, v20")
    a("v_add_u32 v12, %d, v10" % (16*1152 - 2048 + 4096)); a("v_add_u32 v13, %d, v11" % (24*1152 - 3072 + 4096))
    a("v_add_u32 v11, %d, v11" % (8*1152 - 1024 + 4096)); a("v_add_u32 v10, 4096, v10")
    a("v_lshrrev_b32 v20, 1, v%d" % V_R); a("v_xor_b32 v20, v20, v%d" % V_G); a("v_and_b32 v21, 1, v%d" % V_LANE)
    a("v_lshl_add_u32 v21, v20, 1, v21"); a("v_mul_u32_u24 v22, 3456, v%d" % V_G)
    a("v_lshl_add_u32 v14, v21, 4, v22"); a("v_xor_b32 v21, 8, v21"); a("v_lshl_add_u32 v16, v21, 4, v22")
    a("v_add_u32 v15, %d, v14" % (4*3456 - 1024 + 4096)); a("v_add_u32 v17, %d, v16" % (12*3456 - 3072 + 4096))
    a("v_add_u32 v16, %d, v16" % (8*3456 - 2048 + 4096)); a("v_add_u32 v14, 4096, v14")
    a("s_lshl_b32 s54, s50, 2"); a("s_add_u32 s54, s54, s%d" % S_WAVE); a("s_mul_i32 s54, s54, %d" % (32*1152))
    a("s_mul_i32 s55, s%d, %d" % (S_WAVE, 16*3456)); a("s_lshl_b32 s46, s51, 8"); a("s_add_u32 s55, s55, s46")
    a("s_lshl_b32 s56, s%d, 12" % S_WAVE)
    a("s_waitcnt lgkmcnt(0)")
    if WSOFF: a("s_add_u32 s24, s24, %d" % WSOFF); a("s_addc_u32 s25, s25, 0")
    a.srd(R_A, S_X, ACT + 4096, -4096); a.srd(R_B, S_WQKV, 576*3456 + 4096, -4096)
    a.sdiv(46, 47, S_SLOT, 7)
    a("s_and_b32 s48, s%d, 1" % S_XCD); a("s_add_u32 s46, s46, s48"); a("s_lshl_b32 s46, s46, 1"); a("s_add_u32 s46, s46, s47")
    a("s_bfe_u32 s47, s%d, 0x10001" % S_XCD); a("s_add_u32 s46, s46, s47"); a("s_and_b32 s47, s%d, 4" % S_XCD); a("s_lshl_b32 s47, s47, 1"); a("s_add_u32 s46, s46, s47")
    if "rot8" not in ABL: a.sdiv(47, 67, 46, 9)
    else:
        a("s_and_b32 s70, s46, 7"); a("s_mov_b32 s67, 0")
    def dma(sbuf):
        X = ["buffer_load_dwordx4 v%d, s[%d:%d], s68 offen offset:%d lds" % (10+j, R_A, R_A+3, 1024*j) for j in range(4)]
        W = ["buffer_load_dwordx4 v%d, s[%d:%d], s69 offen offset:%d lds" % (14+j, R_B, R_B+3, 1024*j) for j in range(4)]
        X[0] = "s_mov_b32 m0, s%d\ns_lshl_b32 s68, s67, 7\ns_add_u32 s68, s68, s54\n" % sbuf + X[0]
        X[1] = "s_mul_i32 s69, s67, %d\ns_add_u32 s69, s69, s55\n" % (64*3456) + X[1]
        X[2] = "s_add_u32 s67, s67, 1\ns_cmp_eq_u32 s67, 9\ns_cselect_b32 s67, %d, s67\n" % (0 if "rot8" not in ABL else 1) + X[2]
        W[0] = "s_add_u32 m0, s%d, 16384\ns_nop 0\n" % sbuf + W[0]
        return X + W
    for x in dma(56): a(x)
    a("s_add_u32 s56, s56, 32768")
    if "rot8" in ABL: a("s_add_u32 s67, s67, s70")
    if "p1touch" in ABL: touch_inputs(a, 224)
    a.stamp("p1_issue")
    a.srd(R_WS, S_WS, WS_END)
    touch_pages(a)
    a("v_lshrrev_b32 v30, 2, v%d" % V_R); a("v_and_b32 v31, 3, v%d" % V_R)
    a("v_lshl_add_u32 v32, v%d, 3, v30" % V_G); a("v_lshlrev_b32 v32, 8, v32"); a("v_lshl_add_u32 v32, v31, 3, v32")
    a("v_add_u32 v32, 16384, v32")
    a("v_and_b32 v33, 1, v%d" % V_G); a("v_lshl_add_u32 v33, v33, 2, v30")
    a("s_lshl_b32 s46, s53, 2"); a("s_lshl_b32 s47, s52, 1"); a("s_or_b32 s57, s46, s47")
    for t in range(4):
        a("s_xor_b32 s46, s57, %d" % t); a("v_xor_b32 v34, s46, v33"); a("v_lshl_add_u32 v%d, v34, 5, v32" % (20+t))
    a("v_lshrrev_b32 v30, 1, v%d" % V_R); a("v_xor_b32 v30, v30, v%d" % V_G); a("v_lshlrev_b32 v31, 7, v%d" % V_R)
    a("s_lshl_b32 s46, s52, 13"); a("s_lshl_b32 s47, s53, 12"); a("s_add_u32 s46, s46, s47"); a("s_xor_b32 s47, s46, 4096")
    a("v_lshl_add_u32 v32, v30, 4, v31"); a("v_xor_b32 v33, 64, v32")
    a("v_add_u32 v24, s46, v32"); a("v_add_u32 v25, s47, v32"); a("v_add_u32 v26, s46, v33"); a("v_add_u32 v27, s47, v33")
    ACC, CS, ST, ONE = 48, 112, 120, 140
    XB = (144, 160); WB = (176, 192)
    WA, XA = 28, 32
    for r in range(ACC, ONE): a("v_mov_b32 v%d, 0" % r)
    for r in range(4): a("v_mov_b32 v%d, s%d" % (ONE+r, S_ONES))
    def addr(sbase):
        return ["v_add_u32 v%d, %s, v%d" % (WA+i, sbase, 20+i) for i in range(8)]
    def reads(jj):
        o = []
        for T in range(4):
            o.append("ds_read_b128 v[%d:%d], v%d offset:%d" % (XB[jj]+4*T, XB[jj]+4*T+3, XA+2*jj+(T>>1), 2048*(T&1)))
            for hh in range(2):
                o.append("ds_read_b64_tr_b16 v[%d:%d], v%d offset:%d" % (WB[jj]+4*T+2*hh, WB[jj]+4*T+2*hh+1, WA+T, jj*8192+hh*1024))
        return o
    def mm(jj, swap):
        o = []
        for t in range(4):
            for T in range(4):
                d = ACC+16*t+4*T
                o.append(mfma(d, XB[jj]+4*T, WB[jj]+4*t, d) if swap else mfma(d, WB[jj]+4*t, XB[jj]+4*T, d))
            if t < 2:
                d = CS+4*t
                o.append(mfma(d, ONE, WB[jj]+4*t, d) if swap else mfma(d, WB[jj]+4*t, ONE, d))
            x = XB[jj]+4*(t>>1); d = ST+4*t
            o.append(mfma(d, x if t & 1 else ONE, x, d))
        return o
    for x in addr("0"): a(x)
    a("s_lshl_b32 s60, s51, 1"); a("s_add_u32 s60, s60, s53")
    a("s_lshl_b32 s46, s50, 1"); a("s_add_u32 s46, s46, s52"); a("s_lshl_b32 s46, s46, 1"); a("s_add_u32 s47, s46, s53")
    a("s_xor_b32 s46, s47, 1"); a("s_mul_i32 s65, s47, 2304"); a("s_mul_i32 s66, s46, 2304"); a("s_mov_b32 s64, %d" % HPSZ)
    a("s_mov_b32 s58, 0"); a("s_mov_b32 s59, 0")
    a("s_cmp_ge_u32 s51, 9"); a("s_cbranch_scc1 L_p1_v0")
    for swap in (0, 1):
        L = "L_p1_v" if swap else "L_p1_qk"
        a.label(L + "0")
        if not swap:
            a("s_mov_b32 s62, %d" % Q_OFF); a("s_cmp_ge_u32 s60, 9"); a("s_cselect_b32 s61, 144, 0"); a("s_cselect_b32 s62, %d, s62" % K_OFF)
            a("s_cselect_b32 s73, 1.0, %d" % f32(QS))
            a("s_lshl_b32 s63, s60, 4"); a("s_sub_u32 s63, s63, s61")
            for t in range(4):
                a("s_lshl_b32 s46, s52, 1"); a("s_xor_b32 s46, s46, %d" % t); a("s_lshl_b32 s46, s46, 2"); a("s_add_u32 s46, s46, s63")
                a("v_add_u32 v212, s46, v%d" % V_G)
                a("v_mul_u32_u24 v213, 7282, v212"); a("v_lshrrev_b32 v213, 16, v213")
                a("v_mul_u32_u24 v214, 9, v213"); a("v_sub_u32 v212, v212, v214")
                a("v_cmp_lt_u32 vcc, 4, v212"); a("v_subb_co_u32 v214, vcc, v212, 0, vcc")
                a("v_cmp_eq_u32 vcc, 4, v212"); a("v_cndmask_b32 v214, v214, 8, vcc")
                a("v_mul_lo_u32 v213, v213, s64"); a("v_lshl_add_u32 v213, v214, 8, v213"); a("v_lshl_add_u32 v%d, v%d, 4, v213" % (208+t, V_R))
        else:
            a("s_mov_b32 s62, %d" % V_OFF); a("s_sub_u32 s63, s60, 18"); a("s_lshl_b32 s63, s63, 6")
            for t in range(4):
                a("s_lshl_b32 s46, s52, 1"); a("s_xor_b32 s46, s46, %d" % t); a("s_lshl_b32 s46, s46, 4"); a("s_add_u32 s46, s46, s63")
                a("v_add_u32 v212, s46, v%d" % V_R)
                a("v_mul_u32_u24 v213, 1821, v212"); a("v_lshrrev_b32 v213, 16, v213")
                a("v_mul_u32_u24 v214, 36, v213"); a("v_sub_u32 v212, v212, v214")
                a("v_lshl_add_u32 v214, v%d, 4, v212" % V_G)
                a("v_add_u32 v215, 44, v214")
                a("v_cmp_lt_u32 vcc, 19, v212"); a("v_cndmask_b32 v214, v214, v215, vcc")
                a("v_lshl_add_u32 v215, v212, 2, v%d" % V_G); a("v_add_u32 v215, 64, v215")
                a("v_lshrrev_b32 v212, 2, v212"); a("v_cmp_eq_u32 vcc, 4, v212"); a("v_cndmask_b32 v214, v214, v215, vcc")
                a("v_mul_lo_u32 v213, v213, s64"); a("v_lshl_add_u32 v%d, v214, 4, v213" % (208+t))
        a("s_add_u32 s65, s65, s62"); a("s_add_u32 s66, s66, s62")
        for x in dma(56): a(x)
        a("s_add_u32 s56, s56, 32768")
        if "burn" in ABL:
            for r in range(224, 240): a("v_mul_lo_u32 v%d, v%d, s64" % (r, 208 + (r & 3))); a("v_and_b32 v%d, 0xbfffbfff, v%d" % (r, r))
            Lb = a.newlabel("Lburn"); a("s_mov_b32 s75, 9"); a.label(Lb)
            for q in range(16): a(mfma(240+4*(q & 1), 224+4*(q & 3), 224+4*((q >> 2) & 3), 240+4*(q & 1)))
            a("s_sub_u32 s75, s75, 1"); a("s_cmp_lg_u32 s75, 0"); a("s_cbranch_scc1 %s" % Lb)
        a("s_waitcnt vmcnt(8)"); a("s_barrier")
        a.stamp("p1_first")
        for x in reads(0): a(x)
        a.label(L)
        a("s_cmp_ge_u32 s58, 7"); a("s_cbranch_scc1 %s_n" % L)
        for dm in (1, 0):
            d = dma(56) if (dm and "p1nodma" not in ABL) else []
            m = mm(0, swap)
            a("s_waitcnt lgkmcnt(0)")
            interleave(a, m[:14], reads(1))
            interleave(a, m[14:], d[:4])
            a("s_add_u32 s58, s58, 1")
            a("s_add_u32 s59, s59, 32768"); a("s_cmp_eq_u32 s59, 163840"); a("s_cselect_b32 s59, 0, s59")
            a("s_waitcnt vmcnt(%d) lgkmcnt(0)" % (4 if dm else 0))
            a("s_barrier")
            m = mm(1, swap); ad = addr("s59")
            interleave(a, m[:3], ad[4:6] + ad[0:4])
            interleave(a, m[3:15], reads(0) + ad[6:8])
            interleave(a, m[15:], d[4:])
            if dm:
                a("s_add_u32 s56, s56, 32768"); a("s_cmp_ge_u32 s56, 163840"); a("s_cselect_b32 s46, 163840, 0"); a("s_sub_u32 s56, s56, s46")
                a("s_branch %s" % L)
                a.label(L + "_n")
            else:
                a("s_cmp_lt_u32 s58, 9"); a("s_cbranch_scc1 %s_n" % L)
        a.stamp("p1_loop")
        a("s_waitcnt lgkmcnt(0)")
        a("v_and_b32 v40, 1, v%d" % V_R); a("v_cmp_eq_u32 s[74:75], 1, v40")
        a("v_and_b32 v40, 2, v%d" % V_R); a("v_cmp_eq_u32 s[76:77], 2, v40")
        a("v_lshrrev_b32 v40, 2, v%d" % V_R); a("v_cmp_eq_u32 s[78:79], v40, v%d" % V_G)
        a("s_mov_b32 s46, %d" % f32(1.0/576)); a("s_mov_b32 s47, %d" % f32(1e-5))
        for T in range(2):
            s_, q_ = ST+8*T, ST+8*T+4
            a("v_cndmask_b32 v%d, v%d, v%d, s[74:75]" % (q_, q_, q_+1)); a("v_cndmask_b32 v%d, v%d, v%d, s[74:75]" % (q_+2, q_+2, q_+3))
            a("v_mul_f32 v%d, s46, v%d" % (s_, s_))
            a("v_cndmask_b32 v%d, v%d, v%d, s[76:77]" % (q_, q_, q_+2))
            a("v_mul_f32 v42, v%d, v%d" % (s_, s_))
            a("v_fma_f32 v%d, v%d, s46, -v42" % (q_, q_)); a("v_max_f32 v%d, 0, v%d" % (q_, q_)); a("v_add_f32 v%d, s47, v%d" % (q_, q_))
            a("v_rsq_f32 v%d, v%d" % (36+2*T, q_)); a("v_mul_f32 v%d, v%d, -v%d" % (37+2*T, 36+2*T, s_))
        a("s_lshl_b32 s46, s52, 9"); a("s_lshl_b32 s47, s53, 8"); a("s_add_u32 s46, s46, s47")
        a("v_lshl_add_u32 v40, v%d, 3, s46" % V_R)
        a("s_mov_b64 exec, s[78:79]")
        if swap:
            a("v_lshrrev_b32 v42, 1, v40")
            for T in range(2): a("ds_write_b32 v42, v%d offset:%d" % (36+2*T, 64*T)); a("ds_write_b32 v42, v%d offset:%d" % (37+2*T, 512 + 64*T))
        else: a("ds_write_b64 v40, v[36:37]"); a("ds_write_b64 v40, v[38:39] offset:128")
        a("s_mov_b64 exec, -1")
        a("s_lshl_b32 s47, s57, 6")
        if not swap:
            a("v_lshl_add_u32 v41, v%d, 4, s47" % V_G)
            a("ds_write_b128 v41, v[%d:%d] offset:1024" % (CS, CS+3)); a("ds_write_b128 v41, v[%d:%d] offset:1088" % (CS+4, CS+7))
        else:
            a("v_lshl_add_u32 v41, v%d, 2, s47" % V_R)
            a("ds_write_b32 v41, v%d offset:1024" % CS); a("ds_write_b32 v41, v%d offset:1088" % (CS+4))
        a("s_waitcnt lgkmcnt(0)"); a("s_barrier")
        Ls = L + "_s"
        a("v_mov_b32 v36, 0"); a("v_mov_b32 v37, 0")
        a("s_cmp_ge_u32 s60, 27"); a("s_cbranch_scc1 %s" % Ls)
        a("v_xor_b32 v42, 256, v40"); a("v_xor_b32 v43, 128, v41")
        if not swap:
            RS, CC = 144, 160
            a("ds_read_b64 v[%d:%d], v40" % (RS, RS+1)); a("ds_read_b64 v[%d:%d], v40 offset:128" % (RS+2, RS+3))
            a("ds_read_b64 v[%d:%d], v42" % (RS+4, RS+5)); a("ds_read_b64 v[%d:%d], v42 offset:128" % (RS+6, RS+7))
            for t in range(4):
                a("ds_read_b128 v[%d:%d], v%d offset:%d" % (CC+4*t, CC+4*t+3, 41 if t < 2 else 43, 1024+64*(t&1)))
            a("s_waitcnt lgkmcnt(0)")
            for T in range(4): a("v_pk_mul_f32 v[%d:%d], v[%d:%d], s[72:73] op_sel:[0,1] op_sel_hi:[1,1]" % (RS+2*T, RS+2*T+1, RS+2*T, RS+2*T+1))
            for t in range(4):
                for T in range(4):
                    d = ACC+16*t+4*T
                    for h in range(2):
                        a("v_pk_mul_f32 v[%d:%d], v[%d:%d], v[%d:%d] op_sel:[0,1] op_sel_hi:[1,1]" % (216+2*h, 217+2*h, CC+4*t+2*h, CC+4*t+2*h+1, RS+2*T, RS+2*T+1))
                    for h in range(2):
                        a("v_pk_fma_f32 v[%d:%d], v[%d:%d], v[%d:%d], v[%d:%d] op_sel_hi:[1,0,1]" % (d+2*h, d+2*h+1, d+2*h, d+2*h+1, RS+2*T, RS+2*T+1, 216+2*h, 217+2*h))
                    e = ACC+16*t+8*(T>>1)+2*(T&1)
                    for h in range(2): a("v_max3_f32 v%d, |v%d|, |v%d|, v%d" % (36+h, d+2*h, d+2*h+1, 36+h))
                    a("v_cvt_pk_bf16_f32 v%d, v%d, v%d" % (e, d, d+1)); a("v_cvt_pk_bf16_f32 v%d, v%d, v%d" % (e+1, d+2, d+3))
                    if T & 1:
                        a("buffer_store_dwordx4 v[%d:%d], v%d, s[%d:%d], s%d offen sc1" % (e-2, e+1, 208+t, R_WS, R_WS+3, 65+(T>>1)))
        else:
            RS, CC = 144, 176
            a("s_lshr_b32 s46, s46, 1"); a("v_lshl_add_u32 v40, v%d, 4, s46" % V_G); a("v_xor_b32 v42, 128, v40")
            for T in range(4):
                for h in range(2):
                    a("ds_read_b128 v[%d:%d], v%d offset:%d" % (RS+8*T+4*h, RS+8*T+4*h+3, 40 if T < 2 else 42, 64*(T&1)+512*h))
            for t in range(4):
                a("ds_read_b32 v%d, v%d offset:%d" % (CC+2*t, 41 if t < 2 else 43, 1024+64*(t&1)))
            a("s_waitcnt lgkmcnt(0)")
            for t in range(4):
                for T in range(4):
                    d = ACC+16*t+4*T
                    for h in range(2):
                        a("v_pk_mul_f32 v[%d:%d], v[%d:%d], v[%d:%d] op_sel_hi:[1,0]" % (216+2*h, 217+2*h, RS+8*T+4+2*h, RS+8*T+5+2*h, CC+2*t, CC+2*t+1))
                    for h in range(2):
                        a("v_pk_fma_f32 v[%d:%d], v[%d:%d], v[%d:%d], v[%d:%d]" % (d+2*h, d+2*h+1, d+2*h, d+2*h+1, RS+8*T+2*h, RS+8*T+2*h+1, 216+2*h, 217+2*h))
                    e = ACC+16*t+8*(T>>1)+2*(T&1)
                    for h in range(2): a("v_max3_f32 v%d, |v%d|, |v%d|, v%d" % (36+h, d+2*h, d+2*h+1, 36+h))
                    a("v_cvt_pk_bf16_f32 v%d, v%d, v%d" % (e, d, d+1)); a("v_cvt_pk_bf16_f32 v%d, v%d, v%d" % (e+1, d+2, d+3))
                    if T & 1:
                        a("buffer_store_dwordx4 v[%d:%d], v%d, s[%d:%d], s%d offen sc1" % (e-2, e+1, 208+t, R_WS, R_WS+3, 65+(T>>1)))
        a.label(Ls)
        if not swap: a("s_branch L_p1_pub")
    a.label("L_p1_pub")
    a("v_max_f32 v36, v36, v37")
    a.xg_reduce(36, 37, "v_max_f32")
    for r in (8, 4, 2, 1): a("v_max_f32_dpp v36, v36, v36 row_ror:%d row_mask:0xf bank_mask:0xf" % r)
    a("s_lshl_b32 s46, s%d, 2" % S_WAVE); a("v_mov_b32 v37, s46"); a("ds_write_b32 v37, v36 offset:2048")
    if "d_p1" in ABL: a("s_sleep 64")
    a.stamp("p1_stores")
    L = a.newlabel("Lp1f")
    a("s_cmp_lg_u32 s%d, 0" % S_WAVE); a("s_cbranch_scc1 %s_a" % L)
    a.get_nonce(36)
    a.label(L + "_a")
    a("s_waitcnt vmcnt(0) lgkmcnt(0)"); a("s_barrier")
    a("s_cmp_lg_u32 s%d, 0" % S_WAVE); a("s_cbranch_scc1 L_p1_done")
    a("v_mov_b32 v38, 0"); a("ds_read_b128 v[40:43], v38 offset:2048")
    a("s_lshl_b32 s46, s50, 4"); a("s_add_u32 s46, s46, s51"); a("s_lshl_b32 s46, s46, 7"); a("s_add_u32 s46, s46, %d" % (FLAG0 + 128*F1))
    a("v_mov_b32 v36, s%d" % S_NONCE); a("s_mov_b64 exec, 1"); a("s_waitcnt lgkmcnt(0)")
    a("v_max3_f32 v37, v40, v41, v42"); a("v_max_f32 v37, v37, v43")
    a("buffer_store_dwordx2 v[36:37], v38, s[%d:%d], s46 offen sc1" % (R_WS, R_WS+3))
    a("s_mov_b64 exec, -1")
    a("s_branch L_p1_done")
    a.label("L_p1_helper")
    if "d_h1" in ABL: a("s_sleep 64")
    swizzle_setup(a)
    a("s_lshl_b32 s48, s%d, 2" % S_XCD); a("s_add_u32 s48, s48, s%d" % S_SLOT); a("s_sub_u32 s48, s48, 28")
    a("s_waitcnt lgkmcnt(0)")
    if WSOFF: a("s_add_u32 s24, s24, %d" % WSOFF); a("s_addc_u32 s25, s25, 0")
    a.srd(R_WS, S_WS, WS_END)
    publish_nonce(a)
    a("s_add_u32 s49, s48, 32"); a("s_cmp_lt_u32 s49, 54"); a("s_cselect_b32 s49, s49, s48")
    B = 36864
    mark_setup(a)
    if MK0: mark_fill(a, MK0)
    sw_issue(a, 48, 0, 0); sw_issue(a, 49, 1, B)
    if MK1: mark_fill(a, MK1)
    a("s_waitcnt vmcnt(0)"); a("s_barrier")
    sw_process(a, 0, 0); sw_process(a, 1, B)
    L = a.newlabel("Lhn"); a("s_cmp_lg_u32 s%d, 0" % S_WAVE); a("s_cbranch_scc1 %s" % L); a.get_nonce(36); a.label(L)
    a("s_waitcnt vmcnt(0)"); a("s_barrier")
    sw_flags(a, (0, 1))
    a.stamp("h_small")
    if MK0 + MK1 < MKG: mark_fill(a, MKG - MK0 - MK1)
    a("s_waitcnt vmcnt(0)"); a("s_barrier")
    sw_flags(a, (), mark=True)
    a.label("L_p1_done")
    a.stamp("p1_done")

def generate(stop=99, stamps=False):
    a = G(stop, stamps)
    prologue(a)
    phase1(a)
    from phases import phase2, phase345, phase6
    if stop >= 2: phase2(a)
    if stop >= 3: phase345(a)
    if stop >= 6: phase6(a)
    a.label("L_fin")
    a.stamp_out()
    a.label("L_end")
    a("s_endpgm")
    for x in a.stubs: a(x)
    a.label("L_last")
    body, nops = fix_hazards(a.lines)
    return body, nops

HEADER = """; Fused transformer block as one persistent kernel: 256 workgroups of 4 waves, one per CU (workgroups >= 256 exit).
;  1. qkv = LN(x) @ wqkv        128x128 tiles, LayerNorm folded into the epilogue (row sums / Gram diagonal / column sums by MFMA)
;  2. sliding-window attention  2 heads x 128 queries per workgroup; exp2 without shift only when a run-time bound on the scores
;                               proves it safe, otherwise the two-pass path that subtracts the true row maximum
;  3. h = x + o @ wo   4. t = gelu(LN(LN(h)) @ w1)   5. x1 = LN(h) + shift(t) @ w2        64x96 tiles
;  6. out = h + x1 + gelu(LN(x1) @ w3) @ w4             64 rows x 576 hidden units per workgroup, partial sums reduced across 8 workgroups
; Workgroups idle in a phase re-lay wo, w1, w2, w3 into MFMA fragment order in d_ws. All data handed between workgroups goes
; through d_ws with write-through (sc1) stores and sc1 loads, guarded either by flags holding a per-launch nonce (derived from
; d_ws word 0, announced through d_debug) or by a marker value written earlier in the same launch; every wait is bounded.
; id mod 8 only groups workgroups for L2 locality; any placement gives the same result.
; @launch grid=(256,1,1) block=(256,1,1) lds=163840
.amdgcn_target "amdgcn-amd-amdhsa--gfx950"
.text
.globl %s
.p2align 8
.type %s,@function
%s:
""" % (KN, KN, KN)
FOOTER = """.section .rodata,"a"
.p2align 6
.amdhsa_kernel %s
  .amdhsa_next_free_vgpr 512
  .amdhsa_next_free_sgpr 102
  .amdhsa_accum_offset 256
  .amdhsa_group_segment_fixed_size 0
  .amdhsa_kernarg_size 88
  .amdhsa_user_sgpr_count 2
  .amdhsa_user_sgpr_kernarg_segment_ptr 1
  .amdhsa_system_sgpr_workgroup_id_x 1
.end_amdhsa_kernel
""" % KN

def main():
    import argparse
    p = argparse.ArgumentParser()
    p.add_argument("--stop", type=int, default=99); p.add_argument("--stamps", default=""); p.add_argument("--wsoff", type=int, default=0); p.add_argument("--rt", action="store_true")
    p.add_argument("-o", default="k.s")
    o = p.parse_args()
    global WSOFF, CLK
    if o.rt: CLK = 's_memrealtime'
    WSOFF = o.wsoff << 20
    st = STAMPSETS.get(o.stamps, o.stamps.split(',')) if o.stamps else None
    if st:
        st = ['start'] + list(st) + ['end']; assert len(st) <= 16
        open(o.o[:-2] + '.stamps', 'w').write(','.join(st))
    body, nops = generate(o.stop, st)
    text = HEADER + "\n".join(("" if l.endswith(":") else "  ") + l for l in body) + "\n" + FOOTER
    open(o.o, "w").write(text)
    build(o.o, o.o[:-2] + ".co", KN)
    n = sum(1 for l in body if l and not l.endswith(":"))
    print("instructions", n, "nop states added", nops)
    seen = set()
    for nm, takes in TRACES.items():
        errs = check_waits(body, takes)
        for e in errs[:4]:
            if e not in seen: print("WAIT[%s]" % nm, e); seen.add(e)

STAMPSETS = {
 "all": "p1_first p1_loop p1_done p2_ready p2_loaded p2_done p3_ready p4_ready p5_ready p5_done p6_ready p6_x p6_a p6_b".split(),
 "p1": "p1_issue p1_first p1_loop p1_stores p1_done p2_ready p2_loaded p2_done p3_ready p4_ready p5_ready p5_done p6_ready p6_x".split(),
 "p3k": "p2_done p3_ready p3_k0 p3_k9 p3_gemm p4_ready p4_k0 p4_k9 p4_gemm p5_ready p5_k0 p5_k9 p5_gemm".split(),
 "hop": "p1_stores p1_done p2_ready p2_loaded p2_done p3_ready p3_epi p4_ready p4_epi p5_ready p5_epi p6_ready p6_x p6_b".split(),
 "p6": "p6_x p6_p0 p6_a p6_s0 p6_s1 p6_s5 p6_s6 p6_s7 p6_b p7_ready".split(),
 "h": "h_small p1_stores p1_done p2_setup p2_ready p2_loaded p2_done".split(),
 "p4k": "p3_k0 p3_k9 p3_gemm p3_epi p4_ready p4_k0 p4_k9 p4_gemm p4_epi p5_ready p5_k0 p5_k9 p5_gemm p5_epi".split(),
 "p6x": "p2_done h_w3 h_w4 p5_gemm p5_epi p5_done p6_ready p6_st p6_x9 p6_x17 p6_x p6_p0".split(),
 "crit": "p1_done p2_loaded p2_done h_w3 h_w4 p5_epi p6_ready p6_st p6_x p6_a p6_s6 p6_s7 p6_b".split(),
 "p3": "p2_done p3_dma p3_drain p3_ready p3_gemm p3_epi p4_dma p4_drain p4_ready p4_gemm p4_epi p5_drain p5_ready p5_gemm".split(),
}
TRACES = {"w012": {"L_p7_main": True, "L_p1_qk_n": [False,True,False]}, "h3": {"L_p3_helper": True, "L_p1_qk_n": [False,True,False]}, "slow": {"L_p2_slow": True, "L_p1_qk_n": [False,True,False]}, "edge": {"L_p2_edge": True, "L_p1_qk_n": [False,True,False]}, "qk": {"L_p1_qk_n": [False,False,True,True,False]}, "v": {"L_p1_v0": True, "L_p1_v_n": [False,False,True,True,False]}, "helper": {"L_p1_helper": True}}

if __name__ == "__main__":
    sys.modules["gen"] = sys.modules["__main__"]
    main()
```

```python
import sys, os, struct, math
sys.path.insert(0, "dev")
from asmlib import Asm, build
from hazard import fix_hazards, check_waits

NAME = "sequential_preLN__sliding_block__mixer_s_mlp__prompt"
KN = NAME + "_kernel"

ACT = 2048*576*2
SW  = 576*576*2
BW  = 576*4608*2
FLAG0 = 128
F1, FS, F2, F3, F4, F5, FA, FB = 0, 256, 640, 896, 1152, 1408, 1664, 2688
TS_OFF = 0x80000
Q_OFF  = 0x90000
K_OFF  = Q_OFF + ACT
V_OFF  = K_OFF + ACT
O_OFF  = V_OFF + ACT
H_OFF  = O_OFF + ACT
SH_OFF = H_OFF + ACT
T_OFF  = SH_OFF + 98304
X1_OFF = T_OFF + ACT
SX_OFF = X1_OFF + ACT
WO_S   = SX_OFF + 98304
W1_S   = WO_S + SW
W2_S   = W1_S + SW
W3_S   = W2_S + SW
W4_S   = W3_S + BW
PART   = W4_S + BW
WS_END = PART + 32*9*8*8192
FP_OFF = 0x7F000
FP2_OFF = FP_OFF + 1024
MARK_N = T_OFF - O_OFF
MKG = 19
MARK_W = 2048*MKG
assert 128*MARK_W >= MARK_N and 1024*5120 >= WO_S - T_OFF
HPSZ   = 147456

WSOFF = 0
MK0 = int(os.environ.get('MK0', 0))
MK1 = int(os.environ.get('MK1', 0))
THR = int(os.environ.get('THR', 0))
NW3 = int(os.environ.get('NW3', 0))
ABL = os.environ.get('ABL', '').split(',')
CLK = 's_memtime'
def f32(x): return struct.unpack("<I", struct.pack("<f", x))[0]
def magic(d): return (1 << 32)//d + 1

S_X, S_WQKV, S_WO = 4, 6, 8
S_W1, S_W2, S_W3, S_W4 = 12, 14, 16, 18
S_OUT, S_DBG, S_WS = 20, 22, 24
R_WS, R_A, R_B = 28, 32, 36
S_WAVE, S_XCD, S_SLOT, S_NONCE = 40, 41, 42, 43
S_ONES = 44
V_LANE, V_R, V_G, V_L16 = 1, 2, 3, 4

class G(Asm):
    def __init__(s, stop=99, stamps=False):
        super().__init__()
        s.stop = stop; s.stamps = stamps; s.stubs = []
    def srd(a, d, p, size, add=0):
        if add >= 0:
            a("s_add_u32 s%d, s%d, %s" % (d, p, add)); a("s_addc_u32 s%d, s%d, 0" % (d+1, p+1))
        else:
            a("s_sub_u32 s%d, s%d, %d" % (d, p, -add)); a("s_subb_u32 s%d, s%d, 0" % (d+1, p+1))
        a("s_mov_b32 s%d, %d" % (d+2, size)); a("s_mov_b32 s%d, 0x20000" % (d+3))
    def srd_s(a, d, p, size, sreg):
        a("s_add_u32 s%d, s%d, s%d" % (d, p, sreg)); a("s_addc_u32 s%d, s%d, 0" % (d+1, p+1))
        a("s_mov_b32 s%d, %d" % (d+2, size)); a("s_mov_b32 s%d, 0x20000" % (d+3))
    def sdiv(a, q, r, x, d):
        a("s_mul_hi_u32 s%d, s%d, %d" % (q, x, magic(d)))
        if r is not None:
            a("s_mul_i32 s%d, s%d, %d" % (r, q, d)); a("s_sub_u32 s%d, s%d, s%d" % (r, x, r))
    def jitter(a):
        L = a.newlabel("Ljit")
        a("s_memrealtime s[98:99]"); a("s_waitcnt lgkmcnt(0)")
        a("s_mul_i32 s98, s98, 0x9E3779B1"); a("s_mul_i32 s99, s2, 0x85EBCA6B"); a("s_add_u32 s98, s98, s99"); a("s_mul_i32 s99, s%d, 0x27D4EB2F" % S_WAVE)
        a("s_add_u32 s98, s98, s99"); a("s_lshr_b32 s99, s98, 29"); a("s_lshr_b32 s98, s98, 20"); a("s_and_b32 s98, s98, 127")
        a("s_cmp_lt_u32 s99, 5"); a("s_cselect_b32 s98, 0, s98")
        a.label(L)
        a("s_cmp_eq_u32 s98, 0"); a("s_cbranch_scc1 %s_x" % L); a("s_sleep 1"); a("s_sub_u32 s98, s98, 1"); a("s_branch %s" % L)
        a.label(L + "_x")
    def stamp(a, name):
        if "jitter" in ABL and name not in ("start", "end"): a.jitter()
        if not a.stamps or name not in a.stamps: return
        k = a.stamps.index(name)
        a("%s s[98:99]" % CLK); a("s_waitcnt lgkmcnt(0)"); a("s_mov_b32 s%d, s98" % (80+k))
    def stamp_out(a):
        if not a.stamps: return
        a.stamp("end")
        a("s_lshl_b32 s98, s2, 2"); a("s_add_u32 s98, s98, s%d" % S_WAVE); a("s_lshl_b32 s98, s98, 6"); a("s_add_u32 s98, s98, %d" % TS_OFF)
        a("v_mov_b32 v255, 0")
        for k in range(16):
            a("v_mov_b32 v254, s%d" % (80+k))
            a("buffer_store_dword v254, v255, s[%d:%d], s98 offen offset:%d" % (R_WS, R_WS+3, 4*k))
            a("s_nop 1")
    def xg_reduce(a, v, t, op="v_add_f32"):
        for sw in ("v_permlane32_swap_b32", "v_permlane16_swap_b32"):
            a("v_mov_b32 v%d, v%d" % (t, v)); a("%s v%d, v%d" % (sw, v, t)); a("%s v%d, v%d, v%d" % (op, v, v, t))
    def get_nonce(a, vt):
        L = a.newlabel("Lnon")
        a("s_mov_b32 s46, 200000"); a("v_mov_b32 v%d, 0" % (vt+2))
        a.label(L)
        a("global_load_dwordx2 v[%d:%d], v%d, s[%d:%d] sc1" % (vt, vt+1, vt+2, S_DBG, S_DBG+1))
        a("s_waitcnt vmcnt(0)")
        a("v_readfirstlane_b32 s47, v%d" % (vt+1)); a("v_readfirstlane_b32 s%d, v%d" % (S_NONCE, vt))
        a("s_sub_u32 s46, s46, 1"); a("s_cbranch_scc1 %s_x" % L)
        a("s_cmp_eq_u32 s47, 0"); a("s_cbranch_scc1 %s" % L)
        a.label(L + "_x")
    def set_flag(a, sidx, vt):
        a("s_lshl_b32 s%d, s%d, 7" % (sidx, sidx)); a("s_add_u32 s%d, s%d, %d" % (sidx, sidx, FLAG0))
        a("v_mov_b32 v%d, s%d" % (vt, S_NONCE)); a("v_mov_b32 v%d, 0" % (vt+1))
        a("s_mov_b64 exec, 1")
        a("buffer_store_dword v%d, v%d, s[%d:%d], s%d offen sc1" % (vt, vt+1, R_WS, R_WS+3, sidx))
        a("s_mov_b64 exec, -1")
    def set_mark(a, vt, off):
        a("s_lshl_b32 s46, s2, 2"); a("s_add_u32 s46, s46, %d" % off)
        a("v_mov_b32 v%d, s%d" % (vt, S_NONCE)); a("v_mov_b32 v%d, 0" % (vt+1))
        a("s_mov_b64 exec, 1")
        a("buffer_store_dword v%d, v%d, s[%d:%d], s46 offen sc1" % (vt, vt+1, R_WS, R_WS+3))
        a("s_mov_b64 exec, -1")
    def poll(a, vidx, vt, sleep0=6, sleep=2, two=False):
        L = a.newlabel("Lpoll")
        a("v_lshlrev_b32 v%d, 7, v%d" % (vidx, vidx))
        a("s_mov_b32 s46, 100000")
        if sleep0: a("s_sleep %d" % sleep0)
        a.label(L)
        if two: a("buffer_load_dwordx2 v[%d:%d], v%d, s[%d:%d], 0 offen offset:%d sc1" % (vt, vt+1, vidx, R_WS, R_WS+3, FLAG0))
        else: a("buffer_load_dword v%d, v%d, s[%d:%d], 0 offen offset:%d sc1" % (vt, vidx, R_WS, R_WS+3, FLAG0))
        a("s_waitcnt vmcnt(0)")
        a("v_cmp_ne_u32 vcc, s%d, v%d" % (S_NONCE, vt))
        a("s_cbranch_vccz %s_x" % L)
        a("s_sleep %d" % sleep)
        a("s_sub_u32 s46, s46, 1"); a("s_cbranch_scc0 %s" % L)
        a.label(L + "_x")

def mfma(d, A, B, C=None, ta="v", tb="v", td="v"):
    c = "0" if C is None else "%s[%d:%d]" % (td, C, C+3)
    return "v_mfma_f32_16x16x32_bf16 %s[%d:%d], %s[%d:%d], %s[%d:%d], %s" % (td, d, d+3, ta, A, A+3, tb, B, B+3, c)

def interleave(a, main, fill, start=0):
    n = len(main) - start; k = 0
    for i, m in enumerate(main):
        a(m)
        if i >= start:
            upto = (len(fill)*(i-start+1) + n - 1)//n
            while k < upto: a(fill[k]); k += 1

def prologue(a):
    a("s_cmp_ge_u32 s2, 256"); a("s_cbranch_scc1 L_end")
    a("s_load_dwordx4 s[4:7], s[0:1], 0")
    a("s_load_dwordx2 s[24:25], s[0:1], 80")
    a("s_load_dwordx2 s[8:9], s[0:1], 16")
    a("s_load_dwordx8 s[12:19], s[0:1], 32")
    a("s_load_dwordx4 s[20:23], s[0:1], 64")
    a("v_and_b32 v%d, 63, v0" % V_LANE)
    a("v_lshrrev_b32 v5, 6, v0")
    a("v_and_b32 v%d, 15, v0" % V_R)
    a("v_readfirstlane_b32 s%d, v5" % S_WAVE)
    a("v_lshrrev_b32 v%d, 4, v%d" % (V_G, V_LANE))
    a("v_lshlrev_b32 v%d, 4, v%d" % (V_L16, V_LANE))
    if "antiloc" in ABL:
        a("s_lshr_b32 s46, s2, 5"); a("s_and_b32 s47, s2, 31"); a("s_lshl_b32 s47, s47, 3"); a("s_or_b32 s2, s46, s47")
    a("s_and_b32 s%d, s2, 7" % S_XCD); a("s_lshr_b32 s%d, s2, 3" % S_SLOT)
    a("s_mov_b32 s%d, 0x3f803f80" % S_ONES)
    if "nopf" not in ABL:
        a("s_getpc_b64 s[46:47]")
        a.label("L_pc")
        a("s_mul_i32 s48, s%d, %d" % (S_SLOT, 24*128)); a("v_lshl_add_u32 v5, v0, 7, s48")
        a("v_cmp_gt_u32 vcc, 24, v0"); a("s_mov_b32 s48, L_last-L_pc"); a("v_cmp_gt_u32 s[48:49], s48, v5"); a("s_and_b64 vcc, vcc, s[48:49]")
        a("s_and_saveexec_b64 s[48:49], vcc"); a("s_cbranch_execz L_pcd")
        a("global_load_dword v253, v5, s[46:47]")
        a.label("L_pcd")
        a("s_mov_b64 exec, -1")
    if a.stamps:
        for k in range(16): a("s_mov_b32 s%d, 0" % (80+k))
        a.stamp("start")

def publish_nonce(a):
    L = a.newlabel("Lpn")
    a("s_xor_b32 s46, s2, 224"); a("s_or_b32 s46, s46, s%d" % S_WAVE); a("s_cmp_lg_u32 s46, 0"); a("s_cbranch_scc1 %s" % L)
    a("v_mov_b32 v252, 0")
    a("buffer_load_dword v250, v252, s[%d:%d], 0 offen sc1" % (R_WS, R_WS+3))
    a("s_mov_b32 s46, 0x9E3779B1")
    a("s_waitcnt vmcnt(0)")
    a("v_mul_lo_u32 v250, v250, s46"); a("v_add_u32 v250, 0x7F4A7C15, v250"); a("v_mov_b32 v251, 1")
    a("s_mov_b64 exec, 1")
    a("buffer_store_dword v250, v252, s[%d:%d], 0 offen sc1" % (R_WS, R_WS+3))
    a("global_store_dwordx2 v252, v[250:251], s[%d:%d] sc1" % (S_DBG, S_DBG+1))
    a("s_mov_b64 exec, -1")
    a.label(L)

def swizzle_setup(a):
    for i in range(9):
        a("v_add_u32 v40, %d, v%d" % (64*i, V_LANE))
        a("v_mul_u32_u24 v%d, 911, v40" % (10+i)); a("v_lshrrev_b32 v%d, 16, v%d" % (10+i, 10+i))
        a("v_mul_u32_u24 v41, 72, v%d" % (10+i)); a("v_sub_u32 v41, v40, v41"); a("v_lshlrev_b32 v%d, 4, v41" % (20+i))
    a("v_lshrrev_b32 v40, 2, v%d" % V_R); a("v_lshl_add_u32 v40, v%d, 3, v40" % V_G); a("v_mul_u32_u24 v40, 1152, v40")
    a("v_and_b32 v41, 3, v%d" % V_R); a("v_lshl_add_u32 v30, v41, 4, v40")
    a("s_lshr_b32 s46, s%d, 1" % S_WAVE); a("s_lshl_b32 s46, s46, 6"); a("s_and_b32 s47, s%d, 1" % S_WAVE); a("s_lshl_b32 s47, s47, 3")
    a("s_add_u32 s46, s46, s47"); a("v_add_u32 v30, s46, v30")

def sw_decode(a, su, p):
    Ln = a.newlabel("Lsw")
    D = 60+3*p
    a("s_cmp_ge_u32 s%d, 54" % su); a("s_cbranch_scc1 %s_big" % Ln)
    a.sdiv(51, 52, su, 18)
    a("s_cmp_eq_u32 s51, 1"); a("s_cselect_b32 s54, s%d, s%d" % (S_W1, S_W2)); a("s_cselect_b32 s55, s%d, s%d" % (S_W1+1, S_W2+1))
    a("s_cmp_eq_u32 s51, 0"); a("s_cselect_b32 s54, s%d, s54" % S_WO); a("s_cselect_b32 s55, s%d, s55" % (S_WO+1))
    a("s_mul_i32 s%d, s51, %d" % (D, SW)); a("s_add_u32 s%d, s%d, %d" % (D, D, WO_S))
    a("s_mul_i32 s53, s%d, 18432" % S_WAVE); a("s_add_u32 s%d, s%d, s53" % (D, D))
    a("s_mov_b32 s%d, 73728" % (D+1))
    a("s_lshl_b32 s56, s52, 5"); a("s_lshl_b32 s53, s%d, 3" % S_WAVE); a("s_add_u32 s56, s56, s53")
    a("s_mov_b32 s57, 0"); a("s_mov_b32 s59, 1152")
    a("s_cmp_lg_u32 s51, 0"); a("s_cbranch_scc1 %s_j" % Ln)
    a("s_mul_i32 s56, s52, 36"); a("s_lshl_b32 s53, s%d, 2" % S_WAVE); a("s_add_u32 s56, s56, s53"); a("s_mov_b32 s57, 16")
    a("s_cmp_lt_u32 s52, 16"); a("s_cbranch_scc1 %s_j" % Ln)
    a("s_sub_u32 s56, s52, 16"); a("s_lshl_b32 s56, s56, 2"); a("s_add_u32 s56, s56, s%d" % S_WAVE)
    a("s_mul_i32 s56, s56, 72"); a("s_add_u32 s56, s56, 16"); a("s_mov_b32 s57, 32")
    a("s_branch %s_j" % Ln)
    a.label(Ln + "_big")
    sw_big(a, su, D)
    a("s_lshl_b32 s56, s52, 5"); a("s_lshl_b32 s53, s%d, 3" % S_WAVE); a("s_add_u32 s56, s56, s53"); a("s_mov_b32 s57, 0")
    a("s_cmp_ge_u32 s51, 8"); a("s_cbranch_scc1 %s_w4" % Ln)
    a("s_mul_i32 s53, s51, 1152"); a("s_add_u32 s54, s%d, s53" % S_W3); a("s_addc_u32 s55, s%d, 0" % (S_W3+1)); a("s_mov_b32 s59, 9216")
    a("s_branch %s_j" % Ln)
    a.label(Ln + "_w4")
    a("s_sub_u32 s53, s51, 8"); a("s_mul_i32 s53, s53, %d" % SW); a("s_add_u32 s54, s%d, s53" % S_W4); a("s_addc_u32 s55, s%d, 0" % (S_W4+1)); a("s_mov_b32 s59, 1152")
    a.label(Ln + "_j")
    a("s_lshl_b32 s53, s52, 10"); a("s_add_u32 s%d, s%d, s53" % (D, D))
    a("s_add_u32 s%d, s%d, %d" % (D+2, su, FS))

def sw_big(a, su, D):
    a("s_sub_u32 s53, s%d, 54" % su); a.sdiv(51, 52, 53, 18)
    a("s_mul_i32 s%d, s51, %d" % (D, 4*9*18432)); a("s_add_u32 s%d, s%d, %d" % (D, D, W3_S))
    a("s_mul_i32 s53, s%d, %d" % (S_WAVE, 9*18432)); a("s_add_u32 s%d, s%d, s53" % (D, D))
    a("s_mov_b32 s%d, 18432" % (D+1))

def sw_issue(a, su, p, lds):
    sw_decode(a, su, p)
    a("s_mov_b32 s%d, s54" % R_A); a("s_mov_b32 s%d, s55" % (R_A+1))
    a("s_mul_i32 s%d, s59, 575" % (R_A+2)); a("s_add_u32 s%d, s%d, 1152" % (R_A+2, R_A+2)); a("s_mov_b32 s%d, 0x20000" % (R_A+3))
    a("s_mul_i32 s53, s%d, 9216" % S_WAVE); a("s_add_u32 m0, s53, %d" % lds)
    for k in range(9):
        a("v_lshrrev_b32 v40, 2, v%d" % (10+k)); a("v_mul_lo_u32 v40, v40, s57"); a("v_add3_u32 v40, v40, v%d, s56" % (10+k))
        a("v_mul_lo_u32 v40, v40, s59"); a("v_add_u32 v40, v40, v%d" % (20+k))
        a("buffer_load_dwordx4 v40, s[%d:%d], 0 offen lds" % (R_A, R_A+3))
        a("s_add_u32 m0, m0, 1024")

def sw_process(a, p, lds):
    a("v_add_u32 v31, %d, v30" % lds)
    for q in range(9):
        for hh in range(2):
            a("ds_read_b64_tr_b16 v[%d:%d], v31 offset:%d" % (44+4*q+2*hh, 45+4*q+2*hh, hh*4608 + 128*q))
    a("s_mov_b32 s53, s%d" % (60+3*p))
    for q in range(9):
        a("s_waitcnt lgkmcnt(%d)" % min(15, 16-2*q))
        a("buffer_store_dwordx4 v[%d:%d], v%d, s[%d:%d], s53 offen sc1" % (44+4*q, 47+4*q, V_L16, R_WS, R_WS+3))
        a("s_add_u32 s53, s53, s%d" % (61+3*p))

def sw_flags(a, ps, mark=False):
    L = a.newlabel("Lswf")
    a("s_cmp_lg_u32 s%d, 0" % S_WAVE); a("s_cbranch_scc1 %s" % L)
    for p in ps: a.set_flag(62+3*p, 40)
    if mark: a.set_mark(40, FP_OFF - 4*224)
    a.label(L)

MK, R_M = 220, 76

def mark_setup(a):
    a.srd(R_M, S_WS, MARK_N, O_OFF)
    for r in range(4): a("v_mov_b32 v%d, -1" % (MK+r))
    a("s_sub_u32 s74, s2, %d" % 224); a("s_lshl_b32 s74, s74, 2"); a("s_add_u32 s74, s74, s%d" % S_WAVE); a("s_mul_i32 s74, s74, %d" % MARK_W)

def mark_fill(a, n):
    L = a.newlabel("Lmk")
    a("s_mov_b32 s75, %d" % n)
    a.label(L)
    a(mark_store(74, 0)); a(mark_store(74, 1024)); a("s_add_u32 s74, s74, 2048"); a("s_waitcnt vmcnt(40)")
    a("s_sub_u32 s75, s75, 1"); a("s_cmp_lg_u32 s75, 0"); a("s_cbranch_scc1 %s" % L)

def mark_store(s, off): return "buffer_store_dwordx4 v[%d:%d], v%d, s[%d:%d], s%d offen offset:%d sc1" % (MK, MK+3, V_L16, R_M, R_M+3, s, off)

def touch_pages(a):
    if "tlb" not in ABL: return
    L = a.newlabel("Ltp")
    a("s_cmp_lg_u32 s%d, 1" % S_WAVE); a("s_cbranch_scc1 %s" % L)
    a("v_lshlrev_b32 v252, 21, v%d" % V_LANE)
    a("buffer_load_dword v253, v252, s[%d:%d], 0 offen offset:64" % (R_WS, R_WS+3))
    for p, size in ((S_W3, BW), (S_W4, BW), (S_OUT, ACT), (S_WO, SW), (S_W1, SW), (S_W2, SW)):
        n = (size - 1 >> 21) + 1
        a("s_mov_b64 exec, %d" % ((1 << n) - 1))
        a("global_load_dword v253, v252, s[%d:%d]" % (p, p+1))
    a("s_mov_b64 exec, -1")
    a.label(L)

def touch_inputs(a, nwg):
    nx, nw = -(-18432//(2*nwg)), -(-15552//(2*nwg))
    a("s_mul_i32 s46, s50, 14"); a("s_add_u32 s46, s46, s51"); a("s_lshl_b32 s46, s46, 1"); a("s_add_u32 s46, s46, s53")
    a("v_lshlrev_b32 v252, 7, v%d" % V_LANE)
    L = a.newlabel("Lti")
    a("s_cmp_lg_u32 s52, 0"); a("s_cbranch_scc1 %s_w" % L)
    a("s_mul_i32 s46, s46, %d" % (128*nx)); a("s_add_u32 s46, s46, 4096"); a("s_mov_b64 exec, 0x%x" % ((1 << nx) - 1) if nx <= 32 else "s_bfm_b64 exec, %d, 0" % nx)
    a("buffer_load_dword v253, v252, s[%d:%d], s46 offen" % (R_A, R_A+3))
    a("s_branch %s" % L)
    a.label(L + "_w")
    a("s_mul_i32 s46, s46, %d" % (128*nw)); a("s_add_u32 s46, s46, 4096"); a("s_bfm_b64 exec, %d, 0" % nw)
    a("buffer_load_dword v253, v252, s[%d:%d], s46 offen" % (R_B, R_B+3))
    a.label(L)
    a("s_mov_b64 exec, -1")

def phase1(a):
    QS = 18**-0.5 * math.log2(math.e)
    a("s_cmp_ge_u32 s%d, 28" % S_SLOT); a("s_cbranch_scc1 L_p1_helper")
    a.sdiv(46, 47, S_SLOT, 7)
    a("s_lshr_b32 s48, s%d, 1" % S_XCD); a("s_lshl_b32 s48, s48, 2"); a("s_add_u32 s50, s48, s46")
    a("s_and_b32 s48, s%d, 1" % S_XCD); a("s_mul_i32 s48, s48, 7"); a("s_add_u32 s51, s48, s47")
    a("s_lshr_b32 s52, s%d, 1" % S_WAVE); a("s_and_b32 s53, s%d, 1" % S_WAVE)
    a("v_lshrrev_b32 v20, 3, v%d" % V_LANE); a("v_and_b32 v21, 7, v%d" % V_LANE)
    a("v_xor_b32 v22, v21, v%d" % V_G); a("v_mul_u32_u24 v20, 1152, v20")
    a("v_lshl_add_u32 v10, v22, 4, v20"); a("v_xor_b32 v22, 4, v22"); a("v_lshl_add_u32 v11, v22, 4, v20")
    a("v_add_u32 v12, %d, v10" % (16*1152 - 2048 + 4096)); a("v_add_u32 v13, %d, v11" % (24*1152 - 3072 + 4096))
    a("v_add_u32 v11, %d, v11" % (8*1152 - 1024 + 4096)); a("v_add_u32 v10, 4096, v10")
    a("v_lshrrev_b32 v20, 1, v%d" % V_R); a("v_xor_b32 v20, v20, v%d" % V_G); a("v_and_b32 v21, 1, v%d" % V_LANE)
    a("v_lshl_add_u32 v21, v20, 1, v21"); a("v_mul_u32_u24 v22, 3456, v%d" % V_G)
    a("v_lshl_add_u32 v14, v21, 4, v22"); a("v_xor_b32 v21, 8, v21"); a("v_lshl_add_u32 v16, v21, 4, v22")
    a("v_add_u32 v15, %d, v14" % (4*3456 - 1024 + 4096)); a("v_add_u32 v17, %d, v16" % (12*3456 - 3072 + 4096))
    a("v_add_u32 v16, %d, v16" % (8*3456 - 2048 + 4096)); a("v_add_u32 v14, 4096, v14")
    a("s_lshl_b32 s54, s50, 2"); a("s_add_u32 s54, s54, s%d" % S_WAVE); a("s_mul_i32 s54, s54, %d" % (32*1152))
    a("s_mul_i32 s55, s%d, %d" % (S_WAVE, 16*3456)); a("s_lshl_b32 s46, s51, 8"); a("s_add_u32 s55, s55, s46")
    a("s_lshl_b32 s56, s%d, 12" % S_WAVE)
    a("s_waitcnt lgkmcnt(0)")
    if WSOFF: a("s_add_u32 s24, s24, %d" % WSOFF); a("s_addc_u32 s25, s25, 0")
    a.srd(R_A, S_X, ACT + 4096, -4096); a.srd(R_B, S_WQKV, 576*3456 + 4096, -4096)
    a.sdiv(46, 47, S_SLOT, 7)
    a("s_and_b32 s48, s%d, 1" % S_XCD); a("s_add_u32 s46, s46, s48"); a("s_lshl_b32 s46, s46, 1"); a("s_add_u32 s46, s46, s47")
    a("s_bfe_u32 s47, s%d, 0x10001" % S_XCD); a("s_add_u32 s46, s46, s47"); a("s_and_b32 s47, s%d, 4" % S_XCD); a("s_lshl_b32 s47, s47, 1"); a("s_add_u32 s46, s46, s47")
    if "rot8" not in ABL: a.sdiv(47, 67, 46, 9)
    else:
        a("s_and_b32 s70, s46, 7"); a("s_mov_b32 s67, 0")
    def dma(sbuf):
        X = ["buffer_load_dwordx4 v%d, s[%d:%d], s68 offen offset:%d lds" % (10+j, R_A, R_A+3, 1024*j) for j in range(4)]
        W = ["buffer_load_dwordx4 v%d, s[%d:%d], s69 offen offset:%d lds" % (14+j, R_B, R_B+3, 1024*j) for j in range(4)]
        X[0] = "s_mov_b32 m0, s%d\ns_lshl_b32 s68, s67, 7\ns_add_u32 s68, s68, s54\n" % sbuf + X[0]
        X[1] = "s_mul_i32 s69, s67, %d\ns_add_u32 s69, s69, s55\n" % (64*3456) + X[1]
        X[2] = "s_add_u32 s67, s67, 1\ns_cmp_eq_u32 s67, 9\ns_cselect_b32 s67, %d, s67\n" % (0 if "rot8" not in ABL else 1) + X[2]
        W[0] = "s_add_u32 m0, s%d, 16384\ns_nop 0\n" % sbuf + W[0]
        return X + W
    for x in dma(56): a(x)
    a("s_add_u32 s56, s56, 32768")
    if "rot8" in ABL: a("s_add_u32 s67, s67, s70")
    if "p1touch" in ABL: touch_inputs(a, 224)
    a.stamp("p1_issue")
    a.srd(R_WS, S_WS, WS_END)
    touch_pages(a)
    a("v_lshrrev_b32 v30, 2, v%d" % V_R); a("v_and_b32 v31, 3, v%d" % V_R)
    a("v_lshl_add_u32 v32, v%d, 3, v30" % V_G); a("v_lshlrev_b32 v32, 8, v32"); a("v_lshl_add_u32 v32, v31, 3, v32")
    a("v_add_u32 v32, 16384, v32")
    a("v_and_b32 v33, 1, v%d" % V_G); a("v_lshl_add_u32 v33, v33, 2, v30")
    a("s_lshl_b32 s46, s53, 2"); a("s_lshl_b32 s47, s52, 1"); a("s_or_b32 s57, s46, s47")
    for t in range(4):
        a("s_xor_b32 s46, s57, %d" % t); a("v_xor_b32 v34, s46, v33"); a("v_lshl_add_u32 v%d, v34, 5, v32" % (20+t))
    a("v_lshrrev_b32 v30, 1, v%d" % V_R); a("v_xor_b32 v30, v30, v%d" % V_G); a("v_lshlrev_b32 v31, 7, v%d" % V_R)
    a("s_lshl_b32 s46, s52, 13"); a("s_lshl_b32 s47, s53, 12"); a("s_add_u32 s46, s46, s47"); a("s_xor_b32 s47, s46, 4096")
    a("v_lshl_add_u32 v32, v30, 4, v31"); a("v_xor_b32 v33, 64, v32")
    a("v_add_u32 v24, s46, v32"); a("v_add_u32 v25, s47, v32"); a("v_add_u32 v26, s46, v33"); a("v_add_u32 v27, s47, v33")
    ACC, CS, ST, ONE = 48, 112, 120, 140
    XB = (144, 160); WB = (176, 192)
    WA, XA = 28, 32
    for r in range(ACC, ONE): a("v_mov_b32 v%d, 0" % r)
    for r in range(4): a("v_mov_b32 v%d, s%d" % (ONE+r, S_ONES))
    def addr(sbase):
        return ["v_add_u32 v%d, %s, v%d" % (WA+i, sbase, 20+i) for i in range(8)]
    def reads(jj):
        o = []
        for T in range(4):
            o.append("ds_read_b128 v[%d:%d], v%d offset:%d" % (XB[jj]+4*T, XB[jj]+4*T+3, XA+2*jj+(T>>1), 2048*(T&1)))
            for hh in range(2):
                o.append("ds_read_b64_tr_b16 v[%d:%d], v%d offset:%d" % (WB[jj]+4*T+2*hh, WB[jj]+4*T+2*hh+1, WA+T, jj*8192+hh*1024))
        return o
    def mm(jj, swap):
        o = []
        for t in range(4):
            for T in range(4):
                d = ACC+16*t+4*T
                o.append(mfma(d, XB[jj]+4*T, WB[jj]+4*t, d) if swap else mfma(d, WB[jj]+4*t, XB[jj]+4*T, d))
            if t < 2:
                d = CS+4*t
                o.append(mfma(d, ONE, WB[jj]+4*t, d) if swap else mfma(d, WB[jj]+4*t, ONE, d))
            x = XB[jj]+4*(t>>1); d = ST+4*t
            o.append(mfma(d, x if t & 1 else ONE, x, d))
        return o
    for x in addr("0"): a(x)
    a("s_lshl_b32 s60, s51, 1"); a("s_add_u32 s60, s60, s53")
    a("s_lshl_b32 s46, s50, 1"); a("s_add_u32 s46, s46, s52"); a("s_lshl_b32 s46, s46, 1"); a("s_add_u32 s47, s46, s53")
    a("s_xor_b32 s46, s47, 1"); a("s_mul_i32 s65, s47, 2304"); a("s_mul_i32 s66, s46, 2304"); a("s_mov_b32 s64, %d" % HPSZ)
    a("s_mov_b32 s58, 0"); a("s_mov_b32 s59, 0")
    a("s_cmp_ge_u32 s51, 9"); a("s_cbranch_scc1 L_p1_v0")
    for swap in (0, 1):
        L = "L_p1_v" if swap else "L_p1_qk"
        a.label(L + "0")
        if not swap:
            a("s_mov_b32 s62, %d" % Q_OFF); a("s_cmp_ge_u32 s60, 9"); a("s_cselect_b32 s61, 144, 0"); a("s_cselect_b32 s62, %d, s62" % K_OFF)
            a("s_cselect_b32 s73, 1.0, %d" % f32(QS))
            a("s_lshl_b32 s63, s60, 4"); a("s_sub_u32 s63, s63, s61")
            for t in range(4):
                a("s_lshl_b32 s46, s52, 1"); a("s_xor_b32 s46, s46, %d" % t); a("s_lshl_b32 s46, s46, 2"); a("s_add_u32 s46, s46, s63")
                a("v_add_u32 v212, s46, v%d" % V_G)
                a("v_mul_u32_u24 v213, 7282, v212"); a("v_lshrrev_b32 v213, 16, v213")
                a("v_mul_u32_u24 v214, 9, v213"); a("v_sub_u32 v212, v212, v214")
                a("v_cmp_lt_u32 vcc, 4, v212"); a("v_subb_co_u32 v214, vcc, v212, 0, vcc")
                a("v_cmp_eq_u32 vcc, 4, v212"); a("v_cndmask_b32 v214, v214, 8, vcc")
                a("v_mul_lo_u32 v213, v213, s64"); a("v_lshl_add_u32 v213, v214, 8, v213"); a("v_lshl_add_u32 v%d, v%d, 4, v213" % (208+t, V_R))
        else:
            a("s_mov_b32 s62, %d" % V_OFF); a("s_sub_u32 s63, s60, 18"); a("s_lshl_b32 s63, s63, 6")
            for t in range(4):
                a("s_lshl_b32 s46, s52, 1"); a("s_xor_b32 s46, s46, %d" % t); a("s_lshl_b32 s46, s46, 4"); a("s_add_u32 s46, s46, s63")
                a("v_add_u32 v212, s46, v%d" % V_R)
                a("v_mul_u32_u24 v213, 1821, v212"); a("v_lshrrev_b32 v213, 16, v213")
                a("v_mul_u32_u24 v214, 36, v213"); a("v_sub_u32 v212, v212, v214")
                a("v_lshl_add_u32 v214, v%d, 4, v212" % V_G)
                a("v_add_u32 v215, 44, v214")
                a("v_cmp_lt_u32 vcc, 19, v212"); a("v_cndmask_b32 v214, v214, v215, vcc")
                a("v_lshl_add_u32 v215, v212, 2, v%d" % V_G); a("v_add_u32 v215, 64, v215")
                a("v_lshrrev_b32 v212, 2, v212"); a("v_cmp_eq_u32 vcc, 4, v212"); a("v_cndmask_b32 v214, v214, v215, vcc")
                a("v_mul_lo_u32 v213, v213, s64"); a("v_lshl_add_u32 v%d, v214, 4, v213" % (208+t))
        a("s_add_u32 s65, s65, s62"); a("s_add_u32 s66, s66, s62")
        for x in dma(56): a(x)
        a("s_add_u32 s56, s56, 32768")
        if "burn" in ABL:
            for r in range(224, 240): a("v_mul_lo_u32 v%d, v%d, s64" % (r, 208 + (r & 3))); a("v_and_b32 v%d, 0xbfffbfff, v%d" % (r, r))
            Lb = a.newlabel("Lburn"); a("s_mov_b32 s75, 9"); a.label(Lb)
            for q in range(16): a(mfma(240+4*(q & 1), 224+4*(q & 3), 224+4*((q >> 2) & 3), 240+4*(q & 1)))
            a("s_sub_u32 s75, s75, 1"); a("s_cmp_lg_u32 s75, 0"); a("s_cbranch_scc1 %s" % Lb)
        a("s_waitcnt vmcnt(8)"); a("s_barrier")
        a.stamp("p1_first")
        for x in reads(0): a(x)
        a.label(L)
        a("s_cmp_ge_u32 s58, 7"); a("s_cbranch_scc1 %s_n" % L)
        for dm in (1, 0):
            d = dma(56) if (dm and "p1nodma" not in ABL) else []
            m = mm(0, swap)
            a("s_waitcnt lgkmcnt(0)")
            interleave(a, m[:14], reads(1))
            interleave(a, m[14:], d[:4])
            a("s_add_u32 s58, s58, 1")
            a("s_add_u32 s59, s59, 32768"); a("s_cmp_eq_u32 s59, 163840"); a("s_cselect_b32 s59, 0, s59")
            a("s_waitcnt vmcnt(%d) lgkmcnt(0)" % (4 if dm else 0))
            a("s_barrier")
            if not dm: a("s_cmp_eq_u32 s58, 9"); a("s_cbranch_scc1 %s_e" % L)
            m = mm(1, swap); ad = addr("s59")
            interleave(a, m[:3], ad[4:6] + ad[0:4])
            interleave(a, m[3:15], reads(0) + ad[6:8])
            interleave(a, m[15:], d[4:])
            if dm:
                a("s_add_u32 s56, s56, 32768"); a("s_cmp_ge_u32 s56, 163840"); a("s_cselect_b32 s46, 163840, 0"); a("s_sub_u32 s56, s56, s46")
                a("s_branch %s" % L)
                a.label(L + "_n")
            else:
                a("s_branch %s_n" % L)
        a.label(L + "_e")
        m = mm(1, swap)
        sd = [x for x in m if int(x.split("[")[1].split(":")[0]) >= CS]
        for x in sd: a(x)
        h = G()
        h("v_and_b32 v40, 1, v%d" % V_R); h("v_cmp_eq_u32 s[74:75], 1, v40")
        h("v_and_b32 v40, 2, v%d" % V_R); h("v_cmp_eq_u32 s[76:77], 2, v40")
        h("v_lshrrev_b32 v40, 2, v%d" % V_R); h("v_cmp_eq_u32 s[78:79], v40, v%d" % V_G)
        h("s_mov_b32 s46, %d" % f32(1.0/576)); h("s_mov_b32 s47, %d" % f32(1e-5))
        for T in range(2):
            s_, q_ = ST+8*T, ST+8*T+4
            h("v_cndmask_b32 v%d, v%d, v%d, s[74:75]" % (q_, q_, q_+1)); h("v_cndmask_b32 v%d, v%d, v%d, s[74:75]" % (q_+2, q_+2, q_+3))
            h("v_mul_f32 v%d, s46, v%d" % (s_, s_))
            h("v_cndmask_b32 v%d, v%d, v%d, s[76:77]" % (q_, q_, q_+2))
            h("v_mul_f32 v42, v%d, v%d" % (s_, s_))
            h("v_fma_f32 v%d, v%d, s46, -v42" % (q_, q_)); h("v_max_f32 v%d, 0, v%d" % (q_, q_)); h("v_add_f32 v%d, s47, v%d" % (q_, q_))
            h("v_rsq_f32 v%d, v%d" % (36+2*T, q_)); h("v_mul_f32 v%d, v%d, -v%d" % (37+2*T, 36+2*T, s_))
        h("s_lshl_b32 s46, s52, 9"); h("s_lshl_b32 s47, s53, 8"); h("s_add_u32 s46, s46, s47")
        h("v_lshl_add_u32 v40, v%d, 3, s46" % V_R)
        n0 = len(h.lines); h("s_mov_b64 exec, s[78:79]")
        if swap:
            h("v_lshrrev_b32 v42, 1, v40")
            for T in range(2): h("ds_write_b32 v42, v%d offset:%d" % (36+2*T, 64*T)); h("ds_write_b32 v42, v%d offset:%d" % (37+2*T, 512 + 64*T))
        else: h("ds_write_b64 v40, v[36:37]"); h("ds_write_b64 v40, v[38:39] offset:128")
        h("s_mov_b64 exec, -1"); h.lines[n0:] = ["\n".join(h.lines[n0:])]
        h("s_lshl_b32 s47, s57, 6")
        if not swap:
            h("v_lshl_add_u32 v41, v%d, 4, s47" % V_G)
            h("ds_write_b128 v41, v[%d:%d] offset:1024" % (CS, CS+3)); h("ds_write_b128 v41, v[%d:%d] offset:1088" % (CS+4, CS+7))
        else:
            h("v_lshl_add_u32 v41, v%d, 2, s47" % V_R)
            h("ds_write_b32 v41, v%d offset:1024" % CS); h("ds_write_b32 v41, v%d offset:1088" % (CS+4))
        m = [x for x in m if x not in sd]
        interleave(a, m[:3], h.lines[:8])
        interleave(a, m[3:], h.lines[8:])
        a.stamp("p1_loop")
        a("s_waitcnt lgkmcnt(0)"); a("s_barrier")
        Ls = L + "_s"
        a("v_mov_b32 v36, 0"); a("v_mov_b32 v37, 0")
        a("s_cmp_ge_u32 s60, 27"); a("s_cbranch_scc1 %s" % Ls)
        a("v_xor_b32 v42, 256, v40"); a("v_xor_b32 v43, 128, v41")
        if not swap:
            RS, CC = 144, 160
            a("ds_read_b64 v[%d:%d], v40" % (RS, RS+1)); a("ds_read_b64 v[%d:%d], v40 offset:128" % (RS+2, RS+3))
            a("ds_read_b64 v[%d:%d], v42" % (RS+4, RS+5)); a("ds_read_b64 v[%d:%d], v42 offset:128" % (RS+6, RS+7))
            for t in range(4):
                a("ds_read_b128 v[%d:%d], v%d offset:%d" % (CC+4*t, CC+4*t+3, 41 if t < 2 else 43, 1024+64*(t&1)))
            a("s_waitcnt lgkmcnt(0)")
            for T in range(4): a("v_pk_mul_f32 v[%d:%d], v[%d:%d], s[72:73] op_sel:[0,1] op_sel_hi:[1,1]" % (RS+2*T, RS+2*T+1, RS+2*T, RS+2*T+1))
            for t in range(4):
                for T in range(4):
                    d = ACC+16*t+4*T
                    for h in range(2):
                        a("v_pk_mul_f32 v[%d:%d], v[%d:%d], v[%d:%d] op_sel:[0,1] op_sel_hi:[1,1]" % (216+2*h, 217+2*h, CC+4*t+2*h, CC+4*t+2*h+1, RS+2*T, RS+2*T+1))
                    for h in range(2):
                        a("v_pk_fma_f32 v[%d:%d], v[%d:%d], v[%d:%d], v[%d:%d] op_sel_hi:[1,0,1]" % (d+2*h, d+2*h+1, d+2*h, d+2*h+1, RS+2*T, RS+2*T+1, 216+2*h, 217+2*h))
                    e = ACC+16*t+8*(T>>1)+2*(T&1)
                    for h in range(2): a("v_max3_f32 v%d, |v%d|, |v%d|, v%d" % (36+h, d+2*h, d+2*h+1, 36+h))
                    a("v_cvt_pk_bf16_f32 v%d, v%d, v%d" % (e, d, d+1)); a("v_cvt_pk_bf16_f32 v%d, v%d, v%d" % (e+1, d+2, d+3))
                    if T & 1:
                        a("buffer_store_dwordx4 v[%d:%d], v%d, s[%d:%d], s%d offen sc1" % (e-2, e+1, 208+t, R_WS, R_WS+3, 65+(T>>1)))
        else:
            RS, CC = 144, 176
            a("s_lshr_b32 s46, s46, 1"); a("v_lshl_add_u32 v40, v%d, 4, s46" % V_G); a("v_xor_b32 v42, 128, v40")
            for T in range(4):
                for h in range(2):
                    a("ds_read_b128 v[%d:%d], v%d offset:%d" % (RS+8*T+4*h, RS+8*T+4*h+3, 40 if T < 2 else 42, 64*(T&1)+512*h))
            for t in range(4):
                a("ds_read_b32 v%d, v%d offset:%d" % (CC+2*t, 41 if t < 2 else 43, 1024+64*(t&1)))
            a("s_waitcnt lgkmcnt(0)")
            for t in range(4):
                for T in range(4):
                    d = ACC+16*t+4*T
                    for h in range(2):
                        a("v_pk_mul_f32 v[%d:%d], v[%d:%d], v[%d:%d] op_sel_hi:[1,0]" % (216+2*h, 217+2*h, RS+8*T+4+2*h, RS+8*T+5+2*h, CC+2*t, CC+2*t+1))
                    for h in range(2):
                        a("v_pk_fma_f32 v[%d:%d], v[%d:%d], v[%d:%d], v[%d:%d]" % (d+2*h, d+2*h+1, d+2*h, d+2*h+1, RS+8*T+2*h, RS+8*T+2*h+1, 216+2*h, 217+2*h))
                    e = ACC+16*t+8*(T>>1)+2*(T&1)
                    for h in range(2): a("v_max3_f32 v%d, |v%d|, |v%d|, v%d" % (36+h, d+2*h, d+2*h+1, 36+h))
                    a("v_cvt_pk_bf16_f32 v%d, v%d, v%d" % (e, d, d+1)); a("v_cvt_pk_bf16_f32 v%d, v%d, v%d" % (e+1, d+2, d+3))
                    if T & 1:
                        a("buffer_store_dwordx4 v[%d:%d], v%d, s[%d:%d], s%d offen sc1" % (e-2, e+1, 208+t, R_WS, R_WS+3, 65+(T>>1)))
        a.label(Ls)
        if not swap: a("s_branch L_p1_pub")
    a.label("L_p1_pub")
    a("v_max_f32 v36, v36, v37")
    a.xg_reduce(36, 37, "v_max_f32")
    for r in (8, 4, 2, 1): a("v_max_f32_dpp v36, v36, v36 row_ror:%d row_mask:0xf bank_mask:0xf" % r)
    a("s_lshl_b32 s46, s%d, 2" % S_WAVE); a("v_mov_b32 v37, s46"); a("ds_write_b32 v37, v36 offset:2048")
    if "d_p1" in ABL: a("s_sleep 64")
    a.stamp("p1_stores")
    L = a.newlabel("Lp1f")
    a("s_cmp_lg_u32 s%d, 0" % S_WAVE); a("s_cbranch_scc1 %s_a" % L)
    a.get_nonce(36)
    a.label(L + "_a")
    a("s_waitcnt vmcnt(0) lgkmcnt(0)"); a("s_barrier")
    a("s_cmp_lg_u32 s%d, 0" % S_WAVE); a("s_cbranch_scc1 L_p1_done")
    a("v_mov_b32 v38, 0"); a("ds_read_b128 v[40:43], v38 offset:2048")
    a("s_lshl_b32 s46, s50, 4"); a("s_add_u32 s46, s46, s51"); a("s_lshl_b32 s46, s46, 7"); a("s_add_u32 s46, s46, %d" % (FLAG0 + 128*F1))
    a("v_mov_b32 v36, s%d" % S_NONCE); a("s_mov_b64 exec, 1"); a("s_waitcnt lgkmcnt(0)")
    a("v_max3_f32 v37, v40, v41, v42"); a("v_max_f32 v37, v37, v43")
    a("buffer_store_dwordx2 v[36:37], v38, s[%d:%d], s46 offen sc1" % (R_WS, R_WS+3))
    a("s_mov_b64 exec, -1")
    a("s_branch L_p1_done")
    a.label("L_p1_helper")
    if "d_h1" in ABL: a("s_sleep 64")
    swizzle_setup(a)
    a("s_lshl_b32 s48, s%d, 2" % S_XCD); a("s_add_u32 s48, s48, s%d" % S_SLOT); a("s_sub_u32 s48, s48, 28")
    a("s_waitcnt lgkmcnt(0)")
    if WSOFF: a("s_add_u32 s24, s24, %d" % WSOFF); a("s_addc_u32 s25, s25, 0")
    a.srd(R_WS, S_WS, WS_END)
    publish_nonce(a)
    a("s_add_u32 s49, s48, 32"); a("s_cmp_lt_u32 s49, 54"); a("s_cselect_b32 s49, s49, s48")
    B = 36864
    mark_setup(a)
    if MK0: mark_fill(a, MK0)
    sw_issue(a, 48, 0, 0); sw_issue(a, 49, 1, B)
    if MK1: mark_fill(a, MK1)
    a("s_waitcnt vmcnt(0)"); a("s_barrier")
    sw_process(a, 0, 0); sw_process(a, 1, B)
    L = a.newlabel("Lhn"); a("s_cmp_lg_u32 s%d, 0" % S_WAVE); a("s_cbranch_scc1 %s" % L); a.get_nonce(36); a.label(L)
    a("s_waitcnt vmcnt(0)"); a("s_barrier")
    sw_flags(a, (0, 1))
    a.stamp("h_small")
    if MK0 + MK1 < MKG: mark_fill(a, MKG - MK0 - MK1)
    a("s_waitcnt vmcnt(0)"); a("s_barrier")
    sw_flags(a, (), mark=True)
    a.label("L_p1_done")
    a.stamp("p1_done")

def generate(stop=99, stamps=False):
    a = G(stop, stamps)
    prologue(a)
    phase1(a)
    from phases import phase2, phase345, phase6
    if stop >= 2: phase2(a)
    if stop >= 3: phase345(a)
    if stop >= 6: phase6(a)
    a.label("L_fin")
    a.stamp_out()
    a.label("L_end")
    a("s_endpgm")
    for x in a.stubs: a(x)
    a.label("L_last")
    body, nops = fix_hazards(a.lines)
    return body, nops

HEADER = """; Fused transformer block as one persistent kernel: 256 workgroups of 4 waves, one per CU (workgroups >= 256 exit).
;  1. qkv = LN(x) @ wqkv        128x128 tiles, LayerNorm folded into the epilogue (row sums / Gram diagonal / column sums by MFMA)
;  2. sliding-window attention  2 heads x 128 queries per workgroup; exp2 without shift only when a run-time bound on the scores
;                               proves it safe, otherwise the two-pass path that subtracts the true row maximum
;  3. h = x + o @ wo   4. t = gelu(LN(LN(h)) @ w1)   5. x1 = LN(h) + shift(t) @ w2        64x96 tiles
;  6. out = h + x1 + gelu(LN(x1) @ w3) @ w4             64 rows x 576 hidden units per workgroup, partial sums reduced across 8 workgroups
; Workgroups idle in a phase re-lay wo, w1, w2, w3 into MFMA fragment order in d_ws. All data handed between workgroups goes
; through d_ws with write-through (sc1) stores and sc1 loads, guarded either by flags holding a per-launch nonce (derived from
; d_ws word 0, announced through d_debug) or by a marker value written earlier in the same launch; every wait is bounded.
; id mod 8 only groups workgroups for L2 locality; any placement gives the same result.
; @launch grid=(256,1,1) block=(256,1,1) lds=163840
.amdgcn_target "amdgcn-amd-amdhsa--gfx950"
.text
.globl %s
.p2align 8
.type %s,@function
%s:
""" % (KN, KN, KN)
FOOTER = """.section .rodata,"a"
.p2align 6
.amdhsa_kernel %s
  .amdhsa_next_free_vgpr 512
  .amdhsa_next_free_sgpr 102
  .amdhsa_accum_offset 256
  .amdhsa_group_segment_fixed_size 0
  .amdhsa_kernarg_size 88
  .amdhsa_user_sgpr_count 2
  .amdhsa_user_sgpr_kernarg_segment_ptr 1
  .amdhsa_system_sgpr_workgroup_id_x 1
.end_amdhsa_kernel
""" % KN

def main():
    import argparse
    p = argparse.ArgumentParser()
    p.add_argument("--stop", type=int, default=99); p.add_argument("--stamps", default=""); p.add_argument("--wsoff", type=int, default=0); p.add_argument("--rt", action="store_true")
    p.add_argument("-o", default="k.s")
    o = p.parse_args()
    global WSOFF, CLK
    if o.rt: CLK = 's_memrealtime'
    WSOFF = o.wsoff << 20
    st = STAMPSETS.get(o.stamps, o.stamps.split(',')) if o.stamps else None
    if st:
        st = ['start'] + list(st) + ['end']; assert len(st) <= 16
        open(o.o[:-2] + '.stamps', 'w').write(','.join(st))
    body, nops = generate(o.stop, st)
    text = HEADER + "\n".join(("" if l.endswith(":") else "  ") + l for l in body) + "\n" + FOOTER
    open(o.o, "w").write(text)
    build(o.o, o.o[:-2] + ".co", KN)
    n = sum(1 for l in body if l and not l.endswith(":"))
    print("instructions", n, "nop states added", nops)
    seen = set()
    for nm, takes in TRACES.items():
        errs = check_waits(body, takes)
        for e in errs[:4]:
            if e not in seen: print("WAIT[%s]" % nm, e); seen.add(e)

STAMPSETS = {
 "all": "p1_first p1_loop p1_done p2_ready p2_loaded p2_done p3_ready p4_ready p5_ready p5_done p6_ready p6_x p6_a p6_b".split(),
 "p1": "p1_issue p1_first p1_loop p1_stores p1_done p2_ready p2_loaded p2_done p3_ready p4_ready p5_ready p5_done p6_ready p6_x".split(),
 "p3k": "p2_done p3_ready p3_k0 p3_k9 p3_gemm p4_ready p4_k0 p4_k9 p4_gemm p5_ready p5_k0 p5_k9 p5_gemm".split(),
 "hop": "p1_stores p1_done p2_ready p2_loaded p2_done p3_ready p3_epi p4_ready p4_epi p5_ready p5_epi p6_ready p6_x p6_b".split(),
 "p6": "p6_x p6_p0 p6_a p6_s0 p6_s1 p6_s5 p6_s6 p6_s7 p6_b p7_ready".split(),
 "h": "h_small p1_stores p1_done p2_setup p2_ready p2_loaded p2_done".split(),
 "p4k": "p3_k0 p3_k9 p3_gemm p3_epi p4_ready p4_k0 p4_k9 p4_gemm p4_epi p5_ready p5_k0 p5_k9 p5_gemm p5_epi".split(),
 "p6x": "p2_done h_w3 h_w4 p5_gemm p5_epi p5_done p6_ready p6_st p6_x9 p6_x17 p6_x p6_p0".split(),
 "crit": "p1_done p2_loaded p2_done h_w3 h_w4 p5_epi p6_ready p6_st p6_x p6_a p6_s6 p6_s7 p6_b".split(),
 "p3": "p2_done p3_dma p3_drain p3_ready p3_gemm p3_epi p4_dma p4_drain p4_ready p4_gemm p4_epi p5_drain p5_ready p5_gemm".split(),
}
TRACES = {"w012": {"L_p7_main": True, "L_p1_qk_n": [False,True], "L_p1_qk_e": [False,True]}, "h3": {"L_p3_helper": True, "L_p1_qk_n": [False,True], "L_p1_qk_e": [False,True]}, "slow": {"L_p2_slow": True, "L_p1_qk_n": [False,True], "L_p1_qk_e": [False,True]}, "edge": {"L_p2_edge": True, "L_p1_qk_n": [False,True], "L_p1_qk_e": [False,True]}, "qk": {"L_p1_qk_n": [False,False,True], "L_p1_qk_e": [False,True]}, "v": {"L_p1_v0": True, "L_p1_v_n": [False,False,True], "L_p1_v_e": [False,True]}, "helper": {"L_p1_helper": True}}

if __name__ == "__main__":
    sys.modules["gen"] = sys.modules["__main__"]
    main()
```
